```python
import torch

def _softmax(x, axis=-1):
    return torch.softmax(x, dim=axis)

def _gelu(x):
    return torch.nn.functional.gelu(x, approximate='tanh')

def _silu(x):
    return torch.nn.functional.silu(x)

def _sigmoid(x):
    return torch.sigmoid(x)

def _layernorm(x, axis=-1, eps=1e-05):
    m = x.mean(dim=axis, keepdim=True)
    v = x.var(dim=axis, keepdim=True, unbiased=False)
    return (x - m) / torch.sqrt(v + eps)

def _scatter_add(tgt, idx, src, axis=0):
    return tgt.clone().index_add_(axis, idx, src)

def _segment_sum(src, seg, n):
    out = torch.zeros((n,) + src.shape[1:], dtype=src.dtype)
    return out.index_add_(0, seg, src)

def _pad(x, pw):
    flat = tuple((v for pair in reversed(pw) for v in pair))
    return torch.nn.functional.pad(x, flat)
kernel_name = 'recurrent_scan__memory_aug_recurrent_mem_tr__dense_activation_relu__prompt'

def setup_inputs():

    _w = lambda a: (lambda t: t.to(torch.bfloat16) if t.is_floating_point() else t)(torch.as_tensor(a))

    def _A_setup():
        B, S, Dm = (1, 2048, 640)
        H, Dh = (32, 192)
        M, seg = (8, 32)
        seg = min(seg, S)
        S = S // seg * seg
        return {'x': _w((lambda *s: torch.randn(*s, dtype=torch.bfloat16) * 0.05)(B, S, Dm)), 'mem0': _w((lambda *s: torch.randn(*s, dtype=torch.bfloat16) * 0.2)(B, M, Dm)), 'Wq': _w((lambda *s: torch.randn(*s, dtype=torch.bfloat16) * 0.8)(Dm, H, Dh) * Dm ** (-0.5)), 'Wk': _w((lambda *s: torch.randn(*s, dtype=torch.bfloat16) * 0.8)(Dm, H, Dh) * Dm ** (-0.5)), 'Wv': _w((lambda *s: torch.randn(*s, dtype=torch.bfloat16) * 0.2)(Dm, H, Dh) * Dm ** (-0.5)), 'Wo': _w((lambda *s: torch.randn(*s, dtype=torch.bfloat16) * 0.2)(H, Dh, Dm) * (H * Dh) ** (-0.5)), 'seg_len': seg}
    _A_in = _A_setup()

    def _B_setup():
        B, S, D, Dff = (1, 2048, 640, 1536)
        return {'x': _w((lambda *s: torch.randn(*s, dtype=torch.bfloat16) * 0.05)(B, S, D)), 'w1': _w((lambda *s: torch.randn(*s, dtype=torch.bfloat16) * 0.1)(D, Dff)), 'w2': _w((lambda *s: torch.randn(*s, dtype=torch.bfloat16) * 0.1)(Dff, D))}
    _B_in = _B_setup()
    return {'A_x': _A_in['x'], 'A_mem0': _A_in['mem0'], 'A_Wq': _A_in['Wq'], 'A_Wk': _A_in['Wk'], 'A_Wv': _A_in['Wv'], 'A_Wo': _A_in['Wo'], 'A_seg_len': _A_in['seg_len'], 'B_x': _B_in['x'], 'B_w1': _B_in['w1'], 'B_w2': _B_in['w2']}

def reference(A_x, A_mem0, A_Wq, A_Wk, A_Wv, A_Wo, A_seg_len, B_x, B_w1, B_w2):

    def _A_ref(x, mem0, Wq, Wk, Wv, Wo, seg_len):
        B, S, Dm = x.shape
        H, Dh = (Wq.shape[1], Wq.shape[2])
        M = mem0.shape[1]
        scale = Dh ** (-0.5)
        n_seg = S // seg_len
        L = M + seg_len
        idx = torch.arange(L)
        mask = (idx[:, None] < M) | (idx[:, None] >= idx[None, :])
        mem = mem0
        outs = []
        for s in range(n_seg):
            xs = x[:, s * seg_len:(s + 1) * seg_len, :].clone()
            h = torch.concatenate([mem, xs], axis=1)
            q = torch.einsum('btd,dhe->bhte', h, Wq)
            k = torch.einsum('btd,dhe->bhte', h, Wk)
            v = torch.einsum('btd,dhe->bhte', h, Wv)
            scores = torch.einsum('bhqe,bhke->bhqk', q, k) * scale
            scores = torch.where(mask[None, None], scores, -1000000000.0)
            p = _softmax(scores, axis=-1)
            o = torch.einsum('bhqk,bhke->bhqe', p, v)
            o = torch.einsum('bhte,hed->btd', o, Wo)
            mem = o[:, :M, :].clone()
            outs.append(o[:, M:, :])
        return torch.concatenate(outs, axis=1)

    def _B_ref(x, w1, w2):
        h = torch.einsum('bsd,df->bsf', x, w1)
        zero = torch.zeros_like(h)
        h = torch.maximum(h, zero)
        return torch.einsum('bsf,fd->bsd', h, w2)
    x = A_x
    xn = _layernorm(x, axis=-1)
    s = _A_ref(xn, A_mem0, A_Wq, A_Wk, A_Wv, A_Wo, A_seg_len)
    g = _silu(_B_ref(xn, B_w1, B_w2))
    return x + s * g
```

```python
class Em:
    def __init__(self):
        self.lines = []
        self.nlab = 0
    def I(self, s):
        for l in s.strip().split('\n'):
            l = l.strip()
            if l:
                self.lines.append('    ' + l)
    def L(self, name):
        self.lines.append(name + ':')
    def C(self, s):
        self.lines.append('    ; ' + s)
    def raw(self, s):
        self.lines.append(s)
    def lab(self, base='L'):
        self.nlab += 1
        return f'{base}_{self.nlab}'
    def text(self):
        return '\n'.join(self.lines) + '\n'

def v(i, n=1):
    return f'v{i}' if n == 1 else f'v[{i}:{i+n-1}]'
def a(i, n=1):
    return f'a{i}' if n == 1 else f'a[{i}:{i+n-1}]'
def s(i, n=1):
    return f's{i}' if n == 1 else f's[{i}:{i+n-1}]'

def kernel_head(e, name):
    e.raw('.text')
    e.raw(f'.globl {name}')
    e.raw('.p2align 8')
    e.raw(f'.type {name},@function')
    e.raw(f'{name}:')

def kernel_desc(e, name, vgpr, sgpr, accum):
    e.raw('.section .rodata,"a"')
    e.raw('.p2align 6')
    e.raw(f'.amdhsa_kernel {name}')
    e.raw(f'  .amdhsa_next_free_vgpr {vgpr}')
    e.raw(f'  .amdhsa_next_free_sgpr {sgpr}')
    e.raw(f'  .amdhsa_accum_offset {accum}')
    e.raw('  .amdhsa_group_segment_fixed_size 0')
    e.raw('  .amdhsa_kernarg_size 104')
    e.raw('  .amdhsa_user_sgpr_count 2')
    e.raw('  .amdhsa_user_sgpr_kernarg_segment_ptr 1')
    e.raw('  .amdhsa_system_sgpr_workgroup_id_x 1')
    e.raw('.end_amdhsa_kernel')

def srd(e, d, base, nbytes):
    e.I(f's_mov_b32 s{d}, s{base}')
    e.I(f's_and_b32 s{d+1}, s{base+1}, 0xffff')
    e.I(f's_mov_b32 s{d+2}, {nbytes:#x}')
    e.I(f's_mov_b32 s{d+3}, 0x00020000')
```

```python
from asmlib import *
from layout import *
N_LN, N_TR, N_Z, N_S, N_M = 128, 240, 8, N_SENT_WG, 8
PRE_GRID = N_LN + N_TR + N_Z + N_S + N_M
PRE_LDS = 16384
def bf16_round(e, dst, src, tmp=None):
    e.I(f'v_cvt_pk_bf16_f32 {dst}, {src}, {src}')
    e.I(f'v_and_b32 {dst}, 0xffff0000, {dst}')
def xlane_sum(e, x, t):
    e.I(f'v_add_f32_dpp v{x}, v{x}, v{x} row_ror:8 row_mask:0xf bank_mask:0xf')
    e.I(f'v_add_f32_dpp v{x}, v{x}, v{x} row_ror:4 row_mask:0xf bank_mask:0xf')
    e.I(f'v_mov_b32 v{t}, v{x}')
    e.I(f'v_permlane16_swap_b32 v{x}, v{t}')
    e.I(f'v_add_f32 v{x}, v{x}, v{t}')
    e.I(f'v_mov_b32 v{t}, v{x}')
    e.I(f'v_permlane32_swap_b32 v{x}, v{t}')
    e.I(f'v_add_f32 v{x}, v{x}, v{t}')
def gen_pre(e, name):
    kernel_head(e, name)
    e.I(f's_cmp_ge_u32 s2, {PRE_GRID}')
    e.I('s_cbranch_scc1 P_end')
    e.I('s_load_dwordx4 s[24:27], s[0:1], 0')
    e.I('s_load_dwordx4 s[28:31], s[0:1], 64')
    e.I('s_load_dwordx2 s[32:33], s[0:1], 96')
    e.I('v_and_b32 v1, 63, v0')
    e.I('v_lshrrev_b32 v2, 6, v0')
    e.I('v_readfirstlane_b32 s22, v2')
    e.I('s_waitcnt lgkmcnt(0)')
    srd(e, 4, 32, WS_BYTES)
    srd(e, 8, 24, 2048 * 1280)
    srd(e, 12, 26, 8 * 1280)
    srd(e, 16, 28, 640 * 3072)
    srd(e, 36, 30, 1536 * 1280)
    e.I(f's_cmp_ge_u32 s2, {N_LN}')
    e.I('s_cbranch_scc1 P_notln')
    e.I('v_and_b32 v3, 3, v1')
    e.I('v_lshrrev_b32 v4, 2, v1')
    e.I('s_lshl_b32 s40, s22, 2')
    e.I('v_add_u32 v3, s40, v3')
    e.I('s_mul_i32 s41, s2, 20480')
    e.I('v_mul_u32_u24 v5, 1280, v3')
    e.I('v_lshl_add_u32 v5, v4, 4, v5')
    for m in range(5):
        e.I(f'buffer_load_dwordx4 v[{8+4*m}:{11+4*m}], v5, s[8:11], s41 offen offset:{256*m}')
    e.I('v_lshrrev_b32 v6, 2, v4')
    e.I('v_lshlrev_b32 v6, 10, v6')
    e.I('v_and_b32 v7, 3, v4')
    e.I('v_lshl_add_u32 v6, v7, 8, v6')
    e.I('v_lshl_add_u32 v6, v3, 4, v6')
    e.I(f's_add_u32 s42, s41, {XN}')
    e.I('s_waitcnt vmcnt(0)')
    F = 32
    for d in range(20):
        e.I(f'v_lshlrev_b32 v{F+2*d}, 16, v{8+d}')
        e.I(f'v_and_b32 v{F+2*d+1}, 0xffff0000, v{8+d}')
    e.I(f'v_add_f32 v72, v{F}, v{F+1}')
    e.I(f'v_add_f32 v73, v{F+2}, v{F+3}')
    for d in range(4, 40, 2):
        e.I(f'v_add_f32 v72, v72, v{F+d}')
        e.I(f'v_add_f32 v73, v73, v{F+d+1}')
    e.I('v_add_f32 v72, v72, v73')
    xlane_sum(e, 72, 73)
    e.I(f'v_mul_f32 v72, {1.0/640!r}, v72'.replace(repr(1.0/640), '0x3acccccd'))
    e.I('v_mov_b32 v74, 0')
    e.I('v_mov_b32 v75, 0')
    for d in range(0, 40, 2):
        e.I(f'v_sub_f32 v76, v{F+d}, v72')
        e.I(f'v_sub_f32 v77, v{F+d+1}, v72')
        e.I('v_fmac_f32 v74, v76, v76')
        e.I('v_fmac_f32 v75, v77, v77')
    e.I('v_add_f32 v74, v74, v75')
    xlane_sum(e, 74, 73)
    e.I('v_mul_f32 v74, 0x3acccccd, v74')
    bf16_round(e, 'v74', 'v74')
    e.I('v_add_f32 v74, 0x3727c5ac, v74')
    bf16_round(e, 'v74', 'v74')
    e.I('v_sqrt_f32 v74, v74')
    bf16_round(e, 'v74', 'v74')
    e.I('v_rcp_f32 v74, v74')
    bf16_round(e, 'v72', 'v72')
    for d in range(20):
        a_, b_ = F + 2 * d, F + 2 * d + 1
        e.I(f'v_sub_f32 v{a_}, v{a_}, v72')
        e.I(f'v_sub_f32 v{b_}, v{b_}, v72')
        e.I(f'v_cvt_pk_bf16_f32 v{8+d}, v{a_}, v{b_}')
        e.I(f'v_lshlrev_b32 v{a_}, 16, v{8+d}')
        e.I(f'v_and_b32 v{b_}, 0xffff0000, v{8+d}')
        e.I(f'v_mul_f32 v{a_}, v{a_}, v74')
        e.I(f'v_mul_f32 v{b_}, v{b_}, v74')
        e.I(f'v_cvt_pk_bf16_f32 v{8+d}, v{a_}, v{b_}')
    for m in range(5):
        e.I(f's_add_u32 s43, s42, {4096*m}')
        e.I(f'buffer_store_dwordx4 v[{8+4*m}:{11+4*m}], v6, s[4:7], s43 offen')
    e.I('s_endpgm')
    e.L('P_notln')
    e.I(f's_cmp_ge_u32 s2, {N_LN+N_TR}')
    e.I('s_cbranch_scc1 P_nottr')
    e.I(f's_sub_u32 s40, s2, {N_LN}')
    e.I('v_lshrrev_b32 v3, 3, v1')
    e.I('v_and_b32 v4, 7, v1')
    e.I('v_lshrrev_b32 v8, 4, v1')
    e.I('v_bfe_u32 v9, v1, 2, 2')
    e.I('v_and_b32 v10, 3, v1')
    e.I('v_lshlrev_b32 v2, 4, v1')
    e.I('s_lshl_b32 s44, s22, 12')
    e.I('s_cmp_ge_u32 s40, 120')
    e.I('s_cbranch_scc1 P_w2')
    for which in (1, 2):
        if which == 2:
            e.L('P_w2')
            e.I('s_sub_u32 s40, s40, 120')
        RS = 3072 if which == 1 else 1280
        S = 16 if which == 1 else 36
        div = 5 if which == 1 else 12
        mul, sh = (205, 10) if which == 1 else (171, 11)
        e.I(f's_mul_i32 s41, s40, {mul}')
        e.I(f's_lshr_b32 s41, s41, {sh}')
        e.I(f's_mul_i32 s42, s41, {div}')
        e.I('s_sub_u32 s42, s40, s42')
        e.I(f'v_mul_u32_u24 v5, {RS}, v3')
        e.I('v_lshl_add_u32 v5, v4, 4, v5')
        e.I('s_lshl_b32 s43, s42, 2')
        e.I('s_add_u32 s43, s43, s22')
        e.I(f's_mul_i32 s45, s43, {32*RS}')
        e.I('s_lshl_b32 s46, s41, 7')
        e.I('s_add_u32 s45, s45, s46')
        for n in range(4):
            e.I(f's_add_u32 m0, s44, {n*1024}')
            e.I(f's_add_u32 s46, s45, {n*8*RS}')
            e.I(f'buffer_load_dwordx4 v5, s[{S}:{S+3}], s46 offen lds')
        if which == 1:
            e.I('v_lshl_add_u32 v11, v8, 3, v9')
            second = 512
        else:
            e.I('v_lshl_add_u32 v11, v8, 2, v9')
            second = 2048
        e.I('v_lshlrev_b32 v11, 7, v11')
        e.I('v_lshl_add_u32 v11, v10, 3, v11')
        e.I('s_lshl_b32 s46, s22, 5')
        e.I('v_add_u32 v11, s46, v11')
        e.I('s_waitcnt vmcnt(0)')
        e.I('s_barrier')
        for b in range(4):
            e.I(f'ds_read_b64_tr_b16 v[{16+4*b}:{17+4*b}], v11 offset:{b*4096}')
            e.I(f'ds_read_b64_tr_b16 v[{18+4*b}:{19+4*b}], v11 offset:{b*4096+second}')
        NK = 20 if which == 1 else 48
        e.I('s_lshl_b32 s46, s41, 2')
        e.I('s_add_u32 s46, s46, s22')
        e.I(f's_mul_i32 s46, s46, {NK}')
        e.I('s_lshl_b32 s47, s42, 2')
        e.I('s_add_u32 s46, s46, s47')
        e.I('s_lshl_b32 s46, s46, 10')
        e.I(f's_add_u32 s46, s46, {W1F if which == 1 else W2F}')
        e.I('s_waitcnt lgkmcnt(0)')
        for b in range(4):
            e.I(f'buffer_store_dwordx4 v[{16+4*b}:{19+4*b}], v2, s[4:7], s46 offen offset:{b*1024}')
        e.I('s_endpgm')
    e.L('P_nottr')
    e.I(f's_cmp_ge_u32 s2, {N_LN+N_TR+N_Z+N_S}')
    e.I('s_cbranch_scc1 P_mem0')
    e.I(f's_sub_u32 s40, s2, {N_LN+N_TR}')
    e.I('s_lshl_b32 s41, s40, 15')
    e.I('s_mov_b32 s42, 0')
    e.I(f's_cmp_lt_u32 s40, {N_Z}')
    e.I('s_cbranch_scc1 P_fill')
    e.I(f's_add_u32 s41, s41, {SENT0 - N_Z*32768}')
    e.I('s_mov_b32 s42, -1')
    e.L('P_fill')
    for k in range(4): e.I(f'v_mov_b32 v{8+k}, s42')
    e.I('v_lshlrev_b32 v2, 4, v0')
    for k in range(8):
        e.I(f's_add_u32 s43, s41, {k*4096}')
        e.I('buffer_store_dwordx4 v[8:11], v2, s[4:7], s43 offen')
    e.I('s_endpgm')
    e.L('P_mem0')
    e.I(f's_sub_u32 s40, s2, {N_LN+N_TR+N_Z+N_S}')
    e.I('s_mul_i32 s41, s40, 10240')
    e.I(f's_add_u32 s41, s41, {MEM}')
    for p in range(3):
        e.I(f'v_add_u32 v3, {256*p}, v0')
        e.I('v_and_b32 v4, 7, v3')
        e.I('v_mul_u32_u24 v4, 1280, v4')
        e.I('v_lshrrev_b32 v5, 3, v3')
        e.I('v_lshl_add_u32 v4, v5, 4, v4')
        e.I(f'v_lshlrev_b32 v{6+p}, 4, v3')
        if p == 2:
            e.I('s_cmp_ge_u32 s22, 2')
            e.I('s_cbranch_scc1 P_m2')
        e.I(f'buffer_load_dwordx4 v[{12+4*p}:{15+4*p}], v4, s[12:15], 0 offen')
        e.I('s_waitcnt vmcnt(0)')
        for k in range(4):
            e.I(f'v_min_u32 v{12+4*p+k}, -2, v{12+4*p+k}')
        e.I(f'buffer_store_dwordx4 v[{12+4*p}:{15+4*p}], v{6+p}, s[4:7], s41 offen')
    e.L('P_m2')
    e.L('P_end')
    e.I('s_endpgm')
```

```python
import re
REG = re.compile(r'^(-?)(abs\()?([vas])(\d+)\)?$')
RNG = re.compile(r'^([vas])\[(\d+):(\d+)\]$')
def regs(op):
    op = op.strip()
    if op.startswith('-'): op = op[1:]
    if op.startswith('|') and op.endswith('|'): op = op[1:-1]
    m = RNG.match(op)
    if m: return {(m.group(1), i) for i in range(int(m.group(2)), int(m.group(3)) + 1)}
    m = re.match(r'^([vas])(\d+)$', op)
    if m: return {(m.group(1), int(m.group(2)))}
    if op in ('vcc', 'vcc_lo', 'vcc_hi'): return {('s', 'vcc')}
    if op in ('exec', 'exec_lo', 'exec_hi'): return {('s', 'exec')}
    if op == 'm0': return {('s', 'm0')}
    return set()
TRANS = ('v_exp_f32', 'v_log_f32', 'v_rcp_f32', 'v_rsq_f32', 'v_sqrt_f32', 'v_sin_f32', 'v_cos_f32')
class Ins:
    def __init__(self, text):
        self.text = text
        t = text.strip()
        t = t.split(';')[0].strip()
        self.op = t.split()[0]
        rest = t[len(self.op):].strip()
        ops = [o.strip() for o in rest.split(',')] if rest else []
        mods = ''
        if ops:
            parts = ops[-1].split()
            if parts:
                ops[-1] = parts[0]; mods = ' '.join(parts[1:])
        self.ops = ops; self.mods = mods
        op = self.op
        self.dst = set(); self.src = set(); self.kind = 'other'
        self.srcC = set(); self.srcAB = set(); self.passes = 0; self.stdata = set()
        R = [regs(o) for o in ops]
        U = lambda l: set().union(*l) if l else set()
        if op.startswith('v_mfma') or op.startswith('v_smfmac'):
            self.kind = 'mfma'; self.dst = R[0]; self.srcAB = R[1] | R[2]
            if op.startswith('v_smfmac'):
                self.srcC = R[0]; self.srcAB |= R[3]
            else:
                self.srcC = R[3]
            self.src = self.srcAB | self.srcC
            self.passes = 8 if '32x32' in op else 4
        elif op.startswith('v_permlane'):
            self.kind = 'valu'; self.perml = True; self.dst = R[0] | R[1]; self.src = R[0] | R[1]
        elif op.startswith('v_readfirstlane') or op.startswith('v_readlane'):
            self.kind = 'valu'; self.dst = R[0]; self.src = U(R[1:])
        elif op.startswith('v_cmp'):
            self.kind = 'valu'; self.dst = R[0]; self.src = U(R[1:])
        elif op.startswith('v_'):
            self.kind = 'valu'; self.dst = R[0]; self.src = U(R[1:])
            if op.startswith(('v_add_co', 'v_sub_co', 'v_addc_co', 'v_subb_co')):
                self.dst = R[0] | R[1]; self.src = U(R[2:])
            if op.startswith(('v_fmac', 'v_pk_fmac', 'v_dot2c', 'v_writelane')): self.src |= R[0]
            if op.startswith('v_cndmask') and len(ops) == 3: self.src |= {('s', 'vcc')}
        elif op.startswith(('buffer_load', 'global_load')):
            self.kind = 'vmem'
            if 'lds' in mods.split() or op.startswith('global_load_lds'):
                self.src = U(R) | {('s', 'm0')}; self.ldsdma = True
            else:
                self.dst = R[0]; self.src = U(R[1:])
        elif op.startswith(('buffer_store', 'global_store', 'buffer_atomic', 'global_atomic')):
            self.kind = 'vmem'; self.src = U(R)
            if 'atomic' in op and 'sc0' in mods.split(): self.dst = R[0]
            if op.endswith(('x4', 'x3')):
                self.stdata = R[0] if op.startswith('buffer') else R[1]
        elif op.startswith('ds_'):
            self.kind = 'ds'
            if op.startswith(('ds_read', 'ds_bpermute', 'ds_permute', 'ds_swizzle')):
                self.dst = R[0]; self.src = U(R[1:])
            else:
                self.src = U(R)
        elif op.startswith('s_'):
            self.kind = 'salu'
            if op.startswith(('s_cmp', 's_bitcmp', 's_cbranch', 's_branch', 's_waitcnt', 's_nop', 's_barrier', 's_sleep', 's_endpgm', 's_setprio')):
                self.src = U(R)
            else:
                self.dst = R[0] if R else set(); self.src = U(R[1:])
                if 'saveexec' in op: self.dst |= {('s', 'exec')}
        self.dpp = 'dpp' in op or 'row_' in mods or 'quad_perm' in mods
        self.perml = op.startswith('v_permlane')
        self.trans = op.split('_e32')[0] in TRANS
        self.rdlane = op.startswith(('v_readfirstlane', 'v_readlane'))
        self.slots = 1
        if op == 's_nop': self.slots = int(ops[0], 0) + 1
def isv(r): return r[0] in 'va'
def need(p, c):
    n = 0
    pv = {r for r in p.dst if isv(r)}; ps = {r for r in p.dst if r[0] == 's'}
    if p.kind == 'mfma':
        t = {4: (6, 8), 8: (10, 12)}[p.passes]
        if c.kind == 'mfma':
            if pv & c.srcAB: n = max(n, t[1])
            if pv & c.srcC:
                if not (c.srcC == p.dst and c.passes == p.passes): n = max(n, t[0])
            elif pv & c.dst: n = max(n, t[0])
        elif c.kind in ('valu', 'vmem', 'ds'):
            if pv & (c.src | c.dst): n = max(n, t[1])
        if c.kind == 'valu' and (p.srcC & c.dst): n = max(n, 3 if p.passes == 4 else 7)
        if c.kind in ('vmem', 'ds') and (p.srcC & c.dst): n = max(n, t[1])
    if p.kind == 'valu':
        if c.kind == 'mfma' and (pv & c.src): n = max(n, 2)
        if c.kind == 'mfma' and (('s', 'exec') in ps): n = max(n, 4)
        if c.kind == 'valu':
            if c.perml and (pv & c.src): n = max(n, 2)
            if c.dpp and (pv & c.src): n = max(n, 2)
            if c.rdlane and (pv & c.src): n = max(n, 1)
            if p.trans and not c.trans and (pv & c.src): n = max(n, 1)
            if ps & c.src: n = max(n, 4 if c.rdlane else 2)
        if c.kind == 'vmem' and (ps & c.src): n = max(n, 5)
        if c.kind == 'salu' and (ps & c.src) and not c.op.startswith('s_cbranch'): n = max(n, 1)
    if p.kind == 'salu' and ('s', 'm0') in ps and getattr(c, 'ldsdma', False): n = max(n, 1)
    if p.stdata and c.kind == 'valu' and (p.stdata & c.dst): n = max(n, 2)
    if p.stdata and c.kind in ('vmem', 'ds', 'mfma') and (p.stdata & c.dst): n = max(n, 2)
    return n
def pad(lines):
    out = []; hist = []
    added = 0
    for l in lines:
        st = l.strip()
        if not l.startswith('    ') or st.startswith(';') or st.startswith('.') or not st:
            out.append(l);
            if st.startswith('.section') or st.startswith('.text'): hist = []
            continue
        c = Ins(st)
        dist = 0; req = 0
        for p in reversed(hist):
            n = need(p, c)
            if n > dist: req = max(req, n - dist)
            dist += p.slots
            if dist > 14: break
        while req > 0:
            k = min(req, 16)
            out.append(f'    s_nop {k-1}'); hist.append(Ins(f's_nop {k-1}')); req -= k; added += 1
        out.append(l); hist.append(c)
        if c.op == 's_endpgm': hist = []
        if len(hist) > 40: hist = hist[-20:]
    return out, added
```

```python
CNT   = 0x0
FLGQ  = 0x1000
FLGOX = 0x21800
FLGPX = 0x29800
FLGG  = 0x3D800
ZERO_END = 0x40000
MEM   = 0x40000
MEM_SLOT = 81920
SENT0 = 0x54000
XR    = 0x90000
XR_SLOT = 196608
OR_   = 0x150000
OR_SLOT = 98304
PART  = 0x1B0000
PART_SLOT = 163840
SENT_END = 0x254000
XN    = 0x260000
W1F   = 0x4E0000
W2F   = 0x6C0000
G_    = 0x8A0000
QX    = 0x1000000
KX    = 0x2800000
VX    = 0x4000000
OX    = 0x5800000
XP    = 0x7000000
VM    = 0x7C00000
PX    = 0x8800000
DBGT  = 0xB000000
WS_BYTES = 256 << 20
SEG_QX = 393216
SEG_XP = 196608
SEG_PX = 655360
LAG = 3
```

```python
import sys, struct
from asmlib import *
from layout import *
import hazard
from gen_pre import gen_pre, PRE_GRID, PRE_LDS

NAME = 'recurrent_scan__memory_aug_recurrent_mem_tr__dense_activation_relu__prompt'
MAIN = NAME + '_kernel'
PRE = 'prep_kernel'
LDS_TOTAL = 131328
LDS_ROLE = 131072
TMO = 1 << 18
def f2u(x): return struct.unpack('<I', struct.pack('<f', x))[0]
SC_L2E = f2u(192 ** -0.5 * 1.4426950408889634)
NEG_BIG = f2u(-1e30)
MFMA = 'v_mfma_f32_16x16x32_bf16'
MFMA16 = 'v_mfma_f32_16x16x16_bf16'
WS = 's[4:7]'

class Opt:
    force_slow = False
    ts = False
opt = Opt()

def vr(i, n=4): return f'v[{i}:{i+n-1}]'
def ar(i, n=4): return f'a[{i}:{i+n-1}]'

def maxchain(e, dst, regs, op='u32'):
    regs = list(regs)
    e.I(f'v_max3_{op} v{dst}, v{regs[0]}, v{regs[1]}, v{regs[2]}')
    rest = regs[3:]
    while rest:
        if len(rest) >= 2:
            e.I(f'v_max3_{op} v{dst}, v{dst}, v{rest[0]}, v{rest[1]}'); rest = rest[2:]
        else:
            e.I(f'v_max_{op} v{dst}, v{dst}, v{rest[0]}'); rest = rest[1:]

def check_sent(e, regs, t0, t1):
    regs = list(regs)
    if len(regs) >= 8:
        h = len(regs) // 2
        A, B = regs[:h], regs[h:]
        ea, eb = Em(), Em()
        maxchain(ea, t0, A); maxchain(eb, t1, B)
        for i in range(max(len(ea.lines), len(eb.lines))):
            if i < len(ea.lines): e.lines.append(ea.lines[i])
            if i < len(eb.lines): e.lines.append(eb.lines[i])
        e.I(f'v_max_u32 v{t0}, v{t0}, v{t1}')
    else:
        maxchain(e, t0, regs)
    e.I(f'v_cmp_eq_u32 vcc, -1, v{t0}')

def poll2(e, issue, nl, regsA, regsB, consume, t0, t1, code):
    lp, dA, dB, dd = e.lab('Lp'), e.lab('LdA'), e.lab('LdB'), e.lab('Ldd')
    e.I(f's_mov_b32 s31, {TMO}')
    issue(regsA)
    e.L(lp)
    issue(regsB)
    e.I(f's_waitcnt vmcnt({nl})')
    check_sent(e, range(regsA, regsA + 4 * nl), t0, t1)
    e.I(f's_cbranch_vccz {dA}')
    issue(regsA)
    e.I(f's_waitcnt vmcnt({nl})')
    check_sent(e, range(regsB, regsB + 4 * nl), t0, t1)
    e.I(f's_cbranch_vccz {dB}')
    e.I('s_sub_u32 s31, s31, 1')
    e.I(f's_cbranch_scc0 {lp}')
    e.I(f's_mov_b32 s31, {code}')
    e.I('s_branch L_fail')
    e.L(dB)
    consume(regsB)
    e.I(f's_branch {dd}')
    e.L(dA)
    consume(regsA)
    e.L(dd)

def wait_flags(e, vaddr, sofs, mask, vt, code, sleep=0):
    lp, dn = e.lab('Lf'), e.lab('Lfd')
    e.I(f's_mov_b32 s31, {TMO}')
    if mask > 0xffffffff or mask < 0: e.I(f's_mov_b64 exec, {mask}')
    else:
        e.I(f's_mov_b32 exec_lo, {mask:#x}'); e.I('s_mov_b32 exec_hi, 0')
    e.L(lp)
    e.I(f'buffer_load_dword v{vt}, v{vaddr}, {WS}, {sofs} offen sc1')
    e.I('s_waitcnt vmcnt(0)')
    e.I(f'v_cmp_eq_u32 vcc, 0, v{vt}')
    e.I(f's_cbranch_vccz {dn}')
    if sleep: e.I(f's_sleep {sleep}')
    e.I('s_sub_u32 s31, s31, 1')
    e.I(f's_cbranch_scc0 {lp}')
    e.I(f's_mov_b32 s31, {code}')
    e.I('s_branch L_fail')
    e.L(dn)
    e.I('s_mov_b64 exec, -1')

def set_flag(e, vaddr, sofs, vone, fl):
    e.I('s_mov_b64 exec, 1')
    e.I(f'buffer_store_dword v{vone}, v{vaddr}, {WS}, {sofs} offen{fl}')
    e.I('s_mov_b64 exec, -1')

def xg_reduce(e, op, x, t):
    e.I(f'v_mov_b32 v{t}, v{x}')
    e.I(f'v_permlane16_swap_b32 v{x}, v{t}')
    e.I(f'{op} v{x}, v{x}, v{t}')
    e.I(f'v_mov_b32 v{t}, v{x}')
    e.I(f'v_permlane32_swap_b32 v{x}, v{t}')
    e.I(f'{op} v{x}, v{x}, v{t}')

def softmax12(e, S, P, t):
    maxchain(e, t, range(S, S + 12), 'f32')
    xg_reduce(e, 'v_max_f32', t, t + 1)
    e.I(f'v_mul_f32 v{t}, s53, v{t}')
    for i in range(12):
        e.I(f'v_fma_f32 v{S+i}, v{S+i}, s52, v{t}')
    for i in range(12):
        e.I(f'v_exp_f32 v{S+i}, v{S+i}')
    e.I(f'v_add_f32 v{t+2}, v{S}, v{S+1}')
    e.I(f'v_add_f32 v{t+3}, v{S+2}, v{S+3}')
    for i in range(4, 12, 2):
        e.I(f'v_add_f32 v{t+2}, v{t+2}, v{S+i}')
        e.I(f'v_add_f32 v{t+3}, v{t+3}, v{S+i+1}')
    e.I(f'v_add_f32 v{t+2}, v{t+2}, v{t+3}')
    xg_reduce(e, 'v_add_f32', t + 2, t + 3)
    e.I(f'v_rcp_f32 v{t+2}, v{t+2}')
    for i in range(12):
        e.I(f'v_mul_f32 v{S+i}, v{S+i}, v{t+2}')
    for i in range(6):
        e.I(f'v_cvt_pk_bf16_f32 v{P+i}, v{S+2*i}, v{S+2*i+1}')

def lane_ig(e, vi, vg):
    e.I(f'v_and_b32 v{vi}, 15, v1')
    e.I(f'v_lshrrev_b32 v{vg}, 4, v1')

def load_weights(e, mats, RS, rows, paired, vA, vT):
    CH = rows * 128
    ninst = rows // 8 // 4
    nk = rows // 32
    e.I(f'v_lshrrev_b32 v{vT}, 3, v1')
    if paired:
        e.I(f'v_bfe_u32 v{vT+1}, v1, 4, 2')
    else:
        e.I(f'v_bfe_u32 v{vT+1}, v1, 4, 1')
        e.I('s_and_b32 s54, s22, 1')
        e.I('s_lshl_b32 s54, s54, 1')
        e.I(f'v_or_b32 v{vT+1}, s54, v{vT+1}')
    e.I(f'v_lshlrev_b32 v{vT+1}, 1, v{vT+1}')
    e.I(f'v_and_b32 v{vT+2}, 7, v1')
    e.I(f'v_xor_b32 v{vT+2}, v{vT+2}, v{vT+1}')
    e.I(f's_mov_b32 s54, {RS}')
    e.I(f'v_mul_lo_u32 v{vA}, s54, v{vT}')
    e.I(f'v_lshl_add_u32 v{vA}, v{vT+2}, 4, v{vA}')
    e.I(f'v_lshrrev_b32 v{vT}, 4, v1')
    e.I(f'v_bfe_u32 v{vT+1}, v1, 2, 2')
    if paired:
        e.I(f'v_lshl_add_u32 v{vT+2}, v{vT}, 2, v{vT+1}')
        e.I(f'v_bfe_u32 v{vT}, v{vT+2}, 1, 2')
        second = 2048
    else:
        e.I(f'v_lshl_add_u32 v{vT+2}, v{vT}, 3, v{vT+1}')
        e.I(f'v_and_b32 v{vT}, 1, v{vT}')
        e.I(f'v_lshlrev_b32 v{vT}, 1, v{vT}')
        e.I(f'v_bfe_u32 v{vT+1}, v1, 3, 1')
        e.I(f'v_or_b32 v{vT}, v{vT}, v{vT+1}')
        second = 512
    e.I(f'v_xor_b32 v{vT}, s22, v{vT}')
    e.I(f'v_lshlrev_b32 v{vT+2}, 7, v{vT+2}')
    e.I(f'v_lshl_add_u32 v{vT+2}, v{vT}, 5, v{vT+2}')
    e.I(f'v_and_b32 v{vT}, 3, v1')
    e.I(f'v_lshl_add_u32 v{vT}, v{vT}, 3, v{vT+2}')
    e.I(f'v_add_u32 v{vT+1}, {CH}, v{vT}')
    e.I(f'v_add_u32 v{vT+2}, {2*CH}, v{vT}')
    chunks = []
    for (srd_, sofs, ab, nrows) in mats:
        for c in range(nrows // rows):
            chunks.append((srd_, sofs, ab + c * nk * 4, c * rows))
    e.I(f's_mul_i32 s55, s22, {8*RS}')
    e.I('s_lshl_b32 s56, s22, 10')
    def issue(ci):
        srd_, sofs, ab, r0 = chunks[ci]
        buf = ci % 3
        e.I(f's_add_u32 s57, {sofs}, s55')
        if r0: e.I(f's_add_u32 s57, s57, {r0*RS}')
        for n in range(ninst):
            e.I(f's_add_u32 m0, s56, {buf*CH + n*4096}')
            e.I(f'buffer_load_dwordx4 v{vA}, {srd_}, s57 offen lds')
            if n + 1 < ninst: e.I(f's_add_u32 s57, s57, {32*RS}')
    for ci in range(min(3, len(chunks))): issue(ci)
    for ci in range(len(chunks)):
        left = min(len(chunks) - 1 - ci, 2)
        e.I(f's_waitcnt vmcnt({left*ninst})')
        e.I('s_barrier')
        srd_, sofs, ab, r0 = chunks[ci]
        for k in range(nk):
            e.I(f'ds_read_b64_tr_b16 {ar(ab+4*k,2)}, v{vT+ci%3} offset:{k*4096}')
            e.I(f'ds_read_b64_tr_b16 {ar(ab+4*k+2,2)}, v{vT+ci%3} offset:{k*4096+second}')
        e.I('s_waitcnt lgkmcnt(0)')
        e.I('s_barrier')
        if ci + 3 < len(chunks): issue(ci + 3)

Q_LX, Q_LMEM, Q_LVM, Q_LVX = 0, 81920, 92160, 98304
def role_qkv(e, slow):
    fl = ' sc1' if slow else ''
    WQ, WK, WV = 0, 80, 160
    MF = 16
    DQ, DK, DV = 96, 100, 104
    PA, PB = 108, 120
    XD = 132
    KXF = 156
    DO, OPK = 204, 220
    T0 = 228
    CI = 244; SENT = 248; ONE = 252
    e.I('s_mul_i32 s24, s21, 43')
    e.I('s_lshr_b32 s24, s24, 7')
    e.I('s_mul_i32 s25, s24, 3')
    e.I('s_sub_u32 s25, s21, s25')
    e.I('s_lshl_b32 s26, s20, 2')
    e.I('s_add_u32 s26, s26, s24')
    e.I('s_lshl_b32 s27, s25, 2')
    e.I('s_add_u32 s27, s27, s22')
    srd(e, 8, 60, 640 * 12288); srd(e, 12, 62, 640 * 12288); srd(e, 16, 64, 640 * 12288)
    e.I('s_mul_i32 s28, s26, 384')
    e.I('s_lshl_b32 s29, s25, 7')
    e.I('s_add_u32 s28, s28, s29')
    load_weights(e, [('s[8:11]', 's28', WQ, 640), ('s[12:15]', 's28', WK, 640), ('s[16:19]', 's28', WV, 640)], 12288, 320, False, 3, 4)
    e.I('s_mov_b32 s34, 0xff00ff00'); e.I('s_mov_b32 s35, 0xff00ff00')
    e.I('s_mov_b32 s36, 0x00ff00ff'); e.I('s_mov_b32 s37, 0x00ff00ff')
    e.I(f's_mov_b32 s52, {SC_L2E:#x}'); e.I(f's_mov_b32 s53, {SC_L2E | 0x80000000:#x}')
    e.I('s_mul_i32 s38, s22, 2560')
    e.I('v_add_u32 v3, s38, v2')
    e.I('v_and_b32 v4, 31, v1')
    e.I('v_lshlrev_b32 v4, 4, v4')
    e.I('v_add_u32 v4, s38, v4')
    e.I('v_add_u32 v4, 2048, v4')
    e.I(f'v_add_u32 v5, {Q_LMEM}, v3')
    e.I(f'v_add_u32 v6, {Q_LMEM}, v4')
    lane_ig(e, 14, 15)
    e.I('v_lshlrev_b32 v13, 7, v15')
    e.I('v_lshl_add_u32 v13, v14, 4, v13')
    e.I('v_and_b32 v7, 7, v14')
    e.I('v_lshlrev_b32 v7, 4, v7')
    e.I('v_lshl_add_u32 v7, v15, 7, v7')
    e.I(f'v_add_u32 v7, {Q_LMEM}, v7')
    e.I('s_lshr_b32 s38, s27, 1')
    e.I('s_lshl_b32 s38, s38, 10')
    e.I('s_and_b32 s39, s27, 1')
    e.I('s_lshl_b32 s39, s39, 3')
    e.I('s_add_u32 s38, s38, s39')
    e.I('v_add_u32 v8, s38, v2')
    e.I('v_lshlrev_b32 v9, 3, v1')
    e.I('s_lshl_b32 s38, s22, 9')
    e.I(f's_add_u32 s38, s38, {Q_LVM}')
    e.I('v_add_u32 v10, s38, v9')
    e.I('s_lshl_b32 s38, s22, 10')
    e.I(f's_add_u32 s38, s38, {Q_LVX}')
    e.I('v_add_u32 v11, s38, v2')
    e.I(f'v_add_u32 v14, {Q_LVX}, v2')
    e.I(f'v_add_u32 v15, {Q_LVM}, v9')
    e.I(f'v_lshlrev_b32 v{ONE+1}, 2, v1')
    e.I(f's_lshl_b32 s38, s27, 2')
    e.I(f'v_mov_b32 v{ONE+2}, s38')
    e.I(f'v_mov_b32 v{ONE}, 1')
    for k in range(4): e.I(f'v_mov_b32 v{SENT+k}, -1')
    e.I(f'v_mov_b32 v{CI}, {NEG_BIG:#x}')
    e.I('v_cmp_gt_u32 vcc, 32, v1')
    e.I(f'v_cndmask_b32 v{CI}, 0, v{CI}, vcc')
    for k in range(1, 4): e.I(f'v_mov_b32 v{CI+k}, v{CI}')
    e.I('s_mul_i32 s58, s26, 6144')
    e.I('s_mul_i32 s59, s20, 10240')
    e.I(f's_add_u32 s59, s59, {MEM}')
    e.I('s_mul_i32 s60, s20, 24')
    e.I('s_mul_i32 s61, s24, 6')
    e.I('s_add_u32 s60, s60, s61')
    e.I('s_lshl_b32 s61, s25, 1')
    e.I('s_add_u32 s60, s60, s61')
    e.I('s_lshl_b32 s60, s60, 9')
    e.I(f's_add_u32 s60, s60, {OR_}')
    e.I('s_mul_i32 s62, s22, 10240')
    e.I(f's_add_u32 s63, s62, {XN}')
    for m in range(10):
        e.I(f's_add_u32 m0, s62, {Q_LX + m*1024}')
        e.I(f'buffer_load_dwordx4 v2, {WS}, s63 offen lds')
        e.I('s_add_u32 s63, s63, 1024')
    e.I('s_waitcnt vmcnt(0)')
    e.I('s_barrier')

    def xwork():
        e.I('s_and_b32 s65, s64, 1')
        e.I('s_mul_i32 s66, s65, 40960')
        e.I('v_add_u32 v12, s66, v2')
        e.I('s_xor_b32 s65, s65, 1')
        e.I('s_mul_i32 s65, s65, 40960')
        e.I('s_add_u32 s65, s65, s62')
        e.I('s_add_u32 s66, s64, 1')
        e.I('s_min_u32 s66, s66, 63')
        e.I('s_mul_i32 s66, s66, 40960')
        e.I('s_add_u32 s66, s66, s62')
        e.I(f's_add_u32 s66, s66, {XN}')
        e.I(f's_mul_i32 s47, s64, {SEG_QX}')
        e.I('s_lshl_b32 s48, s58, 1')
        e.I('s_add_u32 s47, s47, s48')
        PF = 5
        def rd(kk):
            for rt in range(2):
                e.I(f'ds_read_b128 {vr(MF + ((2*kk+rt) % 20)*4)}, v12 offset:{rt*20480 + kk*1024}')
        for kk in range(PF): rd(kk)
        for kk in range(20):
            nxt = min(20, kk + PF) - (kk + 1)
            e.I(f's_waitcnt lgkmcnt({2*nxt})')
            for rt in range(2):
                f = vr(MF + ((2*kk+rt) % 20)*4)
                for (m, Wb) in ((0, WQ), (1, WK)):
                    d = vr(XD + (m*2+rt)*4)
                    e.I(f'{MFMA} {d}, {ar(Wb+4*kk)}, {f}, {0 if kk == 0 else d}')
                d = vr(XD + (4+rt)*4)
                e.I(f'{MFMA} {d}, {f}, {ar(WV+4*kk)}, {0 if kk == 0 else d}')
            if kk + PF < 20: rd(kk + PF)
            if 6 <= kk < 16:
                m = kk - 6
                e.I(f's_add_u32 m0, s65, {m*1024}')
                e.I(f'buffer_load_dwordx4 v2, {WS}, s66 offen lds')
                e.I('s_add_u32 s66, s66, 1024')
        for m, base in ((0, QX), (1, KX)):
            for rt in range(2):
                d = XD + (m*2+rt)*4; o = T0 + (m*2+rt)*2
                e.I(f'v_cvt_pk_bf16_f32 v{o}, v{d}, v{d+1}')
                e.I(f'v_cvt_pk_bf16_f32 v{o+1}, v{d+2}, v{d+3}')
                e.I(f's_add_u32 s48, s47, {base + rt*6144}')
                e.I(f'buffer_store_dwordx2 {vr(o,2)}, v8, {WS}, s48 offen{fl}')
        for rt in range(2):
            d = XD + (4+rt)*4; o = T0 + 8 + rt*2
            e.I(f'v_cvt_pk_bf16_f32 v{o}, v{d}, v{d+1}')
            e.I(f'v_cvt_pk_bf16_f32 v{o+1}, v{d+2}, v{d+3}')
        e.I('s_lshl_b32 s48, s27, 10')
        e.I('s_add_u32 s48, s48, s47')
        e.I(f's_add_u32 s48, s48, {VX}')
        e.I(f'buffer_store_dwordx4 {vr(T0+8)}, v2, {WS}, s48 offen{fl}')
        e.I(f'ds_write_b128 v11, {vr(T0+8)}')
        e.I('v_xor_b32 v11, 4096, v11')
    def flag_n():
        e.I('s_lshl_b32 s51, s64, 5')
        e.I('s_add_u32 s51, s51, s26')
        e.I('s_lshl_b32 s51, s51, 6')
        e.I(f's_add_u32 s51, s51, {FLGQ}')
        e.I('s_waitcnt vmcnt(0) lgkmcnt(0)')
        set_flag(e, ONE + 2, 's51', ONE, fl)
    def kx_load():
        wait_flags(e, ONE + 1, 's51', 0xfff, T0, 11)
        e.I(f's_add_u32 s48, s47, {KX}')
        for q in range(12):
            if q % 4 == 0 and q: e.I('s_add_u32 s48, s48, 4096')
            e.I(f'buffer_load_dwordx4 {vr(KXF+4*q)}, v2, {WS}, s48 offen offset:{(q%4)*1024} sc1')
    def mem_part():
        e.I('s_and_b32 s38, s30, 3')
        e.I(f's_mul_i32 s40, s38, {MEM_SLOT}')
        e.I('s_add_u32 s40, s40, s59')
        e.I(f's_mul_i32 s41, s38, {XR_SLOT}')
        e.I('s_add_u32 s41, s41, s58')
        e.I(f's_add_u32 s41, s41, {XR}')
        e.I('s_xor_b32 s39, s38, 2')
        e.I(f's_mul_i32 s42, s39, {XR_SLOT}')
        e.I('s_add_u32 s42, s42, s58')
        e.I(f's_add_u32 s42, s42, {XR}')
        e.I(f's_mul_i32 s43, s30, {SEG_XP}')
        e.I('s_add_u32 s43, s43, s58')
        e.I('s_lshl_b32 s44, s27, 9')
        e.I('s_add_u32 s44, s44, s43')
        e.I(f's_add_u32 s44, s44, {VM}')
        e.I(f's_add_u32 s43, s43, {XP}')
        e.I(f's_mul_i32 s45, s38, {OR_SLOT}')
        e.I('s_add_u32 s45, s45, s60')
        e.I(f's_mul_i32 s46, s39, {OR_SLOT}')
        e.I('s_add_u32 s46, s46, s60')
        def issue(b):
            e.I(f'buffer_load_dwordx4 {vr(b)}, v3, {WS}, s40 offen sc1')
            e.I(f'buffer_load_dwordx4 {vr(b+4)}, v3, {WS}, s40 offen offset:1024 sc1')
            e.I(f'buffer_load_dwordx4 {vr(b+8)}, v4, {WS}, s40 offen sc1')
        def consume(b):
            e.I(f'ds_write_b128 v5, {vr(b)}')
            e.I(f'ds_write_b128 v5, {vr(b+4)} offset:1024')
            e.I(f'ds_write_b128 v6, {vr(b+8)}')
        poll2(e, issue, 3, PA, PB, consume, T0, T0 + 1, 1)
        e.I('s_waitcnt lgkmcnt(0)')
        e.I('s_barrier')
        PF = 12
        for kk in range(PF): e.I(f'ds_read_b128 {vr(MF+4*kk)}, v7 offset:{kk*512}')
        for kk in range(20):
            nxt = min(20, kk + PF) - (kk + 1)
            e.I(f's_waitcnt lgkmcnt({nxt})')
            f = vr(MF + 4*kk)
            e.I(f'{MFMA} {vr(DQ)}, {ar(WQ+4*kk)}, {f}, {0 if kk == 0 else vr(DQ)}')
            e.I(f'{MFMA} {vr(DK)}, {ar(WK+4*kk)}, {f}, {0 if kk == 0 else vr(DK)}')
            if kk + PF < 20: e.I(f'ds_read_b128 {vr(MF+4*(kk+PF))}, v7 offset:{(kk+PF)*512}')
        def vm(kk): e.I(f'{MFMA} {vr(DV)}, {vr(MF+4*kk)}, {ar(WV+4*kk)}, {0 if kk == 0 else vr(DV)}')
        vm(0); vm(1)
        e.I('s_nop 4')
        e.I(f'v_cvt_pk_bf16_f32 v{T0}, v{DQ}, v{DQ+1}')
        e.I(f'v_cvt_pk_bf16_f32 v{T0+1}, v{DQ+2}, v{DQ+3}')
        e.I(f'v_cvt_pk_bf16_f32 v{T0+2}, v{DK}, v{DK+1}')
        e.I(f'v_cvt_pk_bf16_f32 v{T0+3}, v{DK+2}, v{DK+3}')
        e.I(f'v_cndmask_b32 v{T0}, v{T0}, v{T0+2}, s[34:35]')
        e.I(f'v_cndmask_b32 v{T0+1}, v{T0+1}, v{T0+3}, s[34:35]')
        e.I(f'v_min_u32 v{T0}, -2, v{T0}')
        e.I(f'v_min_u32 v{T0+1}, -2, v{T0+1}')
        e.I(f'buffer_store_dwordx2 {vr(T0,2)}, v8, {WS}, s41 offen{fl}')
        vm(2); vm(3)
        e.I(f'buffer_store_dwordx2 {vr(T0,2)}, v8, {WS}, s43 offen{fl}')
        vm(4); vm(5)
        e.I(f'buffer_store_dwordx2 {vr(SENT,2)}, v8, {WS}, s42 offen{fl}')
        for kk in range(6, 20): vm(kk)
        e.I(f'v_cvt_pk_bf16_f32 v{T0+4}, v{DV}, v{DV+1}')
        e.I(f'v_cvt_pk_bf16_f32 v{T0+5}, v{DV+2}, v{DV+3}')
        e.I(f'ds_write_b64 v10, {vr(T0+4,2)}')
        e.I(f'buffer_store_dwordx2 {vr(T0+4,2)}, v9, {WS}, s44 offen{fl}')
        e.I('s_waitcnt lgkmcnt(0)')
        e.I('s_barrier')
    def s_phase():
        XA, XB = 16, 40
        VXF, VMF = 64, 80
        S, P = PA, PB
        for t in range(4):
            e.I(f'ds_read_b128 {vr(VXF+4*t)}, v14 offset:{t*1024}')
            e.I(f'ds_read_b64 {vr(VMF+2*t,2)}, v15 offset:{t*512}')
        e.I('v_xor_b32 v14, 4096, v14')
        e.I('s_add_u32 s48, s41, 4096')
        def issue(b):
            for p in range(6):
                so = 's41' if p < 4 else 's48'
                e.I(f'buffer_load_dwordx4 {vr(b+4*p)}, v2, {WS}, {so} offen offset:{(p%4)*1024} sc1')
        def consume(b):
            for p in range(6):
                x = vr(b + 4*p)
                e.I(f'{MFMA} {vr(S)}, {x}, {x}, {vr(CI) if p == 0 else vr(S)}')
                e.I(f'{MFMA} {vr(S+4)}, {vr(KXF+4*p)}, {x}, {0 if p == 0 else vr(S+4)}')
                e.I(f'{MFMA} {vr(S+8)}, {vr(KXF+24+4*p)}, {x}, {0 if p == 0 else vr(S+8)}')
            e.I('s_nop 7')
        poll2(e, issue, 6, XA, XB, consume, T0, T0 + 1, 2)
        softmax12(e, S, P, T0)
        e.I('s_waitcnt lgkmcnt(0)')
        for t in range(4):
            e.I(f'{MFMA16} {vr(DO+4*t)}, {vr(VMF+2*t,2)}, {vr(P,2)}, 0')
        for t in range(4):
            e.I(f'{MFMA} {vr(DO+4*t)}, {vr(VXF+4*t)}, {vr(P+2)}, {vr(DO+4*t)}')
        for t in range(4):
            e.I(f'v_cvt_pk_bf16_f32 v{OPK+2*t}, v{DO+4*t}, v{DO+4*t+1}')
            e.I(f'v_cvt_pk_bf16_f32 v{OPK+2*t+1}, v{DO+4*t+2}, v{DO+4*t+3}')
        for k in range(8): e.I(f'v_min_u32 v{OPK+k}, -2, v{OPK+k}')
        e.I('s_mov_b64 exec, s[36:37]')
        e.I(f'buffer_store_dwordx4 {vr(OPK)}, v13, {WS}, s45 offen{fl}')
        e.I(f'buffer_store_dwordx4 {vr(OPK+4)}, v13, {WS}, s45 offen offset:512{fl}')
        e.I(f'buffer_store_dwordx4 {vr(SENT)}, v13, {WS}, s46 offen{fl}')
        e.I(f'buffer_store_dwordx4 {vr(SENT)}, v13, {WS}, s46 offen offset:512{fl}')
        e.I('s_mov_b64 exec, -1')
        e.I('s_waitcnt vmcnt(4)')
    lS, lN = e.lab('LqS'), e.lab('LqN')
    e.I('s_mov_b32 s30, 0')
    e.I('s_mov_b32 s64, 0')
    e.I('s_cmp_lg_u32 s22, 0')
    e.I(f's_cbranch_scc1 {lN}')
    for swave in (True, False):
        if not swave: e.L(lN)
        top, last = e.lab('Lqt'), e.lab('Lql')
        e.L(top)
        xwork()
        flag_n()
        if swave: kx_load()
        mem_part()
        e.I('s_add_u32 s64, s64, 1')
        e.I('s_cmp_eq_u32 s30, 63')
        e.I(f's_cbranch_scc1 {last}')
        if swave: s_phase()
        e.I('s_add_u32 s30, s30, 1')
        e.I(f's_branch {top}')
        e.L(last)
        flag_n()
        e.I('s_endpgm')

W_LO, W_LOX = 0, 16384
def role_wo(e, slow):
    fl = ' sc1' if slow else ''
    WOB = 0
    OF = 16
    D = 112; PA, PB = 120, 136
    XDW = 152
    T0 = 160; SENT = 248; ONE = 252
    e.I('s_sub_u32 s24, s21, 12')
    e.I('s_lshl_b32 s25, s24, 2')
    e.I('s_add_u32 s25, s25, s22')
    srd(e, 8, 66, 6144 * 1280)
    e.I(f's_mul_i32 s28, s20, {768*1280}')
    e.I('s_lshl_b32 s29, s24, 7')
    e.I('s_add_u32 s28, s28, s29')
    load_weights(e, [('s[8:11]', 's28', WOB, 768)], 1280, 256, True, 3, 4)
    e.I('s_mov_b32 s36, 0x00ff00ff'); e.I('s_mov_b32 s37, 0x00ff00ff')
    e.I('s_mul_i32 s38, s22, 3072')
    e.I('v_add_u32 v3, s38, v2')
    lane_ig(e, 14, 15)
    e.I('v_lshlrev_b32 v13, 7, v15')
    e.I('v_lshl_add_u32 v13, v14, 4, v13')
    e.I('v_and_b32 v7, 7, v14')
    e.I('v_lshlrev_b32 v7, 4, v7')
    e.I('v_lshl_add_u32 v7, v15, 7, v7')
    e.I('v_and_b32 v4, 31, v1')
    e.I('v_lshlrev_b32 v4, 4, v4')
    e.I('v_lshrrev_b32 v5, 5, v1')
    e.I('v_mul_u32_u24 v6, 81920, v5'.replace('81920', '0x14000'))
    e.I('v_add_u32 v4, v4, v6')
    e.I('v_bfe_u32 v8, v1, 4, 1')
    e.I('v_lshlrev_b32 v8, 7, v8')
    e.I('v_and_b32 v9, 7, v1')
    e.I('v_lshl_add_u32 v8, v9, 4, v8')
    e.I('v_bfe_u32 v9, v1, 3, 1')
    e.I('v_lshl_add_u32 v8, v9, 3, v8')
    e.I('v_lshl_add_u32 v8, v5, 2, v8')
    e.I('s_lshl_b32 s38, s25, 8')
    e.I('v_add_u32 v8, s38, v8')
    e.I(f'v_add_u32 v10, {W_LOX}, v2')
    e.I(f'v_lshlrev_b32 v{ONE+1}, 2, v1')
    e.I('s_lshl_b32 s38, s20, 2')
    e.I('s_add_u32 s38, s38, s22')
    e.I('s_lshl_b32 s38, s38, 2')
    e.I(f'v_mov_b32 v{ONE+2}, s38')
    e.I(f'v_mov_b32 v{ONE}, 1')
    for k in range(4): e.I(f'v_mov_b32 v{SENT+k}, -1')
    e.I('s_mul_i32 s58, s20, 12288')
    e.I(f's_add_u32 s58, s58, {OR_}')
    e.I('s_lshl_b32 s59, s25, 9')
    e.I(f's_add_u32 s59, s59, {PART}')
    e.I('s_mul_i32 s60, s20, 20480')
    e.I('s_add_u32 s60, s60, s59')
    e.I('s_mul_i32 s61, s20, 10240')
    e.I(f's_add_u32 s61, s61, {MEM}')
    e.I('s_mul_i32 s62, s22, 12288')
    e.I(f's_add_u32 s62, s62, {W_LOX}')
    e.I('s_lshl_b32 s63, s20, 2')
    e.I('s_add_u32 s63, s63, s22')
    e.I('s_mul_i32 s63, s63, 12288')
    e.I(f's_add_u32 s63, s63, {OX}')
    e.I('s_mul_i32 s64, s20, 81920')
    e.I('s_lshl_b32 s65, s25, 10')
    e.I('s_add_u32 s64, s64, s65')
    e.I(f's_add_u32 s64, s64, {PX}')
    top, nox, xonly, fin = e.lab('Lwt'), e.lab('Lwn'), e.lab('Lwx'), e.lab('Lwf')
    e.I('s_mov_b32 s30, 0')
    e.L(top)
    e.I('s_cmp_ge_u32 s30, 63')
    e.I(f's_cbranch_scc1 {xonly}')
    e.I('s_and_b32 s38, s30, 3')
    e.I('s_xor_b32 s39, s38, 2')
    e.I(f's_mul_i32 s40, s38, {OR_SLOT}')
    e.I('s_add_u32 s40, s40, s58')
    e.I(f's_mul_i32 s41, s38, {PART_SLOT}')
    e.I('s_add_u32 s42, s41, s60')
    e.I('s_add_u32 s41, s41, s59')
    e.I(f's_mul_i32 s43, s39, {PART_SLOT}')
    e.I('s_add_u32 s43, s43, s60')
    e.I('s_add_u32 s44, s30, 1')
    e.I('s_and_b32 s44, s44, 3')
    e.I('s_xor_b32 s45, s44, 2')
    e.I(f's_mul_i32 s44, s44, {MEM_SLOT}')
    e.I('s_add_u32 s44, s44, s61')
    e.I(f's_mul_i32 s45, s45, {MEM_SLOT}')
    e.I('s_add_u32 s45, s45, s61')
    for m in range(1, 4): e.I(f's_add_u32 s{45+m}, s41, {m*20480}')
    def issue(b):
        for q in range(3): e.I(f'buffer_load_dwordx4 {vr(b+4*q)}, v3, {WS}, s40 offen offset:{q*1024} sc1')
    def consume(b):
        for q in range(3): e.I(f'ds_write_b128 v3, {vr(b+4*q)} offset:{q*1024}')
    poll2(e, issue, 3, PA, PB, consume, T0, T0 + 1, 3)
    e.I('s_waitcnt lgkmcnt(0)')
    e.I('s_barrier')
    PF = 12
    for kk in range(PF): e.I(f'ds_read_b128 {vr(OF+4*kk)}, v7 offset:{kk*512}')
    for kk in range(24):
        nxt = min(24, kk + PF) - (kk + 1)
        e.I(f's_waitcnt lgkmcnt({nxt})')
        e.I(f'{MFMA} {vr(D)}, {ar(WOB+4*kk)}, {vr(OF+4*kk)}, {0 if kk == 0 else vr(D)}')
        if kk + PF < 24: e.I(f'ds_read_b128 {vr(OF+4*(kk+PF))}, v7 offset:{(kk+PF)*512}')
    e.I('s_mov_b64 exec, s[36:37]')
    e.I(f'buffer_store_dwordx4 {vr(D)}, v13, {WS}, s42 offen sc1')
    e.I(f'buffer_store_dwordx4 {vr(SENT)}, v13, {WS}, s43 offen sc1')
    e.I('s_mov_b64 exec, -1')
    def issue2(b):
        for m in range(4):
            e.I(f'buffer_load_dwordx4 {vr(b+4*m)}, v4, {WS}, s{41 if m == 0 else 45+m} offen sc1')
    def consume2(b):
        for k in range(4):
            e.I(f'v_add_f32 v{T0+4+k}, v{b+k}, v{b+4+k}')
            e.I(f'v_add_f32 v{T0+8+k}, v{b+8+k}, v{b+12+k}')
        for k in range(4):
            e.I(f'v_add_f32 v{T0+4+k}, v{T0+4+k}, v{T0+8+k}')
    poll2(e, issue2, 4, PA, PB, consume2, T0, T0 + 1, 4)
    e.I(f'v_permlane32_swap_b32 v{T0+4}, v{T0+6}')
    e.I(f'v_permlane32_swap_b32 v{T0+5}, v{T0+7}')
    e.I(f'v_add_f32 v{T0+4}, v{T0+4}, v{T0+6}')
    e.I(f'v_add_f32 v{T0+5}, v{T0+5}, v{T0+7}')
    e.I(f'v_cvt_pk_bf16_f32 v{T0+4}, v{T0+4}, v{T0+5}')
    e.I(f'v_min_u32 v{T0+4}, -2, v{T0+4}')
    e.I(f'buffer_store_dword v{T0+4}, v8, {WS}, s44 offen{fl}')
    e.I(f'buffer_store_dword v{SENT}, v8, {WS}, s45 offen{fl}')
    e.L(xonly)
    e.I(f's_cmp_lt_u32 s30, {LAG}')
    e.I(f's_cbranch_scc1 {nox}')
    e.I(f's_sub_u32 s49, s30, {LAG}')
    e.I('s_lshl_b32 s50, s49, 3')
    e.I('s_add_u32 s50, s50, s20')
    e.I('s_lshl_b32 s50, s50, 6')
    e.I(f's_add_u32 s50, s50, {FLGOX}')
    wait_flags(e, ONE + 1, 's50', 0xff, T0, 5)
    e.I('s_barrier')
    e.I(f's_mul_i32 s50, s49, {SEG_QX}')
    e.I('s_add_u32 s50, s50, s63')
    for m in range(12):
        e.I(f's_add_u32 m0, s62, {m*1024}')
        e.I(f'buffer_load_dwordx4 v2, {WS}, s50 offen sc1 lds')
        if m < 11: e.I('s_add_u32 s50, s50, 1024')
    e.I(f's_mul_i32 s50, s49, {SEG_PX}')
    e.I('s_add_u32 s50, s50, s64')
    e.I('s_add_u32 s51, s50, 40960')
    e.I('s_mul_i32 s54, s49, 10')
    e.I('s_add_u32 s54, s54, s24')
    e.I('s_lshl_b32 s54, s54, 7')
    e.I(f's_add_u32 s54, s54, {FLGPX}')
    e.I('s_waitcnt vmcnt(0)')
    e.I('s_barrier')
    PF = 6
    def rd(kk):
        hl, p = kk // 6, kk % 6
        for qt in range(2):
            e.I(f'ds_read_b128 {vr(OF + ((2*kk+qt) % 24)*4)}, v10 offset:{hl*12288 + (qt*6+p)*1024}')
    for kk in range(PF): rd(kk)
    for kk in range(24):
        nxt = min(24, kk + PF) - (kk + 1)
        e.I(f's_waitcnt lgkmcnt({2*nxt})')
        for qt in range(2):
            d = vr(XDW + 4*qt)
            e.I(f'{MFMA} {d}, {ar(WOB+4*kk)}, {vr(OF + ((2*kk+qt) % 24)*4)}, {0 if kk == 0 else d}')
        if kk + PF < 24: rd(kk + PF)
    e.I(f'buffer_store_dwordx4 {vr(XDW)}, v2, {WS}, s50 offen sc1')
    e.I(f'buffer_store_dwordx4 {vr(XDW+4)}, v2, {WS}, s51 offen sc1')
    e.I('s_waitcnt vmcnt(0)')
    set_flag(e, ONE + 2, 's54', ONE, ' sc1')
    e.L(nox)
    e.I('s_add_u32 s30, s30, 1')
    e.I(f's_cmp_lt_u32 s30, {64+LAG}')
    e.I(f's_cbranch_scc1 {top}')
    e.I('s_endpgm')

def role_att(e, slow):
    fl = ' sc1' if slow else ''
    QF, XPF, KF, VXF, VMF = 16, 40, 64, 112, 160
    S, P, T0 = 184, 196, 202
    DO = 208
    OPK = 224
    C0, C1, C2 = 228, 232, 236
    ONE = 252
    e.I('s_sub_u32 s24, s21, 22')
    e.I('s_and_b32 s25, s24, 1')
    e.I('s_lshr_b32 s24, s24, 1')
    e.I('s_lshl_b32 s26, s20, 2')
    e.I('s_add_u32 s26, s26, s22')
    e.I(f's_mov_b32 s52, {SC_L2E:#x}'); e.I(f's_mov_b32 s53, {SC_L2E | 0x80000000:#x}')
    e.I('v_lshlrev_b32 v9, 3, v1')
    e.I(f'v_lshlrev_b32 v{ONE+1}, 2, v1')
    e.I('s_lshl_b32 s38, s22, 1')
    e.I('s_add_u32 s38, s38, s24')
    e.I('s_lshl_b32 s38, s38, 2')
    e.I(f'v_mov_b32 v{ONE+2}, s38')
    e.I(f'v_mov_b32 v{ONE}, 1')
    lane_ig(e, 14, 15)
    e.I(f'v_mov_b32 v3, {NEG_BIG:#x}')
    e.I('v_cmp_gt_u32 vcc, 32, v1')
    e.I(f'v_cndmask_b32 v{C0}, 0, v3, vcc')
    for k in range(1, 4): e.I(f'v_mov_b32 v{C0+k}, v{C0}')
    e.I('s_lshl_b32 s38, s24, 4')
    e.I('v_add_u32 v4, s38, v14')
    e.I('v_lshlrev_b32 v5, 2, v15')
    for a_, C in ((0, C1), (1, C2)):
        for r in range(4):
            e.I(f'v_add_u32 v6, {16*a_ + r}, v5')
            e.I('v_cmp_gt_u32 vcc, v6, v4')
            e.I(f'v_cndmask_b32 v{C+r}, 0, v3, vcc')
    e.I('s_mul_i32 s58, s26, 6144')
    e.I('s_mul_i32 s59, s24, 6144')
    top = e.lab('Lat')
    e.I('s_mov_b32 s30, s25')
    e.L(top)
    e.I('s_add_u32 s51, s30, 1')
    e.I('s_lshl_b32 s51, s51, 5')
    e.I('s_add_u32 s51, s51, s26')
    e.I('s_lshl_b32 s51, s51, 6')
    e.I(f's_add_u32 s51, s51, {FLGQ}')
    e.I(f's_mul_i32 s40, s30, {SEG_QX}')
    e.I('s_lshl_b32 s41, s58, 1')
    e.I('s_add_u32 s40, s40, s41')
    e.I(f's_mul_i32 s41, s30, {SEG_XP}')
    e.I('s_add_u32 s41, s41, s58')
    wait_flags(e, ONE + 1, 's51', 0xfff, T0, 6, sleep=4)
    def loads(dst, n, sbase, add, w=4, va=2):
        e.I(f's_add_u32 s48, {sbase}, {add}')
        per = 4096 // (256 * w)
        for q in range(n):
            if q and q % per == 0: e.I('s_add_u32 s48, s48, 4096')
            e.I(f'buffer_load_dwordx{w} {vr(dst+w*q, w)}, v{va}, {WS}, s48 offen offset:{(q%per)*256*w} sc1')
    e.I('s_add_u32 s42, s40, s59')
    loads(QF, 6, 's42', QX)
    loads(XPF, 6, 's41', XP)
    loads(KF, 12, 's40', KX)
    loads(VMF, 12, 's41', VM, w=2, va=9)
    loads(VXF, 12, 's40', VX)
    e.I('s_waitcnt vmcnt(24)')
    for p in range(6):
        q = vr(QF + 4*p)
        e.I(f'{MFMA} {vr(S)}, {vr(XPF+4*p)}, {q}, {vr(C0) if p == 0 else vr(S)}')
        e.I(f'{MFMA} {vr(S+4)}, {vr(KF+4*p)}, {q}, {vr(C1) if p == 0 else vr(S+4)}')
        e.I(f'{MFMA} {vr(S+8)}, {vr(KF+24+4*p)}, {q}, {vr(C2) if p == 0 else vr(S+8)}')
    softmax12(e, S, P, T0)
    e.I(f's_add_u32 s48, s42, {OX}')
    e.I('s_add_u32 s49, s48, 4096')
    e.I('s_waitcnt vmcnt(0)')
    for p in range(6):
        d = DO + 8 * (p % 2)
        o = QF + 4 * p
        for t in range(2):
            T = 2 * p + t
            e.I(f'{MFMA16} {vr(d+4*t)}, {vr(VMF+2*T,2)}, {vr(P,2)}, 0')
        for t in range(2):
            T = 2 * p + t
            e.I(f'{MFMA} {vr(d+4*t)}, {vr(VXF+4*T)}, {vr(P+2)}, {vr(d+4*t)}')
        if p > 0:
            dp = DO + 8 * ((p - 1) % 2); op_ = QF + 4 * (p - 1)
            for k in range(4): e.I(f'v_cvt_pk_bf16_f32 v{op_+k}, v{dp+2*k}, v{dp+2*k+1}')
            e.I(f'buffer_store_dwordx4 {vr(op_)}, v2, {WS}, {"s48" if p-1 < 4 else "s49"} offen offset:{((p-1)%4)*1024}{fl}')
    dp = DO + 8 * (5 % 2); op_ = QF + 20
    for k in range(4): e.I(f'v_cvt_pk_bf16_f32 v{op_+k}, v{dp+2*k}, v{dp+2*k+1}')
    e.I(f'buffer_store_dwordx4 {vr(op_)}, v2, {WS}, s49 offen offset:1024{fl}')
    e.I('s_lshl_b32 s50, s30, 3')
    e.I('s_add_u32 s50, s50, s20')
    e.I('s_lshl_b32 s50, s50, 6')
    e.I(f's_add_u32 s50, s50, {FLGOX}')
    e.I('s_waitcnt vmcnt(0)')
    set_flag(e, ONE + 2, 's50', ONE, fl)
    e.I('s_add_u32 s30, s30, 2')
    e.I('s_cmp_lt_u32 s30, 64')
    e.I(f's_cbranch_scc1 {top}')
    e.I('s_endpgm')

F_LX, F_LH = 0, 98304
def role_ffn(e):
    ACC2 = 0
    ACC1 = 16
    BF = 48
    HP = 80
    WR = 96
    NW = 40
    e.I('s_sub_u32 s24, s21, 26')
    e.I('s_lshl_b32 s25, s20, 2')
    e.I('s_add_u32 s24, s24, s25')
    e.I('s_lshl_b32 s38, s24, 2')
    e.I('s_add_u32 s38, s38, s22')
    e.I('s_mul_i32 s39, s38, 20480')
    e.I(f's_add_u32 s39, s39, {XN}')
    e.I('s_mul_i32 s40, s22, 20480')
    for m in range(20):
        e.I(f's_add_u32 m0, s40, {m*1024}')
        e.I(f'buffer_load_dwordx4 v2, {WS}, s39 offen lds')
        e.I('s_add_u32 s39, s39, 1024')
    for k in range(160): e.I(f'v_accvgpr_write_b32 a{k}, 0')
    e.I('s_mul_i32 s41, s22, 40960')
    e.I(f's_add_u32 s41, s41, {W1F}')
    e.I(f's_mul_i32 s42, s22, {10*48*1024}')
    e.I(f's_add_u32 s42, s42, {W2F}')
    e.I('v_add_u32 v3, 20480, v2')
    for u in range(10):
        e.I(f's_mov_b32 s54, {u*48*1024}')
        e.I(f'v_add_u32 v{4+u}, s54, v2')
    e.I(f'v_add_u32 v14, {F_LH}, v2')
    e.I('s_lshl_b32 s38, s22, 12')
    e.I('v_add_u32 v15, s38, v14')
    def wload(idx, adv):
        dst = vr(WR + (idx % NW) * 4)
        if idx < 40:
            kk, u = idx // 2, idx % 2
            e.I(f's_add_u32 s45, {adv[0]}, {(kk//4)*4096}')
            e.I(f'buffer_load_dwordx4 {dst}, v{2+u}, {WS}, s45 offen offset:{(kk%4)*1024}')
        else:
            pp, u = (idx - 40) // 10, (idx - 40) % 10
            e.I(f'buffer_load_dwordx4 {dst}, v{4+u}, {WS}, {adv[1]} offen offset:{pp*1024}')
    for idx in range(NW - 2): wload(idx, ('s41', 's42'))
    e.I(f's_waitcnt vmcnt({NW-2})')
    e.I('s_barrier')
    top = e.lab('Lft')
    e.I('s_mov_b32 s30, 0')
    e.L(top)
    e.I('s_cmp_lt_u32 s30, 11')
    e.I('s_cselect_b32 s46, 163840, 0')
    e.I('s_cselect_b32 s47, 4096, 0')
    e.I('s_add_u32 s43, s41, s46')
    e.I('s_add_u32 s44, s42, s47')
    D = NW - 2
    def pref(idx):
        j = idx + D
        if j < 80: wload(j, ('s41', 's42'))
        else: wload(j - 80, ('s43', 's44'))
    def rdx(kk):
        for rt in range(4):
            e.I(f'ds_read_b128 {vr(BF + ((kk%2)*4+rt)*4)}, v{2 if rt < 3 else 3} offset:{(rt if rt < 3 else 2)*20480 + kk*1024}')
    rdx(0)
    for kk in range(20):
        if kk + 1 < 20: rdx(kk + 1)
        e.I(f's_waitcnt vmcnt({D-2}) lgkmcnt({4 if kk+1 < 20 else 0})')
        for u in range(2):
            idx = 2 * kk + u
            for rt in range(4):
                d = vr(ACC1 + (u*4+rt)*4)
                e.I(f'{MFMA} {d}, {vr(WR+(idx%NW)*4)}, {vr(BF+((kk%2)*4+rt)*4)}, {0 if kk == 0 else d}')
        pref(2 * kk); pref(2 * kk + 1)
    for rt in range(4):
        for u in range(2):
            d = ACC1 + (u*4+rt)*4
            for k in range(4): e.I(f'v_max_f32 v{d+k}, 0, v{d+k}')
            e.I(f'v_cvt_pk_bf16_f32 v{HP+rt*4+2*u}, v{d}, v{d+1}')
            e.I(f'v_cvt_pk_bf16_f32 v{HP+rt*4+2*u+1}, v{d+2}, v{d+3}')
        e.I(f'ds_write_b128 v15, {vr(HP+rt*4)} offset:{rt*1024}')
    e.I('s_waitcnt lgkmcnt(0)')
    e.I('s_barrier')
    def rdh(pp):
        for rt in range(4):
            e.I(f'ds_read_b128 {vr(BF + ((pp%2)*4+rt)*4)}, v14 offset:{pp*4096 + rt*1024}')
    rdh(0)
    for pp in range(4):
        if pp + 1 < 4: rdh(pp + 1)
        for u in range(10):
            idx = 40 + pp * 10 + u
            w = f's_waitcnt vmcnt({D-1})'
            if u == 0: w += f' lgkmcnt({4 if pp+1 < 4 else 0})'
            e.I(w)
            for rt in range(4):
                d = ar(ACC2 + (u*4+rt)*4)
                e.I(f'{MFMA} {d}, {vr(WR+(idx%NW)*4)}, {vr(BF+((pp%2)*4+rt)*4)}, {d}')
            pref(idx)
    e.I('v_xor_b32 v14, 16384, v14')
    e.I('v_xor_b32 v15, 16384, v15')
    e.I('s_mov_b32 s41, s43')
    e.I('s_mov_b32 s42, s44')
    e.I('s_add_u32 s30, s30, 1')
    e.I('s_cmp_lt_u32 s30, 12')
    e.I(f's_cbranch_scc1 {top}')
    e.I('s_waitcnt vmcnt(0)')
    e.I('v_lshlrev_b32 v3, 3, v1')
    e.I(f's_mul_i32 s38, s24, {4*40*512}')
    e.I(f's_mul_i32 s39, s22, {10*512}')
    e.I('s_add_u32 s38, s38, s39')
    e.I(f's_add_u32 s38, s38, {G_}')
    e.I(f's_mov_b32 s52, {f2u(-1.4426950408889634):#x}')
    for rt in range(4):
        e.I(f's_add_u32 s39, s38, {rt*40*512}')
        e.I('s_add_u32 s40, s39, 4096')
        for u in range(10):
            t = 16 + ((rt*10+u) % 4) * 16
            a0 = ACC2 + (u*4+rt)*4
            for k in range(4): e.I(f'v_accvgpr_read_b32 v{t+k}, a{a0+k}')
            e.I(f'v_cvt_pk_bf16_f32 v{t+4}, v{t}, v{t+1}')
            e.I(f'v_cvt_pk_bf16_f32 v{t+5}, v{t+2}, v{t+3}')
            e.I(f'v_lshlrev_b32 v{t}, 16, v{t+4}')
            e.I(f'v_and_b32 v{t+1}, 0xffff0000, v{t+4}')
            e.I(f'v_lshlrev_b32 v{t+2}, 16, v{t+5}')
            e.I(f'v_and_b32 v{t+3}, 0xffff0000, v{t+5}')
            for k in range(4): e.I(f'v_mul_f32 v{t+4+k}, s52, v{t+k}')
            for k in range(4): e.I(f'v_exp_f32 v{t+4+k}, v{t+4+k}')
            for k in range(4): e.I(f'v_add_f32 v{t+4+k}, 1.0, v{t+4+k}')
            for k in range(4): e.I(f'v_rcp_f32 v{t+4+k}, v{t+4+k}')
            for k in range(4): e.I(f'v_mul_f32 v{t+k}, v{t+k}, v{t+4+k}')
            e.I(f'v_cvt_pk_bf16_f32 v{t+8}, v{t}, v{t+1}')
            e.I(f'v_cvt_pk_bf16_f32 v{t+9}, v{t+2}, v{t+3}')
            e.I(f'buffer_store_dwordx2 {vr(t+8,2)}, v3, {WS}, {"s39" if u < 8 else "s40"} offen offset:{(u%8)*512} sc1')
    e.I('s_waitcnt vmcnt(0)')
    e.I('s_barrier')
    e.I('s_cmp_lg_u32 s22, 0')
    e.I('s_cbranch_scc1 L_end')
    e.I('v_mov_b32 v4, 1')
    e.I('s_lshl_b32 s38, s24, 2')
    e.I('v_mov_b32 v5, s38')
    e.I(f's_mov_b32 s39, {FLGG}')
    set_flag(e, 5, 's39', 4, ' sc1')
    e.I('s_endpgm')

def role_cmb(e):
    PXR = 16
    GR = 144
    XR_ = 152
    T0 = 160
    srd(e, 8, 68, 2048 * 1280)
    srd(e, 12, 70, 2048 * 1280)
    e.I('s_sub_u32 s24, s21, 30')
    e.I('s_lshl_b32 s25, s20, 1')
    e.I('s_add_u32 s24, s24, s25')
    e.I('s_lshl_b32 s24, s24, 2')
    e.I('s_add_u32 s30, s24, s22')
    e.I('v_lshlrev_b32 v3, 2, v1')
    e.I('v_lshlrev_b32 v4, 3, v1')
    e.I('v_mov_b32 v6, 0')
    lane_ig(e, 14, 15)
    e.I('v_mul_u32_u24 v5, 1280, v14')
    e.I('v_lshl_add_u32 v5, v15, 3, v5')
    top = e.lab('Lct')
    e.L(top)
    e.I('s_mul_i32 s38, s30, 3277')
    e.I('s_lshr_b32 s38, s38, 16')
    e.I('s_mul_i32 s39, s38, 20')
    e.I('s_sub_u32 s39, s30, s39')
    e.I('s_cmp_ge_u32 s39, 10')
    e.I('s_cselect_b32 s40, 1, 0')
    e.I('s_mul_i32 s41, s40, 10')
    e.I('s_sub_u32 s41, s39, s41')
    e.I('s_lshr_b32 s42, s38, 1')
    e.I('s_lshl_b32 s42, s42, 2')
    e.I(f's_add_u32 s42, s42, {FLGG}')
    wait_flags(e, 6, 's42', 1, T0, 7, sleep=8)
    e.I('s_mul_i32 s42, s38, 10')
    e.I('s_add_u32 s42, s42, s41')
    e.I('s_lshl_b32 s42, s42, 7')
    e.I(f's_add_u32 s42, s42, {FLGPX}')
    wait_flags(e, 3, 's42', 0xffffffff, T0, 8, sleep=2)
    e.I(f's_mul_i32 s43, s38, {SEG_PX}')
    e.I('s_mul_i32 s44, s40, 40960')
    e.I('s_add_u32 s43, s43, s44')
    e.I('s_lshl_b32 s44, s41, 12')
    e.I('s_add_u32 s43, s43, s44')
    e.I(f's_add_u32 s43, s43, {PX}')
    e.I('s_lshl_b32 s45, s38, 1')
    e.I('s_add_u32 s45, s45, s40')
    e.I('s_mul_i32 s46, s45, 20480')
    e.I('s_lshl_b32 s47, s41, 11')
    e.I('s_add_u32 s47, s47, s46')
    e.I(f's_add_u32 s47, s47, {G_}')
    e.I('s_lshl_b32 s48, s41, 7')
    e.I('s_add_u32 s48, s48, s46')
    for t in range(4):
        e.I(f'buffer_load_dwordx2 {vr(GR+2*t,2)}, v4, {WS}, s47 offen offset:{t*512} sc1')
        e.I(f'buffer_load_dwordx2 {vr(XR_+2*t,2)}, v5, s[8:11], s48 offen offset:{t*32}')
    for x in range(8):
        for t in range(4):
            e.I(f'buffer_load_dwordx4 {vr(PXR+(x*4+t)*4)}, v2, {WS}, s43 offen offset:{t*1024} sc1')
        if x < 7: e.I('s_add_u32 s43, s43, 81920')
    for x in range(1, 8):
        e.I(f's_waitcnt vmcnt({(7-x)*4})')
        for k in range(16):
            e.I(f'v_add_f32 v{PXR+k}, v{PXR+k}, v{PXR+x*16+k}')
    for t in range(4):
        b = PXR + 4 * t; u = T0 + 8 * (t % 2)
        e.I(f'v_cvt_pk_bf16_f32 v{u}, v{b}, v{b+1}')
        e.I(f'v_cvt_pk_bf16_f32 v{u+1}, v{b+2}, v{b+3}')
        for h_ in range(2):
            e.I(f'v_lshlrev_b32 v{b+2*h_}, 16, v{u+h_}')
            e.I(f'v_and_b32 v{b+2*h_+1}, 0xffff0000, v{u+h_}')
            e.I(f'v_lshlrev_b32 v{u+2+2*h_}, 16, v{GR+2*t+h_}')
            e.I(f'v_and_b32 v{u+3+2*h_}, 0xffff0000, v{GR+2*t+h_}')
        for k in range(4): e.I(f'v_mul_f32 v{b+k}, v{b+k}, v{u+2+k}')
        e.I(f'v_cvt_pk_bf16_f32 v{u}, v{b}, v{b+1}')
        e.I(f'v_cvt_pk_bf16_f32 v{u+1}, v{b+2}, v{b+3}')
        for h_ in range(2):
            e.I(f'v_lshlrev_b32 v{b+2*h_}, 16, v{u+h_}')
            e.I(f'v_and_b32 v{b+2*h_+1}, 0xffff0000, v{u+h_}')
            e.I(f'v_lshlrev_b32 v{u+2+2*h_}, 16, v{XR_+2*t+h_}')
            e.I(f'v_and_b32 v{u+3+2*h_}, 0xffff0000, v{XR_+2*t+h_}')
        for k in range(4): e.I(f'v_add_f32 v{b+k}, v{b+k}, v{u+2+k}')
        e.I(f'v_cvt_pk_bf16_f32 v{u+6}, v{b}, v{b+1}')
        e.I(f'v_cvt_pk_bf16_f32 v{u+7}, v{b+2}, v{b+3}')
        e.I(f'buffer_store_dwordx2 {vr(u+6,2)}, v5, s[12:15], s48 offen offset:{t*32}')
    e.I('s_add_u32 s30, s30, 64')
    e.I('s_cmp_lt_u32 s30, 1280')
    e.I(f's_cbranch_scc1 {top}')
    e.I('s_endpgm')

def gen_mainkernel(e):
    kernel_head(e, MAIN)
    e.I('s_cmp_ge_u32 s2, 256')
    e.I('s_cbranch_scc1 L_end')
    e.I('s_load_dwordx2 s[32:33], s[0:1], 96')
    e.I('s_load_dwordx4 s[60:63], s[0:1], 16')
    e.I('s_load_dwordx4 s[64:67], s[0:1], 32')
    e.I('s_load_dwordx2 s[68:69], s[0:1], 0')
    e.I('s_load_dwordx4 s[72:75], s[0:1], 80')
    e.I('s_getreg_b32 s24, hwreg(HW_REG_XCC_ID)')
    e.I('s_and_b32 s24, s24, 15')
    e.I('v_and_b32 v1, 63, v0')
    e.I('v_lshlrev_b32 v2, 4, v1')
    e.I('v_lshrrev_b32 v3, 6, v0')
    e.I('v_readfirstlane_b32 s22, v3')
    e.I('s_waitcnt lgkmcnt(0)')
    e.I('s_mov_b64 s[70:71], s[72:73]')
    srd(e, 4, 32, WS_BYTES)
    e.I('s_cmp_lg_u32 s22, 0')
    e.I('s_cbranch_scc1 L_role')
    e.I('s_mov_b64 exec, 1')
    e.I('s_lshl_b32 s25, s24, 7')
    e.I('v_mov_b32 v3, s25')
    e.I('v_mov_b32 v4, 1')
    e.I(f'buffer_atomic_add v4, v3, {WS}, 0 offen sc0')
    e.I('s_mov_b64 exec, 0xffff')
    e.I('v_lshlrev_b32 v3, 7, v1')
    e.I('s_waitcnt vmcnt(0)')
    e.I('v_readfirstlane_b32 s25, v4')
    e.I(f's_mov_b32 s31, {TMO}')
    e.L('L_cnt')
    e.I(f'buffer_load_dword v5, v3, {WS}, 0 offen sc1')
    e.I('s_waitcnt vmcnt(0)')
    for y in range(16): e.I(f'v_readlane_b32 s{36+y}, v5, {y}')
    e.I('s_nop 3')
    e.I('s_mov_b32 s26, 0'); e.I('s_mov_b32 s27, s25'); e.I('s_mov_b32 s23, 0')
    for y in range(16):
        e.I(f's_add_u32 s26, s26, s{36+y}')
        e.I(f's_cmp_gt_u32 s24, {y}')
        e.I(f's_cselect_b32 s28, s{36+y}, 0')
        e.I('s_add_u32 s27, s27, s28')
        if y < 8:
            e.I(f's_cmp_lg_u32 s{36+y}, 32')
            e.I('s_cselect_b32 s23, 1, s23')
    e.I('s_cmp_eq_u32 s26, 256')
    e.I('s_cbranch_scc1 L_cntd')
    e.I('s_sub_u32 s31, s31, 1')
    e.I('s_cbranch_scc0 L_cnt')
    e.I('s_mov_b32 s23, 2')
    e.L('L_cntd')
    if opt.force_slow:
        e.I('s_mov_b32 s23, 1')
        e.I('s_mov_b32 s27, s2')
    e.I('s_lshr_b32 s20, s27, 5')
    e.I('s_and_b32 s21, s27, 31')
    e.I('v_mov_b32 v4, s20'); e.I('v_mov_b32 v5, s21'); e.I('v_mov_b32 v6, s23'); e.I('v_mov_b32 v7, 0')
    e.I(f'v_mov_b32 v3, {LDS_ROLE}')
    e.I('ds_write_b128 v3, v[4:7]')
    e.I('s_waitcnt lgkmcnt(0)')
    e.I('s_mov_b64 exec, -1')
    e.L('L_role')
    e.I('s_barrier')
    e.I(f'v_mov_b32 v3, {LDS_ROLE}')
    e.I('ds_read_b128 v[4:7], v3')
    e.I('s_waitcnt lgkmcnt(0)')
    e.I('v_readfirstlane_b32 s20, v4')
    e.I('v_readfirstlane_b32 s21, v5')
    e.I('v_readfirstlane_b32 s23, v6')
    e.I('s_nop 3')
    e.I('s_and_b32 s20, s20, 7')
    e.I('s_cmp_ge_u32 s23, 2')
    e.I('s_cbranch_scc1 L_end')
    e.I('s_cmp_ge_u32 s21, 30'); e.I('s_cbranch_scc1 L_cmb')
    e.I('s_cmp_ge_u32 s21, 26'); e.I('s_cbranch_scc1 L_ffn')
    e.I('s_cmp_lg_u32 s23, 0'); e.I('s_cbranch_scc1 L_slow')
    for slow in (False, True):
        sfx = 's' if slow else 'f'
        if slow: e.L('L_slow')
        e.I('s_cmp_ge_u32 s21, 22'); e.I(f's_cbranch_scc1 L_att{sfx}')
        e.I('s_cmp_ge_u32 s21, 12'); e.I(f's_cbranch_scc1 L_wo{sfx}')
        role_qkv(e, slow)
        e.L(f'L_wo{sfx}'); role_wo(e, slow)
        e.L(f'L_att{sfx}'); role_att(e, slow)
    e.L('L_ffn'); role_ffn(e)
    e.L('L_cmb'); role_cmb(e)
    e.L('L_fail')
    e.I('s_mov_b64 exec, 1')
    e.I('s_lshl_b32 s31, s31, 2')
    e.I('v_mov_b32 v3, s31')
    e.I('v_mov_b32 v4, 1')
    e.I('global_atomic_add v3, v4, s[74:75]')
    e.L('L_end')
    e.I('s_endpgm')

def build(path):
    hdr = open('cdna_kernels/' + NAME + '.s.ref').read().split('\n')
    e = Em()
    for l in hdr:
        if l.startswith(';') and '@launch' not in l and 'Override launch' not in l and 'grid=ceil' not in l: e.raw(l)
    e.raw(f'; @launch kernel={PRE} grid=({PRE_GRID},1,1) block=(256,1,1) lds={PRE_LDS}')
    e.raw(f'; @launch kernel={MAIN} grid=(256,1,1) block=(256,1,1) lds={LDS_TOTAL}')
    e.raw('.amdgcn_target "amdgcn-amd-amdhsa--gfx950"')
    gen_pre(e, PRE)
    gen_mainkernel(e)
    kernel_desc(e, PRE, 80, 48, 80)
    kernel_desc(e, MAIN, 512, 96, 256)
    lines, added = hazard.pad(e.lines)
    open(path, 'w').write('\n'.join(lines) + '\n')
    n = sum(1 for l in lines if l.startswith('    ') and not l.strip().startswith(';'))
    print(f'wrote {path}: {n} instructions, {added} nops added')

if __name__ == '__main__':
    out = sys.argv[1] if len(sys.argv) > 1 else 'cdna_kernels/' + NAME + '.s'
    if 'slow' in sys.argv[2:]: opt.force_slow = True
    build(out)
```

```python
CNT   = 0x0
PARTAB = 0x800
FLGQ  = 0x1000
FLGOX = 0x22000
FLGPX = 0x2A000
FLGG  = 0x3E000
HINT  = 0x3F000
ZERO_END = 0x40000
MEM   = 0x40000
MEM_SLOT = 81920
SENT0 = 0x54000
XR    = 0x90000
XR_SLOT = 196608
VR    = 0x150000
VR_SLOT = 98304
HINT2 = 0x1B0000
PART  = 0x200000
PART_SLOT = 327680
LPART = 0x344000
LPART_SLOT = 163840
CAL   = 0x344000
N_SENT_WG = 94
XN    = 0x400000
W1F   = 0x680000
W2F   = 0x860000
G_    = 0xA40000
QX    = 0x1000000
KX    = 0x2800000
VX    = 0x4000000
OX    = 0x5800000
XP    = 0x7000000
VM    = 0x7C00000
PX    = 0x8800000
DBGT  = 0xB000000
SCRATCH = 0xC000000
WS_BYTES = 256 << 20
SEG_QX = 393216
SEG_XP = 196608
SEG_VM = 98304
SEG_PX = 327680
assert SENT0 + N_SENT_WG * 32768 == CAL
RD = 8
```

```python
import sys, struct
from asmlib import *
from layout import *
import hazard
from gen_pre import gen_pre, PRE_GRID, PRE_LDS

NAME = 'recurrent_scan__memory_aug_recurrent_mem_tr__dense_activation_relu__prompt'
MAIN = NAME + '_kernel'
PRE = 'prep_kernel'
LDS_TOTAL = 131328
LDS_ROLE = 131072
TMO = 1 << 18
def f2u(x): return struct.unpack('<I', struct.pack('<f', x))[0]
SC_L2E = f2u(192 ** -0.5 * 1.4426950408889634)
NEG_BIG = f2u(-1e30)
MFMA = 'v_mfma_f32_16x16x32_bf16'
MFMA16 = 'v_mfma_f32_16x16x16_bf16'
WS = 's[4:7]'

class Opt:
    force_slow = False
    ts = False
    nobg = False
    ackpoll = False
    noxw = False
    pdelay = 4
    vdelay = 0
    kbar = 0
    kpre = 6
    kin = 6
    fresh = 0
    pdiag = 0
    pflip = 0
    pr = 1
    pfar = 0
opt = Opt()

def vr(i, n=4): return f'v[{i}:{i+n-1}]'
def ar(i, n=4): return f'a[{i}:{i+n-1}]'

def maxchain(e, dst, regs, op='u32'):
    regs = list(regs)
    e.I(f'v_max3_{op} v{dst}, v{regs[0]}, v{regs[1]}, v{regs[2]}')
    rest = regs[3:]
    while rest:
        if len(rest) >= 2:
            e.I(f'v_max3_{op} v{dst}, v{dst}, v{rest[0]}, v{rest[1]}'); rest = rest[2:]
        else:
            e.I(f'v_max_{op} v{dst}, v{dst}, v{rest[0]}'); rest = rest[1:]

def check_sent(e, regs, t0, t1):
    regs = list(regs)
    if len(regs) >= 8:
        h = len(regs) // 2
        A, B = regs[:h], regs[h:]
        ea, eb = Em(), Em()
        maxchain(ea, t0, A); maxchain(eb, t1, B)
        for i in range(max(len(ea.lines), len(eb.lines))):
            if i < len(ea.lines): e.lines.append(ea.lines[i])
            if i < len(eb.lines): e.lines.append(eb.lines[i])
        e.I(f'v_max_u32 v{t0}, v{t0}, v{t1}')
    else:
        maxchain(e, t0, regs)
    e.I(f'v_cmp_eq_u32 vcc, -1, v{t0}')

def poll2(e, issue, nl, regsA, regsB, consume, t0, t1, code):
    lp, dA, dB, dd = e.lab('Lp'), e.lab('LdA'), e.lab('LdB'), e.lab('Ldd')
    e.I(f's_mov_b32 s31, {TMO}')
    issue(regsA)
    e.L(lp)
    issue(regsB)
    e.I(f's_waitcnt vmcnt({nl})')
    check_sent(e, range(regsA, regsA + 4 * nl), t0, t1)
    e.I(f's_cbranch_vccz {dA}')
    issue(regsA)
    e.I(f's_waitcnt vmcnt({nl})')
    check_sent(e, range(regsB, regsB + 4 * nl), t0, t1)
    e.I(f's_cbranch_vccz {dB}')
    e.I('s_sub_u32 s31, s31, 1')
    e.I(f's_cbranch_scc0 {lp}')
    e.I(f's_mov_b32 s31, {code}')
    e.I('s_branch L_fail')
    e.L(dB)
    consume(regsB)
    e.I(f's_branch {dd}')
    e.L(dA)
    consume(regsA)
    e.L(dd)

def wait_flags(e, vaddr, sofs, mask, vt, code, sleep=0):
    lp, dn = e.lab('Lf'), e.lab('Lfd')
    e.I(f's_mov_b32 s31, {TMO}')
    if mask > 0xffffffff or mask < 0: e.I(f's_mov_b64 exec, {mask}')
    else:
        e.I(f's_mov_b32 exec_lo, {mask:#x}'); e.I('s_mov_b32 exec_hi, 0')
    e.L(lp)
    e.I(f'buffer_load_dword v{vt}, v{vaddr}, {WS}, {sofs} offen sc1')
    e.I('s_waitcnt vmcnt(0)')
    e.I(f'v_cmp_eq_u32 vcc, 0, v{vt}')
    e.I(f's_cbranch_vccz {dn}')
    if sleep: e.I(f's_sleep {sleep}')
    e.I('s_sub_u32 s31, s31, 1')
    e.I(f's_cbranch_scc0 {lp}')
    e.I(f's_mov_b32 s31, {code}')
    e.I('s_branch L_fail')
    e.L(dn)
    e.I('s_mov_b64 exec, -1')

def set_flag(e, vaddr, sofs, vone, fl):
    e.I('s_mov_b64 exec, 1')
    e.I(f'buffer_store_dword v{vone}, v{vaddr}, {WS}, {sofs} offen{fl}')
    e.I('s_mov_b64 exec, -1')

def xg_reduce(e, op, x, t):
    e.I(f'v_mov_b32 v{t}, v{x}')
    e.I(f'v_permlane16_swap_b32 v{x}, v{t}')
    e.I(f'{op} v{x}, v{x}, v{t}')
    e.I(f'v_mov_b32 v{t}, v{x}')
    e.I(f'v_permlane32_swap_b32 v{x}, v{t}')
    e.I(f'{op} v{x}, v{x}, v{t}')

def softmax12(e, S, P, t):
    maxchain(e, t, range(S, S + 12), 'f32')
    xg_reduce(e, 'v_max_f32', t, t + 1)
    e.I(f'v_mul_f32 v{t}, s53, v{t}')
    for i in range(12):
        e.I(f'v_fma_f32 v{S+i}, v{S+i}, s52, v{t}')
    for i in range(12):
        e.I(f'v_exp_f32 v{S+i}, v{S+i}')
    e.I(f'v_add_f32 v{t+2}, v{S}, v{S+1}')
    e.I(f'v_add_f32 v{t+3}, v{S+2}, v{S+3}')
    for i in range(4, 12, 2):
        e.I(f'v_add_f32 v{t+2}, v{t+2}, v{S+i}')
        e.I(f'v_add_f32 v{t+3}, v{t+3}, v{S+i+1}')
    e.I(f'v_add_f32 v{t+2}, v{t+2}, v{t+3}')
    xg_reduce(e, 'v_add_f32', t + 2, t + 3)
    e.I(f'v_rcp_f32 v{t+2}, v{t+2}')
    for i in range(12):
        e.I(f'v_mul_f32 v{S+i}, v{S+i}, v{t+2}')
    for i in range(6):
        e.I(f'v_cvt_pk_bf16_f32 v{P+i}, v{S+2*i}, v{S+2*i+1}')

def TS(e, k):
    if opt.ts: e.I(f's_memrealtime s[{76+2*k}:{77+2*k}]')
def TSflush(e, step, va=238, vd=239):
    if not opt.ts: return
    e.I('s_waitcnt lgkmcnt(0)')
    for k in range(10): e.I(f'v_writelane_b32 v{vd}, s{76+2*k}, {k}')
    e.I('s_lshl_b32 s76, s20, 5')
    e.I('s_add_u32 s76, s76, s21')
    e.I('s_lshl_b32 s76, s76, 2')
    e.I('s_add_u32 s76, s76, s22')
    e.I('s_mul_i32 s76, s76, 72')
    e.I(f's_add_u32 s76, s76, {step}')
    e.I('s_lshl_b32 s76, s76, 6')
    e.I(f's_add_u32 s76, s76, {DBGT}')
    e.I(f'v_lshlrev_b32 v{va}, 2, v1')
    e.I('s_mov_b64 exec, 0x3ff')
    e.I(f'buffer_store_dword v{vd}, v{va}, {WS}, s76 offen')
    e.I('s_mov_b64 exec, -1')

def lane_ig(e, vi, vg):
    e.I(f'v_and_b32 v{vi}, 15, v1')
    e.I(f'v_lshrrev_b32 v{vg}, 4, v1')

def load_weights(e, mats, RS, rows, paired, vA, vT):
    CH = rows * 128
    ninst = rows // 8 // 4
    nk = rows // 32
    e.I(f'v_lshrrev_b32 v{vT}, 3, v1')
    if paired:
        e.I(f'v_bfe_u32 v{vT+1}, v1, 4, 2')
    else:
        e.I(f'v_bfe_u32 v{vT+1}, v1, 4, 1')
        e.I('s_and_b32 s54, s22, 1')
        e.I('s_lshl_b32 s54, s54, 1')
        e.I(f'v_or_b32 v{vT+1}, s54, v{vT+1}')
    e.I(f'v_lshlrev_b32 v{vT+1}, 1, v{vT+1}')
    e.I(f'v_and_b32 v{vT+2}, 7, v1')
    e.I(f'v_xor_b32 v{vT+2}, v{vT+2}, v{vT+1}')
    e.I(f's_mov_b32 s54, {RS}')
    e.I(f'v_mul_lo_u32 v{vA}, s54, v{vT}')
    e.I(f'v_lshl_add_u32 v{vA}, v{vT+2}, 4, v{vA}')
    e.I(f'v_lshrrev_b32 v{vT}, 4, v1')
    e.I(f'v_bfe_u32 v{vT+1}, v1, 2, 2')
    if paired:
        e.I(f'v_lshl_add_u32 v{vT+2}, v{vT}, 2, v{vT+1}')
        e.I(f'v_bfe_u32 v{vT}, v{vT+2}, 1, 2')
        second = 2048
    else:
        e.I(f'v_lshl_add_u32 v{vT+2}, v{vT}, 3, v{vT+1}')
        e.I(f'v_and_b32 v{vT}, 1, v{vT}')
        e.I(f'v_lshlrev_b32 v{vT}, 1, v{vT}')
        e.I(f'v_bfe_u32 v{vT+1}, v1, 3, 1')
        e.I(f'v_or_b32 v{vT}, v{vT}, v{vT+1}')
        second = 512
    e.I(f'v_xor_b32 v{vT}, s22, v{vT}')
    e.I(f'v_lshlrev_b32 v{vT+2}, 7, v{vT+2}')
    e.I(f'v_lshl_add_u32 v{vT+2}, v{vT}, 5, v{vT+2}')
    e.I(f'v_and_b32 v{vT}, 3, v1')
    e.I(f'v_lshl_add_u32 v{vT}, v{vT}, 3, v{vT+2}')
    e.I(f'v_add_u32 v{vT+1}, {CH}, v{vT}')
    e.I(f'v_add_u32 v{vT+2}, {2*CH}, v{vT}')
    chunks = []
    for (srd_, sofs, ab, nrows) in mats:
        for c in range(nrows // rows):
            chunks.append((srd_, sofs, ab + c * nk * 4, c * rows))
    e.I(f's_mul_i32 s55, s22, {8*RS}')
    e.I('s_lshl_b32 s56, s22, 10')
    def issue(ci):
        srd_, sofs, ab, r0 = chunks[ci]
        buf = ci % 3
        e.I(f's_add_u32 s57, {sofs}, s55')
        if r0: e.I(f's_add_u32 s57, s57, {r0*RS}')
        for n in range(ninst):
            e.I(f's_add_u32 m0, s56, {buf*CH + n*4096}')
            e.I(f'buffer_load_dwordx4 v{vA}, {srd_}, s57 offen lds')
            if n + 1 < ninst: e.I(f's_add_u32 s57, s57, {32*RS}')
    for ci in range(min(3, len(chunks))): issue(ci)
    for ci in range(len(chunks)):
        left = min(len(chunks) - 1 - ci, 2)
        e.I(f's_waitcnt vmcnt({left*ninst})')
        e.I('s_barrier')
        srd_, sofs, ab, r0 = chunks[ci]
        for k in range(nk):
            e.I(f'ds_read_b64_tr_b16 {ar(ab+4*k,2)}, v{vT+ci%3} offset:{k*4096}')
            e.I(f'ds_read_b64_tr_b16 {ar(ab+4*k+2,2)}, v{vT+ci%3} offset:{k*4096+second}')
        e.I('s_waitcnt lgkmcnt(0)')
        e.I('s_barrier')
        if ci + 3 < len(chunks): issue(ci + 3)

Q_LX, Q_LMEM = 0, 81920
def role_qkv(e, slow):
    fl = ' sc1' if slow else ''
    WQ, WK, WV = 0, 80, 160
    MF = 16
    DQ, DK, DV = 96, 100, 104
    PA, PB = 108, 120
    XD = 132
    T0 = 160
    KEEP = 176
    SENT = 248; ONE = 252
    e.I('s_mul_i32 s24, s21, 43')
    e.I('s_lshr_b32 s24, s24, 7')
    e.I('s_mul_i32 s25, s24, 3')
    e.I('s_sub_u32 s25, s21, s25')
    e.I('s_lshl_b32 s26, s20, 2')
    e.I('s_add_u32 s26, s26, s24')
    e.I('s_lshl_b32 s27, s25, 2')
    e.I('s_add_u32 s27, s27, s22')
    srd(e, 8, 60, 640 * 12288); srd(e, 12, 62, 640 * 12288); srd(e, 16, 64, 640 * 12288)
    e.I('s_mul_i32 s28, s26, 384')
    e.I('s_lshl_b32 s29, s25, 7')
    e.I('s_add_u32 s28, s28, s29')
    load_weights(e, [('s[12:15]', 's28', WK, 640), ('s[16:19]', 's28', WV, 640), ('s[8:11]', 's28', WQ, 640)], 12288, 320, False, 3, 4)
    e.I('s_mul_i32 s62, s22, 10240')
    e.I(f's_add_u32 s63, s62, {XN}')
    for m in range(10):
        e.I(f's_add_u32 m0, s62, {Q_LX + m*1024}')
        e.I(f'buffer_load_dwordx4 v2, {WS}, s63 offen lds')
        e.I('s_add_u32 s63, s63, 1024')
    e.I('s_mov_b32 s34, 0xff00ff00'); e.I('s_mov_b32 s35, 0xff00ff00')
    e.I('s_cmp_lt_u32 s22, 2')
    e.I('s_cselect_b32 s36, -1, 0')
    e.I('s_cselect_b32 s37, 0, -1')
    e.I('s_mul_i32 s38, s22, 2560')
    e.I('v_add_u32 v3, s38, v2')
    e.I('v_and_b32 v4, 31, v1')
    e.I('v_lshlrev_b32 v4, 4, v4')
    e.I('v_add_u32 v4, s38, v4')
    e.I('v_add_u32 v4, 2048, v4')
    e.I(f'v_add_u32 v5, {Q_LMEM}, v3')
    e.I(f'v_add_u32 v6, {Q_LMEM}, v4')
    lane_ig(e, 14, 15)
    e.I('v_and_b32 v7, 7, v14')
    e.I('v_lshlrev_b32 v7, 4, v7')
    e.I('v_lshl_add_u32 v7, v15, 7, v7')
    e.I(f'v_add_u32 v7, {Q_LMEM}, v7')
    e.I('s_lshr_b32 s38, s27, 1')
    e.I('s_lshl_b32 s38, s38, 10')
    e.I('s_and_b32 s39, s27, 1')
    e.I('s_lshl_b32 s39, s39, 3')
    e.I('s_add_u32 s38, s38, s39')
    e.I('v_add_u32 v8, s38, v2')
    e.I('s_lshl_b32 s38, s25, 10')
    e.I('s_add_u32 s38, s38, s39')
    e.I('v_add_u32 v9, s38, v2')
    e.I('s_lshl_b32 s38, s27, 2')
    e.I(f'v_mov_b32 v{ONE+2}, s38')
    e.I(f'v_mov_b32 v{ONE}, 1')
    for k in range(4): e.I(f'v_mov_b32 v{SENT+k}, -1')
    e.I('s_mul_i32 s58, s26, 6144')
    e.I('s_mul_i32 s59, s20, 10240')
    e.I(f's_add_u32 s59, s59, {MEM}')
    e.I('s_mul_i32 s60, s26, 3072')

    def late_stores():
        e.I(f'buffer_store_dwordx2 {vr(KEEP,2)}, v8, {WS}, s43 offen{fl}')
        e.I(f'buffer_store_dwordx2 {vr(SENT,2)}, v8, {WS}, s42 offen{fl}')
        e.I('s_mov_b64 exec, s[36:37]')
        e.I(f'buffer_store_dwordx2 {vr(KEEP+2,2)}, v9, {WS}, s44 offen{fl}')
        e.I(f'buffer_store_dwordx2 {vr(SENT,2)}, v9, {WS}, s46 offen{fl}')
        e.I('s_mov_b64 exec, -1')
    def xwork(late):
        e.I('s_and_b32 s65, s64, 1')
        e.I('s_mul_i32 s66, s65, 40960')
        e.I('v_add_u32 v12, s66, v2')
        e.I('s_xor_b32 s65, s65, 1')
        e.I('s_mul_i32 s65, s65, 40960')
        e.I('s_add_u32 s65, s65, s62')
        e.I('s_add_u32 s66, s64, 1')
        e.I('s_min_u32 s66, s66, 63')
        e.I('s_mul_i32 s66, s66, 40960')
        e.I('s_add_u32 s66, s66, s62')
        e.I(f's_add_u32 s66, s66, {XN}')
        e.I(f's_mul_i32 s47, s64, {SEG_QX}')
        e.I('s_lshl_b32 s48, s58, 1')
        e.I('s_add_u32 s47, s47, s48')
        PF = 5
        def rd(kk):
            for rt in range(2):
                e.I(f'ds_read_b128 {vr(MF + ((2*kk+rt) % 20)*4)}, v12 offset:{rt*20480 + kk*1024}')
        for kk in range(PF): rd(kk)
        for kk in range(20):
            nxt = min(20, kk + PF) - (kk + 1)
            e.I(f's_waitcnt lgkmcnt({2*nxt})')
            for rt in range(2):
                f = vr(MF + ((2*kk+rt) % 20)*4)
                for (m, Wb) in ((0, WQ), (1, WK)):
                    d = vr(XD + (m*2+rt)*4)
                    e.I(f'{MFMA} {d}, {ar(Wb+4*kk)}, {f}, {0 if kk == 0 else d}')
                d = vr(XD + (4+rt)*4)
                e.I(f'{MFMA} {d}, {f}, {ar(WV+4*kk)}, {0 if kk == 0 else d}')
            if kk == 1 and late: late_stores()
            if kk + PF < 20: rd(kk + PF)
            if 3 <= kk < 13:
                m = kk - 3
                e.I(f's_add_u32 m0, s65, {m*1024}')
                e.I(f'buffer_load_dwordx4 v2, {WS}, s66 offen lds')
                e.I('s_add_u32 s66, s66, 1024')
        for m, base in ((1, KX), (0, QX)):
            for rt in range(2):
                d = XD + (m*2+rt)*4; o = T0 + (m*2+rt)*2
                e.I(f'v_cvt_pk_bf16_f32 v{o}, v{d}, v{d+1}')
                e.I(f'v_cvt_pk_bf16_f32 v{o+1}, v{d+2}, v{d+3}')
                e.I(f's_add_u32 s48, s47, {base + rt*6144}')
                e.I(f'buffer_store_dwordx2 {vr(o,2)}, v8, {WS}, s48 offen{fl}')
        for rt in range(2):
            d = XD + (4+rt)*4; o = T0 + 8 + rt*2
            e.I(f'v_cvt_pk_bf16_f32 v{o}, v{d}, v{d+1}')
            e.I(f'v_cvt_pk_bf16_f32 v{o+1}, v{d+2}, v{d+3}')
        e.I('s_lshl_b32 s48, s27, 10')
        e.I('s_add_u32 s48, s48, s47')
        e.I(f's_add_u32 s48, s48, {VX}')
        e.I(f'buffer_store_dwordx4 {vr(T0+8)}, v2, {WS}, s48 offen{fl}')
    def flag_n():
        e.I('s_lshl_b32 s51, s64, 5')
        e.I('s_add_u32 s51, s51, s26')
        e.I('s_lshl_b32 s51, s51, 6')
        e.I(f's_add_u32 s51, s51, {FLGQ}')
        e.I('s_waitcnt vmcnt(0)')
        set_flag(e, ONE + 2, 's51', ONE, fl)
        e.I('s_add_u32 s64, s64, 1')
    def mem_part():
        e.I('s_and_b32 s38, s30, 3')
        e.I('s_xor_b32 s39, s38, 2')
        e.I(f's_mul_i32 s40, s38, {MEM_SLOT}')
        e.I('s_add_u32 s40, s40, s59')
        e.I(f's_mul_i32 s41, s38, {XR_SLOT}')
        e.I('s_add_u32 s41, s41, s58')
        e.I(f's_add_u32 s41, s41, {XR}')
        e.I(f's_mul_i32 s42, s39, {XR_SLOT}')
        e.I('s_add_u32 s42, s42, s58')
        e.I(f's_add_u32 s42, s42, {XR}')
        e.I(f's_mul_i32 s43, s30, {SEG_XP}')
        e.I('s_add_u32 s43, s43, s58')
        e.I(f's_add_u32 s43, s43, {XP}')
        e.I(f's_mul_i32 s44, s30, {SEG_VM}')
        e.I('s_add_u32 s44, s44, s60')
        e.I(f's_add_u32 s44, s44, {VM}')
        e.I(f's_mul_i32 s45, s38, {VR_SLOT}')
        e.I('s_add_u32 s45, s45, s60')
        e.I(f's_add_u32 s45, s45, {VR}')
        e.I(f's_mul_i32 s46, s39, {VR_SLOT}')
        e.I('s_add_u32 s46, s46, s60')
        e.I(f's_add_u32 s46, s46, {VR}')
        def issue(b):
            e.I(f'buffer_load_dwordx4 {vr(b)}, v3, {WS}, s40 offen sc1')
            e.I(f'buffer_load_dwordx4 {vr(b+4)}, v3, {WS}, s40 offen offset:1024 sc1')
            e.I(f'buffer_load_dwordx4 {vr(b+8)}, v4, {WS}, s40 offen sc1')
        def consume(b):
            e.I(f'ds_write_b128 v5, {vr(b)}')
            e.I(f'ds_write_b128 v5, {vr(b+4)} offset:1024')
            e.I(f'ds_write_b128 v6, {vr(b+8)}')
        poll2(e, issue, 3, PA, PB, consume, T0, T0 + 1, 1)
        TS(e, 1)
        e.I('s_waitcnt lgkmcnt(0)')
        e.I('s_barrier')
        PF = 12
        for kk in range(PF): e.I(f'ds_read_b128 {vr(MF+4*kk)}, v7 offset:{kk*512}')
        for kk in range(20):
            nxt = min(20, kk + PF) - (kk + 1)
            e.I(f's_waitcnt lgkmcnt({nxt})')
            f = vr(MF + 4*kk)
            e.I(f'{MFMA} {vr(DQ)}, {ar(WQ+4*kk)}, {f}, {0 if kk == 0 else vr(DQ)}')
            e.I(f'{MFMA} {vr(DK)}, {ar(WK+4*kk)}, {f}, {0 if kk == 0 else vr(DK)}')
            if kk + PF < 20: e.I(f'ds_read_b128 {vr(MF+4*(kk+PF))}, v7 offset:{(kk+PF)*512}')
        def vm(kk): e.I(f'{MFMA} {vr(DV)}, {vr(MF+4*kk)}, {ar(WV+4*kk)}, {0 if kk == 0 else vr(DV)}')
        vm(0); vm(1)
        e.I('s_nop 4')
        e.I(f'v_cvt_pk_bf16_f32 v{KEEP}, v{DQ}, v{DQ+1}')
        e.I(f'v_cvt_pk_bf16_f32 v{KEEP+1}, v{DQ+2}, v{DQ+3}')
        e.I(f'v_cvt_pk_bf16_f32 v{T0+2}, v{DK}, v{DK+1}')
        e.I(f'v_cvt_pk_bf16_f32 v{T0+3}, v{DK+2}, v{DK+3}')
        e.I(f'v_cndmask_b32 v{KEEP}, v{KEEP}, v{T0+2}, s[34:35]')
        e.I(f'v_cndmask_b32 v{KEEP+1}, v{KEEP+1}, v{T0+3}, s[34:35]')
        e.I(f'v_min_u32 v{KEEP}, -2, v{KEEP}')
        e.I(f'v_min_u32 v{KEEP+1}, -2, v{KEEP+1}')
        e.I(f'buffer_store_dwordx2 {vr(KEEP,2)}, v8, {WS}, s41 offen{fl}')
        TS(e, 2)
        for kk in range(2, 20): vm(kk)
        e.I(f'v_cvt_pk_bf16_f32 v{KEEP+2}, v{DV}, v{DV+1}')
        e.I(f'v_cvt_pk_bf16_f32 v{KEEP+3}, v{DV+2}, v{DV+3}')
        e.I(f'v_min_u32 v{KEEP+2}, -2, v{KEEP+2}')
        e.I(f'v_min_u32 v{KEEP+3}, -2, v{KEEP+3}')
        e.I('s_mov_b64 exec, s[36:37]')
        e.I(f'buffer_store_dwordx2 {vr(KEEP+2,2)}, v9, {WS}, s45 offen{fl}')
        e.I('s_mov_b64 exec, -1')
        TS(e, 3)
    pro, top, nox, nxt_ = e.lab('Lqp'), e.lab('Lqt'), e.lab('Lqn'), e.lab('Lqx')
    e.I('s_mov_b32 s30, 0')
    e.I('s_mov_b32 s64, 0')
    e.I('s_waitcnt vmcnt(0)')
    e.L(pro)
    e.I('s_barrier')
    xwork(False)
    flag_n()
    e.I('s_cmp_lt_u32 s64, 2')
    e.I(f's_cbranch_scc1 {pro}')
    e.L(top)
    TS(e, 0)
    mem_part()
    e.I('s_cmp_ge_u32 s64, 64')
    e.I(f's_cbranch_scc1 {nox}')
    xwork(True)
    e.I(f's_branch {nxt_}')
    e.L(nox)
    late_stores()
    e.L(nxt_)
    TS(e, 4)
    flag_n()
    TS(e, 5)
    TSflush(e, 's30')
    e.I('s_add_u32 s30, s30, 1')
    e.I('s_cmp_lt_u32 s30, 64')
    e.I(f's_cbranch_scc1 {top}')
    e.I('s_endpgm')

def role_sw(e, slow):
    fl = ' sc1' if slow else ''
    XF, KXF, VXF, VMF = 16, 40, 88, 136
    S, P, PL = 148, 160, 166
    DO, OB, DW = 168, 184, 192
    PA = 208
    CI = 224; PV = 240
    T0 = 228; SENT = 248; ONE = 252
    e.I('s_sub_u32 s24, s21, 12')
    e.I('s_lshl_b32 s25, s24, 2')
    e.I('s_add_u32 s25, s25, s22')
    e.I('s_lshl_b32 s26, s20, 2')
    e.I('s_add_u32 s26, s26, s22')
    srd(e, 8, 66, 6144 * 1280)
    e.I(f's_mul_i32 s28, s20, {768*1280}')
    e.I('s_lshl_b32 s29, s24, 7')
    e.I('s_add_u32 s28, s28, s29')
    e.I('v_lshrrev_b32 v4, 3, v1')
    e.I('v_bfe_u32 v5, v1, 4, 2')
    e.I('v_lshlrev_b32 v5, 1, v5')
    e.I('v_and_b32 v6, 7, v1')
    e.I('v_xor_b32 v6, v6, v5')
    e.I('v_mul_u32_u24 v3, 1280, v4')
    e.I('v_lshl_add_u32 v3, v6, 4, v3')
    e.I(f's_mul_i32 s55, s22, {192*1280}')
    e.I('s_add_u32 s57, s28, s55')
    e.I('s_mul_i32 s56, s22, 24576')
    for n in range(24):
        e.I(f's_add_u32 m0, s56, {n*1024}')
        e.I(f'buffer_load_dwordx4 v3, s[8:11], s57 offen lds')
        e.I(f's_add_u32 s57, s57, {8*1280}')
    e.I('v_lshrrev_b32 v4, 4, v1')
    e.I('v_bfe_u32 v5, v1, 2, 2')
    e.I('v_lshl_add_u32 v6, v4, 2, v5')
    e.I('v_bfe_u32 v4, v6, 1, 2')
    e.I('v_lshlrev_b32 v6, 7, v6')
    e.I('v_and_b32 v5, 3, v1')
    e.I('v_lshl_add_u32 v6, v5, 3, v6')
    e.I('v_add_u32 v6, s56, v6')
    for t in range(4):
        e.I(f'v_xor_b32 v5, {t}, v4')
        e.I(f'v_lshl_add_u32 v{8+t}, v5, 5, v6')
    e.I('s_waitcnt vmcnt(0)')
    for kk in range(6):
        for t in range(4):
            e.I(f'ds_read_b64_tr_b16 {ar((kk*4+t)*4,2)}, v{8+t} offset:{kk*4096}')
            e.I(f'ds_read_b64_tr_b16 {ar((kk*4+t)*4+2,2)}, v{8+t} offset:{kk*4096+2048}')
    e.I('s_waitcnt lgkmcnt(0)')
    e.I('s_barrier')
    e.I(f's_mov_b32 s52, {SC_L2E:#x}'); e.I(f's_mov_b32 s53, {SC_L2E | 0x80000000:#x}')
    lane_ig(e, 14, 15)
    e.I('v_and_b32 v13, 7, v14')
    e.I('v_lshlrev_b32 v13, 4, v13')
    e.I('v_lshl_add_u32 v7, v15, 8, v13')
    e.I('s_lshl_b32 s38, s22, 10')
    e.I('v_add_u32 v7, s38, v7')
    e.I('s_lshl_b32 s38, s22, 12')
    e.I('v_add_u32 v6, s38, v2')
    e.I('v_lshl_add_u32 v13, v15, 7, v13')
    e.I('v_bfe_u32 v5, v1, 3, 1')
    e.I('v_lshl_add_u32 v13, v5, 13, v13')
    e.I('v_and_b32 v4, 31, v1')
    e.I('v_lshlrev_b32 v4, 4, v4')
    e.I('v_lshrrev_b32 v5, 5, v1')
    e.I('v_lshl_add_u32 v4, v5, 11, v4')
    e.I('v_bfe_u32 v8, v1, 4, 1')
    e.I('v_lshlrev_b32 v8, 7, v8')
    e.I('v_and_b32 v9, 7, v1')
    e.I('v_lshl_add_u32 v8, v9, 4, v8')
    e.I('v_bfe_u32 v9, v1, 3, 1')
    e.I('v_lshl_add_u32 v8, v9, 3, v8')
    e.I('v_lshl_add_u32 v8, v5, 2, v8')
    e.I('s_lshl_b32 s38, s25, 8')
    e.I('v_add_u32 v8, s38, v8')
    e.I('v_lshrrev_b32 v9, 1, v1')
    e.I('v_lshlrev_b32 v9, 10, v9')
    e.I('v_and_b32 v10, 1, v1')
    e.I('v_lshl_add_u32 v9, v10, 3, v9')
    e.I(f'v_lshlrev_b32 v{ONE+1}, 2, v1')
    for k in range(4): e.I(f'v_mov_b32 v{SENT+k}, -1')
    e.I(f'v_mov_b32 v{CI}, {NEG_BIG:#x}')
    e.I('v_cmp_gt_u32 vcc, 32, v1')
    e.I(f'v_cndmask_b32 v{CI}, 0, v{CI}, vcc')
    for k in range(1, 4): e.I(f'v_mov_b32 v{CI+k}, v{CI}')
    e.I('s_mul_i32 s58, s26, 6144')
    e.I(f's_add_u32 s58, s58, {XR}')
    e.I('s_mul_i32 s57, s26, 3072')
    e.I(f's_add_u32 s57, s57, {VR}')
    e.I('s_lshr_b32 s59, s25, 1')
    e.I('s_lshl_b32 s59, s59, 14')
    e.I('s_and_b32 s38, s25, 1')
    e.I('s_lshl_b32 s38, s38, 12')
    e.I('s_add_u32 s59, s59, s38')
    e.I(f's_add_u32 s59, s59, {PART}')
    e.I('s_lshl_b32 s60, s20, 9')
    e.I('s_add_u32 s60, s60, s59')
    e.I('s_mul_i32 s61, s20, 10240')
    e.I(f's_add_u32 s61, s61, {MEM}')
    e.I('s_mul_i32 s62, s26, 12288')
    e.I('s_lshl_b32 s63, s26, 6')
    e.I(f's_add_u32 s63, s63, {FLGQ}')
    nocal = e.lab('Lnc')
    e.I('s_cmp_lg_u32 s25, 0')
    e.I(f's_cbranch_scc1 {nocal}')
    e.I('s_lshl_b32 s38, s20, 7')
    e.I(f's_add_u32 s38, s38, {CAL}')
    e.I('s_add_u32 s39, s38, 8192')
    e.I('s_mov_b32 s40, -1'); e.I('s_mov_b32 s41, -1'); e.I('s_mov_b32 s42, 4')
    e.I('v_mov_b32 v10, 0')
    e.I('s_mov_b64 exec, 1')
    cal = e.lab('Lcal')
    e.L(cal)
    for so, acc in (('s38', 's40'), ('s39', 's41')):
        e.I(f'buffer_store_dword v10, v10, {WS}, {so} offen sc1')
        e.I('s_waitcnt vmcnt(0)')
        e.I('s_memtime s[44:45]')
        e.I('s_waitcnt lgkmcnt(0)')
        e.I(f'buffer_load_dword v11, v10, {WS}, {so} offen sc1')
        e.I('s_waitcnt vmcnt(0)')
        e.I('s_memtime s[46:47]')
        e.I('s_waitcnt lgkmcnt(0)')
        e.I('s_sub_u32 s46, s46, s44')
        e.I(f's_min_u32 {acc}, {acc}, s46')
    e.I('s_sub_u32 s42, s42, 1')
    e.I('s_cmp_lg_u32 s42, 0')
    e.I(f's_cbranch_scc1 {cal}')
    e.I('s_cmp_lt_u32 s41, s40')
    if opt.pflip: e.I('s_cmp_ge_u32 s41, s40')
    e.I('s_cselect_b32 s38, 2, 1')
    e.I('v_mov_b32 v11, s38')
    e.I('s_lshl_b32 s38, s20, 2')
    e.I(f's_add_u32 s38, s38, {PARTAB}')
    e.I(f'buffer_store_dword v11, v10, {WS}, s38 offen sc1')
    e.I('s_mov_b64 exec, -1')
    e.L(nocal)
    e.I('s_lshl_b32 s38, s20, 2')
    e.I(f's_add_u32 s38, s38, {PARTAB}')
    wait_flags(e, ONE + 1, 's38', 1, T0, 12, sleep=2)
    e.I(f'v_readfirstlane_b32 s38, v{T0}')
    e.I('s_nop 3')
    e.I('s_and_b32 s38, s38, 2')
    e.I('s_lshl_b32 s38, s38, 12')
    e.I('s_add_u32 s59, s59, s38')
    e.I('s_mov_b32 s64, 0')
    def kv_loads(dst, base, q0=0, q1=12):
        if q0 >= q1: return
        e.I(f's_mul_i32 s48, s49, {SEG_QX}')
        e.I('s_add_u32 s48, s48, s62')
        e.I(f's_add_u32 s48, s48, {base + (q0//4)*4096}')
        for q in range(q0, q1):
            if q % 4 == 0 and q > q0: e.I('s_add_u32 s48, s48, 4096')
            e.I(f'buffer_load_dwordx4 {vr(dst+4*q)}, v2, {WS}, s48 offen offset:{(q%4)*1024} sc1')
    wait_flags(e, ONE + 1, 's63', 0xfff, T0, 11, sleep=2)
    e.I('s_mov_b32 s49, 0')
    kv_loads(KXF, KX); kv_loads(VXF, VX)
    e.I('s_add_u32 s50, s63, 2048')
    wait_flags(e, ONE + 1, 's50', 0xfff, T0, 11, sleep=2)
    top = e.lab('Lwt')
    e.I('s_mov_b32 s30, 0')
    e.L(top)
    TS(e, 0)
    e.I('s_and_b32 s38, s30, 3')
    e.I('s_xor_b32 s39, s38, 2')
    e.I(f's_mul_i32 s40, s38, {XR_SLOT}')
    e.I('s_add_u32 s40, s40, s58')
    e.I('s_add_u32 s54, s40, 4096')
    e.I(f's_mul_i32 s55, s38, {VR_SLOT}')
    e.I('s_add_u32 s55, s55, s57')
    if opt.fresh:
        e.I(f's_mul_i32 s41, s30, {PART_SLOT}')
        e.I(f's_add_u32 s41, s41, {SCRATCH + 0x400000 - PART + 0x200000}')
    else:
        e.I(f's_mul_i32 s41, s38, {PART_SLOT}')
    e.I('s_add_u32 s42, s41, s60')
    e.I('s_add_u32 s41, s41, s59')
    if opt.fresh:
        e.I('s_lshr_b32 s47, s41, 8')
        e.I('s_not_b32 s47, s47')
        e.I('s_and_b32 s47, s47, 8192')
        e.I('s_xor_b32 s41, s41, s47')
    e.I('s_xor_b32 s47, s41, 8192')
    e.I(f's_mul_i32 s43, s39, {PART_SLOT}')
    e.I('s_add_u32 s43, s43, s60')
    e.I('s_add_u32 s49, s30, 1')
    e.I('s_and_b32 s44, s49, 3')
    e.I('s_xor_b32 s45, s44, 2')
    e.I(f's_mul_i32 s44, s44, {MEM_SLOT}')
    e.I('s_add_u32 s44, s44, s61')
    e.I(f's_mul_i32 s45, s45, {MEM_SLOT}')
    e.I('s_add_u32 s45, s45, s61')
    pl, pd, fr = e.lab('Lxp'), e.lab('Lxd'), e.lab('Lxf')
    e.I(f's_mov_b32 s31, {TMO}')
    e.I('s_mov_b64 exec, 0xfff')
    e.I(f'buffer_load_dword v{T0}, v9, {WS}, s40 offen sc1')
    e.L(pl)
    for a_, b_ in ((T0, T0 + 1), (T0 + 1, T0)):
        e.I(f'buffer_load_dword v{b_}, v9, {WS}, s40 offen sc1')
        e.I('s_waitcnt vmcnt(1)')
        e.I(f'v_cmp_eq_u32 vcc, -1, v{a_}')
        e.I(f's_cbranch_vccz {pd}')
    e.I('s_sub_u32 s31, s31, 1')
    e.I(f's_cbranch_scc0 {pl}')
    e.I('s_mov_b32 s31, 2')
    e.I('s_branch L_fail')
    e.L(pd)
    e.I('s_mov_b64 exec, -1')
    TS(e, 1)
    e.L(fr)
    for p in range(6):
        e.I(f'buffer_load_dwordx4 {vr(XF+4*p)}, v2, {WS}, {"s40" if p < 4 else "s54"} offen offset:{(p%4)*1024} sc1')
    for p in range(6):
        x = vr(XF + 4*p)
        e.I(f's_waitcnt vmcnt({5-p})')
        e.I(f'{MFMA} {vr(S)}, {x}, {x}, {vr(CI) if p == 0 else vr(S)}')
        e.I(f'{MFMA} {vr(S+4)}, {vr(KXF+4*p)}, {x}, {0 if p == 0 else vr(S+4)}')
        e.I(f'{MFMA} {vr(S+8)}, {vr(KXF+24+4*p)}, {x}, {0 if p == 0 else vr(S+8)}')
        r = XF + 4 * p
        if p == 0:
            e.I(f'v_max3_u32 v{T0+2}, v{r}, v{r+1}, v{r+2}')
            e.I(f'v_max_u32 v{T0+2}, v{T0+2}, v{r+3}')
        else:
            e.I(f'v_max3_u32 v{T0+2}, v{T0+2}, v{r}, v{r+1}')
            e.I(f'v_max3_u32 v{T0+2}, v{T0+2}, v{r+2}, v{r+3}')
    for q in range(3):
        e.I(f'buffer_load_dwordx4 {vr(VMF+4*q)}, v2, {WS}, s55 offen offset:{q*1024} sc1')
    e.I(f'v_cmp_eq_u32 vcc, -1, v{T0+2}')
    ok = e.lab('Lxo')
    e.I(f's_cbranch_vccz {ok}')
    e.I('s_sub_u32 s31, s31, 1')
    e.I('s_nop 7')
    e.I(f's_cbranch_scc0 {fr}')
    e.I('s_mov_b32 s31, 2')
    e.I('s_branch L_fail')
    e.L(ok)
    TS(e, 2)
    e.I('s_nop 3')
    softmax12(e, S, P, T0 + 2)
    e.I(f'v_mov_b32 v{PL}, 0')
    e.I(f'v_mov_b32 v{PL+1}, 0')
    e.I(f'v_mov_b32 v{T0+2}, v{P}')
    e.I(f'v_mov_b32 v{T0+3}, v{P+1}')
    e.I(f'v_permlane32_swap_b32 v{T0+2}, v{PL}')
    e.I(f'v_permlane32_swap_b32 v{T0+3}, v{PL+1}')
    TS(e, 3)
    vl, vd = e.lab('Lvp'), e.lab('Lvd')
    e.L(vl)
    e.I('s_waitcnt vmcnt(0)')
    check_sent(e, range(VMF, VMF + 12), T0 + 2, T0 + 3)
    e.I(f's_cbranch_vccz {vd}')
    for q in range(3):
        e.I(f'buffer_load_dwordx4 {vr(VMF+4*q)}, v2, {WS}, s55 offen offset:{q*1024} sc1')
    e.I('s_sub_u32 s31, s31, 1')
    e.I(f's_cbranch_scc0 {vl}')
    e.I('s_mov_b32 s31, 3')
    e.I('s_branch L_fail')
    e.L(vd)
    TS(e, 4)
    e.I(f'buffer_store_dwordx4 {vr(SENT)}, v13, {WS}, s43 offen sc1')
    def pv(p):
        d = DO + 8 * (p % 2); j = p >> 1
        pm = vr(PL, 2) if p % 2 == 0 else vr(P, 2)
        for t in range(2): e.I(f'{MFMA16} {vr(d+4*t)}, {vr(VMF+4*j+2*t,2)}, {pm}, 0')
        for t in range(2): e.I(f'{MFMA} {vr(d+4*t)}, {vr(VXF+4*(2*p+t))}, {vr(P+2)}, {vr(d+4*t)}')
    def cv(p):
        d = DO + 8 * (p % 2); o = OB + 4 * (p % 2)
        for k in range(4): e.I(f'v_cvt_pk_bf16_f32 v{o+k}, v{d+2*k}, v{d+2*k+1}')
    def wo(p):
        o = OB + 4 * (p % 2)
        for t in range(4): e.I(f'{MFMA} {vr(DW+4*t)}, {ar((p*4+t)*4)}, {vr(o)}, {0 if p == 0 else vr(DW+4*t)}')
    e.I(f's_mul_i32 s46, s49, {SEG_QX}')
    e.I('s_add_u32 s46, s46, s62')
    e.I(f's_add_u32 s46, s46, {KX}')
    e.I('s_add_u32 s56, s46, 4096')
    e.I('s_add_u32 s64, s46, 8192')
    def kx(q): e.I(f'buffer_load_dwordx4 {vr(KXF+4*q)}, v2, {WS}, {("s46", "s56", "s64")[q//4]} offen offset:{(q%4)*1024} sc1')
    kq = list(range(opt.kin))
    pv(0)
    if len(kq) > 6: kx(kq.pop(0))
    pv(1)
    for p in range(6):
        cv(p)
        if p + 2 < 6:
            if p == 0: e.I('s_nop 0')
            pv(p + 2)
            if len(kq) > 6 - p: kx(kq.pop(0))
        wo(p)
        if kq: kx(kq.pop(0))
    for t in range(4): e.I(f'ds_write_b128 v6, {vr(DW+4*t)} offset:{t*1024}')
    e.I('s_waitcnt lgkmcnt(0)')
    e.I('s_barrier')
    for q in range(4): e.I(f'ds_read_b128 {vr(XF+4*q)}, v7 offset:{q*4096}')
    e.I('s_waitcnt lgkmcnt(2)')
    for k in range(4): e.I(f'v_add_f32 v{XF+k}, v{XF+k}, v{XF+4+k}')
    e.I('s_waitcnt lgkmcnt(0)')
    for k in range(4): e.I(f'v_add_f32 v{XF+8+k}, v{XF+8+k}, v{XF+12+k}')
    for k in range(4): e.I(f'v_add_f32 v{XF+k}, v{XF+k}, v{XF+8+k}')
    e.I(f'buffer_store_dwordx4 {vr(XF)}, v13, {WS}, s42 offen sc1')
    TS(e, 5)
    assert not kq
    kv_loads(KXF, KX, opt.kin, opt.kpre)
    if opt.pdelay: e.I(f's_sleep {opt.pdelay}')
    R = opt.pr
    sets = [PA, DO, DO + 16, S - 12][:R]
    bases = {0: ['s41'] * 4, 1: ['s41', 's47', 's41', 's41'], 2: ['s41', 's47', 's41', 's47']}[opt.pfar]
    def shot(k):
        b = sets[k % R]
        for m in range(4): e.I(f'buffer_load_dwordx4 {vr(b+4*m)}, v4, {WS}, s41 offen offset:{m*512} sc1')
    ql, qd = e.lab('Lpp'), e.lab('Lpd')
    done = [e.lab('Lps') for _ in range(R)]
    for k in range(R - 1): shot(k)
    if opt.pdiag: e.I('s_mov_b32 s94, 0')
    e.L(ql)
    NIT = 12 if R == 3 else 4
    for k in range(NIT):
        shot(k + R - 1)
        if opt.pdiag:
            e.I('s_add_u32 s94, s94, 1')
            if k == 0:
                e.I('s_waitcnt vmcnt(4)')
                e.I('s_cmp_eq_u32 s94, 1')
                lb = e.lab('Lpdg'); e.I(f's_cbranch_scc0 {lb}'); TS(e, 8); e.L(lb)
        e.I(f's_waitcnt vmcnt({4*(R-1)})')
        check_sent(e, range(sets[k % R], sets[k % R] + 16), T0, T0 + 1)
        e.I(f's_cbranch_vccz {done[k % R]}')
    e.I('s_sub_u32 s31, s31, 1')
    e.I(f's_cbranch_scc0 {ql}')
    e.I('s_mov_b32 s31, 4')
    e.I('s_branch L_fail')
    for r_ in range(R):
        e.L(done[r_])
        b = sets[r_]
        for k in range(4):
            e.I(f'v_add_f32 v{T0+4+k}, v{b+k}, v{b+4+k}')
            e.I(f'v_add_f32 v{T0+8+k}, v{b+8+k}, v{b+12+k}')
        if r_ < R - 1: e.I(f's_branch {qd}')
    e.L(qd)
    TS(e, 6)
    for k in range(4):
        e.I(f'v_add_f32 v{T0+4+k}, v{T0+4+k}, v{T0+8+k}')
    e.I(f'v_permlane32_swap_b32 v{T0+4}, v{T0+6}')
    e.I(f'v_permlane32_swap_b32 v{T0+5}, v{T0+7}')
    e.I(f'v_add_f32 v{T0+4}, v{T0+4}, v{T0+6}')
    e.I(f'v_add_f32 v{T0+5}, v{T0+5}, v{T0+7}')
    e.I(f'v_cvt_pk_bf16_f32 v{T0+4}, v{T0+4}, v{T0+5}')
    e.I(f'v_min_u32 v{T0+4}, -2, v{T0+4}')
    e.I(f'buffer_store_dword v{T0+4}, v8, {WS}, s44 offen{fl}')
    TS(e, 7)
    e.I(f'buffer_store_dword v{SENT}, v8, {WS}, s45 offen{fl}')
    e.I('s_barrier')
    if opt.vdelay: e.I(f's_sleep {opt.vdelay}')
    e.I('s_add_u32 s50, s49, 1')
    e.I('s_lshl_b32 s50, s50, 11')
    e.I('s_add_u32 s50, s50, s63')
    e.I(f'buffer_load_dword v{T0}, v{ONE+1}, {WS}, s50 offen sc1')
    kv_loads(KXF, KX, opt.kpre, 12)
    kv_loads(VXF, VX)
    fok = e.lab('Lfk')
    e.I(f's_waitcnt vmcnt({24 - opt.kpre})')
    e.I(f'v_cmp_eq_u32 vcc, 0, v{T0}')
    e.I('s_and_b32 vcc_lo, vcc_lo, 0xfff')
    e.I('s_cmp_eq_u32 vcc_lo, 0')
    e.I(f's_cbranch_scc1 {fok}')
    wait_flags(e, ONE + 1, 's50', 0xfff, T0, 11)
    e.L(fok)
    if not opt.pdiag: TS(e, 8)
    TSflush(e, 's30', 244, 245)
    e.I('s_add_u32 s30, s30, 1')
    e.I('s_cmp_lt_u32 s30, 63')
    e.I(f's_cbranch_scc1 {top}')
    e.I('s_endpgm')

def role_xw(e):
    OF = 16
    D = 112
    T0 = 160; ONE = 252
    e.I('s_sub_u32 s24, s21, 22')
    srd(e, 8, 66, 6144 * 1280)
    e.I(f's_mul_i32 s28, s20, {768*1280}')
    e.I('s_lshl_b32 s29, s24, 8')
    e.I('s_add_u32 s28, s28, s29')
    e.I('s_add_u32 s29, s28, 128')
    load_weights(e, [('s[8:11]', 's28', 0, 768), ('s[8:11]', 's29', 96, 768)], 1280, 256, True, 3, 4)
    e.I(f'v_lshlrev_b32 v{ONE+1}, 2, v1')
    e.I('s_lshl_b32 s38, s20, 2')
    e.I('s_add_u32 s38, s38, s22')
    e.I('s_lshl_b32 s39, s38, 2')
    e.I('v_lshlrev_b32 v3, 7, v1')
    e.I('v_add_u32 v3, s39, v3')
    e.I(f'v_mov_b32 v{ONE}, 1')
    e.I('s_mul_i32 s62, s22, 12288')
    e.I('s_mul_i32 s63, s38, 12288')
    e.I(f's_add_u32 s63, s63, {OX}')
    e.I('s_mul_i32 s64, s20, 81920')
    e.I('s_lshl_b32 s65, s24, 3')
    e.I('s_add_u32 s65, s65, s22')
    e.I('s_lshl_b32 s65, s65, 10')
    e.I('s_add_u32 s64, s64, s65')
    e.I(f's_add_u32 s64, s64, {PX}')
    e.I('s_lshl_b32 s66, s24, 8')
    e.I(f's_add_u32 s66, s66, {FLGPX}')
    def pxflag():
        e.I('s_mov_b64 exec, 3')
        e.I(f'buffer_store_dword v{ONE}, v3, {WS}, s54 offen sc1')
        e.I('s_mov_b64 exec, -1')
    top, nof = e.lab('Lxt'), e.lab('Lxn')
    e.I('s_mov_b32 s30, 0')
    e.L(top)
    TS(e, 0)
    e.I('s_lshl_b32 s50, s30, 3')
    e.I('s_add_u32 s50, s50, s20')
    e.I('s_lshl_b32 s50, s50, 6')
    e.I(f's_add_u32 s50, s50, {FLGOX}')
    wait_flags(e, ONE + 1, 's50', 0xf, T0, 5, sleep=2)
    TS(e, 1)
    e.I('s_cmp_eq_u32 s30, 0')
    e.I(f's_cbranch_scc1 {nof}')
    pxflag()
    e.L(nof)
    e.I('s_barrier')
    e.I(f's_mul_i32 s50, s30, {SEG_QX}')
    e.I('s_add_u32 s50, s50, s63')
    for m in range(12):
        e.I(f's_add_u32 m0, s62, {m*1024}')
        e.I(f'buffer_load_dwordx4 v2, {WS}, s50 offen sc1 lds')
        if m < 11: e.I('s_add_u32 s50, s50, 1024')
    e.I(f's_mul_i32 s50, s30, {SEG_PX}')
    e.I('s_add_u32 s50, s50, s64')
    e.I('s_add_u32 s51, s50, 40960')
    e.I('s_add_u32 s52, s50, 4096')
    e.I('s_add_u32 s53, s51, 4096')
    e.I('s_mul_i32 s54, s30, 1280')
    e.I('s_add_u32 s54, s54, s66')
    e.I('s_waitcnt vmcnt(0)')
    e.I('s_barrier')
    TS(e, 2)
    PF = 6
    def rd(kk):
        hl, p = kk // 6, kk % 6
        for qt in range(2):
            e.I(f'ds_read_b128 {vr(OF + ((2*kk+qt) % 24)*4)}, v2 offset:{hl*12288 + (qt*6+p)*1024}')
    for kk in range(PF): rd(kk)
    for kk in range(24):
        nxt = min(24, kk + PF) - (kk + 1)
        e.I(f's_waitcnt lgkmcnt({2*nxt})')
        for qt in range(2):
            for b in range(2):
                d = vr(D + 4*(qt*2+b))
                e.I(f'{MFMA} {d}, {ar(96*b+4*kk)}, {vr(OF + ((2*kk+qt) % 24)*4)}, {0 if kk == 0 else d}')
        if kk + PF < 24: rd(kk + PF)
    for q, so in enumerate(('s50', 's52', 's51', 's53')):
        e.I(f'buffer_store_dwordx4 {vr(D+4*q)}, v2, {WS}, {so} offen sc1')
    TS(e, 3)
    TSflush(e, 's30')
    e.I('s_add_u32 s30, s30, 1')
    e.I('s_cmp_lt_u32 s30, 64')
    e.I(f's_cbranch_scc1 {top}')
    e.I('s_waitcnt vmcnt(0)')
    pxflag()
    e.I('s_endpgm')

def role_att(e, slow):
    fl = ' sc1' if slow else ''
    QF, XPF, KF, VXF, VMF = 16, 64, 88, 136, 184
    S, P, T0 = 208, 220, 226
    PL = 196
    DO = 0
    C0, C1 = 232, 236
    ONE = 252
    e.I('s_sub_u32 s25, s21, 27')
    e.I('s_lshl_b32 s26, s20, 2')
    e.I('s_add_u32 s26, s26, s22')
    e.I(f's_mov_b32 s52, {SC_L2E:#x}'); e.I(f's_mov_b32 s53, {SC_L2E | 0x80000000:#x}')
    e.I('v_lshlrev_b32 v9, 3, v1')
    e.I(f'v_lshlrev_b32 v{ONE+1}, 2, v1')
    e.I('s_lshl_b32 s38, s22, 2')
    e.I(f'v_mov_b32 v{ONE+2}, s38')
    e.I(f'v_mov_b32 v{ONE}, 1')
    lane_ig(e, 14, 15)
    e.I(f'v_mov_b32 v3, {NEG_BIG:#x}')
    e.I('v_cmp_gt_u32 vcc, 32, v1')
    e.I(f'v_cndmask_b32 v{C0}, 0, v3, vcc')
    for k in range(1, 4): e.I(f'v_mov_b32 v{C0+k}, v{C0}')
    e.I('v_lshlrev_b32 v5, 2, v15')
    for r in range(4):
        e.I(f'v_add_u32 v6, {r}, v5')
        e.I('v_cmp_gt_u32 vcc, v6, v14')
        e.I(f'v_cndmask_b32 v{C1+r}, 0, v3, vcc')
    e.I('s_mul_i32 s58, s26, 6144')
    top = e.lab('Lat')
    e.I('s_mov_b32 s30, s25')
    e.L(top)
    TS(e, 0)
    e.I('s_add_u32 s51, s30, 2')
    e.I('s_lshl_b32 s51, s51, 5')
    e.I('s_add_u32 s51, s51, s26')
    e.I('s_lshl_b32 s51, s51, 6')
    e.I(f's_add_u32 s51, s51, {FLGQ}')
    e.I(f's_mul_i32 s40, s30, {SEG_QX}')
    e.I('s_lshl_b32 s41, s58, 1')
    e.I('s_add_u32 s40, s40, s41')
    e.I(f's_mul_i32 s41, s30, {SEG_XP}')
    e.I('s_add_u32 s41, s41, s58')
    wait_flags(e, ONE + 1, 's51', 0xfff, T0, 6, sleep=2)
    TS(e, 1)
    def loads(dst, n, sbase, add, w=4, va=2):
        e.I(f's_add_u32 s48, {sbase}, {add}')
        per = 4096 // (256 * w)
        for q in range(n):
            if q and q % per == 0: e.I('s_add_u32 s48, s48, 4096')
            e.I(f'buffer_load_dwordx{w} {vr(dst+w*q, w)}, v{va}, {WS}, s48 offen offset:{(q%per)*256*w} sc1')
    loads(XPF, 6, 's41', XP)
    loads(KF, 6, 's40', KX)
    loads(QF, 6, 's40', QX)
    e.I('s_lshr_b32 s42, s41, 1')
    loads(VMF, 3, 's42', VM)
    loads(VXF, 12, 's40', VX)
    loads(KF + 24, 6, 's40', KX + 6144)
    loads(QF + 24, 6, 's40', QX + 6144)
    for qt in range(2):
        e.I(f's_waitcnt vmcnt({27 if qt == 0 else 6})')
        if qt == 0: TS(e, 2)
        for p in range(6):
            q = vr(QF + 24*qt + 4*p)
            e.I(f'{MFMA} {vr(S)}, {vr(XPF+4*p)}, {q}, {vr(C0) if p == 0 else vr(S)}')
            e.I(f'{MFMA} {vr(S+4)}, {vr(KF+4*p)}, {q}, {(vr(C1) if qt == 0 else 0) if p == 0 else vr(S+4)}')
            if qt == 1: e.I(f'{MFMA} {vr(S+8)}, {vr(KF+24+4*p)}, {q}, {vr(C1) if p == 0 else vr(S+8)}')
        if qt == 0:
            for k in range(4): e.I(f'v_mov_b32 v{S+8+k}, v3')
        softmax12(e, S, P, T0)
        e.I(f'v_mov_b32 v{PL}, 0')
        e.I(f'v_mov_b32 v{PL+1}, 0')
        e.I(f'v_mov_b32 v{T0}, v{P}')
        e.I(f'v_mov_b32 v{T0+1}, v{P+1}')
        e.I(f'v_permlane32_swap_b32 v{T0}, v{PL}')
        e.I(f'v_permlane32_swap_b32 v{T0+1}, v{PL+1}')
        e.I(f's_add_u32 s48, s40, {OX + qt*6144}')
        e.I('s_add_u32 s49, s48, 4096')
        if qt == 0: e.I('s_waitcnt vmcnt(12)')
        def fin(p):
            dp = DO + 8 * (p % 2); op_ = QF + 24*qt + 4 * p
            for k in range(8): e.I(f'v_accvgpr_read_b32 v{240+k}, a{dp+k}')
            for k in range(4): e.I(f'v_cvt_pk_bf16_f32 v{op_+k}, v{240+2*k}, v{240+2*k+1}')
            e.I(f'buffer_store_dwordx4 {vr(op_)}, v2, {WS}, {"s48" if p < 4 else "s49"} offen offset:{(p%4)*1024}{fl}')
        for p in range(6):
            d = DO + 8 * (p % 2)
            for t in range(2):
                e.I(f'{MFMA16} {ar(d+4*t)}, {vr(VMF+4*(p>>1)+2*t,2)}, {vr(PL,2) if p % 2 == 0 else vr(P,2)}, 0')
            for t in range(2):
                e.I(f'{MFMA} {ar(d+4*t)}, {vr(VXF+4*(2*p+t))}, {vr(P+2)}, {ar(d+4*t)}')
            if p > 0: fin(p - 1)
        fin(5)
    e.I('s_lshl_b32 s50, s30, 3')
    e.I('s_add_u32 s50, s50, s20')
    e.I('s_lshl_b32 s50, s50, 6')
    e.I(f's_add_u32 s50, s50, {FLGOX}')
    e.I('s_waitcnt vmcnt(0)')
    set_flag(e, ONE + 2, 's50', ONE, fl)
    TS(e, 3)
    TSflush(e, 's30', 230, 231)
    e.I('s_add_u32 s30, s30, 2')
    e.I('s_cmp_lt_u32 s30, 64')
    e.I(f's_cbranch_scc1 {top}')
    e.I('s_endpgm')

F_LX, F_LH = 0, 98304
def role_ffn(e):
    ACC2 = 0
    ACC1 = 16
    BF = 48
    HP = 80
    WR = 96
    NW = 40
    e.I('s_sub_u32 s26, s21, 29')
    e.I('s_mul_i32 s25, s20, 3')
    e.I('s_add_u32 s26, s26, s25')
    e.I('s_mov_b32 s24, s26')
    e.L('L_ffn_task')
    e.I('s_lshl_b32 s38, s24, 2')
    e.I('s_add_u32 s38, s38, s22')
    e.I('s_mul_i32 s39, s38, 20480')
    e.I(f's_add_u32 s39, s39, {XN}')
    e.I('s_mul_i32 s40, s22, 20480')
    for m in range(20):
        e.I(f's_add_u32 m0, s40, {m*1024}')
        e.I(f'buffer_load_dwordx4 v2, {WS}, s39 offen lds')
        e.I('s_add_u32 s39, s39, 1024')
    for k in range(160): e.I(f'v_accvgpr_write_b32 a{k}, 0')
    e.I('s_mul_i32 s41, s22, 40960')
    e.I(f's_add_u32 s41, s41, {W1F}')
    e.I(f's_mul_i32 s42, s22, {10*48*1024}')
    e.I(f's_add_u32 s42, s42, {W2F}')
    e.I('v_add_u32 v3, 20480, v2')
    for u in range(10):
        e.I(f's_mov_b32 s54, {u*48*1024}')
        e.I(f'v_add_u32 v{4+u}, s54, v2')
    e.I(f'v_add_u32 v14, {F_LH}, v2')
    e.I('s_lshl_b32 s38, s22, 12')
    e.I('v_add_u32 v15, s38, v14')
    def wload(idx, adv):
        dst = vr(WR + (idx % NW) * 4)
        if idx < 40:
            kk, u = idx // 2, idx % 2
            e.I(f's_add_u32 s45, {adv[0]}, {(kk//4)*4096}')
            e.I(f'buffer_load_dwordx4 {dst}, v{2+u}, {WS}, s45 offen offset:{(kk%4)*1024}')
        else:
            pp, u = (idx - 40) // 10, (idx - 40) % 10
            e.I(f'buffer_load_dwordx4 {dst}, v{4+u}, {WS}, {adv[1]} offen offset:{pp*1024}')
    for idx in range(NW - 2): wload(idx, ('s41', 's42'))
    e.I(f's_waitcnt vmcnt({NW-2})')
    e.I('s_barrier')
    top = e.lab('Lft')
    TS(e, 0)
    e.I('s_mov_b32 s30, 0')
    e.L(top)
    e.I('s_cmp_lt_u32 s30, 11')
    e.I('s_cselect_b32 s46, 163840, 0')
    e.I('s_cselect_b32 s47, 4096, 0')
    e.I('s_add_u32 s43, s41, s46')
    e.I('s_add_u32 s44, s42, s47')
    D = NW - 2
    def pref(idx):
        j = idx + D
        if j < 80: wload(j, ('s41', 's42'))
        else: wload(j - 80, ('s43', 's44'))
    def rdx(kk):
        for rt in range(4):
            e.I(f'ds_read_b128 {vr(BF + ((kk%2)*4+rt)*4)}, v{2 if rt < 3 else 3} offset:{(rt if rt < 3 else 2)*20480 + kk*1024}')
    rdx(0)
    for kk in range(20):
        if kk + 1 < 20: rdx(kk + 1)
        e.I(f's_waitcnt vmcnt({D-2}) lgkmcnt({4 if kk+1 < 20 else 0})')
        for u in range(2):
            idx = 2 * kk + u
            for rt in range(4):
                d = vr(ACC1 + (u*4+rt)*4)
                e.I(f'{MFMA} {d}, {vr(WR+(idx%NW)*4)}, {vr(BF+((kk%2)*4+rt)*4)}, {0 if kk == 0 else d}')
        pref(2 * kk); pref(2 * kk + 1)
    for rt in range(4):
        for u in range(2):
            d = ACC1 + (u*4+rt)*4
            for k in range(4): e.I(f'v_max_f32 v{d+k}, 0, v{d+k}')
            e.I(f'v_cvt_pk_bf16_f32 v{HP+rt*4+2*u}, v{d}, v{d+1}')
            e.I(f'v_cvt_pk_bf16_f32 v{HP+rt*4+2*u+1}, v{d+2}, v{d+3}')
        e.I(f'ds_write_b128 v15, {vr(HP+rt*4)} offset:{rt*1024}')
    e.I('s_waitcnt lgkmcnt(0)')
    e.I('s_barrier')
    def rdh(pp):
        for rt in range(4):
            e.I(f'ds_read_b128 {vr(BF + ((pp%2)*4+rt)*4)}, v14 offset:{pp*4096 + rt*1024}')
    rdh(0)
    for pp in range(4):
        if pp + 1 < 4: rdh(pp + 1)
        for u in range(10):
            idx = 40 + pp * 10 + u
            w = f's_waitcnt vmcnt({D-1})'
            if u == 0: w += f' lgkmcnt({4 if pp+1 < 4 else 0})'
            e.I(w)
            for rt in range(4):
                d = ar(ACC2 + (u*4+rt)*4)
                e.I(f'{MFMA} {d}, {vr(WR+(idx%NW)*4)}, {vr(BF+((pp%2)*4+rt)*4)}, {d}')
            pref(idx)
    e.I('v_xor_b32 v14, 16384, v14')
    e.I('v_xor_b32 v15, 16384, v15')
    e.I('s_mov_b32 s41, s43')
    e.I('s_mov_b32 s42, s44')
    e.I('s_add_u32 s30, s30, 1')
    e.I('s_cmp_lt_u32 s30, 12')
    e.I(f's_cbranch_scc1 {top}')
    e.I('s_waitcnt vmcnt(0)')
    TS(e, 1)
    e.I('v_lshlrev_b32 v3, 3, v1')
    e.I(f's_mul_i32 s38, s24, {4*40*512}')
    e.I(f's_mul_i32 s39, s22, {10*512}')
    e.I('s_add_u32 s38, s38, s39')
    e.I(f's_add_u32 s38, s38, {G_}')
    e.I(f's_mov_b32 s52, {f2u(-1.4426950408889634):#x}')
    for rt in range(4):
        e.I(f's_add_u32 s39, s38, {rt*40*512}')
        e.I('s_add_u32 s40, s39, 4096')
        for u in range(10):
            t = 16 + ((rt*10+u) % 4) * 16
            a0 = ACC2 + (u*4+rt)*4
            for k in range(4): e.I(f'v_accvgpr_read_b32 v{t+k}, a{a0+k}')
            e.I(f'v_cvt_pk_bf16_f32 v{t+4}, v{t}, v{t+1}')
            e.I(f'v_cvt_pk_bf16_f32 v{t+5}, v{t+2}, v{t+3}')
            e.I(f'v_lshlrev_b32 v{t}, 16, v{t+4}')
            e.I(f'v_and_b32 v{t+1}, 0xffff0000, v{t+4}')
            e.I(f'v_lshlrev_b32 v{t+2}, 16, v{t+5}')
            e.I(f'v_and_b32 v{t+3}, 0xffff0000, v{t+5}')
            for k in range(4): e.I(f'v_mul_f32 v{t+4+k}, s52, v{t+k}')
            for k in range(4): e.I(f'v_exp_f32 v{t+4+k}, v{t+4+k}')
            for k in range(4): e.I(f'v_add_f32 v{t+4+k}, 1.0, v{t+4+k}')
            for k in range(4): e.I(f'v_rcp_f32 v{t+4+k}, v{t+4+k}')
            for k in range(4): e.I(f'v_mul_f32 v{t+k}, v{t+k}, v{t+4+k}')
            e.I(f'v_cvt_pk_bf16_f32 v{t+8}, v{t}, v{t+1}')
            e.I(f'v_cvt_pk_bf16_f32 v{t+9}, v{t+2}, v{t+3}')
            e.I(f'buffer_store_dwordx2 {vr(t+8,2)}, v3, {WS}, {"s39" if u < 8 else "s40"} offen offset:{(u%8)*512} sc1')
    e.I('s_waitcnt vmcnt(0)')
    TS(e, 2)
    if opt.ts: e.I('s_lshr_b32 s50, s24, 3'); e.I('s_add_u32 s50, s50, 64')
    TSflush(e, 's50')
    e.I('s_barrier')
    e.I('s_cmp_lg_u32 s22, 0')
    e.I('s_cbranch_scc1 L_ffn_nf')
    e.I('v_mov_b32 v4, 1')
    e.I('s_lshl_b32 s38, s24, 2')
    e.I('v_mov_b32 v5, s38')
    e.I(f's_mov_b32 s39, {FLGG}')
    set_flag(e, 5, 's39', 4, ' sc1')
    e.I('s_waitcnt vmcnt(0)')
    e.L('L_ffn_nf')
    e.I('s_cmp_ge_u32 s26, 8')
    e.I('s_cbranch_scc1 L_cmb')
    e.I('s_add_u32 s24, s24, 24')
    e.I('s_cmp_lt_u32 s24, 32')
    e.I('s_cbranch_scc1 L_ffn_task')
    e.I('s_endpgm')

def role_cmb(e):
    PXR = 16
    GR = 144
    XR_ = 152
    T0 = 160
    srd(e, 8, 68, 2048 * 1280)
    srd(e, 12, 70, 2048 * 1280)
    e.I('s_sub_u32 s24, s26, 8')
    e.I('s_lshl_b32 s24, s24, 2')
    e.I('s_add_u32 s30, s24, s22')
    e.I('v_lshlrev_b32 v3, 2, v1')
    e.I('v_lshlrev_b32 v4, 3, v1')
    e.I('v_mov_b32 v6, 0')
    lane_ig(e, 14, 15)
    e.I('v_mul_u32_u24 v5, 1280, v14')
    e.I('v_lshl_add_u32 v5, v15, 3, v5')
    top = e.lab('Lct')
    e.L(top)
    TS(e, 0)
    e.I('s_mul_i32 s38, s30, 3277')
    e.I('s_lshr_b32 s38, s38, 16')
    e.I('s_mul_i32 s39, s38, 20')
    e.I('s_sub_u32 s39, s30, s39')
    e.I('s_cmp_ge_u32 s39, 10')
    e.I('s_cselect_b32 s40, 1, 0')
    e.I('s_mul_i32 s41, s40, 10')
    e.I('s_sub_u32 s41, s39, s41')
    e.I('s_lshr_b32 s42, s38, 1')
    e.I('s_lshl_b32 s42, s42, 2')
    e.I(f's_add_u32 s42, s42, {FLGG}')
    wait_flags(e, 6, 's42', 1, T0, 7, sleep=8)
    e.I('s_mul_i32 s42, s38, 10')
    e.I('s_add_u32 s42, s42, s41')
    e.I('s_lshl_b32 s42, s42, 7')
    e.I(f's_add_u32 s42, s42, {FLGPX}')
    wait_flags(e, 3, 's42', 0xffffffff, T0, 8, sleep=2)
    TS(e, 1)
    e.I(f's_mul_i32 s43, s38, {SEG_PX}')
    e.I('s_mul_i32 s44, s40, 40960')
    e.I('s_add_u32 s43, s43, s44')
    e.I('s_lshl_b32 s44, s41, 12')
    e.I('s_add_u32 s43, s43, s44')
    e.I(f's_add_u32 s43, s43, {PX}')
    e.I('s_lshl_b32 s45, s38, 1')
    e.I('s_add_u32 s45, s45, s40')
    e.I('s_mul_i32 s46, s45, 20480')
    e.I('s_lshl_b32 s47, s41, 11')
    e.I('s_add_u32 s47, s47, s46')
    e.I(f's_add_u32 s47, s47, {G_}')
    e.I('s_lshl_b32 s48, s41, 7')
    e.I('s_add_u32 s48, s48, s46')
    for t in range(4):
        e.I(f'buffer_load_dwordx2 {vr(GR+2*t,2)}, v4, {WS}, s47 offen offset:{t*512} sc1')
        e.I(f'buffer_load_dwordx2 {vr(XR_+2*t,2)}, v5, s[8:11], s48 offen offset:{t*32}')
    for x in range(8):
        for t in range(4):
            e.I(f'buffer_load_dwordx4 {vr(PXR+(x*4+t)*4)}, v2, {WS}, s43 offen offset:{t*1024} sc1')
        if x < 7: e.I('s_add_u32 s43, s43, 81920')
    for x in range(1, 8):
        e.I(f's_waitcnt vmcnt({(7-x)*4})')
        for k in range(16):
            e.I(f'v_add_f32 v{PXR+k}, v{PXR+k}, v{PXR+x*16+k}')
    for t in range(4):
        b = PXR + 4 * t; u = T0 + 8 * (t % 2)
        e.I(f'v_cvt_pk_bf16_f32 v{u}, v{b}, v{b+1}')
        e.I(f'v_cvt_pk_bf16_f32 v{u+1}, v{b+2}, v{b+3}')
        for h_ in range(2):
            e.I(f'v_lshlrev_b32 v{b+2*h_}, 16, v{u+h_}')
            e.I(f'v_and_b32 v{b+2*h_+1}, 0xffff0000, v{u+h_}')
            e.I(f'v_lshlrev_b32 v{u+2+2*h_}, 16, v{GR+2*t+h_}')
            e.I(f'v_and_b32 v{u+3+2*h_}, 0xffff0000, v{GR+2*t+h_}')
        for k in range(4): e.I(f'v_mul_f32 v{b+k}, v{b+k}, v{u+2+k}')
        e.I(f'v_cvt_pk_bf16_f32 v{u}, v{b}, v{b+1}')
        e.I(f'v_cvt_pk_bf16_f32 v{u+1}, v{b+2}, v{b+3}')
        for h_ in range(2):
            e.I(f'v_lshlrev_b32 v{b+2*h_}, 16, v{u+h_}')
            e.I(f'v_and_b32 v{b+2*h_+1}, 0xffff0000, v{u+h_}')
            e.I(f'v_lshlrev_b32 v{u+2+2*h_}, 16, v{XR_+2*t+h_}')
            e.I(f'v_and_b32 v{u+3+2*h_}, 0xffff0000, v{XR_+2*t+h_}')
        for k in range(4): e.I(f'v_add_f32 v{b+k}, v{b+k}, v{u+2+k}')
        e.I(f'v_cvt_pk_bf16_f32 v{u+6}, v{b}, v{b+1}')
        e.I(f'v_cvt_pk_bf16_f32 v{u+7}, v{b+2}, v{b+3}')
        e.I(f'buffer_store_dwordx2 {vr(u+6,2)}, v5, s[12:15], s48 offen offset:{t*32}')
    TS(e, 2)
    if opt.ts: e.I('s_lshr_b32 s50, s30, 6')
    TSflush(e, 's50')
    e.I('s_add_u32 s30, s30, 64')
    e.I('s_cmp_lt_u32 s30, 1280')
    e.I(f's_cbranch_scc1 {top}')
    e.I('s_endpgm')

def gen_mainkernel(e):
    kernel_head(e, MAIN)
    e.I('s_cmp_ge_u32 s2, 256')
    e.I('s_cbranch_scc1 L_end')
    e.I('s_load_dwordx2 s[32:33], s[0:1], 96')
    e.I('s_load_dwordx4 s[60:63], s[0:1], 16')
    e.I('s_load_dwordx4 s[64:67], s[0:1], 32')
    e.I('s_load_dwordx2 s[68:69], s[0:1], 0')
    e.I('s_load_dwordx4 s[72:75], s[0:1], 80')
    TS(e, 0)
    e.I('s_getreg_b32 s24, hwreg(HW_REG_XCC_ID)')
    e.I('s_and_b32 s24, s24, 15')
    e.I('v_and_b32 v1, 63, v0')
    e.I('v_lshlrev_b32 v2, 4, v1')
    e.I('v_lshrrev_b32 v3, 6, v0')
    e.I('v_readfirstlane_b32 s22, v3')
    e.I('s_waitcnt lgkmcnt(0)')
    e.I('s_mov_b64 s[70:71], s[72:73]')
    srd(e, 4, 32, WS_BYTES)
    e.I('s_cmp_lg_u32 s22, 0')
    e.I('s_cbranch_scc1 L_role')
    e.I('s_mov_b64 exec, 1')
    e.I('s_lshl_b32 s25, s24, 7')
    e.I('v_mov_b32 v3, s25')
    e.I('v_mov_b32 v4, 1')
    e.I(f'buffer_atomic_add v4, v3, {WS}, 0 offen sc0')
    e.I('s_mov_b64 exec, 0xffff')
    e.I('v_lshlrev_b32 v3, 7, v1')
    e.I('s_waitcnt vmcnt(0)')
    e.I('v_readfirstlane_b32 s25, v4')
    e.I(f's_mov_b32 s31, {TMO}')
    e.L('L_cnt')
    e.I(f'buffer_load_dword v5, v3, {WS}, 0 offen sc1')
    e.I('s_waitcnt vmcnt(0)')
    for y in range(16): e.I(f'v_readlane_b32 s{36+y}, v5, {y}')
    e.I('s_nop 3')
    e.I('s_mov_b32 s26, 0'); e.I('s_mov_b32 s27, s25'); e.I('s_mov_b32 s23, 0')
    for y in range(16):
        e.I(f's_add_u32 s26, s26, s{36+y}')
        e.I(f's_cmp_gt_u32 s24, {y}')
        e.I(f's_cselect_b32 s28, s{36+y}, 0')
        e.I('s_add_u32 s27, s27, s28')
        if y < 8:
            e.I(f's_cmp_lg_u32 s{36+y}, 32')
            e.I('s_cselect_b32 s23, 1, s23')
    e.I('s_cmp_eq_u32 s26, 256')
    e.I('s_cbranch_scc1 L_cntd')
    e.I('s_sub_u32 s31, s31, 1')
    e.I('s_cbranch_scc0 L_cnt')
    e.I('s_mov_b32 s23, 2')
    e.L('L_cntd')
    if opt.force_slow:
        e.I('s_mov_b32 s23, 1')
        e.I('s_mov_b32 s27, s2')
    e.I('s_lshr_b32 s20, s27, 5')
    e.I('s_and_b32 s21, s27, 31')
    e.I('v_mov_b32 v4, s20'); e.I('v_mov_b32 v5, s21'); e.I('v_mov_b32 v6, s23'); e.I('v_mov_b32 v7, 0')
    e.I(f'v_mov_b32 v3, {LDS_ROLE}')
    e.I('ds_write_b128 v3, v[4:7]')
    e.I('s_waitcnt lgkmcnt(0)')
    e.I('s_mov_b64 exec, -1')
    e.L('L_role')
    e.I('s_barrier')
    e.I(f'v_mov_b32 v3, {LDS_ROLE}')
    e.I('ds_read_b128 v[4:7], v3')
    e.I('s_waitcnt lgkmcnt(0)')
    e.I('v_readfirstlane_b32 s20, v4')
    e.I('v_readfirstlane_b32 s21, v5')
    e.I('v_readfirstlane_b32 s23, v6')
    e.I('s_nop 3')
    e.I('s_and_b32 s20, s20, 7')
    e.I('s_cmp_ge_u32 s23, 2')
    e.I('s_cbranch_scc1 L_end')
    TS(e, 1)
    TSflush(e, '70')
    if opt.nobg: e.I('s_cmp_ge_u32 s21, 22'); e.I('s_cbranch_scc1 L_end')
    e.I('s_cmp_ge_u32 s21, 29'); e.I('s_cbranch_scc1 L_ffn')
    e.I('s_sub_u32 s24, s21, 22'); e.I('s_cmp_lt_u32 s24, 5'); e.I('s_cbranch_scc1 L_xw')
    e.I('s_cmp_lg_u32 s23, 0'); e.I('s_cbranch_scc1 L_slow')
    for slow in (False, True):
        sfx = 's' if slow else 'f'
        if slow: e.L('L_slow')
        e.I('s_cmp_ge_u32 s21, 22'); e.I(f's_cbranch_scc1 L_att{sfx}')
        e.I('s_cmp_ge_u32 s21, 12'); e.I(f's_cbranch_scc1 L_wo{sfx}')
        role_qkv(e, slow)
        e.L(f'L_wo{sfx}'); role_sw(e, slow)
        e.L(f'L_att{sfx}'); role_att(e, slow)
    e.L('L_xw'); role_xw(e)
    e.L('L_ffn'); role_ffn(e)
    e.L('L_cmb'); role_cmb(e)
    e.L('L_fail')
    e.I('s_mov_b64 exec, 1')
    e.I('s_lshl_b32 s31, s31, 2')
    e.I('v_mov_b32 v3, s31')
    e.I('v_mov_b32 v4, 1')
    e.I('global_atomic_add v3, v4, s[74:75]')
    e.L('L_end')
    e.I('s_endpgm')

def build(path):
    hdr = open('cdna_kernels/' + NAME + '.s.ref').read().split('\n')
    e = Em()
    for l in hdr:
        if l.startswith(';') and '@launch' not in l and 'Override launch' not in l and 'grid=ceil' not in l: e.raw(l)
    e.raw(f'; @launch kernel={PRE} grid=({PRE_GRID},1,1) block=(256,1,1) lds={PRE_LDS}')
    e.raw(f'; @launch kernel={MAIN} grid=(256,1,1) block=(256,1,1) lds={LDS_TOTAL}')
    e.raw('.amdgcn_target "amdgcn-amd-amdhsa--gfx950"')
    gen_pre(e, PRE)
    gen_mainkernel(e)
    kernel_desc(e, PRE, 80, 48, 80)
    kernel_desc(e, MAIN, 512, 96, 256)
    lines, added = hazard.pad(e.lines)
    open(path, 'w').write('\n'.join(lines) + '\n')
    n = sum(1 for l in lines if l.startswith('    ') and not l.strip().startswith(';'))
    print(f'wrote {path}: {n} instructions, {added} nops added')

if __name__ == '__main__':
    out = sys.argv[1] if len(sys.argv) > 1 else 'cdna_kernels/' + NAME + '.s'
    if 'slow' in sys.argv[2:]: opt.force_slow = True
    if 'ts' in sys.argv[2:]: opt.ts = True
    for k in ('nobg', 'ackpoll', 'noxw'):
        if k in sys.argv[2:]: setattr(opt, k, True)
    for a_ in sys.argv[2:]:
        if '=' in a_: k_, v_ = a_.split('='); setattr(opt, k_, int(v_))
    build(out)
```

```python
import sys, struct
from asmlib import *
from layout import *
import hazard
from gen_pre import gen_pre, PRE_GRID, PRE_LDS

NAME = 'recurrent_scan__memory_aug_recurrent_mem_tr__dense_activation_relu__prompt'
MAIN = NAME + '_kernel'
PRE = 'prep_kernel'
LDS_TOTAL = 131328
LDS_ROLE = 131072
TMO = 1 << 18
def f2u(x): return struct.unpack('<I', struct.pack('<f', x))[0]
SC_L2E = f2u(192 ** -0.5 * 1.4426950408889634)
NEG_BIG = f2u(-1e30)
MFMA = 'v_mfma_f32_16x16x32_bf16'
MFMA16 = 'v_mfma_f32_16x16x16_bf16'
WS = 's[4:7]'

class Opt:
    force_slow = False
    ts = False
    nobg = False
    ackpoll = False
    noxw = False
    pdelay = 4
    vdelay = 0
    kbar = 0
    kpre = 6
    kin = 6
    fresh = 0
    pdiag = 0
    pflip = 0
    touch = 1
    ffnnt = 0
    pr = 1
    pfar = 0
opt = Opt()

def vr(i, n=4): return f'v[{i}:{i+n-1}]'
def ar(i, n=4): return f'a[{i}:{i+n-1}]'

def maxchain(e, dst, regs, op='u32'):
    regs = list(regs)
    e.I(f'v_max3_{op} v{dst}, v{regs[0]}, v{regs[1]}, v{regs[2]}')
    rest = regs[3:]
    while rest:
        if len(rest) >= 2:
            e.I(f'v_max3_{op} v{dst}, v{dst}, v{rest[0]}, v{rest[1]}'); rest = rest[2:]
        else:
            e.I(f'v_max_{op} v{dst}, v{dst}, v{rest[0]}'); rest = rest[1:]

def check_sent(e, regs, t0, t1):
    regs = list(regs)
    if len(regs) >= 8:
        h = len(regs) // 2
        A, B = regs[:h], regs[h:]
        ea, eb = Em(), Em()
        maxchain(ea, t0, A); maxchain(eb, t1, B)
        for i in range(max(len(ea.lines), len(eb.lines))):
            if i < len(ea.lines): e.lines.append(ea.lines[i])
            if i < len(eb.lines): e.lines.append(eb.lines[i])
        e.I(f'v_max_u32 v{t0}, v{t0}, v{t1}')
    else:
        maxchain(e, t0, regs)
    e.I(f'v_cmp_eq_u32 vcc, -1, v{t0}')

def poll2(e, issue, nl, regsA, regsB, consume, t0, t1, code):
    lp, dA, dB, dd = e.lab('Lp'), e.lab('LdA'), e.lab('LdB'), e.lab('Ldd')
    e.I(f's_mov_b32 s31, {TMO}')
    issue(regsA)
    e.L(lp)
    issue(regsB)
    e.I(f's_waitcnt vmcnt({nl})')
    check_sent(e, range(regsA, regsA + 4 * nl), t0, t1)
    e.I(f's_cbranch_vccz {dA}')
    issue(regsA)
    e.I(f's_waitcnt vmcnt({nl})')
    check_sent(e, range(regsB, regsB + 4 * nl), t0, t1)
    e.I(f's_cbranch_vccz {dB}')
    e.I('s_sub_u32 s31, s31, 1')
    e.I(f's_cbranch_scc0 {lp}')
    e.I(f's_mov_b32 s31, {code}')
    e.I('s_branch L_fail')
    e.L(dB)
    consume(regsB)
    e.I(f's_branch {dd}')
    e.L(dA)
    consume(regsA)
    e.L(dd)

def wait_flags(e, vaddr, sofs, mask, vt, code, sleep=0):
    lp, dn = e.lab('Lf'), e.lab('Lfd')
    e.I(f's_mov_b32 s31, {TMO}')
    if mask > 0xffffffff or mask < 0: e.I(f's_mov_b64 exec, {mask}')
    else:
        e.I(f's_mov_b32 exec_lo, {mask:#x}'); e.I('s_mov_b32 exec_hi, 0')
    e.L(lp)
    e.I(f'buffer_load_dword v{vt}, v{vaddr}, {WS}, {sofs} offen sc1')
    e.I('s_waitcnt vmcnt(0)')
    e.I(f'v_cmp_eq_u32 vcc, 0, v{vt}')
    e.I(f's_cbranch_vccz {dn}')
    if sleep: e.I(f's_sleep {sleep}')
    e.I('s_sub_u32 s31, s31, 1')
    e.I(f's_cbranch_scc0 {lp}')
    e.I(f's_mov_b32 s31, {code}')
    e.I('s_branch L_fail')
    e.L(dn)
    e.I('s_mov_b64 exec, -1')

def set_flag(e, vaddr, sofs, vone, fl):
    e.I('s_mov_b64 exec, 1')
    e.I(f'buffer_store_dword v{vone}, v{vaddr}, {WS}, {sofs} offen{fl}')
    e.I('s_mov_b64 exec, -1')

def xg_reduce(e, op, x, t):
    e.I(f'v_mov_b32 v{t}, v{x}')
    e.I(f'v_permlane16_swap_b32 v{x}, v{t}')
    e.I(f'{op} v{x}, v{x}, v{t}')
    e.I(f'v_mov_b32 v{t}, v{x}')
    e.I(f'v_permlane32_swap_b32 v{x}, v{t}')
    e.I(f'{op} v{x}, v{x}, v{t}')

def softmax12(e, S, P, t):
    maxchain(e, t, range(S, S + 12), 'f32')
    xg_reduce(e, 'v_max_f32', t, t + 1)
    e.I(f'v_mul_f32 v{t}, s53, v{t}')
    for i in range(12):
        e.I(f'v_fma_f32 v{S+i}, v{S+i}, s52, v{t}')
    for i in range(12):
        e.I(f'v_exp_f32 v{S+i}, v{S+i}')
    e.I(f'v_add_f32 v{t+2}, v{S}, v{S+1}')
    e.I(f'v_add_f32 v{t+3}, v{S+2}, v{S+3}')
    for i in range(4, 12, 2):
        e.I(f'v_add_f32 v{t+2}, v{t+2}, v{S+i}')
        e.I(f'v_add_f32 v{t+3}, v{t+3}, v{S+i+1}')
    e.I(f'v_add_f32 v{t+2}, v{t+2}, v{t+3}')
    xg_reduce(e, 'v_add_f32', t + 2, t + 3)
    e.I(f'v_rcp_f32 v{t+2}, v{t+2}')
    for i in range(12):
        e.I(f'v_mul_f32 v{S+i}, v{S+i}, v{t+2}')
    for i in range(6):
        e.I(f'v_cvt_pk_bf16_f32 v{P+i}, v{S+2*i}, v{S+2*i+1}')

def TS(e, k):
    if opt.ts: e.I(f's_memrealtime s[{76+2*k}:{77+2*k}]')
def TSflush(e, step, va=238, vd=239):
    if not opt.ts: return
    e.I('s_waitcnt lgkmcnt(0)')
    for k in range(10): e.I(f'v_writelane_b32 v{vd}, s{76+2*k}, {k}')
    e.I('s_lshl_b32 s76, s20, 5')
    e.I('s_add_u32 s76, s76, s21')
    e.I('s_lshl_b32 s76, s76, 2')
    e.I('s_add_u32 s76, s76, s22')
    e.I('s_mul_i32 s76, s76, 72')
    e.I(f's_add_u32 s76, s76, {step}')
    e.I('s_lshl_b32 s76, s76, 6')
    e.I(f's_add_u32 s76, s76, {DBGT}')
    e.I(f'v_lshlrev_b32 v{va}, 2, v1')
    e.I('s_mov_b64 exec, 0x3ff')
    e.I(f'buffer_store_dword v{vd}, v{va}, {WS}, s76 offen')
    e.I('s_mov_b64 exec, -1')

def lane_ig(e, vi, vg):
    e.I(f'v_and_b32 v{vi}, 15, v1')
    e.I(f'v_lshrrev_b32 v{vg}, 4, v1')

def load_weights(e, mats, RS, rows, paired, vA, vT):
    CH = rows * 128
    ninst = rows // 8 // 4
    nk = rows // 32
    e.I(f'v_lshrrev_b32 v{vT}, 3, v1')
    if paired:
        e.I(f'v_bfe_u32 v{vT+1}, v1, 4, 2')
    else:
        e.I(f'v_bfe_u32 v{vT+1}, v1, 4, 1')
        e.I('s_and_b32 s54, s22, 1')
        e.I('s_lshl_b32 s54, s54, 1')
        e.I(f'v_or_b32 v{vT+1}, s54, v{vT+1}')
    e.I(f'v_lshlrev_b32 v{vT+1}, 1, v{vT+1}')
    e.I(f'v_and_b32 v{vT+2}, 7, v1')
    e.I(f'v_xor_b32 v{vT+2}, v{vT+2}, v{vT+1}')
    e.I(f's_mov_b32 s54, {RS}')
    e.I(f'v_mul_lo_u32 v{vA}, s54, v{vT}')
    e.I(f'v_lshl_add_u32 v{vA}, v{vT+2}, 4, v{vA}')
    e.I(f'v_lshrrev_b32 v{vT}, 4, v1')
    e.I(f'v_bfe_u32 v{vT+1}, v1, 2, 2')
    if paired:
        e.I(f'v_lshl_add_u32 v{vT+2}, v{vT}, 2, v{vT+1}')
        e.I(f'v_bfe_u32 v{vT}, v{vT+2}, 1, 2')
        second = 2048
    else:
        e.I(f'v_lshl_add_u32 v{vT+2}, v{vT}, 3, v{vT+1}')
        e.I(f'v_and_b32 v{vT}, 1, v{vT}')
        e.I(f'v_lshlrev_b32 v{vT}, 1, v{vT}')
        e.I(f'v_bfe_u32 v{vT+1}, v1, 3, 1')
        e.I(f'v_or_b32 v{vT}, v{vT}, v{vT+1}')
        second = 512
    e.I(f'v_xor_b32 v{vT}, s22, v{vT}')
    e.I(f'v_lshlrev_b32 v{vT+2}, 7, v{vT+2}')
    e.I(f'v_lshl_add_u32 v{vT+2}, v{vT}, 5, v{vT+2}')
    e.I(f'v_and_b32 v{vT}, 3, v1')
    e.I(f'v_lshl_add_u32 v{vT}, v{vT}, 3, v{vT+2}')
    e.I(f'v_add_u32 v{vT+1}, {CH}, v{vT}')
    e.I(f'v_add_u32 v{vT+2}, {2*CH}, v{vT}')
    chunks = []
    for (srd_, sofs, ab, nrows) in mats:
        for c in range(nrows // rows):
            chunks.append((srd_, sofs, ab + c * nk * 4, c * rows))
    e.I(f's_mul_i32 s55, s22, {8*RS}')
    e.I('s_lshl_b32 s56, s22, 10')
    def issue(ci):
        srd_, sofs, ab, r0 = chunks[ci]
        buf = ci % 3
        e.I(f's_add_u32 s57, {sofs}, s55')
        if r0: e.I(f's_add_u32 s57, s57, {r0*RS}')
        for n in range(ninst):
            e.I(f's_add_u32 m0, s56, {buf*CH + n*4096}')
            e.I(f'buffer_load_dwordx4 v{vA}, {srd_}, s57 offen lds')
            if n + 1 < ninst: e.I(f's_add_u32 s57, s57, {32*RS}')
    for ci in range(min(3, len(chunks))): issue(ci)
    for ci in range(len(chunks)):
        left = min(len(chunks) - 1 - ci, 2)
        e.I(f's_waitcnt vmcnt({left*ninst})')
        e.I('s_barrier')
        srd_, sofs, ab, r0 = chunks[ci]
        for k in range(nk):
            e.I(f'ds_read_b64_tr_b16 {ar(ab+4*k,2)}, v{vT+ci%3} offset:{k*4096}')
            e.I(f'ds_read_b64_tr_b16 {ar(ab+4*k+2,2)}, v{vT+ci%3} offset:{k*4096+second}')
        e.I('s_waitcnt lgkmcnt(0)')
        e.I('s_barrier')
        if ci + 3 < len(chunks): issue(ci + 3)

Q_LX, Q_LMEM = 0, 81920
def role_qkv(e, slow):
    fl = ' sc1' if slow else ''
    WQ, WK, WV = 0, 80, 160
    MF = 16
    DQ, DK, DV = 96, 100, 104
    PA, PB = 108, 120
    XD = 132
    T0 = 160
    KEEP = 176; TCH = 180
    SENT = 248; ONE = 252
    e.I('s_mul_i32 s24, s21, 43')
    e.I('s_lshr_b32 s24, s24, 7')
    e.I('s_mul_i32 s25, s24, 3')
    e.I('s_sub_u32 s25, s21, s25')
    e.I('s_lshl_b32 s26, s20, 2')
    e.I('s_add_u32 s26, s26, s24')
    e.I('s_lshl_b32 s27, s25, 2')
    e.I('s_add_u32 s27, s27, s22')
    srd(e, 8, 60, 640 * 12288); srd(e, 12, 62, 640 * 12288); srd(e, 16, 64, 640 * 12288)
    e.I('s_mul_i32 s28, s26, 384')
    e.I('s_lshl_b32 s29, s25, 7')
    e.I('s_add_u32 s28, s28, s29')
    load_weights(e, [('s[12:15]', 's28', WK, 640), ('s[16:19]', 's28', WV, 640), ('s[8:11]', 's28', WQ, 640)], 12288, 320, False, 3, 4)
    e.I('s_mul_i32 s62, s22, 10240')
    e.I(f's_add_u32 s63, s62, {XN}')
    for m in range(10):
        e.I(f's_add_u32 m0, s62, {Q_LX + m*1024}')
        e.I(f'buffer_load_dwordx4 v2, {WS}, s63 offen lds')
        e.I('s_add_u32 s63, s63, 1024')
    e.I('s_mov_b32 s34, 0xff00ff00'); e.I('s_mov_b32 s35, 0xff00ff00')
    e.I('s_cmp_lt_u32 s22, 2')
    e.I('s_cselect_b32 s36, -1, 0')
    e.I('s_cselect_b32 s37, 0, -1')
    e.I('s_mul_i32 s38, s22, 2560')
    e.I('v_add_u32 v3, s38, v2')
    e.I('v_and_b32 v4, 31, v1')
    e.I('v_lshlrev_b32 v4, 4, v4')
    e.I('v_add_u32 v4, s38, v4')
    e.I('v_add_u32 v4, 2048, v4')
    e.I(f'v_add_u32 v5, {Q_LMEM}, v3')
    e.I(f'v_add_u32 v6, {Q_LMEM}, v4')
    lane_ig(e, 14, 15)
    e.I('v_and_b32 v7, 7, v14')
    e.I('v_lshlrev_b32 v7, 4, v7')
    e.I('v_lshl_add_u32 v7, v15, 7, v7')
    e.I(f'v_add_u32 v7, {Q_LMEM}, v7')
    e.I('s_lshr_b32 s38, s27, 1')
    e.I('s_lshl_b32 s38, s38, 10')
    e.I('s_and_b32 s39, s27, 1')
    e.I('s_lshl_b32 s39, s39, 3')
    e.I('s_add_u32 s38, s38, s39')
    e.I('v_add_u32 v8, s38, v2')
    e.I('s_lshl_b32 s38, s25, 10')
    e.I('s_add_u32 s38, s38, s39')
    e.I('v_add_u32 v9, s38, v2')
    e.I('s_lshl_b32 s38, s27, 2')
    e.I(f'v_mov_b32 v{ONE+2}, s38')
    e.I(f'v_mov_b32 v{ONE}, 1')
    for k in range(4): e.I(f'v_mov_b32 v{SENT+k}, -1')
    e.I('s_mul_i32 s58, s26, 6144')
    e.I('s_mul_i32 s59, s20, 10240')
    e.I(f's_add_u32 s59, s59, {MEM}')
    e.I('s_mul_i32 s60, s26, 3072')
    e.I('s_lshl_b32 s61, s20, 6')
    e.I('s_lshl_b32 s38, s24, 2')
    e.I('s_add_u32 s61, s61, s38')
    e.I(f's_add_u32 s61, s61, {FLGOX}')
    e.I('v_mov_b32 v10, 0')

    def late_stores():
        e.I(f'buffer_store_dwordx2 {vr(KEEP,2)}, v8, {WS}, s43 offen{fl}')
        e.I(f'buffer_store_dwordx2 {vr(SENT,2)}, v8, {WS}, s42 offen{fl}')
        e.I('s_mov_b64 exec, s[36:37]')
        e.I(f'buffer_store_dwordx2 {vr(KEEP+2,2)}, v9, {WS}, s44 offen{fl}')
        e.I(f'buffer_store_dwordx2 {vr(SENT,2)}, v9, {WS}, s46 offen{fl}')
        e.I('s_mov_b64 exec, -1')
    def xwork(late):
        e.I('s_and_b32 s65, s64, 1')
        e.I('s_mul_i32 s66, s65, 40960')
        e.I('v_add_u32 v12, s66, v2')
        e.I('s_xor_b32 s65, s65, 1')
        e.I('s_mul_i32 s65, s65, 40960')
        e.I('s_add_u32 s65, s65, s62')
        e.I('s_add_u32 s66, s64, 1')
        e.I('s_min_u32 s66, s66, 63')
        e.I('s_mul_i32 s66, s66, 40960')
        e.I('s_add_u32 s66, s66, s62')
        e.I(f's_add_u32 s66, s66, {XN}')
        e.I(f's_and_b32 s47, s64, {RD-1}')
        e.I(f's_mul_i32 s47, s47, {SEG_QX}')
        e.I('s_lshl_b32 s48, s58, 1')
        e.I('s_add_u32 s47, s47, s48')
        if late:
            e.I(f's_max_u32 s50, s64, {RD}')
            e.I(f's_sub_u32 s50, s50, {RD}')
            e.I('s_lshl_b32 s50, s50, 9')
            e.I('s_add_u32 s50, s50, s61')
            e.I(f'buffer_load_dword v{TCH}, v10, {WS}, s50 offen sc1')
        PF = 5
        def rd(kk):
            for rt in range(2):
                e.I(f'ds_read_b128 {vr(MF + ((2*kk+rt) % 20)*4)}, v12 offset:{rt*20480 + kk*1024}')
        for kk in range(PF): rd(kk)
        for kk in range(20):
            nxt = min(20, kk + PF) - (kk + 1)
            e.I(f's_waitcnt lgkmcnt({2*nxt})')
            for rt in range(2):
                f = vr(MF + ((2*kk+rt) % 20)*4)
                for (m, Wb) in ((0, WQ), (1, WK)):
                    d = vr(XD + (m*2+rt)*4)
                    e.I(f'{MFMA} {d}, {ar(Wb+4*kk)}, {f}, {0 if kk == 0 else d}')
                d = vr(XD + (4+rt)*4)
                e.I(f'{MFMA} {d}, {f}, {ar(WV+4*kk)}, {0 if kk == 0 else d}')
            if kk + PF < 20: rd(kk + PF)
            if 3 <= kk < 13:
                m = kk - 3
                e.I(f's_add_u32 m0, s65, {m*1024}')
                e.I(f'buffer_load_dwordx4 v2, {WS}, s66 offen lds')
                e.I('s_add_u32 s66, s66, 1024')
        if late:
            bp = e.lab('Lbp')
            e.I(f's_cmp_lt_u32 s64, {RD}')
            e.I(f's_cbranch_scc1 {bp}')
            e.I('s_waitcnt vmcnt(10)')
            e.I(f'v_cmp_eq_u32 vcc, 0, v{TCH}')
            e.I(f's_cbranch_vccz {bp}')
            wait_flags(e, 10, 's50', 1, TCH, 13, sleep=1)
            e.L(bp)
            late_stores()
        for m, base in ((1, KX), (0, QX)):
            for rt in range(2):
                d = XD + (m*2+rt)*4; o = T0 + (m*2+rt)*2
                e.I(f'v_cvt_pk_bf16_f32 v{o}, v{d}, v{d+1}')
                e.I(f'v_cvt_pk_bf16_f32 v{o+1}, v{d+2}, v{d+3}')
                e.I(f's_add_u32 s48, s47, {base + rt*6144}')
                e.I(f'buffer_store_dwordx2 {vr(o,2)}, v8, {WS}, s48 offen{fl}')
        for rt in range(2):
            d = XD + (4+rt)*4; o = T0 + 8 + rt*2
            e.I(f'v_cvt_pk_bf16_f32 v{o}, v{d}, v{d+1}')
            e.I(f'v_cvt_pk_bf16_f32 v{o+1}, v{d+2}, v{d+3}')
        e.I('s_lshl_b32 s48, s27, 10')
        e.I('s_add_u32 s48, s48, s47')
        e.I(f's_add_u32 s48, s48, {VX}')
        e.I(f'buffer_store_dwordx4 {vr(T0+8)}, v2, {WS}, s48 offen{fl}')
    def flag_n():
        e.I('s_lshl_b32 s51, s64, 5')
        e.I('s_add_u32 s51, s51, s26')
        e.I('s_lshl_b32 s51, s51, 6')
        e.I(f's_add_u32 s51, s51, {FLGQ}')
        e.I('s_waitcnt vmcnt(0)')
        set_flag(e, ONE + 2, 's51', ONE, fl)
        e.I('s_add_u32 s64, s64, 1')
    def mem_part():
        e.I('s_and_b32 s38, s30, 3')
        e.I('s_xor_b32 s39, s38, 2')
        e.I(f's_mul_i32 s40, s38, {MEM_SLOT}')
        e.I('s_add_u32 s40, s40, s59')
        e.I(f's_mul_i32 s41, s38, {XR_SLOT}')
        e.I('s_add_u32 s41, s41, s58')
        e.I(f's_add_u32 s41, s41, {XR}')
        e.I(f's_mul_i32 s42, s39, {XR_SLOT}')
        e.I('s_add_u32 s42, s42, s58')
        e.I(f's_add_u32 s42, s42, {XR}')
        e.I(f's_and_b32 s44, s30, {RD-1}')
        e.I(f's_mul_i32 s43, s44, {SEG_XP}')
        e.I('s_add_u32 s43, s43, s58')
        e.I(f's_add_u32 s43, s43, {XP}')
        e.I(f's_mul_i32 s44, s44, {SEG_VM}')
        e.I('s_add_u32 s44, s44, s60')
        e.I(f's_add_u32 s44, s44, {VM}')
        e.I(f's_mul_i32 s45, s38, {VR_SLOT}')
        e.I('s_add_u32 s45, s45, s60')
        e.I(f's_add_u32 s45, s45, {VR}')
        e.I(f's_mul_i32 s46, s39, {VR_SLOT}')
        e.I('s_add_u32 s46, s46, s60')
        e.I(f's_add_u32 s46, s46, {VR}')
        def issue(b):
            e.I(f'buffer_load_dwordx4 {vr(b)}, v3, {WS}, s40 offen sc1')
            e.I(f'buffer_load_dwordx4 {vr(b+4)}, v3, {WS}, s40 offen offset:1024 sc1')
            e.I(f'buffer_load_dwordx4 {vr(b+8)}, v4, {WS}, s40 offen sc1')
        def consume(b):
            e.I(f'ds_write_b128 v5, {vr(b)}')
            e.I(f'ds_write_b128 v5, {vr(b+4)} offset:1024')
            e.I(f'ds_write_b128 v6, {vr(b+8)}')
        poll2(e, issue, 3, PA, PB, consume, T0, T0 + 1, 1)
        TS(e, 1)
        e.I('s_waitcnt lgkmcnt(0)')
        e.I('s_barrier')
        PF = 12
        for kk in range(PF): e.I(f'ds_read_b128 {vr(MF+4*kk)}, v7 offset:{kk*512}')
        for kk in range(20):
            nxt = min(20, kk + PF) - (kk + 1)
            e.I(f's_waitcnt lgkmcnt({nxt})')
            f = vr(MF + 4*kk)
            e.I(f'{MFMA} {vr(DQ)}, {ar(WQ+4*kk)}, {f}, {0 if kk == 0 else vr(DQ)}')
            e.I(f'{MFMA} {vr(DK)}, {ar(WK+4*kk)}, {f}, {0 if kk == 0 else vr(DK)}')
            if kk + PF < 20: e.I(f'ds_read_b128 {vr(MF+4*(kk+PF))}, v7 offset:{(kk+PF)*512}')
        def vm(kk): e.I(f'{MFMA} {vr(DV)}, {vr(MF+4*kk)}, {ar(WV+4*kk)}, {0 if kk == 0 else vr(DV)}')
        vm(0); vm(1)
        e.I('s_nop 4')
        e.I(f'v_cvt_pk_bf16_f32 v{KEEP}, v{DQ}, v{DQ+1}')
        e.I(f'v_cvt_pk_bf16_f32 v{KEEP+1}, v{DQ+2}, v{DQ+3}')
        e.I(f'v_cvt_pk_bf16_f32 v{T0+2}, v{DK}, v{DK+1}')
        e.I(f'v_cvt_pk_bf16_f32 v{T0+3}, v{DK+2}, v{DK+3}')
        e.I(f'v_cndmask_b32 v{KEEP}, v{KEEP}, v{T0+2}, s[34:35]')
        e.I(f'v_cndmask_b32 v{KEEP+1}, v{KEEP+1}, v{T0+3}, s[34:35]')
        e.I(f'v_min_u32 v{KEEP}, -2, v{KEEP}')
        e.I(f'v_min_u32 v{KEEP+1}, -2, v{KEEP+1}')
        e.I(f'buffer_store_dwordx2 {vr(KEEP,2)}, v8, {WS}, s41 offen{fl}')
        TS(e, 2)
        for kk in range(2, 20): vm(kk)
        e.I(f'v_cvt_pk_bf16_f32 v{KEEP+2}, v{DV}, v{DV+1}')
        e.I(f'v_cvt_pk_bf16_f32 v{KEEP+3}, v{DV+2}, v{DV+3}')
        e.I(f'v_min_u32 v{KEEP+2}, -2, v{KEEP+2}')
        e.I(f'v_min_u32 v{KEEP+3}, -2, v{KEEP+3}')
        e.I('s_mov_b64 exec, s[36:37]')
        e.I(f'buffer_store_dwordx2 {vr(KEEP+2,2)}, v9, {WS}, s45 offen{fl}')
        e.I('s_mov_b64 exec, -1')
        TS(e, 3)
    pro, top, nox, nxt_ = e.lab('Lqp'), e.lab('Lqt'), e.lab('Lqn'), e.lab('Lqx')
    e.I('s_mov_b32 s30, 0')
    e.I('s_mov_b32 s64, 0')
    e.I('s_waitcnt vmcnt(0)')
    e.L(pro)
    e.I('s_barrier')
    xwork(False)
    flag_n()
    e.I('s_cmp_lt_u32 s64, 2')
    e.I(f's_cbranch_scc1 {pro}')
    e.L(top)
    TS(e, 0)
    mem_part()
    e.I('s_cmp_ge_u32 s64, 64')
    e.I(f's_cbranch_scc1 {nox}')
    xwork(True)
    e.I(f's_branch {nxt_}')
    e.L(nox)
    late_stores()
    e.L(nxt_)
    TS(e, 4)
    flag_n()
    TS(e, 5)
    TSflush(e, 's30')
    e.I('s_add_u32 s30, s30, 1')
    e.I('s_cmp_lt_u32 s30, 64')
    e.I(f's_cbranch_scc1 {top}')
    e.I('s_endpgm')

def role_sw(e, slow):
    fl = ' sc1' if slow else ''
    XF, KXF, VXF, VMF = 16, 40, 88, 136
    S, P, PL = 148, 160, 166
    DO, OB, DW = 168, 184, 192
    PA = 208
    CI = 224; PV = 240
    T0 = 228; SENT = 248; ONE = 252
    e.I('s_sub_u32 s24, s21, 12')
    e.I('s_lshl_b32 s25, s24, 2')
    e.I('s_add_u32 s25, s25, s22')
    e.I('s_lshl_b32 s26, s20, 2')
    e.I('s_add_u32 s26, s26, s22')
    srd(e, 8, 66, 6144 * 1280)
    e.I(f's_mul_i32 s28, s20, {768*1280}')
    e.I('s_lshl_b32 s29, s24, 7')
    e.I('s_add_u32 s28, s28, s29')
    e.I('v_lshrrev_b32 v4, 3, v1')
    e.I('v_bfe_u32 v5, v1, 4, 2')
    e.I('v_lshlrev_b32 v5, 1, v5')
    e.I('v_and_b32 v6, 7, v1')
    e.I('v_xor_b32 v6, v6, v5')
    e.I('v_mul_u32_u24 v3, 1280, v4')
    e.I('v_lshl_add_u32 v3, v6, 4, v3')
    e.I(f's_mul_i32 s55, s22, {192*1280}')
    e.I('s_add_u32 s57, s28, s55')
    e.I('s_mul_i32 s56, s22, 24576')
    for n in range(24):
        e.I(f's_add_u32 m0, s56, {n*1024}')
        e.I(f'buffer_load_dwordx4 v3, s[8:11], s57 offen lds')
        e.I(f's_add_u32 s57, s57, {8*1280}')
    e.I('v_lshrrev_b32 v4, 4, v1')
    e.I('v_bfe_u32 v5, v1, 2, 2')
    e.I('v_lshl_add_u32 v6, v4, 2, v5')
    e.I('v_bfe_u32 v4, v6, 1, 2')
    e.I('v_lshlrev_b32 v6, 7, v6')
    e.I('v_and_b32 v5, 3, v1')
    e.I('v_lshl_add_u32 v6, v5, 3, v6')
    e.I('v_add_u32 v6, s56, v6')
    for t in range(4):
        e.I(f'v_xor_b32 v5, {t}, v4')
        e.I(f'v_lshl_add_u32 v{8+t}, v5, 5, v6')
    e.I('s_waitcnt vmcnt(0)')
    for kk in range(6):
        for t in range(4):
            e.I(f'ds_read_b64_tr_b16 {ar((kk*4+t)*4,2)}, v{8+t} offset:{kk*4096}')
            e.I(f'ds_read_b64_tr_b16 {ar((kk*4+t)*4+2,2)}, v{8+t} offset:{kk*4096+2048}')
    e.I('s_waitcnt lgkmcnt(0)')
    e.I('s_barrier')
    e.I(f's_mov_b32 s52, {SC_L2E:#x}'); e.I(f's_mov_b32 s53, {SC_L2E | 0x80000000:#x}')
    lane_ig(e, 14, 15)
    e.I('v_and_b32 v13, 7, v14')
    e.I('v_lshlrev_b32 v13, 4, v13')
    e.I('v_lshl_add_u32 v7, v15, 8, v13')
    e.I('s_lshl_b32 s38, s22, 10')
    e.I('v_add_u32 v7, s38, v7')
    e.I('s_lshl_b32 s38, s22, 12')
    e.I('v_add_u32 v6, s38, v2')
    e.I('v_lshl_add_u32 v13, v15, 7, v13')
    e.I('v_bfe_u32 v5, v1, 3, 1')
    e.I('v_lshl_add_u32 v13, v5, 13, v13')
    e.I('v_and_b32 v4, 31, v1')
    e.I('v_lshlrev_b32 v4, 4, v4')
    e.I('v_lshrrev_b32 v5, 5, v1')
    e.I('v_lshl_add_u32 v4, v5, 11, v4')
    e.I('v_bfe_u32 v8, v1, 4, 1')
    e.I('v_lshlrev_b32 v8, 7, v8')
    e.I('v_and_b32 v9, 7, v1')
    e.I('v_lshl_add_u32 v8, v9, 4, v8')
    e.I('v_bfe_u32 v9, v1, 3, 1')
    e.I('v_lshl_add_u32 v8, v9, 3, v8')
    e.I('v_lshl_add_u32 v8, v5, 2, v8')
    e.I('s_lshl_b32 s38, s25, 8')
    e.I('v_add_u32 v8, s38, v8')
    e.I('v_lshrrev_b32 v9, 1, v1')
    e.I('v_lshlrev_b32 v9, 10, v9')
    e.I('v_and_b32 v10, 1, v1')
    e.I('v_lshl_add_u32 v9, v10, 3, v9')
    e.I(f'v_lshlrev_b32 v{ONE+1}, 2, v1')
    for k in range(4): e.I(f'v_mov_b32 v{SENT+k}, -1')
    e.I(f'v_mov_b32 v{CI}, {NEG_BIG:#x}')
    e.I('v_cmp_gt_u32 vcc, 32, v1')
    e.I(f'v_cndmask_b32 v{CI}, 0, v{CI}, vcc')
    for k in range(1, 4): e.I(f'v_mov_b32 v{CI+k}, v{CI}')
    e.I('s_mul_i32 s58, s26, 6144')
    e.I(f's_add_u32 s58, s58, {XR}')
    e.I('s_mul_i32 s57, s26, 3072')
    e.I(f's_add_u32 s57, s57, {VR}')
    e.I('s_lshr_b32 s59, s25, 1')
    e.I('s_lshl_b32 s59, s59, 14')
    e.I('s_and_b32 s38, s25, 1')
    e.I('s_lshl_b32 s38, s38, 12')
    e.I('s_add_u32 s59, s59, s38')
    e.I(f's_add_u32 s59, s59, {PART}')
    e.I('s_lshl_b32 s60, s20, 9')
    e.I('s_add_u32 s60, s60, s59')
    e.I('s_mul_i32 s61, s20, 10240')
    e.I(f's_add_u32 s61, s61, {MEM}')
    e.I('s_mul_i32 s62, s26, 12288')
    e.I('s_lshl_b32 s63, s26, 6')
    e.I(f's_add_u32 s63, s63, {FLGQ}')
    nocal = e.lab('Lnc')
    e.I('s_cmp_lg_u32 s25, 0')
    e.I(f's_cbranch_scc1 {nocal}')
    e.I('s_lshl_b32 s38, s20, 7')
    e.I(f's_add_u32 s38, s38, {CAL}')
    e.I('s_add_u32 s39, s38, 8192')
    e.I('s_mov_b32 s40, -1'); e.I('s_mov_b32 s41, -1'); e.I('s_mov_b32 s42, 4')
    e.I('v_mov_b32 v10, 0')
    e.I('s_mov_b64 exec, 1')
    cal = e.lab('Lcal')
    e.L(cal)
    for so, acc in (('s38', 's40'), ('s39', 's41')):
        e.I(f'buffer_store_dword v10, v10, {WS}, {so} offen sc1')
        e.I('s_waitcnt vmcnt(0)')
        e.I('s_memtime s[44:45]')
        e.I('s_waitcnt lgkmcnt(0)')
        e.I(f'buffer_load_dword v11, v10, {WS}, {so} offen sc1')
        e.I('s_waitcnt vmcnt(0)')
        e.I('s_memtime s[46:47]')
        e.I('s_waitcnt lgkmcnt(0)')
        e.I('s_sub_u32 s46, s46, s44')
        e.I(f's_min_u32 {acc}, {acc}, s46')
    e.I('s_sub_u32 s42, s42, 1')
    e.I('s_cmp_lg_u32 s42, 0')
    e.I(f's_cbranch_scc1 {cal}')
    e.I('s_cmp_lt_u32 s41, s40')
    if opt.pflip: e.I('s_cmp_ge_u32 s41, s40')
    e.I('s_cselect_b32 s38, 2, 1')
    e.I('v_mov_b32 v11, s38')
    e.I('s_lshl_b32 s38, s20, 2')
    e.I(f's_add_u32 s38, s38, {PARTAB}')
    e.I(f'buffer_store_dword v11, v10, {WS}, s38 offen sc1')
    e.I('s_mov_b64 exec, -1')
    e.L(nocal)
    e.I('s_lshl_b32 s38, s20, 2')
    e.I(f's_add_u32 s38, s38, {PARTAB}')
    wait_flags(e, ONE + 1, 's38', 1, T0, 12, sleep=2)
    e.I(f'v_readfirstlane_b32 s38, v{T0}')
    e.I('s_nop 3')
    e.I('s_and_b32 s38, s38, 2')
    e.I('s_lshl_b32 s38, s38, 12')
    e.I('s_add_u32 s59, s59, s38')
    e.I('s_mov_b32 s64, 0')
    def kv_loads(dst, base, q0=0, q1=12):
        if q0 >= q1: return
        e.I(f's_and_b32 s48, s49, {RD-1}')
        e.I(f's_mul_i32 s48, s48, {SEG_QX}')
        e.I('s_add_u32 s48, s48, s62')
        e.I(f's_add_u32 s48, s48, {base + (q0//4)*4096}')
        for q in range(q0, q1):
            if q % 4 == 0 and q > q0: e.I('s_add_u32 s48, s48, 4096')
            e.I(f'buffer_load_dwordx4 {vr(dst+4*q)}, v2, {WS}, s48 offen offset:{(q%4)*1024} sc1')
    wait_flags(e, ONE + 1, 's63', 0xfff, T0, 11, sleep=2)
    e.I('s_mov_b32 s49, 0')
    kv_loads(KXF, KX); kv_loads(VXF, VX)
    e.I('s_add_u32 s50, s63, 2048')
    wait_flags(e, ONE + 1, 's50', 0xfff, T0, 11, sleep=2)
    top = e.lab('Lwt')
    e.I('s_mov_b32 s30, 0')
    e.L(top)
    TS(e, 0)
    e.I('s_and_b32 s38, s30, 3')
    e.I('s_xor_b32 s39, s38, 2')
    e.I(f's_mul_i32 s40, s38, {XR_SLOT}')
    e.I('s_add_u32 s40, s40, s58')
    e.I('s_add_u32 s54, s40, 4096')
    e.I(f's_mul_i32 s55, s38, {VR_SLOT}')
    e.I('s_add_u32 s55, s55, s57')
    if opt.fresh:
        e.I(f's_mul_i32 s41, s30, {PART_SLOT}')
        e.I(f's_add_u32 s41, s41, {SCRATCH + 0x400000 - PART + 0x200000}')
    else:
        e.I(f's_mul_i32 s41, s38, {PART_SLOT}')
    e.I('s_add_u32 s42, s41, s60')
    e.I('s_add_u32 s41, s41, s59')
    if opt.fresh:
        e.I('s_lshr_b32 s47, s41, 8')
        e.I('s_not_b32 s47, s47')
        e.I('s_and_b32 s47, s47, 8192')
        e.I('s_xor_b32 s41, s41, s47')
    e.I('s_xor_b32 s47, s41, 8192')
    e.I(f's_mul_i32 s43, s39, {PART_SLOT}')
    e.I('s_add_u32 s43, s43, s60')
    e.I('s_add_u32 s49, s30, 1')
    e.I('s_and_b32 s44, s49, 3')
    e.I('s_xor_b32 s45, s44, 2')
    e.I(f's_mul_i32 s44, s44, {MEM_SLOT}')
    e.I('s_add_u32 s44, s44, s61')
    e.I(f's_mul_i32 s45, s45, {MEM_SLOT}')
    e.I('s_add_u32 s45, s45, s61')
    pl, pd, fr = e.lab('Lxp'), e.lab('Lxd'), e.lab('Lxf')
    e.I(f's_mov_b32 s31, {TMO}')
    e.I('s_mov_b64 exec, 0xfff')
    e.I(f'buffer_load_dword v{T0}, v9, {WS}, s40 offen sc1')
    e.L(pl)
    for a_, b_ in ((T0, T0 + 1), (T0 + 1, T0)):
        e.I(f'buffer_load_dword v{b_}, v9, {WS}, s40 offen sc1')
        e.I('s_waitcnt vmcnt(1)')
        e.I(f'v_cmp_eq_u32 vcc, -1, v{a_}')
        e.I(f's_cbranch_vccz {pd}')
    e.I('s_sub_u32 s31, s31, 1')
    e.I(f's_cbranch_scc0 {pl}')
    e.I('s_mov_b32 s31, 2')
    e.I('s_branch L_fail')
    e.L(pd)
    e.I('s_mov_b64 exec, -1')
    TS(e, 1)
    e.L(fr)
    for p in range(6):
        e.I(f'buffer_load_dwordx4 {vr(XF+4*p)}, v2, {WS}, {"s40" if p < 4 else "s54"} offen offset:{(p%4)*1024} sc1')
    for p in range(6):
        x = vr(XF + 4*p)
        e.I(f's_waitcnt vmcnt({5-p})')
        e.I(f'{MFMA} {vr(S)}, {x}, {x}, {vr(CI) if p == 0 else vr(S)}')
        e.I(f'{MFMA} {vr(S+4)}, {vr(KXF+4*p)}, {x}, {0 if p == 0 else vr(S+4)}')
        e.I(f'{MFMA} {vr(S+8)}, {vr(KXF+24+4*p)}, {x}, {0 if p == 0 else vr(S+8)}')
        r = XF + 4 * p
        if p == 0:
            e.I(f'v_max3_u32 v{T0+2}, v{r}, v{r+1}, v{r+2}')
            e.I(f'v_max_u32 v{T0+2}, v{T0+2}, v{r+3}')
        else:
            e.I(f'v_max3_u32 v{T0+2}, v{T0+2}, v{r}, v{r+1}')
            e.I(f'v_max3_u32 v{T0+2}, v{T0+2}, v{r+2}, v{r+3}')
    for q in range(3):
        e.I(f'buffer_load_dwordx4 {vr(VMF+4*q)}, v2, {WS}, s55 offen offset:{q*1024} sc1')
    e.I(f'v_cmp_eq_u32 vcc, -1, v{T0+2}')
    ok = e.lab('Lxo')
    e.I(f's_cbranch_vccz {ok}')
    e.I('s_sub_u32 s31, s31, 1')
    e.I('s_nop 7')
    e.I(f's_cbranch_scc0 {fr}')
    e.I('s_mov_b32 s31, 2')
    e.I('s_branch L_fail')
    e.L(ok)
    TS(e, 2)
    e.I('s_nop 3')
    softmax12(e, S, P, T0 + 2)
    e.I(f'v_mov_b32 v{PL}, 0')
    e.I(f'v_mov_b32 v{PL+1}, 0')
    e.I(f'v_mov_b32 v{T0+2}, v{P}')
    e.I(f'v_mov_b32 v{T0+3}, v{P+1}')
    e.I(f'v_permlane32_swap_b32 v{T0+2}, v{PL}')
    e.I(f'v_permlane32_swap_b32 v{T0+3}, v{PL+1}')
    TS(e, 3)
    vl, vd = e.lab('Lvp'), e.lab('Lvd')
    e.L(vl)
    e.I('s_waitcnt vmcnt(0)')
    check_sent(e, range(VMF, VMF + 12), T0 + 2, T0 + 3)
    e.I(f's_cbranch_vccz {vd}')
    for q in range(3):
        e.I(f'buffer_load_dwordx4 {vr(VMF+4*q)}, v2, {WS}, s55 offen offset:{q*1024} sc1')
    e.I('s_sub_u32 s31, s31, 1')
    e.I(f's_cbranch_scc0 {vl}')
    e.I('s_mov_b32 s31, 3')
    e.I('s_branch L_fail')
    e.L(vd)
    TS(e, 4)
    e.I(f'buffer_store_dwordx4 {vr(SENT)}, v13, {WS}, s43 offen sc1')
    def pv(p):
        d = DO + 8 * (p % 2); j = p >> 1
        pm = vr(PL, 2) if p % 2 == 0 else vr(P, 2)
        for t in range(2): e.I(f'{MFMA16} {vr(d+4*t)}, {vr(VMF+4*j+2*t,2)}, {pm}, 0')
        for t in range(2): e.I(f'{MFMA} {vr(d+4*t)}, {vr(VXF+4*(2*p+t))}, {vr(P+2)}, {vr(d+4*t)}')
    def cv(p):
        d = DO + 8 * (p % 2); o = OB + 4 * (p % 2)
        for k in range(4): e.I(f'v_cvt_pk_bf16_f32 v{o+k}, v{d+2*k}, v{d+2*k+1}')
    def wo(p):
        o = OB + 4 * (p % 2)
        for t in range(4): e.I(f'{MFMA} {vr(DW+4*t)}, {ar((p*4+t)*4)}, {vr(o)}, {0 if p == 0 else vr(DW+4*t)}')
    e.I(f's_and_b32 s46, s49, {RD-1}')
    e.I(f's_mul_i32 s46, s46, {SEG_QX}')
    e.I('s_add_u32 s46, s46, s62')
    e.I(f's_add_u32 s46, s46, {KX}')
    e.I('s_add_u32 s56, s46, 4096')
    e.I('s_add_u32 s64, s46, 8192')
    def kx(q): e.I(f'buffer_load_dwordx4 {vr(KXF+4*q)}, v2, {WS}, {("s46", "s56", "s64")[q//4]} offen offset:{(q%4)*1024} sc1')
    kq = list(range(opt.kin))
    pv(0)
    if len(kq) > 6: kx(kq.pop(0))
    pv(1)
    for p in range(6):
        cv(p)
        if p + 2 < 6:
            if p == 0: e.I('s_nop 0')
            pv(p + 2)
            if len(kq) > 6 - p: kx(kq.pop(0))
        wo(p)
        if kq: kx(kq.pop(0))
    for t in range(4): e.I(f'ds_write_b128 v6, {vr(DW+4*t)} offset:{t*1024}')
    e.I('s_waitcnt lgkmcnt(0)')
    e.I('s_barrier')
    for q in range(4): e.I(f'ds_read_b128 {vr(XF+4*q)}, v7 offset:{q*4096}')
    e.I('s_waitcnt lgkmcnt(2)')
    for k in range(4): e.I(f'v_add_f32 v{XF+k}, v{XF+k}, v{XF+4+k}')
    e.I('s_waitcnt lgkmcnt(0)')
    for k in range(4): e.I(f'v_add_f32 v{XF+8+k}, v{XF+8+k}, v{XF+12+k}')
    for k in range(4): e.I(f'v_add_f32 v{XF+k}, v{XF+k}, v{XF+8+k}')
    e.I(f'buffer_store_dwordx4 {vr(XF)}, v13, {WS}, s42 offen sc1')
    TS(e, 5)
    assert not kq
    kv_loads(KXF, KX, opt.kin, opt.kpre)
    if opt.pdelay: e.I(f's_sleep {opt.pdelay}')
    R = opt.pr
    sets = [PA, DO, DO + 16, S - 12][:R]
    bases = {0: ['s41'] * 4, 1: ['s41', 's47', 's41', 's41'], 2: ['s41', 's47', 's41', 's47']}[opt.pfar]
    def shot(k):
        b = sets[k % R]
        for m in range(4): e.I(f'buffer_load_dwordx4 {vr(b+4*m)}, v4, {WS}, s41 offen offset:{m*512} sc1')
    ql, qd = e.lab('Lpp'), e.lab('Lpd')
    done = [e.lab('Lps') for _ in range(R)]
    for k in range(R - 1): shot(k)
    if opt.pdiag: e.I('s_mov_b32 s94, 0')
    e.L(ql)
    NIT = 12 if R == 3 else 4
    for k in range(NIT):
        shot(k + R - 1)
        if opt.pdiag:
            e.I('s_add_u32 s94, s94, 1')
            if k == 0:
                e.I('s_waitcnt vmcnt(4)')
                e.I('s_cmp_eq_u32 s94, 1')
                lb = e.lab('Lpdg'); e.I(f's_cbranch_scc0 {lb}'); TS(e, 8); e.L(lb)
        e.I(f's_waitcnt vmcnt({4*(R-1)})')
        check_sent(e, range(sets[k % R], sets[k % R] + 16), T0, T0 + 1)
        e.I(f's_cbranch_vccz {done[k % R]}')
    e.I('s_sub_u32 s31, s31, 1')
    e.I(f's_cbranch_scc0 {ql}')
    e.I('s_mov_b32 s31, 4')
    e.I('s_branch L_fail')
    for r_ in range(R):
        e.L(done[r_])
        b = sets[r_]
        for k in range(4):
            e.I(f'v_add_f32 v{T0+4+k}, v{b+k}, v{b+4+k}')
            e.I(f'v_add_f32 v{T0+8+k}, v{b+8+k}, v{b+12+k}')
        if r_ < R - 1: e.I(f's_branch {qd}')
    e.L(qd)
    TS(e, 6)
    for k in range(4):
        e.I(f'v_add_f32 v{T0+4+k}, v{T0+4+k}, v{T0+8+k}')
    e.I(f'v_permlane32_swap_b32 v{T0+4}, v{T0+6}')
    e.I(f'v_permlane32_swap_b32 v{T0+5}, v{T0+7}')
    e.I(f'v_add_f32 v{T0+4}, v{T0+4}, v{T0+6}')
    e.I(f'v_add_f32 v{T0+5}, v{T0+5}, v{T0+7}')
    e.I(f'v_cvt_pk_bf16_f32 v{T0+4}, v{T0+4}, v{T0+5}')
    e.I(f'v_min_u32 v{T0+4}, -2, v{T0+4}')
    e.I(f'buffer_store_dword v{T0+4}, v8, {WS}, s44 offen{fl}')
    TS(e, 7)
    e.I(f'buffer_store_dword v{SENT}, v8, {WS}, s45 offen{fl}')
    e.I('s_barrier')
    if opt.vdelay: e.I(f's_sleep {opt.vdelay}')
    e.I('s_add_u32 s50, s49, 1')
    e.I('s_lshl_b32 s50, s50, 11')
    e.I('s_add_u32 s50, s50, s63')
    e.I(f'buffer_load_dword v{T0}, v{ONE+1}, {WS}, s50 offen sc1')
    kv_loads(KXF, KX, opt.kpre, 12)
    kv_loads(VXF, VX)
    fok = e.lab('Lfk')
    e.I(f's_waitcnt vmcnt({24 - opt.kpre})')
    e.I(f'v_cmp_eq_u32 vcc, 0, v{T0}')
    e.I('s_and_b32 vcc_lo, vcc_lo, 0xfff')
    e.I('s_cmp_eq_u32 vcc_lo, 0')
    e.I(f's_cbranch_scc1 {fok}')
    wait_flags(e, ONE + 1, 's50', 0xfff, T0, 11)
    e.L(fok)
    if not opt.pdiag: TS(e, 8)
    TSflush(e, 's30', 244, 245)
    e.I('s_add_u32 s30, s30, 1')
    e.I('s_cmp_lt_u32 s30, 63')
    e.I(f's_cbranch_scc1 {top}')
    e.I('s_endpgm')

def role_xw(e):
    OF = 16
    D = 112
    T0 = 160; ONE = 252
    e.I('s_sub_u32 s24, s21, 22')
    srd(e, 8, 66, 6144 * 1280)
    e.I(f's_mul_i32 s28, s20, {768*1280}')
    e.I('s_lshl_b32 s29, s24, 8')
    e.I('s_add_u32 s28, s28, s29')
    e.I('s_add_u32 s29, s28, 128')
    load_weights(e, [('s[8:11]', 's28', 0, 768), ('s[8:11]', 's29', 96, 768)], 1280, 256, True, 3, 4)
    e.I(f'v_lshlrev_b32 v{ONE+1}, 2, v1')
    e.I('s_lshl_b32 s38, s20, 2')
    e.I('s_add_u32 s38, s38, s22')
    e.I('s_lshl_b32 s39, s38, 2')
    e.I('v_lshlrev_b32 v3, 7, v1')
    e.I('v_add_u32 v3, s39, v3')
    e.I(f'v_mov_b32 v{ONE}, 1')
    e.I('s_mul_i32 s62, s22, 12288')
    e.I('s_mul_i32 s63, s38, 12288')
    e.I(f's_add_u32 s63, s63, {OX}')
    e.I('s_mul_i32 s64, s20, 81920')
    e.I('s_lshl_b32 s65, s24, 3')
    e.I('s_add_u32 s65, s65, s22')
    e.I('s_lshl_b32 s65, s65, 10')
    e.I('s_add_u32 s64, s64, s65')
    e.I(f's_add_u32 s64, s64, {PX}')
    e.I('s_lshl_b32 s66, s24, 8')
    e.I(f's_add_u32 s66, s66, {FLGPX}')
    def pxflag():
        e.I('s_mov_b64 exec, 3')
        e.I(f'buffer_store_dword v{ONE}, v3, {WS}, s54 offen sc1')
        e.I('s_mov_b64 exec, -1')
    top, nof = e.lab('Lxt'), e.lab('Lxn')
    e.I('s_mov_b32 s30, 0')
    e.L(top)
    TS(e, 0)
    e.I('s_lshl_b32 s50, s30, 3')
    e.I('s_add_u32 s50, s50, s20')
    e.I('s_lshl_b32 s50, s50, 6')
    e.I(f's_add_u32 s50, s50, {FLGOX}')
    wait_flags(e, ONE + 1, 's50', 0xf, T0, 5, sleep=2)
    TS(e, 1)
    e.I('s_cmp_eq_u32 s30, 0')
    e.I(f's_cbranch_scc1 {nof}')
    pxflag()
    e.L(nof)
    e.I('s_barrier')
    e.I(f's_and_b32 s50, s30, {RD-1}')
    e.I(f's_mul_i32 s50, s50, {SEG_QX}')
    e.I('s_add_u32 s50, s50, s63')
    for m in range(12):
        e.I(f's_add_u32 m0, s62, {m*1024}')
        e.I(f'buffer_load_dwordx4 v2, {WS}, s50 offen sc1 lds')
        if m < 11: e.I('s_add_u32 s50, s50, 1024')
    e.I(f's_mul_i32 s50, s30, {SEG_PX}')
    e.I('s_add_u32 s50, s50, s64')
    e.I('s_add_u32 s51, s50, 40960')
    e.I('s_add_u32 s52, s50, 4096')
    e.I('s_add_u32 s53, s51, 4096')
    e.I('s_mul_i32 s54, s30, 1280')
    e.I('s_add_u32 s54, s54, s66')
    e.I('s_waitcnt vmcnt(0)')
    e.I('s_barrier')
    TS(e, 2)
    PF = 6
    def rd(kk):
        hl, p = kk // 6, kk % 6
        for qt in range(2):
            e.I(f'ds_read_b128 {vr(OF + ((2*kk+qt) % 24)*4)}, v2 offset:{hl*12288 + (qt*6+p)*1024}')
    for kk in range(PF): rd(kk)
    for kk in range(24):
        nxt = min(24, kk + PF) - (kk + 1)
        e.I(f's_waitcnt lgkmcnt({2*nxt})')
        for qt in range(2):
            for b in range(2):
                d = vr(D + 4*(qt*2+b))
                e.I(f'{MFMA} {d}, {ar(96*b+4*kk)}, {vr(OF + ((2*kk+qt) % 24)*4)}, {0 if kk == 0 else d}')
        if kk + PF < 24: rd(kk + PF)
    for q, so in enumerate(('s50', 's52', 's51', 's53')):
        e.I(f'buffer_store_dwordx4 {vr(D+4*q)}, v2, {WS}, {so} offen sc1')
    TS(e, 3)
    TSflush(e, 's30')
    e.I('s_add_u32 s30, s30, 1')
    e.I('s_cmp_lt_u32 s30, 64')
    e.I(f's_cbranch_scc1 {top}')
    e.I('s_waitcnt vmcnt(0)')
    pxflag()
    e.I('s_endpgm')

def role_att(e, slow):
    fl = ' sc1' if slow else ''
    QF, XPF, KF, VXF, VMF = 16, 64, 88, 136, 184
    S, P, T0 = 208, 220, 226
    PL = 196
    DO = 0
    C0, C1 = 232, 236
    ONE = 252
    e.I('s_sub_u32 s25, s21, 27')
    e.I('s_lshl_b32 s26, s20, 2')
    e.I('s_add_u32 s26, s26, s22')
    e.I(f's_mov_b32 s52, {SC_L2E:#x}'); e.I(f's_mov_b32 s53, {SC_L2E | 0x80000000:#x}')
    e.I('v_lshlrev_b32 v9, 3, v1')
    e.I(f'v_lshlrev_b32 v{ONE+1}, 2, v1')
    e.I('s_lshl_b32 s38, s22, 2')
    e.I(f'v_mov_b32 v{ONE+2}, s38')
    e.I(f'v_mov_b32 v{ONE}, 1')
    lane_ig(e, 14, 15)
    e.I(f'v_mov_b32 v3, {NEG_BIG:#x}')
    e.I('v_cmp_gt_u32 vcc, 32, v1')
    e.I(f'v_cndmask_b32 v{C0}, 0, v3, vcc')
    for k in range(1, 4): e.I(f'v_mov_b32 v{C0+k}, v{C0}')
    e.I('v_lshlrev_b32 v5, 2, v15')
    for r in range(4):
        e.I(f'v_add_u32 v6, {r}, v5')
        e.I('v_cmp_gt_u32 vcc, v6, v14')
        e.I(f'v_cndmask_b32 v{C1+r}, 0, v3, vcc')
    e.I('s_mul_i32 s58, s26, 6144')
    e.I('v_lshlrev_b32 v10, 7, v1')
    def touch(sq, sx, dx, dm, do):
        n = 0
        jobs = []
        if dx is not None: jobs += [(sq, 0, b_ + dx * SEG_QX, 2) for b_ in (KX, VX, QX)]
        if do is not None: jobs += [(sq, 0, OX + do * SEG_QX, 2)]
        if dm is not None: jobs += [(sx, 0, XP + dm * SEG_XP, 1), (sx, 1, VM + dm * SEG_VM, 1)]
        for (sb, half, add, cnt) in jobs:
            if half:
                e.I(f's_lshr_b32 s48, {sb}, 1'); e.I(f's_add_u32 s48, s48, {add}')
            else:
                e.I(f's_add_u32 s48, {sb}, {add}')
            for c_ in range(cnt):
                if c_: e.I('s_add_u32 s48, s48, 4096')
                e.I(f'buffer_load_dword v11, v10, {WS}, s48 offen sc1'); n += 1
        return n
    if opt.touch:
        e.I(f's_mul_i32 s40, s25, {SEG_QX}')
        e.I('s_lshl_b32 s41, s58, 1')
        e.I('s_add_u32 s40, s40, s41')
        e.I(f's_mul_i32 s41, s25, {SEG_XP}')
        e.I('s_add_u32 s41, s41, s58')
        for k_ in range(0, RD, 2): touch('s40', 's41', k_, None, None)
        e.I('s_waitcnt vmcnt(0)')
        for k_ in range(0, RD, 2): touch('s40', 's41', None, k_, k_)
    e.I('v_lshrrev_b32 v12, 2, v1')
    e.I('v_lshlrev_b32 v12, 8, v12')
    e.I('v_and_b32 v13, 3, v1')
    e.I('v_lshl_add_u32 v12, v13, 2, v12')
    e.I('s_lshl_b32 s38, s20, 4')
    e.I('v_add_u32 v12, s38, v12')
    top = e.lab('Lat')
    e.I('s_mov_b32 s30, s25')
    e.L(top)
    TS(e, 0)
    e.I('s_add_u32 s51, s30, 2')
    e.I('s_lshl_b32 s51, s51, 5')
    e.I('s_add_u32 s51, s51, s26')
    e.I('s_lshl_b32 s51, s51, 6')
    e.I(f's_add_u32 s51, s51, {FLGQ}')
    e.I(f's_and_b32 s42, s30, {RD-1}')
    e.I(f's_mul_i32 s40, s42, {SEG_QX}')
    e.I('s_lshl_b32 s41, s58, 1')
    e.I('s_add_u32 s40, s40, s41')
    e.I(f's_mul_i32 s41, s42, {SEG_XP}')
    e.I('s_add_u32 s41, s41, s58')
    nbp = e.lab('Lab')
    e.I(f's_cmp_lt_u32 s30, {RD}')
    e.I(f's_cbranch_scc1 {nbp}')
    e.I(f's_sub_u32 s50, s30, {RD}')
    e.I('s_mul_i32 s50, s50, 1280')
    e.I(f's_add_u32 s50, s50, {FLGPX}')
    wait_flags(e, 12, 's50', 0xfffff, T0, 14, sleep=2)
    e.L(nbp)
    wait_flags(e, ONE + 1, 's51', 0xfff, T0, 6, sleep=2)
    TS(e, 1)
    def loads(dst, n, sbase, add, w=4, va=2):
        e.I(f's_add_u32 s48, {sbase}, {add}')
        per = 4096 // (256 * w)
        for q in range(n):
            if q and q % per == 0: e.I('s_add_u32 s48, s48, 4096')
            e.I(f'buffer_load_dwordx{w} {vr(dst+w*q, w)}, v{va}, {WS}, s48 offen offset:{(q%per)*256*w} sc1')
    loads(XPF, 6, 's41', XP)
    loads(KF, 6, 's40', KX)
    loads(QF, 6, 's40', QX)
    e.I('s_lshr_b32 s42, s41, 1')
    loads(VMF, 3, 's42', VM)
    loads(VXF, 12, 's40', VX)
    loads(KF + 24, 6, 's40', KX + 6144)
    loads(QF + 24, 6, 's40', QX + 6144)
    NT = 0
    for qt in range(2):
        e.I(f's_waitcnt vmcnt({(27 if qt == 0 else 6) + NT})')
        if qt == 0: TS(e, 2)
        for p in range(6):
            q = vr(QF + 24*qt + 4*p)
            e.I(f'{MFMA} {vr(S)}, {vr(XPF+4*p)}, {q}, {vr(C0) if p == 0 else vr(S)}')
            e.I(f'{MFMA} {vr(S+4)}, {vr(KF+4*p)}, {q}, {(vr(C1) if qt == 0 else 0) if p == 0 else vr(S+4)}')
            if qt == 1: e.I(f'{MFMA} {vr(S+8)}, {vr(KF+24+4*p)}, {q}, {vr(C1) if p == 0 else vr(S+8)}')
        if qt == 0:
            for k in range(4): e.I(f'v_mov_b32 v{S+8+k}, v3')
        softmax12(e, S, P, T0)
        e.I(f'v_mov_b32 v{PL}, 0')
        e.I(f'v_mov_b32 v{PL+1}, 0')
        e.I(f'v_mov_b32 v{T0}, v{P}')
        e.I(f'v_mov_b32 v{T0+1}, v{P+1}')
        e.I(f'v_permlane32_swap_b32 v{T0}, v{PL}')
        e.I(f'v_permlane32_swap_b32 v{T0+1}, v{PL+1}')
        e.I(f's_add_u32 s48, s40, {OX + qt*6144}')
        e.I('s_add_u32 s49, s48, 4096')
        if qt == 0: e.I(f's_waitcnt vmcnt({12 + NT})')
        def fin(p):
            dp = DO + 8 * (p % 2); op_ = QF + 24*qt + 4 * p
            for k in range(8): e.I(f'v_accvgpr_read_b32 v{240+k}, a{dp+k}')
            for k in range(4): e.I(f'v_cvt_pk_bf16_f32 v{op_+k}, v{240+2*k}, v{240+2*k+1}')
            e.I(f'buffer_store_dwordx4 {vr(op_)}, v2, {WS}, {"s48" if p < 4 else "s49"} offen offset:{(p%4)*1024}{fl}')
        for p in range(6):
            d = DO + 8 * (p % 2)
            for t in range(2):
                e.I(f'{MFMA16} {ar(d+4*t)}, {vr(VMF+4*(p>>1)+2*t,2)}, {vr(PL,2) if p % 2 == 0 else vr(P,2)}, 0')
            for t in range(2):
                e.I(f'{MFMA} {ar(d+4*t)}, {vr(VXF+4*(2*p+t))}, {vr(P+2)}, {ar(d+4*t)}')
            if p > 0: fin(p - 1)
        fin(5)
    e.I('s_lshl_b32 s50, s30, 3')
    e.I('s_add_u32 s50, s50, s20')
    e.I('s_lshl_b32 s50, s50, 6')
    e.I(f's_add_u32 s50, s50, {FLGOX}')
    e.I('s_waitcnt vmcnt(0)')
    set_flag(e, ONE + 2, 's50', ONE, fl)
    TS(e, 3)
    TSflush(e, 's30', 230, 231)
    e.I('s_add_u32 s30, s30, 2')
    e.I('s_cmp_lt_u32 s30, 64')
    e.I(f's_cbranch_scc1 {top}')
    e.I('s_endpgm')

F_LX, F_LH = 0, 98304
def role_ffn(e):
    ACC2 = 0
    ACC1 = 16
    BF = 48
    HP = 80
    WR = 96
    NW = 40
    e.I('s_sub_u32 s26, s21, 29')
    e.I('s_mul_i32 s25, s20, 3')
    e.I('s_add_u32 s26, s26, s25')
    e.I('s_mov_b32 s24, s26')
    e.L('L_ffn_task')
    e.I('s_lshl_b32 s38, s24, 2')
    e.I('s_add_u32 s38, s38, s22')
    e.I('s_mul_i32 s39, s38, 20480')
    e.I(f's_add_u32 s39, s39, {XN}')
    e.I('s_mul_i32 s40, s22, 20480')
    for m in range(20):
        e.I(f's_add_u32 m0, s40, {m*1024}')
        e.I(f'buffer_load_dwordx4 v2, {WS}, s39 offen lds')
        e.I('s_add_u32 s39, s39, 1024')
    for k in range(160): e.I(f'v_accvgpr_write_b32 a{k}, 0')
    e.I('s_mul_i32 s41, s22, 40960')
    e.I(f's_add_u32 s41, s41, {W1F}')
    e.I(f's_mul_i32 s42, s22, {10*48*1024}')
    e.I(f's_add_u32 s42, s42, {W2F}')
    e.I('v_add_u32 v3, 20480, v2')
    for u in range(10):
        e.I(f's_mov_b32 s54, {u*48*1024}')
        e.I(f'v_add_u32 v{4+u}, s54, v2')
    e.I(f'v_add_u32 v14, {F_LH}, v2')
    e.I('s_lshl_b32 s38, s22, 12')
    e.I('v_add_u32 v15, s38, v14')
    def wload(idx, adv):
        dst = vr(WR + (idx % NW) * 4)
        if idx < 40:
            kk, u = idx // 2, idx % 2
            e.I(f's_add_u32 s45, {adv[0]}, {(kk//4)*4096}')
            e.I(f'buffer_load_dwordx4 {dst}, v{2+u}, {WS}, s45 offen offset:{(kk%4)*1024}{" nt" if opt.ffnnt else ""}')
        else:
            pp, u = (idx - 40) // 10, (idx - 40) % 10
            e.I(f'buffer_load_dwordx4 {dst}, v{4+u}, {WS}, {adv[1]} offen offset:{pp*1024}{" nt" if opt.ffnnt else ""}')
    for idx in range(NW - 2): wload(idx, ('s41', 's42'))
    e.I(f's_waitcnt vmcnt({NW-2})')
    e.I('s_barrier')
    top = e.lab('Lft')
    TS(e, 0)
    e.I('s_mov_b32 s30, 0')
    e.L(top)
    e.I('s_cmp_lt_u32 s30, 11')
    e.I('s_cselect_b32 s46, 163840, 0')
    e.I('s_cselect_b32 s47, 4096, 0')
    e.I('s_add_u32 s43, s41, s46')
    e.I('s_add_u32 s44, s42, s47')
    D = NW - 2
    def pref(idx):
        j = idx + D
        if j < 80: wload(j, ('s41', 's42'))
        else: wload(j - 80, ('s43', 's44'))
    def rdx(kk):
        for rt in range(4):
            e.I(f'ds_read_b128 {vr(BF + ((kk%2)*4+rt)*4)}, v{2 if rt < 3 else 3} offset:{(rt if rt < 3 else 2)*20480 + kk*1024}')
    rdx(0)
    for kk in range(20):
        if kk + 1 < 20: rdx(kk + 1)
        e.I(f's_waitcnt vmcnt({D-2}) lgkmcnt({4 if kk+1 < 20 else 0})')
        for u in range(2):
            idx = 2 * kk + u
            for rt in range(4):
                d = vr(ACC1 + (u*4+rt)*4)
                e.I(f'{MFMA} {d}, {vr(WR+(idx%NW)*4)}, {vr(BF+((kk%2)*4+rt)*4)}, {0 if kk == 0 else d}')
        pref(2 * kk); pref(2 * kk + 1)
    for rt in range(4):
        for u in range(2):
            d = ACC1 + (u*4+rt)*4
            for k in range(4): e.I(f'v_max_f32 v{d+k}, 0, v{d+k}')
            e.I(f'v_cvt_pk_bf16_f32 v{HP+rt*4+2*u}, v{d}, v{d+1}')
            e.I(f'v_cvt_pk_bf16_f32 v{HP+rt*4+2*u+1}, v{d+2}, v{d+3}')
        e.I(f'ds_write_b128 v15, {vr(HP+rt*4)} offset:{rt*1024}')
    e.I('s_waitcnt lgkmcnt(0)')
    e.I('s_barrier')
    def rdh(pp):
        for rt in range(4):
            e.I(f'ds_read_b128 {vr(BF + ((pp%2)*4+rt)*4)}, v14 offset:{pp*4096 + rt*1024}')
    rdh(0)
    for pp in range(4):
        if pp + 1 < 4: rdh(pp + 1)
        for u in range(10):
            idx = 40 + pp * 10 + u
            w = f's_waitcnt vmcnt({D-1})'
            if u == 0: w += f' lgkmcnt({4 if pp+1 < 4 else 0})'
            e.I(w)
            for rt in range(4):
                d = ar(ACC2 + (u*4+rt)*4)
                e.I(f'{MFMA} {d}, {vr(WR+(idx%NW)*4)}, {vr(BF+((pp%2)*4+rt)*4)}, {d}')
            pref(idx)
    e.I('v_xor_b32 v14, 16384, v14')
    e.I('v_xor_b32 v15, 16384, v15')
    e.I('s_mov_b32 s41, s43')
    e.I('s_mov_b32 s42, s44')
    e.I('s_add_u32 s30, s30, 1')
    e.I('s_cmp_lt_u32 s30, 12')
    e.I(f's_cbranch_scc1 {top}')
    e.I('s_waitcnt vmcnt(0)')
    TS(e, 1)
    e.I('v_lshlrev_b32 v3, 3, v1')
    e.I(f's_mul_i32 s38, s24, {4*40*512}')
    e.I(f's_mul_i32 s39, s22, {10*512}')
    e.I('s_add_u32 s38, s38, s39')
    e.I(f's_add_u32 s38, s38, {G_}')
    e.I(f's_mov_b32 s52, {f2u(-1.4426950408889634):#x}')
    for rt in range(4):
        e.I(f's_add_u32 s39, s38, {rt*40*512}')
        e.I('s_add_u32 s40, s39, 4096')
        for u in range(10):
            t = 16 + ((rt*10+u) % 4) * 16
            a0 = ACC2 + (u*4+rt)*4
            for k in range(4): e.I(f'v_accvgpr_read_b32 v{t+k}, a{a0+k}')
            e.I(f'v_cvt_pk_bf16_f32 v{t+4}, v{t}, v{t+1}')
            e.I(f'v_cvt_pk_bf16_f32 v{t+5}, v{t+2}, v{t+3}')
            e.I(f'v_lshlrev_b32 v{t}, 16, v{t+4}')
            e.I(f'v_and_b32 v{t+1}, 0xffff0000, v{t+4}')
            e.I(f'v_lshlrev_b32 v{t+2}, 16, v{t+5}')
            e.I(f'v_and_b32 v{t+3}, 0xffff0000, v{t+5}')
            for k in range(4): e.I(f'v_mul_f32 v{t+4+k}, s52, v{t+k}')
            for k in range(4): e.I(f'v_exp_f32 v{t+4+k}, v{t+4+k}')
            for k in range(4): e.I(f'v_add_f32 v{t+4+k}, 1.0, v{t+4+k}')
            for k in range(4): e.I(f'v_rcp_f32 v{t+4+k}, v{t+4+k}')
            for k in range(4): e.I(f'v_mul_f32 v{t+k}, v{t+k}, v{t+4+k}')
            e.I(f'v_cvt_pk_bf16_f32 v{t+8}, v{t}, v{t+1}')
            e.I(f'v_cvt_pk_bf16_f32 v{t+9}, v{t+2}, v{t+3}')
            e.I(f'buffer_store_dwordx2 {vr(t+8,2)}, v3, {WS}, {"s39" if u < 8 else "s40"} offen offset:{(u%8)*512} sc1')
    e.I('s_waitcnt vmcnt(0)')
    TS(e, 2)
    if opt.ts: e.I('s_lshr_b32 s50, s24, 3'); e.I('s_add_u32 s50, s50, 64')
    TSflush(e, 's50')
    e.I('s_barrier')
    e.I('s_cmp_lg_u32 s22, 0')
    e.I('s_cbranch_scc1 L_ffn_nf')
    e.I('v_mov_b32 v4, 1')
    e.I('s_lshl_b32 s38, s24, 2')
    e.I('v_mov_b32 v5, s38')
    e.I(f's_mov_b32 s39, {FLGG}')
    set_flag(e, 5, 's39', 4, ' sc1')
    e.I('s_waitcnt vmcnt(0)')
    e.L('L_ffn_nf')
    e.I('s_cmp_ge_u32 s26, 8')
    e.I('s_cbranch_scc1 L_cmb')
    e.I('s_add_u32 s24, s24, 24')
    e.I('s_cmp_lt_u32 s24, 32')
    e.I('s_cbranch_scc1 L_ffn_task')
    e.I('s_endpgm')

def role_cmb(e):
    PXR = 16
    GR = 144
    XR_ = 152
    T0 = 160
    srd(e, 8, 68, 2048 * 1280)
    srd(e, 12, 70, 2048 * 1280)
    e.I('s_sub_u32 s24, s26, 8')
    e.I('s_lshl_b32 s24, s24, 2')
    e.I('s_add_u32 s30, s24, s22')
    e.I('v_lshlrev_b32 v3, 2, v1')
    e.I('v_lshlrev_b32 v4, 3, v1')
    e.I('v_mov_b32 v6, 0')
    lane_ig(e, 14, 15)
    e.I('v_mul_u32_u24 v5, 1280, v14')
    e.I('v_lshl_add_u32 v5, v15, 3, v5')
    top = e.lab('Lct')
    e.L(top)
    TS(e, 0)
    e.I('s_mul_i32 s38, s30, 3277')
    e.I('s_lshr_b32 s38, s38, 16')
    e.I('s_mul_i32 s39, s38, 20')
    e.I('s_sub_u32 s39, s30, s39')
    e.I('s_cmp_ge_u32 s39, 10')
    e.I('s_cselect_b32 s40, 1, 0')
    e.I('s_mul_i32 s41, s40, 10')
    e.I('s_sub_u32 s41, s39, s41')
    e.I('s_lshr_b32 s42, s38, 1')
    e.I('s_lshl_b32 s42, s42, 2')
    e.I(f's_add_u32 s42, s42, {FLGG}')
    wait_flags(e, 6, 's42', 1, T0, 7, sleep=8)
    e.I('s_mul_i32 s42, s38, 10')
    e.I('s_add_u32 s42, s42, s41')
    e.I('s_lshl_b32 s42, s42, 7')
    e.I(f's_add_u32 s42, s42, {FLGPX}')
    wait_flags(e, 3, 's42', 0xffffffff, T0, 8, sleep=2)
    TS(e, 1)
    e.I(f's_mul_i32 s43, s38, {SEG_PX}')
    e.I('s_mul_i32 s44, s40, 40960')
    e.I('s_add_u32 s43, s43, s44')
    e.I('s_lshl_b32 s44, s41, 12')
    e.I('s_add_u32 s43, s43, s44')
    e.I(f's_add_u32 s43, s43, {PX}')
    e.I('s_lshl_b32 s45, s38, 1')
    e.I('s_add_u32 s45, s45, s40')
    e.I('s_mul_i32 s46, s45, 20480')
    e.I('s_lshl_b32 s47, s41, 11')
    e.I('s_add_u32 s47, s47, s46')
    e.I(f's_add_u32 s47, s47, {G_}')
    e.I('s_lshl_b32 s48, s41, 7')
    e.I('s_add_u32 s48, s48, s46')
    for t in range(4):
        e.I(f'buffer_load_dwordx2 {vr(GR+2*t,2)}, v4, {WS}, s47 offen offset:{t*512} sc1')
        e.I(f'buffer_load_dwordx2 {vr(XR_+2*t,2)}, v5, s[8:11], s48 offen offset:{t*32}')
    for x in range(8):
        for t in range(4):
            e.I(f'buffer_load_dwordx4 {vr(PXR+(x*4+t)*4)}, v2, {WS}, s43 offen offset:{t*1024} sc1')
        if x < 7: e.I('s_add_u32 s43, s43, 81920')
    for x in range(1, 8):
        e.I(f's_waitcnt vmcnt({(7-x)*4})')
        for k in range(16):
            e.I(f'v_add_f32 v{PXR+k}, v{PXR+k}, v{PXR+x*16+k}')
    for t in range(4):
        b = PXR + 4 * t; u = T0 + 8 * (t % 2)
        e.I(f'v_cvt_pk_bf16_f32 v{u}, v{b}, v{b+1}')
        e.I(f'v_cvt_pk_bf16_f32 v{u+1}, v{b+2}, v{b+3}')
        for h_ in range(2):
            e.I(f'v_lshlrev_b32 v{b+2*h_}, 16, v{u+h_}')
            e.I(f'v_and_b32 v{b+2*h_+1}, 0xffff0000, v{u+h_}')
            e.I(f'v_lshlrev_b32 v{u+2+2*h_}, 16, v{GR+2*t+h_}')
            e.I(f'v_and_b32 v{u+3+2*h_}, 0xffff0000, v{GR+2*t+h_}')
        for k in range(4): e.I(f'v_mul_f32 v{b+k}, v{b+k}, v{u+2+k}')
        e.I(f'v_cvt_pk_bf16_f32 v{u}, v{b}, v{b+1}')
        e.I(f'v_cvt_pk_bf16_f32 v{u+1}, v{b+2}, v{b+3}')
        for h_ in range(2):
            e.I(f'v_lshlrev_b32 v{b+2*h_}, 16, v{u+h_}')
            e.I(f'v_and_b32 v{b+2*h_+1}, 0xffff0000, v{u+h_}')
            e.I(f'v_lshlrev_b32 v{u+2+2*h_}, 16, v{XR_+2*t+h_}')
            e.I(f'v_and_b32 v{u+3+2*h_}, 0xffff0000, v{XR_+2*t+h_}')
        for k in range(4): e.I(f'v_add_f32 v{b+k}, v{b+k}, v{u+2+k}')
        e.I(f'v_cvt_pk_bf16_f32 v{u+6}, v{b}, v{b+1}')
        e.I(f'v_cvt_pk_bf16_f32 v{u+7}, v{b+2}, v{b+3}')
        e.I(f'buffer_store_dwordx2 {vr(u+6,2)}, v5, s[12:15], s48 offen offset:{t*32}')
    TS(e, 2)
    if opt.ts: e.I('s_lshr_b32 s50, s30, 6')
    TSflush(e, 's50')
    e.I('s_add_u32 s30, s30, 64')
    e.I('s_cmp_lt_u32 s30, 1280')
    e.I(f's_cbranch_scc1 {top}')
    e.I('s_endpgm')

def gen_mainkernel(e):
    kernel_head(e, MAIN)
    e.I('s_cmp_ge_u32 s2, 256')
    e.I('s_cbranch_scc1 L_end')
    e.I('s_load_dwordx2 s[32:33], s[0:1], 96')
    e.I('s_load_dwordx4 s[60:63], s[0:1], 16')
    e.I('s_load_dwordx4 s[64:67], s[0:1], 32')
    e.I('s_load_dwordx2 s[68:69], s[0:1], 0')
    e.I('s_load_dwordx4 s[72:75], s[0:1], 80')
    TS(e, 0)
    e.I('s_getreg_b32 s24, hwreg(HW_REG_XCC_ID)')
    e.I('s_and_b32 s24, s24, 15')
    e.I('v_and_b32 v1, 63, v0')
    e.I('v_lshlrev_b32 v2, 4, v1')
    e.I('v_lshrrev_b32 v3, 6, v0')
    e.I('v_readfirstlane_b32 s22, v3')
    e.I('s_waitcnt lgkmcnt(0)')
    e.I('s_mov_b64 s[70:71], s[72:73]')
    srd(e, 4, 32, WS_BYTES)
    e.I('s_cmp_lg_u32 s22, 0')
    e.I('s_cbranch_scc1 L_role')
    e.I('s_mov_b64 exec, 1')
    e.I('s_lshl_b32 s25, s24, 7')
    e.I('v_mov_b32 v3, s25')
    e.I('v_mov_b32 v4, 1')
    e.I(f'buffer_atomic_add v4, v3, {WS}, 0 offen sc0')
    e.I('s_mov_b64 exec, 0xffff')
    e.I('v_lshlrev_b32 v3, 7, v1')
    e.I('s_waitcnt vmcnt(0)')
    e.I('v_readfirstlane_b32 s25, v4')
    e.I(f's_mov_b32 s31, {TMO}')
    e.L('L_cnt')
    e.I(f'buffer_load_dword v5, v3, {WS}, 0 offen sc1')
    e.I('s_waitcnt vmcnt(0)')
    for y in range(16): e.I(f'v_readlane_b32 s{36+y}, v5, {y}')
    e.I('s_nop 3')
    e.I('s_mov_b32 s26, 0'); e.I('s_mov_b32 s27, s25'); e.I('s_mov_b32 s23, 0')
    for y in range(16):
        e.I(f's_add_u32 s26, s26, s{36+y}')
        e.I(f's_cmp_gt_u32 s24, {y}')
        e.I(f's_cselect_b32 s28, s{36+y}, 0')
        e.I('s_add_u32 s27, s27, s28')
        if y < 8:
            e.I(f's_cmp_lg_u32 s{36+y}, 32')
            e.I('s_cselect_b32 s23, 1, s23')
    e.I('s_cmp_eq_u32 s26, 256')
    e.I('s_cbranch_scc1 L_cntd')
    e.I('s_sub_u32 s31, s31, 1')
    e.I('s_cbranch_scc0 L_cnt')
    e.I('s_mov_b32 s23, 2')
    e.L('L_cntd')
    if opt.force_slow:
        e.I('s_mov_b32 s23, 1')
        e.I('s_mov_b32 s27, s2')
    e.I('s_lshr_b32 s20, s27, 5')
    e.I('s_and_b32 s21, s27, 31')
    e.I('v_mov_b32 v4, s20'); e.I('v_mov_b32 v5, s21'); e.I('v_mov_b32 v6, s23'); e.I('v_mov_b32 v7, 0')
    e.I(f'v_mov_b32 v3, {LDS_ROLE}')
    e.I('ds_write_b128 v3, v[4:7]')
    e.I('s_waitcnt lgkmcnt(0)')
    e.I('s_mov_b64 exec, -1')
    e.L('L_role')
    e.I('s_barrier')
    e.I(f'v_mov_b32 v3, {LDS_ROLE}')
    e.I('ds_read_b128 v[4:7], v3')
    e.I('s_waitcnt lgkmcnt(0)')
    e.I('v_readfirstlane_b32 s20, v4')
    e.I('v_readfirstlane_b32 s21, v5')
    e.I('v_readfirstlane_b32 s23, v6')
    e.I('s_nop 3')
    e.I('s_and_b32 s20, s20, 7')
    e.I('s_cmp_ge_u32 s23, 2')
    e.I('s_cbranch_scc1 L_end')
    TS(e, 1)
    TSflush(e, '70')
    if opt.nobg: e.I('s_cmp_ge_u32 s21, 22'); e.I('s_cbranch_scc1 L_end')
    e.I('s_cmp_ge_u32 s21, 29'); e.I('s_cbranch_scc1 L_ffn')
    e.I('s_sub_u32 s24, s21, 22'); e.I('s_cmp_lt_u32 s24, 5'); e.I('s_cbranch_scc1 L_xw')
    e.I('s_cmp_lg_u32 s23, 0'); e.I('s_cbranch_scc1 L_slow')
    for slow in (False, True):
        sfx = 's' if slow else 'f'
        if slow: e.L('L_slow')
        e.I('s_cmp_ge_u32 s21, 22'); e.I(f's_cbranch_scc1 L_att{sfx}')
        e.I('s_cmp_ge_u32 s21, 12'); e.I(f's_cbranch_scc1 L_wo{sfx}')
        role_qkv(e, slow)
        e.L(f'L_wo{sfx}'); role_sw(e, slow)
        e.L(f'L_att{sfx}'); role_att(e, slow)
    e.L('L_xw'); role_xw(e)
    e.L('L_ffn'); role_ffn(e)
    e.L('L_cmb'); role_cmb(e)
    e.L('L_fail')
    e.I('s_mov_b64 exec, 1')
    e.I('s_lshl_b32 s31, s31, 2')
    e.I('v_mov_b32 v3, s31')
    e.I('v_mov_b32 v4, 1')
    e.I('global_atomic_add v3, v4, s[74:75]')
    e.L('L_end')
    e.I('s_endpgm')

def build(path):
    hdr = open('cdna_kernels/' + NAME + '.s.ref').read().split('\n')
    e = Em()
    for l in hdr:
        if l.startswith(';') and '@launch' not in l and 'Override launch' not in l and 'grid=ceil' not in l: e.raw(l)
    e.raw(f'; @launch kernel={PRE} grid=({PRE_GRID},1,1) block=(256,1,1) lds={PRE_LDS}')
    e.raw(f'; @launch kernel={MAIN} grid=(256,1,1) block=(256,1,1) lds={LDS_TOTAL}')
    e.raw('.amdgcn_target "amdgcn-amd-amdhsa--gfx950"')
    gen_pre(e, PRE)
    gen_mainkernel(e)
    kernel_desc(e, PRE, 80, 48, 80)
    kernel_desc(e, MAIN, 512, 96, 256)
    lines, added = hazard.pad(e.lines)
    open(path, 'w').write('\n'.join(lines) + '\n')
    n = sum(1 for l in lines if l.startswith('    ') and not l.strip().startswith(';'))
    print(f'wrote {path}: {n} instructions, {added} nops added')

if __name__ == '__main__':
    out = sys.argv[1] if len(sys.argv) > 1 else 'cdna_kernels/' + NAME + '.s'
    if 'slow' in sys.argv[2:]: opt.force_slow = True
    if 'ts' in sys.argv[2:]: opt.ts = True
    for k in ('nobg', 'ackpoll', 'noxw'):
        if k in sys.argv[2:]: setattr(opt, k, True)
    for a_ in sys.argv[2:]:
        if '=' in a_: k_, v_ = a_.split('='); setattr(opt, k_, int(v_))
    build(out)
```

```python
from asmlib import *
from layout import *
N_LN, N_TR, N_Z, N_S, N_M = 128, 240, 8, N_SENT_WG, 8
PRE_GRID = N_LN + N_TR + N_Z + N_S + N_M
PRE_LDS = 16384
def bf16_round(e, dst, src, tmp=None):
    e.I(f'v_cvt_pk_bf16_f32 {dst}, {src}, {src}')
    e.I(f'v_and_b32 {dst}, 0xffff0000, {dst}')
def xlane_sum(e, x, t):
    e.I(f'v_add_f32_dpp v{x}, v{x}, v{x} row_ror:8 row_mask:0xf bank_mask:0xf')
    e.I(f'v_add_f32_dpp v{x}, v{x}, v{x} row_ror:4 row_mask:0xf bank_mask:0xf')
    e.I(f'v_mov_b32 v{t}, v{x}')
    e.I(f'v_permlane16_swap_b32 v{x}, v{t}')
    e.I(f'v_add_f32 v{x}, v{x}, v{t}')
    e.I(f'v_mov_b32 v{t}, v{x}')
    e.I(f'v_permlane32_swap_b32 v{x}, v{t}')
    e.I(f'v_add_f32 v{x}, v{x}, v{t}')
def gen_pre(e, name):
    kernel_head(e, name)
    e.I(f's_cmp_ge_u32 s2, {PRE_GRID}')
    e.I('s_cbranch_scc1 P_end')
    e.I('s_load_dwordx4 s[24:27], s[0:1], 0')
    e.I('s_load_dwordx4 s[28:31], s[0:1], 64')
    e.I('s_load_dwordx2 s[32:33], s[0:1], 96')
    e.I('v_and_b32 v1, 63, v0')
    e.I('v_lshrrev_b32 v2, 6, v0')
    e.I('v_readfirstlane_b32 s22, v2')
    e.I('s_waitcnt lgkmcnt(0)')
    srd(e, 4, 32, WS_BYTES)
    srd(e, 8, 24, 2048 * 1280)
    srd(e, 12, 26, 8 * 1280)
    srd(e, 16, 28, 640 * 3072)
    srd(e, 36, 30, 1536 * 1280)
    e.I(f's_cmp_ge_u32 s2, {N_LN}')
    e.I('s_cbranch_scc1 P_notln')
    e.I('v_and_b32 v3, 3, v1')
    e.I('v_lshrrev_b32 v4, 2, v1')
    e.I('s_lshl_b32 s40, s22, 2')
    e.I('v_add_u32 v3, s40, v3')
    e.I('s_mul_i32 s41, s2, 20480')
    e.I('v_mul_u32_u24 v5, 1280, v3')
    e.I('v_lshl_add_u32 v5, v4, 4, v5')
    for m in range(5):
        e.I(f'buffer_load_dwordx4 v[{8+4*m}:{11+4*m}], v5, s[8:11], s41 offen offset:{256*m}')
    e.I('v_lshrrev_b32 v6, 2, v4')
    e.I('v_lshlrev_b32 v6, 10, v6')
    e.I('v_and_b32 v7, 3, v4')
    e.I('v_lshl_add_u32 v6, v7, 8, v6')
    e.I('v_lshl_add_u32 v6, v3, 4, v6')
    e.I(f's_add_u32 s42, s41, {XN}')
    e.I('s_waitcnt vmcnt(0)')
    F = 32
    for d in range(20):
        e.I(f'v_lshlrev_b32 v{F+2*d}, 16, v{8+d}')
        e.I(f'v_and_b32 v{F+2*d+1}, 0xffff0000, v{8+d}')
    e.I(f'v_add_f32 v72, v{F}, v{F+1}')
    e.I(f'v_add_f32 v73, v{F+2}, v{F+3}')
    for d in range(4, 40, 2):
        e.I(f'v_add_f32 v72, v72, v{F+d}')
        e.I(f'v_add_f32 v73, v73, v{F+d+1}')
    e.I('v_add_f32 v72, v72, v73')
    xlane_sum(e, 72, 73)
    e.I(f'v_mul_f32 v72, {1.0/640!r}, v72'.replace(repr(1.0/640), '0x3acccccd'))
    e.I('v_mov_b32 v74, 0')
    e.I('v_mov_b32 v75, 0')
    for d in range(0, 40, 2):
        e.I(f'v_sub_f32 v76, v{F+d}, v72')
        e.I(f'v_sub_f32 v77, v{F+d+1}, v72')
        e.I('v_fmac_f32 v74, v76, v76')
        e.I('v_fmac_f32 v75, v77, v77')
    e.I('v_add_f32 v74, v74, v75')
    xlane_sum(e, 74, 73)
    e.I('v_mul_f32 v74, 0x3acccccd, v74')
    bf16_round(e, 'v74', 'v74')
    e.I('v_add_f32 v74, 0x3727c5ac, v74')
    bf16_round(e, 'v74', 'v74')
    e.I('v_sqrt_f32 v74, v74')
    bf16_round(e, 'v74', 'v74')
    e.I('v_rcp_f32 v74, v74')
    bf16_round(e, 'v72', 'v72')
    for d in range(20):
        a_, b_ = F + 2 * d, F + 2 * d + 1
        e.I(f'v_sub_f32 v{a_}, v{a_}, v72')
        e.I(f'v_sub_f32 v{b_}, v{b_}, v72')
        e.I(f'v_cvt_pk_bf16_f32 v{8+d}, v{a_}, v{b_}')
        e.I(f'v_lshlrev_b32 v{a_}, 16, v{8+d}')
        e.I(f'v_and_b32 v{b_}, 0xffff0000, v{8+d}')
        e.I(f'v_mul_f32 v{a_}, v{a_}, v74')
        e.I(f'v_mul_f32 v{b_}, v{b_}, v74')
        e.I(f'v_cvt_pk_bf16_f32 v{8+d}, v{a_}, v{b_}')
    for m in range(5):
        e.I(f's_add_u32 s43, s42, {4096*m}')
        e.I(f'buffer_store_dwordx4 v[{8+4*m}:{11+4*m}], v6, s[4:7], s43 offen')
    e.I('s_endpgm')
    e.L('P_notln')
    e.I(f's_cmp_ge_u32 s2, {N_LN+N_TR}')
    e.I('s_cbranch_scc1 P_nottr')
    e.I(f's_sub_u32 s40, s2, {N_LN}')
    e.I('v_lshrrev_b32 v3, 3, v1')
    e.I('v_and_b32 v4, 7, v1')
    e.I('v_lshrrev_b32 v8, 4, v1')
    e.I('v_bfe_u32 v9, v1, 2, 2')
    e.I('v_and_b32 v10, 3, v1')
    e.I('v_lshlrev_b32 v2, 4, v1')
    e.I('s_lshl_b32 s44, s22, 12')
    e.I('s_cmp_ge_u32 s40, 120')
    e.I('s_cbranch_scc1 P_w2')
    for which in (1, 2):
        if which == 2:
            e.L('P_w2')
            e.I('s_sub_u32 s40, s40, 120')
        RS = 3072 if which == 1 else 1280
        S = 16 if which == 1 else 36
        div = 5 if which == 1 else 12
        mul, sh = (205, 10) if which == 1 else (171, 11)
        e.I(f's_mul_i32 s41, s40, {mul}')
        e.I(f's_lshr_b32 s41, s41, {sh}')
        e.I(f's_mul_i32 s42, s41, {div}')
        e.I('s_sub_u32 s42, s40, s42')
        e.I(f'v_mul_u32_u24 v5, {RS}, v3')
        e.I('v_lshl_add_u32 v5, v4, 4, v5')
        e.I('s_lshl_b32 s43, s42, 2')
        e.I('s_add_u32 s43, s43, s22')
        e.I(f's_mul_i32 s45, s43, {32*RS}')
        e.I('s_lshl_b32 s46, s41, 7')
        e.I('s_add_u32 s45, s45, s46')
        for n in range(4):
            e.I(f's_add_u32 m0, s44, {n*1024}')
            e.I(f's_add_u32 s46, s45, {n*8*RS}')
            e.I(f'buffer_load_dwordx4 v5, s[{S}:{S+3}], s46 offen lds')
        if which == 1:
            e.I('v_lshl_add_u32 v11, v8, 3, v9')
            second = 512
        else:
            e.I('v_lshl_add_u32 v11, v8, 2, v9')
            second = 2048
        e.I('v_lshlrev_b32 v11, 7, v11')
        e.I('v_lshl_add_u32 v11, v10, 3, v11')
        e.I('s_lshl_b32 s46, s22, 5')
        e.I('v_add_u32 v11, s46, v11')
        e.I('s_waitcnt vmcnt(0)')
        e.I('s_barrier')
        for b in range(4):
            e.I(f'ds_read_b64_tr_b16 v[{16+4*b}:{17+4*b}], v11 offset:{b*4096}')
            e.I(f'ds_read_b64_tr_b16 v[{18+4*b}:{19+4*b}], v11 offset:{b*4096+second}')
        NK = 20 if which == 1 else 48
        e.I('s_lshl_b32 s46, s41, 2')
        e.I('s_add_u32 s46, s46, s22')
        e.I(f's_mul_i32 s46, s46, {NK}')
        e.I('s_lshl_b32 s47, s42, 2')
        e.I('s_add_u32 s46, s46, s47')
        e.I('s_lshl_b32 s46, s46, 10')
        e.I(f's_add_u32 s46, s46, {W1F if which == 1 else W2F}')
        e.I('s_waitcnt lgkmcnt(0)')
        for b in range(4):
            e.I(f'buffer_store_dwordx4 v[{16+4*b}:{19+4*b}], v2, s[4:7], s46 offen offset:{b*1024}')
        e.I('s_endpgm')
    e.L('P_nottr')
    e.I(f's_cmp_ge_u32 s2, {N_LN+N_TR+N_Z+N_S}')
    e.I('s_cbranch_scc1 P_mem0')
    e.I(f's_sub_u32 s40, s2, {N_LN+N_TR}')
    e.I('s_lshl_b32 s41, s40, 15')
    e.I('s_mov_b32 s42, 0')
    e.I(f's_cmp_lt_u32 s40, {N_Z}')
    e.I('s_cbranch_scc1 P_fill')
    e.I(f's_add_u32 s41, s41, {SENT0 - N_Z*32768}')
    e.I('s_mov_b32 s42, -1')
    e.L('P_fill')
    for k in range(4): e.I(f'v_mov_b32 v{8+k}, s42')
    e.I('v_lshlrev_b32 v2, 4, v0')
    for k in range(8):
        e.I(f's_add_u32 s43, s41, {k*4096}')
        e.I('buffer_store_dwordx4 v[8:11], v2, s[4:7], s43 offen')
    e.I('s_endpgm')
    e.L('P_mem0')
    e.I(f's_sub_u32 s40, s2, {N_LN+N_TR+N_Z+N_S}')
    e.I('s_mul_i32 s41, s40, 10240')
    e.I(f's_add_u32 s41, s41, {MEM}')
    e.I('v_bfe_u32 v3, v0, 2, 3')
    e.I('v_mul_u32_u24 v4, 1280, v3')
    e.I('v_lshrrev_b32 v3, 6, v0')
    e.I('v_lshl_add_u32 v4, v3, 5, v4')
    e.I('v_and_b32 v3, 3, v0')
    e.I('v_lshl_add_u32 v4, v3, 3, v4')
    e.I('v_bfe_u32 v3, v0, 5, 1')
    e.I('v_lshl_add_u32 v4, v3, 2, v4')
    e.I('v_lshlrev_b32 v5, 2, v0')
    for m in range(10): e.I(f'buffer_load_dword v{12+m}, v4, s[12:15], 0 offen offset:{128*m}')
    e.I('s_waitcnt vmcnt(0)')
    for m in range(10):
        e.I(f'v_min_u32 v{12+m}, -2, v{12+m}')
        e.I(f's_add_u32 s42, s41, {(m//4)*4096}')
        e.I(f'buffer_store_dword v{12+m}, v5, s[4:7], s42 offen offset:{(m%4)*1024}')
    e.L('P_m2')
    e.L('P_end')
    e.I('s_endpgm')
```

```python
import re
REG = re.compile(r'^(-?)(abs\()?([vas])(\d+)\)?$')
RNG = re.compile(r'^([vas])\[(\d+):(\d+)\]$')
def regs(op):
    op = op.strip()
    if op.startswith('-'): op = op[1:]
    if op.startswith('|') and op.endswith('|'): op = op[1:-1]
    m = RNG.match(op)
    if m: return {(m.group(1), i) for i in range(int(m.group(2)), int(m.group(3)) + 1)}
    m = re.match(r'^([vas])(\d+)$', op)
    if m: return {(m.group(1), int(m.group(2)))}
    if op in ('vcc', 'vcc_lo', 'vcc_hi'): return {('s', 'vcc')}
    if op in ('exec', 'exec_lo', 'exec_hi'): return {('s', 'exec')}
    if op == 'm0': return {('s', 'm0')}
    return set()
TRANS = ('v_exp_f32', 'v_log_f32', 'v_rcp_f32', 'v_rsq_f32', 'v_sqrt_f32', 'v_sin_f32', 'v_cos_f32')
class Ins:
    def __init__(self, text):
        self.text = text
        t = text.strip()
        t = t.split(';')[0].strip()
        self.op = t.split()[0]
        rest = t[len(self.op):].strip()
        br = ' '.join(re.findall(r'\b(?:quad_perm|op_sel|op_sel_hi|neg_lo|neg_hi):\[[^\]]*\]', rest))
        rest = re.sub(r'\s+(?:quad_perm|op_sel|op_sel_hi|neg_lo|neg_hi):\[[^\]]*\]', '', rest)
        ops = [o.strip() for o in rest.split(',')] if rest else []
        mods = ''
        if ops:
            parts = ops[-1].split()
            if parts:
                ops[-1] = parts[0]; mods = ' '.join(parts[1:])
        mods = mods + ' ' + br
        self.ops = ops; self.mods = mods
        op = self.op
        self.dst = set(); self.src = set(); self.kind = 'other'
        self.srcC = set(); self.srcAB = set(); self.passes = 0; self.stdata = set()
        R = [regs(o) for o in ops]
        U = lambda l: set().union(*l) if l else set()
        if op.startswith('v_mfma') or op.startswith('v_smfmac'):
            self.kind = 'mfma'; self.dst = R[0]; self.srcAB = R[1] | R[2]
            if op.startswith('v_smfmac'):
                self.srcC = R[0]; self.srcAB |= R[3]
            else:
                self.srcC = R[3]
            self.src = self.srcAB | self.srcC
            self.passes = 8 if '32x32' in op else 4
        elif op.startswith('v_permlane'):
            self.kind = 'valu'; self.perml = True; self.dst = R[0] | R[1]; self.src = R[0] | R[1]
        elif op.startswith('v_readfirstlane') or op.startswith('v_readlane'):
            self.kind = 'valu'; self.dst = R[0]; self.src = U(R[1:])
        elif op.startswith('v_cmp'):
            self.kind = 'valu'; self.dst = R[0]; self.src = U(R[1:])
        elif op.startswith('v_'):
            self.kind = 'valu'; self.dst = R[0]; self.src = U(R[1:])
            if op.startswith(('v_add_co', 'v_sub_co', 'v_addc_co', 'v_subb_co')):
                self.dst = R[0] | R[1]; self.src = U(R[2:])
            if op.startswith(('v_fmac', 'v_pk_fmac', 'v_dot2c', 'v_writelane')): self.src |= R[0]
            if op.startswith('v_cndmask') and len(ops) == 3: self.src |= {('s', 'vcc')}
        elif op.startswith(('buffer_load', 'global_load')):
            self.kind = 'vmem'
            if 'lds' in mods.split() or op.startswith('global_load_lds'):
                self.src = U(R) | {('s', 'm0')}; self.ldsdma = True
            else:
                self.dst = R[0]; self.src = U(R[1:])
        elif op.startswith(('buffer_store', 'global_store', 'buffer_atomic', 'global_atomic')):
            self.kind = 'vmem'; self.src = U(R)
            if 'atomic' in op and 'sc0' in mods.split(): self.dst = R[0]
            if op.endswith(('x4', 'x3')):
                self.stdata = R[0] if op.startswith('buffer') else R[1]
        elif op.startswith('ds_'):
            self.kind = 'ds'
            if op.startswith(('ds_read', 'ds_bpermute', 'ds_permute', 'ds_swizzle')):
                self.dst = R[0]; self.src = U(R[1:])
            else:
                self.src = U(R)
        elif op.startswith('s_'):
            self.kind = 'salu'
            if op.startswith(('s_cmp', 's_bitcmp', 's_cbranch', 's_branch', 's_waitcnt', 's_nop', 's_barrier', 's_sleep', 's_endpgm', 's_setprio')):
                self.src = U(R)
            else:
                self.dst = R[0] if R else set(); self.src = U(R[1:])
                if 'saveexec' in op: self.dst |= {('s', 'exec')}
        self.dpp = 'dpp' in op or 'row_' in mods or 'quad_perm' in mods
        self.perml = op.startswith('v_permlane')
        self.trans = op.split('_e32')[0] in TRANS
        self.rdlane = op.startswith(('v_readfirstlane', 'v_readlane'))
        self.slots = 1
        if op == 's_nop': self.slots = int(ops[0], 0) + 1
def isv(r): return r[0] in 'va'
def need(p, c):
    n = 0
    pv = {r for r in p.dst if isv(r)}; ps = {r for r in p.dst if r[0] == 's'}
    if p.kind == 'mfma':
        t = {4: (6, 8), 8: (10, 12)}[p.passes]
        if c.kind == 'mfma':
            if pv & c.srcAB: n = max(n, t[1])
            if pv & c.srcC:
                if not (c.srcC == p.dst and c.passes == p.passes): n = max(n, t[0])
            elif pv & c.dst: n = max(n, t[0])
        elif c.kind in ('valu', 'vmem', 'ds'):
            if pv & (c.src | c.dst): n = max(n, t[1])
        if c.kind == 'valu' and (p.srcC & c.dst): n = max(n, 3 if p.passes == 4 else 7)
        if c.kind in ('vmem', 'ds') and (p.srcC & c.dst): n = max(n, t[1])
    if p.kind == 'valu':
        if c.kind == 'mfma' and (pv & c.src): n = max(n, 2)
        if c.kind == 'mfma' and (('s', 'exec') in ps): n = max(n, 4)
        if c.kind == 'valu':
            if c.perml and (pv & c.src): n = max(n, 2)
            if c.dpp and (pv & c.src): n = max(n, 2)
            if c.rdlane and (pv & c.src): n = max(n, 1)
            if p.trans and not c.trans and (pv & c.src): n = max(n, 1)
            if ps & c.src: n = max(n, 4 if c.rdlane else 2)
        if c.kind == 'vmem' and (ps & c.src): n = max(n, 5)
        if c.kind == 'salu' and (ps & c.src) and not c.op.startswith('s_cbranch'): n = max(n, 1)
    if p.kind == 'salu' and ('s', 'm0') in ps and getattr(c, 'ldsdma', False): n = max(n, 1)
    if p.stdata and c.kind == 'valu' and (p.stdata & c.dst): n = max(n, 2)
    if p.stdata and c.kind in ('vmem', 'ds', 'mfma') and (p.stdata & c.dst): n = max(n, 2)
    return n
def pad(lines):
    out = []; hist = []
    added = 0
    for l in lines:
        st = l.strip()
        if not l.startswith('    ') or st.startswith(';') or st.startswith('.') or not st:
            out.append(l);
            if st.startswith('.section') or st.startswith('.text'): hist = []
            continue
        c = Ins(st)
        dist = 0; req = 0
        for p in reversed(hist):
            n = need(p, c)
            if n > dist: req = max(req, n - dist)
            dist += p.slots
            if dist > 14: break
        while req > 0:
            k = min(req, 16)
            out.append(f'    s_nop {k-1}'); hist.append(Ins(f's_nop {k-1}')); req -= k; added += 1
        out.append(l); hist.append(c)
        if c.op == 's_endpgm': hist = []
        if len(hist) > 40: hist = hist[-20:]
    return out, added
```

```python
import sys, struct
from asmlib import *
from layout import *
import hazard
from gen_pre import gen_pre, PRE_GRID, PRE_LDS

NAME = 'recurrent_scan__memory_aug_recurrent_mem_tr__dense_activation_relu__prompt'
MAIN = NAME + '_kernel'
PRE = 'prep_kernel'
LDS_TOTAL = 131328
LDS_ROLE = 131072
TMO = 1 << 18
def f2u(x): return struct.unpack('<I', struct.pack('<f', x))[0]
SC_L2E = f2u(192 ** -0.5 * 1.4426950408889634)
NEG_BIG = f2u(-1e30)
MFMA = 'v_mfma_f32_16x16x32_bf16'
MFMA16 = 'v_mfma_f32_16x16x16_bf16'
SMF = 'v_smfmac_f32_16x16x64_bf16'
WS = 's[4:7]'

class Opt:
    force_slow = False
    ts = False
    nobg = False
    ackpoll = False
    noxw = False
    pdelay = 1
    vdelay = 0
    kbar = 0
    kpre = 12
    kin = 12
    fresh = 0
    pdiag = 0
    pflip = 0
    touch = 1
    nofc = 0
    nopx = 0
    nocmb = 0
    cdepth = 1
    ffnnt = 0
    pr = 1
    pfar = 0
    vpre = 2
    vmpos = 0
    smpre = 1
    smgap = 2
    ldgap = 4
    kp = 6
    kc0 = 0
    xlate = 0
    csleep = 8
    clag = 2
    lsleep = 8
    xsleep = 2
    asleep = 2
    cdiag = 0
opt = Opt()

def vr(i, n=4): return f'v[{i}:{i+n-1}]'
def ar(i, n=4): return f'a[{i}:{i+n-1}]'

def maxchain(e, dst, regs, op='u32'):
    regs = list(regs)
    e.I(f'v_max3_{op} v{dst}, v{regs[0]}, v{regs[1]}, v{regs[2]}')
    rest = regs[3:]
    while rest:
        if len(rest) >= 2:
            e.I(f'v_max3_{op} v{dst}, v{dst}, v{rest[0]}, v{rest[1]}'); rest = rest[2:]
        else:
            e.I(f'v_max_{op} v{dst}, v{dst}, v{rest[0]}'); rest = rest[1:]

def check_sent(e, regs, t0, t1):
    regs = list(regs)
    if len(regs) >= 8:
        h = len(regs) // 2
        A, B = regs[:h], regs[h:]
        ea, eb = Em(), Em()
        maxchain(ea, t0, A); maxchain(eb, t1, B)
        for i in range(max(len(ea.lines), len(eb.lines))):
            if i < len(ea.lines): e.lines.append(ea.lines[i])
            if i < len(eb.lines): e.lines.append(eb.lines[i])
        e.I(f'v_max_u32 v{t0}, v{t0}, v{t1}')
    else:
        maxchain(e, t0, regs)
    e.I(f'v_cmp_eq_u32 vcc, -1, v{t0}')

def poll2(e, issue, nl, regsA, regsB, consume, t0, t1, code):
    lp, dA, dB, dd = e.lab('Lp'), e.lab('LdA'), e.lab('LdB'), e.lab('Ldd')
    e.I(f's_mov_b32 s31, {TMO}')
    issue(regsA)
    e.L(lp)
    issue(regsB)
    e.I(f's_waitcnt vmcnt({nl})')
    check_sent(e, range(regsA, regsA + 4 * nl), t0, t1)
    e.I(f's_cbranch_vccz {dA}')
    issue(regsA)
    e.I(f's_waitcnt vmcnt({nl})')
    check_sent(e, range(regsB, regsB + 4 * nl), t0, t1)
    e.I(f's_cbranch_vccz {dB}')
    e.I('s_sub_u32 s31, s31, 1')
    e.I(f's_cbranch_scc0 {lp}')
    e.I(f's_mov_b32 s31, {code}')
    e.I('s_branch L_fail')
    e.L(dB)
    consume(regsB)
    e.I(f's_branch {dd}')
    e.L(dA)
    consume(regsA)
    e.L(dd)

def wait_flags(e, vaddr, sofs, mask, vt, code, sleep=0):
    lp, dn = e.lab('Lf'), e.lab('Lfd')
    e.I(f's_mov_b32 s31, {TMO}')
    if mask > 0xffffffff or mask < 0: e.I(f's_mov_b64 exec, {mask}')
    else:
        e.I(f's_mov_b32 exec_lo, {mask:#x}'); e.I('s_mov_b32 exec_hi, 0')
    e.L(lp)
    e.I(f'buffer_load_dword v{vt}, v{vaddr}, {WS}, {sofs} offen sc1')
    e.I('s_waitcnt vmcnt(0)')
    e.I(f'v_cmp_eq_u32 vcc, 0, v{vt}')
    e.I(f's_cbranch_vccz {dn}')
    if sleep: e.I(f's_sleep {sleep}')
    e.I('s_sub_u32 s31, s31, 1')
    e.I(f's_cbranch_scc0 {lp}')
    e.I(f's_mov_b32 s31, {code}')
    e.I('s_branch L_fail')
    e.L(dn)
    e.I('s_mov_b64 exec, -1')

def set_flag(e, vaddr, sofs, vone, fl):
    e.I('s_mov_b64 exec, 1')
    e.I(f'buffer_store_dword v{vone}, v{vaddr}, {WS}, {sofs} offen{fl}')
    e.I('s_mov_b64 exec, -1')

def xg_reduce(e, op, x, t):
    e.I(f'v_mov_b32 v{t}, v{x}')
    e.I(f'v_permlane16_swap_b32 v{x}, v{t}')
    e.I(f'{op} v{x}, v{x}, v{t}')
    e.I(f'v_mov_b32 v{t}, v{x}')
    e.I(f'v_permlane32_swap_b32 v{x}, v{t}')
    e.I(f'{op} v{x}, v{x}, v{t}')

def softmax12(e, S, P, t):
    maxchain(e, t, range(S, S + 12), 'f32')
    xg_reduce(e, 'v_max_f32', t, t + 1)
    e.I(f'v_mul_f32 v{t}, s53, v{t}')
    for i in range(12):
        e.I(f'v_fma_f32 v{S+i}, v{S+i}, s52, v{t}')
    for i in range(12):
        e.I(f'v_exp_f32 v{S+i}, v{S+i}')
    e.I(f'v_add_f32 v{t+2}, v{S}, v{S+1}')
    e.I(f'v_add_f32 v{t+3}, v{S+2}, v{S+3}')
    for i in range(4, 12, 2):
        e.I(f'v_add_f32 v{t+2}, v{t+2}, v{S+i}')
        e.I(f'v_add_f32 v{t+3}, v{t+3}, v{S+i+1}')
    e.I(f'v_add_f32 v{t+2}, v{t+2}, v{t+3}')
    xg_reduce(e, 'v_add_f32', t + 2, t + 3)
    e.I(f'v_rcp_f32 v{t+2}, v{t+2}')
    for i in range(12):
        e.I(f'v_mul_f32 v{S+i}, v{S+i}, v{t+2}')
    for i in range(6):
        e.I(f'v_cvt_pk_bf16_f32 v{P+i}, v{S+2*i}, v{S+2*i+1}')

def TS(e, k):
    if opt.ts: e.I(f's_memrealtime s[{76+2*k}:{77+2*k}]')
def TSflush(e, step, va=238, vd=239):
    if not opt.ts: return
    e.I('s_waitcnt lgkmcnt(0)')
    for k in range(10): e.I(f'v_writelane_b32 v{vd}, s{76+2*k}, {k}')
    e.I('s_lshl_b32 s76, s20, 5')
    e.I('s_add_u32 s76, s76, s21')
    e.I('s_lshl_b32 s76, s76, 2')
    e.I('s_add_u32 s76, s76, s22')
    e.I('s_mul_i32 s76, s76, 72')
    e.I(f's_add_u32 s76, s76, {step}')
    e.I('s_lshl_b32 s76, s76, 6')
    e.I(f's_add_u32 s76, s76, {DBGT}')
    e.I(f'v_lshlrev_b32 v{va}, 2, v1')
    e.I('s_mov_b64 exec, 0x3ff')
    e.I(f'buffer_store_dword v{vd}, v{va}, {WS}, s76 offen')
    e.I('s_mov_b64 exec, -1')

def lane_ig(e, vi, vg):
    e.I(f'v_and_b32 v{vi}, 15, v1')
    e.I(f'v_lshrrev_b32 v{vg}, 4, v1')

def load_weights(e, mats, RS, rows, paired, vA, vT):
    CH = rows * 128
    ninst = rows // 8 // 4
    nk = rows // 32
    e.I(f'v_lshrrev_b32 v{vT}, 3, v1')
    if paired:
        e.I(f'v_bfe_u32 v{vT+1}, v1, 4, 2')
    else:
        e.I(f'v_bfe_u32 v{vT+1}, v1, 4, 1')
        e.I('s_and_b32 s54, s22, 1')
        e.I('s_lshl_b32 s54, s54, 1')
        e.I(f'v_or_b32 v{vT+1}, s54, v{vT+1}')
    e.I(f'v_lshlrev_b32 v{vT+1}, 1, v{vT+1}')
    e.I(f'v_and_b32 v{vT+2}, 7, v1')
    e.I(f'v_xor_b32 v{vT+2}, v{vT+2}, v{vT+1}')
    e.I(f's_mov_b32 s54, {RS}')
    e.I(f'v_mul_lo_u32 v{vA}, s54, v{vT}')
    e.I(f'v_lshl_add_u32 v{vA}, v{vT+2}, 4, v{vA}')
    e.I(f'v_lshrrev_b32 v{vT}, 4, v1')
    e.I(f'v_bfe_u32 v{vT+1}, v1, 2, 2')
    if paired:
        e.I(f'v_lshl_add_u32 v{vT+2}, v{vT}, 2, v{vT+1}')
        e.I(f'v_bfe_u32 v{vT}, v{vT+2}, 1, 2')
        second = 2048
    else:
        e.I(f'v_lshl_add_u32 v{vT+2}, v{vT}, 3, v{vT+1}')
        e.I(f'v_and_b32 v{vT}, 1, v{vT}')
        e.I(f'v_lshlrev_b32 v{vT}, 1, v{vT}')
        e.I(f'v_bfe_u32 v{vT+1}, v1, 3, 1')
        e.I(f'v_or_b32 v{vT}, v{vT}, v{vT+1}')
        second = 512
    e.I(f'v_xor_b32 v{vT}, s22, v{vT}')
    e.I(f'v_lshlrev_b32 v{vT+2}, 7, v{vT+2}')
    e.I(f'v_lshl_add_u32 v{vT+2}, v{vT}, 5, v{vT+2}')
    e.I(f'v_and_b32 v{vT}, 3, v1')
    e.I(f'v_lshl_add_u32 v{vT}, v{vT}, 3, v{vT+2}')
    e.I(f'v_add_u32 v{vT+1}, {CH}, v{vT}')
    e.I(f'v_add_u32 v{vT+2}, {2*CH}, v{vT}')
    chunks = []
    for (srd_, sofs, ab, nrows) in mats:
        for c in range(nrows // rows):
            chunks.append((srd_, sofs, ab + c * nk * 4, c * rows))
    e.I(f's_mul_i32 s55, s22, {8*RS}')
    e.I('s_lshl_b32 s56, s22, 10')
    def issue(ci):
        srd_, sofs, ab, r0 = chunks[ci]
        buf = ci % 3
        e.I(f's_add_u32 s57, {sofs}, s55')
        if r0: e.I(f's_add_u32 s57, s57, {r0*RS}')
        for n in range(ninst):
            e.I(f's_add_u32 m0, s56, {buf*CH + n*4096}')
            e.I(f'buffer_load_dwordx4 v{vA}, {srd_}, s57 offen lds')
            if n + 1 < ninst: e.I(f's_add_u32 s57, s57, {32*RS}')
    for ci in range(min(3, len(chunks))): issue(ci)
    for ci in range(len(chunks)):
        left = min(len(chunks) - 1 - ci, 2)
        e.I(f's_waitcnt vmcnt({left*ninst})')
        e.I('s_barrier')
        srd_, sofs, ab, r0 = chunks[ci]
        for k in range(nk):
            e.I(f'ds_read_b64_tr_b16 {ar(ab+4*k,2)}, v{vT+ci%3} offset:{k*4096}')
            e.I(f'ds_read_b64_tr_b16 {ar(ab+4*k+2,2)}, v{vT+ci%3} offset:{k*4096+second}')
        e.I('s_waitcnt lgkmcnt(0)')
        e.I('s_barrier')
        if ci + 3 < len(chunks): issue(ci + 3)

Q_LX, Q_LMEM = 0, 81920
def role_qkv(e, slow):
    fl = ' sc1' if slow else ''
    WQ, WK, WV = 0, 80, 160
    MF = 16
    DQ, DK, DV = 96, 100, 104
    PA, PB = 108, 120
    XD = 132
    T0 = 160
    KEEP = 176; TCH = 180
    XA, VA, IDX, SEL = 182, 183, 184, 185
    SENT = 248; ONE = 252
    e.I('s_mul_i32 s24, s21, 43')
    e.I('s_lshr_b32 s24, s24, 7')
    e.I('s_mul_i32 s25, s24, 3')
    e.I('s_sub_u32 s25, s21, s25')
    e.I('s_lshl_b32 s26, s20, 2')
    e.I('s_add_u32 s26, s26, s24')
    e.I('s_lshl_b32 s27, s25, 2')
    e.I('s_add_u32 s27, s27, s22')
    srd(e, 8, 60, 640 * 12288); srd(e, 12, 62, 640 * 12288); srd(e, 16, 64, 640 * 12288)
    e.I('s_mul_i32 s28, s26, 384')
    e.I('s_lshl_b32 s29, s25, 7')
    e.I('s_add_u32 s28, s28, s29')
    load_weights(e, [('s[12:15]', 's28', WK, 640), ('s[16:19]', 's28', WV, 640), ('s[8:11]', 's28', WQ, 640)], 12288, 320, False, 3, 4)
    e.I('s_mul_i32 s62, s22, 10240')
    e.I(f's_add_u32 s63, s62, {XN}')
    for m in range(10):
        e.I(f's_add_u32 m0, s62, {Q_LX + m*1024}')
        e.I(f'buffer_load_dwordx4 v2, {WS}, s63 offen lds')
        e.I('s_add_u32 s63, s63, 1024')
    e.I('s_mul_i32 s38, s22, 2560')
    e.I('v_add_u32 v3, s38, v2')
    e.I('v_and_b32 v4, 31, v1')
    e.I('v_lshlrev_b32 v4, 4, v4')
    e.I('v_add_u32 v4, s38, v4')
    e.I('v_add_u32 v4, 2048, v4')
    e.I(f'v_add_u32 v5, {Q_LMEM}, v3')
    e.I(f'v_add_u32 v6, {Q_LMEM}, v4')
    e.I(f'v_add_u32 v7, {Q_LMEM}, v2')
    lane_ig(e, 14, 15)
    e.I('s_lshr_b32 s38, s27, 1')
    e.I('s_lshl_b32 s38, s38, 10')
    e.I('s_and_b32 s39, s27, 1')
    e.I('s_lshl_b32 s39, s39, 3')
    e.I('s_add_u32 s38, s38, s39')
    e.I('v_add_u32 v8, s38, v2')
    e.I('v_bfe_u32 v11, v1, 2, 2')
    e.I('v_and_b32 v12, 3, v1')
    e.I(f'v_lshlrev_b32 v{XA}, 8, v11')
    e.I(f'v_lshl_add_u32 v{XA}, v15, 6, v{XA}')
    e.I(f'v_lshl_add_u32 v{XA}, v12, 4, v{XA}')
    e.I(f'v_add_u32 v{XA}, s38, v{XA}')
    e.I('v_and_b32 v13, 1, v15')
    e.I('v_lshlrev_b32 v13, 2, v13')
    e.I('v_lshrrev_b32 v9, 1, v15')
    e.I('v_lshl_add_u32 v13, v9, 1, v13')
    e.I('v_and_b32 v9, 1, v12')
    e.I('v_add_u32 v13, v13, v9')
    e.I('v_lshrrev_b32 v12, 1, v12')
    e.I('v_lshrrev_b32 v9, 1, v11')
    e.I('v_lshlrev_b32 v9, 8, v9')
    e.I('v_lshl_add_u32 v9, v12, 7, v9')
    e.I('v_lshl_add_u32 v9, v13, 4, v9')
    e.I(f'v_and_b32 v{VA}, 1, v11')
    e.I(f'v_lshl_add_u32 v9, v{VA}, 3, v9')
    e.I('s_lshl_b32 s38, s25, 10')
    e.I('s_lshr_b32 s39, s22, 1')
    e.I('s_lshl_b32 s39, s39, 9')
    e.I('s_add_u32 s38, s38, s39')
    e.I('s_and_b32 s39, s22, 1')
    e.I('s_lshl_b32 s39, s39, 2')
    e.I('s_add_u32 s38, s38, s39')
    e.I('v_add_u32 v9, s38, v9')
    e.I(f'v_lshlrev_b32 v{VA}, 8, v11')
    e.I(f'v_lshl_add_u32 v{VA}, v13, 4, v{VA}')
    e.I(f'v_lshl_add_u32 v{VA}, v12, 2, v{VA}')
    e.I('s_lshr_b32 s38, s27, 1')
    e.I('s_cmp_ge_u32 s38, 3')
    e.I('s_cselect_b32 s39, 3, 0')
    e.I('s_cselect_b32 s40, 128, 0')
    e.I('s_sub_u32 s38, s38, s39')
    e.I('s_lshl_b32 s38, s38, 10')
    e.I('s_add_u32 s38, s38, s40')
    e.I('s_and_b32 s39, s27, 1')
    e.I('s_lshl_b32 s39, s39, 3')
    e.I('s_add_u32 s38, s38, s39')
    e.I(f'v_add_u32 v{VA}, s38, v{VA}')
    e.I(f'v_mov_b32 v{IDX}, 0x44444444')
    e.I('v_mov_b32 v11, 0xeeeeeeee')
    e.I('v_cmp_lt_u32 vcc, 7, v14')
    e.I(f'v_cndmask_b32 v{IDX}, v{IDX}, v11, vcc')
    e.I(f'v_mov_b32 v{SEL}, 0x05040100')
    e.I('v_mov_b32 v11, 0x03020706')
    e.I('v_and_b32 v12, 1, v1')
    e.I('v_cmp_eq_u32 vcc, 1, v12')
    e.I(f'v_cndmask_b32 v{SEL}, v{SEL}, v11, vcc')
    e.I('s_mov_b32 s34, 0x33333333'); e.I('s_mov_b32 s35, 0x33333333')
    e.I('s_mov_b32 s36, 0xcccccccc'); e.I('s_mov_b32 s37, 0xcccccccc')
    for k in range(12): e.I(f'v_mov_b32 v{DQ+k}, 0')
    e.I('s_lshl_b32 s38, s27, 2')
    e.I(f'v_mov_b32 v{ONE+2}, s38')
    e.I(f'v_mov_b32 v{ONE}, 1')
    for k in range(4): e.I(f'v_mov_b32 v{SENT+k}, -1')
    e.I('s_mul_i32 s58, s26, 6144')
    e.I('s_mul_i32 s59, s20, 10240')
    e.I(f's_add_u32 s59, s59, {MEM}')
    e.I('s_mul_i32 s60, s26, 3072')
    e.I('s_lshl_b32 s61, s20, 6')
    e.I('s_lshl_b32 s38, s24, 2')
    e.I('s_add_u32 s61, s61, s38')
    e.I(f's_add_u32 s61, s61, {FLGOX}')
    e.I('v_mov_b32 v10, 0')

    def late_stores():
        e.I(f'buffer_store_dwordx2 {vr(KEEP,2)}, v{XA}, {WS}, s43 offen{fl}')
        e.I(f'buffer_store_dwordx2 {vr(SENT,2)}, v{XA}, {WS}, s42 offen{fl}')
        e.I(f'buffer_store_dword v{KEEP+2}, v{VA}, {WS}, s44 offen{fl}')
        e.I(f'buffer_store_dword v{SENT}, v9, {WS}, s46 offen{fl}')
    def xwork(late):
        e.I('s_and_b32 s65, s64, 1')
        e.I('s_mul_i32 s66, s65, 40960')
        e.I('v_add_u32 v12, s66, v2')
        e.I('s_xor_b32 s65, s65, 1')
        e.I('s_mul_i32 s65, s65, 40960')
        e.I('s_add_u32 s65, s65, s62')
        e.I('s_add_u32 s66, s64, 1')
        e.I('s_min_u32 s66, s66, 63')
        e.I('s_mul_i32 s66, s66, 40960')
        e.I('s_add_u32 s66, s66, s62')
        e.I(f's_add_u32 s66, s66, {XN}')
        e.I(f's_and_b32 s47, s64, {RD-1}')
        e.I(f's_mul_i32 s47, s47, {SEG_QX}')
        e.I('s_lshl_b32 s48, s58, 1')
        e.I('s_add_u32 s47, s47, s48')
        if late:
            e.I(f's_max_u32 s50, s64, {RD}')
            e.I(f's_sub_u32 s50, s50, {RD}')
            e.I('s_lshl_b32 s50, s50, 9')
            e.I('s_add_u32 s50, s50, s61')
            e.I(f'buffer_load_dword v{TCH}, v10, {WS}, s50 offen sc1')
        PF = 5
        def rd(kk):
            for rt in range(2):
                e.I(f'ds_read_b128 {vr(MF + ((2*kk+rt) % 20)*4)}, v12 offset:{rt*20480 + kk*1024}')
        for kk in range(PF): rd(kk)
        for kk in range(20):
            nxt = min(20, kk + PF) - (kk + 1)
            e.I(f's_waitcnt lgkmcnt({2*nxt})')
            for rt in range(2):
                f = vr(MF + ((2*kk+rt) % 20)*4)
                for (m, Wb) in ((0, WQ), (1, WK), (2, WV)):
                    d = vr(XD + (m*2+rt)*4)
                    e.I(f'{MFMA} {d}, {ar(Wb+4*kk)}, {f}, {0 if kk == 0 else d}')
            if kk + PF < 20: rd(kk + PF)
            if 3 <= kk < 13:
                m = kk - 3
                e.I(f's_add_u32 m0, s65, {m*1024}')
                e.I(f'buffer_load_dwordx4 v2, {WS}, s66 offen lds')
                e.I('s_add_u32 s66, s66, 1024')
        if late:
            bp = e.lab('Lbp')
            e.I(f's_cmp_lt_u32 s64, {RD}')
            e.I(f's_cbranch_scc1 {bp}')
            e.I('s_waitcnt vmcnt(10)')
            e.I(f'v_cmp_eq_u32 vcc, 0, v{TCH}')
            e.I(f's_cbranch_vccz {bp}')
            wait_flags(e, 10, 's50', 1, TCH, 13, sleep=1)
            e.L(bp)
            late_stores()
        for m, base in ((2, VX), (1, KX), (0, QX)):
            for rt in range(2):
                d = XD + (m*2+rt)*4; o = T0 + (m*2+rt)*2
                e.I(f'v_cvt_pk_bf16_f32 v{o}, v{d}, v{d+1}')
                e.I(f'v_cvt_pk_bf16_f32 v{o+1}, v{d+2}, v{d+3}')
                e.I(f's_add_u32 s48, s47, {base + rt*6144}')
                e.I(f'buffer_store_dwordx2 {vr(o,2)}, v8, {WS}, s48 offen{fl}')
    def flag_addr(back):
        e.I(f's_sub_u32 s51, s64, {back}')
        e.I('s_lshl_b32 s51, s51, 5')
        e.I('s_add_u32 s51, s51, s26')
        e.I('s_lshl_b32 s51, s51, 6')
        e.I(f's_add_u32 s51, s51, {FLGQ}')
    def flag_n():
        flag_addr(0)
        e.I('s_waitcnt vmcnt(0)')
        set_flag(e, ONE + 2, 's51', ONE, fl)
    def mem_part():
        e.I('s_and_b32 s38, s30, 3')
        e.I('s_xor_b32 s39, s38, 2')
        e.I(f's_mul_i32 s40, s38, {MEM_SLOT}')
        e.I('s_add_u32 s40, s40, s59')
        e.I(f's_mul_i32 s41, s38, {XR_SLOT}')
        e.I('s_add_u32 s41, s41, s58')
        e.I(f's_add_u32 s41, s41, {XR}')
        e.I(f's_mul_i32 s42, s39, {XR_SLOT}')
        e.I('s_add_u32 s42, s42, s58')
        e.I(f's_add_u32 s42, s42, {XR}')
        e.I(f's_and_b32 s44, s30, {RD-1}')
        e.I(f's_mul_i32 s43, s44, {SEG_XP}')
        e.I('s_add_u32 s43, s43, s58')
        e.I(f's_add_u32 s43, s43, {XP}')
        e.I(f's_mul_i32 s44, s44, {SEG_VM}')
        e.I('s_add_u32 s44, s44, s60')
        e.I(f's_add_u32 s44, s44, {VM}')
        e.I(f's_mul_i32 s45, s38, {VR_SLOT}')
        e.I('s_add_u32 s45, s45, s60')
        e.I(f's_add_u32 s45, s45, {VR}')
        e.I(f's_mul_i32 s46, s39, {VR_SLOT}')
        e.I('s_add_u32 s46, s46, s60')
        e.I(f's_add_u32 s46, s46, {VR}')
        def issue(b):
            e.I(f'buffer_load_dwordx4 {vr(b)}, v3, {WS}, s40 offen sc1')
            e.I(f'buffer_load_dwordx4 {vr(b+4)}, v3, {WS}, s40 offen offset:1024 sc1')
            e.I(f'buffer_load_dwordx4 {vr(b+8)}, v4, {WS}, s40 offen sc1')
        def consume(b):
            e.I(f'ds_write_b128 v5, {vr(b)}')
            e.I(f'ds_write_b128 v5, {vr(b+4)} offset:1024')
            e.I(f'ds_write_b128 v6, {vr(b+8)}')
        flag_addr(1)
        poll2(e, issue, 3, PA, PB, consume, T0, T0 + 1, 1)
        TS(e, 1)
        e.I('s_waitcnt lgkmcnt(0)')
        e.I('s_barrier')
        for m in range(10): e.I(f'ds_read_b128 {vr(MF+4*m)}, v7 offset:{m*1024}')
        set_flag(e, ONE + 2, 's51', ONE, fl)
        e.I('s_mov_b64 vcc, s[34:35]')
        for m in range(10):
            e.I(f's_waitcnt lgkmcnt({9-m})')
            e.I(f'{SMF} {vr(DQ)}, {vr(MF+4*m)}, {ar(WQ+8*m,8)}, v{IDX}')
            e.I(f'{SMF} {vr(DK)}, {vr(MF+4*m)}, {ar(WK+8*m,8)}, v{IDX}')
        def vm(m): e.I(f'{SMF} {vr(DV)}, {vr(MF+4*m)}, {ar(WV+8*m,8)}, v{IDX}')
        QP1, QP2 = 'quad_perm:[1,0,3,2] row_mask:0xf bank_mask:0xf', 'quad_perm:[2,3,0,1] row_mask:0xf bank_mask:0xf'
        nv = opt.vpre
        for m in range(nv): vm(m)
        for r in range(4): e.I(f'v_permlane32_swap_b32 v{DQ+r}, v{DK+r}')
        for r in range(4): e.I(f'v_add_f32 v{DQ+r}, v{DQ+r}, v{DK+r}')
        e.I(f'v_cvt_pk_bf16_f32 v{T0}, v{DQ}, v{DQ+1}')
        e.I(f'v_cvt_pk_bf16_f32 v{T0+1}, v{DQ+2}, v{DQ+3}')
        vm(nv)
        e.I(f'v_mov_b32_dpp v{T0+2}, v{T0} {QP1}')
        e.I(f'v_mov_b32_dpp v{T0+3}, v{T0+1} {QP1}')
        e.I(f'v_perm_b32 v{T0}, v{T0+2}, v{T0}, v{SEL}')
        e.I(f'v_perm_b32 v{T0+1}, v{T0+3}, v{T0+1}, v{SEL}')
        vm(nv + 1)
        e.I(f'v_min_u32 v{T0}, -2, v{T0}')
        e.I(f'v_min_u32 v{T0+1}, -2, v{T0+1}')
        e.I('s_nop 0')
        e.I(f'v_cndmask_b32_dpp v{KEEP}, v{T0+1}, v{T0}, vcc {QP2}')
        e.I('s_mov_b64 vcc, s[36:37]')
        e.I(f'v_cndmask_b32_dpp v{KEEP+1}, v{T0}, v{T0+1}, vcc {QP2}')
        e.I(f'buffer_store_dwordx2 {vr(KEEP,2)}, v{XA}, {WS}, s41 offen{fl}')
        TS(e, 2)
        for m in range(nv + 2, 10): vm(m)
        for k in range(8): e.I(f'v_mov_b32 v{DQ+k}, 0')
        e.I(f'v_permlane32_swap_b32 v{DV}, v{DV+2}')
        e.I(f'v_permlane32_swap_b32 v{DV+1}, v{DV+3}')
        e.I(f'v_add_f32 v{DV}, v{DV}, v{DV+2}')
        e.I(f'v_add_f32 v{DV+1}, v{DV+1}, v{DV+3}')
        e.I(f'v_cvt_pk_bf16_f32 v{T0}, v{DV}, v{DV+1}')
        e.I(f'v_mov_b32_dpp v{T0+2}, v{T0} {QP1}')
        e.I(f'v_perm_b32 v{KEEP+2}, v{T0+2}, v{T0}, v{SEL}')
        e.I(f'v_min_u32 v{KEEP+2}, -2, v{KEEP+2}')
        e.I(f'buffer_store_dword v{KEEP+2}, v9, {WS}, s45 offen{fl}')
        for k in range(4): e.I(f'v_mov_b32 v{DV+k}, 0')
        TS(e, 3)
    pro, top, nox, nxt_ = e.lab('Lqp'), e.lab('Lqt'), e.lab('Lqn'), e.lab('Lqx')
    e.I('s_mov_b32 s30, 0')
    e.I('s_mov_b32 s64, 0')
    e.I('s_waitcnt vmcnt(0)')
    e.L(pro)
    e.I('s_barrier')
    xwork(False)
    flag_n()
    e.I('s_add_u32 s64, s64, 1')
    e.I('s_cmp_lt_u32 s64, 2')
    e.I(f's_cbranch_scc1 {pro}')
    e.L(top)
    TS(e, 0)
    mem_part()
    e.I('s_cmp_ge_u32 s64, 64')
    e.I(f's_cbranch_scc1 {nox}')
    xwork(True)
    e.I(f's_branch {nxt_}')
    e.L(nox)
    late_stores()
    flag_n()
    e.L(nxt_)
    TS(e, 4)
    e.I('s_add_u32 s64, s64, 1')
    TS(e, 5)
    TSflush(e, 's30')
    e.I('s_add_u32 s30, s30, 1')
    e.I('s_cmp_lt_u32 s30, 64')
    e.I(f's_cbranch_scc1 {top}')
    e.I('s_endpgm')

S_RED = 98304
def role_sw(e, slow):
    fl = ' sc1' if slow else ''
    XF, KXF, VXF, VMF = 16, 40, 88, 136
    S, PB, PM = 148, 160, 164
    DW, DM, VWX, VWM = 168, 184, 200, 216
    OUT = DW
    PA = XF
    CI = 224
    T0 = 228; IDX = 246; SENT = 248; ONE = 252
    AONE, AHALF = 96, 100
    e.I('s_sub_u32 s24, s21, 12')
    e.I('s_lshl_b32 s25, s24, 2')
    e.I('s_add_u32 s25, s25, s22')
    e.I('s_lshl_b32 s26, s20, 2')
    e.I('s_add_u32 s26, s26, s22')
    srd(e, 8, 66, 6144 * 1280)
    e.I(f's_mul_i32 s28, s26, {192*1280}')
    e.I('s_lshl_b32 s29, s24, 7')
    e.I('s_add_u32 s28, s28, s29')
    e.I('v_lshrrev_b32 v4, 3, v1')
    e.I('v_bfe_u32 v5, v1, 4, 2')
    e.I('v_lshlrev_b32 v5, 1, v5')
    e.I('v_and_b32 v6, 7, v1')
    e.I('v_xor_b32 v6, v6, v5')
    e.I('v_mul_u32_u24 v3, 1280, v4')
    e.I('v_lshl_add_u32 v3, v6, 4, v3')
    e.I('s_mul_i32 s56, s22, 24576')
    for n in range(24):
        e.I(f's_add_u32 m0, s56, {n*1024}')
        e.I(f'buffer_load_dwordx4 v3, s[8:11], s28 offen lds')
        if n < 23: e.I(f's_add_u32 s28, s28, {8*1280}')
    e.I('v_lshrrev_b32 v4, 2, v1')
    e.I('v_bfe_u32 v5, v4, 1, 2')
    e.I('v_lshlrev_b32 v4, 7, v4')
    e.I('v_and_b32 v6, 3, v1')
    e.I('v_lshl_add_u32 v4, v6, 3, v4')
    e.I('v_add_u32 v4, s56, v4')
    for ct in range(4):
        e.I(f'v_xor_b32 v6, {ct}, v5')
        e.I(f'v_lshl_add_u32 v{8+ct}, v6, 5, v4')
    for kk in range(6):
        e.I(f's_waitcnt vmcnt({20 - 4*kk})')
        for ct in range(4):
            e.I(f'ds_read_b64_tr_b16 {ar((ct*6+kk)*4,2)}, v{8+ct} offset:{kk*4096}')
            e.I(f'ds_read_b64_tr_b16 {ar((ct*6+kk)*4+2,2)}, v{8+ct} offset:{kk*4096+2048}')
    e.I('s_waitcnt lgkmcnt(0)')
    e.I(f's_mov_b32 s52, {SC_L2E:#x}'); e.I(f's_mov_b32 s53, {SC_L2E | 0x80000000:#x}')
    lane_ig(e, 14, 15)
    e.I('v_and_b32 v13, 7, v14')
    e.I('v_lshlrev_b32 v13, 4, v13')
    e.I('v_lshl_add_u32 v13, v15, 7, v13')
    e.I('v_bfe_u32 v5, v1, 3, 1')
    e.I('s_lshl_b32 s38, s22, 9')
    e.I(f's_add_u32 s38, s38, {S_RED}')
    e.I('v_add_u32 v6, s38, v13')
    e.I('v_lshl_add_u32 v6, v5, 14, v6')
    e.I('s_lshl_b32 s38, s22, 11')
    e.I(f's_add_u32 s38, s38, {S_RED}')
    e.I('v_add_u32 v7, s38, v13')
    e.I('v_lshl_add_u32 v7, v5, 10, v7')
    e.I('v_lshl_add_u32 v13, v5, 13, v13')
    e.I('v_and_b32 v4, 31, v1')
    e.I('v_lshlrev_b32 v4, 4, v4')
    e.I('v_lshrrev_b32 v5, 5, v1')
    e.I('v_lshl_add_u32 v4, v5, 11, v4')
    e.I('v_and_b32 v9, 7, v1')
    e.I('v_lshlrev_b32 v8, 4, v9')
    e.I('v_lshl_add_u32 v8, v5, 7, v8')
    e.I('v_bfe_u32 v9, v1, 3, 2')
    e.I('v_lshl_add_u32 v8, v9, 2, v8')
    e.I('s_lshl_b32 s38, s25, 8')
    e.I('v_add_u32 v8, s38, v8')
    e.I('v_lshrrev_b32 v9, 1, v1')
    e.I('v_lshlrev_b32 v9, 10, v9')
    e.I('v_and_b32 v10, 1, v1')
    e.I('v_lshl_add_u32 v9, v10, 3, v9')
    e.I(f'v_lshlrev_b32 v{ONE+1}, 2, v1')
    for k in range(4): e.I(f'v_mov_b32 v{SENT+k}, -1')
    e.I(f'v_mov_b32 v{CI}, {NEG_BIG:#x}')
    e.I('s_mov_b32 vcc_lo, 0')
    e.I('s_mov_b32 vcc_hi, 0x00ff00ff')
    e.I(f'v_cndmask_b32 v{CI}, v{CI}, 0, vcc')
    for k in range(1, 4): e.I(f'v_mov_b32 v{CI+k}, v{CI}')
    e.I(f'v_mov_b32 v{IDX}, 0x44444444')
    e.I('v_mov_b32 v11, 0xeeeeeeee')
    e.I('v_cmp_lt_u32 vcc, 7, v14')
    e.I(f'v_cndmask_b32 v{IDX}, v{IDX}, v11, vcc')
    e.I('v_mov_b32 v11, 0x3f803f80')
    for k in range(4): e.I(f'v_accvgpr_write_b32 a{AONE+k}, v11')
    e.I('v_mov_b32 v11, 0x3f003f00')
    for k in range(2): e.I(f'v_accvgpr_write_b32 a{AHALF+k}, v11')
    e.I('s_mul_i32 s58, s26, 6144')
    e.I(f's_add_u32 s58, s58, {XR}')
    e.I('s_mul_i32 s57, s26, 3072')
    e.I(f's_add_u32 s57, s57, {VR}')
    e.I('s_lshr_b32 s59, s25, 1')
    e.I('s_lshl_b32 s59, s59, 14')
    e.I('s_and_b32 s38, s25, 1')
    e.I('s_lshl_b32 s38, s38, 12')
    e.I('s_add_u32 s59, s59, s38')
    e.I(f's_add_u32 s59, s59, {PART}')
    e.I('s_lshl_b32 s60, s20, 9')
    e.I('s_add_u32 s60, s60, s59')
    e.I('s_mul_i32 s61, s20, 10240')
    e.I(f's_add_u32 s61, s61, {MEM}')
    e.I('s_mul_i32 s62, s26, 12288')
    e.I('s_lshl_b32 s63, s26, 6')
    e.I(f's_add_u32 s63, s63, {FLGQ}')
    nocal = e.lab('Lnc')
    e.I('s_cmp_lg_u32 s25, 0')
    e.I(f's_cbranch_scc1 {nocal}')
    e.I('s_lshl_b32 s38, s20, 7')
    e.I(f's_add_u32 s38, s38, {CAL}')
    e.I('s_add_u32 s39, s38, 8192')
    e.I('s_mov_b32 s40, -1'); e.I('s_mov_b32 s41, -1'); e.I('s_mov_b32 s42, 4')
    e.I('v_mov_b32 v10, 0')
    e.I('s_mov_b64 exec, 1')
    cal = e.lab('Lcal')
    e.L(cal)
    for so, acc in (('s38', 's40'), ('s39', 's41')):
        e.I(f'buffer_store_dword v10, v10, {WS}, {so} offen sc1')
        e.I('s_waitcnt vmcnt(0)')
        e.I('s_memtime s[44:45]')
        e.I('s_waitcnt lgkmcnt(0)')
        e.I(f'buffer_load_dword v11, v10, {WS}, {so} offen sc1')
        e.I('s_waitcnt vmcnt(0)')
        e.I('s_memtime s[46:47]')
        e.I('s_waitcnt lgkmcnt(0)')
        e.I('s_sub_u32 s46, s46, s44')
        e.I(f's_min_u32 {acc}, {acc}, s46')
    e.I('s_sub_u32 s42, s42, 1')
    e.I('s_cmp_lg_u32 s42, 0')
    e.I(f's_cbranch_scc1 {cal}')
    e.I('s_cmp_lt_u32 s41, s40')
    if opt.pflip: e.I('s_cmp_ge_u32 s41, s40')
    e.I('s_cselect_b32 s38, 2, 1')
    e.I('v_mov_b32 v11, s38')
    e.I('s_lshl_b32 s38, s20, 2')
    e.I(f's_add_u32 s38, s38, {PARTAB}')
    e.I(f'buffer_store_dword v11, v10, {WS}, s38 offen sc1')
    e.I('s_mov_b64 exec, -1')
    e.L(nocal)
    e.I('s_lshl_b32 s38, s20, 2')
    e.I(f's_add_u32 s38, s38, {PARTAB}')
    wait_flags(e, ONE + 1, 's38', 1, T0, 12, sleep=2)
    e.I(f'v_readfirstlane_b32 s38, v{T0}')
    e.I('s_nop 3')
    e.I('s_and_b32 s38, s38, 2')
    e.I('s_lshl_b32 s38, s38, 12')
    e.I('s_add_u32 s59, s59, s38')
    e.I('s_lshl_b32 s38, s22, 2')
    e.I(f's_add_u32 s38, s38, {S_RED + 8192}')
    e.I('v_lshlrev_b32 v10, 4, v14')
    e.I('v_add_u32 v10, s38, v10')
    e.I('v_and_b32 v11, 7, v14')
    e.I('v_lshlrev_b32 v11, 4, v11')
    e.I('v_bfe_u32 v12, v1, 3, 1')
    e.I('v_lshl_add_u32 v11, v12, 3, v11')
    e.I(f'v_add_u32 v11, {S_RED + 8192}, v11')
    e.I('v_min_u32 v12, 11, v1')
    e.I('v_lshlrev_b32 v12, 2, v12')
    def kv_loads(dst, base, q0=0, q1=12):
        if q0 >= q1: return
        e.I(f's_and_b32 s48, s49, {RD-1}')
        e.I(f's_mul_i32 s48, s48, {SEG_QX}')
        e.I('s_add_u32 s48, s48, s62')
        e.I(f's_add_u32 s48, s48, {base + (q0//4)*4096}')
        for q in range(q0, q1):
            if q % 4 == 0 and q > q0: e.I('s_add_u32 s48, s48, 4096')
            e.I(f'buffer_load_dwordx4 {vr(dst+4*q)}, v2, {WS}, s48 offen offset:{(q%4)*1024} sc1')
    def vx_loads():
        e.I(f's_and_b32 s48, s49, {RD-1}')
        e.I(f's_mul_i32 s48, s48, {SEG_QX}')
        e.I('s_add_u32 s48, s48, s62')
        e.I(f's_add_u32 s48, s48, {VX}')
        e.I('s_add_u32 s46, s48, 4096')
        e.I('s_add_u32 s56, s48, 8192')
        for kk in range(6):
            for rt in range(2):
                q = rt * 6 + kk
                e.I(f'buffer_load_dwordx4 {vr(VXF+4*q)}, v2, {WS}, {("s48", "s46", "s56")[q//4]} offen offset:{(q%4)*1024} sc1')
    def vw_x(after, extra=()):
        extra = list(extra)
        for kk in range(6):
            for rt in range(2):
                if extra and 2*kk + rt >= 12 - len(extra) - opt.kc0: e.I(extra.pop(0))
                if after is not None: e.I(f's_waitcnt vmcnt({after + 11 - (2*kk+rt)})')
                for ct in range(4):
                    d = vr(DW + (ct*2+rt)*4)
                    e.I(f'{MFMA} {d}, {vr(VXF+4*(rt*6+kk))}, {ar((ct*6+kk)*4)}, {0 if kk == 0 else d}')
        for ct in range(4):
            for k in range(4): e.I(f'v_cvt_pk_bf16_f32 v{VWX+4*ct+k}, v{DW+8*ct+2*k}, v{DW+8*ct+2*k+1}')
        for k in range(16): e.I(f'v_mov_b32 v{DM+k}, 0')
    wait_flags(e, ONE + 1, 's63', 0xfff, T0, 11, sleep=2)
    e.I('s_mov_b32 s49, 0')
    vx_loads()
    kv_loads(KXF, KX)
    vw_x(12)
    top = e.lab('Lwt')
    e.I('s_mov_b32 s30, 0')
    e.L(top)
    TS(e, 0)
    e.I('s_and_b32 s38, s30, 3')
    e.I('s_xor_b32 s39, s38, 2')
    e.I(f's_mul_i32 s40, s38, {XR_SLOT}')
    e.I('s_add_u32 s40, s40, s58')
    e.I('s_add_u32 s54, s40, 4096')
    e.I(f's_mul_i32 s55, s38, {VR_SLOT}')
    e.I('s_add_u32 s55, s55, s57')
    if opt.fresh:
        e.I(f's_mul_i32 s41, s30, {PART_SLOT}')
        e.I(f's_add_u32 s41, s41, {SCRATCH + 0x400000 - PART + 0x200000}')
    else:
        e.I(f's_mul_i32 s41, s38, {PART_SLOT}')
    e.I('s_add_u32 s42, s41, s60')
    e.I('s_add_u32 s41, s41, s59')
    if opt.fresh:
        e.I('s_lshr_b32 s47, s41, 8')
        e.I('s_not_b32 s47, s47')
        e.I('s_and_b32 s47, s47, 8192')
        e.I('s_xor_b32 s41, s41, s47')
    e.I('s_xor_b32 s47, s41, 8192')
    e.I(f's_mul_i32 s43, s39, {PART_SLOT}')
    e.I('s_add_u32 s43, s43, s60')
    e.I('s_add_u32 s49, s30, 1')
    e.I('s_and_b32 s44, s49, 3')
    e.I('s_xor_b32 s45, s44, 2')
    e.I(f's_mul_i32 s44, s44, {MEM_SLOT}')
    e.I('s_add_u32 s44, s44, s61')
    e.I(f's_mul_i32 s45, s45, {MEM_SLOT}')
    e.I('s_add_u32 s45, s45, s61')
    e.I(f's_and_b32 s46, s49, {RD-1}')
    e.I(f's_mul_i32 s46, s46, {SEG_QX}')
    e.I('s_add_u32 s46, s46, s62')
    e.I(f's_add_u32 s65, s46, {KX}')
    e.I(f's_add_u32 s46, s46, {VX}')
    e.I('s_add_u32 s56, s46, 4096')
    e.I('s_add_u32 s64, s46, 8192')
    e.I('s_add_u32 s66, s65, 4096')
    e.I('s_add_u32 s67, s65, 8192')
    e.I('s_lshl_b32 s50, s49, 11')
    e.I('s_add_u32 s50, s50, s63')
    pl, pd, fr = e.lab('Lxp'), e.lab('Lxd'), e.lab('Lxf')
    e.I(f's_mov_b32 s31, {TMO}')
    e.I('s_mov_b64 exec, 0xfff')
    e.I(f'buffer_load_dword v{T0}, v9, {WS}, s40 offen sc1')
    e.L(pl)
    for a_, b_ in ((T0, T0 + 1), (T0 + 1, T0)):
        e.I(f'buffer_load_dword v{b_}, v9, {WS}, s40 offen sc1')
        e.I('s_waitcnt vmcnt(1)')
        e.I(f'v_cmp_eq_u32 vcc, -1, v{a_}')
        e.I(f's_cbranch_vccz {pd}')
    e.I('s_sub_u32 s31, s31, 1')
    e.I(f's_cbranch_scc0 {pl}')
    e.I('s_mov_b32 s31, 2')
    e.I('s_branch L_fail')
    e.L(pd)
    e.I('s_mov_b64 exec, -1')
    TS(e, 1)
    e.L(fr)
    for p in range(6):
        e.I(f'buffer_load_dwordx4 {vr(XF+4*p)}, v2, {WS}, {"s40" if p < 4 else "s54"} offen offset:{(p%4)*1024} sc1')
    FQ = CI + 23
    def vm_loads():
        for q in range(3):
            e.I(f'buffer_load_dwordx4 {vr(VMF+4*q)}, v2, {WS}, s55 offen offset:{q*1024} sc1')
        e.I(f'buffer_load_dword v{FQ}, v12, {WS}, s50 offen sc1')
    vp = opt.vmpos
    nvm = 0
    if vp == 0: vm_loads(); nvm = 4
    for p in range(6):
        x = vr(XF + 4*p)
        e.I(f's_waitcnt vmcnt({5-p+nvm})')
        e.I(f'{MFMA} {vr(S+4)}, {vr(KXF+4*p)}, {x}, {0 if p == 0 else vr(S+4)}')
        e.I(f'{MFMA} {vr(S+8)}, {vr(KXF+24+4*p)}, {x}, {0 if p == 0 else vr(S+8)}')
        e.I(f'{MFMA} {vr(S)}, {x}, {x}, {vr(CI) if p == 0 else vr(S)}')
        if vp == p + 1: vm_loads(); nvm = 4
        r = XF + 4 * p
        if p == 0:
            e.I(f'v_max3_u32 v{T0+2}, v{r}, v{r+1}, v{r+2}')
            e.I(f'v_max_u32 v{T0+2}, v{T0+2}, v{r+3}')
        else:
            e.I(f'v_max3_u32 v{T0+2}, v{T0+2}, v{r}, v{r+1}')
            e.I(f'v_max3_u32 v{T0+2}, v{T0+2}, v{r+2}, v{r+3}')
    e.I(f'v_cmp_eq_u32 vcc, -1, v{T0+2}')
    ok = e.lab('Lxo')
    e.I(f's_cbranch_vccz {ok}')
    e.I('s_sub_u32 s31, s31, 1')
    e.I('s_nop 7')
    e.I(f's_cbranch_scc0 {fr}')
    e.I('s_mov_b32 s31, 2')
    e.I('s_branch L_fail')
    e.L(ok)
    TS(e, 2)
    vl, vd = e.lab('Lvp'), e.lab('Lvd')
    e.L(vl)
    e.I('s_waitcnt vmcnt(0)')
    e.I(f'v_add_u32 v{FQ}, -1, v{FQ}')
    check_sent(e, list(range(VMF, VMF + 12)) + [FQ], T0 + 2, T0 + 3)
    e.I(f's_cbranch_vccz {vd}')
    vm_loads()
    e.I('s_sub_u32 s31, s31, 1')
    e.I(f's_cbranch_scc0 {vl}')
    e.I('s_mov_b32 s31, 3')
    e.I('s_branch L_fail')
    e.L(vd)
    TS(e, 3)
    e.I(f'buffer_store_dwordx4 {vr(SENT)}, v13, {WS}, s43 offen sc1')
    ROR8 = 'row_ror:8 row_mask:0xf bank_mask:0xf'
    sm = [f'{SMF} {vr(DM+4*ct)}, {vr(VMF+4*m)}, {ar((ct*6+2*m)*4,8)}, v{IDX}' for m in range(3) for ct in range(4)]
    t = T0 + 2
    V = []
    for r in range(4): V.append(f'v_mov_b32_dpp v{S+4+r}, v{S+8+r} row_shr:8 row_mask:0xf bank_mask:0xc')
    V += [f'v_max3_f32 v{t}, v{S}, v{S+1}, v{S+2}', f'v_max3_f32 v{t+1}, v{S+3}, v{S+4}, v{S+5}', f'v_max3_f32 v{t}, v{t}, v{S+6}, v{S+7}', f'v_max_f32 v{t}, v{t}, v{t+1}',
          '*', '*', f'v_max_f32_dpp v{t}, v{t}, v{t} {ROR8}', f'v_mov_b32 v{t+1}, v{t}', '*', '*', f'v_permlane16_swap_b32 v{t}, v{t+1}', f'v_max_f32 v{t}, v{t}, v{t+1}',
          f'v_mov_b32 v{t+1}, v{t}', '*', '*', f'v_permlane32_swap_b32 v{t}, v{t+1}', f'v_max_f32 v{t}, v{t}, v{t+1}', f'v_mul_f32 v{t}, s53, v{t}']
    order = [4, 5, 6, 7, 0, 1, 2, 3]
    for i in order: V.append(f'v_fma_f32 v{S+i}, v{S+i}, s52, v{t}')
    for n_, i in enumerate(order):
        V.append(f'v_exp_f32 v{S+i}, v{S+i}')
    bulk = [f'buffer_load_dwordx4 {vr(VXF+4*q)}, v2, {WS}, {("s46", "s56", "s64")[q//4]} offen offset:{(q%4)*1024} sc1' for q in range(12)]
    bulk += [f'buffer_load_dwordx4 {vr(KXF+4*q)}, v2, {WS}, {("s65", "s66", "s67")[q//4]} offen offset:{(q%4)*1024} sc1' for q in range(12)]
    kin = bulk[:opt.kin]; kp = bulk[opt.kin:opt.kin + opt.kp]; kc = bulk[opt.kin + opt.kp:]
    assert opt.kin + opt.kp >= 12
    def ld():
        if kin: e.I(kin.pop(0))
    for x_ in sm[:opt.smpre]: e.I(x_)
    rest = sm[opt.smpre:]
    cost = 0; prev = None; nld = 0
    for x_ in V:
        if x_ == '*':
            if prev == '*' or cost == 0 or not rest: ld()
            else: e.I(rest.pop(0)); cost = 0
        else:
            e.I(x_); cost += 2 if 'v_exp' in x_ else 1
            if cost >= opt.smgap and rest: e.I(rest.pop(0)); cost = 0
            elif not rest and cost >= opt.ldgap: ld(); cost = 0
        prev = x_
    for x_ in rest: e.I(x_)
    e.I(f'v_cvt_pk_bf16_f32 v{PB}, v{S+4}, v{S+5}')
    e.I(f'v_cvt_pk_bf16_f32 v{PB+1}, v{S+6}, v{S+7}')
    e.I(f'v_cvt_pk_bf16_f32 v{PM}, v{S}, v{S+1}')
    e.I(f'v_cvt_pk_bf16_f32 v{PM+1}, v{S+2}, v{S+3}')
    e.I(f'v_mov_b32_dpp v{PB+2}, v{PB} {ROR8}')
    e.I(f'v_mov_b32_dpp v{PB+3}, v{PB+1} {ROR8}')
    e.I(f'v_mov_b32 v{t}, v{PM}')
    e.I(f'v_mov_b32 v{t+1}, v{PM+1}')
    TS(e, 4)
    def cvm(ct):
        e.I(f'v_cvt_pk_bf16_f32 v{VWM+2*ct}, v{DM+4*ct}, v{DM+4*ct+1}')
        e.I(f'v_cvt_pk_bf16_f32 v{VWM+2*ct+1}, v{DM+4*ct+2}, v{DM+4*ct+3}')
    SUM = S
    e.I(f'{MFMA} {vr(OUT)}, {vr(VWX)}, {vr(PB)}, 0')
    e.I(f'v_permlane32_swap_b32 v{t}, v{PM}')
    e.I(f'v_permlane32_swap_b32 v{t+1}, v{PM+1}')
    e.I(f'{MFMA} {vr(SUM)}, {ar(AONE)}, {vr(PB)}, 0')
    cvm(0)
    e.I(f'{MFMA} {vr(OUT+4)}, {vr(VWX+4)}, {vr(PB)}, 0')
    cvm(1)
    e.I(f'{MFMA} {vr(OUT+8)}, {vr(VWX+8)}, {vr(PB)}, 0')
    cvm(2)
    e.I(f'{MFMA} {vr(OUT+12)}, {vr(VWX+12)}, {vr(PB)}, 0')
    cvm(3)
    e.I(f'{MFMA16} {vr(OUT)}, {vr(VWM,2)}, {vr(PM,2)}, {vr(OUT)}')
    ld()
    e.I(f'{MFMA16} {vr(SUM)}, {ar(AHALF,2)}, {vr(PM,2)}, {vr(SUM)}')
    ld()
    for ct in range(1, 4):
        e.I(f'{MFMA16} {vr(OUT+4*ct)}, {vr(VWM+2*ct,2)}, {vr(PM,2)}, {vr(OUT+4*ct)}')
        if ct < 3: ld()
    e.I(f'ds_write_b128 v6, {vr(OUT)}')
    e.I(f'v_rcp_f32 v{t}, v{SUM}')
    e.I(f'ds_write_b128 v6, {vr(OUT+4)} offset:2048')
    e.I(f'ds_write_b32 v10, v{t}')
    e.I(f'ds_write_b128 v6, {vr(OUT+8)} offset:4096')
    e.I(f'ds_write_b128 v6, {vr(OUT+12)} offset:6144')
    while kin: ld()
    e.I('s_waitcnt lgkmcnt(0)')
    e.I('s_barrier')
    e.I(f'ds_read_b64 {vr(t,2)}, v11')
    e.I(f'ds_read_b128 {vr(S)}, v7')
    e.I(f'ds_read_b128 {vr(S+4)}, v7 offset:512')
    e.I('s_waitcnt lgkmcnt(1)')
    for k in range(4): e.I(f'v_mul_f32 v{S+k}, v{S+k}, v{t}')
    e.I('s_waitcnt lgkmcnt(0)')
    for k in range(4): e.I(f'v_fmac_f32 v{S+k}, v{S+4+k}, v{t+1}')
    for k in range(4): e.I(f'v_add_f32_dpp v{S+k}, v{S+k}, v{S+k} {ROR8}')
    e.I(f'buffer_store_dwordx4 {vr(S)}, v13, {WS}, s42 offen sc1')
    TS(e, 5)
    for x_ in kp: e.I(x_)
    if opt.pdelay: e.I(f's_sleep {opt.pdelay}')
    R = opt.pr
    sets = [PA, DW, DW + 16][:R]
    bases = {0: ['s41'] * 4, 1: ['s41', 's47', 's41', 's41'], 2: ['s41', 's47', 's41', 's47']}[opt.pfar]
    def shot(k):
        b = sets[k % R]
        for m in range(4): e.I(f'buffer_load_dwordx4 {vr(b+4*m)}, v4, {WS}, s41 offen offset:{m*512} sc1')
    ql, qd = e.lab('Lpp'), e.lab('Lpd')
    done = [e.lab('Lps') for _ in range(R)]
    for k in range(R - 1): shot(k)
    if opt.pdiag: e.I('s_mov_b32 s94, 0')
    e.L(ql)
    NIT = 12 if R == 3 else 4
    for k in range(NIT):
        shot(k + R - 1)
        if opt.pdiag:
            e.I('s_add_u32 s94, s94, 1')
            if k == 0:
                e.I('s_waitcnt vmcnt(4)')
                e.I('s_cmp_eq_u32 s94, 1')
                lb = e.lab('Lpdg'); e.I(f's_cbranch_scc0 {lb}'); TS(e, 8); e.L(lb)
        e.I(f's_waitcnt vmcnt({4*(R-1)})')
        check_sent(e, range(sets[k % R], sets[k % R] + 16), T0, T0 + 1)
        e.I(f's_cbranch_vccz {done[k % R]}')
    e.I('s_sub_u32 s31, s31, 1')
    e.I(f's_cbranch_scc0 {ql}')
    e.I('s_mov_b32 s31, 4')
    e.I('s_branch L_fail')
    for r_ in range(R):
        e.L(done[r_])
        b = sets[r_]
        for k in range(4):
            e.I(f'v_add_f32 v{T0+4+k}, v{b+k}, v{b+4+k}')
            e.I(f'v_add_f32 v{T0+8+k}, v{b+8+k}, v{b+12+k}')
        if r_ < R - 1: e.I(f's_branch {qd}')
    e.L(qd)
    TS(e, 6)
    for k in range(4):
        e.I(f'v_add_f32 v{T0+4+k}, v{T0+4+k}, v{T0+8+k}')
    e.I(f'v_permlane32_swap_b32 v{T0+4}, v{T0+6}')
    e.I(f'v_permlane32_swap_b32 v{T0+5}, v{T0+7}')
    e.I(f'v_add_f32 v{T0+4}, v{T0+4}, v{T0+6}')
    e.I(f'v_add_f32 v{T0+5}, v{T0+5}, v{T0+7}')
    e.I(f'v_cvt_pk_bf16_f32 v{T0+4}, v{T0+4}, v{T0+5}')
    e.I(f'v_min_u32 v{T0+4}, -2, v{T0+4}')
    e.I(f'buffer_store_dword v{T0+4}, v8, {WS}, s44 offen{fl}')
    TS(e, 7)
    e.I(f'buffer_store_dword v{SENT}, v8, {WS}, s45 offen{fl}')
    vw_x(None, kc)
    if not opt.pdiag: TS(e, 8)
    TSflush(e, 's30', 244, 245)
    e.I('s_add_u32 s30, s30, 1')
    e.I('s_cmp_lt_u32 s30, 63')
    e.I(f's_cbranch_scc1 {top}')
    e.I('s_endpgm')

def role_xw(e):
    OF = 16
    D = 112
    T0 = 160; ONE = 252
    e.I('s_sub_u32 s24, s21, 22')
    srd(e, 8, 66, 6144 * 1280)
    e.I(f's_mul_i32 s28, s20, {768*1280}')
    e.I('s_lshl_b32 s29, s24, 8')
    e.I('s_add_u32 s28, s28, s29')
    e.I('s_add_u32 s29, s28, 128')
    e.I(f'v_lshlrev_b32 v{ONE+1}, 2, v1')
    e.I('s_lshl_b32 s38, s20, 8')
    e.I(f's_add_u32 s38, s38, {FLGQ}')
    if opt.xlate & 1: wait_flags(e, ONE + 1, 's38', 1, T0, 15, sleep=16)
    load_weights(e, [('s[8:11]', 's28', 0, 768), ('s[8:11]', 's29', 96, 768)], 1280, 256, True, 3, 4)
    e.I(f'v_lshlrev_b32 v{ONE+1}, 2, v1')
    e.I('s_lshl_b32 s38, s20, 2')
    e.I('s_add_u32 s38, s38, s22')
    e.I('s_lshl_b32 s39, s38, 2')
    e.I('v_lshlrev_b32 v3, 7, v1')
    e.I('v_add_u32 v3, s39, v3')
    e.I(f'v_mov_b32 v{ONE}, 1')
    e.I('s_mul_i32 s62, s22, 12288')
    e.I('s_mul_i32 s63, s38, 12288')
    e.I(f's_add_u32 s63, s63, {OX}')
    e.I('s_mul_i32 s64, s20, 40960')
    e.I('s_lshl_b32 s65, s24, 2')
    e.I('s_add_u32 s65, s65, s22')
    e.I('s_lshl_b32 s65, s65, 10')
    e.I('s_add_u32 s64, s64, s65')
    e.I(f's_add_u32 s64, s64, {PX}')
    e.I('s_lshl_b32 s66, s24, 8')
    e.I(f's_add_u32 s66, s66, {FLGPX}')
    def pxflag():
        e.I('s_mov_b64 exec, 3')
        e.I(f'buffer_store_dword v{ONE}, v3, {WS}, s54 offen sc1')
        e.I('s_mov_b64 exec, -1')
    top, nof = e.lab('Lxt'), e.lab('Lxn')
    e.I('s_mov_b32 s30, 0')
    e.L(top)
    TS(e, 0)
    e.I('s_lshl_b32 s50, s30, 3')
    e.I('s_add_u32 s50, s50, s20')
    e.I('s_lshl_b32 s50, s50, 6')
    e.I(f's_add_u32 s50, s50, {FLGOX}')
    wait_flags(e, ONE + 1, 's50', 0xf, T0, 5, sleep=opt.xsleep)
    TS(e, 1)
    e.I('s_cmp_eq_u32 s30, 0')
    e.I(f's_cbranch_scc1 {nof}')
    pxflag()
    e.L(nof)
    e.I('s_barrier')
    e.I(f's_and_b32 s50, s30, {RD-1}')
    e.I(f's_mul_i32 s50, s50, {SEG_QX}')
    e.I('s_add_u32 s50, s50, s63')
    for m in range(12):
        e.I(f's_add_u32 m0, s62, {m*1024}')
        e.I(f'buffer_load_dwordx4 v2, {WS}, s50 offen sc1 lds')
        if m < 11: e.I('s_add_u32 s50, s50, 1024')
    e.I(f's_mul_i32 s50, s30, {SEG_PX}')
    e.I('s_add_u32 s50, s50, s64')
    e.I('s_add_u32 s51, s50, 20480')
    e.I('s_mul_i32 s54, s30, 1280')
    e.I('s_add_u32 s54, s54, s66')
    e.I('s_waitcnt vmcnt(0)')
    e.I('s_barrier')
    TS(e, 2)
    PF = 6
    def rd(kk):
        hl, p = kk // 6, kk % 6
        for qt in range(2):
            e.I(f'ds_read_b128 {vr(OF + ((2*kk+qt) % 24)*4)}, v2 offset:{hl*12288 + (qt*6+p)*1024}')
    for kk in range(PF): rd(kk)
    for kk in range(24):
        nxt = min(24, kk + PF) - (kk + 1)
        e.I(f's_waitcnt lgkmcnt({2*nxt})')
        for qt in range(2):
            for b in range(2):
                d = vr(D + 4*(qt*2+b))
                e.I(f'{MFMA} {d}, {ar(96*b+4*kk)}, {vr(OF + ((2*kk+qt) % 24)*4)}, {0 if kk == 0 else d}')
        if kk + PF < 24: rd(kk + PF)
    for qt, so in enumerate(('s50', 's51')):
        for k in range(4): e.I(f'v_cvt_pk_bf16_f32 v{D+16+4*qt+k}, v{D+8*qt+2*k}, v{D+8*qt+2*k+1}')
        if not opt.nopx: e.I(f'buffer_store_dwordx4 {vr(D+16+4*qt)}, v2, {WS}, {so} offen sc1')
    TS(e, 3)
    TSflush(e, 's30')
    e.I('s_add_u32 s30, s30, 1')
    e.I('s_cmp_lt_u32 s30, 64')
    e.I(f's_cbranch_scc1 {top}')
    e.I('s_waitcnt vmcnt(0)')
    pxflag()
    e.I('s_endpgm')

def role_att(e, slow):
    fl = ' sc1' if slow else ''
    QF, XPF, KF, VXF, VMF = 16, 64, 88, 136, 184
    S, P, T0 = 208, 220, 226
    PL = 196
    DO = 0
    C0, C1 = 232, 236
    ONE = 252
    e.I('s_sub_u32 s25, s21, 27')
    e.I('s_lshl_b32 s26, s20, 2')
    e.I('s_add_u32 s26, s26, s22')
    e.I(f's_mov_b32 s52, {SC_L2E:#x}'); e.I(f's_mov_b32 s53, {SC_L2E | 0x80000000:#x}')
    e.I(f'v_lshlrev_b32 v{ONE+1}, 2, v1')
    e.I('s_lshl_b32 s38, s22, 2')
    e.I(f'v_mov_b32 v{ONE+2}, s38')
    e.I(f'v_mov_b32 v{ONE}, 1')
    lane_ig(e, 14, 15)
    e.I(f'v_mov_b32 v3, {NEG_BIG:#x}')
    e.I('v_cmp_gt_u32 vcc, 32, v1')
    e.I(f'v_cndmask_b32 v{C0}, 0, v3, vcc')
    for k in range(1, 4): e.I(f'v_mov_b32 v{C0+k}, v{C0}')
    e.I('v_lshlrev_b32 v5, 2, v15')
    for r in range(4):
        e.I(f'v_add_u32 v6, {r}, v5')
        e.I('v_cmp_gt_u32 vcc, v6, v14')
        e.I(f'v_cndmask_b32 v{C1+r}, 0, v3, vcc')
    e.I('s_mul_i32 s58, s26, 6144')
    e.I('v_lshlrev_b32 v10, 7, v1')
    e.I('s_lshl_b32 s59, s22, 14')
    e.I('v_and_b32 v4, 3, v1')
    e.I('v_lshlrev_b32 v4, 8, v4')
    e.I('v_bfe_u32 v5, v1, 2, 3')
    e.I('v_lshl_add_u32 v5, v5, 4, v4')
    e.I('v_add_u32 v5, s59, v5')
    e.I('v_lshrrev_b32 v6, 2, v1')
    e.I('v_lshl_add_u32 v4, v6, 4, v4')
    e.I('v_add_u32 v4, s59, v4')
    e.I('v_cmp_gt_u32 vcc, 32, v1')
    for j in range(3):
        off = lambda kk: 12288 + (kk % 3) * 1024 + (kk // 3) * 128
        e.I(f'v_mov_b32 v6, {off(2*j+1)}')
        e.I(f'v_mov_b32 v11, {off(2*j)}')
        e.I('v_cndmask_b32 v6, v6, v11, vcc')
        e.I(f'v_add_u32 v{7+j}, v5, v6')
    def touch(sq, sx, dx, dm, do):
        n = 0
        jobs = []
        if dx is not None: jobs += [(sq, 0, b_ + dx * SEG_QX, 2) for b_ in (KX, VX, QX)]
        if do is not None: jobs += [(sq, 0, OX + do * SEG_QX, 2)]
        if dm is not None: jobs += [(sx, 0, XP + dm * SEG_XP, 1), (sx, 1, VM + dm * SEG_VM, 1)]
        for (sb, half, add, cnt) in jobs:
            if half:
                e.I(f's_lshr_b32 s48, {sb}, 1'); e.I(f's_add_u32 s48, s48, {add}')
            else:
                e.I(f's_add_u32 s48, {sb}, {add}')
            for c_ in range(cnt):
                if c_: e.I('s_add_u32 s48, s48, 4096')
                e.I(f'buffer_load_dword v11, v10, {WS}, s48 offen sc1'); n += 1
        return n
    if opt.touch:
        e.I(f's_mul_i32 s40, s25, {SEG_QX}')
        e.I('s_lshl_b32 s41, s58, 1')
        e.I('s_add_u32 s40, s40, s41')
        e.I(f's_mul_i32 s41, s25, {SEG_XP}')
        e.I('s_add_u32 s41, s41, s58')
        e.I('s_lshl_b32 s51, s26, 6')
        e.I(f's_add_u32 s51, s51, {FLGQ}')
        if opt.xlate & 2: wait_flags(e, ONE + 1, 's51', 1, T0, 15, sleep=16)
        for k_ in range(2, RD, 2): touch('s40', 's41', k_, None, None)
        e.I('s_waitcnt vmcnt(0)')
        for k_ in range(0, RD, 2): touch('s40', 's41', None, k_, k_)
    e.I('v_lshrrev_b32 v12, 2, v1')
    e.I('v_lshlrev_b32 v12, 8, v12')
    e.I('v_and_b32 v13, 3, v1')
    e.I('v_lshl_add_u32 v12, v13, 2, v12')
    e.I('s_lshl_b32 s38, s20, 4')
    e.I('v_add_u32 v12, s38, v12')
    top = e.lab('Lat')
    e.I('s_mov_b32 s30, s25')
    e.L(top)
    TS(e, 0)
    e.I('s_add_u32 s51, s30, 2')
    e.I('s_lshl_b32 s51, s51, 5')
    e.I('s_add_u32 s51, s51, s26')
    e.I('s_lshl_b32 s51, s51, 6')
    e.I(f's_add_u32 s51, s51, {FLGQ}')
    e.I(f's_and_b32 s42, s30, {RD-1}')
    e.I(f's_mul_i32 s40, s42, {SEG_QX}')
    e.I('s_lshl_b32 s41, s58, 1')
    e.I('s_add_u32 s40, s40, s41')
    e.I(f's_mul_i32 s41, s42, {SEG_XP}')
    e.I('s_add_u32 s41, s41, s58')
    nbp = e.lab('Lab')
    e.I(f's_cmp_lt_u32 s30, {RD}')
    e.I(f's_cbranch_scc1 {nbp}')
    e.I(f's_sub_u32 s50, s30, {RD}')
    e.I('s_mul_i32 s50, s50, 1280')
    e.I(f's_add_u32 s50, s50, {FLGPX}')
    wait_flags(e, 12, 's50', 0xfffff, T0, 14, sleep=16)
    e.L(nbp)
    wait_flags(e, ONE + 1, 's51', 0xfff, T0, 6, sleep=opt.asleep)
    TS(e, 1)
    def loads(dst, n, sbase, add, w=4, va=2):
        e.I(f's_add_u32 s48, {sbase}, {add}')
        per = 4096 // (256 * w)
        for q in range(n):
            if q and q % per == 0: e.I('s_add_u32 s48, s48, 4096')
            e.I(f'buffer_load_dwordx{w} {vr(dst+w*q, w)}, v{va}, {WS}, s48 offen offset:{(q%per)*256*w} sc1')
    loads(XPF, 6, 's41', XP)
    loads(KF, 6, 's40', KX)
    loads(QF, 6, 's40', QX)
    e.I('s_lshr_b32 s42, s41, 1')
    e.I(f's_add_u32 s48, s42, {VM}')
    for q in range(3):
        e.I(f's_add_u32 m0, s59, {12288 + q*1024}')
        e.I(f'buffer_load_dwordx4 v2, {WS}, s48 offen sc1 lds')
        e.I('s_add_u32 s48, s48, 1024')
    e.I(f's_add_u32 s48, s40, {VX}')
    for q in range(12):
        e.I(f's_add_u32 m0, s59, {q*1024}')
        e.I(f'buffer_load_dwordx4 v2, {WS}, s48 offen sc1 lds')
        e.I('s_add_u32 s48, s48, 1024')
    loads(KF + 24, 6, 's40', KX + 6144)
    loads(QF + 24, 6, 's40', QX + 6144)
    NT = 0
    for qt in range(2):
        e.I(f's_waitcnt vmcnt({(27 if qt == 0 else 6) + NT})')
        if qt == 0: TS(e, 2)
        for p in range(6):
            q = vr(QF + 24*qt + 4*p)
            e.I(f'{MFMA} {vr(S)}, {vr(XPF+4*p)}, {q}, {vr(C0) if p == 0 else vr(S)}')
            e.I(f'{MFMA} {vr(S+4)}, {vr(KF+4*p)}, {q}, {(vr(C1) if qt == 0 else 0) if p == 0 else vr(S+4)}')
            if qt == 1: e.I(f'{MFMA} {vr(S+8)}, {vr(KF+24+4*p)}, {q}, {vr(C1) if p == 0 else vr(S+8)}')
        if qt == 0:
            for k in range(4): e.I(f'v_mov_b32 v{S+8+k}, v3')
        softmax12(e, S, P, T0)
        e.I(f'v_mov_b32 v{PL}, 0')
        e.I(f'v_mov_b32 v{PL+1}, 0')
        e.I(f'v_mov_b32 v{T0}, v{P}')
        e.I(f'v_mov_b32 v{T0+1}, v{P+1}')
        e.I(f'v_permlane32_swap_b32 v{T0}, v{PL}')
        e.I(f'v_permlane32_swap_b32 v{T0+1}, v{PL+1}')
        e.I(f's_add_u32 s48, s40, {OX + qt*6144}')
        e.I('s_add_u32 s49, s48, 4096')
        if qt == 0:
            e.I(f's_waitcnt vmcnt({12 + NT})')
            for j in range(3):
                for t in range(2):
                    e.I(f'ds_read_b64_tr_b16 {vr(VMF+4*j+2*t,2)}, v{7+j} offset:{t*8}')
            for T in range(12):
                for rt in range(2):
                    e.I(f'ds_read_b64_tr_b16 {vr(VXF+4*T+2*rt,2)}, v4 offset:{rt*6144 + (T>>1)*1024 + (T&1)*8}')
            e.I('s_waitcnt lgkmcnt(0)')
        def fin(p):
            dp = DO + 8 * (p % 2); op_ = QF + 24*qt + 4 * p
            for k in range(8): e.I(f'v_accvgpr_read_b32 v{240+k}, a{dp+k}')
            for k in range(4): e.I(f'v_cvt_pk_bf16_f32 v{op_+k}, v{240+2*k}, v{240+2*k+1}')
            e.I(f'buffer_store_dwordx4 {vr(op_)}, v2, {WS}, {"s48" if p < 4 else "s49"} offen offset:{(p%4)*1024}{fl}')
        for p in range(6):
            d = DO + 8 * (p % 2)
            for t in range(2):
                e.I(f'{MFMA16} {ar(d+4*t)}, {vr(VMF+4*(p>>1)+2*t,2)}, {vr(PL,2) if p % 2 == 0 else vr(P,2)}, 0')
            for t in range(2):
                e.I(f'{MFMA} {ar(d+4*t)}, {vr(VXF+4*(2*p+t))}, {vr(P+2)}, {ar(d+4*t)}')
            if p > 0: fin(p - 1)
        fin(5)
    e.I('s_lshl_b32 s50, s30, 3')
    e.I('s_add_u32 s50, s50, s20')
    e.I('s_lshl_b32 s50, s50, 6')
    e.I(f's_add_u32 s50, s50, {FLGOX}')
    e.I('s_waitcnt vmcnt(0)')
    set_flag(e, ONE + 2, 's50', ONE, fl)
    TS(e, 3)
    TSflush(e, 's30', 230, 231)
    e.I('s_add_u32 s30, s30, 2')
    e.I('s_cmp_lt_u32 s30, 64')
    e.I(f's_cbranch_scc1 {top}')
    e.I('s_endpgm')

F_LX, F_LH = 0, 98304
def role_ffn(e):
    ACC2 = 0
    ACC1 = 16
    BF = 48
    HP = 80
    WR = 96
    NW = 40
    e.I('s_sub_u32 s26, s21, 29')
    e.I('s_mul_i32 s25, s20, 3')
    e.I('s_add_u32 s26, s26, s25')
    e.I('s_mov_b32 s24, s26')
    e.L('L_ffn_task')
    e.I('s_lshl_b32 s38, s24, 2')
    e.I('s_add_u32 s38, s38, s22')
    e.I('s_mul_i32 s39, s38, 20480')
    e.I(f's_add_u32 s39, s39, {XN}')
    e.I('s_mul_i32 s40, s22, 20480')
    for m in range(20):
        e.I(f's_add_u32 m0, s40, {m*1024}')
        e.I(f'buffer_load_dwordx4 v2, {WS}, s39 offen lds')
        e.I('s_add_u32 s39, s39, 1024')
    for k in range(160): e.I(f'v_accvgpr_write_b32 a{k}, 0')
    e.I('s_mul_i32 s41, s22, 40960')
    e.I(f's_add_u32 s41, s41, {W1F}')
    e.I(f's_mul_i32 s42, s22, {10*48*1024}')
    e.I(f's_add_u32 s42, s42, {W2F}')
    e.I('v_add_u32 v3, 20480, v2')
    for u in range(10):
        e.I(f's_mov_b32 s54, {u*48*1024}')
        e.I(f'v_add_u32 v{4+u}, s54, v2')
    e.I(f'v_add_u32 v14, {F_LH}, v2')
    e.I('s_lshl_b32 s38, s22, 12')
    e.I('v_add_u32 v15, s38, v14')
    def wload(idx, adv):
        dst = vr(WR + (idx % NW) * 4)
        if idx < 40:
            kk, u = idx // 2, idx % 2
            e.I(f's_add_u32 s45, {adv[0]}, {(kk//4)*4096}')
            e.I(f'buffer_load_dwordx4 {dst}, v{2+u}, {WS}, s45 offen offset:{(kk%4)*1024}{" nt" if opt.ffnnt else ""}')
        else:
            pp, u = (idx - 40) // 10, (idx - 40) % 10
            e.I(f'buffer_load_dwordx4 {dst}, v{4+u}, {WS}, {adv[1]} offen offset:{pp*1024}{" nt" if opt.ffnnt else ""}')
    for idx in range(NW - 2): wload(idx, ('s41', 's42'))
    e.I(f's_waitcnt vmcnt({NW-2})')
    e.I('s_barrier')
    top = e.lab('Lft')
    TS(e, 0)
    e.I('s_mov_b32 s30, 0')
    e.L(top)
    e.I('s_cmp_lt_u32 s30, 11')
    e.I('s_cselect_b32 s46, 163840, 0')
    e.I('s_cselect_b32 s47, 4096, 0')
    e.I('s_add_u32 s43, s41, s46')
    e.I('s_add_u32 s44, s42, s47')
    D = NW - 2
    def pref(idx):
        j = idx + D
        if j < 80: wload(j, ('s41', 's42'))
        else: wload(j - 80, ('s43', 's44'))
    def rdx(kk):
        for rt in range(4):
            e.I(f'ds_read_b128 {vr(BF + ((kk%2)*4+rt)*4)}, v{2 if rt < 3 else 3} offset:{(rt if rt < 3 else 2)*20480 + kk*1024}')
    rdx(0)
    for kk in range(20):
        if kk + 1 < 20: rdx(kk + 1)
        e.I(f's_waitcnt vmcnt({D-2}) lgkmcnt({4 if kk+1 < 20 else 0})')
        for u in range(2):
            idx = 2 * kk + u
            for rt in range(4):
                d = vr(ACC1 + (u*4+rt)*4)
                e.I(f'{MFMA} {d}, {vr(WR+(idx%NW)*4)}, {vr(BF+((kk%2)*4+rt)*4)}, {0 if kk == 0 else d}')
        pref(2 * kk); pref(2 * kk + 1)
    for rt in range(4):
        for u in range(2):
            d = ACC1 + (u*4+rt)*4
            for k in range(4): e.I(f'v_max_f32 v{d+k}, 0, v{d+k}')
            e.I(f'v_cvt_pk_bf16_f32 v{HP+rt*4+2*u}, v{d}, v{d+1}')
            e.I(f'v_cvt_pk_bf16_f32 v{HP+rt*4+2*u+1}, v{d+2}, v{d+3}')
        e.I(f'ds_write_b128 v15, {vr(HP+rt*4)} offset:{rt*1024}')
    e.I('s_waitcnt lgkmcnt(0)')
    e.I('s_barrier')
    def rdh(pp):
        for rt in range(4):
            e.I(f'ds_read_b128 {vr(BF + ((pp%2)*4+rt)*4)}, v14 offset:{pp*4096 + rt*1024}')
    rdh(0)
    for pp in range(4):
        if pp + 1 < 4: rdh(pp + 1)
        for u in range(10):
            idx = 40 + pp * 10 + u
            w = f's_waitcnt vmcnt({D-1})'
            if u == 0: w += f' lgkmcnt({4 if pp+1 < 4 else 0})'
            e.I(w)
            for rt in range(4):
                d = ar(ACC2 + (u*4+rt)*4)
                e.I(f'{MFMA} {d}, {vr(WR+(idx%NW)*4)}, {vr(BF+((pp%2)*4+rt)*4)}, {d}')
            pref(idx)
    e.I('v_xor_b32 v14, 16384, v14')
    e.I('v_xor_b32 v15, 16384, v15')
    e.I('s_mov_b32 s41, s43')
    e.I('s_mov_b32 s42, s44')
    e.I('s_add_u32 s30, s30, 1')
    e.I('s_cmp_lt_u32 s30, 12')
    e.I(f's_cbranch_scc1 {top}')
    e.I('s_waitcnt vmcnt(0)')
    TS(e, 1)
    e.I('v_lshlrev_b32 v3, 3, v1')
    e.I(f's_mul_i32 s38, s24, {4*40*512}')
    e.I(f's_mul_i32 s39, s22, {10*512}')
    e.I('s_add_u32 s38, s38, s39')
    e.I(f's_add_u32 s38, s38, {G_}')
    e.I(f's_mov_b32 s52, {f2u(-1.4426950408889634):#x}')
    for rt in range(4):
        e.I(f's_add_u32 s39, s38, {rt*40*512}')
        e.I('s_add_u32 s40, s39, 4096')
        for u in range(10):
            t = 16 + ((rt*10+u) % 4) * 16
            a0 = ACC2 + (u*4+rt)*4
            for k in range(4): e.I(f'v_accvgpr_read_b32 v{t+k}, a{a0+k}')
            e.I(f'v_cvt_pk_bf16_f32 v{t+4}, v{t}, v{t+1}')
            e.I(f'v_cvt_pk_bf16_f32 v{t+5}, v{t+2}, v{t+3}')
            e.I(f'v_lshlrev_b32 v{t}, 16, v{t+4}')
            e.I(f'v_and_b32 v{t+1}, 0xffff0000, v{t+4}')
            e.I(f'v_lshlrev_b32 v{t+2}, 16, v{t+5}')
            e.I(f'v_and_b32 v{t+3}, 0xffff0000, v{t+5}')
            for k in range(4): e.I(f'v_mul_f32 v{t+4+k}, s52, v{t+k}')
            for k in range(4): e.I(f'v_exp_f32 v{t+4+k}, v{t+4+k}')
            for k in range(4): e.I(f'v_add_f32 v{t+4+k}, 1.0, v{t+4+k}')
            for k in range(4): e.I(f'v_rcp_f32 v{t+4+k}, v{t+4+k}')
            for k in range(4): e.I(f'v_mul_f32 v{t+k}, v{t+k}, v{t+4+k}')
            e.I(f'v_cvt_pk_bf16_f32 v{t+8}, v{t}, v{t+1}')
            e.I(f'v_cvt_pk_bf16_f32 v{t+9}, v{t+2}, v{t+3}')
            e.I(f'buffer_store_dwordx2 {vr(t+8,2)}, v3, {WS}, {"s39" if u < 8 else "s40"} offen offset:{(u%8)*512} sc1')
    e.I('s_waitcnt vmcnt(0)')
    TS(e, 2)
    if opt.ts: e.I('s_lshr_b32 s50, s24, 3'); e.I('s_add_u32 s50, s50, 64')
    TSflush(e, 's50')
    e.I('s_barrier')
    e.I('s_cmp_lg_u32 s22, 0')
    e.I('s_cbranch_scc1 L_ffn_nf')
    e.I('v_mov_b32 v4, 1')
    e.I('s_lshl_b32 s38, s24, 2')
    e.I('v_mov_b32 v5, s38')
    e.I(f's_mov_b32 s39, {FLGG}')
    set_flag(e, 5, 's39', 4, ' sc1')
    e.I('s_waitcnt vmcnt(0)')
    e.L('L_ffn_nf')
    e.I('s_cmp_ge_u32 s26, 8')
    e.I(f's_cbranch_scc1 {"L_end" if opt.nocmb else "L_cmb"}')
    e.I('s_add_u32 s24, s24, 24')
    e.I('s_cmp_lt_u32 s24, 32')
    e.I('s_cbranch_scc1 L_ffn_task')
    e.I('s_endpgm')

def role_cmb(e):
    PXR = 16
    GR = 144
    XR_ = 152
    T0 = 160
    srd(e, 8, 68, 2048 * 1280)
    srd(e, 12, 70, 2048 * 1280)
    e.I('s_sub_u32 s24, s26, 8')
    e.I('s_lshl_b32 s24, s24, 2')
    e.I('s_add_u32 s30, s24, s22')
    e.I('v_lshlrev_b32 v3, 2, v1')
    e.I('v_lshlrev_b32 v4, 3, v1')
    e.I('v_mov_b32 v6, 0')
    lane_ig(e, 14, 15)
    e.I('v_mul_u32_u24 v5, 1280, v14')
    e.I('v_lshl_add_u32 v5, v15, 3, v5')
    e.I('s_mov_b32 s49, 0')
    top = e.lab('Lct')
    e.L(top)
    TS(e, 0)
    e.I('s_mul_i32 s38, s30, 3277')
    e.I('s_lshr_b32 s38, s38, 16')
    e.I('s_mul_i32 s39, s38, 20')
    e.I('s_sub_u32 s39, s30, s39')
    e.I('s_cmp_ge_u32 s39, 10')
    e.I('s_cselect_b32 s40, 1, 0')
    e.I('s_mul_i32 s41, s40, 10')
    e.I('s_sub_u32 s41, s39, s41')
    e.I(f's_add_u32 s42, s38, {opt.clag}')
    e.I('s_min_u32 s42, s42, 63')
    e.I('s_lshl_b32 s42, s42, 3')
    e.I('s_add_u32 s42, s42, s20')
    e.I('s_lshl_b32 s42, s42, 6')
    e.I(f's_add_u32 s42, s42, {FLGOX}')
    wait_flags(e, 6, 's42', 1, T0, 9, sleep=opt.lsleep)
    gok = e.lab('Lcg')
    e.I('s_cmp_lg_u32 s49, 0')
    e.I(f's_cbranch_scc1 {gok}')
    e.I(f's_mov_b32 s42, {FLGG}')
    e.I('s_mov_b32 exec_hi, 0')
    e.I(f'buffer_load_dword v{T0}, v3, {WS}, s42 offen sc1')
    e.I('s_waitcnt vmcnt(0)')
    e.I(f'v_cmp_eq_u32 vcc, 0, v{T0}')
    e.I('s_mov_b64 exec, -1')
    e.I('s_cmp_eq_u32 vcc_lo, 0')
    e.I('s_cselect_b32 s49, 1, 0')
    e.I(f's_cbranch_scc1 {gok}')
    e.I('s_lshr_b32 s42, s38, 1')
    e.I('s_lshl_b32 s42, s42, 2')
    e.I(f's_add_u32 s42, s42, {FLGG}')
    wait_flags(e, 6, 's42', 1, T0, 7, sleep=32)
    e.L(gok)
    e.I('s_mul_i32 s42, s38, 10')
    e.I('s_and_b32 s44, s41, 14')
    e.I('s_add_u32 s42, s42, s44')
    e.I('s_lshl_b32 s42, s42, 7')
    e.I(f's_add_u32 s42, s42, {FLGPX}')
    wait_flags(e, 3, 's42', 0xffffffff, T0, 8, sleep=opt.csleep)
    TS(e, 1)
    e.I(f's_mul_i32 s43, s38, {SEG_PX}')
    e.I('s_mul_i32 s44, s40, 20480')
    e.I('s_add_u32 s43, s43, s44')
    e.I('s_lshl_b32 s44, s41, 11')
    e.I('s_add_u32 s43, s43, s44')
    e.I(f's_add_u32 s43, s43, {PX}')
    e.I('s_lshl_b32 s45, s38, 1')
    e.I('s_add_u32 s45, s45, s40')
    e.I('s_mul_i32 s46, s45, 20480')
    e.I('s_lshr_b32 s47, s41, 1')
    e.I('s_lshl_b32 s47, s47, 2')
    e.I('s_and_b32 s48, s41, 1')
    e.I('s_add_u32 s44, s47, s48')
    e.I('s_lshl_b32 s47, s44, 10')
    e.I('s_add_u32 s47, s47, s46')
    e.I(f's_add_u32 s47, s47, {G_}')
    e.I('s_lshl_b32 s48, s44, 6')
    e.I('s_add_u32 s48, s48, s46')
    TO = (0, 4, 1, 5)
    for t in range(4):
        if not opt.cdiag & 1: e.I(f'buffer_load_dwordx2 {vr(GR+2*t,2)}, v4, {WS}, s47 offen offset:{TO[t]*512} sc1')
        if not opt.cdiag & 2: e.I(f'buffer_load_dwordx2 {vr(XR_+2*t,2)}, v5, s[8:11], s48 offen offset:{TO[t]*32}')
    RAW = PXR + 32
    def ld(x):
        for t in range(2):
            if not opt.cdiag & 4: e.I(f'buffer_load_dwordx4 {vr(RAW+(x*2+t)*4)}, v2, {WS}, s43 offen offset:{t*1024} sc1')
        if x < 7: e.I('s_add_u32 s43, s43, 40960')
    def body(depth):
        for x in range(min(depth, 8)): ld(x)
        for x in range(8):
            left = min(depth - 1, 7 - x)
            e.I(f's_waitcnt vmcnt({left*2})')
            if x + depth < 8: ld(x + depth)
            for k in range(8):
                d = PXR + (0 if x == 0 else 16) + 2 * k
                e.I(f'v_lshlrev_b32 v{d}, 16, v{RAW+x*8+k}')
                e.I(f'v_and_b32 v{d+1}, 0xffff0000, v{RAW+x*8+k}')
            if x:
                for k in range(16):
                    e.I(f'v_add_f32 v{PXR+k}, v{PXR+k}, v{PXR+16+k}')
    fast, join = e.lab('Lcf'), e.lab('Lcj')
    e.I('s_cmp_ge_u32 s38, 61')
    e.I(f's_cbranch_scc1 {fast}')
    body(opt.cdepth)
    e.I(f's_branch {join}')
    e.L(fast)
    body(8)
    e.L(join)
    for t in range(4):
        b = PXR + 4 * t; u = T0 + 8 * (t % 2)
        e.I(f'v_cvt_pk_bf16_f32 v{u}, v{b}, v{b+1}')
        e.I(f'v_cvt_pk_bf16_f32 v{u+1}, v{b+2}, v{b+3}')
        for h_ in range(2):
            e.I(f'v_lshlrev_b32 v{b+2*h_}, 16, v{u+h_}')
            e.I(f'v_and_b32 v{b+2*h_+1}, 0xffff0000, v{u+h_}')
            e.I(f'v_lshlrev_b32 v{u+2+2*h_}, 16, v{GR+2*t+h_}')
            e.I(f'v_and_b32 v{u+3+2*h_}, 0xffff0000, v{GR+2*t+h_}')
        for k in range(4): e.I(f'v_mul_f32 v{b+k}, v{b+k}, v{u+2+k}')
        e.I(f'v_cvt_pk_bf16_f32 v{u}, v{b}, v{b+1}')
        e.I(f'v_cvt_pk_bf16_f32 v{u+1}, v{b+2}, v{b+3}')
        for h_ in range(2):
            e.I(f'v_lshlrev_b32 v{b+2*h_}, 16, v{u+h_}')
            e.I(f'v_and_b32 v{b+2*h_+1}, 0xffff0000, v{u+h_}')
            e.I(f'v_lshlrev_b32 v{u+2+2*h_}, 16, v{XR_+2*t+h_}')
            e.I(f'v_and_b32 v{u+3+2*h_}, 0xffff0000, v{XR_+2*t+h_}')
        for k in range(4): e.I(f'v_add_f32 v{b+k}, v{b+k}, v{u+2+k}')
        e.I(f'v_cvt_pk_bf16_f32 v{u+6}, v{b}, v{b+1}')
        e.I(f'v_cvt_pk_bf16_f32 v{u+7}, v{b+2}, v{b+3}')
        if not opt.cdiag & 8: e.I(f'buffer_store_dwordx2 {vr(u+6,2)}, v5, s[12:15], s48 offen offset:{TO[t]*32}')
    TS(e, 2)
    if opt.ts: e.I('s_lshr_b32 s50, s30, 6')
    TSflush(e, 's50')
    e.I('s_add_u32 s30, s30, 64')
    e.I('s_cmp_lt_u32 s30, 1280')
    e.I(f's_cbranch_scc1 {top}')
    e.I('s_endpgm')

def gen_mainkernel(e):
    kernel_head(e, MAIN)
    e.I('s_cmp_ge_u32 s2, 256')
    e.I('s_cbranch_scc1 L_end')
    e.I('s_load_dwordx2 s[32:33], s[0:1], 96')
    e.I('s_load_dwordx4 s[60:63], s[0:1], 16')
    e.I('s_load_dwordx4 s[64:67], s[0:1], 32')
    e.I('s_load_dwordx2 s[68:69], s[0:1], 0')
    e.I('s_load_dwordx4 s[72:75], s[0:1], 80')
    TS(e, 0)
    e.I('s_getreg_b32 s24, hwreg(HW_REG_XCC_ID)')
    e.I('s_and_b32 s24, s24, 15')
    e.I('v_and_b32 v1, 63, v0')
    e.I('v_lshlrev_b32 v2, 4, v1')
    e.I('v_lshrrev_b32 v3, 6, v0')
    e.I('v_readfirstlane_b32 s22, v3')
    e.I('s_waitcnt lgkmcnt(0)')
    e.I('s_mov_b64 s[70:71], s[72:73]')
    srd(e, 4, 32, WS_BYTES)
    e.I('s_cmp_lg_u32 s22, 0')
    e.I('s_cbranch_scc1 L_role')
    e.I('s_mov_b64 exec, 1')
    e.I('s_lshl_b32 s25, s24, 7')
    e.I('v_mov_b32 v3, s25')
    e.I('v_mov_b32 v4, 1')
    e.I(f'buffer_atomic_add v4, v3, {WS}, 0 offen sc0')
    e.I('s_mov_b64 exec, 0xffff')
    e.I('v_lshlrev_b32 v3, 7, v1')
    e.I('s_waitcnt vmcnt(0)')
    e.I('v_readfirstlane_b32 s25, v4')
    e.I(f's_mov_b32 s31, {TMO}')
    e.L('L_cnt')
    e.I(f'buffer_load_dword v5, v3, {WS}, 0 offen sc1')
    e.I('s_waitcnt vmcnt(0)')
    for y in range(16): e.I(f'v_readlane_b32 s{36+y}, v5, {y}')
    e.I('s_nop 3')
    e.I('s_mov_b32 s26, 0'); e.I('s_mov_b32 s27, s25'); e.I('s_mov_b32 s23, 0')
    for y in range(16):
        e.I(f's_add_u32 s26, s26, s{36+y}')
        e.I(f's_cmp_gt_u32 s24, {y}')
        e.I(f's_cselect_b32 s28, s{36+y}, 0')
        e.I('s_add_u32 s27, s27, s28')
        if y < 8:
            e.I(f's_cmp_lg_u32 s{36+y}, 32')
            e.I('s_cselect_b32 s23, 1, s23')
    e.I('s_cmp_eq_u32 s26, 256')
    e.I('s_cbranch_scc1 L_cntd')
    e.I('s_sub_u32 s31, s31, 1')
    e.I('s_cbranch_scc0 L_cnt')
    e.I('s_mov_b32 s23, 2')
    e.L('L_cntd')
    if opt.force_slow:
        e.I('s_mov_b32 s23, 1')
        e.I('s_mov_b32 s27, s2')
    e.I('s_lshr_b32 s20, s27, 5')
    e.I('s_and_b32 s21, s27, 31')
    e.I('v_mov_b32 v4, s20'); e.I('v_mov_b32 v5, s21'); e.I('v_mov_b32 v6, s23'); e.I('v_mov_b32 v7, 0')
    e.I(f'v_mov_b32 v3, {LDS_ROLE}')
    e.I('ds_write_b128 v3, v[4:7]')
    e.I('s_waitcnt lgkmcnt(0)')
    e.I('s_mov_b64 exec, -1')
    e.L('L_role')
    e.I('s_barrier')
    e.I(f'v_mov_b32 v3, {LDS_ROLE}')
    e.I('ds_read_b128 v[4:7], v3')
    e.I('s_waitcnt lgkmcnt(0)')
    e.I('v_readfirstlane_b32 s20, v4')
    e.I('v_readfirstlane_b32 s21, v5')
    e.I('v_readfirstlane_b32 s23, v6')
    e.I('s_nop 3')
    e.I('s_and_b32 s20, s20, 7')
    e.I('s_cmp_ge_u32 s23, 2')
    e.I('s_cbranch_scc1 L_end')
    TS(e, 1)
    TSflush(e, '70')
    if opt.nobg: e.I('s_cmp_ge_u32 s21, 22'); e.I('s_cbranch_scc1 L_end')
    e.I('s_cmp_ge_u32 s21, 29'); e.I(f's_cbranch_scc1 {"L_end" if opt.nofc else "L_ffn"}')
    e.I('s_sub_u32 s24, s21, 22'); e.I('s_cmp_lt_u32 s24, 5'); e.I('s_cbranch_scc1 L_xw')
    e.I('s_cmp_lg_u32 s23, 0'); e.I('s_cbranch_scc1 L_slow')
    for slow in (False, True):
        sfx = 's' if slow else 'f'
        if slow: e.L('L_slow')
        e.I('s_cmp_ge_u32 s21, 22'); e.I(f's_cbranch_scc1 L_att{sfx}')
        e.I('s_cmp_ge_u32 s21, 12'); e.I(f's_cbranch_scc1 L_wo{sfx}')
        role_qkv(e, slow)
        e.L(f'L_wo{sfx}'); role_sw(e, slow)
        e.L(f'L_att{sfx}'); role_att(e, slow)
    e.L('L_xw'); role_xw(e)
    e.L('L_ffn'); role_ffn(e)
    e.L('L_cmb'); role_cmb(e)
    e.L('L_fail')
    e.I('s_mov_b64 exec, 1')
    e.I('s_lshl_b32 s31, s31, 2')
    e.I('v_mov_b32 v3, s31')
    e.I('v_mov_b32 v4, 1')
    e.I('global_atomic_add v3, v4, s[74:75]')
    e.L('L_end')
    e.I('s_endpgm')

def build(path):
    hdr = open('cdna_kernels/' + NAME + '.s.ref').read().split('\n')
    e = Em()
    for l in hdr:
        if l.startswith(';') and '@launch' not in l and 'Override launch' not in l and 'grid=ceil' not in l: e.raw(l)
    e.raw(f'; @launch kernel={PRE} grid=({PRE_GRID},1,1) block=(256,1,1) lds={PRE_LDS}')
    e.raw(f'; @launch kernel={MAIN} grid=(256,1,1) block=(256,1,1) lds={LDS_TOTAL}')
    e.raw('.amdgcn_target "amdgcn-amd-amdhsa--gfx950"')
    gen_pre(e, PRE)
    gen_mainkernel(e)
    kernel_desc(e, PRE, 80, 48, 80)
    kernel_desc(e, MAIN, 512, 96, 256)
    lines, added = hazard.pad(e.lines)
    open(path, 'w').write('\n'.join(lines) + '\n')
    n = sum(1 for l in lines if l.startswith('    ') and not l.strip().startswith(';'))
    print(f'wrote {path}: {n} instructions, {added} nops added')

if __name__ == '__main__':
    out = sys.argv[1] if len(sys.argv) > 1 else 'cdna_kernels/' + NAME + '.s'
    if 'slow' in sys.argv[2:]: opt.force_slow = True
    if 'ts' in sys.argv[2:]: opt.ts = True
    for k in ('nobg', 'ackpoll', 'noxw'):
        if k in sys.argv[2:]: setattr(opt, k, True)
    for a_ in sys.argv[2:]:
        if '=' in a_: k_, v_ = a_.split('='); setattr(opt, k_, int(v_))
    build(out)
```

```python
import sys, struct
from asmlib import *
from layout import *
import hazard
from gen_pre import gen_pre, PRE_GRID, PRE_LDS

NAME = 'recurrent_scan__memory_aug_recurrent_mem_tr__dense_activation_relu__prompt'
MAIN = NAME + '_kernel'
PRE = 'prep_kernel'
LDS_TOTAL = 131328
LDS_ROLE = 131072
TMO = 1 << 18
def f2u(x): return struct.unpack('<I', struct.pack('<f', x))[0]
SC_L2E = f2u(192 ** -0.5 * 1.4426950408889634)
NEG_BIG = f2u(-1e30)
MFMA = 'v_mfma_f32_16x16x32_bf16'
MFMA16 = 'v_mfma_f32_16x16x16_bf16'
SMF = 'v_smfmac_f32_16x16x64_bf16'
WS = 's[4:7]'

class Opt:
    force_slow = False
    ts = False
    nobg = False
    ackpoll = False
    noxw = False
    pdelay = 8
    vdelay = 0
    kbar = 0
    kpre = 12
    kin = 12
    fresh = 0
    pdiag = 0
    pflip = 0
    touch = 1
    nofc = 0
    nopx = 0
    nocmb = 0
    cdepth = 1
    ffnnt = 0
    pr = 1
    pfar = 0
    vpre = 2
    vmpos = 1
    smpre = 1
    smgap = 2
    ldgap = 4
    kp = 0
    kcs = 0
    kce = 12
    xlate = 0
    csleep = 8
    clag = 2
    lsleep = 8
    xsleep = 2
    asleep = 2
    cdiag = 0
    xpf = 10
    xdma0 = 10
    xdmas = 1
    pbf = 1
    rpos = 2
    mbar = 1
    pspin = 0
    nobulk = 0
opt = Opt()

def vr(i, n=4): return f'v[{i}:{i+n-1}]'
def ar(i, n=4): return f'a[{i}:{i+n-1}]'

def maxchain(e, dst, regs, op='u32'):
    regs = list(regs)
    e.I(f'v_max3_{op} v{dst}, v{regs[0]}, v{regs[1]}, v{regs[2]}')
    rest = regs[3:]
    while rest:
        if len(rest) >= 2:
            e.I(f'v_max3_{op} v{dst}, v{dst}, v{rest[0]}, v{rest[1]}'); rest = rest[2:]
        else:
            e.I(f'v_max_{op} v{dst}, v{dst}, v{rest[0]}'); rest = rest[1:]

def check_sent(e, regs, t0, t1):
    regs = list(regs)
    if len(regs) >= 8:
        h = len(regs) // 2
        A, B = regs[:h], regs[h:]
        ea, eb = Em(), Em()
        maxchain(ea, t0, A); maxchain(eb, t1, B)
        for i in range(max(len(ea.lines), len(eb.lines))):
            if i < len(ea.lines): e.lines.append(ea.lines[i])
            if i < len(eb.lines): e.lines.append(eb.lines[i])
        e.I(f'v_max_u32 v{t0}, v{t0}, v{t1}')
    else:
        maxchain(e, t0, regs)
    e.I(f'v_cmp_eq_u32 vcc, -1, v{t0}')

def poll2(e, issue, nl, regsA, regsB, consume, t0, t1, code):
    lp, dA, dB, dd = e.lab('Lp'), e.lab('LdA'), e.lab('LdB'), e.lab('Ldd')
    e.I(f's_mov_b32 s31, {TMO}')
    issue(regsA)
    e.L(lp)
    issue(regsB)
    e.I(f's_waitcnt vmcnt({nl})')
    check_sent(e, range(regsA, regsA + 4 * nl), t0, t1)
    e.I(f's_cbranch_vccz {dA}')
    issue(regsA)
    e.I(f's_waitcnt vmcnt({nl})')
    check_sent(e, range(regsB, regsB + 4 * nl), t0, t1)
    e.I(f's_cbranch_vccz {dB}')
    e.I('s_sub_u32 s31, s31, 1')
    e.I(f's_cbranch_scc0 {lp}')
    e.I(f's_mov_b32 s31, {code}')
    e.I('s_branch L_fail')
    e.L(dB)
    consume(regsB)
    e.I(f's_branch {dd}')
    e.L(dA)
    consume(regsA)
    e.L(dd)

def wait_flags(e, vaddr, sofs, mask, vt, code, sleep=0):
    lp, dn = e.lab('Lf'), e.lab('Lfd')
    e.I(f's_mov_b32 s31, {TMO}')
    if mask > 0xffffffff or mask < 0: e.I(f's_mov_b64 exec, {mask}')
    else:
        e.I(f's_mov_b32 exec_lo, {mask:#x}'); e.I('s_mov_b32 exec_hi, 0')
    e.L(lp)
    e.I(f'buffer_load_dword v{vt}, v{vaddr}, {WS}, {sofs} offen sc1')
    e.I('s_waitcnt vmcnt(0)')
    e.I(f'v_cmp_eq_u32 vcc, 0, v{vt}')
    e.I(f's_cbranch_vccz {dn}')
    if sleep: e.I(f's_sleep {sleep}')
    e.I('s_sub_u32 s31, s31, 1')
    e.I(f's_cbranch_scc0 {lp}')
    e.I(f's_mov_b32 s31, {code}')
    e.I('s_branch L_fail')
    e.L(dn)
    e.I('s_mov_b64 exec, -1')

def set_flag(e, vaddr, sofs, vone, fl):
    e.I('s_mov_b64 exec, 1')
    e.I(f'buffer_store_dword v{vone}, v{vaddr}, {WS}, {sofs} offen{fl}')
    e.I('s_mov_b64 exec, -1')

def xg_reduce(e, op, x, t):
    e.I(f'v_mov_b32 v{t}, v{x}')
    e.I(f'v_permlane16_swap_b32 v{x}, v{t}')
    e.I(f'{op} v{x}, v{x}, v{t}')
    e.I(f'v_mov_b32 v{t}, v{x}')
    e.I(f'v_permlane32_swap_b32 v{x}, v{t}')
    e.I(f'{op} v{x}, v{x}, v{t}')

def softmax12(e, S, P, t):
    maxchain(e, t, range(S, S + 12), 'f32')
    xg_reduce(e, 'v_max_f32', t, t + 1)
    e.I(f'v_mul_f32 v{t}, s53, v{t}')
    for i in range(12):
        e.I(f'v_fma_f32 v{S+i}, v{S+i}, s52, v{t}')
    for i in range(12):
        e.I(f'v_exp_f32 v{S+i}, v{S+i}')
    e.I(f'v_add_f32 v{t+2}, v{S}, v{S+1}')
    e.I(f'v_add_f32 v{t+3}, v{S+2}, v{S+3}')
    for i in range(4, 12, 2):
        e.I(f'v_add_f32 v{t+2}, v{t+2}, v{S+i}')
        e.I(f'v_add_f32 v{t+3}, v{t+3}, v{S+i+1}')
    e.I(f'v_add_f32 v{t+2}, v{t+2}, v{t+3}')
    xg_reduce(e, 'v_add_f32', t + 2, t + 3)
    e.I(f'v_rcp_f32 v{t+2}, v{t+2}')
    for i in range(12):
        e.I(f'v_mul_f32 v{S+i}, v{S+i}, v{t+2}')
    for i in range(6):
        e.I(f'v_cvt_pk_bf16_f32 v{P+i}, v{S+2*i}, v{S+2*i+1}')

def TS(e, k):
    if opt.ts: e.I(f's_memrealtime s[{76+2*k}:{77+2*k}]')
def TSflush(e, step, va=238, vd=239):
    if not opt.ts: return
    e.I('s_waitcnt lgkmcnt(0)')
    for k in range(10): e.I(f'v_writelane_b32 v{vd}, s{76+2*k}, {k}')
    e.I('s_lshl_b32 s76, s20, 5')
    e.I('s_add_u32 s76, s76, s21')
    e.I('s_lshl_b32 s76, s76, 2')
    e.I('s_add_u32 s76, s76, s22')
    e.I('s_mul_i32 s76, s76, 72')
    e.I(f's_add_u32 s76, s76, {step}')
    e.I('s_lshl_b32 s76, s76, 6')
    e.I(f's_add_u32 s76, s76, {DBGT}')
    e.I(f'v_lshlrev_b32 v{va}, 2, v1')
    e.I('s_mov_b64 exec, 0x3ff')
    e.I(f'buffer_store_dword v{vd}, v{va}, {WS}, s76 offen')
    e.I('s_mov_b64 exec, -1')

def lane_ig(e, vi, vg):
    e.I(f'v_and_b32 v{vi}, 15, v1')
    e.I(f'v_lshrrev_b32 v{vg}, 4, v1')

def load_weights(e, mats, RS, rows, paired, vA, vT):
    CH = rows * 128
    ninst = rows // 8 // 4
    nk = rows // 32
    e.I(f'v_lshrrev_b32 v{vT}, 3, v1')
    if paired:
        e.I(f'v_bfe_u32 v{vT+1}, v1, 4, 2')
    else:
        e.I(f'v_bfe_u32 v{vT+1}, v1, 4, 1')
        e.I('s_and_b32 s54, s22, 1')
        e.I('s_lshl_b32 s54, s54, 1')
        e.I(f'v_or_b32 v{vT+1}, s54, v{vT+1}')
    e.I(f'v_lshlrev_b32 v{vT+1}, 1, v{vT+1}')
    e.I(f'v_and_b32 v{vT+2}, 7, v1')
    e.I(f'v_xor_b32 v{vT+2}, v{vT+2}, v{vT+1}')
    e.I(f's_mov_b32 s54, {RS}')
    e.I(f'v_mul_lo_u32 v{vA}, s54, v{vT}')
    e.I(f'v_lshl_add_u32 v{vA}, v{vT+2}, 4, v{vA}')
    e.I(f'v_lshrrev_b32 v{vT}, 4, v1')
    e.I(f'v_bfe_u32 v{vT+1}, v1, 2, 2')
    if paired:
        e.I(f'v_lshl_add_u32 v{vT+2}, v{vT}, 2, v{vT+1}')
        e.I(f'v_bfe_u32 v{vT}, v{vT+2}, 1, 2')
        second = 2048
    else:
        e.I(f'v_lshl_add_u32 v{vT+2}, v{vT}, 3, v{vT+1}')
        e.I(f'v_and_b32 v{vT}, 1, v{vT}')
        e.I(f'v_lshlrev_b32 v{vT}, 1, v{vT}')
        e.I(f'v_bfe_u32 v{vT+1}, v1, 3, 1')
        e.I(f'v_or_b32 v{vT}, v{vT}, v{vT+1}')
        second = 512
    e.I(f'v_xor_b32 v{vT}, s22, v{vT}')
    e.I(f'v_lshlrev_b32 v{vT+2}, 7, v{vT+2}')
    e.I(f'v_lshl_add_u32 v{vT+2}, v{vT}, 5, v{vT+2}')
    e.I(f'v_and_b32 v{vT}, 3, v1')
    e.I(f'v_lshl_add_u32 v{vT}, v{vT}, 3, v{vT+2}')
    e.I(f'v_add_u32 v{vT+1}, {CH}, v{vT}')
    e.I(f'v_add_u32 v{vT+2}, {2*CH}, v{vT}')
    chunks = []
    for (srd_, sofs, ab, nrows) in mats:
        for c in range(nrows // rows):
            chunks.append((srd_, sofs, ab + c * nk * 4, c * rows))
    e.I(f's_mul_i32 s55, s22, {8*RS}')
    e.I('s_lshl_b32 s56, s22, 10')
    def issue(ci):
        srd_, sofs, ab, r0 = chunks[ci]
        buf = ci % 3
        e.I(f's_add_u32 s57, {sofs}, s55')
        if r0: e.I(f's_add_u32 s57, s57, {r0*RS}')
        for n in range(ninst):
            e.I(f's_add_u32 m0, s56, {buf*CH + n*4096}')
            e.I(f'buffer_load_dwordx4 v{vA}, {srd_}, s57 offen lds')
            if n + 1 < ninst: e.I(f's_add_u32 s57, s57, {32*RS}')
    for ci in range(min(3, len(chunks))): issue(ci)
    for ci in range(len(chunks)):
        left = min(len(chunks) - 1 - ci, 2)
        e.I(f's_waitcnt vmcnt({left*ninst})')
        e.I('s_barrier')
        srd_, sofs, ab, r0 = chunks[ci]
        for k in range(nk):
            e.I(f'ds_read_b64_tr_b16 {ar(ab+4*k,2)}, v{vT+ci%3} offset:{k*4096}')
            e.I(f'ds_read_b64_tr_b16 {ar(ab+4*k+2,2)}, v{vT+ci%3} offset:{k*4096+second}')
        e.I('s_waitcnt lgkmcnt(0)')
        e.I('s_barrier')
        if ci + 3 < len(chunks): issue(ci + 3)

Q_LX, Q_LMEM = 0, 81920
def role_qkv(e, slow):
    fl = ' sc1' if slow else ''
    WQ, WK, WV = 0, 80, 160
    MF = 16
    DQ, DK, DV = 96, 100, 104
    PA, PB = 108, 120
    XD = 132
    T0 = 160
    KEEP = 176; TCH = 180
    XA, VA, IDX, SEL = 182, 183, 184, 185
    SENT = 248; ONE = 252
    e.I('s_mul_i32 s24, s21, 43')
    e.I('s_lshr_b32 s24, s24, 7')
    e.I('s_mul_i32 s25, s24, 3')
    e.I('s_sub_u32 s25, s21, s25')
    e.I('s_lshl_b32 s26, s20, 2')
    e.I('s_add_u32 s26, s26, s24')
    e.I('s_lshl_b32 s27, s25, 2')
    e.I('s_add_u32 s27, s27, s22')
    srd(e, 8, 60, 640 * 12288); srd(e, 12, 62, 640 * 12288); srd(e, 16, 64, 640 * 12288)
    e.I('s_mul_i32 s28, s26, 384')
    e.I('s_lshl_b32 s29, s25, 7')
    e.I('s_add_u32 s28, s28, s29')
    load_weights(e, [('s[12:15]', 's28', WK, 640), ('s[16:19]', 's28', WV, 640), ('s[8:11]', 's28', WQ, 640)], 12288, 320, False, 3, 4)
    e.I('s_mul_i32 s62, s22, 10240')
    e.I(f's_add_u32 s63, s62, {XN}')
    for m in range(10):
        e.I(f's_add_u32 m0, s62, {Q_LX + m*1024}')
        e.I(f'buffer_load_dwordx4 v2, {WS}, s63 offen lds')
        e.I('s_add_u32 s63, s63, 1024')
    e.I('s_mul_i32 s38, s22, 2560')
    e.I('v_add_u32 v3, s38, v2')
    e.I('v_and_b32 v4, 31, v1')
    e.I('v_lshlrev_b32 v4, 4, v4')
    e.I('v_add_u32 v4, s38, v4')
    e.I('v_add_u32 v4, 2048, v4')
    e.I(f'v_add_u32 v5, {Q_LMEM}, v3')
    e.I(f'v_add_u32 v6, {Q_LMEM}, v4')
    e.I(f'v_add_u32 v7, {Q_LMEM}, v2')
    lane_ig(e, 14, 15)
    e.I('s_lshr_b32 s38, s27, 1')
    e.I('s_lshl_b32 s38, s38, 10')
    e.I('s_and_b32 s39, s27, 1')
    e.I('s_lshl_b32 s39, s39, 3')
    e.I('s_add_u32 s38, s38, s39')
    e.I('v_add_u32 v8, s38, v2')
    e.I('v_bfe_u32 v11, v1, 2, 2')
    e.I('v_and_b32 v12, 3, v1')
    e.I(f'v_lshlrev_b32 v{XA}, 8, v11')
    e.I(f'v_lshl_add_u32 v{XA}, v15, 6, v{XA}')
    e.I(f'v_lshl_add_u32 v{XA}, v12, 4, v{XA}')
    e.I(f'v_add_u32 v{XA}, s38, v{XA}')
    e.I('v_and_b32 v13, 1, v15')
    e.I('v_lshlrev_b32 v13, 2, v13')
    e.I('v_lshrrev_b32 v9, 1, v15')
    e.I('v_lshl_add_u32 v13, v9, 1, v13')
    e.I('v_and_b32 v9, 1, v12')
    e.I('v_add_u32 v13, v13, v9')
    e.I('v_lshrrev_b32 v12, 1, v12')
    e.I('v_lshrrev_b32 v9, 1, v11')
    e.I('v_lshlrev_b32 v9, 8, v9')
    e.I('v_lshl_add_u32 v9, v12, 7, v9')
    e.I('v_lshl_add_u32 v9, v13, 4, v9')
    e.I(f'v_and_b32 v{VA}, 1, v11')
    e.I(f'v_lshl_add_u32 v9, v{VA}, 3, v9')
    e.I('s_lshl_b32 s38, s25, 10')
    e.I('s_lshr_b32 s39, s22, 1')
    e.I('s_lshl_b32 s39, s39, 9')
    e.I('s_add_u32 s38, s38, s39')
    e.I('s_and_b32 s39, s22, 1')
    e.I('s_lshl_b32 s39, s39, 2')
    e.I('s_add_u32 s38, s38, s39')
    e.I('v_add_u32 v9, s38, v9')
    e.I(f'v_lshlrev_b32 v{VA}, 8, v11')
    e.I(f'v_lshl_add_u32 v{VA}, v13, 4, v{VA}')
    e.I(f'v_lshl_add_u32 v{VA}, v12, 2, v{VA}')
    e.I('s_lshr_b32 s38, s27, 1')
    e.I('s_cmp_ge_u32 s38, 3')
    e.I('s_cselect_b32 s39, 3, 0')
    e.I('s_cselect_b32 s40, 128, 0')
    e.I('s_sub_u32 s38, s38, s39')
    e.I('s_lshl_b32 s38, s38, 10')
    e.I('s_add_u32 s38, s38, s40')
    e.I('s_and_b32 s39, s27, 1')
    e.I('s_lshl_b32 s39, s39, 3')
    e.I('s_add_u32 s38, s38, s39')
    e.I(f'v_add_u32 v{VA}, s38, v{VA}')
    e.I(f'v_mov_b32 v{IDX}, 0x44444444')
    e.I('v_mov_b32 v11, 0xeeeeeeee')
    e.I('v_cmp_lt_u32 vcc, 7, v14')
    e.I(f'v_cndmask_b32 v{IDX}, v{IDX}, v11, vcc')
    e.I(f'v_mov_b32 v{SEL}, 0x05040100')
    e.I('v_mov_b32 v11, 0x03020706')
    e.I('v_and_b32 v12, 1, v1')
    e.I('v_cmp_eq_u32 vcc, 1, v12')
    e.I(f'v_cndmask_b32 v{SEL}, v{SEL}, v11, vcc')
    e.I('s_mov_b32 s34, 0x33333333'); e.I('s_mov_b32 s35, 0x33333333')
    e.I('s_mov_b32 s36, 0xcccccccc'); e.I('s_mov_b32 s37, 0xcccccccc')
    for k in range(12): e.I(f'v_mov_b32 v{DQ+k}, 0')
    e.I('s_lshl_b32 s38, s27, 2')
    e.I(f'v_mov_b32 v{ONE+2}, s38')
    e.I(f'v_mov_b32 v{ONE}, 1')
    for k in range(4): e.I(f'v_mov_b32 v{SENT+k}, -1')
    e.I('s_mul_i32 s58, s26, 6144')
    e.I('s_mul_i32 s59, s20, 10240')
    e.I(f's_add_u32 s59, s59, {MEM}')
    e.I('s_mul_i32 s60, s26, 3072')
    e.I('s_lshl_b32 s61, s20, 6')
    e.I('s_lshl_b32 s38, s24, 2')
    e.I('s_add_u32 s61, s61, s38')
    e.I(f's_add_u32 s61, s61, {FLGOX}')
    e.I('v_mov_b32 v10, 0')

    def late_list():
        return [f'buffer_store_dwordx2 {vr(KEEP,2)}, v{XA}, {WS}, s43 offen{fl}',
                f'buffer_store_dwordx2 {vr(SENT,2)}, v{XA}, {WS}, s42 offen{fl}',
                f'buffer_store_dword v{KEEP+2}, v{VA}, {WS}, s44 offen{fl}',
                f'buffer_store_dword v{SENT}, v9, {WS}, s46 offen{fl}']
    def late_stores():
        for x_ in late_list(): e.I(x_)
    def xwork(late):
        e.I('s_and_b32 s65, s64, 1')
        e.I('s_mul_i32 s66, s65, 40960')
        e.I('v_add_u32 v12, s66, v2')
        e.I('s_xor_b32 s65, s65, 1')
        e.I('s_mul_i32 s65, s65, 40960')
        e.I('s_add_u32 s65, s65, s62')
        e.I('s_add_u32 s66, s64, 1')
        e.I('s_min_u32 s66, s66, 63')
        e.I('s_mul_i32 s66, s66, 40960')
        e.I('s_add_u32 s66, s66, s62')
        e.I(f's_add_u32 s66, s66, {XN}')
        e.I(f's_and_b32 s47, s64, {RD-1}')
        e.I(f's_mul_i32 s47, s47, {SEG_QX}')
        e.I('s_lshl_b32 s48, s58, 1')
        e.I('s_add_u32 s47, s47, s48')
        if late:
            e.I(f's_max_u32 s50, s64, {RD}')
            e.I(f's_sub_u32 s50, s50, {RD}')
            e.I('s_lshl_b32 s50, s50, 9')
            e.I('s_add_u32 s50, s50, s61')
            e.I(f'buffer_load_dword v{TCH}, v10, {WS}, s50 offen sc1')
        PF = opt.xpf
        def rd(n): e.I(f'ds_read_b128 {vr(MF + (n % 20)*4)}, v12 offset:{n*1024}')
        def out(m, rt, part=3):
            d = XD + (m*2+rt)*4; o = T0 + (m*2+rt)*2
            if part & 1:
                e.I(f'v_cvt_pk_bf16_f32 v{o}, v{d}, v{d+1}')
                e.I(f'v_cvt_pk_bf16_f32 v{o+1}, v{d+2}, v{d+3}')
            if part & 2:
                e.I(f's_add_u32 s48, s47, {(QX, KX, VX)[m] + rt*6144}')
                e.I(f'buffer_store_dwordx2 {vr(o,2)}, v8, {WS}, s48 offen{fl}')
        for n in range(PF): rd(n)
        ls = late_list() if late else []
        d0 = opt.xdma0
        for n in range(40):
            rt, kk = n // 20, n % 20
            e.I(f's_waitcnt lgkmcnt({min(40, n + PF) - (n + 1)})')
            f = vr(MF + (n % 20)*4)
            for (m, Wb) in ((2, WV), (1, WK), (0, WQ)):
                d = vr(XD + (m*2+rt)*4)
                e.I(f'{MFMA} {d}, {ar(Wb+4*kk)}, {f}, {0 if kk == 0 else d}')
            if n + PF < 40: rd(n + PF)
            if late and n == 5:
                bp = e.lab('Lbp')
                e.I(f's_cmp_lt_u32 s64, {RD}')
                e.I(f's_cbranch_scc1 {bp}')
                e.I('s_waitcnt vmcnt(0)')
                e.I(f'v_cmp_eq_u32 vcc, 0, v{TCH}')
                e.I(f's_cbranch_vccz {bp}')
                wait_flags(e, 10, 's50', 1, TCH, 13, sleep=1)
                e.L(bp)
            if n >= 6 and ls: e.I(ls.pop(0))
            elif n >= d0 and (n - d0) % opt.xdmas == 0 and (n - d0) // opt.xdmas < 10:
                m = (n - d0) // opt.xdmas
                e.I(f's_add_u32 m0, s65, {m*1024}')
                e.I(f'buffer_load_dwordx4 v2, {WS}, s66 offen lds')
                e.I('s_add_u32 s66, s66, 1024')
            if n in (23, 24, 25): out(2 - (n - 23), 0)
        for m in (2, 1, 0): out(m, 1)
    def flag_addr(back):
        e.I(f's_sub_u32 s51, s64, {back}')
        e.I('s_lshl_b32 s51, s51, 5')
        e.I('s_add_u32 s51, s51, s26')
        e.I('s_lshl_b32 s51, s51, 6')
        e.I(f's_add_u32 s51, s51, {FLGQ}')
    def flag_n():
        flag_addr(0)
        e.I('s_waitcnt vmcnt(0)')
        set_flag(e, ONE + 2, 's51', ONE, fl)
    def mem_part():
        e.I('s_and_b32 s38, s30, 3')
        e.I('s_xor_b32 s39, s38, 2')
        e.I(f's_mul_i32 s40, s38, {MEM_SLOT}')
        e.I('s_add_u32 s40, s40, s59')
        e.I(f's_mul_i32 s41, s38, {XR_SLOT}')
        e.I('s_add_u32 s41, s41, s58')
        e.I(f's_add_u32 s41, s41, {XR}')
        e.I(f's_mul_i32 s42, s39, {XR_SLOT}')
        e.I('s_add_u32 s42, s42, s58')
        e.I(f's_add_u32 s42, s42, {XR}')
        e.I(f's_and_b32 s44, s30, {RD-1}')
        e.I(f's_mul_i32 s43, s44, {SEG_XP}')
        e.I('s_add_u32 s43, s43, s58')
        e.I(f's_add_u32 s43, s43, {XP}')
        e.I(f's_mul_i32 s44, s44, {SEG_VM}')
        e.I('s_add_u32 s44, s44, s60')
        e.I(f's_add_u32 s44, s44, {VM}')
        e.I(f's_mul_i32 s45, s38, {VR_SLOT}')
        e.I('s_add_u32 s45, s45, s60')
        e.I(f's_add_u32 s45, s45, {VR}')
        e.I(f's_mul_i32 s46, s39, {VR_SLOT}')
        e.I('s_add_u32 s46, s46, s60')
        e.I(f's_add_u32 s46, s46, {VR}')
        def issue(b):
            e.I(f'buffer_load_dwordx4 {vr(b)}, v3, {WS}, s40 offen sc1')
            e.I(f'buffer_load_dwordx4 {vr(b+4)}, v3, {WS}, s40 offen offset:1024 sc1')
            e.I(f'buffer_load_dwordx4 {vr(b+8)}, v4, {WS}, s40 offen sc1')
        def consume(b):
            e.I(f'ds_write_b128 v5, {vr(b)}')
            e.I(f'ds_write_b128 v5, {vr(b+4)} offset:1024')
            e.I(f'ds_write_b128 v6, {vr(b+8)}')
        flag_addr(1)
        poll2(e, issue, 3, PA, PB, consume, T0, T0 + 1, 1)
        TS(e, 1)
        e.I('s_waitcnt lgkmcnt(0)')
        e.I('s_barrier')
        for m in range(10): e.I(f'ds_read_b128 {vr(MF+4*m)}, v7 offset:{m*1024}')
        set_flag(e, ONE + 2, 's51', ONE, fl)
        e.I('s_mov_b64 vcc, s[34:35]')
        for m in range(10):
            e.I(f's_waitcnt lgkmcnt({9-m})')
            e.I(f'{SMF} {vr(DQ)}, {vr(MF+4*m)}, {ar(WQ+8*m,8)}, v{IDX}')
            e.I(f'{SMF} {vr(DK)}, {vr(MF+4*m)}, {ar(WK+8*m,8)}, v{IDX}')
        def vm(m): e.I(f'{SMF} {vr(DV)}, {vr(MF+4*m)}, {ar(WV+8*m,8)}, v{IDX}')
        QP1, QP2 = 'quad_perm:[1,0,3,2] row_mask:0xf bank_mask:0xf', 'quad_perm:[2,3,0,1] row_mask:0xf bank_mask:0xf'
        nv = opt.vpre
        for m in range(nv): vm(m)
        for r in range(4): e.I(f'v_permlane32_swap_b32 v{DQ+r}, v{DK+r}')
        for r in range(4): e.I(f'v_add_f32 v{DQ+r}, v{DQ+r}, v{DK+r}')
        e.I(f'v_cvt_pk_bf16_f32 v{T0}, v{DQ}, v{DQ+1}')
        e.I(f'v_cvt_pk_bf16_f32 v{T0+1}, v{DQ+2}, v{DQ+3}')
        vm(nv)
        e.I(f'v_mov_b32_dpp v{T0+2}, v{T0} {QP1}')
        e.I(f'v_mov_b32_dpp v{T0+3}, v{T0+1} {QP1}')
        e.I(f'v_perm_b32 v{T0}, v{T0+2}, v{T0}, v{SEL}')
        e.I(f'v_perm_b32 v{T0+1}, v{T0+3}, v{T0+1}, v{SEL}')
        vm(nv + 1)
        e.I(f'v_min_u32 v{T0}, -2, v{T0}')
        e.I(f'v_min_u32 v{T0+1}, -2, v{T0+1}')
        e.I('s_nop 0')
        e.I(f'v_cndmask_b32_dpp v{KEEP}, v{T0+1}, v{T0}, vcc {QP2}')
        e.I('s_mov_b64 vcc, s[36:37]')
        e.I(f'v_cndmask_b32_dpp v{KEEP+1}, v{T0}, v{T0+1}, vcc {QP2}')
        e.I(f'buffer_store_dwordx2 {vr(KEEP,2)}, v{XA}, {WS}, s41 offen{fl}')
        TS(e, 2)
        for m in range(nv + 2, 10): vm(m)
        for k in range(8): e.I(f'v_mov_b32 v{DQ+k}, 0')
        e.I(f'v_permlane32_swap_b32 v{DV}, v{DV+2}')
        e.I(f'v_permlane32_swap_b32 v{DV+1}, v{DV+3}')
        e.I(f'v_add_f32 v{DV}, v{DV}, v{DV+2}')
        e.I(f'v_add_f32 v{DV+1}, v{DV+1}, v{DV+3}')
        e.I(f'v_cvt_pk_bf16_f32 v{T0}, v{DV}, v{DV+1}')
        e.I(f'v_mov_b32_dpp v{T0+2}, v{T0} {QP1}')
        e.I(f'v_perm_b32 v{KEEP+2}, v{T0+2}, v{T0}, v{SEL}')
        e.I(f'v_min_u32 v{KEEP+2}, -2, v{KEEP+2}')
        e.I(f'buffer_store_dword v{KEEP+2}, v9, {WS}, s45 offen{fl}')
        for k in range(4): e.I(f'v_mov_b32 v{DV+k}, 0')
        TS(e, 3)
    pro, top, nox, nxt_ = e.lab('Lqp'), e.lab('Lqt'), e.lab('Lqn'), e.lab('Lqx')
    e.I('s_mov_b32 s30, 0')
    e.I('s_mov_b32 s64, 0')
    e.I('s_waitcnt vmcnt(0)')
    e.L(pro)
    e.I('s_barrier')
    xwork(False)
    flag_n()
    e.I('s_add_u32 s64, s64, 1')
    e.I('s_cmp_lt_u32 s64, 2')
    e.I(f's_cbranch_scc1 {pro}')
    e.L(top)
    TS(e, 0)
    mem_part()
    e.I('s_cmp_ge_u32 s64, 64')
    e.I(f's_cbranch_scc1 {nox}')
    xwork(True)
    e.I(f's_branch {nxt_}')
    e.L(nox)
    late_stores()
    flag_n()
    e.L(nxt_)
    TS(e, 4)
    e.I('s_add_u32 s64, s64, 1')
    TS(e, 5)
    TSflush(e, 's30')
    e.I('s_add_u32 s30, s30, 1')
    e.I('s_cmp_lt_u32 s30, 64')
    e.I(f's_cbranch_scc1 {top}')
    e.I('s_endpgm')

S_RED = 98304
def role_sw(e, slow):
    fl = ' sc1' if slow else ''
    XF, KXF, VXF, VMF = 16, 40, 88, 136
    S, PB, PM = 148, 160, 164
    DW, DM, VWX, VWM = 168, 184, 200, 216
    OUT = DW
    PA = XF
    CI = 224
    T0 = 228; IDX = 246; SENT = 248; ONE = 252
    AONE, AHALF = 96, 100
    PAD = 240
    e.I('s_sub_u32 s24, s21, 12')
    e.I('s_lshl_b32 s25, s24, 2')
    e.I('s_add_u32 s25, s25, s22')
    e.I('s_lshl_b32 s26, s20, 2')
    e.I('s_add_u32 s26, s26, s22')
    srd(e, 8, 66, 6144 * 1280)
    e.I(f's_mul_i32 s28, s26, {192*1280}')
    e.I('s_lshl_b32 s29, s24, 7')
    e.I('s_add_u32 s28, s28, s29')
    e.I('v_lshrrev_b32 v4, 3, v1')
    e.I('v_bfe_u32 v5, v1, 4, 2')
    e.I('v_lshlrev_b32 v5, 1, v5')
    e.I('v_and_b32 v6, 7, v1')
    e.I('v_xor_b32 v6, v6, v5')
    e.I('v_mul_u32_u24 v3, 1280, v4')
    e.I('v_lshl_add_u32 v3, v6, 4, v3')
    e.I('s_mul_i32 s56, s22, 24576')
    for n in range(24):
        e.I(f's_add_u32 m0, s56, {n*1024}')
        e.I(f'buffer_load_dwordx4 v3, s[8:11], s28 offen lds')
        if n < 23: e.I(f's_add_u32 s28, s28, {8*1280}')
    e.I('v_lshrrev_b32 v4, 2, v1')
    e.I('v_bfe_u32 v5, v4, 1, 2')
    e.I('v_lshlrev_b32 v4, 7, v4')
    e.I('v_and_b32 v6, 3, v1')
    e.I('v_lshl_add_u32 v4, v6, 3, v4')
    e.I('v_add_u32 v4, s56, v4')
    for ct in range(4):
        e.I(f'v_xor_b32 v6, {ct}, v5')
        e.I(f'v_lshl_add_u32 v{8+ct}, v6, 5, v4')
    for kk in range(6):
        e.I(f's_waitcnt vmcnt({20 - 4*kk})')
        for ct in range(4):
            e.I(f'ds_read_b64_tr_b16 {ar((ct*6+kk)*4,2)}, v{8+ct} offset:{kk*4096}')
            e.I(f'ds_read_b64_tr_b16 {ar((ct*6+kk)*4+2,2)}, v{8+ct} offset:{kk*4096+2048}')
    e.I('s_waitcnt lgkmcnt(0)')
    e.I(f's_mov_b32 s52, {SC_L2E:#x}'); e.I(f's_mov_b32 s53, {SC_L2E | 0x80000000:#x}')
    lane_ig(e, 14, 15)
    e.I('v_and_b32 v13, 7, v14')
    e.I('v_lshlrev_b32 v13, 4, v13')
    e.I('v_lshl_add_u32 v13, v15, 7, v13')
    e.I('v_bfe_u32 v5, v1, 3, 1')
    e.I('s_lshl_b32 s38, s22, 9')
    e.I(f's_add_u32 s38, s38, {S_RED}')
    e.I('v_add_u32 v6, s38, v13')
    e.I('v_lshl_add_u32 v6, v5, 14, v6')
    e.I('s_lshl_b32 s38, s22, 11')
    e.I(f's_add_u32 s38, s38, {S_RED}')
    e.I('v_add_u32 v7, s38, v13')
    e.I('v_lshl_add_u32 v7, v5, 10, v7')
    if opt.pbf: e.I('v_lshrrev_b32 v13, 1, v13')
    e.I('v_lshl_add_u32 v13, v5, 13, v13')
    e.I('v_and_b32 v4, 0x1fff, v13')
    e.I('v_lshlrev_b32 v9, 2, v5')
    e.I('v_xor_b32 v9, s20, v9')
    for m in range(4):
        e.I(f'v_xor_b32 v8, {m}, v9')
        e.I(f'v_lshl_add_u32 v{PAD+m}, v8, 9, v4')
    e.I('v_and_b32 v9, 7, v1')
    e.I('v_lshlrev_b32 v8, 4, v9')
    e.I('v_lshl_add_u32 v8, v5, 7, v8')
    e.I('v_lshl_add_u32 v8, v15, 2, v8')
    e.I('s_lshl_b32 s38, s25, 8')
    e.I('v_add_u32 v8, s38, v8')
    e.I('v_lshrrev_b32 v9, 1, v1')
    e.I('v_lshlrev_b32 v9, 10, v9')
    e.I('v_and_b32 v10, 1, v1')
    e.I('v_lshl_add_u32 v9, v10, 3, v9')
    e.I(f'v_lshlrev_b32 v{ONE+1}, 2, v1')
    for k in range(4): e.I(f'v_mov_b32 v{SENT+k}, -1')
    e.I('s_mov_b32 s68, 0xff00ff00'); e.I('s_mov_b32 s69, 0xff00ff00')
    e.I('s_mov_b32 s70, 0x3f80'); e.I('s_mov_b32 s71, 0x3f800000')
    e.I(f'v_mov_b32 v{CI}, {NEG_BIG:#x}')
    e.I('s_mov_b32 vcc_lo, 0')
    e.I('s_mov_b32 vcc_hi, 0x00ff00ff')
    e.I(f'v_cndmask_b32 v{CI}, v{CI}, 0, vcc')
    for k in range(1, 4): e.I(f'v_mov_b32 v{CI+k}, v{CI}')
    e.I(f'v_mov_b32 v{IDX}, 0x44444444')
    e.I('v_mov_b32 v11, 0xeeeeeeee')
    e.I('v_cmp_lt_u32 vcc, 7, v14')
    e.I(f'v_cndmask_b32 v{IDX}, v{IDX}, v11, vcc')
    e.I('v_mov_b32 v11, 0x3f803f80')
    for k in range(4): e.I(f'v_accvgpr_write_b32 a{AONE+k}, v11')
    e.I('v_mov_b32 v11, 0x3f003f00')
    for k in range(2): e.I(f'v_accvgpr_write_b32 a{AHALF+k}, v11')
    e.I('s_mul_i32 s58, s26, 6144')
    e.I(f's_add_u32 s58, s58, {XR}')
    e.I('s_mul_i32 s57, s26, 3072')
    e.I(f's_add_u32 s57, s57, {VR}')
    e.I('s_lshr_b32 s59, s25, 1')
    e.I('s_lshl_b32 s59, s59, 14')
    e.I('s_and_b32 s38, s25, 1')
    e.I('s_lshl_b32 s38, s38, 12')
    e.I('s_add_u32 s59, s59, s38')
    e.I(f's_add_u32 s59, s59, {PART}')
    e.I('s_lshl_b32 s60, s20, 9')
    e.I('s_add_u32 s60, s60, s59')
    e.I('s_mul_i32 s61, s20, 10240')
    e.I(f's_add_u32 s61, s61, {MEM}')
    e.I('s_mul_i32 s62, s26, 12288')
    e.I('s_lshl_b32 s63, s26, 6')
    e.I(f's_add_u32 s63, s63, {FLGQ}')
    nocal = e.lab('Lnc')
    e.I('s_cmp_lg_u32 s25, 0')
    e.I(f's_cbranch_scc1 {nocal}')
    e.I('s_lshl_b32 s38, s20, 7')
    e.I(f's_add_u32 s38, s38, {CAL}')
    e.I('s_add_u32 s39, s38, 8192')
    e.I('s_mov_b32 s40, -1'); e.I('s_mov_b32 s41, -1'); e.I('s_mov_b32 s42, 4')
    e.I('v_mov_b32 v10, 0')
    e.I('s_mov_b64 exec, 1')
    cal = e.lab('Lcal')
    e.L(cal)
    for so, acc in (('s38', 's40'), ('s39', 's41')):
        e.I(f'buffer_store_dword v10, v10, {WS}, {so} offen sc1')
        e.I('s_waitcnt vmcnt(0)')
        e.I('s_memtime s[44:45]')
        e.I('s_waitcnt lgkmcnt(0)')
        e.I(f'buffer_load_dword v11, v10, {WS}, {so} offen sc1')
        e.I('s_waitcnt vmcnt(0)')
        e.I('s_memtime s[46:47]')
        e.I('s_waitcnt lgkmcnt(0)')
        e.I('s_sub_u32 s46, s46, s44')
        e.I(f's_min_u32 {acc}, {acc}, s46')
    e.I('s_sub_u32 s42, s42, 1')
    e.I('s_cmp_lg_u32 s42, 0')
    e.I(f's_cbranch_scc1 {cal}')
    e.I('s_cmp_lt_u32 s41, s40')
    if opt.pflip: e.I('s_cmp_ge_u32 s41, s40')
    e.I('s_cselect_b32 s38, 2, 1')
    e.I('v_mov_b32 v11, s38')
    e.I('s_lshl_b32 s38, s20, 2')
    e.I(f's_add_u32 s38, s38, {PARTAB}')
    e.I(f'buffer_store_dword v11, v10, {WS}, s38 offen sc1')
    e.I('s_mov_b64 exec, -1')
    e.L(nocal)
    e.I('s_lshl_b32 s38, s20, 2')
    e.I(f's_add_u32 s38, s38, {PARTAB}')
    wait_flags(e, ONE + 1, 's38', 1, T0, 12, sleep=2)
    e.I(f'v_readfirstlane_b32 s38, v{T0}')
    e.I('s_nop 3')
    e.I('s_and_b32 s38, s38, 2')
    e.I('s_lshl_b32 s38, s38, 12')
    e.I('s_add_u32 s59, s59, s38')
    e.I('s_lshl_b32 s38, s22, 2')
    e.I(f's_add_u32 s38, s38, {S_RED + 8192}')
    e.I('v_lshlrev_b32 v10, 4, v14')
    e.I('v_add_u32 v10, s38, v10')
    e.I('v_and_b32 v11, 7, v14')
    e.I('v_lshlrev_b32 v11, 4, v11')
    e.I('v_bfe_u32 v12, v1, 3, 1')
    e.I('v_lshl_add_u32 v11, v12, 3, v11')
    e.I(f'v_add_u32 v11, {S_RED + 8192}, v11')
    e.I('v_min_u32 v12, 11, v1')
    e.I('v_lshlrev_b32 v12, 2, v12')
    def kv_loads(dst, base, q0=0, q1=12):
        if q0 >= q1: return
        e.I(f's_and_b32 s48, s49, {RD-1}')
        e.I(f's_mul_i32 s48, s48, {SEG_QX}')
        e.I('s_add_u32 s48, s48, s62')
        e.I(f's_add_u32 s48, s48, {base + (q0//4)*4096}')
        for q in range(q0, q1):
            if q % 4 == 0 and q > q0: e.I('s_add_u32 s48, s48, 4096')
            e.I(f'buffer_load_dwordx4 {vr(dst+4*q)}, v2, {WS}, s48 offen offset:{(q%4)*1024} sc1')
    def vx_loads():
        e.I(f's_and_b32 s48, s49, {RD-1}')
        e.I(f's_mul_i32 s48, s48, {SEG_QX}')
        e.I('s_add_u32 s48, s48, s62')
        e.I(f's_add_u32 s48, s48, {VX}')
        e.I('s_add_u32 s46, s48, 4096')
        e.I('s_add_u32 s56, s48, 8192')
        for kk in range(6):
            for rt in range(2):
                q = rt * 6 + kk
                e.I(f'buffer_load_dwordx4 {vr(VXF+4*q)}, v2, {WS}, {("s48", "s46", "s56")[q//4]} offen offset:{(q%4)*1024} sc1')
    def vw_x(after, extra=(), nvx=0):
        extra = list(extra); nx0 = len(extra)
        for kk in range(6):
            for rt in range(2):
                gi = 2*kk + rt
                if gi >= 12 - nvx: e.I(f's_waitcnt vmcnt({11 - gi + nx0 - len(extra)})')
                if extra and gi >= opt.kcs:
                    for _ in range(-(-len(extra) // (opt.kce - gi) if gi < opt.kce else len(extra))): e.I(extra.pop(0))
                if after is not None: e.I(f's_waitcnt vmcnt({after + 11 - (2*kk+rt)})')
                for ct in range(4):
                    d = vr(DW + (ct*2+rt)*4)
                    e.I(f'{MFMA} {d}, {vr(VXF+4*(rt*6+kk))}, {ar((ct*6+kk)*4)}, {0 if kk == 0 else d}')
        for ct in range(4):
            for k in range(4): e.I(f'v_cvt_pk_bf16_f32 v{VWX+4*ct+k}, v{DW+8*ct+2*k}, v{DW+8*ct+2*k+1}')
        for k in range(16): e.I(f'v_mov_b32 v{DM+k}, 0')
    wait_flags(e, ONE + 1, 's63', 0xfff, T0, 11, sleep=2)
    e.I('s_mov_b32 s49, 0')
    vx_loads()
    kv_loads(KXF, KX)
    vw_x(12)
    top = e.lab('Lwt')
    e.I('s_mov_b32 s30, 0')
    e.L(top)
    TS(e, 0)
    e.I('s_and_b32 s38, s30, 3')
    e.I('s_xor_b32 s39, s38, 2')
    e.I(f's_mul_i32 s40, s38, {XR_SLOT}')
    e.I('s_add_u32 s40, s40, s58')
    e.I('s_add_u32 s54, s40, 4096')
    e.I(f's_mul_i32 s55, s38, {VR_SLOT}')
    e.I('s_add_u32 s55, s55, s57')
    if opt.fresh:
        e.I(f's_mul_i32 s41, s30, {PART_SLOT}')
        e.I(f's_add_u32 s41, s41, {SCRATCH + 0x400000 - PART + 0x200000}')
    else:
        e.I(f's_mul_i32 s41, s38, {PART_SLOT}')
    e.I('s_add_u32 s42, s41, s60')
    e.I('s_add_u32 s41, s41, s59')
    if opt.fresh:
        e.I('s_lshr_b32 s47, s41, 8')
        e.I('s_not_b32 s47, s47')
        e.I('s_and_b32 s47, s47, 8192')
        e.I('s_xor_b32 s41, s41, s47')
    e.I('s_xor_b32 s47, s41, 8192')
    e.I(f's_mul_i32 s43, s39, {PART_SLOT}')
    e.I('s_add_u32 s43, s43, s60')
    e.I('s_add_u32 s49, s30, 1')
    e.I('s_and_b32 s44, s49, 3')
    e.I('s_xor_b32 s45, s44, 2')
    e.I(f's_mul_i32 s44, s44, {MEM_SLOT}')
    e.I('s_add_u32 s44, s44, s61')
    e.I(f's_mul_i32 s45, s45, {MEM_SLOT}')
    e.I('s_add_u32 s45, s45, s61')
    e.I(f's_and_b32 s46, s49, {RD-1}')
    e.I(f's_mul_i32 s46, s46, {SEG_QX}')
    e.I('s_add_u32 s46, s46, s62')
    e.I(f's_add_u32 s65, s46, {KX}')
    e.I(f's_add_u32 s46, s46, {VX}')
    e.I('s_add_u32 s56, s46, 4096')
    e.I('s_add_u32 s64, s46, 8192')
    e.I('s_add_u32 s66, s65, 4096')
    e.I('s_add_u32 s67, s65, 8192')
    e.I('s_lshl_b32 s50, s49, 11')
    e.I('s_add_u32 s50, s50, s63')
    pl, pd, fr = e.lab('Lxp'), e.lab('Lxd'), e.lab('Lxf')
    e.I(f's_mov_b32 s31, {TMO}')
    e.I('s_mov_b64 exec, 0xfff')
    e.I(f'buffer_load_dword v{T0}, v9, {WS}, s40 offen sc1')
    e.L(pl)
    for a_, b_ in ((T0, T0 + 1), (T0 + 1, T0)):
        e.I(f'buffer_load_dword v{b_}, v9, {WS}, s40 offen sc1')
        e.I('s_waitcnt vmcnt(1)')
        e.I(f'v_cmp_eq_u32 vcc, -1, v{a_}')
        e.I(f's_cbranch_vccz {pd}')
    e.I('s_sub_u32 s31, s31, 1')
    e.I(f's_cbranch_scc0 {pl}')
    e.I('s_mov_b32 s31, 2')
    e.I('s_branch L_fail')
    e.L(pd)
    e.I('s_mov_b64 exec, -1')
    TS(e, 1)
    e.L(fr)
    for p in range(6):
        e.I(f'buffer_load_dwordx4 {vr(XF+4*p)}, v2, {WS}, {"s40" if p < 4 else "s54"} offen offset:{(p%4)*1024} sc1')
    FQ = CI + 23
    def vm_loads():
        for q in range(3):
            e.I(f'buffer_load_dwordx4 {vr(VMF+4*q)}, v2, {WS}, s55 offen offset:{q*1024} sc1')
        e.I(f'buffer_load_dword v{FQ}, v12, {WS}, s50 offen sc1')
    vp = opt.vmpos
    nvm = 0
    if vp == 0: vm_loads(); nvm = 4
    for p in range(6):
        x = vr(XF + 4*p)
        e.I(f's_waitcnt vmcnt({5-p+nvm})')
        e.I(f'{MFMA} {vr(S+4)}, {vr(KXF+4*p)}, {x}, {0 if p == 0 else vr(S+4)}')
        e.I(f'{MFMA} {vr(S+8)}, {vr(KXF+24+4*p)}, {x}, {0 if p == 0 else vr(S+8)}')
        e.I(f'{MFMA} {vr(S)}, {x}, {x}, {vr(CI) if p == 0 else vr(S)}')
        if vp == p + 1: vm_loads(); nvm = 4
        r = XF + 4 * p
        if p == 0:
            e.I(f'v_max3_u32 v{T0+2}, v{r}, v{r+1}, v{r+2}')
            e.I(f'v_max_u32 v{T0+2}, v{T0+2}, v{r+3}')
        else:
            e.I(f'v_max3_u32 v{T0+2}, v{T0+2}, v{r}, v{r+1}')
            e.I(f'v_max3_u32 v{T0+2}, v{T0+2}, v{r+2}, v{r+3}')
    e.I(f'v_cmp_eq_u32 vcc, -1, v{T0+2}')
    ok = e.lab('Lxo')
    e.I(f's_cbranch_vccz {ok}')
    e.I('s_sub_u32 s31, s31, 1')
    e.I('s_nop 7')
    e.I(f's_cbranch_scc0 {fr}')
    e.I('s_mov_b32 s31, 2')
    e.I('s_branch L_fail')
    e.L(ok)
    TS(e, 2)
    vl, vd = e.lab('Lvp'), e.lab('Lvd')
    e.L(vl)
    e.I('s_waitcnt vmcnt(0)')
    e.I(f'v_add_u32 v{FQ}, -1, v{FQ}')
    check_sent(e, list(range(VMF, VMF + 12)) + [FQ], T0 + 2, T0 + 3)
    e.I(f's_cbranch_vccz {vd}')
    vm_loads()
    e.I('s_sub_u32 s31, s31, 1')
    e.I(f's_cbranch_scc0 {vl}')
    e.I('s_mov_b32 s31, 3')
    e.I('s_branch L_fail')
    e.L(vd)
    TS(e, 3)
    PW = 2 if opt.pbf else 4
    if opt.rpos == 0: e.I(f'buffer_store_dwordx{PW} {vr(SENT,PW)}, v13, {WS}, s43 offen sc1')
    ROR8 = 'row_ror:8 row_mask:0xf bank_mask:0xf'
    sm = [f'{SMF} {vr(DM+4*ct)}, {vr(VMF+4*m)}, {ar((ct*6+2*m)*4,8)}, v{IDX}' for m in range(3) for ct in range(4)]
    t = T0 + 2
    V = []
    for r in range(4): V.append(f'v_mov_b32_dpp v{S+4+r}, v{S+8+r} row_shr:8 row_mask:0xf bank_mask:0xc')
    V += [f'v_max3_f32 v{t}, v{S}, v{S+1}, v{S+2}', f'v_max3_f32 v{t+1}, v{S+3}, v{S+4}, v{S+5}', f'v_max3_f32 v{t}, v{t}, v{S+6}, v{S+7}', f'v_max_f32 v{t}, v{t}, v{t+1}',
          '*', '*', f'v_max_f32_dpp v{t}, v{t}, v{t} {ROR8}', f'v_mov_b32 v{t+1}, v{t}', '*', '*', f'v_permlane16_swap_b32 v{t}, v{t+1}', f'v_max_f32 v{t}, v{t}, v{t+1}',
          f'v_mov_b32 v{t+1}, v{t}', '*', '*', f'v_permlane32_swap_b32 v{t}, v{t+1}', f'v_max_f32 v{t}, v{t}, v{t+1}', f'v_mul_f32 v{t}, s53, v{t}']
    order = [4, 5, 6, 7, 0, 1, 2, 3]
    for i in order: V.append(f'v_fma_f32 v{S+i}, v{S+i}, s52, v{t}')
    for n_, i in enumerate(order):
        V.append(f'v_exp_f32 v{S+i}, v{S+i}')
    bulk = [f'buffer_load_dwordx4 {vr(VXF+4*q)}, v2, {WS}, {("s46", "s56", "s64")[q//4]} offen offset:{(q%4)*1024} sc1' for q in (0, 6, 1, 7, 2, 8, 3, 9, 4, 10, 5, 11)]
    bulk += [f'buffer_load_dwordx4 {vr(KXF+4*q)}, v2, {WS}, {("s65", "s66", "s67")[q//4]} offen offset:{(q%4)*1024} sc1' for q in range(12)]
    kin = bulk[:opt.kin]; kp = bulk[opt.kin:opt.kin + opt.kp]; kc = bulk[opt.kin + opt.kp:]
    if opt.nobulk & 1: kin = []
    if opt.nobulk & 2: kp = []
    if opt.nobulk & 4: kc = []
    def ld():
        if kin: e.I(kin.pop(0))
    for x_ in sm[:opt.smpre]: e.I(x_)
    rest = sm[opt.smpre:]
    cost = 0; prev = None; nld = 0
    for x_ in V:
        if x_ == '*':
            if prev == '*' or cost == 0 or not rest: ld()
            else: e.I(rest.pop(0)); cost = 0
        else:
            e.I(x_); cost += 2 if 'v_exp' in x_ else 1
            if cost >= opt.smgap and rest: e.I(rest.pop(0)); cost = 0
            elif not rest and cost >= opt.ldgap: ld(); cost = 0
        prev = x_
    for x_ in rest: e.I(x_)
    e.I(f'v_cvt_pk_bf16_f32 v{PB}, v{S+4}, v{S+5}')
    e.I(f'v_cvt_pk_bf16_f32 v{PB+1}, v{S+6}, v{S+7}')
    e.I(f'v_cvt_pk_bf16_f32 v{PM}, v{S}, v{S+1}')
    e.I(f'v_cvt_pk_bf16_f32 v{PM+1}, v{S+2}, v{S+3}')
    e.I(f'v_mov_b32_dpp v{PB+2}, v{PB} {ROR8}')
    e.I(f'v_mov_b32_dpp v{PB+3}, v{PB+1} {ROR8}')
    e.I(f'v_mov_b32 v{t}, v{PM}')
    e.I(f'v_mov_b32 v{t+1}, v{PM+1}')
    TS(e, 4)
    def cvm(ct):
        e.I(f'v_cvt_pk_bf16_f32 v{VWM+2*ct}, v{DM+4*ct}, v{DM+4*ct+1}')
        e.I(f'v_cvt_pk_bf16_f32 v{VWM+2*ct+1}, v{DM+4*ct+2}, v{DM+4*ct+3}')
    SUM = S
    e.I(f'{MFMA} {vr(OUT)}, {vr(VWX)}, {vr(PB)}, 0')
    e.I(f'v_permlane32_swap_b32 v{t}, v{PM}')
    e.I(f'v_permlane32_swap_b32 v{t+1}, v{PM+1}')
    e.I(f'{MFMA} {vr(SUM)}, {ar(AONE)}, {vr(PB)}, 0')
    cvm(0)
    e.I(f'{MFMA} {vr(OUT+4)}, {vr(VWX+4)}, {vr(PB)}, 0')
    cvm(1)
    e.I(f'{MFMA} {vr(OUT+8)}, {vr(VWX+8)}, {vr(PB)}, 0')
    cvm(2)
    e.I(f'{MFMA} {vr(OUT+12)}, {vr(VWX+12)}, {vr(PB)}, 0')
    cvm(3)
    e.I(f'{MFMA16} {vr(OUT)}, {vr(VWM,2)}, {vr(PM,2)}, {vr(OUT)}')
    ld()
    e.I(f'{MFMA16} {vr(SUM)}, {ar(AHALF,2)}, {vr(PM,2)}, {vr(SUM)}')
    ld()
    for ct in range(1, 4):
        e.I(f'{MFMA16} {vr(OUT+4*ct)}, {vr(VWM+2*ct,2)}, {vr(PM,2)}, {vr(OUT+4*ct)}')
        if ct < 3: ld()
    e.I(f'ds_write_b128 v6, {vr(OUT)}')
    e.I(f'v_rcp_f32 v{t}, v{SUM}')
    e.I(f'ds_write_b128 v6, {vr(OUT+4)} offset:2048')
    e.I(f'ds_write_b32 v10, v{t}')
    e.I(f'ds_write_b128 v6, {vr(OUT+8)} offset:4096')
    e.I(f'ds_write_b128 v6, {vr(OUT+12)} offset:6144')
    while kin: ld()
    e.I('s_waitcnt lgkmcnt(0)')
    e.I('s_barrier')
    e.I(f'ds_read_b64 {vr(t,2)}, v11')
    e.I(f'ds_read_b128 {vr(S)}, v7')
    e.I(f'ds_read_b128 {vr(S+4)}, v7 offset:512')
    e.I('s_waitcnt lgkmcnt(1)')
    for k in range(4): e.I(f'v_mul_f32 v{S+k}, v{S+k}, v{t}')
    e.I('s_waitcnt lgkmcnt(0)')
    for k in range(4): e.I(f'v_fmac_f32 v{S+k}, v{S+4+k}, v{t+1}')
    for k in range(4): e.I(f'v_add_f32_dpp v{S+k}, v{S+k}, v{S+k} {ROR8}')
    if opt.pbf:
        e.I(f'v_cvt_pk_bf16_f32 v{S+4}, v{S}, v{S+1}')
        e.I(f'v_cvt_pk_bf16_f32 v{S+5}, v{S+2}, v{S+3}')
        e.I(f'v_min_u32 v{S+4}, -2, v{S+4}')
        e.I(f'v_min_u32 v{S+5}, -2, v{S+5}')
        e.I(f'buffer_store_dwordx2 {vr(S+4,2)}, v13, {WS}, s42 offen sc1')
    else:
        e.I(f'buffer_store_dwordx4 {vr(S)}, v13, {WS}, s42 offen sc1')
    TS(e, 5)
    if opt.rpos == 2: e.I(f'buffer_store_dwordx{PW} {vr(SENT,PW)}, v13, {WS}, s43 offen sc1')
    if opt.pspin:
        for k in range(16): e.I(f'v_mov_b32 v{PA+k}, -1')
        for k in range(4): e.I(f'v_mov_b32_dpp v{PA+k}, v{S+k} quad_perm:[0,1,2,3] row_mask:0xf bank_mask:0x3')
    elif opt.pbf:
        e.I(f'v_mov_b32 v{PA}, 0'); e.I(f'v_mov_b32 v{PA+1}, 0')
        for k in range(4): e.I(f'v_cndmask_b32 v{T0+8+k}, v{S+k}, 0, s[68:69]')
    else:
        for k in range(4): e.I(f'v_mov_b32 v{PA+k}, v{S+k}')
    for x_ in kp: e.I(x_)
    if opt.pdelay: e.I(f's_sleep {opt.pdelay}')
    def shot():
        e.I('s_mov_b64 exec, s[68:69]')
        e.I(f'buffer_load_dwordx{PW} {vr(PA,PW)}, v{PAD}, {WS}, s41 offen sc1')
        e.I('s_mov_b64 exec, -1')
        for m in range(1, 4): e.I(f'buffer_load_dwordx{PW} {vr(PA+PW*m,PW)}, v{PAD+m}, {WS}, s41 offen sc1')
    ql, qd = e.lab('Lpp'), e.lab('Lpd')
    if opt.pdiag: e.I('s_mov_b32 s94, 0')
    e.L(ql)
    shot()
    if opt.pdiag: e.I('s_add_u32 s94, s94, 1')
    if opt.pspin:
        for k in range(opt.pspin):
            check_sent(e, range(PA, PA + 16), T0, T0 + 1)
            e.I(f's_cbranch_vccz {qd}')
    else:
        if opt.pdiag:
            e.I('s_waitcnt vmcnt(4)')
            e.I('s_cmp_eq_u32 s94, 1')
            pass
        e.I('s_waitcnt vmcnt(0)')
        check_sent(e, range(PA, PA + 4*PW), T0, T0 + 1)
        e.I(f's_cbranch_vccz {qd}')
    e.I('s_sub_u32 s31, s31, 1')
    e.I(f's_cbranch_scc0 {ql}')
    e.I('s_mov_b32 s31, 4')
    e.I('s_branch L_fail')
    e.L(qd)
    TS(e, 6)
    if opt.pbf:
        for m in range(4):
            for k in range(4): e.I(f'v_dot2c_f32_bf16 v{T0+8+k}, {("s70", "s71")[k&1]}, v{PA+2*m+(k>>1)}')
        e.I('s_nop 2')
    else:
        for k in range(4):
            e.I(f'v_add_f32 v{T0+4+k}, v{PA+k}, v{PA+4+k}')
            e.I(f'v_add_f32 v{T0+8+k}, v{PA+8+k}, v{PA+12+k}')
        for k in range(4):
            e.I(f'v_add_f32 v{T0+8+k}, v{T0+4+k}, v{T0+8+k}')
    for k in range(2): e.I(f'v_add_f32_dpp v{T0+4+k}, v{T0+8+k}, v{T0+8+k} row_ror:8 row_mask:0xf bank_mask:0x3')
    for k in range(2): e.I(f'v_add_f32_dpp v{T0+4+k}, v{T0+10+k}, v{T0+10+k} row_ror:8 row_mask:0xf bank_mask:0xc ; merge')
    e.I(f'v_cvt_pk_bf16_f32 v{T0+4}, v{T0+4}, v{T0+5}')
    e.I(f'v_min_u32 v{T0+4}, -2, v{T0+4}')
    e.I(f'buffer_store_dword v{T0+4}, v8, {WS}, s44 offen{fl}')
    TS(e, 7)
    e.I(f'buffer_store_dword v{SENT}, v8, {WS}, s45 offen{fl}')
    if opt.mbar: e.I('s_barrier')
    nvx = max(0, 12 - opt.kin - opt.kp)
    for x_ in kc[:nvx]: e.I(x_)
    vw_x(None, kc[nvx:], nvx)
    TS(e, 8)
    TSflush(e, 's30', 244, 245)
    e.I('s_add_u32 s30, s30, 1')
    e.I('s_cmp_lt_u32 s30, 63')
    e.I(f's_cbranch_scc1 {top}')
    e.I('s_endpgm')

def role_xw(e):
    OF = 16
    D = 112
    T0 = 160; ONE = 252
    e.I('s_sub_u32 s24, s21, 22')
    srd(e, 8, 66, 6144 * 1280)
    e.I(f's_mul_i32 s28, s20, {768*1280}')
    e.I('s_lshl_b32 s29, s24, 8')
    e.I('s_add_u32 s28, s28, s29')
    e.I('s_add_u32 s29, s28, 128')
    e.I(f'v_lshlrev_b32 v{ONE+1}, 2, v1')
    e.I('s_lshl_b32 s38, s20, 8')
    e.I(f's_add_u32 s38, s38, {FLGQ}')
    if opt.xlate & 1: wait_flags(e, ONE + 1, 's38', 1, T0, 15, sleep=16)
    load_weights(e, [('s[8:11]', 's28', 0, 768), ('s[8:11]', 's29', 96, 768)], 1280, 256, True, 3, 4)
    e.I(f'v_lshlrev_b32 v{ONE+1}, 2, v1')
    e.I('s_lshl_b32 s38, s20, 2')
    e.I('s_add_u32 s38, s38, s22')
    e.I('s_lshl_b32 s39, s38, 2')
    e.I('v_lshlrev_b32 v3, 7, v1')
    e.I('v_add_u32 v3, s39, v3')
    e.I(f'v_mov_b32 v{ONE}, 1')
    e.I('s_mul_i32 s62, s22, 12288')
    e.I('s_mul_i32 s63, s38, 12288')
    e.I(f's_add_u32 s63, s63, {OX}')
    e.I('s_mul_i32 s64, s20, 40960')
    e.I('s_lshl_b32 s65, s24, 2')
    e.I('s_add_u32 s65, s65, s22')
    e.I('s_lshl_b32 s65, s65, 10')
    e.I('s_add_u32 s64, s64, s65')
    e.I(f's_add_u32 s64, s64, {PX}')
    e.I('s_lshl_b32 s66, s24, 8')
    e.I(f's_add_u32 s66, s66, {FLGPX}')
    def pxflag():
        e.I('s_mov_b64 exec, 3')
        e.I(f'buffer_store_dword v{ONE}, v3, {WS}, s54 offen sc1')
        e.I('s_mov_b64 exec, -1')
    top, nof = e.lab('Lxt'), e.lab('Lxn')
    e.I('s_mov_b32 s30, 0')
    e.L(top)
    TS(e, 0)
    e.I('s_lshl_b32 s50, s30, 3')
    e.I('s_add_u32 s50, s50, s20')
    e.I('s_lshl_b32 s50, s50, 6')
    e.I(f's_add_u32 s50, s50, {FLGOX}')
    wait_flags(e, ONE + 1, 's50', 0xf, T0, 5, sleep=opt.xsleep)
    TS(e, 1)
    e.I('s_cmp_eq_u32 s30, 0')
    e.I(f's_cbranch_scc1 {nof}')
    pxflag()
    e.L(nof)
    e.I('s_barrier')
    e.I(f's_and_b32 s50, s30, {RD-1}')
    e.I(f's_mul_i32 s50, s50, {SEG_QX}')
    e.I('s_add_u32 s50, s50, s63')
    for m in range(12):
        e.I(f's_add_u32 m0, s62, {m*1024}')
        e.I(f'buffer_load_dwordx4 v2, {WS}, s50 offen sc1 lds')
        if m < 11: e.I('s_add_u32 s50, s50, 1024')
    e.I(f's_mul_i32 s50, s30, {SEG_PX}')
    e.I('s_add_u32 s50, s50, s64')
    e.I('s_add_u32 s51, s50, 20480')
    e.I('s_mul_i32 s54, s30, 1280')
    e.I('s_add_u32 s54, s54, s66')
    e.I('s_waitcnt vmcnt(0)')
    e.I('s_barrier')
    TS(e, 2)
    PF = 6
    def rd(kk):
        hl, p = kk // 6, kk % 6
        for qt in range(2):
            e.I(f'ds_read_b128 {vr(OF + ((2*kk+qt) % 24)*4)}, v2 offset:{hl*12288 + (qt*6+p)*1024}')
    for kk in range(PF): rd(kk)
    for kk in range(24):
        nxt = min(24, kk + PF) - (kk + 1)
        e.I(f's_waitcnt lgkmcnt({2*nxt})')
        for qt in range(2):
            for b in range(2):
                d = vr(D + 4*(qt*2+b))
                e.I(f'{MFMA} {d}, {ar(96*b+4*kk)}, {vr(OF + ((2*kk+qt) % 24)*4)}, {0 if kk == 0 else d}')
        if kk + PF < 24: rd(kk + PF)
    for qt, so in enumerate(('s50', 's51')):
        for k in range(4): e.I(f'v_cvt_pk_bf16_f32 v{D+16+4*qt+k}, v{D+8*qt+2*k}, v{D+8*qt+2*k+1}')
        if not opt.nopx: e.I(f'buffer_store_dwordx4 {vr(D+16+4*qt)}, v2, {WS}, {so} offen sc1')
    TS(e, 3)
    TSflush(e, 's30')
    e.I('s_add_u32 s30, s30, 1')
    e.I('s_cmp_lt_u32 s30, 64')
    e.I(f's_cbranch_scc1 {top}')
    e.I('s_waitcnt vmcnt(0)')
    pxflag()
    e.I('s_endpgm')

def role_att(e, slow):
    fl = ' sc1' if slow else ''
    QF, XPF, KF, VXF, VMF = 16, 64, 88, 136, 184
    S, P, T0 = 208, 220, 226
    PL = 196
    DO = 0
    C0, C1 = 232, 236
    ONE = 252
    e.I('s_sub_u32 s25, s21, 27')
    e.I('s_lshl_b32 s26, s20, 2')
    e.I('s_add_u32 s26, s26, s22')
    e.I(f's_mov_b32 s52, {SC_L2E:#x}'); e.I(f's_mov_b32 s53, {SC_L2E | 0x80000000:#x}')
    e.I(f'v_lshlrev_b32 v{ONE+1}, 2, v1')
    e.I('s_lshl_b32 s38, s22, 2')
    e.I(f'v_mov_b32 v{ONE+2}, s38')
    e.I(f'v_mov_b32 v{ONE}, 1')
    lane_ig(e, 14, 15)
    e.I(f'v_mov_b32 v3, {NEG_BIG:#x}')
    e.I('v_cmp_gt_u32 vcc, 32, v1')
    e.I(f'v_cndmask_b32 v{C0}, 0, v3, vcc')
    for k in range(1, 4): e.I(f'v_mov_b32 v{C0+k}, v{C0}')
    e.I('v_lshlrev_b32 v5, 2, v15')
    for r in range(4):
        e.I(f'v_add_u32 v6, {r}, v5')
        e.I('v_cmp_gt_u32 vcc, v6, v14')
        e.I(f'v_cndmask_b32 v{C1+r}, 0, v3, vcc')
    e.I('s_mul_i32 s58, s26, 6144')
    e.I('v_lshlrev_b32 v10, 7, v1')
    e.I('s_lshl_b32 s59, s22, 14')
    e.I('v_and_b32 v4, 3, v1')
    e.I('v_lshlrev_b32 v4, 8, v4')
    e.I('v_bfe_u32 v5, v1, 2, 3')
    e.I('v_lshl_add_u32 v5, v5, 4, v4')
    e.I('v_add_u32 v5, s59, v5')
    e.I('v_lshrrev_b32 v6, 2, v1')
    e.I('v_lshl_add_u32 v4, v6, 4, v4')
    e.I('v_add_u32 v4, s59, v4')
    e.I('v_cmp_gt_u32 vcc, 32, v1')
    for j in range(3):
        off = lambda kk: 12288 + (kk % 3) * 1024 + (kk // 3) * 128
        e.I(f'v_mov_b32 v6, {off(2*j+1)}')
        e.I(f'v_mov_b32 v11, {off(2*j)}')
        e.I('v_cndmask_b32 v6, v6, v11, vcc')
        e.I(f'v_add_u32 v{7+j}, v5, v6')
    def touch(sq, sx, dx, dm, do):
        n = 0
        jobs = []
        if dx is not None: jobs += [(sq, 0, b_ + dx * SEG_QX, 2) for b_ in (KX, VX, QX)]
        if do is not None: jobs += [(sq, 0, OX + do * SEG_QX, 2)]
        if dm is not None: jobs += [(sx, 0, XP + dm * SEG_XP, 1), (sx, 1, VM + dm * SEG_VM, 1)]
        for (sb, half, add, cnt) in jobs:
            if half:
                e.I(f's_lshr_b32 s48, {sb}, 1'); e.I(f's_add_u32 s48, s48, {add}')
            else:
                e.I(f's_add_u32 s48, {sb}, {add}')
            for c_ in range(cnt):
                if c_: e.I('s_add_u32 s48, s48, 4096')
                e.I(f'buffer_load_dword v11, v10, {WS}, s48 offen sc1'); n += 1
        return n
    if opt.touch:
        e.I(f's_mul_i32 s40, s25, {SEG_QX}')
        e.I('s_lshl_b32 s41, s58, 1')
        e.I('s_add_u32 s40, s40, s41')
        e.I(f's_mul_i32 s41, s25, {SEG_XP}')
        e.I('s_add_u32 s41, s41, s58')
        e.I('s_lshl_b32 s51, s26, 6')
        e.I(f's_add_u32 s51, s51, {FLGQ}')
        if opt.xlate & 2: wait_flags(e, ONE + 1, 's51', 1, T0, 15, sleep=16)
        for k_ in range(2, RD, 2): touch('s40', 's41', k_, None, None)
        e.I('s_waitcnt vmcnt(0)')
        for k_ in range(0, RD, 2): touch('s40', 's41', None, k_, k_)
    e.I('v_lshrrev_b32 v12, 2, v1')
    e.I('v_lshlrev_b32 v12, 8, v12')
    e.I('v_and_b32 v13, 3, v1')
    e.I('v_lshl_add_u32 v12, v13, 2, v12')
    e.I('s_lshl_b32 s38, s20, 4')
    e.I('v_add_u32 v12, s38, v12')
    top = e.lab('Lat')
    e.I('s_mov_b32 s30, s25')
    e.L(top)
    TS(e, 0)
    e.I('s_add_u32 s51, s30, 2')
    e.I('s_lshl_b32 s51, s51, 5')
    e.I('s_add_u32 s51, s51, s26')
    e.I('s_lshl_b32 s51, s51, 6')
    e.I(f's_add_u32 s51, s51, {FLGQ}')
    e.I(f's_and_b32 s42, s30, {RD-1}')
    e.I(f's_mul_i32 s40, s42, {SEG_QX}')
    e.I('s_lshl_b32 s41, s58, 1')
    e.I('s_add_u32 s40, s40, s41')
    e.I(f's_mul_i32 s41, s42, {SEG_XP}')
    e.I('s_add_u32 s41, s41, s58')
    nbp = e.lab('Lab')
    e.I(f's_cmp_lt_u32 s30, {RD}')
    e.I(f's_cbranch_scc1 {nbp}')
    e.I(f's_sub_u32 s50, s30, {RD}')
    e.I('s_mul_i32 s50, s50, 1280')
    e.I(f's_add_u32 s50, s50, {FLGPX}')
    wait_flags(e, 12, 's50', 0xfffff, T0, 14, sleep=16)
    e.L(nbp)
    wait_flags(e, ONE + 1, 's51', 0xfff, T0, 6, sleep=opt.asleep)
    TS(e, 1)
    def loads(dst, n, sbase, add, w=4, va=2):
        e.I(f's_add_u32 s48, {sbase}, {add}')
        per = 4096 // (256 * w)
        for q in range(n):
            if q and q % per == 0: e.I('s_add_u32 s48, s48, 4096')
            e.I(f'buffer_load_dwordx{w} {vr(dst+w*q, w)}, v{va}, {WS}, s48 offen offset:{(q%per)*256*w} sc1')
    loads(XPF, 6, 's41', XP)
    loads(KF, 6, 's40', KX)
    loads(QF, 6, 's40', QX)
    e.I('s_lshr_b32 s42, s41, 1')
    e.I(f's_add_u32 s48, s42, {VM}')
    for q in range(3):
        e.I(f's_add_u32 m0, s59, {12288 + q*1024}')
        e.I(f'buffer_load_dwordx4 v2, {WS}, s48 offen sc1 lds')
        e.I('s_add_u32 s48, s48, 1024')
    e.I(f's_add_u32 s48, s40, {VX}')
    for q in range(12):
        e.I(f's_add_u32 m0, s59, {q*1024}')
        e.I(f'buffer_load_dwordx4 v2, {WS}, s48 offen sc1 lds')
        e.I('s_add_u32 s48, s48, 1024')
    loads(KF + 24, 6, 's40', KX + 6144)
    loads(QF + 24, 6, 's40', QX + 6144)
    NT = 0
    for qt in range(2):
        e.I(f's_waitcnt vmcnt({(27 if qt == 0 else 6) + NT})')
        if qt == 0: TS(e, 2)
        for p in range(6):
            q = vr(QF + 24*qt + 4*p)
            e.I(f'{MFMA} {vr(S)}, {vr(XPF+4*p)}, {q}, {vr(C0) if p == 0 else vr(S)}')
            e.I(f'{MFMA} {vr(S+4)}, {vr(KF+4*p)}, {q}, {(vr(C1) if qt == 0 else 0) if p == 0 else vr(S+4)}')
            if qt == 1: e.I(f'{MFMA} {vr(S+8)}, {vr(KF+24+4*p)}, {q}, {vr(C1) if p == 0 else vr(S+8)}')
        if qt == 0:
            for k in range(4): e.I(f'v_mov_b32 v{S+8+k}, v3')
        softmax12(e, S, P, T0)
        e.I(f'v_mov_b32 v{PL}, 0')
        e.I(f'v_mov_b32 v{PL+1}, 0')
        e.I(f'v_mov_b32 v{T0}, v{P}')
        e.I(f'v_mov_b32 v{T0+1}, v{P+1}')
        e.I(f'v_permlane32_swap_b32 v{T0}, v{PL}')
        e.I(f'v_permlane32_swap_b32 v{T0+1}, v{PL+1}')
        e.I(f's_add_u32 s48, s40, {OX + qt*6144}')
        e.I('s_add_u32 s49, s48, 4096')
        if qt == 0:
            e.I(f's_waitcnt vmcnt({12 + NT})')
            for j in range(3):
                for t in range(2):
                    e.I(f'ds_read_b64_tr_b16 {vr(VMF+4*j+2*t,2)}, v{7+j} offset:{t*8}')
            for T in range(12):
                for rt in range(2):
                    e.I(f'ds_read_b64_tr_b16 {vr(VXF+4*T+2*rt,2)}, v4 offset:{rt*6144 + (T>>1)*1024 + (T&1)*8}')
            e.I('s_waitcnt lgkmcnt(0)')
        def fin(p):
            dp = DO + 8 * (p % 2); op_ = QF + 24*qt + 4 * p
            for k in range(8): e.I(f'v_accvgpr_read_b32 v{240+k}, a{dp+k}')
            for k in range(4): e.I(f'v_cvt_pk_bf16_f32 v{op_+k}, v{240+2*k}, v{240+2*k+1}')
            e.I(f'buffer_store_dwordx4 {vr(op_)}, v2, {WS}, {"s48" if p < 4 else "s49"} offen offset:{(p%4)*1024}{fl}')
        for p in range(6):
            d = DO + 8 * (p % 2)
            for t in range(2):
                e.I(f'{MFMA16} {ar(d+4*t)}, {vr(VMF+4*(p>>1)+2*t,2)}, {vr(PL,2) if p % 2 == 0 else vr(P,2)}, 0')
            for t in range(2):
                e.I(f'{MFMA} {ar(d+4*t)}, {vr(VXF+4*(2*p+t))}, {vr(P+2)}, {ar(d+4*t)}')
            if p > 0: fin(p - 1)
        fin(5)
    e.I('s_lshl_b32 s50, s30, 3')
    e.I('s_add_u32 s50, s50, s20')
    e.I('s_lshl_b32 s50, s50, 6')
    e.I(f's_add_u32 s50, s50, {FLGOX}')
    e.I('s_waitcnt vmcnt(0)')
    set_flag(e, ONE + 2, 's50', ONE, fl)
    TS(e, 3)
    TSflush(e, 's30', 230, 231)
    e.I('s_add_u32 s30, s30, 2')
    e.I('s_cmp_lt_u32 s30, 64')
    e.I(f's_cbranch_scc1 {top}')
    e.I('s_endpgm')

F_LX, F_LH = 0, 98304
def role_ffn(e):
    ACC2 = 0
    ACC1 = 16
    BF = 48
    HP = 80
    WR = 96
    NW = 40
    e.I('s_sub_u32 s26, s21, 29')
    e.I('s_mul_i32 s25, s20, 3')
    e.I('s_add_u32 s26, s26, s25')
    e.I('s_mov_b32 s24, s26')
    e.L('L_ffn_task')
    e.I('s_lshl_b32 s38, s24, 2')
    e.I('s_add_u32 s38, s38, s22')
    e.I('s_mul_i32 s39, s38, 20480')
    e.I(f's_add_u32 s39, s39, {XN}')
    e.I('s_mul_i32 s40, s22, 20480')
    for m in range(20):
        e.I(f's_add_u32 m0, s40, {m*1024}')
        e.I(f'buffer_load_dwordx4 v2, {WS}, s39 offen lds')
        e.I('s_add_u32 s39, s39, 1024')
    for k in range(160): e.I(f'v_accvgpr_write_b32 a{k}, 0')
    e.I('s_mul_i32 s41, s22, 40960')
    e.I(f's_add_u32 s41, s41, {W1F}')
    e.I(f's_mul_i32 s42, s22, {10*48*1024}')
    e.I(f's_add_u32 s42, s42, {W2F}')
    e.I('v_add_u32 v3, 20480, v2')
    for u in range(10):
        e.I(f's_mov_b32 s54, {u*48*1024}')
        e.I(f'v_add_u32 v{4+u}, s54, v2')
    e.I(f'v_add_u32 v14, {F_LH}, v2')
    e.I('s_lshl_b32 s38, s22, 12')
    e.I('v_add_u32 v15, s38, v14')
    def wload(idx, adv):
        dst = vr(WR + (idx % NW) * 4)
        if idx < 40:
            kk, u = idx // 2, idx % 2
            e.I(f's_add_u32 s45, {adv[0]}, {(kk//4)*4096}')
            e.I(f'buffer_load_dwordx4 {dst}, v{2+u}, {WS}, s45 offen offset:{(kk%4)*1024}{" nt" if opt.ffnnt else ""}')
        else:
            pp, u = (idx - 40) // 10, (idx - 40) % 10
            e.I(f'buffer_load_dwordx4 {dst}, v{4+u}, {WS}, {adv[1]} offen offset:{pp*1024}{" nt" if opt.ffnnt else ""}')
    for idx in range(NW - 2): wload(idx, ('s41', 's42'))
    e.I(f's_waitcnt vmcnt({NW-2})')
    e.I('s_barrier')
    top = e.lab('Lft')
    TS(e, 0)
    e.I('s_mov_b32 s30, 0')
    e.L(top)
    e.I('s_cmp_lt_u32 s30, 11')
    e.I('s_cselect_b32 s46, 163840, 0')
    e.I('s_cselect_b32 s47, 4096, 0')
    e.I('s_add_u32 s43, s41, s46')
    e.I('s_add_u32 s44, s42, s47')
    D = NW - 2
    def pref(idx):
        j = idx + D
        if j < 80: wload(j, ('s41', 's42'))
        else: wload(j - 80, ('s43', 's44'))
    def rdx(kk):
        for rt in range(4):
            e.I(f'ds_read_b128 {vr(BF + ((kk%2)*4+rt)*4)}, v{2 if rt < 3 else 3} offset:{(rt if rt < 3 else 2)*20480 + kk*1024}')
    rdx(0)
    for kk in range(20):
        if kk + 1 < 20: rdx(kk + 1)
        e.I(f's_waitcnt vmcnt({D-2}) lgkmcnt({4 if kk+1 < 20 else 0})')
        for u in range(2):
            idx = 2 * kk + u
            for rt in range(4):
                d = vr(ACC1 + (u*4+rt)*4)
                e.I(f'{MFMA} {d}, {vr(WR+(idx%NW)*4)}, {vr(BF+((kk%2)*4+rt)*4)}, {0 if kk == 0 else d}')
        pref(2 * kk); pref(2 * kk + 1)
    for rt in range(4):
        for u in range(2):
            d = ACC1 + (u*4+rt)*4
            for k in range(4): e.I(f'v_max_f32 v{d+k}, 0, v{d+k}')
            e.I(f'v_cvt_pk_bf16_f32 v{HP+rt*4+2*u}, v{d}, v{d+1}')
            e.I(f'v_cvt_pk_bf16_f32 v{HP+rt*4+2*u+1}, v{d+2}, v{d+3}')
        e.I(f'ds_write_b128 v15, {vr(HP+rt*4)} offset:{rt*1024}')
    e.I('s_waitcnt lgkmcnt(0)')
    e.I('s_barrier')
    def rdh(pp):
        for rt in range(4):
            e.I(f'ds_read_b128 {vr(BF + ((pp%2)*4+rt)*4)}, v14 offset:{pp*4096 + rt*1024}')
    rdh(0)
    for pp in range(4):
        if pp + 1 < 4: rdh(pp + 1)
        for u in range(10):
            idx = 40 + pp * 10 + u
            w = f's_waitcnt vmcnt({D-1})'
            if u == 0: w += f' lgkmcnt({4 if pp+1 < 4 else 0})'
            e.I(w)
            for rt in range(4):
                d = ar(ACC2 + (u*4+rt)*4)
                e.I(f'{MFMA} {d}, {vr(WR+(idx%NW)*4)}, {vr(BF+((pp%2)*4+rt)*4)}, {d}')
            pref(idx)
    e.I('v_xor_b32 v14, 16384, v14')
    e.I('v_xor_b32 v15, 16384, v15')
    e.I('s_mov_b32 s41, s43')
    e.I('s_mov_b32 s42, s44')
    e.I('s_add_u32 s30, s30, 1')
    e.I('s_cmp_lt_u32 s30, 12')
    e.I(f's_cbranch_scc1 {top}')
    e.I('s_waitcnt vmcnt(0)')
    TS(e, 1)
    e.I('v_lshlrev_b32 v3, 3, v1')
    e.I(f's_mul_i32 s38, s24, {4*40*512}')
    e.I(f's_mul_i32 s39, s22, {10*512}')
    e.I('s_add_u32 s38, s38, s39')
    e.I(f's_add_u32 s38, s38, {G_}')
    e.I(f's_mov_b32 s52, {f2u(-1.4426950408889634):#x}')
    for rt in range(4):
        e.I(f's_add_u32 s39, s38, {rt*40*512}')
        e.I('s_add_u32 s40, s39, 4096')
        for u in range(10):
            t = 16 + ((rt*10+u) % 4) * 16
            a0 = ACC2 + (u*4+rt)*4
            for k in range(4): e.I(f'v_accvgpr_read_b32 v{t+k}, a{a0+k}')
            e.I(f'v_cvt_pk_bf16_f32 v{t+4}, v{t}, v{t+1}')
            e.I(f'v_cvt_pk_bf16_f32 v{t+5}, v{t+2}, v{t+3}')
            e.I(f'v_lshlrev_b32 v{t}, 16, v{t+4}')
            e.I(f'v_and_b32 v{t+1}, 0xffff0000, v{t+4}')
            e.I(f'v_lshlrev_b32 v{t+2}, 16, v{t+5}')
            e.I(f'v_and_b32 v{t+3}, 0xffff0000, v{t+5}')
            for k in range(4): e.I(f'v_mul_f32 v{t+4+k}, s52, v{t+k}')
            for k in range(4): e.I(f'v_exp_f32 v{t+4+k}, v{t+4+k}')
            for k in range(4): e.I(f'v_add_f32 v{t+4+k}, 1.0, v{t+4+k}')
            for k in range(4): e.I(f'v_rcp_f32 v{t+4+k}, v{t+4+k}')
            for k in range(4): e.I(f'v_mul_f32 v{t+k}, v{t+k}, v{t+4+k}')
            e.I(f'v_cvt_pk_bf16_f32 v{t+8}, v{t}, v{t+1}')
            e.I(f'v_cvt_pk_bf16_f32 v{t+9}, v{t+2}, v{t+3}')
            e.I(f'buffer_store_dwordx2 {vr(t+8,2)}, v3, {WS}, {"s39" if u < 8 else "s40"} offen offset:{(u%8)*512} sc1')
    e.I('s_waitcnt vmcnt(0)')
    TS(e, 2)
    if opt.ts: e.I('s_lshr_b32 s50, s24, 3'); e.I('s_add_u32 s50, s50, 64')
    TSflush(e, 's50')
    e.I('s_barrier')
    e.I('s_cmp_lg_u32 s22, 0')
    e.I('s_cbranch_scc1 L_ffn_nf')
    e.I('v_mov_b32 v4, 1')
    e.I('s_lshl_b32 s38, s24, 2')
    e.I('v_mov_b32 v5, s38')
    e.I(f's_mov_b32 s39, {FLGG}')
    set_flag(e, 5, 's39', 4, ' sc1')
    e.I('s_waitcnt vmcnt(0)')
    e.L('L_ffn_nf')
    e.I('s_cmp_ge_u32 s26, 8')
    e.I(f's_cbranch_scc1 {"L_end" if opt.nocmb else "L_cmb"}')
    e.I('s_add_u32 s24, s24, 24')
    e.I('s_cmp_lt_u32 s24, 32')
    e.I('s_cbranch_scc1 L_ffn_task')
    e.I('s_endpgm')

def role_cmb(e):
    PXR = 16
    GR = 144
    XR_ = 152
    T0 = 160
    srd(e, 8, 68, 2048 * 1280)
    srd(e, 12, 70, 2048 * 1280)
    e.I('s_sub_u32 s24, s26, 8')
    e.I('s_lshl_b32 s24, s24, 2')
    e.I('s_add_u32 s30, s24, s22')
    e.I('v_lshlrev_b32 v3, 2, v1')
    e.I('v_lshlrev_b32 v4, 3, v1')
    e.I('v_mov_b32 v6, 0')
    lane_ig(e, 14, 15)
    e.I('v_mul_u32_u24 v5, 1280, v14')
    e.I('v_lshl_add_u32 v5, v15, 3, v5')
    e.I('s_mov_b32 s49, 0')
    top = e.lab('Lct')
    e.L(top)
    TS(e, 0)
    e.I('s_mul_i32 s38, s30, 3277')
    e.I('s_lshr_b32 s38, s38, 16')
    e.I('s_mul_i32 s39, s38, 20')
    e.I('s_sub_u32 s39, s30, s39')
    e.I('s_cmp_ge_u32 s39, 10')
    e.I('s_cselect_b32 s40, 1, 0')
    e.I('s_mul_i32 s41, s40, 10')
    e.I('s_sub_u32 s41, s39, s41')
    e.I(f's_add_u32 s42, s38, {opt.clag}')
    e.I('s_min_u32 s42, s42, 63')
    e.I('s_lshl_b32 s42, s42, 3')
    e.I('s_add_u32 s42, s42, s20')
    e.I('s_lshl_b32 s42, s42, 6')
    e.I(f's_add_u32 s42, s42, {FLGOX}')
    wait_flags(e, 6, 's42', 1, T0, 9, sleep=opt.lsleep)
    gok = e.lab('Lcg')
    e.I('s_cmp_lg_u32 s49, 0')
    e.I(f's_cbranch_scc1 {gok}')
    e.I(f's_mov_b32 s42, {FLGG}')
    e.I('s_mov_b32 exec_hi, 0')
    e.I(f'buffer_load_dword v{T0}, v3, {WS}, s42 offen sc1')
    e.I('s_waitcnt vmcnt(0)')
    e.I(f'v_cmp_eq_u32 vcc, 0, v{T0}')
    e.I('s_mov_b64 exec, -1')
    e.I('s_cmp_eq_u32 vcc_lo, 0')
    e.I('s_cselect_b32 s49, 1, 0')
    e.I(f's_cbranch_scc1 {gok}')
    e.I('s_lshr_b32 s42, s38, 1')
    e.I('s_lshl_b32 s42, s42, 2')
    e.I(f's_add_u32 s42, s42, {FLGG}')
    wait_flags(e, 6, 's42', 1, T0, 7, sleep=32)
    e.L(gok)
    e.I('s_mul_i32 s42, s38, 10')
    e.I('s_and_b32 s44, s41, 14')
    e.I('s_add_u32 s42, s42, s44')
    e.I('s_lshl_b32 s42, s42, 7')
    e.I(f's_add_u32 s42, s42, {FLGPX}')
    wait_flags(e, 3, 's42', 0xffffffff, T0, 8, sleep=opt.csleep)
    TS(e, 1)
    e.I(f's_mul_i32 s43, s38, {SEG_PX}')
    e.I('s_mul_i32 s44, s40, 20480')
    e.I('s_add_u32 s43, s43, s44')
    e.I('s_lshl_b32 s44, s41, 11')
    e.I('s_add_u32 s43, s43, s44')
    e.I(f's_add_u32 s43, s43, {PX}')
    e.I('s_lshl_b32 s45, s38, 1')
    e.I('s_add_u32 s45, s45, s40')
    e.I('s_mul_i32 s46, s45, 20480')
    e.I('s_lshr_b32 s47, s41, 1')
    e.I('s_lshl_b32 s47, s47, 2')
    e.I('s_and_b32 s48, s41, 1')
    e.I('s_add_u32 s44, s47, s48')
    e.I('s_lshl_b32 s47, s44, 10')
    e.I('s_add_u32 s47, s47, s46')
    e.I(f's_add_u32 s47, s47, {G_}')
    e.I('s_lshl_b32 s48, s44, 6')
    e.I('s_add_u32 s48, s48, s46')
    TO = (0, 4, 1, 5)
    for t in range(4):
        if not opt.cdiag & 1: e.I(f'buffer_load_dwordx2 {vr(GR+2*t,2)}, v4, {WS}, s47 offen offset:{TO[t]*512} sc1')
        if not opt.cdiag & 2: e.I(f'buffer_load_dwordx2 {vr(XR_+2*t,2)}, v5, s[8:11], s48 offen offset:{TO[t]*32}')
    RAW = PXR + 32
    def ld(x):
        for t in range(2):
            if not opt.cdiag & 4: e.I(f'buffer_load_dwordx4 {vr(RAW+(x*2+t)*4)}, v2, {WS}, s43 offen offset:{t*1024} sc1')
        if x < 7: e.I('s_add_u32 s43, s43, 40960')
    def body(depth):
        for x in range(min(depth, 8)): ld(x)
        for x in range(8):
            left = min(depth - 1, 7 - x)
            e.I(f's_waitcnt vmcnt({left*2})')
            if x + depth < 8: ld(x + depth)
            for k in range(8):
                d = PXR + (0 if x == 0 else 16) + 2 * k
                e.I(f'v_lshlrev_b32 v{d}, 16, v{RAW+x*8+k}')
                e.I(f'v_and_b32 v{d+1}, 0xffff0000, v{RAW+x*8+k}')
            if x:
                for k in range(16):
                    e.I(f'v_add_f32 v{PXR+k}, v{PXR+k}, v{PXR+16+k}')
    fast, join = e.lab('Lcf'), e.lab('Lcj')
    e.I('s_cmp_ge_u32 s38, 61')
    e.I(f's_cbranch_scc1 {fast}')
    body(opt.cdepth)
    e.I(f's_branch {join}')
    e.L(fast)
    body(8)
    e.L(join)
    for t in range(4):
        b = PXR + 4 * t; u = T0 + 8 * (t % 2)
        e.I(f'v_cvt_pk_bf16_f32 v{u}, v{b}, v{b+1}')
        e.I(f'v_cvt_pk_bf16_f32 v{u+1}, v{b+2}, v{b+3}')
        for h_ in range(2):
            e.I(f'v_lshlrev_b32 v{b+2*h_}, 16, v{u+h_}')
            e.I(f'v_and_b32 v{b+2*h_+1}, 0xffff0000, v{u+h_}')
            e.I(f'v_lshlrev_b32 v{u+2+2*h_}, 16, v{GR+2*t+h_}')
            e.I(f'v_and_b32 v{u+3+2*h_}, 0xffff0000, v{GR+2*t+h_}')
        for k in range(4): e.I(f'v_mul_f32 v{b+k}, v{b+k}, v{u+2+k}')
        e.I(f'v_cvt_pk_bf16_f32 v{u}, v{b}, v{b+1}')
        e.I(f'v_cvt_pk_bf16_f32 v{u+1}, v{b+2}, v{b+3}')
        for h_ in range(2):
            e.I(f'v_lshlrev_b32 v{b+2*h_}, 16, v{u+h_}')
            e.I(f'v_and_b32 v{b+2*h_+1}, 0xffff0000, v{u+h_}')
            e.I(f'v_lshlrev_b32 v{u+2+2*h_}, 16, v{XR_+2*t+h_}')
            e.I(f'v_and_b32 v{u+3+2*h_}, 0xffff0000, v{XR_+2*t+h_}')
        for k in range(4): e.I(f'v_add_f32 v{b+k}, v{b+k}, v{u+2+k}')
        e.I(f'v_cvt_pk_bf16_f32 v{u+6}, v{b}, v{b+1}')
        e.I(f'v_cvt_pk_bf16_f32 v{u+7}, v{b+2}, v{b+3}')
        if not opt.cdiag & 8: e.I(f'buffer_store_dwordx2 {vr(u+6,2)}, v5, s[12:15], s48 offen offset:{TO[t]*32}')
    TS(e, 2)
    if opt.ts: e.I('s_lshr_b32 s50, s30, 6')
    TSflush(e, 's50')
    e.I('s_add_u32 s30, s30, 64')
    e.I('s_cmp_lt_u32 s30, 1280')
    e.I(f's_cbranch_scc1 {top}')
    e.I('s_endpgm')

def gen_mainkernel(e):
    kernel_head(e, MAIN)
    e.I('s_cmp_ge_u32 s2, 256')
    e.I('s_cbranch_scc1 L_end')
    e.I('s_load_dwordx2 s[32:33], s[0:1], 96')
    e.I('s_load_dwordx4 s[60:63], s[0:1], 16')
    e.I('s_load_dwordx4 s[64:67], s[0:1], 32')
    e.I('s_load_dwordx2 s[68:69], s[0:1], 0')
    e.I('s_load_dwordx4 s[72:75], s[0:1], 80')
    TS(e, 0)
    e.I('s_getreg_b32 s24, hwreg(HW_REG_XCC_ID)')
    e.I('s_and_b32 s24, s24, 15')
    e.I('v_and_b32 v1, 63, v0')
    e.I('v_lshlrev_b32 v2, 4, v1')
    e.I('v_lshrrev_b32 v3, 6, v0')
    e.I('v_readfirstlane_b32 s22, v3')
    e.I('s_waitcnt lgkmcnt(0)')
    e.I('s_mov_b64 s[70:71], s[72:73]')
    srd(e, 4, 32, WS_BYTES)
    e.I('s_cmp_lg_u32 s22, 0')
    e.I('s_cbranch_scc1 L_role')
    e.I('s_mov_b64 exec, 1')
    e.I('s_lshl_b32 s25, s24, 7')
    e.I('v_mov_b32 v3, s25')
    e.I('v_mov_b32 v4, 1')
    e.I(f'buffer_atomic_add v4, v3, {WS}, 0 offen sc0')
    e.I('s_mov_b64 exec, 0xffff')
    e.I('v_lshlrev_b32 v3, 7, v1')
    e.I('s_waitcnt vmcnt(0)')
    e.I('v_readfirstlane_b32 s25, v4')
    e.I(f's_mov_b32 s31, {TMO}')
    e.L('L_cnt')
    e.I(f'buffer_load_dword v5, v3, {WS}, 0 offen sc1')
    e.I('s_waitcnt vmcnt(0)')
    for y in range(16): e.I(f'v_readlane_b32 s{36+y}, v5, {y}')
    e.I('s_nop 3')
    e.I('s_mov_b32 s26, 0'); e.I('s_mov_b32 s27, s25'); e.I('s_mov_b32 s23, 0')
    for y in range(16):
        e.I(f's_add_u32 s26, s26, s{36+y}')
        e.I(f's_cmp_gt_u32 s24, {y}')
        e.I(f's_cselect_b32 s28, s{36+y}, 0')
        e.I('s_add_u32 s27, s27, s28')
        if y < 8:
            e.I(f's_cmp_lg_u32 s{36+y}, 32')
            e.I('s_cselect_b32 s23, 1, s23')
    e.I('s_cmp_eq_u32 s26, 256')
    e.I('s_cbranch_scc1 L_cntd')
    e.I('s_sub_u32 s31, s31, 1')
    e.I('s_cbranch_scc0 L_cnt')
    e.I('s_mov_b32 s23, 2')
    e.L('L_cntd')
    if opt.force_slow:
        e.I('s_mov_b32 s23, 1')
        e.I('s_mov_b32 s27, s2')
    e.I('s_lshr_b32 s20, s27, 5')
    e.I('s_and_b32 s21, s27, 31')
    e.I('v_mov_b32 v4, s20'); e.I('v_mov_b32 v5, s21'); e.I('v_mov_b32 v6, s23'); e.I('v_mov_b32 v7, 0')
    e.I(f'v_mov_b32 v3, {LDS_ROLE}')
    e.I('ds_write_b128 v3, v[4:7]')
    e.I('s_waitcnt lgkmcnt(0)')
    e.I('s_mov_b64 exec, -1')
    e.L('L_role')
    e.I('s_barrier')
    e.I(f'v_mov_b32 v3, {LDS_ROLE}')
    e.I('ds_read_b128 v[4:7], v3')
    e.I('s_waitcnt lgkmcnt(0)')
    e.I('v_readfirstlane_b32 s20, v4')
    e.I('v_readfirstlane_b32 s21, v5')
    e.I('v_readfirstlane_b32 s23, v6')
    e.I('s_nop 3')
    e.I('s_and_b32 s20, s20, 7')
    e.I('s_cmp_ge_u32 s23, 2')
    e.I('s_cbranch_scc1 L_end')
    TS(e, 1)
    TSflush(e, '70')
    if opt.nobg: e.I('s_cmp_ge_u32 s21, 22'); e.I('s_cbranch_scc1 L_end')
    e.I('s_cmp_ge_u32 s21, 29'); e.I(f's_cbranch_scc1 {"L_end" if opt.nofc else "L_ffn"}')
    e.I('s_sub_u32 s24, s21, 22'); e.I('s_cmp_lt_u32 s24, 5'); e.I('s_cbranch_scc1 L_xw')
    e.I('s_cmp_lg_u32 s23, 0'); e.I('s_cbranch_scc1 L_slow')
    for slow in (False, True):
        sfx = 's' if slow else 'f'
        if slow: e.L('L_slow')
        e.I('s_cmp_ge_u32 s21, 22'); e.I(f's_cbranch_scc1 L_att{sfx}')
        e.I('s_cmp_ge_u32 s21, 12'); e.I(f's_cbranch_scc1 L_wo{sfx}')
        role_qkv(e, slow)
        e.L(f'L_wo{sfx}'); role_sw(e, slow)
        e.L(f'L_att{sfx}'); role_att(e, slow)
    e.L('L_xw'); role_xw(e)
    e.L('L_ffn'); role_ffn(e)
    e.L('L_cmb'); role_cmb(e)
    e.L('L_fail')
    e.I('s_mov_b64 exec, 1')
    e.I('s_lshl_b32 s31, s31, 2')
    e.I('v_mov_b32 v3, s31')
    e.I('v_mov_b32 v4, 1')
    e.I('global_atomic_add v3, v4, s[74:75]')
    e.L('L_end')
    e.I('s_endpgm')

def build(path):
    hdr = open('cdna_kernels/' + NAME + '.s.ref').read().split('\n')
    e = Em()
    for l in hdr:
        if l.startswith(';') and '@launch' not in l and 'Override launch' not in l and 'grid=ceil' not in l: e.raw(l)
    e.raw(f'; @launch kernel={PRE} grid=({PRE_GRID},1,1) block=(256,1,1) lds={PRE_LDS}')
    e.raw(f'; @launch kernel={MAIN} grid=(256,1,1) block=(256,1,1) lds={LDS_TOTAL}')
    e.raw('.amdgcn_target "amdgcn-amd-amdhsa--gfx950"')
    gen_pre(e, PRE)
    gen_mainkernel(e)
    kernel_desc(e, PRE, 80, 48, 80)
    kernel_desc(e, MAIN, 512, 96, 256)
    lines, added = hazard.pad(e.lines)
    open(path, 'w').write('\n'.join(lines) + '\n')
    n = sum(1 for l in lines if l.startswith('    ') and not l.strip().startswith(';'))
    print(f'wrote {path}: {n} instructions, {added} nops added')

if __name__ == '__main__':
    out = sys.argv[1] if len(sys.argv) > 1 else 'cdna_kernels/' + NAME + '.s'
    if 'slow' in sys.argv[2:]: opt.force_slow = True
    if 'ts' in sys.argv[2:]: opt.ts = True
    for k in ('nobg', 'ackpoll', 'noxw'):
        if k in sys.argv[2:]: setattr(opt, k, True)
    for a_ in sys.argv[2:]:
        if '=' in a_: k_, v_ = a_.split('='); setattr(opt, k_, int(v_))
    build(out)
```

```python
from asmlib import *
from layout import *
N_LN, N_TR, N_Z, N_S, N_M = 128, 240, 8, N_SENT_WG, 8
PRE_GRID = N_LN + N_TR + N_Z + N_S + N_M
PRE_LDS = 16384
def bf16_round(e, dst, src, tmp=None):
    e.I(f'v_cvt_pk_bf16_f32 {dst}, {src}, {src}')
    e.I(f'v_and_b32 {dst}, 0xffff0000, {dst}')
def xlane_sum(e, x, t):
    e.I(f'v_add_f32_dpp v{x}, v{x}, v{x} row_ror:8 row_mask:0xf bank_mask:0xf')
    e.I(f'v_add_f32_dpp v{x}, v{x}, v{x} row_ror:4 row_mask:0xf bank_mask:0xf')
    e.I(f'v_mov_b32 v{t}, v{x}')
    e.I(f'v_permlane16_swap_b32 v{x}, v{t}')
    e.I(f'v_add_f32 v{x}, v{x}, v{t}')
    e.I(f'v_mov_b32 v{t}, v{x}')
    e.I(f'v_permlane32_swap_b32 v{x}, v{t}')
    e.I(f'v_add_f32 v{x}, v{x}, v{t}')
def gen_pre(e, name):
    kernel_head(e, name)
    e.I(f's_cmp_ge_u32 s2, {PRE_GRID}')
    e.I('s_cbranch_scc1 P_end')
    e.I('s_load_dwordx4 s[24:27], s[0:1], 0')
    e.I('s_load_dwordx4 s[28:31], s[0:1], 64')
    e.I('s_load_dwordx2 s[32:33], s[0:1], 96')
    e.I('v_and_b32 v1, 63, v0')
    e.I('v_lshrrev_b32 v2, 6, v0')
    e.I('v_readfirstlane_b32 s22, v2')
    e.I('s_waitcnt lgkmcnt(0)')
    srd(e, 4, 32, WS_BYTES)
    srd(e, 8, 24, 2048 * 1280)
    srd(e, 12, 26, 8 * 1280)
    srd(e, 16, 28, 640 * 3072)
    srd(e, 36, 30, 1536 * 1280)
    e.I(f's_cmp_ge_u32 s2, {N_LN}')
    e.I('s_cbranch_scc1 P_notln')
    e.I('v_and_b32 v3, 3, v1')
    e.I('v_lshrrev_b32 v4, 2, v1')
    e.I('s_lshl_b32 s40, s22, 2')
    e.I('v_add_u32 v3, s40, v3')
    e.I('s_mul_i32 s41, s2, 20480')
    e.I('v_mul_u32_u24 v5, 1280, v3')
    e.I('v_lshl_add_u32 v5, v4, 4, v5')
    for m in range(5):
        e.I(f'buffer_load_dwordx4 v[{8+4*m}:{11+4*m}], v5, s[8:11], s41 offen offset:{256*m}')
    e.I('v_lshrrev_b32 v6, 2, v4')
    e.I('v_lshlrev_b32 v6, 10, v6')
    e.I('v_and_b32 v7, 3, v4')
    e.I('v_lshl_add_u32 v6, v7, 8, v6')
    e.I('v_lshl_add_u32 v6, v3, 4, v6')
    e.I(f's_add_u32 s42, s41, {XN}')
    e.I('s_waitcnt vmcnt(0)')
    F = 32
    for d in range(20):
        e.I(f'v_lshlrev_b32 v{F+2*d}, 16, v{8+d}')
        e.I(f'v_and_b32 v{F+2*d+1}, 0xffff0000, v{8+d}')
    e.I(f'v_add_f32 v72, v{F}, v{F+1}')
    e.I(f'v_add_f32 v73, v{F+2}, v{F+3}')
    for d in range(4, 40, 2):
        e.I(f'v_add_f32 v72, v72, v{F+d}')
        e.I(f'v_add_f32 v73, v73, v{F+d+1}')
    e.I('v_add_f32 v72, v72, v73')
    xlane_sum(e, 72, 73)
    e.I(f'v_mul_f32 v72, {1.0/640!r}, v72'.replace(repr(1.0/640), '0x3acccccd'))
    e.I('v_mov_b32 v74, 0')
    e.I('v_mov_b32 v75, 0')
    for d in range(0, 40, 2):
        e.I(f'v_sub_f32 v76, v{F+d}, v72')
        e.I(f'v_sub_f32 v77, v{F+d+1}, v72')
        e.I('v_fmac_f32 v74, v76, v76')
        e.I('v_fmac_f32 v75, v77, v77')
    e.I('v_add_f32 v74, v74, v75')
    xlane_sum(e, 74, 73)
    e.I('v_mul_f32 v74, 0x3acccccd, v74')
    bf16_round(e, 'v74', 'v74')
    e.I('v_add_f32 v74, 0x3727c5ac, v74')
    bf16_round(e, 'v74', 'v74')
    e.I('v_sqrt_f32 v74, v74')
    bf16_round(e, 'v74', 'v74')
    e.I('v_rcp_f32 v74, v74')
    bf16_round(e, 'v72', 'v72')
    for d in range(20):
        a_, b_ = F + 2 * d, F + 2 * d + 1
        e.I(f'v_sub_f32 v{a_}, v{a_}, v72')
        e.I(f'v_sub_f32 v{b_}, v{b_}, v72')
        e.I(f'v_cvt_pk_bf16_f32 v{8+d}, v{a_}, v{b_}')
        e.I(f'v_lshlrev_b32 v{a_}, 16, v{8+d}')
        e.I(f'v_and_b32 v{b_}, 0xffff0000, v{8+d}')
        e.I(f'v_mul_f32 v{a_}, v{a_}, v74')
        e.I(f'v_mul_f32 v{b_}, v{b_}, v74')
        e.I(f'v_cvt_pk_bf16_f32 v{8+d}, v{a_}, v{b_}')
    for m in range(5):
        e.I(f's_add_u32 s43, s42, {4096*m}')
        e.I(f'buffer_store_dwordx4 v[{8+4*m}:{11+4*m}], v6, s[4:7], s43 offen')
    e.I('s_endpgm')
    e.L('P_notln')
    e.I(f's_cmp_ge_u32 s2, {N_LN+N_TR}')
    e.I('s_cbranch_scc1 P_nottr')
    e.I(f's_sub_u32 s40, s2, {N_LN}')
    e.I('v_lshrrev_b32 v3, 3, v1')
    e.I('v_and_b32 v4, 7, v1')
    e.I('v_lshrrev_b32 v8, 4, v1')
    e.I('v_bfe_u32 v9, v1, 2, 2')
    e.I('v_and_b32 v10, 3, v1')
    e.I('v_lshlrev_b32 v2, 4, v1')
    e.I('s_lshl_b32 s44, s22, 12')
    e.I('s_cmp_ge_u32 s40, 120')
    e.I('s_cbranch_scc1 P_w2')
    for which in (1, 2):
        if which == 2:
            e.L('P_w2')
            e.I('s_sub_u32 s40, s40, 120')
        RS = 3072 if which == 1 else 1280
        S = 16 if which == 1 else 36
        div = 5 if which == 1 else 12
        mul, sh = (205, 10) if which == 1 else (171, 11)
        e.I(f's_mul_i32 s41, s40, {mul}')
        e.I(f's_lshr_b32 s41, s41, {sh}')
        e.I(f's_mul_i32 s42, s41, {div}')
        e.I('s_sub_u32 s42, s40, s42')
        e.I(f'v_mul_u32_u24 v5, {RS}, v3')
        e.I('v_lshl_add_u32 v5, v4, 4, v5')
        e.I('s_lshl_b32 s43, s42, 2')
        e.I('s_add_u32 s43, s43, s22')
        e.I(f's_mul_i32 s45, s43, {32*RS}')
        e.I('s_lshl_b32 s46, s41, 7')
        e.I('s_add_u32 s45, s45, s46')
        for n in range(4):
            e.I(f's_add_u32 m0, s44, {n*1024}')
            e.I(f's_add_u32 s46, s45, {n*8*RS}')
            e.I(f'buffer_load_dwordx4 v5, s[{S}:{S+3}], s46 offen lds')
        if which == 1:
            e.I('v_lshl_add_u32 v11, v8, 3, v9')
            second = 512
        else:
            e.I('v_lshl_add_u32 v11, v8, 2, v9')
            second = 2048
        e.I('v_lshlrev_b32 v11, 7, v11')
        e.I('v_lshl_add_u32 v11, v10, 3, v11')
        e.I('s_lshl_b32 s46, s22, 5')
        e.I('v_add_u32 v11, s46, v11')
        e.I('s_waitcnt vmcnt(0)')
        e.I('s_barrier')
        for b in range(4):
            e.I(f'ds_read_b64_tr_b16 v[{16+4*b}:{17+4*b}], v11 offset:{b*4096}')
            e.I(f'ds_read_b64_tr_b16 v[{18+4*b}:{19+4*b}], v11 offset:{b*4096+second}')
        NK = 20 if which == 1 else 48
        e.I('s_lshl_b32 s46, s41, 2')
        e.I('s_add_u32 s46, s46, s22')
        e.I(f's_mul_i32 s46, s46, {NK}')
        e.I('s_lshl_b32 s47, s42, 2')
        e.I('s_add_u32 s46, s46, s47')
        e.I('s_lshl_b32 s46, s46, 10')
        e.I(f's_add_u32 s46, s46, {W1F if which == 1 else W2F}')
        e.I('s_waitcnt lgkmcnt(0)')
        for b in range(4):
            e.I(f'buffer_store_dwordx4 v[{16+4*b}:{19+4*b}], v2, s[4:7], s46 offen offset:{b*1024}')
        e.I('s_endpgm')
    e.L('P_nottr')
    e.I(f's_cmp_ge_u32 s2, {N_LN+N_TR+N_Z+N_S}')
    e.I('s_cbranch_scc1 P_mem0')
    e.I(f's_sub_u32 s40, s2, {N_LN+N_TR}')
    e.I('s_lshl_b32 s41, s40, 15')
    e.I('s_mov_b32 s42, 0')
    e.I(f's_cmp_lt_u32 s40, {N_Z}')
    e.I('s_cbranch_scc1 P_fill')
    e.I(f's_add_u32 s41, s41, {SENT0 - N_Z*32768}')
    e.I('s_mov_b32 s42, -1')
    e.L('P_fill')
    for k in range(4): e.I(f'v_mov_b32 v{8+k}, s42')
    e.I('v_lshlrev_b32 v2, 4, v0')
    for k in range(8):
        e.I(f's_add_u32 s43, s41, {k*4096}')
        e.I('buffer_store_dwordx4 v[8:11], v2, s[4:7], s43 offen')
    e.I('s_endpgm')
    e.L('P_mem0')
    e.I(f's_sub_u32 s40, s2, {N_LN+N_TR+N_Z+N_S}')
    e.I('s_mul_i32 s41, s40, 10240')
    e.I(f's_add_u32 s41, s41, {MEM}')
    e.I('v_bfe_u32 v3, v0, 2, 3')
    e.I('v_mul_u32_u24 v4, 1280, v3')
    e.I('v_lshrrev_b32 v3, 6, v0')
    e.I('v_lshl_add_u32 v4, v3, 5, v4')
    e.I('v_and_b32 v3, 3, v0')
    e.I('v_lshl_add_u32 v4, v3, 3, v4')
    e.I('v_bfe_u32 v3, v0, 5, 1')
    e.I('v_lshl_add_u32 v4, v3, 2, v4')
    e.I('v_lshlrev_b32 v5, 2, v0')
    for m in range(10): e.I(f'buffer_load_dword v{12+m}, v4, s[12:15], 0 offen offset:{128*m}')
    e.I('s_waitcnt vmcnt(0)')
    for m in range(10):
        e.I(f'v_min_u32 v{12+m}, -2, v{12+m}')
        e.I(f's_add_u32 s42, s41, {(m//4)*4096}')
        e.I(f'buffer_store_dword v{12+m}, v5, s[4:7], s42 offen offset:{(m%4)*1024}')
    e.L('P_m2')
    e.L('P_end')
    e.I('s_endpgm')


NT = ['', '', '']
def ln_addr(e):
    e.I('v_and_b32 v3, 3, v1')
    e.I('v_lshrrev_b32 v4, 2, v1')
    e.I('s_lshl_b32 s40, s22, 2')
    e.I('v_add_u32 v3, s40, v3')
    e.I('v_mul_u32_u24 v5, 1280, v3')
    e.I('v_lshl_add_u32 v5, v4, 4, v5')
    e.I('v_lshrrev_b32 v6, 2, v4')
    e.I('v_lshlrev_b32 v6, 10, v6')
    e.I('v_and_b32 v7, 3, v4')
    e.I('v_lshl_add_u32 v6, v7, 8, v6')
    e.I('v_lshl_add_u32 v6, v3, 4, v6')
def ln_load(e, D, so):
    for m in range(5):
        e.I(f'buffer_load_dwordx4 v[{D+4*m}:{D+3+4*m}], v5, s[8:11], {so} offen offset:{256*m}{NT[0]}')
def ln_compute(e, D, so):
    F = 64
    A = 104
    for d in range(20):
        e.I(f'v_lshlrev_b32 v{F+2*d}, 16, v{D+d}')
        e.I(f'v_and_b32 v{F+2*d+1}, 0xffff0000, v{D+d}')
    e.I(f'v_add_f32 v{A}, v{F}, v{F+1}')
    e.I(f'v_add_f32 v{A+1}, v{F+2}, v{F+3}')
    for d in range(4, 40, 2):
        e.I(f'v_add_f32 v{A}, v{A}, v{F+d}')
        e.I(f'v_add_f32 v{A+1}, v{A+1}, v{F+d+1}')
    e.I(f'v_add_f32 v{A}, v{A}, v{A+1}')
    xlane_sum(e, A, A + 1)
    e.I(f'v_mul_f32 v{A}, 0x3acccccd, v{A}')
    e.I(f'v_mov_b32 v{A+2}, 0')
    e.I(f'v_mov_b32 v{A+3}, 0')
    for d in range(0, 40, 2):
        e.I(f'v_sub_f32 v{A+4}, v{F+d}, v{A}')
        e.I(f'v_sub_f32 v{A+5}, v{F+d+1}, v{A}')
        e.I(f'v_fmac_f32 v{A+2}, v{A+4}, v{A+4}')
        e.I(f'v_fmac_f32 v{A+3}, v{A+5}, v{A+5}')
    e.I(f'v_add_f32 v{A+2}, v{A+2}, v{A+3}')
    xlane_sum(e, A + 2, A + 1)
    V_ = f'v{A+2}'
    e.I(f'v_mul_f32 {V_}, 0x3acccccd, {V_}')
    bf16_round(e, V_, V_)
    e.I(f'v_add_f32 {V_}, 0x3727c5ac, {V_}')
    bf16_round(e, V_, V_)
    e.I(f'v_sqrt_f32 {V_}, {V_}')
    bf16_round(e, V_, V_)
    e.I(f'v_rcp_f32 {V_}, {V_}')
    bf16_round(e, f'v{A}', f'v{A}')
    for d in range(20):
        a_, b_ = F + 2 * d, F + 2 * d + 1
        e.I(f'v_sub_f32 v{a_}, v{a_}, v{A}')
        e.I(f'v_sub_f32 v{b_}, v{b_}, v{A}')
        e.I(f'v_cvt_pk_bf16_f32 v{D+d}, v{a_}, v{b_}')
        e.I(f'v_lshlrev_b32 v{a_}, 16, v{D+d}')
        e.I(f'v_and_b32 v{b_}, 0xffff0000, v{D+d}')
        e.I(f'v_mul_f32 v{a_}, v{a_}, {V_}')
        e.I(f'v_mul_f32 v{b_}, v{b_}, {V_}')
        e.I(f'v_cvt_pk_bf16_f32 v{D+d}, v{a_}, v{b_}')
    for m in range(5):
        e.I(f's_add_u32 s43, {so}, {XN + 4096*m}')
        e.I(f'buffer_store_dwordx4 v[{D+4*m}:{D+3+4*m}], v6, s[4:7], s43 offen sc1{NT[1]}')
INIT_REGIONS = [(0, 64, 0), (MEM + MEM_SLOT, 2 * MEM_SLOT // 4096, -1), (XR, 2 * XR_SLOT // 4096, -1), (VR, 2 * VR_SLOT // 4096, -1), (PART, 2 * PART_SLOT // 4096, -1)]
def init_fill(e, sidx, nwg):
    total = sum(n for _, n, _ in INIT_REGIONS)
    for k in range(4): e.I(f'v_mov_b32 v{56+k}, 0'); e.I(f'v_mov_b32 v{60+k}, -1')
    e.I('v_lshlrev_b32 v8, 4, v0')
    nz = INIT_REGIONS[0][1]
    assert nz <= nwg
    j = 0
    while j * nwg < total:
        sk = e.lab('Lif')
        e.I(f's_add_u32 s44, {sidx}, {j*nwg}')
        if (j + 1) * nwg > total:
            e.I(f's_cmp_ge_u32 s44, {total}'); e.I(f's_cbranch_scc1 {sk}')
        start = 0
        e.I('s_mov_b32 s45, 0')
        for base, n, val in INIT_REGIONS:
            if start > j * nwg or (start <= j * nwg < start + n):
                if start < (j + 1) * nwg:
                    e.I(f's_cmp_ge_u32 s44, {start}')
                    e.I(f's_cselect_b32 s45, {(base - start * 4096) & 0xffffffff:#x}, s45')
            start += n
        e.I('s_lshl_b32 s46, s44, 12')
        e.I('s_add_u32 s45, s45, s46')
        if j == 0:
            z = e.lab('Liz')
            e.I(f's_cmp_ge_u32 s44, {nz}'); e.I(f's_cbranch_scc1 {z}')
            e.I(f'buffer_store_dwordx4 v[56:59], v8, s[4:7], s45 offen sc1{NT[2]}')
            e.I(f's_branch {sk}')
            e.L(z)
        e.I(f'buffer_store_dwordx4 v[60:63], v8, s[4:7], s45 offen sc1{NT[2]}')
        e.L(sk)
        j += 1
def mem0_copy(e, so):
    e.I('v_bfe_u32 v3, v0, 2, 3')
    e.I('v_mul_u32_u24 v4, 1280, v3')
    e.I('v_lshrrev_b32 v3, 6, v0')
    e.I('v_lshl_add_u32 v4, v3, 5, v4')
    e.I('v_and_b32 v3, 3, v0')
    e.I('v_lshl_add_u32 v4, v3, 3, v4')
    e.I('v_bfe_u32 v3, v0, 5, 1')
    e.I('v_lshl_add_u32 v4, v3, 2, v4')
    e.I('v_lshlrev_b32 v7, 2, v0')
    for m in range(10): e.I(f'buffer_load_dword v{112+m}, v4, s[12:15], 0 offen offset:{128*m}')
    e.I('s_waitcnt vmcnt(0)')
    for m in range(10):
        e.I(f'v_min_u32 v{112+m}, -2, v{112+m}')
        e.I(f's_add_u32 s42, {so}, {(m//4)*4096}')
        e.I(f'buffer_store_dword v{112+m}, v7, s[4:7], s42 offen offset:{(m%4)*1024} sc1')
def transpose_w(e, sk):
    e.I('v_lshrrev_b32 v3, 3, v1')
    e.I('v_and_b32 v4, 7, v1')
    e.I('v_lshrrev_b32 v8, 4, v1')
    e.I('v_bfe_u32 v9, v1, 2, 2')
    e.I('v_and_b32 v10, 3, v1')
    e.I('s_lshl_b32 s44, s22, 12')
    for which in (1, 2):
        RS = 3072 if which == 1 else 1280
        S = 8 if which == 1 else 12
        div = 5 if which == 1 else 12
        mul, sh = (205, 10) if which == 1 else (171, 11)
        NK = 20 if which == 1 else 48
        e.I(f'v_mul_u32_u24 v5, {RS}, v3')
        e.I('v_lshl_add_u32 v5, v4, 4, v5')
        e.I(f'v_lshl_add_u32 v11, v8, {3 if which == 1 else 2}, v9')
        second = 512 if which == 1 else 2048
        e.I('v_lshlrev_b32 v11, 7, v11')
        e.I('v_lshl_add_u32 v11, v10, 3, v11')
        e.I('s_lshl_b32 s46, s22, 5')
        e.I('v_add_u32 v11, s46, v11')
        e.I('v_add_u32 v12, 0x8000, v11')
        e.I('v_add_u32 v13, 0x10000, v11')
        for b in range(5):
            e.I(f's_mul_i32 s40, {sk}, 5')
            e.I(f's_add_u32 s40, s40, {b}')
            e.I(f's_mul_i32 s41, s40, {mul}')
            e.I(f's_lshr_b32 s41, s41, {sh}')
            e.I(f's_mul_i32 s42, s41, {div}')
            e.I('s_sub_u32 s42, s40, s42')
            e.I('s_lshl_b32 s43, s42, 2')
            e.I('s_add_u32 s43, s43, s22')
            e.I(f's_mul_i32 s45, s43, {32*RS}')
            e.I('s_lshl_b32 s46, s41, 7')
            e.I('s_add_u32 s45, s45, s46')
            for n in range(4):
                e.I(f's_add_u32 m0, s44, {b*16384 + n*1024}')
                e.I(f's_add_u32 s46, s45, {n*8*RS}')
                e.I(f'buffer_load_dwordx4 v5, s[{S}:{S+3}], s46 offen{NT[0]} lds')
            e.I('s_lshl_b32 s46, s41, 2')
            e.I('s_add_u32 s46, s46, s22')
            e.I(f's_mul_i32 s46, s46, {NK}')
            e.I('s_lshl_b32 s47, s42, 2')
            e.I('s_add_u32 s46, s46, s47')
            e.I('s_lshl_b32 s46, s46, 10')
            e.I(f's_add_u32 s{50+b}, s46, {W1F if which == 1 else W2F}')
        e.I('s_waitcnt vmcnt(0)')
        e.I('s_barrier')
        for b in range(5):
            va, off = (11, 12, 13)[b // 2], (b % 2) * 16384
            for q in range(4):
                r = 16 + (b * 4 + q) * 4
                e.I(f'ds_read_b64_tr_b16 v[{r}:{r+1}], v{va} offset:{off + q*4096}')
                e.I(f'ds_read_b64_tr_b16 v[{r+2}:{r+3}], v{va} offset:{off + q*4096 + second}')
        e.I('s_waitcnt lgkmcnt(0)')
        e.I('s_barrier')
        for b in range(5):
            for q in range(4):
                r = 16 + (b * 4 + q) * 4
                e.I(f'buffer_store_dwordx4 v[{r}:{r+3}], v2, s[4:7], s{50+b} offen offset:{q*1024} sc1{NT[1]}')
```

```python
import sys, struct
from asmlib import *
from layout import *
import hazard
from gen_pre import *

NAME = 'recurrent_scan__memory_aug_recurrent_mem_tr__dense_activation_relu__prompt'
MAIN = NAME + '_kernel'
PRE = 'prep_kernel'
LDS_TOTAL = 131072
LDS_ROLE = 131072
TMO = 1 << 18
def f2u(x): return struct.unpack('<I', struct.pack('<f', x))[0]
SC_L2E = f2u(192 ** -0.5 * 1.4426950408889634)
NEG_BIG = f2u(-1e30)
MFMA = 'v_mfma_f32_16x16x32_bf16'
MFMA16 = 'v_mfma_f32_16x16x16_bf16'
SMF = 'v_smfmac_f32_16x16x64_bf16'
WS = 's[4:7]'
WFL = ['', ' nt', ' sc1', ' sc0 sc1', ' sc1 nt', ' sc0 sc1 nt']

class Opt:
    force_slow = False
    ts = False
    nobg = False
    ackpoll = False
    noxw = False
    pdelay = 8
    vdelay = 0
    kbar = 0
    kpre = 12
    kin = 12
    fresh = 0
    pdiag = 0
    pflip = 0
    touch = 1
    nofc = 0
    nopx = 0
    nocmb = 0
    cdepth = 1
    ffnnt = 0
    pr = 1
    pfar = 0
    vpre = 2
    vmpos = 1
    smpre = 1
    smgap = 2
    ldgap = 4
    kp = 0
    kcs = 0
    kce = 12
    xlate = 0
    csleep = 8
    cwarm = 61
    c2sleep = 2
    clag = 2
    lsleep = 8
    xsleep = 2
    asleep = 2
    cdiag = 0
    wnb = 3
    wrows = 320
    touch2 = 1
    pnt = 1
    wnt = 1
    wthr = 64
    xpf = 10
    xdma0 = 10
    xdmas = 1
    pbf = 1
    rpos = 2
    mbar = 1
    pspin = 0
    nobulk = 0
opt = Opt()

def vr(i, n=4): return f'v[{i}:{i+n-1}]'
def ar(i, n=4): return f'a[{i}:{i+n-1}]'

def maxchain(e, dst, regs, op='u32'):
    regs = list(regs)
    e.I(f'v_max3_{op} v{dst}, v{regs[0]}, v{regs[1]}, v{regs[2]}')
    rest = regs[3:]
    while rest:
        if len(rest) >= 2:
            e.I(f'v_max3_{op} v{dst}, v{dst}, v{rest[0]}, v{rest[1]}'); rest = rest[2:]
        else:
            e.I(f'v_max_{op} v{dst}, v{dst}, v{rest[0]}'); rest = rest[1:]

def check_sent(e, regs, t0, t1):
    regs = list(regs)
    if len(regs) >= 8:
        h = len(regs) // 2
        A, B = regs[:h], regs[h:]
        ea, eb = Em(), Em()
        maxchain(ea, t0, A); maxchain(eb, t1, B)
        for i in range(max(len(ea.lines), len(eb.lines))):
            if i < len(ea.lines): e.lines.append(ea.lines[i])
            if i < len(eb.lines): e.lines.append(eb.lines[i])
        e.I(f'v_max_u32 v{t0}, v{t0}, v{t1}')
    else:
        maxchain(e, t0, regs)
    e.I(f'v_cmp_eq_u32 vcc, -1, v{t0}')

def poll2(e, issue, nl, regsA, regsB, consume, t0, t1, code):
    lp, dA, dB, dd = e.lab('Lp'), e.lab('LdA'), e.lab('LdB'), e.lab('Ldd')
    e.I(f's_mov_b32 s31, {TMO}')
    issue(regsA)
    e.L(lp)
    issue(regsB)
    e.I(f's_waitcnt vmcnt({nl})')
    check_sent(e, range(regsA, regsA + 4 * nl), t0, t1)
    e.I(f's_cbranch_vccz {dA}')
    issue(regsA)
    e.I(f's_waitcnt vmcnt({nl})')
    check_sent(e, range(regsB, regsB + 4 * nl), t0, t1)
    e.I(f's_cbranch_vccz {dB}')
    e.I('s_sub_u32 s31, s31, 1')
    e.I(f's_cbranch_scc0 {lp}')
    e.I(f's_mov_b32 s31, {code}')
    e.I('s_branch L_fail')
    e.L(dB)
    consume(regsB)
    e.I(f's_branch {dd}')
    e.L(dA)
    consume(regsA)
    e.L(dd)

def wait_flags(e, vaddr, sofs, mask, vt, code, sleep=0, dbg=False):
    lp, dn = e.lab('Lf'), e.lab('Lfd')
    e.I(f's_mov_b32 s31, {TMO}')
    if mask > 0xffffffff or mask < 0: e.I(f's_mov_b64 exec, {mask}')
    else:
        e.I(f's_mov_b32 exec_lo, {mask:#x}'); e.I('s_mov_b32 exec_hi, 0')
    e.L(lp)
    if dbg: e.I(f'global_load_dword v{vt}, v{vaddr}, s[74:75] offset:{sofs} sc1')
    else: e.I(f'buffer_load_dword v{vt}, v{vaddr}, {WS}, {sofs} offen sc1')
    e.I('s_waitcnt vmcnt(0)')
    e.I(f'v_cmp_eq_u32 vcc, 0, v{vt}')
    e.I(f's_cbranch_vccz {dn}')
    if sleep: e.I(f's_sleep {sleep}')
    e.I('s_sub_u32 s31, s31, 1')
    e.I(f's_cbranch_scc0 {lp}')
    e.I(f's_mov_b32 s31, {code}')
    e.I('s_branch L_fail')
    e.L(dn)
    e.I('s_mov_b64 exec, -1')

D_TR, D_PAR, D_REG = 64, 96, 128
def register(e, va, vd):
    sk = e.lab('Lrg')
    e.I('s_cmp_lg_u32 s22, 0')
    e.I(f's_cbranch_scc1 {sk}')
    e.I(f'v_mov_b32 v{va}, s96')
    e.I(f'v_mov_b32 v{vd}, s97')
    e.I('s_mov_b64 exec, 1')
    e.I(f'global_atomic_add v{va}, v{vd}, s[74:75] offset:{D_REG} sc1')
    e.I('s_mov_b64 exec, -1')
    e.L(sk)
D_W = 68
def wait_count(e, t, off, n, sleep):
    lp, dn = e.lab('Lwc'), e.lab('Lwe')
    e.I(f's_mov_b32 s31, {TMO}')
    e.I(f'v_mov_b32 v{t+1}, 0')
    e.L(lp)
    e.I(f'global_load_dword v{t}, v{t+1}, s[74:75] offset:{off} sc1')
    e.I('s_waitcnt vmcnt(0)')
    e.I(f'v_cmp_gt_u32 vcc, {n}, v{t}')
    e.I(f's_cbranch_vccz {dn}')
    e.I(f's_sleep {sleep}')
    e.I('s_sub_u32 s31, s31, 1')
    e.I(f's_cbranch_scc0 {lp}')
    e.I('s_mov_b32 s31, 10')
    e.I('s_branch L_fail')
    e.L(dn)
def count_up(e, t, off):
    sk = e.lab('Lcu')
    e.I('s_cmp_lg_u32 s22, 0')
    e.I(f's_cbranch_scc1 {sk}')
    e.I(f'v_mov_b32 v{t}, 0'); e.I(f'v_mov_b32 v{t+1}, 1')
    e.I('s_mov_b64 exec, 1')
    e.I(f'global_atomic_add v{t}, v{t+1}, s[74:75] offset:{off} sc1')
    e.I('s_mov_b64 exec, -1')
    e.L(sk)
def wait_reg(e, t):
    lp, dn = e.lab('Lwr'), e.lab('Lwd')
    e.I(f's_mov_b32 s31, {TMO}')
    e.I(f'v_lshlrev_b32 v{t+2}, 2, v1')
    e.I('s_mov_b32 exec_hi, 0')
    e.L(lp)
    e.I(f'global_load_dword v{t}, v{t+2}, s[74:75] offset:{D_REG} sc1')
    e.I('s_mov_b32 s23, 0')
    e.I('s_mov_b32 s38, 0')
    e.I('s_waitcnt vmcnt(0)')
    for k in range(4):
        e.I(f'v_cmp_eq_u32 vcc, {0x20 << (8*k):#x}, v{t}')
        e.I('s_or_b32 s38, s38, vcc_lo')
    e.I(f'v_sad_u8 v{t+1}, v{t}, 0, 0')
    e.I('s_bcnt1_i32_b32 s38, s38')
    e.I('s_cmp_eq_u32 s38, 8')
    e.I(f's_cbranch_scc1 {dn}')
    for sh in (1, 2, 4, 8): e.I(f'v_add_u32_dpp v{t+1}, v{t+1}, v{t+1} row_shr:{sh} row_mask:0xf bank_mask:0xf bound_ctrl:0')
    e.I(f'v_readlane_b32 s38, v{t+1}, 15')
    e.I(f'v_readlane_b32 s39, v{t+1}, 31')
    e.I('s_mov_b32 s23, 1')
    e.I('s_add_u32 s38, s38, s39')
    e.I('s_cmp_eq_u32 s38, 256')
    e.I(f's_cbranch_scc1 {dn}')
    e.I('s_sleep 4')
    e.I('s_sub_u32 s31, s31, 1')
    e.I(f's_cbranch_scc0 {lp}')
    e.I('s_mov_b32 s31, 10')
    e.I('s_branch L_fail')
    e.L(dn)
    e.I('s_mov_b64 exec, -1')

def set_flag(e, vaddr, sofs, vone, fl):
    e.I('s_mov_b64 exec, 1')
    e.I(f'buffer_store_dword v{vone}, v{vaddr}, {WS}, {sofs} offen{fl}')
    e.I('s_mov_b64 exec, -1')

def xg_reduce(e, op, x, t):
    e.I(f'v_mov_b32 v{t}, v{x}')
    e.I(f'v_permlane16_swap_b32 v{x}, v{t}')
    e.I(f'{op} v{x}, v{x}, v{t}')
    e.I(f'v_mov_b32 v{t}, v{x}')
    e.I(f'v_permlane32_swap_b32 v{x}, v{t}')
    e.I(f'{op} v{x}, v{x}, v{t}')

def softmax12(e, S, P, t):
    maxchain(e, t, range(S, S + 12), 'f32')
    xg_reduce(e, 'v_max_f32', t, t + 1)
    e.I(f'v_mul_f32 v{t}, s53, v{t}')
    for i in range(12):
        e.I(f'v_fma_f32 v{S+i}, v{S+i}, s52, v{t}')
    for i in range(12):
        e.I(f'v_exp_f32 v{S+i}, v{S+i}')
    e.I(f'v_add_f32 v{t+2}, v{S}, v{S+1}')
    e.I(f'v_add_f32 v{t+3}, v{S+2}, v{S+3}')
    for i in range(4, 12, 2):
        e.I(f'v_add_f32 v{t+2}, v{t+2}, v{S+i}')
        e.I(f'v_add_f32 v{t+3}, v{t+3}, v{S+i+1}')
    e.I(f'v_add_f32 v{t+2}, v{t+2}, v{t+3}')
    xg_reduce(e, 'v_add_f32', t + 2, t + 3)
    e.I(f'v_rcp_f32 v{t+2}, v{t+2}')
    for i in range(12):
        e.I(f'v_mul_f32 v{S+i}, v{S+i}, v{t+2}')
    for i in range(6):
        e.I(f'v_cvt_pk_bf16_f32 v{P+i}, v{S+2*i}, v{S+2*i+1}')

def TS(e, k):
    if opt.ts: e.I(f's_memrealtime s[{76+2*k}:{77+2*k}]')
def TSflush(e, step, va=238, vd=239):
    if not opt.ts: return
    e.I('s_waitcnt lgkmcnt(0)')
    for k in range(10): e.I(f'v_writelane_b32 v{vd}, s{76+2*k}, {k}')
    e.I('s_lshl_b32 s76, s20, 5')
    e.I('s_add_u32 s76, s76, s21')
    e.I('s_lshl_b32 s76, s76, 2')
    e.I('s_add_u32 s76, s76, s22')
    e.I('s_mul_i32 s76, s76, 72')
    e.I(f's_add_u32 s76, s76, {step}')
    e.I('s_lshl_b32 s76, s76, 6')
    e.I(f's_add_u32 s76, s76, {DBGT}')
    e.I(f'v_lshlrev_b32 v{va}, 2, v1')
    e.I('s_mov_b64 exec, 0x3ff')
    e.I(f'buffer_store_dword v{vd}, v{va}, {WS}, s76 offen')
    e.I('s_mov_b64 exec, -1')

def lane_ig(e, vi, vg):
    e.I(f'v_and_b32 v{vi}, 15, v1')
    e.I(f'v_lshrrev_b32 v{vg}, 4, v1')

def load_weights(e, mats, RS, rows, paired, vA, vT, NB=3):
    CH = rows * 128
    ninst = rows // 8 // 4
    nk = rows // 32
    e.I(f'v_lshrrev_b32 v{vT}, 3, v1')
    if paired:
        e.I(f'v_bfe_u32 v{vT+1}, v1, 4, 2')
    else:
        e.I(f'v_bfe_u32 v{vT+1}, v1, 4, 1')
        e.I('s_and_b32 s54, s22, 1')
        e.I('s_lshl_b32 s54, s54, 1')
        e.I(f'v_or_b32 v{vT+1}, s54, v{vT+1}')
    e.I(f'v_lshlrev_b32 v{vT+1}, 1, v{vT+1}')
    e.I(f'v_and_b32 v{vT+2}, 7, v1')
    e.I(f'v_xor_b32 v{vT+2}, v{vT+2}, v{vT+1}')
    e.I(f's_mov_b32 s54, {RS}')
    e.I(f'v_mul_lo_u32 v{vA}, s54, v{vT}')
    e.I(f'v_lshl_add_u32 v{vA}, v{vT+2}, 4, v{vA}')
    e.I(f'v_lshrrev_b32 v{vT}, 4, v1')
    e.I(f'v_bfe_u32 v{vT+1}, v1, 2, 2')
    if paired:
        e.I(f'v_lshl_add_u32 v{vT+2}, v{vT}, 2, v{vT+1}')
        e.I(f'v_bfe_u32 v{vT}, v{vT+2}, 1, 2')
        second = 2048
    else:
        e.I(f'v_lshl_add_u32 v{vT+2}, v{vT}, 3, v{vT+1}')
        e.I(f'v_and_b32 v{vT}, 1, v{vT}')
        e.I(f'v_lshlrev_b32 v{vT}, 1, v{vT}')
        e.I(f'v_bfe_u32 v{vT+1}, v1, 3, 1')
        e.I(f'v_or_b32 v{vT}, v{vT}, v{vT+1}')
        second = 512
    e.I(f'v_xor_b32 v{vT}, s22, v{vT}')
    e.I(f'v_lshlrev_b32 v{vT+2}, 7, v{vT+2}')
    e.I(f'v_lshl_add_u32 v{vT+2}, v{vT}, 5, v{vT+2}')
    e.I(f'v_and_b32 v{vT}, 3, v1')
    e.I(f'v_lshl_add_u32 v{vT}, v{vT}, 3, v{vT+2}')
    for k in range(1, NB): e.I(f'v_add_u32 v{vT+k}, {k*CH}, v{vT}')
    chunks = []
    for (srd_, sofs, ab, nrows) in mats:
        for c in range(nrows // rows):
            chunks.append((srd_, sofs, ab + c * nk * 4, c * rows))
    e.I(f's_mul_i32 s55, s22, {8*RS}')
    e.I('s_lshl_b32 s56, s22, 10')
    def issue(ci):
        srd_, sofs, ab, r0 = chunks[ci]
        buf = ci % NB
        e.I(f's_add_u32 s57, {sofs}, s55')
        if r0: e.I(f's_add_u32 s57, s57, {r0*RS}')
        for n in range(ninst):
            e.I(f's_add_u32 m0, s56, {buf*CH + n*4096}')
            e.I(f'buffer_load_dwordx4 v{vA}, {srd_}, s57 offen{WFL[opt.wnt]} lds')
            if n + 1 < ninst: e.I(f's_add_u32 s57, s57, {32*RS}')
    for ci in range(min(NB, len(chunks))): issue(ci)
    for ci in range(len(chunks)):
        left = min(len(chunks) - 1 - ci, NB - 1)
        e.I(f's_waitcnt vmcnt({left*ninst})')
        e.I('s_barrier')
        srd_, sofs, ab, r0 = chunks[ci]
        for k in range(nk):
            e.I(f'ds_read_b64_tr_b16 {ar(ab+4*k,2)}, v{vT+ci%NB} offset:{k*4096}')
            e.I(f'ds_read_b64_tr_b16 {ar(ab+4*k+2,2)}, v{vT+ci%NB} offset:{k*4096+second}')
        e.I('s_waitcnt lgkmcnt(0)')
        e.I('s_barrier')
        if ci + NB < len(chunks): issue(ci + NB)

def touch_jobs(e, jobs, sw, nw, sh, t):
    sizes = sorted({min(n, 64) for _, _, n in jobs} | {n - 64 for _, _, n in jobs if n > 64})
    reg = {}
    for k, n in enumerate(sizes):
        reg[n] = t + 1 + k
        e.I(f'v_min_u32 v{reg[n]}, {n-1}, v1')
        e.I(f'v_lshlrev_b32 v{reg[n]}, 7, v{reg[n]}')
    flat = []
    for base, per, n in jobs:
        flat.append((base, per, min(n, 64)))
        if n > 64: flat.append((base + 8192, per, n - 64))
    for c in range(nw):
        sk = e.lab('Ltj')
        e.I(f's_cmp_lg_u32 {sw}, {c}')
        e.I(f's_cbranch_scc1 {sk}')
        for base, per, n in flat[c::nw]:
            e.I(f's_mul_i32 s38, {sh}, {per}')
            e.I(f's_add_u32 s38, s38, {base}')
            e.I(f'buffer_load_dword v{t}, v{reg[n]}, {WS}, s38 offen sc1')
        e.L(sk)

Q_LX, Q_LMEM = 0, 81920
def role_qkv(e):
    fl = ''
    WQ, WK, WV = 0, 80, 160
    MF = 16
    DQ, DK, DV = 96, 100, 104
    PA, PB = 108, 120
    XD = 132
    T0 = 160
    KEEP = 176; TCH = 180
    XA, VA, IDX, SEL = 182, 183, 184, 185
    SENT = 248; ONE = 252
    e.I('s_mul_i32 s24, s21, 43')
    e.I('s_lshr_b32 s24, s24, 7')
    e.I('s_mul_i32 s25, s24, 3')
    e.I('s_sub_u32 s25, s21, s25')
    e.I('s_lshl_b32 s26, s20, 2')
    e.I('s_add_u32 s26, s26, s24')
    e.I('s_lshl_b32 s27, s25, 2')
    e.I('s_add_u32 s27, s27, s22')
    srd(e, 8, 60, 640 * 12288); srd(e, 12, 62, 640 * 12288); srd(e, 16, 64, 640 * 12288)
    e.I('s_mul_i32 s28, s26, 384')
    e.I('s_lshl_b32 s29, s25, 7')
    e.I('s_add_u32 s28, s28, s29')
    load_weights(e, [('s[12:15]', 's28', WK, 640), ('s[16:19]', 's28', WV, 640), ('s[8:11]', 's28', WQ, 640)], 12288, opt.wrows, False, 3, 4, opt.wnb)
    e.I('s_mul_i32 s38, s22, 2560')
    e.I('v_add_u32 v3, s38, v2')
    e.I('v_and_b32 v4, 31, v1')
    e.I('v_lshlrev_b32 v4, 4, v4')
    e.I('v_add_u32 v4, s38, v4')
    e.I('v_add_u32 v4, 2048, v4')
    e.I(f'v_add_u32 v5, {Q_LMEM}, v3')
    e.I(f'v_add_u32 v6, {Q_LMEM}, v4')
    e.I(f'v_add_u32 v7, {Q_LMEM}, v2')
    lane_ig(e, 14, 15)
    e.I('s_lshr_b32 s38, s27, 1')
    e.I('s_lshl_b32 s38, s38, 10')
    e.I('s_and_b32 s39, s27, 1')
    e.I('s_lshl_b32 s39, s39, 3')
    e.I('s_add_u32 s38, s38, s39')
    e.I('v_add_u32 v8, s38, v2')
    e.I('v_bfe_u32 v11, v1, 2, 2')
    e.I('v_and_b32 v12, 3, v1')
    e.I(f'v_lshlrev_b32 v{XA}, 8, v11')
    e.I(f'v_lshl_add_u32 v{XA}, v15, 6, v{XA}')
    e.I(f'v_lshl_add_u32 v{XA}, v12, 4, v{XA}')
    e.I(f'v_add_u32 v{XA}, s38, v{XA}')
    e.I('v_and_b32 v13, 1, v15')
    e.I('v_lshlrev_b32 v13, 2, v13')
    e.I('v_lshrrev_b32 v9, 1, v15')
    e.I('v_lshl_add_u32 v13, v9, 1, v13')
    e.I('v_and_b32 v9, 1, v12')
    e.I('v_add_u32 v13, v13, v9')
    e.I('v_lshrrev_b32 v12, 1, v12')
    e.I('v_lshrrev_b32 v9, 1, v11')
    e.I('v_lshlrev_b32 v9, 8, v9')
    e.I('v_lshl_add_u32 v9, v12, 7, v9')
    e.I('v_lshl_add_u32 v9, v13, 4, v9')
    e.I(f'v_and_b32 v{VA}, 1, v11')
    e.I(f'v_lshl_add_u32 v9, v{VA}, 3, v9')
    e.I('s_lshl_b32 s38, s25, 10')
    e.I('s_lshr_b32 s39, s22, 1')
    e.I('s_lshl_b32 s39, s39, 9')
    e.I('s_add_u32 s38, s38, s39')
    e.I('s_and_b32 s39, s22, 1')
    e.I('s_lshl_b32 s39, s39, 2')
    e.I('s_add_u32 s38, s38, s39')
    e.I('v_add_u32 v9, s38, v9')
    e.I(f'v_lshlrev_b32 v{VA}, 8, v11')
    e.I(f'v_lshl_add_u32 v{VA}, v13, 4, v{VA}')
    e.I(f'v_lshl_add_u32 v{VA}, v12, 2, v{VA}')
    e.I('s_lshr_b32 s38, s27, 1')
    e.I('s_cmp_ge_u32 s38, 3')
    e.I('s_cselect_b32 s39, 3, 0')
    e.I('s_cselect_b32 s40, 128, 0')
    e.I('s_sub_u32 s38, s38, s39')
    e.I('s_lshl_b32 s38, s38, 10')
    e.I('s_add_u32 s38, s38, s40')
    e.I('s_and_b32 s39, s27, 1')
    e.I('s_lshl_b32 s39, s39, 3')
    e.I('s_add_u32 s38, s38, s39')
    e.I(f'v_add_u32 v{VA}, s38, v{VA}')
    e.I(f'v_mov_b32 v{IDX}, 0x44444444')
    e.I('v_mov_b32 v11, 0xeeeeeeee')
    e.I('v_cmp_lt_u32 vcc, 7, v14')
    e.I(f'v_cndmask_b32 v{IDX}, v{IDX}, v11, vcc')
    e.I(f'v_mov_b32 v{SEL}, 0x05040100')
    e.I('v_mov_b32 v11, 0x03020706')
    e.I('v_and_b32 v12, 1, v1')
    e.I('v_cmp_eq_u32 vcc, 1, v12')
    e.I(f'v_cndmask_b32 v{SEL}, v{SEL}, v11, vcc')
    e.I('s_mov_b32 s34, 0x33333333'); e.I('s_mov_b32 s35, 0x33333333')
    e.I('s_mov_b32 s36, 0xcccccccc'); e.I('s_mov_b32 s37, 0xcccccccc')
    for k in range(12): e.I(f'v_mov_b32 v{DQ+k}, 0')
    e.I('s_lshl_b32 s38, s27, 2')
    e.I(f'v_mov_b32 v{ONE+2}, s38')
    e.I(f'v_mov_b32 v{ONE}, 1')
    for k in range(4): e.I(f'v_mov_b32 v{SENT+k}, -1')
    e.I('s_mul_i32 s58, s26, 6144')
    e.I('s_mul_i32 s59, s20, 10240')
    e.I(f's_add_u32 s59, s59, {MEM}')
    e.I('s_mul_i32 s60, s26, 3072')
    e.I('s_lshl_b32 s61, s20, 6')
    e.I('s_lshl_b32 s38, s24, 2')
    e.I('s_add_u32 s61, s61, s38')
    e.I(f's_add_u32 s61, s61, {FLGOX}')
    e.I('v_mov_b32 v10, 0')

    def late_list():
        return [f'buffer_store_dwordx2 {vr(KEEP,2)}, v{XA}, {WS}, s43 offen{fl}',
                f'buffer_store_dwordx2 {vr(SENT,2)}, v{XA}, {WS}, s42 offen{fl}',
                f'buffer_store_dword v{KEEP+2}, v{VA}, {WS}, s44 offen{fl}',
                f'buffer_store_dword v{SENT}, v9, {WS}, s46 offen{fl}']
    def late_stores():
        for x_ in late_list(): e.I(x_)
    def xwork(late):
        e.I('s_and_b32 s65, s64, 1')
        e.I('s_mul_i32 s66, s65, 40960')
        e.I('v_add_u32 v12, s66, v2')
        e.I('s_xor_b32 s65, s65, 1')
        e.I('s_mul_i32 s65, s65, 40960')
        e.I('s_add_u32 s65, s65, s62')
        e.I('s_add_u32 s66, s64, 1')
        e.I('s_min_u32 s66, s66, 63')
        e.I('s_mul_i32 s66, s66, 40960')
        e.I('s_add_u32 s66, s66, s62')
        e.I(f's_add_u32 s66, s66, {XN}')
        e.I(f's_and_b32 s47, s64, {RD-1}')
        e.I(f's_mul_i32 s47, s47, {SEG_QX}')
        e.I('s_lshl_b32 s48, s58, 1')
        e.I('s_add_u32 s47, s47, s48')
        if late:
            e.I(f's_max_u32 s50, s64, {RD}')
            e.I(f's_sub_u32 s50, s50, {RD}')
            e.I('s_lshl_b32 s50, s50, 9')
            e.I('s_add_u32 s50, s50, s61')
            e.I(f'buffer_load_dword v{TCH}, v10, {WS}, s50 offen sc1')
        PF = opt.xpf
        def rd(n): e.I(f'ds_read_b128 {vr(MF + (n % 20)*4)}, v12 offset:{n*1024}')
        def out(m, rt, part=3):
            d = XD + (m*2+rt)*4; o = T0 + (m*2+rt)*2
            if part & 1:
                e.I(f'v_cvt_pk_bf16_f32 v{o}, v{d}, v{d+1}')
                e.I(f'v_cvt_pk_bf16_f32 v{o+1}, v{d+2}, v{d+3}')
            if part & 2:
                e.I(f's_add_u32 s48, s47, {(QX, KX, VX)[m] + rt*6144}')
                e.I(f'buffer_store_dwordx2 {vr(o,2)}, v8, {WS}, s48 offen{fl}')
        for n in range(PF): rd(n)
        ls = late_list() if late else []
        d0 = opt.xdma0
        for n in range(40):
            rt, kk = n // 20, n % 20
            e.I(f's_waitcnt lgkmcnt({min(40, n + PF) - (n + 1)})')
            f = vr(MF + (n % 20)*4)
            for (m, Wb) in ((2, WV), (1, WK), (0, WQ)):
                d = vr(XD + (m*2+rt)*4)
                e.I(f'{MFMA} {d}, {ar(Wb+4*kk)}, {f}, {0 if kk == 0 else d}')
            if n + PF < 40: rd(n + PF)
            if late and n == 5:
                bp = e.lab('Lbp')
                e.I(f's_cmp_lt_u32 s64, {RD}')
                e.I(f's_cbranch_scc1 {bp}')
                e.I('s_waitcnt vmcnt(0)')
                e.I(f'v_cmp_eq_u32 vcc, 0, v{TCH}')
                e.I(f's_cbranch_vccz {bp}')
                wait_flags(e, 10, 's50', 1, TCH, 13, sleep=1)
                e.L(bp)
            if n >= 6 and ls: e.I(ls.pop(0))
            elif n >= d0 and (n - d0) % opt.xdmas == 0 and (n - d0) // opt.xdmas < 10:
                m = (n - d0) // opt.xdmas
                e.I(f's_add_u32 m0, s65, {m*1024}')
                e.I(f'buffer_load_dwordx4 v2, {WS}, s66 offen lds')
                e.I('s_add_u32 s66, s66, 1024')
            if n in (23, 24, 25): out(2 - (n - 23), 0)
        for m in (2, 1, 0): out(m, 1)
    def flag_addr(back):
        e.I(f's_sub_u32 s51, s64, {back}')
        e.I('s_lshl_b32 s51, s51, 5')
        e.I('s_add_u32 s51, s51, s26')
        e.I('s_lshl_b32 s51, s51, 6')
        e.I(f's_add_u32 s51, s51, {FLGQ}')
    def flag_n():
        flag_addr(0)
        e.I('s_waitcnt vmcnt(0)')
        set_flag(e, ONE + 2, 's51', ONE, fl)
    def mem_part():
        e.I('s_and_b32 s38, s30, 3')
        e.I('s_xor_b32 s39, s38, 2')
        e.I(f's_mul_i32 s40, s38, {MEM_SLOT}')
        e.I('s_add_u32 s40, s40, s59')
        e.I(f's_mul_i32 s41, s38, {XR_SLOT}')
        e.I('s_add_u32 s41, s41, s58')
        e.I(f's_add_u32 s41, s41, {XR}')
        e.I(f's_mul_i32 s42, s39, {XR_SLOT}')
        e.I('s_add_u32 s42, s42, s58')
        e.I(f's_add_u32 s42, s42, {XR}')
        e.I(f's_and_b32 s44, s30, {RD-1}')
        e.I(f's_mul_i32 s43, s44, {SEG_XP}')
        e.I('s_add_u32 s43, s43, s58')
        e.I(f's_add_u32 s43, s43, {XP}')
        e.I(f's_mul_i32 s44, s44, {SEG_VM}')
        e.I('s_add_u32 s44, s44, s60')
        e.I(f's_add_u32 s44, s44, {VM}')
        e.I(f's_mul_i32 s45, s38, {VR_SLOT}')
        e.I('s_add_u32 s45, s45, s60')
        e.I(f's_add_u32 s45, s45, {VR}')
        e.I(f's_mul_i32 s46, s39, {VR_SLOT}')
        e.I('s_add_u32 s46, s46, s60')
        e.I(f's_add_u32 s46, s46, {VR}')
        def issue(b):
            e.I(f'buffer_load_dwordx4 {vr(b)}, v3, {WS}, s40 offen sc1')
            e.I(f'buffer_load_dwordx4 {vr(b+4)}, v3, {WS}, s40 offen offset:1024 sc1')
            e.I(f'buffer_load_dwordx4 {vr(b+8)}, v4, {WS}, s40 offen sc1')
        def consume(b):
            e.I(f'ds_write_b128 v5, {vr(b)}')
            e.I(f'ds_write_b128 v5, {vr(b+4)} offset:1024')
            e.I(f'ds_write_b128 v6, {vr(b+8)}')
        flag_addr(1)
        poll2(e, issue, 3, PA, PB, consume, T0, T0 + 1, 1)
        TS(e, 1)
        e.I('s_waitcnt lgkmcnt(0)')
        e.I('s_barrier')
        for m in range(10): e.I(f'ds_read_b128 {vr(MF+4*m)}, v7 offset:{m*1024}')
        set_flag(e, ONE + 2, 's51', ONE, fl)
        e.I('s_mov_b64 vcc, s[34:35]')
        for m in range(10):
            e.I(f's_waitcnt lgkmcnt({9-m})')
            e.I(f'{SMF} {vr(DQ)}, {vr(MF+4*m)}, {ar(WQ+8*m,8)}, v{IDX}')
            e.I(f'{SMF} {vr(DK)}, {vr(MF+4*m)}, {ar(WK+8*m,8)}, v{IDX}')
        def vm(m): e.I(f'{SMF} {vr(DV)}, {vr(MF+4*m)}, {ar(WV+8*m,8)}, v{IDX}')
        QP1, QP2 = 'quad_perm:[1,0,3,2] row_mask:0xf bank_mask:0xf', 'quad_perm:[2,3,0,1] row_mask:0xf bank_mask:0xf'
        nv = opt.vpre
        for m in range(nv): vm(m)
        for r in range(4): e.I(f'v_permlane32_swap_b32 v{DQ+r}, v{DK+r}')
        for r in range(4): e.I(f'v_add_f32 v{DQ+r}, v{DQ+r}, v{DK+r}')
        e.I(f'v_cvt_pk_bf16_f32 v{T0}, v{DQ}, v{DQ+1}')
        e.I(f'v_cvt_pk_bf16_f32 v{T0+1}, v{DQ+2}, v{DQ+3}')
        vm(nv)
        e.I(f'v_mov_b32_dpp v{T0+2}, v{T0} {QP1}')
        e.I(f'v_mov_b32_dpp v{T0+3}, v{T0+1} {QP1}')
        e.I(f'v_perm_b32 v{T0}, v{T0+2}, v{T0}, v{SEL}')
        e.I(f'v_perm_b32 v{T0+1}, v{T0+3}, v{T0+1}, v{SEL}')
        vm(nv + 1)
        e.I(f'v_min_u32 v{T0}, -2, v{T0}')
        e.I(f'v_min_u32 v{T0+1}, -2, v{T0+1}')
        e.I('s_nop 0')
        e.I(f'v_cndmask_b32_dpp v{KEEP}, v{T0+1}, v{T0}, vcc {QP2}')
        e.I('s_mov_b64 vcc, s[36:37]')
        e.I(f'v_cndmask_b32_dpp v{KEEP+1}, v{T0}, v{T0+1}, vcc {QP2}')
        e.I(f'buffer_store_dwordx2 {vr(KEEP,2)}, v{XA}, {WS}, s41 offen{fl}')
        TS(e, 2)
        for m in range(nv + 2, 10): vm(m)
        for k in range(8): e.I(f'v_mov_b32 v{DQ+k}, 0')
        e.I(f'v_permlane32_swap_b32 v{DV}, v{DV+2}')
        e.I(f'v_permlane32_swap_b32 v{DV+1}, v{DV+3}')
        e.I(f'v_add_f32 v{DV}, v{DV}, v{DV+2}')
        e.I(f'v_add_f32 v{DV+1}, v{DV+1}, v{DV+3}')
        e.I(f'v_cvt_pk_bf16_f32 v{T0}, v{DV}, v{DV+1}')
        e.I(f'v_mov_b32_dpp v{T0+2}, v{T0} {QP1}')
        e.I(f'v_perm_b32 v{KEEP+2}, v{T0+2}, v{T0}, v{SEL}')
        e.I(f'v_min_u32 v{KEEP+2}, -2, v{KEEP+2}')
        e.I(f'buffer_store_dword v{KEEP+2}, v9, {WS}, s45 offen{fl}')
        for k in range(4): e.I(f'v_mov_b32 v{DV+k}, 0')
        TS(e, 3)
    TS(e, 0)
    if opt.xlate: count_up(e, T0, D_W)
    wait_reg(e, T0)
    TS(e, 1)
    TSflush(e, '69')
    e.I('s_mul_i32 s62, s22, 10240')
    e.I(f's_add_u32 s63, s62, {XN}')
    for m in range(10):
        e.I(f's_add_u32 m0, s62, {Q_LX + m*1024}')
        e.I(f'buffer_load_dwordx4 v2, {WS}, s63 offen lds')
        e.I('s_add_u32 s63, s63, 1024')
    e.I('s_cmp_lg_u32 s23, 0')
    e.I('s_cbranch_scc1 L_qkvs')
    for slow in (False, True):
        fl = ' sc1' if slow else ''
        if slow: e.L('L_qkvs')
        pro, top, nox, nxt_ = e.lab('Lqp'), e.lab('Lqt'), e.lab('Lqn'), e.lab('Lqx')
        e.I('s_mov_b32 s30, 0')
        e.I('s_mov_b32 s64, 0')
        e.I('s_waitcnt vmcnt(0)')
        e.L(pro)
        e.I('s_barrier')
        xwork(False)
        flag_n()
        e.I('s_add_u32 s64, s64, 1')
        e.I('s_cmp_lt_u32 s64, 2')
        e.I(f's_cbranch_scc1 {pro}')
        e.L(top)
        TS(e, 0)
        mem_part()
        e.I('s_cmp_ge_u32 s64, 64')
        e.I(f's_cbranch_scc1 {nox}')
        xwork(True)
        e.I('s_cmp_lg_u32 s64, 63')
        e.I(f's_cbranch_scc1 {nxt_}')
        flag_n()
        e.I(f's_branch {nxt_}')
        e.L(nox)
        late_stores()
        flag_n()
        e.L(nxt_)
        TS(e, 4)
        e.I('s_add_u32 s64, s64, 1')
        TS(e, 5)
        TSflush(e, 's30')
        e.I('s_add_u32 s30, s30, 1')
        e.I('s_cmp_lt_u32 s30, 64')
        e.I(f's_cbranch_scc1 {top}')
        e.I('s_endpgm')

S_RED = 98304
def role_sw(e):
    fl = ''
    XF, KXF, VXF, VMF = 16, 40, 88, 136
    S, PB, PM = 148, 160, 164
    DW, DM, VWX, VWM = 168, 184, 200, 216
    OUT = DW
    PA = XF
    CI = 224
    T0 = 228; IDX = 246; SENT = 248; ONE = 252
    AONE, AHALF = 96, 100
    PAD = 240
    e.I('s_sub_u32 s24, s21, 12')
    e.I('s_lshl_b32 s25, s24, 2')
    e.I('s_add_u32 s25, s25, s22')
    e.I('s_lshl_b32 s26, s20, 2')
    e.I('s_add_u32 s26, s26, s22')
    srd(e, 8, 66, 6144 * 1280)
    e.I(f's_mul_i32 s28, s26, {192*1280}')
    e.I('s_lshl_b32 s29, s24, 7')
    e.I('s_add_u32 s28, s28, s29')
    e.I('v_lshrrev_b32 v4, 3, v1')
    e.I('v_bfe_u32 v5, v1, 4, 2')
    e.I('v_lshlrev_b32 v5, 1, v5')
    e.I('v_and_b32 v6, 7, v1')
    e.I('v_xor_b32 v6, v6, v5')
    e.I('v_mul_u32_u24 v3, 1280, v4')
    e.I('v_lshl_add_u32 v3, v6, 4, v3')
    e.I('s_mul_i32 s56, s22, 24576')
    for n in range(24):
        e.I(f's_add_u32 m0, s56, {n*1024}')
        e.I(f'buffer_load_dwordx4 v3, s[8:11], s28 offen{WFL[opt.wnt]} lds')
        if n < 23: e.I(f's_add_u32 s28, s28, {8*1280}')
    e.I('v_lshrrev_b32 v4, 2, v1')
    e.I('v_bfe_u32 v5, v4, 1, 2')
    e.I('v_lshlrev_b32 v4, 7, v4')
    e.I('v_and_b32 v6, 3, v1')
    e.I('v_lshl_add_u32 v4, v6, 3, v4')
    e.I('v_add_u32 v4, s56, v4')
    for ct in range(4):
        e.I(f'v_xor_b32 v6, {ct}, v5')
        e.I(f'v_lshl_add_u32 v{8+ct}, v6, 5, v4')
    for kk in range(6):
        e.I(f's_waitcnt vmcnt({20 - 4*kk})')
        for ct in range(4):
            e.I(f'ds_read_b64_tr_b16 {ar((ct*6+kk)*4,2)}, v{8+ct} offset:{kk*4096}')
            e.I(f'ds_read_b64_tr_b16 {ar((ct*6+kk)*4+2,2)}, v{8+ct} offset:{kk*4096+2048}')
    e.I('s_waitcnt lgkmcnt(0)')
    e.I(f's_mov_b32 s52, {SC_L2E:#x}'); e.I(f's_mov_b32 s53, {SC_L2E | 0x80000000:#x}')
    lane_ig(e, 14, 15)
    e.I('v_and_b32 v13, 7, v14')
    e.I('v_lshlrev_b32 v13, 4, v13')
    e.I('v_lshl_add_u32 v13, v15, 7, v13')
    e.I('v_bfe_u32 v5, v1, 3, 1')
    e.I('s_lshl_b32 s38, s22, 9')
    e.I(f's_add_u32 s38, s38, {S_RED}')
    e.I('v_add_u32 v6, s38, v13')
    e.I('v_lshl_add_u32 v6, v5, 14, v6')
    e.I('s_lshl_b32 s38, s22, 11')
    e.I(f's_add_u32 s38, s38, {S_RED}')
    e.I('v_add_u32 v7, s38, v13')
    e.I('v_lshl_add_u32 v7, v5, 10, v7')
    if opt.pbf: e.I('v_lshrrev_b32 v13, 1, v13')
    e.I('v_lshl_add_u32 v13, v5, 13, v13')
    e.I('v_and_b32 v4, 0x1fff, v13')
    e.I('v_lshlrev_b32 v9, 2, v5')
    e.I('v_xor_b32 v9, s20, v9')
    for m in range(4):
        e.I(f'v_xor_b32 v8, {m}, v9')
        e.I(f'v_lshl_add_u32 v{PAD+m}, v8, 9, v4')
    e.I('v_and_b32 v9, 7, v1')
    e.I('v_lshlrev_b32 v8, 4, v9')
    e.I('v_lshl_add_u32 v8, v5, 7, v8')
    e.I('v_lshl_add_u32 v8, v15, 2, v8')
    e.I('s_lshl_b32 s38, s25, 8')
    e.I('v_add_u32 v8, s38, v8')
    e.I('v_lshrrev_b32 v9, 1, v1')
    e.I('v_lshlrev_b32 v9, 10, v9')
    e.I('v_and_b32 v10, 1, v1')
    e.I('v_lshl_add_u32 v9, v10, 3, v9')
    e.I(f'v_lshlrev_b32 v{ONE+1}, 2, v1')
    for k in range(4): e.I(f'v_mov_b32 v{SENT+k}, -1')
    e.I('s_mov_b32 s68, 0xff00ff00'); e.I('s_mov_b32 s69, 0xff00ff00')
    e.I('s_mov_b32 s70, 0x3f80'); e.I('s_mov_b32 s71, 0x3f800000')
    e.I(f'v_mov_b32 v{CI}, {NEG_BIG:#x}')
    e.I('s_mov_b32 vcc_lo, 0')
    e.I('s_mov_b32 vcc_hi, 0x00ff00ff')
    e.I(f'v_cndmask_b32 v{CI}, v{CI}, 0, vcc')
    for k in range(1, 4): e.I(f'v_mov_b32 v{CI+k}, v{CI}')
    e.I(f'v_mov_b32 v{IDX}, 0x44444444')
    e.I('v_mov_b32 v11, 0xeeeeeeee')
    e.I('v_cmp_lt_u32 vcc, 7, v14')
    e.I(f'v_cndmask_b32 v{IDX}, v{IDX}, v11, vcc')
    e.I('v_mov_b32 v11, 0x3f803f80')
    for k in range(4): e.I(f'v_accvgpr_write_b32 a{AONE+k}, v11')
    e.I('v_mov_b32 v11, 0x3f003f00')
    for k in range(2): e.I(f'v_accvgpr_write_b32 a{AHALF+k}, v11')
    e.I('s_mul_i32 s58, s26, 6144')
    e.I(f's_add_u32 s58, s58, {XR}')
    e.I('s_mul_i32 s57, s26, 3072')
    e.I(f's_add_u32 s57, s57, {VR}')
    e.I('s_lshr_b32 s59, s25, 1')
    e.I('s_lshl_b32 s59, s59, 14')
    e.I('s_and_b32 s38, s25, 1')
    e.I('s_lshl_b32 s38, s38, 12')
    e.I('s_add_u32 s59, s59, s38')
    e.I(f's_add_u32 s59, s59, {PART}')
    e.I('s_lshl_b32 s60, s20, 9')
    e.I('s_add_u32 s60, s60, s59')
    e.I('s_mul_i32 s61, s20, 10240')
    e.I(f's_add_u32 s61, s61, {MEM}')
    e.I('s_mul_i32 s62, s26, 12288')
    e.I('s_lshl_b32 s63, s26, 6')
    e.I(f's_add_u32 s63, s63, {FLGQ}')
    nocal = e.lab('Lnc')
    e.I('s_cmp_lg_u32 s25, 0')
    e.I(f's_cbranch_scc1 {nocal}')
    e.I('s_lshl_b32 s38, s20, 7')
    e.I(f's_add_u32 s38, s38, {CAL}')
    e.I('s_add_u32 s39, s38, 8192')
    e.I('s_mov_b32 s40, -1'); e.I('s_mov_b32 s41, -1'); e.I('s_mov_b32 s42, 4')
    e.I('v_mov_b32 v10, 0')
    e.I('s_mov_b64 exec, 1')
    cal = e.lab('Lcal')
    e.L(cal)
    for so, acc in (('s38', 's40'), ('s39', 's41')):
        e.I(f'buffer_store_dword v10, v10, {WS}, {so} offen sc1')
        e.I('s_waitcnt vmcnt(0)')
        e.I('s_memtime s[44:45]')
        e.I('s_waitcnt lgkmcnt(0)')
        e.I(f'buffer_load_dword v11, v10, {WS}, {so} offen sc1')
        e.I('s_waitcnt vmcnt(0)')
        e.I('s_memtime s[46:47]')
        e.I('s_waitcnt lgkmcnt(0)')
        e.I('s_sub_u32 s46, s46, s44')
        e.I(f's_min_u32 {acc}, {acc}, s46')
    e.I('s_sub_u32 s42, s42, 1')
    e.I('s_cmp_lg_u32 s42, 0')
    e.I(f's_cbranch_scc1 {cal}')
    e.I('s_cmp_lt_u32 s41, s40')
    if opt.pflip: e.I('s_cmp_ge_u32 s41, s40')
    e.I('s_cselect_b32 s38, 2, 1')
    e.I('v_mov_b32 v11, s38')
    e.I('s_lshl_b32 s38, s20, 2')
    e.I('v_mov_b32 v10, s38')
    e.I(f'global_store_dword v10, v11, s[74:75] offset:{D_PAR} sc1')
    e.I('s_mov_b64 exec, -1')
    e.L(nocal)
    e.I('s_lshl_b32 s38, s20, 2')
    e.I('v_mov_b32 v10, s38')
    wait_flags(e, 10, D_PAR, 1, T0, 12, sleep=4, dbg=True)
    e.I(f'v_readfirstlane_b32 s38, v{T0}')
    e.I('s_nop 3')
    e.I('s_and_b32 s38, s38, 2')
    e.I('s_lshl_b32 s38, s38, 12')
    e.I('s_add_u32 s59, s59, s38')
    e.I('s_lshl_b32 s38, s22, 2')
    e.I(f's_add_u32 s38, s38, {S_RED + 8192}')
    e.I('v_lshlrev_b32 v10, 4, v14')
    e.I('v_add_u32 v10, s38, v10')
    e.I('v_and_b32 v11, 7, v14')
    e.I('v_lshlrev_b32 v11, 4, v11')
    e.I('v_bfe_u32 v12, v1, 3, 1')
    e.I('v_lshl_add_u32 v11, v12, 3, v11')
    e.I(f'v_add_u32 v11, {S_RED + 8192}, v11')
    e.I('v_min_u32 v12, 11, v1')
    e.I('v_lshlrev_b32 v12, 2, v12')
    def kv_loads(dst, base, q0=0, q1=12):
        if q0 >= q1: return
        e.I(f's_and_b32 s48, s49, {RD-1}')
        e.I(f's_mul_i32 s48, s48, {SEG_QX}')
        e.I('s_add_u32 s48, s48, s62')
        e.I(f's_add_u32 s48, s48, {base + (q0//4)*4096}')
        for q in range(q0, q1):
            if q % 4 == 0 and q > q0: e.I('s_add_u32 s48, s48, 4096')
            e.I(f'buffer_load_dwordx4 {vr(dst+4*q)}, v2, {WS}, s48 offen offset:{(q%4)*1024} sc1')
    def vx_loads():
        e.I(f's_and_b32 s48, s49, {RD-1}')
        e.I(f's_mul_i32 s48, s48, {SEG_QX}')
        e.I('s_add_u32 s48, s48, s62')
        e.I(f's_add_u32 s48, s48, {VX}')
        e.I('s_add_u32 s46, s48, 4096')
        e.I('s_add_u32 s56, s48, 8192')
        for kk in range(6):
            for rt in range(2):
                q = rt * 6 + kk
                e.I(f'buffer_load_dwordx4 {vr(VXF+4*q)}, v2, {WS}, {("s48", "s46", "s56")[q//4]} offen offset:{(q%4)*1024} sc1')
    def vw_x(after, extra=(), nvx=0):
        extra = list(extra); nx0 = len(extra)
        for kk in range(6):
            for rt in range(2):
                gi = 2*kk + rt
                if gi >= 12 - nvx: e.I(f's_waitcnt vmcnt({11 - gi + nx0 - len(extra)})')
                if extra and gi >= opt.kcs:
                    for _ in range(-(-len(extra) // (opt.kce - gi) if gi < opt.kce else len(extra))): e.I(extra.pop(0))
                if after is not None: e.I(f's_waitcnt vmcnt({after + 11 - (2*kk+rt)})')
                for ct in range(4):
                    d = vr(DW + (ct*2+rt)*4)
                    e.I(f'{MFMA} {d}, {vr(VXF+4*(rt*6+kk))}, {ar((ct*6+kk)*4)}, {0 if kk == 0 else d}')
        for ct in range(4):
            for k in range(4): e.I(f'v_cvt_pk_bf16_f32 v{VWX+4*ct+k}, v{DW+8*ct+2*k}, v{DW+8*ct+2*k+1}')
        for k in range(16): e.I(f'v_mov_b32 v{DM+k}, 0')
    TS(e, 0)
    wait_reg(e, T0)
    TS(e, 1)
    TSflush(e, '69', 244, 245)
    if opt.touch2:
        e.I('v_lshrrev_b32 v16, 4, v1')
        e.I(f's_mov_b32 s38, {PART_SLOT}')
        e.I('v_mul_lo_u32 v16, s38, v16')
        e.I('v_bfe_u32 v17, v1, 1, 3')
        e.I('v_lshl_add_u32 v16, v17, 9, v16')
        e.I('v_and_b32 v17, 1, v1')
        e.I('v_lshl_add_u32 v16, v17, 7, v16')
        e.I(f'buffer_load_dword v17, v16, {WS}, s59 offen sc1')
        jobs = []
        for sl in range(2): jobs += [(b_ + sl * SEG_QX, 12288, 96) for b_ in (KX, VX, QX)]
        touch_jobs(e, [(XN + k * 40960, 10240, 80) for k in range(3)], 's24', 10, 's22', 18)
        for sl in range(4): jobs += [(XR + sl * XR_SLOT, 6144, 48), (VR + sl * VR_SLOT, 3072, 24), (MEM + sl * MEM_SLOT, 2560, 20)]
        for sl in range(2): jobs += [(XP + sl * SEG_XP, 6144, 48), (VM + sl * SEG_VM, 3072, 24)]
        jobs = jobs[3:] + jobs[:3] if 0 else jobs
        touch_jobs(e, jobs, 's24', 10, 's26', 24)
    wait_flags(e, ONE + 1, 's63', 0xfff, T0, 11, sleep=2)
    e.I('s_mov_b32 s49, 0')
    vx_loads()
    kv_loads(KXF, KX)
    vw_x(12)
    e.I('s_cmp_lg_u32 s23, 0')
    e.I('s_cbranch_scc1 L_sws')
    for slow in (False, True):
        fl = ' sc1' if slow else ''
        if slow: e.L('L_sws')
        top = e.lab('Lwt')
        e.I('s_mov_b32 s30, 0')
        e.L(top)
        TS(e, 0)
        e.I('s_and_b32 s38, s30, 3')
        e.I('s_xor_b32 s39, s38, 2')
        e.I(f's_mul_i32 s40, s38, {XR_SLOT}')
        e.I('s_add_u32 s40, s40, s58')
        e.I('s_add_u32 s54, s40, 4096')
        e.I(f's_mul_i32 s55, s38, {VR_SLOT}')
        e.I('s_add_u32 s55, s55, s57')
        if opt.fresh:
            e.I(f's_mul_i32 s41, s30, {PART_SLOT}')
            e.I(f's_add_u32 s41, s41, {SCRATCH + 0x400000 - PART + 0x200000}')
        else:
            e.I(f's_mul_i32 s41, s38, {PART_SLOT}')
        e.I('s_add_u32 s42, s41, s60')
        e.I('s_add_u32 s41, s41, s59')
        if opt.fresh:
            e.I('s_lshr_b32 s47, s41, 8')
            e.I('s_not_b32 s47, s47')
            e.I('s_and_b32 s47, s47, 8192')
            e.I('s_xor_b32 s41, s41, s47')
        e.I('s_xor_b32 s47, s41, 8192')
        e.I(f's_mul_i32 s43, s39, {PART_SLOT}')
        e.I('s_add_u32 s43, s43, s60')
        e.I('s_add_u32 s49, s30, 1')
        e.I('s_and_b32 s44, s49, 3')
        e.I('s_xor_b32 s45, s44, 2')
        e.I(f's_mul_i32 s44, s44, {MEM_SLOT}')
        e.I('s_add_u32 s44, s44, s61')
        e.I(f's_mul_i32 s45, s45, {MEM_SLOT}')
        e.I('s_add_u32 s45, s45, s61')
        e.I(f's_and_b32 s46, s49, {RD-1}')
        e.I(f's_mul_i32 s46, s46, {SEG_QX}')
        e.I('s_add_u32 s46, s46, s62')
        e.I(f's_add_u32 s65, s46, {KX}')
        e.I(f's_add_u32 s46, s46, {VX}')
        e.I('s_add_u32 s56, s46, 4096')
        e.I('s_add_u32 s64, s46, 8192')
        e.I('s_add_u32 s66, s65, 4096')
        e.I('s_add_u32 s67, s65, 8192')
        e.I('s_lshl_b32 s50, s49, 11')
        e.I('s_add_u32 s50, s50, s63')
        pl, pd, fr = e.lab('Lxp'), e.lab('Lxd'), e.lab('Lxf')
        e.I(f's_mov_b32 s31, {TMO}')
        e.I('s_mov_b64 exec, 0xfff')
        e.I(f'buffer_load_dword v{T0}, v9, {WS}, s40 offen sc1')
        e.L(pl)
        for a_, b_ in ((T0, T0 + 1), (T0 + 1, T0)):
            e.I(f'buffer_load_dword v{b_}, v9, {WS}, s40 offen sc1')
            e.I('s_waitcnt vmcnt(1)')
            e.I(f'v_cmp_eq_u32 vcc, -1, v{a_}')
            e.I(f's_cbranch_vccz {pd}')
        e.I('s_sub_u32 s31, s31, 1')
        e.I(f's_cbranch_scc0 {pl}')
        e.I('s_mov_b32 s31, 2')
        e.I('s_branch L_fail')
        e.L(pd)
        e.I('s_mov_b64 exec, -1')
        TS(e, 1)
        e.L(fr)
        for p in range(6):
            e.I(f'buffer_load_dwordx4 {vr(XF+4*p)}, v2, {WS}, {"s40" if p < 4 else "s54"} offen offset:{(p%4)*1024} sc1')
        FQ = CI + 23
        def vm_loads():
            for q in range(3):
                e.I(f'buffer_load_dwordx4 {vr(VMF+4*q)}, v2, {WS}, s55 offen offset:{q*1024} sc1')
            e.I(f'buffer_load_dword v{FQ}, v12, {WS}, s50 offen sc1')
        vp = opt.vmpos
        nvm = 0
        if vp == 0: vm_loads(); nvm = 4
        for p in range(6):
            x = vr(XF + 4*p)
            e.I(f's_waitcnt vmcnt({5-p+nvm})')
            e.I(f'{MFMA} {vr(S+4)}, {vr(KXF+4*p)}, {x}, {0 if p == 0 else vr(S+4)}')
            e.I(f'{MFMA} {vr(S+8)}, {vr(KXF+24+4*p)}, {x}, {0 if p == 0 else vr(S+8)}')
            e.I(f'{MFMA} {vr(S)}, {x}, {x}, {vr(CI) if p == 0 else vr(S)}')
            if vp == p + 1: vm_loads(); nvm = 4
            r = XF + 4 * p
            if p == 0:
                e.I(f'v_max3_u32 v{T0+2}, v{r}, v{r+1}, v{r+2}')
                e.I(f'v_max_u32 v{T0+2}, v{T0+2}, v{r+3}')
            else:
                e.I(f'v_max3_u32 v{T0+2}, v{T0+2}, v{r}, v{r+1}')
                e.I(f'v_max3_u32 v{T0+2}, v{T0+2}, v{r+2}, v{r+3}')
        e.I(f'v_cmp_eq_u32 vcc, -1, v{T0+2}')
        ok = e.lab('Lxo')
        e.I(f's_cbranch_vccz {ok}')
        e.I('s_sub_u32 s31, s31, 1')
        e.I('s_nop 7')
        e.I(f's_cbranch_scc0 {fr}')
        e.I('s_mov_b32 s31, 2')
        e.I('s_branch L_fail')
        e.L(ok)
        TS(e, 2)
        vl, vd = e.lab('Lvp'), e.lab('Lvd')
        e.L(vl)
        e.I('s_waitcnt vmcnt(0)')
        e.I(f'v_add_u32 v{FQ}, -1, v{FQ}')
        check_sent(e, list(range(VMF, VMF + 12)) + [FQ], T0 + 2, T0 + 3)
        e.I(f's_cbranch_vccz {vd}')
        vm_loads()
        e.I('s_sub_u32 s31, s31, 1')
        e.I(f's_cbranch_scc0 {vl}')
        e.I('s_mov_b32 s31, 3')
        e.I('s_branch L_fail')
        e.L(vd)
        TS(e, 3)
        PW = 2 if opt.pbf else 4
        if opt.rpos == 0: e.I(f'buffer_store_dwordx{PW} {vr(SENT,PW)}, v13, {WS}, s43 offen sc1')
        ROR8 = 'row_ror:8 row_mask:0xf bank_mask:0xf'
        sm = [f'{SMF} {vr(DM+4*ct)}, {vr(VMF+4*m)}, {ar((ct*6+2*m)*4,8)}, v{IDX}' for m in range(3) for ct in range(4)]
        t = T0 + 2
        V = []
        for r in range(4): V.append(f'v_mov_b32_dpp v{S+4+r}, v{S+8+r} row_shr:8 row_mask:0xf bank_mask:0xc')
        V += [f'v_max3_f32 v{t}, v{S}, v{S+1}, v{S+2}', f'v_max3_f32 v{t+1}, v{S+3}, v{S+4}, v{S+5}', f'v_max3_f32 v{t}, v{t}, v{S+6}, v{S+7}', f'v_max_f32 v{t}, v{t}, v{t+1}',
              '*', '*', f'v_max_f32_dpp v{t}, v{t}, v{t} {ROR8}', f'v_mov_b32 v{t+1}, v{t}', '*', '*', f'v_permlane16_swap_b32 v{t}, v{t+1}', f'v_max_f32 v{t}, v{t}, v{t+1}',
              f'v_mov_b32 v{t+1}, v{t}', '*', '*', f'v_permlane32_swap_b32 v{t}, v{t+1}', f'v_max_f32 v{t}, v{t}, v{t+1}', f'v_mul_f32 v{t}, s53, v{t}']
        order = [4, 5, 6, 7, 0, 1, 2, 3]
        for i in order: V.append(f'v_fma_f32 v{S+i}, v{S+i}, s52, v{t}')
        for n_, i in enumerate(order):
            V.append(f'v_exp_f32 v{S+i}, v{S+i}')
        bulk = [f'buffer_load_dwordx4 {vr(VXF+4*q)}, v2, {WS}, {("s46", "s56", "s64")[q//4]} offen offset:{(q%4)*1024} sc1' for q in (0, 6, 1, 7, 2, 8, 3, 9, 4, 10, 5, 11)]
        bulk += [f'buffer_load_dwordx4 {vr(KXF+4*q)}, v2, {WS}, {("s65", "s66", "s67")[q//4]} offen offset:{(q%4)*1024} sc1' for q in range(12)]
        kin = bulk[:opt.kin]; kp = bulk[opt.kin:opt.kin + opt.kp]; kc = bulk[opt.kin + opt.kp:]
        if opt.nobulk & 1: kin = []
        if opt.nobulk & 2: kp = []
        if opt.nobulk & 4: kc = []
        def ld():
            if kin: e.I(kin.pop(0))
        for x_ in sm[:opt.smpre]: e.I(x_)
        rest = sm[opt.smpre:]
        cost = 0; prev = None; nld = 0
        for x_ in V:
            if x_ == '*':
                if prev == '*' or cost == 0 or not rest: ld()
                else: e.I(rest.pop(0)); cost = 0
            else:
                e.I(x_); cost += 2 if 'v_exp' in x_ else 1
                if cost >= opt.smgap and rest: e.I(rest.pop(0)); cost = 0
                elif not rest and cost >= opt.ldgap: ld(); cost = 0
            prev = x_
        for x_ in rest: e.I(x_)
        e.I(f'v_cvt_pk_bf16_f32 v{PB}, v{S+4}, v{S+5}')
        e.I(f'v_cvt_pk_bf16_f32 v{PB+1}, v{S+6}, v{S+7}')
        e.I(f'v_cvt_pk_bf16_f32 v{PM}, v{S}, v{S+1}')
        e.I(f'v_cvt_pk_bf16_f32 v{PM+1}, v{S+2}, v{S+3}')
        e.I(f'v_mov_b32_dpp v{PB+2}, v{PB} {ROR8}')
        e.I(f'v_mov_b32_dpp v{PB+3}, v{PB+1} {ROR8}')
        e.I(f'v_mov_b32 v{t}, v{PM}')
        e.I(f'v_mov_b32 v{t+1}, v{PM+1}')
        TS(e, 4)
        def cvm(ct):
            e.I(f'v_cvt_pk_bf16_f32 v{VWM+2*ct}, v{DM+4*ct}, v{DM+4*ct+1}')
            e.I(f'v_cvt_pk_bf16_f32 v{VWM+2*ct+1}, v{DM+4*ct+2}, v{DM+4*ct+3}')
        SUM = S
        e.I(f'{MFMA} {vr(OUT)}, {vr(VWX)}, {vr(PB)}, 0')
        e.I(f'v_permlane32_swap_b32 v{t}, v{PM}')
        e.I(f'v_permlane32_swap_b32 v{t+1}, v{PM+1}')
        e.I(f'{MFMA} {vr(SUM)}, {ar(AONE)}, {vr(PB)}, 0')
        cvm(0)
        e.I(f'{MFMA} {vr(OUT+4)}, {vr(VWX+4)}, {vr(PB)}, 0')
        cvm(1)
        e.I(f'{MFMA} {vr(OUT+8)}, {vr(VWX+8)}, {vr(PB)}, 0')
        cvm(2)
        e.I(f'{MFMA} {vr(OUT+12)}, {vr(VWX+12)}, {vr(PB)}, 0')
        cvm(3)
        e.I(f'{MFMA16} {vr(OUT)}, {vr(VWM,2)}, {vr(PM,2)}, {vr(OUT)}')
        ld()
        e.I(f'{MFMA16} {vr(SUM)}, {ar(AHALF,2)}, {vr(PM,2)}, {vr(SUM)}')
        ld()
        for ct in range(1, 4):
            e.I(f'{MFMA16} {vr(OUT+4*ct)}, {vr(VWM+2*ct,2)}, {vr(PM,2)}, {vr(OUT+4*ct)}')
            if ct < 3: ld()
        e.I(f'ds_write_b128 v6, {vr(OUT)}')
        e.I(f'v_rcp_f32 v{t}, v{SUM}')
        e.I(f'ds_write_b128 v6, {vr(OUT+4)} offset:2048')
        e.I(f'ds_write_b32 v10, v{t}')
        e.I(f'ds_write_b128 v6, {vr(OUT+8)} offset:4096')
        e.I(f'ds_write_b128 v6, {vr(OUT+12)} offset:6144')
        while kin: ld()
        e.I('s_waitcnt lgkmcnt(0)')
        e.I('s_barrier')
        e.I(f'ds_read_b64 {vr(t,2)}, v11')
        e.I(f'ds_read_b128 {vr(S)}, v7')
        e.I(f'ds_read_b128 {vr(S+4)}, v7 offset:512')
        e.I('s_waitcnt lgkmcnt(1)')
        for k in range(4): e.I(f'v_mul_f32 v{S+k}, v{S+k}, v{t}')
        e.I('s_waitcnt lgkmcnt(0)')
        for k in range(4): e.I(f'v_fmac_f32 v{S+k}, v{S+4+k}, v{t+1}')
        for k in range(4): e.I(f'v_add_f32_dpp v{S+k}, v{S+k}, v{S+k} {ROR8}')
        if opt.pbf:
            e.I(f'v_cvt_pk_bf16_f32 v{S+4}, v{S}, v{S+1}')
            e.I(f'v_cvt_pk_bf16_f32 v{S+5}, v{S+2}, v{S+3}')
            e.I(f'v_min_u32 v{S+4}, -2, v{S+4}')
            e.I(f'v_min_u32 v{S+5}, -2, v{S+5}')
            e.I(f'buffer_store_dwordx2 {vr(S+4,2)}, v13, {WS}, s42 offen sc1')
        else:
            e.I(f'buffer_store_dwordx4 {vr(S)}, v13, {WS}, s42 offen sc1')
        TS(e, 5)
        if opt.rpos == 2: e.I(f'buffer_store_dwordx{PW} {vr(SENT,PW)}, v13, {WS}, s43 offen sc1')
        if opt.pspin:
            for k in range(16): e.I(f'v_mov_b32 v{PA+k}, -1')
            for k in range(4): e.I(f'v_mov_b32_dpp v{PA+k}, v{S+k} quad_perm:[0,1,2,3] row_mask:0xf bank_mask:0x3')
        elif opt.pbf:
            e.I(f'v_mov_b32 v{PA}, 0'); e.I(f'v_mov_b32 v{PA+1}, 0')
            for k in range(4): e.I(f'v_cndmask_b32 v{T0+8+k}, v{S+k}, 0, s[68:69]')
        else:
            for k in range(4): e.I(f'v_mov_b32 v{PA+k}, v{S+k}')
        for x_ in kp: e.I(x_)
        if opt.pdelay: e.I(f's_sleep {opt.pdelay}')
        def shot():
            e.I('s_mov_b64 exec, s[68:69]')
            e.I(f'buffer_load_dwordx{PW} {vr(PA,PW)}, v{PAD}, {WS}, s41 offen sc1')
            e.I('s_mov_b64 exec, -1')
            for m in range(1, 4): e.I(f'buffer_load_dwordx{PW} {vr(PA+PW*m,PW)}, v{PAD+m}, {WS}, s41 offen sc1')
        ql, qd = e.lab('Lpp'), e.lab('Lpd')
        if opt.pdiag: e.I('s_mov_b32 s94, 0')
        e.L(ql)
        shot()
        if opt.pdiag: e.I('s_add_u32 s94, s94, 1')
        if opt.pspin:
            for k in range(opt.pspin):
                check_sent(e, range(PA, PA + 16), T0, T0 + 1)
                e.I(f's_cbranch_vccz {qd}')
        else:
            if opt.pdiag:
                e.I('s_waitcnt vmcnt(4)')
                e.I('s_cmp_eq_u32 s94, 1')
                pass
            e.I('s_waitcnt vmcnt(0)')
            check_sent(e, range(PA, PA + 4*PW), T0, T0 + 1)
            e.I(f's_cbranch_vccz {qd}')
        e.I('s_sub_u32 s31, s31, 1')
        e.I(f's_cbranch_scc0 {ql}')
        e.I('s_mov_b32 s31, 4')
        e.I('s_branch L_fail')
        e.L(qd)
        TS(e, 6)
        if opt.pbf:
            for m in range(4):
                for k in range(4): e.I(f'v_dot2c_f32_bf16 v{T0+8+k}, {("s70", "s71")[k&1]}, v{PA+2*m+(k>>1)}')
            e.I('s_nop 2')
        else:
            for k in range(4):
                e.I(f'v_add_f32 v{T0+4+k}, v{PA+k}, v{PA+4+k}')
                e.I(f'v_add_f32 v{T0+8+k}, v{PA+8+k}, v{PA+12+k}')
            for k in range(4):
                e.I(f'v_add_f32 v{T0+8+k}, v{T0+4+k}, v{T0+8+k}')
        for k in range(2): e.I(f'v_add_f32_dpp v{T0+4+k}, v{T0+8+k}, v{T0+8+k} row_ror:8 row_mask:0xf bank_mask:0x3')
        for k in range(2): e.I(f'v_add_f32_dpp v{T0+4+k}, v{T0+10+k}, v{T0+10+k} row_ror:8 row_mask:0xf bank_mask:0xc ; merge')
        e.I(f'v_cvt_pk_bf16_f32 v{T0+4}, v{T0+4}, v{T0+5}')
        e.I(f'v_min_u32 v{T0+4}, -2, v{T0+4}')
        e.I(f'buffer_store_dword v{T0+4}, v8, {WS}, s44 offen{fl}')
        TS(e, 7)
        e.I(f'buffer_store_dword v{SENT}, v8, {WS}, s45 offen{fl}')
        if opt.mbar: e.I('s_barrier')
        nvx = max(0, 12 - opt.kin - opt.kp)
        for x_ in kc[:nvx]: e.I(x_)
        vw_x(None, kc[nvx:], nvx)
        TS(e, 8)
        TSflush(e, 's30', 244, 245)
        e.I('s_add_u32 s30, s30, 1')
        e.I('s_cmp_lt_u32 s30, 63')
        e.I(f's_cbranch_scc1 {top}')
        e.I('s_endpgm')

def role_xw(e):
    OF = 16
    D = 112
    T0 = 160; ONE = 252
    e.I('s_sub_u32 s24, s21, 22')
    srd(e, 8, 66, 6144 * 1280)
    e.I(f's_mul_i32 s28, s20, {768*1280}')
    e.I('s_lshl_b32 s29, s24, 8')
    e.I('s_add_u32 s28, s28, s29')
    e.I('s_add_u32 s29, s28, 128')
    e.I(f'v_lshlrev_b32 v{ONE+1}, 2, v1')
    e.I('s_lshl_b32 s38, s20, 8')
    e.I(f's_add_u32 s38, s38, {FLGQ}')
    if opt.xlate & 1: wait_count(e, T0, D_W, opt.wthr, 32)
    load_weights(e, [('s[8:11]', 's28', 0, 768), ('s[8:11]', 's29', 96, 768)], 1280, 256, True, 3, 4)
    e.I(f'v_lshlrev_b32 v{ONE+1}, 2, v1')
    e.I('s_lshl_b32 s38, s20, 2')
    e.I('s_add_u32 s38, s38, s22')
    e.I('s_lshl_b32 s39, s38, 2')
    e.I('v_lshlrev_b32 v3, 7, v1')
    e.I('v_add_u32 v3, s39, v3')
    e.I(f'v_mov_b32 v{ONE}, 1')
    e.I('s_mul_i32 s62, s22, 12288')
    e.I('s_mul_i32 s63, s38, 12288')
    e.I(f's_add_u32 s63, s63, {OX}')
    e.I('s_mul_i32 s64, s20, 40960')
    e.I('s_lshl_b32 s65, s24, 2')
    e.I('s_add_u32 s65, s65, s22')
    e.I('s_lshl_b32 s65, s65, 10')
    e.I('s_add_u32 s64, s64, s65')
    e.I(f's_add_u32 s64, s64, {PX}')
    e.I('s_lshl_b32 s66, s24, 8')
    e.I(f's_add_u32 s66, s66, {FLGPX}')
    def pxflag():
        e.I('s_mov_b64 exec, 3')
        e.I(f'buffer_store_dword v{ONE}, v3, {WS}, s54 offen sc1')
        e.I('s_mov_b64 exec, s[60:61]')
        e.I(f'buffer_store_dword v{ONE}, v6, {WS}, s53 offen sc1')
        e.I('s_mov_b64 exec, -1')
    if opt.touch:
        jobs = []
        for sl in range(RD):
            if sl >= 2: jobs += [(b_ + sl * SEG_QX, 12288, 96) for b_ in (KX, VX, QX)] + [(XP + sl * SEG_XP, 6144, 48), (VM + sl * SEG_VM, 3072, 24)]
            if sl >= 2: jobs += [(OX + (sl - 2) * SEG_QX, 12288, 96)]
        jobs += [(OX + sl * SEG_QX, 12288, 96) for sl in (6, 7)]
        e.I('s_lshl_b32 s40, s20, 2')
        e.I('s_add_u32 s40, s40, s22')
        touch_jobs(e, jobs, 's24', 5, 's40', 16)
    wait_reg(e, T0)
    top, nof, late, nxt_, last = e.lab('Lxt'), e.lab('Lxn'), e.lab('Lxl'), e.lab('Lxx'), e.lab('Lxe')
    e.I('s_lshl_b32 s67, s20, 6')
    e.I('s_lshl_b32 s38, s22, 2')
    e.I('s_add_u32 s67, s67, s38')
    e.I(f's_add_u32 s67, s67, {FLGOX}')
    e.I('s_lshl_b32 s38, s20, 5')
    e.I('s_add_u32 s38, s38, s24')
    e.I('s_lshl_b32 s38, s38, 2')
    e.I('v_mov_b32 v6, s38')
    e.I('v_mov_b32 v4, 0')
    e.I('v_mov_b32 v5, v2')
    def dma(sn):
        e.I(f's_and_b32 s55, {sn}, {RD-1}')
        e.I(f's_mul_i32 s55, s55, {SEG_QX}')
        e.I('s_add_u32 s55, s55, s63')
        e.I(f's_and_b32 s56, {sn}, 1')
        e.I('s_mul_i32 s56, s56, 49152')
        e.I('s_add_u32 s56, s56, s62')
        for m in range(12):
            e.I(f's_add_u32 m0, s56, {m*1024}')
            e.I(f'buffer_load_dwordx4 v2, {WS}, s55 offen sc1 lds')
            if m < 11: e.I('s_add_u32 s55, s55, 1024')
    e.I('s_mov_b32 s30, 0')
    wait_flags(e, 4, 's67', 1, T0, 5, sleep=opt.xsleep)
    dma('s30')
    e.L(top)
    TS(e, 0)
    e.I('s_add_u32 s58, s30, 1')
    e.I('s_min_u32 s57, s58, 63')
    e.I('s_lshl_b32 s57, s57, 9')
    e.I('s_add_u32 s57, s57, s67')
    e.I(f'buffer_load_dword v{T0}, v4, {WS}, s57 offen sc1')
    e.I('s_waitcnt vmcnt(0)')
    e.I('s_cmp_eq_u32 s30, 0')
    e.I(f's_cbranch_scc1 {nof}')
    e.I('s_cmp_lg_u32 s59, 0')
    e.I(f's_cbranch_scc1 {nof}')
    pxflag()
    e.L(nof)
    e.I(f'v_readfirstlane_b32 s59, v{T0}')
    e.I('s_barrier')
    TS(e, 1)
    e.I('s_cmp_eq_u32 s30, 63')
    e.I('s_cselect_b32 s59, 0, s59')
    e.I('s_cmp_eq_u32 s59, 0')
    e.I(f's_cbranch_scc1 {late}')
    dma('s58')
    e.L(late)
    e.I(f's_mul_i32 s50, s30, {SEG_PX}')
    e.I('s_add_u32 s50, s50, s64')
    e.I('s_add_u32 s51, s50, 20480')
    e.I('s_mul_i32 s54, s30, 1280')
    e.I('s_add_u32 s54, s54, s66')
    e.I('s_and_b32 s53, s30, 3')
    e.I('s_lshl_b32 s53, s53, 10')
    e.I(f's_add_u32 s53, s53, {HINT}')
    e.I(f's_cmp_ge_u32 s30, {opt.cwarm}')
    e.I('s_cselect_b32 s60, 1, 0')
    e.I('s_cmp_eq_u32 s22, 0')
    e.I('s_cselect_b32 s60, s60, 0')
    e.I('s_mov_b32 s61, 0')
    TS(e, 2)
    PF = 6
    def rd(kk):
        hl, p = kk // 6, kk % 6
        for qt in range(2):
            e.I(f'ds_read_b128 {vr(OF + ((2*kk+qt) % 24)*4)}, v5 offset:{hl*12288 + (qt*6+p)*1024}')
    for kk in range(PF): rd(kk)
    for kk in range(24):
        nxt = min(24, kk + PF) - (kk + 1)
        e.I(f's_waitcnt lgkmcnt({2*nxt})')
        for qt in range(2):
            for b in range(2):
                d = vr(D + 4*(qt*2+b))
                e.I(f'{MFMA} {d}, {ar(96*b+4*kk)}, {vr(OF + ((2*kk+qt) % 24)*4)}, {0 if kk == 0 else d}')
        if kk + PF < 24: rd(kk + PF)
        if kk == 16: e.I(f'buffer_load_dword v{T0}, v4, {WS}, s57 offen sc1')
    sc = e.lab('Lxs')
    e.I('s_cmp_lg_u32 s59, 0')
    e.I(f's_cbranch_scc1 {sc}')
    e.I('s_cmp_eq_u32 s30, 63')
    e.I(f's_cbranch_scc1 {sc}')
    e.I('s_waitcnt vmcnt(0)')
    e.I(f'v_readfirstlane_b32 s59, v{T0}')
    e.I('s_cmp_eq_u32 s59, 0')
    e.I(f's_cbranch_scc1 {sc}')
    dma('s58')
    e.L(sc)
    for qt, so in enumerate(('s50', 's51')):
        for k in range(4): e.I(f'v_cvt_pk_bf16_f32 v{D+16+4*qt+k}, v{D+8*qt+2*k}, v{D+8*qt+2*k+1}')
        e.I(f'buffer_store_dwordx4 {vr(D+16+4*qt)}, v2, {WS}, {so} offen sc1')
    e.I('v_xor_b32 v5, 49152, v5')
    TS(e, 3)
    TSflush(e, 's30')
    e.I('s_cmp_eq_u32 s30, 63')
    e.I(f's_cbranch_scc1 {last}')
    e.I('s_cmp_lg_u32 s59, 0')
    e.I('s_mov_b32 s59, 0')
    e.I(f's_cbranch_scc1 {nxt_}')
    e.I(f'buffer_load_dword v{T0}, v4, {WS}, s57 offen sc1')
    e.I('s_waitcnt vmcnt(0)')
    e.I(f'v_readfirstlane_b32 s38, v{T0}')
    e.I('s_cmp_lg_u32 s38, 0')
    sl2 = e.lab('Lxq')
    e.I(f's_cbranch_scc1 {sl2}')
    pxflag()
    e.I('s_mov_b32 s59, 1')
    wait_flags(e, 4, 's57', 1, T0, 5, sleep=opt.xsleep)
    e.L(sl2)
    dma('s58')
    e.L(nxt_)
    e.I('s_mov_b32 s30, s58')
    e.I(f's_branch {top}')
    e.L(last)
    e.I('s_waitcnt vmcnt(0)')
    pxflag()
    e.I('s_endpgm')

def role_att(e):
    fl = ''
    QF, XPF, KF, VXF, VMF = 16, 64, 88, 136, 184
    S, P, T0 = 208, 220, 226
    PL = 196
    DO = 0
    C0, C1 = 232, 236
    ONE = 252
    e.I('s_sub_u32 s25, s21, 27')
    e.I('s_lshl_b32 s26, s20, 2')
    e.I('s_add_u32 s26, s26, s22')
    e.I(f's_mov_b32 s52, {SC_L2E:#x}'); e.I(f's_mov_b32 s53, {SC_L2E | 0x80000000:#x}')
    e.I(f'v_lshlrev_b32 v{ONE+1}, 2, v1')
    e.I('s_lshl_b32 s38, s22, 2')
    e.I(f'v_mov_b32 v{ONE+2}, s38')
    e.I(f'v_mov_b32 v{ONE}, 1')
    lane_ig(e, 14, 15)
    e.I(f'v_mov_b32 v3, {NEG_BIG:#x}')
    e.I('v_cmp_gt_u32 vcc, 32, v1')
    e.I(f'v_cndmask_b32 v{C0}, 0, v3, vcc')
    for k in range(1, 4): e.I(f'v_mov_b32 v{C0+k}, v{C0}')
    e.I('v_lshlrev_b32 v5, 2, v15')
    for r in range(4):
        e.I(f'v_add_u32 v6, {r}, v5')
        e.I('v_cmp_gt_u32 vcc, v6, v14')
        e.I(f'v_cndmask_b32 v{C1+r}, 0, v3, vcc')
    e.I('s_mul_i32 s58, s26, 6144')
    e.I('v_lshlrev_b32 v10, 7, v1')
    e.I('s_lshl_b32 s59, s22, 14')
    e.I('v_and_b32 v4, 3, v1')
    e.I('v_lshlrev_b32 v4, 8, v4')
    e.I('v_bfe_u32 v5, v1, 2, 3')
    e.I('v_lshl_add_u32 v5, v5, 4, v4')
    e.I('v_add_u32 v5, s59, v5')
    e.I('v_lshrrev_b32 v6, 2, v1')
    e.I('v_lshl_add_u32 v4, v6, 4, v4')
    e.I('v_add_u32 v4, s59, v4')
    e.I('v_cmp_gt_u32 vcc, 32, v1')
    for j in range(3):
        off = lambda kk: 12288 + (kk % 3) * 1024 + (kk // 3) * 128
        e.I(f'v_mov_b32 v6, {off(2*j+1)}')
        e.I(f'v_mov_b32 v11, {off(2*j)}')
        e.I('v_cndmask_b32 v6, v6, v11, vcc')
        e.I(f'v_add_u32 v{7+j}, v5, v6')
    wait_reg(e, T0)
    e.I('v_lshrrev_b32 v12, 2, v1')
    e.I('v_lshlrev_b32 v12, 8, v12')
    e.I('v_and_b32 v13, 3, v1')
    e.I('v_lshl_add_u32 v12, v13, 2, v12')
    e.I('s_lshl_b32 s38, s20, 4')
    e.I('v_add_u32 v12, s38, v12')
    e.I('s_cmp_lg_u32 s23, 0')
    e.I('s_cbranch_scc1 L_atts')
    for slow in (False, True):
        fl = ' sc1' if slow else ''
        if slow: e.L('L_atts')
        top = e.lab('Lat')
        e.I('s_mov_b32 s30, s25')
        e.L(top)
        TS(e, 0)
        e.I('s_add_u32 s51, s30, 2')
        e.I('s_lshl_b32 s51, s51, 5')
        e.I('s_add_u32 s51, s51, s26')
        e.I('s_lshl_b32 s51, s51, 6')
        e.I(f's_add_u32 s51, s51, {FLGQ}')
        e.I(f's_and_b32 s42, s30, {RD-1}')
        e.I(f's_mul_i32 s40, s42, {SEG_QX}')
        e.I('s_lshl_b32 s41, s58, 1')
        e.I('s_add_u32 s40, s40, s41')
        e.I(f's_mul_i32 s41, s42, {SEG_XP}')
        e.I('s_add_u32 s41, s41, s58')
        nbp = e.lab('Lab')
        e.I(f's_cmp_lt_u32 s30, {RD}')
        e.I(f's_cbranch_scc1 {nbp}')
        e.I(f's_sub_u32 s50, s30, {RD}')
        e.I('s_mul_i32 s50, s50, 1280')
        e.I(f's_add_u32 s50, s50, {FLGPX}')
        wait_flags(e, 12, 's50', 0xfffff, T0, 14, sleep=16)
        e.L(nbp)
        wait_flags(e, ONE + 1, 's51', 0xfff, T0, 6, sleep=opt.asleep)
        TS(e, 1)
        def loads(dst, n, sbase, add, w=4, va=2):
            e.I(f's_add_u32 s48, {sbase}, {add}')
            per = 4096 // (256 * w)
            for q in range(n):
                if q and q % per == 0: e.I('s_add_u32 s48, s48, 4096')
                e.I(f'buffer_load_dwordx{w} {vr(dst+w*q, w)}, v{va}, {WS}, s48 offen offset:{(q%per)*256*w} sc1')
        loads(XPF, 6, 's41', XP)
        loads(KF, 6, 's40', KX)
        loads(QF, 6, 's40', QX)
        e.I('s_lshr_b32 s42, s41, 1')
        e.I(f's_add_u32 s48, s42, {VM}')
        for q in range(3):
            e.I(f's_add_u32 m0, s59, {12288 + q*1024}')
            e.I(f'buffer_load_dwordx4 v2, {WS}, s48 offen sc1 lds')
            e.I('s_add_u32 s48, s48, 1024')
        e.I(f's_add_u32 s48, s40, {VX}')
        for q in range(12):
            e.I(f's_add_u32 m0, s59, {q*1024}')
            e.I(f'buffer_load_dwordx4 v2, {WS}, s48 offen sc1 lds')
            e.I('s_add_u32 s48, s48, 1024')
        loads(KF + 24, 6, 's40', KX + 6144)
        loads(QF + 24, 6, 's40', QX + 6144)
        NT = 0
        for qt in range(2):
            e.I(f's_waitcnt vmcnt({(27 if qt == 0 else 6) + NT})')
            if qt == 0: TS(e, 2)
            for p in range(6):
                q = vr(QF + 24*qt + 4*p)
                e.I(f'{MFMA} {vr(S)}, {vr(XPF+4*p)}, {q}, {vr(C0) if p == 0 else vr(S)}')
                e.I(f'{MFMA} {vr(S+4)}, {vr(KF+4*p)}, {q}, {(vr(C1) if qt == 0 else 0) if p == 0 else vr(S+4)}')
                if qt == 1: e.I(f'{MFMA} {vr(S+8)}, {vr(KF+24+4*p)}, {q}, {vr(C1) if p == 0 else vr(S+8)}')
            if qt == 0:
                for k in range(4): e.I(f'v_mov_b32 v{S+8+k}, v3')
            softmax12(e, S, P, T0)
            e.I(f'v_mov_b32 v{PL}, 0')
            e.I(f'v_mov_b32 v{PL+1}, 0')
            e.I(f'v_mov_b32 v{T0}, v{P}')
            e.I(f'v_mov_b32 v{T0+1}, v{P+1}')
            e.I(f'v_permlane32_swap_b32 v{T0}, v{PL}')
            e.I(f'v_permlane32_swap_b32 v{T0+1}, v{PL+1}')
            e.I(f's_add_u32 s48, s40, {OX + qt*6144}')
            e.I('s_add_u32 s49, s48, 4096')
            if qt == 0:
                e.I(f's_waitcnt vmcnt({12 + NT})')
                for j in range(3):
                    for t in range(2):
                        e.I(f'ds_read_b64_tr_b16 {vr(VMF+4*j+2*t,2)}, v{7+j} offset:{t*8}')
                for T in range(12):
                    for rt in range(2):
                        e.I(f'ds_read_b64_tr_b16 {vr(VXF+4*T+2*rt,2)}, v4 offset:{rt*6144 + (T>>1)*1024 + (T&1)*8}')
                e.I('s_waitcnt lgkmcnt(0)')
            def fin(p):
                dp = DO + 8 * (p % 2); op_ = QF + 24*qt + 4 * p
                for k in range(8): e.I(f'v_accvgpr_read_b32 v{240+k}, a{dp+k}')
                for k in range(4): e.I(f'v_cvt_pk_bf16_f32 v{op_+k}, v{240+2*k}, v{240+2*k+1}')
                e.I(f'buffer_store_dwordx4 {vr(op_)}, v2, {WS}, {"s48" if p < 4 else "s49"} offen offset:{(p%4)*1024}{fl}')
            for p in range(6):
                d = DO + 8 * (p % 2)
                for t in range(2):
                    e.I(f'{MFMA16} {ar(d+4*t)}, {vr(VMF+4*(p>>1)+2*t,2)}, {vr(PL,2) if p % 2 == 0 else vr(P,2)}, 0')
                for t in range(2):
                    e.I(f'{MFMA} {ar(d+4*t)}, {vr(VXF+4*(2*p+t))}, {vr(P+2)}, {ar(d+4*t)}')
                if p > 0: fin(p - 1)
            fin(5)
        e.I('s_lshl_b32 s50, s30, 3')
        e.I('s_add_u32 s50, s50, s20')
        e.I('s_lshl_b32 s50, s50, 6')
        e.I(f's_add_u32 s50, s50, {FLGOX}')
        e.I('s_waitcnt vmcnt(0)')
        set_flag(e, ONE + 2, 's50', ONE, fl)
        TS(e, 3)
        TSflush(e, 's30', 230, 231)
        e.I('s_add_u32 s30, s30, 2')
        e.I('s_cmp_lt_u32 s30, 64')
        e.I(f's_cbranch_scc1 {top}')
        e.I('s_endpgm')

F_LX, F_LH = 0, 98304
def role_ffn(e):
    ACC2 = 0
    ACC1 = 16
    BF = 48
    HP = 80
    WR = 96
    NW = 40
    e.I('s_sub_u32 s26, s21, 29')
    e.I('s_mul_i32 s25, s20, 3')
    e.I('s_add_u32 s26, s26, s25')
    e.I('s_mov_b32 s24, s26')
    srd(e, 8, 56, 640 * 3072); srd(e, 12, 58, 1536 * 1280)
    if opt.xlate & 4: wait_count(e, 3, D_W, opt.wthr, 32)
    transpose_w(e, 's26')
    e.I('s_waitcnt vmcnt(0)')
    e.I('s_barrier')
    count_up(e, 3, D_TR)
    wait_count(e, 3, D_TR, 24, 16)
    wait_reg(e, 16)
    e.L('L_ffn_task')
    e.I('s_lshl_b32 s38, s24, 2')
    e.I('s_add_u32 s38, s38, s22')
    e.I('s_mul_i32 s39, s38, 20480')
    e.I(f's_add_u32 s39, s39, {XN}')
    e.I('s_mul_i32 s40, s22, 20480')
    for m in range(20):
        e.I(f's_add_u32 m0, s40, {m*1024}')
        e.I(f'buffer_load_dwordx4 v2, {WS}, s39 offen lds')
        e.I('s_add_u32 s39, s39, 1024')
    for k in range(160): e.I(f'v_accvgpr_write_b32 a{k}, 0')
    e.I('s_mul_i32 s41, s22, 40960')
    e.I(f's_add_u32 s41, s41, {W1F}')
    e.I(f's_mul_i32 s42, s22, {10*48*1024}')
    e.I(f's_add_u32 s42, s42, {W2F}')
    e.I('v_add_u32 v3, 20480, v2')
    for u in range(10):
        e.I(f's_mov_b32 s54, {u*48*1024}')
        e.I(f'v_add_u32 v{4+u}, s54, v2')
    e.I(f'v_add_u32 v14, {F_LH}, v2')
    e.I('s_lshl_b32 s38, s22, 12')
    e.I('v_add_u32 v15, s38, v14')
    def wload(idx, adv):
        dst = vr(WR + (idx % NW) * 4)
        if idx < 40:
            kk, u = idx // 2, idx % 2
            e.I(f's_add_u32 s45, {adv[0]}, {(kk//4)*4096}')
            e.I(f'buffer_load_dwordx4 {dst}, v{2+u}, {WS}, s45 offen offset:{(kk%4)*1024}{" nt" if opt.ffnnt else ""}')
        else:
            pp, u = (idx - 40) // 10, (idx - 40) % 10
            e.I(f'buffer_load_dwordx4 {dst}, v{4+u}, {WS}, {adv[1]} offen offset:{pp*1024}{" nt" if opt.ffnnt else ""}')
    for idx in range(NW - 2): wload(idx, ('s41', 's42'))
    e.I(f's_waitcnt vmcnt({NW-2})')
    e.I('s_barrier')
    top = e.lab('Lft')
    TS(e, 0)
    e.I('s_mov_b32 s30, 0')
    e.L(top)
    e.I('s_cmp_lt_u32 s30, 11')
    e.I('s_cselect_b32 s46, 163840, 0')
    e.I('s_cselect_b32 s47, 4096, 0')
    e.I('s_add_u32 s43, s41, s46')
    e.I('s_add_u32 s44, s42, s47')
    D = NW - 2
    def pref(idx):
        j = idx + D
        if j < 80: wload(j, ('s41', 's42'))
        else: wload(j - 80, ('s43', 's44'))
    def rdx(kk):
        for rt in range(4):
            e.I(f'ds_read_b128 {vr(BF + ((kk%2)*4+rt)*4)}, v{2 if rt < 3 else 3} offset:{(rt if rt < 3 else 2)*20480 + kk*1024}')
    rdx(0)
    for kk in range(20):
        if kk + 1 < 20: rdx(kk + 1)
        e.I(f's_waitcnt vmcnt({D-2}) lgkmcnt({4 if kk+1 < 20 else 0})')
        for u in range(2):
            idx = 2 * kk + u
            for rt in range(4):
                d = vr(ACC1 + (u*4+rt)*4)
                e.I(f'{MFMA} {d}, {vr(WR+(idx%NW)*4)}, {vr(BF+((kk%2)*4+rt)*4)}, {0 if kk == 0 else d}')
        pref(2 * kk); pref(2 * kk + 1)
    for rt in range(4):
        for u in range(2):
            d = ACC1 + (u*4+rt)*4
            for k in range(4): e.I(f'v_max_f32 v{d+k}, 0, v{d+k}')
            e.I(f'v_cvt_pk_bf16_f32 v{HP+rt*4+2*u}, v{d}, v{d+1}')
            e.I(f'v_cvt_pk_bf16_f32 v{HP+rt*4+2*u+1}, v{d+2}, v{d+3}')
        e.I(f'ds_write_b128 v15, {vr(HP+rt*4)} offset:{rt*1024}')
    e.I('s_waitcnt lgkmcnt(0)')
    e.I('s_barrier')
    def rdh(pp):
        for rt in range(4):
            e.I(f'ds_read_b128 {vr(BF + ((pp%2)*4+rt)*4)}, v14 offset:{pp*4096 + rt*1024}')
    rdh(0)
    for pp in range(4):
        if pp + 1 < 4: rdh(pp + 1)
        for u in range(10):
            idx = 40 + pp * 10 + u
            w = f's_waitcnt vmcnt({D-1})'
            if u == 0: w += f' lgkmcnt({4 if pp+1 < 4 else 0})'
            e.I(w)
            for rt in range(4):
                d = ar(ACC2 + (u*4+rt)*4)
                e.I(f'{MFMA} {d}, {vr(WR+(idx%NW)*4)}, {vr(BF+((pp%2)*4+rt)*4)}, {d}')
            pref(idx)
    e.I('v_xor_b32 v14, 16384, v14')
    e.I('v_xor_b32 v15, 16384, v15')
    e.I('s_mov_b32 s41, s43')
    e.I('s_mov_b32 s42, s44')
    e.I('s_add_u32 s30, s30, 1')
    e.I('s_cmp_lt_u32 s30, 12')
    e.I(f's_cbranch_scc1 {top}')
    e.I('s_waitcnt vmcnt(0)')
    TS(e, 1)
    e.I('v_lshlrev_b32 v3, 3, v1')
    e.I(f's_mul_i32 s38, s24, {4*40*512}')
    e.I(f's_mul_i32 s39, s22, {10*512}')
    e.I('s_add_u32 s38, s38, s39')
    e.I(f's_add_u32 s38, s38, {G_}')
    e.I(f's_mov_b32 s52, {f2u(-1.4426950408889634):#x}')
    for rt in range(4):
        e.I(f's_add_u32 s39, s38, {rt*40*512}')
        e.I('s_add_u32 s40, s39, 4096')
        for u in range(10):
            t = 16 + ((rt*10+u) % 4) * 16
            a0 = ACC2 + (u*4+rt)*4
            for k in range(4): e.I(f'v_accvgpr_read_b32 v{t+k}, a{a0+k}')
            e.I(f'v_cvt_pk_bf16_f32 v{t+4}, v{t}, v{t+1}')
            e.I(f'v_cvt_pk_bf16_f32 v{t+5}, v{t+2}, v{t+3}')
            e.I(f'v_lshlrev_b32 v{t}, 16, v{t+4}')
            e.I(f'v_and_b32 v{t+1}, 0xffff0000, v{t+4}')
            e.I(f'v_lshlrev_b32 v{t+2}, 16, v{t+5}')
            e.I(f'v_and_b32 v{t+3}, 0xffff0000, v{t+5}')
            for k in range(4): e.I(f'v_mul_f32 v{t+4+k}, s52, v{t+k}')
            for k in range(4): e.I(f'v_exp_f32 v{t+4+k}, v{t+4+k}')
            for k in range(4): e.I(f'v_add_f32 v{t+4+k}, 1.0, v{t+4+k}')
            for k in range(4): e.I(f'v_rcp_f32 v{t+4+k}, v{t+4+k}')
            for k in range(4): e.I(f'v_mul_f32 v{t+k}, v{t+k}, v{t+4+k}')
            e.I(f'v_cvt_pk_bf16_f32 v{t+8}, v{t}, v{t+1}')
            e.I(f'v_cvt_pk_bf16_f32 v{t+9}, v{t+2}, v{t+3}')
            e.I(f'buffer_store_dwordx2 {vr(t+8,2)}, v3, {WS}, {"s39" if u < 8 else "s40"} offen offset:{(u%8)*512} sc1')
    e.I('s_waitcnt vmcnt(0)')
    TS(e, 2)
    if opt.ts: e.I('s_lshr_b32 s50, s24, 3'); e.I('s_add_u32 s50, s50, 64')
    TSflush(e, 's50')
    e.I('s_barrier')
    e.I('s_cmp_lg_u32 s22, 0')
    e.I('s_cbranch_scc1 L_ffn_nf')
    e.I('v_mov_b32 v4, 1')
    e.I('s_lshl_b32 s38, s24, 2')
    e.I('v_mov_b32 v5, s38')
    e.I(f's_mov_b32 s39, {FLGG}')
    set_flag(e, 5, 's39', 4, ' sc1')
    e.I('s_waitcnt vmcnt(0)')
    e.L('L_ffn_nf')
    e.I('s_cmp_ge_u32 s26, 8')
    e.I(f's_cbranch_scc1 {"L_end" if opt.nocmb else "L_cmb"}')
    e.I('s_add_u32 s24, s24, 24')
    e.I('s_cmp_lt_u32 s24, 32')
    e.I('s_cbranch_scc1 L_ffn_task')
    e.I('s_endpgm')

def role_cmb(e):
    PXR = 16
    GR = 144
    XR_ = 152
    T0 = 160
    srd(e, 8, 68, 2048 * 1280)
    srd(e, 12, 70, 2048 * 1280)
    e.I('s_sub_u32 s24, s26, 8')
    e.I('s_lshl_b32 s24, s24, 2')
    e.I('s_add_u32 s30, s24, s22')
    e.I('v_lshlrev_b32 v3, 2, v1')
    e.I('v_lshlrev_b32 v4, 3, v1')
    e.I('v_mov_b32 v6, 0')
    lane_ig(e, 14, 15)
    e.I('v_mul_u32_u24 v5, 1280, v14')
    e.I('v_lshl_add_u32 v5, v15, 3, v5')
    e.I('s_mov_b32 s49, 0')
    e.I('v_lshrrev_b32 v7, 4, v1')
    e.I('v_mul_u32_u24 v7, 40960, v7')
    e.I('v_lshl_add_u32 v7, v14, 7, v7')
    e.I(f'v_add_u32 v8, {4*40960}, v7')
    top = e.lab('Lct')
    e.L(top)
    TS(e, 0)
    e.I('s_mul_i32 s38, s30, 3277')
    e.I('s_lshr_b32 s38, s38, 16')
    e.I('s_mul_i32 s39, s38, 20')
    e.I('s_sub_u32 s39, s30, s39')
    e.I('s_cmp_ge_u32 s39, 10')
    e.I('s_cselect_b32 s40, 1, 0')
    e.I('s_mul_i32 s41, s40, 10')
    e.I('s_sub_u32 s41, s39, s41')
    gok = e.lab('Lcg')
    e.I('s_cmp_lg_u32 s49, 0')
    e.I(f's_cbranch_scc1 {gok}')
    e.I(f's_mov_b32 s42, {FLGG}')
    e.I('s_mov_b32 exec_hi, 0')
    e.I(f'buffer_load_dword v{T0}, v3, {WS}, s42 offen sc1')
    e.I('s_waitcnt vmcnt(0)')
    e.I(f'v_cmp_eq_u32 vcc, 0, v{T0}')
    e.I('s_mov_b64 exec, -1')
    e.I('s_cmp_eq_u32 vcc_lo, 0')
    e.I('s_cselect_b32 s49, 1, 0')
    e.I(f's_cbranch_scc1 {gok}')
    e.I('s_lshr_b32 s42, s38, 1')
    e.I('s_lshl_b32 s42, s42, 2')
    e.I(f's_add_u32 s42, s42, {FLGG}')
    wait_flags(e, 6, 's42', 1, T0, 7, sleep=32)
    e.L(gok)
    e.I(f's_mul_i32 s43, s38, {SEG_PX}')
    e.I('s_mul_i32 s44, s40, 20480')
    e.I('s_add_u32 s43, s43, s44')
    e.I('s_lshl_b32 s44, s41, 11')
    e.I('s_add_u32 s43, s43, s44')
    e.I(f's_add_u32 s43, s43, {PX}')
    e.I('s_lshl_b32 s45, s38, 1')
    e.I('s_add_u32 s45, s45, s40')
    e.I('s_mul_i32 s46, s45, 20480')
    e.I('s_lshr_b32 s47, s41, 1')
    e.I('s_lshl_b32 s47, s47, 2')
    e.I('s_and_b32 s48, s41, 1')
    e.I('s_add_u32 s44, s47, s48')
    e.I('s_lshl_b32 s47, s44, 10')
    e.I('s_add_u32 s47, s47, s46')
    e.I(f's_add_u32 s47, s47, {G_}')
    e.I('s_lshl_b32 s48, s44, 6')
    e.I('s_add_u32 s48, s48, s46')
    TO = (0, 4, 1, 5)
    for t in range(4):
        e.I(f'buffer_load_dwordx2 {vr(GR+2*t,2)}, v4, {WS}, s47 offen offset:{TO[t]*512} sc1')
        e.I(f'buffer_load_dwordx2 {vr(XR_+2*t,2)}, v5, s[8:11], s48 offen offset:{TO[t]*32}')
    nt_ = e.lab('Lcn')
    e.I(f's_cmp_lt_u32 s38, {opt.cwarm}')
    e.I(f's_cbranch_scc1 {nt_}')
    for k in range(2):
        e.I(f'buffer_load_dword v{T0}, v{7+k}, {WS}, s43 offen sc1')
    e.L(nt_)
    c1, c2 = e.lab('Lc1'), e.lab('Lc2')
    e.I('s_mul_i32 s50, s38, 10')
    e.I('s_and_b32 s44, s41, 14')
    e.I('s_add_u32 s50, s50, s44')
    e.I('s_lshl_b32 s50, s50, 7')
    e.I(f's_add_u32 s50, s50, {FLGPX}')
    e.I(f's_cmp_ge_u32 s38, {opt.cwarm}')
    e.I(f's_cbranch_scc1 {c1}')
    e.I(f's_add_u32 s42, s38, {opt.clag}')
    e.I('s_lshl_b32 s42, s42, 3')
    e.I('s_add_u32 s42, s42, s20')
    e.I('s_lshl_b32 s42, s42, 6')
    e.I(f's_add_u32 s42, s42, {FLGOX}')
    wait_flags(e, 6, 's42', 1, T0, 9, sleep=opt.lsleep)
    wait_flags(e, 3, 's50', 0xffffffff, T0, 8, sleep=opt.csleep)
    e.I(f's_branch {c2}')
    e.L(c1)
    e.I('s_and_b32 s42, s38, 3')
    e.I('s_lshl_b32 s42, s42, 3')
    e.I('s_add_u32 s42, s42, s20')
    e.I('s_lshl_b32 s42, s42, 7')
    e.I('s_lshl_b32 s44, s44, 1')
    e.I('s_add_u32 s42, s42, s44')
    e.I(f's_add_u32 s42, s42, {HINT}')
    wait_flags(e, 6, 's42', 1, T0, 9, sleep=2)
    wait_flags(e, 3, 's50', 0xffffffff, T0, 8, sleep=opt.c2sleep)
    e.L(c2)
    TS(e, 1)
    RAW = PXR + 32
    def ld(x):
        for t in range(2):
            if not opt.cdiag & 4: e.I(f'buffer_load_dwordx4 {vr(RAW+(x*2+t)*4)}, v2, {WS}, s43 offen offset:{t*1024} sc1')
        if x < 7: e.I('s_add_u32 s43, s43, 40960')
    def body(depth):
        for x in range(min(depth, 8)): ld(x)
        for x in range(8):
            left = min(depth - 1, 7 - x)
            e.I(f's_waitcnt vmcnt({left*2})')
            if x + depth < 8: ld(x + depth)
            for k in range(8):
                d = PXR + (0 if x == 0 else 16) + 2 * k
                e.I(f'v_lshlrev_b32 v{d}, 16, v{RAW+x*8+k}')
                e.I(f'v_and_b32 v{d+1}, 0xffff0000, v{RAW+x*8+k}')
            if x:
                for k in range(16):
                    e.I(f'v_add_f32 v{PXR+k}, v{PXR+k}, v{PXR+16+k}')
    fast, join = e.lab('Lcf'), e.lab('Lcj')
    e.I('s_cmp_ge_u32 s38, 61')
    e.I(f's_cbranch_scc1 {fast}')
    body(opt.cdepth)
    e.I(f's_branch {join}')
    e.L(fast)
    body(8)
    e.L(join)
    for t in range(4):
        b = PXR + 4 * t; u = T0 + 8 * (t % 2)
        e.I(f'v_cvt_pk_bf16_f32 v{u}, v{b}, v{b+1}')
        e.I(f'v_cvt_pk_bf16_f32 v{u+1}, v{b+2}, v{b+3}')
        for h_ in range(2):
            e.I(f'v_lshlrev_b32 v{b+2*h_}, 16, v{u+h_}')
            e.I(f'v_and_b32 v{b+2*h_+1}, 0xffff0000, v{u+h_}')
            e.I(f'v_lshlrev_b32 v{u+2+2*h_}, 16, v{GR+2*t+h_}')
            e.I(f'v_and_b32 v{u+3+2*h_}, 0xffff0000, v{GR+2*t+h_}')
        for k in range(4): e.I(f'v_mul_f32 v{b+k}, v{b+k}, v{u+2+k}')
        e.I(f'v_cvt_pk_bf16_f32 v{u}, v{b}, v{b+1}')
        e.I(f'v_cvt_pk_bf16_f32 v{u+1}, v{b+2}, v{b+3}')
        for h_ in range(2):
            e.I(f'v_lshlrev_b32 v{b+2*h_}, 16, v{u+h_}')
            e.I(f'v_and_b32 v{b+2*h_+1}, 0xffff0000, v{u+h_}')
            e.I(f'v_lshlrev_b32 v{u+2+2*h_}, 16, v{XR_+2*t+h_}')
            e.I(f'v_and_b32 v{u+3+2*h_}, 0xffff0000, v{XR_+2*t+h_}')
        for k in range(4): e.I(f'v_add_f32 v{b+k}, v{b+k}, v{u+2+k}')
        e.I(f'v_cvt_pk_bf16_f32 v{u+6}, v{b}, v{b+1}')
        e.I(f'v_cvt_pk_bf16_f32 v{u+7}, v{b+2}, v{b+3}')
        if not opt.cdiag & 8: e.I(f'buffer_store_dwordx2 {vr(u+6,2)}, v5, s[12:15], s48 offen offset:{TO[t]*32}')
    TS(e, 2)
    if opt.ts: e.I('s_lshr_b32 s50, s30, 6')
    TSflush(e, 's50')
    e.I('s_add_u32 s30, s30, 64')
    e.I('s_cmp_lt_u32 s30, 1280')
    e.I(f's_cbranch_scc1 {top}')
    e.I('s_endpgm')

def gen_mainkernel(e):
    kernel_head(e, MAIN)
    e.I('s_cmp_ge_u32 s2, 256')
    e.I('s_cbranch_scc1 L_end')
    e.I('s_load_dwordx2 s[32:33], s[0:1], 96')
    e.I('s_load_dwordx4 s[60:63], s[0:1], 16')
    e.I('s_load_dwordx4 s[64:67], s[0:1], 32')
    e.I('s_load_dwordx4 s[52:55], s[0:1], 0')
    e.I('s_load_dwordx4 s[56:59], s[0:1], 64')
    e.I('s_load_dwordx4 s[72:75], s[0:1], 80')
    TS(e, 0)
    e.I('s_getreg_b32 s24, hwreg(HW_REG_XCC_ID)')
    e.I('v_and_b32 v1, 63, v0')
    e.I('v_lshlrev_b32 v2, 4, v1')
    e.I('v_lshrrev_b32 v3, 6, v0')
    e.I('v_readfirstlane_b32 s22, v3')
    if opt.force_slow:
        e.I('s_lshr_b32 s20, s2, 5'); e.I('s_and_b32 s21, s2, 31')
    else:
        e.I('s_and_b32 s20, s2, 7'); e.I('s_lshr_b32 s21, s2, 3')
    e.I('s_and_b32 s24, s24, 15')
    e.I('s_lshl_b32 s96, s20, 4')
    e.I('s_and_b32 s25, s24, 12')
    e.I('s_add_u32 s96, s96, s25')
    e.I('s_and_b32 s25, s24, 3')
    e.I('s_lshl_b32 s25, s25, 3')
    e.I('s_lshl_b32 s97, 1, s25')
    e.I('s_waitcnt lgkmcnt(0)')
    e.I('s_mov_b64 s[70:71], s[72:73]')
    e.I('s_mov_b64 s[68:69], s[52:53]')
    srd(e, 4, 32, WS_BYTES)
    TS(e, 1)
    TSflush(e, '70')
    e.I('s_cmp_ge_u32 s21, 22'); e.I('s_cbranch_scc1 L_help')
    register(e, 3, 4)
    e.I('s_cmp_ge_u32 s21, 12'); e.I('s_cbranch_scc1 L_wo')
    role_qkv(e)
    e.L('L_wo'); role_sw(e)
    e.L('L_help')
    srd(e, 8, 52, 2048 * 1280); srd(e, 12, 54, 8 * 1280)
    e.I('s_mul_i32 s24, s20, 10')
    e.I('s_add_u32 s24, s24, s21')
    e.I('s_sub_u32 s24, s24, 22')
    ln_addr(e)
    e.I('s_mul_i32 s25, s24, 20480')
    e.I(f's_add_u32 s26, s25, {80*20480}')
    ln_load(e, 16, 's25')
    ln_load(e, 36, 's26')
    init_fill(e, 's24', 80)
    e.I('s_cmp_lg_u32 s21, 28')
    e.I('s_cbranch_scc1 L_hm')
    e.I('s_mul_i32 s41, s20, 10240')
    e.I(f's_add_u32 s41, s41, {MEM}')
    mem0_copy(e, 's41')
    e.L('L_hm')
    e.I('s_waitcnt vmcnt(0)')
    ln_compute(e, 16, 's25')
    e.I('s_cmp_ge_u32 s24, 48')
    e.I('s_cbranch_scc1 L_hl')
    ln_compute(e, 36, 's26')
    e.L('L_hl')
    e.I('s_waitcnt vmcnt(0)')
    e.I('s_barrier')
    register(e, 3, 4)
    TS(e, 0)
    TSflush(e, '69')
    e.I('s_cmp_ge_u32 s21, 29'); e.I('s_cbranch_scc1 L_ffn')
    e.I('s_cmp_lt_u32 s21, 27'); e.I('s_cbranch_scc1 L_xw')
    role_att(e)
    e.L('L_xw'); role_xw(e)
    e.L('L_ffn'); role_ffn(e)
    e.L('L_cmb'); role_cmb(e)
    e.L('L_fail')
    e.I('s_mov_b64 exec, 1')
    e.I('s_lshl_b32 s31, s31, 2')
    e.I('v_mov_b32 v3, s31')
    e.I('v_mov_b32 v4, 1')
    e.I('global_atomic_add v3, v4, s[74:75]')
    e.L('L_end')
    e.I('s_endpgm')

def build(path):
    for k in range(3): NT[k] = ' nt' if opt.pnt >> k & 1 else ''
    hdr = open('cdna_kernels/' + NAME + '.s.ref').read().split('\n')
    e = Em()
    for l in hdr:
        if l.startswith(';') and '@launch' not in l and 'Override launch' not in l and 'grid=ceil' not in l: e.raw(l)
    e.raw(f'; @launch grid=(256,1,1) block=(256,1,1) lds={max(LDS_TOTAL, opt.wnb * opt.wrows * 128)}')
    e.raw('.amdgcn_target "amdgcn-amd-amdhsa--gfx950"')
    gen_mainkernel(e)
    kernel_desc(e, MAIN, 512, 100, 256)
    lines, added = hazard.pad(e.lines)
    open(path, 'w').write('\n'.join(lines) + '\n')
    n = sum(1 for l in lines if l.startswith('    ') and not l.strip().startswith(';'))
    print(f'wrote {path}: {n} instructions, {added} nops added')

if __name__ == '__main__':
    out = sys.argv[1] if len(sys.argv) > 1 else 'cdna_kernels/' + NAME + '.s'
    if 'slow' in sys.argv[2:]: opt.force_slow = True
    if 'ts' in sys.argv[2:]: opt.ts = True
    for k in ('nobg', 'ackpoll', 'noxw'):
        if k in sys.argv[2:]: setattr(opt, k, True)
    for a_ in sys.argv[2:]:
        if '=' in a_: k_, v_ = a_.split('='); setattr(opt, k_, int(v_))
    build(out)
```

```python
import sys, struct
from asmlib import *
from layout import *
import hazard
from gen_pre import *

NAME = 'recurrent_scan__memory_aug_recurrent_mem_tr__dense_activation_relu__prompt'
MAIN = NAME + '_kernel'
PRE = 'prep_kernel'
LDS_TOTAL = 131072
LDS_ROLE = 131072
TMO = 1 << 18
def f2u(x): return struct.unpack('<I', struct.pack('<f', x))[0]
SC_L2E = f2u(192 ** -0.5 * 1.4426950408889634)
NEG_BIG = f2u(-1e30)
MFMA = 'v_mfma_f32_16x16x32_bf16'
MFMA16 = 'v_mfma_f32_16x16x16_bf16'
SMF = 'v_smfmac_f32_16x16x64_bf16'
WS = 's[4:7]'
WFL = ['', ' nt', ' sc1', ' sc0 sc1', ' sc1 nt', ' sc0 sc1 nt']

class Opt:
    force_slow = False
    ts = False
    nobg = False
    ackpoll = False
    noxw = False
    pdelay = 8
    vdelay = 0
    kbar = 0
    kpre = 12
    kin = 12
    fresh = 0
    pdiag = 0
    pflip = 0
    touch = 1
    nofc = 0
    nopx = 0
    nocmb = 0
    cdepth = 1
    ffnnt = 0
    pr = 1
    pfar = 0
    vpre = 2
    vmpos = 2
    smpre = 1
    smgap = 2
    ldgap = 4
    kp = 0
    kcs = 0
    kce = 12
    xlate = 1
    csleep = 8
    cwarm = 61
    c2sleep = 4
    clag = 2
    lsleep = 8
    xsleep = 2
    asleep = 2
    cdiag = 0
    pfs = 0
    swlate = 1
    fpos = 11
    heads = 1
    hdelay = 0
    wnb = 3
    wrows = 320
    touch2 = 1
    pnt = 1
    wnt = 1
    wthr = 64
    xpf = 10
    xdma0 = 10
    xdmas = 1
    pbf = 1
    rpos = 2
    mbar = 1
    pspin = 0
    nobulk = 0
opt = Opt()

def vr(i, n=4): return f'v[{i}:{i+n-1}]'
def ar(i, n=4): return f'a[{i}:{i+n-1}]'

def maxchain(e, dst, regs, op='u32'):
    regs = list(regs)
    e.I(f'v_max3_{op} v{dst}, v{regs[0]}, v{regs[1]}, v{regs[2]}')
    rest = regs[3:]
    while rest:
        if len(rest) >= 2:
            e.I(f'v_max3_{op} v{dst}, v{dst}, v{rest[0]}, v{rest[1]}'); rest = rest[2:]
        else:
            e.I(f'v_max_{op} v{dst}, v{dst}, v{rest[0]}'); rest = rest[1:]

def check_sent(e, regs, t0, t1):
    regs = list(regs)
    if len(regs) >= 8:
        h = len(regs) // 2
        A, B = regs[:h], regs[h:]
        ea, eb = Em(), Em()
        maxchain(ea, t0, A); maxchain(eb, t1, B)
        for i in range(max(len(ea.lines), len(eb.lines))):
            if i < len(ea.lines): e.lines.append(ea.lines[i])
            if i < len(eb.lines): e.lines.append(eb.lines[i])
        e.I(f'v_max_u32 v{t0}, v{t0}, v{t1}')
    else:
        maxchain(e, t0, regs)
    e.I(f'v_cmp_eq_u32 vcc, -1, v{t0}')

def poll2(e, issue, nl, regsA, regsB, consume, t0, t1, code):
    lp, dA, dB, dd = e.lab('Lp'), e.lab('LdA'), e.lab('LdB'), e.lab('Ldd')
    e.I(f's_mov_b32 s31, {TMO}')
    issue(regsA)
    e.L(lp)
    issue(regsB)
    e.I(f's_waitcnt vmcnt({nl})')
    check_sent(e, range(regsA, regsA + 4 * nl), t0, t1)
    e.I(f's_cbranch_vccz {dA}')
    issue(regsA)
    e.I(f's_waitcnt vmcnt({nl})')
    check_sent(e, range(regsB, regsB + 4 * nl), t0, t1)
    e.I(f's_cbranch_vccz {dB}')
    e.I('s_sub_u32 s31, s31, 1')
    e.I(f's_cbranch_scc0 {lp}')
    e.I(f's_mov_b32 s31, {code}')
    e.I('s_branch L_fail')
    e.L(dB)
    consume(regsB)
    e.I(f's_branch {dd}')
    e.L(dA)
    consume(regsA)
    e.L(dd)

def wait_flags(e, vaddr, sofs, mask, vt, code, sleep=0, dbg=False):
    lp, dn = e.lab('Lf'), e.lab('Lfd')
    e.I(f's_mov_b32 s31, {TMO}')
    if mask > 0xffffffff or mask < 0: e.I(f's_mov_b64 exec, {mask}')
    else:
        e.I(f's_mov_b32 exec_lo, {mask:#x}'); e.I('s_mov_b32 exec_hi, 0')
    e.L(lp)
    if dbg: e.I(f'global_load_dword v{vt}, v{vaddr}, s[74:75] offset:{sofs} sc1')
    else: e.I(f'buffer_load_dword v{vt}, v{vaddr}, {WS}, {sofs} offen sc1')
    e.I('s_waitcnt vmcnt(0)')
    e.I(f'v_cmp_eq_u32 vcc, 0, v{vt}')
    e.I(f's_cbranch_vccz {dn}')
    if sleep: e.I(f's_sleep {sleep}')
    e.I('s_sub_u32 s31, s31, 1')
    e.I(f's_cbranch_scc0 {lp}')
    e.I(f's_mov_b32 s31, {code}')
    e.I('s_branch L_fail')
    e.L(dn)
    e.I('s_mov_b64 exec, -1')

D_TR, D_PAR, D_REG = 64, 96, 128
def register(e, va, vd):
    sk = e.lab('Lrg')
    e.I('s_cmp_lg_u32 s22, 0')
    e.I(f's_cbranch_scc1 {sk}')
    e.I(f'v_mov_b32 v{va}, s96')
    e.I(f'v_mov_b32 v{vd}, s97')
    e.I('s_mov_b64 exec, 1')
    e.I(f'global_atomic_add v{va}, v{vd}, s[74:75] offset:{D_REG} sc1')
    e.I('s_mov_b64 exec, -1')
    e.L(sk)
D_W = 68
def wait_count(e, t, off, n, sleep):
    lp, dn = e.lab('Lwc'), e.lab('Lwe')
    e.I(f's_mov_b32 s31, {TMO}')
    e.I(f'v_mov_b32 v{t+1}, 0')
    e.L(lp)
    e.I(f'global_load_dword v{t}, v{t+1}, s[74:75] offset:{off} sc1')
    e.I('s_waitcnt vmcnt(0)')
    e.I(f'v_cmp_gt_u32 vcc, {n}, v{t}')
    e.I(f's_cbranch_vccz {dn}')
    e.I(f's_sleep {sleep}')
    e.I('s_sub_u32 s31, s31, 1')
    e.I(f's_cbranch_scc0 {lp}')
    e.I('s_mov_b32 s31, 10')
    e.I('s_branch L_fail')
    e.L(dn)
def wait_first(e, t):
    wait_reg(e, t, 32)
    e.I('s_lshl_b32 s38, s20, 8')
    e.I(f's_add_u32 s38, s38, {FLGQ}')
    e.I(f'v_lshlrev_b32 v{t+1}, 6, v1')
    wait_flags(e, t + 1, 's38', 0xf, t, 15, sleep=16)
def count_up(e, t, off):
    sk = e.lab('Lcu')
    e.I('s_cmp_lg_u32 s22, 0')
    e.I(f's_cbranch_scc1 {sk}')
    e.I(f'v_mov_b32 v{t}, 0'); e.I(f'v_mov_b32 v{t+1}, 1')
    e.I('s_mov_b64 exec, 1')
    e.I(f'global_atomic_add v{t}, v{t+1}, s[74:75] offset:{off} sc1')
    e.I('s_mov_b64 exec, -1')
    e.L(sk)
def wait_reg(e, t, sleep=4):
    lp, dn = e.lab('Lwr'), e.lab('Lwd')
    e.I(f's_mov_b32 s31, {TMO}')
    e.I(f'v_lshlrev_b32 v{t+2}, 2, v1')
    e.I('s_mov_b32 exec_hi, 0')
    e.L(lp)
    e.I(f'global_load_dword v{t}, v{t+2}, s[74:75] offset:{D_REG} sc1')
    e.I('s_mov_b32 s23, 0')
    e.I('s_mov_b32 s38, 0')
    e.I('s_waitcnt vmcnt(0)')
    for k in range(4):
        e.I(f'v_cmp_eq_u32 vcc, {0x20 << (8*k):#x}, v{t}')
        e.I('s_or_b32 s38, s38, vcc_lo')
    e.I(f'v_sad_u8 v{t+1}, v{t}, 0, 0')
    e.I('s_bcnt1_i32_b32 s38, s38')
    e.I('s_cmp_eq_u32 s38, 8')
    e.I(f's_cbranch_scc1 {dn}')
    for sh in (1, 2, 4, 8): e.I(f'v_add_u32_dpp v{t+1}, v{t+1}, v{t+1} row_shr:{sh} row_mask:0xf bank_mask:0xf bound_ctrl:0')
    e.I(f'v_readlane_b32 s38, v{t+1}, 15')
    e.I(f'v_readlane_b32 s39, v{t+1}, 31')
    e.I('s_mov_b32 s23, 1')
    e.I('s_add_u32 s38, s38, s39')
    e.I('s_cmp_eq_u32 s38, 256')
    e.I(f's_cbranch_scc1 {dn}')
    e.I(f's_sleep {sleep}')
    e.I('s_sub_u32 s31, s31, 1')
    e.I(f's_cbranch_scc0 {lp}')
    e.I('s_mov_b32 s31, 10')
    e.I('s_branch L_fail')
    e.L(dn)
    e.I('s_mov_b64 exec, -1')

def set_flag(e, vaddr, sofs, vone, fl):
    e.I('s_mov_b64 exec, 1')
    e.I(f'buffer_store_dword v{vone}, v{vaddr}, {WS}, {sofs} offen{fl}')
    e.I('s_mov_b64 exec, -1')

def xg_reduce(e, op, x, t):
    e.I(f'v_mov_b32 v{t}, v{x}')
    e.I(f'v_permlane16_swap_b32 v{x}, v{t}')
    e.I(f'{op} v{x}, v{x}, v{t}')
    e.I(f'v_mov_b32 v{t}, v{x}')
    e.I(f'v_permlane32_swap_b32 v{x}, v{t}')
    e.I(f'{op} v{x}, v{x}, v{t}')

def softmax12(e, S, P, t):
    maxchain(e, t, range(S, S + 12), 'f32')
    xg_reduce(e, 'v_max_f32', t, t + 1)
    e.I(f'v_mul_f32 v{t}, s53, v{t}')
    for i in range(12):
        e.I(f'v_fma_f32 v{S+i}, v{S+i}, s52, v{t}')
    for i in range(12):
        e.I(f'v_exp_f32 v{S+i}, v{S+i}')
    e.I(f'v_add_f32 v{t+2}, v{S}, v{S+1}')
    e.I(f'v_add_f32 v{t+3}, v{S+2}, v{S+3}')
    for i in range(4, 12, 2):
        e.I(f'v_add_f32 v{t+2}, v{t+2}, v{S+i}')
        e.I(f'v_add_f32 v{t+3}, v{t+3}, v{S+i+1}')
    e.I(f'v_add_f32 v{t+2}, v{t+2}, v{t+3}')
    xg_reduce(e, 'v_add_f32', t + 2, t + 3)
    e.I(f'v_rcp_f32 v{t+2}, v{t+2}')
    for i in range(12):
        e.I(f'v_mul_f32 v{S+i}, v{S+i}, v{t+2}')
    for i in range(6):
        e.I(f'v_cvt_pk_bf16_f32 v{P+i}, v{S+2*i}, v{S+2*i+1}')

def TS(e, k):
    if opt.ts: e.I(f's_memrealtime s[{76+2*k}:{77+2*k}]')
def TSflush(e, step, va=238, vd=239):
    if not opt.ts: return
    e.I('s_waitcnt lgkmcnt(0)')
    for k in range(10): e.I(f'v_writelane_b32 v{vd}, s{76+2*k}, {k}')
    e.I('s_lshl_b32 s76, s20, 5')
    e.I('s_add_u32 s76, s76, s21')
    e.I('s_lshl_b32 s76, s76, 2')
    e.I('s_add_u32 s76, s76, s22')
    e.I('s_mul_i32 s76, s76, 72')
    e.I(f's_add_u32 s76, s76, {step}')
    e.I('s_lshl_b32 s76, s76, 6')
    e.I(f's_add_u32 s76, s76, {DBGT}')
    e.I(f'v_lshlrev_b32 v{va}, 2, v1')
    e.I('s_mov_b64 exec, 0x3ff')
    e.I(f'buffer_store_dword v{vd}, v{va}, {WS}, s76 offen')
    e.I('s_mov_b64 exec, -1')

def lane_ig(e, vi, vg):
    e.I(f'v_and_b32 v{vi}, 15, v1')
    e.I(f'v_lshrrev_b32 v{vg}, 4, v1')

def load_weights(e, mats, RS, rows, paired, vA, vT, NB=3):
    CH = rows * 128
    ninst = rows // 8 // 4
    nk = rows // 32
    e.I(f'v_lshrrev_b32 v{vT}, 3, v1')
    if paired:
        e.I(f'v_bfe_u32 v{vT+1}, v1, 4, 2')
    else:
        e.I(f'v_bfe_u32 v{vT+1}, v1, 4, 1')
        e.I('s_and_b32 s54, s22, 1')
        e.I('s_lshl_b32 s54, s54, 1')
        e.I(f'v_or_b32 v{vT+1}, s54, v{vT+1}')
    e.I(f'v_lshlrev_b32 v{vT+1}, 1, v{vT+1}')
    e.I(f'v_and_b32 v{vT+2}, 7, v1')
    e.I(f'v_xor_b32 v{vT+2}, v{vT+2}, v{vT+1}')
    e.I(f's_mov_b32 s54, {RS}')
    e.I(f'v_mul_lo_u32 v{vA}, s54, v{vT}')
    e.I(f'v_lshl_add_u32 v{vA}, v{vT+2}, 4, v{vA}')
    e.I(f'v_lshrrev_b32 v{vT}, 4, v1')
    e.I(f'v_bfe_u32 v{vT+1}, v1, 2, 2')
    if paired:
        e.I(f'v_lshl_add_u32 v{vT+2}, v{vT}, 2, v{vT+1}')
        e.I(f'v_bfe_u32 v{vT}, v{vT+2}, 1, 2')
        second = 2048
    else:
        e.I(f'v_lshl_add_u32 v{vT+2}, v{vT}, 3, v{vT+1}')
        e.I(f'v_and_b32 v{vT}, 1, v{vT}')
        e.I(f'v_lshlrev_b32 v{vT}, 1, v{vT}')
        e.I(f'v_bfe_u32 v{vT+1}, v1, 3, 1')
        e.I(f'v_or_b32 v{vT}, v{vT}, v{vT+1}')
        second = 512
    e.I(f'v_xor_b32 v{vT}, s22, v{vT}')
    e.I(f'v_lshlrev_b32 v{vT+2}, 7, v{vT+2}')
    e.I(f'v_lshl_add_u32 v{vT+2}, v{vT}, 5, v{vT+2}')
    e.I(f'v_and_b32 v{vT}, 3, v1')
    e.I(f'v_lshl_add_u32 v{vT}, v{vT}, 3, v{vT+2}')
    for k in range(1, NB): e.I(f'v_add_u32 v{vT+k}, {k*CH}, v{vT}')
    chunks = []
    for (srd_, sofs, ab, nrows) in mats:
        for c in range(nrows // rows):
            chunks.append((srd_, sofs, ab + c * nk * 4, c * rows))
    e.I(f's_mul_i32 s55, s22, {8*RS}')
    e.I('s_lshl_b32 s56, s22, 10')
    def issue(ci):
        srd_, sofs, ab, r0 = chunks[ci]
        buf = ci % NB
        e.I(f's_add_u32 s57, {sofs}, s55')
        if r0: e.I(f's_add_u32 s57, s57, {r0*RS}')
        for n in range(ninst):
            e.I(f's_add_u32 m0, s56, {buf*CH + n*4096}')
            e.I(f'buffer_load_dwordx4 v{vA}, {srd_}, s57 offen{WFL[opt.wnt]} lds')
            if n + 1 < ninst: e.I(f's_add_u32 s57, s57, {32*RS}')
    for ci in range(min(NB, len(chunks))): issue(ci)
    for ci in range(len(chunks)):
        left = min(len(chunks) - 1 - ci, NB - 1)
        e.I(f's_waitcnt vmcnt({left*ninst})')
        if ci < 8: TS(e, 2 + ci)
        e.I('s_barrier')
        srd_, sofs, ab, r0 = chunks[ci]
        for k in range(nk):
            e.I(f'ds_read_b64_tr_b16 {ar(ab+4*k,2)}, v{vT+ci%NB} offset:{k*4096}')
            e.I(f'ds_read_b64_tr_b16 {ar(ab+4*k+2,2)}, v{vT+ci%NB} offset:{k*4096+second}')
        e.I('s_waitcnt lgkmcnt(0)')
        e.I('s_barrier')
        if ci + NB < len(chunks): issue(ci + NB)

def touch_jobs(e, jobs, sw, nw, sh, t):
    sizes = sorted({min(n, 64) for _, _, n in jobs} | {n - 64 for _, _, n in jobs if n > 64})
    reg = {}
    for k, n in enumerate(sizes):
        reg[n] = t + 1 + k
        e.I(f'v_min_u32 v{reg[n]}, {n-1}, v1')
        e.I(f'v_lshlrev_b32 v{reg[n]}, 7, v{reg[n]}')
    flat = []
    for base, per, n in jobs:
        flat.append((base, per, min(n, 64)))
        if n > 64: flat.append((base + 8192, per, n - 64))
    for c in range(nw):
        sk = e.lab('Ltj')
        e.I(f's_cmp_lg_u32 {sw}, {c}')
        e.I(f's_cbranch_scc1 {sk}')
        for base, per, n in flat[c::nw]:
            e.I(f's_mul_i32 s38, {sh}, {per}')
            e.I(f's_add_u32 s38, s38, {base}')
            e.I(f'buffer_load_dword v{t}, v{reg[n]}, {WS}, s38 offen sc1')
        e.L(sk)

def prefetch_w(e, su, nw, lo, hi, t, srds):
    for k in range(3):
        e.I(f'v_add_u32 v{t+3}, {64*k}, v1')
        e.I(f'v_mul_u32_u24 v{t+4}, 0x1556, v{t+3}')
        e.I(f'v_lshrrev_b32 v{t+4}, 16, v{t+4}')
        e.I(f'v_mul_u32_u24 v{t+k}, 12, v{t+4}')
        e.I(f'v_sub_u32 v{t+3}, v{t+3}, v{t+k}')
        e.I(f'v_mul_u32_u24 v{t+k}, 12288, v{t+4}')
        e.I(f'v_lshl_add_u32 v{t+k}, v{t+3}, 7, v{t+k}')
    e.I('s_mul_i32 s39, s20, 1536')
    base = lo
    while base < hi:
        for m, (a_, b_) in enumerate(((0, 40), (40, 80))):
            if base + nw <= a_ or base >= b_ or srds[m] is None: continue
            sk = e.lab('Lpf')
            e.I(f's_add_u32 s38, {su}, {base}')
            e.I(f's_sub_u32 s38, s38, {a_}')
            e.I(f's_cmp_ge_u32 s38, {min(b_, hi) - a_}')
            e.I(f's_cbranch_scc1 {sk}')
            e.I(f's_mul_i32 s38, s38, {16*12288}')
            e.I('s_add_u32 s38, s38, s39')
            for k in range(3): e.I(f'buffer_load_dword v{t+3}, v{t+k}, {srds[m]}, s38 offen{WFL[opt.wnt]}')
            e.L(sk)
        base += nw

Q_LX, Q_LMEM = 0, 81920
def role_qkv(e):
    fl = ''
    WQ, WK, WV = 0, 80, 160
    MF = 16
    DQ, DK, DV = 96, 100, 104
    PA, PB = 108, 120
    XD = 132
    T0 = 160
    KEEP = 176; TCH = 180
    XA, VA, IDX, SEL = 182, 183, 184, 185
    SENT = 248; ONE = 252
    e.I('s_mul_i32 s24, s21, 43')
    e.I('s_lshr_b32 s24, s24, 7')
    e.I('s_mul_i32 s25, s24, 3')
    e.I('s_sub_u32 s25, s21, s25')
    e.I('s_lshl_b32 s26, s20, 2')
    e.I('s_add_u32 s26, s26, s24')
    e.I('s_lshl_b32 s27, s25, 2')
    e.I('s_add_u32 s27, s27, s22')
    srd(e, 8, 60, 640 * 12288); srd(e, 12, 62, 640 * 12288); srd(e, 16, 64, 640 * 12288)
    e.I('s_mul_i32 s28, s26, 384')
    e.I('s_lshl_b32 s29, s25, 7')
    e.I('s_add_u32 s28, s28, s29')
    load_weights(e, [('s[12:15]', 's28', WK, 640), ('s[16:19]', 's28', WV, 640), ('s[8:11]', 's28', WQ, 640)], 12288, opt.wrows, False, 3, 4, opt.wnb)
    e.I('s_mul_i32 s38, s22, 2560')
    e.I('v_add_u32 v3, s38, v2')
    e.I('v_and_b32 v4, 31, v1')
    e.I('v_lshlrev_b32 v4, 4, v4')
    e.I('v_add_u32 v4, s38, v4')
    e.I('v_add_u32 v4, 2048, v4')
    e.I(f'v_add_u32 v5, {Q_LMEM}, v3')
    e.I(f'v_add_u32 v6, {Q_LMEM}, v4')
    e.I(f'v_add_u32 v7, {Q_LMEM}, v2')
    lane_ig(e, 14, 15)
    e.I('s_lshr_b32 s38, s27, 1')
    e.I('s_lshl_b32 s38, s38, 10')
    e.I('s_and_b32 s39, s27, 1')
    e.I('s_lshl_b32 s39, s39, 3')
    e.I('s_add_u32 s38, s38, s39')
    e.I('v_add_u32 v8, s38, v2')
    e.I('v_bfe_u32 v11, v1, 2, 2')
    e.I('v_and_b32 v12, 3, v1')
    e.I(f'v_lshlrev_b32 v{XA}, 8, v11')
    e.I(f'v_lshl_add_u32 v{XA}, v15, 6, v{XA}')
    e.I(f'v_lshl_add_u32 v{XA}, v12, 4, v{XA}')
    e.I(f'v_add_u32 v{XA}, s38, v{XA}')
    e.I('v_and_b32 v13, 1, v15')
    e.I('v_lshlrev_b32 v13, 2, v13')
    e.I('v_lshrrev_b32 v9, 1, v15')
    e.I('v_lshl_add_u32 v13, v9, 1, v13')
    e.I('v_and_b32 v9, 1, v12')
    e.I('v_add_u32 v13, v13, v9')
    e.I('v_lshrrev_b32 v12, 1, v12')
    e.I('v_lshrrev_b32 v9, 1, v11')
    e.I('v_lshlrev_b32 v9, 8, v9')
    e.I('v_lshl_add_u32 v9, v12, 7, v9')
    e.I('v_lshl_add_u32 v9, v13, 4, v9')
    e.I(f'v_and_b32 v{VA}, 1, v11')
    e.I(f'v_lshl_add_u32 v9, v{VA}, 3, v9')
    e.I('s_lshl_b32 s38, s25, 10')
    e.I('s_lshr_b32 s39, s22, 1')
    e.I('s_lshl_b32 s39, s39, 9')
    e.I('s_add_u32 s38, s38, s39')
    e.I('s_and_b32 s39, s22, 1')
    e.I('s_lshl_b32 s39, s39, 2')
    e.I('s_add_u32 s38, s38, s39')
    e.I('v_add_u32 v9, s38, v9')
    e.I(f'v_lshlrev_b32 v{VA}, 8, v11')
    e.I(f'v_lshl_add_u32 v{VA}, v13, 4, v{VA}')
    e.I(f'v_lshl_add_u32 v{VA}, v12, 2, v{VA}')
    e.I('s_lshr_b32 s38, s27, 1')
    e.I('s_cmp_ge_u32 s38, 3')
    e.I('s_cselect_b32 s39, 3, 0')
    e.I('s_cselect_b32 s40, 128, 0')
    e.I('s_sub_u32 s38, s38, s39')
    e.I('s_lshl_b32 s38, s38, 10')
    e.I('s_add_u32 s38, s38, s40')
    e.I('s_and_b32 s39, s27, 1')
    e.I('s_lshl_b32 s39, s39, 3')
    e.I('s_add_u32 s38, s38, s39')
    e.I(f'v_add_u32 v{VA}, s38, v{VA}')
    e.I(f'v_mov_b32 v{IDX}, 0x44444444')
    e.I('v_mov_b32 v11, 0xeeeeeeee')
    e.I('v_cmp_lt_u32 vcc, 7, v14')
    e.I(f'v_cndmask_b32 v{IDX}, v{IDX}, v11, vcc')
    e.I(f'v_mov_b32 v{SEL}, 0x05040100')
    e.I('v_mov_b32 v11, 0x03020706')
    e.I('v_and_b32 v12, 1, v1')
    e.I('v_cmp_eq_u32 vcc, 1, v12')
    e.I(f'v_cndmask_b32 v{SEL}, v{SEL}, v11, vcc')
    e.I('s_mov_b32 s34, 0x33333333'); e.I('s_mov_b32 s35, 0x33333333')
    e.I('s_mov_b32 s36, 0xcccccccc'); e.I('s_mov_b32 s37, 0xcccccccc')
    for k in range(12): e.I(f'v_mov_b32 v{DQ+k}, 0')
    e.I('s_lshl_b32 s38, s27, 2')
    e.I(f'v_mov_b32 v{ONE+2}, s38')
    e.I(f'v_mov_b32 v{ONE}, 1')
    for k in range(4): e.I(f'v_mov_b32 v{SENT+k}, -1')
    e.I('s_mul_i32 s58, s26, 6144')
    e.I('s_mul_i32 s59, s20, 10240')
    e.I(f's_add_u32 s59, s59, {MEM}')
    e.I('s_mul_i32 s60, s26, 3072')
    e.I('s_lshl_b32 s61, s20, 6')
    e.I('s_lshl_b32 s38, s24, 2')
    e.I('s_add_u32 s61, s61, s38')
    e.I(f's_add_u32 s61, s61, {FLGOX}')
    e.I('v_mov_b32 v10, 0')

    def late_list():
        return [f'buffer_store_dwordx2 {vr(KEEP,2)}, v{XA}, {WS}, s43 offen{fl}',
                f'buffer_store_dwordx2 {vr(SENT,2)}, v{XA}, {WS}, s42 offen{fl}',
                f'buffer_store_dword v{KEEP+2}, v{VA}, {WS}, s44 offen{fl}',
                f'buffer_store_dword v{SENT}, v9, {WS}, s46 offen{fl}']
    def late_stores():
        for x_ in late_list(): e.I(x_)
    def xwork(late):
        e.I('s_and_b32 s65, s64, 1')
        e.I('s_mul_i32 s66, s65, 40960')
        e.I('v_add_u32 v12, s66, v2')
        e.I('s_xor_b32 s65, s65, 1')
        e.I('s_mul_i32 s65, s65, 40960')
        e.I('s_add_u32 s65, s65, s62')
        e.I('s_add_u32 s66, s64, 1')
        e.I('s_min_u32 s66, s66, 63')
        e.I('s_mul_i32 s66, s66, 40960')
        e.I('s_add_u32 s66, s66, s62')
        e.I(f's_add_u32 s66, s66, {XN}')
        e.I(f's_and_b32 s47, s64, {RD-1}')
        e.I(f's_mul_i32 s47, s47, {SEG_QX}')
        e.I('s_lshl_b32 s48, s58, 1')
        e.I('s_add_u32 s47, s47, s48')
        if late:
            e.I(f's_max_u32 s50, s64, {RD}')
            e.I(f's_sub_u32 s50, s50, {RD}')
            e.I('s_lshl_b32 s50, s50, 9')
            e.I('s_add_u32 s50, s50, s61')
            e.I(f'buffer_load_dword v{TCH}, v10, {WS}, s50 offen sc1')
        PF = opt.xpf
        def rd(n): e.I(f'ds_read_b128 {vr(MF + (n % 20)*4)}, v12 offset:{n*1024}')
        def out(m, rt, part=3):
            d = XD + (m*2+rt)*4; o = T0 + (m*2+rt)*2
            if part & 1:
                e.I(f'v_cvt_pk_bf16_f32 v{o}, v{d}, v{d+1}')
                e.I(f'v_cvt_pk_bf16_f32 v{o+1}, v{d+2}, v{d+3}')
            if part & 2:
                e.I(f's_add_u32 s48, s47, {(QX, KX, VX)[m] + rt*6144}')
                e.I(f'buffer_store_dwordx2 {vr(o,2)}, v8, {WS}, s48 offen{fl}')
        for n in range(PF): rd(n)
        ls = late_list() if late else []
        d0 = opt.xdma0
        for n in range(40):
            rt, kk = n // 20, n % 20
            e.I(f's_waitcnt lgkmcnt({min(40, n + PF) - (n + 1)})')
            f = vr(MF + (n % 20)*4)
            for (m, Wb) in ((2, WV), (1, WK), (0, WQ)):
                d = vr(XD + (m*2+rt)*4)
                e.I(f'{MFMA} {d}, {ar(Wb+4*kk)}, {f}, {0 if kk == 0 else d}')
            if n + PF < 40: rd(n + PF)
            if late and n == 5:
                bp = e.lab('Lbp')
                e.I(f's_cmp_lt_u32 s64, {RD}')
                e.I(f's_cbranch_scc1 {bp}')
                e.I('s_waitcnt vmcnt(0)')
                e.I(f'v_cmp_eq_u32 vcc, 0, v{TCH}')
                e.I(f's_cbranch_vccz {bp}')
                wait_flags(e, 10, 's50', 1, TCH, 13, sleep=1)
                e.L(bp)
            if n >= 6 and ls: e.I(ls.pop(0))
            elif n >= d0 and (n - d0) % opt.xdmas == 0 and (n - d0) // opt.xdmas < 10:
                m = (n - d0) // opt.xdmas
                e.I(f's_add_u32 m0, s65, {m*1024}')
                e.I(f'buffer_load_dwordx4 v2, {WS}, s66 offen lds')
                e.I('s_add_u32 s66, s66, 1024')
            if n in (23, 24, 25): out(2 - (n - 23), 0)
        for m in (2, 1, 0): out(m, 1)
    def flag_addr(back):
        e.I(f's_sub_u32 s51, s64, {back}')
        e.I('s_lshl_b32 s51, s51, 5')
        e.I('s_add_u32 s51, s51, s26')
        e.I('s_lshl_b32 s51, s51, 6')
        e.I(f's_add_u32 s51, s51, {FLGQ}')
    def flag_n():
        flag_addr(0)
        e.I('s_waitcnt vmcnt(0)')
        set_flag(e, ONE + 2, 's51', ONE, fl)
    def mem_part():
        e.I('s_and_b32 s38, s30, 3')
        e.I('s_xor_b32 s39, s38, 2')
        e.I(f's_mul_i32 s40, s38, {MEM_SLOT}')
        e.I('s_add_u32 s40, s40, s59')
        e.I(f's_mul_i32 s41, s38, {XR_SLOT}')
        e.I('s_add_u32 s41, s41, s58')
        e.I(f's_add_u32 s41, s41, {XR}')
        e.I(f's_mul_i32 s42, s39, {XR_SLOT}')
        e.I('s_add_u32 s42, s42, s58')
        e.I(f's_add_u32 s42, s42, {XR}')
        e.I(f's_and_b32 s44, s30, {RD-1}')
        e.I(f's_mul_i32 s43, s44, {SEG_XP}')
        e.I('s_add_u32 s43, s43, s58')
        e.I(f's_add_u32 s43, s43, {XP}')
        e.I(f's_mul_i32 s44, s44, {SEG_VM}')
        e.I('s_add_u32 s44, s44, s60')
        e.I(f's_add_u32 s44, s44, {VM}')
        e.I(f's_mul_i32 s45, s38, {VR_SLOT}')
        e.I('s_add_u32 s45, s45, s60')
        e.I(f's_add_u32 s45, s45, {VR}')
        e.I(f's_mul_i32 s46, s39, {VR_SLOT}')
        e.I('s_add_u32 s46, s46, s60')
        e.I(f's_add_u32 s46, s46, {VR}')
        def issue(b):
            e.I(f'buffer_load_dwordx4 {vr(b)}, v3, {WS}, s40 offen sc1')
            e.I(f'buffer_load_dwordx4 {vr(b+4)}, v3, {WS}, s40 offen offset:1024 sc1')
            e.I(f'buffer_load_dwordx4 {vr(b+8)}, v4, {WS}, s40 offen sc1')
        def consume(b):
            e.I(f'ds_write_b128 v5, {vr(b)}')
            e.I(f'ds_write_b128 v5, {vr(b+4)} offset:1024')
            e.I(f'ds_write_b128 v6, {vr(b+8)}')
        flag_addr(1)
        poll2(e, issue, 3, PA, PB, consume, T0, T0 + 1, 1)
        TS(e, 1)
        e.I('s_waitcnt lgkmcnt(0)')
        e.I('s_barrier')
        for m in range(10): e.I(f'ds_read_b128 {vr(MF+4*m)}, v7 offset:{m*1024}')
        if opt.fpos < 0: set_flag(e, ONE + 2, 's51', ONE, fl)
        e.I('s_mov_b64 vcc, s[34:35]')
        for m in range(10):
            e.I(f's_waitcnt lgkmcnt({9-m})')
            e.I(f'{SMF} {vr(DQ)}, {vr(MF+4*m)}, {ar(WQ+8*m,8)}, v{IDX}')
            e.I(f'{SMF} {vr(DK)}, {vr(MF+4*m)}, {ar(WK+8*m,8)}, v{IDX}')
            if m == opt.fpos: e.I(f'buffer_store_dword v{ONE}, v{ONE+2}, {WS}, s51 offen{fl}')
        def vm(m): e.I(f'{SMF} {vr(DV)}, {vr(MF+4*m)}, {ar(WV+8*m,8)}, v{IDX}')
        QP1, QP2 = 'quad_perm:[1,0,3,2] row_mask:0xf bank_mask:0xf', 'quad_perm:[2,3,0,1] row_mask:0xf bank_mask:0xf'
        nv = opt.vpre
        for m in range(nv): vm(m)
        if opt.fpos == 10: e.I(f'buffer_store_dword v{ONE}, v{ONE+2}, {WS}, s51 offen{fl}')
        for r in range(4): e.I(f'v_permlane32_swap_b32 v{DQ+r}, v{DK+r}')
        for r in range(4): e.I(f'v_add_f32 v{DQ+r}, v{DQ+r}, v{DK+r}')
        e.I(f'v_cvt_pk_bf16_f32 v{T0}, v{DQ}, v{DQ+1}')
        e.I(f'v_cvt_pk_bf16_f32 v{T0+1}, v{DQ+2}, v{DQ+3}')
        vm(nv)
        if opt.fpos == 11: e.I(f'buffer_store_dword v{ONE}, v{ONE+2}, {WS}, s51 offen{fl}')
        e.I(f'v_mov_b32_dpp v{T0+2}, v{T0} {QP1}')
        e.I(f'v_mov_b32_dpp v{T0+3}, v{T0+1} {QP1}')
        e.I(f'v_perm_b32 v{T0}, v{T0+2}, v{T0}, v{SEL}')
        e.I(f'v_perm_b32 v{T0+1}, v{T0+3}, v{T0+1}, v{SEL}')
        vm(nv + 1)
        if opt.fpos == 12: e.I(f'buffer_store_dword v{ONE}, v{ONE+2}, {WS}, s51 offen{fl}')
        e.I(f'v_min_u32 v{T0}, -2, v{T0}')
        e.I(f'v_min_u32 v{T0+1}, -2, v{T0+1}')
        e.I('s_nop 0')
        e.I(f'v_cndmask_b32_dpp v{KEEP}, v{T0+1}, v{T0}, vcc {QP2}')
        e.I('s_mov_b64 vcc, s[36:37]')
        e.I(f'v_cndmask_b32_dpp v{KEEP+1}, v{T0}, v{T0+1}, vcc {QP2}')
        e.I(f'buffer_store_dwordx2 {vr(KEEP,2)}, v{XA}, {WS}, s41 offen{fl}')
        TS(e, 2)
        for m in range(nv + 2, 10): vm(m)
        for k in range(8): e.I(f'v_mov_b32 v{DQ+k}, 0')
        e.I(f'v_permlane32_swap_b32 v{DV}, v{DV+2}')
        e.I(f'v_permlane32_swap_b32 v{DV+1}, v{DV+3}')
        e.I(f'v_add_f32 v{DV}, v{DV}, v{DV+2}')
        e.I(f'v_add_f32 v{DV+1}, v{DV+1}, v{DV+3}')
        e.I(f'v_cvt_pk_bf16_f32 v{T0}, v{DV}, v{DV+1}')
        e.I(f'v_mov_b32_dpp v{T0+2}, v{T0} {QP1}')
        e.I(f'v_perm_b32 v{KEEP+2}, v{T0+2}, v{T0}, v{SEL}')
        e.I(f'v_min_u32 v{KEEP+2}, -2, v{KEEP+2}')
        e.I(f'buffer_store_dword v{KEEP+2}, v9, {WS}, s45 offen{fl}')
        for k in range(4): e.I(f'v_mov_b32 v{DV+k}, 0')
        TS(e, 3)
    TS(e, 0)
    wait_reg(e, T0)
    TS(e, 1)
    TSflush(e, '69')
    e.I('s_mul_i32 s62, s22, 10240')
    e.I(f's_add_u32 s63, s62, {XN}')
    for m in range(10):
        e.I(f's_add_u32 m0, s62, {Q_LX + m*1024}')
        e.I(f'buffer_load_dwordx4 v2, {WS}, s63 offen lds')
        e.I('s_add_u32 s63, s63, 1024')
    e.I('s_cmp_lg_u32 s23, 0')
    e.I('s_cbranch_scc1 L_qkvs')
    for slow in (False, True):
        fl = ' sc1' if slow else ''
        if slow: e.L('L_qkvs')
        pro, top, nox, nxt_ = e.lab('Lqp'), e.lab('Lqt'), e.lab('Lqn'), e.lab('Lqx')
        e.I('s_mov_b32 s30, 0')
        e.I('s_mov_b32 s64, 0')
        e.I('s_waitcnt vmcnt(0)')
        e.L(pro)
        e.I('s_barrier')
        xwork(False)
        flag_n()
        e.I('s_add_u32 s64, s64, 1')
        e.I('s_cmp_lt_u32 s64, 2')
        e.I(f's_cbranch_scc1 {pro}')
        e.L(top)
        TS(e, 0)
        mem_part()
        e.I('s_cmp_ge_u32 s64, 64')
        e.I(f's_cbranch_scc1 {nox}')
        xwork(True)
        e.I('s_cmp_lg_u32 s64, 63')
        e.I(f's_cbranch_scc1 {nxt_}')
        flag_n()
        e.I(f's_branch {nxt_}')
        e.L(nox)
        late_stores()
        flag_n()
        e.L(nxt_)
        TS(e, 4)
        e.I('s_add_u32 s64, s64, 1')
        TS(e, 5)
        TSflush(e, 's30')
        e.I('s_add_u32 s30, s30, 1')
        e.I('s_cmp_lt_u32 s30, 64')
        e.I(f's_cbranch_scc1 {top}')
        e.I('s_endpgm')

S_RED = 98304
def role_sw(e):
    fl = ''
    XF, KXF, VXF, VMF = 16, 40, 88, 136
    S, PB, PM = 148, 160, 164
    DW, DM, VWX, VWM = 168, 184, 200, 216
    OUT = DW
    PA = XF
    CI = 224
    T0 = 228; IDX = 246; SENT = 248; ONE = 252
    AONE, AHALF = 96, 100
    PAD = 240
    e.I('s_sub_u32 s24, s21, 12')
    e.I('s_lshl_b32 s25, s24, 2')
    e.I('s_add_u32 s25, s25, s22')
    e.I('s_lshl_b32 s26, s20, 2')
    e.I('s_add_u32 s26, s26, s22')
    srd(e, 8, 66, 6144 * 1280)
    def wo_load():
        e.I(f's_mul_i32 s28, s26, {192*1280}')
        e.I('s_lshl_b32 s29, s24, 7')
        e.I('s_add_u32 s28, s28, s29')
        e.I('v_lshrrev_b32 v17, 3, v1')
        e.I('v_bfe_u32 v18, v1, 4, 2')
        e.I('v_lshlrev_b32 v18, 1, v18')
        e.I('v_and_b32 v19, 7, v1')
        e.I('v_xor_b32 v19, v19, v18')
        e.I('v_mul_u32_u24 v16, 1280, v17')
        e.I('v_lshl_add_u32 v16, v19, 4, v16')
        e.I('s_mul_i32 s46, s22, 24576')
        for n in range(24):
            e.I(f's_add_u32 m0, s46, {n*1024}')
            e.I(f'buffer_load_dwordx4 v16, s[8:11], s28 offen{WFL[opt.wnt]} lds')
            if n < 23: e.I(f's_add_u32 s28, s28, {8*1280}')
        e.I('v_lshrrev_b32 v17, 2, v1')
        e.I('v_bfe_u32 v18, v17, 1, 2')
        e.I('v_lshlrev_b32 v17, 7, v17')
        e.I('v_and_b32 v19, 3, v1')
        e.I('v_lshl_add_u32 v17, v19, 3, v17')
        e.I('v_add_u32 v17, s46, v17')
        for ct in range(4):
            e.I(f'v_xor_b32 v19, {ct}, v18')
            e.I(f'v_lshl_add_u32 v{20+ct}, v19, 5, v17')
        for kk in range(6):
            e.I(f's_waitcnt vmcnt({20 - 4*kk})')
            for ct in range(4):
                e.I(f'ds_read_b64_tr_b16 {ar((ct*6+kk)*4,2)}, v{20+ct} offset:{kk*4096}')
                e.I(f'ds_read_b64_tr_b16 {ar((ct*6+kk)*4+2,2)}, v{20+ct} offset:{kk*4096+2048}')
        e.I('s_waitcnt lgkmcnt(0)')
    if opt.pfs:
        srd(e, 12, 64, 640 * 12288); srd(e, 16, 60, 640 * 12288)
        prefetch_w(e, 's25', 40, 0, opt.pfs, 24, ('s[12:15]', 's[16:19]'))
    if not opt.swlate: wo_load()
    e.I(f's_mov_b32 s52, {SC_L2E:#x}'); e.I(f's_mov_b32 s53, {SC_L2E | 0x80000000:#x}')
    lane_ig(e, 14, 15)
    e.I('v_and_b32 v13, 7, v14')
    e.I('v_lshlrev_b32 v13, 4, v13')
    e.I('v_lshl_add_u32 v13, v15, 7, v13')
    e.I('v_bfe_u32 v5, v1, 3, 1')
    e.I('s_lshl_b32 s38, s22, 9')
    e.I(f's_add_u32 s38, s38, {S_RED}')
    e.I('v_add_u32 v6, s38, v13')
    e.I('v_lshl_add_u32 v6, v5, 14, v6')
    e.I('s_lshl_b32 s38, s22, 11')
    e.I(f's_add_u32 s38, s38, {S_RED}')
    e.I('v_add_u32 v7, s38, v13')
    e.I('v_lshl_add_u32 v7, v5, 10, v7')
    if opt.pbf: e.I('v_lshrrev_b32 v13, 1, v13')
    e.I('v_lshl_add_u32 v13, v5, 13, v13')
    e.I('v_and_b32 v4, 0x1fff, v13')
    e.I('v_lshlrev_b32 v9, 2, v5')
    e.I('v_xor_b32 v9, s20, v9')
    for m in range(4):
        e.I(f'v_xor_b32 v8, {m}, v9')
        e.I(f'v_lshl_add_u32 v{PAD+m}, v8, 9, v4')
    e.I('v_and_b32 v9, 7, v1')
    e.I('v_lshlrev_b32 v8, 4, v9')
    e.I('v_lshl_add_u32 v8, v5, 7, v8')
    e.I('v_lshl_add_u32 v8, v15, 2, v8')
    e.I('s_lshl_b32 s38, s25, 8')
    e.I('v_add_u32 v8, s38, v8')
    e.I('v_lshrrev_b32 v9, 1, v1')
    e.I('v_lshlrev_b32 v9, 10, v9')
    e.I('v_and_b32 v10, 1, v1')
    e.I('v_lshl_add_u32 v9, v10, 3, v9')
    e.I(f'v_lshlrev_b32 v{ONE+1}, 2, v1')
    for k in range(4): e.I(f'v_mov_b32 v{SENT+k}, -1')
    e.I('s_mov_b32 s68, 0xff00ff00'); e.I('s_mov_b32 s69, 0xff00ff00')
    e.I('s_mov_b32 s70, 0x3f80'); e.I('s_mov_b32 s71, 0x3f800000')
    e.I(f'v_mov_b32 v{CI}, {NEG_BIG:#x}')
    e.I('s_mov_b32 vcc_lo, 0')
    e.I('s_mov_b32 vcc_hi, 0x00ff00ff')
    e.I(f'v_cndmask_b32 v{CI}, v{CI}, 0, vcc')
    for k in range(1, 4): e.I(f'v_mov_b32 v{CI+k}, v{CI}')
    e.I(f'v_mov_b32 v{IDX}, 0x44444444')
    e.I('v_mov_b32 v11, 0xeeeeeeee')
    e.I('v_cmp_lt_u32 vcc, 7, v14')
    e.I(f'v_cndmask_b32 v{IDX}, v{IDX}, v11, vcc')
    e.I('v_mov_b32 v11, 0x3f803f80')
    for k in range(4): e.I(f'v_accvgpr_write_b32 a{AONE+k}, v11')
    e.I('v_mov_b32 v11, 0x3f003f00')
    for k in range(2): e.I(f'v_accvgpr_write_b32 a{AHALF+k}, v11')
    e.I('s_mul_i32 s58, s26, 6144')
    e.I(f's_add_u32 s58, s58, {XR}')
    e.I('s_mul_i32 s57, s26, 3072')
    e.I(f's_add_u32 s57, s57, {VR}')
    e.I('s_lshr_b32 s59, s25, 1')
    e.I('s_lshl_b32 s59, s59, 14')
    e.I('s_and_b32 s38, s25, 1')
    e.I('s_lshl_b32 s38, s38, 12')
    e.I('s_add_u32 s59, s59, s38')
    e.I(f's_add_u32 s59, s59, {PART}')
    e.I('s_lshl_b32 s60, s20, 9')
    e.I('s_add_u32 s60, s60, s59')
    e.I('s_mul_i32 s61, s20, 10240')
    e.I(f's_add_u32 s61, s61, {MEM}')
    e.I('s_mul_i32 s62, s26, 12288')
    e.I('s_lshl_b32 s63, s26, 6')
    e.I(f's_add_u32 s63, s63, {FLGQ}')
    nocal = e.lab('Lnc')
    e.I('s_cmp_lg_u32 s25, 0')
    e.I(f's_cbranch_scc1 {nocal}')
    e.I('s_lshl_b32 s38, s20, 7')
    e.I(f's_add_u32 s38, s38, {CAL}')
    e.I('s_add_u32 s39, s38, 8192')
    e.I('s_mov_b32 s40, -1'); e.I('s_mov_b32 s41, -1'); e.I('s_mov_b32 s42, 4')
    e.I('v_mov_b32 v10, 0')
    e.I('s_mov_b64 exec, 1')
    cal = e.lab('Lcal')
    e.L(cal)
    for so, acc in (('s38', 's40'), ('s39', 's41')):
        e.I(f'buffer_store_dword v10, v10, {WS}, {so} offen sc1')
        e.I('s_waitcnt vmcnt(0)')
        e.I('s_memtime s[44:45]')
        e.I('s_waitcnt lgkmcnt(0)')
        e.I(f'buffer_load_dword v11, v10, {WS}, {so} offen sc1')
        e.I('s_waitcnt vmcnt(0)')
        e.I('s_memtime s[46:47]')
        e.I('s_waitcnt lgkmcnt(0)')
        e.I('s_sub_u32 s46, s46, s44')
        e.I(f's_min_u32 {acc}, {acc}, s46')
    e.I('s_sub_u32 s42, s42, 1')
    e.I('s_cmp_lg_u32 s42, 0')
    e.I(f's_cbranch_scc1 {cal}')
    e.I('s_cmp_lt_u32 s41, s40')
    if opt.pflip: e.I('s_cmp_ge_u32 s41, s40')
    e.I('s_cselect_b32 s38, 2, 1')
    e.I('v_mov_b32 v11, s38')
    e.I('s_lshl_b32 s38, s20, 2')
    e.I('v_mov_b32 v10, s38')
    e.I(f'global_store_dword v10, v11, s[74:75] offset:{D_PAR} sc1')
    e.I('s_mov_b64 exec, -1')
    e.L(nocal)
    e.I('s_lshl_b32 s38, s20, 2')
    e.I('v_mov_b32 v10, s38')
    wait_flags(e, 10, D_PAR, 1, T0, 12, sleep=4, dbg=True)
    e.I(f'v_readfirstlane_b32 s38, v{T0}')
    e.I('s_nop 3')
    e.I('s_and_b32 s38, s38, 2')
    e.I('s_lshl_b32 s38, s38, 12')
    e.I('s_add_u32 s59, s59, s38')
    e.I('s_lshl_b32 s38, s22, 2')
    e.I(f's_add_u32 s38, s38, {S_RED + 8192}')
    e.I('v_lshlrev_b32 v10, 4, v14')
    e.I('v_add_u32 v10, s38, v10')
    e.I('v_and_b32 v11, 7, v14')
    e.I('v_lshlrev_b32 v11, 4, v11')
    e.I('v_bfe_u32 v12, v1, 3, 1')
    e.I('v_lshl_add_u32 v11, v12, 3, v11')
    e.I(f'v_add_u32 v11, {S_RED + 8192}, v11')
    e.I('v_min_u32 v12, 11, v1')
    e.I('v_lshlrev_b32 v12, 2, v12')
    def kv_loads(dst, base, q0=0, q1=12):
        if q0 >= q1: return
        e.I(f's_and_b32 s48, s49, {RD-1}')
        e.I(f's_mul_i32 s48, s48, {SEG_QX}')
        e.I('s_add_u32 s48, s48, s62')
        e.I(f's_add_u32 s48, s48, {base + (q0//4)*4096}')
        for q in range(q0, q1):
            if q % 4 == 0 and q > q0: e.I('s_add_u32 s48, s48, 4096')
            e.I(f'buffer_load_dwordx4 {vr(dst+4*q)}, v2, {WS}, s48 offen offset:{(q%4)*1024} sc1')
    def vx_loads():
        e.I(f's_and_b32 s48, s49, {RD-1}')
        e.I(f's_mul_i32 s48, s48, {SEG_QX}')
        e.I('s_add_u32 s48, s48, s62')
        e.I(f's_add_u32 s48, s48, {VX}')
        e.I('s_add_u32 s46, s48, 4096')
        e.I('s_add_u32 s56, s48, 8192')
        for kk in range(6):
            for rt in range(2):
                q = rt * 6 + kk
                e.I(f'buffer_load_dwordx4 {vr(VXF+4*q)}, v2, {WS}, {("s48", "s46", "s56")[q//4]} offen offset:{(q%4)*1024} sc1')
    def vw_x(after, extra=(), nvx=0):
        extra = list(extra); nx0 = len(extra)
        for kk in range(6):
            for rt in range(2):
                gi = 2*kk + rt
                if gi >= 12 - nvx: e.I(f's_waitcnt vmcnt({11 - gi + nx0 - len(extra)})')
                if extra and gi >= opt.kcs:
                    for _ in range(-(-len(extra) // (opt.kce - gi) if gi < opt.kce else len(extra))): e.I(extra.pop(0))
                if after is not None: e.I(f's_waitcnt vmcnt({after + 11 - (2*kk+rt)})')
                for ct in range(4):
                    d = vr(DW + (ct*2+rt)*4)
                    e.I(f'{MFMA} {d}, {vr(VXF+4*(rt*6+kk))}, {ar((ct*6+kk)*4)}, {0 if kk == 0 else d}')
        for ct in range(4):
            for k in range(4): e.I(f'v_cvt_pk_bf16_f32 v{VWX+4*ct+k}, v{DW+8*ct+2*k}, v{DW+8*ct+2*k+1}')
        for k in range(16): e.I(f'v_mov_b32 v{DM+k}, 0')
    TS(e, 0)
    wait_reg(e, T0)
    TS(e, 1)
    if opt.swlate: wo_load()
    TS(e, 2)
    TSflush(e, '69', 244, 245)
    if opt.touch2:
        e.I('v_lshrrev_b32 v16, 4, v1')
        e.I(f's_mov_b32 s38, {PART_SLOT}')
        e.I('v_mul_lo_u32 v16, s38, v16')
        e.I('v_bfe_u32 v17, v1, 1, 3')
        e.I('v_lshl_add_u32 v16, v17, 9, v16')
        e.I('v_and_b32 v17, 1, v1')
        e.I('v_lshl_add_u32 v16, v17, 7, v16')
        e.I(f'buffer_load_dword v17, v16, {WS}, s59 offen sc1')
        jobs = []
        for sl in range(2): jobs += [(b_ + sl * SEG_QX, 12288, 96) for b_ in (KX, VX, QX)]
        touch_jobs(e, [(XN + k * 40960, 10240, 80) for k in range(3)], 's24', 10, 's22', 18)
        for sl in range(4): jobs += [(XR + sl * XR_SLOT, 6144, 48), (VR + sl * VR_SLOT, 3072, 24), (MEM + sl * MEM_SLOT, 2560, 20)]
        for sl in range(2): jobs += [(XP + sl * SEG_XP, 6144, 48), (VM + sl * SEG_VM, 3072, 24)]
        jobs = jobs[3:] + jobs[:3] if 0 else jobs
        touch_jobs(e, jobs, 's24', 10, 's26', 24)
    wait_flags(e, ONE + 1, 's63', 0xfff, T0, 11, sleep=2)
    e.I('s_mov_b32 s49, 0')
    vx_loads()
    kv_loads(KXF, KX)
    vw_x(12)
    e.I('s_cmp_lg_u32 s23, 0')
    e.I('s_cbranch_scc1 L_sws')
    for slow in (False, True):
        fl = ' sc1' if slow else ''
        if slow: e.L('L_sws')
        top = e.lab('Lwt')
        e.I('s_mov_b32 s30, 0')
        e.L(top)
        TS(e, 0)
        if opt.pdiag: e.I('s_mov_b32 s94, 0')
        e.I('s_and_b32 s38, s30, 3')
        e.I('s_xor_b32 s39, s38, 2')
        e.I(f's_mul_i32 s40, s38, {XR_SLOT}')
        e.I('s_add_u32 s40, s40, s58')
        e.I('s_add_u32 s54, s40, 4096')
        e.I(f's_mul_i32 s55, s38, {VR_SLOT}')
        e.I('s_add_u32 s55, s55, s57')
        if opt.fresh:
            e.I(f's_mul_i32 s41, s30, {PART_SLOT}')
            e.I(f's_add_u32 s41, s41, {SCRATCH + 0x400000 - PART + 0x200000}')
        else:
            e.I(f's_mul_i32 s41, s38, {PART_SLOT}')
        e.I('s_add_u32 s42, s41, s60')
        e.I('s_add_u32 s41, s41, s59')
        if opt.fresh:
            e.I('s_lshr_b32 s47, s41, 8')
            e.I('s_not_b32 s47, s47')
            e.I('s_and_b32 s47, s47, 8192')
            e.I('s_xor_b32 s41, s41, s47')
        e.I('s_xor_b32 s47, s41, 8192')
        e.I(f's_mul_i32 s43, s39, {PART_SLOT}')
        e.I('s_add_u32 s43, s43, s60')
        e.I('s_add_u32 s49, s30, 1')
        e.I('s_and_b32 s44, s49, 3')
        e.I('s_xor_b32 s45, s44, 2')
        e.I(f's_mul_i32 s44, s44, {MEM_SLOT}')
        e.I('s_add_u32 s44, s44, s61')
        e.I(f's_mul_i32 s45, s45, {MEM_SLOT}')
        e.I('s_add_u32 s45, s45, s61')
        e.I(f's_and_b32 s46, s49, {RD-1}')
        e.I(f's_mul_i32 s46, s46, {SEG_QX}')
        e.I('s_add_u32 s46, s46, s62')
        e.I(f's_add_u32 s65, s46, {KX}')
        e.I(f's_add_u32 s46, s46, {VX}')
        e.I('s_add_u32 s56, s46, 4096')
        e.I('s_add_u32 s64, s46, 8192')
        e.I('s_add_u32 s66, s65, 4096')
        e.I('s_add_u32 s67, s65, 8192')
        e.I('s_lshl_b32 s50, s49, 11')
        e.I('s_add_u32 s50, s50, s63')
        pl, pd, fr, hl, hd = e.lab('Lxp'), e.lab('Lxd'), e.lab('Lxf'), e.lab('Lhp'), e.lab('Lhd')
        def probe(lp, dn, va, so, bad):
            e.I('s_mov_b64 exec, 0xfff')
            e.I(f'buffer_load_dword v{T0}, v{va}, {WS}, {so} offen sc1')
            e.L(lp)
            for a_, b_ in ((T0, T0 + 1), (T0 + 1, T0)):
                e.I(f'buffer_load_dword v{b_}, v{va}, {WS}, {so} offen sc1')
                e.I('s_waitcnt vmcnt(1)')
                e.I(f'v_cmp_eq_u32 vcc, {bad}, v{a_}')
                e.I(f's_cbranch_vccz {dn}')
            e.I('s_sub_u32 s31, s31, 1')
            e.I(f's_cbranch_scc0 {lp}')
            e.I('s_mov_b32 s31, 2')
            e.I('s_branch L_fail')
        e.I(f's_mov_b32 s31, {TMO}')
        probe(hl, hd, 12, 's50', 0)
        xp = e.lab('Lxq')
        e.L(xp)
        probe(pl, pd, 9, 's40', -1)
        e.L(hd)
        if opt.hdelay: e.I(f's_nop {opt.hdelay - 1}')
        if not opt.heads: e.I(f's_branch {xp}')
        e.L(pd)
        e.I('s_mov_b64 exec, -1')
        TS(e, 1)
        if opt.pdiag: e.I('s_add_u32 s94, s94, 1')
        e.L(fr)
        for p in range(6):
            e.I(f'buffer_load_dwordx4 {vr(XF+4*p)}, v2, {WS}, {"s40" if p < 4 else "s54"} offen offset:{(p%4)*1024} sc1')
        FQ = CI + 23
        def vm_loads():
            for q in range(3):
                e.I(f'buffer_load_dwordx4 {vr(VMF+4*q)}, v2, {WS}, s55 offen offset:{q*1024} sc1')
        vp = opt.vmpos
        nvm = 0
        if vp == 0: vm_loads(); nvm = 3
        for p in range(6):
            x = vr(XF + 4*p)
            e.I(f's_waitcnt vmcnt({5-p+nvm})')
            e.I(f'{MFMA} {vr(S+4)}, {vr(KXF+4*p)}, {x}, {0 if p == 0 else vr(S+4)}')
            e.I(f'{MFMA} {vr(S+8)}, {vr(KXF+24+4*p)}, {x}, {0 if p == 0 else vr(S+8)}')
            e.I(f'{MFMA} {vr(S)}, {x}, {x}, {vr(CI) if p == 0 else vr(S)}')
            if vp == p + 1: vm_loads(); nvm = 3
            r = XF + 4 * p
            if p == 0:
                e.I(f'v_max3_u32 v{T0+2}, v{r}, v{r+1}, v{r+2}')
                e.I(f'v_max_u32 v{T0+2}, v{T0+2}, v{r+3}')
            else:
                e.I(f'v_max3_u32 v{T0+2}, v{T0+2}, v{r}, v{r+1}')
                e.I(f'v_max3_u32 v{T0+2}, v{T0+2}, v{r+2}, v{r+3}')
        e.I(f'v_cmp_eq_u32 vcc, -1, v{T0+2}')
        ok = e.lab('Lxo')
        e.I(f's_cbranch_vccz {ok}')
        e.I('s_sub_u32 s31, s31, 1')
        e.I('s_nop 7')
        e.I(f's_cbranch_scc0 {xp}')
        e.I('s_mov_b32 s31, 2')
        e.I('s_branch L_fail')
        e.L(ok)
        TS(e, 2)
        vl, vd = e.lab('Lvp'), e.lab('Lvd')
        e.L(vl)
        e.I('s_waitcnt vmcnt(0)')
        check_sent(e, range(VMF, VMF + 12), T0 + 2, T0 + 3)
        e.I(f's_cbranch_vccz {vd}')
        vm_loads()
        e.I('s_sub_u32 s31, s31, 1')
        e.I(f's_cbranch_scc0 {vl}')
        e.I('s_mov_b32 s31, 3')
        e.I('s_branch L_fail')
        e.L(vd)
        TS(e, 3)
        PW = 2 if opt.pbf else 4
        if opt.rpos == 0: e.I(f'buffer_store_dwordx{PW} {vr(SENT,PW)}, v13, {WS}, s43 offen sc1')
        ROR8 = 'row_ror:8 row_mask:0xf bank_mask:0xf'
        sm = [f'{SMF} {vr(DM+4*ct)}, {vr(VMF+4*m)}, {ar((ct*6+2*m)*4,8)}, v{IDX}' for m in range(3) for ct in range(4)]
        t = T0 + 2
        V = []
        for r in range(4): V.append(f'v_mov_b32_dpp v{S+4+r}, v{S+8+r} row_shr:8 row_mask:0xf bank_mask:0xc')
        V += [f'v_max3_f32 v{t}, v{S}, v{S+1}, v{S+2}', f'v_max3_f32 v{t+1}, v{S+3}, v{S+4}, v{S+5}', f'v_max3_f32 v{t}, v{t}, v{S+6}, v{S+7}', f'v_max_f32 v{t}, v{t}, v{t+1}',
              '*', '*', f'v_max_f32_dpp v{t}, v{t}, v{t} {ROR8}', f'v_mov_b32 v{t+1}, v{t}', '*', '*', f'v_permlane16_swap_b32 v{t}, v{t+1}', f'v_max_f32 v{t}, v{t}, v{t+1}',
              f'v_mov_b32 v{t+1}, v{t}', '*', '*', f'v_permlane32_swap_b32 v{t}, v{t+1}', f'v_max_f32 v{t}, v{t}, v{t+1}', f'v_mul_f32 v{t}, s53, v{t}']
        order = [4, 5, 6, 7, 0, 1, 2, 3]
        for i in order: V.append(f'v_fma_f32 v{S+i}, v{S+i}, s52, v{t}')
        for n_, i in enumerate(order):
            V.append(f'v_exp_f32 v{S+i}, v{S+i}')
        bulk = [f'buffer_load_dwordx4 {vr(VXF+4*q)}, v2, {WS}, {("s46", "s56", "s64")[q//4]} offen offset:{(q%4)*1024} sc1' for q in (0, 6, 1, 7, 2, 8, 3, 9, 4, 10, 5, 11)]
        bulk += [f'buffer_load_dwordx4 {vr(KXF+4*q)}, v2, {WS}, {("s65", "s66", "s67")[q//4]} offen offset:{(q%4)*1024} sc1' for q in range(12)]
        kin = bulk[:opt.kin]; kp = bulk[opt.kin:opt.kin + opt.kp]; kc = bulk[opt.kin + opt.kp:]
        if opt.nobulk & 1: kin = []
        if opt.nobulk & 2: kp = []
        if opt.nobulk & 4: kc = []
        def ld():
            if kin: e.I(kin.pop(0))
        for x_ in sm[:opt.smpre]: e.I(x_)
        rest = sm[opt.smpre:]
        cost = 0; prev = None; nld = 0
        for x_ in V:
            if x_ == '*':
                if prev == '*' or cost == 0 or not rest: ld()
                else: e.I(rest.pop(0)); cost = 0
            else:
                e.I(x_); cost += 2 if 'v_exp' in x_ else 1
                if cost >= opt.smgap and rest: e.I(rest.pop(0)); cost = 0
                elif not rest and cost >= opt.ldgap: ld(); cost = 0
            prev = x_
        for x_ in rest: e.I(x_)
        e.I(f'v_cvt_pk_bf16_f32 v{PB}, v{S+4}, v{S+5}')
        e.I(f'v_cvt_pk_bf16_f32 v{PB+1}, v{S+6}, v{S+7}')
        e.I(f'v_cvt_pk_bf16_f32 v{PM}, v{S}, v{S+1}')
        e.I(f'v_cvt_pk_bf16_f32 v{PM+1}, v{S+2}, v{S+3}')
        e.I(f'v_mov_b32_dpp v{PB+2}, v{PB} {ROR8}')
        e.I(f'v_mov_b32_dpp v{PB+3}, v{PB+1} {ROR8}')
        e.I(f'v_mov_b32 v{t}, v{PM}')
        e.I(f'v_mov_b32 v{t+1}, v{PM+1}')
        TS(e, 4)
        def cvm(ct):
            e.I(f'v_cvt_pk_bf16_f32 v{VWM+2*ct}, v{DM+4*ct}, v{DM+4*ct+1}')
            e.I(f'v_cvt_pk_bf16_f32 v{VWM+2*ct+1}, v{DM+4*ct+2}, v{DM+4*ct+3}')
        SUM = S
        e.I(f'{MFMA} {vr(OUT)}, {vr(VWX)}, {vr(PB)}, 0')
        e.I(f'v_permlane32_swap_b32 v{t}, v{PM}')
        e.I(f'v_permlane32_swap_b32 v{t+1}, v{PM+1}')
        e.I(f'{MFMA} {vr(SUM)}, {ar(AONE)}, {vr(PB)}, 0')
        cvm(0)
        e.I(f'{MFMA} {vr(OUT+4)}, {vr(VWX+4)}, {vr(PB)}, 0')
        cvm(1)
        e.I(f'{MFMA} {vr(OUT+8)}, {vr(VWX+8)}, {vr(PB)}, 0')
        cvm(2)
        e.I(f'{MFMA} {vr(OUT+12)}, {vr(VWX+12)}, {vr(PB)}, 0')
        cvm(3)
        e.I(f'{MFMA16} {vr(OUT)}, {vr(VWM,2)}, {vr(PM,2)}, {vr(OUT)}')
        ld()
        e.I(f'{MFMA16} {vr(SUM)}, {ar(AHALF,2)}, {vr(PM,2)}, {vr(SUM)}')
        ld()
        for ct in range(1, 4):
            e.I(f'{MFMA16} {vr(OUT+4*ct)}, {vr(VWM+2*ct,2)}, {vr(PM,2)}, {vr(OUT+4*ct)}')
            if ct < 3: ld()
        e.I(f'ds_write_b128 v6, {vr(OUT)}')
        e.I(f'v_rcp_f32 v{t}, v{SUM}')
        e.I(f'ds_write_b128 v6, {vr(OUT+4)} offset:2048')
        e.I(f'ds_write_b32 v10, v{t}')
        e.I(f'ds_write_b128 v6, {vr(OUT+8)} offset:4096')
        e.I(f'ds_write_b128 v6, {vr(OUT+12)} offset:6144')
        while kin: ld()
        e.I('s_waitcnt lgkmcnt(0)')
        e.I('s_barrier')
        e.I(f'ds_read_b64 {vr(t,2)}, v11')
        e.I(f'ds_read_b128 {vr(S)}, v7')
        e.I(f'ds_read_b128 {vr(S+4)}, v7 offset:512')
        e.I('s_waitcnt lgkmcnt(1)')
        for k in range(4): e.I(f'v_mul_f32 v{S+k}, v{S+k}, v{t}')
        e.I('s_waitcnt lgkmcnt(0)')
        for k in range(4): e.I(f'v_fmac_f32 v{S+k}, v{S+4+k}, v{t+1}')
        for k in range(4): e.I(f'v_add_f32_dpp v{S+k}, v{S+k}, v{S+k} {ROR8}')
        if opt.pbf:
            e.I(f'v_cvt_pk_bf16_f32 v{S+4}, v{S}, v{S+1}')
            e.I(f'v_cvt_pk_bf16_f32 v{S+5}, v{S+2}, v{S+3}')
            e.I(f'v_min_u32 v{S+4}, -2, v{S+4}')
            e.I(f'v_min_u32 v{S+5}, -2, v{S+5}')
            e.I(f'buffer_store_dwordx2 {vr(S+4,2)}, v13, {WS}, s42 offen sc1')
        else:
            e.I(f'buffer_store_dwordx4 {vr(S)}, v13, {WS}, s42 offen sc1')
        TS(e, 5)
        if opt.rpos == 2: e.I(f'buffer_store_dwordx{PW} {vr(SENT,PW)}, v13, {WS}, s43 offen sc1')
        if opt.pspin:
            for k in range(16): e.I(f'v_mov_b32 v{PA+k}, -1')
            for k in range(4): e.I(f'v_mov_b32_dpp v{PA+k}, v{S+k} quad_perm:[0,1,2,3] row_mask:0xf bank_mask:0x3')
        elif opt.pbf:
            e.I(f'v_mov_b32 v{PA}, 0'); e.I(f'v_mov_b32 v{PA+1}, 0')
            for k in range(4): e.I(f'v_cndmask_b32 v{T0+8+k}, v{S+k}, 0, s[68:69]')
        else:
            for k in range(4): e.I(f'v_mov_b32 v{PA+k}, v{S+k}')
        for x_ in kp: e.I(x_)
        if opt.pdelay: e.I(f's_sleep {opt.pdelay}')
        def shot():
            e.I('s_mov_b64 exec, s[68:69]')
            e.I(f'buffer_load_dwordx{PW} {vr(PA,PW)}, v{PAD}, {WS}, s41 offen sc1')
            e.I('s_mov_b64 exec, -1')
            for m in range(1, 4): e.I(f'buffer_load_dwordx{PW} {vr(PA+PW*m,PW)}, v{PAD+m}, {WS}, s41 offen sc1')
        ql, qd = e.lab('Lpp'), e.lab('Lpd')
        e.L(ql)
        shot()
        if opt.pspin:
            for k in range(opt.pspin):
                check_sent(e, range(PA, PA + 16), T0, T0 + 1)
                e.I(f's_cbranch_vccz {qd}')
        else:
            if opt.pdiag:
                e.I('s_waitcnt vmcnt(4)')
                e.I('s_cmp_eq_u32 s94, 1')
                pass
            e.I('s_waitcnt vmcnt(0)')
            check_sent(e, range(PA, PA + 4*PW), T0, T0 + 1)
            e.I(f's_cbranch_vccz {qd}')
        e.I('s_sub_u32 s31, s31, 1')
        e.I(f's_cbranch_scc0 {ql}')
        e.I('s_mov_b32 s31, 4')
        e.I('s_branch L_fail')
        e.L(qd)
        TS(e, 6)
        if opt.pbf:
            for m in range(4):
                for k in range(4): e.I(f'v_dot2c_f32_bf16 v{T0+8+k}, {("s70", "s71")[k&1]}, v{PA+2*m+(k>>1)}')
            e.I('s_nop 2')
        else:
            for k in range(4):
                e.I(f'v_add_f32 v{T0+4+k}, v{PA+k}, v{PA+4+k}')
                e.I(f'v_add_f32 v{T0+8+k}, v{PA+8+k}, v{PA+12+k}')
            for k in range(4):
                e.I(f'v_add_f32 v{T0+8+k}, v{T0+4+k}, v{T0+8+k}')
        for k in range(2): e.I(f'v_add_f32_dpp v{T0+4+k}, v{T0+8+k}, v{T0+8+k} row_ror:8 row_mask:0xf bank_mask:0x3')
        for k in range(2): e.I(f'v_add_f32_dpp v{T0+4+k}, v{T0+10+k}, v{T0+10+k} row_ror:8 row_mask:0xf bank_mask:0xc ; merge')
        e.I(f'v_cvt_pk_bf16_f32 v{T0+4}, v{T0+4}, v{T0+5}')
        e.I(f'v_min_u32 v{T0+4}, -2, v{T0+4}')
        e.I(f'buffer_store_dword v{T0+4}, v8, {WS}, s44 offen{fl}')
        TS(e, 7)
        e.I(f'buffer_store_dword v{SENT}, v8, {WS}, s45 offen{fl}')
        if opt.mbar: e.I('s_barrier')
        nvx = max(0, 12 - opt.kin - opt.kp)
        for x_ in kc[:nvx]: e.I(x_)
        vw_x(None, kc[nvx:], nvx)
        TS(e, 8)
        TSflush(e, 's30', 244, 245)
        e.I('s_add_u32 s30, s30, 1')
        e.I('s_cmp_lt_u32 s30, 63')
        e.I(f's_cbranch_scc1 {top}')
        e.I('s_endpgm')

def role_xw(e):
    OF = 16
    D = 112
    T0 = 160; ONE = 252
    e.I('s_sub_u32 s24, s21, 22')
    srd(e, 8, 66, 6144 * 1280)
    e.I(f's_mul_i32 s28, s20, {768*1280}')
    e.I('s_lshl_b32 s29, s24, 8')
    e.I('s_add_u32 s28, s28, s29')
    e.I('s_add_u32 s29, s28, 128')
    e.I(f'v_lshlrev_b32 v{ONE+1}, 2, v1')
    e.I('s_lshl_b32 s38, s20, 8')
    e.I(f's_add_u32 s38, s38, {FLGQ}')
    if opt.xlate & 1: wait_first(e, T0)
    if opt.touch:
        jobs = []
        for sl in range(RD):
            if sl >= 2: jobs += [(b_ + sl * SEG_QX, 12288, 96) for b_ in (KX, VX, QX)] + [(XP + sl * SEG_XP, 6144, 48), (VM + sl * SEG_VM, 3072, 24)]
            if sl >= 2: jobs += [(OX + (sl - 2) * SEG_QX, 12288, 96)]
        jobs += [(OX + sl * SEG_QX, 12288, 96) for sl in (6, 7)]
        e.I('s_lshl_b32 s40, s20, 2')
        e.I('s_add_u32 s40, s40, s22')
        touch_jobs(e, jobs, 's24', 5, 's40', 16)
    pass
    load_weights(e, [('s[8:11]', 's28', 0, 768), ('s[8:11]', 's29', 96, 768)], 1280, 256, True, 3, 4)
    e.I(f'v_lshlrev_b32 v{ONE+1}, 2, v1')
    e.I('s_lshl_b32 s38, s20, 2')
    e.I('s_add_u32 s38, s38, s22')
    e.I('s_lshl_b32 s39, s38, 2')
    e.I('v_lshlrev_b32 v3, 7, v1')
    e.I('v_add_u32 v3, s39, v3')
    e.I(f'v_mov_b32 v{ONE}, 1')
    e.I('s_mul_i32 s62, s22, 12288')
    e.I('s_mul_i32 s63, s38, 12288')
    e.I(f's_add_u32 s63, s63, {OX}')
    e.I('s_mul_i32 s64, s20, 40960')
    e.I('s_lshl_b32 s65, s24, 2')
    e.I('s_add_u32 s65, s65, s22')
    e.I('s_lshl_b32 s65, s65, 10')
    e.I('s_add_u32 s64, s64, s65')
    e.I(f's_add_u32 s64, s64, {PX}')
    e.I('s_lshl_b32 s66, s24, 8')
    e.I(f's_add_u32 s66, s66, {FLGPX}')
    def pxflag():
        e.I('s_mov_b64 exec, 3')
        e.I(f'buffer_store_dword v{ONE}, v3, {WS}, s54 offen sc1')
        e.I('s_mov_b64 exec, s[60:61]')
        e.I(f'buffer_store_dword v{ONE}, v6, {WS}, s53 offen sc1')
        e.I('s_mov_b64 exec, -1')
    wait_reg(e, T0)
    top, nof, late, nxt_, last = e.lab('Lxt'), e.lab('Lxn'), e.lab('Lxl'), e.lab('Lxx'), e.lab('Lxe')
    e.I('s_lshl_b32 s67, s20, 6')
    e.I('s_lshl_b32 s38, s22, 2')
    e.I('s_add_u32 s67, s67, s38')
    e.I(f's_add_u32 s67, s67, {FLGOX}')
    e.I('s_lshl_b32 s38, s20, 5')
    e.I('s_add_u32 s38, s38, s24')
    e.I('s_lshl_b32 s38, s38, 2')
    e.I('v_mov_b32 v6, s38')
    e.I('v_mov_b32 v4, 0')
    e.I('v_mov_b32 v5, v2')
    def dma(sn):
        e.I(f's_and_b32 s55, {sn}, {RD-1}')
        e.I(f's_mul_i32 s55, s55, {SEG_QX}')
        e.I('s_add_u32 s55, s55, s63')
        e.I(f's_and_b32 s56, {sn}, 1')
        e.I('s_mul_i32 s56, s56, 49152')
        e.I('s_add_u32 s56, s56, s62')
        for m in range(12):
            e.I(f's_add_u32 m0, s56, {m*1024}')
            e.I(f'buffer_load_dwordx4 v2, {WS}, s55 offen sc1 lds')
            if m < 11: e.I('s_add_u32 s55, s55, 1024')
    e.I('s_mov_b32 s30, 0')
    wait_flags(e, 4, 's67', 1, T0, 5, sleep=opt.xsleep)
    dma('s30')
    e.L(top)
    TS(e, 0)
    e.I('s_add_u32 s58, s30, 1')
    e.I('s_min_u32 s57, s58, 63')
    e.I('s_lshl_b32 s57, s57, 9')
    e.I('s_add_u32 s57, s57, s67')
    e.I(f'buffer_load_dword v{T0}, v4, {WS}, s57 offen sc1')
    e.I('s_waitcnt vmcnt(0)')
    e.I('s_cmp_eq_u32 s30, 0')
    e.I(f's_cbranch_scc1 {nof}')
    e.I('s_cmp_lg_u32 s59, 0')
    e.I(f's_cbranch_scc1 {nof}')
    pxflag()
    e.L(nof)
    e.I(f'v_readfirstlane_b32 s59, v{T0}')
    e.I('s_barrier')
    TS(e, 1)
    e.I('s_cmp_eq_u32 s30, 63')
    e.I('s_cselect_b32 s59, 0, s59')
    e.I('s_cmp_eq_u32 s59, 0')
    e.I(f's_cbranch_scc1 {late}')
    dma('s58')
    e.L(late)
    e.I(f's_mul_i32 s50, s30, {SEG_PX}')
    e.I('s_add_u32 s50, s50, s64')
    e.I('s_add_u32 s51, s50, 20480')
    e.I('s_mul_i32 s54, s30, 1280')
    e.I('s_add_u32 s54, s54, s66')
    e.I('s_and_b32 s53, s30, 3')
    e.I('s_lshl_b32 s53, s53, 10')
    e.I(f's_add_u32 s53, s53, {HINT}')
    e.I(f's_cmp_ge_u32 s30, {opt.cwarm}')
    e.I('s_cselect_b32 s60, 1, 0')
    e.I('s_cmp_eq_u32 s22, 0')
    e.I('s_cselect_b32 s60, s60, 0')
    e.I('s_mov_b32 s61, 0')
    TS(e, 2)
    PF = 6
    def rd(kk):
        hl, p = kk // 6, kk % 6
        for qt in range(2):
            e.I(f'ds_read_b128 {vr(OF + ((2*kk+qt) % 24)*4)}, v5 offset:{hl*12288 + (qt*6+p)*1024}')
    for kk in range(PF): rd(kk)
    for kk in range(24):
        nxt = min(24, kk + PF) - (kk + 1)
        e.I(f's_waitcnt lgkmcnt({2*nxt})')
        for qt in range(2):
            for b in range(2):
                d = vr(D + 4*(qt*2+b))
                e.I(f'{MFMA} {d}, {ar(96*b+4*kk)}, {vr(OF + ((2*kk+qt) % 24)*4)}, {0 if kk == 0 else d}')
        if kk + PF < 24: rd(kk + PF)
        if kk == 16: e.I(f'buffer_load_dword v{T0}, v4, {WS}, s57 offen sc1')
    sc = e.lab('Lxs')
    e.I('s_cmp_lg_u32 s59, 0')
    e.I(f's_cbranch_scc1 {sc}')
    e.I('s_cmp_eq_u32 s30, 63')
    e.I(f's_cbranch_scc1 {sc}')
    e.I('s_waitcnt vmcnt(0)')
    e.I(f'v_readfirstlane_b32 s59, v{T0}')
    e.I('s_cmp_eq_u32 s59, 0')
    e.I(f's_cbranch_scc1 {sc}')
    dma('s58')
    e.L(sc)
    for qt, so in enumerate(('s50', 's51')):
        for k in range(4): e.I(f'v_cvt_pk_bf16_f32 v{D+16+4*qt+k}, v{D+8*qt+2*k}, v{D+8*qt+2*k+1}')
        e.I(f'buffer_store_dwordx4 {vr(D+16+4*qt)}, v2, {WS}, {so} offen sc1')
    e.I('v_xor_b32 v5, 49152, v5')
    TS(e, 3)
    TSflush(e, 's30')
    e.I('s_cmp_eq_u32 s30, 63')
    e.I(f's_cbranch_scc1 {last}')
    e.I('s_cmp_lg_u32 s59, 0')
    e.I('s_mov_b32 s59, 0')
    e.I(f's_cbranch_scc1 {nxt_}')
    e.I(f'buffer_load_dword v{T0}, v4, {WS}, s57 offen sc1')
    e.I('s_waitcnt vmcnt(0)')
    e.I(f'v_readfirstlane_b32 s38, v{T0}')
    e.I('s_cmp_lg_u32 s38, 0')
    sl2 = e.lab('Lxq')
    e.I(f's_cbranch_scc1 {sl2}')
    pxflag()
    e.I('s_mov_b32 s59, 1')
    wait_flags(e, 4, 's57', 1, T0, 5, sleep=opt.xsleep)
    e.L(sl2)
    dma('s58')
    e.L(nxt_)
    e.I('s_mov_b32 s30, s58')
    e.I(f's_branch {top}')
    e.L(last)
    e.I('s_waitcnt vmcnt(0)')
    pxflag()
    e.I('s_endpgm')

def role_att(e):
    fl = ''
    QF, XPF, KF, VXF, VMF = 16, 64, 88, 136, 184
    S, P, T0 = 208, 220, 226
    PL = 196
    DO = 0
    C0, C1 = 232, 236
    ONE = 252
    e.I('s_sub_u32 s25, s21, 27')
    e.I('s_lshl_b32 s26, s20, 2')
    e.I('s_add_u32 s26, s26, s22')
    e.I(f's_mov_b32 s52, {SC_L2E:#x}'); e.I(f's_mov_b32 s53, {SC_L2E | 0x80000000:#x}')
    e.I(f'v_lshlrev_b32 v{ONE+1}, 2, v1')
    e.I('s_lshl_b32 s38, s22, 2')
    e.I(f'v_mov_b32 v{ONE+2}, s38')
    e.I(f'v_mov_b32 v{ONE}, 1')
    lane_ig(e, 14, 15)
    e.I(f'v_mov_b32 v3, {NEG_BIG:#x}')
    e.I('v_cmp_gt_u32 vcc, 32, v1')
    e.I(f'v_cndmask_b32 v{C0}, 0, v3, vcc')
    for k in range(1, 4): e.I(f'v_mov_b32 v{C0+k}, v{C0}')
    e.I('v_lshlrev_b32 v5, 2, v15')
    for r in range(4):
        e.I(f'v_add_u32 v6, {r}, v5')
        e.I('v_cmp_gt_u32 vcc, v6, v14')
        e.I(f'v_cndmask_b32 v{C1+r}, 0, v3, vcc')
    e.I('s_mul_i32 s58, s26, 6144')
    e.I('v_lshlrev_b32 v10, 7, v1')
    e.I('s_lshl_b32 s59, s22, 14')
    e.I('v_and_b32 v4, 3, v1')
    e.I('v_lshlrev_b32 v4, 8, v4')
    e.I('v_bfe_u32 v5, v1, 2, 3')
    e.I('v_lshl_add_u32 v5, v5, 4, v4')
    e.I('v_add_u32 v5, s59, v5')
    e.I('v_lshrrev_b32 v6, 2, v1')
    e.I('v_lshl_add_u32 v4, v6, 4, v4')
    e.I('v_add_u32 v4, s59, v4')
    e.I('v_cmp_gt_u32 vcc, 32, v1')
    for j in range(3):
        off = lambda kk: 12288 + (kk % 3) * 1024 + (kk // 3) * 128
        e.I(f'v_mov_b32 v6, {off(2*j+1)}')
        e.I(f'v_mov_b32 v11, {off(2*j)}')
        e.I('v_cndmask_b32 v6, v6, v11, vcc')
        e.I(f'v_add_u32 v{7+j}, v5, v6')
    wait_reg(e, T0)
    e.I('v_lshrrev_b32 v12, 2, v1')
    e.I('v_lshlrev_b32 v12, 8, v12')
    e.I('v_and_b32 v13, 3, v1')
    e.I('v_lshl_add_u32 v12, v13, 2, v12')
    e.I('s_lshl_b32 s38, s20, 4')
    e.I('v_add_u32 v12, s38, v12')
    e.I('s_cmp_lg_u32 s23, 0')
    e.I('s_cbranch_scc1 L_atts')
    for slow in (False, True):
        fl = ' sc1' if slow else ''
        if slow: e.L('L_atts')
        top = e.lab('Lat')
        e.I('s_mov_b32 s30, s25')
        e.L(top)
        TS(e, 0)
        e.I('s_add_u32 s51, s30, 2')
        e.I('s_lshl_b32 s51, s51, 5')
        e.I('s_add_u32 s51, s51, s26')
        e.I('s_lshl_b32 s51, s51, 6')
        e.I(f's_add_u32 s51, s51, {FLGQ}')
        e.I(f's_and_b32 s42, s30, {RD-1}')
        e.I(f's_mul_i32 s40, s42, {SEG_QX}')
        e.I('s_lshl_b32 s41, s58, 1')
        e.I('s_add_u32 s40, s40, s41')
        e.I(f's_mul_i32 s41, s42, {SEG_XP}')
        e.I('s_add_u32 s41, s41, s58')
        nbp = e.lab('Lab')
        e.I(f's_cmp_lt_u32 s30, {RD}')
        e.I(f's_cbranch_scc1 {nbp}')
        e.I(f's_sub_u32 s50, s30, {RD}')
        e.I('s_mul_i32 s50, s50, 1280')
        e.I(f's_add_u32 s50, s50, {FLGPX}')
        wait_flags(e, 12, 's50', 0xfffff, T0, 14, sleep=16)
        e.L(nbp)
        wait_flags(e, ONE + 1, 's51', 0xfff, T0, 6, sleep=opt.asleep)
        TS(e, 1)
        def loads(dst, n, sbase, add, w=4, va=2):
            e.I(f's_add_u32 s48, {sbase}, {add}')
            per = 4096 // (256 * w)
            for q in range(n):
                if q and q % per == 0: e.I('s_add_u32 s48, s48, 4096')
                e.I(f'buffer_load_dwordx{w} {vr(dst+w*q, w)}, v{va}, {WS}, s48 offen offset:{(q%per)*256*w} sc1')
        loads(XPF, 6, 's41', XP)
        loads(KF, 6, 's40', KX)
        loads(QF, 6, 's40', QX)
        e.I('s_lshr_b32 s42, s41, 1')
        e.I(f's_add_u32 s48, s42, {VM}')
        for q in range(3):
            e.I(f's_add_u32 m0, s59, {12288 + q*1024}')
            e.I(f'buffer_load_dwordx4 v2, {WS}, s48 offen sc1 lds')
            e.I('s_add_u32 s48, s48, 1024')
        e.I(f's_add_u32 s48, s40, {VX}')
        for q in range(12):
            e.I(f's_add_u32 m0, s59, {q*1024}')
            e.I(f'buffer_load_dwordx4 v2, {WS}, s48 offen sc1 lds')
            e.I('s_add_u32 s48, s48, 1024')
        loads(KF + 24, 6, 's40', KX + 6144)
        loads(QF + 24, 6, 's40', QX + 6144)
        NT = 0
        for qt in range(2):
            e.I(f's_waitcnt vmcnt({(27 if qt == 0 else 6) + NT})')
            if qt == 0: TS(e, 2)
            for p in range(6):
                q = vr(QF + 24*qt + 4*p)
                e.I(f'{MFMA} {vr(S)}, {vr(XPF+4*p)}, {q}, {vr(C0) if p == 0 else vr(S)}')
                e.I(f'{MFMA} {vr(S+4)}, {vr(KF+4*p)}, {q}, {(vr(C1) if qt == 0 else 0) if p == 0 else vr(S+4)}')
                if qt == 1: e.I(f'{MFMA} {vr(S+8)}, {vr(KF+24+4*p)}, {q}, {vr(C1) if p == 0 else vr(S+8)}')
            if qt == 0:
                for k in range(4): e.I(f'v_mov_b32 v{S+8+k}, v3')
            softmax12(e, S, P, T0)
            e.I(f'v_mov_b32 v{PL}, 0')
            e.I(f'v_mov_b32 v{PL+1}, 0')
            e.I(f'v_mov_b32 v{T0}, v{P}')
            e.I(f'v_mov_b32 v{T0+1}, v{P+1}')
            e.I(f'v_permlane32_swap_b32 v{T0}, v{PL}')
            e.I(f'v_permlane32_swap_b32 v{T0+1}, v{PL+1}')
            e.I(f's_add_u32 s48, s40, {OX + qt*6144}')
            e.I('s_add_u32 s49, s48, 4096')
            if qt == 0:
                e.I(f's_waitcnt vmcnt({12 + NT})')
                for j in range(3):
                    for t in range(2):
                        e.I(f'ds_read_b64_tr_b16 {vr(VMF+4*j+2*t,2)}, v{7+j} offset:{t*8}')
                for T in range(12):
                    for rt in range(2):
                        e.I(f'ds_read_b64_tr_b16 {vr(VXF+4*T+2*rt,2)}, v4 offset:{rt*6144 + (T>>1)*1024 + (T&1)*8}')
                e.I('s_waitcnt lgkmcnt(0)')
            def fin(p):
                dp = DO + 8 * (p % 2); op_ = QF + 24*qt + 4 * p
                for k in range(8): e.I(f'v_accvgpr_read_b32 v{240+k}, a{dp+k}')
                for k in range(4): e.I(f'v_cvt_pk_bf16_f32 v{op_+k}, v{240+2*k}, v{240+2*k+1}')
                e.I(f'buffer_store_dwordx4 {vr(op_)}, v2, {WS}, {"s48" if p < 4 else "s49"} offen offset:{(p%4)*1024}{fl}')
            for p in range(6):
                d = DO + 8 * (p % 2)
                for t in range(2):
                    e.I(f'{MFMA16} {ar(d+4*t)}, {vr(VMF+4*(p>>1)+2*t,2)}, {vr(PL,2) if p % 2 == 0 else vr(P,2)}, 0')
                for t in range(2):
                    e.I(f'{MFMA} {ar(d+4*t)}, {vr(VXF+4*(2*p+t))}, {vr(P+2)}, {ar(d+4*t)}')
                if p > 0: fin(p - 1)
            fin(5)
        e.I('s_lshl_b32 s50, s30, 3')
        e.I('s_add_u32 s50, s50, s20')
        e.I('s_lshl_b32 s50, s50, 6')
        e.I(f's_add_u32 s50, s50, {FLGOX}')
        e.I('s_waitcnt vmcnt(0)')
        set_flag(e, ONE + 2, 's50', ONE, fl)
        TS(e, 3)
        TSflush(e, 's30', 230, 231)
        e.I('s_add_u32 s30, s30, 2')
        e.I('s_cmp_lt_u32 s30, 64')
        e.I(f's_cbranch_scc1 {top}')
        e.I('s_endpgm')

F_LX, F_LH = 0, 98304
def role_ffn(e):
    ACC2 = 0
    ACC1 = 16
    BF = 48
    HP = 80
    WR = 96
    NW = 40
    e.I('s_sub_u32 s26, s21, 29')
    e.I('s_mul_i32 s25, s20, 3')
    e.I('s_add_u32 s26, s26, s25')
    e.I('s_mov_b32 s24, s26')
    srd(e, 8, 56, 640 * 3072); srd(e, 12, 58, 1536 * 1280)
    if opt.xlate & 4: wait_first(e, 16)
    transpose_w(e, 's26')
    e.I('s_waitcnt vmcnt(0)')
    e.I('s_barrier')
    count_up(e, 3, D_TR)
    wait_count(e, 3, D_TR, 24, 16)
    wait_reg(e, 16, 32)
    e.L('L_ffn_task')
    e.I('s_lshl_b32 s38, s24, 2')
    e.I('s_add_u32 s38, s38, s22')
    e.I('s_mul_i32 s39, s38, 20480')
    e.I(f's_add_u32 s39, s39, {XN}')
    e.I('s_mul_i32 s40, s22, 20480')
    for m in range(20):
        e.I(f's_add_u32 m0, s40, {m*1024}')
        e.I(f'buffer_load_dwordx4 v2, {WS}, s39 offen lds')
        e.I('s_add_u32 s39, s39, 1024')
    for k in range(160): e.I(f'v_accvgpr_write_b32 a{k}, 0')
    e.I('s_mul_i32 s41, s22, 40960')
    e.I(f's_add_u32 s41, s41, {W1F}')
    e.I(f's_mul_i32 s42, s22, {10*48*1024}')
    e.I(f's_add_u32 s42, s42, {W2F}')
    e.I('v_add_u32 v3, 20480, v2')
    for u in range(10):
        e.I(f's_mov_b32 s54, {u*48*1024}')
        e.I(f'v_add_u32 v{4+u}, s54, v2')
    e.I(f'v_add_u32 v14, {F_LH}, v2')
    e.I('s_lshl_b32 s38, s22, 12')
    e.I('v_add_u32 v15, s38, v14')
    def wload(idx, adv):
        dst = vr(WR + (idx % NW) * 4)
        if idx < 40:
            kk, u = idx // 2, idx % 2
            e.I(f's_add_u32 s45, {adv[0]}, {(kk//4)*4096}')
            e.I(f'buffer_load_dwordx4 {dst}, v{2+u}, {WS}, s45 offen offset:{(kk%4)*1024}{" nt" if opt.ffnnt else ""}')
        else:
            pp, u = (idx - 40) // 10, (idx - 40) % 10
            e.I(f'buffer_load_dwordx4 {dst}, v{4+u}, {WS}, {adv[1]} offen offset:{pp*1024}{" nt" if opt.ffnnt else ""}')
    for idx in range(NW - 2): wload(idx, ('s41', 's42'))
    e.I(f's_waitcnt vmcnt({NW-2})')
    e.I('s_barrier')
    top = e.lab('Lft')
    TS(e, 0)
    e.I('s_mov_b32 s30, 0')
    e.L(top)
    e.I('s_cmp_lt_u32 s30, 11')
    e.I('s_cselect_b32 s46, 163840, 0')
    e.I('s_cselect_b32 s47, 4096, 0')
    e.I('s_add_u32 s43, s41, s46')
    e.I('s_add_u32 s44, s42, s47')
    D = NW - 2
    def pref(idx):
        j = idx + D
        if j < 80: wload(j, ('s41', 's42'))
        else: wload(j - 80, ('s43', 's44'))
    def rdx(kk):
        for rt in range(4):
            e.I(f'ds_read_b128 {vr(BF + ((kk%2)*4+rt)*4)}, v{2 if rt < 3 else 3} offset:{(rt if rt < 3 else 2)*20480 + kk*1024}')
    rdx(0)
    for kk in range(20):
        if kk + 1 < 20: rdx(kk + 1)
        e.I(f's_waitcnt vmcnt({D-2}) lgkmcnt({4 if kk+1 < 20 else 0})')
        for u in range(2):
            idx = 2 * kk + u
            for rt in range(4):
                d = vr(ACC1 + (u*4+rt)*4)
                e.I(f'{MFMA} {d}, {vr(WR+(idx%NW)*4)}, {vr(BF+((kk%2)*4+rt)*4)}, {0 if kk == 0 else d}')
        pref(2 * kk); pref(2 * kk + 1)
    for rt in range(4):
        for u in range(2):
            d = ACC1 + (u*4+rt)*4
            for k in range(4): e.I(f'v_max_f32 v{d+k}, 0, v{d+k}')
            e.I(f'v_cvt_pk_bf16_f32 v{HP+rt*4+2*u}, v{d}, v{d+1}')
            e.I(f'v_cvt_pk_bf16_f32 v{HP+rt*4+2*u+1}, v{d+2}, v{d+3}')
        e.I(f'ds_write_b128 v15, {vr(HP+rt*4)} offset:{rt*1024}')
    e.I('s_waitcnt lgkmcnt(0)')
    e.I('s_barrier')
    def rdh(pp):
        for rt in range(4):
            e.I(f'ds_read_b128 {vr(BF + ((pp%2)*4+rt)*4)}, v14 offset:{pp*4096 + rt*1024}')
    rdh(0)
    for pp in range(4):
        if pp + 1 < 4: rdh(pp + 1)
        for u in range(10):
            idx = 40 + pp * 10 + u
            w = f's_waitcnt vmcnt({D-1})'
            if u == 0: w += f' lgkmcnt({4 if pp+1 < 4 else 0})'
            e.I(w)
            for rt in range(4):
                d = ar(ACC2 + (u*4+rt)*4)
                e.I(f'{MFMA} {d}, {vr(WR+(idx%NW)*4)}, {vr(BF+((pp%2)*4+rt)*4)}, {d}')
            pref(idx)
    e.I('v_xor_b32 v14, 16384, v14')
    e.I('v_xor_b32 v15, 16384, v15')
    e.I('s_mov_b32 s41, s43')
    e.I('s_mov_b32 s42, s44')
    e.I('s_add_u32 s30, s30, 1')
    e.I('s_cmp_lt_u32 s30, 12')
    e.I(f's_cbranch_scc1 {top}')
    e.I('s_waitcnt vmcnt(0)')
    TS(e, 1)
    e.I('v_lshlrev_b32 v3, 3, v1')
    e.I(f's_mul_i32 s38, s24, {4*40*512}')
    e.I(f's_mul_i32 s39, s22, {10*512}')
    e.I('s_add_u32 s38, s38, s39')
    e.I(f's_add_u32 s38, s38, {G_}')
    e.I(f's_mov_b32 s52, {f2u(-1.4426950408889634):#x}')
    for rt in range(4):
        e.I(f's_add_u32 s39, s38, {rt*40*512}')
        e.I('s_add_u32 s40, s39, 4096')
        for u in range(10):
            t = 16 + ((rt*10+u) % 4) * 16
            a0 = ACC2 + (u*4+rt)*4
            for k in range(4): e.I(f'v_accvgpr_read_b32 v{t+k}, a{a0+k}')
            e.I(f'v_cvt_pk_bf16_f32 v{t+4}, v{t}, v{t+1}')
            e.I(f'v_cvt_pk_bf16_f32 v{t+5}, v{t+2}, v{t+3}')
            e.I(f'v_lshlrev_b32 v{t}, 16, v{t+4}')
            e.I(f'v_and_b32 v{t+1}, 0xffff0000, v{t+4}')
            e.I(f'v_lshlrev_b32 v{t+2}, 16, v{t+5}')
            e.I(f'v_and_b32 v{t+3}, 0xffff0000, v{t+5}')
            for k in range(4): e.I(f'v_mul_f32 v{t+4+k}, s52, v{t+k}')
            for k in range(4): e.I(f'v_exp_f32 v{t+4+k}, v{t+4+k}')
            for k in range(4): e.I(f'v_add_f32 v{t+4+k}, 1.0, v{t+4+k}')
            for k in range(4): e.I(f'v_rcp_f32 v{t+4+k}, v{t+4+k}')
            for k in range(4): e.I(f'v_mul_f32 v{t+k}, v{t+k}, v{t+4+k}')
            e.I(f'v_cvt_pk_bf16_f32 v{t+8}, v{t}, v{t+1}')
            e.I(f'v_cvt_pk_bf16_f32 v{t+9}, v{t+2}, v{t+3}')
            e.I(f'buffer_store_dwordx2 {vr(t+8,2)}, v3, {WS}, {"s39" if u < 8 else "s40"} offen offset:{(u%8)*512} sc1')
    e.I('s_waitcnt vmcnt(0)')
    TS(e, 2)
    if opt.ts: e.I('s_lshr_b32 s50, s24, 3'); e.I('s_add_u32 s50, s50, 64')
    TSflush(e, 's50')
    e.I('s_barrier')
    e.I('s_cmp_lg_u32 s22, 0')
    e.I('s_cbranch_scc1 L_ffn_nf')
    e.I('v_mov_b32 v4, 1')
    e.I('s_lshl_b32 s38, s24, 2')
    e.I('v_mov_b32 v5, s38')
    e.I(f's_mov_b32 s39, {FLGG}')
    set_flag(e, 5, 's39', 4, ' sc1')
    e.I('s_waitcnt vmcnt(0)')
    e.L('L_ffn_nf')
    e.I('s_cmp_ge_u32 s26, 8')
    e.I(f's_cbranch_scc1 {"L_end" if opt.nocmb else "L_cmb"}')
    e.I('s_add_u32 s24, s24, 24')
    e.I('s_cmp_lt_u32 s24, 32')
    e.I('s_cbranch_scc1 L_ffn_task')
    e.I('s_endpgm')

def role_cmb(e):
    PXR = 16
    GR = 144
    XR_ = 152
    T0 = 160
    srd(e, 8, 68, 2048 * 1280)
    srd(e, 12, 70, 2048 * 1280)
    e.I('s_sub_u32 s24, s26, 8')
    e.I('s_lshl_b32 s24, s24, 2')
    e.I('s_add_u32 s30, s24, s22')
    e.I('v_lshlrev_b32 v3, 2, v1')
    e.I('v_lshlrev_b32 v4, 3, v1')
    e.I('v_mov_b32 v6, 0')
    lane_ig(e, 14, 15)
    e.I('v_mul_u32_u24 v5, 1280, v14')
    e.I('v_lshl_add_u32 v5, v15, 3, v5')
    e.I('s_mov_b32 s49, 0')
    e.I('v_lshrrev_b32 v7, 4, v1')
    e.I('v_mul_u32_u24 v7, 40960, v7')
    e.I('v_lshl_add_u32 v7, v14, 7, v7')
    e.I(f'v_add_u32 v8, {4*40960}, v7')
    top = e.lab('Lct')
    e.L(top)
    TS(e, 0)
    e.I('s_mul_i32 s38, s30, 3277')
    e.I('s_lshr_b32 s38, s38, 16')
    e.I('s_mul_i32 s39, s38, 20')
    e.I('s_sub_u32 s39, s30, s39')
    e.I('s_cmp_ge_u32 s39, 10')
    e.I('s_cselect_b32 s40, 1, 0')
    e.I('s_mul_i32 s41, s40, 10')
    e.I('s_sub_u32 s41, s39, s41')
    gok = e.lab('Lcg')
    e.I('s_cmp_lg_u32 s49, 0')
    e.I(f's_cbranch_scc1 {gok}')
    e.I(f's_mov_b32 s42, {FLGG}')
    e.I('s_mov_b32 exec_hi, 0')
    e.I(f'buffer_load_dword v{T0}, v3, {WS}, s42 offen sc1')
    e.I('s_waitcnt vmcnt(0)')
    e.I(f'v_cmp_eq_u32 vcc, 0, v{T0}')
    e.I('s_mov_b64 exec, -1')
    e.I('s_cmp_eq_u32 vcc_lo, 0')
    e.I('s_cselect_b32 s49, 1, 0')
    e.I(f's_cbranch_scc1 {gok}')
    e.I('s_lshr_b32 s42, s38, 1')
    e.I('s_lshl_b32 s42, s42, 2')
    e.I(f's_add_u32 s42, s42, {FLGG}')
    wait_flags(e, 6, 's42', 1, T0, 7, sleep=32)
    e.L(gok)
    e.I(f's_mul_i32 s43, s38, {SEG_PX}')
    e.I('s_mul_i32 s44, s40, 20480')
    e.I('s_add_u32 s43, s43, s44')
    e.I('s_lshl_b32 s44, s41, 11')
    e.I('s_add_u32 s43, s43, s44')
    e.I(f's_add_u32 s43, s43, {PX}')
    e.I('s_lshl_b32 s45, s38, 1')
    e.I('s_add_u32 s45, s45, s40')
    e.I('s_mul_i32 s46, s45, 20480')
    e.I('s_lshr_b32 s47, s41, 1')
    e.I('s_lshl_b32 s47, s47, 2')
    e.I('s_and_b32 s48, s41, 1')
    e.I('s_add_u32 s44, s47, s48')
    e.I('s_lshl_b32 s47, s44, 10')
    e.I('s_add_u32 s47, s47, s46')
    e.I(f's_add_u32 s47, s47, {G_}')
    e.I('s_lshl_b32 s48, s44, 6')
    e.I('s_add_u32 s48, s48, s46')
    TO = (0, 4, 1, 5)
    for t in range(4):
        e.I(f'buffer_load_dwordx2 {vr(GR+2*t,2)}, v4, {WS}, s47 offen offset:{TO[t]*512} sc1')
        e.I(f'buffer_load_dwordx2 {vr(XR_+2*t,2)}, v5, s[8:11], s48 offen offset:{TO[t]*32}')
    nt_ = e.lab('Lcn')
    e.I(f's_cmp_lt_u32 s38, {opt.cwarm}')
    e.I(f's_cbranch_scc1 {nt_}')
    for k in range(2):
        e.I(f'buffer_load_dword v{T0}, v{7+k}, {WS}, s43 offen sc1')
    e.L(nt_)
    c1, c2 = e.lab('Lc1'), e.lab('Lc2')
    e.I('s_mul_i32 s50, s38, 10')
    e.I('s_and_b32 s44, s41, 14')
    e.I('s_add_u32 s50, s50, s44')
    e.I('s_lshl_b32 s50, s50, 7')
    e.I(f's_add_u32 s50, s50, {FLGPX}')
    e.I(f's_cmp_ge_u32 s38, {opt.cwarm}')
    e.I(f's_cbranch_scc1 {c1}')
    e.I(f's_add_u32 s42, s38, {opt.clag}')
    e.I('s_lshl_b32 s42, s42, 3')
    e.I('s_add_u32 s42, s42, s20')
    e.I('s_lshl_b32 s42, s42, 6')
    e.I(f's_add_u32 s42, s42, {FLGOX}')
    wait_flags(e, 6, 's42', 1, T0, 9, sleep=opt.lsleep)
    wait_flags(e, 3, 's50', 0xffffffff, T0, 8, sleep=opt.csleep)
    e.I(f's_branch {c2}')
    e.L(c1)
    e.I('s_and_b32 s42, s38, 3')
    e.I('s_lshl_b32 s42, s42, 3')
    e.I('s_add_u32 s42, s42, s20')
    e.I('s_lshl_b32 s42, s42, 7')
    e.I('s_lshl_b32 s44, s44, 1')
    e.I('s_add_u32 s42, s42, s44')
    e.I(f's_add_u32 s42, s42, {HINT}')
    wait_flags(e, 6, 's42', 1, T0, 9, sleep=2)
    wait_flags(e, 3, 's50', 0xffffffff, T0, 8, sleep=opt.c2sleep)
    e.L(c2)
    TS(e, 1)
    RAW = PXR + 32
    def ld(x):
        for t in range(2):
            if not opt.cdiag & 4: e.I(f'buffer_load_dwordx4 {vr(RAW+(x*2+t)*4)}, v2, {WS}, s43 offen offset:{t*1024} sc1')
        if x < 7: e.I('s_add_u32 s43, s43, 40960')
    def body(depth):
        for x in range(min(depth, 8)): ld(x)
        for x in range(8):
            left = min(depth - 1, 7 - x)
            e.I(f's_waitcnt vmcnt({left*2})')
            if x + depth < 8: ld(x + depth)
            for k in range(8):
                d = PXR + (0 if x == 0 else 16) + 2 * k
                e.I(f'v_lshlrev_b32 v{d}, 16, v{RAW+x*8+k}')
                e.I(f'v_and_b32 v{d+1}, 0xffff0000, v{RAW+x*8+k}')
            if x:
                for k in range(16):
                    e.I(f'v_add_f32 v{PXR+k}, v{PXR+k}, v{PXR+16+k}')
    fast, join = e.lab('Lcf'), e.lab('Lcj')
    e.I('s_cmp_ge_u32 s38, 61')
    e.I(f's_cbranch_scc1 {fast}')
    body(opt.cdepth)
    e.I(f's_branch {join}')
    e.L(fast)
    body(8)
    e.L(join)
    for t in range(4):
        b = PXR + 4 * t; u = T0 + 8 * (t % 2)
        e.I(f'v_cvt_pk_bf16_f32 v{u}, v{b}, v{b+1}')
        e.I(f'v_cvt_pk_bf16_f32 v{u+1}, v{b+2}, v{b+3}')
        for h_ in range(2):
            e.I(f'v_lshlrev_b32 v{b+2*h_}, 16, v{u+h_}')
            e.I(f'v_and_b32 v{b+2*h_+1}, 0xffff0000, v{u+h_}')
            e.I(f'v_lshlrev_b32 v{u+2+2*h_}, 16, v{GR+2*t+h_}')
            e.I(f'v_and_b32 v{u+3+2*h_}, 0xffff0000, v{GR+2*t+h_}')
        for k in range(4): e.I(f'v_mul_f32 v{b+k}, v{b+k}, v{u+2+k}')
        e.I(f'v_cvt_pk_bf16_f32 v{u}, v{b}, v{b+1}')
        e.I(f'v_cvt_pk_bf16_f32 v{u+1}, v{b+2}, v{b+3}')
        for h_ in range(2):
            e.I(f'v_lshlrev_b32 v{b+2*h_}, 16, v{u+h_}')
            e.I(f'v_and_b32 v{b+2*h_+1}, 0xffff0000, v{u+h_}')
            e.I(f'v_lshlrev_b32 v{u+2+2*h_}, 16, v{XR_+2*t+h_}')
            e.I(f'v_and_b32 v{u+3+2*h_}, 0xffff0000, v{XR_+2*t+h_}')
        for k in range(4): e.I(f'v_add_f32 v{b+k}, v{b+k}, v{u+2+k}')
        e.I(f'v_cvt_pk_bf16_f32 v{u+6}, v{b}, v{b+1}')
        e.I(f'v_cvt_pk_bf16_f32 v{u+7}, v{b+2}, v{b+3}')
        if not opt.cdiag & 8: e.I(f'buffer_store_dwordx2 {vr(u+6,2)}, v5, s[12:15], s48 offen offset:{TO[t]*32}')
    TS(e, 2)
    if opt.ts: e.I('s_lshr_b32 s50, s30, 6')
    TSflush(e, 's50')
    e.I('s_add_u32 s30, s30, 64')
    e.I('s_cmp_lt_u32 s30, 1280')
    e.I(f's_cbranch_scc1 {top}')
    e.I(f's_cmp_lg_u32 s30, {1279 + 64}')
    e.I('s_cbranch_scc1 L_end')
    e.I('s_mov_b32 exec_hi, 0xffff')
    e.I(f'global_store_dword v3, v6, s[74:75] offset:{D_TR} sc1')
    e.I('s_endpgm')

def gen_mainkernel(e):
    kernel_head(e, MAIN)
    e.I('s_cmp_ge_u32 s2, 256')
    e.I('s_cbranch_scc1 L_end')
    e.I('s_load_dwordx2 s[32:33], s[0:1], 96')
    e.I('s_load_dwordx4 s[60:63], s[0:1], 16')
    e.I('s_load_dwordx4 s[64:67], s[0:1], 32')
    e.I('s_load_dwordx4 s[52:55], s[0:1], 0')
    e.I('s_load_dwordx4 s[56:59], s[0:1], 64')
    e.I('s_load_dwordx4 s[72:75], s[0:1], 80')
    TS(e, 0)
    e.I('s_getreg_b32 s24, hwreg(HW_REG_XCC_ID)')
    e.I('v_and_b32 v1, 63, v0')
    e.I('v_lshlrev_b32 v2, 4, v1')
    e.I('v_lshrrev_b32 v3, 6, v0')
    e.I('v_readfirstlane_b32 s22, v3')
    if opt.force_slow:
        e.I('s_lshr_b32 s20, s2, 5'); e.I('s_and_b32 s21, s2, 31')
    else:
        e.I('s_and_b32 s20, s2, 7'); e.I('s_lshr_b32 s21, s2, 3')
    e.I('s_and_b32 s24, s24, 15')
    e.I('s_lshl_b32 s96, s20, 4')
    e.I('s_and_b32 s25, s24, 12')
    e.I('s_add_u32 s96, s96, s25')
    e.I('s_and_b32 s25, s24, 3')
    e.I('s_lshl_b32 s25, s25, 3')
    e.I('s_lshl_b32 s97, 1, s25')
    e.I('s_waitcnt lgkmcnt(0)')
    e.I('s_mov_b64 s[70:71], s[72:73]')
    e.I('s_mov_b64 s[68:69], s[52:53]')
    srd(e, 4, 32, WS_BYTES)
    TS(e, 1)
    TSflush(e, '70')
    e.I('s_cmp_ge_u32 s21, 22'); e.I('s_cbranch_scc1 L_help')
    register(e, 3, 4)
    e.I('s_cmp_ge_u32 s21, 12'); e.I('s_cbranch_scc1 L_wo')
    role_qkv(e)
    e.L('L_wo'); role_sw(e)
    e.L('L_help')
    srd(e, 8, 52, 2048 * 1280); srd(e, 12, 54, 8 * 1280)
    e.I('s_mul_i32 s24, s20, 10')
    e.I('s_add_u32 s24, s24, s21')
    e.I('s_sub_u32 s24, s24, 22')
    ln_addr(e)
    e.I('s_mul_i32 s25, s24, 20480')
    e.I(f's_add_u32 s26, s25, {80*20480}')
    ln_load(e, 16, 's25')
    ln_load(e, 36, 's26')
    init_fill(e, 's24', 80)
    if opt.pfs and opt.pfs < 80:
        srd(e, 16, 60, 640 * 12288)
        e.I('s_sub_u32 s27, s21, 22')
        e.I('s_lshl_b32 s27, s27, 2')
        e.I('s_add_u32 s27, s27, s22')
        prefetch_w(e, 's27', 40, opt.pfs, 80, 124, (None, 's[16:19]'))
    e.I('s_cmp_lg_u32 s21, 28')
    e.I('s_cbranch_scc1 L_hm')
    e.I('s_mul_i32 s41, s20, 10240')
    e.I(f's_add_u32 s41, s41, {MEM}')
    mem0_copy(e, 's41')
    e.L('L_hm')
    e.I('s_waitcnt vmcnt(0)')
    ln_compute(e, 16, 's25')
    e.I('s_cmp_ge_u32 s24, 48')
    e.I('s_cbranch_scc1 L_hl')
    ln_compute(e, 36, 's26')
    e.L('L_hl')
    e.I('s_waitcnt vmcnt(0)')
    e.I('s_barrier')
    register(e, 3, 4)
    TS(e, 0)
    TSflush(e, '69')
    e.I('s_cmp_ge_u32 s21, 29'); e.I('s_cbranch_scc1 L_ffn')
    e.I('s_cmp_lt_u32 s21, 27'); e.I('s_cbranch_scc1 L_xw')
    role_att(e)
    e.L('L_xw'); role_xw(e)
    e.L('L_ffn'); role_ffn(e)
    e.L('L_cmb'); role_cmb(e)
    e.L('L_fail')
    e.I('s_mov_b64 exec, 1')
    e.I('s_lshl_b32 s31, s31, 2')
    e.I('v_mov_b32 v3, s31')
    e.I('v_mov_b32 v4, 1')
    e.I('global_atomic_add v3, v4, s[74:75]')
    e.L('L_end')
    e.I('s_endpgm')

def build(path):
    for k in range(3): NT[k] = ' nt' if opt.pnt >> k & 1 else ''
    hdr = open('cdna_kernels/' + NAME + '.s.ref').read().split('\n')
    e = Em()
    for l in hdr:
        if l.startswith(';') and '@launch' not in l and 'Override launch' not in l and 'grid=ceil' not in l: e.raw(l)
    e.raw(f'; @launch grid=(256,1,1) block=(256,1,1) lds={max(LDS_TOTAL, opt.wnb * opt.wrows * 128)}')
    e.raw('.amdgcn_target "amdgcn-amd-amdhsa--gfx950"')
    gen_mainkernel(e)
    kernel_desc(e, MAIN, 512, 100, 256)
    lines, added = hazard.pad(e.lines)
    open(path, 'w').write('\n'.join(lines) + '\n')
    n = sum(1 for l in lines if l.startswith('    ') and not l.strip().startswith(';'))
    print(f'wrote {path}: {n} instructions, {added} nops added')

if __name__ == '__main__':
    out = sys.argv[1] if len(sys.argv) > 1 else 'cdna_kernels/' + NAME + '.s'
    if 'slow' in sys.argv[2:]: opt.force_slow = True
    if 'ts' in sys.argv[2:]: opt.ts = True
    for k in ('nobg', 'ackpoll', 'noxw'):
        if k in sys.argv[2:]: setattr(opt, k, True)
    for a_ in sys.argv[2:]:
        if '=' in a_: k_, v_ = a_.split('='); setattr(opt, k_, int(v_))
    build(out)
```

```python
from asmlib import *
from layout import *
N_LN, N_TR, N_Z, N_S, N_M = 128, 240, 8, N_SENT_WG, 8
PRE_GRID = N_LN + N_TR + N_Z + N_S + N_M
PRE_LDS = 16384
def bf16_round(e, dst, src, tmp=None):
    e.I(f'v_cvt_pk_bf16_f32 {dst}, {src}, {src}')
    e.I(f'v_and_b32 {dst}, 0xffff0000, {dst}')
def xlane_sum(e, x, t):
    e.I(f'v_add_f32_dpp v{x}, v{x}, v{x} row_ror:8 row_mask:0xf bank_mask:0xf')
    e.I(f'v_add_f32_dpp v{x}, v{x}, v{x} row_ror:4 row_mask:0xf bank_mask:0xf')
    e.I(f'v_mov_b32 v{t}, v{x}')
    e.I(f'v_permlane16_swap_b32 v{x}, v{t}')
    e.I(f'v_add_f32 v{x}, v{x}, v{t}')
    e.I(f'v_mov_b32 v{t}, v{x}')
    e.I(f'v_permlane32_swap_b32 v{x}, v{t}')
    e.I(f'v_add_f32 v{x}, v{x}, v{t}')
def gen_pre(e, name):
    kernel_head(e, name)
    e.I(f's_cmp_ge_u32 s2, {PRE_GRID}')
    e.I('s_cbranch_scc1 P_end')
    e.I('s_load_dwordx4 s[24:27], s[0:1], 0')
    e.I('s_load_dwordx4 s[28:31], s[0:1], 64')
    e.I('s_load_dwordx2 s[32:33], s[0:1], 96')
    e.I('v_and_b32 v1, 63, v0')
    e.I('v_lshrrev_b32 v2, 6, v0')
    e.I('v_readfirstlane_b32 s22, v2')
    e.I('s_waitcnt lgkmcnt(0)')
    srd(e, 4, 32, WS_BYTES)
    srd(e, 8, 24, 2048 * 1280)
    srd(e, 12, 26, 8 * 1280)
    srd(e, 16, 28, 640 * 3072)
    srd(e, 36, 30, 1536 * 1280)
    e.I(f's_cmp_ge_u32 s2, {N_LN}')
    e.I('s_cbranch_scc1 P_notln')
    e.I('v_and_b32 v3, 3, v1')
    e.I('v_lshrrev_b32 v4, 2, v1')
    e.I('s_lshl_b32 s40, s22, 2')
    e.I('v_add_u32 v3, s40, v3')
    e.I('s_mul_i32 s41, s2, 20480')
    e.I('v_mul_u32_u24 v5, 1280, v3')
    e.I('v_lshl_add_u32 v5, v4, 4, v5')
    for m in range(5):
        e.I(f'buffer_load_dwordx4 v[{8+4*m}:{11+4*m}], v5, s[8:11], s41 offen offset:{256*m}')
    e.I('v_lshrrev_b32 v6, 2, v4')
    e.I('v_lshlrev_b32 v6, 10, v6')
    e.I('v_and_b32 v7, 3, v4')
    e.I('v_lshl_add_u32 v6, v7, 8, v6')
    e.I('v_lshl_add_u32 v6, v3, 4, v6')
    e.I(f's_add_u32 s42, s41, {XN}')
    e.I('s_waitcnt vmcnt(0)')
    F = 32
    for d in range(20):
        e.I(f'v_lshlrev_b32 v{F+2*d}, 16, v{8+d}')
        e.I(f'v_and_b32 v{F+2*d+1}, 0xffff0000, v{8+d}')
    e.I(f'v_add_f32 v72, v{F}, v{F+1}')
    e.I(f'v_add_f32 v73, v{F+2}, v{F+3}')
    for d in range(4, 40, 2):
        e.I(f'v_add_f32 v72, v72, v{F+d}')
        e.I(f'v_add_f32 v73, v73, v{F+d+1}')
    e.I('v_add_f32 v72, v72, v73')
    xlane_sum(e, 72, 73)
    e.I(f'v_mul_f32 v72, {1.0/640!r}, v72'.replace(repr(1.0/640), '0x3acccccd'))
    e.I('v_mov_b32 v74, 0')
    e.I('v_mov_b32 v75, 0')
    for d in range(0, 40, 2):
        e.I(f'v_sub_f32 v76, v{F+d}, v72')
        e.I(f'v_sub_f32 v77, v{F+d+1}, v72')
        e.I('v_fmac_f32 v74, v76, v76')
        e.I('v_fmac_f32 v75, v77, v77')
    e.I('v_add_f32 v74, v74, v75')
    xlane_sum(e, 74, 73)
    e.I('v_mul_f32 v74, 0x3acccccd, v74')
    bf16_round(e, 'v74', 'v74')
    e.I('v_add_f32 v74, 0x3727c5ac, v74')
    bf16_round(e, 'v74', 'v74')
    e.I('v_sqrt_f32 v74, v74')
    bf16_round(e, 'v74', 'v74')
    e.I('v_rcp_f32 v74, v74')
    bf16_round(e, 'v72', 'v72')
    for d in range(20):
        a_, b_ = F + 2 * d, F + 2 * d + 1
        e.I(f'v_sub_f32 v{a_}, v{a_}, v72')
        e.I(f'v_sub_f32 v{b_}, v{b_}, v72')
        e.I(f'v_cvt_pk_bf16_f32 v{8+d}, v{a_}, v{b_}')
        e.I(f'v_lshlrev_b32 v{a_}, 16, v{8+d}')
        e.I(f'v_and_b32 v{b_}, 0xffff0000, v{8+d}')
        e.I(f'v_mul_f32 v{a_}, v{a_}, v74')
        e.I(f'v_mul_f32 v{b_}, v{b_}, v74')
        e.I(f'v_cvt_pk_bf16_f32 v{8+d}, v{a_}, v{b_}')
    for m in range(5):
        e.I(f's_add_u32 s43, s42, {4096*m}')
        e.I(f'buffer_store_dwordx4 v[{8+4*m}:{11+4*m}], v6, s[4:7], s43 offen')
    e.I('s_endpgm')
    e.L('P_notln')
    e.I(f's_cmp_ge_u32 s2, {N_LN+N_TR}')
    e.I('s_cbranch_scc1 P_nottr')
    e.I(f's_sub_u32 s40, s2, {N_LN}')
    e.I('v_lshrrev_b32 v3, 3, v1')
    e.I('v_and_b32 v4, 7, v1')
    e.I('v_lshrrev_b32 v8, 4, v1')
    e.I('v_bfe_u32 v9, v1, 2, 2')
    e.I('v_and_b32 v10, 3, v1')
    e.I('v_lshlrev_b32 v2, 4, v1')
    e.I('s_lshl_b32 s44, s22, 12')
    e.I('s_cmp_ge_u32 s40, 120')
    e.I('s_cbranch_scc1 P_w2')
    for which in (1, 2):
        if which == 2:
            e.L('P_w2')
            e.I('s_sub_u32 s40, s40, 120')
        RS = 3072 if which == 1 else 1280
        S = 16 if which == 1 else 36
        div = 5 if which == 1 else 12
        mul, sh = (205, 10) if which == 1 else (171, 11)
        e.I(f's_mul_i32 s41, s40, {mul}')
        e.I(f's_lshr_b32 s41, s41, {sh}')
        e.I(f's_mul_i32 s42, s41, {div}')
        e.I('s_sub_u32 s42, s40, s42')
        e.I(f'v_mul_u32_u24 v5, {RS}, v3')
        e.I('v_lshl_add_u32 v5, v4, 4, v5')
        e.I('s_lshl_b32 s43, s42, 2')
        e.I('s_add_u32 s43, s43, s22')
        e.I(f's_mul_i32 s45, s43, {32*RS}')
        e.I('s_lshl_b32 s46, s41, 7')
        e.I('s_add_u32 s45, s45, s46')
        for n in range(4):
            e.I(f's_add_u32 m0, s44, {n*1024}')
            e.I(f's_add_u32 s46, s45, {n*8*RS}')
            e.I(f'buffer_load_dwordx4 v5, s[{S}:{S+3}], s46 offen lds')
        if which == 1:
            e.I('v_lshl_add_u32 v11, v8, 3, v9')
            second = 512
        else:
            e.I('v_lshl_add_u32 v11, v8, 2, v9')
            second = 2048
        e.I('v_lshlrev_b32 v11, 7, v11')
        e.I('v_lshl_add_u32 v11, v10, 3, v11')
        e.I('s_lshl_b32 s46, s22, 5')
        e.I('v_add_u32 v11, s46, v11')
        e.I('s_waitcnt vmcnt(0)')
        e.I('s_barrier')
        for b in range(4):
            e.I(f'ds_read_b64_tr_b16 v[{16+4*b}:{17+4*b}], v11 offset:{b*4096}')
            e.I(f'ds_read_b64_tr_b16 v[{18+4*b}:{19+4*b}], v11 offset:{b*4096+second}')
        NK = 20 if which == 1 else 48
        e.I('s_lshl_b32 s46, s41, 2')
        e.I('s_add_u32 s46, s46, s22')
        e.I(f's_mul_i32 s46, s46, {NK}')
        e.I('s_lshl_b32 s47, s42, 2')
        e.I('s_add_u32 s46, s46, s47')
        e.I('s_lshl_b32 s46, s46, 10')
        e.I(f's_add_u32 s46, s46, {W1F if which == 1 else W2F}')
        e.I('s_waitcnt lgkmcnt(0)')
        for b in range(4):
            e.I(f'buffer_store_dwordx4 v[{16+4*b}:{19+4*b}], v2, s[4:7], s46 offen offset:{b*1024}')
        e.I('s_endpgm')
    e.L('P_nottr')
    e.I(f's_cmp_ge_u32 s2, {N_LN+N_TR+N_Z+N_S}')
    e.I('s_cbranch_scc1 P_mem0')
    e.I(f's_sub_u32 s40, s2, {N_LN+N_TR}')
    e.I('s_lshl_b32 s41, s40, 15')
    e.I('s_mov_b32 s42, 0')
    e.I(f's_cmp_lt_u32 s40, {N_Z}')
    e.I('s_cbranch_scc1 P_fill')
    e.I(f's_add_u32 s41, s41, {SENT0 - N_Z*32768}')
    e.I('s_mov_b32 s42, -1')
    e.L('P_fill')
    for k in range(4): e.I(f'v_mov_b32 v{8+k}, s42')
    e.I('v_lshlrev_b32 v2, 4, v0')
    for k in range(8):
        e.I(f's_add_u32 s43, s41, {k*4096}')
        e.I('buffer_store_dwordx4 v[8:11], v2, s[4:7], s43 offen')
    e.I('s_endpgm')
    e.L('P_mem0')
    e.I(f's_sub_u32 s40, s2, {N_LN+N_TR+N_Z+N_S}')
    e.I('s_mul_i32 s41, s40, 10240')
    e.I(f's_add_u32 s41, s41, {MEM}')
    e.I('v_bfe_u32 v3, v0, 2, 3')
    e.I('v_mul_u32_u24 v4, 1280, v3')
    e.I('v_lshrrev_b32 v3, 6, v0')
    e.I('v_lshl_add_u32 v4, v3, 5, v4')
    e.I('v_and_b32 v3, 3, v0')
    e.I('v_lshl_add_u32 v4, v3, 3, v4')
    e.I('v_bfe_u32 v3, v0, 5, 1')
    e.I('v_lshl_add_u32 v4, v3, 2, v4')
    e.I('v_lshlrev_b32 v5, 2, v0')
    for m in range(10): e.I(f'buffer_load_dword v{12+m}, v4, s[12:15], 0 offen offset:{128*m}')
    e.I('s_waitcnt vmcnt(0)')
    for m in range(10):
        e.I(f'v_min_u32 v{12+m}, -2, v{12+m}')
        e.I(f's_add_u32 s42, s41, {(m//4)*4096}')
        e.I(f'buffer_store_dword v{12+m}, v5, s[4:7], s42 offen offset:{(m%4)*1024}')
    e.L('P_m2')
    e.L('P_end')
    e.I('s_endpgm')


NT = ['', '', '']
DIAG = [0]
def ln_addr(e):
    e.I('v_and_b32 v3, 3, v1')
    e.I('v_lshrrev_b32 v4, 2, v1')
    e.I('s_lshl_b32 s40, s22, 2')
    e.I('v_add_u32 v3, s40, v3')
    e.I('v_mul_u32_u24 v5, 1280, v3')
    e.I('v_lshl_add_u32 v5, v4, 4, v5')
    e.I('v_lshrrev_b32 v6, 2, v4')
    e.I('v_lshlrev_b32 v6, 10, v6')
    e.I('v_and_b32 v7, 3, v4')
    e.I('v_lshl_add_u32 v6, v7, 8, v6')
    e.I('v_lshl_add_u32 v6, v3, 4, v6')
def ln_load(e, D, so):
    for m in range(5):
        e.I(f'buffer_load_dwordx4 v[{D+4*m}:{D+3+4*m}], v5, s[8:11], {so} offen offset:{256*m}{NT[0]}')
def ln_compute(e, D, so):
    F = 64
    A = 104
    for d in range(20):
        e.I(f'v_lshlrev_b32 v{F+2*d}, 16, v{D+d}')
        e.I(f'v_and_b32 v{F+2*d+1}, 0xffff0000, v{D+d}')
    e.I(f'v_add_f32 v{A}, v{F}, v{F+1}')
    e.I(f'v_add_f32 v{A+1}, v{F+2}, v{F+3}')
    for d in range(4, 40, 2):
        e.I(f'v_add_f32 v{A}, v{A}, v{F+d}')
        e.I(f'v_add_f32 v{A+1}, v{A+1}, v{F+d+1}')
    e.I(f'v_add_f32 v{A}, v{A}, v{A+1}')
    xlane_sum(e, A, A + 1)
    e.I(f'v_mul_f32 v{A}, 0x3acccccd, v{A}')
    e.I(f'v_mov_b32 v{A+2}, 0')
    e.I(f'v_mov_b32 v{A+3}, 0')
    for d in range(0, 40, 2):
        e.I(f'v_sub_f32 v{A+4}, v{F+d}, v{A}')
        e.I(f'v_sub_f32 v{A+5}, v{F+d+1}, v{A}')
        e.I(f'v_fmac_f32 v{A+2}, v{A+4}, v{A+4}')
        e.I(f'v_fmac_f32 v{A+3}, v{A+5}, v{A+5}')
    e.I(f'v_add_f32 v{A+2}, v{A+2}, v{A+3}')
    xlane_sum(e, A + 2, A + 1)
    V_ = f'v{A+2}'
    e.I(f'v_mul_f32 {V_}, 0x3acccccd, {V_}')
    bf16_round(e, V_, V_)
    e.I(f'v_add_f32 {V_}, 0x3727c5ac, {V_}')
    bf16_round(e, V_, V_)
    e.I(f'v_sqrt_f32 {V_}, {V_}')
    bf16_round(e, V_, V_)
    e.I(f'v_rcp_f32 {V_}, {V_}')
    bf16_round(e, f'v{A}', f'v{A}')
    for d in range(20):
        a_, b_ = F + 2 * d, F + 2 * d + 1
        e.I(f'v_sub_f32 v{a_}, v{a_}, v{A}')
        e.I(f'v_sub_f32 v{b_}, v{b_}, v{A}')
        e.I(f'v_cvt_pk_bf16_f32 v{D+d}, v{a_}, v{b_}')
        e.I(f'v_lshlrev_b32 v{a_}, 16, v{D+d}')
        e.I(f'v_and_b32 v{b_}, 0xffff0000, v{D+d}')
        e.I(f'v_mul_f32 v{a_}, v{a_}, {V_}')
        e.I(f'v_mul_f32 v{b_}, v{b_}, {V_}')
        e.I(f'v_cvt_pk_bf16_f32 v{D+d}, v{a_}, v{b_}')
    for m in range(5):
        e.I(f's_add_u32 s43, {so}, {XN + 4096*m}')
        if not DIAG[0] & 1: e.I(f'buffer_store_dwordx4 v[{D+4*m}:{D+3+4*m}], v6, s[4:7], s43 offen sc1{NT[1]}')
INIT_REGIONS = [(0, 64, 0), (HINT2, 2, 0), (MEM + MEM_SLOT, 2 * MEM_SLOT // 4096, -1), (XR, 2 * XR_SLOT // 4096, -1), (VR, 2 * VR_SLOT // 4096, -1), (PART, 2 * PART_SLOT // 4096, -1), (PX + 63 * SEG_PX, SEG_PX // 4096, -1)]
def init_fill(e, sidx, nwg):
    if DIAG[0] & 2: return
    total = sum(n for _, n, _ in INIT_REGIONS)
    for k in range(4): e.I(f'v_mov_b32 v{56+k}, 0'); e.I(f'v_mov_b32 v{60+k}, -1')
    e.I('v_lshlrev_b32 v8, 4, v0')
    nz = sum(n for _, n, v_ in INIT_REGIONS if v_ == 0)
    assert nz <= nwg
    j = 0
    while j * nwg < total:
        sk = e.lab('Lif')
        e.I(f's_add_u32 s44, {sidx}, {j*nwg}')
        if (j + 1) * nwg > total:
            e.I(f's_cmp_ge_u32 s44, {total}'); e.I(f's_cbranch_scc1 {sk}')
        start = 0
        e.I('s_mov_b32 s45, 0')
        for base, n, val in INIT_REGIONS:
            if start > j * nwg or (start <= j * nwg < start + n):
                if start < (j + 1) * nwg:
                    e.I(f's_cmp_ge_u32 s44, {start}')
                    e.I(f's_cselect_b32 s45, {(base - start * 4096) & 0xffffffff:#x}, s45')
            start += n
        e.I('s_lshl_b32 s46, s44, 12')
        e.I('s_add_u32 s45, s45, s46')
        if j == 0:
            z = e.lab('Liz')
            e.I(f's_cmp_ge_u32 s44, {nz}'); e.I(f's_cbranch_scc1 {z}')
            e.I(f'buffer_store_dwordx4 v[56:59], v8, s[4:7], s45 offen sc1{NT[2]}')
            e.I(f's_branch {sk}')
            e.L(z)
        e.I(f'buffer_store_dwordx4 v[60:63], v8, s[4:7], s45 offen sc1{NT[2]}')
        e.L(sk)
        j += 1
def mem0_copy(e, so, part):
    if part == 0:
        e.I('v_bfe_u32 v3, v0, 2, 3')
        e.I('v_mul_u32_u24 v4, 1280, v3')
        e.I('v_lshrrev_b32 v3, 6, v0')
        e.I('v_lshl_add_u32 v4, v3, 5, v4')
        e.I('v_and_b32 v3, 3, v0')
        e.I('v_lshl_add_u32 v4, v3, 3, v4')
        e.I('v_bfe_u32 v3, v0, 5, 1')
        e.I('v_lshl_add_u32 v4, v3, 2, v4')
        for m in range(10): e.I(f'buffer_load_dword v{112+m}, v4, s[12:15], 0 offen offset:{128*m}')
        return
    e.I('v_lshlrev_b32 v7, 2, v0')
    for m in range(10):
        e.I(f'v_min_u32 v{112+m}, -2, v{112+m}')
        e.I(f's_add_u32 s42, {so}, {(m//4)*4096}')
        e.I(f'buffer_store_dword v{112+m}, v7, s[4:7], s42 offen offset:{(m%4)*1024} sc1')
def transpose_w(e, sk):
    e.I('v_lshrrev_b32 v3, 3, v1')
    e.I('v_and_b32 v4, 7, v1')
    e.I('v_lshrrev_b32 v8, 4, v1')
    e.I('v_bfe_u32 v9, v1, 2, 2')
    e.I('v_and_b32 v10, 3, v1')
    e.I('s_lshl_b32 s44, s22, 12')
    for which in (1, 2):
        RS = 3072 if which == 1 else 1280
        S = 8 if which == 1 else 12
        div = 5 if which == 1 else 12
        mul, sh = (205, 10) if which == 1 else (171, 11)
        NK = 20 if which == 1 else 48
        e.I(f'v_mul_u32_u24 v5, {RS}, v3')
        e.I('v_lshl_add_u32 v5, v4, 4, v5')
        e.I(f'v_lshl_add_u32 v11, v8, {3 if which == 1 else 2}, v9')
        second = 512 if which == 1 else 2048
        e.I('v_lshlrev_b32 v11, 7, v11')
        e.I('v_lshl_add_u32 v11, v10, 3, v11')
        e.I('s_lshl_b32 s46, s22, 5')
        e.I('v_add_u32 v11, s46, v11')
        e.I('v_add_u32 v12, 0x8000, v11')
        e.I('v_add_u32 v13, 0x10000, v11')
        for b in range(5):
            e.I(f's_mul_i32 s40, {sk}, 5')
            e.I(f's_add_u32 s40, s40, {b}')
            e.I(f's_mul_i32 s41, s40, {mul}')
            e.I(f's_lshr_b32 s41, s41, {sh}')
            e.I(f's_mul_i32 s42, s41, {div}')
            e.I('s_sub_u32 s42, s40, s42')
            e.I('s_lshl_b32 s43, s42, 2')
            e.I('s_add_u32 s43, s43, s22')
            e.I(f's_mul_i32 s45, s43, {32*RS}')
            e.I('s_lshl_b32 s46, s41, 7')
            e.I('s_add_u32 s45, s45, s46')
            for n in range(4):
                e.I(f's_add_u32 m0, s44, {b*16384 + n*1024}')
                e.I(f's_add_u32 s46, s45, {n*8*RS}')
                e.I(f'buffer_load_dwordx4 v5, s[{S}:{S+3}], s46 offen{NT[0]} lds')
            e.I('s_lshl_b32 s46, s41, 2')
            e.I('s_add_u32 s46, s46, s22')
            e.I(f's_mul_i32 s46, s46, {NK}')
            e.I('s_lshl_b32 s47, s42, 2')
            e.I('s_add_u32 s46, s46, s47')
            e.I('s_lshl_b32 s46, s46, 10')
            e.I(f's_add_u32 s{50+b}, s46, {W1F if which == 1 else W2F}')
        e.I('s_waitcnt vmcnt(0)')
        e.I('s_barrier')
        for b in range(5):
            va, off = (11, 12, 13)[b // 2], (b % 2) * 16384
            for q in range(4):
                r = 16 + (b * 4 + q) * 4
                e.I(f'ds_read_b64_tr_b16 v[{r}:{r+1}], v{va} offset:{off + q*4096}')
                e.I(f'ds_read_b64_tr_b16 v[{r+2}:{r+3}], v{va} offset:{off + q*4096 + second}')
        e.I('s_waitcnt lgkmcnt(0)')
        e.I('s_barrier')
        for b in range(5):
            for q in range(4):
                r = 16 + (b * 4 + q) * 4
                e.I(f'buffer_store_dwordx4 v[{r}:{r+3}], v2, s[4:7], s{50+b} offen offset:{q*1024} sc1{NT[1]}')
```

```python
import sys, struct
from asmlib import *
from layout import *
import hazard
from gen_pre import *

NAME = 'recurrent_scan__memory_aug_recurrent_mem_tr__dense_activation_relu__prompt'
MAIN = NAME + '_kernel'
PRE = 'prep_kernel'
LDS_TOTAL = 131072
LDS_ROLE = 131072
TMO = 1 << 18
def f2u(x): return struct.unpack('<I', struct.pack('<f', x))[0]
SC_L2E = f2u(192 ** -0.5 * 1.4426950408889634)
NEG_BIG = f2u(-1e30)
MFMA = 'v_mfma_f32_16x16x32_bf16'
MFMA16 = 'v_mfma_f32_16x16x16_bf16'
SMF = 'v_smfmac_f32_16x16x64_bf16'
WS = 's[4:7]'
WFL = ['', ' nt', ' sc1', ' sc0 sc1', ' sc1 nt', ' sc0 sc1 nt']

class Opt:
    force_slow = False
    ts = False
    nobg = False
    ackpoll = False
    noxw = False
    pdelay = 0
    vdelay = 0
    kbar = 0
    kpre = 12
    kin = 12
    fresh = 0
    pdiag = 0
    pflip = 0
    touch = 1
    nofc = 0
    nopx = 0
    nocmb = 0
    cdepth = 1
    ffnnt = 0
    pr = 1
    pfar = 0
    vpre = 2
    vmpos = 2
    smpre = 1
    smgap = 2
    ldgap = 4
    kp = 0
    kcs = 0
    kce = 12
    xlate = 5
    csleep = 8
    cwarm = 61
    c2sleep = 4
    clag = 2
    lsleep = 8
    xsleep = 2
    asleep = 2
    cdiag = 0
    tpos = 0
    pmf = 6
    pmf2 = 6
    urg = 0
    rsleep = 16
    cwarm2 = 0
    tord = 0
    pfs = 0
    swlate = 1
    fpos = 11
    heads = 1
    hdelay = 0
    wnb = 3
    wrows = 320
    touch2 = 1
    pnt = 1
    wnt = 1
    wthr = 64
    xpf = 10
    xdma0 = 10
    xdmas = 1
    pbf = 1
    rpos = 2
    mbar = 1
    pspin = 0
    nobulk = 0
opt = Opt()

def vr(i, n=4): return f'v[{i}:{i+n-1}]'
def ar(i, n=4): return f'a[{i}:{i+n-1}]'

def maxchain(e, dst, regs, op='u32'):
    regs = list(regs)
    e.I(f'v_max3_{op} v{dst}, v{regs[0]}, v{regs[1]}, v{regs[2]}')
    rest = regs[3:]
    while rest:
        if len(rest) >= 2:
            e.I(f'v_max3_{op} v{dst}, v{dst}, v{rest[0]}, v{rest[1]}'); rest = rest[2:]
        else:
            e.I(f'v_max_{op} v{dst}, v{dst}, v{rest[0]}'); rest = rest[1:]

def check_sent(e, regs, t0, t1):
    regs = list(regs)
    if len(regs) >= 8:
        h = len(regs) // 2
        A, B = regs[:h], regs[h:]
        ea, eb = Em(), Em()
        maxchain(ea, t0, A); maxchain(eb, t1, B)
        for i in range(max(len(ea.lines), len(eb.lines))):
            if i < len(ea.lines): e.lines.append(ea.lines[i])
            if i < len(eb.lines): e.lines.append(eb.lines[i])
        e.I(f'v_max_u32 v{t0}, v{t0}, v{t1}')
    else:
        maxchain(e, t0, regs)
    e.I(f'v_cmp_eq_u32 vcc, -1, v{t0}')

def poll2(e, issue, nl, regsA, regsB, consume, t0, t1, code):
    lp, dA, dB, dd = e.lab('Lp'), e.lab('LdA'), e.lab('LdB'), e.lab('Ldd')
    e.I(f's_mov_b32 s31, {TMO}')
    issue(regsA)
    e.L(lp)
    issue(regsB)
    e.I(f's_waitcnt vmcnt({nl})')
    check_sent(e, range(regsA, regsA + 4 * nl), t0, t1)
    e.I(f's_cbranch_vccz {dA}')
    issue(regsA)
    e.I(f's_waitcnt vmcnt({nl})')
    check_sent(e, range(regsB, regsB + 4 * nl), t0, t1)
    e.I(f's_cbranch_vccz {dB}')
    e.I('s_sub_u32 s31, s31, 1')
    e.I(f's_cbranch_scc0 {lp}')
    e.I(f's_mov_b32 s31, {code}')
    e.I('s_branch L_fail')
    e.L(dB)
    consume(regsB)
    e.I(f's_branch {dd}')
    e.L(dA)
    consume(regsA)
    e.L(dd)

def wait_flags(e, vaddr, sofs, mask, vt, code, sleep=0, dbg=False):
    lp, dn = e.lab('Lf'), e.lab('Lfd')
    e.I(f's_mov_b32 s31, {TMO}')
    if mask > 0xffffffff or mask < 0: e.I(f's_mov_b64 exec, {mask}')
    else:
        e.I(f's_mov_b32 exec_lo, {mask:#x}'); e.I('s_mov_b32 exec_hi, 0')
    e.L(lp)
    if dbg: e.I(f'global_load_dword v{vt}, v{vaddr}, s[74:75] offset:{sofs} sc1')
    else: e.I(f'buffer_load_dword v{vt}, v{vaddr}, {WS}, {sofs} offen sc1')
    e.I('s_waitcnt vmcnt(0)')
    e.I(f'v_cmp_eq_u32 vcc, 0, v{vt}')
    e.I(f's_cbranch_vccz {dn}')
    if sleep: e.I(f's_sleep {sleep}')
    e.I('s_sub_u32 s31, s31, 1')
    e.I(f's_cbranch_scc0 {lp}')
    e.I(f's_mov_b32 s31, {code}')
    e.I('s_branch L_fail')
    e.L(dn)
    e.I('s_mov_b64 exec, -1')

D_TR, D_PAR, D_REG = 64, 96, 128
def register(e, va, vd):
    sk = e.lab('Lrg')
    e.I('s_cmp_lg_u32 s22, 0')
    e.I(f's_cbranch_scc1 {sk}')
    e.I(f'v_mov_b32 v{va}, s96')
    e.I(f'v_mov_b32 v{vd}, s97')
    e.I('s_mov_b64 exec, 1')
    e.I(f'global_atomic_add v{va}, v{vd}, s[74:75] offset:{D_REG} sc1')
    e.I('s_mov_b64 exec, -1')
    e.L(sk)
D_W = 68
def wait_count(e, t, off, n, sleep):
    lp, dn = e.lab('Lwc'), e.lab('Lwe')
    e.I(f's_mov_b32 s31, {TMO}')
    e.I(f'v_mov_b32 v{t+1}, 0')
    e.L(lp)
    e.I(f'global_load_dword v{t}, v{t+1}, s[74:75] offset:{off} sc1')
    e.I('s_waitcnt vmcnt(0)')
    e.I(f'v_cmp_gt_u32 vcc, {n}, v{t}')
    e.I(f's_cbranch_vccz {dn}')
    e.I(f's_sleep {sleep}')
    e.I('s_sub_u32 s31, s31, 1')
    e.I(f's_cbranch_scc0 {lp}')
    e.I('s_mov_b32 s31, 10')
    e.I('s_branch L_fail')
    e.L(dn)
def wait_first(e, t):
    wait_reg(e, t, 32)
    e.I('s_lshl_b32 s38, s20, 8')
    e.I(f's_add_u32 s38, s38, {FLGQ}')
    e.I(f'v_lshlrev_b32 v{t+1}, 6, v1')
    wait_flags(e, t + 1, 's38', 0xf, t, 15, sleep=16)
def count_up(e, t, off):
    sk = e.lab('Lcu')
    e.I('s_cmp_lg_u32 s22, 0')
    e.I(f's_cbranch_scc1 {sk}')
    e.I(f'v_mov_b32 v{t}, 0'); e.I(f'v_mov_b32 v{t+1}, 1')
    e.I('s_mov_b64 exec, 1')
    e.I(f'global_atomic_add v{t}, v{t+1}, s[74:75] offset:{off} sc1')
    e.I('s_mov_b64 exec, -1')
    e.L(sk)
def wait_reg(e, t, sleep=4):
    lp, dn = e.lab('Lwr'), e.lab('Lwd')
    e.I(f's_mov_b32 s31, {TMO}')
    e.I(f'v_lshlrev_b32 v{t+2}, 2, v1')
    e.I('s_mov_b32 exec_hi, 0')
    e.L(lp)
    e.I(f'global_load_dword v{t}, v{t+2}, s[74:75] offset:{D_REG} sc1')
    e.I('s_mov_b32 s23, 0')
    e.I('s_mov_b32 s38, 0')
    e.I('s_waitcnt vmcnt(0)')
    for k in range(4):
        e.I(f'v_cmp_eq_u32 vcc, {0x20 << (8*k):#x}, v{t}')
        e.I('s_or_b32 s38, s38, vcc_lo')
    e.I(f'v_sad_u8 v{t+1}, v{t}, 0, 0')
    e.I('s_bcnt1_i32_b32 s38, s38')
    e.I('s_cmp_eq_u32 s38, 8')
    e.I(f's_cbranch_scc1 {dn}')
    for sh in (1, 2, 4, 8): e.I(f'v_add_u32_dpp v{t+1}, v{t+1}, v{t+1} row_shr:{sh} row_mask:0xf bank_mask:0xf bound_ctrl:0')
    e.I(f'v_readlane_b32 s38, v{t+1}, 15')
    e.I(f'v_readlane_b32 s39, v{t+1}, 31')
    e.I('s_mov_b32 s23, 1')
    e.I('s_add_u32 s38, s38, s39')
    e.I('s_cmp_eq_u32 s38, 256')
    e.I(f's_cbranch_scc1 {dn}')
    e.I(f's_sleep {sleep}')
    e.I('s_sub_u32 s31, s31, 1')
    e.I(f's_cbranch_scc0 {lp}')
    e.I('s_mov_b32 s31, 10')
    e.I('s_branch L_fail')
    e.L(dn)
    e.I('s_mov_b64 exec, -1')

def set_flag(e, vaddr, sofs, vone, fl):
    e.I('s_mov_b64 exec, 1')
    e.I(f'buffer_store_dword v{vone}, v{vaddr}, {WS}, {sofs} offen{fl}')
    e.I('s_mov_b64 exec, -1')

def xg_reduce(e, op, x, t):
    e.I(f'v_mov_b32 v{t}, v{x}')
    e.I(f'v_permlane16_swap_b32 v{x}, v{t}')
    e.I(f'{op} v{x}, v{x}, v{t}')
    e.I(f'v_mov_b32 v{t}, v{x}')
    e.I(f'v_permlane32_swap_b32 v{x}, v{t}')
    e.I(f'{op} v{x}, v{x}, v{t}')

def softmax12(e, S, P, t):
    maxchain(e, t, range(S, S + 12), 'f32')
    xg_reduce(e, 'v_max_f32', t, t + 1)
    e.I(f'v_mul_f32 v{t}, s53, v{t}')
    for i in range(12):
        e.I(f'v_fma_f32 v{S+i}, v{S+i}, s52, v{t}')
    for i in range(12):
        e.I(f'v_exp_f32 v{S+i}, v{S+i}')
    e.I(f'v_add_f32 v{t+2}, v{S}, v{S+1}')
    e.I(f'v_add_f32 v{t+3}, v{S+2}, v{S+3}')
    for i in range(4, 12, 2):
        e.I(f'v_add_f32 v{t+2}, v{t+2}, v{S+i}')
        e.I(f'v_add_f32 v{t+3}, v{t+3}, v{S+i+1}')
    e.I(f'v_add_f32 v{t+2}, v{t+2}, v{t+3}')
    xg_reduce(e, 'v_add_f32', t + 2, t + 3)
    e.I(f'v_rcp_f32 v{t+2}, v{t+2}')
    for i in range(12):
        e.I(f'v_mul_f32 v{S+i}, v{S+i}, v{t+2}')
    for i in range(6):
        e.I(f'v_cvt_pk_bf16_f32 v{P+i}, v{S+2*i}, v{S+2*i+1}')

def TS(e, k):
    if opt.ts: e.I(f's_memrealtime s[{76+2*k}:{77+2*k}]')
def TSflush(e, step, va=238, vd=239):
    if not opt.ts: return
    e.I('s_waitcnt lgkmcnt(0)')
    for k in range(10): e.I(f'v_writelane_b32 v{vd}, s{76+2*k}, {k}')
    e.I('s_lshl_b32 s76, s20, 5')
    e.I('s_add_u32 s76, s76, s21')
    e.I('s_lshl_b32 s76, s76, 2')
    e.I('s_add_u32 s76, s76, s22')
    e.I('s_mul_i32 s76, s76, 72')
    e.I(f's_add_u32 s76, s76, {step}')
    e.I('s_lshl_b32 s76, s76, 6')
    e.I(f's_add_u32 s76, s76, {DBGT}')
    e.I(f'v_lshlrev_b32 v{va}, 2, v1')
    e.I('s_mov_b64 exec, 0x3ff')
    e.I(f'buffer_store_dword v{vd}, v{va}, {WS}, s76 offen')
    e.I('s_mov_b64 exec, -1')

def lane_ig(e, vi, vg):
    e.I(f'v_and_b32 v{vi}, 15, v1')
    e.I(f'v_lshrrev_b32 v{vg}, 4, v1')

def load_weights(e, mats, RS, rows, paired, vA, vT, NB=3, bufoff=None, manual=False):
    CH = rows * 128
    ninst = rows // 8 // 4
    nk = rows // 32
    e.I(f'v_lshrrev_b32 v{vT}, 3, v1')
    if paired:
        e.I(f'v_bfe_u32 v{vT+1}, v1, 4, 2')
    else:
        e.I(f'v_bfe_u32 v{vT+1}, v1, 4, 1')
        e.I('s_and_b32 s54, s22, 1')
        e.I('s_lshl_b32 s54, s54, 1')
        e.I(f'v_or_b32 v{vT+1}, s54, v{vT+1}')
    e.I(f'v_lshlrev_b32 v{vT+1}, 1, v{vT+1}')
    e.I(f'v_and_b32 v{vT+2}, 7, v1')
    e.I(f'v_xor_b32 v{vT+2}, v{vT+2}, v{vT+1}')
    e.I(f's_mov_b32 s54, {RS}')
    e.I(f'v_mul_lo_u32 v{vA}, s54, v{vT}')
    e.I(f'v_lshl_add_u32 v{vA}, v{vT+2}, 4, v{vA}')
    e.I(f'v_lshrrev_b32 v{vT}, 4, v1')
    e.I(f'v_bfe_u32 v{vT+1}, v1, 2, 2')
    if paired:
        e.I(f'v_lshl_add_u32 v{vT+2}, v{vT}, 2, v{vT+1}')
        e.I(f'v_bfe_u32 v{vT}, v{vT+2}, 1, 2')
        second = 2048
    else:
        e.I(f'v_lshl_add_u32 v{vT+2}, v{vT}, 3, v{vT+1}')
        e.I(f'v_and_b32 v{vT}, 1, v{vT}')
        e.I(f'v_lshlrev_b32 v{vT}, 1, v{vT}')
        e.I(f'v_bfe_u32 v{vT+1}, v1, 3, 1')
        e.I(f'v_or_b32 v{vT}, v{vT}, v{vT+1}')
        second = 512
    e.I(f'v_xor_b32 v{vT}, s22, v{vT}')
    e.I(f'v_lshlrev_b32 v{vT+2}, 7, v{vT+2}')
    e.I(f'v_lshl_add_u32 v{vT+2}, v{vT}, 5, v{vT+2}')
    e.I(f'v_and_b32 v{vT}, 3, v1')
    e.I(f'v_lshl_add_u32 v{vT}, v{vT}, 3, v{vT+2}')
    bufoff = bufoff or [k * CH for k in range(NB)]
    for k in range(NB - 1, -1, -1):
        if bufoff[k]  or k: e.I(f'v_add_u32 v{vT+k}, {bufoff[k]}, v{vT}')
    chunks = []
    for (srd_, sofs, ab, nrows) in mats:
        for c in range(nrows // rows):
            chunks.append((srd_, sofs, ab + c * nk * 4, c * rows))
    e.I(f's_mul_i32 s55, s22, {8*RS}')
    e.I('s_lshl_b32 s56, s22, 10')
    def issue(ci, buf=None):
        srd_, sofs, ab, r0 = chunks[ci]
        if buf is None: buf = ci % NB
        e.I(f's_add_u32 s57, {sofs}, s55')
        if r0: e.I(f's_add_u32 s57, s57, {r0*RS}')
        for n in range(ninst):
            e.I(f's_add_u32 m0, s56, {bufoff[buf] + n*4096}')
            e.I(f'buffer_load_dwordx4 v{vA}, {srd_}, s57 offen{WFL[opt.wnt]} lds')
            if n + 1 < ninst: e.I(f's_add_u32 s57, s57, {32*RS}')
    def consume(ci, buf, pending):
        e.I(f's_waitcnt vmcnt({pending})')
        if ci < 8: TS(e, 2 + ci)
        e.I('s_barrier')
        srd_, sofs, ab, r0 = chunks[ci]
        for k in range(nk):
            e.I(f'ds_read_b64_tr_b16 {ar(ab+4*k,2)}, v{vT+buf} offset:{k*4096}')
            e.I(f'ds_read_b64_tr_b16 {ar(ab+4*k+2,2)}, v{vT+buf} offset:{k*4096+second}')
        e.I('s_waitcnt lgkmcnt(0)')
        e.I('s_barrier')
    if manual: return issue, consume
    for ci in range(min(NB, len(chunks))): issue(ci)
    for ci in range(len(chunks)):
        left = min(len(chunks) - 1 - ci, NB - 1)
        e.I(f's_waitcnt vmcnt({left*ninst})')
        if ci < 8: TS(e, 2 + ci)
        e.I('s_barrier')
        srd_, sofs, ab, r0 = chunks[ci]
        for k in range(nk):
            e.I(f'ds_read_b64_tr_b16 {ar(ab+4*k,2)}, v{vT+ci%NB} offset:{k*4096}')
            e.I(f'ds_read_b64_tr_b16 {ar(ab+4*k+2,2)}, v{vT+ci%NB} offset:{k*4096+second}')
        e.I('s_waitcnt lgkmcnt(0)')
        e.I('s_barrier')
        if ci + NB < len(chunks): issue(ci + NB)

def touch_jobs(e, jobs, sw, nw, sh, t, rot=0):
    sizes = sorted({min(n, 64) for _, _, n in jobs} | {n - 64 for _, _, n in jobs if n > 64})
    reg = {}
    for k, n in enumerate(sizes):
        reg[n] = t + 1 + k
        e.I(f'v_min_u32 v{reg[n]}, {n-1}, v1')
        e.I(f'v_lshlrev_b32 v{reg[n]}, 7, v{reg[n]}')
    flat = []
    for base, per, n in jobs:
        flat.append((base, per, min(n, 64)))
        if n > 64: flat.append((base + 8192, per, n - 64))
    for c in range(nw):
        sk = e.lab('Ltj')
        e.I(f's_cmp_lg_u32 {sw}, {c}')
        e.I(f's_cbranch_scc1 {sk}')
        for base, per, n in flat[(c - rot) % nw::nw]:
            e.I(f's_mul_i32 s38, {sh}, {per}')
            e.I(f's_add_u32 s38, s38, {base}')
            e.I(f'buffer_load_dword v{t}, v{reg[n]}, {WS}, s38 offen sc1')
        e.L(sk)

def prefetch_w(e, su, nw, lo, hi, t, srds):
    for k in range(3):
        e.I(f'v_add_u32 v{t+3}, {64*k}, v1')
        e.I(f'v_mul_u32_u24 v{t+4}, 0x1556, v{t+3}')
        e.I(f'v_lshrrev_b32 v{t+4}, 16, v{t+4}')
        e.I(f'v_mul_u32_u24 v{t+k}, 12, v{t+4}')
        e.I(f'v_sub_u32 v{t+3}, v{t+3}, v{t+k}')
        e.I(f'v_mul_u32_u24 v{t+k}, 12288, v{t+4}')
        e.I(f'v_lshl_add_u32 v{t+k}, v{t+3}, 7, v{t+k}')
    e.I('s_mul_i32 s39, s20, 1536')
    base = lo
    while base < hi:
        for m, (a_, b_) in enumerate(((0, 40), (40, 80))):
            if base + nw <= a_ or base >= b_ or srds[m] is None: continue
            sk = e.lab('Lpf')
            e.I(f's_add_u32 s38, {su}, {base}')
            e.I(f's_sub_u32 s38, s38, {a_}')
            e.I(f's_cmp_ge_u32 s38, {min(b_, hi) - a_}')
            e.I(f's_cbranch_scc1 {sk}')
            e.I(f's_mul_i32 s38, s38, {16*12288}')
            e.I('s_add_u32 s38, s38, s39')
            for k in range(3): e.I(f'buffer_load_dword v{t+3}, v{t+k}, {srds[m]}, s38 offen{WFL[opt.wnt]}')
            e.L(sk)
        base += nw

Q_LX, Q_LMEM = 0, 81920
def role_qkv(e):
    fl = ''
    WQ, WK, WV = 0, 80, 160
    MF = 16
    DQ, DK, DV = 96, 100, 104
    PA, PB = 108, 120
    XD = 132
    T0 = 160
    KEEP = 176; TCH = 180
    XA, VA, IDX, SEL = 182, 183, 184, 185
    SENT = 248; ONE = 252
    e.I('s_mul_i32 s24, s21, 43')
    e.I('s_lshr_b32 s24, s24, 7')
    e.I('s_mul_i32 s25, s24, 3')
    e.I('s_sub_u32 s25, s21, s25')
    e.I('s_lshl_b32 s26, s20, 2')
    e.I('s_add_u32 s26, s26, s24')
    e.I('s_lshl_b32 s27, s25, 2')
    e.I('s_add_u32 s27, s27, s22')
    srd(e, 8, 60, 640 * 12288); srd(e, 12, 62, 640 * 12288); srd(e, 16, 64, 640 * 12288)
    e.I('s_mul_i32 s28, s26, 384')
    e.I('s_lshl_b32 s29, s25, 7')
    e.I('s_add_u32 s28, s28, s29')
    w_issue, w_consume = load_weights(e, [('s[12:15]', 's28', WK, 640), ('s[16:19]', 's28', WV, 640), ('s[8:11]', 's28', WQ, 640)], 12288, 320, False, 240, 241, 3,
                                      bufoff=[81920, 122880, 40960], manual=True)
    for ci in range(3): w_issue(ci)
    e.I('s_mul_i32 s38, s22, 2560')
    e.I('v_add_u32 v3, s38, v2')
    e.I('v_and_b32 v4, 31, v1')
    e.I('v_lshlrev_b32 v4, 4, v4')
    e.I('v_add_u32 v4, s38, v4')
    e.I('v_add_u32 v4, 2048, v4')
    e.I(f'v_add_u32 v5, {Q_LMEM}, v3')
    e.I(f'v_add_u32 v6, {Q_LMEM}, v4')
    e.I(f'v_add_u32 v7, {Q_LMEM}, v2')
    lane_ig(e, 14, 15)
    e.I('s_lshr_b32 s38, s27, 1')
    e.I('s_lshl_b32 s38, s38, 10')
    e.I('s_and_b32 s39, s27, 1')
    e.I('s_lshl_b32 s39, s39, 3')
    e.I('s_add_u32 s38, s38, s39')
    e.I('v_add_u32 v8, s38, v2')
    e.I('v_bfe_u32 v11, v1, 2, 2')
    e.I('v_and_b32 v12, 3, v1')
    e.I(f'v_lshlrev_b32 v{XA}, 8, v11')
    e.I(f'v_lshl_add_u32 v{XA}, v15, 6, v{XA}')
    e.I(f'v_lshl_add_u32 v{XA}, v12, 4, v{XA}')
    e.I(f'v_add_u32 v{XA}, s38, v{XA}')
    e.I('v_and_b32 v13, 1, v15')
    e.I('v_lshlrev_b32 v13, 2, v13')
    e.I('v_lshrrev_b32 v9, 1, v15')
    e.I('v_lshl_add_u32 v13, v9, 1, v13')
    e.I('v_and_b32 v9, 1, v12')
    e.I('v_add_u32 v13, v13, v9')
    e.I('v_lshrrev_b32 v12, 1, v12')
    e.I('v_lshrrev_b32 v9, 1, v11')
    e.I('v_lshlrev_b32 v9, 8, v9')
    e.I('v_lshl_add_u32 v9, v12, 7, v9')
    e.I('v_lshl_add_u32 v9, v13, 4, v9')
    e.I(f'v_and_b32 v{VA}, 1, v11')
    e.I(f'v_lshl_add_u32 v9, v{VA}, 3, v9')
    e.I('s_lshl_b32 s38, s25, 10')
    e.I('s_lshr_b32 s39, s22, 1')
    e.I('s_lshl_b32 s39, s39, 9')
    e.I('s_add_u32 s38, s38, s39')
    e.I('s_and_b32 s39, s22, 1')
    e.I('s_lshl_b32 s39, s39, 2')
    e.I('s_add_u32 s38, s38, s39')
    e.I('v_add_u32 v9, s38, v9')
    e.I(f'v_lshlrev_b32 v{VA}, 8, v11')
    e.I(f'v_lshl_add_u32 v{VA}, v13, 4, v{VA}')
    e.I(f'v_lshl_add_u32 v{VA}, v12, 2, v{VA}')
    e.I('s_lshr_b32 s38, s27, 1')
    e.I('s_cmp_ge_u32 s38, 3')
    e.I('s_cselect_b32 s39, 3, 0')
    e.I('s_cselect_b32 s40, 128, 0')
    e.I('s_sub_u32 s38, s38, s39')
    e.I('s_lshl_b32 s38, s38, 10')
    e.I('s_add_u32 s38, s38, s40')
    e.I('s_and_b32 s39, s27, 1')
    e.I('s_lshl_b32 s39, s39, 3')
    e.I('s_add_u32 s38, s38, s39')
    e.I(f'v_add_u32 v{VA}, s38, v{VA}')
    e.I(f'v_mov_b32 v{IDX}, 0x44444444')
    e.I('v_mov_b32 v11, 0xeeeeeeee')
    e.I('v_cmp_lt_u32 vcc, 7, v14')
    e.I(f'v_cndmask_b32 v{IDX}, v{IDX}, v11, vcc')
    e.I(f'v_mov_b32 v{SEL}, 0x05040100')
    e.I('v_mov_b32 v11, 0x03020706')
    e.I('v_and_b32 v12, 1, v1')
    e.I('v_cmp_eq_u32 vcc, 1, v12')
    e.I(f'v_cndmask_b32 v{SEL}, v{SEL}, v11, vcc')
    e.I('s_mov_b32 s34, 0x33333333'); e.I('s_mov_b32 s35, 0x33333333')
    e.I('s_mov_b32 s36, 0xcccccccc'); e.I('s_mov_b32 s37, 0xcccccccc')
    for k in range(12): e.I(f'v_mov_b32 v{DQ+k}, 0')
    e.I('s_lshl_b32 s38, s27, 2')
    e.I(f'v_mov_b32 v{ONE+2}, s38')
    e.I(f'v_mov_b32 v{ONE}, 1')
    for k in range(4): e.I(f'v_mov_b32 v{SENT+k}, -1')
    e.I('s_mul_i32 s58, s26, 6144')
    e.I('s_mul_i32 s59, s20, 10240')
    e.I(f's_add_u32 s59, s59, {MEM}')
    e.I('s_mul_i32 s60, s26, 3072')
    e.I('s_lshl_b32 s61, s20, 6')
    e.I('s_lshl_b32 s38, s24, 2')
    e.I('s_add_u32 s61, s61, s38')
    e.I(f's_add_u32 s61, s61, {FLGOX}')
    e.I('v_mov_b32 v10, 0')

    def late_list():
        return [f'buffer_store_dwordx2 {vr(KEEP,2)}, v{XA}, {WS}, s43 offen{fl}',
                f'buffer_store_dwordx2 {vr(SENT,2)}, v{XA}, {WS}, s42 offen{fl}',
                f'buffer_store_dword v{KEEP+2}, v{VA}, {WS}, s44 offen{fl}',
                f'buffer_store_dword v{SENT}, v9, {WS}, s46 offen{fl}']
    def late_stores():
        for x_ in late_list(): e.I(x_)
    def xwork(late, mats=(2, 1, 0), dma=True):
        e.I('s_and_b32 s65, s64, 1')
        e.I('s_mul_i32 s66, s65, 40960')
        e.I('v_add_u32 v12, s66, v2')
        e.I('s_xor_b32 s65, s65, 1')
        e.I('s_mul_i32 s65, s65, 40960')
        e.I('s_add_u32 s65, s65, s62')
        e.I('s_add_u32 s66, s64, 1')
        e.I('s_min_u32 s66, s66, 63')
        e.I('s_mul_i32 s66, s66, 40960')
        e.I('s_add_u32 s66, s66, s62')
        e.I(f's_add_u32 s66, s66, {XN}')
        e.I(f's_and_b32 s47, s64, {RD-1}')
        e.I(f's_mul_i32 s47, s47, {SEG_QX}')
        e.I('s_lshl_b32 s48, s58, 1')
        e.I('s_add_u32 s47, s47, s48')
        if late:
            e.I(f's_max_u32 s50, s64, {RD}')
            e.I(f's_sub_u32 s50, s50, {RD}')
            e.I('s_lshl_b32 s50, s50, 9')
            e.I('s_add_u32 s50, s50, s61')
            e.I(f'buffer_load_dword v{TCH}, v10, {WS}, s50 offen sc1')
        PF = opt.xpf
        def rd(n): e.I(f'ds_read_b128 {vr(MF + (n % 20)*4)}, v12 offset:{n*1024}')
        def out(m, rt, part=3):
            d = XD + (m*2+rt)*4; o = T0 + (m*2+rt)*2
            if part & 1:
                e.I(f'v_cvt_pk_bf16_f32 v{o}, v{d}, v{d+1}')
                e.I(f'v_cvt_pk_bf16_f32 v{o+1}, v{d+2}, v{d+3}')
            if part & 2:
                e.I(f's_add_u32 s48, s47, {(QX, KX, VX)[m] + rt*6144}')
                e.I(f'buffer_store_dwordx2 {vr(o,2)}, v8, {WS}, s48 offen{fl}')
        for n in range(PF): rd(n)
        ls = late_list() if late else []
        d0 = opt.xdma0
        for n in range(40):
            rt, kk = n // 20, n % 20
            e.I(f's_waitcnt lgkmcnt({min(40, n + PF) - (n + 1)})')
            f = vr(MF + (n % 20)*4)
            for m in mats:
                Wb = (WQ, WK, WV)[m]
                d = vr(XD + (m*2+rt)*4)
                e.I(f'{MFMA} {d}, {ar(Wb+4*kk)}, {f}, {0 if kk == 0 else d}')
            if n + PF < 40: rd(n + PF)
            if late and n == 5:
                bp = e.lab('Lbp')
                e.I(f's_cmp_lt_u32 s64, {RD}')
                e.I(f's_cbranch_scc1 {bp}')
                e.I('s_waitcnt vmcnt(0)')
                e.I(f'v_cmp_eq_u32 vcc, 0, v{TCH}')
                e.I(f's_cbranch_vccz {bp}')
                wait_flags(e, 10, 's50', 1, TCH, 13, sleep=1)
                e.L(bp)
            if n >= 6 and ls: e.I(ls.pop(0))
            elif dma and n >= d0 and (n - d0) % opt.xdmas == 0 and (n - d0) // opt.xdmas < 10:
                m = (n - d0) // opt.xdmas
                e.I(f's_add_u32 m0, s65, {m*1024}')
                e.I(f'buffer_load_dwordx4 v2, {WS}, s66 offen lds')
                e.I('s_add_u32 s66, s66, 1024')
            k0 = 23 if len(mats) > 1 else 28
            if k0 <= n < k0 + len(mats): out(mats[n - k0], 0)
        for m in mats: out(m, 1)
    def flag_addr(back):
        e.I(f's_sub_u32 s51, s64, {back}')
        e.I('s_lshl_b32 s51, s51, 5')
        e.I('s_add_u32 s51, s51, s26')
        e.I('s_lshl_b32 s51, s51, 6')
        e.I(f's_add_u32 s51, s51, {FLGQ}')
    def flag_n():
        flag_addr(0)
        e.I('s_waitcnt vmcnt(0)')
        set_flag(e, ONE + 2, 's51', ONE, fl)
    def mem_part():
        e.I('s_and_b32 s38, s30, 3')
        e.I('s_xor_b32 s39, s38, 2')
        e.I(f's_mul_i32 s40, s38, {MEM_SLOT}')
        e.I('s_add_u32 s40, s40, s59')
        e.I(f's_mul_i32 s41, s38, {XR_SLOT}')
        e.I('s_add_u32 s41, s41, s58')
        e.I(f's_add_u32 s41, s41, {XR}')
        e.I(f's_mul_i32 s42, s39, {XR_SLOT}')
        e.I('s_add_u32 s42, s42, s58')
        e.I(f's_add_u32 s42, s42, {XR}')
        e.I(f's_and_b32 s44, s30, {RD-1}')
        e.I(f's_mul_i32 s43, s44, {SEG_XP}')
        e.I('s_add_u32 s43, s43, s58')
        e.I(f's_add_u32 s43, s43, {XP}')
        e.I(f's_mul_i32 s44, s44, {SEG_VM}')
        e.I('s_add_u32 s44, s44, s60')
        e.I(f's_add_u32 s44, s44, {VM}')
        e.I(f's_mul_i32 s45, s38, {VR_SLOT}')
        e.I('s_add_u32 s45, s45, s60')
        e.I(f's_add_u32 s45, s45, {VR}')
        e.I(f's_mul_i32 s46, s39, {VR_SLOT}')
        e.I('s_add_u32 s46, s46, s60')
        e.I(f's_add_u32 s46, s46, {VR}')
        def issue(b):
            e.I(f'buffer_load_dwordx4 {vr(b)}, v3, {WS}, s40 offen sc1')
            e.I(f'buffer_load_dwordx4 {vr(b+4)}, v3, {WS}, s40 offen offset:1024 sc1')
            e.I(f'buffer_load_dwordx4 {vr(b+8)}, v4, {WS}, s40 offen sc1')
        def consume(b):
            e.I(f'ds_write_b128 v5, {vr(b)}')
            e.I(f'ds_write_b128 v5, {vr(b+4)} offset:1024')
            e.I(f'ds_write_b128 v6, {vr(b+8)}')
        flag_addr(1)
        poll2(e, issue, 3, PA, PB, consume, T0, T0 + 1, 1)
        TS(e, 1)
        e.I('s_waitcnt lgkmcnt(0)')
        e.I('s_barrier')
        for m in range(10): e.I(f'ds_read_b128 {vr(MF+4*m)}, v7 offset:{m*1024}')
        if opt.fpos < 0: set_flag(e, ONE + 2, 's51', ONE, fl)
        e.I('s_mov_b64 vcc, s[34:35]')
        for m in range(10):
            e.I(f's_waitcnt lgkmcnt({9-m})')
            e.I(f'{SMF} {vr(DQ)}, {vr(MF+4*m)}, {ar(WQ+8*m,8)}, v{IDX}')
            e.I(f'{SMF} {vr(DK)}, {vr(MF+4*m)}, {ar(WK+8*m,8)}, v{IDX}')
            if m == opt.fpos: e.I(f'buffer_store_dword v{ONE}, v{ONE+2}, {WS}, s51 offen{fl}')
        def vm(m): e.I(f'{SMF} {vr(DV)}, {vr(MF+4*m)}, {ar(WV+8*m,8)}, v{IDX}')
        QP1, QP2 = 'quad_perm:[1,0,3,2] row_mask:0xf bank_mask:0xf', 'quad_perm:[2,3,0,1] row_mask:0xf bank_mask:0xf'
        nv = opt.vpre
        for m in range(nv): vm(m)
        if opt.fpos == 10: e.I(f'buffer_store_dword v{ONE}, v{ONE+2}, {WS}, s51 offen{fl}')
        for r in range(4): e.I(f'v_permlane32_swap_b32 v{DQ+r}, v{DK+r}')
        for r in range(4): e.I(f'v_add_f32 v{DQ+r}, v{DQ+r}, v{DK+r}')
        e.I(f'v_cvt_pk_bf16_f32 v{T0}, v{DQ}, v{DQ+1}')
        e.I(f'v_cvt_pk_bf16_f32 v{T0+1}, v{DQ+2}, v{DQ+3}')
        vm(nv)
        if opt.fpos == 11: e.I(f'buffer_store_dword v{ONE}, v{ONE+2}, {WS}, s51 offen{fl}')
        e.I(f'v_mov_b32_dpp v{T0+2}, v{T0} {QP1}')
        e.I(f'v_mov_b32_dpp v{T0+3}, v{T0+1} {QP1}')
        e.I(f'v_perm_b32 v{T0}, v{T0+2}, v{T0}, v{SEL}')
        e.I(f'v_perm_b32 v{T0+1}, v{T0+3}, v{T0+1}, v{SEL}')
        vm(nv + 1)
        if opt.fpos == 12: e.I(f'buffer_store_dword v{ONE}, v{ONE+2}, {WS}, s51 offen{fl}')
        e.I(f'v_cndmask_b32_dpp v{KEEP}, v{T0+1}, v{T0}, vcc {QP2}')
        e.I('s_mov_b64 vcc, s[36:37]')
        e.I(f'v_cndmask_b32_dpp v{KEEP+1}, v{T0}, v{T0+1}, vcc {QP2}')
        e.I(f'buffer_store_dwordx2 {vr(KEEP,2)}, v{XA}, {WS}, s41 offen{fl}')
        TS(e, 2)
        for m in range(nv + 2, 10): vm(m)
        for k in range(8): e.I(f'v_mov_b32 v{DQ+k}, 0')
        e.I(f'v_permlane32_swap_b32 v{DV}, v{DV+2}')
        e.I(f'v_permlane32_swap_b32 v{DV+1}, v{DV+3}')
        e.I(f'v_add_f32 v{DV}, v{DV}, v{DV+2}')
        e.I(f'v_add_f32 v{DV+1}, v{DV+1}, v{DV+3}')
        e.I(f'v_cvt_pk_bf16_f32 v{T0}, v{DV}, v{DV+1}')
        e.I(f'v_mov_b32_dpp v{T0+2}, v{T0} {QP1}')
        e.I(f'v_perm_b32 v{KEEP+2}, v{T0+2}, v{T0}, v{SEL}')
        e.I(f'buffer_store_dword v{KEEP+2}, v9, {WS}, s45 offen{fl}')
        for k in range(4): e.I(f'v_mov_b32 v{DV+k}, 0')
        TS(e, 3)
    w_consume(0, 0, 20); w_issue(3, 0)
    w_consume(1, 1, 20); w_issue(4, 1)
    w_consume(2, 2, 20)
    w_consume(3, 0, 10)
    w_consume(4, 1, 0)
    TS(e, 0)
    wait_reg(e, T0)
    TS(e, 1)
    TSflush(e, '69')
    e.I('s_mul_i32 s62, s22, 10240')
    def xdma(seg, buf):
        e.I(f's_add_u32 s63, s62, {XN + seg*40960}')
        for m in range(10):
            e.I(f's_add_u32 m0, s62, {Q_LX + buf*40960 + m*1024}')
            e.I(f'buffer_load_dwordx4 v2, {WS}, s63 offen lds')
            e.I('s_add_u32 s63, s63, 1024')
    xdma(0, 0)
    w_issue(5, 0)
    xdma(1, 1)
    e.I('s_cmp_lg_u32 s23, 0')
    e.I('s_cbranch_scc1 L_qkvs')
    for slow in (False, True):
        fl = ' sc1' if slow else ''
        if slow: e.L('L_qkvs')
        pro, top, nox, nxt_, q0, q0r, qq, q1 = [e.lab(x_) for x_ in ('Lqp', 'Lqt', 'Lqn', 'Lqx', 'Lq0', 'Lqr', 'Lqq', 'Lq1')]
        e.I('s_mov_b32 s30, 0')
        e.I('s_mov_b32 s64, 0')
        TS(e, 0)
        e.I('s_waitcnt vmcnt(20)')
        TS(e, 1)
        e.I('s_barrier')
        e.L(pro)
        xwork(False, (2, 1), False)
        e.I('s_add_u32 s64, s64, 1')
        e.I('s_cmp_eq_u32 s64, 2')
        e.I(f's_cbranch_scc1 {top}')
        TS(e, 2)
        flag_addr(1)
        e.I('s_waitcnt vmcnt(0)')
        TS(e, 3)
        set_flag(e, ONE + 2, 's51', ONE, fl)
        w_consume(5, 0, 1)
        if opt.urg: wait_count(e, T0, D_W, 80, 4)
        TS(e, 4)
        TSflush(e, '68')
        e.I(f's_branch {pro}')
        e.L(q0)
        e.I('s_mov_b32 s64, 0')
        e.L(qq)
        xwork(False, (0,), False)
        e.I('s_cmp_lg_u32 s64, 0')
        e.I(f's_cbranch_scc1 {q1}')
        e.I('s_barrier')
        xdma(2, 0)
        e.I('s_mov_b32 s64, 1')
        e.I(f's_branch {qq}')
        e.L(q1)
        e.I('s_mov_b32 s64, 2')
        e.I('s_waitcnt vmcnt(2)')
        e.I('s_barrier')
        e.I(f's_branch {q0r}')
        e.L(top)
        TS(e, 0)
        mem_part()
        e.I('s_cmp_eq_u32 s30, 0')
        e.I(f's_cbranch_scc1 {q0}')
        e.L(q0r)
        e.I('s_cmp_ge_u32 s64, 64')
        e.I(f's_cbranch_scc1 {nox}')
        xwork(True)
        e.I('s_cmp_lg_u32 s64, 63')
        e.I(f's_cbranch_scc1 {nxt_}')
        flag_n()
        e.I(f's_branch {nxt_}')
        e.L(nox)
        late_stores()
        flag_n()
        e.L(nxt_)
        TS(e, 4)
        e.I('s_add_u32 s64, s64, 1')
        TS(e, 5)
        TSflush(e, 's30')
        e.I('s_add_u32 s30, s30, 1')
        e.I('s_cmp_lt_u32 s30, 64')
        e.I(f's_cbranch_scc1 {top}')
        e.I('s_endpgm')

S_RED = 98304
def role_sw(e):
    fl = ''
    XF, KXF, VXF, VMF = 16, 40, 88, 136
    S, PB, PM = 148, 160, 164
    DW, DM, VWX, VWM = 168, 184, 200, 216
    OUT = DW
    PA = XF
    CI = 224
    T0 = 228; IDX = 246; SENT = 248; ONE = 252
    AONE, AHALF = 96, 100
    PAD = 240
    e.I('s_sub_u32 s24, s21, 12')
    e.I('s_lshl_b32 s25, s24, 2')
    e.I('s_add_u32 s25, s25, s22')
    e.I('s_lshl_b32 s26, s20, 2')
    e.I('s_add_u32 s26, s26, s22')
    srd(e, 8, 66, 6144 * 1280)
    def wo_load():
        e.I(f's_mul_i32 s28, s26, {192*1280}')
        e.I('s_lshl_b32 s29, s24, 7')
        e.I('s_add_u32 s28, s28, s29')
        e.I('v_lshrrev_b32 v17, 3, v1')
        e.I('v_bfe_u32 v18, v1, 4, 2')
        e.I('v_lshlrev_b32 v18, 1, v18')
        e.I('v_and_b32 v19, 7, v1')
        e.I('v_xor_b32 v19, v19, v18')
        e.I('v_mul_u32_u24 v16, 1280, v17')
        e.I('v_lshl_add_u32 v16, v19, 4, v16')
        e.I('s_mul_i32 s46, s22, 24576')
        for n in range(24):
            e.I(f's_add_u32 m0, s46, {n*1024}')
            e.I(f'buffer_load_dwordx4 v16, s[8:11], s28 offen{WFL[opt.wnt]} lds')
            if n < 23: e.I(f's_add_u32 s28, s28, {8*1280}')
        e.I('v_lshrrev_b32 v17, 2, v1')
        e.I('v_bfe_u32 v18, v17, 1, 2')
        e.I('v_lshlrev_b32 v17, 7, v17')
        e.I('v_and_b32 v19, 3, v1')
        e.I('v_lshl_add_u32 v17, v19, 3, v17')
        e.I('v_add_u32 v17, s46, v17')
        for ct in range(4):
            e.I(f'v_xor_b32 v19, {ct}, v18')
            e.I(f'v_lshl_add_u32 v{20+ct}, v19, 5, v17')
        for kk in range(6):
            e.I(f's_waitcnt vmcnt({20 - 4*kk})')
            for ct in range(4):
                e.I(f'ds_read_b64_tr_b16 {ar((ct*6+kk)*4,2)}, v{20+ct} offset:{kk*4096}')
                e.I(f'ds_read_b64_tr_b16 {ar((ct*6+kk)*4+2,2)}, v{20+ct} offset:{kk*4096+2048}')
        e.I('s_waitcnt lgkmcnt(0)')
    if opt.pfs:
        srd(e, 12, 64, 640 * 12288); srd(e, 16, 60, 640 * 12288)
        prefetch_w(e, 's25', 40, 0, opt.pfs, 24, ('s[12:15]', 's[16:19]'))
    nocal = e.lab('Lnc')
    e.I('s_cmp_lg_u32 s25, 8')
    e.I(f's_cbranch_scc1 {nocal}')
    e.I('s_lshl_b32 s38, s20, 7')
    e.I(f's_add_u32 s38, s38, {CAL}')
    e.I('s_add_u32 s39, s38, 8192')
    e.I('s_mov_b32 s40, -1'); e.I('s_mov_b32 s41, -1'); e.I('s_mov_b32 s42, 4')
    e.I('v_mov_b32 v10, 0')
    e.I('s_mov_b64 exec, 1')
    cal = e.lab('Lcal')
    e.L(cal)
    for so, acc in (('s38', 's40'), ('s39', 's41')):
        e.I(f'buffer_store_dword v10, v10, {WS}, {so} offen sc1')
        e.I('s_waitcnt vmcnt(0)')
        e.I('s_memtime s[44:45]')
        e.I('s_waitcnt lgkmcnt(0)')
        e.I(f'buffer_load_dword v11, v10, {WS}, {so} offen sc1')
        e.I('s_waitcnt vmcnt(0)')
        e.I('s_memtime s[46:47]')
        e.I('s_waitcnt lgkmcnt(0)')
        e.I('s_sub_u32 s46, s46, s44')
        e.I(f's_min_u32 {acc}, {acc}, s46')
    e.I('s_sub_u32 s42, s42, 1')
    e.I('s_cmp_lg_u32 s42, 0')
    e.I(f's_cbranch_scc1 {cal}')
    e.I('s_cmp_lt_u32 s41, s40')
    if opt.pflip: e.I('s_cmp_ge_u32 s41, s40')
    e.I('s_cselect_b32 s38, 2, 1')
    e.I('v_mov_b32 v11, s38')
    e.I('s_lshl_b32 s38, s20, 2')
    e.I('v_mov_b32 v10, s38')
    e.I(f'global_store_dword v10, v11, s[74:75] offset:{D_PAR} sc1')
    e.I('s_mov_b64 exec, -1')
    e.L(nocal)
    def early_touch():
        jobs = []
        for sl in range(2): jobs += [(b_ + sl * SEG_QX, 12288, 96) for b_ in (KX, VX)]
        for sl in range(2): jobs += [(QX + sl * SEG_QX, 12288, 96), (XP + sl * SEG_XP, 6144, 48), (VM + sl * SEG_VM, 3072, 24)]
        touch_jobs(e, jobs, 's24', 10, 's26', 24)
    if opt.tord == 0: early_touch()
    if not opt.swlate: wo_load()
    if opt.tord == 1: early_touch()
    e.I(f's_mov_b32 s52, {SC_L2E:#x}'); e.I(f's_mov_b32 s53, {SC_L2E | 0x80000000:#x}')
    lane_ig(e, 14, 15)
    e.I('v_and_b32 v13, 7, v14')
    e.I('v_lshlrev_b32 v13, 4, v13')
    e.I('v_lshl_add_u32 v13, v15, 7, v13')
    e.I('v_bfe_u32 v5, v1, 3, 1')
    e.I('s_lshl_b32 s38, s22, 9')
    e.I(f's_add_u32 s38, s38, {S_RED}')
    e.I('v_add_u32 v6, s38, v13')
    e.I('v_lshl_add_u32 v6, v5, 14, v6')
    e.I('s_lshl_b32 s38, s22, 11')
    e.I(f's_add_u32 s38, s38, {S_RED}')
    e.I('v_add_u32 v7, s38, v13')
    e.I('v_lshl_add_u32 v7, v5, 10, v7')
    if opt.pbf: e.I('v_lshrrev_b32 v13, 1, v13')
    e.I('v_lshl_add_u32 v13, v5, 13, v13')
    e.I('v_and_b32 v4, 0x1fff, v13')
    e.I('v_lshlrev_b32 v9, 2, v5')
    e.I('v_xor_b32 v9, s20, v9')
    for m in range(4):
        e.I(f'v_xor_b32 v8, {m}, v9')
        e.I(f'v_lshl_add_u32 v{PAD+m}, v8, 9, v4')
    e.I('v_and_b32 v9, 7, v1')
    e.I('v_lshlrev_b32 v8, 4, v9')
    e.I('v_lshl_add_u32 v8, v5, 7, v8')
    e.I('v_lshl_add_u32 v8, v15, 2, v8')
    e.I('s_lshl_b32 s38, s25, 8')
    e.I('v_add_u32 v8, s38, v8')
    e.I('v_lshrrev_b32 v9, 1, v1')
    e.I('v_lshlrev_b32 v9, 10, v9')
    e.I('v_and_b32 v10, 1, v1')
    e.I('v_lshl_add_u32 v9, v10, 3, v9')
    e.I(f'v_lshlrev_b32 v{ONE+1}, 2, v1')
    for k in range(4): e.I(f'v_mov_b32 v{SENT+k}, -1')
    e.I('s_mov_b32 s68, 0xff00ff00'); e.I('s_mov_b32 s69, 0xff00ff00')
    e.I('s_mov_b32 s70, 0x3f80'); e.I('s_mov_b32 s71, 0x3f800000')
    e.I(f'v_mov_b32 v{CI}, {NEG_BIG:#x}')
    e.I('s_mov_b32 vcc_lo, 0')
    e.I('s_mov_b32 vcc_hi, 0x00ff00ff')
    e.I(f'v_cndmask_b32 v{CI}, v{CI}, 0, vcc')
    for k in range(1, 4): e.I(f'v_mov_b32 v{CI+k}, v{CI}')
    e.I(f'v_mov_b32 v{IDX}, 0x44444444')
    e.I('v_mov_b32 v11, 0xeeeeeeee')
    e.I('v_cmp_lt_u32 vcc, 7, v14')
    e.I(f'v_cndmask_b32 v{IDX}, v{IDX}, v11, vcc')
    e.I('v_mov_b32 v11, 0x3f803f80')
    for k in range(4): e.I(f'v_accvgpr_write_b32 a{AONE+k}, v11')
    e.I('v_mov_b32 v11, 0x3f003f00')
    for k in range(2): e.I(f'v_accvgpr_write_b32 a{AHALF+k}, v11')
    e.I('s_mul_i32 s58, s26, 6144')
    e.I(f's_add_u32 s58, s58, {XR}')
    e.I('s_mul_i32 s57, s26, 3072')
    e.I(f's_add_u32 s57, s57, {VR}')
    e.I('s_lshr_b32 s59, s25, 1')
    e.I('s_lshl_b32 s59, s59, 14')
    e.I('s_and_b32 s38, s25, 1')
    e.I('s_lshl_b32 s38, s38, 12')
    e.I('s_add_u32 s59, s59, s38')
    e.I(f's_add_u32 s59, s59, {PART}')
    e.I('s_lshl_b32 s60, s20, 9')
    e.I('s_add_u32 s60, s60, s59')
    e.I('s_mul_i32 s61, s20, 10240')
    e.I(f's_add_u32 s61, s61, {MEM}')
    e.I('s_mul_i32 s62, s26, 12288')
    e.I('s_lshl_b32 s63, s26, 6')
    e.I(f's_add_u32 s63, s63, {FLGQ}')
    e.I('s_lshl_b32 s38, s20, 2')
    e.I('v_mov_b32 v10, s38')
    wait_flags(e, 10, D_PAR, 1, T0, 12, sleep=4, dbg=True)
    e.I(f'v_readfirstlane_b32 s38, v{T0}')
    e.I('s_nop 3')
    e.I('s_and_b32 s38, s38, 2')
    e.I('s_lshl_b32 s38, s38, 12')
    e.I('s_add_u32 s59, s59, s38')
    e.I('s_lshl_b32 s38, s22, 2')
    e.I(f's_add_u32 s38, s38, {S_RED + 8192}')
    e.I('v_lshlrev_b32 v10, 4, v14')
    e.I('v_add_u32 v10, s38, v10')
    e.I('v_and_b32 v11, 7, v14')
    e.I('v_lshlrev_b32 v11, 4, v11')
    e.I('v_bfe_u32 v12, v1, 3, 1')
    e.I('v_lshl_add_u32 v11, v12, 3, v11')
    e.I(f'v_add_u32 v11, {S_RED + 8192}, v11')
    e.I('v_min_u32 v12, 11, v1')
    e.I('v_lshlrev_b32 v12, 2, v12')
    def kv_loads(dst, base, q0=0, q1=12):
        if q0 >= q1: return
        e.I(f's_and_b32 s48, s49, {RD-1}')
        e.I(f's_mul_i32 s48, s48, {SEG_QX}')
        e.I('s_add_u32 s48, s48, s62')
        e.I(f's_add_u32 s48, s48, {base + (q0//4)*4096}')
        for q in range(q0, q1):
            if q % 4 == 0 and q > q0: e.I('s_add_u32 s48, s48, 4096')
            e.I(f'buffer_load_dwordx4 {vr(dst+4*q)}, v2, {WS}, s48 offen offset:{(q%4)*1024} sc1')
    def vx_loads():
        e.I(f's_and_b32 s48, s49, {RD-1}')
        e.I(f's_mul_i32 s48, s48, {SEG_QX}')
        e.I('s_add_u32 s48, s48, s62')
        e.I(f's_add_u32 s48, s48, {VX}')
        e.I('s_add_u32 s46, s48, 4096')
        e.I('s_add_u32 s56, s48, 8192')
        for kk in range(6):
            for rt in range(2):
                q = rt * 6 + kk
                e.I(f'buffer_load_dwordx4 {vr(VXF+4*q)}, v2, {WS}, {("s48", "s46", "s56")[q//4]} offen offset:{(q%4)*1024} sc1')
    def vw_grp(gi):
        kk, rt = gi // 2, gi % 2
        for ct in range(4):
            d = vr(DW + (ct*2+rt)*4)
            e.I(f'{MFMA} {d}, {vr(VXF+4*(rt*6+kk))}, {ar((ct*6+kk)*4)}, {0 if kk == 0 else d}')
    def vw_x(after, extra=(), nvx=0, g0=0):
        extra = list(extra); nx0 = len(extra)
        for gi in range(g0, 12):
            if gi >= 12 - nvx: e.I(f's_waitcnt vmcnt({11 - gi + nx0 - len(extra)})')
            for _ in range(-(-len(extra) // (12 - gi))): e.I(extra.pop(0))
            if after is not None: e.I(f's_waitcnt vmcnt({after + 11 - gi})')
            vw_grp(gi)
        cv = [f'v_cvt_pk_bf16_f32 v{VWX+4*ct+k}, v{DW+8*ct+2*k}, v{DW+8*ct+2*k+1}' for ct in range(4) for k in range(4)] + [f'v_mov_b32 v{DM+k}, 0' for k in range(16)]
        for n_, x_ in enumerate(cv):
            if extra and n_ % 2 == 0: e.I(extra.pop(0))
            e.I(x_)
    TS(e, 0)
    wait_reg(e, T0, opt.rsleep)
    TS(e, 1)
    if opt.swlate: wo_load()
    if opt.tord == 2: early_touch()
    TS(e, 2)
    TSflush(e, '69', 244, 245)
    if opt.touch2:
        e.I('v_lshrrev_b32 v16, 4, v1')
        e.I(f's_mov_b32 s38, {PART_SLOT}')
        e.I('v_mul_lo_u32 v16, s38, v16')
        e.I('v_bfe_u32 v17, v1, 1, 3')
        e.I('v_lshl_add_u32 v16, v17, 9, v16')
        e.I('v_and_b32 v17, 1, v1')
        e.I('v_lshl_add_u32 v16, v17, 7, v16')
        e.I(f'buffer_load_dword v17, v16, {WS}, s59 offen sc1')
    wait_flags(e, ONE + 1, 's63', 0xfff, T0, 11, sleep=2)
    e.I('s_mov_b32 s49, 0')
    vx_loads()
    kv_loads(KXF, KX)
    vw_x(12)
    e.I('s_cmp_lg_u32 s23, 0')
    e.I('s_cbranch_scc1 L_sws')
    for slow in (False, True):
        fl = ' sc1' if slow else ''
        if slow: e.L('L_sws')
        top = e.lab('Lwt')
        e.I('s_mov_b32 s30, 0')
        e.L(top)
        TS(e, 0)
        if opt.pdiag: e.I('s_mov_b32 s94, 0')
        e.I('s_and_b32 s38, s30, 3')
        e.I('s_xor_b32 s39, s38, 2')
        e.I(f's_mul_i32 s40, s38, {XR_SLOT}')
        e.I('s_add_u32 s40, s40, s58')
        e.I('s_add_u32 s54, s40, 4096')
        e.I(f's_mul_i32 s55, s38, {VR_SLOT}')
        e.I('s_add_u32 s55, s55, s57')
        if opt.fresh:
            e.I(f's_mul_i32 s41, s30, {PART_SLOT}')
            e.I(f's_add_u32 s41, s41, {SCRATCH + 0x400000 - PART + 0x200000}')
        else:
            e.I(f's_mul_i32 s41, s38, {PART_SLOT}')
        e.I('s_add_u32 s42, s41, s60')
        e.I('s_add_u32 s41, s41, s59')
        if opt.fresh:
            e.I('s_lshr_b32 s47, s41, 8')
            e.I('s_not_b32 s47, s47')
            e.I('s_and_b32 s47, s47, 8192')
            e.I('s_xor_b32 s41, s41, s47')
        e.I('s_xor_b32 s47, s41, 8192')
        e.I(f's_mul_i32 s43, s39, {PART_SLOT}')
        e.I('s_add_u32 s43, s43, s60')
        e.I('s_add_u32 s49, s30, 1')
        e.I('s_and_b32 s44, s49, 3')
        e.I('s_xor_b32 s45, s44, 2')
        e.I(f's_mul_i32 s44, s44, {MEM_SLOT}')
        e.I('s_add_u32 s44, s44, s61')
        e.I(f's_mul_i32 s45, s45, {MEM_SLOT}')
        e.I('s_add_u32 s45, s45, s61')
        e.I(f's_and_b32 s46, s49, {RD-1}')
        e.I(f's_mul_i32 s46, s46, {SEG_QX}')
        e.I('s_add_u32 s46, s46, s62')
        e.I(f's_add_u32 s65, s46, {KX}')
        e.I(f's_add_u32 s46, s46, {VX}')
        e.I('s_add_u32 s56, s46, 4096')
        e.I('s_add_u32 s64, s46, 8192')
        e.I('s_add_u32 s66, s65, 4096')
        e.I('s_add_u32 s67, s65, 8192')
        e.I('s_lshl_b32 s50, s49, 11')
        e.I('s_add_u32 s50, s50, s63')
        pl, pd, fr, hl, hd = e.lab('Lxp'), e.lab('Lxd'), e.lab('Lxf'), e.lab('Lhp'), e.lab('Lhd')
        def probe(lp, dn, va, so, bad):
            e.I('s_mov_b64 exec, 0xfff')
            e.I(f'buffer_load_dword v{T0}, v{va}, {WS}, {so} offen sc1')
            e.L(lp)
            for a_, b_ in ((T0, T0 + 1), (T0 + 1, T0)):
                e.I(f'buffer_load_dword v{b_}, v{va}, {WS}, {so} offen sc1')
                e.I('s_waitcnt vmcnt(1)')
                e.I(f'v_cmp_eq_u32 vcc, {bad}, v{a_}')
                e.I(f's_cbranch_vccz {dn}')
            e.I('s_sub_u32 s31, s31, 1')
            e.I(f's_cbranch_scc0 {lp}')
            e.I('s_mov_b32 s31, 2')
            e.I('s_branch L_fail')
        e.I(f's_mov_b32 s31, {TMO}')
        probe(hl, hd, 12, 's50', 0)
        xp = e.lab('Lxq')
        e.L(xp)
        probe(pl, pd, 9, 's40', -1)
        e.L(hd)
        if opt.hdelay: e.I(f's_nop {opt.hdelay - 1}')
        if not opt.heads: e.I(f's_branch {xp}')
        e.L(pd)
        e.I('s_mov_b64 exec, -1')
        TS(e, 1)
        if opt.pdiag: e.I('s_add_u32 s94, s94, 1')
        e.L(fr)
        for p in range(6):
            e.I(f'buffer_load_dwordx4 {vr(XF+4*p)}, v2, {WS}, {"s40" if p < 4 else "s54"} offen offset:{(p%4)*1024} sc1')
        FQ = CI + 23
        def vm_loads():
            for q in range(3):
                e.I(f'buffer_load_dwordx4 {vr(VMF+4*q)}, v2, {WS}, s55 offen offset:{q*1024} sc1')
        vp = opt.vmpos
        nvm = 0
        if vp == 0: vm_loads(); nvm = 3
        for p in range(6):
            x = vr(XF + 4*p)
            e.I(f's_waitcnt vmcnt({5-p+nvm})')
            e.I(f'{MFMA} {vr(S+4)}, {vr(KXF+4*p)}, {x}, {0 if p == 0 else vr(S+4)}')
            e.I(f'{MFMA} {vr(S+8)}, {vr(KXF+24+4*p)}, {x}, {0 if p == 0 else vr(S+8)}')
            e.I(f'{MFMA} {vr(S)}, {x}, {x}, {vr(CI) if p == 0 else vr(S)}')
            if vp == p + 1: vm_loads(); nvm = 3
            r = XF + 4 * p
            if p == 0:
                e.I(f'v_max3_u32 v{T0+2}, v{r}, v{r+1}, v{r+2}')
                e.I(f'v_max_u32 v{T0+2}, v{T0+2}, v{r+3}')
            else:
                e.I(f'v_max3_u32 v{T0+2}, v{T0+2}, v{r}, v{r+1}')
                e.I(f'v_max3_u32 v{T0+2}, v{T0+2}, v{r+2}, v{r+3}')
        e.I(f'v_cmp_eq_u32 vcc, -1, v{T0+2}')
        ok = e.lab('Lxo')
        e.I(f's_cbranch_vccz {ok}')
        e.I('s_sub_u32 s31, s31, 1')
        e.I('s_nop 7')
        e.I(f's_cbranch_scc0 {xp}')
        e.I('s_mov_b32 s31, 2')
        e.I('s_branch L_fail')
        e.L(ok)
        TS(e, 2)
        vl, vd = e.lab('Lvp'), e.lab('Lvd')
        e.L(vl)
        e.I('s_waitcnt vmcnt(0)')
        check_sent(e, range(VMF, VMF + 12), T0 + 2, T0 + 3)
        e.I(f's_cbranch_vccz {vd}')
        vm_loads()
        e.I('s_sub_u32 s31, s31, 1')
        e.I(f's_cbranch_scc0 {vl}')
        e.I('s_mov_b32 s31, 3')
        e.I('s_branch L_fail')
        e.L(vd)
        TS(e, 3)
        PW = 2 if opt.pbf else 4
        if opt.rpos == 0: e.I(f'buffer_store_dwordx{PW} {vr(SENT,PW)}, v13, {WS}, s43 offen sc1')
        ROR8 = 'row_ror:8 row_mask:0xf bank_mask:0xf'
        sm = [f'{SMF} {vr(DM+4*ct)}, {vr(VMF+4*m)}, {ar((ct*6+2*m)*4,8)}, v{IDX}' for m in range(3) for ct in range(4)]
        t = T0 + 2
        V = []
        for r in range(4): V.append(f'v_mov_b32_dpp v{S+4+r}, v{S+8+r} row_shr:8 row_mask:0xf bank_mask:0xc')
        V += [f'v_max3_f32 v{t}, v{S}, v{S+1}, v{S+2}', f'v_max3_f32 v{t+1}, v{S+3}, v{S+4}, v{S+5}', f'v_max3_f32 v{t}, v{t}, v{S+6}, v{S+7}', f'v_max_f32 v{t}, v{t}, v{t+1}',
              '*', '*', f'v_max_f32_dpp v{t}, v{t}, v{t} {ROR8}', f'v_mov_b32 v{t+1}, v{t}', '*', '*', f'v_permlane16_swap_b32 v{t}, v{t+1}', f'v_max_f32 v{t}, v{t}, v{t+1}',
              f'v_mov_b32 v{t+1}, v{t}', '*', '*', f'v_permlane32_swap_b32 v{t}, v{t+1}', f'v_max_f32 v{t}, v{t}, v{t+1}', f'v_mul_f32 v{t}, s53, v{t}']
        order = [4, 5, 6, 7, 0, 1, 2, 3]
        for i in order: V.append(f'v_fma_f32 v{S+i}, v{S+i}, s52, v{t}')
        for n_, i in enumerate(order):
            V.append(f'v_exp_f32 v{S+i}, v{S+i}')
        bulk = [f'buffer_load_dwordx4 {vr(VXF+4*q)}, v2, {WS}, {("s46", "s56", "s64")[q//4]} offen offset:{(q%4)*1024} sc1' for q in (0, 6, 1, 7, 2, 8, 3, 9, 4, 10, 5, 11)]
        bulk += [f'buffer_load_dwordx4 {vr(KXF+4*q)}, v2, {WS}, {("s65", "s66", "s67")[q//4]} offen offset:{(q%4)*1024} sc1' for q in range(12)]
        kin = bulk[:opt.kin]; kp = bulk[opt.kin:opt.kin + opt.kp]; kc = bulk[opt.kin + opt.kp:]
        if opt.nobulk & 1: kin = []
        if opt.nobulk & 2: kp = []
        if opt.nobulk & 4: kc = []
        def ld():
            if kin: e.I(kin.pop(0))
        for x_ in sm[:opt.smpre]: e.I(x_)
        rest = sm[opt.smpre:]
        cost = 0; prev = None; nld = 0
        for x_ in V:
            if x_ == '*':
                if prev == '*' or cost == 0 or not rest: ld()
                else: e.I(rest.pop(0)); cost = 0
            else:
                e.I(x_); cost += 2 if 'v_exp' in x_ else 1
                if cost >= opt.smgap and rest: e.I(rest.pop(0)); cost = 0
                elif not rest and cost >= opt.ldgap: ld(); cost = 0
            prev = x_
        for x_ in rest: e.I(x_)
        e.I(f'v_cvt_pk_bf16_f32 v{PB}, v{S+4}, v{S+5}')
        e.I(f'v_cvt_pk_bf16_f32 v{PB+1}, v{S+6}, v{S+7}')
        e.I(f'v_cvt_pk_bf16_f32 v{PM}, v{S}, v{S+1}')
        e.I(f'v_cvt_pk_bf16_f32 v{PM+1}, v{S+2}, v{S+3}')
        e.I(f'v_mov_b32_dpp v{PB+2}, v{PB} {ROR8}')
        e.I(f'v_mov_b32_dpp v{PB+3}, v{PB+1} {ROR8}')
        e.I(f'v_mov_b32 v{t}, v{PM}')
        e.I(f'v_mov_b32 v{t+1}, v{PM+1}')
        if opt.tpos == 0: TS(e, 4)
        def cvm(ct):
            e.I(f'v_cvt_pk_bf16_f32 v{VWM+2*ct}, v{DM+4*ct}, v{DM+4*ct+1}')
            e.I(f'v_cvt_pk_bf16_f32 v{VWM+2*ct+1}, v{DM+4*ct+2}, v{DM+4*ct+3}')
        SUM = S
        e.I(f'{MFMA} {vr(OUT)}, {vr(VWX)}, {vr(PB)}, 0')
        e.I(f'v_permlane32_swap_b32 v{t}, v{PM}')
        e.I(f'v_permlane32_swap_b32 v{t+1}, v{PM+1}')
        e.I(f'{MFMA} {vr(SUM)}, {ar(AONE)}, {vr(PB)}, 0')
        cvm(0)
        e.I(f'{MFMA} {vr(OUT+4)}, {vr(VWX+4)}, {vr(PB)}, 0')
        cvm(1)
        e.I(f'{MFMA} {vr(OUT+8)}, {vr(VWX+8)}, {vr(PB)}, 0')
        cvm(2)
        e.I(f'{MFMA} {vr(OUT+12)}, {vr(VWX+12)}, {vr(PB)}, 0')
        cvm(3)
        e.I(f'{MFMA16} {vr(OUT)}, {vr(VWM,2)}, {vr(PM,2)}, {vr(OUT)}')
        ld()
        e.I(f'{MFMA16} {vr(SUM)}, {ar(AHALF,2)}, {vr(PM,2)}, {vr(SUM)}')
        ld()
        for ct in range(1, 4):
            e.I(f'{MFMA16} {vr(OUT+4*ct)}, {vr(VWM+2*ct,2)}, {vr(PM,2)}, {vr(OUT+4*ct)}')
            if ct < 3: ld()
        while kin: ld()
        if opt.tpos == 1: TS(e, 4)
        e.I('s_not_b64 exec, s[68:69]')
        e.I(f'ds_write_b128 v6, {vr(OUT)}')
        e.I(f'v_rcp_f32 v{t}, v{SUM}')
        e.I(f'ds_write_b128 v6, {vr(OUT+4)} offset:2048')
        e.I(f'ds_write_b32 v10, v{t}')
        e.I(f'ds_write_b128 v6, {vr(OUT+8)} offset:4096')
        e.I(f'ds_write_b128 v6, {vr(OUT+12)} offset:6144')
        e.I('s_mov_b64 exec, -1')
        e.I('s_waitcnt lgkmcnt(0)')
        if opt.tpos == 2: TS(e, 4)
        e.I('s_barrier')
        if opt.tpos == 3: TS(e, 4)
        e.I(f'ds_read_b64 {vr(t,2)}, v11')
        e.I(f'ds_read_b128 {vr(S)}, v7')
        e.I(f'ds_read_b128 {vr(S+4)}, v7 offset:512')
        e.I('s_waitcnt lgkmcnt(1)')
        for k in range(4): e.I(f'v_mul_f32 v{S+k}, v{S+k}, v{t}')
        e.I('s_waitcnt lgkmcnt(0)')
        for k in range(4): e.I(f'v_fmac_f32 v{S+k}, v{S+4+k}, v{t+1}')
        for k in range(4): e.I(f'v_add_f32_dpp v{S+k}, v{S+k}, v{S+k} {ROR8}')
        if opt.pbf:
            e.I(f'v_cvt_pk_bf16_f32 v{S+4}, v{S}, v{S+1}')
            e.I(f'v_cvt_pk_bf16_f32 v{S+5}, v{S+2}, v{S+3}')
            e.I(f'buffer_store_dwordx2 {vr(S+4,2)}, v13, {WS}, s42 offen sc1')
        else:
            e.I(f'buffer_store_dwordx4 {vr(S)}, v13, {WS}, s42 offen sc1')
        TS(e, 5)
        if opt.rpos == 2: e.I(f'buffer_store_dwordx{PW} {vr(SENT,PW)}, v13, {WS}, s43 offen sc1')
        e.I(f'v_mov_b32 v{PA}, 0'); e.I(f'v_mov_b32 v{PA+1}, 0')
        for k in range(4): e.I(f'v_cndmask_b32 v{S+k}, v{S+k}, 0, s[68:69]')
        if opt.pmf:
            e.I('s_waitcnt vmcnt(2)')
            for gi in range(opt.pmf): vw_grp(gi)
        if opt.pdelay: e.I(f's_sleep {opt.pdelay}')
        def shot():
            e.I('s_mov_b64 exec, s[68:69]')
            e.I(f'buffer_load_dwordx2 {vr(PA,2)}, v{PAD}, {WS}, s41 offen sc1')
            e.I('s_mov_b64 exec, -1')
            for m in range(1, 4): e.I(f'buffer_load_dwordx2 {vr(PA+2*m,2)}, v{PAD+m}, {WS}, s41 offen sc1')
            for k in range(4): e.I(f'v_mov_b32 v{T0+8+k}, v{S+k}')
        ql, qd, qf = e.lab('Lpp'), e.lab('Lpd'), e.lab('Lpf')
        shot()
        for gi in range(opt.pmf, opt.pmf + opt.pmf2): vw_grp(gi)
        e.I(f's_branch {qf}')
        e.L(ql)
        shot()
        e.L(qf)
        for m in range(4):
            e.I(f's_waitcnt vmcnt({3-m})')
            if m == 0: e.I(f'v_max_u32 v{T0}, v{PA}, v{PA+1}')
            else: e.I(f'v_max3_u32 v{T0}, v{T0}, v{PA+2*m}, v{PA+2*m+1}')
            if m == 3: e.I(f'v_cmp_eq_u32 vcc, -1, v{T0}')
            for k in range(4): e.I(f'v_dot2c_f32_bf16 v{T0+8+k}, {("s70", "s71")[k&1]}, v{PA+2*m+(k>>1)}')
        e.I(f's_cbranch_vccz {qd}')
        e.I('s_sub_u32 s31, s31, 1')
        e.I(f's_cbranch_scc0 {ql}')
        e.I('s_mov_b32 s31, 4')
        e.I('s_branch L_fail')
        e.L(qd)
        TS(e, 6)
        e.I('s_nop 1')
        for k in range(2): e.I(f'v_add_f32_dpp v{T0+4+k}, v{T0+8+k}, v{T0+8+k} row_ror:8 row_mask:0xf bank_mask:0x3')
        for k in range(2): e.I(f'v_add_f32_dpp v{T0+4+k}, v{T0+10+k}, v{T0+10+k} row_ror:8 row_mask:0xf bank_mask:0xc ; merge')
        e.I(f'v_cvt_pk_bf16_f32 v{T0+4}, v{T0+4}, v{T0+5}')
        e.I(f'buffer_store_dword v{T0+4}, v8, {WS}, s44 offen{fl}')
        TS(e, 7)
        e.I(f'buffer_store_dword v{SENT}, v8, {WS}, s45 offen{fl}')
        if opt.mbar: e.I('s_barrier')
        nvx = max(0, 12 - opt.kin - opt.kp)
        for x_ in kc[:nvx]: e.I(x_)
        assert opt.kin >= opt.pmf + opt.pmf2
        vw_x(None, kc[nvx:], nvx, opt.pmf + opt.pmf2)
        TS(e, 8)
        TSflush(e, 's30', 244, 245)
        e.I('s_add_u32 s30, s30, 1')
        e.I('s_cmp_lt_u32 s30, 63')
        e.I(f's_cbranch_scc1 {top}')
        e.I('s_endpgm')

def role_xw(e):
    OF = 16
    D = 112
    T0 = 160; ONE = 252
    e.I('s_sub_u32 s24, s21, 22')
    srd(e, 8, 66, 6144 * 1280)
    e.I(f's_mul_i32 s28, s20, {768*1280}')
    e.I('s_lshl_b32 s29, s24, 8')
    e.I('s_add_u32 s28, s28, s29')
    e.I('s_add_u32 s29, s28, 128')
    e.I(f'v_lshlrev_b32 v{ONE+1}, 2, v1')
    e.I('s_lshl_b32 s38, s20, 8')
    e.I(f's_add_u32 s38, s38, {FLGQ}')
    if opt.xlate & 1: wait_first(e, T0)
    if opt.touch:
        jobs = []
        for sl in range(RD):
            if sl >= 2: jobs += [(b_ + sl * SEG_QX, 12288, 96) for b_ in (KX, VX, QX)] + [(XP + sl * SEG_XP, 6144, 48), (VM + sl * SEG_VM, 3072, 24)]
            if sl >= 2: jobs += [(OX + (sl - 2) * SEG_QX, 12288, 96)]
        jobs += [(OX + sl * SEG_QX, 12288, 96) for sl in (6, 7)]
        e.I('s_lshl_b32 s40, s20, 2')
        e.I('s_add_u32 s40, s40, s22')
        touch_jobs(e, jobs, 's24', 5, 's40', 16)
    pass
    load_weights(e, [('s[8:11]', 's28', 0, 768), ('s[8:11]', 's29', 96, 768)], 1280, 256, True, 3, 4)
    e.I(f'v_lshlrev_b32 v{ONE+1}, 2, v1')
    e.I('s_lshl_b32 s38, s20, 2')
    e.I('s_add_u32 s38, s38, s22')
    e.I('s_lshl_b32 s39, s38, 2')
    e.I('v_lshlrev_b32 v3, 7, v1')
    e.I('v_add_u32 v3, s39, v3')
    e.I(f'v_mov_b32 v{ONE}, 1')
    e.I('s_mul_i32 s62, s22, 12288')
    e.I('s_mul_i32 s63, s38, 12288')
    e.I(f's_add_u32 s63, s63, {OX}')
    e.I('s_mul_i32 s64, s20, 40960')
    e.I('s_lshl_b32 s65, s24, 2')
    e.I('s_add_u32 s65, s65, s22')
    e.I('s_lshl_b32 s65, s65, 10')
    e.I('s_add_u32 s64, s64, s65')
    e.I(f's_add_u32 s64, s64, {PX}')
    e.I('s_lshl_b32 s66, s24, 8')
    e.I(f's_add_u32 s66, s66, {FLGPX}')
    def pxflag():
        e.I('s_mov_b64 exec, 3')
        e.I(f'buffer_store_dword v{ONE}, v3, {WS}, s54 offen sc1')
        e.I('s_mov_b64 exec, s[60:61]')
        e.I(f'buffer_store_dword v{ONE}, v6, {WS}, s53 offen sc1')
        e.I('s_mov_b64 exec, -1')
    wait_reg(e, T0)
    top, nof, late, nxt_, last = e.lab('Lxt'), e.lab('Lxn'), e.lab('Lxl'), e.lab('Lxx'), e.lab('Lxe')
    e.I('s_lshl_b32 s67, s20, 6')
    e.I('s_lshl_b32 s38, s22, 2')
    e.I('s_add_u32 s67, s67, s38')
    e.I(f's_add_u32 s67, s67, {FLGOX}')
    e.I('s_lshl_b32 s38, s20, 5')
    e.I('s_add_u32 s38, s38, s24')
    e.I('s_lshl_b32 s38, s38, 2')
    e.I('v_mov_b32 v6, s38')
    e.I('v_mov_b32 v4, 0')
    e.I('v_mov_b32 v5, v2')
    def dma(sn):
        e.I(f's_and_b32 s55, {sn}, {RD-1}')
        e.I(f's_mul_i32 s55, s55, {SEG_QX}')
        e.I('s_add_u32 s55, s55, s63')
        e.I(f's_and_b32 s56, {sn}, 1')
        e.I('s_mul_i32 s56, s56, 49152')
        e.I('s_add_u32 s56, s56, s62')
        for m in range(12):
            e.I(f's_add_u32 m0, s56, {m*1024}')
            e.I(f'buffer_load_dwordx4 v2, {WS}, s55 offen sc1 lds')
            if m < 11: e.I('s_add_u32 s55, s55, 1024')
    e.I('s_mov_b32 s30, 0')
    wait_flags(e, 4, 's67', 1, T0, 5, sleep=opt.xsleep)
    dma('s30')
    e.L(top)
    TS(e, 0)
    e.I('s_add_u32 s58, s30, 1')
    e.I('s_min_u32 s57, s58, 63')
    e.I('s_lshl_b32 s57, s57, 9')
    e.I('s_add_u32 s57, s57, s67')
    e.I(f'buffer_load_dword v{T0}, v4, {WS}, s57 offen sc1')
    e.I('s_waitcnt vmcnt(0)')
    e.I('s_cmp_eq_u32 s30, 0')
    e.I(f's_cbranch_scc1 {nof}')
    e.I('s_cmp_lg_u32 s59, 0')
    e.I(f's_cbranch_scc1 {nof}')
    pxflag()
    e.L(nof)
    e.I(f'v_readfirstlane_b32 s59, v{T0}')
    e.I('s_barrier')
    TS(e, 1)
    e.I('s_cmp_eq_u32 s30, 63')
    e.I('s_cselect_b32 s59, 0, s59')
    e.I('s_cmp_eq_u32 s59, 0')
    e.I(f's_cbranch_scc1 {late}')
    dma('s58')
    e.L(late)
    e.I(f's_mul_i32 s50, s30, {SEG_PX}')
    e.I('s_add_u32 s50, s50, s64')
    e.I('s_add_u32 s51, s50, 20480')
    e.I('s_mul_i32 s54, s30, 1280')
    e.I('s_add_u32 s54, s54, s66')
    e.I('s_and_b32 s53, s30, 3')
    e.I('s_lshl_b32 s53, s53, 10')
    e.I(f's_add_u32 s53, s53, {HINT}')
    e.I(f's_cmp_ge_u32 s30, {opt.cwarm}')
    e.I('s_cselect_b32 s60, 1, 0')
    e.I('s_cmp_eq_u32 s22, 0')
    e.I('s_cselect_b32 s60, s60, 0')
    e.I('s_mov_b32 s61, 0')
    TS(e, 2)
    PF = 6
    def rd(kk):
        hl, p = kk // 6, kk % 6
        for qt in range(2):
            e.I(f'ds_read_b128 {vr(OF + ((2*kk+qt) % 24)*4)}, v5 offset:{hl*12288 + (qt*6+p)*1024}')
    for kk in range(PF): rd(kk)
    for kk in range(24):
        nxt = min(24, kk + PF) - (kk + 1)
        e.I(f's_waitcnt lgkmcnt({2*nxt})')
        for qt in range(2):
            for b in range(2):
                d = vr(D + 4*(qt*2+b))
                e.I(f'{MFMA} {d}, {ar(96*b+4*kk)}, {vr(OF + ((2*kk+qt) % 24)*4)}, {0 if kk == 0 else d}')
        if kk + PF < 24: rd(kk + PF)
        if kk == 16: e.I(f'buffer_load_dword v{T0}, v4, {WS}, s57 offen sc1')
    sc = e.lab('Lxs')
    e.I('s_cmp_lg_u32 s59, 0')
    e.I(f's_cbranch_scc1 {sc}')
    e.I('s_cmp_eq_u32 s30, 63')
    e.I(f's_cbranch_scc1 {sc}')
    e.I('s_waitcnt vmcnt(0)')
    e.I(f'v_readfirstlane_b32 s59, v{T0}')
    e.I('s_cmp_eq_u32 s59, 0')
    e.I(f's_cbranch_scc1 {sc}')
    dma('s58')
    e.L(sc)
    for qt, so in enumerate(('s50', 's51')):
        for k in range(4): e.I(f'v_cvt_pk_bf16_f32 v{D+16+4*qt+k}, v{D+8*qt+2*k}, v{D+8*qt+2*k+1}')
        e.I(f'buffer_store_dwordx4 {vr(D+16+4*qt)}, v2, {WS}, {so} offen sc1')
    e.I('v_xor_b32 v5, 49152, v5')
    TS(e, 3)
    TSflush(e, 's30')
    e.I('s_cmp_eq_u32 s30, 63')
    e.I(f's_cbranch_scc1 {last}')
    e.I('s_cmp_lg_u32 s59, 0')
    e.I('s_mov_b32 s59, 0')
    e.I(f's_cbranch_scc1 {nxt_}')
    e.I(f'buffer_load_dword v{T0}, v4, {WS}, s57 offen sc1')
    e.I('s_waitcnt vmcnt(0)')
    e.I(f'v_readfirstlane_b32 s38, v{T0}')
    e.I('s_cmp_lg_u32 s38, 0')
    sl2 = e.lab('Lxq')
    e.I(f's_cbranch_scc1 {sl2}')
    pxflag()
    e.I('s_mov_b32 s59, 1')
    wait_flags(e, 4, 's57', 1, T0, 5, sleep=opt.xsleep)
    e.L(sl2)
    dma('s58')
    e.L(nxt_)
    e.I('s_mov_b32 s30, s58')
    e.I(f's_branch {top}')
    e.L(last)
    e.I('s_waitcnt vmcnt(0)')
    pxflag()
    e.I('s_endpgm')

def role_att(e):
    fl = ''
    QF, XPF, KF, VXF, VMF = 16, 64, 88, 136, 184
    S, P, T0 = 208, 220, 226
    PL = 196
    DO = 0
    C0, C1 = 232, 236
    ONE = 252
    e.I('s_sub_u32 s25, s21, 27')
    e.I('s_lshl_b32 s26, s20, 2')
    e.I('s_add_u32 s26, s26, s22')
    e.I(f's_mov_b32 s52, {SC_L2E:#x}'); e.I(f's_mov_b32 s53, {SC_L2E | 0x80000000:#x}')
    e.I(f'v_lshlrev_b32 v{ONE+1}, 2, v1')
    e.I('s_lshl_b32 s38, s22, 2')
    e.I(f'v_mov_b32 v{ONE+2}, s38')
    e.I(f'v_mov_b32 v{ONE}, 1')
    lane_ig(e, 14, 15)
    e.I(f'v_mov_b32 v3, {NEG_BIG:#x}')
    e.I('v_cmp_gt_u32 vcc, 32, v1')
    e.I(f'v_cndmask_b32 v{C0}, 0, v3, vcc')
    for k in range(1, 4): e.I(f'v_mov_b32 v{C0+k}, v{C0}')
    e.I('v_lshlrev_b32 v5, 2, v15')
    for r in range(4):
        e.I(f'v_add_u32 v6, {r}, v5')
        e.I('v_cmp_gt_u32 vcc, v6, v14')
        e.I(f'v_cndmask_b32 v{C1+r}, 0, v3, vcc')
    e.I('s_mul_i32 s58, s26, 6144')
    e.I('v_lshlrev_b32 v10, 7, v1')
    e.I('s_lshl_b32 s59, s22, 14')
    e.I('v_and_b32 v4, 3, v1')
    e.I('v_lshlrev_b32 v4, 8, v4')
    e.I('v_bfe_u32 v5, v1, 2, 3')
    e.I('v_lshl_add_u32 v5, v5, 4, v4')
    e.I('v_add_u32 v5, s59, v5')
    e.I('v_lshrrev_b32 v6, 2, v1')
    e.I('v_lshl_add_u32 v4, v6, 4, v4')
    e.I('v_add_u32 v4, s59, v4')
    e.I('v_cmp_gt_u32 vcc, 32, v1')
    for j in range(3):
        off = lambda kk: 12288 + (kk % 3) * 1024 + (kk // 3) * 128
        e.I(f'v_mov_b32 v6, {off(2*j+1)}')
        e.I(f'v_mov_b32 v11, {off(2*j)}')
        e.I('v_cndmask_b32 v6, v6, v11, vcc')
        e.I(f'v_add_u32 v{7+j}, v5, v6')
    wait_reg(e, T0)
    e.I('v_lshrrev_b32 v12, 2, v1')
    e.I('v_lshlrev_b32 v12, 8, v12')
    e.I('v_and_b32 v13, 3, v1')
    e.I('v_lshl_add_u32 v12, v13, 2, v12')
    e.I('s_lshl_b32 s38, s20, 4')
    e.I('v_add_u32 v12, s38, v12')
    e.I('s_cmp_lg_u32 s23, 0')
    e.I('s_cbranch_scc1 L_atts')
    for slow in (False, True):
        fl = ' sc1' if slow else ''
        if slow: e.L('L_atts')
        top = e.lab('Lat')
        e.I('s_mov_b32 s30, s25')
        e.L(top)
        TS(e, 0)
        e.I('s_add_u32 s51, s30, 2')
        e.I('s_lshl_b32 s51, s51, 5')
        e.I('s_add_u32 s51, s51, s26')
        e.I('s_lshl_b32 s51, s51, 6')
        e.I(f's_add_u32 s51, s51, {FLGQ}')
        e.I(f's_and_b32 s42, s30, {RD-1}')
        e.I(f's_mul_i32 s40, s42, {SEG_QX}')
        e.I('s_lshl_b32 s41, s58, 1')
        e.I('s_add_u32 s40, s40, s41')
        e.I(f's_mul_i32 s41, s42, {SEG_XP}')
        e.I('s_add_u32 s41, s41, s58')
        nbp = e.lab('Lab')
        e.I(f's_cmp_lt_u32 s30, {RD}')
        e.I(f's_cbranch_scc1 {nbp}')
        e.I(f's_sub_u32 s50, s30, {RD}')
        e.I('s_mul_i32 s50, s50, 1280')
        e.I(f's_add_u32 s50, s50, {FLGPX}')
        wait_flags(e, 12, 's50', 0xfffff, T0, 14, sleep=16)
        e.L(nbp)
        wait_flags(e, ONE + 1, 's51', 0xfff, T0, 6, sleep=opt.asleep)
        TS(e, 1)
        def loads(dst, n, sbase, add, w=4, va=2):
            e.I(f's_add_u32 s48, {sbase}, {add}')
            per = 4096 // (256 * w)
            for q in range(n):
                if q and q % per == 0: e.I('s_add_u32 s48, s48, 4096')
                e.I(f'buffer_load_dwordx{w} {vr(dst+w*q, w)}, v{va}, {WS}, s48 offen offset:{(q%per)*256*w} sc1')
        loads(XPF, 6, 's41', XP)
        loads(KF, 6, 's40', KX)
        loads(QF, 6, 's40', QX)
        e.I('s_lshr_b32 s42, s41, 1')
        e.I(f's_add_u32 s48, s42, {VM}')
        for q in range(3):
            e.I(f's_add_u32 m0, s59, {12288 + q*1024}')
            e.I(f'buffer_load_dwordx4 v2, {WS}, s48 offen sc1 lds')
            e.I('s_add_u32 s48, s48, 1024')
        e.I(f's_add_u32 s48, s40, {VX}')
        for q in range(12):
            e.I(f's_add_u32 m0, s59, {q*1024}')
            e.I(f'buffer_load_dwordx4 v2, {WS}, s48 offen sc1 lds')
            e.I('s_add_u32 s48, s48, 1024')
        loads(KF + 24, 6, 's40', KX + 6144)
        loads(QF + 24, 6, 's40', QX + 6144)
        NT = 0
        for qt in range(2):
            e.I(f's_waitcnt vmcnt({(27 if qt == 0 else 6) + NT})')
            if qt == 0: TS(e, 2)
            for p in range(6):
                q = vr(QF + 24*qt + 4*p)
                e.I(f'{MFMA} {vr(S)}, {vr(XPF+4*p)}, {q}, {vr(C0) if p == 0 else vr(S)}')
                e.I(f'{MFMA} {vr(S+4)}, {vr(KF+4*p)}, {q}, {(vr(C1) if qt == 0 else 0) if p == 0 else vr(S+4)}')
                if qt == 1: e.I(f'{MFMA} {vr(S+8)}, {vr(KF+24+4*p)}, {q}, {vr(C1) if p == 0 else vr(S+8)}')
            if qt == 0:
                for k in range(4): e.I(f'v_mov_b32 v{S+8+k}, v3')
            softmax12(e, S, P, T0)
            e.I(f'v_mov_b32 v{PL}, 0')
            e.I(f'v_mov_b32 v{PL+1}, 0')
            e.I(f'v_mov_b32 v{T0}, v{P}')
            e.I(f'v_mov_b32 v{T0+1}, v{P+1}')
            e.I(f'v_permlane32_swap_b32 v{T0}, v{PL}')
            e.I(f'v_permlane32_swap_b32 v{T0+1}, v{PL+1}')
            e.I(f's_add_u32 s48, s40, {OX + qt*6144}')
            e.I('s_add_u32 s49, s48, 4096')
            if qt == 0:
                e.I(f's_waitcnt vmcnt({12 + NT})')
                for j in range(3):
                    for t in range(2):
                        e.I(f'ds_read_b64_tr_b16 {vr(VMF+4*j+2*t,2)}, v{7+j} offset:{t*8}')
                for T in range(12):
                    for rt in range(2):
                        e.I(f'ds_read_b64_tr_b16 {vr(VXF+4*T+2*rt,2)}, v4 offset:{rt*6144 + (T>>1)*1024 + (T&1)*8}')
                e.I('s_waitcnt lgkmcnt(0)')
            def fin(p):
                dp = DO + 8 * (p % 2); op_ = QF + 24*qt + 4 * p
                for k in range(8): e.I(f'v_accvgpr_read_b32 v{240+k}, a{dp+k}')
                for k in range(4): e.I(f'v_cvt_pk_bf16_f32 v{op_+k}, v{240+2*k}, v{240+2*k+1}')
                e.I(f'buffer_store_dwordx4 {vr(op_)}, v2, {WS}, {"s48" if p < 4 else "s49"} offen offset:{(p%4)*1024}{fl}')
            for p in range(6):
                d = DO + 8 * (p % 2)
                for t in range(2):
                    e.I(f'{MFMA16} {ar(d+4*t)}, {vr(VMF+4*(p>>1)+2*t,2)}, {vr(PL,2) if p % 2 == 0 else vr(P,2)}, 0')
                for t in range(2):
                    e.I(f'{MFMA} {ar(d+4*t)}, {vr(VXF+4*(2*p+t))}, {vr(P+2)}, {ar(d+4*t)}')
                if p > 0: fin(p - 1)
            fin(5)
        e.I('s_lshl_b32 s50, s30, 3')
        e.I('s_add_u32 s50, s50, s20')
        e.I('s_lshl_b32 s50, s50, 6')
        e.I(f's_add_u32 s50, s50, {FLGOX}')
        e.I('s_waitcnt vmcnt(0)')
        set_flag(e, ONE + 2, 's50', ONE, fl)
        TS(e, 3)
        TSflush(e, 's30', 230, 231)
        e.I('s_add_u32 s30, s30, 2')
        e.I('s_cmp_lt_u32 s30, 64')
        e.I(f's_cbranch_scc1 {top}')
        e.I('s_endpgm')

F_LX, F_LH = 0, 98304
def role_ffn(e):
    ACC2 = 0
    ACC1 = 16
    BF = 48
    HP = 80
    WR = 96
    NW = 40
    e.I('s_sub_u32 s26, s21, 29')
    e.I('s_mul_i32 s25, s20, 3')
    e.I('s_add_u32 s26, s26, s25')
    e.I('s_mov_b32 s24, s26')
    srd(e, 8, 56, 640 * 3072); srd(e, 12, 58, 1536 * 1280)
    if opt.xlate & 4: wait_first(e, 16)
    transpose_w(e, 's26')
    e.I('s_waitcnt vmcnt(0)')
    e.I('s_barrier')
    count_up(e, 3, D_TR)
    wait_count(e, 3, D_TR, 24, 16)
    if opt.urg: wait_count(e, 3, D_W, 80, 16)
    wait_reg(e, 16, 32)
    e.L('L_ffn_task')
    e.I('s_lshl_b32 s38, s24, 2')
    e.I('s_add_u32 s38, s38, s22')
    e.I('s_mul_i32 s39, s38, 20480')
    e.I(f's_add_u32 s39, s39, {XN}')
    e.I('s_mul_i32 s40, s22, 20480')
    for m in range(20):
        e.I(f's_add_u32 m0, s40, {m*1024}')
        e.I(f'buffer_load_dwordx4 v2, {WS}, s39 offen lds')
        e.I('s_add_u32 s39, s39, 1024')
    for k in range(160): e.I(f'v_accvgpr_write_b32 a{k}, 0')
    e.I('s_mul_i32 s41, s22, 40960')
    e.I(f's_add_u32 s41, s41, {W1F}')
    e.I(f's_mul_i32 s42, s22, {10*48*1024}')
    e.I(f's_add_u32 s42, s42, {W2F}')
    e.I('v_add_u32 v3, 20480, v2')
    for u in range(10):
        e.I(f's_mov_b32 s54, {u*48*1024}')
        e.I(f'v_add_u32 v{4+u}, s54, v2')
    e.I(f'v_add_u32 v14, {F_LH}, v2')
    e.I('s_lshl_b32 s38, s22, 12')
    e.I('v_add_u32 v15, s38, v14')
    def wload(idx, adv):
        dst = vr(WR + (idx % NW) * 4)
        if idx < 40:
            kk, u = idx // 2, idx % 2
            e.I(f's_add_u32 s45, {adv[0]}, {(kk//4)*4096}')
            e.I(f'buffer_load_dwordx4 {dst}, v{2+u}, {WS}, s45 offen offset:{(kk%4)*1024}{" nt" if opt.ffnnt else ""}')
        else:
            pp, u = (idx - 40) // 10, (idx - 40) % 10
            e.I(f'buffer_load_dwordx4 {dst}, v{4+u}, {WS}, {adv[1]} offen offset:{pp*1024}{" nt" if opt.ffnnt else ""}')
    for idx in range(NW - 2): wload(idx, ('s41', 's42'))
    e.I(f's_waitcnt vmcnt({NW-2})')
    e.I('s_barrier')
    top = e.lab('Lft')
    TS(e, 0)
    e.I('s_mov_b32 s30, 0')
    e.L(top)
    e.I('s_cmp_lt_u32 s30, 11')
    e.I('s_cselect_b32 s46, 163840, 0')
    e.I('s_cselect_b32 s47, 4096, 0')
    e.I('s_add_u32 s43, s41, s46')
    e.I('s_add_u32 s44, s42, s47')
    D = NW - 2
    def pref(idx):
        j = idx + D
        if j < 80: wload(j, ('s41', 's42'))
        else: wload(j - 80, ('s43', 's44'))
    def rdx(kk):
        for rt in range(4):
            e.I(f'ds_read_b128 {vr(BF + ((kk%2)*4+rt)*4)}, v{2 if rt < 3 else 3} offset:{(rt if rt < 3 else 2)*20480 + kk*1024}')
    rdx(0)
    for kk in range(20):
        if kk + 1 < 20: rdx(kk + 1)
        e.I(f's_waitcnt vmcnt({D-2}) lgkmcnt({4 if kk+1 < 20 else 0})')
        for u in range(2):
            idx = 2 * kk + u
            for rt in range(4):
                d = vr(ACC1 + (u*4+rt)*4)
                e.I(f'{MFMA} {d}, {vr(WR+(idx%NW)*4)}, {vr(BF+((kk%2)*4+rt)*4)}, {0 if kk == 0 else d}')
        pref(2 * kk); pref(2 * kk + 1)
    for rt in range(4):
        for u in range(2):
            d = ACC1 + (u*4+rt)*4
            for k in range(4): e.I(f'v_max_f32 v{d+k}, 0, v{d+k}')
            e.I(f'v_cvt_pk_bf16_f32 v{HP+rt*4+2*u}, v{d}, v{d+1}')
            e.I(f'v_cvt_pk_bf16_f32 v{HP+rt*4+2*u+1}, v{d+2}, v{d+3}')
        e.I(f'ds_write_b128 v15, {vr(HP+rt*4)} offset:{rt*1024}')
    e.I('s_waitcnt lgkmcnt(0)')
    e.I('s_barrier')
    def rdh(pp):
        for rt in range(4):
            e.I(f'ds_read_b128 {vr(BF + ((pp%2)*4+rt)*4)}, v14 offset:{pp*4096 + rt*1024}')
    rdh(0)
    for pp in range(4):
        if pp + 1 < 4: rdh(pp + 1)
        for u in range(10):
            idx = 40 + pp * 10 + u
            w = f's_waitcnt vmcnt({D-1})'
            if u == 0: w += f' lgkmcnt({4 if pp+1 < 4 else 0})'
            e.I(w)
            for rt in range(4):
                d = ar(ACC2 + (u*4+rt)*4)
                e.I(f'{MFMA} {d}, {vr(WR+(idx%NW)*4)}, {vr(BF+((pp%2)*4+rt)*4)}, {d}')
            pref(idx)
    e.I('v_xor_b32 v14, 16384, v14')
    e.I('v_xor_b32 v15, 16384, v15')
    e.I('s_mov_b32 s41, s43')
    e.I('s_mov_b32 s42, s44')
    e.I('s_add_u32 s30, s30, 1')
    e.I('s_cmp_lt_u32 s30, 12')
    e.I(f's_cbranch_scc1 {top}')
    e.I('s_waitcnt vmcnt(0)')
    TS(e, 1)
    e.I('v_lshlrev_b32 v3, 3, v1')
    e.I(f's_mul_i32 s38, s24, {4*40*512}')
    e.I(f's_mul_i32 s39, s22, {10*512}')
    e.I('s_add_u32 s38, s38, s39')
    e.I(f's_add_u32 s38, s38, {G_}')
    e.I(f's_mov_b32 s52, {f2u(-1.4426950408889634):#x}')
    for rt in range(4):
        e.I(f's_add_u32 s39, s38, {rt*40*512}')
        e.I('s_add_u32 s40, s39, 4096')
        for u in range(10):
            t = 16 + ((rt*10+u) % 4) * 16
            a0 = ACC2 + (u*4+rt)*4
            for k in range(4): e.I(f'v_accvgpr_read_b32 v{t+k}, a{a0+k}')
            e.I(f'v_cvt_pk_bf16_f32 v{t+4}, v{t}, v{t+1}')
            e.I(f'v_cvt_pk_bf16_f32 v{t+5}, v{t+2}, v{t+3}')
            e.I(f'v_lshlrev_b32 v{t}, 16, v{t+4}')
            e.I(f'v_and_b32 v{t+1}, 0xffff0000, v{t+4}')
            e.I(f'v_lshlrev_b32 v{t+2}, 16, v{t+5}')
            e.I(f'v_and_b32 v{t+3}, 0xffff0000, v{t+5}')
            for k in range(4): e.I(f'v_mul_f32 v{t+4+k}, s52, v{t+k}')
            for k in range(4): e.I(f'v_exp_f32 v{t+4+k}, v{t+4+k}')
            for k in range(4): e.I(f'v_add_f32 v{t+4+k}, 1.0, v{t+4+k}')
            for k in range(4): e.I(f'v_rcp_f32 v{t+4+k}, v{t+4+k}')
            for k in range(4): e.I(f'v_mul_f32 v{t+k}, v{t+k}, v{t+4+k}')
            e.I(f'v_cvt_pk_bf16_f32 v{t+8}, v{t}, v{t+1}')
            e.I(f'v_cvt_pk_bf16_f32 v{t+9}, v{t+2}, v{t+3}')
            e.I(f'buffer_store_dwordx2 {vr(t+8,2)}, v3, {WS}, {"s39" if u < 8 else "s40"} offen offset:{(u%8)*512} sc1')
    e.I('s_waitcnt vmcnt(0)')
    TS(e, 2)
    if opt.ts: e.I('s_lshr_b32 s50, s24, 3'); e.I('s_add_u32 s50, s50, 64')
    TSflush(e, 's50')
    e.I('s_barrier')
    e.I('s_cmp_lg_u32 s22, 0')
    e.I('s_cbranch_scc1 L_ffn_nf')
    e.I('v_mov_b32 v4, 1')
    e.I('s_lshl_b32 s38, s24, 2')
    e.I('v_mov_b32 v5, s38')
    e.I(f's_mov_b32 s39, {FLGG}')
    set_flag(e, 5, 's39', 4, ' sc1')
    e.I('s_waitcnt vmcnt(0)')
    e.L('L_ffn_nf')
    e.I('s_cmp_ge_u32 s26, 8')
    e.I(f's_cbranch_scc1 {"L_end" if opt.nocmb else "L_cmb"}')
    e.I('s_add_u32 s24, s24, 24')
    e.I('s_cmp_lt_u32 s24, 32')
    e.I('s_cbranch_scc1 L_ffn_task')
    e.I('s_endpgm')

def role_cmb(e):
    PXR = 16
    GR = 144
    XR_ = 152
    T0 = 160
    srd(e, 8, 68, 2048 * 1280)
    srd(e, 12, 70, 2048 * 1280)
    e.I('s_sub_u32 s24, s26, 8')
    e.I('s_lshl_b32 s24, s24, 2')
    e.I('s_add_u32 s30, s24, s22')
    e.I('v_lshlrev_b32 v3, 2, v1')
    e.I('v_lshlrev_b32 v4, 3, v1')
    e.I('v_mov_b32 v6, 0')
    lane_ig(e, 14, 15)
    e.I('v_mul_u32_u24 v5, 1280, v14')
    e.I('v_lshl_add_u32 v5, v15, 3, v5')
    e.I('s_mov_b32 s49, 0')
    e.I('v_lshrrev_b32 v7, 4, v1')
    e.I('v_mul_u32_u24 v7, 40960, v7')
    e.I('v_lshl_add_u32 v7, v14, 7, v7')
    e.I(f'v_add_u32 v8, {4*40960}, v7')
    top = e.lab('Lct')
    e.L(top)
    TS(e, 0)
    e.I('s_mul_i32 s38, s30, 3277')
    e.I('s_lshr_b32 s38, s38, 16')
    e.I('s_mul_i32 s39, s38, 20')
    e.I('s_sub_u32 s39, s30, s39')
    e.I('s_cmp_ge_u32 s39, 10')
    e.I('s_cselect_b32 s40, 1, 0')
    e.I('s_mul_i32 s41, s40, 10')
    e.I('s_sub_u32 s41, s39, s41')
    gok = e.lab('Lcg')
    e.I('s_cmp_lg_u32 s49, 0')
    e.I(f's_cbranch_scc1 {gok}')
    e.I(f's_mov_b32 s42, {FLGG}')
    e.I('s_mov_b32 exec_hi, 0')
    e.I(f'buffer_load_dword v{T0}, v3, {WS}, s42 offen sc1')
    e.I('s_waitcnt vmcnt(0)')
    e.I(f'v_cmp_eq_u32 vcc, 0, v{T0}')
    e.I('s_mov_b64 exec, -1')
    e.I('s_cmp_eq_u32 vcc_lo, 0')
    e.I('s_cselect_b32 s49, 1, 0')
    e.I(f's_cbranch_scc1 {gok}')
    e.I('s_lshr_b32 s42, s38, 1')
    e.I('s_lshl_b32 s42, s42, 2')
    e.I(f's_add_u32 s42, s42, {FLGG}')
    wait_flags(e, 6, 's42', 1, T0, 7, sleep=32)
    e.L(gok)
    e.I(f's_mul_i32 s43, s38, {SEG_PX}')
    e.I('s_mul_i32 s44, s40, 20480')
    e.I('s_add_u32 s43, s43, s44')
    e.I('s_lshl_b32 s44, s41, 11')
    e.I('s_add_u32 s43, s43, s44')
    e.I(f's_add_u32 s43, s43, {PX}')
    e.I('s_lshl_b32 s45, s38, 1')
    e.I('s_add_u32 s45, s45, s40')
    e.I('s_mul_i32 s46, s45, 20480')
    e.I('s_lshr_b32 s47, s41, 1')
    e.I('s_lshl_b32 s47, s47, 2')
    e.I('s_and_b32 s48, s41, 1')
    e.I('s_add_u32 s44, s47, s48')
    e.I('s_lshl_b32 s47, s44, 10')
    e.I('s_add_u32 s47, s47, s46')
    e.I(f's_add_u32 s47, s47, {G_}')
    e.I('s_lshl_b32 s48, s44, 6')
    e.I('s_add_u32 s48, s48, s46')
    TO = (0, 4, 1, 5)
    for t in range(4):
        e.I(f'buffer_load_dwordx2 {vr(GR+2*t,2)}, v4, {WS}, s47 offen offset:{TO[t]*512} sc1')
        e.I(f'buffer_load_dwordx2 {vr(XR_+2*t,2)}, v5, s[8:11], s48 offen offset:{TO[t]*32}')
    nt_ = e.lab('Lcn')
    e.I(f's_cmp_lt_u32 s38, {opt.cwarm}')
    e.I(f's_cbranch_scc1 {nt_}')
    for k in range(2):
        e.I(f'buffer_load_dword v{T0}, v{7+k}, {WS}, s43 offen sc1')
    e.L(nt_)
    c1, c2 = e.lab('Lc1'), e.lab('Lc2')
    e.I('s_mul_i32 s50, s38, 10')
    e.I('s_and_b32 s44, s41, 14')
    e.I('s_add_u32 s50, s50, s44')
    e.I('s_lshl_b32 s50, s50, 7')
    e.I(f's_add_u32 s50, s50, {FLGPX}')
    e.I(f's_cmp_ge_u32 s38, {opt.cwarm}')
    e.I(f's_cbranch_scc1 {c1}')
    e.I(f's_add_u32 s42, s38, {opt.clag}')
    e.I('s_lshl_b32 s42, s42, 3')
    e.I('s_add_u32 s42, s42, s20')
    e.I('s_lshl_b32 s42, s42, 6')
    e.I(f's_add_u32 s42, s42, {FLGOX}')
    wait_flags(e, 6, 's42', 1, T0, 9, sleep=opt.lsleep)
    wait_flags(e, 3, 's50', 0xffffffff, T0, 8, sleep=opt.csleep)
    e.I(f's_branch {c2}')
    e.L(c1)
    e.I('s_and_b32 s42, s38, 3')
    e.I('s_lshl_b32 s42, s42, 3')
    e.I('s_add_u32 s42, s42, s20')
    e.I('s_lshl_b32 s42, s42, 7')
    e.I('s_lshl_b32 s44, s44, 1')
    e.I('s_add_u32 s42, s42, s44')
    e.I(f's_add_u32 s42, s42, {HINT}')
    wait_flags(e, 6, 's42', 1, T0, 9, sleep=2)
    wait_flags(e, 3, 's50', 0xffffffff, T0, 8, sleep=opt.c2sleep)
    e.L(c2)
    TS(e, 1)
    RAW = PXR + 32
    def ld(x):
        for t in range(2):
            if not opt.cdiag & 4: e.I(f'buffer_load_dwordx4 {vr(RAW+(x*2+t)*4)}, v2, {WS}, s43 offen offset:{t*1024} sc1')
        if x < 7: e.I('s_add_u32 s43, s43, 40960')
    def body(depth):
        for x in range(min(depth, 8)): ld(x)
        for x in range(8):
            left = min(depth - 1, 7 - x)
            e.I(f's_waitcnt vmcnt({left*2})')
            if x + depth < 8: ld(x + depth)
            for k in range(8):
                d = PXR + (0 if x == 0 else 16) + 2 * k
                e.I(f'v_lshlrev_b32 v{d}, 16, v{RAW+x*8+k}')
                e.I(f'v_and_b32 v{d+1}, 0xffff0000, v{RAW+x*8+k}')
            if x:
                for k in range(16):
                    e.I(f'v_add_f32 v{PXR+k}, v{PXR+k}, v{PXR+16+k}')
    fast, join = e.lab('Lcf'), e.lab('Lcj')
    e.I('s_cmp_ge_u32 s38, 61')
    e.I(f's_cbranch_scc1 {fast}')
    body(opt.cdepth)
    e.I(f's_branch {join}')
    e.L(fast)
    body(8)
    e.L(join)
    for t in range(4):
        b = PXR + 4 * t; u = T0 + 8 * (t % 2)
        e.I(f'v_cvt_pk_bf16_f32 v{u}, v{b}, v{b+1}')
        e.I(f'v_cvt_pk_bf16_f32 v{u+1}, v{b+2}, v{b+3}')
        for h_ in range(2):
            e.I(f'v_lshlrev_b32 v{b+2*h_}, 16, v{u+h_}')
            e.I(f'v_and_b32 v{b+2*h_+1}, 0xffff0000, v{u+h_}')
            e.I(f'v_lshlrev_b32 v{u+2+2*h_}, 16, v{GR+2*t+h_}')
            e.I(f'v_and_b32 v{u+3+2*h_}, 0xffff0000, v{GR+2*t+h_}')
        for k in range(4): e.I(f'v_mul_f32 v{b+k}, v{b+k}, v{u+2+k}')
        e.I(f'v_cvt_pk_bf16_f32 v{u}, v{b}, v{b+1}')
        e.I(f'v_cvt_pk_bf16_f32 v{u+1}, v{b+2}, v{b+3}')
        for h_ in range(2):
            e.I(f'v_lshlrev_b32 v{b+2*h_}, 16, v{u+h_}')
            e.I(f'v_and_b32 v{b+2*h_+1}, 0xffff0000, v{u+h_}')
            e.I(f'v_lshlrev_b32 v{u+2+2*h_}, 16, v{XR_+2*t+h_}')
            e.I(f'v_and_b32 v{u+3+2*h_}, 0xffff0000, v{XR_+2*t+h_}')
        for k in range(4): e.I(f'v_add_f32 v{b+k}, v{b+k}, v{u+2+k}')
        e.I(f'v_cvt_pk_bf16_f32 v{u+6}, v{b}, v{b+1}')
        e.I(f'v_cvt_pk_bf16_f32 v{u+7}, v{b+2}, v{b+3}')
        if not opt.cdiag & 8: e.I(f'buffer_store_dwordx2 {vr(u+6,2)}, v5, s[12:15], s48 offen offset:{TO[t]*32}')
    TS(e, 2)
    if opt.ts: e.I('s_lshr_b32 s50, s30, 6')
    TSflush(e, 's50')
    e.I('s_add_u32 s30, s30, 64')
    e.I('s_cmp_lt_u32 s30, 1280')
    e.I(f's_cbranch_scc1 {top}')
    e.I(f's_cmp_lg_u32 s30, {1279 + 64}')
    e.I('s_cbranch_scc1 L_end')
    e.I('s_mov_b32 exec_hi, 0xffff')
    e.I(f'global_store_dword v3, v6, s[74:75] offset:{D_TR} sc1')
    e.I('s_endpgm')

def gen_mainkernel(e):
    kernel_head(e, MAIN)
    e.I('s_cmp_ge_u32 s2, 256')
    e.I('s_cbranch_scc1 L_end')
    e.I('s_load_dwordx2 s[32:33], s[0:1], 96')
    e.I('s_load_dwordx4 s[60:63], s[0:1], 16')
    e.I('s_load_dwordx4 s[64:67], s[0:1], 32')
    e.I('s_load_dwordx4 s[52:55], s[0:1], 0')
    e.I('s_load_dwordx4 s[56:59], s[0:1], 64')
    e.I('s_load_dwordx4 s[72:75], s[0:1], 80')
    TS(e, 0)
    e.I('s_getreg_b32 s24, hwreg(HW_REG_XCC_ID)')
    e.I('v_and_b32 v1, 63, v0')
    e.I('v_lshlrev_b32 v2, 4, v1')
    e.I('v_lshrrev_b32 v3, 6, v0')
    e.I('v_readfirstlane_b32 s22, v3')
    if opt.cwarm2:
        e.I('s_getpc_b64 s[34:35]')
        e.L('L_pc')
        e.I('s_lshr_b32 s36, s2, 3')
        e.I('s_lshl_b32 s36, s36, 2')
        e.I('v_add_u32 v3, s36, v3')
        e.I(f'v_mul_u32_u24 v3, {opt.cwarm2}, v3')
        e.I(f'v_min_u32 v4, {opt.cwarm2 - 1}, v1')
        e.I('v_add_u32 v3, v3, v4')
        e.I('v_lshlrev_b32 v3, 7, v3')
        e.I('v_min_u32 v3, L_last-L_pc, v3')
        e.I('v_mov_b32 v5, s35')
        e.I('v_add_co_u32 v4, vcc, s34, v3')
        e.I('v_addc_co_u32 v5, vcc, 0, v5, vcc')
        e.I('global_load_dword v255, v[4:5], off')
    if opt.force_slow:
        e.I('s_lshr_b32 s20, s2, 5'); e.I('s_and_b32 s21, s2, 31')
    else:
        e.I('s_and_b32 s20, s2, 7'); e.I('s_lshr_b32 s21, s2, 3')
    e.I('s_and_b32 s24, s24, 15')
    e.I('s_lshl_b32 s96, s20, 4')
    e.I('s_and_b32 s25, s24, 12')
    e.I('s_add_u32 s96, s96, s25')
    e.I('s_and_b32 s25, s24, 3')
    e.I('s_lshl_b32 s25, s25, 3')
    e.I('s_lshl_b32 s97, 1, s25')
    e.I('s_waitcnt lgkmcnt(0)')
    e.I('s_mov_b64 s[70:71], s[72:73]')
    e.I('s_mov_b64 s[68:69], s[52:53]')
    srd(e, 4, 32, WS_BYTES)
    TS(e, 1)
    TSflush(e, '70')
    e.I('s_cmp_ge_u32 s21, 22'); e.I('s_cbranch_scc1 L_help')
    e.I('s_sub_u32 s24, s21, 12')
    if opt.urg: e.I('s_cmp_lt_u32 s24, 2')
    else: e.I('s_cmp_eq_u32 s24, 1')
    e.I('s_cbranch_scc1 L_urg')
    register(e, 3, 4)
    e.I('s_cmp_ge_u32 s21, 12'); e.I('s_cbranch_scc1 L_wo')
    role_qkv(e)
    e.L('L_urg')
    srd(e, 8, 52, 2048 * 1280); srd(e, 12, 54, 8 * 1280)
    e.I('s_cmp_lg_u32 s24, 0')
    e.I('s_cbranch_scc1 L_um')
    ln_addr(e)
    e.I('s_mul_i32 s25, s20, 20480')
    ln_load(e, 16, 's25')
    e.I('s_waitcnt vmcnt(0)')
    ln_compute(e, 16, 's25')
    e.I('s_branch L_ur')
    e.L('L_um')
    mem0_copy(e, None, 0)
    e.I('s_mul_i32 s41, s20, 10240')
    e.I(f's_add_u32 s41, s41, {MEM}')
    e.I('s_waitcnt vmcnt(0)')
    mem0_copy(e, 's41', 1)
    e.L('L_ur')
    e.I('s_waitcnt vmcnt(0)')
    e.I('s_barrier')
    register(e, 3, 4)
    e.L('L_wo'); role_sw(e)
    e.L('L_help')
    srd(e, 8, 52, 2048 * 1280)
    e.I('s_mul_i32 s24, s20, 10')
    e.I('s_add_u32 s24, s24, s21')
    e.I('s_sub_u32 s24, s24, 22')
    if opt.urg: init_fill(e, 's24', 80)
    ln_addr(e)
    e.I('s_mul_i32 s25, s24, 20480')
    if opt.urg: e.I(f's_add_u32 s25, s25, {8*20480}')
    e.I(f's_add_u32 s26, s25, {80*20480}')
    ln_load(e, 16, 's25')
    ln_load(e, 36, 's26')
    if opt.urg:
        e.I('s_waitcnt vmcnt(10)')
        e.I('s_barrier')
        register(e, 3, 4)
    else: init_fill(e, 's24', 80)
    e.I('s_waitcnt vmcnt(0)')
    ln_compute(e, 16, 's25')
    e.I(f's_cmp_ge_u32 s24, {40 if opt.urg else 48}')
    e.I('s_cbranch_scc1 L_hl')
    ln_compute(e, 36, 's26')
    e.L('L_hl')
    e.I('s_waitcnt vmcnt(0)')
    e.I('s_barrier')
    if opt.urg: count_up(e, 3, D_W)
    else: register(e, 3, 4)
    TS(e, 0)
    TSflush(e, '69')
    if opt.touch2:
        wait_reg(e, 16, opt.rsleep)
        e.I('s_sub_u32 s24, s21, 22')
        e.I('s_lshl_b32 s25, s20, 2')
        e.I('s_add_u32 s25, s25, s22')
        touch_jobs(e, [(XN + k * 40960, 10240, 40) for k in range(3)] + [(XN + k * 40960 + 5120, 10240, 40) for k in range(3)], 's24', 10, 's22', 18)
        jobs = []
        for sl in range(4): jobs += [(MEM + sl * MEM_SLOT, 2560, 20), (XR + sl * XR_SLOT, 6144, 48), (VR + sl * VR_SLOT, 3072, 24)]
        touch_jobs(e, jobs[::-1][:4] + jobs[:8], 's24', 10, 's25', 24, 6)
    e.I('s_cmp_ge_u32 s21, 29'); e.I('s_cbranch_scc1 L_ffn')
    e.I('s_cmp_lt_u32 s21, 27'); e.I('s_cbranch_scc1 L_xw')
    role_att(e)
    e.L('L_xw'); role_xw(e)
    e.L('L_ffn'); role_ffn(e)
    e.L('L_cmb'); role_cmb(e)
    e.L('L_fail')
    e.I('s_mov_b64 exec, 1')
    e.I('s_lshl_b32 s31, s31, 2')
    e.I('v_mov_b32 v3, s31')
    e.I('v_mov_b32 v4, 1')
    e.I('global_atomic_add v3, v4, s[74:75]')
    e.L('L_end')
    e.L('L_last')
    e.I('s_endpgm')

def build(path):
    for k in range(3): NT[k] = ' nt' if opt.pnt >> k & 1 else ''
    hdr = open('cdna_kernels/' + NAME + '.s.ref').read().split('\n')
    e = Em()
    for l in hdr:
        if l.startswith(';') and '@launch' not in l and 'Override launch' not in l and 'grid=ceil' not in l: e.raw(l)
    e.raw(f'; @launch grid=(256,1,1) block=(256,1,1) lds=163840')
    e.raw('.amdgcn_target "amdgcn-amd-amdhsa--gfx950"')
    gen_mainkernel(e)
    kernel_desc(e, MAIN, 512, 100, 256)
    lines, added = hazard.pad(e.lines)
    open(path, 'w').write('\n'.join(lines) + '\n')
    n = sum(1 for l in lines if l.startswith('    ') and not l.strip().startswith(';'))
    print(f'wrote {path}: {n} instructions, {added} nops added')

if __name__ == '__main__':
    out = sys.argv[1] if len(sys.argv) > 1 else 'cdna_kernels/' + NAME + '.s'
    if 'slow' in sys.argv[2:]: opt.force_slow = True
    if 'ts' in sys.argv[2:]: opt.ts = True
    for k in ('nobg', 'ackpoll', 'noxw'):
        if k in sys.argv[2:]: setattr(opt, k, True)
    for a_ in sys.argv[2:]:
        if '=' in a_: k_, v_ = a_.split('='); setattr(opt, k_, int(v_))
    build(out)
```

```python
import sys, struct
from asmlib import *
from layout import *
import hazard
from gen_pre import *

NAME = 'recurrent_scan__memory_aug_recurrent_mem_tr__dense_activation_relu__prompt'
MAIN = NAME + '_kernel'
PRE = 'prep_kernel'
LDS_TOTAL = 131072
LDS_ROLE = 131072
TMO = 1 << 18
def f2u(x): return struct.unpack('<I', struct.pack('<f', x))[0]
SC_L2E = f2u(192 ** -0.5 * 1.4426950408889634)
NEG_BIG = f2u(-1e30)
MFMA = 'v_mfma_f32_16x16x32_bf16'
MFMA16 = 'v_mfma_f32_16x16x16_bf16'
SMF = 'v_smfmac_f32_16x16x64_bf16'
WS = 's[4:7]'
WFL = ['', ' nt', ' sc1', ' sc0 sc1', ' sc1 nt', ' sc0 sc1 nt']

class Opt:
    force_slow = False
    ts = False
    nobg = False
    ackpoll = False
    noxw = False
    pdelay = 0
    vdelay = 0
    kbar = 0
    kpre = 12
    kin = 12
    fresh = 0
    pdiag = 0
    pflip = 0
    touch = 1
    nofc = 0
    nopx = 0
    nocmb = 0
    cdepth = 1
    ffnnt = 0
    pr = 1
    pfar = 0
    vpre = 2
    vmpos = 2
    smpre = 1
    smgap = 2
    ldgap = 4
    kp = 0
    kcs = 0
    kce = 12
    xlate = 5
    csleep = 8
    cwarm = 61
    c2sleep = 4
    clag = 2
    lsleep = 8
    xsleep = 2
    asleep = 2
    cdiag = 0
    hwv = 7
    t63 = 1
    esleep = 1
    tpos = 0
    pmf = 7
    pmf2 = 5
    urg = 0
    rsleep = 16
    cwarm2 = 0
    tord = 0
    pfs = 0
    swlate = 1
    fpos = 11
    heads = 1
    hdelay = 0
    wnb = 3
    wrows = 320
    touch2 = 1
    pnt = 1
    wnt = 1
    wthr = 64
    xpf = 10
    xdma0 = 10
    xdmas = 1
    pbf = 1
    rpos = 2
    mbar = 1
    pspin = 0
    nobulk = 0
opt = Opt()

def vr(i, n=4): return f'v[{i}:{i+n-1}]'
def ar(i, n=4): return f'a[{i}:{i+n-1}]'

def maxchain(e, dst, regs, op='u32'):
    regs = list(regs)
    e.I(f'v_max3_{op} v{dst}, v{regs[0]}, v{regs[1]}, v{regs[2]}')
    rest = regs[3:]
    while rest:
        if len(rest) >= 2:
            e.I(f'v_max3_{op} v{dst}, v{dst}, v{rest[0]}, v{rest[1]}'); rest = rest[2:]
        else:
            e.I(f'v_max_{op} v{dst}, v{dst}, v{rest[0]}'); rest = rest[1:]

def check_sent(e, regs, t0, t1):
    regs = list(regs)
    if len(regs) >= 8:
        h = len(regs) // 2
        A, B = regs[:h], regs[h:]
        ea, eb = Em(), Em()
        maxchain(ea, t0, A); maxchain(eb, t1, B)
        for i in range(max(len(ea.lines), len(eb.lines))):
            if i < len(ea.lines): e.lines.append(ea.lines[i])
            if i < len(eb.lines): e.lines.append(eb.lines[i])
        e.I(f'v_max_u32 v{t0}, v{t0}, v{t1}')
    else:
        maxchain(e, t0, regs)
    e.I(f'v_cmp_eq_u32 vcc, -1, v{t0}')

def poll2(e, issue, nl, regsA, regsB, consume, t0, t1, code):
    lp, dA, dB, dd = e.lab('Lp'), e.lab('LdA'), e.lab('LdB'), e.lab('Ldd')
    e.I(f's_mov_b32 s31, {TMO}')
    issue(regsA)
    e.L(lp)
    issue(regsB)
    e.I(f's_waitcnt vmcnt({nl})')
    check_sent(e, range(regsA, regsA + 4 * nl), t0, t1)
    e.I(f's_cbranch_vccz {dA}')
    issue(regsA)
    e.I(f's_waitcnt vmcnt({nl})')
    check_sent(e, range(regsB, regsB + 4 * nl), t0, t1)
    e.I(f's_cbranch_vccz {dB}')
    e.I('s_sub_u32 s31, s31, 1')
    e.I(f's_cbranch_scc0 {lp}')
    e.I(f's_mov_b32 s31, {code}')
    e.I('s_branch L_fail')
    e.L(dB)
    consume(regsB)
    e.I(f's_branch {dd}')
    e.L(dA)
    consume(regsA)
    e.L(dd)

def wait_flags(e, vaddr, sofs, mask, vt, code, sleep=0, dbg=False):
    lp, dn = e.lab('Lf'), e.lab('Lfd')
    e.I(f's_mov_b32 s31, {TMO}')
    if mask > 0xffffffff or mask < 0: e.I(f's_mov_b64 exec, {mask}')
    else:
        e.I(f's_mov_b32 exec_lo, {mask:#x}'); e.I('s_mov_b32 exec_hi, 0')
    e.L(lp)
    if dbg: e.I(f'global_load_dword v{vt}, v{vaddr}, s[74:75] offset:{sofs} sc1')
    else: e.I(f'buffer_load_dword v{vt}, v{vaddr}, {WS}, {sofs} offen sc1')
    e.I('s_waitcnt vmcnt(0)')
    e.I(f'v_cmp_eq_u32 vcc, 0, v{vt}')
    e.I(f's_cbranch_vccz {dn}')
    if sleep: e.I(f's_sleep {sleep}')
    e.I('s_sub_u32 s31, s31, 1')
    e.I(f's_cbranch_scc0 {lp}')
    e.I(f's_mov_b32 s31, {code}')
    e.I('s_branch L_fail')
    e.L(dn)
    e.I('s_mov_b64 exec, -1')

D_TR, D_PAR, D_REG = 64, 96, 128
def register(e, va, vd):
    sk = e.lab('Lrg')
    e.I('s_cmp_lg_u32 s22, 0')
    e.I(f's_cbranch_scc1 {sk}')
    e.I(f'v_mov_b32 v{va}, s96')
    e.I(f'v_mov_b32 v{vd}, s97')
    e.I('s_mov_b64 exec, 1')
    e.I(f'global_atomic_add v{va}, v{vd}, s[74:75] offset:{D_REG} sc1')
    e.I('s_mov_b64 exec, -1')
    e.L(sk)
D_W = 68
def wait_count(e, t, off, n, sleep):
    lp, dn = e.lab('Lwc'), e.lab('Lwe')
    e.I(f's_mov_b32 s31, {TMO}')
    e.I(f'v_mov_b32 v{t+1}, 0')
    e.L(lp)
    e.I(f'global_load_dword v{t}, v{t+1}, s[74:75] offset:{off} sc1')
    e.I('s_waitcnt vmcnt(0)')
    e.I(f'v_cmp_gt_u32 vcc, {n}, v{t}')
    e.I(f's_cbranch_vccz {dn}')
    e.I(f's_sleep {sleep}')
    e.I('s_sub_u32 s31, s31, 1')
    e.I(f's_cbranch_scc0 {lp}')
    e.I('s_mov_b32 s31, 10')
    e.I('s_branch L_fail')
    e.L(dn)
def wait_first(e, t):
    wait_reg(e, t, 32)
    e.I('s_lshl_b32 s38, s20, 8')
    e.I(f's_add_u32 s38, s38, {FLGQ}')
    e.I(f'v_lshlrev_b32 v{t+1}, 6, v1')
    wait_flags(e, t + 1, 's38', 0xf, t, 15, sleep=16)
def count_up(e, t, off):
    sk = e.lab('Lcu')
    e.I('s_cmp_lg_u32 s22, 0')
    e.I(f's_cbranch_scc1 {sk}')
    e.I(f'v_mov_b32 v{t}, 0'); e.I(f'v_mov_b32 v{t+1}, 1')
    e.I('s_mov_b64 exec, 1')
    e.I(f'global_atomic_add v{t}, v{t+1}, s[74:75] offset:{off} sc1')
    e.I('s_mov_b64 exec, -1')
    e.L(sk)
def wait_reg(e, t, sleep=4):
    lp, dn = e.lab('Lwr'), e.lab('Lwd')
    e.I(f's_mov_b32 s31, {TMO}')
    e.I(f'v_lshlrev_b32 v{t+2}, 2, v1')
    e.I('s_mov_b32 exec_hi, 0')
    e.L(lp)
    e.I(f'global_load_dword v{t}, v{t+2}, s[74:75] offset:{D_REG} sc1')
    e.I('s_mov_b32 s23, 0')
    e.I('s_mov_b32 s38, 0')
    e.I('s_waitcnt vmcnt(0)')
    for k in range(4):
        e.I(f'v_cmp_eq_u32 vcc, {0x20 << (8*k):#x}, v{t}')
        e.I('s_or_b32 s38, s38, vcc_lo')
    e.I(f'v_sad_u8 v{t+1}, v{t}, 0, 0')
    e.I('s_bcnt1_i32_b32 s38, s38')
    e.I('s_cmp_eq_u32 s38, 8')
    e.I(f's_cbranch_scc1 {dn}')
    for sh in (1, 2, 4, 8): e.I(f'v_add_u32_dpp v{t+1}, v{t+1}, v{t+1} row_shr:{sh} row_mask:0xf bank_mask:0xf bound_ctrl:0')
    e.I(f'v_readlane_b32 s38, v{t+1}, 15')
    e.I(f'v_readlane_b32 s39, v{t+1}, 31')
    e.I('s_mov_b32 s23, 1')
    e.I('s_add_u32 s38, s38, s39')
    e.I('s_cmp_eq_u32 s38, 256')
    e.I(f's_cbranch_scc1 {dn}')
    e.I(f's_sleep {sleep}')
    e.I('s_sub_u32 s31, s31, 1')
    e.I(f's_cbranch_scc0 {lp}')
    e.I('s_mov_b32 s31, 10')
    e.I('s_branch L_fail')
    e.L(dn)
    e.I('s_mov_b64 exec, -1')

def set_flag(e, vaddr, sofs, vone, fl):
    e.I('s_mov_b64 exec, 1')
    e.I(f'buffer_store_dword v{vone}, v{vaddr}, {WS}, {sofs} offen{fl}')
    e.I('s_mov_b64 exec, -1')

def xg_reduce(e, op, x, t):
    e.I(f'v_mov_b32 v{t}, v{x}')
    e.I(f'v_permlane16_swap_b32 v{x}, v{t}')
    e.I(f'{op} v{x}, v{x}, v{t}')
    e.I(f'v_mov_b32 v{t}, v{x}')
    e.I(f'v_permlane32_swap_b32 v{x}, v{t}')
    e.I(f'{op} v{x}, v{x}, v{t}')

def softmax12(e, S, P, t):
    maxchain(e, t, range(S, S + 12), 'f32')
    xg_reduce(e, 'v_max_f32', t, t + 1)
    e.I(f'v_mul_f32 v{t}, s53, v{t}')
    for i in range(12):
        e.I(f'v_fma_f32 v{S+i}, v{S+i}, s52, v{t}')
    for i in range(12):
        e.I(f'v_exp_f32 v{S+i}, v{S+i}')
    e.I(f'v_add_f32 v{t+2}, v{S}, v{S+1}')
    e.I(f'v_add_f32 v{t+3}, v{S+2}, v{S+3}')
    for i in range(4, 12, 2):
        e.I(f'v_add_f32 v{t+2}, v{t+2}, v{S+i}')
        e.I(f'v_add_f32 v{t+3}, v{t+3}, v{S+i+1}')
    e.I(f'v_add_f32 v{t+2}, v{t+2}, v{t+3}')
    xg_reduce(e, 'v_add_f32', t + 2, t + 3)
    e.I(f'v_rcp_f32 v{t+2}, v{t+2}')
    for i in range(12):
        e.I(f'v_mul_f32 v{S+i}, v{S+i}, v{t+2}')
    for i in range(6):
        e.I(f'v_cvt_pk_bf16_f32 v{P+i}, v{S+2*i}, v{S+2*i+1}')

def softmax_list(S, n, P, t):
    x = Em()
    maxchain(x, t, range(S, S + n), 'f32')
    xg_reduce(x, 'v_max_f32', t, t + 1)
    x.I(f'v_mul_f32 v{t}, s53, v{t}')
    for i in range(n): x.I(f'v_fma_f32 v{S+i}, v{S+i}, s52, v{t}')
    for i in range(n): x.I(f'v_exp_f32 v{S+i}, v{S+i}')
    x.I(f'v_add_f32 v{t+2}, v{S}, v{S+1}')
    x.I(f'v_add_f32 v{t+3}, v{S+2}, v{S+3}')
    for i in range(4, n, 2):
        x.I(f'v_add_f32 v{t+2}, v{t+2}, v{S+i}')
        x.I(f'v_add_f32 v{t+3}, v{t+3}, v{S+i+1}')
    x.I(f'v_add_f32 v{t+2}, v{t+2}, v{t+3}')
    xg_reduce(x, 'v_add_f32', t + 2, t + 3)
    x.I(f'v_rcp_f32 v{t+2}, v{t+2}')
    for i in range(n): x.I(f'v_mul_f32 v{S+i}, v{S+i}, v{t+2}')
    for i in range(n // 2): x.I(f'v_cvt_pk_bf16_f32 v{P+i}, v{S+2*i}, v{S+2*i+1}')
    return [l.strip() for l in x.lines]

def TS(e, k):
    if opt.ts: e.I(f's_memrealtime s[{76+2*k}:{77+2*k}]')
def TSflush(e, step, va=238, vd=239):
    if not opt.ts: return
    e.I('s_waitcnt lgkmcnt(0)')
    for k in range(10): e.I(f'v_writelane_b32 v{vd}, s{76+2*k}, {k}')
    e.I('s_lshl_b32 s76, s20, 5')
    e.I('s_add_u32 s76, s76, s21')
    e.I('s_lshl_b32 s76, s76, 2')
    e.I('s_add_u32 s76, s76, s22')
    e.I('s_mul_i32 s76, s76, 72')
    e.I(f's_add_u32 s76, s76, {step}')
    e.I('s_lshl_b32 s76, s76, 6')
    e.I(f's_add_u32 s76, s76, {DBGT}')
    e.I(f'v_lshlrev_b32 v{va}, 2, v1')
    e.I('s_mov_b64 exec, 0x3ff')
    e.I(f'buffer_store_dword v{vd}, v{va}, {WS}, s76 offen')
    e.I('s_mov_b64 exec, -1')

def lane_ig(e, vi, vg):
    e.I(f'v_and_b32 v{vi}, 15, v1')
    e.I(f'v_lshrrev_b32 v{vg}, 4, v1')

def load_weights(e, mats, RS, rows, paired, vA, vT, NB=3, bufoff=None, manual=False):
    CH = rows * 128
    ninst = rows // 8 // 4
    nk = rows // 32
    e.I(f'v_lshrrev_b32 v{vT}, 3, v1')
    if paired:
        e.I(f'v_bfe_u32 v{vT+1}, v1, 4, 2')
    else:
        e.I(f'v_bfe_u32 v{vT+1}, v1, 4, 1')
        e.I('s_and_b32 s54, s22, 1')
        e.I('s_lshl_b32 s54, s54, 1')
        e.I(f'v_or_b32 v{vT+1}, s54, v{vT+1}')
    e.I(f'v_lshlrev_b32 v{vT+1}, 1, v{vT+1}')
    e.I(f'v_and_b32 v{vT+2}, 7, v1')
    e.I(f'v_xor_b32 v{vT+2}, v{vT+2}, v{vT+1}')
    e.I(f's_mov_b32 s54, {RS}')
    e.I(f'v_mul_lo_u32 v{vA}, s54, v{vT}')
    e.I(f'v_lshl_add_u32 v{vA}, v{vT+2}, 4, v{vA}')
    e.I(f'v_lshrrev_b32 v{vT}, 4, v1')
    e.I(f'v_bfe_u32 v{vT+1}, v1, 2, 2')
    if paired:
        e.I(f'v_lshl_add_u32 v{vT+2}, v{vT}, 2, v{vT+1}')
        e.I(f'v_bfe_u32 v{vT}, v{vT+2}, 1, 2')
        second = 2048
    else:
        e.I(f'v_lshl_add_u32 v{vT+2}, v{vT}, 3, v{vT+1}')
        e.I(f'v_and_b32 v{vT}, 1, v{vT}')
        e.I(f'v_lshlrev_b32 v{vT}, 1, v{vT}')
        e.I(f'v_bfe_u32 v{vT+1}, v1, 3, 1')
        e.I(f'v_or_b32 v{vT}, v{vT}, v{vT+1}')
        second = 512
    e.I(f'v_xor_b32 v{vT}, s22, v{vT}')
    e.I(f'v_lshlrev_b32 v{vT+2}, 7, v{vT+2}')
    e.I(f'v_lshl_add_u32 v{vT+2}, v{vT}, 5, v{vT+2}')
    e.I(f'v_and_b32 v{vT}, 3, v1')
    e.I(f'v_lshl_add_u32 v{vT}, v{vT}, 3, v{vT+2}')
    bufoff = bufoff or [k * CH for k in range(NB)]
    for k in range(NB - 1, -1, -1):
        if bufoff[k]  or k: e.I(f'v_add_u32 v{vT+k}, {bufoff[k]}, v{vT}')
    chunks = []
    for (srd_, sofs, ab, nrows) in mats:
        for c in range(nrows // rows):
            chunks.append((srd_, sofs, ab + c * nk * 4, c * rows))
    e.I(f's_mul_i32 s55, s22, {8*RS}')
    e.I('s_lshl_b32 s56, s22, 10')
    def issue(ci, buf=None):
        srd_, sofs, ab, r0 = chunks[ci]
        if buf is None: buf = ci % NB
        e.I(f's_add_u32 s57, {sofs}, s55')
        if r0: e.I(f's_add_u32 s57, s57, {r0*RS}')
        for n in range(ninst):
            e.I(f's_add_u32 m0, s56, {bufoff[buf] + n*4096}')
            e.I(f'buffer_load_dwordx4 v{vA}, {srd_}, s57 offen{WFL[opt.wnt]} lds')
            if n + 1 < ninst: e.I(f's_add_u32 s57, s57, {32*RS}')
    def consume(ci, buf, pending):
        e.I(f's_waitcnt vmcnt({pending})')
        if ci < 8: TS(e, 2 + ci)
        e.I('s_barrier')
        srd_, sofs, ab, r0 = chunks[ci]
        for k in range(nk):
            e.I(f'ds_read_b64_tr_b16 {ar(ab+4*k,2)}, v{vT+buf} offset:{k*4096}')
            e.I(f'ds_read_b64_tr_b16 {ar(ab+4*k+2,2)}, v{vT+buf} offset:{k*4096+second}')
        e.I('s_waitcnt lgkmcnt(0)')
        e.I('s_barrier')
    if manual: return issue, consume
    for ci in range(min(NB, len(chunks))): issue(ci)
    for ci in range(len(chunks)):
        left = min(len(chunks) - 1 - ci, NB - 1)
        e.I(f's_waitcnt vmcnt({left*ninst})')
        if ci < 8: TS(e, 2 + ci)
        e.I('s_barrier')
        srd_, sofs, ab, r0 = chunks[ci]
        for k in range(nk):
            e.I(f'ds_read_b64_tr_b16 {ar(ab+4*k,2)}, v{vT+ci%NB} offset:{k*4096}')
            e.I(f'ds_read_b64_tr_b16 {ar(ab+4*k+2,2)}, v{vT+ci%NB} offset:{k*4096+second}')
        e.I('s_waitcnt lgkmcnt(0)')
        e.I('s_barrier')
        if ci + NB < len(chunks): issue(ci + NB)

def touch_jobs(e, jobs, sw, nw, sh, t, rot=0):
    sizes = sorted({min(n, 64) for _, _, n in jobs} | {n - 64 for _, _, n in jobs if n > 64})
    reg = {}
    for k, n in enumerate(sizes):
        reg[n] = t + 1 + k
        e.I(f'v_min_u32 v{reg[n]}, {n-1}, v1')
        e.I(f'v_lshlrev_b32 v{reg[n]}, 7, v{reg[n]}')
    flat = []
    for base, per, n in jobs:
        flat.append((base, per, min(n, 64)))
        if n > 64: flat.append((base + 8192, per, n - 64))
    for c in range(nw):
        sk = e.lab('Ltj')
        e.I(f's_cmp_lg_u32 {sw}, {c}')
        e.I(f's_cbranch_scc1 {sk}')
        for base, per, n in flat[(c - rot) % nw::nw]:
            e.I(f's_mul_i32 s38, {sh}, {per}')
            e.I(f's_add_u32 s38, s38, {base}')
            e.I(f'buffer_load_dword v{t}, v{reg[n]}, {WS}, s38 offen sc1')
        e.L(sk)

def prefetch_w(e, su, nw, lo, hi, t, srds):
    for k in range(3):
        e.I(f'v_add_u32 v{t+3}, {64*k}, v1')
        e.I(f'v_mul_u32_u24 v{t+4}, 0x1556, v{t+3}')
        e.I(f'v_lshrrev_b32 v{t+4}, 16, v{t+4}')
        e.I(f'v_mul_u32_u24 v{t+k}, 12, v{t+4}')
        e.I(f'v_sub_u32 v{t+3}, v{t+3}, v{t+k}')
        e.I(f'v_mul_u32_u24 v{t+k}, 12288, v{t+4}')
        e.I(f'v_lshl_add_u32 v{t+k}, v{t+3}, 7, v{t+k}')
    e.I('s_mul_i32 s39, s20, 1536')
    base = lo
    while base < hi:
        for m, (a_, b_) in enumerate(((0, 40), (40, 80))):
            if base + nw <= a_ or base >= b_ or srds[m] is None: continue
            sk = e.lab('Lpf')
            e.I(f's_add_u32 s38, {su}, {base}')
            e.I(f's_sub_u32 s38, s38, {a_}')
            e.I(f's_cmp_ge_u32 s38, {min(b_, hi) - a_}')
            e.I(f's_cbranch_scc1 {sk}')
            e.I(f's_mul_i32 s38, s38, {16*12288}')
            e.I('s_add_u32 s38, s38, s39')
            for k in range(3): e.I(f'buffer_load_dword v{t+3}, v{t+k}, {srds[m]}, s38 offen{WFL[opt.wnt]}')
            e.L(sk)
        base += nw

Q_LX, Q_LMEM = 0, 81920
def role_qkv(e):
    fl = ''
    WQ, WK, WV = 0, 80, 160
    MF = 16
    DQ, DK, DV = 96, 100, 104
    PA, PB = 108, 120
    XD = 132
    T0 = 160
    KEEP = 176; TCH = 180
    XA, VA, IDX, SEL = 182, 183, 184, 185
    SENT = 248; ONE = 252
    e.I('s_mul_i32 s24, s21, 43')
    e.I('s_lshr_b32 s24, s24, 7')
    e.I('s_mul_i32 s25, s24, 3')
    e.I('s_sub_u32 s25, s21, s25')
    e.I('s_lshl_b32 s26, s20, 2')
    e.I('s_add_u32 s26, s26, s24')
    e.I('s_lshl_b32 s27, s25, 2')
    e.I('s_add_u32 s27, s27, s22')
    srd(e, 8, 60, 640 * 12288); srd(e, 12, 62, 640 * 12288); srd(e, 16, 64, 640 * 12288)
    e.I('s_mul_i32 s28, s26, 384')
    e.I('s_lshl_b32 s29, s25, 7')
    e.I('s_add_u32 s28, s28, s29')
    w_issue, w_consume = load_weights(e, [('s[12:15]', 's28', WK, 640), ('s[16:19]', 's28', WV, 640), ('s[8:11]', 's28', WQ, 640)], 12288, 320, False, 240, 241, 3,
                                      bufoff=[81920, 122880, 40960], manual=True)
    for ci in range(3): w_issue(ci)
    e.I('s_mul_i32 s38, s22, 2560')
    e.I('v_add_u32 v3, s38, v2')
    e.I('v_and_b32 v4, 31, v1')
    e.I('v_lshlrev_b32 v4, 4, v4')
    e.I('v_add_u32 v4, s38, v4')
    e.I('v_add_u32 v4, 2048, v4')
    e.I(f'v_add_u32 v5, {Q_LMEM}, v3')
    e.I(f'v_add_u32 v6, {Q_LMEM}, v4')
    e.I(f'v_add_u32 v7, {Q_LMEM}, v2')
    lane_ig(e, 14, 15)
    e.I('s_lshr_b32 s38, s27, 1')
    e.I('s_lshl_b32 s38, s38, 10')
    e.I('s_and_b32 s39, s27, 1')
    e.I('s_lshl_b32 s39, s39, 3')
    e.I('s_add_u32 s38, s38, s39')
    e.I('v_add_u32 v8, s38, v2')
    e.I('v_bfe_u32 v11, v1, 2, 2')
    e.I('v_and_b32 v12, 3, v1')
    e.I(f'v_lshlrev_b32 v{XA}, 8, v11')
    e.I(f'v_lshl_add_u32 v{XA}, v15, 6, v{XA}')
    e.I(f'v_lshl_add_u32 v{XA}, v12, 4, v{XA}')
    e.I(f'v_add_u32 v{XA}, s38, v{XA}')
    e.I('v_and_b32 v13, 1, v15')
    e.I('v_lshlrev_b32 v13, 2, v13')
    e.I('v_lshrrev_b32 v9, 1, v15')
    e.I('v_lshl_add_u32 v13, v9, 1, v13')
    e.I('v_and_b32 v9, 1, v12')
    e.I('v_add_u32 v13, v13, v9')
    e.I('v_lshrrev_b32 v12, 1, v12')
    e.I('v_lshrrev_b32 v9, 1, v11')
    e.I('v_lshlrev_b32 v9, 8, v9')
    e.I('v_lshl_add_u32 v9, v12, 7, v9')
    e.I('v_lshl_add_u32 v9, v13, 4, v9')
    e.I(f'v_and_b32 v{VA}, 1, v11')
    e.I(f'v_lshl_add_u32 v9, v{VA}, 3, v9')
    e.I('s_lshl_b32 s38, s25, 10')
    e.I('s_lshr_b32 s39, s22, 1')
    e.I('s_lshl_b32 s39, s39, 9')
    e.I('s_add_u32 s38, s38, s39')
    e.I('s_and_b32 s39, s22, 1')
    e.I('s_lshl_b32 s39, s39, 2')
    e.I('s_add_u32 s38, s38, s39')
    e.I('v_add_u32 v9, s38, v9')
    e.I(f'v_lshlrev_b32 v{VA}, 8, v11')
    e.I(f'v_lshl_add_u32 v{VA}, v13, 4, v{VA}')
    e.I(f'v_lshl_add_u32 v{VA}, v12, 2, v{VA}')
    e.I('s_lshr_b32 s38, s27, 1')
    e.I('s_cmp_ge_u32 s38, 3')
    e.I('s_cselect_b32 s39, 3, 0')
    e.I('s_cselect_b32 s40, 128, 0')
    e.I('s_sub_u32 s38, s38, s39')
    e.I('s_lshl_b32 s38, s38, 10')
    e.I('s_add_u32 s38, s38, s40')
    e.I('s_and_b32 s39, s27, 1')
    e.I('s_lshl_b32 s39, s39, 3')
    e.I('s_add_u32 s38, s38, s39')
    e.I(f'v_add_u32 v{VA}, s38, v{VA}')
    e.I(f'v_mov_b32 v{IDX}, 0x44444444')
    e.I('v_mov_b32 v11, 0xeeeeeeee')
    e.I('v_cmp_lt_u32 vcc, 7, v14')
    e.I(f'v_cndmask_b32 v{IDX}, v{IDX}, v11, vcc')
    e.I(f'v_mov_b32 v{SEL}, 0x05040100')
    e.I('v_mov_b32 v11, 0x03020706')
    e.I('v_and_b32 v12, 1, v1')
    e.I('v_cmp_eq_u32 vcc, 1, v12')
    e.I(f'v_cndmask_b32 v{SEL}, v{SEL}, v11, vcc')
    e.I('s_mov_b32 s34, 0x33333333'); e.I('s_mov_b32 s35, 0x33333333')
    e.I('s_mov_b32 s36, 0xcccccccc'); e.I('s_mov_b32 s37, 0xcccccccc')
    for k in range(12): e.I(f'v_mov_b32 v{DQ+k}, 0')
    e.I('s_lshl_b32 s38, s27, 2')
    e.I(f'v_mov_b32 v{ONE+2}, s38')
    e.I(f'v_mov_b32 v{ONE}, 1')
    for k in range(4): e.I(f'v_mov_b32 v{SENT+k}, -1')
    e.I('s_mul_i32 s58, s26, 6144')
    e.I('s_mul_i32 s59, s20, 10240')
    e.I(f's_add_u32 s59, s59, {MEM}')
    e.I('s_mul_i32 s60, s26, 3072')
    e.I('s_lshl_b32 s61, s20, 6')
    e.I('s_lshl_b32 s38, s24, 2')
    e.I('s_add_u32 s61, s61, s38')
    e.I(f's_add_u32 s61, s61, {FLGOX}')
    e.I('v_mov_b32 v10, 0')

    def late_list():
        return [f'buffer_store_dwordx2 {vr(KEEP,2)}, v{XA}, {WS}, s43 offen{fl}',
                f'buffer_store_dwordx2 {vr(SENT,2)}, v{XA}, {WS}, s42 offen{fl}',
                f'buffer_store_dword v{KEEP+2}, v{VA}, {WS}, s44 offen{fl}',
                f'buffer_store_dword v{SENT}, v9, {WS}, s46 offen{fl}']
    def late_stores():
        for x_ in late_list(): e.I(x_)
    def xwork(late, mats=(2, 1, 0), dma=True):
        e.I('s_and_b32 s65, s64, 1')
        e.I('s_mul_i32 s66, s65, 40960')
        e.I('v_add_u32 v12, s66, v2')
        e.I('s_xor_b32 s65, s65, 1')
        e.I('s_mul_i32 s65, s65, 40960')
        e.I('s_add_u32 s65, s65, s62')
        e.I('s_add_u32 s66, s64, 1')
        e.I('s_min_u32 s66, s66, 63')
        e.I('s_mul_i32 s66, s66, 40960')
        e.I('s_add_u32 s66, s66, s62')
        e.I(f's_add_u32 s66, s66, {XN}')
        e.I(f's_and_b32 s47, s64, {RD-1}')
        e.I(f's_mul_i32 s47, s47, {SEG_QX}')
        e.I('s_lshl_b32 s48, s58, 1')
        e.I('s_add_u32 s47, s47, s48')
        if late:
            e.I(f's_max_u32 s50, s64, {RD}')
            e.I(f's_sub_u32 s50, s50, {RD}')
            e.I('s_lshl_b32 s50, s50, 9')
            e.I('s_add_u32 s50, s50, s61')
            e.I(f'buffer_load_dword v{TCH}, v10, {WS}, s50 offen sc1')
        PF = opt.xpf
        def rd(n): e.I(f'ds_read_b128 {vr(MF + (n % 20)*4)}, v12 offset:{n*1024}')
        def out(m, rt, part=3):
            d = XD + (m*2+rt)*4; o = T0 + (m*2+rt)*2
            if part & 1:
                e.I(f'v_cvt_pk_bf16_f32 v{o}, v{d}, v{d+1}')
                e.I(f'v_cvt_pk_bf16_f32 v{o+1}, v{d+2}, v{d+3}')
            if part & 2:
                e.I(f's_add_u32 s48, s47, {(QX, KX, VX)[m] + rt*6144}')
                e.I(f'buffer_store_dwordx2 {vr(o,2)}, v8, {WS}, s48 offen{fl}')
        for n in range(PF): rd(n)
        ls = late_list() if late else []
        d0 = opt.xdma0
        for n in range(40):
            rt, kk = n // 20, n % 20
            e.I(f's_waitcnt lgkmcnt({min(40, n + PF) - (n + 1)})')
            f = vr(MF + (n % 20)*4)
            for m in mats:
                Wb = (WQ, WK, WV)[m]
                d = vr(XD + (m*2+rt)*4)
                e.I(f'{MFMA} {d}, {ar(Wb+4*kk)}, {f}, {0 if kk == 0 else d}')
            if n + PF < 40: rd(n + PF)
            if late and n == 5:
                bp = e.lab('Lbp')
                e.I(f's_cmp_lt_u32 s64, {RD}')
                e.I(f's_cbranch_scc1 {bp}')
                e.I('s_waitcnt vmcnt(0)')
                e.I(f'v_cmp_eq_u32 vcc, 0, v{TCH}')
                e.I(f's_cbranch_vccz {bp}')
                wait_flags(e, 10, 's50', 1, TCH, 13, sleep=1)
                e.L(bp)
            if n >= 6 and ls: e.I(ls.pop(0))
            elif dma and n >= d0 and (n - d0) % opt.xdmas == 0 and (n - d0) // opt.xdmas < 10:
                m = (n - d0) // opt.xdmas
                e.I(f's_add_u32 m0, s65, {m*1024}')
                e.I(f'buffer_load_dwordx4 v2, {WS}, s66 offen lds')
                e.I('s_add_u32 s66, s66, 1024')
            k0 = 23 if len(mats) > 1 else 28
            if k0 <= n < k0 + len(mats): out(mats[n - k0], 0)
        for m in mats: out(m, 1)
    def flag_addr(back):
        e.I(f's_sub_u32 s51, s64, {back}')
        e.I('s_lshl_b32 s51, s51, 5')
        e.I('s_add_u32 s51, s51, s26')
        e.I('s_lshl_b32 s51, s51, 6')
        e.I(f's_add_u32 s51, s51, {FLGQ}')
    def flag_n():
        flag_addr(0)
        e.I('s_waitcnt vmcnt(0)')
        set_flag(e, ONE + 2, 's51', ONE, fl)
    def mem_part():
        e.I('s_and_b32 s38, s30, 3')
        e.I('s_xor_b32 s39, s38, 2')
        e.I(f's_mul_i32 s40, s38, {MEM_SLOT}')
        e.I('s_add_u32 s40, s40, s59')
        e.I(f's_mul_i32 s41, s38, {XR_SLOT}')
        e.I('s_add_u32 s41, s41, s58')
        e.I(f's_add_u32 s41, s41, {XR}')
        e.I(f's_mul_i32 s42, s39, {XR_SLOT}')
        e.I('s_add_u32 s42, s42, s58')
        e.I(f's_add_u32 s42, s42, {XR}')
        e.I(f's_and_b32 s44, s30, {RD-1}')
        e.I(f's_mul_i32 s43, s44, {SEG_XP}')
        e.I('s_add_u32 s43, s43, s58')
        e.I(f's_add_u32 s43, s43, {XP}')
        e.I(f's_mul_i32 s44, s44, {SEG_VM}')
        e.I('s_add_u32 s44, s44, s60')
        e.I(f's_add_u32 s44, s44, {VM}')
        e.I(f's_mul_i32 s45, s38, {VR_SLOT}')
        e.I('s_add_u32 s45, s45, s60')
        e.I(f's_add_u32 s45, s45, {VR}')
        e.I(f's_mul_i32 s46, s39, {VR_SLOT}')
        e.I('s_add_u32 s46, s46, s60')
        e.I(f's_add_u32 s46, s46, {VR}')
        def issue(b):
            e.I(f'buffer_load_dwordx4 {vr(b)}, v3, {WS}, s40 offen sc1')
            e.I(f'buffer_load_dwordx4 {vr(b+4)}, v3, {WS}, s40 offen offset:1024 sc1')
            e.I(f'buffer_load_dwordx4 {vr(b+8)}, v4, {WS}, s40 offen sc1')
        def consume(b):
            e.I(f'ds_write_b128 v5, {vr(b)}')
            e.I(f'ds_write_b128 v5, {vr(b+4)} offset:1024')
            e.I(f'ds_write_b128 v6, {vr(b+8)}')
        flag_addr(1)
        poll2(e, issue, 3, PA, PB, consume, T0, T0 + 1, 1)
        TS(e, 1)
        e.I('s_waitcnt lgkmcnt(0)')
        e.I('s_barrier')
        for m in range(10): e.I(f'ds_read_b128 {vr(MF+4*m)}, v7 offset:{m*1024}')
        if opt.fpos < 0: set_flag(e, ONE + 2, 's51', ONE, fl)
        e.I('s_mov_b64 vcc, s[34:35]')
        for m in range(10):
            e.I(f's_waitcnt lgkmcnt({9-m})')
            e.I(f'{SMF} {vr(DQ)}, {vr(MF+4*m)}, {ar(WQ+8*m,8)}, v{IDX}')
            e.I(f'{SMF} {vr(DK)}, {vr(MF+4*m)}, {ar(WK+8*m,8)}, v{IDX}')
            if m == opt.fpos: e.I(f'buffer_store_dword v{ONE}, v{ONE+2}, {WS}, s51 offen{fl}')
        def vm(m): e.I(f'{SMF} {vr(DV)}, {vr(MF+4*m)}, {ar(WV+8*m,8)}, v{IDX}')
        QP1, QP2 = 'quad_perm:[1,0,3,2] row_mask:0xf bank_mask:0xf', 'quad_perm:[2,3,0,1] row_mask:0xf bank_mask:0xf'
        nv = opt.vpre
        for m in range(nv): vm(m)
        if opt.fpos == 10: e.I(f'buffer_store_dword v{ONE}, v{ONE+2}, {WS}, s51 offen{fl}')
        for r in range(4): e.I(f'v_permlane32_swap_b32 v{DQ+r}, v{DK+r}')
        for r in range(4): e.I(f'v_add_f32 v{DQ+r}, v{DQ+r}, v{DK+r}')
        e.I(f'v_cvt_pk_bf16_f32 v{T0}, v{DQ}, v{DQ+1}')
        e.I(f'v_cvt_pk_bf16_f32 v{T0+1}, v{DQ+2}, v{DQ+3}')
        vm(nv)
        if opt.fpos == 11: e.I(f'buffer_store_dword v{ONE}, v{ONE+2}, {WS}, s51 offen{fl}')
        e.I(f'v_mov_b32_dpp v{T0+2}, v{T0} {QP1}')
        e.I(f'v_mov_b32_dpp v{T0+3}, v{T0+1} {QP1}')
        e.I(f'v_perm_b32 v{T0}, v{T0+2}, v{T0}, v{SEL}')
        e.I(f'v_perm_b32 v{T0+1}, v{T0+3}, v{T0+1}, v{SEL}')
        vm(nv + 1)
        if opt.fpos == 12: e.I(f'buffer_store_dword v{ONE}, v{ONE+2}, {WS}, s51 offen{fl}')
        e.I(f'v_cndmask_b32_dpp v{KEEP}, v{T0+1}, v{T0}, vcc {QP2}')
        e.I('s_mov_b64 vcc, s[36:37]')
        e.I(f'v_cndmask_b32_dpp v{KEEP+1}, v{T0}, v{T0+1}, vcc {QP2}')
        e.I(f'buffer_store_dwordx2 {vr(KEEP,2)}, v{XA}, {WS}, s41 offen{fl}')
        TS(e, 2)
        for m in range(nv + 2, 10): vm(m)
        for k in range(8): e.I(f'v_mov_b32 v{DQ+k}, 0')
        e.I(f'v_permlane32_swap_b32 v{DV}, v{DV+2}')
        e.I(f'v_permlane32_swap_b32 v{DV+1}, v{DV+3}')
        e.I(f'v_add_f32 v{DV}, v{DV}, v{DV+2}')
        e.I(f'v_add_f32 v{DV+1}, v{DV+1}, v{DV+3}')
        e.I(f'v_cvt_pk_bf16_f32 v{T0}, v{DV}, v{DV+1}')
        e.I(f'v_mov_b32_dpp v{T0+2}, v{T0} {QP1}')
        e.I(f'v_perm_b32 v{KEEP+2}, v{T0+2}, v{T0}, v{SEL}')
        e.I(f'buffer_store_dword v{KEEP+2}, v9, {WS}, s45 offen{fl}')
        for k in range(4): e.I(f'v_mov_b32 v{DV+k}, 0')
        TS(e, 3)
    w_consume(0, 0, 20); w_issue(3, 0)
    w_consume(1, 1, 20); w_issue(4, 1)
    w_consume(2, 2, 20)
    w_consume(3, 0, 10)
    w_consume(4, 1, 0)
    TS(e, 0)
    wait_reg(e, T0)
    TS(e, 1)
    TSflush(e, '69')
    e.I('s_mul_i32 s62, s22, 10240')
    def xdma(seg, buf):
        e.I(f's_add_u32 s63, s62, {XN + seg*40960}')
        for m in range(10):
            e.I(f's_add_u32 m0, s62, {Q_LX + buf*40960 + m*1024}')
            e.I(f'buffer_load_dwordx4 v2, {WS}, s63 offen lds')
            e.I('s_add_u32 s63, s63, 1024')
    xdma(0, 0)
    w_issue(5, 0)
    xdma(1, 1)
    e.I('s_cmp_lg_u32 s23, 0')
    e.I('s_cbranch_scc1 L_qkvs')
    for slow in (False, True):
        fl = ' sc1' if slow else ''
        if slow: e.L('L_qkvs')
        pro, top, nox, nxt_, q0, q0r, qq, q1 = [e.lab(x_) for x_ in ('Lqp', 'Lqt', 'Lqn', 'Lqx', 'Lq0', 'Lqr', 'Lqq', 'Lq1')]
        e.I('s_mov_b32 s30, 0')
        e.I('s_mov_b32 s64, 0')
        TS(e, 0)
        e.I('s_waitcnt vmcnt(20)')
        TS(e, 1)
        e.I('s_barrier')
        e.L(pro)
        xwork(False, (2, 1), False)
        e.I('s_add_u32 s64, s64, 1')
        e.I('s_cmp_eq_u32 s64, 2')
        e.I(f's_cbranch_scc1 {top}')
        TS(e, 2)
        flag_addr(1)
        e.I('s_waitcnt vmcnt(0)')
        TS(e, 3)
        set_flag(e, ONE + 2, 's51', ONE, fl)
        w_consume(5, 0, 1)
        if opt.urg: wait_count(e, T0, D_W, 80, 4)
        TS(e, 4)
        TSflush(e, '68')
        e.I(f's_branch {pro}')
        e.L(q0)
        e.I('s_mov_b32 s64, 0')
        e.L(qq)
        xwork(False, (0,), False)
        e.I('s_cmp_lg_u32 s64, 0')
        e.I(f's_cbranch_scc1 {q1}')
        e.I('s_barrier')
        xdma(2, 0)
        e.I('s_mov_b32 s64, 1')
        e.I(f's_branch {qq}')
        e.L(q1)
        e.I('s_mov_b32 s64, 2')
        e.I('s_waitcnt vmcnt(2)')
        e.I('s_barrier')
        e.I(f's_branch {q0r}')
        e.L(top)
        TS(e, 0)
        mem_part()
        e.I('s_cmp_eq_u32 s30, 0')
        e.I(f's_cbranch_scc1 {q0}')
        e.L(q0r)
        e.I('s_cmp_ge_u32 s64, 64')
        e.I(f's_cbranch_scc1 {nox}')
        xwork(True)
        e.I('s_cmp_lg_u32 s64, 63')
        e.I(f's_cbranch_scc1 {nxt_}')
        flag_n()
        e.I(f's_branch {nxt_}')
        e.L(nox)
        for x_ in late_list()[0::2]: e.I(x_)
        flag_n()
        e.L(nxt_)
        TS(e, 4)
        e.I('s_add_u32 s64, s64, 1')
        TS(e, 5)
        TSflush(e, 's30')
        e.I('s_add_u32 s30, s30, 1')
        e.I('s_cmp_lt_u32 s30, 64')
        e.I(f's_cbranch_scc1 {top}')
        e.I('s_endpgm')

S_RED = 98304
def role_sw(e):
    fl = ''
    XF, KXF, VXF, VMF = 16, 40, 88, 136
    S, PB, PM = 148, 160, 164
    DW, DM, VWX, VWM = 168, 184, 200, 216
    OUT = DW
    PA = XF
    CI = 224
    T0 = 228; IDX = 246; SENT = 248; ONE = 252
    AONE, AHALF = 96, 100
    PAD = 240
    e.I('s_sub_u32 s24, s21, 12')
    e.I('s_lshl_b32 s25, s24, 2')
    e.I('s_add_u32 s25, s25, s22')
    e.I('s_lshl_b32 s26, s20, 2')
    e.I('s_add_u32 s26, s26, s22')
    srd(e, 8, 66, 6144 * 1280)
    def wo_load():
        e.I(f's_mul_i32 s28, s26, {192*1280}')
        e.I('s_lshl_b32 s29, s24, 7')
        e.I('s_add_u32 s28, s28, s29')
        e.I('v_lshrrev_b32 v17, 3, v1')
        e.I('v_bfe_u32 v18, v1, 4, 2')
        e.I('v_lshlrev_b32 v18, 1, v18')
        e.I('v_and_b32 v19, 7, v1')
        e.I('v_xor_b32 v19, v19, v18')
        e.I('v_mul_u32_u24 v16, 1280, v17')
        e.I('v_lshl_add_u32 v16, v19, 4, v16')
        e.I('s_mul_i32 s46, s22, 24576')
        for n in range(24):
            e.I(f's_add_u32 m0, s46, {n*1024}')
            e.I(f'buffer_load_dwordx4 v16, s[8:11], s28 offen{WFL[opt.wnt]} lds')
            if n < 23: e.I(f's_add_u32 s28, s28, {8*1280}')
        e.I('v_lshrrev_b32 v17, 2, v1')
        e.I('v_bfe_u32 v18, v17, 1, 2')
        e.I('v_lshlrev_b32 v17, 7, v17')
        e.I('v_and_b32 v19, 3, v1')
        e.I('v_lshl_add_u32 v17, v19, 3, v17')
        e.I('v_add_u32 v17, s46, v17')
        for ct in range(4):
            e.I(f'v_xor_b32 v19, {ct}, v18')
            e.I(f'v_lshl_add_u32 v{20+ct}, v19, 5, v17')
        for kk in range(6):
            e.I(f's_waitcnt vmcnt({20 - 4*kk})')
            for ct in range(4):
                e.I(f'ds_read_b64_tr_b16 {ar((ct*6+kk)*4,2)}, v{20+ct} offset:{kk*4096}')
                e.I(f'ds_read_b64_tr_b16 {ar((ct*6+kk)*4+2,2)}, v{20+ct} offset:{kk*4096+2048}')
        e.I('s_waitcnt lgkmcnt(0)')
    if opt.pfs:
        srd(e, 12, 64, 640 * 12288); srd(e, 16, 60, 640 * 12288)
        prefetch_w(e, 's25', 40, 0, opt.pfs, 24, ('s[12:15]', 's[16:19]'))
    nocal = e.lab('Lnc')
    e.I('s_cmp_lg_u32 s25, 8')
    e.I(f's_cbranch_scc1 {nocal}')
    e.I('s_lshl_b32 s38, s20, 7')
    e.I(f's_add_u32 s38, s38, {CAL}')
    e.I('s_add_u32 s39, s38, 8192')
    e.I('s_mov_b32 s40, -1'); e.I('s_mov_b32 s41, -1'); e.I('s_mov_b32 s42, 4')
    e.I('v_mov_b32 v10, 0')
    e.I('s_mov_b64 exec, 1')
    cal = e.lab('Lcal')
    e.L(cal)
    for so, acc in (('s38', 's40'), ('s39', 's41')):
        e.I(f'buffer_store_dword v10, v10, {WS}, {so} offen sc1')
        e.I('s_waitcnt vmcnt(0)')
        e.I('s_memtime s[44:45]')
        e.I('s_waitcnt lgkmcnt(0)')
        e.I(f'buffer_load_dword v11, v10, {WS}, {so} offen sc1')
        e.I('s_waitcnt vmcnt(0)')
        e.I('s_memtime s[46:47]')
        e.I('s_waitcnt lgkmcnt(0)')
        e.I('s_sub_u32 s46, s46, s44')
        e.I(f's_min_u32 {acc}, {acc}, s46')
    e.I('s_sub_u32 s42, s42, 1')
    e.I('s_cmp_lg_u32 s42, 0')
    e.I(f's_cbranch_scc1 {cal}')
    e.I('s_cmp_lt_u32 s41, s40')
    if opt.pflip: e.I('s_cmp_ge_u32 s41, s40')
    e.I('s_cselect_b32 s38, 2, 1')
    e.I('v_mov_b32 v11, s38')
    e.I('s_lshl_b32 s38, s20, 2')
    e.I('v_mov_b32 v10, s38')
    e.I(f'global_store_dword v10, v11, s[74:75] offset:{D_PAR} sc1')
    e.I('s_mov_b64 exec, -1')
    e.L(nocal)
    def early_touch():
        jobs = []
        for sl in range(2): jobs += [(b_ + sl * SEG_QX, 12288, 96) for b_ in (KX, VX)]
        for sl in range(2): jobs += [(QX + sl * SEG_QX, 12288, 96), (XP + sl * SEG_XP, 6144, 48), (VM + sl * SEG_VM, 3072, 24)]
        touch_jobs(e, jobs, 's24', 10, 's26', 24)
    if opt.tord == 0: early_touch()
    if not opt.swlate: wo_load()
    if opt.tord == 1: early_touch()
    e.I(f's_mov_b32 s52, {SC_L2E:#x}'); e.I(f's_mov_b32 s53, {SC_L2E | 0x80000000:#x}')
    lane_ig(e, 14, 15)
    e.I('v_and_b32 v13, 7, v14')
    e.I('v_lshlrev_b32 v13, 4, v13')
    e.I('v_lshl_add_u32 v13, v15, 7, v13')
    e.I('v_bfe_u32 v5, v1, 3, 1')
    e.I('s_lshl_b32 s38, s22, 9')
    e.I(f's_add_u32 s38, s38, {S_RED}')
    e.I('v_add_u32 v6, s38, v13')
    e.I('v_lshl_add_u32 v6, v5, 14, v6')
    e.I('s_lshl_b32 s38, s22, 11')
    e.I(f's_add_u32 s38, s38, {S_RED}')
    e.I('v_add_u32 v7, s38, v13')
    e.I('v_lshl_add_u32 v7, v5, 10, v7')
    if opt.pbf: e.I('v_lshrrev_b32 v13, 1, v13')
    e.I('v_lshl_add_u32 v13, v5, 13, v13')
    e.I('v_and_b32 v4, 0x1fff, v13')
    e.I('v_lshlrev_b32 v9, 2, v5')
    e.I('v_xor_b32 v9, s20, v9')
    for m in range(4):
        e.I(f'v_xor_b32 v8, {m}, v9')
        e.I(f'v_lshl_add_u32 v{PAD+m}, v8, 9, v4')
    e.I('v_and_b32 v9, 7, v1')
    e.I('v_lshlrev_b32 v8, 4, v9')
    e.I('v_lshl_add_u32 v8, v5, 7, v8')
    e.I('v_lshl_add_u32 v8, v15, 2, v8')
    e.I('s_lshl_b32 s38, s25, 8')
    e.I('v_add_u32 v8, s38, v8')
    e.I('v_lshrrev_b32 v9, 1, v1')
    e.I('v_lshlrev_b32 v9, 10, v9')
    e.I('v_and_b32 v10, 1, v1')
    e.I('v_lshl_add_u32 v9, v10, 3, v9')
    e.I(f'v_lshlrev_b32 v{ONE+1}, 2, v1')
    for k in range(4): e.I(f'v_mov_b32 v{SENT+k}, -1')
    e.I('s_mov_b32 s68, 0xff00ff00'); e.I('s_mov_b32 s69, 0xff00ff00')
    e.I('s_mov_b32 s70, 0x3f80'); e.I('s_mov_b32 s71, 0x3f800000')
    e.I(f'v_mov_b32 v{CI}, {NEG_BIG:#x}')
    e.I('s_mov_b32 vcc_lo, 0')
    e.I('s_mov_b32 vcc_hi, 0x00ff00ff')
    e.I(f'v_cndmask_b32 v{CI}, v{CI}, 0, vcc')
    for k in range(1, 4): e.I(f'v_mov_b32 v{CI+k}, v{CI}')
    e.I(f'v_mov_b32 v{IDX}, 0x44444444')
    e.I('v_mov_b32 v11, 0xeeeeeeee')
    e.I('v_cmp_lt_u32 vcc, 7, v14')
    e.I(f'v_cndmask_b32 v{IDX}, v{IDX}, v11, vcc')
    e.I('v_mov_b32 v11, 0x3f803f80')
    for k in range(4): e.I(f'v_accvgpr_write_b32 a{AONE+k}, v11')
    e.I('v_mov_b32 v11, 0x3f003f00')
    for k in range(2): e.I(f'v_accvgpr_write_b32 a{AHALF+k}, v11')
    e.I('s_mul_i32 s58, s26, 6144')
    e.I(f's_add_u32 s58, s58, {XR}')
    e.I('s_mul_i32 s57, s26, 3072')
    e.I(f's_add_u32 s57, s57, {VR}')
    e.I('s_lshr_b32 s59, s25, 1')
    e.I('s_lshl_b32 s59, s59, 14')
    e.I('s_and_b32 s38, s25, 1')
    e.I('s_lshl_b32 s38, s38, 12')
    e.I('s_add_u32 s59, s59, s38')
    e.I(f's_add_u32 s59, s59, {PART}')
    e.I('s_lshl_b32 s60, s20, 9')
    e.I('s_add_u32 s60, s60, s59')
    e.I('s_mul_i32 s61, s20, 10240')
    e.I(f's_add_u32 s61, s61, {MEM}')
    e.I('s_mul_i32 s62, s26, 12288')
    e.I('s_lshl_b32 s63, s26, 6')
    e.I(f's_add_u32 s63, s63, {FLGQ}')
    e.I('s_lshl_b32 s38, s20, 2')
    e.I('v_mov_b32 v10, s38')
    wait_flags(e, 10, D_PAR, 1, T0, 12, sleep=4, dbg=True)
    e.I(f'v_readfirstlane_b32 s38, v{T0}')
    e.I('s_nop 3')
    e.I('s_and_b32 s38, s38, 2')
    e.I('s_lshl_b32 s38, s38, 12')
    e.I('s_add_u32 s59, s59, s38')
    e.I('s_lshl_b32 s38, s22, 2')
    e.I(f's_add_u32 s38, s38, {S_RED + 8192}')
    e.I('v_lshlrev_b32 v10, 4, v14')
    e.I('v_add_u32 v10, s38, v10')
    e.I('v_and_b32 v11, 7, v14')
    e.I('v_lshlrev_b32 v11, 4, v11')
    e.I('v_bfe_u32 v12, v1, 3, 1')
    e.I('v_lshl_add_u32 v11, v12, 3, v11')
    e.I(f'v_add_u32 v11, {S_RED + 8192}, v11')
    e.I('v_min_u32 v12, 11, v1')
    e.I('v_lshlrev_b32 v12, 2, v12')
    def kv_loads(dst, base, q0=0, q1=12):
        if q0 >= q1: return
        e.I(f's_and_b32 s48, s49, {RD-1}')
        e.I(f's_mul_i32 s48, s48, {SEG_QX}')
        e.I('s_add_u32 s48, s48, s62')
        e.I(f's_add_u32 s48, s48, {base + (q0//4)*4096}')
        for q in range(q0, q1):
            if q % 4 == 0 and q > q0: e.I('s_add_u32 s48, s48, 4096')
            e.I(f'buffer_load_dwordx4 {vr(dst+4*q)}, v2, {WS}, s48 offen offset:{(q%4)*1024} sc1')
    def vx_loads():
        e.I(f's_and_b32 s48, s49, {RD-1}')
        e.I(f's_mul_i32 s48, s48, {SEG_QX}')
        e.I('s_add_u32 s48, s48, s62')
        e.I(f's_add_u32 s48, s48, {VX}')
        e.I('s_add_u32 s46, s48, 4096')
        e.I('s_add_u32 s56, s48, 8192')
        for kk in range(6):
            for rt in range(2):
                q = rt * 6 + kk
                e.I(f'buffer_load_dwordx4 {vr(VXF+4*q)}, v2, {WS}, {("s48", "s46", "s56")[q//4]} offen offset:{(q%4)*1024} sc1')
    def vw_grp(gi):
        kk, rt = gi // 2, gi % 2
        for ct in range(4):
            d = vr(DW + (ct*2+rt)*4)
            e.I(f'{MFMA} {d}, {vr(VXF+4*(rt*6+kk))}, {ar((ct*6+kk)*4)}, {0 if kk == 0 else d}')
    def vw_x(after, extra=(), nvx=0, g0=0):
        extra = list(extra); nx0 = len(extra)
        for gi in range(g0, 12):
            if gi >= 12 - nvx: e.I(f's_waitcnt vmcnt({11 - gi + nx0 - len(extra)})')
            for _ in range(-(-len(extra) // (12 - gi))): e.I(extra.pop(0))
            if after is not None: e.I(f's_waitcnt vmcnt({after + 11 - gi})')
            vw_grp(gi)
        cv = [f'v_cvt_pk_bf16_f32 v{VWX+4*ct+k}, v{DW+8*ct+2*k}, v{DW+8*ct+2*k+1}' for ct in range(4) for k in range(4)] + [f'v_mov_b32 v{DM+k}, 0' for k in range(16)]
        for n_, x_ in enumerate(cv):
            if extra and n_ % 2 == 0: e.I(extra.pop(0))
            e.I(x_)
    TS(e, 0)
    wait_reg(e, T0, opt.rsleep)
    TS(e, 1)
    if opt.swlate: wo_load()
    if opt.tord == 2: early_touch()
    TS(e, 2)
    TSflush(e, '69', 244, 245)
    if opt.touch2:
        e.I('v_lshrrev_b32 v16, 4, v1')
        e.I(f's_mov_b32 s38, {PART_SLOT}')
        e.I('v_mul_lo_u32 v16, s38, v16')
        e.I('v_bfe_u32 v17, v1, 1, 3')
        e.I('v_lshl_add_u32 v16, v17, 9, v16')
        e.I('v_and_b32 v17, 1, v1')
        e.I('v_lshl_add_u32 v16, v17, 7, v16')
        e.I(f'buffer_load_dword v17, v16, {WS}, s59 offen sc1')
    wait_flags(e, ONE + 1, 's63', 0xfff, T0, 11, sleep=2)
    e.I('s_mov_b32 s49, 0')
    vx_loads()
    kv_loads(KXF, KX)
    vw_x(12)
    e.I('s_cmp_lg_u32 s23, 0')
    e.I('s_cbranch_scc1 L_sws')
    for slow in (False, True):
        fl = ' sc1' if slow else ''
        if slow: e.L('L_sws')
        top = e.lab('Lwt')
        e.I('s_mov_b32 s30, 0')
        e.L(top)
        TS(e, 0)
        if opt.pdiag: e.I('s_mov_b32 s94, 0')
        e.I('s_and_b32 s38, s30, 3')
        e.I('s_xor_b32 s39, s38, 2')
        e.I(f's_mul_i32 s40, s38, {XR_SLOT}')
        e.I('s_add_u32 s40, s40, s58')
        e.I('s_add_u32 s54, s40, 4096')
        e.I(f's_mul_i32 s55, s38, {VR_SLOT}')
        e.I('s_add_u32 s55, s55, s57')
        if opt.fresh:
            e.I(f's_mul_i32 s41, s30, {PART_SLOT}')
            e.I(f's_add_u32 s41, s41, {SCRATCH + 0x400000 - PART + 0x200000}')
        else:
            e.I(f's_mul_i32 s41, s38, {PART_SLOT}')
        e.I('s_add_u32 s42, s41, s60')
        e.I('s_add_u32 s41, s41, s59')
        if opt.fresh:
            e.I('s_lshr_b32 s47, s41, 8')
            e.I('s_not_b32 s47, s47')
            e.I('s_and_b32 s47, s47, 8192')
            e.I('s_xor_b32 s41, s41, s47')
        e.I('s_xor_b32 s47, s41, 8192')
        e.I(f's_mul_i32 s43, s39, {PART_SLOT}')
        e.I('s_add_u32 s43, s43, s60')
        e.I('s_add_u32 s49, s30, 1')
        e.I('s_and_b32 s44, s49, 3')
        e.I('s_xor_b32 s45, s44, 2')
        e.I(f's_mul_i32 s44, s44, {MEM_SLOT}')
        e.I('s_add_u32 s44, s44, s61')
        e.I(f's_mul_i32 s45, s45, {MEM_SLOT}')
        e.I('s_add_u32 s45, s45, s61')
        e.I(f's_and_b32 s46, s49, {RD-1}')
        e.I(f's_mul_i32 s46, s46, {SEG_QX}')
        e.I('s_add_u32 s46, s46, s62')
        e.I(f's_add_u32 s65, s46, {KX}')
        e.I(f's_add_u32 s46, s46, {VX}')
        e.I('s_add_u32 s56, s46, 4096')
        e.I('s_add_u32 s64, s46, 8192')
        e.I('s_add_u32 s66, s65, 4096')
        e.I('s_add_u32 s67, s65, 8192')
        e.I('s_lshl_b32 s50, s49, 11')
        e.I('s_add_u32 s50, s50, s63')
        pl, pd, fr, hl, hd = e.lab('Lxp'), e.lab('Lxd'), e.lab('Lxf'), e.lab('Lhp'), e.lab('Lhd')
        def probe(lp, dn, va, so, bad):
            e.I('s_mov_b64 exec, 0xfff')
            e.I(f'buffer_load_dword v{T0}, v{va}, {WS}, {so} offen sc1')
            e.L(lp)
            for a_, b_ in ((T0, T0 + 1), (T0 + 1, T0)):
                e.I(f'buffer_load_dword v{b_}, v{va}, {WS}, {so} offen sc1')
                e.I('s_waitcnt vmcnt(1)')
                e.I(f'v_cmp_eq_u32 vcc, {bad}, v{a_}')
                e.I(f's_cbranch_vccz {dn}')
            e.I('s_sub_u32 s31, s31, 1')
            e.I(f's_cbranch_scc0 {lp}')
            e.I('s_mov_b32 s31, 2')
            e.I('s_branch L_fail')
        e.I(f's_mov_b32 s31, {TMO}')
        probe(hl, hd, 12, 's50', 0)
        xp = e.lab('Lxq')
        e.L(xp)
        probe(pl, pd, 9, 's40', -1)
        e.L(hd)
        if opt.hdelay: e.I(f's_nop {opt.hdelay - 1}')
        if not opt.heads: e.I(f's_branch {xp}')
        e.L(pd)
        e.I('s_mov_b64 exec, -1')
        TS(e, 1)
        if opt.pdiag: e.I('s_add_u32 s94, s94, 1')
        e.L(fr)
        for p in range(6):
            e.I(f'buffer_load_dwordx4 {vr(XF+4*p)}, v2, {WS}, {"s40" if p < 4 else "s54"} offen offset:{(p%4)*1024} sc1')
        FQ = CI + 23
        def vm_loads():
            for q in range(3):
                e.I(f'buffer_load_dwordx4 {vr(VMF+4*q)}, v2, {WS}, s55 offen offset:{q*1024} sc1')
        vp = opt.vmpos
        nvm = 0
        if vp == 0: vm_loads(); nvm = 3
        for p in range(6):
            x = vr(XF + 4*p)
            e.I(f's_waitcnt vmcnt({5-p+nvm})')
            e.I(f'{MFMA} {vr(S+4)}, {vr(KXF+4*p)}, {x}, {0 if p == 0 else vr(S+4)}')
            e.I(f'{MFMA} {vr(S+8)}, {vr(KXF+24+4*p)}, {x}, {0 if p == 0 else vr(S+8)}')
            e.I(f'{MFMA} {vr(S)}, {x}, {x}, {vr(CI) if p == 0 else vr(S)}')
            if vp == p + 1: vm_loads(); nvm = 3
            r = XF + 4 * p
            if p == 0:
                e.I(f'v_max3_u32 v{T0+2}, v{r}, v{r+1}, v{r+2}')
                e.I(f'v_max_u32 v{T0+2}, v{T0+2}, v{r+3}')
            else:
                e.I(f'v_max3_u32 v{T0+2}, v{T0+2}, v{r}, v{r+1}')
                e.I(f'v_max3_u32 v{T0+2}, v{T0+2}, v{r+2}, v{r+3}')
        e.I(f'v_cmp_eq_u32 vcc, -1, v{T0+2}')
        ok = e.lab('Lxo')
        e.I(f's_cbranch_vccz {ok}')
        e.I('s_sub_u32 s31, s31, 1')
        e.I('s_nop 7')
        e.I(f's_cbranch_scc0 {xp}')
        e.I('s_mov_b32 s31, 2')
        e.I('s_branch L_fail')
        e.L(ok)
        TS(e, 2)
        vl, vd = e.lab('Lvp'), e.lab('Lvd')
        e.L(vl)
        e.I('s_waitcnt vmcnt(0)')
        check_sent(e, range(VMF, VMF + 12), T0 + 2, T0 + 3)
        e.I(f's_cbranch_vccz {vd}')
        vm_loads()
        e.I('s_sub_u32 s31, s31, 1')
        e.I(f's_cbranch_scc0 {vl}')
        e.I('s_mov_b32 s31, 3')
        e.I('s_branch L_fail')
        e.L(vd)
        TS(e, 3)
        PW = 2 if opt.pbf else 4
        if opt.rpos == 0: e.I(f'buffer_store_dwordx{PW} {vr(SENT,PW)}, v13, {WS}, s43 offen sc1')
        ROR8 = 'row_ror:8 row_mask:0xf bank_mask:0xf'
        sm = [f'{SMF} {vr(DM+4*ct)}, {vr(VMF+4*m)}, {ar((ct*6+2*m)*4,8)}, v{IDX}' for m in range(3) for ct in range(4)]
        t = T0 + 2
        V = []
        for r in range(4): V.append(f'v_mov_b32_dpp v{S+4+r}, v{S+8+r} row_shr:8 row_mask:0xf bank_mask:0xc')
        V += [f'v_max3_f32 v{t}, v{S}, v{S+1}, v{S+2}', f'v_max3_f32 v{t+1}, v{S+3}, v{S+4}, v{S+5}', f'v_max3_f32 v{t}, v{t}, v{S+6}, v{S+7}', f'v_max_f32 v{t}, v{t}, v{t+1}',
              '*', '*', f'v_max_f32_dpp v{t}, v{t}, v{t} {ROR8}', f'v_mov_b32 v{t+1}, v{t}', '*', '*', f'v_permlane16_swap_b32 v{t}, v{t+1}', f'v_max_f32 v{t}, v{t}, v{t+1}',
              f'v_mov_b32 v{t+1}, v{t}', '*', '*', f'v_permlane32_swap_b32 v{t}, v{t+1}', f'v_max_f32 v{t}, v{t}, v{t+1}', f'v_mul_f32 v{t}, s53, v{t}']
        order = [4, 5, 6, 7, 0, 1, 2, 3]
        for i in order: V.append(f'v_fma_f32 v{S+i}, v{S+i}, s52, v{t}')
        for n_, i in enumerate(order):
            V.append(f'v_exp_f32 v{S+i}, v{S+i}')
        bulk = [f'buffer_load_dwordx4 {vr(VXF+4*q)}, v2, {WS}, {("s46", "s56", "s64")[q//4]} offen offset:{(q%4)*1024} sc1' for q in (0, 6, 1, 7, 2, 8, 3, 9, 4, 10, 5, 11)]
        bulk += [f'buffer_load_dwordx4 {vr(KXF+4*q)}, v2, {WS}, {("s65", "s66", "s67")[q//4]} offen offset:{(q%4)*1024} sc1' for q in range(12)]
        kin = bulk[:opt.kin]; kp = bulk[opt.kin:opt.kin + opt.kp]; kc = bulk[opt.kin + opt.kp:]
        if opt.nobulk & 1: kin = []
        if opt.nobulk & 2: kp = []
        if opt.nobulk & 4: kc = []
        def ld():
            if kin: e.I(kin.pop(0))
        for x_ in sm[:opt.smpre]: e.I(x_)
        rest = sm[opt.smpre:]
        cost = 0; prev = None; nld = 0
        for x_ in V:
            if x_ == '*':
                if prev == '*' or cost == 0 or not rest: ld()
                else: e.I(rest.pop(0)); cost = 0
            else:
                e.I(x_); cost += 2 if 'v_exp' in x_ else 1
                if cost >= opt.smgap and rest: e.I(rest.pop(0)); cost = 0
                elif not rest and cost >= opt.ldgap: ld(); cost = 0
            prev = x_
        for x_ in rest: e.I(x_)
        e.I(f'v_cvt_pk_bf16_f32 v{PB}, v{S+4}, v{S+5}')
        e.I(f'v_cvt_pk_bf16_f32 v{PB+1}, v{S+6}, v{S+7}')
        e.I(f'v_cvt_pk_bf16_f32 v{PM}, v{S}, v{S+1}')
        e.I(f'v_cvt_pk_bf16_f32 v{PM+1}, v{S+2}, v{S+3}')
        e.I(f'v_mov_b32_dpp v{PB+2}, v{PB} {ROR8}')
        e.I(f'v_mov_b32_dpp v{PB+3}, v{PB+1} {ROR8}')
        e.I(f'v_mov_b32 v{t}, v{PM}')
        e.I(f'v_mov_b32 v{t+1}, v{PM+1}')
        if opt.tpos == 0: TS(e, 4)
        def cvm(ct):
            e.I(f'v_cvt_pk_bf16_f32 v{VWM+2*ct}, v{DM+4*ct}, v{DM+4*ct+1}')
            e.I(f'v_cvt_pk_bf16_f32 v{VWM+2*ct+1}, v{DM+4*ct+2}, v{DM+4*ct+3}')
        SUM = S
        e.I(f'{MFMA} {vr(OUT)}, {vr(VWX)}, {vr(PB)}, 0')
        e.I(f'v_permlane32_swap_b32 v{t}, v{PM}')
        e.I(f'v_permlane32_swap_b32 v{t+1}, v{PM+1}')
        e.I(f'{MFMA} {vr(SUM)}, {ar(AONE)}, {vr(PB)}, 0')
        cvm(0)
        e.I(f'{MFMA} {vr(OUT+4)}, {vr(VWX+4)}, {vr(PB)}, 0')
        cvm(1)
        e.I(f'{MFMA} {vr(OUT+8)}, {vr(VWX+8)}, {vr(PB)}, 0')
        cvm(2)
        e.I(f'{MFMA} {vr(OUT+12)}, {vr(VWX+12)}, {vr(PB)}, 0')
        cvm(3)
        e.I(f'{MFMA16} {vr(OUT)}, {vr(VWM,2)}, {vr(PM,2)}, {vr(OUT)}')
        ld()
        e.I(f'{MFMA16} {vr(SUM)}, {ar(AHALF,2)}, {vr(PM,2)}, {vr(SUM)}')
        ld()
        for ct in range(1, 4):
            e.I(f'{MFMA16} {vr(OUT+4*ct)}, {vr(VWM+2*ct,2)}, {vr(PM,2)}, {vr(OUT+4*ct)}')
            if ct < 3: ld()
        while kin: ld()
        if opt.tpos == 1: TS(e, 4)
        e.I('s_not_b64 exec, s[68:69]')
        e.I(f'ds_write_b128 v6, {vr(OUT)}')
        e.I(f'v_rcp_f32 v{t}, v{SUM}')
        e.I(f'ds_write_b128 v6, {vr(OUT+4)} offset:2048')
        e.I(f'ds_write_b32 v10, v{t}')
        e.I(f'ds_write_b128 v6, {vr(OUT+8)} offset:4096')
        e.I(f'ds_write_b128 v6, {vr(OUT+12)} offset:6144')
        e.I('s_mov_b64 exec, -1')
        e.I('s_waitcnt lgkmcnt(0)')
        if opt.tpos == 2: TS(e, 4)
        e.I('s_barrier')
        if opt.tpos == 3: TS(e, 4)
        e.I(f'ds_read_b64 {vr(t,2)}, v11')
        e.I(f'ds_read_b128 {vr(S)}, v7')
        e.I(f'ds_read_b128 {vr(S+4)}, v7 offset:512')
        e.I('s_waitcnt lgkmcnt(1)')
        for k in range(4): e.I(f'v_mul_f32 v{S+k}, v{S+k}, v{t}')
        e.I('s_waitcnt lgkmcnt(0)')
        for k in range(4): e.I(f'v_fmac_f32 v{S+k}, v{S+4+k}, v{t+1}')
        for k in range(4): e.I(f'v_add_f32_dpp v{S+k}, v{S+k}, v{S+k} {ROR8}')
        if opt.pbf:
            e.I(f'v_cvt_pk_bf16_f32 v{S+4}, v{S}, v{S+1}')
            e.I(f'v_cvt_pk_bf16_f32 v{S+5}, v{S+2}, v{S+3}')
            e.I(f'buffer_store_dwordx2 {vr(S+4,2)}, v13, {WS}, s42 offen sc1')
        else:
            e.I(f'buffer_store_dwordx4 {vr(S)}, v13, {WS}, s42 offen sc1')
        TS(e, 5)
        if opt.rpos == 2: e.I(f'buffer_store_dwordx{PW} {vr(SENT,PW)}, v13, {WS}, s43 offen sc1')
        e.I(f'v_mov_b32 v{PA}, 0'); e.I(f'v_mov_b32 v{PA+1}, 0')
        for k in range(4): e.I(f'v_cndmask_b32 v{S+k}, v{S+k}, 0, s[68:69]')
        if opt.pmf:
            e.I('s_waitcnt vmcnt(2)')
            for gi in range(opt.pmf): vw_grp(gi)
        if opt.pdelay: e.I(f's_sleep {opt.pdelay}')
        def shot():
            e.I('s_mov_b64 exec, s[68:69]')
            e.I(f'buffer_load_dwordx2 {vr(PA,2)}, v{PAD}, {WS}, s41 offen sc1')
            e.I('s_mov_b64 exec, -1')
            for m in range(1, 4): e.I(f'buffer_load_dwordx2 {vr(PA+2*m,2)}, v{PAD+m}, {WS}, s41 offen sc1')
            for k in range(4): e.I(f'v_mov_b32 v{T0+8+k}, v{S+k}')
        ql, qd, qf = e.lab('Lpp'), e.lab('Lpd'), e.lab('Lpf')
        shot()
        for gi in range(opt.pmf, opt.pmf + opt.pmf2): vw_grp(gi)
        e.I(f's_branch {qf}')
        e.L(ql)
        shot()
        e.L(qf)
        for m in range(4):
            e.I(f's_waitcnt vmcnt({3-m})')
            if m == 0: e.I(f'v_max_u32 v{T0}, v{PA}, v{PA+1}')
            else: e.I(f'v_max3_u32 v{T0}, v{T0}, v{PA+2*m}, v{PA+2*m+1}')
            if m == 3: e.I(f'v_cmp_eq_u32 vcc, -1, v{T0}')
            for k in range(4): e.I(f'v_dot2c_f32_bf16 v{T0+8+k}, {("s70", "s71")[k&1]}, v{PA+2*m+(k>>1)}')
        e.I(f's_cbranch_vccz {qd}')
        e.I('s_sub_u32 s31, s31, 1')
        e.I(f's_cbranch_scc0 {ql}')
        e.I('s_mov_b32 s31, 4')
        e.I('s_branch L_fail')
        e.L(qd)
        TS(e, 6)
        e.I('s_nop 1')
        for k in range(2): e.I(f'v_add_f32_dpp v{T0+4+k}, v{T0+8+k}, v{T0+8+k} row_ror:8 row_mask:0xf bank_mask:0x3')
        for k in range(2): e.I(f'v_add_f32_dpp v{T0+4+k}, v{T0+10+k}, v{T0+10+k} row_ror:8 row_mask:0xf bank_mask:0xc ; merge')
        e.I(f'v_cvt_pk_bf16_f32 v{T0+4}, v{T0+4}, v{T0+5}')
        e.I(f'buffer_store_dword v{T0+4}, v8, {WS}, s44 offen{fl}')
        TS(e, 7)
        e.I(f'buffer_store_dword v{SENT}, v8, {WS}, s45 offen{fl}')
        if opt.mbar: e.I('s_barrier')
        nvx = max(0, 12 - opt.kin - opt.kp)
        for x_ in kc[:nvx]: e.I(x_)
        assert opt.kin >= opt.pmf + opt.pmf2
        vw_x(None, kc[nvx:], nvx, opt.pmf + opt.pmf2)
        TS(e, 8)
        TSflush(e, 's30', 244, 245)
        e.I('s_add_u32 s30, s30, 1')
        e.I('s_cmp_lt_u32 s30, 63')
        e.I(f's_cbranch_scc1 {top}')
        if not slow: e.I('s_branch L_swend')
    e.L('L_swend')
    e.I('s_lshl_b32 s38, s20, 6')
    e.I('s_lshl_b32 s39, s22, 2')
    e.I('s_add_u32 s38, s38, s39')
    e.I(f's_add_u32 s38, s38, {FLGOX + 63*512}')
    e.I(f's_add_u32 s46, s62, {OX + (63 % RD)*SEG_QX}')
    e.I('s_add_u32 s56, s46, 4096')
    e.I('s_add_u32 s64, s46, 8192')
    e.I('s_lshl_b32 s39, s22, 10')
    e.I('v_add_u32 v6, s39, v2')
    e.I('s_lshl_b32 s39, s22, 12')
    e.I('v_add_u32 v7, s39, v2')
    e.I('s_lshr_b32 s40, s24, 1')
    e.I('s_lshl_b32 s40, s40, 2')
    e.I('s_add_u32 s40, s40, s22')
    e.I('s_lshl_b32 s40, s40, 10')
    e.I('s_and_b32 s41, s24, 1')
    e.I('s_lshl_b32 s41, s41, 3')
    e.I('s_add_u32 s40, s40, s41')
    e.I('s_mul_i32 s41, s20, 40960')
    e.I('s_add_u32 s40, s40, s41')
    e.I(f's_add_u32 s40, s40, {PX + 63*SEG_PX}')
    e.I('s_add_u32 s41, s40, 20480')
    e.I('s_mul_i32 s43, s20, 5')
    e.I('s_lshr_b32 s44, s24, 1')
    e.I('s_add_u32 s43, s43, s44')
    e.I('s_lshl_b32 s43, s43, 7')
    e.I(f's_add_u32 s43, s43, {HINT2}')
    e.I('v_mov_b32 v3, 0')
    e.I(f'v_mov_b32 v{ONE}, 1')
    e.I('s_waitcnt vmcnt(0)')
    TS(e, 0)
    wait_flags(e, 3, 's38', 1, T0, 5, sleep=opt.esleep)
    TS(e, 1)
    order = (0, 6, 1, 7, 2, 8, 3, 9, 4, 10, 5, 11)
    for q in order: e.I(f'buffer_load_dwordx4 {vr(VXF+4*q)}, v2, {WS}, {("s46", "s56", "s64")[q//4]} offen offset:{(q%4)*1024} sc1')
    for n_, q in enumerate(order):
        qt, kk = q // 6, q % 6
        e.I(f's_waitcnt vmcnt({11 - n_})')
        for ct in range(4):
            d = vr(DW + (qt*4+ct)*4)
            e.I(f'{MFMA} {d}, {ar((ct*6+kk)*4)}, {vr(VXF+4*q)}, {0 if kk == 0 else d}')
    TS(e, 2)
    for k in range(8): e.I(f'ds_write_b128 v6, {vr(DW+4*k)} offset:{k*4096}')
    e.I('s_waitcnt lgkmcnt(0)')
    e.I('s_barrier')
    for qt in range(2):
        for hh in range(4): e.I(f'ds_read_b128 {vr(KXF+(qt*4+hh)*4)}, v7 offset:{qt*16384 + hh*1024}')
    for qt in range(2):
        r = KXF + qt*16
        e.I(f's_waitcnt lgkmcnt({4 - 4*qt})')
        for k in range(4):
            e.I(f'v_add_f32 v{r+k}, v{r+k}, v{r+4+k}')
            e.I(f'v_add_f32 v{r+8+k}, v{r+8+k}, v{r+12+k}')
        for k in range(4): e.I(f'v_add_f32 v{r+k}, v{r+k}, v{r+8+k}')
        e.I(f'v_cvt_pk_bf16_f32 v{r+4}, v{r}, v{r+1}')
        e.I(f'v_cvt_pk_bf16_f32 v{r+5}, v{r+2}, v{r+3}')
        e.I(f'buffer_store_dwordx2 {vr(r+4,2)}, v2, {WS}, {("s40", "s41")[qt]} offen sc1')
    TS(e, 3)
    e.I('s_and_b32 s38, s25, 7')
    e.I(f's_cmp_eq_u32 s38, {opt.hwv}')
    e.I('s_cselect_b64 exec, 1, 0')
    e.I(f'buffer_store_dword v{ONE}, v3, {WS}, s43 offen sc1')
    e.I('s_mov_b64 exec, -1')
    TSflush(e, '63', 244, 245)
    e.I('s_endpgm')

def role_xw(e):
    OF = 16
    D = 112
    T0 = 160; ONE = 252
    e.I('s_sub_u32 s24, s21, 22')
    srd(e, 8, 66, 6144 * 1280)
    e.I(f's_mul_i32 s28, s20, {768*1280}')
    e.I('s_lshl_b32 s29, s24, 8')
    e.I('s_add_u32 s28, s28, s29')
    e.I('s_add_u32 s29, s28, 128')
    e.I(f'v_lshlrev_b32 v{ONE+1}, 2, v1')
    e.I('s_lshl_b32 s38, s20, 8')
    e.I(f's_add_u32 s38, s38, {FLGQ}')
    if opt.xlate & 1: wait_first(e, T0)
    if opt.touch:
        jobs = []
        for sl in range(RD):
            if sl >= 2: jobs += [(b_ + sl * SEG_QX, 12288, 96) for b_ in (KX, VX, QX)] + [(XP + sl * SEG_XP, 6144, 48), (VM + sl * SEG_VM, 3072, 24)]
            if sl >= 2: jobs += [(OX + (sl - 2) * SEG_QX, 12288, 96)]
        jobs += [(OX + sl * SEG_QX, 12288, 96) for sl in (6, 7)]
        e.I('s_lshl_b32 s40, s20, 2')
        e.I('s_add_u32 s40, s40, s22')
        touch_jobs(e, jobs, 's24', 5, 's40', 16)
    pass
    load_weights(e, [('s[8:11]', 's28', 0, 768), ('s[8:11]', 's29', 96, 768)], 1280, 256, True, 3, 4)
    e.I(f'v_lshlrev_b32 v{ONE+1}, 2, v1')
    e.I('s_lshl_b32 s38, s20, 2')
    e.I('s_add_u32 s38, s38, s22')
    e.I('s_lshl_b32 s39, s38, 2')
    e.I('v_lshlrev_b32 v3, 7, v1')
    e.I('v_add_u32 v3, s39, v3')
    e.I(f'v_mov_b32 v{ONE}, 1')
    e.I('s_mul_i32 s62, s22, 12288')
    e.I('s_mul_i32 s63, s38, 12288')
    e.I(f's_add_u32 s63, s63, {OX}')
    e.I('s_mul_i32 s64, s20, 40960')
    e.I('s_lshl_b32 s65, s24, 2')
    e.I('s_add_u32 s65, s65, s22')
    e.I('s_lshl_b32 s65, s65, 10')
    e.I('s_add_u32 s64, s64, s65')
    e.I(f's_add_u32 s64, s64, {PX}')
    e.I('s_lshl_b32 s66, s24, 8')
    e.I(f's_add_u32 s66, s66, {FLGPX}')
    def pxflag():
        e.I('s_mov_b64 exec, 3')
        e.I(f'buffer_store_dword v{ONE}, v3, {WS}, s54 offen sc1')
        e.I('s_mov_b64 exec, s[60:61]')
        e.I(f'buffer_store_dword v{ONE}, v6, {WS}, s53 offen sc1')
        e.I('s_mov_b64 exec, -1')
    wait_reg(e, T0)
    top, nof, late, nxt_, last = e.lab('Lxt'), e.lab('Lxn'), e.lab('Lxl'), e.lab('Lxx'), e.lab('Lxe')
    e.I('s_lshl_b32 s67, s20, 6')
    e.I('s_lshl_b32 s38, s22, 2')
    e.I('s_add_u32 s67, s67, s38')
    e.I(f's_add_u32 s67, s67, {FLGOX}')
    e.I('s_lshl_b32 s38, s20, 5')
    e.I('s_add_u32 s38, s38, s24')
    e.I('s_lshl_b32 s38, s38, 2')
    e.I('v_mov_b32 v6, s38')
    e.I('v_mov_b32 v4, 0')
    e.I('v_mov_b32 v5, v2')
    def dma(sn):
        e.I(f's_and_b32 s55, {sn}, {RD-1}')
        e.I(f's_mul_i32 s55, s55, {SEG_QX}')
        e.I('s_add_u32 s55, s55, s63')
        e.I(f's_and_b32 s56, {sn}, 1')
        e.I('s_mul_i32 s56, s56, 49152')
        e.I('s_add_u32 s56, s56, s62')
        for m in range(12):
            e.I(f's_add_u32 m0, s56, {m*1024}')
            e.I(f'buffer_load_dwordx4 v2, {WS}, s55 offen sc1 lds')
            if m < 11: e.I('s_add_u32 s55, s55, 1024')
    e.I('s_mov_b32 s30, 0')
    wait_flags(e, 4, 's67', 1, T0, 5, sleep=opt.xsleep)
    dma('s30')
    e.L(top)
    TS(e, 0)
    e.I('s_add_u32 s58, s30, 1')
    e.I('s_min_u32 s57, s58, 62')
    e.I('s_lshl_b32 s57, s57, 9')
    e.I('s_add_u32 s57, s57, s67')
    e.I('s_waitcnt vmcnt(0)')
    e.I(f'buffer_load_dword v{T0}, v4, {WS}, s57 offen sc1')

    e.I('s_cmp_eq_u32 s30, 0')
    e.I(f's_cbranch_scc1 {nof}')
    e.I('s_cmp_lg_u32 s59, 0')
    e.I(f's_cbranch_scc1 {nof}')
    pxflag()
    nof2 = e.lab('Lxm')
    e.I(f's_branch {nof2}')
    e.L(nof)
    for _ in range(2): e.I(f'buffer_load_dword v{T0+1}, v4, {WS}, s57 offen sc1')
    e.L(nof2)
    e.I('s_barrier')
    TS(e, 1)
    e.I(f's_mul_i32 s50, s30, {SEG_PX}')
    e.I('s_add_u32 s50, s50, s64')
    e.I('s_add_u32 s51, s50, 20480')
    e.I('s_mul_i32 s54, s30, 1280')
    e.I('s_add_u32 s54, s54, s66')
    e.I('s_and_b32 s53, s30, 3')
    e.I('s_lshl_b32 s53, s53, 10')
    e.I(f's_add_u32 s53, s53, {HINT}')
    e.I(f's_cmp_ge_u32 s30, {opt.cwarm}')
    e.I('s_cselect_b32 s60, 1, 0')
    e.I('s_cmp_eq_u32 s22, 0')
    e.I('s_cselect_b32 s60, s60, 0')
    e.I('s_mov_b32 s61, 0')
    TS(e, 2)
    PF = 6
    def rd(kk):
        hl, p = kk // 6, kk % 6
        for qt in range(2):
            e.I(f'ds_read_b128 {vr(OF + ((2*kk+qt) % 24)*4)}, v5 offset:{hl*12288 + (qt*6+p)*1024}')
    for kk in range(PF): rd(kk)
    for kk in range(24):
        nxt = min(24, kk + PF) - (kk + 1)
        e.I(f's_waitcnt lgkmcnt({2*nxt})')
        for qt in range(2):
            for b in range(2):
                d = vr(D + 4*(qt*2+b))
                e.I(f'{MFMA} {d}, {ar(96*b+4*kk)}, {vr(OF + ((2*kk+qt) % 24)*4)}, {0 if kk == 0 else d}')
        if kk + PF < 24: rd(kk + PF)
        if kk == 4:
            e.I('s_waitcnt vmcnt(2)')
            e.I(f'v_readfirstlane_b32 s59, v{T0}')
            e.I('s_cmp_eq_u32 s30, 62')
            e.I('s_cselect_b32 s59, 0, s59')
            e.I('s_cmp_eq_u32 s59, 0')
            e.I(f's_cbranch_scc1 {late}')
            dma('s58')
            e.L(late)
        if kk == 16: e.I(f'buffer_load_dword v{T0}, v4, {WS}, s57 offen sc1')
    sc = e.lab('Lxs')
    e.I('s_cmp_lg_u32 s59, 0')
    e.I(f's_cbranch_scc1 {sc}')
    e.I('s_cmp_eq_u32 s30, 62')
    e.I(f's_cbranch_scc1 {sc}')
    e.I('s_waitcnt vmcnt(0)')
    e.I(f'v_readfirstlane_b32 s59, v{T0}')
    e.I('s_cmp_eq_u32 s59, 0')
    e.I(f's_cbranch_scc1 {sc}')
    dma('s58')
    e.L(sc)
    for qt, so in enumerate(('s50', 's51')):
        for k in range(4): e.I(f'v_cvt_pk_bf16_f32 v{D+16+4*qt+k}, v{D+8*qt+2*k}, v{D+8*qt+2*k+1}')
        e.I(f'buffer_store_dwordx4 {vr(D+16+4*qt)}, v2, {WS}, {so} offen sc1')
    e.I('v_xor_b32 v5, 49152, v5')
    TS(e, 3)
    TSflush(e, 's30')
    e.I('s_cmp_eq_u32 s30, 62')
    e.I(f's_cbranch_scc1 {last}')
    e.I('s_cmp_lg_u32 s59, 0')
    e.I('s_mov_b32 s59, 0')
    e.I(f's_cbranch_scc1 {nxt_}')
    e.I(f'buffer_load_dword v{T0}, v4, {WS}, s57 offen sc1')
    e.I('s_waitcnt vmcnt(0)')
    e.I(f'v_readfirstlane_b32 s38, v{T0}')
    e.I('s_cmp_lg_u32 s38, 0')
    sl2 = e.lab('Lxq')
    e.I(f's_cbranch_scc1 {sl2}')
    pxflag()
    e.I('s_mov_b32 s59, 1')
    wait_flags(e, 4, 's57', 1, T0, 5, sleep=opt.xsleep)
    e.L(sl2)
    dma('s58')
    e.L(nxt_)
    e.I('s_mov_b32 s30, s58')
    e.I(f's_branch {top}')
    e.L(last)
    e.I('s_waitcnt vmcnt(0)')
    pxflag()
    e.I('s_endpgm')

def role_att(e):
    fl = ''
    KF, QF, VF = 0, 48, 96
    XPF = 16
    SA, SB, PA_, PB_ = 40, 48, 60, 64
    DO, OB = 72, 136
    T0 = 226
    C0, C1 = 232, 236
    ONE = 252
    e.I('s_sub_u32 s25, s21, 27')
    e.I('s_lshl_b32 s26, s20, 2')
    e.I('s_add_u32 s26, s26, s22')
    e.I(f's_mov_b32 s52, {SC_L2E:#x}'); e.I(f's_mov_b32 s53, {SC_L2E | 0x80000000:#x}')
    e.I(f'v_lshlrev_b32 v{ONE+1}, 2, v1')
    e.I('s_lshl_b32 s38, s22, 2')
    e.I(f'v_mov_b32 v{ONE+2}, s38')
    e.I(f'v_mov_b32 v{ONE}, 1')
    lane_ig(e, 14, 15)
    e.I(f'v_mov_b32 v3, {NEG_BIG:#x}')
    e.I('v_cmp_gt_u32 vcc, 32, v1')
    e.I(f'v_cndmask_b32 v{C0}, 0, v3, vcc')
    for k in range(1, 4): e.I(f'v_mov_b32 v{C0+k}, v{C0}')
    e.I('v_lshlrev_b32 v5, 2, v15')
    for r in range(4):
        e.I(f'v_add_u32 v6, {r}, v5')
        e.I('v_cmp_gt_u32 vcc, v6, v14')
        e.I(f'v_cndmask_b32 v{C1+r}, 0, v3, vcc')
    e.I('s_mul_i32 s58, s26, 6144')
    e.I('s_lshl_b32 s59, s22, 14')
    e.I('v_and_b32 v4, 3, v1')
    e.I('v_lshlrev_b32 v4, 8, v4')
    e.I('v_bfe_u32 v5, v1, 2, 3')
    e.I('v_lshl_add_u32 v5, v5, 4, v4')
    e.I('v_add_u32 v5, s59, v5')
    e.I('v_lshrrev_b32 v6, 2, v1')
    e.I('v_lshl_add_u32 v4, v6, 4, v4')
    e.I('v_add_u32 v4, s59, v4')
    wait_reg(e, T0)
    e.I('v_lshrrev_b32 v12, 2, v1')
    e.I('v_lshlrev_b32 v12, 8, v12')
    e.I('v_and_b32 v13, 3, v1')
    e.I('v_lshl_add_u32 v12, v13, 2, v12')
    e.I('s_lshl_b32 s38, s20, 4')
    e.I('v_add_u32 v12, s38, v12')
    e.I('s_lshl_b32 s60, s26, 6')
    e.I(f's_add_u32 s60, s60, {FLGQ}')
    e.I('s_cmp_lg_u32 s23, 0')
    e.I('s_cbranch_scc1 L_atts')
    for slow in (False, True):
        fl = ' sc1' if slow else ''
        if slow: e.L('L_atts')
        top = e.lab('Lat')
        e.I('s_mov_b32 s30, s25')
        e.L(top)
        TS(e, 0)
        e.I('s_max_u32 s51, s30, 2')
        e.I('s_lshl_b32 s51, s51, 11')
        e.I('s_add_u32 s51, s51, s60')
        e.I(f's_and_b32 s42, s30, {RD-1}')
        e.I(f's_mul_i32 s40, s42, {SEG_QX}')
        e.I('s_lshl_b32 s41, s58, 1')
        e.I('s_add_u32 s40, s40, s41')
        e.I(f's_mul_i32 s41, s42, {SEG_XP}')
        e.I('s_add_u32 s41, s41, s58')
        nbp = e.lab('Lab')
        e.I(f's_cmp_lt_u32 s30, {RD}')
        e.I(f's_cbranch_scc1 {nbp}')
        e.I(f's_sub_u32 s50, s30, {RD}')
        e.I('s_mul_i32 s50, s50, 1280')
        e.I(f's_add_u32 s50, s50, {FLGPX}')
        wait_flags(e, 12, 's50', 0xfffff, T0, 14, sleep=16)
        e.L(nbp)
        wait_flags(e, ONE + 1, 's51', 0xfff, T0, 6, sleep=opt.asleep)
        def loads(dst, n, sbase, add):
            e.I(f's_add_u32 s48, {sbase}, {add}')
            for q in range(n):
                if q and q % 4 == 0: e.I('s_add_u32 s48, s48, 4096')
                e.I(f'buffer_load_dwordx4 {dst(q)}, v2, {WS}, s48 offen offset:{(q%4)*1024} sc1')
        e.I(f's_add_u32 s48, s40, {VX}')
        for q in range(12):
            e.I(f's_add_u32 m0, s59, {q*1024}')
            e.I(f'buffer_load_dwordx4 v2, {WS}, s48 offen sc1 lds')
            e.I('s_add_u32 s48, s48, 1024')
        loads(lambda q: ar(KF + 4*q), 12, 's40', KX)
        loads(lambda q: ar(QF + 4*q), 12, 's40', QX)
        e.I('s_add_u32 s51, s30, 2')
        e.I('s_lshl_b32 s51, s51, 11')
        e.I('s_add_u32 s51, s51, s60')
        e.I('s_waitcnt vmcnt(24)')
        for T in range(12):
            for rt in range(2):
                e.I(f'ds_read_b64_tr_b16 {ar(VF+6*T+2+2*rt,2)}, v4 offset:{rt*6144 + (T>>1)*1024 + (T&1)*8}')
        e.I('s_waitcnt vmcnt(0)')
        for p in range(6):
            e.I(f'{MFMA} {vr(SA+4)}, {ar(KF+4*p)}, {ar(QF+4*p)}, {vr(C1) if p == 0 else vr(SA+4)}')
            e.I(f'{MFMA} {vr(SB+4)}, {ar(KF+4*p)}, {ar(QF+24+4*p)}, {0 if p == 0 else vr(SB+4)}')
            e.I(f'{MFMA} {vr(SB+8)}, {ar(KF+24+4*p)}, {ar(QF+24+4*p)}, {vr(C1) if p == 0 else vr(SB+8)}')
        wait_flags(e, ONE + 1, 's51', 0xfff, T0, 6, sleep=opt.asleep)
        TS(e, 1)
        loads(lambda q: vr(XPF + 4*q), 6, 's41', XP)
        e.I('s_lshr_b32 s42, s41, 1')
        e.I(f's_add_u32 s48, s42, {VM}')
        for q in range(3):
            e.I(f's_add_u32 m0, s59, {12288 + q*1024}')
            e.I(f'buffer_load_dwordx4 v2, {WS}, s48 offen sc1 lds')
            e.I('s_add_u32 s48, s48, 1024')
        for p in range(6):
            e.I(f's_waitcnt vmcnt({8-p})')
            e.I(f'{MFMA} {vr(SA)}, {vr(XPF+4*p)}, {ar(QF+4*p)}, {vr(C0) if p == 0 else vr(SA)}')
            e.I(f'{MFMA} {vr(SB)}, {vr(XPF+4*p)}, {ar(QF+24+4*p)}, {vr(C0) if p == 0 else vr(SB)}')
        TS(e, 2)
        e.I('s_waitcnt vmcnt(0)')
        for T in range(12):
            kk = T >> 1
            e.I(f'ds_read_b64_tr_b16 {ar(VF+6*T,2)}, v5 offset:{12288 + (kk % 3)*1024 + (kk // 3)*128 + (T&1)*8}')
        for x_ in softmax_list(SA, 8, PA_, T0): e.I(x_)
        e.I(f's_add_u32 s48, s40, {OX}')
        e.I('s_add_u32 s49, s48, 4096')
        e.I('s_add_u32 s50, s48, 8192')
        e.I('s_waitcnt lgkmcnt(0)')
        def fin(qt, p):
            d = DO + 8 * (p + (2 if qt else 0) * 3) % 64; o = OB + 4 * (qt*6 + p); q = qt*6 + p
            return [f'v_cvt_pk_bf16_f32 v{o+k}, v{d+2*k}, v{d+2*k+1}' for k in range(4)] + \
                   [f'buffer_store_dwordx4 {vr(o)}, v2, {WS}, {("s48", "s49", "s50")[q//4]} offen offset:{(q%4)*1024}{fl}']
        smb = softmax_list(SB, 12, PB_, T0)
        for T in range(12):
            e.I(f'{MFMA} {vr(DO+4*T)}, {ar(VF+6*T)}, {vr(PA_)}, 0')
            for _ in range(3): e.I(smb.pop(0))
        outs = [x_ for p in range(6) for x_ in fin(0, p)]
        while smb:
            e.I(smb.pop(0)); e.I(smb.pop(0)) if smb else None
            if outs: e.I(outs.pop(0))
        for x_ in outs: e.I(x_)
        for p in range(6):
            d = DO + 8 * (p + 6) % 64
            for t in range(2): e.I(f'{MFMA16} {vr(d+4*t)}, {ar(VF+6*(2*p+t),2)}, {vr(PB_,2)}, 0')
            for t in range(2): e.I(f'{MFMA} {vr(d+4*t)}, {ar(VF+6*(2*p+t)+2)}, {vr(PB_+2)}, {vr(d+4*t)}')
            if p > 1:
                for x_ in fin(1, p - 2): e.I(x_)
        for p in (4, 5):
            for x_ in fin(1, p): e.I(x_)
        e.I('s_lshl_b32 s50, s30, 3')
        e.I('s_add_u32 s50, s50, s20')
        e.I('s_lshl_b32 s50, s50, 6')
        e.I(f's_add_u32 s50, s50, {FLGOX}')
        e.I('s_waitcnt vmcnt(0)')
        set_flag(e, ONE + 2, 's50', ONE, fl)
        TS(e, 3)
        TSflush(e, 's30', 230, 231)
        e.I('s_add_u32 s30, s30, 2')
        e.I('s_cmp_lt_u32 s30, 64')
        e.I(f's_cbranch_scc1 {top}')
        e.I('s_endpgm')

F_LX, F_LH = 0, 98304
def role_ffn(e):
    ACC2 = 0
    ACC1 = 16
    BF = 48
    HP = 80
    WR = 96
    NW = 40
    e.I('s_sub_u32 s26, s21, 29')
    e.I('s_mul_i32 s25, s20, 3')
    e.I('s_add_u32 s26, s26, s25')
    e.I('s_mov_b32 s24, s26')
    srd(e, 8, 56, 640 * 3072); srd(e, 12, 58, 1536 * 1280)
    if opt.xlate & 4: wait_first(e, 16)
    transpose_w(e, 's26')
    e.I('s_waitcnt vmcnt(0)')
    e.I('s_barrier')
    count_up(e, 3, D_TR)
    wait_count(e, 3, D_TR, 24, 16)
    if opt.urg: wait_count(e, 3, D_W, 80, 16)
    wait_reg(e, 16, 32)
    e.L('L_ffn_task')
    e.I('s_lshl_b32 s38, s24, 2')
    e.I('s_add_u32 s38, s38, s22')
    e.I('s_mul_i32 s39, s38, 20480')
    e.I(f's_add_u32 s39, s39, {XN}')
    e.I('s_mul_i32 s40, s22, 20480')
    for m in range(20):
        e.I(f's_add_u32 m0, s40, {m*1024}')
        e.I(f'buffer_load_dwordx4 v2, {WS}, s39 offen lds')
        e.I('s_add_u32 s39, s39, 1024')
    for k in range(160): e.I(f'v_accvgpr_write_b32 a{k}, 0')
    e.I('s_mul_i32 s41, s22, 40960')
    e.I(f's_add_u32 s41, s41, {W1F}')
    e.I(f's_mul_i32 s42, s22, {10*48*1024}')
    e.I(f's_add_u32 s42, s42, {W2F}')
    e.I('v_add_u32 v3, 20480, v2')
    for u in range(10):
        e.I(f's_mov_b32 s54, {u*48*1024}')
        e.I(f'v_add_u32 v{4+u}, s54, v2')
    e.I(f'v_add_u32 v14, {F_LH}, v2')
    e.I('s_lshl_b32 s38, s22, 12')
    e.I('v_add_u32 v15, s38, v14')
    def wload(idx, adv):
        dst = vr(WR + (idx % NW) * 4)
        if idx < 40:
            kk, u = idx // 2, idx % 2
            e.I(f's_add_u32 s45, {adv[0]}, {(kk//4)*4096}')
            e.I(f'buffer_load_dwordx4 {dst}, v{2+u}, {WS}, s45 offen offset:{(kk%4)*1024}{" nt" if opt.ffnnt else ""}')
        else:
            pp, u = (idx - 40) // 10, (idx - 40) % 10
            e.I(f'buffer_load_dwordx4 {dst}, v{4+u}, {WS}, {adv[1]} offen offset:{pp*1024}{" nt" if opt.ffnnt else ""}')
    for idx in range(NW - 2): wload(idx, ('s41', 's42'))
    e.I(f's_waitcnt vmcnt({NW-2})')
    e.I('s_barrier')
    top = e.lab('Lft')
    TS(e, 0)
    e.I('s_mov_b32 s30, 0')
    e.L(top)
    e.I('s_cmp_lt_u32 s30, 11')
    e.I('s_cselect_b32 s46, 163840, 0')
    e.I('s_cselect_b32 s47, 4096, 0')
    e.I('s_add_u32 s43, s41, s46')
    e.I('s_add_u32 s44, s42, s47')
    D = NW - 2
    def pref(idx):
        j = idx + D
        if j < 80: wload(j, ('s41', 's42'))
        else: wload(j - 80, ('s43', 's44'))
    def rdx(kk):
        for rt in range(4):
            e.I(f'ds_read_b128 {vr(BF + ((kk%2)*4+rt)*4)}, v{2 if rt < 3 else 3} offset:{(rt if rt < 3 else 2)*20480 + kk*1024}')
    rdx(0)
    for kk in range(20):
        if kk + 1 < 20: rdx(kk + 1)
        e.I(f's_waitcnt vmcnt({D-2}) lgkmcnt({4 if kk+1 < 20 else 0})')
        for u in range(2):
            idx = 2 * kk + u
            for rt in range(4):
                d = vr(ACC1 + (u*4+rt)*4)
                e.I(f'{MFMA} {d}, {vr(WR+(idx%NW)*4)}, {vr(BF+((kk%2)*4+rt)*4)}, {0 if kk == 0 else d}')
        pref(2 * kk); pref(2 * kk + 1)
    for rt in range(4):
        for u in range(2):
            d = ACC1 + (u*4+rt)*4
            for k in range(4): e.I(f'v_max_f32 v{d+k}, 0, v{d+k}')
            e.I(f'v_cvt_pk_bf16_f32 v{HP+rt*4+2*u}, v{d}, v{d+1}')
            e.I(f'v_cvt_pk_bf16_f32 v{HP+rt*4+2*u+1}, v{d+2}, v{d+3}')
        e.I(f'ds_write_b128 v15, {vr(HP+rt*4)} offset:{rt*1024}')
    e.I('s_waitcnt lgkmcnt(0)')
    e.I('s_barrier')
    def rdh(pp):
        for rt in range(4):
            e.I(f'ds_read_b128 {vr(BF + ((pp%2)*4+rt)*4)}, v14 offset:{pp*4096 + rt*1024}')
    rdh(0)
    for pp in range(4):
        if pp + 1 < 4: rdh(pp + 1)
        for u in range(10):
            idx = 40 + pp * 10 + u
            w = f's_waitcnt vmcnt({D-1})'
            if u == 0: w += f' lgkmcnt({4 if pp+1 < 4 else 0})'
            e.I(w)
            for rt in range(4):
                d = ar(ACC2 + (u*4+rt)*4)
                e.I(f'{MFMA} {d}, {vr(WR+(idx%NW)*4)}, {vr(BF+((pp%2)*4+rt)*4)}, {d}')
            pref(idx)
    e.I('v_xor_b32 v14, 16384, v14')
    e.I('v_xor_b32 v15, 16384, v15')
    e.I('s_mov_b32 s41, s43')
    e.I('s_mov_b32 s42, s44')
    e.I('s_add_u32 s30, s30, 1')
    e.I('s_cmp_lt_u32 s30, 12')
    e.I(f's_cbranch_scc1 {top}')
    e.I('s_waitcnt vmcnt(0)')
    TS(e, 1)
    e.I('v_lshlrev_b32 v3, 3, v1')
    e.I(f's_mul_i32 s38, s24, {4*40*512}')
    e.I(f's_mul_i32 s39, s22, {10*512}')
    e.I('s_add_u32 s38, s38, s39')
    e.I(f's_add_u32 s38, s38, {G_}')
    e.I(f's_mov_b32 s52, {f2u(-1.4426950408889634):#x}')
    for rt in range(4):
        e.I(f's_add_u32 s39, s38, {rt*40*512}')
        e.I('s_add_u32 s40, s39, 4096')
        for u in range(10):
            t = 16 + ((rt*10+u) % 4) * 16
            a0 = ACC2 + (u*4+rt)*4
            for k in range(4): e.I(f'v_accvgpr_read_b32 v{t+k}, a{a0+k}')
            e.I(f'v_cvt_pk_bf16_f32 v{t+4}, v{t}, v{t+1}')
            e.I(f'v_cvt_pk_bf16_f32 v{t+5}, v{t+2}, v{t+3}')
            e.I(f'v_lshlrev_b32 v{t}, 16, v{t+4}')
            e.I(f'v_and_b32 v{t+1}, 0xffff0000, v{t+4}')
            e.I(f'v_lshlrev_b32 v{t+2}, 16, v{t+5}')
            e.I(f'v_and_b32 v{t+3}, 0xffff0000, v{t+5}')
            for k in range(4): e.I(f'v_mul_f32 v{t+4+k}, s52, v{t+k}')
            for k in range(4): e.I(f'v_exp_f32 v{t+4+k}, v{t+4+k}')
            for k in range(4): e.I(f'v_add_f32 v{t+4+k}, 1.0, v{t+4+k}')
            for k in range(4): e.I(f'v_rcp_f32 v{t+4+k}, v{t+4+k}')
            for k in range(4): e.I(f'v_mul_f32 v{t+k}, v{t+k}, v{t+4+k}')
            e.I(f'v_cvt_pk_bf16_f32 v{t+8}, v{t}, v{t+1}')
            e.I(f'v_cvt_pk_bf16_f32 v{t+9}, v{t+2}, v{t+3}')
            e.I(f'buffer_store_dwordx2 {vr(t+8,2)}, v3, {WS}, {"s39" if u < 8 else "s40"} offen offset:{(u%8)*512} sc1')
    e.I('s_waitcnt vmcnt(0)')
    TS(e, 2)
    if opt.ts: e.I('s_lshr_b32 s50, s24, 3'); e.I('s_add_u32 s50, s50, 64')
    TSflush(e, 's50')
    e.I('s_barrier')
    e.I('s_cmp_lg_u32 s22, 0')
    e.I('s_cbranch_scc1 L_ffn_nf')
    e.I('v_mov_b32 v4, 1')
    e.I('s_lshl_b32 s38, s24, 2')
    e.I('v_mov_b32 v5, s38')
    e.I(f's_mov_b32 s39, {FLGG}')
    set_flag(e, 5, 's39', 4, ' sc1')
    e.I('s_waitcnt vmcnt(0)')
    e.L('L_ffn_nf')
    e.I('s_cmp_ge_u32 s26, 8')
    e.I(f's_cbranch_scc1 {"L_end" if opt.nocmb else "L_cmb"}')
    e.I('s_add_u32 s24, s24, 24')
    e.I('s_cmp_lt_u32 s24, 32')
    e.I('s_cbranch_scc1 L_ffn_task')
    e.I('s_endpgm')

def role_cmb(e):
    PXR = 16
    GR = 144
    XR_ = 152
    T0 = 160
    srd(e, 8, 68, 2048 * 1280)
    srd(e, 12, 70, 2048 * 1280)
    e.I('s_sub_u32 s24, s26, 8')
    e.I('s_lshl_b32 s24, s24, 2')
    e.I('s_add_u32 s30, s24, s22')
    e.I('v_lshlrev_b32 v3, 2, v1')
    e.I('v_lshlrev_b32 v4, 3, v1')
    e.I('v_mov_b32 v6, 0')
    lane_ig(e, 14, 15)
    e.I('v_mul_u32_u24 v5, 1280, v14')
    e.I('v_lshl_add_u32 v5, v15, 3, v5')
    e.I('s_mov_b32 s49, 0')
    e.I('s_mov_b32 s52, 0x3f80'); e.I('s_mov_b32 s53, 0x3f800000')
    e.I('v_lshrrev_b32 v7, 4, v1')
    e.I('v_mul_u32_u24 v7, 40960, v7')
    e.I('v_lshl_add_u32 v7, v14, 7, v7')
    e.I(f'v_add_u32 v8, {4*40960}, v7')
    if opt.t63:
        e.I('s_add_u32 s38, s30, 1216')
        e.I('s_mul_i32 s39, s38, 3277')
        e.I('s_lshr_b32 s39, s39, 16')
        e.I('s_mul_i32 s40, s39, 20')
        e.I('s_sub_u32 s40, s38, s40')
        e.I(f's_mul_i32 s43, s39, {SEG_PX}')
        e.I('s_lshl_b32 s40, s40, 11')
        e.I('s_add_u32 s43, s43, s40')
        e.I(f's_add_u32 s43, s43, {PX}')
        for k in range(2): e.I(f'buffer_load_dword v{T0}, v{7+k}, {WS}, s43 offen sc1')
    top = e.lab('Lct')
    e.L(top)
    TS(e, 0)
    e.I('s_mul_i32 s38, s30, 3277')
    e.I('s_lshr_b32 s38, s38, 16')
    e.I('s_mul_i32 s39, s38, 20')
    e.I('s_sub_u32 s39, s30, s39')
    e.I('s_cmp_ge_u32 s39, 10')
    e.I('s_cselect_b32 s40, 1, 0')
    e.I('s_mul_i32 s41, s40, 10')
    e.I('s_sub_u32 s41, s39, s41')
    gok = e.lab('Lcg')
    e.I('s_cmp_lg_u32 s49, 0')
    e.I(f's_cbranch_scc1 {gok}')
    e.I(f's_mov_b32 s42, {FLGG}')
    e.I('s_mov_b32 exec_hi, 0')
    e.I(f'buffer_load_dword v{T0}, v3, {WS}, s42 offen sc1')
    e.I('s_waitcnt vmcnt(0)')
    e.I(f'v_cmp_eq_u32 vcc, 0, v{T0}')
    e.I('s_mov_b64 exec, -1')
    e.I('s_cmp_eq_u32 vcc_lo, 0')
    e.I('s_cselect_b32 s49, 1, 0')
    e.I(f's_cbranch_scc1 {gok}')
    e.I('s_lshr_b32 s42, s38, 1')
    e.I('s_lshl_b32 s42, s42, 2')
    e.I(f's_add_u32 s42, s42, {FLGG}')
    wait_flags(e, 6, 's42', 1, T0, 7, sleep=32)
    e.L(gok)
    e.I(f's_mul_i32 s43, s38, {SEG_PX}')
    e.I('s_mul_i32 s44, s40, 20480')
    e.I('s_add_u32 s43, s43, s44')
    e.I('s_lshl_b32 s44, s41, 11')
    e.I('s_add_u32 s43, s43, s44')
    e.I(f's_add_u32 s43, s43, {PX}')
    e.I('s_lshl_b32 s45, s38, 1')
    e.I('s_add_u32 s45, s45, s40')
    e.I('s_mul_i32 s46, s45, 20480')
    e.I('s_lshr_b32 s47, s41, 1')
    e.I('s_lshl_b32 s47, s47, 2')
    e.I('s_and_b32 s48, s41, 1')
    e.I('s_add_u32 s44, s47, s48')
    e.I('s_lshl_b32 s47, s44, 10')
    e.I('s_add_u32 s47, s47, s46')
    e.I(f's_add_u32 s47, s47, {G_}')
    e.I('s_lshl_b32 s48, s44, 6')
    e.I('s_add_u32 s48, s48, s46')
    TO = (0, 4, 1, 5)
    for t in range(4):
        e.I(f'buffer_load_dwordx2 {vr(GR+2*t,2)}, v4, {WS}, s47 offen offset:{TO[t]*512} sc1')
        e.I(f'buffer_load_dwordx2 {vr(XR_+2*t,2)}, v5, s[8:11], s48 offen offset:{TO[t]*32}')
    c1, c2 = e.lab('Lc1'), e.lab('Lc2')
    e.I('s_mul_i32 s50, s38, 10')
    e.I('s_and_b32 s44, s41, 14')
    e.I('s_add_u32 s50, s50, s44')
    e.I('s_lshl_b32 s50, s50, 7')
    e.I(f's_add_u32 s50, s50, {FLGPX}')
    e.I(f's_cmp_ge_u32 s38, {opt.cwarm}')
    e.I(f's_cbranch_scc1 {c1}')
    e.I(f's_add_u32 s42, s38, {opt.clag}')
    e.I('s_lshl_b32 s42, s42, 3')
    e.I('s_add_u32 s42, s42, s20')
    e.I('s_lshl_b32 s42, s42, 6')
    e.I(f's_add_u32 s42, s42, {FLGOX}')
    wait_flags(e, 6, 's42', 1, T0, 9, sleep=opt.lsleep)
    wait_flags(e, 3, 's50', -1, T0, 8, sleep=opt.csleep)
    e.I(f's_branch {c2}')
    e.L(c1)
    e.I('s_and_b32 s42, s38, 3')
    e.I('s_lshl_b32 s42, s42, 3')
    e.I('s_add_u32 s42, s42, s20')
    e.I('s_lshl_b32 s42, s42, 7')
    e.I('s_lshl_b32 s44, s44, 1')
    e.I('s_add_u32 s42, s42, s44')
    e.I(f's_add_u32 s42, s42, {HINT}')
    e.I('s_mul_i32 s51, s20, 5')
    e.I('s_lshr_b32 s44, s41, 1')
    e.I('s_add_u32 s51, s51, s44')
    e.I('s_lshl_b32 s51, s51, 7')
    e.I(f's_add_u32 s51, s51, {HINT2}')
    e.I('s_cmp_eq_u32 s38, 63')
    e.I('s_cselect_b32 s42, s51, s42')
    wait_flags(e, 6, 's42', 1, T0, 9, sleep=2)
    e.I('s_cmp_eq_u32 s38, 63')
    e.I(f's_cbranch_scc1 {c2}')
    wait_flags(e, 3, 's50', -1, T0, 8, sleep=opt.c2sleep)
    e.L(c2)
    TS(e, 1)
    RAW = PXR + 32
    def ld(x):
        for t in range(2):
            if not opt.cdiag & 4: e.I(f'buffer_load_dwordx4 {vr(RAW+(x*2+t)*4)}, v2, {WS}, s43 offen offset:{t*1024} sc1')
        if x < 7: e.I('s_add_u32 s43, s43, 40960')
    def body(depth):
        for x in range(min(depth, 8)): ld(x)
        for x in range(8):
            left = min(depth - 1, 7 - x)
            e.I(f's_waitcnt vmcnt({left*2})')
            if x + depth < 8: ld(x + depth)
            for k in range(16): e.I(f'v_dot2c_f32_bf16 v{PXR+k}, {("s52", "s53")[k&1]}, v{RAW+x*8+(k>>1)}')
        e.I('s_nop 2')
    for k in range(16): e.I(f'v_mov_b32 v{PXR+k}, 0')
    fast, join = e.lab('Lcf'), e.lab('Lcj')
    e.I('s_cmp_ge_u32 s38, 61')
    e.I(f's_cbranch_scc1 {fast}')
    body(opt.cdepth)
    e.I(f's_branch {join}')
    e.L(fast)
    f2, pl_, pk_ = e.lab('Lcg'), e.lab('Lcp'), e.lab('Lck')
    e.I('s_cmp_lg_u32 s38, 63')
    e.I(f's_cbranch_scc1 {f2}')
    e.I(f's_mov_b32 s31, {TMO}')
    e.I('s_mov_b32 s51, s43')
    e.L(pl_)
    e.I('s_mov_b32 s43, s51')
    for x in range(8): ld(x)
    e.I('s_waitcnt vmcnt(0)')
    check_sent(e, range(RAW, RAW + 64), T0, T0 + 1)
    e.I(f's_cbranch_vccz {pk_}')
    e.I('s_sub_u32 s31, s31, 1')
    e.I(f's_cbranch_scc0 {pl_}')
    e.I('s_mov_b32 s31, 8')
    e.I('s_branch L_fail')
    e.L(pk_)
    for x in range(8):
        for k in range(16): e.I(f'v_dot2c_f32_bf16 v{PXR+k}, {("s52", "s53")[k&1]}, v{RAW+x*8+(k>>1)}')
    e.I('s_nop 2')
    e.I(f's_branch {join}')
    e.L(f2)
    body(8)
    e.L(join)
    TS(e, 3)
    for t in range(4):
        b = PXR + 4 * t; u = T0 + 8 * (t % 2)
        e.I(f'v_cvt_pk_bf16_f32 v{u}, v{b}, v{b+1}')
        e.I(f'v_cvt_pk_bf16_f32 v{u+1}, v{b+2}, v{b+3}')
        for h_ in range(2):
            e.I(f'v_lshlrev_b32 v{b+2*h_}, 16, v{u+h_}')
            e.I(f'v_and_b32 v{b+2*h_+1}, 0xffff0000, v{u+h_}')
            e.I(f'v_lshlrev_b32 v{u+2+2*h_}, 16, v{GR+2*t+h_}')
            e.I(f'v_and_b32 v{u+3+2*h_}, 0xffff0000, v{GR+2*t+h_}')
        for k in range(4): e.I(f'v_mul_f32 v{b+k}, v{b+k}, v{u+2+k}')
        e.I(f'v_cvt_pk_bf16_f32 v{u}, v{b}, v{b+1}')
        e.I(f'v_cvt_pk_bf16_f32 v{u+1}, v{b+2}, v{b+3}')
        for h_ in range(2):
            e.I(f'v_lshlrev_b32 v{b+2*h_}, 16, v{u+h_}')
            e.I(f'v_and_b32 v{b+2*h_+1}, 0xffff0000, v{u+h_}')
            e.I(f'v_lshlrev_b32 v{u+2+2*h_}, 16, v{XR_+2*t+h_}')
            e.I(f'v_and_b32 v{u+3+2*h_}, 0xffff0000, v{XR_+2*t+h_}')
        for k in range(4): e.I(f'v_add_f32 v{b+k}, v{b+k}, v{u+2+k}')
        e.I(f'v_cvt_pk_bf16_f32 v{u+6}, v{b}, v{b+1}')
        e.I(f'v_cvt_pk_bf16_f32 v{u+7}, v{b+2}, v{b+3}')
        if not opt.cdiag & 8: e.I(f'buffer_store_dwordx2 {vr(u+6,2)}, v5, s[12:15], s48 offen offset:{TO[t]*32}')
    TS(e, 2)
    if opt.ts: e.I('s_lshr_b32 s50, s30, 6')
    TSflush(e, 's50')
    e.I('s_add_u32 s30, s30, 64')
    e.I('s_cmp_lt_u32 s30, 1280')
    e.I(f's_cbranch_scc1 {top}')
    e.I(f's_cmp_lg_u32 s30, {1279 + 64}')
    e.I('s_cbranch_scc1 L_end')
    e.I('s_mov_b32 exec_hi, 0xffff')
    e.I(f'global_store_dword v3, v6, s[74:75] offset:{D_TR} sc1')
    e.I('s_endpgm')

def gen_mainkernel(e):
    kernel_head(e, MAIN)
    e.I('s_cmp_ge_u32 s2, 256')
    e.I('s_cbranch_scc1 L_end')
    e.I('s_load_dwordx2 s[32:33], s[0:1], 96')
    e.I('s_load_dwordx4 s[60:63], s[0:1], 16')
    e.I('s_load_dwordx4 s[64:67], s[0:1], 32')
    e.I('s_load_dwordx4 s[52:55], s[0:1], 0')
    e.I('s_load_dwordx4 s[56:59], s[0:1], 64')
    e.I('s_load_dwordx4 s[72:75], s[0:1], 80')
    TS(e, 0)
    e.I('s_getreg_b32 s24, hwreg(HW_REG_XCC_ID)')
    e.I('v_and_b32 v1, 63, v0')
    e.I('v_lshlrev_b32 v2, 4, v1')
    e.I('v_lshrrev_b32 v3, 6, v0')
    e.I('v_readfirstlane_b32 s22, v3')
    if opt.cwarm2:
        e.I('s_getpc_b64 s[34:35]')
        e.L('L_pc')
        e.I('s_lshr_b32 s36, s2, 3')
        e.I('s_lshl_b32 s36, s36, 2')
        e.I('v_add_u32 v3, s36, v3')
        e.I(f'v_mul_u32_u24 v3, {opt.cwarm2}, v3')
        e.I(f'v_min_u32 v4, {opt.cwarm2 - 1}, v1')
        e.I('v_add_u32 v3, v3, v4')
        e.I('v_lshlrev_b32 v3, 7, v3')
        e.I('v_min_u32 v3, L_last-L_pc, v3')
        e.I('v_mov_b32 v5, s35')
        e.I('v_add_co_u32 v4, vcc, s34, v3')
        e.I('v_addc_co_u32 v5, vcc, 0, v5, vcc')
        e.I('global_load_dword v255, v[4:5], off')
    if opt.force_slow:
        e.I('s_lshr_b32 s20, s2, 5'); e.I('s_and_b32 s21, s2, 31')
    else:
        e.I('s_and_b32 s20, s2, 7'); e.I('s_lshr_b32 s21, s2, 3')
    e.I('s_and_b32 s24, s24, 15')
    e.I('s_lshl_b32 s96, s20, 4')
    e.I('s_and_b32 s25, s24, 12')
    e.I('s_add_u32 s96, s96, s25')
    e.I('s_and_b32 s25, s24, 3')
    e.I('s_lshl_b32 s25, s25, 3')
    e.I('s_lshl_b32 s97, 1, s25')
    e.I('s_waitcnt lgkmcnt(0)')
    e.I('s_mov_b64 s[70:71], s[72:73]')
    e.I('s_mov_b64 s[68:69], s[52:53]')
    srd(e, 4, 32, WS_BYTES)
    TS(e, 1)
    TSflush(e, '70')
    e.I('s_cmp_ge_u32 s21, 22'); e.I('s_cbranch_scc1 L_help')
    e.I('s_sub_u32 s24, s21, 12')
    if opt.urg: e.I('s_cmp_lt_u32 s24, 2')
    else: e.I('s_cmp_eq_u32 s24, 1')
    e.I('s_cbranch_scc1 L_urg')
    register(e, 3, 4)
    e.I('s_cmp_ge_u32 s21, 12'); e.I('s_cbranch_scc1 L_wo')
    role_qkv(e)
    e.L('L_urg')
    srd(e, 8, 52, 2048 * 1280); srd(e, 12, 54, 8 * 1280)
    e.I('s_cmp_lg_u32 s24, 0')
    e.I('s_cbranch_scc1 L_um')
    ln_addr(e)
    e.I('s_mul_i32 s25, s20, 20480')
    ln_load(e, 16, 's25')
    e.I('s_waitcnt vmcnt(0)')
    ln_compute(e, 16, 's25')
    e.I('s_branch L_ur')
    e.L('L_um')
    mem0_copy(e, None, 0)
    e.I('s_mul_i32 s41, s20, 10240')
    e.I(f's_add_u32 s41, s41, {MEM}')
    e.I('s_waitcnt vmcnt(0)')
    mem0_copy(e, 's41', 1)
    e.L('L_ur')
    e.I('s_waitcnt vmcnt(0)')
    e.I('s_barrier')
    register(e, 3, 4)
    e.L('L_wo'); role_sw(e)
    e.L('L_help')
    srd(e, 8, 52, 2048 * 1280)
    e.I('s_mul_i32 s24, s20, 10')
    e.I('s_add_u32 s24, s24, s21')
    e.I('s_sub_u32 s24, s24, 22')
    if opt.urg: init_fill(e, 's24', 80)
    ln_addr(e)
    e.I('s_mul_i32 s25, s24, 20480')
    if opt.urg: e.I(f's_add_u32 s25, s25, {8*20480}')
    e.I(f's_add_u32 s26, s25, {80*20480}')
    ln_load(e, 16, 's25')
    ln_load(e, 36, 's26')
    if opt.urg:
        e.I('s_waitcnt vmcnt(10)')
        e.I('s_barrier')
        register(e, 3, 4)
    else: init_fill(e, 's24', 80)
    e.I('s_waitcnt vmcnt(0)')
    ln_compute(e, 16, 's25')
    e.I(f's_cmp_ge_u32 s24, {40 if opt.urg else 48}')
    e.I('s_cbranch_scc1 L_hl')
    ln_compute(e, 36, 's26')
    e.L('L_hl')
    e.I('s_waitcnt vmcnt(0)')
    e.I('s_barrier')
    if opt.urg: count_up(e, 3, D_W)
    else: register(e, 3, 4)
    TS(e, 0)
    TSflush(e, '69')
    if opt.touch2:
        wait_reg(e, 16, opt.rsleep)
        e.I('s_sub_u32 s24, s21, 22')
        e.I('s_lshl_b32 s25, s20, 2')
        e.I('s_add_u32 s25, s25, s22')
        touch_jobs(e, [(XN + k * 40960, 10240, 40) for k in range(3)] + [(XN + k * 40960 + 5120, 10240, 40) for k in range(3)], 's24', 10, 's22', 18)
        jobs = []
        for sl in range(4): jobs += [(MEM + sl * MEM_SLOT, 2560, 20), (XR + sl * XR_SLOT, 6144, 48), (VR + sl * VR_SLOT, 3072, 24)]
        touch_jobs(e, jobs[::-1][:4] + jobs[:8], 's24', 10, 's25', 24, 6)
    e.I('s_cmp_ge_u32 s21, 29'); e.I('s_cbranch_scc1 L_ffn')
    e.I('s_cmp_lt_u32 s21, 27'); e.I('s_cbranch_scc1 L_xw')
    role_att(e)
    e.L('L_xw'); role_xw(e)
    e.L('L_ffn'); role_ffn(e)
    e.L('L_cmb'); role_cmb(e)
    e.L('L_fail')
    e.I('s_mov_b64 exec, 1')
    e.I('s_lshl_b32 s31, s31, 2')
    e.I('v_mov_b32 v3, s31')
    e.I('v_mov_b32 v4, 1')
    e.I('global_atomic_add v3, v4, s[74:75]')
    e.L('L_end')
    e.L('L_last')
    e.I('s_endpgm')

def build(path):
    for k in range(3): NT[k] = ' nt' if opt.pnt >> k & 1 else ''
    hdr = open('cdna_kernels/' + NAME + '.s.ref').read().split('\n')
    e = Em()
    for l in hdr:
        if l.startswith(';') and '@launch' not in l and 'Override launch' not in l and 'grid=ceil' not in l: e.raw(l)
    e.raw(f'; @launch grid=(256,1,1) block=(256,1,1) lds=163840')
    e.raw('.amdgcn_target "amdgcn-amd-amdhsa--gfx950"')
    gen_mainkernel(e)
    kernel_desc(e, MAIN, 512, 100, 256)
    lines, added = hazard.pad(e.lines)
    open(path, 'w').write('\n'.join(lines) + '\n')
    n = sum(1 for l in lines if l.startswith('    ') and not l.strip().startswith(';'))
    print(f'wrote {path}: {n} instructions, {added} nops added')

if __name__ == '__main__':
    out = sys.argv[1] if len(sys.argv) > 1 else 'cdna_kernels/' + NAME + '.s'
    if 'slow' in sys.argv[2:]: opt.force_slow = True
    if 'ts' in sys.argv[2:]: opt.ts = True
    for k in ('nobg', 'ackpoll', 'noxw'):
        if k in sys.argv[2:]: setattr(opt, k, True)
    for a_ in sys.argv[2:]:
        if '=' in a_: k_, v_ = a_.split('='); setattr(opt, k_, int(v_))
    build(out)
```

```python
import sys, struct
from asmlib import *
from layout import *
import hazard
from gen_pre import *

NAME = 'recurrent_scan__memory_aug_recurrent_mem_tr__dense_activation_relu__prompt'
MAIN = NAME + '_kernel'
PRE = 'prep_kernel'
LDS_TOTAL = 131072
LDS_ROLE = 131072
TMO = 1 << 18
def f2u(x): return struct.unpack('<I', struct.pack('<f', x))[0]
SC_L2E = f2u(192 ** -0.5 * 1.4426950408889634)
NEG_BIG = f2u(-1e30)
MFMA = 'v_mfma_f32_16x16x32_bf16'
MFMA16 = 'v_mfma_f32_16x16x16_bf16'
SMF = 'v_smfmac_f32_16x16x64_bf16'
WS = 's[4:7]'
WFL = ['', ' nt', ' sc1', ' sc0 sc1', ' sc1 nt', ' sc0 sc1 nt']

class Opt:
    force_slow = False
    ts = False
    nobg = False
    ackpoll = False
    noxw = False
    pdelay = 0
    vdelay = 0
    kbar = 0
    kpre = 12
    kin = 12
    fresh = 0
    pdiag = 0
    pflip = 0
    touch = 1
    nofc = 0
    nopx = 0
    nocmb = 0
    cdepth = 1
    ffnnt = 0
    pr = 1
    pfar = 0
    vpre = 2
    vmpos = 2
    smpre = 1
    smgap = 2
    ldgap = 4
    kp = 0
    kcs = 0
    kce = 12
    xlate = 5
    csleep = 8
    cwarm = 61
    c2sleep = 4
    clag = 2
    lsleep = 8
    xsleep = 2
    asleep = 2
    cdiag = 0
    dstamp = 0
    hwv = 7
    t63 = 1
    esleep = 1
    tpos = 0
    pmf = 7
    pmf2 = 5
    urg = 0
    rsleep = 16
    cwarm2 = 0
    tord = 0
    pfs = 0
    swlate = 1
    fpos = 11
    heads = 1
    hdelay = 0
    wnb = 3
    wrows = 320
    touch2 = 1
    pnt = 1
    wnt = 1
    wthr = 64
    xpf = 10
    xdma0 = 10
    xdmas = 1
    pbf = 1
    rpos = 2
    mbar = 1
    pspin = 0
    nobulk = 0
opt = Opt()

def vr(i, n=4): return f'v[{i}:{i+n-1}]'
def ar(i, n=4): return f'a[{i}:{i+n-1}]'

def maxchain(e, dst, regs, op='u32'):
    regs = list(regs)
    e.I(f'v_max3_{op} v{dst}, v{regs[0]}, v{regs[1]}, v{regs[2]}')
    rest = regs[3:]
    while rest:
        if len(rest) >= 2:
            e.I(f'v_max3_{op} v{dst}, v{dst}, v{rest[0]}, v{rest[1]}'); rest = rest[2:]
        else:
            e.I(f'v_max_{op} v{dst}, v{dst}, v{rest[0]}'); rest = rest[1:]

def check_sent(e, regs, t0, t1):
    regs = list(regs)
    if len(regs) >= 8:
        h = len(regs) // 2
        A, B = regs[:h], regs[h:]
        ea, eb = Em(), Em()
        maxchain(ea, t0, A); maxchain(eb, t1, B)
        for i in range(max(len(ea.lines), len(eb.lines))):
            if i < len(ea.lines): e.lines.append(ea.lines[i])
            if i < len(eb.lines): e.lines.append(eb.lines[i])
        e.I(f'v_max_u32 v{t0}, v{t0}, v{t1}')
    else:
        maxchain(e, t0, regs)
    e.I(f'v_cmp_eq_u32 vcc, -1, v{t0}')

def poll2(e, issue, nl, regsA, regsB, consume, t0, t1, code):
    lp, dA, dB, dd = e.lab('Lp'), e.lab('LdA'), e.lab('LdB'), e.lab('Ldd')
    e.I(f's_mov_b32 s31, {TMO}')
    issue(regsA)
    e.L(lp)
    issue(regsB)
    e.I(f's_waitcnt vmcnt({nl})')
    check_sent(e, range(regsA, regsA + 4 * nl), t0, t1)
    e.I(f's_cbranch_vccz {dA}')
    issue(regsA)
    e.I(f's_waitcnt vmcnt({nl})')
    check_sent(e, range(regsB, regsB + 4 * nl), t0, t1)
    e.I(f's_cbranch_vccz {dB}')
    e.I('s_sub_u32 s31, s31, 1')
    e.I(f's_cbranch_scc0 {lp}')
    e.I(f's_mov_b32 s31, {code}')
    e.I('s_branch L_fail')
    e.L(dB)
    consume(regsB)
    e.I(f's_branch {dd}')
    e.L(dA)
    consume(regsA)
    e.L(dd)

def wait_flags(e, vaddr, sofs, mask, vt, code, sleep=0, dbg=False):
    lp, dn = e.lab('Lf'), e.lab('Lfd')
    e.I(f's_mov_b32 s31, {TMO}')
    if mask > 0xffffffff or mask < 0: e.I(f's_mov_b64 exec, {mask}')
    else:
        e.I(f's_mov_b32 exec_lo, {mask:#x}'); e.I('s_mov_b32 exec_hi, 0')
    e.L(lp)
    if dbg: e.I(f'global_load_dword v{vt}, v{vaddr}, s[74:75] offset:{sofs} sc1')
    else: e.I(f'buffer_load_dword v{vt}, v{vaddr}, {WS}, {sofs} offen sc1')
    e.I('s_waitcnt vmcnt(0)')
    e.I(f'v_cmp_eq_u32 vcc, 0, v{vt}')
    e.I(f's_cbranch_vccz {dn}')
    if sleep: e.I(f's_sleep {sleep}')
    e.I('s_sub_u32 s31, s31, 1')
    e.I(f's_cbranch_scc0 {lp}')
    e.I(f's_mov_b32 s31, {code}')
    e.I('s_branch L_fail')
    e.L(dn)
    e.I('s_mov_b64 exec, -1')

D_TR, D_PAR, D_REG = 64, 96, 128
def register(e, va, vd):
    sk = e.lab('Lrg')
    e.I('s_cmp_lg_u32 s22, 0')
    e.I(f's_cbranch_scc1 {sk}')
    e.I(f'v_mov_b32 v{va}, s96')
    e.I(f'v_mov_b32 v{vd}, s97')
    e.I('s_mov_b64 exec, 1')
    e.I(f'global_atomic_add v{va}, v{vd}, s[74:75] offset:{D_REG} sc1')
    e.I('s_mov_b64 exec, -1')
    e.L(sk)
D_W = 68
def wait_count(e, t, off, n, sleep):
    lp, dn = e.lab('Lwc'), e.lab('Lwe')
    e.I(f's_mov_b32 s31, {TMO}')
    e.I(f'v_mov_b32 v{t+1}, 0')
    e.L(lp)
    e.I(f'global_load_dword v{t}, v{t+1}, s[74:75] offset:{off} sc1')
    e.I('s_waitcnt vmcnt(0)')
    e.I(f'v_cmp_gt_u32 vcc, {n}, v{t}')
    e.I(f's_cbranch_vccz {dn}')
    e.I(f's_sleep {sleep}')
    e.I('s_sub_u32 s31, s31, 1')
    e.I(f's_cbranch_scc0 {lp}')
    e.I('s_mov_b32 s31, 10')
    e.I('s_branch L_fail')
    e.L(dn)
def wait_first(e, t):
    wait_reg(e, t, 32)
    e.I('s_lshl_b32 s38, s20, 8')
    e.I(f's_add_u32 s38, s38, {FLGQ}')
    e.I(f'v_lshlrev_b32 v{t+1}, 6, v1')
    wait_flags(e, t + 1, 's38', 0xf, t, 15, sleep=16)
def count_up(e, t, off):
    sk = e.lab('Lcu')
    e.I('s_cmp_lg_u32 s22, 0')
    e.I(f's_cbranch_scc1 {sk}')
    e.I(f'v_mov_b32 v{t}, 0'); e.I(f'v_mov_b32 v{t+1}, 1')
    e.I('s_mov_b64 exec, 1')
    e.I(f'global_atomic_add v{t}, v{t+1}, s[74:75] offset:{off} sc1')
    e.I('s_mov_b64 exec, -1')
    e.L(sk)
def wait_reg(e, t, sleep=4):
    lp, dn = e.lab('Lwr'), e.lab('Lwd')
    e.I(f's_mov_b32 s31, {TMO}')
    e.I(f'v_lshlrev_b32 v{t+2}, 2, v1')
    e.I('s_mov_b32 exec_hi, 0')
    e.L(lp)
    e.I(f'global_load_dword v{t}, v{t+2}, s[74:75] offset:{D_REG} sc1')
    e.I('s_mov_b32 s23, 0')
    e.I('s_mov_b32 s38, 0')
    e.I('s_waitcnt vmcnt(0)')
    for k in range(4):
        e.I(f'v_cmp_eq_u32 vcc, {0x20 << (8*k):#x}, v{t}')
        e.I('s_or_b32 s38, s38, vcc_lo')
    e.I(f'v_sad_u8 v{t+1}, v{t}, 0, 0')
    e.I('s_bcnt1_i32_b32 s38, s38')
    e.I('s_cmp_eq_u32 s38, 8')
    e.I(f's_cbranch_scc1 {dn}')
    for sh in (1, 2, 4, 8): e.I(f'v_add_u32_dpp v{t+1}, v{t+1}, v{t+1} row_shr:{sh} row_mask:0xf bank_mask:0xf bound_ctrl:0')
    e.I(f'v_readlane_b32 s38, v{t+1}, 15')
    e.I(f'v_readlane_b32 s39, v{t+1}, 31')
    e.I('s_mov_b32 s23, 1')
    e.I('s_add_u32 s38, s38, s39')
    e.I('s_cmp_eq_u32 s38, 256')
    e.I(f's_cbranch_scc1 {dn}')
    e.I(f's_sleep {sleep}')
    e.I('s_sub_u32 s31, s31, 1')
    e.I(f's_cbranch_scc0 {lp}')
    e.I('s_mov_b32 s31, 10')
    e.I('s_branch L_fail')
    e.L(dn)
    e.I('s_mov_b64 exec, -1')

def set_flag(e, vaddr, sofs, vone, fl):
    e.I('s_mov_b64 exec, 1')
    e.I(f'buffer_store_dword v{vone}, v{vaddr}, {WS}, {sofs} offen{fl}')
    e.I('s_mov_b64 exec, -1')

def xg_reduce(e, op, x, t):
    e.I(f'v_mov_b32 v{t}, v{x}')
    e.I(f'v_permlane16_swap_b32 v{x}, v{t}')
    e.I(f'{op} v{x}, v{x}, v{t}')
    e.I(f'v_mov_b32 v{t}, v{x}')
    e.I(f'v_permlane32_swap_b32 v{x}, v{t}')
    e.I(f'{op} v{x}, v{x}, v{t}')

def softmax12(e, S, P, t):
    maxchain(e, t, range(S, S + 12), 'f32')
    xg_reduce(e, 'v_max_f32', t, t + 1)
    e.I(f'v_mul_f32 v{t}, s53, v{t}')
    for i in range(12):
        e.I(f'v_fma_f32 v{S+i}, v{S+i}, s52, v{t}')
    for i in range(12):
        e.I(f'v_exp_f32 v{S+i}, v{S+i}')
    e.I(f'v_add_f32 v{t+2}, v{S}, v{S+1}')
    e.I(f'v_add_f32 v{t+3}, v{S+2}, v{S+3}')
    for i in range(4, 12, 2):
        e.I(f'v_add_f32 v{t+2}, v{t+2}, v{S+i}')
        e.I(f'v_add_f32 v{t+3}, v{t+3}, v{S+i+1}')
    e.I(f'v_add_f32 v{t+2}, v{t+2}, v{t+3}')
    xg_reduce(e, 'v_add_f32', t + 2, t + 3)
    e.I(f'v_rcp_f32 v{t+2}, v{t+2}')
    for i in range(12):
        e.I(f'v_mul_f32 v{S+i}, v{S+i}, v{t+2}')
    for i in range(6):
        e.I(f'v_cvt_pk_bf16_f32 v{P+i}, v{S+2*i}, v{S+2*i+1}')

def softmax_list(S, n, P, t):
    x = Em()
    maxchain(x, t, range(S, S + n), 'f32')
    xg_reduce(x, 'v_max_f32', t, t + 1)
    x.I(f'v_mul_f32 v{t}, s53, v{t}')
    for i in range(n): x.I(f'v_fma_f32 v{S+i}, v{S+i}, s52, v{t}')
    for i in range(n): x.I(f'v_exp_f32 v{S+i}, v{S+i}')
    x.I(f'v_add_f32 v{t+2}, v{S}, v{S+1}')
    x.I(f'v_add_f32 v{t+3}, v{S+2}, v{S+3}')
    for i in range(4, n, 2):
        x.I(f'v_add_f32 v{t+2}, v{t+2}, v{S+i}')
        x.I(f'v_add_f32 v{t+3}, v{t+3}, v{S+i+1}')
    x.I(f'v_add_f32 v{t+2}, v{t+2}, v{t+3}')
    xg_reduce(x, 'v_add_f32', t + 2, t + 3)
    x.I(f'v_rcp_f32 v{t+2}, v{t+2}')
    for i in range(n): x.I(f'v_mul_f32 v{S+i}, v{S+i}, v{t+2}')
    for i in range(n // 2): x.I(f'v_cvt_pk_bf16_f32 v{P+i}, v{S+2*i}, v{S+2*i+1}')
    return [l.strip() for l in x.lines]

def DSTAMP(e, idx, cond=None, op='umax'):
    if not opt.dstamp: return
    sk = e.lab('Lds')
    if cond: e.I(cond); e.I(f's_cbranch_scc0 {sk}')
    e.I('s_memrealtime s[98:99]')
    e.I('s_waitcnt lgkmcnt(0)')
    if op == 'neg': e.I('s_not_b32 s98, s98')
    e.I('s_mov_b64 exec, 1')
    e.I(f'v_mov_b32 v238, {idx*4}')
    e.I('v_mov_b32 v239, s98')
    e.I('global_atomic_umax v238, v239, s[74:75] sc1')
    e.I('s_mov_b64 exec, -1')
    e.L(sk)
def TS(e, k):
    if opt.ts: e.I(f's_memrealtime s[{76+2*k}:{77+2*k}]')
def TSflush(e, step, va=238, vd=239):
    if not opt.ts: return
    e.I('s_waitcnt lgkmcnt(0)')
    for k in range(10): e.I(f'v_writelane_b32 v{vd}, s{76+2*k}, {k}')
    e.I('s_lshl_b32 s76, s20, 5')
    e.I('s_add_u32 s76, s76, s21')
    e.I('s_lshl_b32 s76, s76, 2')
    e.I('s_add_u32 s76, s76, s22')
    e.I('s_mul_i32 s76, s76, 72')
    e.I(f's_add_u32 s76, s76, {step}')
    e.I('s_lshl_b32 s76, s76, 6')
    e.I(f's_add_u32 s76, s76, {DBGT}')
    e.I(f'v_lshlrev_b32 v{va}, 2, v1')
    e.I('s_mov_b64 exec, 0x3ff')
    e.I(f'buffer_store_dword v{vd}, v{va}, {WS}, s76 offen')
    e.I('s_mov_b64 exec, -1')

def lane_ig(e, vi, vg):
    e.I(f'v_and_b32 v{vi}, 15, v1')
    e.I(f'v_lshrrev_b32 v{vg}, 4, v1')

def load_weights(e, mats, RS, rows, paired, vA, vT, NB=3, bufoff=None, manual=False):
    CH = rows * 128
    ninst = rows // 8 // 4
    nk = rows // 32
    e.I(f'v_lshrrev_b32 v{vT}, 3, v1')
    if paired:
        e.I(f'v_bfe_u32 v{vT+1}, v1, 4, 2')
    else:
        e.I(f'v_bfe_u32 v{vT+1}, v1, 4, 1')
        e.I('s_and_b32 s54, s22, 1')
        e.I('s_lshl_b32 s54, s54, 1')
        e.I(f'v_or_b32 v{vT+1}, s54, v{vT+1}')
    e.I(f'v_lshlrev_b32 v{vT+1}, 1, v{vT+1}')
    e.I(f'v_and_b32 v{vT+2}, 7, v1')
    e.I(f'v_xor_b32 v{vT+2}, v{vT+2}, v{vT+1}')
    e.I(f's_mov_b32 s54, {RS}')
    e.I(f'v_mul_lo_u32 v{vA}, s54, v{vT}')
    e.I(f'v_lshl_add_u32 v{vA}, v{vT+2}, 4, v{vA}')
    e.I(f'v_lshrrev_b32 v{vT}, 4, v1')
    e.I(f'v_bfe_u32 v{vT+1}, v1, 2, 2')
    if paired:
        e.I(f'v_lshl_add_u32 v{vT+2}, v{vT}, 2, v{vT+1}')
        e.I(f'v_bfe_u32 v{vT}, v{vT+2}, 1, 2')
        second = 2048
    else:
        e.I(f'v_lshl_add_u32 v{vT+2}, v{vT}, 3, v{vT+1}')
        e.I(f'v_and_b32 v{vT}, 1, v{vT}')
        e.I(f'v_lshlrev_b32 v{vT}, 1, v{vT}')
        e.I(f'v_bfe_u32 v{vT+1}, v1, 3, 1')
        e.I(f'v_or_b32 v{vT}, v{vT}, v{vT+1}')
        second = 512
    e.I(f'v_xor_b32 v{vT}, s22, v{vT}')
    e.I(f'v_lshlrev_b32 v{vT+2}, 7, v{vT+2}')
    e.I(f'v_lshl_add_u32 v{vT+2}, v{vT}, 5, v{vT+2}')
    e.I(f'v_and_b32 v{vT}, 3, v1')
    e.I(f'v_lshl_add_u32 v{vT}, v{vT}, 3, v{vT+2}')
    bufoff = bufoff or [k * CH for k in range(NB)]
    for k in range(NB - 1, -1, -1):
        if bufoff[k]  or k: e.I(f'v_add_u32 v{vT+k}, {bufoff[k]}, v{vT}')
    chunks = []
    for (srd_, sofs, ab, nrows) in mats:
        for c in range(nrows // rows):
            chunks.append((srd_, sofs, ab + c * nk * 4, c * rows))
    e.I(f's_mul_i32 s55, s22, {8*RS}')
    e.I('s_lshl_b32 s56, s22, 10')
    def issue(ci, buf=None):
        srd_, sofs, ab, r0 = chunks[ci]
        if buf is None: buf = ci % NB
        e.I(f's_add_u32 s57, {sofs}, s55')
        if r0: e.I(f's_add_u32 s57, s57, {r0*RS}')
        for n in range(ninst):
            e.I(f's_add_u32 m0, s56, {bufoff[buf] + n*4096}')
            e.I(f'buffer_load_dwordx4 v{vA}, {srd_}, s57 offen{WFL[opt.wnt]} lds')
            if n + 1 < ninst: e.I(f's_add_u32 s57, s57, {32*RS}')
    def consume(ci, buf, pending):
        e.I(f's_waitcnt vmcnt({pending})')
        if ci < 8: TS(e, 2 + ci)
        e.I('s_barrier')
        srd_, sofs, ab, r0 = chunks[ci]
        for k in range(nk):
            e.I(f'ds_read_b64_tr_b16 {ar(ab+4*k,2)}, v{vT+buf} offset:{k*4096}')
            e.I(f'ds_read_b64_tr_b16 {ar(ab+4*k+2,2)}, v{vT+buf} offset:{k*4096+second}')
        e.I('s_waitcnt lgkmcnt(0)')
        e.I('s_barrier')
    if manual: return issue, consume
    for ci in range(min(NB, len(chunks))): issue(ci)
    for ci in range(len(chunks)):
        left = min(len(chunks) - 1 - ci, NB - 1)
        e.I(f's_waitcnt vmcnt({left*ninst})')
        if ci < 8: TS(e, 2 + ci)
        e.I('s_barrier')
        srd_, sofs, ab, r0 = chunks[ci]
        for k in range(nk):
            e.I(f'ds_read_b64_tr_b16 {ar(ab+4*k,2)}, v{vT+ci%NB} offset:{k*4096}')
            e.I(f'ds_read_b64_tr_b16 {ar(ab+4*k+2,2)}, v{vT+ci%NB} offset:{k*4096+second}')
        e.I('s_waitcnt lgkmcnt(0)')
        e.I('s_barrier')
        if ci + NB < len(chunks): issue(ci + NB)

def touch_jobs(e, jobs, sw, nw, sh, t, rot=0):
    sizes = sorted({min(n, 64) for _, _, n in jobs} | {n - 64 for _, _, n in jobs if n > 64})
    reg = {}
    for k, n in enumerate(sizes):
        reg[n] = t + 1 + k
        e.I(f'v_min_u32 v{reg[n]}, {n-1}, v1')
        e.I(f'v_lshlrev_b32 v{reg[n]}, 7, v{reg[n]}')
    flat = []
    for base, per, n in jobs:
        flat.append((base, per, min(n, 64)))
        if n > 64: flat.append((base + 8192, per, n - 64))
    for c in range(nw):
        sk = e.lab('Ltj')
        e.I(f's_cmp_lg_u32 {sw}, {c}')
        e.I(f's_cbranch_scc1 {sk}')
        for base, per, n in flat[(c - rot) % nw::nw]:
            e.I(f's_mul_i32 s38, {sh}, {per}')
            e.I(f's_add_u32 s38, s38, {base}')
            e.I(f'buffer_load_dword v{t}, v{reg[n]}, {WS}, s38 offen sc1')
        e.L(sk)

def prefetch_w(e, su, nw, lo, hi, t, srds):
    for k in range(3):
        e.I(f'v_add_u32 v{t+3}, {64*k}, v1')
        e.I(f'v_mul_u32_u24 v{t+4}, 0x1556, v{t+3}')
        e.I(f'v_lshrrev_b32 v{t+4}, 16, v{t+4}')
        e.I(f'v_mul_u32_u24 v{t+k}, 12, v{t+4}')
        e.I(f'v_sub_u32 v{t+3}, v{t+3}, v{t+k}')
        e.I(f'v_mul_u32_u24 v{t+k}, 12288, v{t+4}')
        e.I(f'v_lshl_add_u32 v{t+k}, v{t+3}, 7, v{t+k}')
    e.I('s_mul_i32 s39, s20, 1536')
    base = lo
    while base < hi:
        for m, (a_, b_) in enumerate(((0, 40), (40, 80))):
            if base + nw <= a_ or base >= b_ or srds[m] is None: continue
            sk = e.lab('Lpf')
            e.I(f's_add_u32 s38, {su}, {base}')
            e.I(f's_sub_u32 s38, s38, {a_}')
            e.I(f's_cmp_ge_u32 s38, {min(b_, hi) - a_}')
            e.I(f's_cbranch_scc1 {sk}')
            e.I(f's_mul_i32 s38, s38, {16*12288}')
            e.I('s_add_u32 s38, s38, s39')
            for k in range(3): e.I(f'buffer_load_dword v{t+3}, v{t+k}, {srds[m]}, s38 offen{WFL[opt.wnt]}')
            e.L(sk)
        base += nw

Q_LX, Q_LMEM = 0, 81920
def role_qkv(e):
    fl = ''
    WQ, WK, WV = 0, 80, 160
    MF = 16
    DQ, DK, DV = 96, 100, 104
    PA, PB = 108, 120
    XD = 132
    T0 = 160
    KEEP = 176; TCH = 180
    XA, VA, IDX, SEL = 182, 183, 184, 185
    SENT = 248; ONE = 252
    e.I('s_mul_i32 s24, s21, 43')
    e.I('s_lshr_b32 s24, s24, 7')
    e.I('s_mul_i32 s25, s24, 3')
    e.I('s_sub_u32 s25, s21, s25')
    e.I('s_lshl_b32 s26, s20, 2')
    e.I('s_add_u32 s26, s26, s24')
    e.I('s_lshl_b32 s27, s25, 2')
    e.I('s_add_u32 s27, s27, s22')
    srd(e, 8, 60, 640 * 12288); srd(e, 12, 62, 640 * 12288); srd(e, 16, 64, 640 * 12288)
    e.I('s_mul_i32 s28, s26, 384')
    e.I('s_lshl_b32 s29, s25, 7')
    e.I('s_add_u32 s28, s28, s29')
    w_issue, w_consume = load_weights(e, [('s[12:15]', 's28', WK, 640), ('s[16:19]', 's28', WV, 640), ('s[8:11]', 's28', WQ, 640)], 12288, 320, False, 240, 241, 3,
                                      bufoff=[81920, 122880, 40960], manual=True)
    for ci in range(3): w_issue(ci)
    e.I('s_mul_i32 s38, s22, 2560')
    e.I('v_add_u32 v3, s38, v2')
    e.I('v_and_b32 v4, 31, v1')
    e.I('v_lshlrev_b32 v4, 4, v4')
    e.I('v_add_u32 v4, s38, v4')
    e.I('v_add_u32 v4, 2048, v4')
    e.I(f'v_add_u32 v5, {Q_LMEM}, v3')
    e.I(f'v_add_u32 v6, {Q_LMEM}, v4')
    e.I(f'v_add_u32 v7, {Q_LMEM}, v2')
    lane_ig(e, 14, 15)
    e.I('s_lshr_b32 s38, s27, 1')
    e.I('s_lshl_b32 s38, s38, 10')
    e.I('s_and_b32 s39, s27, 1')
    e.I('s_lshl_b32 s39, s39, 3')
    e.I('s_add_u32 s38, s38, s39')
    e.I('v_add_u32 v8, s38, v2')
    e.I('v_bfe_u32 v11, v1, 2, 2')
    e.I('v_and_b32 v12, 3, v1')
    e.I(f'v_lshlrev_b32 v{XA}, 8, v11')
    e.I(f'v_lshl_add_u32 v{XA}, v15, 6, v{XA}')
    e.I(f'v_lshl_add_u32 v{XA}, v12, 4, v{XA}')
    e.I(f'v_add_u32 v{XA}, s38, v{XA}')
    e.I('v_and_b32 v13, 1, v15')
    e.I('v_lshlrev_b32 v13, 2, v13')
    e.I('v_lshrrev_b32 v9, 1, v15')
    e.I('v_lshl_add_u32 v13, v9, 1, v13')
    e.I('v_and_b32 v9, 1, v12')
    e.I('v_add_u32 v13, v13, v9')
    e.I('v_lshrrev_b32 v12, 1, v12')
    e.I('v_lshrrev_b32 v9, 1, v11')
    e.I('v_lshlrev_b32 v9, 8, v9')
    e.I('v_lshl_add_u32 v9, v12, 7, v9')
    e.I('v_lshl_add_u32 v9, v13, 4, v9')
    e.I(f'v_and_b32 v{VA}, 1, v11')
    e.I(f'v_lshl_add_u32 v9, v{VA}, 3, v9')
    e.I('s_lshl_b32 s38, s25, 10')
    e.I('s_lshr_b32 s39, s22, 1')
    e.I('s_lshl_b32 s39, s39, 9')
    e.I('s_add_u32 s38, s38, s39')
    e.I('s_and_b32 s39, s22, 1')
    e.I('s_lshl_b32 s39, s39, 2')
    e.I('s_add_u32 s38, s38, s39')
    e.I('v_add_u32 v9, s38, v9')
    e.I(f'v_lshlrev_b32 v{VA}, 8, v11')
    e.I(f'v_lshl_add_u32 v{VA}, v13, 4, v{VA}')
    e.I(f'v_lshl_add_u32 v{VA}, v12, 2, v{VA}')
    e.I('s_lshr_b32 s38, s27, 1')
    e.I('s_cmp_ge_u32 s38, 3')
    e.I('s_cselect_b32 s39, 3, 0')
    e.I('s_cselect_b32 s40, 128, 0')
    e.I('s_sub_u32 s38, s38, s39')
    e.I('s_lshl_b32 s38, s38, 10')
    e.I('s_add_u32 s38, s38, s40')
    e.I('s_and_b32 s39, s27, 1')
    e.I('s_lshl_b32 s39, s39, 3')
    e.I('s_add_u32 s38, s38, s39')
    e.I(f'v_add_u32 v{VA}, s38, v{VA}')
    e.I(f'v_mov_b32 v{IDX}, 0x44444444')
    e.I('v_mov_b32 v11, 0xeeeeeeee')
    e.I('v_cmp_lt_u32 vcc, 7, v14')
    e.I(f'v_cndmask_b32 v{IDX}, v{IDX}, v11, vcc')
    e.I(f'v_mov_b32 v{SEL}, 0x05040100')
    e.I('v_mov_b32 v11, 0x03020706')
    e.I('v_and_b32 v12, 1, v1')
    e.I('v_cmp_eq_u32 vcc, 1, v12')
    e.I(f'v_cndmask_b32 v{SEL}, v{SEL}, v11, vcc')
    e.I('s_mov_b32 s34, 0x33333333'); e.I('s_mov_b32 s35, 0x33333333')
    e.I('s_mov_b32 s36, 0xcccccccc'); e.I('s_mov_b32 s37, 0xcccccccc')
    for k in range(12): e.I(f'v_mov_b32 v{DQ+k}, 0')
    e.I('s_lshl_b32 s38, s27, 2')
    e.I(f'v_mov_b32 v{ONE+2}, s38')
    e.I(f'v_mov_b32 v{ONE}, 1')
    for k in range(4): e.I(f'v_mov_b32 v{SENT+k}, -1')
    e.I('s_mul_i32 s58, s26, 6144')
    e.I('s_mul_i32 s59, s20, 10240')
    e.I(f's_add_u32 s59, s59, {MEM}')
    e.I('s_mul_i32 s60, s26, 3072')
    e.I('s_lshl_b32 s61, s20, 6')
    e.I('s_lshl_b32 s38, s24, 2')
    e.I('s_add_u32 s61, s61, s38')
    e.I(f's_add_u32 s61, s61, {FLGOX}')
    e.I('v_mov_b32 v10, 0')

    def late_list():
        return [f'buffer_store_dwordx2 {vr(KEEP,2)}, v{XA}, {WS}, s43 offen{fl}',
                f'buffer_store_dwordx2 {vr(SENT,2)}, v{XA}, {WS}, s42 offen{fl}',
                f'buffer_store_dword v{KEEP+2}, v{VA}, {WS}, s44 offen{fl}',
                f'buffer_store_dword v{SENT}, v9, {WS}, s46 offen{fl}']
    def late_stores():
        for x_ in late_list(): e.I(x_)
    def xwork(late, mats=(2, 1, 0), dma=True):
        e.I('s_and_b32 s65, s64, 1')
        e.I('s_mul_i32 s66, s65, 40960')
        e.I('v_add_u32 v12, s66, v2')
        e.I('s_xor_b32 s65, s65, 1')
        e.I('s_mul_i32 s65, s65, 40960')
        e.I('s_add_u32 s65, s65, s62')
        e.I('s_add_u32 s66, s64, 1')
        e.I('s_min_u32 s66, s66, 63')
        e.I('s_mul_i32 s66, s66, 40960')
        e.I('s_add_u32 s66, s66, s62')
        e.I(f's_add_u32 s66, s66, {XN}')
        e.I(f's_and_b32 s47, s64, {RD-1}')
        e.I(f's_mul_i32 s47, s47, {SEG_QX}')
        e.I('s_lshl_b32 s48, s58, 1')
        e.I('s_add_u32 s47, s47, s48')
        if late:
            e.I(f's_max_u32 s50, s64, {RD}')
            e.I(f's_sub_u32 s50, s50, {RD}')
            e.I('s_lshl_b32 s50, s50, 9')
            e.I('s_add_u32 s50, s50, s61')
            e.I(f'buffer_load_dword v{TCH}, v10, {WS}, s50 offen sc1')
        PF = opt.xpf
        def rd(n): e.I(f'ds_read_b128 {vr(MF + (n % 20)*4)}, v12 offset:{n*1024}')
        def out(m, rt, part=3):
            d = XD + (m*2+rt)*4; o = T0 + (m*2+rt)*2
            if part & 1:
                e.I(f'v_cvt_pk_bf16_f32 v{o}, v{d}, v{d+1}')
                e.I(f'v_cvt_pk_bf16_f32 v{o+1}, v{d+2}, v{d+3}')
            if part & 2:
                e.I(f's_add_u32 s48, s47, {(QX, KX, VX)[m] + rt*6144}')
                e.I(f'buffer_store_dwordx2 {vr(o,2)}, v8, {WS}, s48 offen{fl}')
        for n in range(PF): rd(n)
        ls = late_list() if late else []
        d0 = opt.xdma0
        for n in range(40):
            rt, kk = n // 20, n % 20
            e.I(f's_waitcnt lgkmcnt({min(40, n + PF) - (n + 1)})')
            f = vr(MF + (n % 20)*4)
            for m in mats:
                Wb = (WQ, WK, WV)[m]
                d = vr(XD + (m*2+rt)*4)
                e.I(f'{MFMA} {d}, {ar(Wb+4*kk)}, {f}, {0 if kk == 0 else d}')
            if n + PF < 40: rd(n + PF)
            if late and n == 5:
                bp = e.lab('Lbp')
                e.I(f's_cmp_lt_u32 s64, {RD}')
                e.I(f's_cbranch_scc1 {bp}')
                e.I('s_waitcnt vmcnt(0)')
                e.I(f'v_cmp_eq_u32 vcc, 0, v{TCH}')
                e.I(f's_cbranch_vccz {bp}')
                wait_flags(e, 10, 's50', 1, TCH, 13, sleep=1)
                e.L(bp)
            if n >= 6 and ls: e.I(ls.pop(0))
            elif dma and n >= d0 and (n - d0) % opt.xdmas == 0 and (n - d0) // opt.xdmas < 10:
                m = (n - d0) // opt.xdmas
                e.I(f's_add_u32 m0, s65, {m*1024}')
                e.I(f'buffer_load_dwordx4 v2, {WS}, s66 offen lds')
                e.I('s_add_u32 s66, s66, 1024')
            k0 = 23 if len(mats) > 1 else 28
            if k0 <= n < k0 + len(mats): out(mats[n - k0], 0)
        for m in mats: out(m, 1)
    def flag_addr(back):
        e.I(f's_sub_u32 s51, s64, {back}')
        e.I('s_lshl_b32 s51, s51, 5')
        e.I('s_add_u32 s51, s51, s26')
        e.I('s_lshl_b32 s51, s51, 6')
        e.I(f's_add_u32 s51, s51, {FLGQ}')
    def flag_n():
        flag_addr(0)
        e.I('s_waitcnt vmcnt(0)')
        set_flag(e, ONE + 2, 's51', ONE, fl)
    def mem_part():
        e.I('s_and_b32 s38, s30, 3')
        e.I('s_xor_b32 s39, s38, 2')
        e.I(f's_mul_i32 s40, s38, {MEM_SLOT}')
        e.I('s_add_u32 s40, s40, s59')
        e.I(f's_mul_i32 s41, s38, {XR_SLOT}')
        e.I('s_add_u32 s41, s41, s58')
        e.I(f's_add_u32 s41, s41, {XR}')
        e.I(f's_mul_i32 s42, s39, {XR_SLOT}')
        e.I('s_add_u32 s42, s42, s58')
        e.I(f's_add_u32 s42, s42, {XR}')
        e.I(f's_and_b32 s44, s30, {RD-1}')
        e.I(f's_mul_i32 s43, s44, {SEG_XP}')
        e.I('s_add_u32 s43, s43, s58')
        e.I(f's_add_u32 s43, s43, {XP}')
        e.I(f's_mul_i32 s44, s44, {SEG_VM}')
        e.I('s_add_u32 s44, s44, s60')
        e.I(f's_add_u32 s44, s44, {VM}')
        e.I(f's_mul_i32 s45, s38, {VR_SLOT}')
        e.I('s_add_u32 s45, s45, s60')
        e.I(f's_add_u32 s45, s45, {VR}')
        e.I(f's_mul_i32 s46, s39, {VR_SLOT}')
        e.I('s_add_u32 s46, s46, s60')
        e.I(f's_add_u32 s46, s46, {VR}')
        def issue(b):
            e.I(f'buffer_load_dwordx4 {vr(b)}, v3, {WS}, s40 offen sc1')
            e.I(f'buffer_load_dwordx4 {vr(b+4)}, v3, {WS}, s40 offen offset:1024 sc1')
            e.I(f'buffer_load_dwordx4 {vr(b+8)}, v4, {WS}, s40 offen sc1')
        def consume(b):
            e.I(f'ds_write_b128 v5, {vr(b)}')
            e.I(f'ds_write_b128 v5, {vr(b+4)} offset:1024')
            e.I(f'ds_write_b128 v6, {vr(b+8)}')
        flag_addr(1)
        poll2(e, issue, 3, PA, PB, consume, T0, T0 + 1, 1)
        TS(e, 1)
        e.I('s_waitcnt lgkmcnt(0)')
        e.I('s_barrier')
        for m in range(10): e.I(f'ds_read_b128 {vr(MF+4*m)}, v7 offset:{m*1024}')
        if opt.fpos < 0: set_flag(e, ONE + 2, 's51', ONE, fl)
        e.I('s_mov_b64 vcc, s[34:35]')
        for m in range(10):
            e.I(f's_waitcnt lgkmcnt({9-m})')
            e.I(f'{SMF} {vr(DQ)}, {vr(MF+4*m)}, {ar(WQ+8*m,8)}, v{IDX}')
            e.I(f'{SMF} {vr(DK)}, {vr(MF+4*m)}, {ar(WK+8*m,8)}, v{IDX}')
            if m == opt.fpos: e.I(f'buffer_store_dword v{ONE}, v{ONE+2}, {WS}, s51 offen{fl}')
        def vm(m): e.I(f'{SMF} {vr(DV)}, {vr(MF+4*m)}, {ar(WV+8*m,8)}, v{IDX}')
        QP1, QP2 = 'quad_perm:[1,0,3,2] row_mask:0xf bank_mask:0xf', 'quad_perm:[2,3,0,1] row_mask:0xf bank_mask:0xf'
        nv = opt.vpre
        for m in range(nv): vm(m)
        if opt.fpos == 10: e.I(f'buffer_store_dword v{ONE}, v{ONE+2}, {WS}, s51 offen{fl}')
        for r in range(4): e.I(f'v_permlane32_swap_b32 v{DQ+r}, v{DK+r}')
        for r in range(4): e.I(f'v_add_f32 v{DQ+r}, v{DQ+r}, v{DK+r}')
        e.I(f'v_cvt_pk_bf16_f32 v{T0}, v{DQ}, v{DQ+1}')
        e.I(f'v_cvt_pk_bf16_f32 v{T0+1}, v{DQ+2}, v{DQ+3}')
        vm(nv)
        if opt.fpos == 11: e.I(f'buffer_store_dword v{ONE}, v{ONE+2}, {WS}, s51 offen{fl}')
        e.I(f'v_mov_b32_dpp v{T0+2}, v{T0} {QP1}')
        e.I(f'v_mov_b32_dpp v{T0+3}, v{T0+1} {QP1}')
        e.I(f'v_perm_b32 v{T0}, v{T0+2}, v{T0}, v{SEL}')
        e.I(f'v_perm_b32 v{T0+1}, v{T0+3}, v{T0+1}, v{SEL}')
        vm(nv + 1)
        if opt.fpos == 12: e.I(f'buffer_store_dword v{ONE}, v{ONE+2}, {WS}, s51 offen{fl}')
        e.I(f'v_cndmask_b32_dpp v{KEEP}, v{T0+1}, v{T0}, vcc {QP2}')
        e.I('s_mov_b64 vcc, s[36:37]')
        e.I(f'v_cndmask_b32_dpp v{KEEP+1}, v{T0}, v{T0+1}, vcc {QP2}')
        e.I(f'buffer_store_dwordx2 {vr(KEEP,2)}, v{XA}, {WS}, s41 offen{fl}')
        TS(e, 2)
        for m in range(nv + 2, 10): vm(m)
        for k in range(8): e.I(f'v_mov_b32 v{DQ+k}, 0')
        e.I(f'v_permlane32_swap_b32 v{DV}, v{DV+2}')
        e.I(f'v_permlane32_swap_b32 v{DV+1}, v{DV+3}')
        e.I(f'v_add_f32 v{DV}, v{DV}, v{DV+2}')
        e.I(f'v_add_f32 v{DV+1}, v{DV+1}, v{DV+3}')
        e.I(f'v_cvt_pk_bf16_f32 v{T0}, v{DV}, v{DV+1}')
        e.I(f'v_mov_b32_dpp v{T0+2}, v{T0} {QP1}')
        e.I(f'v_perm_b32 v{KEEP+2}, v{T0+2}, v{T0}, v{SEL}')
        e.I(f'buffer_store_dword v{KEEP+2}, v9, {WS}, s45 offen{fl}')
        for k in range(4): e.I(f'v_mov_b32 v{DV+k}, 0')
        TS(e, 3)
    w_consume(0, 0, 20); w_issue(3, 0)
    w_consume(1, 1, 20); w_issue(4, 1)
    w_consume(2, 2, 20)
    w_consume(3, 0, 10)
    w_consume(4, 1, 0)
    DSTAMP(e, 6)
    TS(e, 0)
    wait_reg(e, T0)
    TS(e, 1)
    TSflush(e, '69')
    e.I('s_mul_i32 s62, s22, 10240')
    def xdma(seg, buf):
        e.I(f's_add_u32 s63, s62, {XN + seg*40960}')
        for m in range(10):
            e.I(f's_add_u32 m0, s62, {Q_LX + buf*40960 + m*1024}')
            e.I(f'buffer_load_dwordx4 v2, {WS}, s63 offen lds')
            e.I('s_add_u32 s63, s63, 1024')
    xdma(0, 0)
    w_issue(5, 0)
    xdma(1, 1)
    e.I('s_cmp_lg_u32 s23, 0')
    e.I('s_cbranch_scc1 L_qkvs')
    for slow in (False, True):
        fl = ' sc1' if slow else ''
        if slow: e.L('L_qkvs')
        pro, top, nox, nxt_, q0, q0r, qq, q1 = [e.lab(x_) for x_ in ('Lqp', 'Lqt', 'Lqn', 'Lqx', 'Lq0', 'Lqr', 'Lqq', 'Lq1')]
        e.I('s_mov_b32 s30, 0')
        e.I('s_mov_b32 s64, 0')
        TS(e, 0)
        e.I('s_waitcnt vmcnt(20)')
        TS(e, 1)
        e.I('s_barrier')
        e.L(pro)
        xwork(False, (2, 1), False)
        e.I('s_add_u32 s64, s64, 1')
        e.I('s_cmp_eq_u32 s64, 2')
        e.I(f's_cbranch_scc1 {top}')
        TS(e, 2)
        flag_addr(1)
        e.I('s_waitcnt vmcnt(0)')
        TS(e, 3)
        set_flag(e, ONE + 2, 's51', ONE, fl)
        w_consume(5, 0, 1)
        if opt.urg: wait_count(e, T0, D_W, 80, 4)
        TS(e, 4)
        TSflush(e, '68')
        e.I(f's_branch {pro}')
        e.L(q0)
        e.I('s_mov_b32 s64, 0')
        e.L(qq)
        xwork(False, (0,), False)
        e.I('s_cmp_lg_u32 s64, 0')
        e.I(f's_cbranch_scc1 {q1}')
        e.I('s_barrier')
        xdma(2, 0)
        e.I('s_mov_b32 s64, 1')
        e.I(f's_branch {qq}')
        e.L(q1)
        e.I('s_mov_b32 s64, 2')
        e.I('s_waitcnt vmcnt(2)')
        e.I('s_barrier')
        e.I(f's_branch {q0r}')
        e.L(top)
        TS(e, 0)
        mem_part()
        e.I('s_cmp_eq_u32 s30, 0')
        e.I(f's_cbranch_scc1 {q0}')
        e.L(q0r)
        e.I('s_cmp_ge_u32 s64, 64')
        e.I(f's_cbranch_scc1 {nox}')
        xwork(True)
        e.I('s_cmp_lg_u32 s64, 63')
        e.I(f's_cbranch_scc1 {nxt_}')
        flag_n()
        e.I(f's_branch {nxt_}')
        e.L(nox)
        for x_ in late_list()[0::2]: e.I(x_)
        flag_n()
        e.L(nxt_)
        TS(e, 4)
        e.I('s_add_u32 s64, s64, 1')
        TS(e, 5)
        TSflush(e, 's30')
        e.I('s_add_u32 s30, s30, 1')
        e.I('s_cmp_lt_u32 s30, 64')
        e.I(f's_cbranch_scc1 {top}')
        e.I('s_endpgm')

S_RED = 98304
def role_sw(e):
    fl = ''
    XF, KXF, VXF, VMF = 16, 40, 88, 136
    S, PB, PM = 148, 160, 164
    DW, DM, VWX, VWM = 168, 184, 200, 216
    OUT = DW
    PA = XF
    CI = 224
    T0 = 228; IDX = 246; SENT = 248; ONE = 252
    AONE, AHALF = 96, 100
    PAD = 240
    e.I('s_sub_u32 s24, s21, 12')
    e.I('s_lshl_b32 s25, s24, 2')
    e.I('s_add_u32 s25, s25, s22')
    e.I('s_lshl_b32 s26, s20, 2')
    e.I('s_add_u32 s26, s26, s22')
    srd(e, 8, 66, 6144 * 1280)
    def wo_load():
        e.I(f's_mul_i32 s28, s26, {192*1280}')
        e.I('s_lshl_b32 s29, s24, 7')
        e.I('s_add_u32 s28, s28, s29')
        e.I('v_lshrrev_b32 v17, 3, v1')
        e.I('v_bfe_u32 v18, v1, 4, 2')
        e.I('v_lshlrev_b32 v18, 1, v18')
        e.I('v_and_b32 v19, 7, v1')
        e.I('v_xor_b32 v19, v19, v18')
        e.I('v_mul_u32_u24 v16, 1280, v17')
        e.I('v_lshl_add_u32 v16, v19, 4, v16')
        e.I('s_mul_i32 s46, s22, 24576')
        for n in range(24):
            e.I(f's_add_u32 m0, s46, {n*1024}')
            e.I(f'buffer_load_dwordx4 v16, s[8:11], s28 offen{WFL[opt.wnt]} lds')
            if n < 23: e.I(f's_add_u32 s28, s28, {8*1280}')
        e.I('v_lshrrev_b32 v17, 2, v1')
        e.I('v_bfe_u32 v18, v17, 1, 2')
        e.I('v_lshlrev_b32 v17, 7, v17')
        e.I('v_and_b32 v19, 3, v1')
        e.I('v_lshl_add_u32 v17, v19, 3, v17')
        e.I('v_add_u32 v17, s46, v17')
        for ct in range(4):
            e.I(f'v_xor_b32 v19, {ct}, v18')
            e.I(f'v_lshl_add_u32 v{20+ct}, v19, 5, v17')
        for kk in range(6):
            e.I(f's_waitcnt vmcnt({20 - 4*kk})')
            for ct in range(4):
                e.I(f'ds_read_b64_tr_b16 {ar((ct*6+kk)*4,2)}, v{20+ct} offset:{kk*4096}')
                e.I(f'ds_read_b64_tr_b16 {ar((ct*6+kk)*4+2,2)}, v{20+ct} offset:{kk*4096+2048}')
        e.I('s_waitcnt lgkmcnt(0)')
    if opt.pfs:
        srd(e, 12, 64, 640 * 12288); srd(e, 16, 60, 640 * 12288)
        prefetch_w(e, 's25', 40, 0, opt.pfs, 24, ('s[12:15]', 's[16:19]'))
    nocal = e.lab('Lnc')
    e.I('s_cmp_lg_u32 s25, 8')
    e.I(f's_cbranch_scc1 {nocal}')
    e.I('s_lshl_b32 s38, s20, 7')
    e.I(f's_add_u32 s38, s38, {CAL}')
    e.I('s_add_u32 s39, s38, 8192')
    e.I('s_mov_b32 s40, -1'); e.I('s_mov_b32 s41, -1'); e.I('s_mov_b32 s42, 4')
    e.I('v_mov_b32 v10, 0')
    e.I('s_mov_b64 exec, 1')
    cal = e.lab('Lcal')
    e.L(cal)
    for so, acc in (('s38', 's40'), ('s39', 's41')):
        e.I(f'buffer_store_dword v10, v10, {WS}, {so} offen sc1')
        e.I('s_waitcnt vmcnt(0)')
        e.I('s_memtime s[44:45]')
        e.I('s_waitcnt lgkmcnt(0)')
        e.I(f'buffer_load_dword v11, v10, {WS}, {so} offen sc1')
        e.I('s_waitcnt vmcnt(0)')
        e.I('s_memtime s[46:47]')
        e.I('s_waitcnt lgkmcnt(0)')
        e.I('s_sub_u32 s46, s46, s44')
        e.I(f's_min_u32 {acc}, {acc}, s46')
    e.I('s_sub_u32 s42, s42, 1')
    e.I('s_cmp_lg_u32 s42, 0')
    e.I(f's_cbranch_scc1 {cal}')
    e.I('s_cmp_lt_u32 s41, s40')
    if opt.pflip: e.I('s_cmp_ge_u32 s41, s40')
    e.I('s_cselect_b32 s38, 2, 1')
    e.I('v_mov_b32 v11, s38')
    e.I('s_lshl_b32 s38, s20, 2')
    e.I('v_mov_b32 v10, s38')
    e.I(f'global_store_dword v10, v11, s[74:75] offset:{D_PAR} sc1')
    e.I('s_mov_b64 exec, -1')
    e.L(nocal)
    def early_touch():
        jobs = []
        for sl in range(2): jobs += [(b_ + sl * SEG_QX, 12288, 96) for b_ in (KX, VX)]
        for sl in range(2): jobs += [(QX + sl * SEG_QX, 12288, 96), (XP + sl * SEG_XP, 6144, 48), (VM + sl * SEG_VM, 3072, 24)]
        touch_jobs(e, jobs, 's24', 10, 's26', 24)
    if opt.tord == 0: early_touch()
    if not opt.swlate: wo_load()
    if opt.tord == 1: early_touch()
    e.I(f's_mov_b32 s52, {SC_L2E:#x}'); e.I(f's_mov_b32 s53, {SC_L2E | 0x80000000:#x}')
    lane_ig(e, 14, 15)
    e.I('v_and_b32 v13, 7, v14')
    e.I('v_lshlrev_b32 v13, 4, v13')
    e.I('v_lshl_add_u32 v13, v15, 7, v13')
    e.I('v_bfe_u32 v5, v1, 3, 1')
    e.I('s_lshl_b32 s38, s22, 9')
    e.I(f's_add_u32 s38, s38, {S_RED}')
    e.I('v_add_u32 v6, s38, v13')
    e.I('v_lshl_add_u32 v6, v5, 14, v6')
    e.I('s_lshl_b32 s38, s22, 11')
    e.I(f's_add_u32 s38, s38, {S_RED}')
    e.I('v_add_u32 v7, s38, v13')
    e.I('v_lshl_add_u32 v7, v5, 10, v7')
    if opt.pbf: e.I('v_lshrrev_b32 v13, 1, v13')
    e.I('v_lshl_add_u32 v13, v5, 13, v13')
    e.I('v_and_b32 v4, 0x1fff, v13')
    e.I('v_lshlrev_b32 v9, 2, v5')
    e.I('v_xor_b32 v9, s20, v9')
    for m in range(4):
        e.I(f'v_xor_b32 v8, {m}, v9')
        e.I(f'v_lshl_add_u32 v{PAD+m}, v8, 9, v4')
    e.I('v_and_b32 v9, 7, v1')
    e.I('v_lshlrev_b32 v8, 4, v9')
    e.I('v_lshl_add_u32 v8, v5, 7, v8')
    e.I('v_lshl_add_u32 v8, v15, 2, v8')
    e.I('s_lshl_b32 s38, s25, 8')
    e.I('v_add_u32 v8, s38, v8')
    e.I('v_lshrrev_b32 v9, 1, v1')
    e.I('v_lshlrev_b32 v9, 10, v9')
    e.I('v_and_b32 v10, 1, v1')
    e.I('v_lshl_add_u32 v9, v10, 3, v9')
    e.I(f'v_lshlrev_b32 v{ONE+1}, 2, v1')
    for k in range(4): e.I(f'v_mov_b32 v{SENT+k}, -1')
    e.I('s_mov_b32 s68, 0xff00ff00'); e.I('s_mov_b32 s69, 0xff00ff00')
    e.I('s_mov_b32 s70, 0x3f80'); e.I('s_mov_b32 s71, 0x3f800000')
    e.I(f'v_mov_b32 v{CI}, {NEG_BIG:#x}')
    e.I('s_mov_b32 vcc_lo, 0')
    e.I('s_mov_b32 vcc_hi, 0x00ff00ff')
    e.I(f'v_cndmask_b32 v{CI}, v{CI}, 0, vcc')
    for k in range(1, 4): e.I(f'v_mov_b32 v{CI+k}, v{CI}')
    e.I(f'v_mov_b32 v{IDX}, 0x44444444')
    e.I('v_mov_b32 v11, 0xeeeeeeee')
    e.I('v_cmp_lt_u32 vcc, 7, v14')
    e.I(f'v_cndmask_b32 v{IDX}, v{IDX}, v11, vcc')
    e.I('v_mov_b32 v11, 0x3f803f80')
    for k in range(4): e.I(f'v_accvgpr_write_b32 a{AONE+k}, v11')
    e.I('v_mov_b32 v11, 0x3f003f00')
    for k in range(2): e.I(f'v_accvgpr_write_b32 a{AHALF+k}, v11')
    e.I('s_mul_i32 s58, s26, 6144')
    e.I(f's_add_u32 s58, s58, {XR}')
    e.I('s_mul_i32 s57, s26, 3072')
    e.I(f's_add_u32 s57, s57, {VR}')
    e.I('s_lshr_b32 s59, s25, 1')
    e.I('s_lshl_b32 s59, s59, 14')
    e.I('s_and_b32 s38, s25, 1')
    e.I('s_lshl_b32 s38, s38, 12')
    e.I('s_add_u32 s59, s59, s38')
    e.I(f's_add_u32 s59, s59, {PART}')
    e.I('s_lshl_b32 s60, s20, 9')
    e.I('s_add_u32 s60, s60, s59')
    e.I('s_mul_i32 s61, s20, 10240')
    e.I(f's_add_u32 s61, s61, {MEM}')
    e.I('s_mul_i32 s62, s26, 12288')
    e.I('s_lshl_b32 s63, s26, 6')
    e.I(f's_add_u32 s63, s63, {FLGQ}')
    e.I('s_lshl_b32 s38, s20, 2')
    e.I('v_mov_b32 v10, s38')
    wait_flags(e, 10, D_PAR, 1, T0, 12, sleep=4, dbg=True)
    e.I(f'v_readfirstlane_b32 s38, v{T0}')
    e.I('s_nop 3')
    e.I('s_and_b32 s38, s38, 2')
    e.I('s_lshl_b32 s38, s38, 12')
    e.I('s_add_u32 s59, s59, s38')
    e.I('s_lshl_b32 s38, s22, 2')
    e.I(f's_add_u32 s38, s38, {S_RED + 8192}')
    e.I('v_lshlrev_b32 v10, 4, v14')
    e.I('v_add_u32 v10, s38, v10')
    e.I('v_and_b32 v11, 7, v14')
    e.I('v_lshlrev_b32 v11, 4, v11')
    e.I('v_bfe_u32 v12, v1, 3, 1')
    e.I('v_lshl_add_u32 v11, v12, 3, v11')
    e.I(f'v_add_u32 v11, {S_RED + 8192}, v11')
    e.I('v_min_u32 v12, 11, v1')
    e.I('v_lshlrev_b32 v12, 2, v12')
    def kv_loads(dst, base, q0=0, q1=12):
        if q0 >= q1: return
        e.I(f's_and_b32 s48, s49, {RD-1}')
        e.I(f's_mul_i32 s48, s48, {SEG_QX}')
        e.I('s_add_u32 s48, s48, s62')
        e.I(f's_add_u32 s48, s48, {base + (q0//4)*4096}')
        for q in range(q0, q1):
            if q % 4 == 0 and q > q0: e.I('s_add_u32 s48, s48, 4096')
            e.I(f'buffer_load_dwordx4 {vr(dst+4*q)}, v2, {WS}, s48 offen offset:{(q%4)*1024} sc1')
    def vx_loads():
        e.I(f's_and_b32 s48, s49, {RD-1}')
        e.I(f's_mul_i32 s48, s48, {SEG_QX}')
        e.I('s_add_u32 s48, s48, s62')
        e.I(f's_add_u32 s48, s48, {VX}')
        e.I('s_add_u32 s46, s48, 4096')
        e.I('s_add_u32 s56, s48, 8192')
        for kk in range(6):
            for rt in range(2):
                q = rt * 6 + kk
                e.I(f'buffer_load_dwordx4 {vr(VXF+4*q)}, v2, {WS}, {("s48", "s46", "s56")[q//4]} offen offset:{(q%4)*1024} sc1')
    def vw_grp(gi):
        kk, rt = gi // 2, gi % 2
        for ct in range(4):
            d = vr(DW + (ct*2+rt)*4)
            e.I(f'{MFMA} {d}, {vr(VXF+4*(rt*6+kk))}, {ar((ct*6+kk)*4)}, {0 if kk == 0 else d}')
    def vw_x(after, extra=(), nvx=0, g0=0):
        extra = list(extra); nx0 = len(extra)
        for gi in range(g0, 12):
            if gi >= 12 - nvx: e.I(f's_waitcnt vmcnt({11 - gi + nx0 - len(extra)})')
            for _ in range(-(-len(extra) // (12 - gi))): e.I(extra.pop(0))
            if after is not None: e.I(f's_waitcnt vmcnt({after + 11 - gi})')
            vw_grp(gi)
        cv = [f'v_cvt_pk_bf16_f32 v{VWX+4*ct+k}, v{DW+8*ct+2*k}, v{DW+8*ct+2*k+1}' for ct in range(4) for k in range(4)] + [f'v_mov_b32 v{DM+k}, 0' for k in range(16)]
        for n_, x_ in enumerate(cv):
            if extra and n_ % 2 == 0: e.I(extra.pop(0))
            e.I(x_)
    TS(e, 0)
    wait_reg(e, T0, opt.rsleep)
    TS(e, 1)
    if opt.swlate: wo_load()
    if opt.tord == 2: early_touch()
    TS(e, 2)
    TSflush(e, '69', 244, 245)
    if opt.touch2:
        e.I('v_lshrrev_b32 v16, 4, v1')
        e.I(f's_mov_b32 s38, {PART_SLOT}')
        e.I('v_mul_lo_u32 v16, s38, v16')
        e.I('v_bfe_u32 v17, v1, 1, 3')
        e.I('v_lshl_add_u32 v16, v17, 9, v16')
        e.I('v_and_b32 v17, 1, v1')
        e.I('v_lshl_add_u32 v16, v17, 7, v16')
        e.I(f'buffer_load_dword v17, v16, {WS}, s59 offen sc1')
    wait_flags(e, ONE + 1, 's63', 0xfff, T0, 11, sleep=2)
    e.I('s_mov_b32 s49, 0')
    vx_loads()
    kv_loads(KXF, KX)
    vw_x(12)
    e.I('s_cmp_lg_u32 s23, 0')
    e.I('s_cbranch_scc1 L_sws')
    for slow in (False, True):
        fl = ' sc1' if slow else ''
        if slow: e.L('L_sws')
        top = e.lab('Lwt')
        e.I('s_mov_b32 s30, 0')
        e.L(top)
        TS(e, 0)
        if opt.pdiag: e.I('s_mov_b32 s94, 0')
        e.I('s_and_b32 s38, s30, 3')
        e.I('s_xor_b32 s39, s38, 2')
        e.I(f's_mul_i32 s40, s38, {XR_SLOT}')
        e.I('s_add_u32 s40, s40, s58')
        e.I('s_add_u32 s54, s40, 4096')
        e.I(f's_mul_i32 s55, s38, {VR_SLOT}')
        e.I('s_add_u32 s55, s55, s57')
        if opt.fresh:
            e.I(f's_mul_i32 s41, s30, {PART_SLOT}')
            e.I(f's_add_u32 s41, s41, {SCRATCH + 0x400000 - PART + 0x200000}')
        else:
            e.I(f's_mul_i32 s41, s38, {PART_SLOT}')
        e.I('s_add_u32 s42, s41, s60')
        e.I('s_add_u32 s41, s41, s59')
        if opt.fresh:
            e.I('s_lshr_b32 s47, s41, 8')
            e.I('s_not_b32 s47, s47')
            e.I('s_and_b32 s47, s47, 8192')
            e.I('s_xor_b32 s41, s41, s47')
        e.I('s_xor_b32 s47, s41, 8192')
        e.I(f's_mul_i32 s43, s39, {PART_SLOT}')
        e.I('s_add_u32 s43, s43, s60')
        e.I('s_add_u32 s49, s30, 1')
        e.I('s_and_b32 s44, s49, 3')
        e.I('s_xor_b32 s45, s44, 2')
        e.I(f's_mul_i32 s44, s44, {MEM_SLOT}')
        e.I('s_add_u32 s44, s44, s61')
        e.I(f's_mul_i32 s45, s45, {MEM_SLOT}')
        e.I('s_add_u32 s45, s45, s61')
        e.I(f's_and_b32 s46, s49, {RD-1}')
        e.I(f's_mul_i32 s46, s46, {SEG_QX}')
        e.I('s_add_u32 s46, s46, s62')
        e.I(f's_add_u32 s65, s46, {KX}')
        e.I(f's_add_u32 s46, s46, {VX}')
        e.I('s_add_u32 s56, s46, 4096')
        e.I('s_add_u32 s64, s46, 8192')
        e.I('s_add_u32 s66, s65, 4096')
        e.I('s_add_u32 s67, s65, 8192')
        e.I('s_lshl_b32 s50, s49, 11')
        e.I('s_add_u32 s50, s50, s63')
        pl, pd, fr, hl, hd = e.lab('Lxp'), e.lab('Lxd'), e.lab('Lxf'), e.lab('Lhp'), e.lab('Lhd')
        def probe(lp, dn, va, so, bad):
            e.I('s_mov_b64 exec, 0xfff')
            e.I(f'buffer_load_dword v{T0}, v{va}, {WS}, {so} offen sc1')
            e.L(lp)
            for a_, b_ in ((T0, T0 + 1), (T0 + 1, T0)):
                e.I(f'buffer_load_dword v{b_}, v{va}, {WS}, {so} offen sc1')
                e.I('s_waitcnt vmcnt(1)')
                e.I(f'v_cmp_eq_u32 vcc, {bad}, v{a_}')
                e.I(f's_cbranch_vccz {dn}')
            e.I('s_sub_u32 s31, s31, 1')
            e.I(f's_cbranch_scc0 {lp}')
            e.I('s_mov_b32 s31, 2')
            e.I('s_branch L_fail')
        e.I(f's_mov_b32 s31, {TMO}')
        probe(hl, hd, 12, 's50', 0)
        xp = e.lab('Lxq')
        e.L(xp)
        probe(pl, pd, 9, 's40', -1)
        e.L(hd)
        if opt.hdelay: e.I(f's_nop {opt.hdelay - 1}')
        if not opt.heads: e.I(f's_branch {xp}')
        e.L(pd)
        e.I('s_mov_b64 exec, -1')
        TS(e, 1)
        if opt.pdiag: e.I('s_add_u32 s94, s94, 1')
        e.L(fr)
        for p in range(6):
            e.I(f'buffer_load_dwordx4 {vr(XF+4*p)}, v2, {WS}, {"s40" if p < 4 else "s54"} offen offset:{(p%4)*1024} sc1')
        FQ = CI + 23
        def vm_loads():
            for q in range(3):
                e.I(f'buffer_load_dwordx4 {vr(VMF+4*q)}, v2, {WS}, s55 offen offset:{q*1024} sc1')
        vp = opt.vmpos
        nvm = 0
        if vp == 0: vm_loads(); nvm = 3
        for p in range(6):
            x = vr(XF + 4*p)
            e.I(f's_waitcnt vmcnt({5-p+nvm})')
            e.I(f'{MFMA} {vr(S+4)}, {vr(KXF+4*p)}, {x}, {0 if p == 0 else vr(S+4)}')
            e.I(f'{MFMA} {vr(S+8)}, {vr(KXF+24+4*p)}, {x}, {0 if p == 0 else vr(S+8)}')
            e.I(f'{MFMA} {vr(S)}, {x}, {x}, {vr(CI) if p == 0 else vr(S)}')
            if vp == p + 1: vm_loads(); nvm = 3
            r = XF + 4 * p
            if p == 0:
                e.I(f'v_max3_u32 v{T0+2}, v{r}, v{r+1}, v{r+2}')
                e.I(f'v_max_u32 v{T0+2}, v{T0+2}, v{r+3}')
            else:
                e.I(f'v_max3_u32 v{T0+2}, v{T0+2}, v{r}, v{r+1}')
                e.I(f'v_max3_u32 v{T0+2}, v{T0+2}, v{r+2}, v{r+3}')
        e.I(f'v_cmp_eq_u32 vcc, -1, v{T0+2}')
        ok = e.lab('Lxo')
        e.I(f's_cbranch_vccz {ok}')
        e.I('s_sub_u32 s31, s31, 1')
        e.I('s_nop 7')
        e.I(f's_cbranch_scc0 {xp}')
        e.I('s_mov_b32 s31, 2')
        e.I('s_branch L_fail')
        e.L(ok)
        TS(e, 2)
        vl, vd = e.lab('Lvp'), e.lab('Lvd')
        e.L(vl)
        e.I('s_waitcnt vmcnt(0)')
        check_sent(e, range(VMF, VMF + 12), T0 + 2, T0 + 3)
        e.I(f's_cbranch_vccz {vd}')
        vm_loads()
        e.I('s_sub_u32 s31, s31, 1')
        e.I(f's_cbranch_scc0 {vl}')
        e.I('s_mov_b32 s31, 3')
        e.I('s_branch L_fail')
        e.L(vd)
        TS(e, 3)
        PW = 2 if opt.pbf else 4
        if opt.rpos == 0: e.I(f'buffer_store_dwordx{PW} {vr(SENT,PW)}, v13, {WS}, s43 offen sc1')
        ROR8 = 'row_ror:8 row_mask:0xf bank_mask:0xf'
        sm = [f'{SMF} {vr(DM+4*ct)}, {vr(VMF+4*m)}, {ar((ct*6+2*m)*4,8)}, v{IDX}' for m in range(3) for ct in range(4)]
        t = T0 + 2
        V = []
        for r in range(4): V.append(f'v_mov_b32_dpp v{S+4+r}, v{S+8+r} row_shr:8 row_mask:0xf bank_mask:0xc')
        V += [f'v_max3_f32 v{t}, v{S}, v{S+1}, v{S+2}', f'v_max3_f32 v{t+1}, v{S+3}, v{S+4}, v{S+5}', f'v_max3_f32 v{t}, v{t}, v{S+6}, v{S+7}', f'v_max_f32 v{t}, v{t}, v{t+1}',
              '*', '*', f'v_max_f32_dpp v{t}, v{t}, v{t} {ROR8}', f'v_mov_b32 v{t+1}, v{t}', '*', '*', f'v_permlane16_swap_b32 v{t}, v{t+1}', f'v_max_f32 v{t}, v{t}, v{t+1}',
              f'v_mov_b32 v{t+1}, v{t}', '*', '*', f'v_permlane32_swap_b32 v{t}, v{t+1}', f'v_max_f32 v{t}, v{t}, v{t+1}', f'v_mul_f32 v{t}, s53, v{t}']
        order = [4, 5, 6, 7, 0, 1, 2, 3]
        for i in order: V.append(f'v_fma_f32 v{S+i}, v{S+i}, s52, v{t}')
        for n_, i in enumerate(order):
            V.append(f'v_exp_f32 v{S+i}, v{S+i}')
        bulk = [f'buffer_load_dwordx4 {vr(VXF+4*q)}, v2, {WS}, {("s46", "s56", "s64")[q//4]} offen offset:{(q%4)*1024} sc1' for q in (0, 6, 1, 7, 2, 8, 3, 9, 4, 10, 5, 11)]
        bulk += [f'buffer_load_dwordx4 {vr(KXF+4*q)}, v2, {WS}, {("s65", "s66", "s67")[q//4]} offen offset:{(q%4)*1024} sc1' for q in range(12)]
        kin = bulk[:opt.kin]; kp = bulk[opt.kin:opt.kin + opt.kp]; kc = bulk[opt.kin + opt.kp:]
        if opt.nobulk & 1: kin = []
        if opt.nobulk & 2: kp = []
        if opt.nobulk & 4: kc = []
        def ld():
            if kin: e.I(kin.pop(0))
        for x_ in sm[:opt.smpre]: e.I(x_)
        rest = sm[opt.smpre:]
        cost = 0; prev = None; nld = 0
        for x_ in V:
            if x_ == '*':
                if prev == '*' or cost == 0 or not rest: ld()
                else: e.I(rest.pop(0)); cost = 0
            else:
                e.I(x_); cost += 2 if 'v_exp' in x_ else 1
                if cost >= opt.smgap and rest: e.I(rest.pop(0)); cost = 0
                elif not rest and cost >= opt.ldgap: ld(); cost = 0
            prev = x_
        for x_ in rest: e.I(x_)
        e.I(f'v_cvt_pk_bf16_f32 v{PB}, v{S+4}, v{S+5}')
        e.I(f'v_cvt_pk_bf16_f32 v{PB+1}, v{S+6}, v{S+7}')
        e.I(f'v_cvt_pk_bf16_f32 v{PM}, v{S}, v{S+1}')
        e.I(f'v_cvt_pk_bf16_f32 v{PM+1}, v{S+2}, v{S+3}')
        e.I(f'v_mov_b32_dpp v{PB+2}, v{PB} {ROR8}')
        e.I(f'v_mov_b32_dpp v{PB+3}, v{PB+1} {ROR8}')
        e.I(f'v_mov_b32 v{t}, v{PM}')
        e.I(f'v_mov_b32 v{t+1}, v{PM+1}')
        if opt.tpos == 0: TS(e, 4)
        def cvm(ct):
            e.I(f'v_cvt_pk_bf16_f32 v{VWM+2*ct}, v{DM+4*ct}, v{DM+4*ct+1}')
            e.I(f'v_cvt_pk_bf16_f32 v{VWM+2*ct+1}, v{DM+4*ct+2}, v{DM+4*ct+3}')
        SUM = S
        e.I(f'{MFMA} {vr(OUT)}, {vr(VWX)}, {vr(PB)}, 0')
        e.I(f'v_permlane32_swap_b32 v{t}, v{PM}')
        e.I(f'v_permlane32_swap_b32 v{t+1}, v{PM+1}')
        e.I(f'{MFMA} {vr(SUM)}, {ar(AONE)}, {vr(PB)}, 0')
        cvm(0)
        e.I(f'{MFMA} {vr(OUT+4)}, {vr(VWX+4)}, {vr(PB)}, 0')
        cvm(1)
        e.I(f'{MFMA} {vr(OUT+8)}, {vr(VWX+8)}, {vr(PB)}, 0')
        cvm(2)
        e.I(f'{MFMA} {vr(OUT+12)}, {vr(VWX+12)}, {vr(PB)}, 0')
        cvm(3)
        e.I(f'{MFMA16} {vr(OUT)}, {vr(VWM,2)}, {vr(PM,2)}, {vr(OUT)}')
        ld()
        e.I(f'{MFMA16} {vr(SUM)}, {ar(AHALF,2)}, {vr(PM,2)}, {vr(SUM)}')
        ld()
        for ct in range(1, 4):
            e.I(f'{MFMA16} {vr(OUT+4*ct)}, {vr(VWM+2*ct,2)}, {vr(PM,2)}, {vr(OUT+4*ct)}')
            if ct < 3: ld()
        while kin: ld()
        if opt.tpos == 1: TS(e, 4)
        e.I('s_not_b64 exec, s[68:69]')
        e.I(f'ds_write_b128 v6, {vr(OUT)}')
        e.I(f'v_rcp_f32 v{t}, v{SUM}')
        e.I(f'ds_write_b128 v6, {vr(OUT+4)} offset:2048')
        e.I(f'ds_write_b32 v10, v{t}')
        e.I(f'ds_write_b128 v6, {vr(OUT+8)} offset:4096')
        e.I(f'ds_write_b128 v6, {vr(OUT+12)} offset:6144')
        e.I('s_mov_b64 exec, -1')
        e.I('s_waitcnt lgkmcnt(0)')
        if opt.tpos == 2: TS(e, 4)
        e.I('s_barrier')
        if opt.tpos == 3: TS(e, 4)
        e.I(f'ds_read_b64 {vr(t,2)}, v11')
        e.I(f'ds_read_b128 {vr(S)}, v7')
        e.I(f'ds_read_b128 {vr(S+4)}, v7 offset:512')
        e.I('s_waitcnt lgkmcnt(1)')
        for k in range(4): e.I(f'v_mul_f32 v{S+k}, v{S+k}, v{t}')
        e.I('s_waitcnt lgkmcnt(0)')
        for k in range(4): e.I(f'v_fmac_f32 v{S+k}, v{S+4+k}, v{t+1}')
        for k in range(4): e.I(f'v_add_f32_dpp v{S+k}, v{S+k}, v{S+k} {ROR8}')
        if opt.pbf:
            e.I(f'v_cvt_pk_bf16_f32 v{S+4}, v{S}, v{S+1}')
            e.I(f'v_cvt_pk_bf16_f32 v{S+5}, v{S+2}, v{S+3}')
            e.I(f'buffer_store_dwordx2 {vr(S+4,2)}, v13, {WS}, s42 offen sc1')
        else:
            e.I(f'buffer_store_dwordx4 {vr(S)}, v13, {WS}, s42 offen sc1')
        TS(e, 5)
        if opt.rpos == 2: e.I(f'buffer_store_dwordx{PW} {vr(SENT,PW)}, v13, {WS}, s43 offen sc1')
        e.I(f'v_mov_b32 v{PA}, 0'); e.I(f'v_mov_b32 v{PA+1}, 0')
        for k in range(4): e.I(f'v_cndmask_b32 v{S+k}, v{S+k}, 0, s[68:69]')
        if opt.pmf:
            e.I('s_waitcnt vmcnt(2)')
            for gi in range(opt.pmf): vw_grp(gi)
        if opt.pdelay: e.I(f's_sleep {opt.pdelay}')
        def shot():
            e.I('s_mov_b64 exec, s[68:69]')
            e.I(f'buffer_load_dwordx2 {vr(PA,2)}, v{PAD}, {WS}, s41 offen sc1')
            e.I('s_mov_b64 exec, -1')
            for m in range(1, 4): e.I(f'buffer_load_dwordx2 {vr(PA+2*m,2)}, v{PAD+m}, {WS}, s41 offen sc1')
            for k in range(4): e.I(f'v_mov_b32 v{T0+8+k}, v{S+k}')
        ql, qd, qf = e.lab('Lpp'), e.lab('Lpd'), e.lab('Lpf')
        shot()
        for gi in range(opt.pmf, opt.pmf + opt.pmf2): vw_grp(gi)
        e.I(f's_branch {qf}')
        e.L(ql)
        shot()
        e.L(qf)
        for m in range(4):
            e.I(f's_waitcnt vmcnt({3-m})')
            if m == 0: e.I(f'v_max_u32 v{T0}, v{PA}, v{PA+1}')
            else: e.I(f'v_max3_u32 v{T0}, v{T0}, v{PA+2*m}, v{PA+2*m+1}')
            if m == 3: e.I(f'v_cmp_eq_u32 vcc, -1, v{T0}')
            for k in range(4): e.I(f'v_dot2c_f32_bf16 v{T0+8+k}, {("s70", "s71")[k&1]}, v{PA+2*m+(k>>1)}')
        e.I(f's_cbranch_vccz {qd}')
        e.I('s_sub_u32 s31, s31, 1')
        e.I(f's_cbranch_scc0 {ql}')
        e.I('s_mov_b32 s31, 4')
        e.I('s_branch L_fail')
        e.L(qd)
        TS(e, 6)
        e.I('s_nop 1')
        for k in range(2): e.I(f'v_add_f32_dpp v{T0+4+k}, v{T0+8+k}, v{T0+8+k} row_ror:8 row_mask:0xf bank_mask:0x3')
        for k in range(2): e.I(f'v_add_f32_dpp v{T0+4+k}, v{T0+10+k}, v{T0+10+k} row_ror:8 row_mask:0xf bank_mask:0xc ; merge')
        e.I(f'v_cvt_pk_bf16_f32 v{T0+4}, v{T0+4}, v{T0+5}')
        e.I(f'buffer_store_dword v{T0+4}, v8, {WS}, s44 offen{fl}')
        TS(e, 7)
        e.I(f'buffer_store_dword v{SENT}, v8, {WS}, s45 offen{fl}')
        if opt.mbar: e.I('s_barrier')
        nvx = max(0, 12 - opt.kin - opt.kp)
        for x_ in kc[:nvx]: e.I(x_)
        assert opt.kin >= opt.pmf + opt.pmf2
        vw_x(None, kc[nvx:], nvx, opt.pmf + opt.pmf2)
        TS(e, 8)
        TSflush(e, 's30', 244, 245)
        DSTAMP(e, 2, 's_cmp_eq_u32 s30, 0')
        DSTAMP(e, 3, 's_cmp_eq_u32 s30, 2')
        DSTAMP(e, 4, 's_cmp_eq_u32 s30, 62')
        e.I('s_add_u32 s30, s30, 1')
        e.I('s_cmp_lt_u32 s30, 63')
        e.I(f's_cbranch_scc1 {top}')
        if not slow: e.I('s_branch L_swend')
    e.L('L_swend')
    e.I('s_lshl_b32 s38, s20, 6')
    e.I('s_lshl_b32 s39, s22, 2')
    e.I('s_add_u32 s38, s38, s39')
    e.I(f's_add_u32 s38, s38, {FLGOX + 63*512}')
    e.I(f's_add_u32 s46, s62, {OX + (63 % RD)*SEG_QX}')
    e.I('s_add_u32 s56, s46, 4096')
    e.I('s_add_u32 s64, s46, 8192')
    e.I('s_lshl_b32 s39, s22, 10')
    e.I('v_add_u32 v6, s39, v2')
    e.I('s_lshl_b32 s39, s22, 12')
    e.I('v_add_u32 v7, s39, v2')
    e.I('s_lshr_b32 s40, s24, 1')
    e.I('s_lshl_b32 s40, s40, 2')
    e.I('s_add_u32 s40, s40, s22')
    e.I('s_lshl_b32 s40, s40, 10')
    e.I('s_and_b32 s41, s24, 1')
    e.I('s_lshl_b32 s41, s41, 3')
    e.I('s_add_u32 s40, s40, s41')
    e.I('s_mul_i32 s41, s20, 40960')
    e.I('s_add_u32 s40, s40, s41')
    e.I(f's_add_u32 s40, s40, {PX + 63*SEG_PX}')
    e.I('s_add_u32 s41, s40, 20480')
    e.I('s_mul_i32 s43, s20, 5')
    e.I('s_lshr_b32 s44, s24, 1')
    e.I('s_add_u32 s43, s43, s44')
    e.I('s_lshl_b32 s43, s43, 7')
    e.I(f's_add_u32 s43, s43, {HINT2}')
    e.I('v_mov_b32 v3, 0')
    e.I(f'v_mov_b32 v{ONE}, 1')
    e.I('s_waitcnt vmcnt(0)')
    TS(e, 0)
    wait_flags(e, 3, 's38', 1, T0, 5, sleep=opt.esleep)
    TS(e, 1)
    order = (0, 6, 1, 7, 2, 8, 3, 9, 4, 10, 5, 11)
    for q in order: e.I(f'buffer_load_dwordx4 {vr(VXF+4*q)}, v2, {WS}, {("s46", "s56", "s64")[q//4]} offen offset:{(q%4)*1024} sc1')
    for n_, q in enumerate(order):
        qt, kk = q // 6, q % 6
        e.I(f's_waitcnt vmcnt({11 - n_})')
        for ct in range(4):
            d = vr(DW + (qt*4+ct)*4)
            e.I(f'{MFMA} {d}, {ar((ct*6+kk)*4)}, {vr(VXF+4*q)}, {0 if kk == 0 else d}')
    TS(e, 2)
    for k in range(8): e.I(f'ds_write_b128 v6, {vr(DW+4*k)} offset:{k*4096}')
    e.I('s_waitcnt lgkmcnt(0)')
    e.I('s_barrier')
    for qt in range(2):
        for hh in range(4): e.I(f'ds_read_b128 {vr(KXF+(qt*4+hh)*4)}, v7 offset:{qt*16384 + hh*1024}')
    for qt in range(2):
        r = KXF + qt*16
        e.I(f's_waitcnt lgkmcnt({4 - 4*qt})')
        for k in range(4):
            e.I(f'v_add_f32 v{r+k}, v{r+k}, v{r+4+k}')
            e.I(f'v_add_f32 v{r+8+k}, v{r+8+k}, v{r+12+k}')
        for k in range(4): e.I(f'v_add_f32 v{r+k}, v{r+k}, v{r+8+k}')
        e.I(f'v_cvt_pk_bf16_f32 v{r+4}, v{r}, v{r+1}')
        e.I(f'v_cvt_pk_bf16_f32 v{r+5}, v{r+2}, v{r+3}')
        e.I(f'buffer_store_dwordx2 {vr(r+4,2)}, v2, {WS}, {("s40", "s41")[qt]} offen sc1')
    TS(e, 3)
    e.I('s_and_b32 s38, s25, 7')
    e.I(f's_cmp_eq_u32 s38, {opt.hwv}')
    e.I('s_cselect_b64 exec, 1, 0')
    e.I(f'buffer_store_dword v{ONE}, v3, {WS}, s43 offen sc1')
    e.I('s_mov_b64 exec, -1')
    TSflush(e, '63', 244, 245)
    e.I('s_endpgm')

def role_xw(e):
    OF = 16
    D = 112
    T0 = 160; ONE = 252
    e.I('s_sub_u32 s24, s21, 22')
    srd(e, 8, 66, 6144 * 1280)
    e.I(f's_mul_i32 s28, s20, {768*1280}')
    e.I('s_lshl_b32 s29, s24, 8')
    e.I('s_add_u32 s28, s28, s29')
    e.I('s_add_u32 s29, s28, 128')
    e.I(f'v_lshlrev_b32 v{ONE+1}, 2, v1')
    e.I('s_lshl_b32 s38, s20, 8')
    e.I(f's_add_u32 s38, s38, {FLGQ}')
    if opt.xlate & 1: wait_first(e, T0)
    if opt.touch:
        jobs = []
        for sl in range(RD):
            if sl >= 2: jobs += [(b_ + sl * SEG_QX, 12288, 96) for b_ in (KX, VX, QX)] + [(XP + sl * SEG_XP, 6144, 48), (VM + sl * SEG_VM, 3072, 24)]
            if sl >= 2: jobs += [(OX + (sl - 2) * SEG_QX, 12288, 96)]
        jobs += [(OX + sl * SEG_QX, 12288, 96) for sl in (6, 7)]
        e.I('s_lshl_b32 s40, s20, 2')
        e.I('s_add_u32 s40, s40, s22')
        touch_jobs(e, jobs, 's24', 5, 's40', 16)
    pass
    load_weights(e, [('s[8:11]', 's28', 0, 768), ('s[8:11]', 's29', 96, 768)], 1280, 256, True, 3, 4)
    e.I(f'v_lshlrev_b32 v{ONE+1}, 2, v1')
    e.I('s_lshl_b32 s38, s20, 2')
    e.I('s_add_u32 s38, s38, s22')
    e.I('s_lshl_b32 s39, s38, 2')
    e.I('v_lshlrev_b32 v3, 7, v1')
    e.I('v_add_u32 v3, s39, v3')
    e.I(f'v_mov_b32 v{ONE}, 1')
    e.I('s_mul_i32 s62, s22, 12288')
    e.I('s_mul_i32 s63, s38, 12288')
    e.I(f's_add_u32 s63, s63, {OX}')
    e.I('s_mul_i32 s64, s20, 40960')
    e.I('s_lshl_b32 s65, s24, 2')
    e.I('s_add_u32 s65, s65, s22')
    e.I('s_lshl_b32 s65, s65, 10')
    e.I('s_add_u32 s64, s64, s65')
    e.I(f's_add_u32 s64, s64, {PX}')
    e.I('s_lshl_b32 s66, s24, 8')
    e.I(f's_add_u32 s66, s66, {FLGPX}')
    def pxflag():
        e.I('s_mov_b64 exec, 3')
        e.I(f'buffer_store_dword v{ONE}, v3, {WS}, s54 offen sc1')
        e.I('s_mov_b64 exec, s[60:61]')
        e.I(f'buffer_store_dword v{ONE}, v6, {WS}, s53 offen sc1')
        e.I('s_mov_b64 exec, -1')
    wait_reg(e, T0)
    top, nof, late, nxt_, last = e.lab('Lxt'), e.lab('Lxn'), e.lab('Lxl'), e.lab('Lxx'), e.lab('Lxe')
    e.I('s_lshl_b32 s67, s20, 6')
    e.I('s_lshl_b32 s38, s22, 2')
    e.I('s_add_u32 s67, s67, s38')
    e.I(f's_add_u32 s67, s67, {FLGOX}')
    e.I('s_lshl_b32 s38, s20, 5')
    e.I('s_add_u32 s38, s38, s24')
    e.I('s_lshl_b32 s38, s38, 2')
    e.I('v_mov_b32 v6, s38')
    e.I('v_mov_b32 v4, 0')
    e.I('v_mov_b32 v5, v2')
    def dma(sn):
        e.I(f's_and_b32 s55, {sn}, {RD-1}')
        e.I(f's_mul_i32 s55, s55, {SEG_QX}')
        e.I('s_add_u32 s55, s55, s63')
        e.I(f's_and_b32 s56, {sn}, 1')
        e.I('s_mul_i32 s56, s56, 49152')
        e.I('s_add_u32 s56, s56, s62')
        for m in range(12):
            e.I(f's_add_u32 m0, s56, {m*1024}')
            e.I(f'buffer_load_dwordx4 v2, {WS}, s55 offen sc1 lds')
            if m < 11: e.I('s_add_u32 s55, s55, 1024')
    e.I('s_mov_b32 s30, 0')
    wait_flags(e, 4, 's67', 1, T0, 5, sleep=opt.xsleep)
    dma('s30')
    e.L(top)
    TS(e, 0)
    e.I('s_add_u32 s58, s30, 1')
    e.I('s_min_u32 s57, s58, 62')
    e.I('s_lshl_b32 s57, s57, 9')
    e.I('s_add_u32 s57, s57, s67')
    e.I('s_waitcnt vmcnt(0)')
    e.I(f'buffer_load_dword v{T0}, v4, {WS}, s57 offen sc1')

    e.I('s_cmp_eq_u32 s30, 0')
    e.I(f's_cbranch_scc1 {nof}')
    e.I('s_cmp_lg_u32 s59, 0')
    e.I(f's_cbranch_scc1 {nof}')
    pxflag()
    nof2 = e.lab('Lxm')
    e.I(f's_branch {nof2}')
    e.L(nof)
    for _ in range(2): e.I(f'buffer_load_dword v{T0+1}, v4, {WS}, s57 offen sc1')
    e.L(nof2)
    e.I('s_barrier')
    TS(e, 1)
    e.I(f's_mul_i32 s50, s30, {SEG_PX}')
    e.I('s_add_u32 s50, s50, s64')
    e.I('s_add_u32 s51, s50, 20480')
    e.I('s_mul_i32 s54, s30, 1280')
    e.I('s_add_u32 s54, s54, s66')
    e.I('s_and_b32 s53, s30, 3')
    e.I('s_lshl_b32 s53, s53, 10')
    e.I(f's_add_u32 s53, s53, {HINT}')
    e.I(f's_cmp_ge_u32 s30, {opt.cwarm}')
    e.I('s_cselect_b32 s60, 1, 0')
    e.I('s_cmp_eq_u32 s22, 0')
    e.I('s_cselect_b32 s60, s60, 0')
    e.I('s_mov_b32 s61, 0')
    TS(e, 2)
    PF = 6
    def rd(kk):
        hl, p = kk // 6, kk % 6
        for qt in range(2):
            e.I(f'ds_read_b128 {vr(OF + ((2*kk+qt) % 24)*4)}, v5 offset:{hl*12288 + (qt*6+p)*1024}')
    for kk in range(PF): rd(kk)
    for kk in range(24):
        nxt = min(24, kk + PF) - (kk + 1)
        e.I(f's_waitcnt lgkmcnt({2*nxt})')
        for qt in range(2):
            for b in range(2):
                d = vr(D + 4*(qt*2+b))
                e.I(f'{MFMA} {d}, {ar(96*b+4*kk)}, {vr(OF + ((2*kk+qt) % 24)*4)}, {0 if kk == 0 else d}')
        if kk + PF < 24: rd(kk + PF)
        if kk == 4:
            e.I('s_waitcnt vmcnt(2)')
            e.I(f'v_readfirstlane_b32 s59, v{T0}')
            e.I('s_cmp_eq_u32 s30, 62')
            e.I('s_cselect_b32 s59, 0, s59')
            e.I('s_cmp_eq_u32 s59, 0')
            e.I(f's_cbranch_scc1 {late}')
            dma('s58')
            e.L(late)
        if kk == 16: e.I(f'buffer_load_dword v{T0}, v4, {WS}, s57 offen sc1')
    sc = e.lab('Lxs')
    e.I('s_cmp_lg_u32 s59, 0')
    e.I(f's_cbranch_scc1 {sc}')
    e.I('s_cmp_eq_u32 s30, 62')
    e.I(f's_cbranch_scc1 {sc}')
    e.I('s_waitcnt vmcnt(0)')
    e.I(f'v_readfirstlane_b32 s59, v{T0}')
    e.I('s_cmp_eq_u32 s59, 0')
    e.I(f's_cbranch_scc1 {sc}')
    dma('s58')
    e.L(sc)
    for qt, so in enumerate(('s50', 's51')):
        for k in range(4): e.I(f'v_cvt_pk_bf16_f32 v{D+16+4*qt+k}, v{D+8*qt+2*k}, v{D+8*qt+2*k+1}')
        e.I(f'buffer_store_dwordx4 {vr(D+16+4*qt)}, v2, {WS}, {so} offen sc1')
    e.I('v_xor_b32 v5, 49152, v5')
    TS(e, 3)
    TSflush(e, 's30')
    e.I('s_cmp_eq_u32 s30, 62')
    e.I(f's_cbranch_scc1 {last}')
    e.I('s_cmp_lg_u32 s59, 0')
    e.I('s_mov_b32 s59, 0')
    e.I(f's_cbranch_scc1 {nxt_}')
    e.I(f'buffer_load_dword v{T0}, v4, {WS}, s57 offen sc1')
    e.I('s_waitcnt vmcnt(0)')
    e.I(f'v_readfirstlane_b32 s38, v{T0}')
    e.I('s_cmp_lg_u32 s38, 0')
    sl2 = e.lab('Lxq')
    e.I(f's_cbranch_scc1 {sl2}')
    pxflag()
    e.I('s_mov_b32 s59, 1')
    wait_flags(e, 4, 's57', 1, T0, 5, sleep=opt.xsleep)
    e.L(sl2)
    dma('s58')
    e.L(nxt_)
    e.I('s_mov_b32 s30, s58')
    e.I(f's_branch {top}')
    e.L(last)
    e.I('s_waitcnt vmcnt(0)')
    pxflag()
    e.I('s_endpgm')

def role_att(e):
    fl = ''
    KF, QF, VF = 0, 48, 96
    XPF = 16
    SA, SB, PA_, PB_ = 40, 48, 60, 64
    DO, OB = 72, 136
    T0 = 226
    C0, C1 = 232, 236
    ONE = 252
    e.I('s_sub_u32 s25, s21, 27')
    e.I('s_lshl_b32 s26, s20, 2')
    e.I('s_add_u32 s26, s26, s22')
    e.I(f's_mov_b32 s52, {SC_L2E:#x}'); e.I(f's_mov_b32 s53, {SC_L2E | 0x80000000:#x}')
    e.I(f'v_lshlrev_b32 v{ONE+1}, 2, v1')
    e.I('s_lshl_b32 s38, s22, 2')
    e.I(f'v_mov_b32 v{ONE+2}, s38')
    e.I(f'v_mov_b32 v{ONE}, 1')
    lane_ig(e, 14, 15)
    e.I(f'v_mov_b32 v3, {NEG_BIG:#x}')
    e.I('v_cmp_gt_u32 vcc, 32, v1')
    e.I(f'v_cndmask_b32 v{C0}, 0, v3, vcc')
    for k in range(1, 4): e.I(f'v_mov_b32 v{C0+k}, v{C0}')
    e.I('v_lshlrev_b32 v5, 2, v15')
    for r in range(4):
        e.I(f'v_add_u32 v6, {r}, v5')
        e.I('v_cmp_gt_u32 vcc, v6, v14')
        e.I(f'v_cndmask_b32 v{C1+r}, 0, v3, vcc')
    e.I('s_mul_i32 s58, s26, 6144')
    e.I('s_lshl_b32 s59, s22, 14')
    e.I('v_and_b32 v4, 3, v1')
    e.I('v_lshlrev_b32 v4, 8, v4')
    e.I('v_bfe_u32 v5, v1, 2, 3')
    e.I('v_lshl_add_u32 v5, v5, 4, v4')
    e.I('v_add_u32 v5, s59, v5')
    e.I('v_lshrrev_b32 v6, 2, v1')
    e.I('v_lshl_add_u32 v4, v6, 4, v4')
    e.I('v_add_u32 v4, s59, v4')
    wait_reg(e, T0)
    e.I('v_lshrrev_b32 v12, 2, v1')
    e.I('v_lshlrev_b32 v12, 8, v12')
    e.I('v_and_b32 v13, 3, v1')
    e.I('v_lshl_add_u32 v12, v13, 2, v12')
    e.I('s_lshl_b32 s38, s20, 4')
    e.I('v_add_u32 v12, s38, v12')
    e.I('s_lshl_b32 s60, s26, 6')
    e.I(f's_add_u32 s60, s60, {FLGQ}')
    e.I('s_cmp_lg_u32 s23, 0')
    e.I('s_cbranch_scc1 L_atts')
    for slow in (False, True):
        fl = ' sc1' if slow else ''
        if slow: e.L('L_atts')
        top = e.lab('Lat')
        e.I('s_mov_b32 s30, s25')
        e.L(top)
        TS(e, 0)
        e.I('s_max_u32 s51, s30, 2')
        e.I('s_lshl_b32 s51, s51, 11')
        e.I('s_add_u32 s51, s51, s60')
        e.I(f's_and_b32 s42, s30, {RD-1}')
        e.I(f's_mul_i32 s40, s42, {SEG_QX}')
        e.I('s_lshl_b32 s41, s58, 1')
        e.I('s_add_u32 s40, s40, s41')
        e.I(f's_mul_i32 s41, s42, {SEG_XP}')
        e.I('s_add_u32 s41, s41, s58')
        nbp = e.lab('Lab')
        e.I(f's_cmp_lt_u32 s30, {RD}')
        e.I(f's_cbranch_scc1 {nbp}')
        e.I(f's_sub_u32 s50, s30, {RD}')
        e.I('s_mul_i32 s50, s50, 1280')
        e.I(f's_add_u32 s50, s50, {FLGPX}')
        wait_flags(e, 12, 's50', 0xfffff, T0, 14, sleep=16)
        e.L(nbp)
        wait_flags(e, ONE + 1, 's51', 0xfff, T0, 6, sleep=opt.asleep)
        def loads(dst, n, sbase, add):
            e.I(f's_add_u32 s48, {sbase}, {add}')
            for q in range(n):
                if q and q % 4 == 0: e.I('s_add_u32 s48, s48, 4096')
                e.I(f'buffer_load_dwordx4 {dst(q)}, v2, {WS}, s48 offen offset:{(q%4)*1024} sc1')
        e.I(f's_add_u32 s48, s40, {VX}')
        for q in range(12):
            e.I(f's_add_u32 m0, s59, {q*1024}')
            e.I(f'buffer_load_dwordx4 v2, {WS}, s48 offen sc1 lds')
            e.I('s_add_u32 s48, s48, 1024')
        loads(lambda q: ar(KF + 4*q), 12, 's40', KX)
        loads(lambda q: ar(QF + 4*q), 12, 's40', QX)
        e.I('s_add_u32 s51, s30, 2')
        e.I('s_lshl_b32 s51, s51, 11')
        e.I('s_add_u32 s51, s51, s60')
        e.I('s_waitcnt vmcnt(24)')
        for T in range(12):
            for rt in range(2):
                e.I(f'ds_read_b64_tr_b16 {ar(VF+6*T+2+2*rt,2)}, v4 offset:{rt*6144 + (T>>1)*1024 + (T&1)*8}')
        e.I('s_waitcnt vmcnt(0)')
        for p in range(6):
            e.I(f'{MFMA} {vr(SA+4)}, {ar(KF+4*p)}, {ar(QF+4*p)}, {vr(C1) if p == 0 else vr(SA+4)}')
            e.I(f'{MFMA} {vr(SB+4)}, {ar(KF+4*p)}, {ar(QF+24+4*p)}, {0 if p == 0 else vr(SB+4)}')
            e.I(f'{MFMA} {vr(SB+8)}, {ar(KF+24+4*p)}, {ar(QF+24+4*p)}, {vr(C1) if p == 0 else vr(SB+8)}')
        wait_flags(e, ONE + 1, 's51', 0xfff, T0, 6, sleep=opt.asleep)
        TS(e, 1)
        loads(lambda q: vr(XPF + 4*q), 6, 's41', XP)
        e.I('s_lshr_b32 s42, s41, 1')
        e.I(f's_add_u32 s48, s42, {VM}')
        for q in range(3):
            e.I(f's_add_u32 m0, s59, {12288 + q*1024}')
            e.I(f'buffer_load_dwordx4 v2, {WS}, s48 offen sc1 lds')
            e.I('s_add_u32 s48, s48, 1024')
        for p in range(6):
            e.I(f's_waitcnt vmcnt({8-p})')
            e.I(f'{MFMA} {vr(SA)}, {vr(XPF+4*p)}, {ar(QF+4*p)}, {vr(C0) if p == 0 else vr(SA)}')
            e.I(f'{MFMA} {vr(SB)}, {vr(XPF+4*p)}, {ar(QF+24+4*p)}, {vr(C0) if p == 0 else vr(SB)}')
        TS(e, 2)
        e.I('s_waitcnt vmcnt(0)')
        for T in range(12):
            kk = T >> 1
            e.I(f'ds_read_b64_tr_b16 {ar(VF+6*T,2)}, v5 offset:{12288 + (kk % 3)*1024 + (kk // 3)*128 + (T&1)*8}')
        for x_ in softmax_list(SA, 8, PA_, T0): e.I(x_)
        e.I(f's_add_u32 s48, s40, {OX}')
        e.I('s_add_u32 s49, s48, 4096')
        e.I('s_add_u32 s50, s48, 8192')
        e.I('s_waitcnt lgkmcnt(0)')
        def fin(qt, p):
            d = DO + 8 * (p + (2 if qt else 0) * 3) % 64; o = OB + 4 * (qt*6 + p); q = qt*6 + p
            return [f'v_cvt_pk_bf16_f32 v{o+k}, v{d+2*k}, v{d+2*k+1}' for k in range(4)] + \
                   [f'buffer_store_dwordx4 {vr(o)}, v2, {WS}, {("s48", "s49", "s50")[q//4]} offen offset:{(q%4)*1024}{fl}']
        smb = softmax_list(SB, 12, PB_, T0)
        for T in range(12):
            e.I(f'{MFMA} {vr(DO+4*T)}, {ar(VF+6*T)}, {vr(PA_)}, 0')
            for _ in range(3): e.I(smb.pop(0))
        outs = [x_ for p in range(6) for x_ in fin(0, p)]
        while smb:
            e.I(smb.pop(0)); e.I(smb.pop(0)) if smb else None
            if outs: e.I(outs.pop(0))
        for x_ in outs: e.I(x_)
        for p in range(6):
            d = DO + 8 * (p + 6) % 64
            for t in range(2): e.I(f'{MFMA16} {vr(d+4*t)}, {ar(VF+6*(2*p+t),2)}, {vr(PB_,2)}, 0')
            for t in range(2): e.I(f'{MFMA} {vr(d+4*t)}, {ar(VF+6*(2*p+t)+2)}, {vr(PB_+2)}, {vr(d+4*t)}')
            if p > 1:
                for x_ in fin(1, p - 2): e.I(x_)
        for p in (4, 5):
            for x_ in fin(1, p): e.I(x_)
        e.I('s_lshl_b32 s50, s30, 3')
        e.I('s_add_u32 s50, s50, s20')
        e.I('s_lshl_b32 s50, s50, 6')
        e.I(f's_add_u32 s50, s50, {FLGOX}')
        e.I('s_waitcnt vmcnt(0)')
        set_flag(e, ONE + 2, 's50', ONE, fl)
        TS(e, 3)
        TSflush(e, 's30', 230, 231)
        e.I('s_add_u32 s30, s30, 2')
        e.I('s_cmp_lt_u32 s30, 64')
        e.I(f's_cbranch_scc1 {top}')
        e.I('s_endpgm')

F_LX, F_LH = 0, 98304
def role_ffn(e):
    ACC2 = 0
    ACC1 = 16
    BF = 48
    HP = 80
    WR = 96
    NW = 40
    e.I('s_sub_u32 s26, s21, 29')
    e.I('s_mul_i32 s25, s20, 3')
    e.I('s_add_u32 s26, s26, s25')
    e.I('s_mov_b32 s24, s26')
    srd(e, 8, 56, 640 * 3072); srd(e, 12, 58, 1536 * 1280)
    if opt.xlate & 4: wait_first(e, 16)
    transpose_w(e, 's26')
    e.I('s_waitcnt vmcnt(0)')
    e.I('s_barrier')
    count_up(e, 3, D_TR)
    wait_count(e, 3, D_TR, 24, 16)
    if opt.urg: wait_count(e, 3, D_W, 80, 16)
    wait_reg(e, 16, 32)
    e.L('L_ffn_task')
    e.I('s_lshl_b32 s38, s24, 2')
    e.I('s_add_u32 s38, s38, s22')
    e.I('s_mul_i32 s39, s38, 20480')
    e.I(f's_add_u32 s39, s39, {XN}')
    e.I('s_mul_i32 s40, s22, 20480')
    for m in range(20):
        e.I(f's_add_u32 m0, s40, {m*1024}')
        e.I(f'buffer_load_dwordx4 v2, {WS}, s39 offen lds')
        e.I('s_add_u32 s39, s39, 1024')
    for k in range(160): e.I(f'v_accvgpr_write_b32 a{k}, 0')
    e.I('s_mul_i32 s41, s22, 40960')
    e.I(f's_add_u32 s41, s41, {W1F}')
    e.I(f's_mul_i32 s42, s22, {10*48*1024}')
    e.I(f's_add_u32 s42, s42, {W2F}')
    e.I('v_add_u32 v3, 20480, v2')
    for u in range(10):
        e.I(f's_mov_b32 s54, {u*48*1024}')
        e.I(f'v_add_u32 v{4+u}, s54, v2')
    e.I(f'v_add_u32 v14, {F_LH}, v2')
    e.I('s_lshl_b32 s38, s22, 12')
    e.I('v_add_u32 v15, s38, v14')
    def wload(idx, adv):
        dst = vr(WR + (idx % NW) * 4)
        if idx < 40:
            kk, u = idx // 2, idx % 2
            e.I(f's_add_u32 s45, {adv[0]}, {(kk//4)*4096}')
            e.I(f'buffer_load_dwordx4 {dst}, v{2+u}, {WS}, s45 offen offset:{(kk%4)*1024}{" nt" if opt.ffnnt else ""}')
        else:
            pp, u = (idx - 40) // 10, (idx - 40) % 10
            e.I(f'buffer_load_dwordx4 {dst}, v{4+u}, {WS}, {adv[1]} offen offset:{pp*1024}{" nt" if opt.ffnnt else ""}')
    for idx in range(NW - 2): wload(idx, ('s41', 's42'))
    e.I(f's_waitcnt vmcnt({NW-2})')
    e.I('s_barrier')
    top = e.lab('Lft')
    TS(e, 0)
    e.I('s_mov_b32 s30, 0')
    e.L(top)
    e.I('s_cmp_lt_u32 s30, 11')
    e.I('s_cselect_b32 s46, 163840, 0')
    e.I('s_cselect_b32 s47, 4096, 0')
    e.I('s_add_u32 s43, s41, s46')
    e.I('s_add_u32 s44, s42, s47')
    D = NW - 2
    def pref(idx):
        j = idx + D
        if j < 80: wload(j, ('s41', 's42'))
        else: wload(j - 80, ('s43', 's44'))
    def rdx(kk):
        for rt in range(4):
            e.I(f'ds_read_b128 {vr(BF + ((kk%2)*4+rt)*4)}, v{2 if rt < 3 else 3} offset:{(rt if rt < 3 else 2)*20480 + kk*1024}')
    rdx(0)
    for kk in range(20):
        if kk + 1 < 20: rdx(kk + 1)
        e.I(f's_waitcnt vmcnt({D-2}) lgkmcnt({4 if kk+1 < 20 else 0})')
        for u in range(2):
            idx = 2 * kk + u
            for rt in range(4):
                d = vr(ACC1 + (u*4+rt)*4)
                e.I(f'{MFMA} {d}, {vr(WR+(idx%NW)*4)}, {vr(BF+((kk%2)*4+rt)*4)}, {0 if kk == 0 else d}')
        pref(2 * kk); pref(2 * kk + 1)
    for rt in range(4):
        for u in range(2):
            d = ACC1 + (u*4+rt)*4
            for k in range(4): e.I(f'v_max_f32 v{d+k}, 0, v{d+k}')
            e.I(f'v_cvt_pk_bf16_f32 v{HP+rt*4+2*u}, v{d}, v{d+1}')
            e.I(f'v_cvt_pk_bf16_f32 v{HP+rt*4+2*u+1}, v{d+2}, v{d+3}')
        e.I(f'ds_write_b128 v15, {vr(HP+rt*4)} offset:{rt*1024}')
    e.I('s_waitcnt lgkmcnt(0)')
    e.I('s_barrier')
    def rdh(pp):
        for rt in range(4):
            e.I(f'ds_read_b128 {vr(BF + ((pp%2)*4+rt)*4)}, v14 offset:{pp*4096 + rt*1024}')
    rdh(0)
    for pp in range(4):
        if pp + 1 < 4: rdh(pp + 1)
        for u in range(10):
            idx = 40 + pp * 10 + u
            w = f's_waitcnt vmcnt({D-1})'
            if u == 0: w += f' lgkmcnt({4 if pp+1 < 4 else 0})'
            e.I(w)
            for rt in range(4):
                d = ar(ACC2 + (u*4+rt)*4)
                e.I(f'{MFMA} {d}, {vr(WR+(idx%NW)*4)}, {vr(BF+((pp%2)*4+rt)*4)}, {d}')
            pref(idx)
    e.I('v_xor_b32 v14, 16384, v14')
    e.I('v_xor_b32 v15, 16384, v15')
    e.I('s_mov_b32 s41, s43')
    e.I('s_mov_b32 s42, s44')
    e.I('s_add_u32 s30, s30, 1')
    e.I('s_cmp_lt_u32 s30, 12')
    e.I(f's_cbranch_scc1 {top}')
    e.I('s_waitcnt vmcnt(0)')
    TS(e, 1)
    e.I('v_lshlrev_b32 v3, 3, v1')
    e.I(f's_mul_i32 s38, s24, {4*40*512}')
    e.I(f's_mul_i32 s39, s22, {10*512}')
    e.I('s_add_u32 s38, s38, s39')
    e.I(f's_add_u32 s38, s38, {G_}')
    e.I(f's_mov_b32 s52, {f2u(-1.4426950408889634):#x}')
    for rt in range(4):
        e.I(f's_add_u32 s39, s38, {rt*40*512}')
        e.I('s_add_u32 s40, s39, 4096')
        for u in range(10):
            t = 16 + ((rt*10+u) % 4) * 16
            a0 = ACC2 + (u*4+rt)*4
            for k in range(4): e.I(f'v_accvgpr_read_b32 v{t+k}, a{a0+k}')
            e.I(f'v_cvt_pk_bf16_f32 v{t+4}, v{t}, v{t+1}')
            e.I(f'v_cvt_pk_bf16_f32 v{t+5}, v{t+2}, v{t+3}')
            e.I(f'v_lshlrev_b32 v{t}, 16, v{t+4}')
            e.I(f'v_and_b32 v{t+1}, 0xffff0000, v{t+4}')
            e.I(f'v_lshlrev_b32 v{t+2}, 16, v{t+5}')
            e.I(f'v_and_b32 v{t+3}, 0xffff0000, v{t+5}')
            for k in range(4): e.I(f'v_mul_f32 v{t+4+k}, s52, v{t+k}')
            for k in range(4): e.I(f'v_exp_f32 v{t+4+k}, v{t+4+k}')
            for k in range(4): e.I(f'v_add_f32 v{t+4+k}, 1.0, v{t+4+k}')
            for k in range(4): e.I(f'v_rcp_f32 v{t+4+k}, v{t+4+k}')
            for k in range(4): e.I(f'v_mul_f32 v{t+k}, v{t+k}, v{t+4+k}')
            e.I(f'v_cvt_pk_bf16_f32 v{t+8}, v{t}, v{t+1}')
            e.I(f'v_cvt_pk_bf16_f32 v{t+9}, v{t+2}, v{t+3}')
            e.I(f'buffer_store_dwordx2 {vr(t+8,2)}, v3, {WS}, {"s39" if u < 8 else "s40"} offen offset:{(u%8)*512} sc1')
    e.I('s_waitcnt vmcnt(0)')
    TS(e, 2)
    if opt.ts: e.I('s_lshr_b32 s50, s24, 3'); e.I('s_add_u32 s50, s50, 64')
    TSflush(e, 's50')
    e.I('s_barrier')
    e.I('s_cmp_lg_u32 s22, 0')
    e.I('s_cbranch_scc1 L_ffn_nf')
    e.I('v_mov_b32 v4, 1')
    e.I('s_lshl_b32 s38, s24, 2')
    e.I('v_mov_b32 v5, s38')
    e.I(f's_mov_b32 s39, {FLGG}')
    set_flag(e, 5, 's39', 4, ' sc1')
    e.I('s_waitcnt vmcnt(0)')
    e.L('L_ffn_nf')
    e.I('s_cmp_ge_u32 s26, 8')
    e.I(f's_cbranch_scc1 {"L_end" if opt.nocmb else "L_cmb"}')
    e.I('s_add_u32 s24, s24, 24')
    e.I('s_cmp_lt_u32 s24, 32')
    e.I('s_cbranch_scc1 L_ffn_task')
    e.I('s_endpgm')

def role_cmb(e):
    PXR = 16
    GR = 144
    XR_ = 152
    T0 = 160
    srd(e, 8, 68, 2048 * 1280)
    srd(e, 12, 70, 2048 * 1280)
    e.I('s_sub_u32 s24, s26, 8')
    e.I('s_lshl_b32 s24, s24, 2')
    e.I('s_add_u32 s30, s24, s22')
    e.I('v_lshlrev_b32 v3, 2, v1')
    e.I('v_lshlrev_b32 v4, 3, v1')
    e.I('v_mov_b32 v6, 0')
    lane_ig(e, 14, 15)
    e.I('v_mul_u32_u24 v5, 1280, v14')
    e.I('v_lshl_add_u32 v5, v15, 3, v5')
    e.I('s_mov_b32 s49, 0')
    e.I('s_mov_b32 s52, 0x3f80'); e.I('s_mov_b32 s53, 0x3f800000')
    e.I('v_lshrrev_b32 v7, 4, v1')
    e.I('v_mul_u32_u24 v7, 40960, v7')
    e.I('v_lshl_add_u32 v7, v14, 7, v7')
    e.I(f'v_add_u32 v8, {4*40960}, v7')
    if opt.t63:
        e.I('s_add_u32 s38, s30, 1216')
        e.I('s_mul_i32 s39, s38, 3277')
        e.I('s_lshr_b32 s39, s39, 16')
        e.I('s_mul_i32 s40, s39, 20')
        e.I('s_sub_u32 s40, s38, s40')
        e.I(f's_mul_i32 s43, s39, {SEG_PX}')
        e.I('s_lshl_b32 s40, s40, 11')
        e.I('s_add_u32 s43, s43, s40')
        e.I(f's_add_u32 s43, s43, {PX}')
        for k in range(2): e.I(f'buffer_load_dword v{T0}, v{7+k}, {WS}, s43 offen sc1')
    top = e.lab('Lct')
    e.L(top)
    TS(e, 0)
    e.I('s_mul_i32 s38, s30, 3277')
    e.I('s_lshr_b32 s38, s38, 16')
    e.I('s_mul_i32 s39, s38, 20')
    e.I('s_sub_u32 s39, s30, s39')
    e.I('s_cmp_ge_u32 s39, 10')
    e.I('s_cselect_b32 s40, 1, 0')
    e.I('s_mul_i32 s41, s40, 10')
    e.I('s_sub_u32 s41, s39, s41')
    gok = e.lab('Lcg')
    e.I('s_cmp_lg_u32 s49, 0')
    e.I(f's_cbranch_scc1 {gok}')
    e.I(f's_mov_b32 s42, {FLGG}')
    e.I('s_mov_b32 exec_hi, 0')
    e.I(f'buffer_load_dword v{T0}, v3, {WS}, s42 offen sc1')
    e.I('s_waitcnt vmcnt(0)')
    e.I(f'v_cmp_eq_u32 vcc, 0, v{T0}')
    e.I('s_mov_b64 exec, -1')
    e.I('s_cmp_eq_u32 vcc_lo, 0')
    e.I('s_cselect_b32 s49, 1, 0')
    e.I(f's_cbranch_scc1 {gok}')
    e.I('s_lshr_b32 s42, s38, 1')
    e.I('s_lshl_b32 s42, s42, 2')
    e.I(f's_add_u32 s42, s42, {FLGG}')
    wait_flags(e, 6, 's42', 1, T0, 7, sleep=32)
    e.L(gok)
    e.I(f's_mul_i32 s43, s38, {SEG_PX}')
    e.I('s_mul_i32 s44, s40, 20480')
    e.I('s_add_u32 s43, s43, s44')
    e.I('s_lshl_b32 s44, s41, 11')
    e.I('s_add_u32 s43, s43, s44')
    e.I(f's_add_u32 s43, s43, {PX}')
    e.I('s_lshl_b32 s45, s38, 1')
    e.I('s_add_u32 s45, s45, s40')
    e.I('s_mul_i32 s46, s45, 20480')
    e.I('s_lshr_b32 s47, s41, 1')
    e.I('s_lshl_b32 s47, s47, 2')
    e.I('s_and_b32 s48, s41, 1')
    e.I('s_add_u32 s44, s47, s48')
    e.I('s_lshl_b32 s47, s44, 10')
    e.I('s_add_u32 s47, s47, s46')
    e.I(f's_add_u32 s47, s47, {G_}')
    e.I('s_lshl_b32 s48, s44, 6')
    e.I('s_add_u32 s48, s48, s46')
    TO = (0, 4, 1, 5)
    for t in range(4):
        e.I(f'buffer_load_dwordx2 {vr(GR+2*t,2)}, v4, {WS}, s47 offen offset:{TO[t]*512} sc1')
        e.I(f'buffer_load_dwordx2 {vr(XR_+2*t,2)}, v5, s[8:11], s48 offen offset:{TO[t]*32}')
    c1, c2 = e.lab('Lc1'), e.lab('Lc2')
    e.I('s_mul_i32 s50, s38, 10')
    e.I('s_and_b32 s44, s41, 14')
    e.I('s_add_u32 s50, s50, s44')
    e.I('s_lshl_b32 s50, s50, 7')
    e.I(f's_add_u32 s50, s50, {FLGPX}')
    e.I(f's_cmp_ge_u32 s38, {opt.cwarm}')
    e.I(f's_cbranch_scc1 {c1}')
    e.I(f's_add_u32 s42, s38, {opt.clag}')
    e.I('s_lshl_b32 s42, s42, 3')
    e.I('s_add_u32 s42, s42, s20')
    e.I('s_lshl_b32 s42, s42, 6')
    e.I(f's_add_u32 s42, s42, {FLGOX}')
    wait_flags(e, 6, 's42', 1, T0, 9, sleep=opt.lsleep)
    wait_flags(e, 3, 's50', -1, T0, 8, sleep=opt.csleep)
    e.I(f's_branch {c2}')
    e.L(c1)
    e.I('s_and_b32 s42, s38, 3')
    e.I('s_lshl_b32 s42, s42, 3')
    e.I('s_add_u32 s42, s42, s20')
    e.I('s_lshl_b32 s42, s42, 7')
    e.I('s_lshl_b32 s44, s44, 1')
    e.I('s_add_u32 s42, s42, s44')
    e.I(f's_add_u32 s42, s42, {HINT}')
    e.I('s_mul_i32 s51, s20, 5')
    e.I('s_lshr_b32 s44, s41, 1')
    e.I('s_add_u32 s51, s51, s44')
    e.I('s_lshl_b32 s51, s51, 7')
    e.I(f's_add_u32 s51, s51, {HINT2}')
    e.I('s_cmp_eq_u32 s38, 63')
    e.I('s_cselect_b32 s42, s51, s42')
    wait_flags(e, 6, 's42', 1, T0, 9, sleep=2)
    e.I('s_cmp_eq_u32 s38, 63')
    e.I(f's_cbranch_scc1 {c2}')
    wait_flags(e, 3, 's50', -1, T0, 8, sleep=opt.c2sleep)
    e.L(c2)
    TS(e, 1)
    RAW = PXR + 32
    def ld(x):
        for t in range(2):
            if not opt.cdiag & 4: e.I(f'buffer_load_dwordx4 {vr(RAW+(x*2+t)*4)}, v2, {WS}, s43 offen offset:{t*1024} sc1')
        if x < 7: e.I('s_add_u32 s43, s43, 40960')
    def body(depth):
        for x in range(min(depth, 8)): ld(x)
        for x in range(8):
            left = min(depth - 1, 7 - x)
            e.I(f's_waitcnt vmcnt({left*2})')
            if x + depth < 8: ld(x + depth)
            for k in range(16): e.I(f'v_dot2c_f32_bf16 v{PXR+k}, {("s52", "s53")[k&1]}, v{RAW+x*8+(k>>1)}')
        e.I('s_nop 2')
    for k in range(16): e.I(f'v_mov_b32 v{PXR+k}, 0')
    fast, join = e.lab('Lcf'), e.lab('Lcj')
    e.I('s_cmp_ge_u32 s38, 61')
    e.I(f's_cbranch_scc1 {fast}')
    body(opt.cdepth)
    e.I(f's_branch {join}')
    e.L(fast)
    f2, pl_, pk_ = e.lab('Lcg'), e.lab('Lcp'), e.lab('Lck')
    e.I('s_cmp_lg_u32 s38, 63')
    e.I(f's_cbranch_scc1 {f2}')
    e.I(f's_mov_b32 s31, {TMO}')
    e.I('s_mov_b32 s51, s43')
    e.L(pl_)
    e.I('s_mov_b32 s43, s51')
    for x in range(8): ld(x)
    e.I('s_waitcnt vmcnt(0)')
    check_sent(e, range(RAW, RAW + 64), T0, T0 + 1)
    e.I(f's_cbranch_vccz {pk_}')
    e.I('s_sub_u32 s31, s31, 1')
    e.I(f's_cbranch_scc0 {pl_}')
    e.I('s_mov_b32 s31, 8')
    e.I('s_branch L_fail')
    e.L(pk_)
    for x in range(8):
        for k in range(16): e.I(f'v_dot2c_f32_bf16 v{PXR+k}, {("s52", "s53")[k&1]}, v{RAW+x*8+(k>>1)}')
    e.I('s_nop 2')
    e.I(f's_branch {join}')
    e.L(f2)
    body(8)
    e.L(join)
    TS(e, 3)
    for t in range(4):
        b = PXR + 4 * t; u = T0 + 8 * (t % 2)
        e.I(f'v_cvt_pk_bf16_f32 v{u}, v{b}, v{b+1}')
        e.I(f'v_cvt_pk_bf16_f32 v{u+1}, v{b+2}, v{b+3}')
        for h_ in range(2):
            e.I(f'v_lshlrev_b32 v{b+2*h_}, 16, v{u+h_}')
            e.I(f'v_and_b32 v{b+2*h_+1}, 0xffff0000, v{u+h_}')
            e.I(f'v_lshlrev_b32 v{u+2+2*h_}, 16, v{GR+2*t+h_}')
            e.I(f'v_and_b32 v{u+3+2*h_}, 0xffff0000, v{GR+2*t+h_}')
        for k in range(4): e.I(f'v_mul_f32 v{b+k}, v{b+k}, v{u+2+k}')
        e.I(f'v_cvt_pk_bf16_f32 v{u}, v{b}, v{b+1}')
        e.I(f'v_cvt_pk_bf16_f32 v{u+1}, v{b+2}, v{b+3}')
        for h_ in range(2):
            e.I(f'v_lshlrev_b32 v{b+2*h_}, 16, v{u+h_}')
            e.I(f'v_and_b32 v{b+2*h_+1}, 0xffff0000, v{u+h_}')
            e.I(f'v_lshlrev_b32 v{u+2+2*h_}, 16, v{XR_+2*t+h_}')
            e.I(f'v_and_b32 v{u+3+2*h_}, 0xffff0000, v{XR_+2*t+h_}')
        for k in range(4): e.I(f'v_add_f32 v{b+k}, v{b+k}, v{u+2+k}')
        e.I(f'v_cvt_pk_bf16_f32 v{u+6}, v{b}, v{b+1}')
        e.I(f'v_cvt_pk_bf16_f32 v{u+7}, v{b+2}, v{b+3}')
        if not opt.cdiag & 8: e.I(f'buffer_store_dwordx2 {vr(u+6,2)}, v5, s[12:15], s48 offen offset:{TO[t]*32}')
    TS(e, 2)
    if opt.ts: e.I('s_lshr_b32 s50, s30, 6')
    TSflush(e, 's50')
    e.I('s_add_u32 s30, s30, 64')
    e.I('s_cmp_lt_u32 s30, 1280')
    e.I(f's_cbranch_scc1 {top}')
    DSTAMP(e, 5)
    e.I(f's_cmp_lg_u32 s30, {1279 + 64}')
    e.I('s_cbranch_scc1 L_end')
    e.I('s_mov_b32 exec_hi, 0xffff')
    e.I(f'global_store_dword v3, v6, s[74:75] offset:{D_TR} sc1')
    e.I('s_endpgm')

def gen_mainkernel(e):
    kernel_head(e, MAIN)
    e.I('s_cmp_ge_u32 s2, 256')
    e.I('s_cbranch_scc1 L_end')
    e.I('s_load_dwordx2 s[32:33], s[0:1], 96')
    e.I('s_load_dwordx4 s[60:63], s[0:1], 16')
    e.I('s_load_dwordx4 s[64:67], s[0:1], 32')
    e.I('s_load_dwordx4 s[52:55], s[0:1], 0')
    e.I('s_load_dwordx4 s[56:59], s[0:1], 64')
    e.I('s_load_dwordx4 s[72:75], s[0:1], 80')
    TS(e, 0)
    e.I('s_getreg_b32 s24, hwreg(HW_REG_XCC_ID)')
    e.I('v_and_b32 v1, 63, v0')
    e.I('v_lshlrev_b32 v2, 4, v1')
    e.I('v_lshrrev_b32 v3, 6, v0')
    e.I('v_readfirstlane_b32 s22, v3')
    if opt.cwarm2:
        e.I('s_getpc_b64 s[34:35]')
        e.L('L_pc')
        e.I('s_lshr_b32 s36, s2, 3')
        e.I('s_lshl_b32 s36, s36, 2')
        e.I('v_add_u32 v3, s36, v3')
        e.I(f'v_mul_u32_u24 v3, {opt.cwarm2}, v3')
        e.I(f'v_min_u32 v4, {opt.cwarm2 - 1}, v1')
        e.I('v_add_u32 v3, v3, v4')
        e.I('v_lshlrev_b32 v3, 7, v3')
        e.I('v_min_u32 v3, L_last-L_pc, v3')
        e.I('v_mov_b32 v5, s35')
        e.I('v_add_co_u32 v4, vcc, s34, v3')
        e.I('v_addc_co_u32 v5, vcc, 0, v5, vcc')
        e.I('global_load_dword v255, v[4:5], off')
    if opt.force_slow:
        e.I('s_lshr_b32 s20, s2, 5'); e.I('s_and_b32 s21, s2, 31')
    else:
        e.I('s_and_b32 s20, s2, 7'); e.I('s_lshr_b32 s21, s2, 3')
    e.I('s_and_b32 s24, s24, 15')
    e.I('s_lshl_b32 s96, s20, 4')
    e.I('s_and_b32 s25, s24, 12')
    e.I('s_add_u32 s96, s96, s25')
    e.I('s_and_b32 s25, s24, 3')
    e.I('s_lshl_b32 s25, s25, 3')
    e.I('s_lshl_b32 s97, 1, s25')
    e.I('s_waitcnt lgkmcnt(0)')
    e.I('s_mov_b64 s[70:71], s[72:73]')
    e.I('s_mov_b64 s[68:69], s[52:53]')
    srd(e, 4, 32, WS_BYTES)
    TS(e, 1)
    TSflush(e, '70')
    DSTAMP(e, 0, 's_cmp_eq_u32 s22, 0', 'neg')
    DSTAMP(e, 1, 's_cmp_eq_u32 s22, 0')
    e.I('s_cmp_ge_u32 s21, 22'); e.I('s_cbranch_scc1 L_help')
    e.I('s_sub_u32 s24, s21, 12')
    if opt.urg: e.I('s_cmp_lt_u32 s24, 2')
    else: e.I('s_cmp_eq_u32 s24, 1')
    e.I('s_cbranch_scc1 L_urg')
    register(e, 3, 4)
    e.I('s_cmp_ge_u32 s21, 12'); e.I('s_cbranch_scc1 L_wo')
    role_qkv(e)
    e.L('L_urg')
    srd(e, 8, 52, 2048 * 1280); srd(e, 12, 54, 8 * 1280)
    e.I('s_cmp_lg_u32 s24, 0')
    e.I('s_cbranch_scc1 L_um')
    ln_addr(e)
    e.I('s_mul_i32 s25, s20, 20480')
    ln_load(e, 16, 's25')
    e.I('s_waitcnt vmcnt(0)')
    ln_compute(e, 16, 's25')
    e.I('s_branch L_ur')
    e.L('L_um')
    mem0_copy(e, None, 0)
    e.I('s_mul_i32 s41, s20, 10240')
    e.I(f's_add_u32 s41, s41, {MEM}')
    e.I('s_waitcnt vmcnt(0)')
    mem0_copy(e, 's41', 1)
    e.L('L_ur')
    e.I('s_waitcnt vmcnt(0)')
    e.I('s_barrier')
    register(e, 3, 4)
    e.L('L_wo'); role_sw(e)
    e.L('L_help')
    srd(e, 8, 52, 2048 * 1280)
    e.I('s_mul_i32 s24, s20, 10')
    e.I('s_add_u32 s24, s24, s21')
    e.I('s_sub_u32 s24, s24, 22')
    if opt.urg: init_fill(e, 's24', 80)
    ln_addr(e)
    e.I('s_mul_i32 s25, s24, 20480')
    if opt.urg: e.I(f's_add_u32 s25, s25, {8*20480}')
    e.I(f's_add_u32 s26, s25, {80*20480}')
    ln_load(e, 16, 's25')
    ln_load(e, 36, 's26')
    if opt.urg:
        e.I('s_waitcnt vmcnt(10)')
        e.I('s_barrier')
        register(e, 3, 4)
    else: init_fill(e, 's24', 80)
    e.I('s_waitcnt vmcnt(0)')
    ln_compute(e, 16, 's25')
    e.I(f's_cmp_ge_u32 s24, {40 if opt.urg else 48}')
    e.I('s_cbranch_scc1 L_hl')
    ln_compute(e, 36, 's26')
    e.L('L_hl')
    e.I('s_waitcnt vmcnt(0)')
    e.I('s_barrier')
    if opt.urg: count_up(e, 3, D_W)
    else: register(e, 3, 4)
    TS(e, 0)
    TSflush(e, '69')
    if opt.touch2:
        wait_reg(e, 16, opt.rsleep)
        e.I('s_sub_u32 s24, s21, 22')
        e.I('s_lshl_b32 s25, s20, 2')
        e.I('s_add_u32 s25, s25, s22')
        touch_jobs(e, [(XN + k * 40960, 10240, 40) for k in range(3)] + [(XN + k * 40960 + 5120, 10240, 40) for k in range(3)], 's24', 10, 's22', 18)
        jobs = []
        for sl in range(4): jobs += [(MEM + sl * MEM_SLOT, 2560, 20), (XR + sl * XR_SLOT, 6144, 48), (VR + sl * VR_SLOT, 3072, 24)]
        touch_jobs(e, jobs[::-1][:4] + jobs[:8], 's24', 10, 's25', 24, 6)
    e.I('s_cmp_ge_u32 s21, 29'); e.I('s_cbranch_scc1 L_ffn')
    e.I('s_cmp_lt_u32 s21, 27'); e.I('s_cbranch_scc1 L_xw')
    role_att(e)
    e.L('L_xw'); role_xw(e)
    e.L('L_ffn'); role_ffn(e)
    e.L('L_cmb'); role_cmb(e)
    e.L('L_fail')
    e.I('s_mov_b64 exec, 1')
    e.I('s_lshl_b32 s31, s31, 2')
    e.I('v_mov_b32 v3, s31')
    e.I('v_mov_b32 v4, 1')
    e.I('global_atomic_add v3, v4, s[74:75]')
    e.L('L_end')
    e.L('L_last')
    e.I('s_endpgm')

def build(path):
    for k in range(3): NT[k] = ' nt' if opt.pnt >> k & 1 else ''
    hdr = open('cdna_kernels/' + NAME + '.s.ref').read().split('\n')
    e = Em()
    for l in hdr:
        if l.startswith(';') and '@launch' not in l and 'Override launch' not in l and 'grid=ceil' not in l: e.raw(l)
    e.raw(f'; @launch grid=(256,1,1) block=(256,1,1) lds=163840')
    e.raw('.amdgcn_target "amdgcn-amd-amdhsa--gfx950"')
    gen_mainkernel(e)
    kernel_desc(e, MAIN, 512, 100, 256)
    lines, added = hazard.pad(e.lines)
    open(path, 'w').write('\n'.join(lines) + '\n')
    n = sum(1 for l in lines if l.startswith('    ') and not l.strip().startswith(';'))
    print(f'wrote {path}: {n} instructions, {added} nops added')

if __name__ == '__main__':
    out = sys.argv[1] if len(sys.argv) > 1 else 'cdna_kernels/' + NAME + '.s'
    if 'slow' in sys.argv[2:]: opt.force_slow = True
    if 'ts' in sys.argv[2:]: opt.ts = True
    for k in ('nobg', 'ackpoll', 'noxw'):
        if k in sys.argv[2:]: setattr(opt, k, True)
    for a_ in sys.argv[2:]:
        if '=' in a_: k_, v_ = a_.split('='); setattr(opt, k_, int(v_))
    build(out)
```

```python
import sys, struct
from asmlib import *
from layout import *
import hazard
from gen_pre import *

NAME = 'recurrent_scan__memory_aug_recurrent_mem_tr__dense_activation_relu__prompt'
MAIN = NAME + '_kernel'
PRE = 'prep_kernel'
LDS_TOTAL = 131072
LDS_ROLE = 131072
TMO = 1 << 18
def f2u(x): return struct.unpack('<I', struct.pack('<f', x))[0]
SC_L2E = f2u(192 ** -0.5 * 1.4426950408889634)
NEG_BIG = f2u(-1e30)
MFMA = 'v_mfma_f32_16x16x32_bf16'
MFMA16 = 'v_mfma_f32_16x16x16_bf16'
SMF = 'v_smfmac_f32_16x16x64_bf16'
WS = 's[4:7]'
WFL = ['', ' nt', ' sc1', ' sc0 sc1', ' sc1 nt', ' sc0 sc1 nt']

class Opt:
    force_slow = False
    ts = False
    nobg = False
    ackpoll = False
    noxw = False
    pdelay = 0
    vdelay = 0
    kbar = 0
    kpre = 12
    kin = 12
    fresh = 0
    pdiag = 0
    pflip = 0
    touch = 1
    nofc = 0
    nopx = 0
    nocmb = 0
    cdepth = 1
    ffnnt = 0
    pr = 1
    pfar = 0
    vpre = 2
    vmpos = 2
    smpre = 1
    smgap = 2
    ldgap = 4
    kp = 0
    kcs = 0
    kce = 12
    xlate = 5
    csleep = 8
    cwarm = 61
    c2sleep = 4
    clag = 2
    lsleep = 8
    xsleep = 2
    asleep = 2
    cdiag = 0
    dstamp = 0
    hwv = 7
    t63 = 1
    esleep = 1
    tpos = 0
    pmf = 7
    pmf2 = 5
    urg = 0
    rsleep = 16
    cwarm2 = 0
    tord = 0
    pfs = 0
    swlate = 1
    fpos = 11
    heads = 1
    hdelay = 0
    wnb = 3
    wrows = 320
    touch2 = 1
    pnt = 1
    wnt = 1
    wthr = 64
    xpf = 10
    xdma0 = 10
    xdmas = 1
    pbf = 1
    rpos = 2
    mbar = 1
    pspin = 0
    nobulk = 0
opt = Opt()

def vr(i, n=4): return f'v[{i}:{i+n-1}]'
def ar(i, n=4): return f'a[{i}:{i+n-1}]'

def maxchain(e, dst, regs, op='u32'):
    regs = list(regs)
    e.I(f'v_max3_{op} v{dst}, v{regs[0]}, v{regs[1]}, v{regs[2]}')
    rest = regs[3:]
    while rest:
        if len(rest) >= 2:
            e.I(f'v_max3_{op} v{dst}, v{dst}, v{rest[0]}, v{rest[1]}'); rest = rest[2:]
        else:
            e.I(f'v_max_{op} v{dst}, v{dst}, v{rest[0]}'); rest = rest[1:]

def check_sent(e, regs, t0, t1):
    regs = list(regs)
    if len(regs) >= 8:
        h = len(regs) // 2
        A, B = regs[:h], regs[h:]
        ea, eb = Em(), Em()
        maxchain(ea, t0, A); maxchain(eb, t1, B)
        for i in range(max(len(ea.lines), len(eb.lines))):
            if i < len(ea.lines): e.lines.append(ea.lines[i])
            if i < len(eb.lines): e.lines.append(eb.lines[i])
        e.I(f'v_max_u32 v{t0}, v{t0}, v{t1}')
    else:
        maxchain(e, t0, regs)
    e.I(f'v_cmp_eq_u32 vcc, -1, v{t0}')

def poll2(e, issue, nl, regsA, regsB, consume, t0, t1, code):
    lp, dA, dB, dd = e.lab('Lp'), e.lab('LdA'), e.lab('LdB'), e.lab('Ldd')
    e.I(f's_mov_b32 s31, {TMO}')
    issue(regsA)
    e.L(lp)
    issue(regsB)
    e.I(f's_waitcnt vmcnt({nl})')
    check_sent(e, range(regsA, regsA + 4 * nl), t0, t1)
    e.I(f's_cbranch_vccz {dA}')
    issue(regsA)
    e.I(f's_waitcnt vmcnt({nl})')
    check_sent(e, range(regsB, regsB + 4 * nl), t0, t1)
    e.I(f's_cbranch_vccz {dB}')
    e.I('s_sub_u32 s31, s31, 1')
    e.I(f's_cbranch_scc0 {lp}')
    e.I(f's_mov_b32 s31, {code}')
    e.I('s_branch L_fail')
    e.L(dB)
    consume(regsB)
    e.I(f's_branch {dd}')
    e.L(dA)
    consume(regsA)
    e.L(dd)

def wait_flags(e, vaddr, sofs, mask, vt, code, sleep=0, dbg=False):
    lp, dn = e.lab('Lf'), e.lab('Lfd')
    e.I(f's_mov_b32 s31, {TMO}')
    if mask > 0xffffffff or mask < 0: e.I(f's_mov_b64 exec, {mask}')
    else:
        e.I(f's_mov_b32 exec_lo, {mask:#x}'); e.I('s_mov_b32 exec_hi, 0')
    e.L(lp)
    if dbg: e.I(f'global_load_dword v{vt}, v{vaddr}, s[74:75] offset:{sofs} sc1')
    else: e.I(f'buffer_load_dword v{vt}, v{vaddr}, {WS}, {sofs} offen sc1')
    e.I('s_waitcnt vmcnt(0)')
    e.I(f'v_cmp_eq_u32 vcc, 0, v{vt}')
    e.I(f's_cbranch_vccz {dn}')
    if sleep: e.I(f's_sleep {sleep}')
    e.I('s_sub_u32 s31, s31, 1')
    e.I(f's_cbranch_scc0 {lp}')
    e.I(f's_mov_b32 s31, {code}')
    e.I('s_branch L_fail')
    e.L(dn)
    e.I('s_mov_b64 exec, -1')

D_TR, D_PAR, D_REG = 64, 96, 128
def register(e, va, vd):
    sk = e.lab('Lrg')
    e.I('s_cmp_lg_u32 s22, 0')
    e.I(f's_cbranch_scc1 {sk}')
    e.I(f'v_mov_b32 v{va}, s96')
    e.I(f'v_mov_b32 v{vd}, s97')
    e.I('s_mov_b64 exec, 1')
    e.I(f'global_atomic_add v{va}, v{vd}, s[74:75] offset:{D_REG} sc1')
    e.I('s_mov_b64 exec, -1')
    e.L(sk)
D_W = 68
def wait_count(e, t, off, n, sleep):
    lp, dn = e.lab('Lwc'), e.lab('Lwe')
    e.I(f's_mov_b32 s31, {TMO}')
    e.I(f'v_mov_b32 v{t+1}, 0')
    e.L(lp)
    e.I(f'global_load_dword v{t}, v{t+1}, s[74:75] offset:{off} sc1')
    e.I('s_waitcnt vmcnt(0)')
    e.I(f'v_cmp_gt_u32 vcc, {n}, v{t}')
    e.I(f's_cbranch_vccz {dn}')
    e.I(f's_sleep {sleep}')
    e.I('s_sub_u32 s31, s31, 1')
    e.I(f's_cbranch_scc0 {lp}')
    e.I('s_mov_b32 s31, 10')
    e.I('s_branch L_fail')
    e.L(dn)
def wait_first(e, t):
    wait_reg(e, t, 32)
    e.I('s_lshl_b32 s38, s20, 8')
    e.I(f's_add_u32 s38, s38, {FLGQ}')
    e.I(f'v_lshlrev_b32 v{t+1}, 6, v1')
    wait_flags(e, t + 1, 's38', 0xf, t, 15, sleep=16)
def count_up(e, t, off):
    sk = e.lab('Lcu')
    e.I('s_cmp_lg_u32 s22, 0')
    e.I(f's_cbranch_scc1 {sk}')
    e.I(f'v_mov_b32 v{t}, 0'); e.I(f'v_mov_b32 v{t+1}, 1')
    e.I('s_mov_b64 exec, 1')
    e.I(f'global_atomic_add v{t}, v{t+1}, s[74:75] offset:{off} sc1')
    e.I('s_mov_b64 exec, -1')
    e.L(sk)
def wait_reg(e, t, sleep=4):
    lp, dn = e.lab('Lwr'), e.lab('Lwd')
    e.I(f's_mov_b32 s31, {TMO}')
    e.I(f'v_lshlrev_b32 v{t+2}, 2, v1')
    e.I('s_mov_b32 exec_hi, 0')
    e.L(lp)
    e.I(f'global_load_dword v{t}, v{t+2}, s[74:75] offset:{D_REG} sc1')
    e.I('s_mov_b32 s23, 0')
    e.I('s_mov_b32 s38, 0')
    e.I('s_waitcnt vmcnt(0)')
    for k in range(4):
        e.I(f'v_cmp_eq_u32 vcc, {0x20 << (8*k):#x}, v{t}')
        e.I('s_or_b32 s38, s38, vcc_lo')
    e.I(f'v_sad_u8 v{t+1}, v{t}, 0, 0')
    e.I('s_bcnt1_i32_b32 s38, s38')
    e.I('s_cmp_eq_u32 s38, 8')
    e.I(f's_cbranch_scc1 {dn}')
    for sh in (1, 2, 4, 8): e.I(f'v_add_u32_dpp v{t+1}, v{t+1}, v{t+1} row_shr:{sh} row_mask:0xf bank_mask:0xf bound_ctrl:0')
    e.I(f'v_readlane_b32 s38, v{t+1}, 15')
    e.I(f'v_readlane_b32 s39, v{t+1}, 31')
    e.I('s_mov_b32 s23, 1')
    e.I('s_add_u32 s38, s38, s39')
    e.I('s_cmp_eq_u32 s38, 256')
    e.I(f's_cbranch_scc1 {dn}')
    e.I(f's_sleep {sleep}')
    e.I('s_sub_u32 s31, s31, 1')
    e.I(f's_cbranch_scc0 {lp}')
    e.I('s_mov_b32 s31, 10')
    e.I('s_branch L_fail')
    e.L(dn)
    e.I('s_mov_b64 exec, -1')

def set_flag(e, vaddr, sofs, vone, fl):
    e.I('s_mov_b64 exec, 1')
    e.I(f'buffer_store_dword v{vone}, v{vaddr}, {WS}, {sofs} offen{fl}')
    e.I('s_mov_b64 exec, -1')

def xg_reduce(e, op, x, t):
    e.I(f'v_mov_b32 v{t}, v{x}')
    e.I(f'v_permlane16_swap_b32 v{x}, v{t}')
    e.I(f'{op} v{x}, v{x}, v{t}')
    e.I(f'v_mov_b32 v{t}, v{x}')
    e.I(f'v_permlane32_swap_b32 v{x}, v{t}')
    e.I(f'{op} v{x}, v{x}, v{t}')

def softmax12(e, S, P, t):
    maxchain(e, t, range(S, S + 12), 'f32')
    xg_reduce(e, 'v_max_f32', t, t + 1)
    e.I(f'v_mul_f32 v{t}, s53, v{t}')
    for i in range(12):
        e.I(f'v_fma_f32 v{S+i}, v{S+i}, s52, v{t}')
    for i in range(12):
        e.I(f'v_exp_f32 v{S+i}, v{S+i}')
    e.I(f'v_add_f32 v{t+2}, v{S}, v{S+1}')
    e.I(f'v_add_f32 v{t+3}, v{S+2}, v{S+3}')
    for i in range(4, 12, 2):
        e.I(f'v_add_f32 v{t+2}, v{t+2}, v{S+i}')
        e.I(f'v_add_f32 v{t+3}, v{t+3}, v{S+i+1}')
    e.I(f'v_add_f32 v{t+2}, v{t+2}, v{t+3}')
    xg_reduce(e, 'v_add_f32', t + 2, t + 3)
    e.I(f'v_rcp_f32 v{t+2}, v{t+2}')
    for i in range(12):
        e.I(f'v_mul_f32 v{S+i}, v{S+i}, v{t+2}')
    for i in range(6):
        e.I(f'v_cvt_pk_bf16_f32 v{P+i}, v{S+2*i}, v{S+2*i+1}')

def softmax_list(S, n, P, t):
    x = Em()
    maxchain(x, t, range(S, S + n), 'f32')
    xg_reduce(x, 'v_max_f32', t, t + 1)
    x.I(f'v_mul_f32 v{t}, s53, v{t}')
    for i in range(n): x.I(f'v_fma_f32 v{S+i}, v{S+i}, s52, v{t}')
    for i in range(n): x.I(f'v_exp_f32 v{S+i}, v{S+i}')
    x.I(f'v_add_f32 v{t+2}, v{S}, v{S+1}')
    x.I(f'v_add_f32 v{t+3}, v{S+2}, v{S+3}')
    for i in range(4, n, 2):
        x.I(f'v_add_f32 v{t+2}, v{t+2}, v{S+i}')
        x.I(f'v_add_f32 v{t+3}, v{t+3}, v{S+i+1}')
    x.I(f'v_add_f32 v{t+2}, v{t+2}, v{t+3}')
    xg_reduce(x, 'v_add_f32', t + 2, t + 3)
    x.I(f'v_rcp_f32 v{t+2}, v{t+2}')
    for i in range(n): x.I(f'v_mul_f32 v{S+i}, v{S+i}, v{t+2}')
    for i in range(n // 2): x.I(f'v_cvt_pk_bf16_f32 v{P+i}, v{S+2*i}, v{S+2*i+1}')
    return [l.strip() for l in x.lines]

def DSTAMP(e, idx, cond=None, op='umax'):
    if not opt.dstamp: return
    sk = e.lab('Lds')
    if cond: e.I(cond); e.I(f's_cbranch_scc0 {sk}')
    e.I('s_memrealtime s[98:99]')
    e.I('s_waitcnt lgkmcnt(0)')
    if op == 'neg': e.I('s_not_b32 s98, s98')
    e.I('s_mov_b64 exec, 1')
    e.I(f'v_mov_b32 v238, {idx*4}')
    e.I('v_mov_b32 v239, s98')
    e.I('global_atomic_umax v238, v239, s[74:75] sc1')
    e.I('s_mov_b64 exec, -1')
    e.L(sk)
def TS(e, k):
    if opt.ts: e.I(f's_memrealtime s[{76+2*k}:{77+2*k}]')
def TSflush(e, step, va=238, vd=239):
    if not opt.ts: return
    e.I('s_waitcnt lgkmcnt(0)')
    for k in range(10): e.I(f'v_writelane_b32 v{vd}, s{76+2*k}, {k}')
    e.I('s_lshl_b32 s76, s20, 5')
    e.I('s_add_u32 s76, s76, s21')
    e.I('s_lshl_b32 s76, s76, 2')
    e.I('s_add_u32 s76, s76, s22')
    e.I('s_mul_i32 s76, s76, 72')
    e.I(f's_add_u32 s76, s76, {step}')
    e.I('s_lshl_b32 s76, s76, 6')
    e.I(f's_add_u32 s76, s76, {DBGT}')
    e.I(f'v_lshlrev_b32 v{va}, 2, v1')
    e.I('s_mov_b64 exec, 0x3ff')
    e.I(f'buffer_store_dword v{vd}, v{va}, {WS}, s76 offen')
    e.I('s_mov_b64 exec, -1')

def lane_ig(e, vi, vg):
    e.I(f'v_and_b32 v{vi}, 15, v1')
    e.I(f'v_lshrrev_b32 v{vg}, 4, v1')

def load_weights(e, mats, RS, rows, paired, vA, vT, NB=3, bufoff=None, manual=False):
    CH = rows * 128
    ninst = rows // 8 // 4
    nk = rows // 32
    e.I(f'v_lshrrev_b32 v{vT}, 3, v1')
    if paired:
        e.I(f'v_bfe_u32 v{vT+1}, v1, 4, 2')
    else:
        e.I(f'v_bfe_u32 v{vT+1}, v1, 4, 1')
        e.I('s_and_b32 s54, s22, 1')
        e.I('s_lshl_b32 s54, s54, 1')
        e.I(f'v_or_b32 v{vT+1}, s54, v{vT+1}')
    e.I(f'v_lshlrev_b32 v{vT+1}, 1, v{vT+1}')
    e.I(f'v_and_b32 v{vT+2}, 7, v1')
    e.I(f'v_xor_b32 v{vT+2}, v{vT+2}, v{vT+1}')
    e.I(f's_mov_b32 s54, {RS}')
    e.I(f'v_mul_lo_u32 v{vA}, s54, v{vT}')
    e.I(f'v_lshl_add_u32 v{vA}, v{vT+2}, 4, v{vA}')
    e.I(f'v_lshrrev_b32 v{vT}, 4, v1')
    e.I(f'v_bfe_u32 v{vT+1}, v1, 2, 2')
    if paired:
        e.I(f'v_lshl_add_u32 v{vT+2}, v{vT}, 2, v{vT+1}')
        e.I(f'v_bfe_u32 v{vT}, v{vT+2}, 1, 2')
        second = 2048
    else:
        e.I(f'v_lshl_add_u32 v{vT+2}, v{vT}, 3, v{vT+1}')
        e.I(f'v_and_b32 v{vT}, 1, v{vT}')
        e.I(f'v_lshlrev_b32 v{vT}, 1, v{vT}')
        e.I(f'v_bfe_u32 v{vT+1}, v1, 3, 1')
        e.I(f'v_or_b32 v{vT}, v{vT}, v{vT+1}')
        second = 512
    e.I(f'v_xor_b32 v{vT}, s22, v{vT}')
    e.I(f'v_lshlrev_b32 v{vT+2}, 7, v{vT+2}')
    e.I(f'v_lshl_add_u32 v{vT+2}, v{vT}, 5, v{vT+2}')
    e.I(f'v_and_b32 v{vT}, 3, v1')
    e.I(f'v_lshl_add_u32 v{vT}, v{vT}, 3, v{vT+2}')
    bufoff = bufoff or [k * CH for k in range(NB)]
    for k in range(NB - 1, -1, -1):
        if bufoff[k]  or k: e.I(f'v_add_u32 v{vT+k}, {bufoff[k]}, v{vT}')
    chunks = []
    for (srd_, sofs, ab, nrows) in mats:
        for c in range(nrows // rows):
            chunks.append((srd_, sofs, ab + c * nk * 4, c * rows))
    e.I(f's_mul_i32 s55, s22, {8*RS}')
    e.I('s_lshl_b32 s56, s22, 10')
    def issue(ci, buf=None):
        srd_, sofs, ab, r0 = chunks[ci]
        if buf is None: buf = ci % NB
        e.I(f's_add_u32 s57, {sofs}, s55')
        if r0: e.I(f's_add_u32 s57, s57, {r0*RS}')
        for n in range(ninst):
            e.I(f's_add_u32 m0, s56, {bufoff[buf] + n*4096}')
            e.I(f'buffer_load_dwordx4 v{vA}, {srd_}, s57 offen{WFL[opt.wnt]} lds')
            if n + 1 < ninst: e.I(f's_add_u32 s57, s57, {32*RS}')
    def consume(ci, buf, pending):
        e.I(f's_waitcnt vmcnt({pending})')
        if ci < 8: TS(e, 2 + ci)
        e.I('s_barrier')
        srd_, sofs, ab, r0 = chunks[ci]
        for k in range(nk):
            e.I(f'ds_read_b64_tr_b16 {ar(ab+4*k,2)}, v{vT+buf} offset:{k*4096}')
            e.I(f'ds_read_b64_tr_b16 {ar(ab+4*k+2,2)}, v{vT+buf} offset:{k*4096+second}')
        e.I('s_waitcnt lgkmcnt(0)')
        e.I('s_barrier')
    if manual: return issue, consume
    for ci in range(min(NB, len(chunks))): issue(ci)
    for ci in range(len(chunks)):
        left = min(len(chunks) - 1 - ci, NB - 1)
        e.I(f's_waitcnt vmcnt({left*ninst})')
        if ci < 8: TS(e, 2 + ci)
        e.I('s_barrier')
        srd_, sofs, ab, r0 = chunks[ci]
        for k in range(nk):
            e.I(f'ds_read_b64_tr_b16 {ar(ab+4*k,2)}, v{vT+ci%NB} offset:{k*4096}')
            e.I(f'ds_read_b64_tr_b16 {ar(ab+4*k+2,2)}, v{vT+ci%NB} offset:{k*4096+second}')
        e.I('s_waitcnt lgkmcnt(0)')
        e.I('s_barrier')
        if ci + NB < len(chunks): issue(ci + NB)

def touch_jobs(e, jobs, sw, nw, sh, t, rot=0):
    sizes = sorted({min(n, 64) for _, _, n in jobs} | {n - 64 for _, _, n in jobs if n > 64})
    reg = {}
    for k, n in enumerate(sizes):
        reg[n] = t + 1 + k
        e.I(f'v_min_u32 v{reg[n]}, {n-1}, v1')
        e.I(f'v_lshlrev_b32 v{reg[n]}, 7, v{reg[n]}')
    flat = []
    for base, per, n in jobs:
        flat.append((base, per, min(n, 64)))
        if n > 64: flat.append((base + 8192, per, n - 64))
    for c in range(nw):
        sk = e.lab('Ltj')
        e.I(f's_cmp_lg_u32 {sw}, {c}')
        e.I(f's_cbranch_scc1 {sk}')
        for base, per, n in flat[(c - rot) % nw::nw]:
            e.I(f's_mul_i32 s38, {sh}, {per}')
            e.I(f's_add_u32 s38, s38, {base}')
            e.I(f'buffer_load_dword v{t}, v{reg[n]}, {WS}, s38 offen sc1')
        e.L(sk)

def prefetch_w(e, su, nw, lo, hi, t, srds):
    for k in range(3):
        e.I(f'v_add_u32 v{t+3}, {64*k}, v1')
        e.I(f'v_mul_u32_u24 v{t+4}, 0x1556, v{t+3}')
        e.I(f'v_lshrrev_b32 v{t+4}, 16, v{t+4}')
        e.I(f'v_mul_u32_u24 v{t+k}, 12, v{t+4}')
        e.I(f'v_sub_u32 v{t+3}, v{t+3}, v{t+k}')
        e.I(f'v_mul_u32_u24 v{t+k}, 12288, v{t+4}')
        e.I(f'v_lshl_add_u32 v{t+k}, v{t+3}, 7, v{t+k}')
    e.I('s_mul_i32 s39, s20, 1536')
    base = lo
    while base < hi:
        for m, (a_, b_) in enumerate(((0, 40), (40, 80))):
            if base + nw <= a_ or base >= b_ or srds[m] is None: continue
            sk = e.lab('Lpf')
            e.I(f's_add_u32 s38, {su}, {base}')
            e.I(f's_sub_u32 s38, s38, {a_}')
            e.I(f's_cmp_ge_u32 s38, {min(b_, hi) - a_}')
            e.I(f's_cbranch_scc1 {sk}')
            e.I(f's_mul_i32 s38, s38, {16*12288}')
            e.I('s_add_u32 s38, s38, s39')
            for k in range(3): e.I(f'buffer_load_dword v{t+3}, v{t+k}, {srds[m]}, s38 offen{WFL[opt.wnt]}')
            e.L(sk)
        base += nw

Q_LX, Q_LMEM = 0, 81920
def role_qkv(e):
    fl = ''
    WQ, WK, WV = 0, 80, 160
    MF = 16
    DQ, DK, DV = 96, 100, 104
    PA, PB = 108, 120
    XD = 132
    T0 = 160
    KEEP = 176; TCH = 180
    XA, VA, IDX, SEL = 182, 183, 184, 185
    SENT = 248; ONE = 252
    e.I('s_mul_i32 s24, s21, 43')
    e.I('s_lshr_b32 s24, s24, 7')
    e.I('s_mul_i32 s25, s24, 3')
    e.I('s_sub_u32 s25, s21, s25')
    e.I('s_lshl_b32 s26, s20, 2')
    e.I('s_add_u32 s26, s26, s24')
    e.I('s_lshl_b32 s27, s25, 2')
    e.I('s_add_u32 s27, s27, s22')
    srd(e, 8, 60, 640 * 12288); srd(e, 12, 62, 640 * 12288); srd(e, 16, 64, 640 * 12288)
    e.I('s_mul_i32 s28, s26, 384')
    e.I('s_lshl_b32 s29, s25, 7')
    e.I('s_add_u32 s28, s28, s29')
    w_issue, w_consume = load_weights(e, [('s[12:15]', 's28', WK, 640), ('s[16:19]', 's28', WV, 640), ('s[8:11]', 's28', WQ, 640)], 12288, 320, False, 240, 241, 3,
                                      bufoff=[81920, 122880, 40960], manual=True)
    for ci in range(3): w_issue(ci)
    e.I('s_mul_i32 s38, s22, 2560')
    e.I('v_add_u32 v3, s38, v2')
    e.I('v_and_b32 v4, 31, v1')
    e.I('v_lshlrev_b32 v4, 4, v4')
    e.I('v_add_u32 v4, s38, v4')
    e.I('v_add_u32 v4, 2048, v4')
    e.I(f'v_add_u32 v5, {Q_LMEM}, v3')
    e.I(f'v_add_u32 v6, {Q_LMEM}, v4')
    e.I(f'v_add_u32 v7, {Q_LMEM}, v2')
    lane_ig(e, 14, 15)
    e.I('s_lshr_b32 s38, s27, 1')
    e.I('s_lshl_b32 s38, s38, 10')
    e.I('s_and_b32 s39, s27, 1')
    e.I('s_lshl_b32 s39, s39, 3')
    e.I('s_add_u32 s38, s38, s39')
    e.I('v_add_u32 v8, s38, v2')
    e.I('v_bfe_u32 v11, v1, 2, 2')
    e.I('v_and_b32 v12, 3, v1')
    e.I(f'v_lshlrev_b32 v{XA}, 8, v11')
    e.I(f'v_lshl_add_u32 v{XA}, v15, 6, v{XA}')
    e.I(f'v_lshl_add_u32 v{XA}, v12, 4, v{XA}')
    e.I(f'v_add_u32 v{XA}, s38, v{XA}')
    e.I('v_and_b32 v13, 1, v15')
    e.I('v_lshlrev_b32 v13, 2, v13')
    e.I('v_lshrrev_b32 v9, 1, v15')
    e.I('v_lshl_add_u32 v13, v9, 1, v13')
    e.I('v_and_b32 v9, 1, v12')
    e.I('v_add_u32 v13, v13, v9')
    e.I('v_lshrrev_b32 v12, 1, v12')
    e.I('v_lshrrev_b32 v9, 1, v11')
    e.I('v_lshlrev_b32 v9, 8, v9')
    e.I('v_lshl_add_u32 v9, v12, 7, v9')
    e.I('v_lshl_add_u32 v9, v13, 4, v9')
    e.I(f'v_and_b32 v{VA}, 1, v11')
    e.I(f'v_lshl_add_u32 v9, v{VA}, 3, v9')
    e.I('s_lshl_b32 s38, s25, 10')
    e.I('s_lshr_b32 s39, s22, 1')
    e.I('s_lshl_b32 s39, s39, 9')
    e.I('s_add_u32 s38, s38, s39')
    e.I('s_and_b32 s39, s22, 1')
    e.I('s_lshl_b32 s39, s39, 2')
    e.I('s_add_u32 s38, s38, s39')
    e.I('v_add_u32 v9, s38, v9')
    e.I(f'v_lshlrev_b32 v{VA}, 8, v11')
    e.I(f'v_lshl_add_u32 v{VA}, v13, 4, v{VA}')
    e.I(f'v_lshl_add_u32 v{VA}, v12, 2, v{VA}')
    e.I('s_lshr_b32 s38, s27, 1')
    e.I('s_cmp_ge_u32 s38, 3')
    e.I('s_cselect_b32 s39, 3, 0')
    e.I('s_cselect_b32 s40, 128, 0')
    e.I('s_sub_u32 s38, s38, s39')
    e.I('s_lshl_b32 s38, s38, 10')
    e.I('s_add_u32 s38, s38, s40')
    e.I('s_and_b32 s39, s27, 1')
    e.I('s_lshl_b32 s39, s39, 3')
    e.I('s_add_u32 s38, s38, s39')
    e.I(f'v_add_u32 v{VA}, s38, v{VA}')
    e.I(f'v_mov_b32 v{IDX}, 0x44444444')
    e.I('v_mov_b32 v11, 0xeeeeeeee')
    e.I('v_cmp_lt_u32 vcc, 7, v14')
    e.I(f'v_cndmask_b32 v{IDX}, v{IDX}, v11, vcc')
    e.I(f'v_mov_b32 v{SEL}, 0x05040100')
    e.I('v_mov_b32 v11, 0x03020706')
    e.I('v_and_b32 v12, 1, v1')
    e.I('v_cmp_eq_u32 vcc, 1, v12')
    e.I(f'v_cndmask_b32 v{SEL}, v{SEL}, v11, vcc')
    e.I('s_mov_b32 s34, 0x33333333'); e.I('s_mov_b32 s35, 0x33333333')
    e.I('s_mov_b32 s36, 0xcccccccc'); e.I('s_mov_b32 s37, 0xcccccccc')
    for k in range(12): e.I(f'v_mov_b32 v{DQ+k}, 0')
    e.I('s_lshl_b32 s38, s27, 2')
    e.I(f'v_mov_b32 v{ONE+2}, s38')
    e.I(f'v_mov_b32 v{ONE}, 1')
    for k in range(4): e.I(f'v_mov_b32 v{SENT+k}, -1')
    e.I('s_mul_i32 s58, s26, 6144')
    e.I('s_mul_i32 s59, s20, 10240')
    e.I(f's_add_u32 s59, s59, {MEM}')
    e.I('s_mul_i32 s60, s26, 3072')
    e.I('s_lshl_b32 s61, s20, 6')
    e.I('s_lshl_b32 s38, s24, 2')
    e.I('s_add_u32 s61, s61, s38')
    e.I(f's_add_u32 s61, s61, {FLGOX}')
    e.I('v_mov_b32 v10, 0')

    def late_list():
        return [f'buffer_store_dwordx2 {vr(KEEP,2)}, v{XA}, {WS}, s43 offen{fl}',
                f'buffer_store_dwordx2 {vr(SENT,2)}, v{XA}, {WS}, s42 offen{fl}',
                f'buffer_store_dword v{KEEP+2}, v{VA}, {WS}, s44 offen{fl}',
                f'buffer_store_dword v{SENT}, v9, {WS}, s46 offen{fl}']
    def late_stores():
        for x_ in late_list(): e.I(x_)
    def xwork(late, mats=(2, 1, 0), dma=True):
        e.I('s_and_b32 s65, s64, 1')
        e.I('s_mul_i32 s66, s65, 40960')
        e.I('v_add_u32 v12, s66, v2')
        e.I('s_xor_b32 s65, s65, 1')
        e.I('s_mul_i32 s65, s65, 40960')
        e.I('s_add_u32 s65, s65, s62')
        e.I('s_add_u32 s66, s64, 1')
        e.I('s_min_u32 s66, s66, 63')
        e.I('s_mul_i32 s66, s66, 40960')
        e.I('s_add_u32 s66, s66, s62')
        e.I(f's_add_u32 s66, s66, {XN}')
        e.I(f's_and_b32 s47, s64, {RD-1}')
        e.I(f's_mul_i32 s47, s47, {SEG_QX}')
        e.I('s_lshl_b32 s48, s58, 1')
        e.I('s_add_u32 s47, s47, s48')
        if late:
            e.I(f's_max_u32 s50, s64, {RD}')
            e.I(f's_sub_u32 s50, s50, {RD}')
            e.I('s_lshl_b32 s50, s50, 9')
            e.I('s_add_u32 s50, s50, s61')
            e.I(f'buffer_load_dword v{TCH}, v10, {WS}, s50 offen sc1')
        PF = opt.xpf
        def rd(n): e.I(f'ds_read_b128 {vr(MF + (n % 20)*4)}, v12 offset:{n*1024}')
        def out(m, rt, part=3):
            d = XD + (m*2+rt)*4; o = T0 + (m*2+rt)*2
            if part & 1:
                e.I(f'v_cvt_pk_bf16_f32 v{o}, v{d}, v{d+1}')
                e.I(f'v_cvt_pk_bf16_f32 v{o+1}, v{d+2}, v{d+3}')
            if part & 2:
                e.I(f's_add_u32 s48, s47, {(QX, KX, VX)[m] + rt*6144}')
                e.I(f'buffer_store_dwordx2 {vr(o,2)}, v8, {WS}, s48 offen{fl}')
        for n in range(PF): rd(n)
        ls = late_list() if late else []
        d0 = opt.xdma0
        for n in range(40):
            rt, kk = n // 20, n % 20
            e.I(f's_waitcnt lgkmcnt({min(40, n + PF) - (n + 1)})')
            f = vr(MF + (n % 20)*4)
            for m in mats:
                Wb = (WQ, WK, WV)[m]
                d = vr(XD + (m*2+rt)*4)
                e.I(f'{MFMA} {d}, {ar(Wb+4*kk)}, {f}, {0 if kk == 0 else d}')
            if n + PF < 40: rd(n + PF)
            if late and n == 5:
                bp = e.lab('Lbp')
                e.I(f's_cmp_lt_u32 s64, {RD}')
                e.I(f's_cbranch_scc1 {bp}')
                e.I('s_waitcnt vmcnt(0)')
                e.I(f'v_cmp_eq_u32 vcc, 0, v{TCH}')
                e.I(f's_cbranch_vccz {bp}')
                wait_flags(e, 10, 's50', 1, TCH, 13, sleep=1)
                e.L(bp)
            if n >= 6 and ls: e.I(ls.pop(0))
            elif dma and n >= d0 and (n - d0) % opt.xdmas == 0 and (n - d0) // opt.xdmas < 10:
                m = (n - d0) // opt.xdmas
                e.I(f's_add_u32 m0, s65, {m*1024}')
                e.I(f'buffer_load_dwordx4 v2, {WS}, s66 offen lds')
                e.I('s_add_u32 s66, s66, 1024')
            k0 = 23 if len(mats) > 1 else 28
            if k0 <= n < k0 + len(mats): out(mats[n - k0], 0)
        for m in mats: out(m, 1)
    def flag_addr(back):
        e.I(f's_sub_u32 s51, s64, {back}')
        e.I('s_lshl_b32 s51, s51, 5')
        e.I('s_add_u32 s51, s51, s26')
        e.I('s_lshl_b32 s51, s51, 6')
        e.I(f's_add_u32 s51, s51, {FLGQ}')
    def flag_n():
        flag_addr(0)
        e.I('s_waitcnt vmcnt(0)')
        set_flag(e, ONE + 2, 's51', ONE, fl)
    def mem_part():
        e.I('s_and_b32 s38, s30, 3')
        e.I('s_xor_b32 s39, s38, 2')
        e.I(f's_mul_i32 s40, s38, {MEM_SLOT}')
        e.I('s_add_u32 s40, s40, s59')
        e.I(f's_mul_i32 s41, s38, {XR_SLOT}')
        e.I('s_add_u32 s41, s41, s58')
        e.I(f's_add_u32 s41, s41, {XR}')
        e.I(f's_mul_i32 s42, s39, {XR_SLOT}')
        e.I('s_add_u32 s42, s42, s58')
        e.I(f's_add_u32 s42, s42, {XR}')
        e.I(f's_and_b32 s44, s30, {RD-1}')
        e.I(f's_mul_i32 s43, s44, {SEG_XP}')
        e.I('s_add_u32 s43, s43, s58')
        e.I(f's_add_u32 s43, s43, {XP}')
        e.I(f's_mul_i32 s44, s44, {SEG_VM}')
        e.I('s_add_u32 s44, s44, s60')
        e.I(f's_add_u32 s44, s44, {VM}')
        e.I(f's_mul_i32 s45, s38, {VR_SLOT}')
        e.I('s_add_u32 s45, s45, s60')
        e.I(f's_add_u32 s45, s45, {VR}')
        e.I(f's_mul_i32 s46, s39, {VR_SLOT}')
        e.I('s_add_u32 s46, s46, s60')
        e.I(f's_add_u32 s46, s46, {VR}')
        def issue(b):
            e.I(f'buffer_load_dwordx4 {vr(b)}, v3, {WS}, s40 offen sc1')
            e.I(f'buffer_load_dwordx4 {vr(b+4)}, v3, {WS}, s40 offen offset:1024 sc1')
            e.I(f'buffer_load_dwordx4 {vr(b+8)}, v4, {WS}, s40 offen sc1')
        def consume(b):
            e.I(f'ds_write_b128 v5, {vr(b)}')
            e.I(f'ds_write_b128 v5, {vr(b+4)} offset:1024')
            e.I(f'ds_write_b128 v6, {vr(b+8)}')
        flag_addr(1)
        poll2(e, issue, 3, PA, PB, consume, T0, T0 + 1, 1)
        TS(e, 1)
        e.I('s_waitcnt lgkmcnt(0)')
        e.I('s_barrier')
        for m in range(10): e.I(f'ds_read_b128 {vr(MF+4*m)}, v7 offset:{m*1024}')
        if opt.fpos < 0: set_flag(e, ONE + 2, 's51', ONE, fl)
        e.I('s_mov_b64 vcc, s[34:35]')
        for m in range(10):
            e.I(f's_waitcnt lgkmcnt({9-m})')
            e.I(f'{SMF} {vr(DQ)}, {vr(MF+4*m)}, {ar(WQ+8*m,8)}, v{IDX}')
            e.I(f'{SMF} {vr(DK)}, {vr(MF+4*m)}, {ar(WK+8*m,8)}, v{IDX}')
            if m == opt.fpos: e.I(f'buffer_store_dword v{ONE}, v{ONE+2}, {WS}, s51 offen{fl}')
        def vm(m): e.I(f'{SMF} {vr(DV)}, {vr(MF+4*m)}, {ar(WV+8*m,8)}, v{IDX}')
        QP1, QP2 = 'quad_perm:[1,0,3,2] row_mask:0xf bank_mask:0xf', 'quad_perm:[2,3,0,1] row_mask:0xf bank_mask:0xf'
        nv = opt.vpre
        for m in range(nv): vm(m)
        if opt.fpos == 10: e.I(f'buffer_store_dword v{ONE}, v{ONE+2}, {WS}, s51 offen{fl}')
        for r in range(4): e.I(f'v_permlane32_swap_b32 v{DQ+r}, v{DK+r}')
        for r in range(4): e.I(f'v_add_f32 v{DQ+r}, v{DQ+r}, v{DK+r}')
        e.I(f'v_cvt_pk_bf16_f32 v{T0}, v{DQ}, v{DQ+1}')
        e.I(f'v_cvt_pk_bf16_f32 v{T0+1}, v{DQ+2}, v{DQ+3}')
        vm(nv)
        if opt.fpos == 11: e.I(f'buffer_store_dword v{ONE}, v{ONE+2}, {WS}, s51 offen{fl}')
        e.I(f'v_mov_b32_dpp v{T0+2}, v{T0} {QP1}')
        e.I(f'v_mov_b32_dpp v{T0+3}, v{T0+1} {QP1}')
        e.I(f'v_perm_b32 v{T0}, v{T0+2}, v{T0}, v{SEL}')
        e.I(f'v_perm_b32 v{T0+1}, v{T0+3}, v{T0+1}, v{SEL}')
        vm(nv + 1)
        if opt.fpos == 12: e.I(f'buffer_store_dword v{ONE}, v{ONE+2}, {WS}, s51 offen{fl}')
        e.I(f'v_cndmask_b32_dpp v{KEEP}, v{T0+1}, v{T0}, vcc {QP2}')
        e.I('s_mov_b64 vcc, s[36:37]')
        e.I(f'v_cndmask_b32_dpp v{KEEP+1}, v{T0}, v{T0+1}, vcc {QP2}')
        e.I(f'buffer_store_dwordx2 {vr(KEEP,2)}, v{XA}, {WS}, s41 offen{fl}')
        TS(e, 2)
        for m in range(nv + 2, 10): vm(m)
        for k in range(8): e.I(f'v_mov_b32 v{DQ+k}, 0')
        e.I(f'v_permlane32_swap_b32 v{DV}, v{DV+2}')
        e.I(f'v_permlane32_swap_b32 v{DV+1}, v{DV+3}')
        e.I(f'v_add_f32 v{DV}, v{DV}, v{DV+2}')
        e.I(f'v_add_f32 v{DV+1}, v{DV+1}, v{DV+3}')
        e.I(f'v_cvt_pk_bf16_f32 v{T0}, v{DV}, v{DV+1}')
        e.I(f'v_mov_b32_dpp v{T0+2}, v{T0} {QP1}')
        e.I(f'v_perm_b32 v{KEEP+2}, v{T0+2}, v{T0}, v{SEL}')
        e.I(f'buffer_store_dword v{KEEP+2}, v9, {WS}, s45 offen{fl}')
        for k in range(4): e.I(f'v_mov_b32 v{DV+k}, 0')
        TS(e, 3)
    w_consume(0, 0, 20); w_issue(3, 0)
    w_consume(1, 1, 20); w_issue(4, 1)
    w_consume(2, 2, 20)
    w_consume(3, 0, 10)
    w_consume(4, 1, 0)
    TS(e, 0)
    wait_reg(e, T0)
    TS(e, 1)
    TSflush(e, '69')
    e.I('s_mul_i32 s62, s22, 10240')
    def xdma(seg, buf):
        e.I(f's_add_u32 s63, s62, {XN + seg*40960}')
        for m in range(10):
            e.I(f's_add_u32 m0, s62, {Q_LX + buf*40960 + m*1024}')
            e.I(f'buffer_load_dwordx4 v2, {WS}, s63 offen lds')
            e.I('s_add_u32 s63, s63, 1024')
    xdma(0, 0)
    w_issue(5, 0)
    xdma(1, 1)
    e.I('s_cmp_lg_u32 s23, 0')
    e.I('s_cbranch_scc1 L_qkvs')
    for slow in (False, True):
        fl = ' sc1' if slow else ''
        if slow: e.L('L_qkvs')
        pro, top, nox, nxt_, q0, q0r, qq, q1 = [e.lab(x_) for x_ in ('Lqp', 'Lqt', 'Lqn', 'Lqx', 'Lq0', 'Lqr', 'Lqq', 'Lq1')]
        e.I('s_mov_b32 s30, 0')
        e.I('s_mov_b32 s64, 0')
        TS(e, 0)
        e.I('s_waitcnt vmcnt(20)')
        TS(e, 1)
        e.I('s_barrier')
        e.L(pro)
        xwork(False, (2, 1), False)
        e.I('s_add_u32 s64, s64, 1')
        e.I('s_cmp_eq_u32 s64, 2')
        e.I(f's_cbranch_scc1 {top}')
        TS(e, 2)
        flag_addr(1)
        e.I('s_waitcnt vmcnt(0)')
        TS(e, 3)
        set_flag(e, ONE + 2, 's51', ONE, fl)
        w_consume(5, 0, 1)
        if opt.urg: wait_count(e, T0, D_W, 80, 4)
        TS(e, 4)
        TSflush(e, '68')
        e.I(f's_branch {pro}')
        e.L(q0)
        e.I('s_mov_b32 s64, 0')
        e.L(qq)
        xwork(False, (0,), False)
        e.I('s_cmp_lg_u32 s64, 0')
        e.I(f's_cbranch_scc1 {q1}')
        e.I('s_barrier')
        xdma(2, 0)
        e.I('s_mov_b32 s64, 1')
        e.I(f's_branch {qq}')
        e.L(q1)
        e.I('s_mov_b32 s64, 2')
        e.I('s_waitcnt vmcnt(2)')
        e.I('s_barrier')
        e.I(f's_branch {q0r}')
        e.L(top)
        TS(e, 0)
        mem_part()
        e.I('s_cmp_eq_u32 s30, 0')
        e.I(f's_cbranch_scc1 {q0}')
        e.L(q0r)
        e.I('s_cmp_ge_u32 s64, 64')
        e.I(f's_cbranch_scc1 {nox}')
        xwork(True)
        e.I('s_cmp_lg_u32 s64, 63')
        e.I(f's_cbranch_scc1 {nxt_}')
        flag_n()
        e.I(f's_branch {nxt_}')
        e.L(nox)
        for x_ in late_list()[0::2]: e.I(x_)
        flag_n()
        e.L(nxt_)
        TS(e, 4)
        e.I('s_add_u32 s64, s64, 1')
        TS(e, 5)
        TSflush(e, 's30')
        e.I('s_add_u32 s30, s30, 1')
        e.I('s_cmp_lt_u32 s30, 64')
        e.I(f's_cbranch_scc1 {top}')
        e.I('s_endpgm')

S_RED = 98304
def role_sw(e):
    fl = ''
    XF, KXF, VXF, VMF = 16, 40, 88, 136
    S, PB, PM = 148, 160, 164
    DW, DM, VWX, VWM = 168, 184, 200, 216
    OUT = DW
    PA = XF
    CI = 224
    T0 = 228; IDX = 246; SENT = 248; ONE = 252
    AONE, AHALF = 96, 100
    PAD = 240
    e.I('s_sub_u32 s24, s21, 12')
    e.I('s_lshl_b32 s25, s24, 2')
    e.I('s_add_u32 s25, s25, s22')
    e.I('s_lshl_b32 s26, s20, 2')
    e.I('s_add_u32 s26, s26, s22')
    srd(e, 8, 66, 6144 * 1280)
    def wo_load():
        e.I(f's_mul_i32 s28, s26, {192*1280}')
        e.I('s_lshl_b32 s29, s24, 7')
        e.I('s_add_u32 s28, s28, s29')
        e.I('v_lshrrev_b32 v17, 3, v1')
        e.I('v_bfe_u32 v18, v1, 4, 2')
        e.I('v_lshlrev_b32 v18, 1, v18')
        e.I('v_and_b32 v19, 7, v1')
        e.I('v_xor_b32 v19, v19, v18')
        e.I('v_mul_u32_u24 v16, 1280, v17')
        e.I('v_lshl_add_u32 v16, v19, 4, v16')
        e.I('s_mul_i32 s46, s22, 24576')
        for n in range(24):
            e.I(f's_add_u32 m0, s46, {n*1024}')
            e.I(f'buffer_load_dwordx4 v16, s[8:11], s28 offen{WFL[opt.wnt]} lds')
            if n < 23: e.I(f's_add_u32 s28, s28, {8*1280}')
        e.I('v_lshrrev_b32 v17, 2, v1')
        e.I('v_bfe_u32 v18, v17, 1, 2')
        e.I('v_lshlrev_b32 v17, 7, v17')
        e.I('v_and_b32 v19, 3, v1')
        e.I('v_lshl_add_u32 v17, v19, 3, v17')
        e.I('v_add_u32 v17, s46, v17')
        for ct in range(4):
            e.I(f'v_xor_b32 v19, {ct}, v18')
            e.I(f'v_lshl_add_u32 v{20+ct}, v19, 5, v17')
        for kk in range(6):
            e.I(f's_waitcnt vmcnt({20 - 4*kk})')
            for ct in range(4):
                e.I(f'ds_read_b64_tr_b16 {ar((ct*6+kk)*4,2)}, v{20+ct} offset:{kk*4096}')
                e.I(f'ds_read_b64_tr_b16 {ar((ct*6+kk)*4+2,2)}, v{20+ct} offset:{kk*4096+2048}')
        e.I('s_waitcnt lgkmcnt(0)')
    if opt.pfs:
        srd(e, 12, 64, 640 * 12288); srd(e, 16, 60, 640 * 12288)
        prefetch_w(e, 's25', 40, 0, opt.pfs, 24, ('s[12:15]', 's[16:19]'))
    nocal = e.lab('Lnc')
    e.I('s_cmp_lg_u32 s25, 8')
    e.I(f's_cbranch_scc1 {nocal}')
    e.I('s_lshl_b32 s38, s20, 7')
    e.I(f's_add_u32 s38, s38, {CAL}')
    e.I('s_add_u32 s39, s38, 8192')
    e.I('s_mov_b32 s40, -1'); e.I('s_mov_b32 s41, -1'); e.I('s_mov_b32 s42, 4')
    e.I('v_mov_b32 v10, 0')
    e.I('s_mov_b64 exec, 1')
    cal = e.lab('Lcal')
    e.L(cal)
    for so, acc in (('s38', 's40'), ('s39', 's41')):
        e.I(f'buffer_store_dword v10, v10, {WS}, {so} offen sc1')
        e.I('s_waitcnt vmcnt(0)')
        e.I('s_memtime s[44:45]')
        e.I('s_waitcnt lgkmcnt(0)')
        e.I(f'buffer_load_dword v11, v10, {WS}, {so} offen sc1')
        e.I('s_waitcnt vmcnt(0)')
        e.I('s_memtime s[46:47]')
        e.I('s_waitcnt lgkmcnt(0)')
        e.I('s_sub_u32 s46, s46, s44')
        e.I(f's_min_u32 {acc}, {acc}, s46')
    e.I('s_sub_u32 s42, s42, 1')
    e.I('s_cmp_lg_u32 s42, 0')
    e.I(f's_cbranch_scc1 {cal}')
    e.I('s_cmp_lt_u32 s41, s40')
    if opt.pflip: e.I('s_cmp_ge_u32 s41, s40')
    e.I('s_cselect_b32 s38, 2, 1')
    e.I('v_mov_b32 v11, s38')
    e.I('s_lshl_b32 s38, s20, 2')
    e.I('v_mov_b32 v10, s38')
    e.I(f'global_store_dword v10, v11, s[74:75] offset:{D_PAR} sc1')
    e.I('s_mov_b64 exec, -1')
    e.L(nocal)
    def early_touch():
        jobs = []
        for sl in range(2): jobs += [(b_ + sl * SEG_QX, 12288, 96) for b_ in (KX, VX)]
        for sl in range(2): jobs += [(QX + sl * SEG_QX, 12288, 96), (XP + sl * SEG_XP, 6144, 48), (VM + sl * SEG_VM, 3072, 24)]
        touch_jobs(e, jobs, 's24', 10, 's26', 24)
    if opt.tord == 0: early_touch()
    if not opt.swlate: wo_load()
    if opt.tord == 1: early_touch()
    e.I(f's_mov_b32 s52, {SC_L2E:#x}'); e.I(f's_mov_b32 s53, {SC_L2E | 0x80000000:#x}')
    lane_ig(e, 14, 15)
    e.I('v_and_b32 v13, 7, v14')
    e.I('v_lshlrev_b32 v13, 4, v13')
    e.I('v_lshl_add_u32 v13, v15, 7, v13')
    e.I('v_bfe_u32 v5, v1, 3, 1')
    e.I('s_lshl_b32 s38, s22, 9')
    e.I(f's_add_u32 s38, s38, {S_RED}')
    e.I('v_add_u32 v6, s38, v13')
    e.I('v_lshl_add_u32 v6, v5, 14, v6')
    e.I('s_lshl_b32 s38, s22, 11')
    e.I(f's_add_u32 s38, s38, {S_RED}')
    e.I('v_add_u32 v7, s38, v13')
    e.I('v_lshl_add_u32 v7, v5, 10, v7')
    if opt.pbf: e.I('v_lshrrev_b32 v13, 1, v13')
    e.I('v_lshl_add_u32 v13, v5, 13, v13')
    e.I('v_and_b32 v4, 0x1fff, v13')
    e.I('v_lshlrev_b32 v9, 2, v5')
    e.I('v_xor_b32 v9, s20, v9')
    for m in range(4):
        e.I(f'v_xor_b32 v8, {m}, v9')
        e.I(f'v_lshl_add_u32 v{PAD+m}, v8, 9, v4')
    e.I('v_and_b32 v9, 7, v1')
    e.I('v_lshlrev_b32 v8, 4, v9')
    e.I('v_lshl_add_u32 v8, v5, 7, v8')
    e.I('v_lshl_add_u32 v8, v15, 2, v8')
    e.I('s_lshl_b32 s38, s25, 8')
    e.I('v_add_u32 v8, s38, v8')
    e.I('v_lshrrev_b32 v9, 1, v1')
    e.I('v_lshlrev_b32 v9, 10, v9')
    e.I('v_and_b32 v10, 1, v1')
    e.I('v_lshl_add_u32 v9, v10, 3, v9')
    e.I(f'v_lshlrev_b32 v{ONE+1}, 2, v1')
    for k in range(4): e.I(f'v_mov_b32 v{SENT+k}, -1')
    e.I('s_mov_b32 s68, 0xff00ff00'); e.I('s_mov_b32 s69, 0xff00ff00')
    e.I('s_mov_b32 s70, 0x3f80'); e.I('s_mov_b32 s71, 0x3f800000')
    e.I(f'v_mov_b32 v{CI}, {NEG_BIG:#x}')
    e.I('s_mov_b32 vcc_lo, 0')
    e.I('s_mov_b32 vcc_hi, 0x00ff00ff')
    e.I(f'v_cndmask_b32 v{CI}, v{CI}, 0, vcc')
    for k in range(1, 4): e.I(f'v_mov_b32 v{CI+k}, v{CI}')
    e.I(f'v_mov_b32 v{IDX}, 0x44444444')
    e.I('v_mov_b32 v11, 0xeeeeeeee')
    e.I('v_cmp_lt_u32 vcc, 7, v14')
    e.I(f'v_cndmask_b32 v{IDX}, v{IDX}, v11, vcc')
    e.I('v_mov_b32 v11, 0x3f803f80')
    for k in range(4): e.I(f'v_accvgpr_write_b32 a{AONE+k}, v11')
    e.I('v_mov_b32 v11, 0x3f003f00')
    for k in range(2): e.I(f'v_accvgpr_write_b32 a{AHALF+k}, v11')
    e.I('s_mul_i32 s58, s26, 6144')
    e.I(f's_add_u32 s58, s58, {XR}')
    e.I('s_mul_i32 s57, s26, 3072')
    e.I(f's_add_u32 s57, s57, {VR}')
    e.I('s_lshr_b32 s59, s25, 1')
    e.I('s_lshl_b32 s59, s59, 14')
    e.I('s_and_b32 s38, s25, 1')
    e.I('s_lshl_b32 s38, s38, 12')
    e.I('s_add_u32 s59, s59, s38')
    e.I(f's_add_u32 s59, s59, {PART}')
    e.I('s_lshl_b32 s60, s20, 9')
    e.I('s_add_u32 s60, s60, s59')
    e.I('s_mul_i32 s61, s20, 10240')
    e.I(f's_add_u32 s61, s61, {MEM}')
    e.I('s_mul_i32 s62, s26, 12288')
    e.I('s_lshl_b32 s63, s26, 6')
    e.I(f's_add_u32 s63, s63, {FLGQ}')
    e.I('s_lshl_b32 s38, s20, 2')
    e.I('v_mov_b32 v10, s38')
    wait_flags(e, 10, D_PAR, 1, T0, 12, sleep=4, dbg=True)
    e.I(f'v_readfirstlane_b32 s38, v{T0}')
    e.I('s_nop 3')
    e.I('s_and_b32 s38, s38, 2')
    e.I('s_lshl_b32 s38, s38, 12')
    e.I('s_add_u32 s59, s59, s38')
    e.I('s_lshl_b32 s38, s22, 2')
    e.I(f's_add_u32 s38, s38, {S_RED + 8192}')
    e.I('v_lshlrev_b32 v10, 4, v14')
    e.I('v_add_u32 v10, s38, v10')
    e.I('v_and_b32 v11, 7, v14')
    e.I('v_lshlrev_b32 v11, 4, v11')
    e.I('v_bfe_u32 v12, v1, 3, 1')
    e.I('v_lshl_add_u32 v11, v12, 3, v11')
    e.I(f'v_add_u32 v11, {S_RED + 8192}, v11')
    e.I('v_min_u32 v12, 11, v1')
    e.I('v_lshlrev_b32 v12, 2, v12')
    def kv_loads(dst, base, q0=0, q1=12):
        if q0 >= q1: return
        e.I(f's_and_b32 s48, s49, {RD-1}')
        e.I(f's_mul_i32 s48, s48, {SEG_QX}')
        e.I('s_add_u32 s48, s48, s62')
        e.I(f's_add_u32 s48, s48, {base + (q0//4)*4096}')
        for q in range(q0, q1):
            if q % 4 == 0 and q > q0: e.I('s_add_u32 s48, s48, 4096')
            e.I(f'buffer_load_dwordx4 {vr(dst+4*q)}, v2, {WS}, s48 offen offset:{(q%4)*1024} sc1')
    def vx_loads():
        e.I(f's_and_b32 s48, s49, {RD-1}')
        e.I(f's_mul_i32 s48, s48, {SEG_QX}')
        e.I('s_add_u32 s48, s48, s62')
        e.I(f's_add_u32 s48, s48, {VX}')
        e.I('s_add_u32 s46, s48, 4096')
        e.I('s_add_u32 s56, s48, 8192')
        for kk in range(6):
            for rt in range(2):
                q = rt * 6 + kk
                e.I(f'buffer_load_dwordx4 {vr(VXF+4*q)}, v2, {WS}, {("s48", "s46", "s56")[q//4]} offen offset:{(q%4)*1024} sc1')
    def vw_grp(gi):
        kk, rt = gi // 2, gi % 2
        for ct in range(4):
            d = vr(DW + (ct*2+rt)*4)
            e.I(f'{MFMA} {d}, {vr(VXF+4*(rt*6+kk))}, {ar((ct*6+kk)*4)}, {0 if kk == 0 else d}')
    def vw_x(after, extra=(), nvx=0, g0=0):
        extra = list(extra); nx0 = len(extra)
        for gi in range(g0, 12):
            if gi >= 12 - nvx: e.I(f's_waitcnt vmcnt({11 - gi + nx0 - len(extra)})')
            for _ in range(-(-len(extra) // (12 - gi))): e.I(extra.pop(0))
            if after is not None: e.I(f's_waitcnt vmcnt({after + 11 - gi})')
            vw_grp(gi)
        cv = [f'v_cvt_pk_bf16_f32 v{VWX+4*ct+k}, v{DW+8*ct+2*k}, v{DW+8*ct+2*k+1}' for ct in range(4) for k in range(4)] + [f'v_mov_b32 v{DM+k}, 0' for k in range(16)]
        for n_, x_ in enumerate(cv):
            if extra and n_ % 2 == 0: e.I(extra.pop(0))
            e.I(x_)
    TS(e, 0)
    wait_reg(e, T0, opt.rsleep)
    TS(e, 1)
    if opt.swlate: wo_load()
    if opt.tord == 2: early_touch()
    TS(e, 2)
    TSflush(e, '69', 244, 245)
    if opt.touch2:
        e.I('v_lshrrev_b32 v16, 4, v1')
        e.I(f's_mov_b32 s38, {PART_SLOT}')
        e.I('v_mul_lo_u32 v16, s38, v16')
        e.I('v_bfe_u32 v17, v1, 1, 3')
        e.I('v_lshl_add_u32 v16, v17, 9, v16')
        e.I('v_and_b32 v17, 1, v1')
        e.I('v_lshl_add_u32 v16, v17, 7, v16')
        e.I(f'buffer_load_dword v17, v16, {WS}, s59 offen sc1')
    wait_flags(e, ONE + 1, 's63', 0xfff, T0, 11, sleep=2)
    e.I('s_mov_b32 s49, 0')
    vx_loads()
    kv_loads(KXF, KX)
    vw_x(12)
    e.I('s_cmp_lg_u32 s23, 0')
    e.I('s_cbranch_scc1 L_sws')
    for slow in (False, True):
        fl = ' sc1' if slow else ''
        if slow: e.L('L_sws')
        top = e.lab('Lwt')
        e.I('s_mov_b32 s30, 0')
        e.L(top)
        TS(e, 0)
        if opt.pdiag: e.I('s_mov_b32 s94, 0')
        e.I('s_and_b32 s38, s30, 3')
        e.I('s_xor_b32 s39, s38, 2')
        e.I(f's_mul_i32 s40, s38, {XR_SLOT}')
        e.I('s_add_u32 s40, s40, s58')
        e.I('s_add_u32 s54, s40, 4096')
        e.I(f's_mul_i32 s55, s38, {VR_SLOT}')
        e.I('s_add_u32 s55, s55, s57')
        if opt.fresh:
            e.I(f's_mul_i32 s41, s30, {PART_SLOT}')
            e.I(f's_add_u32 s41, s41, {SCRATCH + 0x400000 - PART + 0x200000}')
        else:
            e.I(f's_mul_i32 s41, s38, {PART_SLOT}')
        e.I('s_add_u32 s42, s41, s60')
        e.I('s_add_u32 s41, s41, s59')
        if opt.fresh:
            e.I('s_lshr_b32 s47, s41, 8')
            e.I('s_not_b32 s47, s47')
            e.I('s_and_b32 s47, s47, 8192')
            e.I('s_xor_b32 s41, s41, s47')
        e.I('s_xor_b32 s47, s41, 8192')
        e.I(f's_mul_i32 s43, s39, {PART_SLOT}')
        e.I('s_add_u32 s43, s43, s60')
        e.I('s_add_u32 s49, s30, 1')
        e.I('s_and_b32 s44, s49, 3')
        e.I('s_xor_b32 s45, s44, 2')
        e.I(f's_mul_i32 s44, s44, {MEM_SLOT}')
        e.I('s_add_u32 s44, s44, s61')
        e.I(f's_mul_i32 s45, s45, {MEM_SLOT}')
        e.I('s_add_u32 s45, s45, s61')
        e.I(f's_and_b32 s46, s49, {RD-1}')
        e.I(f's_mul_i32 s46, s46, {SEG_QX}')
        e.I('s_add_u32 s46, s46, s62')
        e.I(f's_add_u32 s65, s46, {KX}')
        e.I(f's_add_u32 s46, s46, {VX}')
        e.I('s_add_u32 s56, s46, 4096')
        e.I('s_add_u32 s64, s46, 8192')
        e.I('s_add_u32 s66, s65, 4096')
        e.I('s_add_u32 s67, s65, 8192')
        e.I('s_lshl_b32 s50, s49, 11')
        e.I('s_add_u32 s50, s50, s63')
        pl, pd, fr, hl, hd = e.lab('Lxp'), e.lab('Lxd'), e.lab('Lxf'), e.lab('Lhp'), e.lab('Lhd')
        def probe(lp, dn, va, so, bad):
            e.I('s_mov_b64 exec, 0xfff')
            e.I(f'buffer_load_dword v{T0}, v{va}, {WS}, {so} offen sc1')
            e.L(lp)
            for a_, b_ in ((T0, T0 + 1), (T0 + 1, T0)):
                e.I(f'buffer_load_dword v{b_}, v{va}, {WS}, {so} offen sc1')
                e.I('s_waitcnt vmcnt(1)')
                e.I(f'v_cmp_eq_u32 vcc, {bad}, v{a_}')
                e.I(f's_cbranch_vccz {dn}')
            e.I('s_sub_u32 s31, s31, 1')
            e.I(f's_cbranch_scc0 {lp}')
            e.I('s_mov_b32 s31, 2')
            e.I('s_branch L_fail')
        e.I(f's_mov_b32 s31, {TMO}')
        probe(hl, hd, 12, 's50', 0)
        xp = e.lab('Lxq')
        e.L(xp)
        probe(pl, pd, 9, 's40', -1)
        e.L(hd)
        if opt.hdelay: e.I(f's_nop {opt.hdelay - 1}')
        if not opt.heads: e.I(f's_branch {xp}')
        e.L(pd)
        e.I('s_mov_b64 exec, -1')
        TS(e, 1)
        if opt.pdiag: e.I('s_add_u32 s94, s94, 1')
        e.L(fr)
        for p in range(6):
            e.I(f'buffer_load_dwordx4 {vr(XF+4*p)}, v2, {WS}, {"s40" if p < 4 else "s54"} offen offset:{(p%4)*1024} sc1')
        FQ = CI + 23
        def vm_loads():
            for q in range(3):
                e.I(f'buffer_load_dwordx4 {vr(VMF+4*q)}, v2, {WS}, s55 offen offset:{q*1024} sc1')
        vp = opt.vmpos
        nvm = 0
        if vp == 0: vm_loads(); nvm = 3
        for p in range(6):
            x = vr(XF + 4*p)
            e.I(f's_waitcnt vmcnt({5-p+nvm})')
            e.I(f'{MFMA} {vr(S+4)}, {vr(KXF+4*p)}, {x}, {0 if p == 0 else vr(S+4)}')
            e.I(f'{MFMA} {vr(S+8)}, {vr(KXF+24+4*p)}, {x}, {0 if p == 0 else vr(S+8)}')
            e.I(f'{MFMA} {vr(S)}, {x}, {x}, {vr(CI) if p == 0 else vr(S)}')
            if vp == p + 1: vm_loads(); nvm = 3
            r = XF + 4 * p
            if p == 0:
                e.I(f'v_max3_u32 v{T0+2}, v{r}, v{r+1}, v{r+2}')
                e.I(f'v_max_u32 v{T0+2}, v{T0+2}, v{r+3}')
            else:
                e.I(f'v_max3_u32 v{T0+2}, v{T0+2}, v{r}, v{r+1}')
                e.I(f'v_max3_u32 v{T0+2}, v{T0+2}, v{r+2}, v{r+3}')
        e.I(f'v_cmp_eq_u32 vcc, -1, v{T0+2}')
        ok = e.lab('Lxo')
        e.I(f's_cbranch_vccz {ok}')
        e.I('s_sub_u32 s31, s31, 1')
        e.I('s_nop 7')
        e.I(f's_cbranch_scc0 {xp}')
        e.I('s_mov_b32 s31, 2')
        e.I('s_branch L_fail')
        e.L(ok)
        TS(e, 2)
        vl, vd = e.lab('Lvp'), e.lab('Lvd')
        e.L(vl)
        e.I('s_waitcnt vmcnt(0)')
        check_sent(e, range(VMF, VMF + 12), T0 + 2, T0 + 3)
        e.I(f's_cbranch_vccz {vd}')
        vm_loads()
        e.I('s_sub_u32 s31, s31, 1')
        e.I(f's_cbranch_scc0 {vl}')
        e.I('s_mov_b32 s31, 3')
        e.I('s_branch L_fail')
        e.L(vd)
        TS(e, 3)
        PW = 2 if opt.pbf else 4
        if opt.rpos == 0: e.I(f'buffer_store_dwordx{PW} {vr(SENT,PW)}, v13, {WS}, s43 offen sc1')
        ROR8 = 'row_ror:8 row_mask:0xf bank_mask:0xf'
        sm = [f'{SMF} {vr(DM+4*ct)}, {vr(VMF+4*m)}, {ar((ct*6+2*m)*4,8)}, v{IDX}' for m in range(3) for ct in range(4)]
        t = T0 + 2
        V = []
        for r in range(4): V.append(f'v_mov_b32_dpp v{S+4+r}, v{S+8+r} row_shr:8 row_mask:0xf bank_mask:0xc')
        V += [f'v_max3_f32 v{t}, v{S}, v{S+1}, v{S+2}', f'v_max3_f32 v{t+1}, v{S+3}, v{S+4}, v{S+5}', f'v_max3_f32 v{t}, v{t}, v{S+6}, v{S+7}', f'v_max_f32 v{t}, v{t}, v{t+1}',
              '*', '*', f'v_max_f32_dpp v{t}, v{t}, v{t} {ROR8}', f'v_mov_b32 v{t+1}, v{t}', '*', '*', f'v_permlane16_swap_b32 v{t}, v{t+1}', f'v_max_f32 v{t}, v{t}, v{t+1}',
              f'v_mov_b32 v{t+1}, v{t}', '*', '*', f'v_permlane32_swap_b32 v{t}, v{t+1}', f'v_max_f32 v{t}, v{t}, v{t+1}', f'v_mul_f32 v{t}, s53, v{t}']
        order = [4, 5, 6, 7, 0, 1, 2, 3]
        for i in order: V.append(f'v_fma_f32 v{S+i}, v{S+i}, s52, v{t}')
        for n_, i in enumerate(order):
            V.append(f'v_exp_f32 v{S+i}, v{S+i}')
        bulk = [f'buffer_load_dwordx4 {vr(VXF+4*q)}, v2, {WS}, {("s46", "s56", "s64")[q//4]} offen offset:{(q%4)*1024} sc1' for q in (0, 6, 1, 7, 2, 8, 3, 9, 4, 10, 5, 11)]
        bulk += [f'buffer_load_dwordx4 {vr(KXF+4*q)}, v2, {WS}, {("s65", "s66", "s67")[q//4]} offen offset:{(q%4)*1024} sc1' for q in range(12)]
        kin = bulk[:opt.kin]; kp = bulk[opt.kin:opt.kin + opt.kp]; kc = bulk[opt.kin + opt.kp:]
        if opt.nobulk & 1: kin = []
        if opt.nobulk & 2: kp = []
        if opt.nobulk & 4: kc = []
        def ld():
            if kin: e.I(kin.pop(0))
        for x_ in sm[:opt.smpre]: e.I(x_)
        rest = sm[opt.smpre:]
        cost = 0; prev = None; nld = 0
        for x_ in V:
            if x_ == '*':
                if prev == '*' or cost == 0 or not rest: ld()
                else: e.I(rest.pop(0)); cost = 0
            else:
                e.I(x_); cost += 2 if 'v_exp' in x_ else 1
                if cost >= opt.smgap and rest: e.I(rest.pop(0)); cost = 0
                elif not rest and cost >= opt.ldgap: ld(); cost = 0
            prev = x_
        for x_ in rest: e.I(x_)
        e.I(f'v_cvt_pk_bf16_f32 v{PB}, v{S+4}, v{S+5}')
        e.I(f'v_cvt_pk_bf16_f32 v{PB+1}, v{S+6}, v{S+7}')
        e.I(f'v_cvt_pk_bf16_f32 v{PM}, v{S}, v{S+1}')
        e.I(f'v_cvt_pk_bf16_f32 v{PM+1}, v{S+2}, v{S+3}')
        e.I(f'v_mov_b32_dpp v{PB+2}, v{PB} {ROR8}')
        e.I(f'v_mov_b32_dpp v{PB+3}, v{PB+1} {ROR8}')
        e.I(f'v_mov_b32 v{t}, v{PM}')
        e.I(f'v_mov_b32 v{t+1}, v{PM+1}')
        if opt.tpos == 0: TS(e, 4)
        def cvm(ct):
            e.I(f'v_cvt_pk_bf16_f32 v{VWM+2*ct}, v{DM+4*ct}, v{DM+4*ct+1}')
            e.I(f'v_cvt_pk_bf16_f32 v{VWM+2*ct+1}, v{DM+4*ct+2}, v{DM+4*ct+3}')
        SUM = S
        e.I(f'{MFMA} {vr(OUT)}, {vr(VWX)}, {vr(PB)}, 0')
        e.I(f'v_permlane32_swap_b32 v{t}, v{PM}')
        e.I(f'v_permlane32_swap_b32 v{t+1}, v{PM+1}')
        e.I(f'{MFMA} {vr(SUM)}, {ar(AONE)}, {vr(PB)}, 0')
        cvm(0)
        e.I(f'{MFMA} {vr(OUT+4)}, {vr(VWX+4)}, {vr(PB)}, 0')
        cvm(1)
        e.I(f'{MFMA} {vr(OUT+8)}, {vr(VWX+8)}, {vr(PB)}, 0')
        cvm(2)
        e.I(f'{MFMA} {vr(OUT+12)}, {vr(VWX+12)}, {vr(PB)}, 0')
        cvm(3)
        e.I(f'{MFMA16} {vr(OUT)}, {vr(VWM,2)}, {vr(PM,2)}, {vr(OUT)}')
        ld()
        e.I(f'{MFMA16} {vr(SUM)}, {ar(AHALF,2)}, {vr(PM,2)}, {vr(SUM)}')
        ld()
        for ct in range(1, 4):
            e.I(f'{MFMA16} {vr(OUT+4*ct)}, {vr(VWM+2*ct,2)}, {vr(PM,2)}, {vr(OUT+4*ct)}')
            if ct < 3: ld()
        while kin: ld()
        if opt.tpos == 1: TS(e, 4)
        e.I('s_not_b64 exec, s[68:69]')
        e.I(f'ds_write_b128 v6, {vr(OUT)}')
        e.I(f'v_rcp_f32 v{t}, v{SUM}')
        e.I(f'ds_write_b128 v6, {vr(OUT+4)} offset:2048')
        e.I(f'ds_write_b32 v10, v{t}')
        e.I(f'ds_write_b128 v6, {vr(OUT+8)} offset:4096')
        e.I(f'ds_write_b128 v6, {vr(OUT+12)} offset:6144')
        e.I('s_mov_b64 exec, -1')
        e.I('s_waitcnt lgkmcnt(0)')
        if opt.tpos == 2: TS(e, 4)
        e.I('s_barrier')
        if opt.tpos == 3: TS(e, 4)
        e.I(f'ds_read_b64 {vr(t,2)}, v11')
        e.I(f'ds_read_b128 {vr(S)}, v7')
        e.I(f'ds_read_b128 {vr(S+4)}, v7 offset:512')
        e.I('s_waitcnt lgkmcnt(1)')
        for k in range(4): e.I(f'v_mul_f32 v{S+k}, v{S+k}, v{t}')
        e.I('s_waitcnt lgkmcnt(0)')
        for k in range(4): e.I(f'v_fmac_f32 v{S+k}, v{S+4+k}, v{t+1}')
        for k in range(4): e.I(f'v_add_f32_dpp v{S+k}, v{S+k}, v{S+k} {ROR8}')
        if opt.pbf:
            e.I(f'v_cvt_pk_bf16_f32 v{S+4}, v{S}, v{S+1}')
            e.I(f'v_cvt_pk_bf16_f32 v{S+5}, v{S+2}, v{S+3}')
            e.I(f'buffer_store_dwordx2 {vr(S+4,2)}, v13, {WS}, s42 offen sc1')
        else:
            e.I(f'buffer_store_dwordx4 {vr(S)}, v13, {WS}, s42 offen sc1')
        TS(e, 5)
        if opt.rpos == 2: e.I(f'buffer_store_dwordx{PW} {vr(SENT,PW)}, v13, {WS}, s43 offen sc1')
        e.I(f'v_mov_b32 v{PA}, 0'); e.I(f'v_mov_b32 v{PA+1}, 0')
        for k in range(4): e.I(f'v_cndmask_b32 v{S+k}, v{S+k}, 0, s[68:69]')
        if opt.pmf:
            e.I('s_waitcnt vmcnt(2)')
            for gi in range(opt.pmf): vw_grp(gi)
        if opt.pdelay: e.I(f's_sleep {opt.pdelay}')
        def shot():
            e.I('s_mov_b64 exec, s[68:69]')
            e.I(f'buffer_load_dwordx2 {vr(PA,2)}, v{PAD}, {WS}, s41 offen sc1')
            e.I('s_mov_b64 exec, -1')
            for m in range(1, 4): e.I(f'buffer_load_dwordx2 {vr(PA+2*m,2)}, v{PAD+m}, {WS}, s41 offen sc1')
            for k in range(4): e.I(f'v_mov_b32 v{T0+8+k}, v{S+k}')
        ql, qd, qf = e.lab('Lpp'), e.lab('Lpd'), e.lab('Lpf')
        shot()
        for gi in range(opt.pmf, opt.pmf + opt.pmf2): vw_grp(gi)
        e.I(f's_branch {qf}')
        e.L(ql)
        shot()
        e.L(qf)
        for m in range(4):
            e.I(f's_waitcnt vmcnt({3-m})')
            if m == 0: e.I(f'v_max_u32 v{T0}, v{PA}, v{PA+1}')
            else: e.I(f'v_max3_u32 v{T0}, v{T0}, v{PA+2*m}, v{PA+2*m+1}')
            if m == 3: e.I(f'v_cmp_eq_u32 vcc, -1, v{T0}')
            for k in range(4): e.I(f'v_dot2c_f32_bf16 v{T0+8+k}, {("s70", "s71")[k&1]}, v{PA+2*m+(k>>1)}')
        e.I(f's_cbranch_vccz {qd}')
        e.I('s_sub_u32 s31, s31, 1')
        e.I(f's_cbranch_scc0 {ql}')
        e.I('s_mov_b32 s31, 4')
        e.I('s_branch L_fail')
        e.L(qd)
        TS(e, 6)
        e.I('s_nop 1')
        for k in range(2): e.I(f'v_add_f32_dpp v{T0+4+k}, v{T0+8+k}, v{T0+8+k} row_ror:8 row_mask:0xf bank_mask:0x3')
        for k in range(2): e.I(f'v_add_f32_dpp v{T0+4+k}, v{T0+10+k}, v{T0+10+k} row_ror:8 row_mask:0xf bank_mask:0xc ; merge')
        e.I(f'v_cvt_pk_bf16_f32 v{T0+4}, v{T0+4}, v{T0+5}')
        e.I(f'buffer_store_dword v{T0+4}, v8, {WS}, s44 offen{fl}')
        TS(e, 7)
        e.I(f'buffer_store_dword v{SENT}, v8, {WS}, s45 offen{fl}')
        if opt.mbar: e.I('s_barrier')
        nvx = max(0, 12 - opt.kin - opt.kp)
        for x_ in kc[:nvx]: e.I(x_)
        assert opt.kin >= opt.pmf + opt.pmf2
        vw_x(None, kc[nvx:], nvx, opt.pmf + opt.pmf2)
        TS(e, 8)
        TSflush(e, 's30', 244, 245)
        if opt.dstamp: e.I('s_lshl_b32 s98, s25, 8'); e.I('s_add_u32 s98, s98, s30')
        DSTAMP(e, 2, 's_cmp_eq_u32 s98, 9216')
        if opt.dstamp: e.I('s_lshl_b32 s98, s25, 8'); e.I('s_add_u32 s98, s98, s30')
        DSTAMP(e, 3, 's_cmp_eq_u32 s98, 9218')
        if opt.dstamp: e.I('s_lshl_b32 s98, s25, 8'); e.I('s_add_u32 s98, s98, s30')
        DSTAMP(e, 4, 's_cmp_eq_u32 s98, 9278')
        e.I('s_add_u32 s30, s30, 1')
        e.I('s_cmp_lt_u32 s30, 63')
        e.I(f's_cbranch_scc1 {top}')
        if not slow: e.I('s_branch L_swend')
    e.L('L_swend')
    e.I('s_lshl_b32 s38, s20, 6')
    e.I('s_lshl_b32 s39, s22, 2')
    e.I('s_add_u32 s38, s38, s39')
    e.I(f's_add_u32 s38, s38, {FLGOX + 63*512}')
    e.I(f's_add_u32 s46, s62, {OX + (63 % RD)*SEG_QX}')
    e.I('s_add_u32 s56, s46, 4096')
    e.I('s_add_u32 s64, s46, 8192')
    e.I('s_lshl_b32 s39, s22, 10')
    e.I('v_add_u32 v6, s39, v2')
    e.I('s_lshl_b32 s39, s22, 12')
    e.I('v_add_u32 v7, s39, v2')
    e.I('s_lshr_b32 s40, s24, 1')
    e.I('s_lshl_b32 s40, s40, 2')
    e.I('s_add_u32 s40, s40, s22')
    e.I('s_lshl_b32 s40, s40, 10')
    e.I('s_and_b32 s41, s24, 1')
    e.I('s_lshl_b32 s41, s41, 3')
    e.I('s_add_u32 s40, s40, s41')
    e.I('s_mul_i32 s41, s20, 40960')
    e.I('s_add_u32 s40, s40, s41')
    e.I(f's_add_u32 s40, s40, {PX + 63*SEG_PX}')
    e.I('s_add_u32 s41, s40, 20480')
    e.I('s_mul_i32 s43, s20, 5')
    e.I('s_lshr_b32 s44, s24, 1')
    e.I('s_add_u32 s43, s43, s44')
    e.I('s_lshl_b32 s43, s43, 7')
    e.I(f's_add_u32 s43, s43, {HINT2}')
    e.I('v_mov_b32 v3, 0')
    e.I(f'v_mov_b32 v{ONE}, 1')
    e.I('s_waitcnt vmcnt(0)')
    TS(e, 0)
    wait_flags(e, 3, 's38', 1, T0, 5, sleep=opt.esleep)
    TS(e, 1)
    order = (0, 6, 1, 7, 2, 8, 3, 9, 4, 10, 5, 11)
    for q in order: e.I(f'buffer_load_dwordx4 {vr(VXF+4*q)}, v2, {WS}, {("s46", "s56", "s64")[q//4]} offen offset:{(q%4)*1024} sc1')
    for n_, q in enumerate(order):
        qt, kk = q // 6, q % 6
        e.I(f's_waitcnt vmcnt({11 - n_})')
        for ct in range(4):
            d = vr(DW + (qt*4+ct)*4)
            e.I(f'{MFMA} {d}, {ar((ct*6+kk)*4)}, {vr(VXF+4*q)}, {0 if kk == 0 else d}')
    TS(e, 2)
    for k in range(8): e.I(f'ds_write_b128 v6, {vr(DW+4*k)} offset:{k*4096}')
    e.I('s_waitcnt lgkmcnt(0)')
    e.I('s_barrier')
    for qt in range(2):
        for hh in range(4): e.I(f'ds_read_b128 {vr(KXF+(qt*4+hh)*4)}, v7 offset:{qt*16384 + hh*1024}')
    for qt in range(2):
        r = KXF + qt*16
        e.I(f's_waitcnt lgkmcnt({4 - 4*qt})')
        for k in range(4):
            e.I(f'v_add_f32 v{r+k}, v{r+k}, v{r+4+k}')
            e.I(f'v_add_f32 v{r+8+k}, v{r+8+k}, v{r+12+k}')
        for k in range(4): e.I(f'v_add_f32 v{r+k}, v{r+k}, v{r+8+k}')
        e.I(f'v_cvt_pk_bf16_f32 v{r+4}, v{r}, v{r+1}')
        e.I(f'v_cvt_pk_bf16_f32 v{r+5}, v{r+2}, v{r+3}')
        e.I(f'buffer_store_dwordx2 {vr(r+4,2)}, v2, {WS}, {("s40", "s41")[qt]} offen sc1')
    TS(e, 3)
    e.I('s_and_b32 s38, s25, 7')
    e.I(f's_cmp_eq_u32 s38, {opt.hwv}')
    e.I('s_cselect_b64 exec, 1, 0')
    e.I(f'buffer_store_dword v{ONE}, v3, {WS}, s43 offen sc1')
    e.I('s_mov_b64 exec, -1')
    TSflush(e, '63', 244, 245)
    e.I('s_endpgm')

def role_xw(e):
    OF = 16
    D = 112
    T0 = 160; ONE = 252
    e.I('s_sub_u32 s24, s21, 22')
    srd(e, 8, 66, 6144 * 1280)
    e.I(f's_mul_i32 s28, s20, {768*1280}')
    e.I('s_lshl_b32 s29, s24, 8')
    e.I('s_add_u32 s28, s28, s29')
    e.I('s_add_u32 s29, s28, 128')
    e.I(f'v_lshlrev_b32 v{ONE+1}, 2, v1')
    e.I('s_lshl_b32 s38, s20, 8')
    e.I(f's_add_u32 s38, s38, {FLGQ}')
    if opt.xlate & 1: wait_first(e, T0)
    if opt.touch:
        jobs = []
        for sl in range(RD):
            if sl >= 2: jobs += [(b_ + sl * SEG_QX, 12288, 96) for b_ in (KX, VX, QX)] + [(XP + sl * SEG_XP, 6144, 48), (VM + sl * SEG_VM, 3072, 24)]
            if sl >= 2: jobs += [(OX + (sl - 2) * SEG_QX, 12288, 96)]
        jobs += [(OX + sl * SEG_QX, 12288, 96) for sl in (6, 7)]
        e.I('s_lshl_b32 s40, s20, 2')
        e.I('s_add_u32 s40, s40, s22')
        touch_jobs(e, jobs, 's24', 5, 's40', 16)
    pass
    load_weights(e, [('s[8:11]', 's28', 0, 768), ('s[8:11]', 's29', 96, 768)], 1280, 256, True, 3, 4)
    e.I(f'v_lshlrev_b32 v{ONE+1}, 2, v1')
    e.I('s_lshl_b32 s38, s20, 2')
    e.I('s_add_u32 s38, s38, s22')
    e.I('s_lshl_b32 s39, s38, 2')
    e.I('v_lshlrev_b32 v3, 7, v1')
    e.I('v_add_u32 v3, s39, v3')
    e.I(f'v_mov_b32 v{ONE}, 1')
    e.I('s_mul_i32 s62, s22, 12288')
    e.I('s_mul_i32 s63, s38, 12288')
    e.I(f's_add_u32 s63, s63, {OX}')
    e.I('s_mul_i32 s64, s20, 40960')
    e.I('s_lshl_b32 s65, s24, 2')
    e.I('s_add_u32 s65, s65, s22')
    e.I('s_lshl_b32 s65, s65, 10')
    e.I('s_add_u32 s64, s64, s65')
    e.I(f's_add_u32 s64, s64, {PX}')
    e.I('s_lshl_b32 s66, s24, 8')
    e.I(f's_add_u32 s66, s66, {FLGPX}')
    def pxflag():
        e.I('s_mov_b64 exec, 3')
        e.I(f'buffer_store_dword v{ONE}, v3, {WS}, s54 offen sc1')
        e.I('s_mov_b64 exec, s[60:61]')
        e.I(f'buffer_store_dword v{ONE}, v6, {WS}, s53 offen sc1')
        e.I('s_mov_b64 exec, -1')
    wait_reg(e, T0)
    top, nof, late, nxt_, last = e.lab('Lxt'), e.lab('Lxn'), e.lab('Lxl'), e.lab('Lxx'), e.lab('Lxe')
    e.I('s_lshl_b32 s67, s20, 6')
    e.I('s_lshl_b32 s38, s22, 2')
    e.I('s_add_u32 s67, s67, s38')
    e.I(f's_add_u32 s67, s67, {FLGOX}')
    e.I('s_lshl_b32 s38, s20, 5')
    e.I('s_add_u32 s38, s38, s24')
    e.I('s_lshl_b32 s38, s38, 2')
    e.I('v_mov_b32 v6, s38')
    e.I('v_mov_b32 v4, 0')
    e.I('v_mov_b32 v5, v2')
    def dma(sn):
        e.I(f's_and_b32 s55, {sn}, {RD-1}')
        e.I(f's_mul_i32 s55, s55, {SEG_QX}')
        e.I('s_add_u32 s55, s55, s63')
        e.I(f's_and_b32 s56, {sn}, 1')
        e.I('s_mul_i32 s56, s56, 49152')
        e.I('s_add_u32 s56, s56, s62')
        for m in range(12):
            e.I(f's_add_u32 m0, s56, {m*1024}')
            e.I(f'buffer_load_dwordx4 v2, {WS}, s55 offen sc1 lds')
            if m < 11: e.I('s_add_u32 s55, s55, 1024')
    e.I('s_mov_b32 s30, 0')
    wait_flags(e, 4, 's67', 1, T0, 5, sleep=opt.xsleep)
    dma('s30')
    e.L(top)
    TS(e, 0)
    e.I('s_add_u32 s58, s30, 1')
    e.I('s_min_u32 s57, s58, 62')
    e.I('s_lshl_b32 s57, s57, 9')
    e.I('s_add_u32 s57, s57, s67')
    e.I('s_waitcnt vmcnt(0)')
    e.I(f'buffer_load_dword v{T0}, v4, {WS}, s57 offen sc1')

    e.I('s_cmp_eq_u32 s30, 0')
    e.I(f's_cbranch_scc1 {nof}')
    e.I('s_cmp_lg_u32 s59, 0')
    e.I(f's_cbranch_scc1 {nof}')
    pxflag()
    nof2 = e.lab('Lxm')
    e.I(f's_branch {nof2}')
    e.L(nof)
    for _ in range(2): e.I(f'buffer_load_dword v{T0+1}, v4, {WS}, s57 offen sc1')
    e.L(nof2)
    e.I('s_barrier')
    TS(e, 1)
    e.I(f's_mul_i32 s50, s30, {SEG_PX}')
    e.I('s_add_u32 s50, s50, s64')
    e.I('s_add_u32 s51, s50, 20480')
    e.I('s_mul_i32 s54, s30, 1280')
    e.I('s_add_u32 s54, s54, s66')
    e.I('s_and_b32 s53, s30, 3')
    e.I('s_lshl_b32 s53, s53, 10')
    e.I(f's_add_u32 s53, s53, {HINT}')
    e.I(f's_cmp_ge_u32 s30, {opt.cwarm}')
    e.I('s_cselect_b32 s60, 1, 0')
    e.I('s_cmp_eq_u32 s22, 0')
    e.I('s_cselect_b32 s60, s60, 0')
    e.I('s_mov_b32 s61, 0')
    TS(e, 2)
    PF = 6
    def rd(kk):
        hl, p = kk // 6, kk % 6
        for qt in range(2):
            e.I(f'ds_read_b128 {vr(OF + ((2*kk+qt) % 24)*4)}, v5 offset:{hl*12288 + (qt*6+p)*1024}')
    for kk in range(PF): rd(kk)
    for kk in range(24):
        nxt = min(24, kk + PF) - (kk + 1)
        e.I(f's_waitcnt lgkmcnt({2*nxt})')
        for qt in range(2):
            for b in range(2):
                d = vr(D + 4*(qt*2+b))
                e.I(f'{MFMA} {d}, {ar(96*b+4*kk)}, {vr(OF + ((2*kk+qt) % 24)*4)}, {0 if kk == 0 else d}')
        if kk + PF < 24: rd(kk + PF)
        if kk == 4:
            e.I('s_waitcnt vmcnt(2)')
            e.I(f'v_readfirstlane_b32 s59, v{T0}')
            e.I('s_cmp_eq_u32 s30, 62')
            e.I('s_cselect_b32 s59, 0, s59')
            e.I('s_cmp_eq_u32 s59, 0')
            e.I(f's_cbranch_scc1 {late}')
            dma('s58')
            e.L(late)
        if kk == 16: e.I(f'buffer_load_dword v{T0}, v4, {WS}, s57 offen sc1')
    sc = e.lab('Lxs')
    e.I('s_cmp_lg_u32 s59, 0')
    e.I(f's_cbranch_scc1 {sc}')
    e.I('s_cmp_eq_u32 s30, 62')
    e.I(f's_cbranch_scc1 {sc}')
    e.I('s_waitcnt vmcnt(0)')
    e.I(f'v_readfirstlane_b32 s59, v{T0}')
    e.I('s_cmp_eq_u32 s59, 0')
    e.I(f's_cbranch_scc1 {sc}')
    dma('s58')
    e.L(sc)
    for qt, so in enumerate(('s50', 's51')):
        for k in range(4): e.I(f'v_cvt_pk_bf16_f32 v{D+16+4*qt+k}, v{D+8*qt+2*k}, v{D+8*qt+2*k+1}')
        e.I(f'buffer_store_dwordx4 {vr(D+16+4*qt)}, v2, {WS}, {so} offen sc1')
    e.I('v_xor_b32 v5, 49152, v5')
    TS(e, 3)
    TSflush(e, 's30')
    e.I('s_cmp_eq_u32 s30, 62')
    e.I(f's_cbranch_scc1 {last}')
    e.I('s_cmp_lg_u32 s59, 0')
    e.I('s_mov_b32 s59, 0')
    e.I(f's_cbranch_scc1 {nxt_}')
    e.I(f'buffer_load_dword v{T0}, v4, {WS}, s57 offen sc1')
    e.I('s_waitcnt vmcnt(0)')
    e.I(f'v_readfirstlane_b32 s38, v{T0}')
    e.I('s_cmp_lg_u32 s38, 0')
    sl2 = e.lab('Lxq')
    e.I(f's_cbranch_scc1 {sl2}')
    pxflag()
    e.I('s_mov_b32 s59, 1')
    wait_flags(e, 4, 's57', 1, T0, 5, sleep=opt.xsleep)
    e.L(sl2)
    dma('s58')
    e.L(nxt_)
    e.I('s_mov_b32 s30, s58')
    e.I(f's_branch {top}')
    e.L(last)
    e.I('s_waitcnt vmcnt(0)')
    pxflag()
    e.I('s_endpgm')

def role_att(e):
    fl = ''
    KF, QF, VF = 0, 48, 96
    XPF = 16
    SA, SB, PA_, PB_ = 40, 48, 60, 64
    DO, OB = 72, 136
    T0 = 226
    C0, C1 = 232, 236
    ONE = 252
    e.I('s_sub_u32 s25, s21, 27')
    e.I('s_lshl_b32 s26, s20, 2')
    e.I('s_add_u32 s26, s26, s22')
    e.I(f's_mov_b32 s52, {SC_L2E:#x}'); e.I(f's_mov_b32 s53, {SC_L2E | 0x80000000:#x}')
    e.I(f'v_lshlrev_b32 v{ONE+1}, 2, v1')
    e.I('s_lshl_b32 s38, s22, 2')
    e.I(f'v_mov_b32 v{ONE+2}, s38')
    e.I(f'v_mov_b32 v{ONE}, 1')
    lane_ig(e, 14, 15)
    e.I(f'v_mov_b32 v3, {NEG_BIG:#x}')
    e.I('v_cmp_gt_u32 vcc, 32, v1')
    e.I(f'v_cndmask_b32 v{C0}, 0, v3, vcc')
    for k in range(1, 4): e.I(f'v_mov_b32 v{C0+k}, v{C0}')
    e.I('v_lshlrev_b32 v5, 2, v15')
    for r in range(4):
        e.I(f'v_add_u32 v6, {r}, v5')
        e.I('v_cmp_gt_u32 vcc, v6, v14')
        e.I(f'v_cndmask_b32 v{C1+r}, 0, v3, vcc')
    e.I('s_mul_i32 s58, s26, 6144')
    e.I('s_lshl_b32 s59, s22, 14')
    e.I('v_and_b32 v4, 3, v1')
    e.I('v_lshlrev_b32 v4, 8, v4')
    e.I('v_bfe_u32 v5, v1, 2, 3')
    e.I('v_lshl_add_u32 v5, v5, 4, v4')
    e.I('v_add_u32 v5, s59, v5')
    e.I('v_lshrrev_b32 v6, 2, v1')
    e.I('v_lshl_add_u32 v4, v6, 4, v4')
    e.I('v_add_u32 v4, s59, v4')
    wait_reg(e, T0)
    e.I('v_lshrrev_b32 v12, 2, v1')
    e.I('v_lshlrev_b32 v12, 8, v12')
    e.I('v_and_b32 v13, 3, v1')
    e.I('v_lshl_add_u32 v12, v13, 2, v12')
    e.I('s_lshl_b32 s38, s20, 4')
    e.I('v_add_u32 v12, s38, v12')
    e.I('s_lshl_b32 s60, s26, 6')
    e.I(f's_add_u32 s60, s60, {FLGQ}')
    e.I('s_cmp_lg_u32 s23, 0')
    e.I('s_cbranch_scc1 L_atts')
    for slow in (False, True):
        fl = ' sc1' if slow else ''
        if slow: e.L('L_atts')
        top = e.lab('Lat')
        e.I('s_mov_b32 s30, s25')
        e.L(top)
        TS(e, 0)
        e.I('s_max_u32 s51, s30, 2')
        e.I('s_lshl_b32 s51, s51, 11')
        e.I('s_add_u32 s51, s51, s60')
        e.I(f's_and_b32 s42, s30, {RD-1}')
        e.I(f's_mul_i32 s40, s42, {SEG_QX}')
        e.I('s_lshl_b32 s41, s58, 1')
        e.I('s_add_u32 s40, s40, s41')
        e.I(f's_mul_i32 s41, s42, {SEG_XP}')
        e.I('s_add_u32 s41, s41, s58')
        nbp = e.lab('Lab')
        e.I(f's_cmp_lt_u32 s30, {RD}')
        e.I(f's_cbranch_scc1 {nbp}')
        e.I(f's_sub_u32 s50, s30, {RD}')
        e.I('s_mul_i32 s50, s50, 1280')
        e.I(f's_add_u32 s50, s50, {FLGPX}')
        wait_flags(e, 12, 's50', 0xfffff, T0, 14, sleep=16)
        e.L(nbp)
        wait_flags(e, ONE + 1, 's51', 0xfff, T0, 6, sleep=opt.asleep)
        def loads(dst, n, sbase, add):
            e.I(f's_add_u32 s48, {sbase}, {add}')
            for q in range(n):
                if q and q % 4 == 0: e.I('s_add_u32 s48, s48, 4096')
                e.I(f'buffer_load_dwordx4 {dst(q)}, v2, {WS}, s48 offen offset:{(q%4)*1024} sc1')
        e.I(f's_add_u32 s48, s40, {VX}')
        for q in range(12):
            e.I(f's_add_u32 m0, s59, {q*1024}')
            e.I(f'buffer_load_dwordx4 v2, {WS}, s48 offen sc1 lds')
            e.I('s_add_u32 s48, s48, 1024')
        loads(lambda q: ar(KF + 4*q), 12, 's40', KX)
        loads(lambda q: ar(QF + 4*q), 12, 's40', QX)
        e.I('s_add_u32 s51, s30, 2')
        e.I('s_lshl_b32 s51, s51, 11')
        e.I('s_add_u32 s51, s51, s60')
        e.I('s_waitcnt vmcnt(24)')
        for T in range(12):
            for rt in range(2):
                e.I(f'ds_read_b64_tr_b16 {ar(VF+6*T+2+2*rt,2)}, v4 offset:{rt*6144 + (T>>1)*1024 + (T&1)*8}')
        e.I('s_waitcnt vmcnt(0)')
        for p in range(6):
            e.I(f'{MFMA} {vr(SA+4)}, {ar(KF+4*p)}, {ar(QF+4*p)}, {vr(C1) if p == 0 else vr(SA+4)}')
            e.I(f'{MFMA} {vr(SB+4)}, {ar(KF+4*p)}, {ar(QF+24+4*p)}, {0 if p == 0 else vr(SB+4)}')
            e.I(f'{MFMA} {vr(SB+8)}, {ar(KF+24+4*p)}, {ar(QF+24+4*p)}, {vr(C1) if p == 0 else vr(SB+8)}')
        wait_flags(e, ONE + 1, 's51', 0xfff, T0, 6, sleep=opt.asleep)
        TS(e, 1)
        loads(lambda q: vr(XPF + 4*q), 6, 's41', XP)
        e.I('s_lshr_b32 s42, s41, 1')
        e.I(f's_add_u32 s48, s42, {VM}')
        for q in range(3):
            e.I(f's_add_u32 m0, s59, {12288 + q*1024}')
            e.I(f'buffer_load_dwordx4 v2, {WS}, s48 offen sc1 lds')
            e.I('s_add_u32 s48, s48, 1024')
        for p in range(6):
            e.I(f's_waitcnt vmcnt({8-p})')
            e.I(f'{MFMA} {vr(SA)}, {vr(XPF+4*p)}, {ar(QF+4*p)}, {vr(C0) if p == 0 else vr(SA)}')
            e.I(f'{MFMA} {vr(SB)}, {vr(XPF+4*p)}, {ar(QF+24+4*p)}, {vr(C0) if p == 0 else vr(SB)}')
        TS(e, 2)
        e.I('s_waitcnt vmcnt(0)')
        for T in range(12):
            kk = T >> 1
            e.I(f'ds_read_b64_tr_b16 {ar(VF+6*T,2)}, v5 offset:{12288 + (kk % 3)*1024 + (kk // 3)*128 + (T&1)*8}')
        for x_ in softmax_list(SA, 8, PA_, T0): e.I(x_)
        e.I(f's_add_u32 s48, s40, {OX}')
        e.I('s_add_u32 s49, s48, 4096')
        e.I('s_add_u32 s50, s48, 8192')
        e.I('s_waitcnt lgkmcnt(0)')
        def fin(qt, p):
            d = DO + 8 * (p + (2 if qt else 0) * 3) % 64; o = OB + 4 * (qt*6 + p); q = qt*6 + p
            return [f'v_cvt_pk_bf16_f32 v{o+k}, v{d+2*k}, v{d+2*k+1}' for k in range(4)] + \
                   [f'buffer_store_dwordx4 {vr(o)}, v2, {WS}, {("s48", "s49", "s50")[q//4]} offen offset:{(q%4)*1024}{fl}']
        smb = softmax_list(SB, 12, PB_, T0)
        for T in range(12):
            e.I(f'{MFMA} {vr(DO+4*T)}, {ar(VF+6*T)}, {vr(PA_)}, 0')
            for _ in range(3): e.I(smb.pop(0))
        outs = [x_ for p in range(6) for x_ in fin(0, p)]
        while smb:
            e.I(smb.pop(0)); e.I(smb.pop(0)) if smb else None
            if outs: e.I(outs.pop(0))
        for x_ in outs: e.I(x_)
        for p in range(6):
            d = DO + 8 * (p + 6) % 64
            for t in range(2): e.I(f'{MFMA16} {vr(d+4*t)}, {ar(VF+6*(2*p+t),2)}, {vr(PB_,2)}, 0')
            for t in range(2): e.I(f'{MFMA} {vr(d+4*t)}, {ar(VF+6*(2*p+t)+2)}, {vr(PB_+2)}, {vr(d+4*t)}')
            if p > 1:
                for x_ in fin(1, p - 2): e.I(x_)
        for p in (4, 5):
            for x_ in fin(1, p): e.I(x_)
        e.I('s_lshl_b32 s50, s30, 3')
        e.I('s_add_u32 s50, s50, s20')
        e.I('s_lshl_b32 s50, s50, 6')
        e.I(f's_add_u32 s50, s50, {FLGOX}')
        e.I('s_waitcnt vmcnt(0)')
        set_flag(e, ONE + 2, 's50', ONE, fl)
        TS(e, 3)
        TSflush(e, 's30', 230, 231)
        e.I('s_add_u32 s30, s30, 2')
        e.I('s_cmp_lt_u32 s30, 64')
        e.I(f's_cbranch_scc1 {top}')
        e.I('s_endpgm')

F_LX, F_LH = 0, 98304
def role_ffn(e):
    ACC2 = 0
    ACC1 = 16
    BF = 48
    HP = 80
    WR = 96
    NW = 40
    e.I('s_sub_u32 s26, s21, 29')
    e.I('s_mul_i32 s25, s20, 3')
    e.I('s_add_u32 s26, s26, s25')
    e.I('s_mov_b32 s24, s26')
    srd(e, 8, 56, 640 * 3072); srd(e, 12, 58, 1536 * 1280)
    if opt.xlate & 4: wait_first(e, 16)
    transpose_w(e, 's26')
    e.I('s_waitcnt vmcnt(0)')
    e.I('s_barrier')
    count_up(e, 3, D_TR)
    wait_count(e, 3, D_TR, 24, 16)
    if opt.urg: wait_count(e, 3, D_W, 80, 16)
    wait_reg(e, 16, 32)
    e.L('L_ffn_task')
    e.I('s_lshl_b32 s38, s24, 2')
    e.I('s_add_u32 s38, s38, s22')
    e.I('s_mul_i32 s39, s38, 20480')
    e.I(f's_add_u32 s39, s39, {XN}')
    e.I('s_mul_i32 s40, s22, 20480')
    for m in range(20):
        e.I(f's_add_u32 m0, s40, {m*1024}')
        e.I(f'buffer_load_dwordx4 v2, {WS}, s39 offen lds')
        e.I('s_add_u32 s39, s39, 1024')
    for k in range(160): e.I(f'v_accvgpr_write_b32 a{k}, 0')
    e.I('s_mul_i32 s41, s22, 40960')
    e.I(f's_add_u32 s41, s41, {W1F}')
    e.I(f's_mul_i32 s42, s22, {10*48*1024}')
    e.I(f's_add_u32 s42, s42, {W2F}')
    e.I('v_add_u32 v3, 20480, v2')
    for u in range(10):
        e.I(f's_mov_b32 s54, {u*48*1024}')
        e.I(f'v_add_u32 v{4+u}, s54, v2')
    e.I(f'v_add_u32 v14, {F_LH}, v2')
    e.I('s_lshl_b32 s38, s22, 12')
    e.I('v_add_u32 v15, s38, v14')
    def wload(idx, adv):
        dst = vr(WR + (idx % NW) * 4)
        if idx < 40:
            kk, u = idx // 2, idx % 2
            e.I(f's_add_u32 s45, {adv[0]}, {(kk//4)*4096}')
            e.I(f'buffer_load_dwordx4 {dst}, v{2+u}, {WS}, s45 offen offset:{(kk%4)*1024}{" nt" if opt.ffnnt else ""}')
        else:
            pp, u = (idx - 40) // 10, (idx - 40) % 10
            e.I(f'buffer_load_dwordx4 {dst}, v{4+u}, {WS}, {adv[1]} offen offset:{pp*1024}{" nt" if opt.ffnnt else ""}')
    for idx in range(NW - 2): wload(idx, ('s41', 's42'))
    e.I(f's_waitcnt vmcnt({NW-2})')
    e.I('s_barrier')
    top = e.lab('Lft')
    TS(e, 0)
    e.I('s_mov_b32 s30, 0')
    e.L(top)
    e.I('s_cmp_lt_u32 s30, 11')
    e.I('s_cselect_b32 s46, 163840, 0')
    e.I('s_cselect_b32 s47, 4096, 0')
    e.I('s_add_u32 s43, s41, s46')
    e.I('s_add_u32 s44, s42, s47')
    D = NW - 2
    def pref(idx):
        j = idx + D
        if j < 80: wload(j, ('s41', 's42'))
        else: wload(j - 80, ('s43', 's44'))
    def rdx(kk):
        for rt in range(4):
            e.I(f'ds_read_b128 {vr(BF + ((kk%2)*4+rt)*4)}, v{2 if rt < 3 else 3} offset:{(rt if rt < 3 else 2)*20480 + kk*1024}')
    rdx(0)
    for kk in range(20):
        if kk + 1 < 20: rdx(kk + 1)
        e.I(f's_waitcnt vmcnt({D-2}) lgkmcnt({4 if kk+1 < 20 else 0})')
        for u in range(2):
            idx = 2 * kk + u
            for rt in range(4):
                d = vr(ACC1 + (u*4+rt)*4)
                e.I(f'{MFMA} {d}, {vr(WR+(idx%NW)*4)}, {vr(BF+((kk%2)*4+rt)*4)}, {0 if kk == 0 else d}')
        pref(2 * kk); pref(2 * kk + 1)
    for rt in range(4):
        for u in range(2):
            d = ACC1 + (u*4+rt)*4
            for k in range(4): e.I(f'v_max_f32 v{d+k}, 0, v{d+k}')
            e.I(f'v_cvt_pk_bf16_f32 v{HP+rt*4+2*u}, v{d}, v{d+1}')
            e.I(f'v_cvt_pk_bf16_f32 v{HP+rt*4+2*u+1}, v{d+2}, v{d+3}')
        e.I(f'ds_write_b128 v15, {vr(HP+rt*4)} offset:{rt*1024}')
    e.I('s_waitcnt lgkmcnt(0)')
    e.I('s_barrier')
    def rdh(pp):
        for rt in range(4):
            e.I(f'ds_read_b128 {vr(BF + ((pp%2)*4+rt)*4)}, v14 offset:{pp*4096 + rt*1024}')
    rdh(0)
    for pp in range(4):
        if pp + 1 < 4: rdh(pp + 1)
        for u in range(10):
            idx = 40 + pp * 10 + u
            w = f's_waitcnt vmcnt({D-1})'
            if u == 0: w += f' lgkmcnt({4 if pp+1 < 4 else 0})'
            e.I(w)
            for rt in range(4):
                d = ar(ACC2 + (u*4+rt)*4)
                e.I(f'{MFMA} {d}, {vr(WR+(idx%NW)*4)}, {vr(BF+((pp%2)*4+rt)*4)}, {d}')
            pref(idx)
    e.I('v_xor_b32 v14, 16384, v14')
    e.I('v_xor_b32 v15, 16384, v15')
    e.I('s_mov_b32 s41, s43')
    e.I('s_mov_b32 s42, s44')
    e.I('s_add_u32 s30, s30, 1')
    e.I('s_cmp_lt_u32 s30, 12')
    e.I(f's_cbranch_scc1 {top}')
    e.I('s_waitcnt vmcnt(0)')
    TS(e, 1)
    e.I('v_lshlrev_b32 v3, 3, v1')
    e.I(f's_mul_i32 s38, s24, {4*40*512}')
    e.I(f's_mul_i32 s39, s22, {10*512}')
    e.I('s_add_u32 s38, s38, s39')
    e.I(f's_add_u32 s38, s38, {G_}')
    e.I(f's_mov_b32 s52, {f2u(-1.4426950408889634):#x}')
    for rt in range(4):
        e.I(f's_add_u32 s39, s38, {rt*40*512}')
        e.I('s_add_u32 s40, s39, 4096')
        for u in range(10):
            t = 16 + ((rt*10+u) % 4) * 16
            a0 = ACC2 + (u*4+rt)*4
            for k in range(4): e.I(f'v_accvgpr_read_b32 v{t+k}, a{a0+k}')
            e.I(f'v_cvt_pk_bf16_f32 v{t+4}, v{t}, v{t+1}')
            e.I(f'v_cvt_pk_bf16_f32 v{t+5}, v{t+2}, v{t+3}')
            e.I(f'v_lshlrev_b32 v{t}, 16, v{t+4}')
            e.I(f'v_and_b32 v{t+1}, 0xffff0000, v{t+4}')
            e.I(f'v_lshlrev_b32 v{t+2}, 16, v{t+5}')
            e.I(f'v_and_b32 v{t+3}, 0xffff0000, v{t+5}')
            for k in range(4): e.I(f'v_mul_f32 v{t+4+k}, s52, v{t+k}')
            for k in range(4): e.I(f'v_exp_f32 v{t+4+k}, v{t+4+k}')
            for k in range(4): e.I(f'v_add_f32 v{t+4+k}, 1.0, v{t+4+k}')
            for k in range(4): e.I(f'v_rcp_f32 v{t+4+k}, v{t+4+k}')
            for k in range(4): e.I(f'v_mul_f32 v{t+k}, v{t+k}, v{t+4+k}')
            e.I(f'v_cvt_pk_bf16_f32 v{t+8}, v{t}, v{t+1}')
            e.I(f'v_cvt_pk_bf16_f32 v{t+9}, v{t+2}, v{t+3}')
            e.I(f'buffer_store_dwordx2 {vr(t+8,2)}, v3, {WS}, {"s39" if u < 8 else "s40"} offen offset:{(u%8)*512} sc1')
    e.I('s_waitcnt vmcnt(0)')
    TS(e, 2)
    if opt.ts: e.I('s_lshr_b32 s50, s24, 3'); e.I('s_add_u32 s50, s50, 64')
    TSflush(e, 's50')
    e.I('s_barrier')
    e.I('s_cmp_lg_u32 s22, 0')
    e.I('s_cbranch_scc1 L_ffn_nf')
    e.I('v_mov_b32 v4, 1')
    e.I('s_lshl_b32 s38, s24, 2')
    e.I('v_mov_b32 v5, s38')
    e.I(f's_mov_b32 s39, {FLGG}')
    set_flag(e, 5, 's39', 4, ' sc1')
    e.I('s_waitcnt vmcnt(0)')
    e.L('L_ffn_nf')
    e.I('s_cmp_ge_u32 s26, 8')
    e.I(f's_cbranch_scc1 {"L_end" if opt.nocmb else "L_cmb"}')
    e.I('s_add_u32 s24, s24, 24')
    e.I('s_cmp_lt_u32 s24, 32')
    e.I('s_cbranch_scc1 L_ffn_task')
    e.I('s_endpgm')

def role_cmb(e):
    PXR = 16
    GR = 144
    XR_ = 152
    T0 = 160
    srd(e, 8, 68, 2048 * 1280)
    srd(e, 12, 70, 2048 * 1280)
    e.I('s_sub_u32 s24, s26, 8')
    e.I('s_lshl_b32 s24, s24, 2')
    e.I('s_add_u32 s30, s24, s22')
    e.I('v_lshlrev_b32 v3, 2, v1')
    e.I('v_lshlrev_b32 v4, 3, v1')
    e.I('v_mov_b32 v6, 0')
    lane_ig(e, 14, 15)
    e.I('v_mul_u32_u24 v5, 1280, v14')
    e.I('v_lshl_add_u32 v5, v15, 3, v5')
    e.I('s_mov_b32 s49, 0')
    e.I('s_mov_b32 s52, 0x3f80'); e.I('s_mov_b32 s53, 0x3f800000')
    e.I('v_lshrrev_b32 v7, 4, v1')
    e.I('v_mul_u32_u24 v7, 40960, v7')
    e.I('v_lshl_add_u32 v7, v14, 7, v7')
    e.I(f'v_add_u32 v8, {4*40960}, v7')
    if opt.t63:
        e.I('s_add_u32 s38, s30, 1216')
        e.I('s_mul_i32 s39, s38, 3277')
        e.I('s_lshr_b32 s39, s39, 16')
        e.I('s_mul_i32 s40, s39, 20')
        e.I('s_sub_u32 s40, s38, s40')
        e.I(f's_mul_i32 s43, s39, {SEG_PX}')
        e.I('s_lshl_b32 s40, s40, 11')
        e.I('s_add_u32 s43, s43, s40')
        e.I(f's_add_u32 s43, s43, {PX}')
        for k in range(2): e.I(f'buffer_load_dword v{T0}, v{7+k}, {WS}, s43 offen sc1')
    top = e.lab('Lct')
    e.L(top)
    TS(e, 0)
    e.I('s_mul_i32 s38, s30, 3277')
    e.I('s_lshr_b32 s38, s38, 16')
    e.I('s_mul_i32 s39, s38, 20')
    e.I('s_sub_u32 s39, s30, s39')
    e.I('s_cmp_ge_u32 s39, 10')
    e.I('s_cselect_b32 s40, 1, 0')
    e.I('s_mul_i32 s41, s40, 10')
    e.I('s_sub_u32 s41, s39, s41')
    gok = e.lab('Lcg')
    e.I('s_cmp_lg_u32 s49, 0')
    e.I(f's_cbranch_scc1 {gok}')
    e.I(f's_mov_b32 s42, {FLGG}')
    e.I('s_mov_b32 exec_hi, 0')
    e.I(f'buffer_load_dword v{T0}, v3, {WS}, s42 offen sc1')
    e.I('s_waitcnt vmcnt(0)')
    e.I(f'v_cmp_eq_u32 vcc, 0, v{T0}')
    e.I('s_mov_b64 exec, -1')
    e.I('s_cmp_eq_u32 vcc_lo, 0')
    e.I('s_cselect_b32 s49, 1, 0')
    e.I(f's_cbranch_scc1 {gok}')
    e.I('s_lshr_b32 s42, s38, 1')
    e.I('s_lshl_b32 s42, s42, 2')
    e.I(f's_add_u32 s42, s42, {FLGG}')
    wait_flags(e, 6, 's42', 1, T0, 7, sleep=32)
    e.L(gok)
    e.I(f's_mul_i32 s43, s38, {SEG_PX}')
    e.I('s_mul_i32 s44, s40, 20480')
    e.I('s_add_u32 s43, s43, s44')
    e.I('s_lshl_b32 s44, s41, 11')
    e.I('s_add_u32 s43, s43, s44')
    e.I(f's_add_u32 s43, s43, {PX}')
    e.I('s_lshl_b32 s45, s38, 1')
    e.I('s_add_u32 s45, s45, s40')
    e.I('s_mul_i32 s46, s45, 20480')
    e.I('s_lshr_b32 s47, s41, 1')
    e.I('s_lshl_b32 s47, s47, 2')
    e.I('s_and_b32 s48, s41, 1')
    e.I('s_add_u32 s44, s47, s48')
    e.I('s_lshl_b32 s47, s44, 10')
    e.I('s_add_u32 s47, s47, s46')
    e.I(f's_add_u32 s47, s47, {G_}')
    e.I('s_lshl_b32 s48, s44, 6')
    e.I('s_add_u32 s48, s48, s46')
    TO = (0, 4, 1, 5)
    for t in range(4):
        e.I(f'buffer_load_dwordx2 {vr(GR+2*t,2)}, v4, {WS}, s47 offen offset:{TO[t]*512} sc1')
        e.I(f'buffer_load_dwordx2 {vr(XR_+2*t,2)}, v5, s[8:11], s48 offen offset:{TO[t]*32}')
    c1, c2 = e.lab('Lc1'), e.lab('Lc2')
    e.I('s_mul_i32 s50, s38, 10')
    e.I('s_and_b32 s44, s41, 14')
    e.I('s_add_u32 s50, s50, s44')
    e.I('s_lshl_b32 s50, s50, 7')
    e.I(f's_add_u32 s50, s50, {FLGPX}')
    e.I(f's_cmp_ge_u32 s38, {opt.cwarm}')
    e.I(f's_cbranch_scc1 {c1}')
    e.I(f's_add_u32 s42, s38, {opt.clag}')
    e.I('s_lshl_b32 s42, s42, 3')
    e.I('s_add_u32 s42, s42, s20')
    e.I('s_lshl_b32 s42, s42, 6')
    e.I(f's_add_u32 s42, s42, {FLGOX}')
    wait_flags(e, 6, 's42', 1, T0, 9, sleep=opt.lsleep)
    wait_flags(e, 3, 's50', -1, T0, 8, sleep=opt.csleep)
    e.I(f's_branch {c2}')
    e.L(c1)
    e.I('s_and_b32 s42, s38, 3')
    e.I('s_lshl_b32 s42, s42, 3')
    e.I('s_add_u32 s42, s42, s20')
    e.I('s_lshl_b32 s42, s42, 7')
    e.I('s_lshl_b32 s44, s44, 1')
    e.I('s_add_u32 s42, s42, s44')
    e.I(f's_add_u32 s42, s42, {HINT}')
    e.I('s_mul_i32 s51, s20, 5')
    e.I('s_lshr_b32 s44, s41, 1')
    e.I('s_add_u32 s51, s51, s44')
    e.I('s_lshl_b32 s51, s51, 7')
    e.I(f's_add_u32 s51, s51, {HINT2}')
    e.I('s_cmp_eq_u32 s38, 63')
    e.I('s_cselect_b32 s42, s51, s42')
    wait_flags(e, 6, 's42', 1, T0, 9, sleep=2)
    e.I('s_cmp_eq_u32 s38, 63')
    e.I(f's_cbranch_scc1 {c2}')
    wait_flags(e, 3, 's50', -1, T0, 8, sleep=opt.c2sleep)
    e.L(c2)
    TS(e, 1)
    RAW = PXR + 32
    def ld(x):
        for t in range(2):
            if not opt.cdiag & 4: e.I(f'buffer_load_dwordx4 {vr(RAW+(x*2+t)*4)}, v2, {WS}, s43 offen offset:{t*1024} sc1')
        if x < 7: e.I('s_add_u32 s43, s43, 40960')
    def body(depth):
        for x in range(min(depth, 8)): ld(x)
        for x in range(8):
            left = min(depth - 1, 7 - x)
            e.I(f's_waitcnt vmcnt({left*2})')
            if x + depth < 8: ld(x + depth)
            for k in range(16): e.I(f'v_dot2c_f32_bf16 v{PXR+k}, {("s52", "s53")[k&1]}, v{RAW+x*8+(k>>1)}')
        e.I('s_nop 2')
    for k in range(16): e.I(f'v_mov_b32 v{PXR+k}, 0')
    fast, join = e.lab('Lcf'), e.lab('Lcj')
    e.I('s_cmp_ge_u32 s38, 61')
    e.I(f's_cbranch_scc1 {fast}')
    body(opt.cdepth)
    e.I(f's_branch {join}')
    e.L(fast)
    f2, pl_, pk_ = e.lab('Lcg'), e.lab('Lcp'), e.lab('Lck')
    e.I('s_cmp_lg_u32 s38, 63')
    e.I(f's_cbranch_scc1 {f2}')
    e.I(f's_mov_b32 s31, {TMO}')
    e.I('s_mov_b32 s51, s43')
    e.L(pl_)
    e.I('s_mov_b32 s43, s51')
    for x in range(8): ld(x)
    e.I('s_waitcnt vmcnt(0)')
    check_sent(e, range(RAW, RAW + 64), T0, T0 + 1)
    e.I(f's_cbranch_vccz {pk_}')
    e.I('s_sub_u32 s31, s31, 1')
    e.I(f's_cbranch_scc0 {pl_}')
    e.I('s_mov_b32 s31, 8')
    e.I('s_branch L_fail')
    e.L(pk_)
    for x in range(8):
        for k in range(16): e.I(f'v_dot2c_f32_bf16 v{PXR+k}, {("s52", "s53")[k&1]}, v{RAW+x*8+(k>>1)}')
    e.I('s_nop 2')
    e.I(f's_branch {join}')
    e.L(f2)
    body(8)
    e.L(join)
    TS(e, 3)
    for t in range(4):
        b = PXR + 4 * t; u = T0 + 8 * (t % 2)
        e.I(f'v_cvt_pk_bf16_f32 v{u}, v{b}, v{b+1}')
        e.I(f'v_cvt_pk_bf16_f32 v{u+1}, v{b+2}, v{b+3}')
        for h_ in range(2):
            e.I(f'v_lshlrev_b32 v{b+2*h_}, 16, v{u+h_}')
            e.I(f'v_and_b32 v{b+2*h_+1}, 0xffff0000, v{u+h_}')
            e.I(f'v_lshlrev_b32 v{u+2+2*h_}, 16, v{GR+2*t+h_}')
            e.I(f'v_and_b32 v{u+3+2*h_}, 0xffff0000, v{GR+2*t+h_}')
        for k in range(4): e.I(f'v_mul_f32 v{b+k}, v{b+k}, v{u+2+k}')
        e.I(f'v_cvt_pk_bf16_f32 v{u}, v{b}, v{b+1}')
        e.I(f'v_cvt_pk_bf16_f32 v{u+1}, v{b+2}, v{b+3}')
        for h_ in range(2):
            e.I(f'v_lshlrev_b32 v{b+2*h_}, 16, v{u+h_}')
            e.I(f'v_and_b32 v{b+2*h_+1}, 0xffff0000, v{u+h_}')
            e.I(f'v_lshlrev_b32 v{u+2+2*h_}, 16, v{XR_+2*t+h_}')
            e.I(f'v_and_b32 v{u+3+2*h_}, 0xffff0000, v{XR_+2*t+h_}')
        for k in range(4): e.I(f'v_add_f32 v{b+k}, v{b+k}, v{u+2+k}')
        e.I(f'v_cvt_pk_bf16_f32 v{u+6}, v{b}, v{b+1}')
        e.I(f'v_cvt_pk_bf16_f32 v{u+7}, v{b+2}, v{b+3}')
        if not opt.cdiag & 8: e.I(f'buffer_store_dwordx2 {vr(u+6,2)}, v5, s[12:15], s48 offen offset:{TO[t]*32}')
    TS(e, 2)
    if opt.ts: e.I('s_lshr_b32 s50, s30, 6')
    TSflush(e, 's50')
    e.I('s_add_u32 s30, s30, 64')
    e.I('s_cmp_lt_u32 s30, 1280')
    e.I(f's_cbranch_scc1 {top}')
    DSTAMP(e, 5)
    e.I(f's_cmp_lg_u32 s30, {1279 + 64}')
    e.I('s_cbranch_scc1 L_end')
    e.I('s_mov_b32 exec_hi, 0xffff')
    e.I(f'global_store_dword v3, v6, s[74:75] offset:{D_TR} sc1')
    e.I('s_endpgm')

def gen_mainkernel(e):
    kernel_head(e, MAIN)
    e.I('s_cmp_ge_u32 s2, 256')
    e.I('s_cbranch_scc1 L_end')
    e.I('s_load_dwordx2 s[32:33], s[0:1], 96')
    e.I('s_load_dwordx4 s[60:63], s[0:1], 16')
    e.I('s_load_dwordx4 s[64:67], s[0:1], 32')
    e.I('s_load_dwordx4 s[52:55], s[0:1], 0')
    e.I('s_load_dwordx4 s[56:59], s[0:1], 64')
    e.I('s_load_dwordx4 s[72:75], s[0:1], 80')
    TS(e, 0)
    e.I('s_getreg_b32 s24, hwreg(HW_REG_XCC_ID)')
    e.I('v_and_b32 v1, 63, v0')
    e.I('v_lshlrev_b32 v2, 4, v1')
    e.I('v_lshrrev_b32 v3, 6, v0')
    e.I('v_readfirstlane_b32 s22, v3')
    if opt.cwarm2:
        e.I('s_getpc_b64 s[34:35]')
        e.L('L_pc')
        e.I('s_lshr_b32 s36, s2, 3')
        e.I('s_lshl_b32 s36, s36, 2')
        e.I('v_add_u32 v3, s36, v3')
        e.I(f'v_mul_u32_u24 v3, {opt.cwarm2}, v3')
        e.I(f'v_min_u32 v4, {opt.cwarm2 - 1}, v1')
        e.I('v_add_u32 v3, v3, v4')
        e.I('v_lshlrev_b32 v3, 7, v3')
        e.I('v_min_u32 v3, L_last-L_pc, v3')
        e.I('v_mov_b32 v5, s35')
        e.I('v_add_co_u32 v4, vcc, s34, v3')
        e.I('v_addc_co_u32 v5, vcc, 0, v5, vcc')
        e.I('global_load_dword v255, v[4:5], off')
    if opt.force_slow:
        e.I('s_lshr_b32 s20, s2, 5'); e.I('s_and_b32 s21, s2, 31')
    else:
        e.I('s_and_b32 s20, s2, 7'); e.I('s_lshr_b32 s21, s2, 3')
    e.I('s_and_b32 s24, s24, 15')
    e.I('s_lshl_b32 s96, s20, 4')
    e.I('s_and_b32 s25, s24, 12')
    e.I('s_add_u32 s96, s96, s25')
    e.I('s_and_b32 s25, s24, 3')
    e.I('s_lshl_b32 s25, s25, 3')
    e.I('s_lshl_b32 s97, 1, s25')
    e.I('s_waitcnt lgkmcnt(0)')
    e.I('s_mov_b64 s[70:71], s[72:73]')
    e.I('s_mov_b64 s[68:69], s[52:53]')
    srd(e, 4, 32, WS_BYTES)
    TS(e, 1)
    TSflush(e, '70')
    if opt.dstamp: e.I('s_lshl_b32 s98, s21, 2'); e.I('s_add_u32 s98, s98, s22')
    DSTAMP(e, 0, 's_cmp_eq_u32 s98, 84', 'neg')
    e.I('s_cmp_ge_u32 s21, 22'); e.I('s_cbranch_scc1 L_help')
    e.I('s_sub_u32 s24, s21, 12')
    if opt.urg: e.I('s_cmp_lt_u32 s24, 2')
    else: e.I('s_cmp_eq_u32 s24, 1')
    e.I('s_cbranch_scc1 L_urg')
    register(e, 3, 4)
    e.I('s_cmp_ge_u32 s21, 12'); e.I('s_cbranch_scc1 L_wo')
    role_qkv(e)
    e.L('L_urg')
    srd(e, 8, 52, 2048 * 1280); srd(e, 12, 54, 8 * 1280)
    e.I('s_cmp_lg_u32 s24, 0')
    e.I('s_cbranch_scc1 L_um')
    ln_addr(e)
    e.I('s_mul_i32 s25, s20, 20480')
    ln_load(e, 16, 's25')
    e.I('s_waitcnt vmcnt(0)')
    ln_compute(e, 16, 's25')
    e.I('s_branch L_ur')
    e.L('L_um')
    mem0_copy(e, None, 0)
    e.I('s_mul_i32 s41, s20, 10240')
    e.I(f's_add_u32 s41, s41, {MEM}')
    e.I('s_waitcnt vmcnt(0)')
    mem0_copy(e, 's41', 1)
    e.L('L_ur')
    e.I('s_waitcnt vmcnt(0)')
    e.I('s_barrier')
    register(e, 3, 4)
    e.L('L_wo'); role_sw(e)
    e.L('L_help')
    srd(e, 8, 52, 2048 * 1280)
    e.I('s_mul_i32 s24, s20, 10')
    e.I('s_add_u32 s24, s24, s21')
    e.I('s_sub_u32 s24, s24, 22')
    if opt.urg: init_fill(e, 's24', 80)
    ln_addr(e)
    e.I('s_mul_i32 s25, s24, 20480')
    if opt.urg: e.I(f's_add_u32 s25, s25, {8*20480}')
    e.I(f's_add_u32 s26, s25, {80*20480}')
    ln_load(e, 16, 's25')
    ln_load(e, 36, 's26')
    if opt.urg:
        e.I('s_waitcnt vmcnt(10)')
        e.I('s_barrier')
        register(e, 3, 4)
    else: init_fill(e, 's24', 80)
    e.I('s_waitcnt vmcnt(0)')
    ln_compute(e, 16, 's25')
    e.I(f's_cmp_ge_u32 s24, {40 if opt.urg else 48}')
    e.I('s_cbranch_scc1 L_hl')
    ln_compute(e, 36, 's26')
    e.L('L_hl')
    e.I('s_waitcnt vmcnt(0)')
    e.I('s_barrier')
    if opt.urg: count_up(e, 3, D_W)
    else: register(e, 3, 4)
    TS(e, 0)
    TSflush(e, '69')
    if opt.touch2:
        wait_reg(e, 16, opt.rsleep)
        e.I('s_sub_u32 s24, s21, 22')
        e.I('s_lshl_b32 s25, s20, 2')
        e.I('s_add_u32 s25, s25, s22')
        touch_jobs(e, [(XN + k * 40960, 10240, 40) for k in range(3)] + [(XN + k * 40960 + 5120, 10240, 40) for k in range(3)], 's24', 10, 's22', 18)
        jobs = []
        for sl in range(4): jobs += [(MEM + sl * MEM_SLOT, 2560, 20), (XR + sl * XR_SLOT, 6144, 48), (VR + sl * VR_SLOT, 3072, 24)]
        touch_jobs(e, jobs[::-1][:4] + jobs[:8], 's24', 10, 's25', 24, 6)
    e.I('s_cmp_ge_u32 s21, 29'); e.I('s_cbranch_scc1 L_ffn')
    e.I('s_cmp_lt_u32 s21, 27'); e.I('s_cbranch_scc1 L_xw')
    role_att(e)
    e.L('L_xw'); role_xw(e)
    e.L('L_ffn'); role_ffn(e)
    e.L('L_cmb'); role_cmb(e)
    e.L('L_fail')
    e.I('s_mov_b64 exec, 1')
    e.I('s_lshl_b32 s31, s31, 2')
    e.I('v_mov_b32 v3, s31')
    e.I('v_mov_b32 v4, 1')
    e.I('global_atomic_add v3, v4, s[74:75]')
    e.L('L_end')
    e.L('L_last')
    e.I('s_endpgm')

def build(path):
    for k in range(3): NT[k] = ' nt' if opt.pnt >> k & 1 else ''
    hdr = open('cdna_kernels/' + NAME + '.s.ref').read().split('\n')
    e = Em()
    for l in hdr:
        if l.startswith(';') and '@launch' not in l and 'Override launch' not in l and 'grid=ceil' not in l: e.raw(l)
    e.raw(f'; @launch grid=(256,1,1) block=(256,1,1) lds=163840')
    e.raw('.amdgcn_target "amdgcn-amd-amdhsa--gfx950"')
    gen_mainkernel(e)
    kernel_desc(e, MAIN, 512, 100, 256)
    lines, added = hazard.pad(e.lines)
    open(path, 'w').write('\n'.join(lines) + '\n')
    n = sum(1 for l in lines if l.startswith('    ') and not l.strip().startswith(';'))
    print(f'wrote {path}: {n} instructions, {added} nops added')

if __name__ == '__main__':
    out = sys.argv[1] if len(sys.argv) > 1 else 'cdna_kernels/' + NAME + '.s'
    if 'slow' in sys.argv[2:]: opt.force_slow = True
    if 'ts' in sys.argv[2:]: opt.ts = True
    for k in ('nobg', 'ackpoll', 'noxw'):
        if k in sys.argv[2:]: setattr(opt, k, True)
    for a_ in sys.argv[2:]:
        if '=' in a_: k_, v_ = a_.split('='); setattr(opt, k_, int(v_))
    build(out)
```

```python
import sys, struct
from asmlib import *
from layout import *
import hazard
from gen_pre import *

NAME = 'recurrent_scan__memory_aug_recurrent_mem_tr__dense_activation_relu__prompt'
MAIN = NAME + '_kernel'
PRE = 'prep_kernel'
LDS_TOTAL = 131072
LDS_ROLE = 131072
TMO = 1 << 18
def f2u(x): return struct.unpack('<I', struct.pack('<f', x))[0]
SC_L2E = f2u(192 ** -0.5 * 1.4426950408889634)
NEG_BIG = f2u(-1e30)
MFMA = 'v_mfma_f32_16x16x32_bf16'
MFMA16 = 'v_mfma_f32_16x16x16_bf16'
SMF = 'v_smfmac_f32_16x16x64_bf16'
WS = 's[4:7]'
WFL = ['', ' nt', ' sc1', ' sc0 sc1', ' sc1 nt', ' sc0 sc1 nt']

class Opt:
    force_slow = False
    ts = False
    nobg = False
    ackpoll = False
    noxw = False
    pdelay = 0
    vdelay = 0
    kbar = 0
    kpre = 12
    kin = 12
    fresh = 0
    pdiag = 0
    pflip = 0
    touch = 1
    nofc = 0
    nopx = 0
    nocmb = 0
    cdepth = 1
    ffnnt = 0
    pr = 1
    pfar = 0
    vpre = 2
    vmpos = 2
    smpre = 1
    smgap = 3
    ldgap = 4
    kp = 0
    kcs = 0
    kce = 12
    xlate = 5
    csleep = 8
    cwarm = 61
    c2sleep = 4
    clag = 2
    lsleep = 8
    xsleep = 2
    asleep = 2
    cdiag = 0
    wb = 0
    ost = 0
    mprobe = 0
    kx = 0
    dstamp = 0
    hwv = 7
    t63 = 1
    esleep = 1
    tpos = 0
    pmf = 8
    pmf2 = 4
    urg = 0
    rsleep = 16
    cwarm2 = 0
    tord = 0
    pfs = 0
    swlate = 1
    fpos = 11
    heads = 1
    hdelay = 0
    wnb = 3
    wrows = 320
    touch2 = 1
    pnt = 1
    wnt = 1
    wthr = 64
    xpf = 10
    xdma0 = 10
    xdmas = 1
    pbf = 1
    rpos = 2
    mbar = 1
    pspin = 0
    nobulk = 0
opt = Opt()

def vr(i, n=4): return f'v[{i}:{i+n-1}]'
def ar(i, n=4): return f'a[{i}:{i+n-1}]'

def maxchain(e, dst, regs, op='u32'):
    regs = list(regs)
    e.I(f'v_max3_{op} v{dst}, v{regs[0]}, v{regs[1]}, v{regs[2]}')
    rest = regs[3:]
    while rest:
        if len(rest) >= 2:
            e.I(f'v_max3_{op} v{dst}, v{dst}, v{rest[0]}, v{rest[1]}'); rest = rest[2:]
        else:
            e.I(f'v_max_{op} v{dst}, v{dst}, v{rest[0]}'); rest = rest[1:]

def check_sent(e, regs, t0, t1):
    regs = list(regs)
    if len(regs) >= 8:
        h = len(regs) // 2
        A, B = regs[:h], regs[h:]
        ea, eb = Em(), Em()
        maxchain(ea, t0, A); maxchain(eb, t1, B)
        for i in range(max(len(ea.lines), len(eb.lines))):
            if i < len(ea.lines): e.lines.append(ea.lines[i])
            if i < len(eb.lines): e.lines.append(eb.lines[i])
        e.I(f'v_max_u32 v{t0}, v{t0}, v{t1}')
    else:
        maxchain(e, t0, regs)
    e.I(f'v_cmp_eq_u32 vcc, -1, v{t0}')

def poll2(e, issue, nl, regsA, regsB, consume, t0, t1, code):
    lp, dA, dB, dd = e.lab('Lp'), e.lab('LdA'), e.lab('LdB'), e.lab('Ldd')
    e.I(f's_mov_b32 s31, {TMO}')
    issue(regsA)
    e.L(lp)
    issue(regsB)
    e.I(f's_waitcnt vmcnt({nl})')
    check_sent(e, range(regsA, regsA + 4 * nl), t0, t1)
    e.I(f's_cbranch_vccz {dA}')
    issue(regsA)
    e.I(f's_waitcnt vmcnt({nl})')
    check_sent(e, range(regsB, regsB + 4 * nl), t0, t1)
    e.I(f's_cbranch_vccz {dB}')
    e.I('s_sub_u32 s31, s31, 1')
    e.I(f's_cbranch_scc0 {lp}')
    e.I(f's_mov_b32 s31, {code}')
    e.I('s_branch L_fail')
    e.L(dB)
    consume(regsB)
    e.I(f's_branch {dd}')
    e.L(dA)
    consume(regsA)
    e.L(dd)

def wait_flags(e, vaddr, sofs, mask, vt, code, sleep=0, dbg=False):
    lp, dn = e.lab('Lf'), e.lab('Lfd')
    e.I(f's_mov_b32 s31, {TMO}')
    if mask > 0xffffffff or mask < 0: e.I(f's_mov_b64 exec, {mask}')
    else:
        e.I(f's_mov_b32 exec_lo, {mask:#x}'); e.I('s_mov_b32 exec_hi, 0')
    e.L(lp)
    if dbg: e.I(f'global_load_dword v{vt}, v{vaddr}, s[74:75] offset:{sofs} sc1')
    else: e.I(f'buffer_load_dword v{vt}, v{vaddr}, {WS}, {sofs} offen sc1')
    e.I('s_waitcnt vmcnt(0)')
    e.I(f'v_cmp_eq_u32 vcc, 0, v{vt}')
    e.I(f's_cbranch_vccz {dn}')
    if sleep: e.I(f's_sleep {sleep}')
    e.I('s_sub_u32 s31, s31, 1')
    e.I(f's_cbranch_scc0 {lp}')
    e.I(f's_mov_b32 s31, {code}')
    e.I('s_branch L_fail')
    e.L(dn)
    e.I('s_mov_b64 exec, -1')

D_TR, D_PAR, D_REG = 64, 96, 128
def register(e, va, vd):
    sk = e.lab('Lrg')
    e.I('s_cmp_lg_u32 s22, 0')
    e.I(f's_cbranch_scc1 {sk}')
    e.I(f'v_mov_b32 v{va}, s96')
    e.I(f'v_mov_b32 v{vd}, s97')
    e.I('s_mov_b64 exec, 1')
    e.I(f'global_atomic_add v{va}, v{vd}, s[74:75] offset:{D_REG} sc1')
    e.I('s_mov_b64 exec, -1')
    e.L(sk)
D_W = 68
def wait_count(e, t, off, n, sleep):
    lp, dn = e.lab('Lwc'), e.lab('Lwe')
    e.I(f's_mov_b32 s31, {TMO}')
    e.I(f'v_mov_b32 v{t+1}, 0')
    e.L(lp)
    e.I(f'global_load_dword v{t}, v{t+1}, s[74:75] offset:{off} sc1')
    e.I('s_waitcnt vmcnt(0)')
    e.I(f'v_cmp_gt_u32 vcc, {n}, v{t}')
    e.I(f's_cbranch_vccz {dn}')
    e.I(f's_sleep {sleep}')
    e.I('s_sub_u32 s31, s31, 1')
    e.I(f's_cbranch_scc0 {lp}')
    e.I('s_mov_b32 s31, 10')
    e.I('s_branch L_fail')
    e.L(dn)
def wait_first(e, t):
    wait_reg(e, t, 32)
    e.I('s_lshl_b32 s38, s20, 8')
    e.I(f's_add_u32 s38, s38, {FLGQ}')
    e.I(f'v_lshlrev_b32 v{t+1}, 6, v1')
    wait_flags(e, t + 1, 's38', 0xf, t, 15, sleep=16)
def count_up(e, t, off):
    sk = e.lab('Lcu')
    e.I('s_cmp_lg_u32 s22, 0')
    e.I(f's_cbranch_scc1 {sk}')
    e.I(f'v_mov_b32 v{t}, 0'); e.I(f'v_mov_b32 v{t+1}, 1')
    e.I('s_mov_b64 exec, 1')
    e.I(f'global_atomic_add v{t}, v{t+1}, s[74:75] offset:{off} sc1')
    e.I('s_mov_b64 exec, -1')
    e.L(sk)
def wait_reg(e, t, sleep=4):
    lp, dn = e.lab('Lwr'), e.lab('Lwd')
    e.I(f's_mov_b32 s31, {TMO}')
    e.I(f'v_lshlrev_b32 v{t+2}, 2, v1')
    e.I('s_mov_b32 exec_hi, 0')
    e.L(lp)
    e.I(f'global_load_dword v{t}, v{t+2}, s[74:75] offset:{D_REG} sc1')
    e.I('s_mov_b32 s23, 0')
    e.I('s_mov_b32 s38, 0')
    e.I('s_waitcnt vmcnt(0)')
    for k in range(4):
        e.I(f'v_cmp_eq_u32 vcc, {0x20 << (8*k):#x}, v{t}')
        e.I('s_or_b32 s38, s38, vcc_lo')
    e.I(f'v_sad_u8 v{t+1}, v{t}, 0, 0')
    e.I('s_bcnt1_i32_b32 s38, s38')
    e.I('s_cmp_eq_u32 s38, 8')
    e.I(f's_cbranch_scc1 {dn}')
    for sh in (1, 2, 4, 8): e.I(f'v_add_u32_dpp v{t+1}, v{t+1}, v{t+1} row_shr:{sh} row_mask:0xf bank_mask:0xf bound_ctrl:0')
    e.I(f'v_readlane_b32 s38, v{t+1}, 15')
    e.I(f'v_readlane_b32 s39, v{t+1}, 31')
    e.I('s_mov_b32 s23, 1')
    e.I('s_add_u32 s38, s38, s39')
    e.I('s_cmp_eq_u32 s38, 256')
    e.I(f's_cbranch_scc1 {dn}')
    e.I(f's_sleep {sleep}')
    e.I('s_sub_u32 s31, s31, 1')
    e.I(f's_cbranch_scc0 {lp}')
    e.I('s_mov_b32 s31, 10')
    e.I('s_branch L_fail')
    e.L(dn)
    e.I('s_mov_b64 exec, -1')

def set_flag(e, vaddr, sofs, vone, fl):
    e.I('s_mov_b64 exec, 1')
    e.I(f'buffer_store_dword v{vone}, v{vaddr}, {WS}, {sofs} offen{fl}')
    e.I('s_mov_b64 exec, -1')

def xg_reduce(e, op, x, t):
    e.I(f'v_mov_b32 v{t}, v{x}')
    e.I(f'v_permlane16_swap_b32 v{x}, v{t}')
    e.I(f'{op} v{x}, v{x}, v{t}')
    e.I(f'v_mov_b32 v{t}, v{x}')
    e.I(f'v_permlane32_swap_b32 v{x}, v{t}')
    e.I(f'{op} v{x}, v{x}, v{t}')

def softmax12(e, S, P, t):
    maxchain(e, t, range(S, S + 12), 'f32')
    xg_reduce(e, 'v_max_f32', t, t + 1)
    e.I(f'v_mul_f32 v{t}, s53, v{t}')
    for i in range(12):
        e.I(f'v_fma_f32 v{S+i}, v{S+i}, s52, v{t}')
    for i in range(12):
        e.I(f'v_exp_f32 v{S+i}, v{S+i}')
    e.I(f'v_add_f32 v{t+2}, v{S}, v{S+1}')
    e.I(f'v_add_f32 v{t+3}, v{S+2}, v{S+3}')
    for i in range(4, 12, 2):
        e.I(f'v_add_f32 v{t+2}, v{t+2}, v{S+i}')
        e.I(f'v_add_f32 v{t+3}, v{t+3}, v{S+i+1}')
    e.I(f'v_add_f32 v{t+2}, v{t+2}, v{t+3}')
    xg_reduce(e, 'v_add_f32', t + 2, t + 3)
    e.I(f'v_rcp_f32 v{t+2}, v{t+2}')
    for i in range(12):
        e.I(f'v_mul_f32 v{S+i}, v{S+i}, v{t+2}')
    for i in range(6):
        e.I(f'v_cvt_pk_bf16_f32 v{P+i}, v{S+2*i}, v{S+2*i+1}')

def softmax_list(S, n, P, t):
    x = Em()
    maxchain(x, t, range(S, S + n), 'f32')
    xg_reduce(x, 'v_max_f32', t, t + 1)
    x.I(f'v_mul_f32 v{t}, s53, v{t}')
    for i in range(n): x.I(f'v_fma_f32 v{S+i}, v{S+i}, s52, v{t}')
    for i in range(n): x.I(f'v_exp_f32 v{S+i}, v{S+i}')
    x.I(f'v_add_f32 v{t+2}, v{S}, v{S+1}')
    x.I(f'v_add_f32 v{t+3}, v{S+2}, v{S+3}')
    for i in range(4, n, 2):
        x.I(f'v_add_f32 v{t+2}, v{t+2}, v{S+i}')
        x.I(f'v_add_f32 v{t+3}, v{t+3}, v{S+i+1}')
    x.I(f'v_add_f32 v{t+2}, v{t+2}, v{t+3}')
    xg_reduce(x, 'v_add_f32', t + 2, t + 3)
    x.I(f'v_rcp_f32 v{t+2}, v{t+2}')
    for i in range(n): x.I(f'v_mul_f32 v{S+i}, v{S+i}, v{t+2}')
    for i in range(n // 2): x.I(f'v_cvt_pk_bf16_f32 v{P+i}, v{S+2*i}, v{S+2*i+1}')
    return [l.strip() for l in x.lines]

def DSTAMP(e, idx, cond=None, op='umax'):
    if not opt.dstamp: return
    sk = e.lab('Lds')
    if cond: e.I(cond); e.I(f's_cbranch_scc0 {sk}')
    e.I('s_memrealtime s[98:99]')
    e.I('s_waitcnt lgkmcnt(0)')
    if op == 'neg': e.I('s_not_b32 s98, s98')
    e.I('s_mov_b64 exec, 1')
    e.I(f'v_mov_b32 v238, {idx*4}')
    e.I('v_mov_b32 v239, s98')
    e.I('global_atomic_umax v238, v239, s[74:75] sc1')
    e.I('s_mov_b64 exec, -1')
    e.L(sk)
def TS(e, k):
    if opt.ts: e.I(f's_memrealtime s[{76+2*k}:{77+2*k}]')
def TSflush(e, step, va=238, vd=239):
    if not opt.ts: return
    e.I('s_waitcnt lgkmcnt(0)')
    for k in range(10): e.I(f'v_writelane_b32 v{vd}, s{76+2*k}, {k}')
    e.I('s_lshl_b32 s76, s20, 5')
    e.I('s_add_u32 s76, s76, s21')
    e.I('s_lshl_b32 s76, s76, 2')
    e.I('s_add_u32 s76, s76, s22')
    e.I('s_mul_i32 s76, s76, 72')
    e.I(f's_add_u32 s76, s76, {step}')
    e.I('s_lshl_b32 s76, s76, 6')
    e.I(f's_add_u32 s76, s76, {DBGT}')
    e.I(f'v_lshlrev_b32 v{va}, 2, v1')
    e.I('s_mov_b64 exec, 0x3ff')
    e.I(f'buffer_store_dword v{vd}, v{va}, {WS}, s76 offen')
    e.I('s_mov_b64 exec, -1')

def lane_ig(e, vi, vg):
    e.I(f'v_and_b32 v{vi}, 15, v1')
    e.I(f'v_lshrrev_b32 v{vg}, 4, v1')

def load_weights(e, mats, RS, rows, paired, vA, vT, NB=3, bufoff=None, manual=False):
    CH = rows * 128
    ninst = rows // 8 // 4
    nk = rows // 32
    e.I(f'v_lshrrev_b32 v{vT}, 3, v1')
    if paired:
        e.I(f'v_bfe_u32 v{vT+1}, v1, 4, 2')
    else:
        e.I(f'v_bfe_u32 v{vT+1}, v1, 4, 1')
        e.I('s_and_b32 s54, s22, 1')
        e.I('s_lshl_b32 s54, s54, 1')
        e.I(f'v_or_b32 v{vT+1}, s54, v{vT+1}')
    e.I(f'v_lshlrev_b32 v{vT+1}, 1, v{vT+1}')
    e.I(f'v_and_b32 v{vT+2}, 7, v1')
    e.I(f'v_xor_b32 v{vT+2}, v{vT+2}, v{vT+1}')
    e.I(f's_mov_b32 s54, {RS}')
    e.I(f'v_mul_lo_u32 v{vA}, s54, v{vT}')
    e.I(f'v_lshl_add_u32 v{vA}, v{vT+2}, 4, v{vA}')
    e.I(f'v_lshrrev_b32 v{vT}, 4, v1')
    e.I(f'v_bfe_u32 v{vT+1}, v1, 2, 2')
    if paired:
        e.I(f'v_lshl_add_u32 v{vT+2}, v{vT}, 2, v{vT+1}')
        e.I(f'v_bfe_u32 v{vT}, v{vT+2}, 1, 2')
        second = 2048
    else:
        e.I(f'v_lshl_add_u32 v{vT+2}, v{vT}, 3, v{vT+1}')
        e.I(f'v_and_b32 v{vT}, 1, v{vT}')
        e.I(f'v_lshlrev_b32 v{vT}, 1, v{vT}')
        e.I(f'v_bfe_u32 v{vT+1}, v1, 3, 1')
        e.I(f'v_or_b32 v{vT}, v{vT}, v{vT+1}')
        second = 512
    e.I(f'v_xor_b32 v{vT}, s22, v{vT}')
    e.I(f'v_lshlrev_b32 v{vT+2}, 7, v{vT+2}')
    e.I(f'v_lshl_add_u32 v{vT+2}, v{vT}, 5, v{vT+2}')
    e.I(f'v_and_b32 v{vT}, 3, v1')
    e.I(f'v_lshl_add_u32 v{vT}, v{vT}, 3, v{vT+2}')
    bufoff = bufoff or [k * CH for k in range(NB)]
    for k in range(NB - 1, -1, -1):
        if bufoff[k]  or k: e.I(f'v_add_u32 v{vT+k}, {bufoff[k]}, v{vT}')
    chunks = []
    for (srd_, sofs, ab, nrows) in mats:
        for c in range(nrows // rows):
            chunks.append((srd_, sofs, ab + c * nk * 4, c * rows))
    e.I(f's_mul_i32 s55, s22, {8*RS}')
    e.I('s_lshl_b32 s56, s22, 10')
    def issue(ci, buf=None):
        srd_, sofs, ab, r0 = chunks[ci]
        if buf is None: buf = ci % NB
        e.I(f's_add_u32 s57, {sofs}, s55')
        if r0: e.I(f's_add_u32 s57, s57, {r0*RS}')
        for n in range(ninst):
            e.I(f's_add_u32 m0, s56, {bufoff[buf] + n*4096}')
            e.I(f'buffer_load_dwordx4 v{vA}, {srd_}, s57 offen{WFL[opt.wnt]} lds')
            if n + 1 < ninst: e.I(f's_add_u32 s57, s57, {32*RS}')
    def consume(ci, buf, pending):
        e.I(f's_waitcnt vmcnt({pending})')
        if ci < 8: TS(e, 2 + ci)
        e.I('s_barrier')
        srd_, sofs, ab, r0 = chunks[ci]
        for k in range(nk):
            e.I(f'ds_read_b64_tr_b16 {ar(ab+4*k,2)}, v{vT+buf} offset:{k*4096}')
            e.I(f'ds_read_b64_tr_b16 {ar(ab+4*k+2,2)}, v{vT+buf} offset:{k*4096+second}')
        e.I('s_waitcnt lgkmcnt(0)')
        e.I('s_barrier')
    if manual: return issue, consume
    for ci in range(min(NB, len(chunks))): issue(ci)
    for ci in range(len(chunks)):
        left = min(len(chunks) - 1 - ci, NB - 1)
        e.I(f's_waitcnt vmcnt({left*ninst})')
        if ci < 8: TS(e, 2 + ci)
        e.I('s_barrier')
        srd_, sofs, ab, r0 = chunks[ci]
        for k in range(nk):
            e.I(f'ds_read_b64_tr_b16 {ar(ab+4*k,2)}, v{vT+ci%NB} offset:{k*4096}')
            e.I(f'ds_read_b64_tr_b16 {ar(ab+4*k+2,2)}, v{vT+ci%NB} offset:{k*4096+second}')
        e.I('s_waitcnt lgkmcnt(0)')
        e.I('s_barrier')
        if ci + NB < len(chunks): issue(ci + NB)

def touch_jobs(e, jobs, sw, nw, sh, t, rot=0):
    sizes = sorted({min(n, 64) for _, _, n in jobs} | {n - 64 for _, _, n in jobs if n > 64})
    reg = {}
    for k, n in enumerate(sizes):
        reg[n] = t + 1 + k
        e.I(f'v_min_u32 v{reg[n]}, {n-1}, v1')
        e.I(f'v_lshlrev_b32 v{reg[n]}, 7, v{reg[n]}')
    flat = []
    for base, per, n in jobs:
        flat.append((base, per, min(n, 64)))
        if n > 64: flat.append((base + 8192, per, n - 64))
    for c in range(nw):
        sk = e.lab('Ltj')
        e.I(f's_cmp_lg_u32 {sw}, {c}')
        e.I(f's_cbranch_scc1 {sk}')
        for base, per, n in flat[(c - rot) % nw::nw]:
            e.I(f's_mul_i32 s38, {sh}, {per}')
            e.I(f's_add_u32 s38, s38, {base}')
            e.I(f'buffer_load_dword v{t}, v{reg[n]}, {WS}, s38 offen sc1')
        e.L(sk)

def prefetch_w(e, su, nw, lo, hi, t, srds):
    for k in range(3):
        e.I(f'v_add_u32 v{t+3}, {64*k}, v1')
        e.I(f'v_mul_u32_u24 v{t+4}, 0x1556, v{t+3}')
        e.I(f'v_lshrrev_b32 v{t+4}, 16, v{t+4}')
        e.I(f'v_mul_u32_u24 v{t+k}, 12, v{t+4}')
        e.I(f'v_sub_u32 v{t+3}, v{t+3}, v{t+k}')
        e.I(f'v_mul_u32_u24 v{t+k}, 12288, v{t+4}')
        e.I(f'v_lshl_add_u32 v{t+k}, v{t+3}, 7, v{t+k}')
    e.I('s_mul_i32 s39, s20, 1536')
    base = lo
    while base < hi:
        for m, (a_, b_) in enumerate(((0, 40), (40, 80))):
            if base + nw <= a_ or base >= b_ or srds[m] is None: continue
            sk = e.lab('Lpf')
            e.I(f's_add_u32 s38, {su}, {base}')
            e.I(f's_sub_u32 s38, s38, {a_}')
            e.I(f's_cmp_ge_u32 s38, {min(b_, hi) - a_}')
            e.I(f's_cbranch_scc1 {sk}')
            e.I(f's_mul_i32 s38, s38, {16*12288}')
            e.I('s_add_u32 s38, s38, s39')
            for k in range(3): e.I(f'buffer_load_dword v{t+3}, v{t+k}, {srds[m]}, s38 offen{WFL[opt.wnt]}')
            e.L(sk)
        base += nw

Q_LX, Q_LMEM = 0, 81920
def role_qkv(e):
    fl = ''
    WQ, WK, WV = 0, 80, 160
    MF = 16
    DQ, DK, DV = 96, 100, 104
    PA, PB = 108, 120
    XD = 132
    T0 = 160
    KEEP = 176; TCH = 180
    XA, VA, IDX, SEL, MP = 182, 183, 184, 185, 186
    SENT = 248; ONE = 252
    e.I('s_mul_i32 s24, s21, 43')
    e.I('s_lshr_b32 s24, s24, 7')
    e.I('s_mul_i32 s25, s24, 3')
    e.I('s_sub_u32 s25, s21, s25')
    e.I('s_lshl_b32 s26, s20, 2')
    e.I('s_add_u32 s26, s26, s24')
    e.I('s_lshl_b32 s27, s25, 2')
    e.I('s_add_u32 s27, s27, s22')
    srd(e, 8, 60, 640 * 12288); srd(e, 12, 62, 640 * 12288); srd(e, 16, 64, 640 * 12288)
    e.I('s_mul_i32 s28, s26, 384')
    e.I('s_lshl_b32 s29, s25, 7')
    e.I('s_add_u32 s28, s28, s29')
    w_issue, w_consume = load_weights(e, [('s[12:15]', 's28', WK, 640), ('s[16:19]', 's28', WV, 640), ('s[8:11]', 's28', WQ, 640)], 12288, 320, False, 240, 241, 3,
                                      bufoff=[81920, 122880, 40960], manual=True)
    for ci in range(3): w_issue(ci)
    e.I('s_mul_i32 s38, s22, 2560')
    e.I('v_add_u32 v3, s38, v2')
    e.I('v_and_b32 v4, 31, v1')
    e.I('v_lshlrev_b32 v4, 4, v4')
    e.I('v_add_u32 v4, s38, v4')
    e.I('v_add_u32 v4, 2048, v4')
    e.I(f'v_add_u32 v5, {Q_LMEM}, v3')
    e.I(f'v_add_u32 v6, {Q_LMEM}, v4')
    e.I(f'v_add_u32 v7, {Q_LMEM}, v2')
    lane_ig(e, 14, 15)
    e.I('s_lshr_b32 s38, s27, 1')
    e.I('s_lshl_b32 s38, s38, 10')
    e.I('s_and_b32 s39, s27, 1')
    e.I('s_lshl_b32 s39, s39, 3')
    e.I('s_add_u32 s38, s38, s39')
    e.I('v_add_u32 v8, s38, v2')
    e.I('v_bfe_u32 v11, v1, 2, 2')
    e.I('v_and_b32 v12, 3, v1')
    e.I(f'v_lshlrev_b32 v{XA}, 8, v11')
    e.I(f'v_lshl_add_u32 v{XA}, v15, 6, v{XA}')
    e.I(f'v_lshl_add_u32 v{XA}, v12, 4, v{XA}')
    e.I(f'v_add_u32 v{XA}, s38, v{XA}')
    e.I('v_and_b32 v13, 1, v15')
    e.I('v_lshlrev_b32 v13, 2, v13')
    e.I('v_lshrrev_b32 v9, 1, v15')
    e.I('v_lshl_add_u32 v13, v9, 1, v13')
    e.I('v_and_b32 v9, 1, v12')
    e.I('v_add_u32 v13, v13, v9')
    e.I('v_lshrrev_b32 v12, 1, v12')
    e.I('v_lshrrev_b32 v9, 1, v11')
    e.I('v_lshlrev_b32 v9, 8, v9')
    e.I('v_lshl_add_u32 v9, v12, 7, v9')
    e.I('v_lshl_add_u32 v9, v13, 4, v9')
    e.I(f'v_and_b32 v{VA}, 1, v11')
    e.I(f'v_lshl_add_u32 v9, v{VA}, 3, v9')
    e.I('s_lshl_b32 s38, s25, 10')
    e.I('s_lshr_b32 s39, s22, 1')
    e.I('s_lshl_b32 s39, s39, 9')
    e.I('s_add_u32 s38, s38, s39')
    e.I('s_and_b32 s39, s22, 1')
    e.I('s_lshl_b32 s39, s39, 2')
    e.I('s_add_u32 s38, s38, s39')
    e.I('v_add_u32 v9, s38, v9')
    e.I(f'v_lshlrev_b32 v{VA}, 8, v11')
    e.I(f'v_lshl_add_u32 v{VA}, v13, 4, v{VA}')
    e.I(f'v_lshl_add_u32 v{VA}, v12, 2, v{VA}')
    e.I('s_lshr_b32 s38, s27, 1')
    e.I('s_cmp_ge_u32 s38, 3')
    e.I('s_cselect_b32 s39, 3, 0')
    e.I('s_cselect_b32 s40, 128, 0')
    e.I('s_sub_u32 s38, s38, s39')
    e.I('s_lshl_b32 s38, s38, 10')
    e.I('s_add_u32 s38, s38, s40')
    e.I('s_and_b32 s39, s27, 1')
    e.I('s_lshl_b32 s39, s39, 3')
    e.I('s_add_u32 s38, s38, s39')
    e.I(f'v_add_u32 v{VA}, s38, v{VA}')
    e.I(f'v_mul_u32_u24 v{MP}, 5, v1')
    e.I(f'v_lshrrev_b32 v{MP}, 3, v{MP}')
    e.I(f'v_lshlrev_b32 v{MP}, 8, v{MP}')
    e.I(f'v_mov_b32 v{IDX}, 0x44444444')
    e.I('v_mov_b32 v11, 0xeeeeeeee')
    e.I('v_cmp_lt_u32 vcc, 7, v14')
    e.I(f'v_cndmask_b32 v{IDX}, v{IDX}, v11, vcc')
    e.I(f'v_mov_b32 v{SEL}, 0x05040100')
    e.I('v_mov_b32 v11, 0x03020706')
    e.I('v_and_b32 v12, 1, v1')
    e.I('v_cmp_eq_u32 vcc, 1, v12')
    e.I(f'v_cndmask_b32 v{SEL}, v{SEL}, v11, vcc')
    e.I('s_mov_b32 s34, 0x33333333'); e.I('s_mov_b32 s35, 0x33333333')
    e.I('s_mov_b32 s36, 0xcccccccc'); e.I('s_mov_b32 s37, 0xcccccccc')
    for k in range(12): e.I(f'v_mov_b32 v{DQ+k}, 0')
    e.I('s_lshl_b32 s38, s27, 2')
    e.I(f'v_mov_b32 v{ONE+2}, s38')
    e.I(f'v_mov_b32 v{ONE}, 1')
    for k in range(4): e.I(f'v_mov_b32 v{SENT+k}, -1')
    e.I('s_mul_i32 s58, s26, 6144')
    e.I('s_mul_i32 s59, s20, 10240')
    e.I(f's_add_u32 s59, s59, {MEM}')
    e.I('s_mul_i32 s60, s26, 3072')
    e.I('s_lshl_b32 s61, s20, 6')
    e.I('s_lshl_b32 s38, s24, 2')
    e.I('s_add_u32 s61, s61, s38')
    e.I(f's_add_u32 s61, s61, {FLGOX}')
    e.I('v_mov_b32 v10, 0')

    def late_list():
        return [f'buffer_store_dwordx2 {vr(KEEP,2)}, v{XA}, {WS}, s43 offen{fl}',
                f'buffer_store_dwordx2 {vr(SENT,2)}, v{XA}, {WS}, s42 offen{fl}',
                f'buffer_store_dword v{KEEP+2}, v{VA}, {WS}, s44 offen{fl}',
                f'buffer_store_dword v{SENT}, v9, {WS}, s46 offen{fl}']
    def late_stores():
        for x_ in late_list(): e.I(x_)
    def xwork(late, mats=(2, 1, 0), dma=True):
        e.I('s_and_b32 s65, s64, 1')
        e.I('s_mul_i32 s66, s65, 40960')
        e.I('v_add_u32 v12, s66, v2')
        e.I('s_xor_b32 s65, s65, 1')
        e.I('s_mul_i32 s65, s65, 40960')
        e.I('s_add_u32 s65, s65, s62')
        e.I('s_add_u32 s66, s64, 1')
        e.I('s_min_u32 s66, s66, 63')
        e.I('s_mul_i32 s66, s66, 40960')
        e.I('s_add_u32 s66, s66, s62')
        e.I(f's_add_u32 s66, s66, {XN}')
        e.I(f's_and_b32 s47, s64, {RD-1}')
        e.I(f's_mul_i32 s47, s47, {SEG_QX}')
        e.I('s_lshl_b32 s48, s58, 1')
        e.I('s_add_u32 s47, s47, s48')
        if late:
            e.I(f's_max_u32 s50, s64, {RD}')
            e.I(f's_sub_u32 s50, s50, {RD}')
            e.I('s_lshl_b32 s50, s50, 9')
            e.I('s_add_u32 s50, s50, s61')
            e.I(f'buffer_load_dword v{TCH}, v10, {WS}, s50 offen sc1')
        PF = opt.xpf
        def rd(n): e.I(f'ds_read_b128 {vr(MF + (n % 20)*4)}, v12 offset:{n*1024}')
        def out(m, rt, part=3):
            d = XD + (m*2+rt)*4; o = T0 + (m*2+rt)*2
            if part & 1:
                e.I(f'v_cvt_pk_bf16_f32 v{o}, v{d}, v{d+1}')
                e.I(f'v_cvt_pk_bf16_f32 v{o+1}, v{d+2}, v{d+3}')
            if part & 2:
                e.I(f's_add_u32 s48, s47, {(QX, KX, VX)[m] + rt*6144}')
                e.I(f'buffer_store_dwordx2 {vr(o,2)}, v8, {WS}, s48 offen{fl}')
        for n in range(PF): rd(n)
        ls = late_list() if late else []
        d0 = opt.xdma0
        for n in range(40):
            rt, kk = n // 20, n % 20
            e.I(f's_waitcnt lgkmcnt({min(40, n + PF) - (n + 1)})')
            f = vr(MF + (n % 20)*4)
            for m in mats:
                Wb = (WQ, WK, WV)[m]
                d = vr(XD + (m*2+rt)*4)
                e.I(f'{MFMA} {d}, {ar(Wb+4*kk)}, {f}, {0 if kk == 0 else d}')
            if n + PF < 40: rd(n + PF)
            if late and n == 5:
                bp = e.lab('Lbp')
                e.I(f's_cmp_lt_u32 s64, {RD}')
                e.I(f's_cbranch_scc1 {bp}')
                e.I('s_waitcnt vmcnt(0)')
                e.I(f'v_cmp_eq_u32 vcc, 0, v{TCH}')
                e.I(f's_cbranch_vccz {bp}')
                wait_flags(e, 10, 's50', 1, TCH, 13, sleep=1)
                e.L(bp)
            if n >= 6 and ls: e.I(ls.pop(0))
            elif dma and n >= d0 and (n - d0) % opt.xdmas == 0 and (n - d0) // opt.xdmas < 10:
                m = (n - d0) // opt.xdmas
                e.I(f's_add_u32 m0, s65, {m*1024}')
                e.I(f'buffer_load_dwordx4 v2, {WS}, s66 offen lds')
                e.I('s_add_u32 s66, s66, 1024')
            k0 = 23 if len(mats) > 1 else 28
            if k0 <= n < k0 + len(mats): out(mats[n - k0], 0)
        for m in mats: out(m, 1)
    def flag_addr(back):
        e.I(f's_sub_u32 s51, s64, {back}')
        e.I('s_lshl_b32 s51, s51, 5')
        e.I('s_add_u32 s51, s51, s26')
        e.I('s_lshl_b32 s51, s51, 6')
        e.I(f's_add_u32 s51, s51, {FLGQ}')
    def flag_n():
        flag_addr(0)
        e.I('s_waitcnt vmcnt(0)')
        set_flag(e, ONE + 2, 's51', ONE, fl)
    def mem_part():
        e.I('s_and_b32 s38, s30, 3')
        e.I('s_xor_b32 s39, s38, 2')
        e.I(f's_mul_i32 s40, s38, {MEM_SLOT}')
        e.I('s_add_u32 s40, s40, s59')
        e.I(f's_mul_i32 s41, s38, {XR_SLOT}')
        e.I('s_add_u32 s41, s41, s58')
        e.I(f's_add_u32 s41, s41, {XR}')
        e.I(f's_mul_i32 s42, s39, {XR_SLOT}')
        e.I('s_add_u32 s42, s42, s58')
        e.I(f's_add_u32 s42, s42, {XR}')
        e.I(f's_and_b32 s44, s30, {RD-1}')
        e.I(f's_mul_i32 s43, s44, {SEG_XP}')
        e.I('s_add_u32 s43, s43, s58')
        e.I(f's_add_u32 s43, s43, {XP}')
        e.I(f's_mul_i32 s44, s44, {SEG_VM}')
        e.I('s_add_u32 s44, s44, s60')
        e.I(f's_add_u32 s44, s44, {VM}')
        e.I(f's_mul_i32 s45, s38, {VR_SLOT}')
        e.I('s_add_u32 s45, s45, s60')
        e.I(f's_add_u32 s45, s45, {VR}')
        e.I(f's_mul_i32 s46, s39, {VR_SLOT}')
        e.I('s_add_u32 s46, s46, s60')
        e.I(f's_add_u32 s46, s46, {VR}')
        def issue(b):
            e.I(f'buffer_load_dwordx4 {vr(b)}, v3, {WS}, s40 offen sc1')
            e.I(f'buffer_load_dwordx4 {vr(b+4)}, v3, {WS}, s40 offen offset:1024 sc1')
            e.I(f'buffer_load_dwordx4 {vr(b+8)}, v4, {WS}, s40 offen sc1')
        def consume(b):
            e.I(f'ds_write_b128 v5, {vr(b)}')
            e.I(f'ds_write_b128 v5, {vr(b+4)} offset:1024')
            e.I(f'ds_write_b128 v6, {vr(b+8)}')
        flag_addr(1)
        if opt.mprobe:
            ml, md = e.lab('Lml'), e.lab('Lmd')
            e.I(f's_mov_b32 s31, {TMO}')
            e.L(ml)
            e.I(f'buffer_load_dword v{T0}, v{MP}, {WS}, s40 offen sc1')
            e.I('s_waitcnt vmcnt(0)')
            e.I(f'v_cmp_ne_u32 vcc, -1, v{T0}')
            e.I('s_bcnt1_i32_b64 s38, vcc')
            e.I(f's_cmp_ge_u32 s38, {opt.mprobe}')
            e.I(f's_cbranch_scc1 {md}')
            e.I('s_sub_u32 s31, s31, 1')
            e.I(f's_cbranch_scc0 {ml}')
            e.L(md)
        poll2(e, issue, 3, PA, PB, consume, T0, T0 + 1, 1)
        TS(e, 1)
        e.I('s_waitcnt lgkmcnt(0)')
        e.I('s_barrier')
        for m in range(10): e.I(f'ds_read_b128 {vr(MF+4*m)}, v7 offset:{m*1024}')
        if opt.fpos < 0: set_flag(e, ONE + 2, 's51', ONE, fl)
        e.I('s_mov_b64 vcc, s[34:35]')
        for m in range(10):
            e.I(f's_waitcnt lgkmcnt({9-m})')
            e.I(f'{SMF} {vr(DQ)}, {vr(MF+4*m)}, {ar(WQ+8*m,8)}, v{IDX}')
            e.I(f'{SMF} {vr(DK)}, {vr(MF+4*m)}, {ar(WK+8*m,8)}, v{IDX}')
            if m == opt.fpos: e.I(f'buffer_store_dword v{ONE}, v{ONE+2}, {WS}, s51 offen{fl}')
        def vm(m): e.I(f'{SMF} {vr(DV)}, {vr(MF+4*m)}, {ar(WV+8*m,8)}, v{IDX}')
        QP1, QP2 = 'quad_perm:[1,0,3,2] row_mask:0xf bank_mask:0xf', 'quad_perm:[2,3,0,1] row_mask:0xf bank_mask:0xf'
        nv = opt.vpre
        for m in range(nv): vm(m)
        if opt.fpos == 10: e.I(f'buffer_store_dword v{ONE}, v{ONE+2}, {WS}, s51 offen{fl}')
        for r in range(4): e.I(f'v_permlane32_swap_b32 v{DQ+r}, v{DK+r}')
        for r in range(4): e.I(f'v_add_f32 v{DQ+r}, v{DQ+r}, v{DK+r}')
        e.I(f'v_cvt_pk_bf16_f32 v{T0}, v{DQ}, v{DQ+1}')
        e.I(f'v_cvt_pk_bf16_f32 v{T0+1}, v{DQ+2}, v{DQ+3}')
        vm(nv)
        if opt.fpos == 11: e.I(f'buffer_store_dword v{ONE}, v{ONE+2}, {WS}, s51 offen{fl}')
        e.I(f'v_mov_b32_dpp v{T0+2}, v{T0} {QP1}')
        e.I(f'v_mov_b32_dpp v{T0+3}, v{T0+1} {QP1}')
        e.I(f'v_perm_b32 v{T0}, v{T0+2}, v{T0}, v{SEL}')
        e.I(f'v_perm_b32 v{T0+1}, v{T0+3}, v{T0+1}, v{SEL}')
        vm(nv + 1)
        if opt.fpos == 12: e.I(f'buffer_store_dword v{ONE}, v{ONE+2}, {WS}, s51 offen{fl}')
        e.I(f'v_cndmask_b32_dpp v{KEEP}, v{T0+1}, v{T0}, vcc {QP2}')
        e.I('s_mov_b64 vcc, s[36:37]')
        e.I(f'v_cndmask_b32_dpp v{KEEP+1}, v{T0}, v{T0+1}, vcc {QP2}')
        e.I(f'buffer_store_dwordx2 {vr(KEEP,2)}, v{XA}, {WS}, s41 offen{fl}')
        TS(e, 2)
        for m in range(nv + 2, 10): vm(m)
        for k in range(8): e.I(f'v_mov_b32 v{DQ+k}, 0')
        e.I(f'v_permlane32_swap_b32 v{DV}, v{DV+2}')
        e.I(f'v_permlane32_swap_b32 v{DV+1}, v{DV+3}')
        e.I(f'v_add_f32 v{DV}, v{DV}, v{DV+2}')
        e.I(f'v_add_f32 v{DV+1}, v{DV+1}, v{DV+3}')
        e.I(f'v_cvt_pk_bf16_f32 v{T0}, v{DV}, v{DV+1}')
        e.I(f'v_mov_b32_dpp v{T0+2}, v{T0} {QP1}')
        e.I(f'v_perm_b32 v{KEEP+2}, v{T0+2}, v{T0}, v{SEL}')
        e.I(f'buffer_store_dword v{KEEP+2}, v9, {WS}, s45 offen{fl}')
        for k in range(4): e.I(f'v_mov_b32 v{DV+k}, 0')
        TS(e, 3)
    w_consume(0, 0, 20); w_issue(3, 0)
    w_consume(1, 1, 20); w_issue(4, 1)
    w_consume(2, 2, 20)
    w_consume(3, 0, 10)
    w_consume(4, 1, 0)
    TS(e, 0)
    wait_reg(e, T0)
    TS(e, 1)
    TSflush(e, '69')
    e.I('s_mul_i32 s62, s22, 10240')
    def xdma(seg, buf):
        e.I(f's_add_u32 s63, s62, {XN + seg*40960}')
        for m in range(10):
            e.I(f's_add_u32 m0, s62, {Q_LX + buf*40960 + m*1024}')
            e.I(f'buffer_load_dwordx4 v2, {WS}, s63 offen lds')
            e.I('s_add_u32 s63, s63, 1024')
    xdma(0, 0)
    w_issue(5, 0)
    xdma(1, 1)
    e.I('s_cmp_lg_u32 s23, 0')
    e.I('s_cbranch_scc1 L_qkvs')
    for slow in (False, True):
        fl = ' sc1' if slow else ''
        if slow: e.L('L_qkvs')
        pro, top, nox, nxt_, q0, q0r, qq, q1 = [e.lab(x_) for x_ in ('Lqp', 'Lqt', 'Lqn', 'Lqx', 'Lq0', 'Lqr', 'Lqq', 'Lq1')]
        e.I('s_mov_b32 s30, 0')
        e.I('s_mov_b32 s64, 0')
        TS(e, 0)
        e.I('s_waitcnt vmcnt(20)')
        TS(e, 1)
        e.I('s_barrier')
        xwork(False, (2, 1), False)
        e.I('s_mov_b32 s64, 1')
        TS(e, 2)
        flag_addr(1)
        e.I('s_waitcnt vmcnt(0)')
        TS(e, 3)
        set_flag(e, ONE + 2, 's51', ONE, fl)
        w_consume(5, 0, 1)
        if opt.urg: wait_count(e, T0, D_W, 80, 4)
        TS(e, 4)
        TSflush(e, '68')
        xwork(False, (2, 1, 0), False)
        e.I('s_mov_b32 s64, 2')
        e.I(f's_branch {top}')
        e.L(q0)
        e.I('s_mov_b32 s64, 0')
        xwork(False, (0,), False)
        e.I('s_barrier')
        xdma(2, 0)
        e.I('s_mov_b32 s64, 2')
        e.I('s_waitcnt vmcnt(0)')
        e.I('s_barrier')
        e.I(f's_branch {q0r}')
        e.L(top)
        TS(e, 0)
        mem_part()
        e.I('s_cmp_eq_u32 s30, 0')
        e.I(f's_cbranch_scc1 {q0}')
        e.L(q0r)
        e.I('s_cmp_ge_u32 s64, 64')
        e.I(f's_cbranch_scc1 {nox}')
        xwork(True)
        e.I('s_cmp_lg_u32 s64, 63')
        e.I(f's_cbranch_scc1 {nxt_}')
        flag_n()
        e.I(f's_branch {nxt_}')
        e.L(nox)
        for x_ in late_list()[0::2]: e.I(x_)
        flag_n()
        e.L(nxt_)
        TS(e, 4)
        e.I('s_add_u32 s64, s64, 1')
        TS(e, 5)
        TSflush(e, 's30')
        e.I('s_add_u32 s30, s30, 1')
        e.I('s_cmp_lt_u32 s30, 64')
        e.I(f's_cbranch_scc1 {top}')
        e.I('s_endpgm')

S_RED = 98304
def role_sw(e):
    fl = ''
    XF, KXF, VXF, VMF = 16, 40, 88, 136
    S, PB, PM = 148, 160, 164
    DW, DM, VWX, VWM = 168, 184, 200, 216
    OUT = DW
    PA = XF
    CI = 224
    T0 = 228; IDX = 246; SENT = 248; ONE = 252
    AONE, AHALF = 96, 100
    PAD = 240
    e.I('s_sub_u32 s24, s21, 12')
    e.I('s_lshl_b32 s25, s24, 2')
    e.I('s_add_u32 s25, s25, s22')
    e.I('s_lshl_b32 s26, s20, 2')
    e.I('s_add_u32 s26, s26, s22')
    srd(e, 8, 66, 6144 * 1280)
    def wo_load():
        e.I(f's_mul_i32 s28, s26, {192*1280}')
        e.I('s_lshl_b32 s29, s24, 7')
        e.I('s_add_u32 s28, s28, s29')
        e.I('v_lshrrev_b32 v17, 3, v1')
        e.I('v_bfe_u32 v18, v1, 4, 2')
        e.I('v_lshlrev_b32 v18, 1, v18')
        e.I('v_and_b32 v19, 7, v1')
        e.I('v_xor_b32 v19, v19, v18')
        e.I('v_mul_u32_u24 v16, 1280, v17')
        e.I('v_lshl_add_u32 v16, v19, 4, v16')
        e.I('s_mul_i32 s46, s22, 24576')
        for n in range(24):
            e.I(f's_add_u32 m0, s46, {n*1024}')
            e.I(f'buffer_load_dwordx4 v16, s[8:11], s28 offen{WFL[opt.wnt]} lds')
            if n < 23: e.I(f's_add_u32 s28, s28, {8*1280}')
        e.I('v_lshrrev_b32 v17, 2, v1')
        e.I('v_bfe_u32 v18, v17, 1, 2')
        e.I('v_lshlrev_b32 v17, 7, v17')
        e.I('v_and_b32 v19, 3, v1')
        e.I('v_lshl_add_u32 v17, v19, 3, v17')
        e.I('v_add_u32 v17, s46, v17')
        for ct in range(4):
            e.I(f'v_xor_b32 v19, {ct}, v18')
            e.I(f'v_lshl_add_u32 v{20+ct}, v19, 5, v17')
        for kk in range(6):
            e.I(f's_waitcnt vmcnt({20 - 4*kk})')
            for ct in range(4):
                e.I(f'ds_read_b64_tr_b16 {ar((ct*6+kk)*4,2)}, v{20+ct} offset:{kk*4096}')
                e.I(f'ds_read_b64_tr_b16 {ar((ct*6+kk)*4+2,2)}, v{20+ct} offset:{kk*4096+2048}')
        e.I('s_waitcnt lgkmcnt(0)')
    if opt.pfs:
        srd(e, 12, 64, 640 * 12288); srd(e, 16, 60, 640 * 12288)
        prefetch_w(e, 's25', 40, 0, opt.pfs, 24, ('s[12:15]', 's[16:19]'))
    nocal = e.lab('Lnc')
    e.I('s_cmp_lg_u32 s25, 8')
    e.I(f's_cbranch_scc1 {nocal}')
    e.I('s_lshl_b32 s38, s20, 7')
    e.I(f's_add_u32 s38, s38, {CAL}')
    e.I('s_add_u32 s39, s38, 8192')
    e.I('s_mov_b32 s40, -1'); e.I('s_mov_b32 s41, -1'); e.I('s_mov_b32 s42, 4')
    e.I('v_mov_b32 v10, 0')
    e.I('s_mov_b64 exec, 1')
    cal = e.lab('Lcal')
    e.L(cal)
    for so, acc in (('s38', 's40'), ('s39', 's41')):
        e.I(f'buffer_store_dword v10, v10, {WS}, {so} offen sc1')
        e.I('s_waitcnt vmcnt(0)')
        e.I('s_memtime s[44:45]')
        e.I('s_waitcnt lgkmcnt(0)')
        e.I(f'buffer_load_dword v11, v10, {WS}, {so} offen sc1')
        e.I('s_waitcnt vmcnt(0)')
        e.I('s_memtime s[46:47]')
        e.I('s_waitcnt lgkmcnt(0)')
        e.I('s_sub_u32 s46, s46, s44')
        e.I(f's_min_u32 {acc}, {acc}, s46')
    e.I('s_sub_u32 s42, s42, 1')
    e.I('s_cmp_lg_u32 s42, 0')
    e.I(f's_cbranch_scc1 {cal}')
    e.I('s_cmp_lt_u32 s41, s40')
    if opt.pflip: e.I('s_cmp_ge_u32 s41, s40')
    e.I('s_cselect_b32 s38, 2, 1')
    e.I('v_mov_b32 v11, s38')
    e.I('s_lshl_b32 s38, s20, 2')
    e.I('v_mov_b32 v10, s38')
    e.I(f'global_store_dword v10, v11, s[74:75] offset:{D_PAR} sc1')
    e.I('s_mov_b64 exec, -1')
    e.L(nocal)
    def early_touch():
        jobs = []
        for sl in range(2): jobs += [(b_ + sl * SEG_QX, 12288, 96) for b_ in (KX, VX)]
        for sl in range(2): jobs += [(QX + sl * SEG_QX, 12288, 96), (XP + sl * SEG_XP, 6144, 48), (VM + sl * SEG_VM, 3072, 24)]
        touch_jobs(e, jobs, 's24', 10, 's26', 24)
    if opt.tord == 0: early_touch()
    if not opt.swlate: wo_load()
    if opt.tord == 1: early_touch()
    e.I(f's_mov_b32 s52, {SC_L2E:#x}'); e.I(f's_mov_b32 s53, {SC_L2E | 0x80000000:#x}')
    lane_ig(e, 14, 15)
    e.I('v_and_b32 v13, 7, v14')
    e.I('v_lshlrev_b32 v13, 4, v13')
    e.I('v_lshl_add_u32 v13, v15, 7, v13')
    e.I('v_bfe_u32 v5, v1, 3, 1')
    e.I('s_lshl_b32 s38, s22, 9')
    e.I(f's_add_u32 s38, s38, {S_RED}')
    e.I('v_add_u32 v6, s38, v13')
    e.I('v_lshl_add_u32 v6, v5, 14, v6')
    e.I('s_lshl_b32 s38, s22, 11')
    e.I(f's_add_u32 s38, s38, {S_RED}')
    e.I('v_add_u32 v7, s38, v13')
    e.I('v_lshl_add_u32 v7, v5, 10, v7')
    if opt.pbf: e.I('v_lshrrev_b32 v13, 1, v13')
    e.I('v_lshl_add_u32 v13, v5, 13, v13')
    e.I('v_and_b32 v4, 0x1fff, v13')
    e.I('v_lshlrev_b32 v9, 2, v5')
    e.I('v_xor_b32 v9, s20, v9')
    for m in range(4):
        e.I(f'v_xor_b32 v8, {m}, v9')
        e.I(f'v_lshl_add_u32 v{PAD+m}, v8, 9, v4')
    e.I('v_and_b32 v9, 7, v1')
    e.I('v_lshlrev_b32 v8, 4, v9')
    e.I('v_lshl_add_u32 v8, v5, 7, v8')
    e.I('v_lshl_add_u32 v8, v15, 2, v8')
    e.I('s_lshl_b32 s38, s25, 8')
    e.I('v_add_u32 v8, s38, v8')
    e.I('v_lshrrev_b32 v9, 1, v1')
    e.I('v_lshlrev_b32 v9, 10, v9')
    e.I('v_and_b32 v10, 1, v1')
    e.I('v_lshl_add_u32 v9, v10, 3, v9')
    e.I(f'v_lshlrev_b32 v{ONE+1}, 2, v1')
    for k in range(4): e.I(f'v_mov_b32 v{SENT+k}, -1')
    e.I('s_mov_b32 s68, 0xff00ff00'); e.I('s_mov_b32 s69, 0xff00ff00')
    e.I('s_mov_b32 s70, 0x3f80'); e.I('s_mov_b32 s71, 0x3f800000')
    e.I(f'v_mov_b32 v{CI}, {NEG_BIG:#x}')
    e.I('s_mov_b32 vcc_lo, 0')
    e.I('s_mov_b32 vcc_hi, 0x00ff00ff')
    e.I(f'v_cndmask_b32 v{CI}, v{CI}, 0, vcc')
    for k in range(1, 4): e.I(f'v_mov_b32 v{CI+k}, v{CI}')
    e.I(f'v_mov_b32 v{IDX}, 0x44444444')
    e.I('v_mov_b32 v11, 0xeeeeeeee')
    e.I('v_cmp_lt_u32 vcc, 7, v14')
    e.I(f'v_cndmask_b32 v{IDX}, v{IDX}, v11, vcc')
    e.I('v_mov_b32 v11, 0x3f803f80')
    for k in range(4): e.I(f'v_accvgpr_write_b32 a{AONE+k}, v11')
    e.I('v_mov_b32 v11, 0x3f003f00')
    for k in range(2): e.I(f'v_accvgpr_write_b32 a{AHALF+k}, v11')
    e.I('s_mul_i32 s58, s26, 6144')
    e.I(f's_add_u32 s58, s58, {XR}')
    e.I('s_mul_i32 s57, s26, 3072')
    e.I(f's_add_u32 s57, s57, {VR}')
    e.I('s_lshr_b32 s59, s25, 1')
    e.I('s_lshl_b32 s59, s59, 14')
    e.I('s_and_b32 s38, s25, 1')
    e.I('s_lshl_b32 s38, s38, 12')
    e.I('s_add_u32 s59, s59, s38')
    e.I(f's_add_u32 s59, s59, {PART}')
    e.I('s_lshl_b32 s60, s20, 9')
    e.I('s_add_u32 s60, s60, s59')
    e.I('s_mul_i32 s61, s20, 10240')
    e.I(f's_add_u32 s61, s61, {MEM}')
    e.I('s_mul_i32 s62, s26, 12288')
    e.I('s_lshl_b32 s63, s26, 6')
    e.I(f's_add_u32 s63, s63, {FLGQ}')
    e.I('s_lshl_b32 s38, s20, 2')
    e.I('v_mov_b32 v10, s38')
    wait_flags(e, 10, D_PAR, 1, T0, 12, sleep=4, dbg=True)
    e.I(f'v_readfirstlane_b32 s38, v{T0}')
    e.I('s_nop 3')
    e.I('s_and_b32 s38, s38, 2')
    e.I('s_lshl_b32 s38, s38, 12')
    e.I('s_add_u32 s59, s59, s38')
    e.I('s_lshl_b32 s38, s22, 2')
    e.I(f's_add_u32 s38, s38, {S_RED + 8192}')
    e.I('v_lshlrev_b32 v10, 4, v14')
    e.I('v_add_u32 v10, s38, v10')
    e.I('v_and_b32 v11, 7, v14')
    e.I('v_lshlrev_b32 v11, 4, v11')
    e.I('v_bfe_u32 v12, v1, 3, 1')
    e.I('v_lshl_add_u32 v11, v12, 3, v11')
    e.I(f'v_add_u32 v11, {S_RED + 8192}, v11')
    e.I('v_min_u32 v12, 11, v1')
    e.I('v_lshlrev_b32 v12, 2, v12')
    def kv_loads(dst, base, q0=0, q1=12):
        if q0 >= q1: return
        e.I(f's_and_b32 s48, s49, {RD-1}')
        e.I(f's_mul_i32 s48, s48, {SEG_QX}')
        e.I('s_add_u32 s48, s48, s62')
        e.I(f's_add_u32 s48, s48, {base + (q0//4)*4096}')
        for q in range(q0, q1):
            if q % 4 == 0 and q > q0: e.I('s_add_u32 s48, s48, 4096')
            e.I(f'buffer_load_dwordx4 {vr(dst+4*q)}, v2, {WS}, s48 offen offset:{(q%4)*1024} sc1')
    def vx_loads():
        e.I(f's_and_b32 s48, s49, {RD-1}')
        e.I(f's_mul_i32 s48, s48, {SEG_QX}')
        e.I('s_add_u32 s48, s48, s62')
        e.I(f's_add_u32 s48, s48, {VX}')
        e.I('s_add_u32 s46, s48, 4096')
        e.I('s_add_u32 s56, s48, 8192')
        for kk in range(6):
            for rt in range(2):
                q = rt * 6 + kk
                e.I(f'buffer_load_dwordx4 {vr(VXF+4*q)}, v2, {WS}, {("s48", "s46", "s56")[q//4]} offen offset:{(q%4)*1024} sc1')
    def vw_grp(gi):
        kk, rt = gi // 2, gi % 2
        for ct in range(4):
            d = vr(DW + (ct*2+rt)*4)
            e.I(f'{MFMA} {d}, {vr(VXF+4*(rt*6+kk))}, {ar((ct*6+kk)*4)}, {0 if kk == 0 else d}')
    def vw_x(after, extra=(), nvx=0, g0=0):
        extra = list(extra); nx0 = len(extra)
        for gi in range(g0, 12):
            if gi >= 12 - nvx: e.I(f's_waitcnt vmcnt({11 - gi + nx0 - len(extra)})')
            for _ in range(-(-len(extra) // (12 - gi))): e.I(extra.pop(0))
            if after is not None: e.I(f's_waitcnt vmcnt({after + 11 - gi})')
            vw_grp(gi)
        cv = [f'v_cvt_pk_bf16_f32 v{VWX+4*ct+k}, v{DW+8*ct+2*k}, v{DW+8*ct+2*k+1}' for ct in range(4) for k in range(4)] + [f'v_mov_b32 v{DM+k}, 0' for k in range(16)]
        for n_, x_ in enumerate(cv):
            if extra and n_ % 2 == 0: e.I(extra.pop(0))
            e.I(x_)
    TS(e, 0)
    wait_reg(e, T0, opt.rsleep)
    TS(e, 1)
    if opt.swlate: wo_load()
    if opt.tord == 2: early_touch()
    TS(e, 2)
    TSflush(e, '69', 244, 245)
    if opt.touch2:
        e.I('v_lshrrev_b32 v16, 4, v1')
        e.I(f's_mov_b32 s38, {PART_SLOT}')
        e.I('v_mul_lo_u32 v16, s38, v16')
        e.I('v_bfe_u32 v17, v1, 1, 3')
        e.I('v_lshl_add_u32 v16, v17, 9, v16')
        e.I('v_and_b32 v17, 1, v1')
        e.I('v_lshl_add_u32 v16, v17, 7, v16')
        e.I(f'buffer_load_dword v17, v16, {WS}, s59 offen sc1')
    wait_flags(e, ONE + 1, 's63', 0xfff, T0, 11, sleep=2)
    e.I('s_mov_b32 s49, 0')
    vx_loads()
    kv_loads(KXF, KX)
    vw_x(12)
    e.I('s_cmp_lg_u32 s23, 0')
    e.I('s_cbranch_scc1 L_sws')
    for slow in (False, True):
        fl = ' sc1' if slow else ''
        if slow: e.L('L_sws')
        top = e.lab('Lwt')
        e.I('s_mov_b32 s30, 0')
        e.L(top)
        TS(e, 0)
        if opt.pdiag: e.I('s_mov_b32 s94, 0')
        e.I('s_and_b32 s38, s30, 3')
        e.I('s_xor_b32 s39, s38, 2')
        e.I(f's_mul_i32 s40, s38, {XR_SLOT}')
        e.I('s_add_u32 s40, s40, s58')
        e.I('s_add_u32 s54, s40, 4096')
        e.I(f's_mul_i32 s55, s38, {VR_SLOT}')
        e.I('s_add_u32 s55, s55, s57')
        if opt.fresh:
            e.I(f's_mul_i32 s41, s30, {PART_SLOT}')
            e.I(f's_add_u32 s41, s41, {SCRATCH + 0x400000 - PART + 0x200000}')
        else:
            e.I(f's_mul_i32 s41, s38, {PART_SLOT}')
        e.I('s_add_u32 s42, s41, s60')
        e.I('s_add_u32 s41, s41, s59')
        if opt.fresh:
            e.I('s_lshr_b32 s47, s41, 8')
            e.I('s_not_b32 s47, s47')
            e.I('s_and_b32 s47, s47, 8192')
            e.I('s_xor_b32 s41, s41, s47')
        e.I('s_xor_b32 s47, s41, 8192')
        e.I(f's_mul_i32 s43, s39, {PART_SLOT}')
        e.I('s_add_u32 s43, s43, s60')
        e.I('s_add_u32 s49, s30, 1')
        e.I('s_and_b32 s44, s49, 3')
        e.I('s_xor_b32 s45, s44, 2')
        e.I(f's_mul_i32 s44, s44, {MEM_SLOT}')
        e.I('s_add_u32 s44, s44, s61')
        e.I(f's_mul_i32 s45, s45, {MEM_SLOT}')
        e.I('s_add_u32 s45, s45, s61')
        e.I(f's_and_b32 s46, s49, {RD-1}')
        e.I(f's_mul_i32 s46, s46, {SEG_QX}')
        e.I('s_add_u32 s46, s46, s62')
        e.I(f's_add_u32 s65, s46, {KX}')
        e.I(f's_add_u32 s46, s46, {VX}')
        e.I('s_add_u32 s56, s46, 4096')
        e.I('s_add_u32 s64, s46, 8192')
        e.I('s_add_u32 s66, s65, 4096')
        e.I('s_add_u32 s67, s65, 8192')
        e.I('s_lshl_b32 s50, s49, 11')
        e.I('s_add_u32 s50, s50, s63')
        pl, pd, fr, hl, hd = e.lab('Lxp'), e.lab('Lxd'), e.lab('Lxf'), e.lab('Lhp'), e.lab('Lhd')
        def probe(lp, dn, va, so, bad):
            e.I('s_mov_b64 exec, 0xfff')
            e.I(f'buffer_load_dword v{T0}, v{va}, {WS}, {so} offen sc1')
            e.L(lp)
            for a_, b_ in ((T0, T0 + 1), (T0 + 1, T0)):
                e.I(f'buffer_load_dword v{b_}, v{va}, {WS}, {so} offen sc1')
                e.I('s_waitcnt vmcnt(1)')
                e.I(f'v_cmp_eq_u32 vcc, {bad}, v{a_}')
                e.I(f's_cbranch_vccz {dn}')
            e.I('s_sub_u32 s31, s31, 1')
            e.I(f's_cbranch_scc0 {lp}')
            e.I('s_mov_b32 s31, 2')
            e.I('s_branch L_fail')
        e.I(f's_mov_b32 s31, {TMO}')
        probe(hl, hd, 12, 's50', 0)
        xp = e.lab('Lxq')
        e.L(xp)
        probe(pl, pd, 9, 's40', -1)
        e.L(hd)
        if opt.hdelay: e.I(f's_nop {opt.hdelay - 1}')
        if not opt.heads: e.I(f's_branch {xp}')
        e.L(pd)
        e.I('s_mov_b64 exec, -1')
        TS(e, 1)
        if opt.pdiag: e.I('s_add_u32 s94, s94, 1')
        e.L(fr)
        for p in range(6):
            e.I(f'buffer_load_dwordx4 {vr(XF+4*p)}, v2, {WS}, {"s40" if p < 4 else "s54"} offen offset:{(p%4)*1024} sc1')
        FQ = CI + 23
        def vm_loads():
            for q in range(3):
                e.I(f'buffer_load_dwordx4 {vr(VMF+4*q)}, v2, {WS}, s55 offen offset:{q*1024} sc1')
        vp = opt.vmpos
        bulk0 = [f'buffer_load_dwordx4 {vr(VXF+4*q)}, v2, {WS}, {("s46", "s56", "s64")[q//4]} offen offset:{(q%4)*1024} sc1' for q in (0, 6, 1, 7, 2, 8)]
        nvm = 0
        if vp == 0: vm_loads(); nvm = 3
        for p in range(6):
            x = vr(XF + 4*p)
            e.I(f's_waitcnt vmcnt({5-p+nvm})')
            e.I(f'{MFMA} {vr(S+4)}, {vr(KXF+4*p)}, {x}, {0 if p == 0 else vr(S+4)}')
            e.I(f'{MFMA} {vr(S+8)}, {vr(KXF+24+4*p)}, {x}, {0 if p == 0 else vr(S+8)}')
            e.I(f'{MFMA} {vr(S)}, {x}, {x}, {vr(CI) if p == 0 else vr(S)}')
            if vp == p + 1: vm_loads(); nvm = 3
            if p >= 6 - opt.kx and p >= vp: e.I(bulk0[p - (6 - opt.kx)]); nvm += 1
            r = XF + 4 * p
            if p == 0:
                e.I(f'v_max3_u32 v{T0+2}, v{r}, v{r+1}, v{r+2}')
                e.I(f'v_max_u32 v{T0+2}, v{T0+2}, v{r+3}')
            else:
                e.I(f'v_max3_u32 v{T0+2}, v{T0+2}, v{r}, v{r+1}')
                e.I(f'v_max3_u32 v{T0+2}, v{T0+2}, v{r+2}, v{r+3}')
        e.I(f'v_cmp_eq_u32 vcc, -1, v{T0+2}')
        ok = e.lab('Lxo')
        e.I(f's_cbranch_vccz {ok}')
        e.I('s_sub_u32 s31, s31, 1')
        e.I('s_nop 7')
        e.I(f's_cbranch_scc0 {xp}')
        e.I('s_mov_b32 s31, 2')
        e.I('s_branch L_fail')
        e.L(ok)
        TS(e, 2)
        vl, vd = e.lab('Lvp'), e.lab('Lvd')
        e.I(f's_waitcnt vmcnt({opt.kx})')
        vl2 = e.lab('Lv2')
        e.I(f's_branch {vl2}') if opt.kx else None
        e.L(vl)
        e.I('s_waitcnt vmcnt(0)')
        e.L(vl2)
        check_sent(e, range(VMF, VMF + 12), T0 + 2, T0 + 3)
        e.I(f's_cbranch_vccz {vd}')
        vm_loads()
        e.I('s_sub_u32 s31, s31, 1')
        e.I(f's_cbranch_scc0 {vl}')
        e.I('s_mov_b32 s31, 3')
        e.I('s_branch L_fail')
        e.L(vd)
        TS(e, 3)
        PW = 2 if opt.pbf else 4
        if opt.rpos == 0: e.I(f'buffer_store_dwordx{PW} {vr(SENT,PW)}, v13, {WS}, s43 offen sc1')
        ROR8 = 'row_ror:8 row_mask:0xf bank_mask:0xf'
        sm = [f'{SMF} {vr(DM+4*ct)}, {vr(VMF+4*m)}, {ar((ct*6+2*m)*4,8)}, v{IDX}' for m in range(3) for ct in range(4)]
        t = T0 + 2
        V = []
        for r in range(4): V.append(f'v_mov_b32_dpp v{S+4+r}, v{S+8+r} row_shr:8 row_mask:0xf bank_mask:0xc')
        V += [f'v_max3_f32 v{t}, v{S}, v{S+1}, v{S+2}', f'v_max3_f32 v{t+1}, v{S+3}, v{S+4}, v{S+5}', f'v_max3_f32 v{t}, v{t}, v{S+6}, v{S+7}', f'v_max_f32 v{t}, v{t}, v{t+1}',
              '*', '*', f'v_max_f32_dpp v{t}, v{t}, v{t} {ROR8}', f'v_mov_b32 v{t+1}, v{t}', '*', '*', f'v_permlane16_swap_b32 v{t}, v{t+1}', f'v_max_f32 v{t}, v{t}, v{t+1}',
              f'v_mov_b32 v{t+1}, v{t}', '*', '*', f'v_permlane32_swap_b32 v{t}, v{t+1}', f'v_max_f32 v{t}, v{t}, v{t+1}', f'v_mul_f32 v{t}, s53, v{t}']
        order = [4, 5, 6, 7, 0, 1, 2, 3]
        for i in order: V.append(f'v_fma_f32 v{S+i}, v{S+i}, s52, v{t}')
        for n_, i in enumerate(order):
            V.append(f'v_exp_f32 v{S+i}, v{S+i}')
        bulk = [f'buffer_load_dwordx4 {vr(VXF+4*q)}, v2, {WS}, {("s46", "s56", "s64")[q//4]} offen offset:{(q%4)*1024} sc1' for q in (0, 6, 1, 7, 2, 8, 3, 9, 4, 10, 5, 11)]
        bulk += [f'buffer_load_dwordx4 {vr(KXF+4*q)}, v2, {WS}, {("s65", "s66", "s67")[q//4]} offen offset:{(q%4)*1024} sc1' for q in range(12)]
        kin = bulk[opt.kx:opt.kin]; kp = bulk[opt.kin:opt.kin + opt.kp]; kc = bulk[opt.kin + opt.kp:]
        if opt.nobulk & 1: kin = []
        if opt.nobulk & 2: kp = []
        if opt.nobulk & 4: kc = []
        def ld():
            if kin: e.I(kin.pop(0))
        for x_ in sm[:opt.smpre]: e.I(x_)
        rest = sm[opt.smpre:]
        cost = 0; prev = None; nld = 0
        for x_ in V:
            if x_ == '*':
                if prev == '*' or cost == 0 or not rest: ld()
                else: e.I(rest.pop(0)); cost = 0
            else:
                e.I(x_); cost += 2 if 'v_exp' in x_ else 1
                if cost >= opt.smgap and rest: e.I(rest.pop(0)); cost = 0
                elif not rest and cost >= opt.ldgap: ld(); cost = 0
            prev = x_
        for x_ in rest: e.I(x_)
        e.I(f'v_cvt_pk_bf16_f32 v{PB}, v{S+4}, v{S+5}')
        e.I(f'v_cvt_pk_bf16_f32 v{PB+1}, v{S+6}, v{S+7}')
        e.I(f'v_cvt_pk_bf16_f32 v{PM}, v{S}, v{S+1}')
        e.I(f'v_cvt_pk_bf16_f32 v{PM+1}, v{S+2}, v{S+3}')
        e.I(f'v_mov_b32_dpp v{PB+2}, v{PB} {ROR8}')
        e.I(f'v_mov_b32_dpp v{PB+3}, v{PB+1} {ROR8}')
        e.I(f'v_mov_b32 v{t}, v{PM}')
        e.I(f'v_mov_b32 v{t+1}, v{PM+1}')
        if opt.tpos == 0: TS(e, 4)
        def cvm(ct):
            e.I(f'v_cvt_pk_bf16_f32 v{VWM+2*ct}, v{DM+4*ct}, v{DM+4*ct+1}')
            e.I(f'v_cvt_pk_bf16_f32 v{VWM+2*ct+1}, v{DM+4*ct+2}, v{DM+4*ct+3}')
        SUM = S
        e.I(f'{MFMA} {vr(OUT)}, {vr(VWX)}, {vr(PB)}, 0')
        e.I(f'v_permlane32_swap_b32 v{t}, v{PM}')
        e.I(f'v_permlane32_swap_b32 v{t+1}, v{PM+1}')
        e.I(f'{MFMA} {vr(SUM)}, {ar(AONE)}, {vr(PB)}, 0')
        cvm(0)
        e.I(f'{MFMA} {vr(OUT+4)}, {vr(VWX+4)}, {vr(PB)}, 0')
        cvm(1)
        e.I(f'{MFMA} {vr(OUT+8)}, {vr(VWX+8)}, {vr(PB)}, 0')
        cvm(2)
        e.I(f'{MFMA} {vr(OUT+12)}, {vr(VWX+12)}, {vr(PB)}, 0')
        cvm(3)
        e.I(f'{MFMA16} {vr(OUT)}, {vr(VWM,2)}, {vr(PM,2)}, {vr(OUT)}')
        ld()
        e.I(f'{MFMA16} {vr(SUM)}, {ar(AHALF,2)}, {vr(PM,2)}, {vr(SUM)}')
        ld()
        for ct in range(1, 4):
            e.I(f'{MFMA16} {vr(OUT+4*ct)}, {vr(VWM+2*ct,2)}, {vr(PM,2)}, {vr(OUT+4*ct)}')
            if ct < 3: ld()
        while kin: ld()
        if opt.tpos == 1: TS(e, 4)
        e.I('s_not_b64 exec, s[68:69]')
        e.I(f'ds_write_b128 v6, {vr(OUT)}')
        e.I(f'v_rcp_f32 v{t}, v{SUM}')
        e.I(f'ds_write_b128 v6, {vr(OUT+4)} offset:2048')
        e.I(f'ds_write_b32 v10, v{t}')
        e.I(f'ds_write_b128 v6, {vr(OUT+8)} offset:4096')
        e.I(f'ds_write_b128 v6, {vr(OUT+12)} offset:6144')
        e.I('s_mov_b64 exec, -1')
        e.I('s_waitcnt lgkmcnt(0)')
        if opt.tpos == 2: TS(e, 4)
        e.I('s_barrier')
        if opt.tpos == 3: TS(e, 4)
        e.I(f'ds_read_b64 {vr(t,2)}, v11')
        e.I(f'ds_read_b128 {vr(S)}, v7')
        e.I(f'ds_read_b128 {vr(S+4)}, v7 offset:512')
        e.I('s_waitcnt lgkmcnt(1)')
        for k in range(4): e.I(f'v_mul_f32 v{S+k}, v{S+k}, v{t}')
        e.I('s_waitcnt lgkmcnt(0)')
        for k in range(4): e.I(f'v_fmac_f32 v{S+k}, v{S+4+k}, v{t+1}')
        for k in range(4): e.I(f'v_add_f32_dpp v{S+k}, v{S+k}, v{S+k} {ROR8}')
        if opt.pbf:
            e.I(f'v_cvt_pk_bf16_f32 v{S+4}, v{S}, v{S+1}')
            e.I(f'v_cvt_pk_bf16_f32 v{S+5}, v{S+2}, v{S+3}')
            e.I(f'buffer_store_dwordx2 {vr(S+4,2)}, v13, {WS}, s42 offen sc1')
        else:
            e.I(f'buffer_store_dwordx4 {vr(S)}, v13, {WS}, s42 offen sc1')
        TS(e, 5)
        if opt.rpos == 2: e.I(f'buffer_store_dwordx{PW} {vr(SENT,PW)}, v13, {WS}, s43 offen sc1')
        e.I(f'v_mov_b32 v{PA}, 0'); e.I(f'v_mov_b32 v{PA+1}, 0')
        for k in range(4): e.I(f'v_cndmask_b32 v{S+k}, v{S+k}, 0, s[68:69]')
        if opt.pmf:
            e.I('s_waitcnt vmcnt(2)')
            for gi in range(opt.pmf): vw_grp(gi)
        if opt.pdelay: e.I(f's_sleep {opt.pdelay}')
        def shot():
            e.I('s_mov_b64 exec, s[68:69]')
            e.I(f'buffer_load_dwordx2 {vr(PA,2)}, v{PAD}, {WS}, s41 offen sc1')
            e.I('s_mov_b64 exec, -1')
            for m in range(1, 4): e.I(f'buffer_load_dwordx2 {vr(PA+2*m,2)}, v{PAD+m}, {WS}, s41 offen sc1')
            for k in range(4): e.I(f'v_mov_b32 v{T0+8+k}, v{S+k}')
        ql, qd, qf = e.lab('Lpp'), e.lab('Lpd'), e.lab('Lpf')
        shot()
        for gi in range(opt.pmf, opt.pmf + opt.pmf2): vw_grp(gi)
        e.I(f's_branch {qf}')
        e.L(ql)
        shot()
        e.L(qf)
        for m in range(4):
            e.I(f's_waitcnt vmcnt({3-m})')
            if m == 0: e.I(f'v_max_u32 v{T0}, v{PA}, v{PA+1}')
            else: e.I(f'v_max3_u32 v{T0}, v{T0}, v{PA+2*m}, v{PA+2*m+1}')
            if m == 3: e.I(f'v_cmp_eq_u32 vcc, -1, v{T0}')
            for k in range(4): e.I(f'v_dot2c_f32_bf16 v{T0+8+k}, {("s70", "s71")[k&1]}, v{PA+2*m+(k>>1)}')
        e.I(f's_cbranch_vccz {qd}')
        e.I('s_sub_u32 s31, s31, 1')
        e.I(f's_cbranch_scc0 {ql}')
        e.I('s_mov_b32 s31, 4')
        e.I('s_branch L_fail')
        e.L(qd)
        TS(e, 6)
        e.I('s_nop 1')
        for k in range(2): e.I(f'v_add_f32_dpp v{T0+4+k}, v{T0+8+k}, v{T0+8+k} row_ror:8 row_mask:0xf bank_mask:0x3')
        for k in range(2): e.I(f'v_add_f32_dpp v{T0+4+k}, v{T0+10+k}, v{T0+10+k} row_ror:8 row_mask:0xf bank_mask:0xc ; merge')
        e.I(f'v_cvt_pk_bf16_f32 v{T0+4}, v{T0+4}, v{T0+5}')
        e.I(f'buffer_store_dword v{T0+4}, v8, {WS}, s44 offen{fl}')
        TS(e, 7)
        e.I(f'buffer_store_dword v{SENT}, v8, {WS}, s45 offen{fl}')
        if opt.mbar: e.I('s_barrier')
        nvx = max(0, 12 - opt.kin - opt.kp)
        for x_ in kc[:nvx]: e.I(x_)
        assert opt.kin >= opt.pmf + opt.pmf2
        vw_x(None, kc[nvx:], nvx, opt.pmf + opt.pmf2)
        TS(e, 8)
        TSflush(e, 's30', 244, 245)
        if opt.dstamp: e.I('s_lshl_b32 s98, s25, 8'); e.I('s_add_u32 s98, s98, s30')
        DSTAMP(e, 2, 's_cmp_eq_u32 s98, 9216')
        if opt.dstamp: e.I('s_lshl_b32 s98, s25, 8'); e.I('s_add_u32 s98, s98, s30')
        DSTAMP(e, 3, 's_cmp_eq_u32 s98, 9218')
        if opt.dstamp: e.I('s_lshl_b32 s98, s25, 8'); e.I('s_add_u32 s98, s98, s30')
        DSTAMP(e, 4, 's_cmp_eq_u32 s98, 9278')
        e.I('s_add_u32 s30, s30, 1')
        e.I('s_cmp_lt_u32 s30, 63')
        e.I(f's_cbranch_scc1 {top}')
        if not slow: e.I('s_branch L_swend')
    e.L('L_swend')
    e.I('s_lshl_b32 s38, s20, 6')
    e.I('s_lshl_b32 s39, s22, 2')
    e.I('s_add_u32 s38, s38, s39')
    e.I(f's_add_u32 s38, s38, {FLGOX + 63*512}')
    e.I(f's_add_u32 s46, s62, {OX + (63 % RD)*SEG_QX}')
    e.I('s_add_u32 s56, s46, 4096')
    e.I('s_add_u32 s64, s46, 8192')
    e.I('s_lshl_b32 s39, s22, 10')
    e.I('v_add_u32 v6, s39, v2')
    e.I('s_lshl_b32 s39, s22, 12')
    e.I('v_add_u32 v7, s39, v2')
    e.I('s_lshr_b32 s40, s24, 1')
    e.I('s_lshl_b32 s40, s40, 2')
    e.I('s_add_u32 s40, s40, s22')
    e.I('s_lshl_b32 s40, s40, 10')
    e.I('s_and_b32 s41, s24, 1')
    e.I('s_lshl_b32 s41, s41, 3')
    e.I('s_add_u32 s40, s40, s41')
    e.I('s_mul_i32 s41, s20, 40960')
    e.I('s_add_u32 s40, s40, s41')
    e.I(f's_add_u32 s40, s40, {PX + 63*SEG_PX}')
    e.I('s_add_u32 s41, s40, 20480')
    e.I('s_mul_i32 s43, s20, 5')
    e.I('s_lshr_b32 s44, s24, 1')
    e.I('s_add_u32 s43, s43, s44')
    e.I('s_lshl_b32 s43, s43, 7')
    e.I(f's_add_u32 s43, s43, {HINT2}')
    e.I('v_mov_b32 v3, 0')
    e.I(f'v_mov_b32 v{ONE}, 1')
    e.I('s_waitcnt vmcnt(0)')
    TS(e, 0)
    wait_flags(e, 3, 's38', 1, T0, 5, sleep=opt.esleep)
    TS(e, 1)
    order = (0, 6, 1, 7, 2, 8, 3, 9, 4, 10, 5, 11)
    for q in order: e.I(f'buffer_load_dwordx4 {vr(VXF+4*q)}, v2, {WS}, {("s46", "s56", "s64")[q//4]} offen offset:{(q%4)*1024} sc1')
    for n_, q in enumerate(order):
        qt, kk = q // 6, q % 6
        e.I(f's_waitcnt vmcnt({11 - n_})')
        for ct in range(4):
            d = vr(DW + (qt*4+ct)*4)
            e.I(f'{MFMA} {d}, {ar((ct*6+kk)*4)}, {vr(VXF+4*q)}, {0 if kk == 0 else d}')
    TS(e, 2)
    for k in range(8): e.I(f'ds_write_b128 v6, {vr(DW+4*k)} offset:{k*4096}')
    e.I('s_waitcnt lgkmcnt(0)')
    e.I('s_barrier')
    for qt in range(2):
        for hh in range(4): e.I(f'ds_read_b128 {vr(KXF+(qt*4+hh)*4)}, v7 offset:{qt*16384 + hh*1024}')
    for qt in range(2):
        r = KXF + qt*16
        e.I(f's_waitcnt lgkmcnt({4 - 4*qt})')
        for k in range(4):
            e.I(f'v_add_f32 v{r+k}, v{r+k}, v{r+4+k}')
            e.I(f'v_add_f32 v{r+8+k}, v{r+8+k}, v{r+12+k}')
        for k in range(4): e.I(f'v_add_f32 v{r+k}, v{r+k}, v{r+8+k}')
        e.I(f'v_cvt_pk_bf16_f32 v{r+4}, v{r}, v{r+1}')
        e.I(f'v_cvt_pk_bf16_f32 v{r+5}, v{r+2}, v{r+3}')
        e.I(f'buffer_store_dwordx2 {vr(r+4,2)}, v2, {WS}, {("s40", "s41")[qt]} offen sc1')
    TS(e, 3)
    e.I('s_and_b32 s38, s25, 7')
    e.I(f's_cmp_eq_u32 s38, {opt.hwv}')
    e.I('s_cselect_b64 exec, 1, 0')
    e.I(f'buffer_store_dword v{ONE}, v3, {WS}, s43 offen sc1')
    e.I('s_mov_b64 exec, -1')
    TSflush(e, '63', 244, 245)
    e.I('s_endpgm')

def role_xw(e):
    OF = 16
    D = 112
    T0 = 160; ONE = 252
    e.I('s_sub_u32 s24, s21, 22')
    srd(e, 8, 66, 6144 * 1280)
    e.I(f's_mul_i32 s28, s20, {768*1280}')
    e.I('s_lshl_b32 s29, s24, 8')
    e.I('s_add_u32 s28, s28, s29')
    e.I('s_add_u32 s29, s28, 128')
    e.I(f'v_lshlrev_b32 v{ONE+1}, 2, v1')
    e.I('s_lshl_b32 s38, s20, 8')
    e.I(f's_add_u32 s38, s38, {FLGQ}')
    if opt.xlate & 1: wait_first(e, T0)
    if opt.touch:
        jobs = []
        for sl in range(RD):
            if sl >= 2: jobs += [(b_ + sl * SEG_QX, 12288, 96) for b_ in (KX, VX, QX)] + [(XP + sl * SEG_XP, 6144, 48), (VM + sl * SEG_VM, 3072, 24)]
            if sl >= 2: jobs += [(OX + (sl - 2) * SEG_QX, 12288, 96)]
        jobs += [(OX + sl * SEG_QX, 12288, 96) for sl in (6, 7)]
        e.I('s_lshl_b32 s40, s20, 2')
        e.I('s_add_u32 s40, s40, s22')
        touch_jobs(e, jobs, 's24', 5, 's40', 16)
    pass
    load_weights(e, [('s[8:11]', 's28', 0, 768), ('s[8:11]', 's29', 96, 768)], 1280, 256, True, 3, 4)
    e.I(f'v_lshlrev_b32 v{ONE+1}, 2, v1')
    e.I('s_lshl_b32 s38, s20, 2')
    e.I('s_add_u32 s38, s38, s22')
    e.I('s_lshl_b32 s39, s38, 2')
    e.I('v_lshlrev_b32 v3, 7, v1')
    e.I('v_add_u32 v3, s39, v3')
    e.I(f'v_mov_b32 v{ONE}, 1')
    e.I('s_mul_i32 s62, s22, 12288')
    e.I('s_mul_i32 s63, s38, 12288')
    e.I(f's_add_u32 s63, s63, {OX}')
    e.I('s_mul_i32 s64, s20, 40960')
    e.I('s_lshl_b32 s65, s24, 2')
    e.I('s_add_u32 s65, s65, s22')
    e.I('s_lshl_b32 s65, s65, 10')
    e.I('s_add_u32 s64, s64, s65')
    e.I(f's_add_u32 s64, s64, {PX}')
    e.I('s_lshl_b32 s66, s24, 8')
    e.I(f's_add_u32 s66, s66, {FLGPX}')
    def pxflag():
        e.I('s_mov_b64 exec, 3')
        e.I(f'buffer_store_dword v{ONE}, v3, {WS}, s54 offen sc1')
        e.I('s_mov_b64 exec, s[60:61]')
        e.I(f'buffer_store_dword v{ONE}, v6, {WS}, s53 offen sc1')
        e.I('s_mov_b64 exec, -1')
    wait_reg(e, T0)
    top, nof, late, nxt_, last = e.lab('Lxt'), e.lab('Lxn'), e.lab('Lxl'), e.lab('Lxx'), e.lab('Lxe')
    e.I('s_lshl_b32 s67, s20, 6')
    e.I('s_lshl_b32 s38, s22, 2')
    e.I('s_add_u32 s67, s67, s38')
    e.I(f's_add_u32 s67, s67, {FLGOX}')
    e.I('s_lshl_b32 s38, s20, 5')
    e.I('s_add_u32 s38, s38, s24')
    e.I('s_lshl_b32 s38, s38, 2')
    e.I('v_mov_b32 v6, s38')
    e.I('v_mov_b32 v4, 0')
    e.I('v_mov_b32 v5, v2')
    def dma(sn):
        e.I(f's_and_b32 s55, {sn}, {RD-1}')
        e.I(f's_mul_i32 s55, s55, {SEG_QX}')
        e.I('s_add_u32 s55, s55, s63')
        e.I(f's_and_b32 s56, {sn}, 1')
        e.I('s_mul_i32 s56, s56, 49152')
        e.I('s_add_u32 s56, s56, s62')
        for m in range(12):
            e.I(f's_add_u32 m0, s56, {m*1024}')
            e.I(f'buffer_load_dwordx4 v2, {WS}, s55 offen sc1 lds')
            if m < 11: e.I('s_add_u32 s55, s55, 1024')
    e.I('s_mov_b32 s30, 0')
    wait_flags(e, 4, 's67', 1, T0, 5, sleep=opt.xsleep)
    dma('s30')
    e.L(top)
    TS(e, 0)
    e.I('s_add_u32 s58, s30, 1')
    e.I('s_min_u32 s57, s58, 62')
    e.I('s_lshl_b32 s57, s57, 9')
    e.I('s_add_u32 s57, s57, s67')
    e.I('s_waitcnt vmcnt(0)')
    e.I(f'buffer_load_dword v{T0}, v4, {WS}, s57 offen sc1')

    e.I('s_cmp_eq_u32 s30, 0')
    e.I(f's_cbranch_scc1 {nof}')
    e.I('s_cmp_lg_u32 s59, 0')
    e.I(f's_cbranch_scc1 {nof}')
    pxflag()
    nof2 = e.lab('Lxm')
    e.I(f's_branch {nof2}')
    e.L(nof)
    for _ in range(2): e.I(f'buffer_load_dword v{T0+1}, v4, {WS}, s57 offen sc1')
    e.L(nof2)
    e.I('s_barrier')
    TS(e, 1)
    e.I(f's_mul_i32 s50, s30, {SEG_PX}')
    e.I('s_add_u32 s50, s50, s64')
    e.I('s_add_u32 s51, s50, 20480')
    e.I('s_mul_i32 s54, s30, 1280')
    e.I('s_add_u32 s54, s54, s66')
    e.I('s_and_b32 s53, s30, 3')
    e.I('s_lshl_b32 s53, s53, 10')
    e.I(f's_add_u32 s53, s53, {HINT}')
    e.I(f's_cmp_ge_u32 s30, {opt.cwarm}')
    e.I('s_cselect_b32 s60, 1, 0')
    e.I('s_cmp_eq_u32 s22, 0')
    e.I('s_cselect_b32 s60, s60, 0')
    e.I('s_mov_b32 s61, 0')
    TS(e, 2)
    PF = 6
    def rd(kk):
        hl, p = kk // 6, kk % 6
        for qt in range(2):
            e.I(f'ds_read_b128 {vr(OF + ((2*kk+qt) % 24)*4)}, v5 offset:{hl*12288 + (qt*6+p)*1024}')
    for kk in range(PF): rd(kk)
    for kk in range(24):
        nxt = min(24, kk + PF) - (kk + 1)
        e.I(f's_waitcnt lgkmcnt({2*nxt})')
        for qt in range(2):
            for b in range(2):
                d = vr(D + 4*(qt*2+b))
                e.I(f'{MFMA} {d}, {ar(96*b+4*kk)}, {vr(OF + ((2*kk+qt) % 24)*4)}, {0 if kk == 0 else d}')
        if kk + PF < 24: rd(kk + PF)
        if kk == 4:
            e.I('s_waitcnt vmcnt(2)')
            e.I(f'v_readfirstlane_b32 s59, v{T0}')
            e.I('s_cmp_eq_u32 s30, 62')
            e.I('s_cselect_b32 s59, 0, s59')
            e.I('s_cmp_eq_u32 s59, 0')
            e.I(f's_cbranch_scc1 {late}')
            dma('s58')
            e.L(late)
        if kk == 16: e.I(f'buffer_load_dword v{T0}, v4, {WS}, s57 offen sc1')
    sc = e.lab('Lxs')
    e.I('s_cmp_lg_u32 s59, 0')
    e.I(f's_cbranch_scc1 {sc}')
    e.I('s_cmp_eq_u32 s30, 62')
    e.I(f's_cbranch_scc1 {sc}')
    e.I('s_waitcnt vmcnt(0)')
    e.I(f'v_readfirstlane_b32 s59, v{T0}')
    e.I('s_cmp_eq_u32 s59, 0')
    e.I(f's_cbranch_scc1 {sc}')
    dma('s58')
    e.L(sc)
    for qt, so in enumerate(('s50', 's51')):
        for k in range(4): e.I(f'v_cvt_pk_bf16_f32 v{D+16+4*qt+k}, v{D+8*qt+2*k}, v{D+8*qt+2*k+1}')
        e.I(f'buffer_store_dwordx4 {vr(D+16+4*qt)}, v2, {WS}, {so} offen sc1')
    e.I('v_xor_b32 v5, 49152, v5')
    TS(e, 3)
    TSflush(e, 's30')
    e.I('s_cmp_eq_u32 s30, 62')
    e.I(f's_cbranch_scc1 {last}')
    e.I('s_cmp_lg_u32 s59, 0')
    e.I('s_mov_b32 s59, 0')
    e.I(f's_cbranch_scc1 {nxt_}')
    e.I(f'buffer_load_dword v{T0}, v4, {WS}, s57 offen sc1')
    e.I('s_waitcnt vmcnt(0)')
    e.I(f'v_readfirstlane_b32 s38, v{T0}')
    e.I('s_cmp_lg_u32 s38, 0')
    sl2 = e.lab('Lxq')
    e.I(f's_cbranch_scc1 {sl2}')
    pxflag()
    e.I('s_mov_b32 s59, 1')
    wait_flags(e, 4, 's57', 1, T0, 5, sleep=opt.xsleep)
    e.L(sl2)
    dma('s58')
    e.L(nxt_)
    e.I('s_mov_b32 s30, s58')
    e.I(f's_branch {top}')
    e.L(last)
    e.I('s_waitcnt vmcnt(0)')
    pxflag()
    if opt.wb & 1:
        e.I('s_cmp_lg_u32 s21, 22'); e.I('s_cbranch_scc1 L_end'); e.I('s_cmp_lg_u32 s22, 0'); e.I('s_cbranch_scc1 L_end')
        e.I('buffer_wbl2 sc1'); e.I('s_waitcnt vmcnt(0)')
    e.I('s_endpgm')

def role_att(e):
    fl = ''
    KF, QF, VF = 0, 48, 96
    XPF = 16
    SA, SB, PA_, PB_ = 40, 48, 60, 64
    DO, OB = 72, 136
    T0 = 226
    C0, C1 = 232, 236
    ONE = 252
    e.I('s_sub_u32 s25, s21, 27')
    e.I('s_lshl_b32 s26, s20, 2')
    e.I('s_add_u32 s26, s26, s22')
    e.I(f's_mov_b32 s52, {SC_L2E:#x}'); e.I(f's_mov_b32 s53, {SC_L2E | 0x80000000:#x}')
    e.I(f'v_lshlrev_b32 v{ONE+1}, 2, v1')
    e.I('s_lshl_b32 s38, s22, 2')
    e.I(f'v_mov_b32 v{ONE+2}, s38')
    e.I(f'v_mov_b32 v{ONE}, 1')
    lane_ig(e, 14, 15)
    e.I(f'v_mov_b32 v3, {NEG_BIG:#x}')
    e.I('v_cmp_gt_u32 vcc, 32, v1')
    e.I(f'v_cndmask_b32 v{C0}, 0, v3, vcc')
    for k in range(1, 4): e.I(f'v_mov_b32 v{C0+k}, v{C0}')
    e.I('v_lshlrev_b32 v5, 2, v15')
    for r in range(4):
        e.I(f'v_add_u32 v6, {r}, v5')
        e.I('v_cmp_gt_u32 vcc, v6, v14')
        e.I(f'v_cndmask_b32 v{C1+r}, 0, v3, vcc')
    e.I('s_mul_i32 s58, s26, 6144')
    e.I('s_lshl_b32 s59, s22, 14')
    e.I('v_and_b32 v4, 3, v1')
    e.I('v_lshlrev_b32 v4, 8, v4')
    e.I('v_bfe_u32 v5, v1, 2, 3')
    e.I('v_lshl_add_u32 v5, v5, 4, v4')
    e.I('v_add_u32 v5, s59, v5')
    e.I('v_lshrrev_b32 v6, 2, v1')
    e.I('v_lshl_add_u32 v4, v6, 4, v4')
    e.I('v_add_u32 v4, s59, v4')
    wait_reg(e, T0)
    e.I('v_lshrrev_b32 v12, 2, v1')
    e.I('v_lshlrev_b32 v12, 8, v12')
    e.I('v_and_b32 v13, 3, v1')
    e.I('v_lshl_add_u32 v12, v13, 2, v12')
    e.I('s_lshl_b32 s38, s20, 4')
    e.I('v_add_u32 v12, s38, v12')
    e.I('s_lshl_b32 s60, s26, 6')
    e.I(f's_add_u32 s60, s60, {FLGQ}')
    e.I('s_cmp_lg_u32 s23, 0')
    e.I('s_cbranch_scc1 L_atts')
    for slow in (False, True):
        fl = ' sc1' if slow else ''
        if slow: e.L('L_atts')
        top = e.lab('Lat')
        e.I('s_mov_b32 s30, s25')
        e.L(top)
        TS(e, 0)
        e.I('s_max_u32 s51, s30, 2')
        e.I('s_lshl_b32 s51, s51, 11')
        e.I('s_add_u32 s51, s51, s60')
        e.I(f's_and_b32 s42, s30, {RD-1}')
        e.I(f's_mul_i32 s40, s42, {SEG_QX}')
        e.I('s_lshl_b32 s41, s58, 1')
        e.I('s_add_u32 s40, s40, s41')
        e.I(f's_mul_i32 s41, s42, {SEG_XP}')
        e.I('s_add_u32 s41, s41, s58')
        nbp = e.lab('Lab')
        e.I(f's_cmp_lt_u32 s30, {RD}')
        e.I(f's_cbranch_scc1 {nbp}')
        e.I(f's_sub_u32 s50, s30, {RD}')
        e.I('s_mul_i32 s50, s50, 1280')
        e.I(f's_add_u32 s50, s50, {FLGPX}')
        wait_flags(e, 12, 's50', 0xfffff, T0, 14, sleep=16)
        e.L(nbp)
        wait_flags(e, ONE + 1, 's51', 0xfff, T0, 6, sleep=opt.asleep)
        def loads(dst, n, sbase, add):
            e.I(f's_add_u32 s48, {sbase}, {add}')
            for q in range(n):
                if q and q % 4 == 0: e.I('s_add_u32 s48, s48, 4096')
                e.I(f'buffer_load_dwordx4 {dst(q)}, v2, {WS}, s48 offen offset:{(q%4)*1024} sc1')
        e.I(f's_add_u32 s48, s40, {VX}')
        for q in range(12):
            e.I(f's_add_u32 m0, s59, {q*1024}')
            e.I(f'buffer_load_dwordx4 v2, {WS}, s48 offen sc1 lds')
            e.I('s_add_u32 s48, s48, 1024')
        loads(lambda q: ar(KF + 4*q), 12, 's40', KX)
        loads(lambda q: ar(QF + 4*q), 12, 's40', QX)
        e.I('s_add_u32 s51, s30, 2')
        e.I('s_lshl_b32 s51, s51, 11')
        e.I('s_add_u32 s51, s51, s60')
        e.I('s_waitcnt vmcnt(24)')
        for T in range(12):
            for rt in range(2):
                e.I(f'ds_read_b64_tr_b16 {ar(VF+6*T+2+2*rt,2)}, v4 offset:{rt*6144 + (T>>1)*1024 + (T&1)*8}')
        e.I('s_waitcnt vmcnt(0)')
        for p in range(6):
            e.I(f'{MFMA} {vr(SA+4)}, {ar(KF+4*p)}, {ar(QF+4*p)}, {vr(C1) if p == 0 else vr(SA+4)}')
            e.I(f'{MFMA} {vr(SB+4)}, {ar(KF+4*p)}, {ar(QF+24+4*p)}, {0 if p == 0 else vr(SB+4)}')
            e.I(f'{MFMA} {vr(SB+8)}, {ar(KF+24+4*p)}, {ar(QF+24+4*p)}, {vr(C1) if p == 0 else vr(SB+8)}')
        wait_flags(e, ONE + 1, 's51', 0xfff, T0, 6, sleep=opt.asleep)
        TS(e, 1)
        loads(lambda q: vr(XPF + 4*q), 6, 's41', XP)
        e.I('s_lshr_b32 s42, s41, 1')
        e.I(f's_add_u32 s48, s42, {VM}')
        for q in range(3):
            e.I(f's_add_u32 m0, s59, {12288 + q*1024}')
            e.I(f'buffer_load_dwordx4 v2, {WS}, s48 offen sc1 lds')
            e.I('s_add_u32 s48, s48, 1024')
        for p in range(6):
            e.I(f's_waitcnt vmcnt({8-p})')
            e.I(f'{MFMA} {vr(SA)}, {vr(XPF+4*p)}, {ar(QF+4*p)}, {vr(C0) if p == 0 else vr(SA)}')
            e.I(f'{MFMA} {vr(SB)}, {vr(XPF+4*p)}, {ar(QF+24+4*p)}, {vr(C0) if p == 0 else vr(SB)}')
        TS(e, 2)
        e.I('s_waitcnt vmcnt(0)')
        for T in range(12):
            kk = T >> 1
            e.I(f'ds_read_b64_tr_b16 {ar(VF+6*T,2)}, v5 offset:{12288 + (kk % 3)*1024 + (kk // 3)*128 + (T&1)*8}')
        for x_ in softmax_list(SA, 8, PA_, T0): e.I(x_)
        e.I(f's_add_u32 s48, s40, {OX}')
        e.I('s_add_u32 s49, s48, 4096')
        e.I('s_add_u32 s50, s48, 8192')
        e.I('s_waitcnt lgkmcnt(0)')
        def fin(qt, p):
            d = DO + 8 * (p + (2 if qt else 0) * 3) % 64; o = OB + 4 * (qt*6 + p); q = qt*6 + p
            return [f'v_cvt_pk_bf16_f32 v{o+k}, v{d+2*k}, v{d+2*k+1}' for k in range(4)] + \
                   [f'buffer_store_dwordx4 {vr(o)}, v2, {WS}, {("s48", "s49", "s50")[q//4]} offen offset:{(q%4)*1024}{fl}']
        smb = softmax_list(SB, 12, PB_, T0)
        for T in range(12):
            e.I(f'{MFMA} {vr(DO+4*T)}, {ar(VF+6*T)}, {vr(PA_)}, 0')
            for _ in range(3): e.I(smb.pop(0))
        outs = [x_ for p in range(6) for x_ in fin(0, p)]
        while smb:
            e.I(smb.pop(0)); e.I(smb.pop(0)) if smb else None
            if outs: e.I(outs.pop(0))
        for x_ in outs: e.I(x_)
        for p in range(6):
            d = DO + 8 * (p + 6) % 64
            for t in range(2): e.I(f'{MFMA16} {vr(d+4*t)}, {ar(VF+6*(2*p+t),2)}, {vr(PB_,2)}, 0')
            for t in range(2): e.I(f'{MFMA} {vr(d+4*t)}, {ar(VF+6*(2*p+t)+2)}, {vr(PB_+2)}, {vr(d+4*t)}')
            if p > 1:
                for x_ in fin(1, p - 2): e.I(x_)
        for p in (4, 5):
            for x_ in fin(1, p): e.I(x_)
        e.I('s_lshl_b32 s50, s30, 3')
        e.I('s_add_u32 s50, s50, s20')
        e.I('s_lshl_b32 s50, s50, 6')
        e.I(f's_add_u32 s50, s50, {FLGOX}')
        e.I('s_waitcnt vmcnt(0)')
        set_flag(e, ONE + 2, 's50', ONE, fl)
        TS(e, 3)
        TSflush(e, 's30', 230, 231)
        e.I('s_add_u32 s30, s30, 2')
        e.I('s_cmp_lt_u32 s30, 64')
        e.I(f's_cbranch_scc1 {top}')
        e.I('s_endpgm')

F_LX, F_LH = 0, 98304
def role_ffn(e):
    ACC2 = 0
    ACC1 = 16
    BF = 48
    HP = 80
    WR = 96
    NW = 40
    e.I('s_sub_u32 s26, s21, 29')
    e.I('s_mul_i32 s25, s20, 3')
    e.I('s_add_u32 s26, s26, s25')
    e.I('s_mov_b32 s24, s26')
    srd(e, 8, 56, 640 * 3072); srd(e, 12, 58, 1536 * 1280)
    if opt.xlate & 4: wait_first(e, 16)
    transpose_w(e, 's26')
    e.I('s_waitcnt vmcnt(0)')
    e.I('s_barrier')
    count_up(e, 3, D_TR)
    wait_count(e, 3, D_TR, 24, 16)
    if opt.urg: wait_count(e, 3, D_W, 80, 16)
    wait_reg(e, 16, 32)
    e.L('L_ffn_task')
    e.I('s_lshl_b32 s38, s24, 2')
    e.I('s_add_u32 s38, s38, s22')
    e.I('s_mul_i32 s39, s38, 20480')
    e.I(f's_add_u32 s39, s39, {XN}')
    e.I('s_mul_i32 s40, s22, 20480')
    for m in range(20):
        e.I(f's_add_u32 m0, s40, {m*1024}')
        e.I(f'buffer_load_dwordx4 v2, {WS}, s39 offen lds')
        e.I('s_add_u32 s39, s39, 1024')
    for k in range(160): e.I(f'v_accvgpr_write_b32 a{k}, 0')
    e.I('s_mul_i32 s41, s22, 40960')
    e.I(f's_add_u32 s41, s41, {W1F}')
    e.I(f's_mul_i32 s42, s22, {10*48*1024}')
    e.I(f's_add_u32 s42, s42, {W2F}')
    e.I('v_add_u32 v3, 20480, v2')
    for u in range(10):
        e.I(f's_mov_b32 s54, {u*48*1024}')
        e.I(f'v_add_u32 v{4+u}, s54, v2')
    e.I(f'v_add_u32 v14, {F_LH}, v2')
    e.I('s_lshl_b32 s38, s22, 12')
    e.I('v_add_u32 v15, s38, v14')
    def wload(idx, adv):
        dst = vr(WR + (idx % NW) * 4)
        if idx < 40:
            kk, u = idx // 2, idx % 2
            e.I(f's_add_u32 s45, {adv[0]}, {(kk//4)*4096}')
            e.I(f'buffer_load_dwordx4 {dst}, v{2+u}, {WS}, s45 offen offset:{(kk%4)*1024}{" nt" if opt.ffnnt else ""}')
        else:
            pp, u = (idx - 40) // 10, (idx - 40) % 10
            e.I(f'buffer_load_dwordx4 {dst}, v{4+u}, {WS}, {adv[1]} offen offset:{pp*1024}{" nt" if opt.ffnnt else ""}')
    for idx in range(NW - 2): wload(idx, ('s41', 's42'))
    e.I(f's_waitcnt vmcnt({NW-2})')
    e.I('s_barrier')
    top = e.lab('Lft')
    TS(e, 0)
    e.I('s_mov_b32 s30, 0')
    e.L(top)
    e.I('s_cmp_lt_u32 s30, 11')
    e.I('s_cselect_b32 s46, 163840, 0')
    e.I('s_cselect_b32 s47, 4096, 0')
    e.I('s_add_u32 s43, s41, s46')
    e.I('s_add_u32 s44, s42, s47')
    D = NW - 2
    def pref(idx):
        j = idx + D
        if j < 80: wload(j, ('s41', 's42'))
        else: wload(j - 80, ('s43', 's44'))
    def rdx(kk):
        for rt in range(4):
            e.I(f'ds_read_b128 {vr(BF + ((kk%2)*4+rt)*4)}, v{2 if rt < 3 else 3} offset:{(rt if rt < 3 else 2)*20480 + kk*1024}')
    rdx(0)
    for kk in range(20):
        if kk + 1 < 20: rdx(kk + 1)
        e.I(f's_waitcnt vmcnt({D-2}) lgkmcnt({4 if kk+1 < 20 else 0})')
        for u in range(2):
            idx = 2 * kk + u
            for rt in range(4):
                d = vr(ACC1 + (u*4+rt)*4)
                e.I(f'{MFMA} {d}, {vr(WR+(idx%NW)*4)}, {vr(BF+((kk%2)*4+rt)*4)}, {0 if kk == 0 else d}')
        pref(2 * kk); pref(2 * kk + 1)
    for rt in range(4):
        for u in range(2):
            d = ACC1 + (u*4+rt)*4
            for k in range(4): e.I(f'v_max_f32 v{d+k}, 0, v{d+k}')
            e.I(f'v_cvt_pk_bf16_f32 v{HP+rt*4+2*u}, v{d}, v{d+1}')
            e.I(f'v_cvt_pk_bf16_f32 v{HP+rt*4+2*u+1}, v{d+2}, v{d+3}')
        e.I(f'ds_write_b128 v15, {vr(HP+rt*4)} offset:{rt*1024}')
    e.I('s_waitcnt lgkmcnt(0)')
    e.I('s_barrier')
    def rdh(pp):
        for rt in range(4):
            e.I(f'ds_read_b128 {vr(BF + ((pp%2)*4+rt)*4)}, v14 offset:{pp*4096 + rt*1024}')
    rdh(0)
    for pp in range(4):
        if pp + 1 < 4: rdh(pp + 1)
        for u in range(10):
            idx = 40 + pp * 10 + u
            w = f's_waitcnt vmcnt({D-1})'
            if u == 0: w += f' lgkmcnt({4 if pp+1 < 4 else 0})'
            e.I(w)
            for rt in range(4):
                d = ar(ACC2 + (u*4+rt)*4)
                e.I(f'{MFMA} {d}, {vr(WR+(idx%NW)*4)}, {vr(BF+((pp%2)*4+rt)*4)}, {d}')
            pref(idx)
    e.I('v_xor_b32 v14, 16384, v14')
    e.I('v_xor_b32 v15, 16384, v15')
    e.I('s_mov_b32 s41, s43')
    e.I('s_mov_b32 s42, s44')
    e.I('s_add_u32 s30, s30, 1')
    e.I('s_cmp_lt_u32 s30, 12')
    e.I(f's_cbranch_scc1 {top}')
    e.I('s_waitcnt vmcnt(0)')
    TS(e, 1)
    e.I('v_lshlrev_b32 v3, 3, v1')
    e.I(f's_mul_i32 s38, s24, {4*40*512}')
    e.I(f's_mul_i32 s39, s22, {10*512}')
    e.I('s_add_u32 s38, s38, s39')
    e.I(f's_add_u32 s38, s38, {G_}')
    e.I(f's_mov_b32 s52, {f2u(-1.4426950408889634):#x}')
    for rt in range(4):
        e.I(f's_add_u32 s39, s38, {rt*40*512}')
        e.I('s_add_u32 s40, s39, 4096')
        for u in range(10):
            t = 16 + ((rt*10+u) % 4) * 16
            a0 = ACC2 + (u*4+rt)*4
            for k in range(4): e.I(f'v_accvgpr_read_b32 v{t+k}, a{a0+k}')
            e.I(f'v_cvt_pk_bf16_f32 v{t+4}, v{t}, v{t+1}')
            e.I(f'v_cvt_pk_bf16_f32 v{t+5}, v{t+2}, v{t+3}')
            e.I(f'v_lshlrev_b32 v{t}, 16, v{t+4}')
            e.I(f'v_and_b32 v{t+1}, 0xffff0000, v{t+4}')
            e.I(f'v_lshlrev_b32 v{t+2}, 16, v{t+5}')
            e.I(f'v_and_b32 v{t+3}, 0xffff0000, v{t+5}')
            for k in range(4): e.I(f'v_mul_f32 v{t+4+k}, s52, v{t+k}')
            for k in range(4): e.I(f'v_exp_f32 v{t+4+k}, v{t+4+k}')
            for k in range(4): e.I(f'v_add_f32 v{t+4+k}, 1.0, v{t+4+k}')
            for k in range(4): e.I(f'v_rcp_f32 v{t+4+k}, v{t+4+k}')
            for k in range(4): e.I(f'v_mul_f32 v{t+k}, v{t+k}, v{t+4+k}')
            e.I(f'v_cvt_pk_bf16_f32 v{t+8}, v{t}, v{t+1}')
            e.I(f'v_cvt_pk_bf16_f32 v{t+9}, v{t+2}, v{t+3}')
            e.I(f'buffer_store_dwordx2 {vr(t+8,2)}, v3, {WS}, {"s39" if u < 8 else "s40"} offen offset:{(u%8)*512} sc1')
    e.I('s_waitcnt vmcnt(0)')
    TS(e, 2)
    if opt.ts: e.I('s_lshr_b32 s50, s24, 3'); e.I('s_add_u32 s50, s50, 64')
    TSflush(e, 's50')
    e.I('s_barrier')
    e.I('s_cmp_lg_u32 s22, 0')
    e.I('s_cbranch_scc1 L_ffn_nf')
    e.I('v_mov_b32 v4, 1')
    e.I('s_lshl_b32 s38, s24, 2')
    e.I('v_mov_b32 v5, s38')
    e.I(f's_mov_b32 s39, {FLGG}')
    set_flag(e, 5, 's39', 4, ' sc1')
    e.I('s_waitcnt vmcnt(0)')
    e.L('L_ffn_nf')
    e.I('s_cmp_ge_u32 s26, 8')
    e.I(f's_cbranch_scc1 {"L_end" if opt.nocmb else "L_cmb"}')
    e.I('s_add_u32 s24, s24, 24')
    e.I('s_cmp_lt_u32 s24, 32')
    e.I('s_cbranch_scc1 L_ffn_task')
    e.I('s_endpgm')

def role_cmb(e):
    PXR = 16
    GR = 144
    XR_ = 152
    T0 = 160
    srd(e, 8, 68, 2048 * 1280)
    srd(e, 12, 70, 2048 * 1280)
    e.I('s_sub_u32 s24, s26, 8')
    e.I('s_lshl_b32 s24, s24, 2')
    e.I('s_add_u32 s30, s24, s22')
    e.I('v_lshlrev_b32 v3, 2, v1')
    e.I('v_lshlrev_b32 v4, 3, v1')
    e.I('v_mov_b32 v6, 0')
    lane_ig(e, 14, 15)
    e.I('v_mul_u32_u24 v5, 1280, v14')
    e.I('v_lshl_add_u32 v5, v15, 3, v5')
    e.I('s_mov_b32 s49, 0')
    e.I('s_mov_b32 s52, 0x3f80'); e.I('s_mov_b32 s53, 0x3f800000')
    e.I('v_lshrrev_b32 v7, 4, v1')
    e.I('v_mul_u32_u24 v7, 40960, v7')
    e.I('v_lshl_add_u32 v7, v14, 7, v7')
    e.I(f'v_add_u32 v8, {4*40960}, v7')
    if opt.t63:
        e.I('s_add_u32 s38, s30, 1216')
        e.I('s_mul_i32 s39, s38, 3277')
        e.I('s_lshr_b32 s39, s39, 16')
        e.I('s_mul_i32 s40, s39, 20')
        e.I('s_sub_u32 s40, s38, s40')
        e.I(f's_mul_i32 s43, s39, {SEG_PX}')
        e.I('s_lshl_b32 s40, s40, 11')
        e.I('s_add_u32 s43, s43, s40')
        e.I(f's_add_u32 s43, s43, {PX}')
        for k in range(2): e.I(f'buffer_load_dword v{T0}, v{7+k}, {WS}, s43 offen sc1')
    top = e.lab('Lct')
    e.L(top)
    TS(e, 0)
    e.I('s_mul_i32 s38, s30, 3277')
    e.I('s_lshr_b32 s38, s38, 16')
    e.I('s_mul_i32 s39, s38, 20')
    e.I('s_sub_u32 s39, s30, s39')
    e.I('s_cmp_ge_u32 s39, 10')
    e.I('s_cselect_b32 s40, 1, 0')
    e.I('s_mul_i32 s41, s40, 10')
    e.I('s_sub_u32 s41, s39, s41')
    gok = e.lab('Lcg')
    e.I('s_cmp_lg_u32 s49, 0')
    e.I(f's_cbranch_scc1 {gok}')
    e.I(f's_mov_b32 s42, {FLGG}')
    e.I('s_mov_b32 exec_hi, 0')
    e.I(f'buffer_load_dword v{T0}, v3, {WS}, s42 offen sc1')
    e.I('s_waitcnt vmcnt(0)')
    e.I(f'v_cmp_eq_u32 vcc, 0, v{T0}')
    e.I('s_mov_b64 exec, -1')
    e.I('s_cmp_eq_u32 vcc_lo, 0')
    e.I('s_cselect_b32 s49, 1, 0')
    e.I(f's_cbranch_scc1 {gok}')
    e.I('s_lshr_b32 s42, s38, 1')
    e.I('s_lshl_b32 s42, s42, 2')
    e.I(f's_add_u32 s42, s42, {FLGG}')
    wait_flags(e, 6, 's42', 1, T0, 7, sleep=32)
    e.L(gok)
    e.I(f's_mul_i32 s43, s38, {SEG_PX}')
    e.I('s_mul_i32 s44, s40, 20480')
    e.I('s_add_u32 s43, s43, s44')
    e.I('s_lshl_b32 s44, s41, 11')
    e.I('s_add_u32 s43, s43, s44')
    e.I(f's_add_u32 s43, s43, {PX}')
    e.I('s_lshl_b32 s45, s38, 1')
    e.I('s_add_u32 s45, s45, s40')
    e.I('s_mul_i32 s46, s45, 20480')
    e.I('s_lshr_b32 s47, s41, 1')
    e.I('s_lshl_b32 s47, s47, 2')
    e.I('s_and_b32 s48, s41, 1')
    e.I('s_add_u32 s44, s47, s48')
    e.I('s_lshl_b32 s47, s44, 10')
    e.I('s_add_u32 s47, s47, s46')
    e.I(f's_add_u32 s47, s47, {G_}')
    e.I('s_lshl_b32 s48, s44, 6')
    e.I('s_add_u32 s48, s48, s46')
    TO = (0, 4, 1, 5)
    for t in range(4):
        e.I(f'buffer_load_dwordx2 {vr(GR+2*t,2)}, v4, {WS}, s47 offen offset:{TO[t]*512} sc1')
        e.I(f'buffer_load_dwordx2 {vr(XR_+2*t,2)}, v5, s[8:11], s48 offen offset:{TO[t]*32}')
    c1, c2 = e.lab('Lc1'), e.lab('Lc2')
    e.I('s_mul_i32 s50, s38, 10')
    e.I('s_and_b32 s44, s41, 14')
    e.I('s_add_u32 s50, s50, s44')
    e.I('s_lshl_b32 s50, s50, 7')
    e.I(f's_add_u32 s50, s50, {FLGPX}')
    e.I(f's_cmp_ge_u32 s38, {opt.cwarm}')
    e.I(f's_cbranch_scc1 {c1}')
    e.I(f's_add_u32 s42, s38, {opt.clag}')
    e.I('s_lshl_b32 s42, s42, 3')
    e.I('s_add_u32 s42, s42, s20')
    e.I('s_lshl_b32 s42, s42, 6')
    e.I(f's_add_u32 s42, s42, {FLGOX}')
    wait_flags(e, 6, 's42', 1, T0, 9, sleep=opt.lsleep)
    wait_flags(e, 3, 's50', -1, T0, 8, sleep=opt.csleep)
    e.I(f's_branch {c2}')
    e.L(c1)
    e.I('s_and_b32 s42, s38, 3')
    e.I('s_lshl_b32 s42, s42, 3')
    e.I('s_add_u32 s42, s42, s20')
    e.I('s_lshl_b32 s42, s42, 7')
    e.I('s_lshl_b32 s44, s44, 1')
    e.I('s_add_u32 s42, s42, s44')
    e.I(f's_add_u32 s42, s42, {HINT}')
    e.I('s_mul_i32 s51, s20, 5')
    e.I('s_lshr_b32 s44, s41, 1')
    e.I('s_add_u32 s51, s51, s44')
    e.I('s_lshl_b32 s51, s51, 7')
    e.I(f's_add_u32 s51, s51, {HINT2}')
    e.I('s_cmp_eq_u32 s38, 63')
    e.I('s_cselect_b32 s42, s51, s42')
    wait_flags(e, 6, 's42', 1, T0, 9, sleep=2)
    e.I('s_cmp_eq_u32 s38, 63')
    e.I(f's_cbranch_scc1 {c2}')
    wait_flags(e, 3, 's50', -1, T0, 8, sleep=opt.c2sleep)
    e.L(c2)
    TS(e, 1)
    RAW = PXR + 32
    def ld(x):
        for t in range(2):
            if not opt.cdiag & 4: e.I(f'buffer_load_dwordx4 {vr(RAW+(x*2+t)*4)}, v2, {WS}, s43 offen offset:{t*1024} sc1')
        if x < 7: e.I('s_add_u32 s43, s43, 40960')
    def body(depth):
        for x in range(min(depth, 8)): ld(x)
        for x in range(8):
            left = min(depth - 1, 7 - x)
            e.I(f's_waitcnt vmcnt({left*2})')
            if x + depth < 8: ld(x + depth)
            for k in range(16): e.I(f'v_dot2c_f32_bf16 v{PXR+k}, {("s52", "s53")[k&1]}, v{RAW+x*8+(k>>1)}')
        e.I('s_nop 2')
    for k in range(16): e.I(f'v_mov_b32 v{PXR+k}, 0')
    fast, join = e.lab('Lcf'), e.lab('Lcj')
    e.I('s_cmp_ge_u32 s38, 61')
    e.I(f's_cbranch_scc1 {fast}')
    body(opt.cdepth)
    e.I(f's_branch {join}')
    e.L(fast)
    f2, pl_, pk_ = e.lab('Lcg'), e.lab('Lcp'), e.lab('Lck')
    e.I('s_cmp_lg_u32 s38, 63')
    e.I(f's_cbranch_scc1 {f2}')
    e.I(f's_mov_b32 s31, {TMO}')
    e.I('s_mov_b32 s51, s43')
    e.L(pl_)
    e.I('s_mov_b32 s43, s51')
    for x in range(8): ld(x)
    e.I('s_waitcnt vmcnt(0)')
    check_sent(e, range(RAW, RAW + 64), T0, T0 + 1)
    e.I(f's_cbranch_vccz {pk_}')
    e.I('s_sub_u32 s31, s31, 1')
    e.I(f's_cbranch_scc0 {pl_}')
    e.I('s_mov_b32 s31, 8')
    e.I('s_branch L_fail')
    e.L(pk_)
    for x in range(8):
        for k in range(16): e.I(f'v_dot2c_f32_bf16 v{PXR+k}, {("s52", "s53")[k&1]}, v{RAW+x*8+(k>>1)}')
    e.I('s_nop 2')
    e.I(f's_branch {join}')
    e.L(f2)
    body(8)
    e.L(join)
    TS(e, 3)
    for t in range(4):
        b = PXR + 4 * t; u = T0 + 8 * (t % 2)
        e.I(f'v_cvt_pk_bf16_f32 v{u}, v{b}, v{b+1}')
        e.I(f'v_cvt_pk_bf16_f32 v{u+1}, v{b+2}, v{b+3}')
        for h_ in range(2):
            e.I(f'v_lshlrev_b32 v{b+2*h_}, 16, v{u+h_}')
            e.I(f'v_and_b32 v{b+2*h_+1}, 0xffff0000, v{u+h_}')
            e.I(f'v_lshlrev_b32 v{u+2+2*h_}, 16, v{GR+2*t+h_}')
            e.I(f'v_and_b32 v{u+3+2*h_}, 0xffff0000, v{GR+2*t+h_}')
        for k in range(4): e.I(f'v_mul_f32 v{b+k}, v{b+k}, v{u+2+k}')
        e.I(f'v_cvt_pk_bf16_f32 v{u}, v{b}, v{b+1}')
        e.I(f'v_cvt_pk_bf16_f32 v{u+1}, v{b+2}, v{b+3}')
        for h_ in range(2):
            e.I(f'v_lshlrev_b32 v{b+2*h_}, 16, v{u+h_}')
            e.I(f'v_and_b32 v{b+2*h_+1}, 0xffff0000, v{u+h_}')
            e.I(f'v_lshlrev_b32 v{u+2+2*h_}, 16, v{XR_+2*t+h_}')
            e.I(f'v_and_b32 v{u+3+2*h_}, 0xffff0000, v{XR_+2*t+h_}')
        for k in range(4): e.I(f'v_add_f32 v{b+k}, v{b+k}, v{u+2+k}')
        e.I(f'v_cvt_pk_bf16_f32 v{u+6}, v{b}, v{b+1}')
        e.I(f'v_cvt_pk_bf16_f32 v{u+7}, v{b+2}, v{b+3}')
        e.I(f'buffer_store_dwordx2 {vr(u+6,2)}, v5, s[12:15], s48 offen offset:{TO[t]*32}{("", " sc1", " nt")[opt.ost]}')
    TS(e, 2)
    if opt.ts: e.I('s_lshr_b32 s50, s30, 6')
    TSflush(e, 's50')
    e.I('s_add_u32 s30, s30, 64')
    e.I('s_cmp_lt_u32 s30, 1280')
    e.I(f's_cbranch_scc1 {top}')
    DSTAMP(e, 5)
    e.I(f's_cmp_lg_u32 s30, {1279 + 64}')
    e.I('s_cbranch_scc1 L_end')
    e.I('s_mov_b32 exec_hi, 0xffff')
    e.I(f'global_store_dword v3, v6, s[74:75] offset:{D_TR} sc1')
    e.I('s_endpgm')

def gen_mainkernel(e):
    kernel_head(e, MAIN)
    e.I('s_cmp_ge_u32 s2, 256')
    e.I('s_cbranch_scc1 L_end')
    e.I('s_load_dwordx2 s[32:33], s[0:1], 96')
    e.I('s_load_dwordx4 s[60:63], s[0:1], 16')
    e.I('s_load_dwordx4 s[64:67], s[0:1], 32')
    e.I('s_load_dwordx4 s[52:55], s[0:1], 0')
    e.I('s_load_dwordx4 s[56:59], s[0:1], 64')
    e.I('s_load_dwordx4 s[72:75], s[0:1], 80')
    TS(e, 0)
    e.I('s_getreg_b32 s24, hwreg(HW_REG_XCC_ID)')
    e.I('v_and_b32 v1, 63, v0')
    e.I('v_lshlrev_b32 v2, 4, v1')
    e.I('v_lshrrev_b32 v3, 6, v0')
    e.I('v_readfirstlane_b32 s22, v3')
    if opt.cwarm2:
        e.I('s_getpc_b64 s[34:35]')
        e.L('L_pc')
        e.I('s_lshr_b32 s36, s2, 3')
        e.I('s_lshl_b32 s36, s36, 2')
        e.I('v_add_u32 v3, s36, v3')
        e.I(f'v_mul_u32_u24 v3, {opt.cwarm2}, v3')
        e.I(f'v_min_u32 v4, {opt.cwarm2 - 1}, v1')
        e.I('v_add_u32 v3, v3, v4')
        e.I('v_lshlrev_b32 v3, 7, v3')
        e.I('v_min_u32 v3, L_last-L_pc, v3')
        e.I('v_mov_b32 v5, s35')
        e.I('v_add_co_u32 v4, vcc, s34, v3')
        e.I('v_addc_co_u32 v5, vcc, 0, v5, vcc')
        e.I('global_load_dword v255, v[4:5], off')
    if opt.force_slow:
        e.I('s_lshr_b32 s20, s2, 5'); e.I('s_and_b32 s21, s2, 31')
    else:
        e.I('s_and_b32 s20, s2, 7'); e.I('s_lshr_b32 s21, s2, 3')
    e.I('s_and_b32 s24, s24, 15')
    e.I('s_lshl_b32 s96, s20, 4')
    e.I('s_and_b32 s25, s24, 12')
    e.I('s_add_u32 s96, s96, s25')
    e.I('s_and_b32 s25, s24, 3')
    e.I('s_lshl_b32 s25, s25, 3')
    e.I('s_lshl_b32 s97, 1, s25')
    e.I('s_waitcnt lgkmcnt(0)')
    e.I('s_mov_b64 s[70:71], s[72:73]')
    e.I('s_mov_b64 s[68:69], s[52:53]')
    srd(e, 4, 32, WS_BYTES)
    TS(e, 1)
    TSflush(e, '70')
    if opt.dstamp: e.I('s_lshl_b32 s98, s21, 2'); e.I('s_add_u32 s98, s98, s22')
    DSTAMP(e, 0, 's_cmp_eq_u32 s98, 84', 'neg')
    e.I('s_cmp_ge_u32 s21, 22'); e.I('s_cbranch_scc1 L_help')
    e.I('s_sub_u32 s24, s21, 12')
    if opt.urg: e.I('s_cmp_lt_u32 s24, 2')
    else: e.I('s_cmp_eq_u32 s24, 1')
    e.I('s_cbranch_scc1 L_urg')
    register(e, 3, 4)
    e.I('s_cmp_ge_u32 s21, 12'); e.I('s_cbranch_scc1 L_wo')
    role_qkv(e)
    e.L('L_urg')
    srd(e, 8, 52, 2048 * 1280); srd(e, 12, 54, 8 * 1280)
    e.I('s_cmp_lg_u32 s24, 0')
    e.I('s_cbranch_scc1 L_um')
    ln_addr(e)
    e.I('s_mul_i32 s25, s20, 20480')
    ln_load(e, 16, 's25')
    e.I('s_waitcnt vmcnt(0)')
    ln_compute(e, 16, 's25')
    e.I('s_branch L_ur')
    e.L('L_um')
    mem0_copy(e, None, 0)
    e.I('s_mul_i32 s41, s20, 10240')
    e.I(f's_add_u32 s41, s41, {MEM}')
    e.I('s_waitcnt vmcnt(0)')
    mem0_copy(e, 's41', 1)
    e.L('L_ur')
    e.I('s_waitcnt vmcnt(0)')
    e.I('s_barrier')
    register(e, 3, 4)
    e.L('L_wo'); role_sw(e)
    e.L('L_help')
    srd(e, 8, 52, 2048 * 1280)
    e.I('s_mul_i32 s24, s20, 10')
    e.I('s_add_u32 s24, s24, s21')
    e.I('s_sub_u32 s24, s24, 22')
    if opt.urg: init_fill(e, 's24', 80)
    ln_addr(e)
    e.I('s_mul_i32 s25, s24, 20480')
    if opt.urg: e.I(f's_add_u32 s25, s25, {8*20480}')
    e.I(f's_add_u32 s26, s25, {80*20480}')
    ln_load(e, 16, 's25')
    ln_load(e, 36, 's26')
    if opt.urg:
        e.I('s_waitcnt vmcnt(10)')
        e.I('s_barrier')
        register(e, 3, 4)
    else: init_fill(e, 's24', 80)
    e.I('s_waitcnt vmcnt(0)')
    ln_compute(e, 16, 's25')
    e.I(f's_cmp_ge_u32 s24, {40 if opt.urg else 48}')
    e.I('s_cbranch_scc1 L_hl')
    ln_compute(e, 36, 's26')
    e.L('L_hl')
    e.I('s_waitcnt vmcnt(0)')
    e.I('s_barrier')
    if opt.urg: count_up(e, 3, D_W)
    else: register(e, 3, 4)
    TS(e, 0)
    TSflush(e, '69')
    if opt.touch2:
        wait_reg(e, 16, opt.rsleep)
        e.I('s_sub_u32 s24, s21, 22')
        e.I('s_lshl_b32 s25, s20, 2')
        e.I('s_add_u32 s25, s25, s22')
        touch_jobs(e, [(XN + k * 40960, 10240, 40) for k in range(3)] + [(XN + k * 40960 + 5120, 10240, 40) for k in range(3)], 's24', 10, 's22', 18)
        jobs = []
        for sl in range(4): jobs += [(MEM + sl * MEM_SLOT, 2560, 20), (XR + sl * XR_SLOT, 6144, 48), (VR + sl * VR_SLOT, 3072, 24)]
        touch_jobs(e, jobs[::-1][:4] + jobs[:8], 's24', 10, 's25', 24, 6)
    e.I('s_cmp_ge_u32 s21, 29'); e.I('s_cbranch_scc1 L_ffn')
    e.I('s_cmp_lt_u32 s21, 27'); e.I('s_cbranch_scc1 L_xw')
    role_att(e)
    e.L('L_xw'); role_xw(e)
    e.L('L_ffn'); role_ffn(e)
    e.L('L_cmb'); role_cmb(e)
    e.L('L_fail')
    e.I('s_mov_b64 exec, 1')
    e.I('s_lshl_b32 s31, s31, 2')
    e.I('v_mov_b32 v3, s31')
    e.I('v_mov_b32 v4, 1')
    e.I('global_atomic_add v3, v4, s[74:75]')
    e.L('L_end')
    e.L('L_last')
    e.I('s_endpgm')

def build(path):
    for k in range(3): NT[k] = ' nt' if opt.pnt >> k & 1 else ''
    hdr = open('cdna_kernels/' + NAME + '.s.ref').read().split('\n')
    e = Em()
    for l in hdr:
        if l.startswith(';') and '@launch' not in l and 'Override launch' not in l and 'grid=ceil' not in l: e.raw(l)
    e.raw(f'; @launch grid=(256,1,1) block=(256,1,1) lds=163840')
    e.raw('.amdgcn_target "amdgcn-amd-amdhsa--gfx950"')
    gen_mainkernel(e)
    kernel_desc(e, MAIN, 512, 100, 256)
    lines, added = hazard.pad(e.lines)
    open(path, 'w').write('\n'.join(lines) + '\n')
    n = sum(1 for l in lines if l.startswith('    ') and not l.strip().startswith(';'))
    print(f'wrote {path}: {n} instructions, {added} nops added')

if __name__ == '__main__':
    out = sys.argv[1] if len(sys.argv) > 1 else 'cdna_kernels/' + NAME + '.s'
    if 'slow' in sys.argv[2:]: opt.force_slow = True
    if 'ts' in sys.argv[2:]: opt.ts = True
    for k in ('nobg', 'ackpoll', 'noxw'):
        if k in sys.argv[2:]: setattr(opt, k, True)
    for a_ in sys.argv[2:]:
        if '=' in a_: k_, v_ = a_.split('='); setattr(opt, k_, int(v_))
    build(out)
```

```python
import sys, struct
from asmlib import *
from layout import *
import hazard
from gen_pre import *

NAME = 'recurrent_scan__memory_aug_recurrent_mem_tr__dense_activation_relu__prompt'
MAIN = NAME + '_kernel'
PRE = 'prep_kernel'
LDS_TOTAL = 131072
LDS_ROLE = 131072
TMO = 1 << 18
def f2u(x): return struct.unpack('<I', struct.pack('<f', x))[0]
SC_L2E = f2u(192 ** -0.5 * 1.4426950408889634)
NEG_BIG = f2u(-1e30)
MFMA = 'v_mfma_f32_16x16x32_bf16'
MFMA16 = 'v_mfma_f32_16x16x16_bf16'
SMF = 'v_smfmac_f32_16x16x64_bf16'
WS = 's[4:7]'
WFL = ['', ' nt', ' sc1', ' sc0 sc1', ' sc1 nt', ' sc0 sc1 nt']

class Opt:
    force_slow = False
    ts = False
    nobg = False
    ackpoll = False
    noxw = False
    pdelay = 0
    vdelay = 0
    kbar = 0
    kpre = 12
    kin = 12
    fresh = 0
    pdiag = 0
    pflip = 0
    touch = 1
    nofc = 0
    nopx = 0
    nocmb = 0
    cdepth = 1
    ffnnt = 0
    pr = 1
    pfar = 0
    vpre = 0
    vmpos = 2
    smpre = 1
    smgap = 3
    ldgap = 4
    kp = 0
    kcs = 0
    kce = 12
    xlate = 4
    csleep = 8
    cwarm = 61
    c2sleep = 4
    clag = 2
    lsleep = 8
    xsleep = 2
    asleep = 2
    cdiag = 0
    fwait = 3
    ptouch = 1
    spec = 1
    mwait = 0
    mpre = 2
    kgap = 15
    noinit = 0
    pfh = 0
    wb = 0
    ost = 0
    mprobe = 0
    kx = 0
    dstamp = 0
    hwv = 7
    t63 = 1
    esleep = 1
    tpos = 0
    pmf = 8
    pmf2 = 4
    urg = 0
    rsleep = 16
    cwarm2 = 0
    tord = 0
    pfs = 0
    swlate = 1
    fpos = 11
    heads = 1
    hdelay = 0
    wnb = 3
    wrows = 320
    touch2 = 1
    pnt = 1
    wnt = 1
    wthr = 64
    xpf = 10
    xdma0 = 10
    xdmas = 1
    pbf = 1
    rpos = 2
    mbar = 1
    pspin = 0
    nobulk = 0
opt = Opt()

def vr(i, n=4): return f'v[{i}:{i+n-1}]'
def ar(i, n=4): return f'a[{i}:{i+n-1}]'

def maxchain(e, dst, regs, op='u32'):
    regs = list(regs)
    e.I(f'v_max3_{op} v{dst}, v{regs[0]}, v{regs[1]}, v{regs[2]}')
    rest = regs[3:]
    while rest:
        if len(rest) >= 2:
            e.I(f'v_max3_{op} v{dst}, v{dst}, v{rest[0]}, v{rest[1]}'); rest = rest[2:]
        else:
            e.I(f'v_max_{op} v{dst}, v{dst}, v{rest[0]}'); rest = rest[1:]

def check_sent(e, regs, t0, t1):
    regs = list(regs)
    if len(regs) >= 8:
        h = len(regs) // 2
        A, B = regs[:h], regs[h:]
        ea, eb = Em(), Em()
        maxchain(ea, t0, A); maxchain(eb, t1, B)
        for i in range(max(len(ea.lines), len(eb.lines))):
            if i < len(ea.lines): e.lines.append(ea.lines[i])
            if i < len(eb.lines): e.lines.append(eb.lines[i])
        e.I(f'v_max_u32 v{t0}, v{t0}, v{t1}')
    else:
        maxchain(e, t0, regs)
    e.I(f'v_cmp_eq_u32 vcc, -1, v{t0}')

def poll2(e, issue, nl, regsA, regsB, consume, t0, t1, code, early=None):
    lp, dA, dB, dd = e.lab('Lp'), e.lab('LdA'), e.lab('LdB'), e.lab('Ldd')
    e.I(f's_mov_b32 s31, {TMO}')
    issue(regsA)
    e.L(lp)
    issue(regsB)
    e.I(f's_waitcnt vmcnt({nl})')
    if early: early(regsA)
    check_sent(e, range(regsA, regsA + 4 * nl), t0, t1)
    e.I(f's_cbranch_vccz {dA}')
    issue(regsA)
    e.I(f's_waitcnt vmcnt({nl})')
    if early: early(regsB)
    check_sent(e, range(regsB, regsB + 4 * nl), t0, t1)
    e.I(f's_cbranch_vccz {dB}')
    e.I('s_sub_u32 s31, s31, 1')
    e.I(f's_cbranch_scc0 {lp}')
    e.I(f's_mov_b32 s31, {code}')
    e.I('s_branch L_fail')
    e.L(dB)
    consume(regsB)
    e.I(f's_branch {dd}')
    e.L(dA)
    consume(regsA)
    e.L(dd)

def wait_flags(e, vaddr, sofs, mask, vt, code, sleep=0, dbg=False):
    lp, dn = e.lab('Lf'), e.lab('Lfd')
    e.I(f's_mov_b32 s31, {TMO}')
    if mask > 0xffffffff or mask < 0: e.I(f's_mov_b64 exec, {mask}')
    else:
        e.I(f's_mov_b32 exec_lo, {mask:#x}'); e.I('s_mov_b32 exec_hi, 0')
    e.L(lp)
    if dbg: e.I(f'global_load_dword v{vt}, v{vaddr}, s[74:75] offset:{sofs} sc1')
    else: e.I(f'buffer_load_dword v{vt}, v{vaddr}, {WS}, {sofs} offen sc1')
    e.I('s_waitcnt vmcnt(0)')
    e.I(f'v_cmp_eq_u32 vcc, 0, v{vt}')
    e.I(f's_cbranch_vccz {dn}')
    if sleep: e.I(f's_sleep {sleep}')
    e.I('s_sub_u32 s31, s31, 1')
    e.I(f's_cbranch_scc0 {lp}')
    e.I(f's_mov_b32 s31, {code}')
    e.I('s_branch L_fail')
    e.L(dn)
    e.I('s_mov_b64 exec, -1')

D_TR, D_PAR, D_REG = 64, 96, 128
def register(e, va, vd):
    sk = e.lab('Lrg')
    e.I('s_cmp_lg_u32 s22, 0')
    e.I(f's_cbranch_scc1 {sk}')
    e.I(f'v_mov_b32 v{va}, s96')
    e.I(f'v_mov_b32 v{vd}, s97')
    e.I('s_mov_b64 exec, 1')
    e.I(f'global_atomic_add v{va}, v{vd}, s[74:75] offset:{D_REG} sc1')
    e.I('s_mov_b64 exec, -1')
    e.L(sk)
D_W = 68
def wait_count(e, t, off, n, sleep):
    lp, dn = e.lab('Lwc'), e.lab('Lwe')
    e.I(f's_mov_b32 s31, {TMO}')
    e.I(f'v_mov_b32 v{t+1}, 0')
    e.L(lp)
    e.I(f'global_load_dword v{t}, v{t+1}, s[74:75] offset:{off} sc1')
    e.I('s_waitcnt vmcnt(0)')
    e.I(f'v_cmp_gt_u32 vcc, {n}, v{t}')
    e.I(f's_cbranch_vccz {dn}')
    e.I(f's_sleep {sleep}')
    e.I('s_sub_u32 s31, s31, 1')
    e.I(f's_cbranch_scc0 {lp}')
    e.I('s_mov_b32 s31, 10')
    e.I('s_branch L_fail')
    e.L(dn)
def wait_first(e, t, seg=0):
    wait_reg(e, t, 32)
    e.I('s_lshl_b32 s38, s20, 8')
    e.I(f's_add_u32 s38, s38, {FLGQ + seg*2048}')
    e.I(f'v_lshlrev_b32 v{t+1}, 6, v1')
    wait_flags(e, t + 1, 's38', 0xf, t, 15, sleep=16)
def count_up(e, t, off):
    sk = e.lab('Lcu')
    e.I('s_cmp_lg_u32 s22, 0')
    e.I(f's_cbranch_scc1 {sk}')
    e.I(f'v_mov_b32 v{t}, 0'); e.I(f'v_mov_b32 v{t+1}, 1')
    e.I('s_mov_b64 exec, 1')
    e.I(f'global_atomic_add v{t}, v{t+1}, s[74:75] offset:{off} sc1')
    e.I('s_mov_b64 exec, -1')
    e.L(sk)
def wait_reg(e, t, sleep=4):
    lp, dn = e.lab('Lwr'), e.lab('Lwd')
    e.I(f's_mov_b32 s31, {TMO}')
    e.I(f'v_lshlrev_b32 v{t+2}, 2, v1')
    e.I('s_mov_b32 exec_hi, 0')
    e.L(lp)
    e.I(f'global_load_dword v{t}, v{t+2}, s[74:75] offset:{D_REG} sc1')
    e.I('s_mov_b32 s23, 0')
    e.I('s_mov_b32 s38, 0')
    e.I('s_waitcnt vmcnt(0)')
    for k in range(4):
        e.I(f'v_cmp_eq_u32 vcc, {0x20 << (8*k):#x}, v{t}')
        e.I('s_or_b32 s38, s38, vcc_lo')
    e.I(f'v_sad_u8 v{t+1}, v{t}, 0, 0')
    e.I('s_bcnt1_i32_b32 s38, s38')
    e.I('s_cmp_eq_u32 s38, 8')
    e.I(f's_cbranch_scc1 {dn}')
    for sh in (1, 2, 4, 8): e.I(f'v_add_u32_dpp v{t+1}, v{t+1}, v{t+1} row_shr:{sh} row_mask:0xf bank_mask:0xf bound_ctrl:0')
    e.I(f'v_readlane_b32 s38, v{t+1}, 15')
    e.I(f'v_readlane_b32 s39, v{t+1}, 31')
    e.I('s_mov_b32 s23, 1')
    e.I('s_add_u32 s38, s38, s39')
    e.I('s_cmp_eq_u32 s38, 256')
    e.I(f's_cbranch_scc1 {dn}')
    e.I(f's_sleep {sleep}')
    e.I('s_sub_u32 s31, s31, 1')
    e.I(f's_cbranch_scc0 {lp}')
    e.I('s_mov_b32 s31, 10')
    e.I('s_branch L_fail')
    e.L(dn)
    e.I('s_mov_b64 exec, -1')

def set_flag(e, vaddr, sofs, vone, fl):
    e.I('s_mov_b64 exec, 1')
    e.I(f'buffer_store_dword v{vone}, v{vaddr}, {WS}, {sofs} offen{fl}')
    e.I('s_mov_b64 exec, -1')

def xg_reduce(e, op, x, t):
    e.I(f'v_mov_b32 v{t}, v{x}')
    e.I(f'v_permlane16_swap_b32 v{x}, v{t}')
    e.I(f'{op} v{x}, v{x}, v{t}')
    e.I(f'v_mov_b32 v{t}, v{x}')
    e.I(f'v_permlane32_swap_b32 v{x}, v{t}')
    e.I(f'{op} v{x}, v{x}, v{t}')

def softmax12(e, S, P, t):
    maxchain(e, t, range(S, S + 12), 'f32')
    xg_reduce(e, 'v_max_f32', t, t + 1)
    e.I(f'v_mul_f32 v{t}, s53, v{t}')
    for i in range(12):
        e.I(f'v_fma_f32 v{S+i}, v{S+i}, s52, v{t}')
    for i in range(12):
        e.I(f'v_exp_f32 v{S+i}, v{S+i}')
    e.I(f'v_add_f32 v{t+2}, v{S}, v{S+1}')
    e.I(f'v_add_f32 v{t+3}, v{S+2}, v{S+3}')
    for i in range(4, 12, 2):
        e.I(f'v_add_f32 v{t+2}, v{t+2}, v{S+i}')
        e.I(f'v_add_f32 v{t+3}, v{t+3}, v{S+i+1}')
    e.I(f'v_add_f32 v{t+2}, v{t+2}, v{t+3}')
    xg_reduce(e, 'v_add_f32', t + 2, t + 3)
    e.I(f'v_rcp_f32 v{t+2}, v{t+2}')
    for i in range(12):
        e.I(f'v_mul_f32 v{S+i}, v{S+i}, v{t+2}')
    for i in range(6):
        e.I(f'v_cvt_pk_bf16_f32 v{P+i}, v{S+2*i}, v{S+2*i+1}')

def softmax_list(S, n, P, t):
    x = Em()
    maxchain(x, t, range(S, S + n), 'f32')
    xg_reduce(x, 'v_max_f32', t, t + 1)
    x.I(f'v_mul_f32 v{t}, s53, v{t}')
    for i in range(n): x.I(f'v_fma_f32 v{S+i}, v{S+i}, s52, v{t}')
    for i in range(n): x.I(f'v_exp_f32 v{S+i}, v{S+i}')
    x.I(f'v_add_f32 v{t+2}, v{S}, v{S+1}')
    x.I(f'v_add_f32 v{t+3}, v{S+2}, v{S+3}')
    for i in range(4, n, 2):
        x.I(f'v_add_f32 v{t+2}, v{t+2}, v{S+i}')
        x.I(f'v_add_f32 v{t+3}, v{t+3}, v{S+i+1}')
    x.I(f'v_add_f32 v{t+2}, v{t+2}, v{t+3}')
    xg_reduce(x, 'v_add_f32', t + 2, t + 3)
    x.I(f'v_rcp_f32 v{t+2}, v{t+2}')
    for i in range(n): x.I(f'v_mul_f32 v{S+i}, v{S+i}, v{t+2}')
    for i in range(n // 2): x.I(f'v_cvt_pk_bf16_f32 v{P+i}, v{S+2*i}, v{S+2*i+1}')
    return [l.strip() for l in x.lines]

def DSTAMP(e, idx, cond=None, op='umax'):
    if not opt.dstamp: return
    sk = e.lab('Lds')
    if cond: e.I(cond); e.I(f's_cbranch_scc0 {sk}')
    e.I('s_memtime s[98:99]' if op == 'clk' else 's_memrealtime s[98:99]')
    e.I('s_waitcnt lgkmcnt(0)')
    if op == 'neg': e.I('s_not_b32 s98, s98')
    e.I('s_mov_b64 exec, 1')
    e.I(f'v_mov_b32 v238, {idx*4}')
    e.I('v_mov_b32 v239, s98')
    e.I('global_atomic_umax v238, v239, s[74:75] sc1')
    e.I('s_mov_b64 exec, -1')
    e.L(sk)
def TS(e, k):
    if opt.ts: e.I(f's_memrealtime s[{76+2*k}:{77+2*k}]')
def TSflush(e, step, va=238, vd=239):
    if not opt.ts: return
    e.I('s_waitcnt lgkmcnt(0)')
    for k in range(10): e.I(f'v_writelane_b32 v{vd}, s{76+2*k}, {k}')
    e.I('s_lshl_b32 s76, s20, 5')
    e.I('s_add_u32 s76, s76, s21')
    e.I('s_lshl_b32 s76, s76, 2')
    e.I('s_add_u32 s76, s76, s22')
    e.I('s_mul_i32 s76, s76, 72')
    e.I(f's_add_u32 s76, s76, {step}')
    e.I('s_lshl_b32 s76, s76, 6')
    e.I(f's_add_u32 s76, s76, {DBGT}')
    e.I(f'v_lshlrev_b32 v{va}, 2, v1')
    e.I('s_mov_b64 exec, 0x3ff')
    e.I(f'buffer_store_dword v{vd}, v{va}, {WS}, s76 offen')
    e.I('s_mov_b64 exec, -1')

def lane_ig(e, vi, vg):
    e.I(f'v_and_b32 v{vi}, 15, v1')
    e.I(f'v_lshrrev_b32 v{vg}, 4, v1')

def load_weights(e, mats, RS, rows, paired, vA, vT, NB=3, bufoff=None, manual=False):
    CH = rows * 128
    ninst = rows // 8 // 4
    nk = rows // 32
    e.I(f'v_lshrrev_b32 v{vT}, 3, v1')
    if paired:
        e.I(f'v_bfe_u32 v{vT+1}, v1, 4, 2')
    else:
        e.I(f'v_bfe_u32 v{vT+1}, v1, 4, 1')
        e.I('s_and_b32 s54, s22, 1')
        e.I('s_lshl_b32 s54, s54, 1')
        e.I(f'v_or_b32 v{vT+1}, s54, v{vT+1}')
    e.I(f'v_lshlrev_b32 v{vT+1}, 1, v{vT+1}')
    e.I(f'v_and_b32 v{vT+2}, 7, v1')
    e.I(f'v_xor_b32 v{vT+2}, v{vT+2}, v{vT+1}')
    e.I(f's_mov_b32 s54, {RS}')
    e.I(f'v_mul_lo_u32 v{vA}, s54, v{vT}')
    e.I(f'v_lshl_add_u32 v{vA}, v{vT+2}, 4, v{vA}')
    e.I(f'v_lshrrev_b32 v{vT}, 4, v1')
    e.I(f'v_bfe_u32 v{vT+1}, v1, 2, 2')
    if paired:
        e.I(f'v_lshl_add_u32 v{vT+2}, v{vT}, 2, v{vT+1}')
        e.I(f'v_bfe_u32 v{vT}, v{vT+2}, 1, 2')
        second = 2048
    else:
        e.I(f'v_lshl_add_u32 v{vT+2}, v{vT}, 3, v{vT+1}')
        e.I(f'v_and_b32 v{vT}, 1, v{vT}')
        e.I(f'v_lshlrev_b32 v{vT}, 1, v{vT}')
        e.I(f'v_bfe_u32 v{vT+1}, v1, 3, 1')
        e.I(f'v_or_b32 v{vT}, v{vT}, v{vT+1}')
        second = 512
    e.I(f'v_xor_b32 v{vT}, s22, v{vT}')
    e.I(f'v_lshlrev_b32 v{vT+2}, 7, v{vT+2}')
    e.I(f'v_lshl_add_u32 v{vT+2}, v{vT}, 5, v{vT+2}')
    e.I(f'v_and_b32 v{vT}, 3, v1')
    e.I(f'v_lshl_add_u32 v{vT}, v{vT}, 3, v{vT+2}')
    bufoff = bufoff or [k * CH for k in range(NB)]
    for k in range(NB - 1, -1, -1):
        if bufoff[k]  or k: e.I(f'v_add_u32 v{vT+k}, {bufoff[k]}, v{vT}')
    chunks = []
    for (srd_, sofs, ab, nrows) in mats:
        for c in range(nrows // rows):
            chunks.append((srd_, sofs, ab + c * nk * 4, c * rows))
    e.I(f's_mul_i32 s55, s22, {8*RS}')
    e.I('s_lshl_b32 s56, s22, 10')
    def issue(ci, buf=None):
        srd_, sofs, ab, r0 = chunks[ci]
        if buf is None: buf = ci % NB
        e.I(f's_add_u32 s57, {sofs}, s55')
        if r0: e.I(f's_add_u32 s57, s57, {r0*RS}')
        for n in range(ninst):
            e.I(f's_add_u32 m0, s56, {bufoff[buf] + n*4096}')
            e.I(f'buffer_load_dwordx4 v{vA}, {srd_}, s57 offen{WFL[opt.wnt]} lds')
            if n + 1 < ninst: e.I(f's_add_u32 s57, s57, {32*RS}')
    def consume(ci, buf, pending):
        e.I(f's_waitcnt vmcnt({pending})')
        if ci < 8: TS(e, 2 + ci)
        e.I('s_barrier')
        srd_, sofs, ab, r0 = chunks[ci]
        for k in range(nk):
            e.I(f'ds_read_b64_tr_b16 {ar(ab+4*k,2)}, v{vT+buf} offset:{k*4096}')
            e.I(f'ds_read_b64_tr_b16 {ar(ab+4*k+2,2)}, v{vT+buf} offset:{k*4096+second}')
        e.I('s_waitcnt lgkmcnt(0)')
        e.I('s_barrier')
    if manual: return issue, consume
    for ci in range(min(NB, len(chunks))): issue(ci)
    for ci in range(len(chunks)):
        left = min(len(chunks) - 1 - ci, NB - 1)
        e.I(f's_waitcnt vmcnt({left*ninst})')
        if ci < 8: TS(e, 2 + ci)
        e.I('s_barrier')
        srd_, sofs, ab, r0 = chunks[ci]
        for k in range(nk):
            e.I(f'ds_read_b64_tr_b16 {ar(ab+4*k,2)}, v{vT+ci%NB} offset:{k*4096}')
            e.I(f'ds_read_b64_tr_b16 {ar(ab+4*k+2,2)}, v{vT+ci%NB} offset:{k*4096+second}')
        e.I('s_waitcnt lgkmcnt(0)')
        e.I('s_barrier')
        if ci + NB < len(chunks): issue(ci + NB)

def touch_jobs(e, jobs, sw, nw, sh, t, rot=0):
    sizes = sorted({min(n, 64) for _, _, n in jobs} | {n - 64 for _, _, n in jobs if n > 64})
    reg = {}
    for k, n in enumerate(sizes):
        reg[n] = t + 1 + k
        e.I(f'v_min_u32 v{reg[n]}, {n-1}, v1')
        e.I(f'v_lshlrev_b32 v{reg[n]}, 7, v{reg[n]}')
    flat = []
    for base, per, n in jobs:
        flat.append((base, per, min(n, 64)))
        if n > 64: flat.append((base + 8192, per, n - 64))
    for c in range(nw):
        sk = e.lab('Ltj')
        e.I(f's_cmp_lg_u32 {sw}, {c}')
        e.I(f's_cbranch_scc1 {sk}')
        for base, per, n in flat[(c - rot) % nw::nw]:
            e.I(f's_mul_i32 s38, {sh}, {per}')
            e.I(f's_add_u32 s38, s38, {base}')
            e.I(f'buffer_load_dword v{t}, v{reg[n]}, {WS}, s38 offen sc1')
        e.L(sk)

def prefetch_w(e, su, j0, j1, t, srdv, srdq):
    for k in range(3):
        e.I(f'v_add_u32 v{t+3}, {1024*k}, v2')
        e.I(f'v_cmp_le_u32 vcc, 1536, v{t+3}')
        e.I(f'v_add_u32 v{t+k}, {12288-1536}, v{t+3}')
        e.I(f'v_cndmask_b32 v{t+k}, v{t+3}, v{t+k}, vcc')
    e.I('s_mul_i32 s39, s20, 1536')
    e.I(f's_mul_i32 s38, {su}, {2*12288}')
    e.I('s_add_u32 s38, s38, s39')
    for j in range(j0, j1):
        row = 320 + 80 * j if j < 4 else 80 * (j - 4)
        e.I(f's_add_u32 s39, s38, {row*12288}')
        for k in range(3): e.I(f'buffer_load_dwordx4 {vr(t+4)}, v{t+k}, {srdv if j < 4 else srdq}, s39 offen{WFL[opt.wnt]}')

Q_LX, Q_LMEM = 0, 81920
def role_qkv(e):
    fl = ''
    WQ, WK, WV = 0, 80, 160
    MF = 16
    DQ, DK, DV = 96, 100, 104
    PA, PB = 108, 120
    XD = 132
    T0 = 160
    KEEP = 176; TCH = 180
    XA, VA, IDX, SEL, MP = 182, 183, 184, 185, 186
    SENT = 248; ONE = 252
    e.I('s_mul_i32 s24, s21, 43')
    e.I('s_lshr_b32 s24, s24, 7')
    e.I('s_mul_i32 s25, s24, 3')
    e.I('s_sub_u32 s25, s21, s25')
    e.I('s_lshl_b32 s26, s20, 2')
    e.I('s_add_u32 s26, s26, s24')
    e.I('s_lshl_b32 s27, s25, 2')
    e.I('s_add_u32 s27, s27, s22')
    srd(e, 8, 60, 640 * 12288); srd(e, 12, 62, 640 * 12288); srd(e, 16, 64, 640 * 12288)
    e.I('s_mul_i32 s28, s26, 384')
    e.I('s_lshl_b32 s29, s25, 7')
    e.I('s_add_u32 s28, s28, s29')
    w_issue, w_consume = load_weights(e, [('s[12:15]', 's28', WK, 640), ('s[16:19]', 's28', WV, 640), ('s[8:11]', 's28', WQ, 640)], 12288, 320, False, 240, 241, 3,
                                      bufoff=[81920, 122880, 40960], manual=True)
    for ci in range(3): w_issue(ci)
    e.I('s_mul_i32 s38, s22, 3072')
    e.I('s_min_u32 s38, s38, 7168')
    e.I('v_add_u32 v3, s38, v2')
    e.I(f'v_add_u32 v5, {Q_LMEM}, v3')
    e.I(f'v_add_u32 v7, {Q_LMEM}, v2')
    lane_ig(e, 14, 15)
    e.I('s_lshr_b32 s38, s27, 1')
    e.I('s_lshl_b32 s38, s38, 10')
    e.I('s_and_b32 s39, s27, 1')
    e.I('s_lshl_b32 s39, s39, 3')
    e.I('s_add_u32 s38, s38, s39')
    e.I('v_add_u32 v8, s38, v2')
    e.I('v_bfe_u32 v11, v1, 2, 2')
    e.I('v_and_b32 v12, 3, v1')
    e.I(f'v_lshlrev_b32 v{XA}, 8, v11')
    e.I(f'v_lshl_add_u32 v{XA}, v15, 6, v{XA}')
    e.I(f'v_lshl_add_u32 v{XA}, v12, 4, v{XA}')
    e.I(f'v_add_u32 v{XA}, s38, v{XA}')
    e.I('v_and_b32 v13, 1, v15')
    e.I('v_lshlrev_b32 v13, 2, v13')
    e.I('v_lshrrev_b32 v9, 1, v15')
    e.I('v_lshl_add_u32 v13, v9, 1, v13')
    e.I('v_and_b32 v9, 1, v12')
    e.I('v_add_u32 v13, v13, v9')
    e.I('v_lshrrev_b32 v12, 1, v12')
    e.I('v_lshrrev_b32 v9, 1, v11')
    e.I('v_lshlrev_b32 v9, 8, v9')
    e.I('v_lshl_add_u32 v9, v12, 7, v9')
    e.I('v_lshl_add_u32 v9, v13, 4, v9')
    e.I(f'v_and_b32 v{VA}, 1, v11')
    e.I(f'v_lshl_add_u32 v9, v{VA}, 3, v9')
    e.I('s_lshl_b32 s38, s25, 10')
    e.I('s_lshr_b32 s39, s22, 1')
    e.I('s_lshl_b32 s39, s39, 9')
    e.I('s_add_u32 s38, s38, s39')
    e.I('s_and_b32 s39, s22, 1')
    e.I('s_lshl_b32 s39, s39, 2')
    e.I('s_add_u32 s38, s38, s39')
    e.I('v_add_u32 v9, s38, v9')
    e.I(f'v_lshlrev_b32 v{VA}, 8, v11')
    e.I(f'v_lshl_add_u32 v{VA}, v13, 4, v{VA}')
    e.I(f'v_lshl_add_u32 v{VA}, v12, 2, v{VA}')
    e.I('s_lshr_b32 s38, s27, 1')
    e.I('s_cmp_ge_u32 s38, 3')
    e.I('s_cselect_b32 s39, 3, 0')
    e.I('s_cselect_b32 s40, 128, 0')
    e.I('s_sub_u32 s38, s38, s39')
    e.I('s_lshl_b32 s38, s38, 10')
    e.I('s_add_u32 s38, s38, s40')
    e.I('s_and_b32 s39, s27, 1')
    e.I('s_lshl_b32 s39, s39, 3')
    e.I('s_add_u32 s38, s38, s39')
    e.I(f'v_add_u32 v{VA}, s38, v{VA}')
    e.I(f'v_mul_u32_u24 v{MP}, 5, v1')
    e.I(f'v_lshrrev_b32 v{MP}, 3, v{MP}')
    e.I(f'v_lshlrev_b32 v{MP}, 8, v{MP}')
    e.I(f'v_mov_b32 v{IDX}, 0x44444444')
    e.I('v_mov_b32 v11, 0xeeeeeeee')
    e.I('v_cmp_lt_u32 vcc, 7, v14')
    e.I(f'v_cndmask_b32 v{IDX}, v{IDX}, v11, vcc')
    e.I(f'v_mov_b32 v{SEL}, 0x05040100')
    e.I('v_mov_b32 v11, 0x03020706')
    e.I('v_and_b32 v12, 1, v1')
    e.I('v_cmp_eq_u32 vcc, 1, v12')
    e.I(f'v_cndmask_b32 v{SEL}, v{SEL}, v11, vcc')
    e.I('s_mov_b32 s34, 0x33333333'); e.I('s_mov_b32 s35, 0x33333333')
    e.I('s_mov_b32 s36, 0xcccccccc'); e.I('s_mov_b32 s37, 0xcccccccc')
    for k in range(12): e.I(f'v_mov_b32 v{DQ+k}, 0')
    e.I('s_lshl_b32 s38, s27, 2')
    e.I(f'v_mov_b32 v{ONE+2}, s38')
    e.I(f'v_mov_b32 v{ONE}, 1')
    for k in range(4): e.I(f'v_mov_b32 v{SENT+k}, -1')
    e.I('s_mul_i32 s58, s26, 6144')
    e.I('s_mul_i32 s59, s20, 10240')
    e.I(f's_add_u32 s59, s59, {MEM}')
    e.I('s_mul_i32 s60, s26, 3072')
    e.I('s_lshl_b32 s61, s20, 6')
    e.I('s_lshl_b32 s38, s24, 2')
    e.I('s_add_u32 s61, s61, s38')
    e.I(f's_add_u32 s61, s61, {FLGOX}')
    e.I('v_mov_b32 v10, 0')

    def late_list():
        return [f'buffer_store_dwordx2 {vr(KEEP,2)}, v{XA}, {WS}, s43 offen{fl}',
                f'buffer_store_dwordx2 {vr(SENT,2)}, v{XA}, {WS}, s42 offen{fl}',
                f'buffer_store_dword v{KEEP+2}, v{VA}, {WS}, s44 offen{fl}',
                f'buffer_store_dword v{SENT}, v9, {WS}, s46 offen{fl}']
    def late_stores():
        for x_ in late_list(): e.I(x_)
    def xwork(late, mats=(2, 1, 0), dma=True):
        e.I('s_and_b32 s65, s64, 1')
        e.I('s_mul_i32 s66, s65, 40960')
        e.I('v_add_u32 v12, s66, v2')
        e.I('s_xor_b32 s65, s65, 1')
        e.I('s_mul_i32 s65, s65, 40960')
        e.I('s_add_u32 s65, s65, s62')
        e.I('s_add_u32 s66, s64, 1')
        e.I('s_min_u32 s66, s66, 63')
        e.I('s_mul_i32 s66, s66, 40960')
        e.I('s_add_u32 s66, s66, s62')
        e.I(f's_add_u32 s66, s66, {XN}')
        e.I(f's_and_b32 s47, s64, {RD-1}')
        e.I(f's_mul_i32 s47, s47, {SEG_QX}')
        e.I('s_lshl_b32 s48, s58, 1')
        e.I('s_add_u32 s47, s47, s48')
        if late:
            e.I(f's_max_u32 s50, s64, {RD}')
            e.I(f's_sub_u32 s50, s50, {RD}')
            e.I('s_lshl_b32 s50, s50, 9')
            e.I('s_add_u32 s50, s50, s61')
            e.I(f'buffer_load_dword v{TCH}, v10, {WS}, s50 offen sc1')
        PF = opt.xpf
        def rd(n): e.I(f'ds_read_b128 {vr(MF + (n % 20)*4)}, v12 offset:{n*1024}')
        def out(m, rt, part=3):
            d = XD + (m*2+rt)*4; o = T0 + (m*2+rt)*2
            if part & 1:
                e.I(f'v_cvt_pk_bf16_f32 v{o}, v{d}, v{d+1}')
                e.I(f'v_cvt_pk_bf16_f32 v{o+1}, v{d+2}, v{d+3}')
            if part & 2:
                e.I(f's_add_u32 s48, s47, {(QX, KX, VX)[m] + rt*6144}')
                e.I(f'buffer_store_dwordx2 {vr(o,2)}, v8, {WS}, s48 offen{fl}')
        for n in range(PF): rd(n)
        ls = late_list() if late else []
        d0 = opt.xdma0
        for n in range(40):
            rt, kk = n // 20, n % 20
            e.I(f's_waitcnt lgkmcnt({min(40, n + PF) - (n + 1)})')
            f = vr(MF + (n % 20)*4)
            for m in mats:
                Wb = (WQ, WK, WV)[m]
                d = vr(XD + (m*2+rt)*4)
                e.I(f'{MFMA} {d}, {ar(Wb+4*kk)}, {f}, {0 if kk == 0 else d}')
            if n + PF < 40: rd(n + PF)
            if late and n == 5:
                bp = e.lab('Lbp')
                e.I(f's_cmp_lt_u32 s64, {RD}')
                e.I(f's_cbranch_scc1 {bp}')
                e.I('s_waitcnt vmcnt(0)')
                e.I(f'v_cmp_eq_u32 vcc, 0, v{TCH}')
                e.I(f's_cbranch_vccz {bp}')
                wait_flags(e, 10, 's50', 1, TCH, 13, sleep=1)
                e.L(bp)
            if n >= 6 and ls: e.I(ls.pop(0))
            elif dma and n >= d0 and (n - d0) % opt.xdmas == 0 and (n - d0) // opt.xdmas < 10:
                m = (n - d0) // opt.xdmas
                e.I(f's_add_u32 m0, s65, {m*1024}')
                e.I(f'buffer_load_dwordx4 v2, {WS}, s66 offen lds')
                e.I('s_add_u32 s66, s66, 1024')
            k0 = 23 if len(mats) > 1 else 28
            if k0 <= n < k0 + len(mats): out(mats[n - k0], 0)
        for m in mats: out(m, 1)
    def flag_addr(back):
        e.I(f's_sub_u32 s51, s64, {back}')
        e.I('s_lshl_b32 s51, s51, 5')
        e.I('s_add_u32 s51, s51, s26')
        e.I('s_lshl_b32 s51, s51, 6')
        e.I(f's_add_u32 s51, s51, {FLGQ}')
    def flag_n():
        flag_addr(0)
        e.I('s_waitcnt vmcnt(0)')
        set_flag(e, ONE + 2, 's51', ONE, fl)
    def mem_part():
        e.I('s_and_b32 s38, s30, 3')
        e.I('s_xor_b32 s39, s38, 2')
        e.I(f's_mul_i32 s40, s38, {MEM_SLOT}')
        e.I('s_add_u32 s40, s40, s59')
        e.I(f's_mul_i32 s41, s38, {XR_SLOT}')
        e.I('s_add_u32 s41, s41, s58')
        e.I(f's_add_u32 s41, s41, {XR}')
        e.I(f's_mul_i32 s42, s39, {XR_SLOT}')
        e.I('s_add_u32 s42, s42, s58')
        e.I(f's_add_u32 s42, s42, {XR}')
        e.I(f's_and_b32 s44, s30, {RD-1}')
        e.I(f's_mul_i32 s43, s44, {SEG_XP}')
        e.I('s_add_u32 s43, s43, s58')
        e.I(f's_add_u32 s43, s43, {XP}')
        e.I(f's_mul_i32 s44, s44, {SEG_VM}')
        e.I('s_add_u32 s44, s44, s60')
        e.I(f's_add_u32 s44, s44, {VM}')
        e.I(f's_mul_i32 s45, s38, {VR_SLOT}')
        e.I('s_add_u32 s45, s45, s60')
        e.I(f's_add_u32 s45, s45, {VR}')
        e.I(f's_mul_i32 s46, s39, {VR_SLOT}')
        e.I('s_add_u32 s46, s46, s60')
        e.I(f's_add_u32 s46, s46, {VR}')
        def issue(b):
            for k in range(3): e.I(f'buffer_load_dwordx4 {vr(b+4*k)}, v3, {WS}, s40 offen offset:{k*1024} sc1')
        def early(b):
            for k in range(3): e.I(f'ds_write_b128 v5, {vr(b+4*k)} offset:{k*1024}')
        flag_addr(1)
        wl = [e.lab('Lmw') for _ in range(4)]; jn = e.lab('Lmj')
        for w in range(1, 4):
            e.I(f's_cmp_eq_u32 s22, {w}')
            e.I(f's_cbranch_scc1 {wl[w]}')
        def sm(d, W, src, m): e.I(f'{SMF} {vr(d)}, {vr(src)}, {ar(W+8*m,8)}, v{IDX}')
        for w in range(4):
            e.L(wl[w])
            own = [min(3*w, 7) + k for k in range(3)]
            rest = [m for m in range(10) if m not in own]
            def consume(b):
                TS(e, 1)
                if not opt.spec: early(b)
                mine = [(d, W, b + 4*k, m) for k, m in enumerate(own) for d, W in ((DQ, WQ), (DK, WK))] + [(DV, WV, b + 4*k, m) for k, m in enumerate(own)]
                for x_ in mine[:opt.mpre]: sm(*x_)
                e.I('s_waitcnt lgkmcnt(0)')
                e.I('s_barrier')
                for k, m in enumerate(rest): e.I(f'ds_read_b128 {vr(MF+4*k)}, v7 offset:{m*1024}')
                for x_ in mine[opt.mpre:]: sm(*x_)
            if opt.mwait: e.I(f's_sleep {opt.mwait}')
            poll2(e, issue, 3, PA, PB, consume, T0, T0 + 1, 1, early if opt.spec else None)
            e.I('s_mov_b64 vcc, s[34:35]')
            for k, m in enumerate(rest):
                e.I(f's_waitcnt lgkmcnt({6-k})')
                sm(DQ, WQ, MF + 4*k, m); sm(DK, WK, MF + 4*k, m)
            post(lambda k: sm(DV, WV, MF + 4*k, rest[k]))
            if w < 3: e.I(f's_branch {jn}')
        e.L(jn)
        e.I('v_xor_b32 v5, 0xc000, v5')
        e.I('v_xor_b32 v7, 0xc000, v7')
        TS(e, 3)
    def post(vm):
        QP1, QP2 = 'quad_perm:[1,0,3,2] row_mask:0xf bank_mask:0xf', 'quad_perm:[2,3,0,1] row_mask:0xf bank_mask:0xf'
        nv = opt.vpre
        for m in range(nv): vm(m)
        if opt.fpos == 10: e.I(f'buffer_store_dword v{ONE}, v{ONE+2}, {WS}, s51 offen{fl}')
        for r in range(4): e.I(f'v_permlane32_swap_b32 v{DQ+r}, v{DK+r}')
        for r in range(4): e.I(f'v_add_f32 v{DQ+r}, v{DQ+r}, v{DK+r}')
        e.I(f'v_cvt_pk_bf16_f32 v{T0}, v{DQ}, v{DQ+1}')
        e.I(f'v_cvt_pk_bf16_f32 v{T0+1}, v{DQ+2}, v{DQ+3}')
        vm(nv)
        if opt.fpos == 11: e.I(f'buffer_store_dword v{ONE}, v{ONE+2}, {WS}, s51 offen{fl}')
        e.I(f'v_mov_b32_dpp v{T0+2}, v{T0} {QP1}')
        e.I(f'v_mov_b32_dpp v{T0+3}, v{T0+1} {QP1}')
        e.I(f'v_perm_b32 v{T0}, v{T0+2}, v{T0}, v{SEL}')
        e.I(f'v_perm_b32 v{T0+1}, v{T0+3}, v{T0+1}, v{SEL}')
        vm(nv + 1)
        if opt.fpos == 12: e.I(f'buffer_store_dword v{ONE}, v{ONE+2}, {WS}, s51 offen{fl}')
        e.I(f'v_cndmask_b32_dpp v{KEEP}, v{T0+1}, v{T0}, vcc {QP2}')
        e.I('s_mov_b64 vcc, s[36:37]')
        e.I(f'v_cndmask_b32_dpp v{KEEP+1}, v{T0}, v{T0+1}, vcc {QP2}')
        e.I(f'buffer_store_dwordx2 {vr(KEEP,2)}, v{XA}, {WS}, s41 offen{fl}')
        TS(e, 2)
        for m in range(nv + 2, 7): vm(m)
        for k in range(8): e.I(f'v_mov_b32 v{DQ+k}, 0')
        e.I(f'v_permlane32_swap_b32 v{DV}, v{DV+2}')
        e.I(f'v_permlane32_swap_b32 v{DV+1}, v{DV+3}')
        e.I(f'v_add_f32 v{DV}, v{DV}, v{DV+2}')
        e.I(f'v_add_f32 v{DV+1}, v{DV+1}, v{DV+3}')
        e.I(f'v_cvt_pk_bf16_f32 v{T0}, v{DV}, v{DV+1}')
        e.I(f'v_mov_b32_dpp v{T0+2}, v{T0} {QP1}')
        e.I(f'v_perm_b32 v{KEEP+2}, v{T0+2}, v{T0}, v{SEL}')
        e.I(f'buffer_store_dword v{KEEP+2}, v9, {WS}, s45 offen{fl}')
        for k in range(4): e.I(f'v_mov_b32 v{DV+k}, 0')
    w_consume(0, 0, 20); w_issue(3, 0)
    w_consume(1, 1, 20); w_issue(4, 1)
    w_consume(2, 2, 20)
    w_consume(3, 0, 10)
    w_consume(4, 1, 0)
    TS(e, 0)
    wait_reg(e, T0)
    TS(e, 1)
    TSflush(e, '69')
    e.I('s_mul_i32 s62, s22, 10240')
    def xdma(seg, buf):
        e.I(f's_add_u32 s63, s62, {XN + seg*40960}')
        for m in range(10):
            e.I(f's_add_u32 m0, s62, {Q_LX + buf*40960 + m*1024}')
            e.I(f'buffer_load_dwordx4 v2, {WS}, s63 offen lds')
            e.I('s_add_u32 s63, s63, 1024')
    xdma(0, 0)
    w_issue(5, 0)
    xdma(1, 1)
    e.I('s_cmp_lg_u32 s23, 0')
    e.I('s_cbranch_scc1 L_qkvs')
    for slow in (False, True):
        fl = ' sc1' if slow else ''
        if slow: e.L('L_qkvs')
        pro, top, nox, nxt_, q0, q0r, qq, q1 = [e.lab(x_) for x_ in ('Lqp', 'Lqt', 'Lqn', 'Lqx', 'Lq0', 'Lqr', 'Lqq', 'Lq1')]
        e.I('s_mov_b32 s30, 0')
        e.I('s_mov_b32 s64, 0')
        TS(e, 0)
        e.I('s_waitcnt vmcnt(20)')
        TS(e, 1)
        e.I('s_barrier')
        xwork(False, (2, 1), False)
        e.I('s_mov_b32 s64, 1')
        TS(e, 2)
        flag_addr(1)
        e.I('s_waitcnt vmcnt(0)')
        TS(e, 3)
        set_flag(e, ONE + 2, 's51', ONE, fl)
        w_consume(5, 0, 1)
        if opt.urg: wait_count(e, T0, D_W, 80, 4)
        TS(e, 4)
        TSflush(e, '68')
        xwork(False, (2, 1, 0), False)
        e.I('s_mov_b32 s64, 2')
        e.I(f's_branch {top}')
        e.L(q0)
        e.I('s_mov_b32 s64, 0')
        xwork(False, (0,), False)
        e.I('s_barrier')
        xdma(2, 0)
        e.I('s_mov_b32 s64, 2')
        e.I('s_waitcnt vmcnt(0)')
        e.I('s_barrier')
        e.I(f's_branch {q0r}')
        e.L(top)
        TS(e, 0)
        mem_part()
        e.I('s_cmp_eq_u32 s30, 0')
        e.I(f's_cbranch_scc1 {q0}')
        e.L(q0r)
        e.I('s_cmp_ge_u32 s64, 64')
        e.I(f's_cbranch_scc1 {nox}')
        xwork(True)
        e.I('s_cmp_lg_u32 s64, 63')
        e.I(f's_cbranch_scc1 {nxt_}')
        flag_n()
        e.I(f's_branch {nxt_}')
        e.L(nox)
        for x_ in late_list()[0::2]: e.I(x_)
        flag_n()
        e.L(nxt_)
        TS(e, 4)
        e.I('s_add_u32 s64, s64, 1')
        TS(e, 5)
        TSflush(e, 's30')
        e.I('s_add_u32 s30, s30, 1')
        e.I('s_cmp_lt_u32 s30, 64')
        e.I(f's_cbranch_scc1 {top}')
        e.I('s_endpgm')

S_RED = 98304
def role_sw(e):
    fl = ''
    XF, KXF, VXF, VMF = 16, 40, 88, 136
    S, PB, PM = 148, 160, 164
    DW, DM, VWX, VWM = 168, 184, 200, 216
    OUT = DW
    PA = XF
    CI = 224
    T0 = 228; IDX = 246; SENT = 248; ONE = 252
    AONE, AHALF = 96, 100
    PAD = 240
    e.I('s_sub_u32 s24, s21, 12')
    e.I('s_lshl_b32 s25, s24, 2')
    e.I('s_add_u32 s25, s25, s22')
    e.I('s_lshl_b32 s26, s20, 2')
    e.I('s_add_u32 s26, s26, s22')
    srd(e, 8, 66, 6144 * 1280)
    def wo_load():
        e.I(f's_mul_i32 s28, s26, {192*1280}')
        e.I('s_lshl_b32 s29, s24, 7')
        e.I('s_add_u32 s28, s28, s29')
        e.I('v_lshrrev_b32 v17, 3, v1')
        e.I('v_bfe_u32 v18, v1, 4, 2')
        e.I('v_lshlrev_b32 v18, 1, v18')
        e.I('v_and_b32 v19, 7, v1')
        e.I('v_xor_b32 v19, v19, v18')
        e.I('v_mul_u32_u24 v16, 1280, v17')
        e.I('v_lshl_add_u32 v16, v19, 4, v16')
        e.I('s_mul_i32 s46, s22, 24576')
        for n in range(24):
            e.I(f's_add_u32 m0, s46, {n*1024}')
            e.I(f'buffer_load_dwordx4 v16, s[8:11], s28 offen{WFL[opt.wnt]} lds')
            if n < 23: e.I(f's_add_u32 s28, s28, {8*1280}')
        extra = 0
        if opt.pfs == 2: sw_pf(); extra = 3 * (12 - opt.pfh)
        e.I('v_lshrrev_b32 v17, 2, v1')
        e.I('v_bfe_u32 v18, v17, 1, 2')
        e.I('v_lshlrev_b32 v17, 7, v17')
        e.I('v_and_b32 v19, 3, v1')
        e.I('v_lshl_add_u32 v17, v19, 3, v17')
        e.I('v_add_u32 v17, s46, v17')
        for ct in range(4):
            e.I(f'v_xor_b32 v19, {ct}, v18')
            e.I(f'v_lshl_add_u32 v{20+ct}, v19, 5, v17')
        for kk in range(6):
            e.I(f's_waitcnt vmcnt({20 - 4*kk + extra})')
            for ct in range(4):
                e.I(f'ds_read_b64_tr_b16 {ar((ct*6+kk)*4,2)}, v{20+ct} offset:{kk*4096}')
                e.I(f'ds_read_b64_tr_b16 {ar((ct*6+kk)*4+2,2)}, v{20+ct} offset:{kk*4096+2048}')
        e.I('s_waitcnt lgkmcnt(0)')
    nocal = e.lab('Lnc')
    e.I('s_cmp_lg_u32 s25, 8')
    e.I(f's_cbranch_scc1 {nocal}')
    e.I('s_lshl_b32 s38, s20, 7')
    e.I(f's_add_u32 s38, s38, {CAL}')
    e.I('s_add_u32 s39, s38, 8192')
    e.I('s_mov_b32 s40, -1'); e.I('s_mov_b32 s41, -1'); e.I('s_mov_b32 s42, 4')
    e.I('v_mov_b32 v10, 0')
    e.I('s_mov_b64 exec, 1')
    cal = e.lab('Lcal')
    e.L(cal)
    for so, acc in (('s38', 's40'), ('s39', 's41')):
        e.I(f'buffer_store_dword v10, v10, {WS}, {so} offen sc1')
        e.I('s_waitcnt vmcnt(0)')
        e.I('s_memtime s[44:45]')
        e.I('s_waitcnt lgkmcnt(0)')
        e.I(f'buffer_load_dword v11, v10, {WS}, {so} offen sc1')
        e.I('s_waitcnt vmcnt(0)')
        e.I('s_memtime s[46:47]')
        e.I('s_waitcnt lgkmcnt(0)')
        e.I('s_sub_u32 s46, s46, s44')
        e.I(f's_min_u32 {acc}, {acc}, s46')
    e.I('s_sub_u32 s42, s42, 1')
    e.I('s_cmp_lg_u32 s42, 0')
    e.I(f's_cbranch_scc1 {cal}')
    e.I('s_cmp_lt_u32 s41, s40')
    if opt.pflip: e.I('s_cmp_ge_u32 s41, s40')
    e.I('s_cselect_b32 s38, 2, 1')
    e.I('v_mov_b32 v11, s38')
    e.I('s_lshl_b32 s38, s20, 2')
    e.I('v_mov_b32 v10, s38')
    e.I(f'global_store_dword v10, v11, s[74:75] offset:{D_PAR} sc1')
    e.I('s_mov_b64 exec, -1')
    e.L(nocal)
    def sw_pf():
        srd(e, 12, 64, 640 * 12288); srd(e, 16, 60, 640 * 12288)
        prefetch_w(e, 's25', opt.pfh, 12, 32, 's[12:15]', 's[16:19]')
    if opt.pfs == 1: sw_pf()
    def early_touch():
        jobs = []
        for sl in range(2): jobs += [(b_ + sl * SEG_QX, 12288, 96) for b_ in (KX, VX)]
        for sl in range(2): jobs += [(QX + sl * SEG_QX, 12288, 96), (XP + sl * SEG_XP, 6144, 48), (VM + sl * SEG_VM, 3072, 24)]
        touch_jobs(e, jobs, 's24', 10, 's26', 24)
    if opt.tord == 0: early_touch()
    if not opt.swlate: wo_load()
    if opt.tord == 1: early_touch()
    e.I(f's_mov_b32 s52, {SC_L2E:#x}'); e.I(f's_mov_b32 s53, {SC_L2E | 0x80000000:#x}')
    lane_ig(e, 14, 15)
    e.I('v_and_b32 v13, 7, v14')
    e.I('v_lshlrev_b32 v13, 4, v13')
    e.I('v_lshl_add_u32 v13, v15, 7, v13')
    e.I('v_bfe_u32 v5, v1, 3, 1')
    e.I('s_lshl_b32 s38, s22, 9')
    e.I(f's_add_u32 s38, s38, {S_RED}')
    e.I('v_add_u32 v6, s38, v13')
    e.I('v_lshl_add_u32 v6, v5, 14, v6')
    e.I('s_lshl_b32 s38, s22, 11')
    e.I(f's_add_u32 s38, s38, {S_RED}')
    e.I('v_add_u32 v7, s38, v13')
    e.I('v_lshl_add_u32 v7, v5, 10, v7')
    if opt.pbf: e.I('v_lshrrev_b32 v13, 1, v13')
    e.I('v_lshl_add_u32 v13, v5, 13, v13')
    e.I('v_and_b32 v4, 0x1fff, v13')
    e.I('v_lshlrev_b32 v9, 2, v5')
    e.I('v_xor_b32 v9, s20, v9')
    for m in range(4):
        e.I(f'v_xor_b32 v8, {m}, v9')
        e.I(f'v_lshl_add_u32 v{PAD+m}, v8, 9, v4')
    e.I('v_and_b32 v9, 7, v1')
    e.I('v_lshlrev_b32 v8, 4, v9')
    e.I('v_lshl_add_u32 v8, v5, 7, v8')
    e.I('v_lshl_add_u32 v8, v15, 2, v8')
    e.I('s_lshl_b32 s38, s25, 8')
    e.I('v_add_u32 v8, s38, v8')
    e.I('v_lshrrev_b32 v9, 1, v1')
    e.I('v_lshlrev_b32 v9, 10, v9')
    e.I('v_and_b32 v10, 1, v1')
    e.I('v_lshl_add_u32 v9, v10, 3, v9')
    e.I(f'v_lshlrev_b32 v{ONE+1}, 2, v1')
    for k in range(4): e.I(f'v_mov_b32 v{SENT+k}, -1')
    e.I('s_mov_b32 s68, 0xff00ff00'); e.I('s_mov_b32 s69, 0xff00ff00')
    e.I('s_mov_b32 s70, 0x3f80'); e.I('s_mov_b32 s71, 0x3f800000')
    e.I(f'v_mov_b32 v{CI}, {NEG_BIG:#x}')
    e.I('s_mov_b32 vcc_lo, 0')
    e.I('s_mov_b32 vcc_hi, 0x00ff00ff')
    e.I(f'v_cndmask_b32 v{CI}, v{CI}, 0, vcc')
    for k in range(1, 4): e.I(f'v_mov_b32 v{CI+k}, v{CI}')
    e.I(f'v_mov_b32 v{IDX}, 0x44444444')
    e.I('v_mov_b32 v11, 0xeeeeeeee')
    e.I('v_cmp_lt_u32 vcc, 7, v14')
    e.I(f'v_cndmask_b32 v{IDX}, v{IDX}, v11, vcc')
    e.I('v_mov_b32 v11, 0x3f803f80')
    for k in range(4): e.I(f'v_accvgpr_write_b32 a{AONE+k}, v11')
    e.I('v_mov_b32 v11, 0x3f003f00')
    for k in range(2): e.I(f'v_accvgpr_write_b32 a{AHALF+k}, v11')
    e.I('s_mul_i32 s58, s26, 6144')
    e.I(f's_add_u32 s58, s58, {XR}')
    e.I('s_mul_i32 s57, s26, 3072')
    e.I(f's_add_u32 s57, s57, {VR}')
    e.I('s_lshr_b32 s59, s25, 1')
    e.I('s_lshl_b32 s59, s59, 14')
    e.I('s_and_b32 s38, s25, 1')
    e.I('s_lshl_b32 s38, s38, 12')
    e.I('s_add_u32 s59, s59, s38')
    e.I(f's_add_u32 s59, s59, {PART}')
    e.I('s_lshl_b32 s60, s20, 9')
    e.I('s_add_u32 s60, s60, s59')
    e.I('s_mul_i32 s61, s20, 10240')
    e.I(f's_add_u32 s61, s61, {MEM}')
    e.I('s_mul_i32 s62, s26, 12288')
    e.I('s_lshl_b32 s63, s26, 6')
    e.I(f's_add_u32 s63, s63, {FLGQ}')
    e.I('s_lshl_b32 s38, s20, 2')
    e.I('v_mov_b32 v10, s38')
    wait_flags(e, 10, D_PAR, 1, T0, 12, sleep=4, dbg=True)
    e.I(f'v_readfirstlane_b32 s38, v{T0}')
    e.I('s_nop 3')
    e.I('s_and_b32 s38, s38, 2')
    e.I('s_lshl_b32 s38, s38, 12')
    e.I('s_add_u32 s59, s59, s38')
    e.I('s_lshl_b32 s38, s22, 2')
    e.I(f's_add_u32 s38, s38, {S_RED + 8192}')
    e.I('v_lshlrev_b32 v10, 4, v14')
    e.I('v_add_u32 v10, s38, v10')
    e.I('v_and_b32 v11, 7, v14')
    e.I('v_lshlrev_b32 v11, 4, v11')
    e.I('v_bfe_u32 v12, v1, 3, 1')
    e.I('v_lshl_add_u32 v11, v12, 3, v11')
    e.I(f'v_add_u32 v11, {S_RED + 8192}, v11')
    e.I('v_min_u32 v12, 11, v1')
    e.I('v_lshlrev_b32 v12, 2, v12')
    def kv_loads(dst, base, q0=0, q1=12):
        if q0 >= q1: return
        e.I(f's_and_b32 s48, s49, {RD-1}')
        e.I(f's_mul_i32 s48, s48, {SEG_QX}')
        e.I('s_add_u32 s48, s48, s62')
        e.I(f's_add_u32 s48, s48, {base + (q0//4)*4096}')
        for q in range(q0, q1):
            if q % 4 == 0 and q > q0: e.I('s_add_u32 s48, s48, 4096')
            e.I(f'buffer_load_dwordx4 {vr(dst+4*q)}, v2, {WS}, s48 offen offset:{(q%4)*1024} sc1')
    def vx_loads():
        e.I(f's_and_b32 s48, s49, {RD-1}')
        e.I(f's_mul_i32 s48, s48, {SEG_QX}')
        e.I('s_add_u32 s48, s48, s62')
        e.I(f's_add_u32 s48, s48, {VX}')
        e.I('s_add_u32 s46, s48, 4096')
        e.I('s_add_u32 s56, s48, 8192')
        for kk in range(6):
            for rt in range(2):
                q = rt * 6 + kk
                e.I(f'buffer_load_dwordx4 {vr(VXF+4*q)}, v2, {WS}, {("s48", "s46", "s56")[q//4]} offen offset:{(q%4)*1024} sc1')
    def vw_grp(gi):
        kk, rt = gi // 2, gi % 2
        for ct in range(4):
            d = vr(DW + (ct*2+rt)*4)
            e.I(f'{MFMA} {d}, {vr(VXF+4*(rt*6+kk))}, {ar((ct*6+kk)*4)}, {0 if kk == 0 else d}')
    def vw_x(after, extra=(), nvx=0, g0=0):
        extra = list(extra); nx0 = len(extra)
        for gi in range(g0, 12):
            if gi >= 12 - nvx: e.I(f's_waitcnt vmcnt({11 - gi + nx0 - len(extra)})')
            for _ in range(-(-len(extra) // (12 - gi))): e.I(extra.pop(0))
            if after is not None: e.I(f's_waitcnt vmcnt({after + 11 - gi})')
            vw_grp(gi)
        cv = [f'v_cvt_pk_bf16_f32 v{VWX+4*ct+k}, v{DW+8*ct+2*k}, v{DW+8*ct+2*k+1}' for ct in range(4) for k in range(4)] + [f'v_mov_b32 v{DM+k}, 0' for k in range(16)]
        for n_, x_ in enumerate(cv):
            if extra and n_ % 2 == 0: e.I(extra.pop(0))
            e.I(x_)
    TS(e, 0)
    wait_reg(e, T0, opt.rsleep)
    TS(e, 1)
    if opt.swlate: wo_load()
    if opt.tord == 2: early_touch()
    TS(e, 2)
    TSflush(e, '69', 244, 245)
    if opt.touch2:
        e.I('v_lshrrev_b32 v16, 4, v1')
        e.I(f's_mov_b32 s38, {PART_SLOT}')
        e.I('v_mul_lo_u32 v16, s38, v16')
        e.I('v_bfe_u32 v17, v1, 1, 3')
        e.I('v_lshl_add_u32 v16, v17, 9, v16')
        e.I('v_and_b32 v17, 1, v1')
        e.I('v_lshl_add_u32 v16, v17, 7, v16')
        if opt.ptouch == 2: e.I('s_mov_b32 exec_lo, 0')
        if opt.ptouch: e.I(f'buffer_load_dword v17, v16, {WS}, s59 offen sc1{" nt" if opt.ptouch == 3 else ""}')
        e.I('s_mov_b64 exec, -1')
    wait_flags(e, ONE + 1, 's63', 0xfff, T0, 11, sleep=2)
    e.I('s_mov_b32 s49, 0')
    vx_loads()
    kv_loads(KXF, KX)
    vw_x(12)
    e.I('s_cmp_lg_u32 s23, 0')
    e.I('s_cbranch_scc1 L_sws')
    for slow in (False, True):
        fl = ' sc1' if slow else ''
        if slow: e.L('L_sws')
        top = e.lab('Lwt')
        e.I('s_mov_b32 s30, 0')
        e.L(top)
        TS(e, 0)
        if opt.pdiag: e.I('s_mov_b32 s94, 0')
        e.I('s_and_b32 s38, s30, 3')
        e.I('s_xor_b32 s39, s38, 2')
        e.I(f's_mul_i32 s40, s38, {XR_SLOT}')
        e.I('s_add_u32 s40, s40, s58')
        e.I('s_add_u32 s54, s40, 4096')
        e.I(f's_mul_i32 s55, s38, {VR_SLOT}')
        e.I('s_add_u32 s55, s55, s57')
        if opt.fresh:
            e.I(f's_mul_i32 s41, s30, {PART_SLOT}')
            e.I(f's_add_u32 s41, s41, {SCRATCH + 0x400000 - PART + 0x200000}')
        else:
            e.I(f's_mul_i32 s41, s38, {PART_SLOT}')
        e.I('s_add_u32 s42, s41, s60')
        e.I('s_add_u32 s41, s41, s59')
        if opt.fresh:
            e.I('s_lshr_b32 s47, s41, 8')
            e.I('s_not_b32 s47, s47')
            e.I('s_and_b32 s47, s47, 8192')
            e.I('s_xor_b32 s41, s41, s47')
        e.I('s_xor_b32 s47, s41, 8192')
        e.I(f's_mul_i32 s43, s39, {PART_SLOT}')
        e.I('s_add_u32 s43, s43, s60')
        e.I('s_add_u32 s49, s30, 1')
        e.I('s_and_b32 s44, s49, 3')
        e.I('s_xor_b32 s45, s44, 2')
        e.I(f's_mul_i32 s44, s44, {MEM_SLOT}')
        e.I('s_add_u32 s44, s44, s61')
        e.I(f's_mul_i32 s45, s45, {MEM_SLOT}')
        e.I('s_add_u32 s45, s45, s61')
        e.I(f's_and_b32 s46, s49, {RD-1}')
        e.I(f's_mul_i32 s46, s46, {SEG_QX}')
        e.I('s_add_u32 s46, s46, s62')
        e.I(f's_add_u32 s65, s46, {KX}')
        e.I(f's_add_u32 s46, s46, {VX}')
        e.I('s_add_u32 s56, s46, 4096')
        e.I('s_add_u32 s64, s46, 8192')
        e.I('s_add_u32 s66, s65, 4096')
        e.I('s_add_u32 s67, s65, 8192')
        e.I('s_lshl_b32 s50, s49, 11')
        e.I('s_add_u32 s50, s50, s63')
        pl, pd, fr, hl, hd = e.lab('Lxp'), e.lab('Lxd'), e.lab('Lxf'), e.lab('Lhp'), e.lab('Lhd')
        def probe(lp, dn, va, so, bad):
            e.I('s_mov_b64 exec, 0xfff')
            e.I(f'buffer_load_dword v{T0}, v{va}, {WS}, {so} offen sc1')
            e.L(lp)
            for a_, b_ in ((T0, T0 + 1), (T0 + 1, T0)):
                e.I(f'buffer_load_dword v{b_}, v{va}, {WS}, {so} offen sc1')
                e.I('s_waitcnt vmcnt(1)')
                e.I(f'v_cmp_eq_u32 vcc, {bad}, v{a_}')
                e.I(f's_cbranch_vccz {dn}')
            e.I('s_sub_u32 s31, s31, 1')
            e.I(f's_cbranch_scc0 {lp}')
            e.I('s_mov_b32 s31, 2')
            e.I('s_branch L_fail')
        e.I(f's_mov_b32 s31, {TMO}')
        probe(hl, hd, 12, 's50', 0)
        xp = e.lab('Lxq')
        e.L(xp)
        probe(pl, pd, 9, 's40', -1)
        e.L(hd)
        if opt.hdelay: e.I(f's_nop {opt.hdelay - 1}')
        if not opt.heads: e.I(f's_branch {xp}')
        e.L(pd)
        e.I('s_mov_b64 exec, -1')
        TS(e, 1)
        if opt.pdiag: e.I('s_add_u32 s94, s94, 1')
        e.L(fr)
        for p in range(6):
            e.I(f'buffer_load_dwordx4 {vr(XF+4*p)}, v2, {WS}, {"s40" if p < 4 else "s54"} offen offset:{(p%4)*1024} sc1')
        FQ = CI + 23
        def vm_loads():
            for q in range(3):
                e.I(f'buffer_load_dwordx4 {vr(VMF+4*q)}, v2, {WS}, s55 offen offset:{q*1024} sc1')
        vp = opt.vmpos
        bulk0 = [f'buffer_load_dwordx4 {vr(VXF+4*q)}, v2, {WS}, {("s46", "s56", "s64")[q//4]} offen offset:{(q%4)*1024} sc1' for q in (0, 6, 1, 7, 2, 8)]
        nvm = 0
        if vp == 0: vm_loads(); nvm = 3
        for p in range(6):
            x = vr(XF + 4*p)
            e.I(f's_waitcnt vmcnt({5-p+nvm})')
            e.I(f'{MFMA} {vr(S+4)}, {vr(KXF+4*p)}, {x}, {0 if p == 0 else vr(S+4)}')
            e.I(f'{MFMA} {vr(S+8)}, {vr(KXF+24+4*p)}, {x}, {0 if p == 0 else vr(S+8)}')
            e.I(f'{MFMA} {vr(S)}, {x}, {x}, {vr(CI) if p == 0 else vr(S)}')
            if vp == p + 1: vm_loads(); nvm = 3
            if p >= 6 - opt.kx and p >= vp: e.I(bulk0[p - (6 - opt.kx)]); nvm += 1
            r = XF + 4 * p
            if p == 0:
                e.I(f'v_max3_u32 v{T0+2}, v{r}, v{r+1}, v{r+2}')
                e.I(f'v_max_u32 v{T0+2}, v{T0+2}, v{r+3}')
            else:
                e.I(f'v_max3_u32 v{T0+2}, v{T0+2}, v{r}, v{r+1}')
                e.I(f'v_max3_u32 v{T0+2}, v{T0+2}, v{r+2}, v{r+3}')
        e.I(f'v_cmp_eq_u32 vcc, -1, v{T0+2}')
        ok = e.lab('Lxo')
        e.I(f's_cbranch_vccz {ok}')
        e.I('s_sub_u32 s31, s31, 1')
        e.I('s_nop 7')
        e.I(f's_cbranch_scc0 {xp}')
        e.I('s_mov_b32 s31, 2')
        e.I('s_branch L_fail')
        e.L(ok)
        TS(e, 2)
        vl, vd = e.lab('Lvp'), e.lab('Lvd')
        e.I(f's_waitcnt vmcnt({opt.kx})')
        vl2 = e.lab('Lv2')
        e.I(f's_branch {vl2}') if opt.kx else None
        e.L(vl)
        e.I('s_waitcnt vmcnt(0)')
        e.L(vl2)
        check_sent(e, range(VMF, VMF + 12), T0 + 2, T0 + 3)
        e.I(f's_cbranch_vccz {vd}')
        vm_loads()
        e.I('s_sub_u32 s31, s31, 1')
        e.I(f's_cbranch_scc0 {vl}')
        e.I('s_mov_b32 s31, 3')
        e.I('s_branch L_fail')
        e.L(vd)
        TS(e, 3)
        PW = 2 if opt.pbf else 4
        if opt.rpos == 0: e.I(f'buffer_store_dwordx{PW} {vr(SENT,PW)}, v13, {WS}, s43 offen sc1')
        ROR8 = 'row_ror:8 row_mask:0xf bank_mask:0xf'
        sm = [f'{SMF} {vr(DM+4*ct)}, {vr(VMF+4*m)}, {ar((ct*6+2*m)*4,8)}, v{IDX}' for m in range(3) for ct in range(4)]
        t = T0 + 2
        V = []
        for r in range(4): V.append(f'v_mov_b32_dpp v{S+4+r}, v{S+8+r} row_shr:8 row_mask:0xf bank_mask:0xc')
        V += [f'v_max3_f32 v{t}, v{S}, v{S+1}, v{S+2}', f'v_max3_f32 v{t+1}, v{S+3}, v{S+4}, v{S+5}', f'v_max3_f32 v{t}, v{t}, v{S+6}, v{S+7}', f'v_max_f32 v{t}, v{t}, v{t+1}',
              '*', '*', f'v_max_f32_dpp v{t}, v{t}, v{t} {ROR8}', f'v_mov_b32 v{t+1}, v{t}', '*', '*', f'v_permlane16_swap_b32 v{t}, v{t+1}', f'v_max_f32 v{t}, v{t}, v{t+1}',
              f'v_mov_b32 v{t+1}, v{t}', '*', '*', f'v_permlane32_swap_b32 v{t}, v{t+1}', f'v_max_f32 v{t}, v{t}, v{t+1}', f'v_mul_f32 v{t}, s53, v{t}']
        order = [4, 5, 6, 7, 0, 1, 2, 3]
        for i in order: V.append(f'v_fma_f32 v{S+i}, v{S+i}, s52, v{t}')
        for n_, i in enumerate(order):
            V.append(f'v_exp_f32 v{S+i}, v{S+i}')
        bulk = [f'buffer_load_dwordx4 {vr(VXF+4*q)}, v2, {WS}, {("s46", "s56", "s64")[q//4]} offen offset:{(q%4)*1024} sc1' for q in (0, 6, 1, 7, 2, 8, 3, 9, 4, 10, 5, 11)]
        bulk += [f'buffer_load_dwordx4 {vr(KXF+4*q)}, v2, {WS}, {("s65", "s66", "s67")[q//4]} offen offset:{(q%4)*1024} sc1' for q in range(12)]
        kin = bulk[opt.kx:opt.kin]; kp = bulk[opt.kin:opt.kin + opt.kp]; kc = bulk[opt.kin + opt.kp:]
        if opt.nobulk & 1: kin = []
        if opt.nobulk & 2: kp = []
        if opt.nobulk & 4: kc = []
        def ld():
            if kin: e.I(kin.pop(0))
        for x_ in sm[:opt.smpre]: e.I(x_)
        rest = sm[opt.smpre:]
        cost = 0; prev = None; nld = 0
        for x_ in V:
            if x_ == '*':
                if prev == '*' or cost == 0 or not rest: ld()
                else: e.I(rest.pop(0)); cost = 0
            else:
                e.I(x_); cost += 2 if 'v_exp' in x_ else 1
                if cost >= opt.smgap and rest: e.I(rest.pop(0)); cost = 0
                elif not rest and cost >= opt.ldgap: ld(); cost = 0
            prev = x_
        for x_ in rest: e.I(x_)
        e.I(f'v_cvt_pk_bf16_f32 v{PB}, v{S+4}, v{S+5}')
        e.I(f'v_cvt_pk_bf16_f32 v{PB+1}, v{S+6}, v{S+7}')
        e.I(f'v_cvt_pk_bf16_f32 v{PM}, v{S}, v{S+1}')
        e.I(f'v_cvt_pk_bf16_f32 v{PM+1}, v{S+2}, v{S+3}')
        e.I(f'v_mov_b32_dpp v{PB+2}, v{PB} {ROR8}')
        e.I(f'v_mov_b32_dpp v{PB+3}, v{PB+1} {ROR8}')
        e.I(f'v_mov_b32 v{t}, v{PM}')
        e.I(f'v_mov_b32 v{t+1}, v{PM+1}')
        if opt.tpos == 0: TS(e, 4)
        def cvm(ct):
            e.I(f'v_cvt_pk_bf16_f32 v{VWM+2*ct}, v{DM+4*ct}, v{DM+4*ct+1}')
            e.I(f'v_cvt_pk_bf16_f32 v{VWM+2*ct+1}, v{DM+4*ct+2}, v{DM+4*ct+3}')
        SUM = S
        e.I(f'{MFMA} {vr(OUT)}, {vr(VWX)}, {vr(PB)}, 0')
        e.I(f'v_permlane32_swap_b32 v{t}, v{PM}')
        e.I(f'v_permlane32_swap_b32 v{t+1}, v{PM+1}')
        e.I(f'{MFMA} {vr(SUM)}, {ar(AONE)}, {vr(PB)}, 0')
        cvm(0)
        e.I(f'{MFMA} {vr(OUT+4)}, {vr(VWX+4)}, {vr(PB)}, 0')
        cvm(1)
        e.I(f'{MFMA} {vr(OUT+8)}, {vr(VWX+8)}, {vr(PB)}, 0')
        cvm(2)
        e.I(f'{MFMA} {vr(OUT+12)}, {vr(VWX+12)}, {vr(PB)}, 0')
        cvm(3)
        e.I(f'{MFMA16} {vr(OUT)}, {vr(VWM,2)}, {vr(PM,2)}, {vr(OUT)}')
        ld()
        e.I(f'{MFMA16} {vr(SUM)}, {ar(AHALF,2)}, {vr(PM,2)}, {vr(SUM)}')
        ld()
        for ct in range(1, 4):
            e.I(f'{MFMA16} {vr(OUT+4*ct)}, {vr(VWM+2*ct,2)}, {vr(PM,2)}, {vr(OUT+4*ct)}')
            if ct < 3: ld()
        while kin: ld()
        if opt.tpos == 1: TS(e, 4)
        e.I('s_not_b64 exec, s[68:69]')
        e.I(f'ds_write_b128 v6, {vr(OUT)}')
        e.I(f'v_rcp_f32 v{t}, v{SUM}')
        e.I(f'ds_write_b128 v6, {vr(OUT+4)} offset:2048')
        e.I(f'ds_write_b32 v10, v{t}')
        e.I(f'ds_write_b128 v6, {vr(OUT+8)} offset:4096')
        e.I(f'ds_write_b128 v6, {vr(OUT+12)} offset:6144')
        e.I('s_mov_b64 exec, -1')
        e.I('s_waitcnt lgkmcnt(0)')
        if opt.tpos == 2: TS(e, 4)
        e.I('s_barrier')
        if opt.tpos == 3: TS(e, 4)
        e.I(f'ds_read_b64 {vr(t,2)}, v11')
        e.I(f'ds_read_b128 {vr(S)}, v7')
        e.I(f'ds_read_b128 {vr(S+4)}, v7 offset:512')
        e.I('s_waitcnt lgkmcnt(1)')
        for k in range(4): e.I(f'v_mul_f32 v{S+k}, v{S+k}, v{t}')
        e.I('s_waitcnt lgkmcnt(0)')
        for k in range(4): e.I(f'v_fmac_f32 v{S+k}, v{S+4+k}, v{t+1}')
        for k in range(4): e.I(f'v_add_f32_dpp v{S+k}, v{S+k}, v{S+k} {ROR8}')
        if opt.pbf:
            e.I(f'v_cvt_pk_bf16_f32 v{S+4}, v{S}, v{S+1}')
            e.I(f'v_cvt_pk_bf16_f32 v{S+5}, v{S+2}, v{S+3}')
            e.I(f'buffer_store_dwordx2 {vr(S+4,2)}, v13, {WS}, s42 offen sc1')
        else:
            e.I(f'buffer_store_dwordx4 {vr(S)}, v13, {WS}, s42 offen sc1')
        TS(e, 5)
        if opt.rpos == 2: e.I(f'buffer_store_dwordx{PW} {vr(SENT,PW)}, v13, {WS}, s43 offen sc1')
        e.I(f'v_mov_b32 v{PA}, 0'); e.I(f'v_mov_b32 v{PA+1}, 0')
        for k in range(4): e.I(f'v_cndmask_b32 v{S+k}, v{S+k}, 0, s[68:69]')
        if opt.pmf:
            e.I('s_waitcnt vmcnt(2)')
            for gi in range(opt.pmf): vw_grp(gi)
        if opt.pdelay: e.I(f's_sleep {opt.pdelay}')
        def shot():
            e.I('s_mov_b64 exec, s[68:69]')
            e.I(f'buffer_load_dwordx2 {vr(PA,2)}, v{PAD}, {WS}, s41 offen sc1')
            e.I('s_mov_b64 exec, -1')
            for m in range(1, 4): e.I(f'buffer_load_dwordx2 {vr(PA+2*m,2)}, v{PAD+m}, {WS}, s41 offen sc1')
            for k in range(4): e.I(f'v_mov_b32 v{T0+8+k}, v{S+k}')
        ql, qd, qf = e.lab('Lpp'), e.lab('Lpd'), e.lab('Lpf')
        def acc(behind):
            for m in range(4):
                e.I(f's_waitcnt vmcnt({3-m+behind})')
                if m == 0: e.I(f'v_max_u32 v{T0}, v{PA}, v{PA+1}')
                else: e.I(f'v_max3_u32 v{T0}, v{T0}, v{PA+2*m}, v{PA+2*m+1}')
                if m == 3: e.I(f'v_cmp_eq_u32 vcc, -1, v{T0}')
                for k in range(4): e.I(f'v_dot2c_f32_bf16 v{T0+8+k}, {("s70", "s71")[k&1]}, v{PA+2*m+(k>>1)}')
            e.I(f's_cbranch_vccz {qd}')
        shot()
        for gi in range(opt.pmf, opt.pmf + opt.pmf2): vw_grp(gi)
        if kp:
            e.I(f's_nop {opt.kgap}') if opt.kgap < 16 else e.I(f's_sleep {opt.kgap // 16}')
            for x_ in kp: e.I(x_)
            acc(len(kp))
        else:
            e.I(f's_branch {qf}')
        e.L(ql)
        shot()
        e.L(qf)
        acc(0)
        e.I('s_sub_u32 s31, s31, 1')
        e.I(f's_cbranch_scc0 {ql}')
        e.I('s_mov_b32 s31, 4')
        e.I('s_branch L_fail')
        e.L(qd)
        TS(e, 6)
        e.I('s_nop 1')
        for k in range(2): e.I(f'v_add_f32_dpp v{T0+4+k}, v{T0+8+k}, v{T0+8+k} row_ror:8 row_mask:0xf bank_mask:0x3')
        for k in range(2): e.I(f'v_add_f32_dpp v{T0+4+k}, v{T0+10+k}, v{T0+10+k} row_ror:8 row_mask:0xf bank_mask:0xc ; merge')
        e.I(f'v_cvt_pk_bf16_f32 v{T0+4}, v{T0+4}, v{T0+5}')
        e.I(f'buffer_store_dword v{T0+4}, v8, {WS}, s44 offen{fl}')
        TS(e, 7)
        e.I(f'buffer_store_dword v{SENT}, v8, {WS}, s45 offen{fl}')
        if opt.mbar: e.I('s_barrier')
        nvx = max(0, 12 - opt.kin - opt.kp)
        for x_ in kc[:nvx]: e.I(x_)
        assert opt.kin >= opt.pmf + opt.pmf2
        if kp: e.I('s_waitcnt vmcnt(2)')
        vw_x(None, kc[nvx:], nvx, opt.pmf + opt.pmf2)
        TS(e, 8)
        TSflush(e, 's30', 244, 245)
        if opt.dstamp: e.I('s_lshl_b32 s98, s25, 8'); e.I('s_add_u32 s98, s98, s30')
        DSTAMP(e, 2, 's_cmp_eq_u32 s98, 9216')
        if opt.dstamp: e.I('s_lshl_b32 s98, s25, 8'); e.I('s_add_u32 s98, s98, s30')
        DSTAMP(e, 3, 's_cmp_eq_u32 s98, 9218')
        for idx_, st_ in ((6, 2), (7, 62)):
            for o_, off_ in (('clk', 0), ('rt', 2)):
                if opt.dstamp: e.I('s_lshl_b32 s98, s25, 8'); e.I('s_add_u32 s98, s98, s30'); e.I('s_lshl_b32 s99, s20, 16'); e.I('s_add_u32 s98, s98, s99')
                DSTAMP(e, idx_ + off_, f's_cmp_eq_u32 s98, {20*256 + st_}', o_)
        if opt.dstamp: e.I('s_lshl_b32 s98, s25, 8'); e.I('s_add_u32 s98, s98, s30')
        DSTAMP(e, 4, 's_cmp_eq_u32 s98, 9278')
        e.I('s_add_u32 s30, s30, 1')
        e.I('s_cmp_lt_u32 s30, 63')
        e.I(f's_cbranch_scc1 {top}')
        if not slow: e.I('s_branch L_swend')
    e.L('L_swend')
    e.I('s_lshl_b32 s38, s20, 6')
    e.I('s_lshl_b32 s39, s22, 2')
    e.I('s_add_u32 s38, s38, s39')
    e.I(f's_add_u32 s38, s38, {FLGOX + 63*512}')
    e.I(f's_add_u32 s46, s62, {OX + (63 % RD)*SEG_QX}')
    e.I('s_add_u32 s56, s46, 4096')
    e.I('s_add_u32 s64, s46, 8192')
    e.I('s_lshl_b32 s39, s22, 10')
    e.I('v_add_u32 v6, s39, v2')
    e.I('s_lshl_b32 s39, s22, 12')
    e.I('v_add_u32 v7, s39, v2')
    e.I('s_lshr_b32 s40, s24, 1')
    e.I('s_lshl_b32 s40, s40, 2')
    e.I('s_add_u32 s40, s40, s22')
    e.I('s_lshl_b32 s40, s40, 10')
    e.I('s_and_b32 s41, s24, 1')
    e.I('s_lshl_b32 s41, s41, 3')
    e.I('s_add_u32 s40, s40, s41')
    e.I('s_mul_i32 s41, s20, 40960')
    e.I('s_add_u32 s40, s40, s41')
    e.I(f's_add_u32 s40, s40, {PX + 63*SEG_PX}')
    e.I('s_add_u32 s41, s40, 20480')
    e.I('s_mul_i32 s43, s20, 5')
    e.I('s_lshr_b32 s44, s24, 1')
    e.I('s_add_u32 s43, s43, s44')
    e.I('s_lshl_b32 s43, s43, 7')
    e.I(f's_add_u32 s43, s43, {HINT2}')
    e.I('v_mov_b32 v3, 0')
    e.I(f'v_mov_b32 v{ONE}, 1')
    e.I('s_waitcnt vmcnt(0)')
    TS(e, 0)
    wait_flags(e, 3, 's38', 1, T0, 5, sleep=opt.esleep)
    TS(e, 1)
    order = (0, 6, 1, 7, 2, 8, 3, 9, 4, 10, 5, 11)
    for q in order: e.I(f'buffer_load_dwordx4 {vr(VXF+4*q)}, v2, {WS}, {("s46", "s56", "s64")[q//4]} offen offset:{(q%4)*1024} sc1')
    for n_, q in enumerate(order):
        qt, kk = q // 6, q % 6
        e.I(f's_waitcnt vmcnt({11 - n_})')
        for ct in range(4):
            d = vr(DW + (qt*4+ct)*4)
            e.I(f'{MFMA} {d}, {ar((ct*6+kk)*4)}, {vr(VXF+4*q)}, {0 if kk == 0 else d}')
    TS(e, 2)
    for k in range(8): e.I(f'ds_write_b128 v6, {vr(DW+4*k)} offset:{k*4096}')
    e.I('s_waitcnt lgkmcnt(0)')
    e.I('s_barrier')
    for qt in range(2):
        for hh in range(4): e.I(f'ds_read_b128 {vr(KXF+(qt*4+hh)*4)}, v7 offset:{qt*16384 + hh*1024}')
    for qt in range(2):
        r = KXF + qt*16
        e.I(f's_waitcnt lgkmcnt({4 - 4*qt})')
        for k in range(4):
            e.I(f'v_add_f32 v{r+k}, v{r+k}, v{r+4+k}')
            e.I(f'v_add_f32 v{r+8+k}, v{r+8+k}, v{r+12+k}')
        for k in range(4): e.I(f'v_add_f32 v{r+k}, v{r+k}, v{r+8+k}')
        e.I(f'v_cvt_pk_bf16_f32 v{r+4}, v{r}, v{r+1}')
        e.I(f'v_cvt_pk_bf16_f32 v{r+5}, v{r+2}, v{r+3}')
        e.I(f'buffer_store_dwordx2 {vr(r+4,2)}, v2, {WS}, {("s40", "s41")[qt]} offen sc1')
    TS(e, 3)
    e.I('s_and_b32 s38, s25, 7')
    e.I(f's_cmp_eq_u32 s38, {opt.hwv}')
    e.I('s_cselect_b64 exec, 1, 0')
    e.I(f'buffer_store_dword v{ONE}, v3, {WS}, s43 offen sc1')
    e.I('s_mov_b64 exec, -1')
    TSflush(e, '63', 244, 245)
    e.I('s_endpgm')

def role_xw(e):
    OF = 16
    D = 112
    T0 = 160; ONE = 252
    e.I('s_sub_u32 s24, s21, 22')
    srd(e, 8, 66, 6144 * 1280)
    e.I(f's_mul_i32 s28, s20, {768*1280}')
    e.I('s_lshl_b32 s29, s24, 8')
    e.I('s_add_u32 s28, s28, s29')
    e.I('s_add_u32 s29, s28, 128')
    e.I(f'v_lshlrev_b32 v{ONE+1}, 2, v1')
    e.I('s_lshl_b32 s38, s20, 8')
    e.I(f's_add_u32 s38, s38, {FLGQ}')
    if opt.xlate & 1: wait_first(e, T0)
    def ring_touch():
        jobs = []
        for sl in range(RD):
            if sl >= 2: jobs += [(b_ + sl * SEG_QX, 12288, 96) for b_ in (KX, VX, QX)] + [(XP + sl * SEG_XP, 6144, 48), (VM + sl * SEG_VM, 3072, 24)]
            if sl >= 2: jobs += [(OX + (sl - 2) * SEG_QX, 12288, 96)]
        jobs += [(OX + sl * SEG_QX, 12288, 96) for sl in (6, 7)]
        e.I('s_lshl_b32 s40, s20, 2')
        e.I('s_add_u32 s40, s40, s22')
        touch_jobs(e, jobs, 's24', 5, 's40', 16)
    if opt.xlate & 1: ring_touch()
    pass
    load_weights(e, [('s[8:11]', 's28', 0, 768), ('s[8:11]', 's29', 96, 768)], 1280, 256, True, 3, 4)
    e.I(f'v_lshlrev_b32 v{ONE+1}, 2, v1')
    e.I('s_lshl_b32 s38, s20, 2')
    e.I('s_add_u32 s38, s38, s22')
    e.I('s_lshl_b32 s39, s38, 2')
    e.I('v_lshlrev_b32 v3, 7, v1')
    e.I('v_add_u32 v3, s39, v3')
    e.I(f'v_mov_b32 v{ONE}, 1')
    e.I('s_mul_i32 s62, s22, 12288')
    e.I('s_mul_i32 s63, s38, 12288')
    e.I(f's_add_u32 s63, s63, {OX}')
    e.I('s_mul_i32 s64, s20, 40960')
    e.I('s_lshl_b32 s65, s24, 2')
    e.I('s_add_u32 s65, s65, s22')
    e.I('s_lshl_b32 s65, s65, 10')
    e.I('s_add_u32 s64, s64, s65')
    e.I(f's_add_u32 s64, s64, {PX}')
    e.I('s_lshl_b32 s66, s24, 8')
    e.I(f's_add_u32 s66, s66, {FLGPX}')
    def pxflag():
        e.I('s_mov_b64 exec, 3')
        e.I(f'buffer_store_dword v{ONE}, v3, {WS}, s54 offen sc1')
        e.I('s_mov_b64 exec, s[60:61]')
        e.I(f'buffer_store_dword v{ONE}, v6, {WS}, s53 offen sc1')
        e.I('s_mov_b64 exec, -1')
    if not opt.xlate & 1: ring_touch()
    wait_reg(e, T0)
    top, nof, late, nxt_, last = e.lab('Lxt'), e.lab('Lxn'), e.lab('Lxl'), e.lab('Lxx'), e.lab('Lxe')
    e.I('s_lshl_b32 s67, s20, 6')
    e.I('s_lshl_b32 s38, s22, 2')
    e.I('s_add_u32 s67, s67, s38')
    e.I(f's_add_u32 s67, s67, {FLGOX}')
    e.I('s_lshl_b32 s38, s20, 5')
    e.I('s_add_u32 s38, s38, s24')
    e.I('s_lshl_b32 s38, s38, 2')
    e.I('v_mov_b32 v6, s38')
    e.I('v_mov_b32 v4, 0')
    e.I('v_mov_b32 v5, v2')
    def dma(sn):
        e.I(f's_and_b32 s55, {sn}, {RD-1}')
        e.I(f's_mul_i32 s55, s55, {SEG_QX}')
        e.I('s_add_u32 s55, s55, s63')
        e.I(f's_and_b32 s56, {sn}, 1')
        e.I('s_mul_i32 s56, s56, 49152')
        e.I('s_add_u32 s56, s56, s62')
        for m in range(12):
            e.I(f's_add_u32 m0, s56, {m*1024}')
            e.I(f'buffer_load_dwordx4 v2, {WS}, s55 offen sc1 lds')
            if m < 11: e.I('s_add_u32 s55, s55, 1024')
    e.I('s_mov_b32 s30, 0')
    wait_flags(e, 4, 's67', 1, T0, 5, sleep=opt.xsleep)
    dma('s30')
    e.L(top)
    TS(e, 0)
    e.I('s_add_u32 s58, s30, 1')
    e.I('s_min_u32 s57, s58, 62')
    e.I('s_lshl_b32 s57, s57, 9')
    e.I('s_add_u32 s57, s57, s67')
    e.I('s_waitcnt vmcnt(0)')
    e.I(f'buffer_load_dword v{T0}, v4, {WS}, s57 offen sc1')

    e.I('s_cmp_eq_u32 s30, 0')
    e.I(f's_cbranch_scc1 {nof}')
    e.I('s_cmp_lg_u32 s59, 0')
    e.I(f's_cbranch_scc1 {nof}')
    pxflag()
    nof2 = e.lab('Lxm')
    e.I(f's_branch {nof2}')
    e.L(nof)
    for _ in range(2): e.I(f'buffer_load_dword v{T0+1}, v4, {WS}, s57 offen sc1')
    e.L(nof2)
    e.I('s_barrier')
    TS(e, 1)
    e.I(f's_mul_i32 s50, s30, {SEG_PX}')
    e.I('s_add_u32 s50, s50, s64')
    e.I('s_add_u32 s51, s50, 20480')
    e.I('s_mul_i32 s54, s30, 1280')
    e.I('s_add_u32 s54, s54, s66')
    e.I('s_and_b32 s53, s30, 3')
    e.I('s_lshl_b32 s53, s53, 10')
    e.I(f's_add_u32 s53, s53, {HINT}')
    e.I(f's_cmp_ge_u32 s30, {opt.cwarm}')
    e.I('s_cselect_b32 s60, 1, 0')
    e.I('s_cmp_eq_u32 s22, 0')
    e.I('s_cselect_b32 s60, s60, 0')
    e.I('s_mov_b32 s61, 0')
    TS(e, 2)
    PF = 6
    def rd(kk):
        hl, p = kk // 6, kk % 6
        for qt in range(2):
            e.I(f'ds_read_b128 {vr(OF + ((2*kk+qt) % 24)*4)}, v5 offset:{hl*12288 + (qt*6+p)*1024}')
    for kk in range(PF): rd(kk)
    for kk in range(24):
        nxt = min(24, kk + PF) - (kk + 1)
        e.I(f's_waitcnt lgkmcnt({2*nxt})')
        for qt in range(2):
            for b in range(2):
                d = vr(D + 4*(qt*2+b))
                e.I(f'{MFMA} {d}, {ar(96*b+4*kk)}, {vr(OF + ((2*kk+qt) % 24)*4)}, {0 if kk == 0 else d}')
        if kk + PF < 24: rd(kk + PF)
        if kk == 4:
            e.I('s_waitcnt vmcnt(2)')
            e.I(f'v_readfirstlane_b32 s59, v{T0}')
            e.I('s_cmp_eq_u32 s30, 62')
            e.I('s_cselect_b32 s59, 0, s59')
            e.I('s_cmp_eq_u32 s59, 0')
            e.I(f's_cbranch_scc1 {late}')
            dma('s58')
            e.L(late)
        if kk == 16: e.I(f'buffer_load_dword v{T0}, v4, {WS}, s57 offen sc1')
    sc = e.lab('Lxs')
    e.I('s_cmp_lg_u32 s59, 0')
    e.I(f's_cbranch_scc1 {sc}')
    e.I('s_cmp_eq_u32 s30, 62')
    e.I(f's_cbranch_scc1 {sc}')
    e.I('s_waitcnt vmcnt(0)')
    e.I(f'v_readfirstlane_b32 s59, v{T0}')
    e.I('s_cmp_eq_u32 s59, 0')
    e.I(f's_cbranch_scc1 {sc}')
    dma('s58')
    e.L(sc)
    for qt, so in enumerate(('s50', 's51')):
        for k in range(4): e.I(f'v_cvt_pk_bf16_f32 v{D+16+4*qt+k}, v{D+8*qt+2*k}, v{D+8*qt+2*k+1}')
        e.I(f'buffer_store_dwordx4 {vr(D+16+4*qt)}, v2, {WS}, {so} offen sc1')
    e.I('v_xor_b32 v5, 49152, v5')
    TS(e, 3)
    TSflush(e, 's30')
    e.I('s_cmp_eq_u32 s30, 62')
    e.I(f's_cbranch_scc1 {last}')
    e.I('s_cmp_lg_u32 s59, 0')
    e.I('s_mov_b32 s59, 0')
    e.I(f's_cbranch_scc1 {nxt_}')
    e.I(f'buffer_load_dword v{T0}, v4, {WS}, s57 offen sc1')
    e.I('s_waitcnt vmcnt(0)')
    e.I(f'v_readfirstlane_b32 s38, v{T0}')
    e.I('s_cmp_lg_u32 s38, 0')
    sl2 = e.lab('Lxq')
    e.I(f's_cbranch_scc1 {sl2}')
    pxflag()
    e.I('s_mov_b32 s59, 1')
    wait_flags(e, 4, 's57', 1, T0, 5, sleep=opt.xsleep)
    e.L(sl2)
    dma('s58')
    e.L(nxt_)
    e.I('s_mov_b32 s30, s58')
    e.I(f's_branch {top}')
    e.L(last)
    e.I('s_waitcnt vmcnt(0)')
    pxflag()
    if opt.wb & 1:
        e.I('s_cmp_lg_u32 s21, 22'); e.I('s_cbranch_scc1 L_end'); e.I('s_cmp_lg_u32 s22, 0'); e.I('s_cbranch_scc1 L_end')
        e.I('buffer_wbl2 sc1'); e.I('s_waitcnt vmcnt(0)')
    e.I('s_endpgm')

def role_att(e):
    fl = ''
    KF, QF, VF = 0, 48, 96
    XPF = 16
    SA, SB, PA_, PB_ = 40, 48, 60, 64
    DO, OB = 72, 136
    T0 = 226
    C0, C1 = 232, 236
    ONE = 252
    e.I('s_sub_u32 s25, s21, 27')
    e.I('s_lshl_b32 s26, s20, 2')
    e.I('s_add_u32 s26, s26, s22')
    e.I(f's_mov_b32 s52, {SC_L2E:#x}'); e.I(f's_mov_b32 s53, {SC_L2E | 0x80000000:#x}')
    e.I(f'v_lshlrev_b32 v{ONE+1}, 2, v1')
    e.I('s_lshl_b32 s38, s22, 2')
    e.I(f'v_mov_b32 v{ONE+2}, s38')
    e.I(f'v_mov_b32 v{ONE}, 1')
    lane_ig(e, 14, 15)
    e.I(f'v_mov_b32 v3, {NEG_BIG:#x}')
    e.I('v_cmp_gt_u32 vcc, 32, v1')
    e.I(f'v_cndmask_b32 v{C0}, 0, v3, vcc')
    for k in range(1, 4): e.I(f'v_mov_b32 v{C0+k}, v{C0}')
    e.I('v_lshlrev_b32 v5, 2, v15')
    for r in range(4):
        e.I(f'v_add_u32 v6, {r}, v5')
        e.I('v_cmp_gt_u32 vcc, v6, v14')
        e.I(f'v_cndmask_b32 v{C1+r}, 0, v3, vcc')
    e.I('s_mul_i32 s58, s26, 6144')
    e.I('s_lshl_b32 s59, s22, 14')
    e.I('v_and_b32 v4, 3, v1')
    e.I('v_lshlrev_b32 v4, 8, v4')
    e.I('v_bfe_u32 v5, v1, 2, 3')
    e.I('v_lshl_add_u32 v5, v5, 4, v4')
    e.I('v_add_u32 v5, s59, v5')
    e.I('v_lshrrev_b32 v6, 2, v1')
    e.I('v_lshl_add_u32 v4, v6, 4, v4')
    e.I('v_add_u32 v4, s59, v4')
    wait_reg(e, T0)
    e.I('v_lshrrev_b32 v12, 2, v1')
    e.I('v_lshlrev_b32 v12, 8, v12')
    e.I('v_and_b32 v13, 3, v1')
    e.I('v_lshl_add_u32 v12, v13, 2, v12')
    e.I('s_lshl_b32 s38, s20, 4')
    e.I('v_add_u32 v12, s38, v12')
    e.I('s_lshl_b32 s60, s26, 6')
    e.I(f's_add_u32 s60, s60, {FLGQ}')
    e.I('s_cmp_lg_u32 s23, 0')
    e.I('s_cbranch_scc1 L_atts')
    for slow in (False, True):
        fl = ' sc1' if slow else ''
        if slow: e.L('L_atts')
        top = e.lab('Lat')
        e.I('s_mov_b32 s30, s25')
        e.L(top)
        TS(e, 0)
        e.I('s_max_u32 s51, s30, 2')
        e.I('s_lshl_b32 s51, s51, 11')
        e.I('s_add_u32 s51, s51, s60')
        e.I(f's_and_b32 s42, s30, {RD-1}')
        e.I(f's_mul_i32 s40, s42, {SEG_QX}')
        e.I('s_lshl_b32 s41, s58, 1')
        e.I('s_add_u32 s40, s40, s41')
        e.I(f's_mul_i32 s41, s42, {SEG_XP}')
        e.I('s_add_u32 s41, s41, s58')
        nbp = e.lab('Lab')
        e.I(f's_cmp_lt_u32 s30, {RD}')
        e.I(f's_cbranch_scc1 {nbp}')
        e.I(f's_sub_u32 s50, s30, {RD}')
        e.I('s_mul_i32 s50, s50, 1280')
        e.I(f's_add_u32 s50, s50, {FLGPX}')
        wait_flags(e, 12, 's50', 0xfffff, T0, 14, sleep=16)
        e.L(nbp)
        wait_flags(e, ONE + 1, 's51', 0xfff, T0, 6, sleep=opt.asleep)
        def loads(dst, n, sbase, add):
            e.I(f's_add_u32 s48, {sbase}, {add}')
            for q in range(n):
                if q and q % 4 == 0: e.I('s_add_u32 s48, s48, 4096')
                e.I(f'buffer_load_dwordx4 {dst(q)}, v2, {WS}, s48 offen offset:{(q%4)*1024} sc1')
        e.I(f's_add_u32 s48, s40, {VX}')
        for q in range(12):
            e.I(f's_add_u32 m0, s59, {q*1024}')
            e.I(f'buffer_load_dwordx4 v2, {WS}, s48 offen sc1 lds')
            e.I('s_add_u32 s48, s48, 1024')
        loads(lambda q: ar(KF + 4*q), 12, 's40', KX)
        loads(lambda q: ar(QF + 4*q), 12, 's40', QX)
        e.I('s_add_u32 s51, s30, 2')
        e.I('s_lshl_b32 s51, s51, 11')
        e.I('s_add_u32 s51, s51, s60')
        e.I('s_waitcnt vmcnt(24)')
        for T in range(12):
            for rt in range(2):
                e.I(f'ds_read_b64_tr_b16 {ar(VF+6*T+2+2*rt,2)}, v4 offset:{rt*6144 + (T>>1)*1024 + (T&1)*8}')
        e.I('s_waitcnt vmcnt(0)')
        for p in range(6):
            e.I(f'{MFMA} {vr(SA+4)}, {ar(KF+4*p)}, {ar(QF+4*p)}, {vr(C1) if p == 0 else vr(SA+4)}')
            e.I(f'{MFMA} {vr(SB+4)}, {ar(KF+4*p)}, {ar(QF+24+4*p)}, {0 if p == 0 else vr(SB+4)}')
            e.I(f'{MFMA} {vr(SB+8)}, {ar(KF+24+4*p)}, {ar(QF+24+4*p)}, {vr(C1) if p == 0 else vr(SB+8)}')
        wait_flags(e, ONE + 1, 's51', 0xfff, T0, 6, sleep=opt.asleep)
        TS(e, 1)
        loads(lambda q: vr(XPF + 4*q), 6, 's41', XP)
        e.I('s_lshr_b32 s42, s41, 1')
        e.I(f's_add_u32 s48, s42, {VM}')
        for q in range(3):
            e.I(f's_add_u32 m0, s59, {12288 + q*1024}')
            e.I(f'buffer_load_dwordx4 v2, {WS}, s48 offen sc1 lds')
            e.I('s_add_u32 s48, s48, 1024')
        for p in range(6):
            e.I(f's_waitcnt vmcnt({8-p})')
            e.I(f'{MFMA} {vr(SA)}, {vr(XPF+4*p)}, {ar(QF+4*p)}, {vr(C0) if p == 0 else vr(SA)}')
            e.I(f'{MFMA} {vr(SB)}, {vr(XPF+4*p)}, {ar(QF+24+4*p)}, {vr(C0) if p == 0 else vr(SB)}')
        TS(e, 2)
        e.I('s_waitcnt vmcnt(0)')
        for T in range(12):
            kk = T >> 1
            e.I(f'ds_read_b64_tr_b16 {ar(VF+6*T,2)}, v5 offset:{12288 + (kk % 3)*1024 + (kk // 3)*128 + (T&1)*8}')
        for x_ in softmax_list(SA, 8, PA_, T0): e.I(x_)
        e.I(f's_add_u32 s48, s40, {OX}')
        e.I('s_add_u32 s49, s48, 4096')
        e.I('s_add_u32 s50, s48, 8192')
        e.I('s_waitcnt lgkmcnt(0)')
        def fin(qt, p):
            d = DO + 8 * (p + (2 if qt else 0) * 3) % 64; o = OB + 4 * (qt*6 + p); q = qt*6 + p
            return [f'v_cvt_pk_bf16_f32 v{o+k}, v{d+2*k}, v{d+2*k+1}' for k in range(4)] + \
                   [f'buffer_store_dwordx4 {vr(o)}, v2, {WS}, {("s48", "s49", "s50")[q//4]} offen offset:{(q%4)*1024}{fl}']
        smb = softmax_list(SB, 12, PB_, T0)
        for T in range(12):
            e.I(f'{MFMA} {vr(DO+4*T)}, {ar(VF+6*T)}, {vr(PA_)}, 0')
            for _ in range(3): e.I(smb.pop(0))
        outs = [x_ for p in range(6) for x_ in fin(0, p)]
        while smb:
            e.I(smb.pop(0)); e.I(smb.pop(0)) if smb else None
            if outs: e.I(outs.pop(0))
        for x_ in outs: e.I(x_)
        for p in range(6):
            d = DO + 8 * (p + 6) % 64
            for t in range(2): e.I(f'{MFMA16} {vr(d+4*t)}, {ar(VF+6*(2*p+t),2)}, {vr(PB_,2)}, 0')
            for t in range(2): e.I(f'{MFMA} {vr(d+4*t)}, {ar(VF+6*(2*p+t)+2)}, {vr(PB_+2)}, {vr(d+4*t)}')
            if p > 1:
                for x_ in fin(1, p - 2): e.I(x_)
        for p in (4, 5):
            for x_ in fin(1, p): e.I(x_)
        e.I('s_lshl_b32 s50, s30, 3')
        e.I('s_add_u32 s50, s50, s20')
        e.I('s_lshl_b32 s50, s50, 6')
        e.I(f's_add_u32 s50, s50, {FLGOX}')
        e.I('s_waitcnt vmcnt(0)')
        set_flag(e, ONE + 2, 's50', ONE, fl)
        TS(e, 3)
        TSflush(e, 's30', 230, 231)
        e.I('s_add_u32 s30, s30, 2')
        e.I('s_cmp_lt_u32 s30, 64')
        e.I(f's_cbranch_scc1 {top}')
        e.I('s_endpgm')

F_LX, F_LH = 0, 98304
def role_ffn(e):
    ACC2 = 0
    ACC1 = 16
    BF = 48
    HP = 80
    WR = 96
    NW = 40
    e.I('s_sub_u32 s26, s21, 29')
    e.I('s_mul_i32 s25, s20, 3')
    e.I('s_add_u32 s26, s26, s25')
    e.I('s_mov_b32 s24, s26')
    srd(e, 8, 56, 640 * 3072); srd(e, 12, 58, 1536 * 1280)
    if opt.xlate & 4: wait_first(e, 16, opt.fwait)
    transpose_w(e, 's26')
    e.I('s_waitcnt vmcnt(0)')
    e.I('s_barrier')
    count_up(e, 3, D_TR)
    wait_count(e, 3, D_TR, 24, 16)
    if opt.urg: wait_count(e, 3, D_W, 80, 16)
    wait_reg(e, 16, 32)
    e.L('L_ffn_task')
    e.I('s_lshl_b32 s38, s24, 2')
    e.I('s_add_u32 s38, s38, s22')
    e.I('s_mul_i32 s39, s38, 20480')
    e.I(f's_add_u32 s39, s39, {XN}')
    e.I('s_mul_i32 s40, s22, 20480')
    for m in range(20):
        e.I(f's_add_u32 m0, s40, {m*1024}')
        e.I(f'buffer_load_dwordx4 v2, {WS}, s39 offen lds')
        e.I('s_add_u32 s39, s39, 1024')
    for k in range(160): e.I(f'v_accvgpr_write_b32 a{k}, 0')
    e.I('s_mul_i32 s41, s22, 40960')
    e.I(f's_add_u32 s41, s41, {W1F}')
    e.I(f's_mul_i32 s42, s22, {10*48*1024}')
    e.I(f's_add_u32 s42, s42, {W2F}')
    e.I('v_add_u32 v3, 20480, v2')
    for u in range(10):
        e.I(f's_mov_b32 s54, {u*48*1024}')
        e.I(f'v_add_u32 v{4+u}, s54, v2')
    e.I(f'v_add_u32 v14, {F_LH}, v2')
    e.I('s_lshl_b32 s38, s22, 12')
    e.I('v_add_u32 v15, s38, v14')
    def wload(idx, adv):
        dst = vr(WR + (idx % NW) * 4)
        if idx < 40:
            kk, u = idx // 2, idx % 2
            e.I(f's_add_u32 s45, {adv[0]}, {(kk//4)*4096}')
            e.I(f'buffer_load_dwordx4 {dst}, v{2+u}, {WS}, s45 offen offset:{(kk%4)*1024}{" nt" if opt.ffnnt else ""}')
        else:
            pp, u = (idx - 40) // 10, (idx - 40) % 10
            e.I(f'buffer_load_dwordx4 {dst}, v{4+u}, {WS}, {adv[1]} offen offset:{pp*1024}{" nt" if opt.ffnnt else ""}')
    for idx in range(NW - 2): wload(idx, ('s41', 's42'))
    e.I(f's_waitcnt vmcnt({NW-2})')
    e.I('s_barrier')
    top = e.lab('Lft')
    TS(e, 0)
    e.I('s_mov_b32 s30, 0')
    e.L(top)
    e.I('s_cmp_lt_u32 s30, 11')
    e.I('s_cselect_b32 s46, 163840, 0')
    e.I('s_cselect_b32 s47, 4096, 0')
    e.I('s_add_u32 s43, s41, s46')
    e.I('s_add_u32 s44, s42, s47')
    D = NW - 2
    def pref(idx):
        j = idx + D
        if j < 80: wload(j, ('s41', 's42'))
        else: wload(j - 80, ('s43', 's44'))
    def rdx(kk):
        for rt in range(4):
            e.I(f'ds_read_b128 {vr(BF + ((kk%2)*4+rt)*4)}, v{2 if rt < 3 else 3} offset:{(rt if rt < 3 else 2)*20480 + kk*1024}')
    rdx(0)
    for kk in range(20):
        if kk + 1 < 20: rdx(kk + 1)
        e.I(f's_waitcnt vmcnt({D-2}) lgkmcnt({4 if kk+1 < 20 else 0})')
        for u in range(2):
            idx = 2 * kk + u
            for rt in range(4):
                d = vr(ACC1 + (u*4+rt)*4)
                e.I(f'{MFMA} {d}, {vr(WR+(idx%NW)*4)}, {vr(BF+((kk%2)*4+rt)*4)}, {0 if kk == 0 else d}')
        pref(2 * kk); pref(2 * kk + 1)
    for rt in range(4):
        for u in range(2):
            d = ACC1 + (u*4+rt)*4
            for k in range(4): e.I(f'v_max_f32 v{d+k}, 0, v{d+k}')
            e.I(f'v_cvt_pk_bf16_f32 v{HP+rt*4+2*u}, v{d}, v{d+1}')
            e.I(f'v_cvt_pk_bf16_f32 v{HP+rt*4+2*u+1}, v{d+2}, v{d+3}')
        e.I(f'ds_write_b128 v15, {vr(HP+rt*4)} offset:{rt*1024}')
    e.I('s_waitcnt lgkmcnt(0)')
    e.I('s_barrier')
    def rdh(pp):
        for rt in range(4):
            e.I(f'ds_read_b128 {vr(BF + ((pp%2)*4+rt)*4)}, v14 offset:{pp*4096 + rt*1024}')
    rdh(0)
    for pp in range(4):
        if pp + 1 < 4: rdh(pp + 1)
        for u in range(10):
            idx = 40 + pp * 10 + u
            w = f's_waitcnt vmcnt({D-1})'
            if u == 0: w += f' lgkmcnt({4 if pp+1 < 4 else 0})'
            e.I(w)
            for rt in range(4):
                d = ar(ACC2 + (u*4+rt)*4)
                e.I(f'{MFMA} {d}, {vr(WR+(idx%NW)*4)}, {vr(BF+((pp%2)*4+rt)*4)}, {d}')
            pref(idx)
    e.I('v_xor_b32 v14, 16384, v14')
    e.I('v_xor_b32 v15, 16384, v15')
    e.I('s_mov_b32 s41, s43')
    e.I('s_mov_b32 s42, s44')
    e.I('s_add_u32 s30, s30, 1')
    e.I('s_cmp_lt_u32 s30, 12')
    e.I(f's_cbranch_scc1 {top}')
    e.I('s_waitcnt vmcnt(0)')
    TS(e, 1)
    e.I('v_lshlrev_b32 v3, 3, v1')
    e.I(f's_mul_i32 s38, s24, {4*40*512}')
    e.I(f's_mul_i32 s39, s22, {10*512}')
    e.I('s_add_u32 s38, s38, s39')
    e.I(f's_add_u32 s38, s38, {G_}')
    e.I(f's_mov_b32 s52, {f2u(-1.4426950408889634):#x}')
    for rt in range(4):
        e.I(f's_add_u32 s39, s38, {rt*40*512}')
        e.I('s_add_u32 s40, s39, 4096')
        for u in range(10):
            t = 16 + ((rt*10+u) % 4) * 16
            a0 = ACC2 + (u*4+rt)*4
            for k in range(4): e.I(f'v_accvgpr_read_b32 v{t+k}, a{a0+k}')
            e.I(f'v_cvt_pk_bf16_f32 v{t+4}, v{t}, v{t+1}')
            e.I(f'v_cvt_pk_bf16_f32 v{t+5}, v{t+2}, v{t+3}')
            e.I(f'v_lshlrev_b32 v{t}, 16, v{t+4}')
            e.I(f'v_and_b32 v{t+1}, 0xffff0000, v{t+4}')
            e.I(f'v_lshlrev_b32 v{t+2}, 16, v{t+5}')
            e.I(f'v_and_b32 v{t+3}, 0xffff0000, v{t+5}')
            for k in range(4): e.I(f'v_mul_f32 v{t+4+k}, s52, v{t+k}')
            for k in range(4): e.I(f'v_exp_f32 v{t+4+k}, v{t+4+k}')
            for k in range(4): e.I(f'v_add_f32 v{t+4+k}, 1.0, v{t+4+k}')
            for k in range(4): e.I(f'v_rcp_f32 v{t+4+k}, v{t+4+k}')
            for k in range(4): e.I(f'v_mul_f32 v{t+k}, v{t+k}, v{t+4+k}')
            e.I(f'v_cvt_pk_bf16_f32 v{t+8}, v{t}, v{t+1}')
            e.I(f'v_cvt_pk_bf16_f32 v{t+9}, v{t+2}, v{t+3}')
            e.I(f'buffer_store_dwordx2 {vr(t+8,2)}, v3, {WS}, {"s39" if u < 8 else "s40"} offen offset:{(u%8)*512} sc1')
    e.I('s_waitcnt vmcnt(0)')
    TS(e, 2)
    if opt.ts: e.I('s_lshr_b32 s50, s24, 3'); e.I('s_add_u32 s50, s50, 64')
    TSflush(e, 's50')
    e.I('s_barrier')
    e.I('s_cmp_lg_u32 s22, 0')
    e.I('s_cbranch_scc1 L_ffn_nf')
    e.I('v_mov_b32 v4, 1')
    e.I('s_lshl_b32 s38, s24, 2')
    e.I('v_mov_b32 v5, s38')
    e.I(f's_mov_b32 s39, {FLGG}')
    set_flag(e, 5, 's39', 4, ' sc1')
    e.I('s_waitcnt vmcnt(0)')
    e.L('L_ffn_nf')
    e.I('s_cmp_ge_u32 s26, 8')
    e.I(f's_cbranch_scc1 {"L_end" if opt.nocmb else "L_cmb"}')
    e.I('s_add_u32 s24, s24, 24')
    e.I('s_cmp_lt_u32 s24, 32')
    e.I('s_cbranch_scc1 L_ffn_task')
    e.I('s_endpgm')

def role_cmb(e):
    PXR = 16
    GR = 144
    XR_ = 152
    T0 = 160
    srd(e, 8, 68, 2048 * 1280)
    srd(e, 12, 70, 2048 * 1280)
    e.I('s_sub_u32 s24, s26, 8')
    e.I('s_lshl_b32 s24, s24, 2')
    e.I('s_add_u32 s30, s24, s22')
    e.I('v_lshlrev_b32 v3, 2, v1')
    e.I('v_lshlrev_b32 v4, 3, v1')
    e.I('v_mov_b32 v6, 0')
    lane_ig(e, 14, 15)
    e.I('v_mul_u32_u24 v5, 1280, v14')
    e.I('v_lshl_add_u32 v5, v15, 3, v5')
    e.I('s_mov_b32 s49, 0')
    e.I('s_mov_b32 s52, 0x3f80'); e.I('s_mov_b32 s53, 0x3f800000')
    e.I('v_lshrrev_b32 v7, 4, v1')
    e.I('v_mul_u32_u24 v7, 40960, v7')
    e.I('v_lshl_add_u32 v7, v14, 7, v7')
    e.I(f'v_add_u32 v8, {4*40960}, v7')
    if opt.t63:
        e.I('s_add_u32 s38, s30, 1216')
        e.I('s_mul_i32 s39, s38, 3277')
        e.I('s_lshr_b32 s39, s39, 16')
        e.I('s_mul_i32 s40, s39, 20')
        e.I('s_sub_u32 s40, s38, s40')
        e.I(f's_mul_i32 s43, s39, {SEG_PX}')
        e.I('s_lshl_b32 s40, s40, 11')
        e.I('s_add_u32 s43, s43, s40')
        e.I(f's_add_u32 s43, s43, {PX}')
        for k in range(2): e.I(f'buffer_load_dword v{T0}, v{7+k}, {WS}, s43 offen sc1')
    top = e.lab('Lct')
    e.L(top)
    TS(e, 0)
    e.I('s_mul_i32 s38, s30, 3277')
    e.I('s_lshr_b32 s38, s38, 16')
    e.I('s_mul_i32 s39, s38, 20')
    e.I('s_sub_u32 s39, s30, s39')
    e.I('s_cmp_ge_u32 s39, 10')
    e.I('s_cselect_b32 s40, 1, 0')
    e.I('s_mul_i32 s41, s40, 10')
    e.I('s_sub_u32 s41, s39, s41')
    gok = e.lab('Lcg')
    e.I('s_cmp_lg_u32 s49, 0')
    e.I(f's_cbranch_scc1 {gok}')
    e.I(f's_mov_b32 s42, {FLGG}')
    e.I('s_mov_b32 exec_hi, 0')
    e.I(f'buffer_load_dword v{T0}, v3, {WS}, s42 offen sc1')
    e.I('s_waitcnt vmcnt(0)')
    e.I(f'v_cmp_eq_u32 vcc, 0, v{T0}')
    e.I('s_mov_b64 exec, -1')
    e.I('s_cmp_eq_u32 vcc_lo, 0')
    e.I('s_cselect_b32 s49, 1, 0')
    e.I(f's_cbranch_scc1 {gok}')
    e.I('s_lshr_b32 s42, s38, 1')
    e.I('s_lshl_b32 s42, s42, 2')
    e.I(f's_add_u32 s42, s42, {FLGG}')
    wait_flags(e, 6, 's42', 1, T0, 7, sleep=32)
    e.L(gok)
    e.I(f's_mul_i32 s43, s38, {SEG_PX}')
    e.I('s_mul_i32 s44, s40, 20480')
    e.I('s_add_u32 s43, s43, s44')
    e.I('s_lshl_b32 s44, s41, 11')
    e.I('s_add_u32 s43, s43, s44')
    e.I(f's_add_u32 s43, s43, {PX}')
    e.I('s_lshl_b32 s45, s38, 1')
    e.I('s_add_u32 s45, s45, s40')
    e.I('s_mul_i32 s46, s45, 20480')
    e.I('s_lshr_b32 s47, s41, 1')
    e.I('s_lshl_b32 s47, s47, 2')
    e.I('s_and_b32 s48, s41, 1')
    e.I('s_add_u32 s44, s47, s48')
    e.I('s_lshl_b32 s47, s44, 10')
    e.I('s_add_u32 s47, s47, s46')
    e.I(f's_add_u32 s47, s47, {G_}')
    e.I('s_lshl_b32 s48, s44, 6')
    e.I('s_add_u32 s48, s48, s46')
    TO = (0, 4, 1, 5)
    for t in range(4):
        e.I(f'buffer_load_dwordx2 {vr(GR+2*t,2)}, v4, {WS}, s47 offen offset:{TO[t]*512} sc1')
        e.I(f'buffer_load_dwordx2 {vr(XR_+2*t,2)}, v5, s[8:11], s48 offen offset:{TO[t]*32}')
    c1, c2 = e.lab('Lc1'), e.lab('Lc2')
    e.I('s_mul_i32 s50, s38, 10')
    e.I('s_and_b32 s44, s41, 14')
    e.I('s_add_u32 s50, s50, s44')
    e.I('s_lshl_b32 s50, s50, 7')
    e.I(f's_add_u32 s50, s50, {FLGPX}')
    e.I(f's_cmp_ge_u32 s38, {opt.cwarm}')
    e.I(f's_cbranch_scc1 {c1}')
    e.I(f's_add_u32 s42, s38, {opt.clag}')
    e.I('s_lshl_b32 s42, s42, 3')
    e.I('s_add_u32 s42, s42, s20')
    e.I('s_lshl_b32 s42, s42, 6')
    e.I(f's_add_u32 s42, s42, {FLGOX}')
    wait_flags(e, 6, 's42', 1, T0, 9, sleep=opt.lsleep)
    wait_flags(e, 3, 's50', -1, T0, 8, sleep=opt.csleep)
    e.I(f's_branch {c2}')
    e.L(c1)
    e.I('s_and_b32 s42, s38, 3')
    e.I('s_lshl_b32 s42, s42, 3')
    e.I('s_add_u32 s42, s42, s20')
    e.I('s_lshl_b32 s42, s42, 7')
    e.I('s_lshl_b32 s44, s44, 1')
    e.I('s_add_u32 s42, s42, s44')
    e.I(f's_add_u32 s42, s42, {HINT}')
    e.I('s_mul_i32 s51, s20, 5')
    e.I('s_lshr_b32 s44, s41, 1')
    e.I('s_add_u32 s51, s51, s44')
    e.I('s_lshl_b32 s51, s51, 7')
    e.I(f's_add_u32 s51, s51, {HINT2}')
    e.I('s_cmp_eq_u32 s38, 63')
    e.I('s_cselect_b32 s42, s51, s42')
    wait_flags(e, 6, 's42', 1, T0, 9, sleep=2)
    e.I('s_cmp_eq_u32 s38, 63')
    e.I(f's_cbranch_scc1 {c2}')
    wait_flags(e, 3, 's50', -1, T0, 8, sleep=opt.c2sleep)
    e.L(c2)
    TS(e, 1)
    RAW = PXR + 32
    def ld(x):
        for t in range(2):
            if not opt.cdiag & 4: e.I(f'buffer_load_dwordx4 {vr(RAW+(x*2+t)*4)}, v2, {WS}, s43 offen offset:{t*1024} sc1')
        if x < 7: e.I('s_add_u32 s43, s43, 40960')
    def body(depth):
        for x in range(min(depth, 8)): ld(x)
        for x in range(8):
            left = min(depth - 1, 7 - x)
            e.I(f's_waitcnt vmcnt({left*2})')
            if x + depth < 8: ld(x + depth)
            for k in range(16): e.I(f'v_dot2c_f32_bf16 v{PXR+k}, {("s52", "s53")[k&1]}, v{RAW+x*8+(k>>1)}')
        e.I('s_nop 2')
    for k in range(16): e.I(f'v_mov_b32 v{PXR+k}, 0')
    fast, join = e.lab('Lcf'), e.lab('Lcj')
    e.I('s_cmp_ge_u32 s38, 61')
    e.I(f's_cbranch_scc1 {fast}')
    body(opt.cdepth)
    e.I(f's_branch {join}')
    e.L(fast)
    f2, pl_, pk_ = e.lab('Lcg'), e.lab('Lcp'), e.lab('Lck')
    e.I('s_cmp_lg_u32 s38, 63')
    e.I(f's_cbranch_scc1 {f2}')
    e.I(f's_mov_b32 s31, {TMO}')
    e.I('s_mov_b32 s51, s43')
    e.L(pl_)
    e.I('s_mov_b32 s43, s51')
    for x in range(8): ld(x)
    e.I('s_waitcnt vmcnt(0)')
    check_sent(e, range(RAW, RAW + 64), T0, T0 + 1)
    e.I(f's_cbranch_vccz {pk_}')
    e.I('s_sub_u32 s31, s31, 1')
    e.I(f's_cbranch_scc0 {pl_}')
    e.I('s_mov_b32 s31, 8')
    e.I('s_branch L_fail')
    e.L(pk_)
    for x in range(8):
        for k in range(16): e.I(f'v_dot2c_f32_bf16 v{PXR+k}, {("s52", "s53")[k&1]}, v{RAW+x*8+(k>>1)}')
    e.I('s_nop 2')
    e.I(f's_branch {join}')
    e.L(f2)
    body(8)
    e.L(join)
    TS(e, 3)
    for t in range(4):
        b = PXR + 4 * t; u = T0 + 8 * (t % 2)
        e.I(f'v_cvt_pk_bf16_f32 v{u}, v{b}, v{b+1}')
        e.I(f'v_cvt_pk_bf16_f32 v{u+1}, v{b+2}, v{b+3}')
        for h_ in range(2):
            e.I(f'v_lshlrev_b32 v{b+2*h_}, 16, v{u+h_}')
            e.I(f'v_and_b32 v{b+2*h_+1}, 0xffff0000, v{u+h_}')
            e.I(f'v_lshlrev_b32 v{u+2+2*h_}, 16, v{GR+2*t+h_}')
            e.I(f'v_and_b32 v{u+3+2*h_}, 0xffff0000, v{GR+2*t+h_}')
        for k in range(4): e.I(f'v_mul_f32 v{b+k}, v{b+k}, v{u+2+k}')
        e.I(f'v_cvt_pk_bf16_f32 v{u}, v{b}, v{b+1}')
        e.I(f'v_cvt_pk_bf16_f32 v{u+1}, v{b+2}, v{b+3}')
        for h_ in range(2):
            e.I(f'v_lshlrev_b32 v{b+2*h_}, 16, v{u+h_}')
            e.I(f'v_and_b32 v{b+2*h_+1}, 0xffff0000, v{u+h_}')
            e.I(f'v_lshlrev_b32 v{u+2+2*h_}, 16, v{XR_+2*t+h_}')
            e.I(f'v_and_b32 v{u+3+2*h_}, 0xffff0000, v{XR_+2*t+h_}')
        for k in range(4): e.I(f'v_add_f32 v{b+k}, v{b+k}, v{u+2+k}')
        e.I(f'v_cvt_pk_bf16_f32 v{u+6}, v{b}, v{b+1}')
        e.I(f'v_cvt_pk_bf16_f32 v{u+7}, v{b+2}, v{b+3}')
        e.I(f'buffer_store_dwordx2 {vr(u+6,2)}, v5, s[12:15], s48 offen offset:{TO[t]*32}{("", " sc1", " nt")[opt.ost]}')
    TS(e, 2)
    if opt.ts: e.I('s_lshr_b32 s50, s30, 6')
    TSflush(e, 's50')
    e.I('s_add_u32 s30, s30, 64')
    e.I('s_cmp_lt_u32 s30, 1280')
    e.I(f's_cbranch_scc1 {top}')
    DSTAMP(e, 5)
    e.I(f's_cmp_lg_u32 s30, {1279 + 64}')
    e.I('s_cbranch_scc1 L_end')
    e.I('s_mov_b32 exec_hi, 0xffff')
    e.I(f'global_store_dword v3, v6, s[74:75] offset:{D_TR} sc1')
    e.I('s_endpgm')

def gen_mainkernel(e):
    kernel_head(e, MAIN)
    e.I('s_cmp_ge_u32 s2, 256')
    e.I('s_cbranch_scc1 L_end')
    e.I('s_load_dwordx2 s[32:33], s[0:1], 96')
    e.I('s_load_dwordx4 s[60:63], s[0:1], 16')
    e.I('s_load_dwordx4 s[64:67], s[0:1], 32')
    e.I('s_load_dwordx4 s[52:55], s[0:1], 0')
    e.I('s_load_dwordx4 s[56:59], s[0:1], 64')
    e.I('s_load_dwordx4 s[72:75], s[0:1], 80')
    TS(e, 0)
    e.I('s_getreg_b32 s24, hwreg(HW_REG_XCC_ID)')
    e.I('v_and_b32 v1, 63, v0')
    e.I('v_lshlrev_b32 v2, 4, v1')
    e.I('v_lshrrev_b32 v3, 6, v0')
    e.I('v_readfirstlane_b32 s22, v3')
    if opt.cwarm2:
        e.I('s_getpc_b64 s[34:35]')
        e.L('L_pc')
        e.I('s_lshr_b32 s36, s2, 3')
        e.I('s_lshl_b32 s36, s36, 2')
        e.I('v_add_u32 v3, s36, v3')
        e.I(f'v_mul_u32_u24 v3, {opt.cwarm2}, v3')
        e.I(f'v_min_u32 v4, {opt.cwarm2 - 1}, v1')
        e.I('v_add_u32 v3, v3, v4')
        e.I('v_lshlrev_b32 v3, 7, v3')
        e.I('v_min_u32 v3, L_last-L_pc, v3')
        e.I('v_mov_b32 v5, s35')
        e.I('v_add_co_u32 v4, vcc, s34, v3')
        e.I('v_addc_co_u32 v5, vcc, 0, v5, vcc')
        e.I('global_load_dword v255, v[4:5], off')
    if opt.force_slow:
        e.I('s_lshr_b32 s20, s2, 5'); e.I('s_and_b32 s21, s2, 31')
    else:
        e.I('s_and_b32 s20, s2, 7'); e.I('s_lshr_b32 s21, s2, 3')
    e.I('s_and_b32 s24, s24, 15')
    e.I('s_lshl_b32 s96, s20, 4')
    e.I('s_and_b32 s25, s24, 12')
    e.I('s_add_u32 s96, s96, s25')
    e.I('s_and_b32 s25, s24, 3')
    e.I('s_lshl_b32 s25, s25, 3')
    e.I('s_lshl_b32 s97, 1, s25')
    e.I('s_waitcnt lgkmcnt(0)')
    e.I('s_mov_b64 s[70:71], s[72:73]')
    e.I('s_mov_b64 s[68:69], s[52:53]')
    srd(e, 4, 32, WS_BYTES)
    TS(e, 1)
    TSflush(e, '70')
    if opt.dstamp: e.I('s_lshl_b32 s98, s21, 2'); e.I('s_add_u32 s98, s98, s22')
    DSTAMP(e, 0, 's_cmp_eq_u32 s98, 84', 'neg')
    e.I('s_cmp_ge_u32 s21, 22'); e.I('s_cbranch_scc1 L_help')
    e.I('s_sub_u32 s24, s21, 12')
    if opt.urg: e.I('s_cmp_lt_u32 s24, 2')
    else: e.I('s_cmp_eq_u32 s24, 1')
    e.I('s_cbranch_scc1 L_urg')
    register(e, 3, 4)
    e.I('s_cmp_ge_u32 s21, 12'); e.I('s_cbranch_scc1 L_wo')
    role_qkv(e)
    e.L('L_urg')
    srd(e, 8, 52, 2048 * 1280); srd(e, 12, 54, 8 * 1280)
    e.I('s_cmp_lg_u32 s24, 0')
    e.I('s_cbranch_scc1 L_um')
    ln_addr(e)
    e.I('s_mul_i32 s25, s20, 20480')
    ln_load(e, 16, 's25')
    e.I('s_waitcnt vmcnt(0)')
    ln_compute(e, 16, 's25')
    e.I('s_branch L_ur')
    e.L('L_um')
    mem0_copy(e, None, 0)
    e.I('s_mul_i32 s41, s20, 10240')
    e.I(f's_add_u32 s41, s41, {MEM}')
    e.I('s_waitcnt vmcnt(0)')
    mem0_copy(e, 's41', 1)
    e.L('L_ur')
    e.I('s_waitcnt vmcnt(0)')
    e.I('s_barrier')
    register(e, 3, 4)
    e.L('L_wo'); role_sw(e)
    e.L('L_help')
    srd(e, 8, 52, 2048 * 1280)
    e.I('s_mul_i32 s24, s20, 10')
    e.I('s_add_u32 s24, s24, s21')
    e.I('s_sub_u32 s24, s24, 22')
    if opt.urg: init_fill(e, 's24', 80)
    ln_addr(e)
    e.I('s_mul_i32 s25, s24, 20480')
    if opt.urg: e.I(f's_add_u32 s25, s25, {8*20480}')
    e.I(f's_add_u32 s26, s25, {80*20480}')
    ln_load(e, 16, 's25')
    ln_load(e, 36, 's26')
    if opt.urg:
        e.I('s_waitcnt vmcnt(10)')
        e.I('s_barrier')
        register(e, 3, 4)
    elif opt.pfh:
        srd(e, 12, 64, 640 * 12288); srd(e, 16, 60, 640 * 12288)
        e.I('s_sub_u32 s27, s21, 22')
        e.I('s_lshl_b32 s27, s27, 2')
        e.I('s_add_u32 s27, s27, s22')
        prefetch_w(e, 's27', 0, opt.pfh, 124, 's[12:15]', 's[16:19]')
    else: init_fill(e, 's24', 80)
    e.I(f's_waitcnt vmcnt({3*opt.pfh})')
    ln_compute(e, 16, 's25')
    e.I(f's_cmp_ge_u32 s24, {40 if opt.urg else 48}')
    e.I('s_cbranch_scc1 L_hl')
    ln_compute(e, 36, 's26')
    e.L('L_hl')
    if opt.pfh: init_fill(e, 's24', 80)
    e.I('s_waitcnt vmcnt(0)')
    e.I('s_barrier')
    if opt.urg: count_up(e, 3, D_W)
    else: register(e, 3, 4)
    TS(e, 0)
    TSflush(e, '69')
    if opt.touch2:
        wait_reg(e, 16, opt.rsleep)
        e.I('s_sub_u32 s24, s21, 22')
        e.I('s_lshl_b32 s25, s20, 2')
        e.I('s_add_u32 s25, s25, s22')
        touch_jobs(e, [(XN + k * 40960, 10240, 40) for k in range(3)] + [(XN + k * 40960 + 5120, 10240, 40) for k in range(3)], 's24', 10, 's22', 18)
        jobs = []
        for sl in range(4): jobs += [(MEM + sl * MEM_SLOT, 2560, 20), (XR + sl * XR_SLOT, 6144, 48), (VR + sl * VR_SLOT, 3072, 24)]
        touch_jobs(e, jobs[::-1][:4] + jobs[:8], 's24', 10, 's25', 24, 6)
    e.I('s_cmp_ge_u32 s21, 29'); e.I('s_cbranch_scc1 L_ffn')
    e.I('s_cmp_lt_u32 s21, 27'); e.I('s_cbranch_scc1 L_xw')
    role_att(e)
    e.L('L_xw'); role_xw(e)
    e.L('L_ffn'); role_ffn(e)
    e.L('L_cmb'); role_cmb(e)
    e.L('L_fail')
    e.I('s_mov_b64 exec, 1')
    e.I('s_lshl_b32 s31, s31, 2')
    e.I('v_mov_b32 v3, s31')
    e.I('v_mov_b32 v4, 1')
    e.I('global_atomic_add v3, v4, s[74:75]')
    e.L('L_end')
    e.L('L_last')
    e.I('s_endpgm')

def build(path):
    import gen_pre
    gen_pre.DIAG[0] = opt.noinit
    for k in range(3): NT[k] = ' nt' if opt.pnt >> k & 1 else ''
    hdr = open('cdna_kernels/' + NAME + '.s.ref').read().split('\n')
    e = Em()
    for l in hdr:
        if l.startswith(';') and '@launch' not in l and 'Override launch' not in l and 'grid=ceil' not in l: e.raw(l)
    e.raw(f'; @launch grid=(256,1,1) block=(256,1,1) lds=163840')
    e.raw('.amdgcn_target "amdgcn-amd-amdhsa--gfx950"')
    gen_mainkernel(e)
    kernel_desc(e, MAIN, 512, 100, 256)
    lines, added = hazard.pad(e.lines)
    open(path, 'w').write('\n'.join(lines) + '\n')
    n = sum(1 for l in lines if l.startswith('    ') and not l.strip().startswith(';'))
    print(f'wrote {path}: {n} instructions, {added} nops added')

if __name__ == '__main__':
    out = sys.argv[1] if len(sys.argv) > 1 else 'cdna_kernels/' + NAME + '.s'
    if 'slow' in sys.argv[2:]: opt.force_slow = True
    if 'ts' in sys.argv[2:]: opt.ts = True
    for k in ('nobg', 'ackpoll', 'noxw'):
        if k in sys.argv[2:]: setattr(opt, k, True)
    for a_ in sys.argv[2:]:
        if '=' in a_: k_, v_ = a_.split('='); setattr(opt, k_, int(v_))
    build(out)
```

```python
import sys, struct
from asmlib import *
from layout import *
import hazard
from gen_pre import *

NAME = 'recurrent_scan__memory_aug_recurrent_mem_tr__dense_activation_relu__prompt'
MAIN = NAME + '_kernel'
PRE = 'prep_kernel'
LDS_TOTAL = 131072
LDS_ROLE = 131072
TMO = 1 << 18
def f2u(x): return struct.unpack('<I', struct.pack('<f', x))[0]
SC_L2E = f2u(192 ** -0.5 * 1.4426950408889634)
NEG_BIG = f2u(-1e30)
MFMA = 'v_mfma_f32_16x16x32_bf16'
MFMA16 = 'v_mfma_f32_16x16x16_bf16'
SMF = 'v_smfmac_f32_16x16x64_bf16'
WS = 's[4:7]'
WFL = ['', ' nt', ' sc1', ' sc0 sc1', ' sc1 nt', ' sc0 sc1 nt']

class Opt:
    force_slow = False
    ts = False
    nobg = False
    ackpoll = False
    noxw = False
    pdelay = 0
    vdelay = 0
    kbar = 0
    kpre = 12
    kin = 12
    fresh = 0
    pdiag = 0
    pflip = 0
    touch = 1
    nofc = 0
    nopx = 0
    nocmb = 0
    cdepth = 1
    ffnnt = 0
    pr = 1
    pfar = 0
    vpre = 0
    vmpos = 2
    smpre = 1
    smgap = 3
    ldgap = 30
    kp = 0
    kcs = 0
    kce = 12
    xlate = 4
    csleep = 8
    cwarm = 61
    c2sleep = 4
    clag = 2
    lsleep = 8
    xsleep = 2
    asleep = 2
    cdiag = 0
    n1 = 5
    n2 = 4
    n3 = 0
    thin = 1
    fwait = 3
    ptouch = 1
    spec = 1
    mwait = 0
    mpre = 2
    kgap = 15
    noinit = 0
    pfh = 0
    wb = 0
    ost = 0
    mprobe = 0
    kx = 0
    dstamp = 0
    hwv = 7
    t63 = 1
    esleep = 1
    tpos = 0
    pmf = 8
    pmf2 = 4
    urg = 0
    rsleep = 16
    cwarm2 = 0
    tord = 0
    pfs = 0
    swlate = 1
    fpos = 11
    heads = 1
    hdelay = 0
    wnb = 3
    wrows = 320
    touch2 = 1
    pnt = 1
    wnt = 1
    wthr = 64
    xpf = 10
    xdma0 = 10
    xdmas = 1
    pbf = 1
    rpos = 2
    mbar = 1
    pspin = 0
    nobulk = 0
opt = Opt()

def vr(i, n=4): return f'v[{i}:{i+n-1}]'
def ar(i, n=4): return f'a[{i}:{i+n-1}]'

def maxchain(e, dst, regs, op='u32'):
    regs = list(regs)
    e.I(f'v_max3_{op} v{dst}, v{regs[0]}, v{regs[1]}, v{regs[2]}')
    rest = regs[3:]
    while rest:
        if len(rest) >= 2:
            e.I(f'v_max3_{op} v{dst}, v{dst}, v{rest[0]}, v{rest[1]}'); rest = rest[2:]
        else:
            e.I(f'v_max_{op} v{dst}, v{dst}, v{rest[0]}'); rest = rest[1:]

def check_sent(e, regs, t0, t1):
    regs = list(regs)
    if len(regs) >= 8:
        h = len(regs) // 2
        A, B = regs[:h], regs[h:]
        ea, eb = Em(), Em()
        maxchain(ea, t0, A); maxchain(eb, t1, B)
        for i in range(max(len(ea.lines), len(eb.lines))):
            if i < len(ea.lines): e.lines.append(ea.lines[i])
            if i < len(eb.lines): e.lines.append(eb.lines[i])
        e.I(f'v_max_u32 v{t0}, v{t0}, v{t1}')
    else:
        maxchain(e, t0, regs)
    e.I(f'v_cmp_eq_u32 vcc, -1, v{t0}')
def chunk_regs(base, n, step):
    return list(range(base, base + n, step)) if opt.thin else list(range(base, base + n))

def poll2(e, issue, nl, regsA, regsB, consume, t0, t1, code, early=None):
    lp, dA, dB, dd = e.lab('Lp'), e.lab('LdA'), e.lab('LdB'), e.lab('Ldd')
    e.I(f's_mov_b32 s31, {TMO}')
    issue(regsA)
    e.L(lp)
    issue(regsB)
    e.I(f's_waitcnt vmcnt({nl})')
    if early: early(regsA)
    check_sent(e, chunk_regs(regsA, 4 * nl, 4), t0, t1)
    e.I(f's_cbranch_vccz {dA}')
    issue(regsA)
    e.I(f's_waitcnt vmcnt({nl})')
    if early: early(regsB)
    check_sent(e, chunk_regs(regsB, 4 * nl, 4), t0, t1)
    e.I(f's_cbranch_vccz {dB}')
    e.I('s_sub_u32 s31, s31, 1')
    e.I(f's_cbranch_scc0 {lp}')
    e.I(f's_mov_b32 s31, {code}')
    e.I('s_branch L_fail')
    e.L(dB)
    consume(regsB)
    e.I(f's_branch {dd}')
    e.L(dA)
    consume(regsA)
    e.L(dd)

def wait_flags(e, vaddr, sofs, mask, vt, code, sleep=0, dbg=False):
    lp, dn = e.lab('Lf'), e.lab('Lfd')
    e.I(f's_mov_b32 s31, {TMO}')
    if mask > 0xffffffff or mask < 0: e.I(f's_mov_b64 exec, {mask}')
    else:
        e.I(f's_mov_b32 exec_lo, {mask:#x}'); e.I('s_mov_b32 exec_hi, 0')
    e.L(lp)
    if dbg: e.I(f'global_load_dword v{vt}, v{vaddr}, s[74:75] offset:{sofs} sc1')
    else: e.I(f'buffer_load_dword v{vt}, v{vaddr}, {WS}, {sofs} offen sc1')
    e.I('s_waitcnt vmcnt(0)')
    e.I(f'v_cmp_eq_u32 vcc, 0, v{vt}')
    e.I(f's_cbranch_vccz {dn}')
    if sleep: e.I(f's_sleep {sleep}')
    e.I('s_sub_u32 s31, s31, 1')
    e.I(f's_cbranch_scc0 {lp}')
    e.I(f's_mov_b32 s31, {code}')
    e.I('s_branch L_fail')
    e.L(dn)
    e.I('s_mov_b64 exec, -1')

D_TR, D_PAR, D_REG = 64, 96, 128
def register(e, va, vd):
    sk = e.lab('Lrg')
    e.I('s_cmp_lg_u32 s22, 0')
    e.I(f's_cbranch_scc1 {sk}')
    e.I(f'v_mov_b32 v{va}, s96')
    e.I(f'v_mov_b32 v{vd}, s97')
    e.I('s_mov_b64 exec, 1')
    e.I(f'global_atomic_add v{va}, v{vd}, s[74:75] offset:{D_REG} sc1')
    e.I('s_mov_b64 exec, -1')
    e.L(sk)
D_W = 68
def wait_count(e, t, off, n, sleep):
    lp, dn = e.lab('Lwc'), e.lab('Lwe')
    e.I(f's_mov_b32 s31, {TMO}')
    e.I(f'v_mov_b32 v{t+1}, 0')
    e.L(lp)
    e.I(f'global_load_dword v{t}, v{t+1}, s[74:75] offset:{off} sc1')
    e.I('s_waitcnt vmcnt(0)')
    e.I(f'v_cmp_gt_u32 vcc, {n}, v{t}')
    e.I(f's_cbranch_vccz {dn}')
    e.I(f's_sleep {sleep}')
    e.I('s_sub_u32 s31, s31, 1')
    e.I(f's_cbranch_scc0 {lp}')
    e.I('s_mov_b32 s31, 10')
    e.I('s_branch L_fail')
    e.L(dn)
def wait_first(e, t, seg=0):
    wait_reg(e, t, 32)
    e.I('s_lshl_b32 s38, s20, 8')
    e.I(f's_add_u32 s38, s38, {FLGQ + seg*2048}')
    e.I(f'v_lshlrev_b32 v{t+1}, 6, v1')
    wait_flags(e, t + 1, 's38', 0xf, t, 15, sleep=16)
def count_up(e, t, off):
    sk = e.lab('Lcu')
    e.I('s_cmp_lg_u32 s22, 0')
    e.I(f's_cbranch_scc1 {sk}')
    e.I(f'v_mov_b32 v{t}, 0'); e.I(f'v_mov_b32 v{t+1}, 1')
    e.I('s_mov_b64 exec, 1')
    e.I(f'global_atomic_add v{t}, v{t+1}, s[74:75] offset:{off} sc1')
    e.I('s_mov_b64 exec, -1')
    e.L(sk)
def wait_reg(e, t, sleep=4):
    lp, dn = e.lab('Lwr'), e.lab('Lwd')
    e.I(f's_mov_b32 s31, {TMO}')
    e.I(f'v_lshlrev_b32 v{t+2}, 2, v1')
    e.I('s_mov_b32 exec_hi, 0')
    e.L(lp)
    e.I(f'global_load_dword v{t}, v{t+2}, s[74:75] offset:{D_REG} sc1')
    e.I('s_mov_b32 s23, 0')
    e.I('s_mov_b32 s38, 0')
    e.I('s_waitcnt vmcnt(0)')
    for k in range(4):
        e.I(f'v_cmp_eq_u32 vcc, {0x20 << (8*k):#x}, v{t}')
        e.I('s_or_b32 s38, s38, vcc_lo')
    e.I(f'v_sad_u8 v{t+1}, v{t}, 0, 0')
    e.I('s_bcnt1_i32_b32 s38, s38')
    e.I('s_cmp_eq_u32 s38, 8')
    e.I(f's_cbranch_scc1 {dn}')
    for sh in (1, 2, 4, 8): e.I(f'v_add_u32_dpp v{t+1}, v{t+1}, v{t+1} row_shr:{sh} row_mask:0xf bank_mask:0xf bound_ctrl:0')
    e.I(f'v_readlane_b32 s38, v{t+1}, 15')
    e.I(f'v_readlane_b32 s39, v{t+1}, 31')
    e.I('s_mov_b32 s23, 1')
    e.I('s_add_u32 s38, s38, s39')
    e.I('s_cmp_eq_u32 s38, 256')
    e.I(f's_cbranch_scc1 {dn}')
    e.I(f's_sleep {sleep}')
    e.I('s_sub_u32 s31, s31, 1')
    e.I(f's_cbranch_scc0 {lp}')
    e.I('s_mov_b32 s31, 10')
    e.I('s_branch L_fail')
    e.L(dn)
    e.I('s_mov_b64 exec, -1')

def set_flag(e, vaddr, sofs, vone, fl):
    e.I('s_mov_b64 exec, 1')
    e.I(f'buffer_store_dword v{vone}, v{vaddr}, {WS}, {sofs} offen{fl}')
    e.I('s_mov_b64 exec, -1')

def xg_reduce(e, op, x, t):
    e.I(f'v_mov_b32 v{t}, v{x}')
    e.I(f'v_permlane16_swap_b32 v{x}, v{t}')
    e.I(f'{op} v{x}, v{x}, v{t}')
    e.I(f'v_mov_b32 v{t}, v{x}')
    e.I(f'v_permlane32_swap_b32 v{x}, v{t}')
    e.I(f'{op} v{x}, v{x}, v{t}')

def softmax12(e, S, P, t):
    maxchain(e, t, range(S, S + 12), 'f32')
    xg_reduce(e, 'v_max_f32', t, t + 1)
    e.I(f'v_mul_f32 v{t}, s53, v{t}')
    for i in range(12):
        e.I(f'v_fma_f32 v{S+i}, v{S+i}, s52, v{t}')
    for i in range(12):
        e.I(f'v_exp_f32 v{S+i}, v{S+i}')
    e.I(f'v_add_f32 v{t+2}, v{S}, v{S+1}')
    e.I(f'v_add_f32 v{t+3}, v{S+2}, v{S+3}')
    for i in range(4, 12, 2):
        e.I(f'v_add_f32 v{t+2}, v{t+2}, v{S+i}')
        e.I(f'v_add_f32 v{t+3}, v{t+3}, v{S+i+1}')
    e.I(f'v_add_f32 v{t+2}, v{t+2}, v{t+3}')
    xg_reduce(e, 'v_add_f32', t + 2, t + 3)
    e.I(f'v_rcp_f32 v{t+2}, v{t+2}')
    for i in range(12):
        e.I(f'v_mul_f32 v{S+i}, v{S+i}, v{t+2}')
    for i in range(6):
        e.I(f'v_cvt_pk_bf16_f32 v{P+i}, v{S+2*i}, v{S+2*i+1}')

def softmax_list(S, n, P, t):
    x = Em()
    maxchain(x, t, range(S, S + n), 'f32')
    xg_reduce(x, 'v_max_f32', t, t + 1)
    x.I(f'v_mul_f32 v{t}, s53, v{t}')
    for i in range(n): x.I(f'v_fma_f32 v{S+i}, v{S+i}, s52, v{t}')
    for i in range(n): x.I(f'v_exp_f32 v{S+i}, v{S+i}')
    x.I(f'v_add_f32 v{t+2}, v{S}, v{S+1}')
    x.I(f'v_add_f32 v{t+3}, v{S+2}, v{S+3}')
    for i in range(4, n, 2):
        x.I(f'v_add_f32 v{t+2}, v{t+2}, v{S+i}')
        x.I(f'v_add_f32 v{t+3}, v{t+3}, v{S+i+1}')
    x.I(f'v_add_f32 v{t+2}, v{t+2}, v{t+3}')
    xg_reduce(x, 'v_add_f32', t + 2, t + 3)
    x.I(f'v_rcp_f32 v{t+2}, v{t+2}')
    for i in range(n): x.I(f'v_mul_f32 v{S+i}, v{S+i}, v{t+2}')
    for i in range(n // 2): x.I(f'v_cvt_pk_bf16_f32 v{P+i}, v{S+2*i}, v{S+2*i+1}')
    return [l.strip() for l in x.lines]

def DSTAMP(e, idx, cond=None, op='umax'):
    if not opt.dstamp: return
    sk = e.lab('Lds')
    if cond: e.I(cond); e.I(f's_cbranch_scc0 {sk}')
    e.I('s_memtime s[98:99]' if op == 'clk' else 's_memrealtime s[98:99]')
    e.I('s_waitcnt lgkmcnt(0)')
    if op == 'neg': e.I('s_not_b32 s98, s98')
    e.I('s_mov_b64 exec, 1')
    e.I(f'v_mov_b32 v238, {idx*4}')
    e.I('v_mov_b32 v239, s98')
    e.I('global_atomic_umax v238, v239, s[74:75] sc1')
    e.I('s_mov_b64 exec, -1')
    e.L(sk)
def TS(e, k):
    if opt.ts: e.I(f's_memrealtime s[{76+2*k}:{77+2*k}]')
def TSflush(e, step, va=238, vd=239):
    if not opt.ts: return
    e.I('s_waitcnt lgkmcnt(0)')
    for k in range(10): e.I(f'v_writelane_b32 v{vd}, s{76+2*k}, {k}')
    e.I('s_lshl_b32 s76, s20, 5')
    e.I('s_add_u32 s76, s76, s21')
    e.I('s_lshl_b32 s76, s76, 2')
    e.I('s_add_u32 s76, s76, s22')
    e.I('s_mul_i32 s76, s76, 72')
    e.I(f's_add_u32 s76, s76, {step}')
    e.I('s_lshl_b32 s76, s76, 6')
    e.I(f's_add_u32 s76, s76, {DBGT}')
    e.I(f'v_lshlrev_b32 v{va}, 2, v1')
    e.I('s_mov_b64 exec, 0x3ff')
    e.I(f'buffer_store_dword v{vd}, v{va}, {WS}, s76 offen')
    e.I('s_mov_b64 exec, -1')

def lane_ig(e, vi, vg):
    e.I(f'v_and_b32 v{vi}, 15, v1')
    e.I(f'v_lshrrev_b32 v{vg}, 4, v1')

def load_weights(e, mats, RS, rows, paired, vA, vT, NB=3, bufoff=None, manual=False):
    CH = rows * 128
    ninst = rows // 8 // 4
    nk = rows // 32
    e.I(f'v_lshrrev_b32 v{vT}, 3, v1')
    if paired:
        e.I(f'v_bfe_u32 v{vT+1}, v1, 4, 2')
    else:
        e.I(f'v_bfe_u32 v{vT+1}, v1, 4, 1')
        e.I('s_and_b32 s54, s22, 1')
        e.I('s_lshl_b32 s54, s54, 1')
        e.I(f'v_or_b32 v{vT+1}, s54, v{vT+1}')
    e.I(f'v_lshlrev_b32 v{vT+1}, 1, v{vT+1}')
    e.I(f'v_and_b32 v{vT+2}, 7, v1')
    e.I(f'v_xor_b32 v{vT+2}, v{vT+2}, v{vT+1}')
    e.I(f's_mov_b32 s54, {RS}')
    e.I(f'v_mul_lo_u32 v{vA}, s54, v{vT}')
    e.I(f'v_lshl_add_u32 v{vA}, v{vT+2}, 4, v{vA}')
    e.I(f'v_lshrrev_b32 v{vT}, 4, v1')
    e.I(f'v_bfe_u32 v{vT+1}, v1, 2, 2')
    if paired:
        e.I(f'v_lshl_add_u32 v{vT+2}, v{vT}, 2, v{vT+1}')
        e.I(f'v_bfe_u32 v{vT}, v{vT+2}, 1, 2')
        second = 2048
    else:
        e.I(f'v_lshl_add_u32 v{vT+2}, v{vT}, 3, v{vT+1}')
        e.I(f'v_and_b32 v{vT}, 1, v{vT}')
        e.I(f'v_lshlrev_b32 v{vT}, 1, v{vT}')
        e.I(f'v_bfe_u32 v{vT+1}, v1, 3, 1')
        e.I(f'v_or_b32 v{vT}, v{vT}, v{vT+1}')
        second = 512
    e.I(f'v_xor_b32 v{vT}, s22, v{vT}')
    e.I(f'v_lshlrev_b32 v{vT+2}, 7, v{vT+2}')
    e.I(f'v_lshl_add_u32 v{vT+2}, v{vT}, 5, v{vT+2}')
    e.I(f'v_and_b32 v{vT}, 3, v1')
    e.I(f'v_lshl_add_u32 v{vT}, v{vT}, 3, v{vT+2}')
    bufoff = bufoff or [k * CH for k in range(NB)]
    for k in range(NB - 1, -1, -1):
        if bufoff[k]  or k: e.I(f'v_add_u32 v{vT+k}, {bufoff[k]}, v{vT}')
    chunks = []
    for (srd_, sofs, ab, nrows) in mats:
        for c in range(nrows // rows):
            chunks.append((srd_, sofs, ab + c * nk * 4, c * rows))
    e.I(f's_mul_i32 s55, s22, {8*RS}')
    e.I('s_lshl_b32 s56, s22, 10')
    def issue(ci, buf=None):
        srd_, sofs, ab, r0 = chunks[ci]
        if buf is None: buf = ci % NB
        e.I(f's_add_u32 s57, {sofs}, s55')
        if r0: e.I(f's_add_u32 s57, s57, {r0*RS}')
        for n in range(ninst):
            e.I(f's_add_u32 m0, s56, {bufoff[buf] + n*4096}')
            e.I(f'buffer_load_dwordx4 v{vA}, {srd_}, s57 offen{WFL[opt.wnt]} lds')
            if n + 1 < ninst: e.I(f's_add_u32 s57, s57, {32*RS}')
    def consume(ci, buf, pending):
        e.I(f's_waitcnt vmcnt({pending})')
        if ci < 8: TS(e, 2 + ci)
        e.I('s_barrier')
        srd_, sofs, ab, r0 = chunks[ci]
        for k in range(nk):
            e.I(f'ds_read_b64_tr_b16 {ar(ab+4*k,2)}, v{vT+buf} offset:{k*4096}')
            e.I(f'ds_read_b64_tr_b16 {ar(ab+4*k+2,2)}, v{vT+buf} offset:{k*4096+second}')
        e.I('s_waitcnt lgkmcnt(0)')
        e.I('s_barrier')
    if manual: return issue, consume
    for ci in range(min(NB, len(chunks))): issue(ci)
    for ci in range(len(chunks)):
        left = min(len(chunks) - 1 - ci, NB - 1)
        e.I(f's_waitcnt vmcnt({left*ninst})')
        if ci < 8: TS(e, 2 + ci)
        e.I('s_barrier')
        srd_, sofs, ab, r0 = chunks[ci]
        for k in range(nk):
            e.I(f'ds_read_b64_tr_b16 {ar(ab+4*k,2)}, v{vT+ci%NB} offset:{k*4096}')
            e.I(f'ds_read_b64_tr_b16 {ar(ab+4*k+2,2)}, v{vT+ci%NB} offset:{k*4096+second}')
        e.I('s_waitcnt lgkmcnt(0)')
        e.I('s_barrier')
        if ci + NB < len(chunks): issue(ci + NB)

def touch_jobs(e, jobs, sw, nw, sh, t, rot=0):
    sizes = sorted({min(n, 64) for _, _, n in jobs} | {n - 64 for _, _, n in jobs if n > 64})
    reg = {}
    for k, n in enumerate(sizes):
        reg[n] = t + 1 + k
        e.I(f'v_min_u32 v{reg[n]}, {n-1}, v1')
        e.I(f'v_lshlrev_b32 v{reg[n]}, 7, v{reg[n]}')
    flat = []
    for base, per, n in jobs:
        flat.append((base, per, min(n, 64)))
        if n > 64: flat.append((base + 8192, per, n - 64))
    for c in range(nw):
        sk = e.lab('Ltj')
        e.I(f's_cmp_lg_u32 {sw}, {c}')
        e.I(f's_cbranch_scc1 {sk}')
        for base, per, n in flat[(c - rot) % nw::nw]:
            e.I(f's_mul_i32 s38, {sh}, {per}')
            e.I(f's_add_u32 s38, s38, {base}')
            e.I(f'buffer_load_dword v{t}, v{reg[n]}, {WS}, s38 offen sc1')
        e.L(sk)

def prefetch_w(e, su, j0, j1, t, srdv, srdq):
    for k in range(3):
        e.I(f'v_add_u32 v{t+3}, {1024*k}, v2')
        e.I(f'v_cmp_le_u32 vcc, 1536, v{t+3}')
        e.I(f'v_add_u32 v{t+k}, {12288-1536}, v{t+3}')
        e.I(f'v_cndmask_b32 v{t+k}, v{t+3}, v{t+k}, vcc')
    e.I('s_mul_i32 s39, s20, 1536')
    e.I(f's_mul_i32 s38, {su}, {2*12288}')
    e.I('s_add_u32 s38, s38, s39')
    for j in range(j0, j1):
        row = 320 + 80 * j if j < 4 else 80 * (j - 4)
        e.I(f's_add_u32 s39, s38, {row*12288}')
        for k in range(3): e.I(f'buffer_load_dwordx4 {vr(t+4)}, v{t+k}, {srdv if j < 4 else srdq}, s39 offen{WFL[opt.wnt]}')

Q_LX, Q_LMEM = 0, 81920
def role_qkv(e):
    fl = ''
    WQ, WK, WV = 0, 80, 160
    MF = 16
    DQ, DK, DV = 96, 100, 104
    PA, PB = 108, 120
    XD = 132
    T0 = 160
    KEEP = 176; TCH = 180
    XA, VA, IDX, SEL, MP = 182, 183, 184, 185, 186
    SENT = 248; ONE = 252
    e.I('s_mul_i32 s24, s21, 43')
    e.I('s_lshr_b32 s24, s24, 7')
    e.I('s_mul_i32 s25, s24, 3')
    e.I('s_sub_u32 s25, s21, s25')
    e.I('s_lshl_b32 s26, s20, 2')
    e.I('s_add_u32 s26, s26, s24')
    e.I('s_lshl_b32 s27, s25, 2')
    e.I('s_add_u32 s27, s27, s22')
    srd(e, 8, 60, 640 * 12288); srd(e, 12, 62, 640 * 12288); srd(e, 16, 64, 640 * 12288)
    e.I('s_mul_i32 s28, s26, 384')
    e.I('s_lshl_b32 s29, s25, 7')
    e.I('s_add_u32 s28, s28, s29')
    w_issue, w_consume = load_weights(e, [('s[12:15]', 's28', WK, 640), ('s[16:19]', 's28', WV, 640), ('s[8:11]', 's28', WQ, 640)], 12288, 320, False, 240, 241, 3,
                                      bufoff=[81920, 122880, 40960], manual=True)
    for ci in range(3): w_issue(ci)
    e.I('s_mul_i32 s38, s22, 3072')
    e.I('s_min_u32 s38, s38, 7168')
    e.I('v_add_u32 v3, s38, v2')
    e.I(f'v_add_u32 v5, {Q_LMEM}, v3')
    e.I(f'v_add_u32 v7, {Q_LMEM}, v2')
    lane_ig(e, 14, 15)
    e.I('s_lshr_b32 s38, s27, 1')
    e.I('s_lshl_b32 s38, s38, 10')
    e.I('s_and_b32 s39, s27, 1')
    e.I('s_lshl_b32 s39, s39, 3')
    e.I('s_add_u32 s38, s38, s39')
    e.I('v_add_u32 v8, s38, v2')
    e.I('v_bfe_u32 v11, v1, 2, 2')
    e.I('v_and_b32 v12, 3, v1')
    e.I(f'v_lshlrev_b32 v{XA}, 8, v11')
    e.I(f'v_lshl_add_u32 v{XA}, v15, 6, v{XA}')
    e.I(f'v_lshl_add_u32 v{XA}, v12, 4, v{XA}')
    e.I(f'v_add_u32 v{XA}, s38, v{XA}')
    e.I('v_and_b32 v13, 1, v15')
    e.I('v_lshlrev_b32 v13, 2, v13')
    e.I('v_lshrrev_b32 v9, 1, v15')
    e.I('v_lshl_add_u32 v13, v9, 1, v13')
    e.I('v_and_b32 v9, 1, v12')
    e.I('v_add_u32 v13, v13, v9')
    e.I('v_lshrrev_b32 v12, 1, v12')
    e.I('v_lshrrev_b32 v9, 1, v11')
    e.I('v_lshlrev_b32 v9, 8, v9')
    e.I('v_lshl_add_u32 v9, v12, 7, v9')
    e.I('v_lshl_add_u32 v9, v13, 4, v9')
    e.I(f'v_and_b32 v{VA}, 1, v11')
    e.I(f'v_lshl_add_u32 v9, v{VA}, 3, v9')
    e.I('s_lshl_b32 s38, s25, 10')
    e.I('s_lshr_b32 s39, s22, 1')
    e.I('s_lshl_b32 s39, s39, 9')
    e.I('s_add_u32 s38, s38, s39')
    e.I('s_and_b32 s39, s22, 1')
    e.I('s_lshl_b32 s39, s39, 2')
    e.I('s_add_u32 s38, s38, s39')
    e.I('v_add_u32 v9, s38, v9')
    e.I(f'v_lshlrev_b32 v{VA}, 8, v11')
    e.I(f'v_lshl_add_u32 v{VA}, v13, 4, v{VA}')
    e.I(f'v_lshl_add_u32 v{VA}, v12, 2, v{VA}')
    e.I('s_lshr_b32 s38, s27, 1')
    e.I('s_cmp_ge_u32 s38, 3')
    e.I('s_cselect_b32 s39, 3, 0')
    e.I('s_cselect_b32 s40, 128, 0')
    e.I('s_sub_u32 s38, s38, s39')
    e.I('s_lshl_b32 s38, s38, 10')
    e.I('s_add_u32 s38, s38, s40')
    e.I('s_and_b32 s39, s27, 1')
    e.I('s_lshl_b32 s39, s39, 3')
    e.I('s_add_u32 s38, s38, s39')
    e.I(f'v_add_u32 v{VA}, s38, v{VA}')
    e.I(f'v_mul_u32_u24 v{MP}, 5, v1')
    e.I(f'v_lshrrev_b32 v{MP}, 3, v{MP}')
    e.I(f'v_lshlrev_b32 v{MP}, 8, v{MP}')
    e.I(f'v_mov_b32 v{IDX}, 0x44444444')
    e.I('v_mov_b32 v11, 0xeeeeeeee')
    e.I('v_cmp_lt_u32 vcc, 7, v14')
    e.I(f'v_cndmask_b32 v{IDX}, v{IDX}, v11, vcc')
    e.I(f'v_mov_b32 v{SEL}, 0x05040100')
    e.I('v_mov_b32 v11, 0x03020706')
    e.I('v_and_b32 v12, 1, v1')
    e.I('v_cmp_eq_u32 vcc, 1, v12')
    e.I(f'v_cndmask_b32 v{SEL}, v{SEL}, v11, vcc')
    e.I('s_mov_b32 s34, 0x33333333'); e.I('s_mov_b32 s35, 0x33333333')
    e.I('s_mov_b32 s36, 0xcccccccc'); e.I('s_mov_b32 s37, 0xcccccccc')
    for k in range(12): e.I(f'v_mov_b32 v{DQ+k}, 0')
    e.I('s_lshl_b32 s38, s27, 2')
    e.I(f'v_mov_b32 v{ONE+2}, s38')
    e.I(f'v_mov_b32 v{ONE}, 1')
    for k in range(4): e.I(f'v_mov_b32 v{SENT+k}, -1')
    e.I('s_mul_i32 s58, s26, 6144')
    e.I('s_mul_i32 s59, s20, 10240')
    e.I(f's_add_u32 s59, s59, {MEM}')
    e.I('s_mul_i32 s60, s26, 3072')
    e.I('s_lshl_b32 s61, s20, 6')
    e.I('s_lshl_b32 s38, s24, 2')
    e.I('s_add_u32 s61, s61, s38')
    e.I(f's_add_u32 s61, s61, {FLGOX}')
    e.I('v_mov_b32 v10, 0')

    def late_list():
        return [f'buffer_store_dwordx2 {vr(KEEP,2)}, v{XA}, {WS}, s43 offen{fl}',
                f'buffer_store_dwordx2 {vr(SENT,2)}, v{XA}, {WS}, s42 offen{fl}',
                f'buffer_store_dword v{KEEP+2}, v{VA}, {WS}, s44 offen{fl}',
                f'buffer_store_dword v{SENT}, v9, {WS}, s46 offen{fl}']
    def late_stores():
        for x_ in late_list(): e.I(x_)
    def xwork(late, mats=(2, 1, 0), dma=True):
        e.I('s_and_b32 s65, s64, 1')
        e.I('s_mul_i32 s66, s65, 40960')
        e.I('v_add_u32 v12, s66, v2')
        e.I('s_xor_b32 s65, s65, 1')
        e.I('s_mul_i32 s65, s65, 40960')
        e.I('s_add_u32 s65, s65, s62')
        e.I('s_add_u32 s66, s64, 1')
        e.I('s_min_u32 s66, s66, 63')
        e.I('s_mul_i32 s66, s66, 40960')
        e.I('s_add_u32 s66, s66, s62')
        e.I(f's_add_u32 s66, s66, {XN}')
        e.I(f's_and_b32 s47, s64, {RD-1}')
        e.I(f's_mul_i32 s47, s47, {SEG_QX}')
        e.I('s_lshl_b32 s48, s58, 1')
        e.I('s_add_u32 s47, s47, s48')
        if late:
            e.I(f's_max_u32 s50, s64, {RD}')
            e.I(f's_sub_u32 s50, s50, {RD}')
            e.I('s_lshl_b32 s50, s50, 9')
            e.I('s_add_u32 s50, s50, s61')
            e.I(f'buffer_load_dword v{TCH}, v10, {WS}, s50 offen sc1')
        PF = opt.xpf
        def rd(n): e.I(f'ds_read_b128 {vr(MF + (n % 20)*4)}, v12 offset:{n*1024}')
        def out(m, rt, part=3):
            d = XD + (m*2+rt)*4; o = T0 + (m*2+rt)*2
            if part & 1:
                e.I(f'v_cvt_pk_bf16_f32 v{o}, v{d}, v{d+1}')
                e.I(f'v_cvt_pk_bf16_f32 v{o+1}, v{d+2}, v{d+3}')
            if part & 2:
                e.I(f's_add_u32 s48, s47, {(QX, KX, VX)[m] + rt*6144}')
                e.I(f'buffer_store_dwordx2 {vr(o,2)}, v8, {WS}, s48 offen{fl}')
        for n in range(PF): rd(n)
        ls = late_list() if late else []
        d0 = opt.xdma0
        for n in range(40):
            rt, kk = n // 20, n % 20
            e.I(f's_waitcnt lgkmcnt({min(40, n + PF) - (n + 1)})')
            f = vr(MF + (n % 20)*4)
            for m in mats:
                Wb = (WQ, WK, WV)[m]
                d = vr(XD + (m*2+rt)*4)
                e.I(f'{MFMA} {d}, {ar(Wb+4*kk)}, {f}, {0 if kk == 0 else d}')
            if n + PF < 40: rd(n + PF)
            if late and n == 5:
                bp = e.lab('Lbp')
                e.I(f's_cmp_lt_u32 s64, {RD}')
                e.I(f's_cbranch_scc1 {bp}')
                e.I('s_waitcnt vmcnt(0)')
                e.I(f'v_cmp_eq_u32 vcc, 0, v{TCH}')
                e.I(f's_cbranch_vccz {bp}')
                wait_flags(e, 10, 's50', 1, TCH, 13, sleep=1)
                e.L(bp)
            if n >= 6 and ls: e.I(ls.pop(0))
            elif dma and n >= d0 and (n - d0) % opt.xdmas == 0 and (n - d0) // opt.xdmas < 10:
                m = (n - d0) // opt.xdmas
                e.I(f's_add_u32 m0, s65, {m*1024}')
                e.I(f'buffer_load_dwordx4 v2, {WS}, s66 offen lds')
                e.I('s_add_u32 s66, s66, 1024')
            k0 = 23 if len(mats) > 1 else 28
            if k0 <= n < k0 + len(mats): out(mats[n - k0], 0)
        for m in mats: out(m, 1)
    def flag_addr(back):
        e.I(f's_sub_u32 s51, s64, {back}')
        e.I('s_lshl_b32 s51, s51, 5')
        e.I('s_add_u32 s51, s51, s26')
        e.I('s_lshl_b32 s51, s51, 6')
        e.I(f's_add_u32 s51, s51, {FLGQ}')
    def flag_n():
        flag_addr(0)
        e.I('s_waitcnt vmcnt(0)')
        set_flag(e, ONE + 2, 's51', ONE, fl)
    def mem_part():
        e.I('s_and_b32 s38, s30, 3')
        e.I('s_xor_b32 s39, s38, 2')
        e.I(f's_mul_i32 s40, s38, {MEM_SLOT}')
        e.I('s_add_u32 s40, s40, s59')
        e.I(f's_mul_i32 s41, s38, {XR_SLOT}')
        e.I('s_add_u32 s41, s41, s58')
        e.I(f's_add_u32 s41, s41, {XR}')
        e.I(f's_mul_i32 s42, s39, {XR_SLOT}')
        e.I('s_add_u32 s42, s42, s58')
        e.I(f's_add_u32 s42, s42, {XR}')
        e.I(f's_and_b32 s44, s30, {RD-1}')
        e.I(f's_mul_i32 s43, s44, {SEG_XP}')
        e.I('s_add_u32 s43, s43, s58')
        e.I(f's_add_u32 s43, s43, {XP}')
        e.I(f's_mul_i32 s44, s44, {SEG_VM}')
        e.I('s_add_u32 s44, s44, s60')
        e.I(f's_add_u32 s44, s44, {VM}')
        e.I(f's_mul_i32 s45, s38, {VR_SLOT}')
        e.I('s_add_u32 s45, s45, s60')
        e.I(f's_add_u32 s45, s45, {VR}')
        e.I(f's_mul_i32 s46, s39, {VR_SLOT}')
        e.I('s_add_u32 s46, s46, s60')
        e.I(f's_add_u32 s46, s46, {VR}')
        def issue(b):
            for k in range(3): e.I(f'buffer_load_dwordx4 {vr(b+4*k)}, v3, {WS}, s40 offen offset:{k*1024} sc1')
        def early(b):
            for k in range(3): e.I(f'ds_write_b128 v5, {vr(b+4*k)} offset:{k*1024}')
        flag_addr(1)
        wl = [e.lab('Lmw') for _ in range(4)]; jn = e.lab('Lmj')
        for w in range(1, 4):
            e.I(f's_cmp_eq_u32 s22, {w}')
            e.I(f's_cbranch_scc1 {wl[w]}')
        def sm(d, W, src, m): e.I(f'{SMF} {vr(d)}, {vr(src)}, {ar(W+8*m,8)}, v{IDX}')
        for w in range(4):
            e.L(wl[w])
            own = [min(3*w, 7) + k for k in range(3)]
            rest = [m for m in range(10) if m not in own]
            def consume(b):
                TS(e, 1)
                if not opt.spec: early(b)
                mine = [(d, W, b + 4*k, m) for k, m in enumerate(own) for d, W in ((DQ, WQ), (DK, WK))] + [(DV, WV, b + 4*k, m) for k, m in enumerate(own)]
                for x_ in mine[:opt.mpre]: sm(*x_)
                e.I('s_waitcnt lgkmcnt(0)')
                e.I('s_barrier')
                for k, m in enumerate(rest): e.I(f'ds_read_b128 {vr(MF+4*k)}, v7 offset:{m*1024}')
                for x_ in mine[opt.mpre:]: sm(*x_)
            if opt.mwait: e.I(f's_sleep {opt.mwait}')
            poll2(e, issue, 3, PA, PB, consume, T0, T0 + 1, 1, early if opt.spec else None)
            e.I('s_mov_b64 vcc, s[34:35]')
            for k, m in enumerate(rest):
                e.I(f's_waitcnt lgkmcnt({6-k})')
                sm(DQ, WQ, MF + 4*k, m); sm(DK, WK, MF + 4*k, m)
            post(lambda k: sm(DV, WV, MF + 4*k, rest[k]))
            if w < 3: e.I(f's_branch {jn}')
        e.L(jn)
        e.I('v_xor_b32 v5, 0xc000, v5')
        e.I('v_xor_b32 v7, 0xc000, v7')
        TS(e, 3)
    def post(vm):
        QP1, QP2 = 'quad_perm:[1,0,3,2] row_mask:0xf bank_mask:0xf', 'quad_perm:[2,3,0,1] row_mask:0xf bank_mask:0xf'
        nv = opt.vpre
        for m in range(nv): vm(m)
        if opt.fpos == 10: e.I(f'buffer_store_dword v{ONE}, v{ONE+2}, {WS}, s51 offen{fl}')
        for r in range(4): e.I(f'v_permlane32_swap_b32 v{DQ+r}, v{DK+r}')
        for r in range(4): e.I(f'v_add_f32 v{DQ+r}, v{DQ+r}, v{DK+r}')
        e.I(f'v_cvt_pk_bf16_f32 v{T0}, v{DQ}, v{DQ+1}')
        e.I(f'v_cvt_pk_bf16_f32 v{T0+1}, v{DQ+2}, v{DQ+3}')
        vm(nv)
        if opt.fpos == 11: e.I(f'buffer_store_dword v{ONE}, v{ONE+2}, {WS}, s51 offen{fl}')
        e.I(f'v_mov_b32_dpp v{T0+2}, v{T0} {QP1}')
        e.I(f'v_mov_b32_dpp v{T0+3}, v{T0+1} {QP1}')
        e.I(f'v_perm_b32 v{T0}, v{T0+2}, v{T0}, v{SEL}')
        e.I(f'v_perm_b32 v{T0+1}, v{T0+3}, v{T0+1}, v{SEL}')
        vm(nv + 1)
        if opt.fpos == 12: e.I(f'buffer_store_dword v{ONE}, v{ONE+2}, {WS}, s51 offen{fl}')
        e.I(f'v_cndmask_b32_dpp v{KEEP}, v{T0+1}, v{T0}, vcc {QP2}')
        e.I('s_mov_b64 vcc, s[36:37]')
        e.I(f'v_cndmask_b32_dpp v{KEEP+1}, v{T0}, v{T0+1}, vcc {QP2}')
        e.I(f'buffer_store_dwordx2 {vr(KEEP,2)}, v{XA}, {WS}, s41 offen{fl}')
        TS(e, 2)
        for m in range(nv + 2, 7): vm(m)
        for k in range(8): e.I(f'v_mov_b32 v{DQ+k}, 0')
        e.I(f'v_permlane32_swap_b32 v{DV}, v{DV+2}')
        e.I(f'v_permlane32_swap_b32 v{DV+1}, v{DV+3}')
        e.I(f'v_add_f32 v{DV}, v{DV}, v{DV+2}')
        e.I(f'v_add_f32 v{DV+1}, v{DV+1}, v{DV+3}')
        e.I(f'v_cvt_pk_bf16_f32 v{T0}, v{DV}, v{DV+1}')
        e.I(f'v_mov_b32_dpp v{T0+2}, v{T0} {QP1}')
        e.I(f'v_perm_b32 v{KEEP+2}, v{T0+2}, v{T0}, v{SEL}')
        e.I(f'buffer_store_dword v{KEEP+2}, v9, {WS}, s45 offen{fl}')
        for k in range(4): e.I(f'v_mov_b32 v{DV+k}, 0')
    w_consume(0, 0, 20); w_issue(3, 0)
    w_consume(1, 1, 20); w_issue(4, 1)
    w_consume(2, 2, 20)
    w_consume(3, 0, 10)
    w_consume(4, 1, 0)
    TS(e, 0)
    wait_reg(e, T0)
    TS(e, 1)
    TSflush(e, '69')
    e.I('s_mul_i32 s62, s22, 10240')
    def xdma(seg, buf):
        e.I(f's_add_u32 s63, s62, {XN + seg*40960}')
        for m in range(10):
            e.I(f's_add_u32 m0, s62, {Q_LX + buf*40960 + m*1024}')
            e.I(f'buffer_load_dwordx4 v2, {WS}, s63 offen lds')
            e.I('s_add_u32 s63, s63, 1024')
    xdma(0, 0)
    w_issue(5, 0)
    xdma(1, 1)
    e.I('s_cmp_lg_u32 s23, 0')
    e.I('s_cbranch_scc1 L_qkvs')
    for slow in (False, True):
        fl = ' sc1' if slow else ''
        if slow: e.L('L_qkvs')
        pro, top, nox, nxt_, q0, q0r, qq, q1 = [e.lab(x_) for x_ in ('Lqp', 'Lqt', 'Lqn', 'Lqx', 'Lq0', 'Lqr', 'Lqq', 'Lq1')]
        e.I('s_mov_b32 s30, 0')
        e.I('s_mov_b32 s64, 0')
        TS(e, 0)
        e.I('s_waitcnt vmcnt(20)')
        TS(e, 1)
        e.I('s_barrier')
        xwork(False, (2, 1), False)
        e.I('s_mov_b32 s64, 1')
        TS(e, 2)
        flag_addr(1)
        e.I('s_waitcnt vmcnt(0)')
        TS(e, 3)
        set_flag(e, ONE + 2, 's51', ONE, fl)
        w_consume(5, 0, 1)
        if opt.urg: wait_count(e, T0, D_W, 80, 4)
        TS(e, 4)
        TSflush(e, '68')
        xwork(False, (2, 1, 0), False)
        e.I('s_mov_b32 s64, 2')
        e.I(f's_branch {top}')
        e.L(q0)
        e.I('s_mov_b32 s64, 0')
        xwork(False, (0,), False)
        e.I('s_barrier')
        xdma(2, 0)
        e.I('s_mov_b32 s64, 2')
        e.I('s_waitcnt vmcnt(0)')
        e.I('s_barrier')
        e.I(f's_branch {q0r}')
        e.L(top)
        TS(e, 0)
        mem_part()
        e.I('s_cmp_eq_u32 s30, 0')
        e.I(f's_cbranch_scc1 {q0}')
        e.L(q0r)
        e.I('s_cmp_ge_u32 s64, 64')
        e.I(f's_cbranch_scc1 {nox}')
        xwork(True)
        e.I('s_cmp_lg_u32 s64, 63')
        e.I(f's_cbranch_scc1 {nxt_}')
        flag_n()
        e.I(f's_branch {nxt_}')
        e.L(nox)
        for x_ in late_list()[0::2]: e.I(x_)
        flag_n()
        e.L(nxt_)
        TS(e, 4)
        e.I('s_add_u32 s64, s64, 1')
        TS(e, 5)
        TSflush(e, 's30')
        e.I('s_add_u32 s30, s30, 1')
        e.I('s_cmp_lt_u32 s30, 64')
        e.I(f's_cbranch_scc1 {top}')
        e.I('s_endpgm')

S_RED = 98304
def role_sw(e):
    fl = ''
    XF, KXF, VXF, VMF = 16, 40, 88, 136
    S, PB, PM = 148, 160, 164
    DW, DM, VWX, VWM = 168, 184, 200, 216
    OUT = DW
    PA = XF
    CI = 224
    T0 = 228; IDX = 246; SENT = 248; ONE = 252
    AONE, AHALF = 96, 100
    PAD = 240
    e.I('s_sub_u32 s24, s21, 12')
    e.I('s_lshl_b32 s25, s24, 2')
    e.I('s_add_u32 s25, s25, s22')
    e.I('s_lshl_b32 s26, s20, 2')
    e.I('s_add_u32 s26, s26, s22')
    srd(e, 8, 66, 6144 * 1280)
    def wo_load():
        e.I(f's_mul_i32 s28, s26, {192*1280}')
        e.I('s_lshl_b32 s29, s24, 7')
        e.I('s_add_u32 s28, s28, s29')
        e.I('v_lshrrev_b32 v17, 3, v1')
        e.I('v_bfe_u32 v18, v1, 4, 2')
        e.I('v_lshlrev_b32 v18, 1, v18')
        e.I('v_and_b32 v19, 7, v1')
        e.I('v_xor_b32 v19, v19, v18')
        e.I('v_mul_u32_u24 v16, 1280, v17')
        e.I('v_lshl_add_u32 v16, v19, 4, v16')
        e.I('s_mul_i32 s46, s22, 24576')
        for n in range(24):
            e.I(f's_add_u32 m0, s46, {n*1024}')
            e.I(f'buffer_load_dwordx4 v16, s[8:11], s28 offen{WFL[opt.wnt]} lds')
            if n < 23: e.I(f's_add_u32 s28, s28, {8*1280}')
        extra = 0
        if opt.pfs == 2: sw_pf(); extra = 3 * (12 - opt.pfh)
        e.I('v_lshrrev_b32 v17, 2, v1')
        e.I('v_bfe_u32 v18, v17, 1, 2')
        e.I('v_lshlrev_b32 v17, 7, v17')
        e.I('v_and_b32 v19, 3, v1')
        e.I('v_lshl_add_u32 v17, v19, 3, v17')
        e.I('v_add_u32 v17, s46, v17')
        for ct in range(4):
            e.I(f'v_xor_b32 v19, {ct}, v18')
            e.I(f'v_lshl_add_u32 v{20+ct}, v19, 5, v17')
        for kk in range(6):
            e.I(f's_waitcnt vmcnt({20 - 4*kk + extra})')
            for ct in range(4):
                e.I(f'ds_read_b64_tr_b16 {ar((ct*6+kk)*4,2)}, v{20+ct} offset:{kk*4096}')
                e.I(f'ds_read_b64_tr_b16 {ar((ct*6+kk)*4+2,2)}, v{20+ct} offset:{kk*4096+2048}')
        e.I('s_waitcnt lgkmcnt(0)')
    nocal = e.lab('Lnc')
    e.I('s_cmp_lg_u32 s25, 8')
    e.I(f's_cbranch_scc1 {nocal}')
    e.I('s_lshl_b32 s38, s20, 7')
    e.I(f's_add_u32 s38, s38, {CAL}')
    e.I('s_add_u32 s39, s38, 8192')
    e.I('s_mov_b32 s40, -1'); e.I('s_mov_b32 s41, -1'); e.I('s_mov_b32 s42, 4')
    e.I('v_mov_b32 v10, 0')
    e.I('s_mov_b64 exec, 1')
    cal = e.lab('Lcal')
    e.L(cal)
    for so, acc in (('s38', 's40'), ('s39', 's41')):
        e.I(f'buffer_store_dword v10, v10, {WS}, {so} offen sc1')
        e.I('s_waitcnt vmcnt(0)')
        e.I('s_memtime s[44:45]')
        e.I('s_waitcnt lgkmcnt(0)')
        e.I(f'buffer_load_dword v11, v10, {WS}, {so} offen sc1')
        e.I('s_waitcnt vmcnt(0)')
        e.I('s_memtime s[46:47]')
        e.I('s_waitcnt lgkmcnt(0)')
        e.I('s_sub_u32 s46, s46, s44')
        e.I(f's_min_u32 {acc}, {acc}, s46')
    e.I('s_sub_u32 s42, s42, 1')
    e.I('s_cmp_lg_u32 s42, 0')
    e.I(f's_cbranch_scc1 {cal}')
    e.I('s_cmp_lt_u32 s41, s40')
    if opt.pflip: e.I('s_cmp_ge_u32 s41, s40')
    e.I('s_cselect_b32 s38, 2, 1')
    e.I('v_mov_b32 v11, s38')
    e.I('s_lshl_b32 s38, s20, 2')
    e.I('v_mov_b32 v10, s38')
    e.I(f'global_store_dword v10, v11, s[74:75] offset:{D_PAR} sc1')
    e.I('s_mov_b64 exec, -1')
    e.L(nocal)
    def sw_pf():
        srd(e, 12, 64, 640 * 12288); srd(e, 16, 60, 640 * 12288)
        prefetch_w(e, 's25', opt.pfh, 12, 32, 's[12:15]', 's[16:19]')
    if opt.pfs == 1: sw_pf()
    def early_touch():
        jobs = []
        for sl in range(2): jobs += [(b_ + sl * SEG_QX, 12288, 96) for b_ in (KX, VX)]
        for sl in range(2): jobs += [(QX + sl * SEG_QX, 12288, 96), (XP + sl * SEG_XP, 6144, 48), (VM + sl * SEG_VM, 3072, 24)]
        touch_jobs(e, jobs, 's24', 10, 's26', 24)
    if opt.tord == 0: early_touch()
    if not opt.swlate: wo_load()
    if opt.tord == 1: early_touch()
    e.I(f's_mov_b32 s52, {SC_L2E:#x}'); e.I(f's_mov_b32 s53, {SC_L2E | 0x80000000:#x}')
    lane_ig(e, 14, 15)
    e.I('v_and_b32 v13, 7, v14')
    e.I('v_lshlrev_b32 v13, 4, v13')
    e.I('v_lshl_add_u32 v13, v15, 7, v13')
    e.I('v_bfe_u32 v5, v1, 3, 1')
    e.I('s_lshl_b32 s38, s22, 9')
    e.I(f's_add_u32 s38, s38, {S_RED}')
    e.I('v_add_u32 v6, s38, v13')
    e.I('v_lshl_add_u32 v6, v5, 14, v6')
    e.I('s_lshl_b32 s38, s22, 11')
    e.I(f's_add_u32 s38, s38, {S_RED}')
    e.I('v_add_u32 v7, s38, v13')
    e.I('v_lshl_add_u32 v7, v5, 10, v7')
    if opt.pbf: e.I('v_lshrrev_b32 v13, 1, v13')
    e.I('v_lshl_add_u32 v13, v5, 13, v13')
    e.I('v_and_b32 v4, 0x1fff, v13')
    e.I('v_lshlrev_b32 v9, 2, v5')
    e.I('v_xor_b32 v9, s20, v9')
    for m in range(4):
        e.I(f'v_xor_b32 v8, {m}, v9')
        e.I(f'v_lshl_add_u32 v{PAD+m}, v8, 9, v4')
    e.I('v_and_b32 v9, 7, v1')
    e.I('v_lshlrev_b32 v8, 4, v9')
    e.I('v_lshl_add_u32 v8, v5, 7, v8')
    e.I('v_lshl_add_u32 v8, v15, 2, v8')
    e.I('s_lshl_b32 s38, s25, 8')
    e.I('v_add_u32 v8, s38, v8')
    e.I('v_lshrrev_b32 v9, 1, v1')
    e.I('v_lshlrev_b32 v9, 10, v9')
    e.I('v_and_b32 v10, 1, v1')
    e.I('v_lshl_add_u32 v9, v10, 3, v9')
    e.I(f'v_lshlrev_b32 v{ONE+1}, 2, v1')
    for k in range(4): e.I(f'v_mov_b32 v{SENT+k}, -1')
    e.I('s_mov_b32 s68, 0xff00ff00'); e.I('s_mov_b32 s69, 0xff00ff00')
    e.I('s_mov_b32 s70, 0x3f80'); e.I('s_mov_b32 s71, 0x3f800000')
    e.I(f'v_mov_b32 v{CI}, {NEG_BIG:#x}')
    e.I('s_mov_b32 vcc_lo, 0')
    e.I('s_mov_b32 vcc_hi, 0x00ff00ff')
    e.I(f'v_cndmask_b32 v{CI}, v{CI}, 0, vcc')
    for k in range(1, 4): e.I(f'v_mov_b32 v{CI+k}, v{CI}')
    e.I(f'v_mov_b32 v{IDX}, 0x44444444')
    e.I('v_mov_b32 v11, 0xeeeeeeee')
    e.I('v_cmp_lt_u32 vcc, 7, v14')
    e.I(f'v_cndmask_b32 v{IDX}, v{IDX}, v11, vcc')
    e.I('v_mov_b32 v11, 0x3f803f80')
    for k in range(4): e.I(f'v_accvgpr_write_b32 a{AONE+k}, v11')
    e.I('v_mov_b32 v11, 0x3f003f00')
    for k in range(2): e.I(f'v_accvgpr_write_b32 a{AHALF+k}, v11')
    e.I('s_mul_i32 s58, s26, 6144')
    e.I(f's_add_u32 s58, s58, {XR}')
    e.I('s_mul_i32 s57, s26, 3072')
    e.I(f's_add_u32 s57, s57, {VR}')
    e.I('s_lshr_b32 s59, s25, 1')
    e.I('s_lshl_b32 s59, s59, 14')
    e.I('s_and_b32 s38, s25, 1')
    e.I('s_lshl_b32 s38, s38, 12')
    e.I('s_add_u32 s59, s59, s38')
    e.I(f's_add_u32 s59, s59, {PART}')
    e.I('s_lshl_b32 s60, s20, 9')
    e.I('s_add_u32 s60, s60, s59')
    e.I('s_mul_i32 s61, s20, 10240')
    e.I(f's_add_u32 s61, s61, {MEM}')
    e.I('s_mul_i32 s62, s26, 12288')
    e.I('s_lshl_b32 s63, s26, 6')
    e.I(f's_add_u32 s63, s63, {FLGQ}')
    e.I('s_lshl_b32 s38, s20, 2')
    e.I('v_mov_b32 v10, s38')
    wait_flags(e, 10, D_PAR, 1, T0, 12, sleep=4, dbg=True)
    e.I(f'v_readfirstlane_b32 s38, v{T0}')
    e.I('s_nop 3')
    e.I('s_and_b32 s38, s38, 2')
    e.I('s_lshl_b32 s38, s38, 12')
    e.I('s_add_u32 s59, s59, s38')
    e.I('s_lshl_b32 s38, s22, 2')
    e.I(f's_add_u32 s38, s38, {S_RED + 8192}')
    e.I('v_lshlrev_b32 v10, 4, v14')
    e.I('v_add_u32 v10, s38, v10')
    e.I('v_and_b32 v11, 7, v14')
    e.I('v_lshlrev_b32 v11, 4, v11')
    e.I('v_bfe_u32 v12, v1, 3, 1')
    e.I('v_lshl_add_u32 v11, v12, 3, v11')
    e.I(f'v_add_u32 v11, {S_RED + 8192}, v11')
    e.I('v_min_u32 v12, 11, v1')
    e.I('v_lshlrev_b32 v12, 2, v12')
    def kv_loads(dst, base, q0=0, q1=12):
        if q0 >= q1: return
        e.I(f's_and_b32 s48, s49, {RD-1}')
        e.I(f's_mul_i32 s48, s48, {SEG_QX}')
        e.I('s_add_u32 s48, s48, s62')
        e.I(f's_add_u32 s48, s48, {base + (q0//4)*4096}')
        for q in range(q0, q1):
            if q % 4 == 0 and q > q0: e.I('s_add_u32 s48, s48, 4096')
            e.I(f'buffer_load_dwordx4 {vr(dst+4*q)}, v2, {WS}, s48 offen offset:{(q%4)*1024} sc1')
    def vx_loads():
        e.I(f's_and_b32 s48, s49, {RD-1}')
        e.I(f's_mul_i32 s48, s48, {SEG_QX}')
        e.I('s_add_u32 s48, s48, s62')
        e.I(f's_add_u32 s48, s48, {VX}')
        e.I('s_add_u32 s46, s48, 4096')
        e.I('s_add_u32 s56, s48, 8192')
        for kk in range(6):
            for rt in range(2):
                q = rt * 6 + kk
                e.I(f'buffer_load_dwordx4 {vr(VXF+4*q)}, v2, {WS}, {("s48", "s46", "s56")[q//4]} offen offset:{(q%4)*1024} sc1')
    def vw_grp(gi):
        kk, rt = gi // 2, gi % 2
        for ct in range(4):
            d = vr(DW + (ct*2+rt)*4)
            e.I(f'{MFMA} {d}, {vr(VXF+4*(rt*6+kk))}, {ar((ct*6+kk)*4)}, {0 if kk == 0 else d}')
    def vw_x(after, extra=(), nvx=0, g0=0):
        extra = list(extra); nx0 = len(extra)
        for gi in range(g0, 12):
            if gi >= 12 - nvx: e.I(f's_waitcnt vmcnt({11 - gi + nx0 - len(extra)})')
            for _ in range(-(-len(extra) // (12 - gi))): e.I(extra.pop(0))
            if after is not None: e.I(f's_waitcnt vmcnt({after + 11 - gi})')
            vw_grp(gi)
        cv = [f'v_cvt_pk_bf16_f32 v{VWX+4*ct+k}, v{DW+8*ct+2*k}, v{DW+8*ct+2*k+1}' for ct in range(4) for k in range(4)] + [f'v_mov_b32 v{DM+k}, 0' for k in range(16)]
        for n_, x_ in enumerate(cv):
            if extra and n_ % 2 == 0: e.I(extra.pop(0))
            e.I(x_)
    TS(e, 0)
    wait_reg(e, T0, opt.rsleep)
    TS(e, 1)
    if opt.swlate: wo_load()
    if opt.tord == 2: early_touch()
    TS(e, 2)
    TSflush(e, '69', 244, 245)
    if opt.touch2:
        e.I('v_lshrrev_b32 v16, 4, v1')
        e.I(f's_mov_b32 s38, {PART_SLOT}')
        e.I('v_mul_lo_u32 v16, s38, v16')
        e.I('v_bfe_u32 v17, v1, 1, 3')
        e.I('v_lshl_add_u32 v16, v17, 9, v16')
        e.I('v_and_b32 v17, 1, v1')
        e.I('v_lshl_add_u32 v16, v17, 7, v16')
        if opt.ptouch == 2: e.I('s_mov_b32 exec_lo, 0')
        if opt.ptouch: e.I(f'buffer_load_dword v17, v16, {WS}, s59 offen sc1{" nt" if opt.ptouch == 3 else ""}')
        e.I('s_mov_b64 exec, -1')
    wait_flags(e, ONE + 1, 's63', 0xfff, T0, 11, sleep=2)
    e.I('s_mov_b32 s49, 0')
    vx_loads()
    kv_loads(KXF, KX)
    vw_x(12)
    e.I('s_cmp_lg_u32 s23, 0')
    e.I('s_cbranch_scc1 L_sws')
    for slow in (False, True):
        fl = ' sc1' if slow else ''
        if slow: e.L('L_sws')
        top = e.lab('Lwt')
        e.I('s_mov_b32 s30, 0')
        e.L(top)
        TS(e, 0)
        if opt.pdiag: e.I('s_mov_b32 s94, 0')
        e.I('s_and_b32 s38, s30, 3')
        e.I('s_xor_b32 s39, s38, 2')
        e.I(f's_mul_i32 s40, s38, {XR_SLOT}')
        e.I('s_add_u32 s40, s40, s58')
        e.I('s_add_u32 s54, s40, 4096')
        e.I(f's_mul_i32 s55, s38, {VR_SLOT}')
        e.I('s_add_u32 s55, s55, s57')
        if opt.fresh:
            e.I(f's_mul_i32 s41, s30, {PART_SLOT}')
            e.I(f's_add_u32 s41, s41, {SCRATCH + 0x400000 - PART + 0x200000}')
        else:
            e.I(f's_mul_i32 s41, s38, {PART_SLOT}')
        e.I('s_add_u32 s42, s41, s60')
        e.I('s_add_u32 s41, s41, s59')
        if opt.fresh:
            e.I('s_lshr_b32 s47, s41, 8')
            e.I('s_not_b32 s47, s47')
            e.I('s_and_b32 s47, s47, 8192')
            e.I('s_xor_b32 s41, s41, s47')
        e.I('s_xor_b32 s47, s41, 8192')
        e.I(f's_mul_i32 s43, s39, {PART_SLOT}')
        e.I('s_add_u32 s43, s43, s60')
        e.I('s_add_u32 s49, s30, 1')
        e.I('s_and_b32 s44, s49, 3')
        e.I('s_xor_b32 s45, s44, 2')
        e.I(f's_mul_i32 s44, s44, {MEM_SLOT}')
        e.I('s_add_u32 s44, s44, s61')
        e.I(f's_mul_i32 s45, s45, {MEM_SLOT}')
        e.I('s_add_u32 s45, s45, s61')
        e.I(f's_and_b32 s46, s49, {RD-1}')
        e.I(f's_mul_i32 s46, s46, {SEG_QX}')
        e.I('s_add_u32 s46, s46, s62')
        e.I(f's_add_u32 s65, s46, {KX}')
        e.I(f's_add_u32 s46, s46, {VX}')
        e.I('s_add_u32 s56, s46, 4096')
        e.I('s_add_u32 s64, s46, 8192')
        e.I('s_add_u32 s66, s65, 4096')
        e.I('s_add_u32 s67, s65, 8192')
        e.I('s_lshl_b32 s50, s49, 11')
        e.I('s_add_u32 s50, s50, s63')
        pl, pd, fr, hl, hd = e.lab('Lxp'), e.lab('Lxd'), e.lab('Lxf'), e.lab('Lhp'), e.lab('Lhd')
        def probe(lp, dn, va, so, bad):
            e.I('s_mov_b64 exec, 0xfff')
            e.I(f'buffer_load_dword v{T0}, v{va}, {WS}, {so} offen sc1')
            e.L(lp)
            for a_, b_ in ((T0, T0 + 1), (T0 + 1, T0)):
                e.I(f'buffer_load_dword v{b_}, v{va}, {WS}, {so} offen sc1')
                e.I('s_waitcnt vmcnt(1)')
                e.I(f'v_cmp_eq_u32 vcc, {bad}, v{a_}')
                e.I(f's_cbranch_vccz {dn}')
            e.I('s_sub_u32 s31, s31, 1')
            e.I(f's_cbranch_scc0 {lp}')
            e.I('s_mov_b32 s31, 2')
            e.I('s_branch L_fail')
        e.I(f's_mov_b32 s31, {TMO}')
        probe(hl, hd, 12, 's50', 0)
        xp = e.lab('Lxq')
        e.L(xp)
        probe(pl, pd, 9, 's40', -1)
        e.L(hd)
        if opt.hdelay: e.I(f's_nop {opt.hdelay - 1}')
        if not opt.heads: e.I(f's_branch {xp}')
        e.L(pd)
        e.I('s_mov_b64 exec, -1')
        TS(e, 1)
        if opt.pdiag: e.I('s_add_u32 s94, s94, 1')
        e.L(fr)
        for p in range(6):
            e.I(f'buffer_load_dwordx4 {vr(XF+4*p)}, v2, {WS}, {"s40" if p < 4 else "s54"} offen offset:{(p%4)*1024} sc1')
        FQ = CI + 23
        def vm_loads():
            for q in range(3):
                e.I(f'buffer_load_dwordx4 {vr(VMF+4*q)}, v2, {WS}, s55 offen offset:{q*1024} sc1')
        vp = opt.vmpos
        bulk0 = [f'buffer_load_dwordx4 {vr(VXF+4*q)}, v2, {WS}, {("s46", "s56", "s64")[q//4]} offen offset:{(q%4)*1024} sc1' for q in (0, 6, 1, 7, 2, 8)]
        nvm = 0
        if vp == 0: vm_loads(); nvm = 3
        for p in range(6):
            x = vr(XF + 4*p)
            e.I(f's_waitcnt vmcnt({5-p+nvm})')
            e.I(f'{MFMA} {vr(S+4)}, {vr(KXF+4*p)}, {x}, {0 if p == 0 else vr(S+4)}')
            e.I(f'{MFMA} {vr(S+8)}, {vr(KXF+24+4*p)}, {x}, {0 if p == 0 else vr(S+8)}')
            e.I(f'{MFMA} {vr(S)}, {x}, {x}, {vr(CI) if p == 0 else vr(S)}')
            if vp == p + 1: vm_loads(); nvm = 3
            if p >= 6 - opt.kx and p >= vp: e.I(bulk0[p - (6 - opt.kx)]); nvm += 1
            r = XF + 4 * p
            if opt.thin:
                e.I(f'v_max_u32 v{T0+2}, v{r}, v{r+2}' if p == 0 else f'v_max3_u32 v{T0+2}, v{T0+2}, v{r}, v{r+2}')
            elif p == 0:
                e.I(f'v_max3_u32 v{T0+2}, v{r}, v{r+1}, v{r+2}')
                e.I(f'v_max_u32 v{T0+2}, v{T0+2}, v{r+3}')
            else:
                e.I(f'v_max3_u32 v{T0+2}, v{T0+2}, v{r}, v{r+1}')
                e.I(f'v_max3_u32 v{T0+2}, v{T0+2}, v{r+2}, v{r+3}')
        e.I(f'v_cmp_eq_u32 vcc, -1, v{T0+2}')
        ok = e.lab('Lxo')
        e.I(f's_cbranch_vccz {ok}')
        e.I('s_sub_u32 s31, s31, 1')
        e.I('s_nop 7')
        e.I(f's_cbranch_scc0 {xp}')
        e.I('s_mov_b32 s31, 2')
        e.I('s_branch L_fail')
        e.L(ok)
        TS(e, 2)
        vl, vd = e.lab('Lvp'), e.lab('Lvd')
        vl2 = e.lab('Lv2')
        if opt.kx: e.I(f's_waitcnt vmcnt({opt.kx})'); e.I(f's_branch {vl2}')
        e.L(vl)
        e.I('s_waitcnt vmcnt(0)')
        e.L(vl2)
        check_sent(e, [r_ for r_ in range(VMF, VMF + 12) if not opt.thin or r_ % 4 < 2], T0 + 2, T0 + 3)
        e.I(f's_cbranch_vccz {vd}')
        vm_loads()
        e.I('s_sub_u32 s31, s31, 1')
        e.I(f's_cbranch_scc0 {vl}')
        e.I('s_mov_b32 s31, 3')
        e.I('s_branch L_fail')
        e.L(vd)
        TS(e, 3)
        PW = 2 if opt.pbf else 4
        if opt.rpos == 0: e.I(f'buffer_store_dwordx{PW} {vr(SENT,PW)}, v13, {WS}, s43 offen sc1')
        ROR8 = 'row_ror:8 row_mask:0xf bank_mask:0xf'
        sm = [f'{SMF} {vr(DM+4*ct)}, {vr(VMF+4*m)}, {ar((ct*6+2*m)*4,8)}, v{IDX}' for m in range(3) for ct in range(4)]
        t = T0 + 2
        V = []
        for r in range(4): V.append(f'v_mov_b32_dpp v{S+4+r}, v{S+8+r} row_shr:8 row_mask:0xf bank_mask:0xc')
        V += [f'v_max3_f32 v{t}, v{S}, v{S+1}, v{S+2}', f'v_max3_f32 v{t+1}, v{S+3}, v{S+4}, v{S+5}', f'v_max3_f32 v{t}, v{t}, v{S+6}, v{S+7}', f'v_max_f32 v{t}, v{t}, v{t+1}',
              '*', '*', f'v_max_f32_dpp v{t}, v{t}, v{t} {ROR8}', f'v_mov_b32 v{t+1}, v{t}', '*', '*', f'v_permlane16_swap_b32 v{t}, v{t+1}', f'v_max_f32 v{t}, v{t}, v{t+1}',
              f'v_mov_b32 v{t+1}, v{t}', '*', '*', f'v_permlane32_swap_b32 v{t}, v{t+1}', f'v_max_f32 v{t}, v{t}, v{t+1}', f'v_mul_f32 v{t}, s53, v{t}']
        order = [4, 5, 6, 7, 0, 1, 2, 3]
        for i in order: V.append(f'v_fma_f32 v{S+i}, v{S+i}, s52, v{t}')
        for n_, i in enumerate(order):
            V.append(f'v_exp_f32 v{S+i}, v{S+i}')
        bulk = [f'buffer_load_dwordx4 {vr(VXF+4*q)}, v2, {WS}, {("s46", "s56", "s64")[q//4]} offen offset:{(q%4)*1024} sc1' for q in (0, 6, 1, 7, 2, 8, 3, 9, 4, 10, 5, 11)]
        bulk += [f'buffer_load_dwordx4 {vr(KXF+4*q)}, v2, {WS}, {("s65", "s66", "s67")[q//4]} offen offset:{(q%4)*1024} sc1' for q in range(12)]
        kin = bulk[opt.kx:opt.kin]; kp = bulk[opt.kin:opt.kin + opt.kp]; kc = bulk[opt.kin + opt.kp:]
        if opt.nobulk & 1: kin = []
        if opt.nobulk & 2: kp = []
        if opt.nobulk & 4: kc = []
        lim = [opt.n1]
        def ld():
            if kin and lim[0] > 0: e.I(kin.pop(0)); lim[0] -= 1
        for x_ in sm[:opt.smpre]: e.I(x_)
        rest = sm[opt.smpre:]
        cost = 0; prev = None; since = 0
        for x_ in V:
            if x_ == '*':
                if prev == '*' or cost == 0 or not rest: ld(); since = 0
                else: e.I(rest.pop(0)); cost = 0
            else:
                e.I(x_); c_ = 2 if 'v_exp' in x_ else 1; cost += c_; since += c_
                if cost >= opt.smgap and rest: e.I(rest.pop(0)); cost = 0
                elif since >= opt.ldgap: ld(); since = 0
            prev = x_
        for x_ in rest: e.I(x_)
        e.I(f'v_cvt_pk_bf16_f32 v{PB}, v{S+4}, v{S+5}')
        e.I(f'v_cvt_pk_bf16_f32 v{PB+1}, v{S+6}, v{S+7}')
        e.I(f'v_cvt_pk_bf16_f32 v{PM}, v{S}, v{S+1}')
        e.I(f'v_cvt_pk_bf16_f32 v{PM+1}, v{S+2}, v{S+3}')
        e.I(f'v_mov_b32_dpp v{PB+2}, v{PB} {ROR8}')
        e.I(f'v_mov_b32_dpp v{PB+3}, v{PB+1} {ROR8}')
        e.I(f'v_mov_b32 v{t}, v{PM}')
        e.I(f'v_mov_b32 v{t+1}, v{PM+1}')
        if opt.tpos == 0: TS(e, 4)
        def cvm(ct):
            e.I(f'v_cvt_pk_bf16_f32 v{VWM+2*ct}, v{DM+4*ct}, v{DM+4*ct+1}')
            e.I(f'v_cvt_pk_bf16_f32 v{VWM+2*ct+1}, v{DM+4*ct+2}, v{DM+4*ct+3}')
        lim[0] = opt.n2
        SUM = S
        e.I(f'{MFMA} {vr(OUT)}, {vr(VWX)}, {vr(PB)}, 0')
        e.I(f'v_permlane32_swap_b32 v{t}, v{PM}')
        e.I(f'v_permlane32_swap_b32 v{t+1}, v{PM+1}')
        e.I(f'{MFMA} {vr(SUM)}, {ar(AONE)}, {vr(PB)}, 0')
        cvm(0)
        if opt.n2 > 7: ld()
        e.I(f'{MFMA} {vr(OUT+4)}, {vr(VWX+4)}, {vr(PB)}, 0')
        cvm(1)
        if opt.n2 > 6: ld()
        e.I(f'{MFMA} {vr(OUT+8)}, {vr(VWX+8)}, {vr(PB)}, 0')
        cvm(2)
        if opt.n2 > 5: ld()
        e.I(f'{MFMA} {vr(OUT+12)}, {vr(VWX+12)}, {vr(PB)}, 0')
        cvm(3)
        if opt.n2 > 4: ld()
        e.I(f'{MFMA16} {vr(OUT)}, {vr(VWM,2)}, {vr(PM,2)}, {vr(OUT)}')
        ld()
        e.I(f'{MFMA16} {vr(SUM)}, {ar(AHALF,2)}, {vr(PM,2)}, {vr(SUM)}')
        ld()
        for ct in range(1, 4):
            e.I(f'{MFMA16} {vr(OUT+4*ct)}, {vr(VWM+2*ct,2)}, {vr(PM,2)}, {vr(OUT+4*ct)}')
            if ct < 3: ld()
        lim[0] = len(kin) - opt.n3
        while lim[0] > 0: ld()
        if opt.tpos == 1: TS(e, 4)
        e.I('s_not_b64 exec, s[68:69]')
        e.I(f'ds_write_b128 v6, {vr(OUT)}')
        e.I(f'v_rcp_f32 v{t}, v{SUM}')
        e.I(f'ds_write_b128 v6, {vr(OUT+4)} offset:2048')
        e.I(f'ds_write_b32 v10, v{t}')
        e.I(f'ds_write_b128 v6, {vr(OUT+8)} offset:4096')
        e.I(f'ds_write_b128 v6, {vr(OUT+12)} offset:6144')
        e.I('s_mov_b64 exec, -1')
        lim[0] = 99
        while kin: ld()
        e.I('s_waitcnt lgkmcnt(0)')
        if opt.tpos == 2: TS(e, 4)
        e.I('s_barrier')
        if opt.tpos == 3: TS(e, 4)
        e.I(f'ds_read_b64 {vr(t,2)}, v11')
        e.I(f'ds_read_b128 {vr(S)}, v7')
        e.I(f'ds_read_b128 {vr(S+4)}, v7 offset:512')
        e.I('s_waitcnt lgkmcnt(1)')
        for k in range(4): e.I(f'v_mul_f32 v{S+k}, v{S+k}, v{t}')
        e.I('s_waitcnt lgkmcnt(0)')
        for k in range(4): e.I(f'v_fmac_f32 v{S+k}, v{S+4+k}, v{t+1}')
        for k in range(4): e.I(f'v_add_f32_dpp v{S+k}, v{S+k}, v{S+k} {ROR8}')
        if opt.pbf:
            e.I(f'v_cvt_pk_bf16_f32 v{S+4}, v{S}, v{S+1}')
            e.I(f'v_cvt_pk_bf16_f32 v{S+5}, v{S+2}, v{S+3}')
            e.I(f'buffer_store_dwordx2 {vr(S+4,2)}, v13, {WS}, s42 offen sc1')
        else:
            e.I(f'buffer_store_dwordx4 {vr(S)}, v13, {WS}, s42 offen sc1')
        TS(e, 5)
        if opt.rpos == 2: e.I(f'buffer_store_dwordx{PW} {vr(SENT,PW)}, v13, {WS}, s43 offen sc1')
        e.I(f'v_mov_b32 v{PA}, 0'); e.I(f'v_mov_b32 v{PA+1}, 0')
        for k in range(4): e.I(f'v_cndmask_b32 v{S+k}, v{S+k}, 0, s[68:69]')
        if opt.pmf:
            e.I('s_waitcnt vmcnt(2)')
            for gi in range(opt.pmf): vw_grp(gi)
        if opt.pdelay: e.I(f's_sleep {opt.pdelay}')
        def shot():
            e.I('s_mov_b64 exec, s[68:69]')
            e.I(f'buffer_load_dwordx2 {vr(PA,2)}, v{PAD}, {WS}, s41 offen sc1')
            e.I('s_mov_b64 exec, -1')
            for m in range(1, 4): e.I(f'buffer_load_dwordx2 {vr(PA+2*m,2)}, v{PAD+m}, {WS}, s41 offen sc1')
            for k in range(4): e.I(f'v_mov_b32 v{T0+8+k}, v{S+k}')
        ql, qd, qf = e.lab('Lpp'), e.lab('Lpd'), e.lab('Lpf')
        def acc(behind):
            for m in range(4):
                e.I(f's_waitcnt vmcnt({3-m+behind})')
                if m == 0: e.I(f'v_max_u32 v{T0}, v{PA}, v{PA+1}')
                else: e.I(f'v_max3_u32 v{T0}, v{T0}, v{PA+2*m}, v{PA+2*m+1}')
                if m == 3: e.I(f'v_cmp_eq_u32 vcc, -1, v{T0}')
                for k in range(4): e.I(f'v_dot2c_f32_bf16 v{T0+8+k}, {("s70", "s71")[k&1]}, v{PA+2*m+(k>>1)}')
            e.I(f's_cbranch_vccz {qd}')
        shot()
        for gi in range(opt.pmf, opt.pmf + opt.pmf2): vw_grp(gi)
        if kp:
            e.I(f's_nop {opt.kgap}') if opt.kgap < 16 else e.I(f's_sleep {opt.kgap // 16}')
            for x_ in kp: e.I(x_)
            acc(len(kp))
        else:
            e.I(f's_branch {qf}')
        e.L(ql)
        shot()
        e.L(qf)
        acc(0)
        e.I('s_sub_u32 s31, s31, 1')
        e.I(f's_cbranch_scc0 {ql}')
        e.I('s_mov_b32 s31, 4')
        e.I('s_branch L_fail')
        e.L(qd)
        TS(e, 6)
        e.I('s_nop 1')
        for k in range(2): e.I(f'v_add_f32_dpp v{T0+4+k}, v{T0+8+k}, v{T0+8+k} row_ror:8 row_mask:0xf bank_mask:0x3')
        for k in range(2): e.I(f'v_add_f32_dpp v{T0+4+k}, v{T0+10+k}, v{T0+10+k} row_ror:8 row_mask:0xf bank_mask:0xc ; merge')
        e.I(f'v_cvt_pk_bf16_f32 v{T0+4}, v{T0+4}, v{T0+5}')
        e.I(f'buffer_store_dword v{T0+4}, v8, {WS}, s44 offen{fl}')
        TS(e, 7)
        e.I(f'buffer_store_dword v{SENT}, v8, {WS}, s45 offen{fl}')
        if opt.mbar: e.I('s_barrier')
        nvx = max(0, 12 - opt.kin - opt.kp)
        for x_ in kc[:nvx]: e.I(x_)
        assert opt.kin >= opt.pmf + opt.pmf2
        if kp: e.I('s_waitcnt vmcnt(2)')
        vw_x(None, kc[nvx:], nvx, opt.pmf + opt.pmf2)
        TS(e, 8)
        TSflush(e, 's30', 244, 245)
        if opt.dstamp: e.I('s_lshl_b32 s98, s25, 8'); e.I('s_add_u32 s98, s98, s30')
        DSTAMP(e, 2, 's_cmp_eq_u32 s98, 9216')
        if opt.dstamp: e.I('s_lshl_b32 s98, s25, 8'); e.I('s_add_u32 s98, s98, s30')
        DSTAMP(e, 3, 's_cmp_eq_u32 s98, 9218')
        for idx_, st_ in ((6, 2), (7, 62)):
            for o_, off_ in (('clk', 0), ('rt', 2)):
                if opt.dstamp: e.I('s_lshl_b32 s98, s25, 8'); e.I('s_add_u32 s98, s98, s30'); e.I('s_lshl_b32 s99, s20, 16'); e.I('s_add_u32 s98, s98, s99')
                DSTAMP(e, idx_ + off_, f's_cmp_eq_u32 s98, {20*256 + st_}', o_)
        if opt.dstamp: e.I('s_lshl_b32 s98, s25, 8'); e.I('s_add_u32 s98, s98, s30')
        DSTAMP(e, 4, 's_cmp_eq_u32 s98, 9278')
        e.I('s_add_u32 s30, s30, 1')
        e.I('s_cmp_lt_u32 s30, 63')
        e.I(f's_cbranch_scc1 {top}')
        if not slow: e.I('s_branch L_swend')
    e.L('L_swend')
    e.I('s_lshl_b32 s38, s20, 6')
    e.I('s_lshl_b32 s39, s22, 2')
    e.I('s_add_u32 s38, s38, s39')
    e.I(f's_add_u32 s38, s38, {FLGOX + 63*512}')
    e.I(f's_add_u32 s46, s62, {OX + (63 % RD)*SEG_QX}')
    e.I('s_add_u32 s56, s46, 4096')
    e.I('s_add_u32 s64, s46, 8192')
    e.I('s_lshl_b32 s39, s22, 10')
    e.I('v_add_u32 v6, s39, v2')
    e.I('s_lshl_b32 s39, s22, 12')
    e.I('v_add_u32 v7, s39, v2')
    e.I('s_lshr_b32 s40, s24, 1')
    e.I('s_lshl_b32 s40, s40, 2')
    e.I('s_add_u32 s40, s40, s22')
    e.I('s_lshl_b32 s40, s40, 10')
    e.I('s_and_b32 s41, s24, 1')
    e.I('s_lshl_b32 s41, s41, 3')
    e.I('s_add_u32 s40, s40, s41')
    e.I('s_mul_i32 s41, s20, 40960')
    e.I('s_add_u32 s40, s40, s41')
    e.I(f's_add_u32 s40, s40, {PX + 63*SEG_PX}')
    e.I('s_add_u32 s41, s40, 20480')
    e.I('s_mul_i32 s43, s20, 5')
    e.I('s_lshr_b32 s44, s24, 1')
    e.I('s_add_u32 s43, s43, s44')
    e.I('s_lshl_b32 s43, s43, 7')
    e.I(f's_add_u32 s43, s43, {HINT2}')
    e.I('v_mov_b32 v3, 0')
    e.I(f'v_mov_b32 v{ONE}, 1')
    e.I('s_waitcnt vmcnt(0)')
    TS(e, 0)
    wait_flags(e, 3, 's38', 1, T0, 5, sleep=opt.esleep)
    TS(e, 1)
    order = (0, 6, 1, 7, 2, 8, 3, 9, 4, 10, 5, 11)
    for q in order: e.I(f'buffer_load_dwordx4 {vr(VXF+4*q)}, v2, {WS}, {("s46", "s56", "s64")[q//4]} offen offset:{(q%4)*1024} sc1')
    for n_, q in enumerate(order):
        qt, kk = q // 6, q % 6
        e.I(f's_waitcnt vmcnt({11 - n_})')
        for ct in range(4):
            d = vr(DW + (qt*4+ct)*4)
            e.I(f'{MFMA} {d}, {ar((ct*6+kk)*4)}, {vr(VXF+4*q)}, {0 if kk == 0 else d}')
    TS(e, 2)
    for k in range(8): e.I(f'ds_write_b128 v6, {vr(DW+4*k)} offset:{k*4096}')
    e.I('s_waitcnt lgkmcnt(0)')
    e.I('s_barrier')
    for qt in range(2):
        for hh in range(4): e.I(f'ds_read_b128 {vr(KXF+(qt*4+hh)*4)}, v7 offset:{qt*16384 + hh*1024}')
    for qt in range(2):
        r = KXF + qt*16
        e.I(f's_waitcnt lgkmcnt({4 - 4*qt})')
        for k in range(4):
            e.I(f'v_add_f32 v{r+k}, v{r+k}, v{r+4+k}')
            e.I(f'v_add_f32 v{r+8+k}, v{r+8+k}, v{r+12+k}')
        for k in range(4): e.I(f'v_add_f32 v{r+k}, v{r+k}, v{r+8+k}')
        e.I(f'v_cvt_pk_bf16_f32 v{r+4}, v{r}, v{r+1}')
        e.I(f'v_cvt_pk_bf16_f32 v{r+5}, v{r+2}, v{r+3}')
        e.I(f'buffer_store_dwordx2 {vr(r+4,2)}, v2, {WS}, {("s40", "s41")[qt]} offen sc1')
    TS(e, 3)
    e.I('s_and_b32 s38, s25, 7')
    e.I(f's_cmp_eq_u32 s38, {opt.hwv}')
    e.I('s_cselect_b64 exec, 1, 0')
    e.I(f'buffer_store_dword v{ONE}, v3, {WS}, s43 offen sc1')
    e.I('s_mov_b64 exec, -1')
    TSflush(e, '63', 244, 245)
    e.I('s_endpgm')

def role_xw(e):
    OF = 16
    D = 112
    T0 = 160; ONE = 252
    e.I('s_sub_u32 s24, s21, 22')
    srd(e, 8, 66, 6144 * 1280)
    e.I(f's_mul_i32 s28, s20, {768*1280}')
    e.I('s_lshl_b32 s29, s24, 8')
    e.I('s_add_u32 s28, s28, s29')
    e.I('s_add_u32 s29, s28, 128')
    e.I(f'v_lshlrev_b32 v{ONE+1}, 2, v1')
    e.I('s_lshl_b32 s38, s20, 8')
    e.I(f's_add_u32 s38, s38, {FLGQ}')
    if opt.xlate & 1: wait_first(e, T0)
    def ring_touch():
        jobs = []
        for sl in range(RD):
            if sl >= 2: jobs += [(b_ + sl * SEG_QX, 12288, 96) for b_ in (KX, VX, QX)] + [(XP + sl * SEG_XP, 6144, 48), (VM + sl * SEG_VM, 3072, 24)]
            if sl >= 2: jobs += [(OX + (sl - 2) * SEG_QX, 12288, 96)]
        jobs += [(OX + sl * SEG_QX, 12288, 96) for sl in (6, 7)]
        e.I('s_lshl_b32 s40, s20, 2')
        e.I('s_add_u32 s40, s40, s22')
        touch_jobs(e, jobs, 's24', 5, 's40', 16)
    if opt.xlate & 1: ring_touch()
    pass
    load_weights(e, [('s[8:11]', 's28', 0, 768), ('s[8:11]', 's29', 96, 768)], 1280, 256, True, 3, 4)
    e.I(f'v_lshlrev_b32 v{ONE+1}, 2, v1')
    e.I('s_lshl_b32 s38, s20, 2')
    e.I('s_add_u32 s38, s38, s22')
    e.I('s_lshl_b32 s39, s38, 2')
    e.I('v_lshlrev_b32 v3, 7, v1')
    e.I('v_add_u32 v3, s39, v3')
    e.I(f'v_mov_b32 v{ONE}, 1')
    e.I('s_mul_i32 s62, s22, 12288')
    e.I('s_mul_i32 s63, s38, 12288')
    e.I(f's_add_u32 s63, s63, {OX}')
    e.I('s_mul_i32 s64, s20, 40960')
    e.I('s_lshl_b32 s65, s24, 2')
    e.I('s_add_u32 s65, s65, s22')
    e.I('s_lshl_b32 s65, s65, 10')
    e.I('s_add_u32 s64, s64, s65')
    e.I(f's_add_u32 s64, s64, {PX}')
    e.I('s_lshl_b32 s66, s24, 8')
    e.I(f's_add_u32 s66, s66, {FLGPX}')
    def pxflag():
        e.I('s_mov_b64 exec, 3')
        e.I(f'buffer_store_dword v{ONE}, v3, {WS}, s54 offen sc1')
        e.I('s_mov_b64 exec, s[60:61]')
        e.I(f'buffer_store_dword v{ONE}, v6, {WS}, s53 offen sc1')
        e.I('s_mov_b64 exec, -1')
    if not opt.xlate & 1: ring_touch()
    wait_reg(e, T0)
    top, nof, late, nxt_, last = e.lab('Lxt'), e.lab('Lxn'), e.lab('Lxl'), e.lab('Lxx'), e.lab('Lxe')
    e.I('s_lshl_b32 s67, s20, 6')
    e.I('s_lshl_b32 s38, s22, 2')
    e.I('s_add_u32 s67, s67, s38')
    e.I(f's_add_u32 s67, s67, {FLGOX}')
    e.I('s_lshl_b32 s38, s20, 5')
    e.I('s_add_u32 s38, s38, s24')
    e.I('s_lshl_b32 s38, s38, 2')
    e.I('v_mov_b32 v6, s38')
    e.I('v_mov_b32 v4, 0')
    e.I('v_mov_b32 v5, v2')
    def dma(sn):
        e.I(f's_and_b32 s55, {sn}, {RD-1}')
        e.I(f's_mul_i32 s55, s55, {SEG_QX}')
        e.I('s_add_u32 s55, s55, s63')
        e.I(f's_and_b32 s56, {sn}, 1')
        e.I('s_mul_i32 s56, s56, 49152')
        e.I('s_add_u32 s56, s56, s62')
        for m in range(12):
            e.I(f's_add_u32 m0, s56, {m*1024}')
            e.I(f'buffer_load_dwordx4 v2, {WS}, s55 offen sc1 lds')
            if m < 11: e.I('s_add_u32 s55, s55, 1024')
    e.I('s_mov_b32 s30, 0')
    wait_flags(e, 4, 's67', 1, T0, 5, sleep=opt.xsleep)
    dma('s30')
    e.L(top)
    TS(e, 0)
    e.I('s_add_u32 s58, s30, 1')
    e.I('s_min_u32 s57, s58, 62')
    e.I('s_lshl_b32 s57, s57, 9')
    e.I('s_add_u32 s57, s57, s67')
    e.I('s_waitcnt vmcnt(0)')
    e.I(f'buffer_load_dword v{T0}, v4, {WS}, s57 offen sc1')

    e.I('s_cmp_eq_u32 s30, 0')
    e.I(f's_cbranch_scc1 {nof}')
    e.I('s_cmp_lg_u32 s59, 0')
    e.I(f's_cbranch_scc1 {nof}')
    pxflag()
    nof2 = e.lab('Lxm')
    e.I(f's_branch {nof2}')
    e.L(nof)
    for _ in range(2): e.I(f'buffer_load_dword v{T0+1}, v4, {WS}, s57 offen sc1')
    e.L(nof2)
    e.I('s_barrier')
    TS(e, 1)
    e.I(f's_mul_i32 s50, s30, {SEG_PX}')
    e.I('s_add_u32 s50, s50, s64')
    e.I('s_add_u32 s51, s50, 20480')
    e.I('s_mul_i32 s54, s30, 1280')
    e.I('s_add_u32 s54, s54, s66')
    e.I('s_and_b32 s53, s30, 3')
    e.I('s_lshl_b32 s53, s53, 10')
    e.I(f's_add_u32 s53, s53, {HINT}')
    e.I(f's_cmp_ge_u32 s30, {opt.cwarm}')
    e.I('s_cselect_b32 s60, 1, 0')
    e.I('s_cmp_eq_u32 s22, 0')
    e.I('s_cselect_b32 s60, s60, 0')
    e.I('s_mov_b32 s61, 0')
    TS(e, 2)
    PF = 6
    def rd(kk):
        hl, p = kk // 6, kk % 6
        for qt in range(2):
            e.I(f'ds_read_b128 {vr(OF + ((2*kk+qt) % 24)*4)}, v5 offset:{hl*12288 + (qt*6+p)*1024}')
    for kk in range(PF): rd(kk)
    for kk in range(24):
        nxt = min(24, kk + PF) - (kk + 1)
        e.I(f's_waitcnt lgkmcnt({2*nxt})')
        for qt in range(2):
            for b in range(2):
                d = vr(D + 4*(qt*2+b))
                e.I(f'{MFMA} {d}, {ar(96*b+4*kk)}, {vr(OF + ((2*kk+qt) % 24)*4)}, {0 if kk == 0 else d}')
        if kk + PF < 24: rd(kk + PF)
        if kk == 4:
            e.I('s_waitcnt vmcnt(2)')
            e.I(f'v_readfirstlane_b32 s59, v{T0}')
            e.I('s_cmp_eq_u32 s30, 62')
            e.I('s_cselect_b32 s59, 0, s59')
            e.I('s_cmp_eq_u32 s59, 0')
            e.I(f's_cbranch_scc1 {late}')
            dma('s58')
            e.L(late)
        if kk == 16: e.I(f'buffer_load_dword v{T0}, v4, {WS}, s57 offen sc1')
    sc = e.lab('Lxs')
    e.I('s_cmp_lg_u32 s59, 0')
    e.I(f's_cbranch_scc1 {sc}')
    e.I('s_cmp_eq_u32 s30, 62')
    e.I(f's_cbranch_scc1 {sc}')
    e.I('s_waitcnt vmcnt(0)')
    e.I(f'v_readfirstlane_b32 s59, v{T0}')
    e.I('s_cmp_eq_u32 s59, 0')
    e.I(f's_cbranch_scc1 {sc}')
    dma('s58')
    e.L(sc)
    for qt, so in enumerate(('s50', 's51')):
        for k in range(4): e.I(f'v_cvt_pk_bf16_f32 v{D+16+4*qt+k}, v{D+8*qt+2*k}, v{D+8*qt+2*k+1}')
        e.I(f'buffer_store_dwordx4 {vr(D+16+4*qt)}, v2, {WS}, {so} offen sc1')
    e.I('v_xor_b32 v5, 49152, v5')
    TS(e, 3)
    TSflush(e, 's30')
    e.I('s_cmp_eq_u32 s30, 62')
    e.I(f's_cbranch_scc1 {last}')
    e.I('s_cmp_lg_u32 s59, 0')
    e.I('s_mov_b32 s59, 0')
    e.I(f's_cbranch_scc1 {nxt_}')
    e.I(f'buffer_load_dword v{T0}, v4, {WS}, s57 offen sc1')
    e.I('s_waitcnt vmcnt(0)')
    e.I(f'v_readfirstlane_b32 s38, v{T0}')
    e.I('s_cmp_lg_u32 s38, 0')
    sl2 = e.lab('Lxq')
    e.I(f's_cbranch_scc1 {sl2}')
    pxflag()
    e.I('s_mov_b32 s59, 1')
    wait_flags(e, 4, 's57', 1, T0, 5, sleep=opt.xsleep)
    e.L(sl2)
    dma('s58')
    e.L(nxt_)
    e.I('s_mov_b32 s30, s58')
    e.I(f's_branch {top}')
    e.L(last)
    e.I('s_waitcnt vmcnt(0)')
    pxflag()
    if opt.wb & 1:
        e.I('s_cmp_lg_u32 s21, 22'); e.I('s_cbranch_scc1 L_end'); e.I('s_cmp_lg_u32 s22, 0'); e.I('s_cbranch_scc1 L_end')
        e.I('buffer_wbl2 sc1'); e.I('s_waitcnt vmcnt(0)')
    e.I('s_endpgm')

def role_att(e):
    fl = ''
    KF, QF, VF = 0, 48, 96
    XPF = 16
    SA, SB, PA_, PB_ = 40, 48, 60, 64
    DO, OB = 72, 136
    T0 = 226
    C0, C1 = 232, 236
    ONE = 252
    e.I('s_sub_u32 s25, s21, 27')
    e.I('s_lshl_b32 s26, s20, 2')
    e.I('s_add_u32 s26, s26, s22')
    e.I(f's_mov_b32 s52, {SC_L2E:#x}'); e.I(f's_mov_b32 s53, {SC_L2E | 0x80000000:#x}')
    e.I(f'v_lshlrev_b32 v{ONE+1}, 2, v1')
    e.I('s_lshl_b32 s38, s22, 2')
    e.I(f'v_mov_b32 v{ONE+2}, s38')
    e.I(f'v_mov_b32 v{ONE}, 1')
    lane_ig(e, 14, 15)
    e.I(f'v_mov_b32 v3, {NEG_BIG:#x}')
    e.I('v_cmp_gt_u32 vcc, 32, v1')
    e.I(f'v_cndmask_b32 v{C0}, 0, v3, vcc')
    for k in range(1, 4): e.I(f'v_mov_b32 v{C0+k}, v{C0}')
    e.I('v_lshlrev_b32 v5, 2, v15')
    for r in range(4):
        e.I(f'v_add_u32 v6, {r}, v5')
        e.I('v_cmp_gt_u32 vcc, v6, v14')
        e.I(f'v_cndmask_b32 v{C1+r}, 0, v3, vcc')
    e.I('s_mul_i32 s58, s26, 6144')
    e.I('s_lshl_b32 s59, s22, 14')
    e.I('v_and_b32 v4, 3, v1')
    e.I('v_lshlrev_b32 v4, 8, v4')
    e.I('v_bfe_u32 v5, v1, 2, 3')
    e.I('v_lshl_add_u32 v5, v5, 4, v4')
    e.I('v_add_u32 v5, s59, v5')
    e.I('v_lshrrev_b32 v6, 2, v1')
    e.I('v_lshl_add_u32 v4, v6, 4, v4')
    e.I('v_add_u32 v4, s59, v4')
    wait_reg(e, T0)
    e.I('v_lshrrev_b32 v12, 2, v1')
    e.I('v_lshlrev_b32 v12, 8, v12')
    e.I('v_and_b32 v13, 3, v1')
    e.I('v_lshl_add_u32 v12, v13, 2, v12')
    e.I('s_lshl_b32 s38, s20, 4')
    e.I('v_add_u32 v12, s38, v12')
    e.I('s_lshl_b32 s60, s26, 6')
    e.I(f's_add_u32 s60, s60, {FLGQ}')
    e.I('s_cmp_lg_u32 s23, 0')
    e.I('s_cbranch_scc1 L_atts')
    for slow in (False, True):
        fl = ' sc1' if slow else ''
        if slow: e.L('L_atts')
        top = e.lab('Lat')
        e.I('s_mov_b32 s30, s25')
        e.L(top)
        TS(e, 0)
        e.I('s_max_u32 s51, s30, 2')
        e.I('s_lshl_b32 s51, s51, 11')
        e.I('s_add_u32 s51, s51, s60')
        e.I(f's_and_b32 s42, s30, {RD-1}')
        e.I(f's_mul_i32 s40, s42, {SEG_QX}')
        e.I('s_lshl_b32 s41, s58, 1')
        e.I('s_add_u32 s40, s40, s41')
        e.I(f's_mul_i32 s41, s42, {SEG_XP}')
        e.I('s_add_u32 s41, s41, s58')
        nbp = e.lab('Lab')
        e.I(f's_cmp_lt_u32 s30, {RD}')
        e.I(f's_cbranch_scc1 {nbp}')
        e.I(f's_sub_u32 s50, s30, {RD}')
        e.I('s_mul_i32 s50, s50, 1280')
        e.I(f's_add_u32 s50, s50, {FLGPX}')
        wait_flags(e, 12, 's50', 0xfffff, T0, 14, sleep=16)
        e.L(nbp)
        wait_flags(e, ONE + 1, 's51', 0xfff, T0, 6, sleep=opt.asleep)
        def loads(dst, n, sbase, add):
            e.I(f's_add_u32 s48, {sbase}, {add}')
            for q in range(n):
                if q and q % 4 == 0: e.I('s_add_u32 s48, s48, 4096')
                e.I(f'buffer_load_dwordx4 {dst(q)}, v2, {WS}, s48 offen offset:{(q%4)*1024} sc1')
        e.I(f's_add_u32 s48, s40, {VX}')
        for q in range(12):
            e.I(f's_add_u32 m0, s59, {q*1024}')
            e.I(f'buffer_load_dwordx4 v2, {WS}, s48 offen sc1 lds')
            e.I('s_add_u32 s48, s48, 1024')
        loads(lambda q: ar(KF + 4*q), 12, 's40', KX)
        loads(lambda q: ar(QF + 4*q), 12, 's40', QX)
        e.I('s_add_u32 s51, s30, 2')
        e.I('s_lshl_b32 s51, s51, 11')
        e.I('s_add_u32 s51, s51, s60')
        e.I('s_waitcnt vmcnt(24)')
        for T in range(12):
            for rt in range(2):
                e.I(f'ds_read_b64_tr_b16 {ar(VF+6*T+2+2*rt,2)}, v4 offset:{rt*6144 + (T>>1)*1024 + (T&1)*8}')
        e.I('s_waitcnt vmcnt(0)')
        for p in range(6):
            e.I(f'{MFMA} {vr(SA+4)}, {ar(KF+4*p)}, {ar(QF+4*p)}, {vr(C1) if p == 0 else vr(SA+4)}')
            e.I(f'{MFMA} {vr(SB+4)}, {ar(KF+4*p)}, {ar(QF+24+4*p)}, {0 if p == 0 else vr(SB+4)}')
            e.I(f'{MFMA} {vr(SB+8)}, {ar(KF+24+4*p)}, {ar(QF+24+4*p)}, {vr(C1) if p == 0 else vr(SB+8)}')
        wait_flags(e, ONE + 1, 's51', 0xfff, T0, 6, sleep=opt.asleep)
        TS(e, 1)
        loads(lambda q: vr(XPF + 4*q), 6, 's41', XP)
        e.I('s_lshr_b32 s42, s41, 1')
        e.I(f's_add_u32 s48, s42, {VM}')
        for q in range(3):
            e.I(f's_add_u32 m0, s59, {12288 + q*1024}')
            e.I(f'buffer_load_dwordx4 v2, {WS}, s48 offen sc1 lds')
            e.I('s_add_u32 s48, s48, 1024')
        for p in range(6):
            e.I(f's_waitcnt vmcnt({8-p})')
            e.I(f'{MFMA} {vr(SA)}, {vr(XPF+4*p)}, {ar(QF+4*p)}, {vr(C0) if p == 0 else vr(SA)}')
            e.I(f'{MFMA} {vr(SB)}, {vr(XPF+4*p)}, {ar(QF+24+4*p)}, {vr(C0) if p == 0 else vr(SB)}')
        TS(e, 2)
        e.I('s_waitcnt vmcnt(0)')
        for T in range(12):
            kk = T >> 1
            e.I(f'ds_read_b64_tr_b16 {ar(VF+6*T,2)}, v5 offset:{12288 + (kk % 3)*1024 + (kk // 3)*128 + (T&1)*8}')
        for x_ in softmax_list(SA, 8, PA_, T0): e.I(x_)
        e.I(f's_add_u32 s48, s40, {OX}')
        e.I('s_add_u32 s49, s48, 4096')
        e.I('s_add_u32 s50, s48, 8192')
        e.I('s_waitcnt lgkmcnt(0)')
        def fin(qt, p):
            d = DO + 8 * (p + (2 if qt else 0) * 3) % 64; o = OB + 4 * (qt*6 + p); q = qt*6 + p
            return [f'v_cvt_pk_bf16_f32 v{o+k}, v{d+2*k}, v{d+2*k+1}' for k in range(4)] + \
                   [f'buffer_store_dwordx4 {vr(o)}, v2, {WS}, {("s48", "s49", "s50")[q//4]} offen offset:{(q%4)*1024}{fl}']
        smb = softmax_list(SB, 12, PB_, T0)
        for T in range(12):
            e.I(f'{MFMA} {vr(DO+4*T)}, {ar(VF+6*T)}, {vr(PA_)}, 0')
            for _ in range(3): e.I(smb.pop(0))
        outs = [x_ for p in range(6) for x_ in fin(0, p)]
        while smb:
            e.I(smb.pop(0)); e.I(smb.pop(0)) if smb else None
            if outs: e.I(outs.pop(0))
        for x_ in outs: e.I(x_)
        for p in range(6):
            d = DO + 8 * (p + 6) % 64
            for t in range(2): e.I(f'{MFMA16} {vr(d+4*t)}, {ar(VF+6*(2*p+t),2)}, {vr(PB_,2)}, 0')
            for t in range(2): e.I(f'{MFMA} {vr(d+4*t)}, {ar(VF+6*(2*p+t)+2)}, {vr(PB_+2)}, {vr(d+4*t)}')
            if p > 1:
                for x_ in fin(1, p - 2): e.I(x_)
        for p in (4, 5):
            for x_ in fin(1, p): e.I(x_)
        e.I('s_lshl_b32 s50, s30, 3')
        e.I('s_add_u32 s50, s50, s20')
        e.I('s_lshl_b32 s50, s50, 6')
        e.I(f's_add_u32 s50, s50, {FLGOX}')
        e.I('s_waitcnt vmcnt(0)')
        set_flag(e, ONE + 2, 's50', ONE, fl)
        TS(e, 3)
        TSflush(e, 's30', 230, 231)
        e.I('s_add_u32 s30, s30, 2')
        e.I('s_cmp_lt_u32 s30, 64')
        e.I(f's_cbranch_scc1 {top}')
        e.I('s_endpgm')

F_LX, F_LH = 0, 98304
def role_ffn(e):
    ACC2 = 0
    ACC1 = 16
    BF = 48
    HP = 80
    WR = 96
    NW = 40
    e.I('s_sub_u32 s26, s21, 29')
    e.I('s_mul_i32 s25, s20, 3')
    e.I('s_add_u32 s26, s26, s25')
    e.I('s_mov_b32 s24, s26')
    srd(e, 8, 56, 640 * 3072); srd(e, 12, 58, 1536 * 1280)
    if opt.xlate & 4: wait_first(e, 16, opt.fwait)
    transpose_w(e, 's26')
    e.I('s_waitcnt vmcnt(0)')
    e.I('s_barrier')
    count_up(e, 3, D_TR)
    wait_count(e, 3, D_TR, 24, 16)
    if opt.urg: wait_count(e, 3, D_W, 80, 16)
    wait_reg(e, 16, 32)
    e.L('L_ffn_task')
    e.I('s_lshl_b32 s38, s24, 2')
    e.I('s_add_u32 s38, s38, s22')
    e.I('s_mul_i32 s39, s38, 20480')
    e.I(f's_add_u32 s39, s39, {XN}')
    e.I('s_mul_i32 s40, s22, 20480')
    for m in range(20):
        e.I(f's_add_u32 m0, s40, {m*1024}')
        e.I(f'buffer_load_dwordx4 v2, {WS}, s39 offen lds')
        e.I('s_add_u32 s39, s39, 1024')
    for k in range(160): e.I(f'v_accvgpr_write_b32 a{k}, 0')
    e.I('s_mul_i32 s41, s22, 40960')
    e.I(f's_add_u32 s41, s41, {W1F}')
    e.I(f's_mul_i32 s42, s22, {10*48*1024}')
    e.I(f's_add_u32 s42, s42, {W2F}')
    e.I('v_add_u32 v3, 20480, v2')
    for u in range(10):
        e.I(f's_mov_b32 s54, {u*48*1024}')
        e.I(f'v_add_u32 v{4+u}, s54, v2')
    e.I(f'v_add_u32 v14, {F_LH}, v2')
    e.I('s_lshl_b32 s38, s22, 12')
    e.I('v_add_u32 v15, s38, v14')
    def wload(idx, adv):
        dst = vr(WR + (idx % NW) * 4)
        if idx < 40:
            kk, u = idx // 2, idx % 2
            e.I(f's_add_u32 s45, {adv[0]}, {(kk//4)*4096}')
            e.I(f'buffer_load_dwordx4 {dst}, v{2+u}, {WS}, s45 offen offset:{(kk%4)*1024}{" nt" if opt.ffnnt else ""}')
        else:
            pp, u = (idx - 40) // 10, (idx - 40) % 10
            e.I(f'buffer_load_dwordx4 {dst}, v{4+u}, {WS}, {adv[1]} offen offset:{pp*1024}{" nt" if opt.ffnnt else ""}')
    for idx in range(NW - 2): wload(idx, ('s41', 's42'))
    e.I(f's_waitcnt vmcnt({NW-2})')
    e.I('s_barrier')
    top = e.lab('Lft')
    TS(e, 0)
    e.I('s_mov_b32 s30, 0')
    e.L(top)
    e.I('s_cmp_lt_u32 s30, 11')
    e.I('s_cselect_b32 s46, 163840, 0')
    e.I('s_cselect_b32 s47, 4096, 0')
    e.I('s_add_u32 s43, s41, s46')
    e.I('s_add_u32 s44, s42, s47')
    D = NW - 2
    def pref(idx):
        j = idx + D
        if j < 80: wload(j, ('s41', 's42'))
        else: wload(j - 80, ('s43', 's44'))
    def rdx(kk):
        for rt in range(4):
            e.I(f'ds_read_b128 {vr(BF + ((kk%2)*4+rt)*4)}, v{2 if rt < 3 else 3} offset:{(rt if rt < 3 else 2)*20480 + kk*1024}')
    rdx(0)
    for kk in range(20):
        if kk + 1 < 20: rdx(kk + 1)
        e.I(f's_waitcnt vmcnt({D-2}) lgkmcnt({4 if kk+1 < 20 else 0})')
        for u in range(2):
            idx = 2 * kk + u
            for rt in range(4):
                d = vr(ACC1 + (u*4+rt)*4)
                e.I(f'{MFMA} {d}, {vr(WR+(idx%NW)*4)}, {vr(BF+((kk%2)*4+rt)*4)}, {0 if kk == 0 else d}')
        pref(2 * kk); pref(2 * kk + 1)
    for rt in range(4):
        for u in range(2):
            d = ACC1 + (u*4+rt)*4
            for k in range(4): e.I(f'v_max_f32 v{d+k}, 0, v{d+k}')
            e.I(f'v_cvt_pk_bf16_f32 v{HP+rt*4+2*u}, v{d}, v{d+1}')
            e.I(f'v_cvt_pk_bf16_f32 v{HP+rt*4+2*u+1}, v{d+2}, v{d+3}')
        e.I(f'ds_write_b128 v15, {vr(HP+rt*4)} offset:{rt*1024}')
    e.I('s_waitcnt lgkmcnt(0)')
    e.I('s_barrier')
    def rdh(pp):
        for rt in range(4):
            e.I(f'ds_read_b128 {vr(BF + ((pp%2)*4+rt)*4)}, v14 offset:{pp*4096 + rt*1024}')
    rdh(0)
    for pp in range(4):
        if pp + 1 < 4: rdh(pp + 1)
        for u in range(10):
            idx = 40 + pp * 10 + u
            w = f's_waitcnt vmcnt({D-1})'
            if u == 0: w += f' lgkmcnt({4 if pp+1 < 4 else 0})'
            e.I(w)
            for rt in range(4):
                d = ar(ACC2 + (u*4+rt)*4)
                e.I(f'{MFMA} {d}, {vr(WR+(idx%NW)*4)}, {vr(BF+((pp%2)*4+rt)*4)}, {d}')
            pref(idx)
    e.I('v_xor_b32 v14, 16384, v14')
    e.I('v_xor_b32 v15, 16384, v15')
    e.I('s_mov_b32 s41, s43')
    e.I('s_mov_b32 s42, s44')
    e.I('s_add_u32 s30, s30, 1')
    e.I('s_cmp_lt_u32 s30, 12')
    e.I(f's_cbranch_scc1 {top}')
    e.I('s_waitcnt vmcnt(0)')
    TS(e, 1)
    e.I('v_lshlrev_b32 v3, 3, v1')
    e.I(f's_mul_i32 s38, s24, {4*40*512}')
    e.I(f's_mul_i32 s39, s22, {10*512}')
    e.I('s_add_u32 s38, s38, s39')
    e.I(f's_add_u32 s38, s38, {G_}')
    e.I(f's_mov_b32 s52, {f2u(-1.4426950408889634):#x}')
    for rt in range(4):
        e.I(f's_add_u32 s39, s38, {rt*40*512}')
        e.I('s_add_u32 s40, s39, 4096')
        for u in range(10):
            t = 16 + ((rt*10+u) % 4) * 16
            a0 = ACC2 + (u*4+rt)*4
            for k in range(4): e.I(f'v_accvgpr_read_b32 v{t+k}, a{a0+k}')
            e.I(f'v_cvt_pk_bf16_f32 v{t+4}, v{t}, v{t+1}')
            e.I(f'v_cvt_pk_bf16_f32 v{t+5}, v{t+2}, v{t+3}')
            e.I(f'v_lshlrev_b32 v{t}, 16, v{t+4}')
            e.I(f'v_and_b32 v{t+1}, 0xffff0000, v{t+4}')
            e.I(f'v_lshlrev_b32 v{t+2}, 16, v{t+5}')
            e.I(f'v_and_b32 v{t+3}, 0xffff0000, v{t+5}')
            for k in range(4): e.I(f'v_mul_f32 v{t+4+k}, s52, v{t+k}')
            for k in range(4): e.I(f'v_exp_f32 v{t+4+k}, v{t+4+k}')
            for k in range(4): e.I(f'v_add_f32 v{t+4+k}, 1.0, v{t+4+k}')
            for k in range(4): e.I(f'v_rcp_f32 v{t+4+k}, v{t+4+k}')
            for k in range(4): e.I(f'v_mul_f32 v{t+k}, v{t+k}, v{t+4+k}')
            e.I(f'v_cvt_pk_bf16_f32 v{t+8}, v{t}, v{t+1}')
            e.I(f'v_cvt_pk_bf16_f32 v{t+9}, v{t+2}, v{t+3}')
            e.I(f'buffer_store_dwordx2 {vr(t+8,2)}, v3, {WS}, {"s39" if u < 8 else "s40"} offen offset:{(u%8)*512} sc1')
    e.I('s_waitcnt vmcnt(0)')
    TS(e, 2)
    if opt.ts: e.I('s_lshr_b32 s50, s24, 3'); e.I('s_add_u32 s50, s50, 64')
    TSflush(e, 's50')
    e.I('s_barrier')
    e.I('s_cmp_lg_u32 s22, 0')
    e.I('s_cbranch_scc1 L_ffn_nf')
    e.I('v_mov_b32 v4, 1')
    e.I('s_lshl_b32 s38, s24, 2')
    e.I('v_mov_b32 v5, s38')
    e.I(f's_mov_b32 s39, {FLGG}')
    set_flag(e, 5, 's39', 4, ' sc1')
    e.I('s_waitcnt vmcnt(0)')
    e.L('L_ffn_nf')
    e.I('s_cmp_ge_u32 s26, 8')
    e.I(f's_cbranch_scc1 {"L_end" if opt.nocmb else "L_cmb"}')
    e.I('s_add_u32 s24, s24, 24')
    e.I('s_cmp_lt_u32 s24, 32')
    e.I('s_cbranch_scc1 L_ffn_task')
    e.I('s_endpgm')

def role_cmb(e):
    PXR = 16
    GR = 144
    XR_ = 152
    T0 = 160
    srd(e, 8, 68, 2048 * 1280)
    srd(e, 12, 70, 2048 * 1280)
    e.I('s_sub_u32 s24, s26, 8')
    e.I('s_lshl_b32 s24, s24, 2')
    e.I('s_add_u32 s30, s24, s22')
    e.I('v_lshlrev_b32 v3, 2, v1')
    e.I('v_lshlrev_b32 v4, 3, v1')
    e.I('v_mov_b32 v6, 0')
    lane_ig(e, 14, 15)
    e.I('v_mul_u32_u24 v5, 1280, v14')
    e.I('v_lshl_add_u32 v5, v15, 3, v5')
    e.I('s_mov_b32 s49, 0')
    e.I('s_mov_b32 s52, 0x3f80'); e.I('s_mov_b32 s53, 0x3f800000')
    e.I('v_lshrrev_b32 v7, 4, v1')
    e.I('v_mul_u32_u24 v7, 40960, v7')
    e.I('v_lshl_add_u32 v7, v14, 7, v7')
    e.I(f'v_add_u32 v8, {4*40960}, v7')
    if opt.t63:
        e.I('s_add_u32 s38, s30, 1216')
        e.I('s_mul_i32 s39, s38, 3277')
        e.I('s_lshr_b32 s39, s39, 16')
        e.I('s_mul_i32 s40, s39, 20')
        e.I('s_sub_u32 s40, s38, s40')
        e.I(f's_mul_i32 s43, s39, {SEG_PX}')
        e.I('s_lshl_b32 s40, s40, 11')
        e.I('s_add_u32 s43, s43, s40')
        e.I(f's_add_u32 s43, s43, {PX}')
        for k in range(2): e.I(f'buffer_load_dword v{T0}, v{7+k}, {WS}, s43 offen sc1')
    top = e.lab('Lct')
    e.L(top)
    TS(e, 0)
    e.I('s_mul_i32 s38, s30, 3277')
    e.I('s_lshr_b32 s38, s38, 16')
    e.I('s_mul_i32 s39, s38, 20')
    e.I('s_sub_u32 s39, s30, s39')
    e.I('s_cmp_ge_u32 s39, 10')
    e.I('s_cselect_b32 s40, 1, 0')
    e.I('s_mul_i32 s41, s40, 10')
    e.I('s_sub_u32 s41, s39, s41')
    gok = e.lab('Lcg')
    e.I('s_cmp_lg_u32 s49, 0')
    e.I(f's_cbranch_scc1 {gok}')
    e.I(f's_mov_b32 s42, {FLGG}')
    e.I('s_mov_b32 exec_hi, 0')
    e.I(f'buffer_load_dword v{T0}, v3, {WS}, s42 offen sc1')
    e.I('s_waitcnt vmcnt(0)')
    e.I(f'v_cmp_eq_u32 vcc, 0, v{T0}')
    e.I('s_mov_b64 exec, -1')
    e.I('s_cmp_eq_u32 vcc_lo, 0')
    e.I('s_cselect_b32 s49, 1, 0')
    e.I(f's_cbranch_scc1 {gok}')
    e.I('s_lshr_b32 s42, s38, 1')
    e.I('s_lshl_b32 s42, s42, 2')
    e.I(f's_add_u32 s42, s42, {FLGG}')
    wait_flags(e, 6, 's42', 1, T0, 7, sleep=32)
    e.L(gok)
    e.I(f's_mul_i32 s43, s38, {SEG_PX}')
    e.I('s_mul_i32 s44, s40, 20480')
    e.I('s_add_u32 s43, s43, s44')
    e.I('s_lshl_b32 s44, s41, 11')
    e.I('s_add_u32 s43, s43, s44')
    e.I(f's_add_u32 s43, s43, {PX}')
    e.I('s_lshl_b32 s45, s38, 1')
    e.I('s_add_u32 s45, s45, s40')
    e.I('s_mul_i32 s46, s45, 20480')
    e.I('s_lshr_b32 s47, s41, 1')
    e.I('s_lshl_b32 s47, s47, 2')
    e.I('s_and_b32 s48, s41, 1')
    e.I('s_add_u32 s44, s47, s48')
    e.I('s_lshl_b32 s47, s44, 10')
    e.I('s_add_u32 s47, s47, s46')
    e.I(f's_add_u32 s47, s47, {G_}')
    e.I('s_lshl_b32 s48, s44, 6')
    e.I('s_add_u32 s48, s48, s46')
    TO = (0, 4, 1, 5)
    for t in range(4):
        e.I(f'buffer_load_dwordx2 {vr(GR+2*t,2)}, v4, {WS}, s47 offen offset:{TO[t]*512} sc1')
        e.I(f'buffer_load_dwordx2 {vr(XR_+2*t,2)}, v5, s[8:11], s48 offen offset:{TO[t]*32}')
    c1, c2 = e.lab('Lc1'), e.lab('Lc2')
    e.I('s_mul_i32 s50, s38, 10')
    e.I('s_and_b32 s44, s41, 14')
    e.I('s_add_u32 s50, s50, s44')
    e.I('s_lshl_b32 s50, s50, 7')
    e.I(f's_add_u32 s50, s50, {FLGPX}')
    e.I(f's_cmp_ge_u32 s38, {opt.cwarm}')
    e.I(f's_cbranch_scc1 {c1}')
    e.I(f's_add_u32 s42, s38, {opt.clag}')
    e.I('s_lshl_b32 s42, s42, 3')
    e.I('s_add_u32 s42, s42, s20')
    e.I('s_lshl_b32 s42, s42, 6')
    e.I(f's_add_u32 s42, s42, {FLGOX}')
    wait_flags(e, 6, 's42', 1, T0, 9, sleep=opt.lsleep)
    wait_flags(e, 3, 's50', -1, T0, 8, sleep=opt.csleep)
    e.I(f's_branch {c2}')
    e.L(c1)
    e.I('s_and_b32 s42, s38, 3')
    e.I('s_lshl_b32 s42, s42, 3')
    e.I('s_add_u32 s42, s42, s20')
    e.I('s_lshl_b32 s42, s42, 7')
    e.I('s_lshl_b32 s44, s44, 1')
    e.I('s_add_u32 s42, s42, s44')
    e.I(f's_add_u32 s42, s42, {HINT}')
    e.I('s_mul_i32 s51, s20, 5')
    e.I('s_lshr_b32 s44, s41, 1')
    e.I('s_add_u32 s51, s51, s44')
    e.I('s_lshl_b32 s51, s51, 7')
    e.I(f's_add_u32 s51, s51, {HINT2}')
    e.I('s_cmp_eq_u32 s38, 63')
    e.I('s_cselect_b32 s42, s51, s42')
    wait_flags(e, 6, 's42', 1, T0, 9, sleep=2)
    e.I('s_cmp_eq_u32 s38, 63')
    e.I(f's_cbranch_scc1 {c2}')
    wait_flags(e, 3, 's50', -1, T0, 8, sleep=opt.c2sleep)
    e.L(c2)
    TS(e, 1)
    RAW = PXR + 32
    def ld(x):
        for t in range(2):
            if not opt.cdiag & 4: e.I(f'buffer_load_dwordx4 {vr(RAW+(x*2+t)*4)}, v2, {WS}, s43 offen offset:{t*1024} sc1')
        if x < 7: e.I('s_add_u32 s43, s43, 40960')
    def body(depth):
        for x in range(min(depth, 8)): ld(x)
        for x in range(8):
            left = min(depth - 1, 7 - x)
            e.I(f's_waitcnt vmcnt({left*2})')
            if x + depth < 8: ld(x + depth)
            for k in range(16): e.I(f'v_dot2c_f32_bf16 v{PXR+k}, {("s52", "s53")[k&1]}, v{RAW+x*8+(k>>1)}')
        e.I('s_nop 2')
    for k in range(16): e.I(f'v_mov_b32 v{PXR+k}, 0')
    fast, join = e.lab('Lcf'), e.lab('Lcj')
    e.I('s_cmp_ge_u32 s38, 61')
    e.I(f's_cbranch_scc1 {fast}')
    body(opt.cdepth)
    e.I(f's_branch {join}')
    e.L(fast)
    f2, pl_, pk_ = e.lab('Lcg'), e.lab('Lcp'), e.lab('Lck')
    e.I('s_cmp_lg_u32 s38, 63')
    e.I(f's_cbranch_scc1 {f2}')
    e.I(f's_mov_b32 s31, {TMO}')
    e.I('s_mov_b32 s51, s43')
    e.L(pl_)
    e.I('s_mov_b32 s43, s51')
    for x in range(8): ld(x)
    e.I('s_waitcnt vmcnt(0)')
    check_sent(e, range(RAW, RAW + 64), T0, T0 + 1)
    e.I(f's_cbranch_vccz {pk_}')
    e.I('s_sub_u32 s31, s31, 1')
    e.I(f's_cbranch_scc0 {pl_}')
    e.I('s_mov_b32 s31, 8')
    e.I('s_branch L_fail')
    e.L(pk_)
    for x in range(8):
        for k in range(16): e.I(f'v_dot2c_f32_bf16 v{PXR+k}, {("s52", "s53")[k&1]}, v{RAW+x*8+(k>>1)}')
    e.I('s_nop 2')
    e.I(f's_branch {join}')
    e.L(f2)
    body(8)
    e.L(join)
    TS(e, 3)
    for t in range(4):
        b = PXR + 4 * t; u = T0 + 8 * (t % 2)
        e.I(f'v_cvt_pk_bf16_f32 v{u}, v{b}, v{b+1}')
        e.I(f'v_cvt_pk_bf16_f32 v{u+1}, v{b+2}, v{b+3}')
        for h_ in range(2):
            e.I(f'v_lshlrev_b32 v{b+2*h_}, 16, v{u+h_}')
            e.I(f'v_and_b32 v{b+2*h_+1}, 0xffff0000, v{u+h_}')
            e.I(f'v_lshlrev_b32 v{u+2+2*h_}, 16, v{GR+2*t+h_}')
            e.I(f'v_and_b32 v{u+3+2*h_}, 0xffff0000, v{GR+2*t+h_}')
        for k in range(4): e.I(f'v_mul_f32 v{b+k}, v{b+k}, v{u+2+k}')
        e.I(f'v_cvt_pk_bf16_f32 v{u}, v{b}, v{b+1}')
        e.I(f'v_cvt_pk_bf16_f32 v{u+1}, v{b+2}, v{b+3}')
        for h_ in range(2):
            e.I(f'v_lshlrev_b32 v{b+2*h_}, 16, v{u+h_}')
            e.I(f'v_and_b32 v{b+2*h_+1}, 0xffff0000, v{u+h_}')
            e.I(f'v_lshlrev_b32 v{u+2+2*h_}, 16, v{XR_+2*t+h_}')
            e.I(f'v_and_b32 v{u+3+2*h_}, 0xffff0000, v{XR_+2*t+h_}')
        for k in range(4): e.I(f'v_add_f32 v{b+k}, v{b+k}, v{u+2+k}')
        e.I(f'v_cvt_pk_bf16_f32 v{u+6}, v{b}, v{b+1}')
        e.I(f'v_cvt_pk_bf16_f32 v{u+7}, v{b+2}, v{b+3}')
        e.I(f'buffer_store_dwordx2 {vr(u+6,2)}, v5, s[12:15], s48 offen offset:{TO[t]*32}{("", " sc1", " nt")[opt.ost]}')
    TS(e, 2)
    if opt.ts: e.I('s_lshr_b32 s50, s30, 6')
    TSflush(e, 's50')
    e.I('s_add_u32 s30, s30, 64')
    e.I('s_cmp_lt_u32 s30, 1280')
    e.I(f's_cbranch_scc1 {top}')
    DSTAMP(e, 5)
    e.I(f's_cmp_lg_u32 s30, {1279 + 64}')
    e.I('s_cbranch_scc1 L_end')
    e.I('s_mov_b32 exec_hi, 0xffff')
    e.I(f'global_store_dword v3, v6, s[74:75] offset:{D_TR} sc1')
    e.I('s_endpgm')

def gen_mainkernel(e):
    kernel_head(e, MAIN)
    e.I('s_cmp_ge_u32 s2, 256')
    e.I('s_cbranch_scc1 L_end')
    e.I('s_load_dwordx2 s[32:33], s[0:1], 96')
    e.I('s_load_dwordx4 s[60:63], s[0:1], 16')
    e.I('s_load_dwordx4 s[64:67], s[0:1], 32')
    e.I('s_load_dwordx4 s[52:55], s[0:1], 0')
    e.I('s_load_dwordx4 s[56:59], s[0:1], 64')
    e.I('s_load_dwordx4 s[72:75], s[0:1], 80')
    TS(e, 0)
    e.I('s_getreg_b32 s24, hwreg(HW_REG_XCC_ID)')
    e.I('v_and_b32 v1, 63, v0')
    e.I('v_lshlrev_b32 v2, 4, v1')
    e.I('v_lshrrev_b32 v3, 6, v0')
    e.I('v_readfirstlane_b32 s22, v3')
    if opt.cwarm2:
        e.I('s_getpc_b64 s[34:35]')
        e.L('L_pc')
        e.I('s_lshr_b32 s36, s2, 3')
        e.I('s_lshl_b32 s36, s36, 2')
        e.I('v_add_u32 v3, s36, v3')
        e.I(f'v_mul_u32_u24 v3, {opt.cwarm2}, v3')
        e.I(f'v_min_u32 v4, {opt.cwarm2 - 1}, v1')
        e.I('v_add_u32 v3, v3, v4')
        e.I('v_lshlrev_b32 v3, 7, v3')
        e.I('v_min_u32 v3, L_last-L_pc, v3')
        e.I('v_mov_b32 v5, s35')
        e.I('v_add_co_u32 v4, vcc, s34, v3')
        e.I('v_addc_co_u32 v5, vcc, 0, v5, vcc')
        e.I('global_load_dword v255, v[4:5], off')
    if opt.force_slow:
        e.I('s_lshr_b32 s20, s2, 5'); e.I('s_and_b32 s21, s2, 31')
    else:
        e.I('s_and_b32 s20, s2, 7'); e.I('s_lshr_b32 s21, s2, 3')
    e.I('s_and_b32 s24, s24, 15')
    e.I('s_lshl_b32 s96, s20, 4')
    e.I('s_and_b32 s25, s24, 12')
    e.I('s_add_u32 s96, s96, s25')
    e.I('s_and_b32 s25, s24, 3')
    e.I('s_lshl_b32 s25, s25, 3')
    e.I('s_lshl_b32 s97, 1, s25')
    e.I('s_waitcnt lgkmcnt(0)')
    e.I('s_mov_b64 s[70:71], s[72:73]')
    e.I('s_mov_b64 s[68:69], s[52:53]')
    srd(e, 4, 32, WS_BYTES)
    TS(e, 1)
    TSflush(e, '70')
    if opt.dstamp: e.I('s_lshl_b32 s98, s21, 2'); e.I('s_add_u32 s98, s98, s22')
    DSTAMP(e, 0, 's_cmp_eq_u32 s98, 84', 'neg')
    e.I('s_cmp_ge_u32 s21, 22'); e.I('s_cbranch_scc1 L_help')
    e.I('s_sub_u32 s24, s21, 12')
    if opt.urg: e.I('s_cmp_lt_u32 s24, 2')
    else: e.I('s_cmp_eq_u32 s24, 1')
    e.I('s_cbranch_scc1 L_urg')
    register(e, 3, 4)
    e.I('s_cmp_ge_u32 s21, 12'); e.I('s_cbranch_scc1 L_wo')
    role_qkv(e)
    e.L('L_urg')
    srd(e, 8, 52, 2048 * 1280); srd(e, 12, 54, 8 * 1280)
    e.I('s_cmp_lg_u32 s24, 0')
    e.I('s_cbranch_scc1 L_um')
    ln_addr(e)
    e.I('s_mul_i32 s25, s20, 20480')
    ln_load(e, 16, 's25')
    e.I('s_waitcnt vmcnt(0)')
    ln_compute(e, 16, 's25')
    e.I('s_branch L_ur')
    e.L('L_um')
    mem0_copy(e, None, 0)
    e.I('s_mul_i32 s41, s20, 10240')
    e.I(f's_add_u32 s41, s41, {MEM}')
    e.I('s_waitcnt vmcnt(0)')
    mem0_copy(e, 's41', 1)
    e.L('L_ur')
    e.I('s_waitcnt vmcnt(0)')
    e.I('s_barrier')
    register(e, 3, 4)
    e.L('L_wo'); role_sw(e)
    e.L('L_help')
    srd(e, 8, 52, 2048 * 1280)
    e.I('s_mul_i32 s24, s20, 10')
    e.I('s_add_u32 s24, s24, s21')
    e.I('s_sub_u32 s24, s24, 22')
    if opt.urg: init_fill(e, 's24', 80)
    ln_addr(e)
    e.I('s_mul_i32 s25, s24, 20480')
    if opt.urg: e.I(f's_add_u32 s25, s25, {8*20480}')
    e.I(f's_add_u32 s26, s25, {80*20480}')
    ln_load(e, 16, 's25')
    ln_load(e, 36, 's26')
    if opt.urg:
        e.I('s_waitcnt vmcnt(10)')
        e.I('s_barrier')
        register(e, 3, 4)
    elif opt.pfh:
        srd(e, 12, 64, 640 * 12288); srd(e, 16, 60, 640 * 12288)
        e.I('s_sub_u32 s27, s21, 22')
        e.I('s_lshl_b32 s27, s27, 2')
        e.I('s_add_u32 s27, s27, s22')
        prefetch_w(e, 's27', 0, opt.pfh, 124, 's[12:15]', 's[16:19]')
    else: init_fill(e, 's24', 80)
    e.I(f's_waitcnt vmcnt({3*opt.pfh})')
    ln_compute(e, 16, 's25')
    e.I(f's_cmp_ge_u32 s24, {40 if opt.urg else 48}')
    e.I('s_cbranch_scc1 L_hl')
    ln_compute(e, 36, 's26')
    e.L('L_hl')
    if opt.pfh: init_fill(e, 's24', 80)
    e.I('s_waitcnt vmcnt(0)')
    e.I('s_barrier')
    if opt.urg: count_up(e, 3, D_W)
    else: register(e, 3, 4)
    TS(e, 0)
    TSflush(e, '69')
    if opt.touch2:
        wait_reg(e, 16, opt.rsleep)
        e.I('s_sub_u32 s24, s21, 22')
        e.I('s_lshl_b32 s25, s20, 2')
        e.I('s_add_u32 s25, s25, s22')
        touch_jobs(e, [(XN + k * 40960, 10240, 40) for k in range(3)] + [(XN + k * 40960 + 5120, 10240, 40) for k in range(3)], 's24', 10, 's22', 18)
        jobs = []
        for sl in range(4): jobs += [(MEM + sl * MEM_SLOT, 2560, 20), (XR + sl * XR_SLOT, 6144, 48), (VR + sl * VR_SLOT, 3072, 24)]
        touch_jobs(e, jobs[::-1][:4] + jobs[:8], 's24', 10, 's25', 24, 6)
    e.I('s_cmp_ge_u32 s21, 29'); e.I('s_cbranch_scc1 L_ffn')
    e.I('s_cmp_lt_u32 s21, 27'); e.I('s_cbranch_scc1 L_xw')
    role_att(e)
    e.L('L_xw'); role_xw(e)
    e.L('L_ffn'); role_ffn(e)
    e.L('L_cmb'); role_cmb(e)
    e.L('L_fail')
    e.I('s_mov_b64 exec, 1')
    e.I('s_lshl_b32 s31, s31, 2')
    e.I('v_mov_b32 v3, s31')
    e.I('v_mov_b32 v4, 1')
    e.I('global_atomic_add v3, v4, s[74:75]')
    e.L('L_end')
    e.L('L_last')
    e.I('s_endpgm')

def build(path):
    import gen_pre
    gen_pre.DIAG[0] = opt.noinit
    for k in range(3): NT[k] = ' nt' if opt.pnt >> k & 1 else ''
    hdr = open('cdna_kernels/' + NAME + '.s.ref').read().split('\n')
    e = Em()
    for l in hdr:
        if l.startswith(';') and '@launch' not in l and 'Override launch' not in l and 'grid=ceil' not in l: e.raw(l)
    e.raw(f'; @launch grid=(256,1,1) block=(256,1,1) lds=163840')
    e.raw('.amdgcn_target "amdgcn-amd-amdhsa--gfx950"')
    gen_mainkernel(e)
    kernel_desc(e, MAIN, 512, 100, 256)
    lines, added = hazard.pad(e.lines)
    open(path, 'w').write('\n'.join(lines) + '\n')
    n = sum(1 for l in lines if l.startswith('    ') and not l.strip().startswith(';'))
    print(f'wrote {path}: {n} instructions, {added} nops added')

if __name__ == '__main__':
    out = sys.argv[1] if len(sys.argv) > 1 else 'cdna_kernels/' + NAME + '.s'
    if 'slow' in sys.argv[2:]: opt.force_slow = True
    if 'ts' in sys.argv[2:]: opt.ts = True
    for k in ('nobg', 'ackpoll', 'noxw'):
        if k in sys.argv[2:]: setattr(opt, k, True)
    for a_ in sys.argv[2:]:
        if '=' in a_: k_, v_ = a_.split('='); setattr(opt, k_, int(v_))
    build(out)
```

```python
from asmlib import *
from layout import *
N_LN, N_TR, N_Z, N_S, N_M = 128, 240, 8, N_SENT_WG, 8
PRE_GRID = N_LN + N_TR + N_Z + N_S + N_M
PRE_LDS = 16384
def bf16_round(e, dst, src, tmp=None):
    e.I(f'v_cvt_pk_bf16_f32 {dst}, {src}, {src}')
    e.I(f'v_and_b32 {dst}, 0xffff0000, {dst}')
def xlane_sum(e, x, t):
    e.I(f'v_add_f32_dpp v{x}, v{x}, v{x} row_ror:8 row_mask:0xf bank_mask:0xf')
    e.I(f'v_add_f32_dpp v{x}, v{x}, v{x} row_ror:4 row_mask:0xf bank_mask:0xf')
    e.I(f'v_mov_b32 v{t}, v{x}')
    e.I(f'v_permlane16_swap_b32 v{x}, v{t}')
    e.I(f'v_add_f32 v{x}, v{x}, v{t}')
    e.I(f'v_mov_b32 v{t}, v{x}')
    e.I(f'v_permlane32_swap_b32 v{x}, v{t}')
    e.I(f'v_add_f32 v{x}, v{x}, v{t}')
def gen_pre(e, name):
    kernel_head(e, name)
    e.I(f's_cmp_ge_u32 s2, {PRE_GRID}')
    e.I('s_cbranch_scc1 P_end')
    e.I('s_load_dwordx4 s[24:27], s[0:1], 0')
    e.I('s_load_dwordx4 s[28:31], s[0:1], 64')
    e.I('s_load_dwordx2 s[32:33], s[0:1], 96')
    e.I('v_and_b32 v1, 63, v0')
    e.I('v_lshrrev_b32 v2, 6, v0')
    e.I('v_readfirstlane_b32 s22, v2')
    e.I('s_waitcnt lgkmcnt(0)')
    srd(e, 4, 32, WS_BYTES)
    srd(e, 8, 24, 2048 * 1280)
    srd(e, 12, 26, 8 * 1280)
    srd(e, 16, 28, 640 * 3072)
    srd(e, 36, 30, 1536 * 1280)
    e.I(f's_cmp_ge_u32 s2, {N_LN}')
    e.I('s_cbranch_scc1 P_notln')
    e.I('v_and_b32 v3, 3, v1')
    e.I('v_lshrrev_b32 v4, 2, v1')
    e.I('s_lshl_b32 s40, s22, 2')
    e.I('v_add_u32 v3, s40, v3')
    e.I('s_mul_i32 s41, s2, 20480')
    e.I('v_mul_u32_u24 v5, 1280, v3')
    e.I('v_lshl_add_u32 v5, v4, 4, v5')
    for m in range(5):
        e.I(f'buffer_load_dwordx4 v[{8+4*m}:{11+4*m}], v5, s[8:11], s41 offen offset:{256*m}')
    e.I('v_lshrrev_b32 v6, 2, v4')
    e.I('v_lshlrev_b32 v6, 10, v6')
    e.I('v_and_b32 v7, 3, v4')
    e.I('v_lshl_add_u32 v6, v7, 8, v6')
    e.I('v_lshl_add_u32 v6, v3, 4, v6')
    e.I(f's_add_u32 s42, s41, {XN}')
    e.I('s_waitcnt vmcnt(0)')
    F = 32
    for d in range(20):
        e.I(f'v_lshlrev_b32 v{F+2*d}, 16, v{8+d}')
        e.I(f'v_and_b32 v{F+2*d+1}, 0xffff0000, v{8+d}')
    e.I(f'v_add_f32 v72, v{F}, v{F+1}')
    e.I(f'v_add_f32 v73, v{F+2}, v{F+3}')
    for d in range(4, 40, 2):
        e.I(f'v_add_f32 v72, v72, v{F+d}')
        e.I(f'v_add_f32 v73, v73, v{F+d+1}')
    e.I('v_add_f32 v72, v72, v73')
    xlane_sum(e, 72, 73)
    e.I(f'v_mul_f32 v72, {1.0/640!r}, v72'.replace(repr(1.0/640), '0x3acccccd'))
    e.I('v_mov_b32 v74, 0')
    e.I('v_mov_b32 v75, 0')
    for d in range(0, 40, 2):
        e.I(f'v_sub_f32 v76, v{F+d}, v72')
        e.I(f'v_sub_f32 v77, v{F+d+1}, v72')
        e.I('v_fmac_f32 v74, v76, v76')
        e.I('v_fmac_f32 v75, v77, v77')
    e.I('v_add_f32 v74, v74, v75')
    xlane_sum(e, 74, 73)
    e.I('v_mul_f32 v74, 0x3acccccd, v74')
    bf16_round(e, 'v74', 'v74')
    e.I('v_add_f32 v74, 0x3727c5ac, v74')
    bf16_round(e, 'v74', 'v74')
    e.I('v_sqrt_f32 v74, v74')
    bf16_round(e, 'v74', 'v74')
    e.I('v_rcp_f32 v74, v74')
    bf16_round(e, 'v72', 'v72')
    for d in range(20):
        a_, b_ = F + 2 * d, F + 2 * d + 1
        e.I(f'v_sub_f32 v{a_}, v{a_}, v72')
        e.I(f'v_sub_f32 v{b_}, v{b_}, v72')
        e.I(f'v_cvt_pk_bf16_f32 v{8+d}, v{a_}, v{b_}')
        e.I(f'v_lshlrev_b32 v{a_}, 16, v{8+d}')
        e.I(f'v_and_b32 v{b_}, 0xffff0000, v{8+d}')
        e.I(f'v_mul_f32 v{a_}, v{a_}, v74')
        e.I(f'v_mul_f32 v{b_}, v{b_}, v74')
        e.I(f'v_cvt_pk_bf16_f32 v{8+d}, v{a_}, v{b_}')
    for m in range(5):
        e.I(f's_add_u32 s43, s42, {4096*m}')
        e.I(f'buffer_store_dwordx4 v[{8+4*m}:{11+4*m}], v6, s[4:7], s43 offen')
    e.I('s_endpgm')
    e.L('P_notln')
    e.I(f's_cmp_ge_u32 s2, {N_LN+N_TR}')
    e.I('s_cbranch_scc1 P_nottr')
    e.I(f's_sub_u32 s40, s2, {N_LN}')
    e.I('v_lshrrev_b32 v3, 3, v1')
    e.I('v_and_b32 v4, 7, v1')
    e.I('v_lshrrev_b32 v8, 4, v1')
    e.I('v_bfe_u32 v9, v1, 2, 2')
    e.I('v_and_b32 v10, 3, v1')
    e.I('v_lshlrev_b32 v2, 4, v1')
    e.I('s_lshl_b32 s44, s22, 12')
    e.I('s_cmp_ge_u32 s40, 120')
    e.I('s_cbranch_scc1 P_w2')
    for which in (1, 2):
        if which == 2:
            e.L('P_w2')
            e.I('s_sub_u32 s40, s40, 120')
        RS = 3072 if which == 1 else 1280
        S = 16 if which == 1 else 36
        div = 5 if which == 1 else 12
        mul, sh = (205, 10) if which == 1 else (171, 11)
        e.I(f's_mul_i32 s41, s40, {mul}')
        e.I(f's_lshr_b32 s41, s41, {sh}')
        e.I(f's_mul_i32 s42, s41, {div}')
        e.I('s_sub_u32 s42, s40, s42')
        e.I(f'v_mul_u32_u24 v5, {RS}, v3')
        e.I('v_lshl_add_u32 v5, v4, 4, v5')
        e.I('s_lshl_b32 s43, s42, 2')
        e.I('s_add_u32 s43, s43, s22')
        e.I(f's_mul_i32 s45, s43, {32*RS}')
        e.I('s_lshl_b32 s46, s41, 7')
        e.I('s_add_u32 s45, s45, s46')
        for n in range(4):
            e.I(f's_add_u32 m0, s44, {n*1024}')
            e.I(f's_add_u32 s46, s45, {n*8*RS}')
            e.I(f'buffer_load_dwordx4 v5, s[{S}:{S+3}], s46 offen lds')
        if which == 1:
            e.I('v_lshl_add_u32 v11, v8, 3, v9')
            second = 512
        else:
            e.I('v_lshl_add_u32 v11, v8, 2, v9')
            second = 2048
        e.I('v_lshlrev_b32 v11, 7, v11')
        e.I('v_lshl_add_u32 v11, v10, 3, v11')
        e.I('s_lshl_b32 s46, s22, 5')
        e.I('v_add_u32 v11, s46, v11')
        e.I('s_waitcnt vmcnt(0)')
        e.I('s_barrier')
        for b in range(4):
            e.I(f'ds_read_b64_tr_b16 v[{16+4*b}:{17+4*b}], v11 offset:{b*4096}')
            e.I(f'ds_read_b64_tr_b16 v[{18+4*b}:{19+4*b}], v11 offset:{b*4096+second}')
        NK = 20 if which == 1 else 48
        e.I('s_lshl_b32 s46, s41, 2')
        e.I('s_add_u32 s46, s46, s22')
        e.I(f's_mul_i32 s46, s46, {NK}')
        e.I('s_lshl_b32 s47, s42, 2')
        e.I('s_add_u32 s46, s46, s47')
        e.I('s_lshl_b32 s46, s46, 10')
        e.I(f's_add_u32 s46, s46, {W1F if which == 1 else W2F}')
        e.I('s_waitcnt lgkmcnt(0)')
        for b in range(4):
            e.I(f'buffer_store_dwordx4 v[{16+4*b}:{19+4*b}], v2, s[4:7], s46 offen offset:{b*1024}')
        e.I('s_endpgm')
    e.L('P_nottr')
    e.I(f's_cmp_ge_u32 s2, {N_LN+N_TR+N_Z+N_S}')
    e.I('s_cbranch_scc1 P_mem0')
    e.I(f's_sub_u32 s40, s2, {N_LN+N_TR}')
    e.I('s_lshl_b32 s41, s40, 15')
    e.I('s_mov_b32 s42, 0')
    e.I(f's_cmp_lt_u32 s40, {N_Z}')
    e.I('s_cbranch_scc1 P_fill')
    e.I(f's_add_u32 s41, s41, {SENT0 - N_Z*32768}')
    e.I('s_mov_b32 s42, -1')
    e.L('P_fill')
    for k in range(4): e.I(f'v_mov_b32 v{8+k}, s42')
    e.I('v_lshlrev_b32 v2, 4, v0')
    for k in range(8):
        e.I(f's_add_u32 s43, s41, {k*4096}')
        e.I('buffer_store_dwordx4 v[8:11], v2, s[4:7], s43 offen')
    e.I('s_endpgm')
    e.L('P_mem0')
    e.I(f's_sub_u32 s40, s2, {N_LN+N_TR+N_Z+N_S}')
    e.I('s_mul_i32 s41, s40, 10240')
    e.I(f's_add_u32 s41, s41, {MEM}')
    e.I('v_bfe_u32 v3, v0, 2, 3')
    e.I('v_mul_u32_u24 v4, 1280, v3')
    e.I('v_lshrrev_b32 v3, 6, v0')
    e.I('v_lshl_add_u32 v4, v3, 5, v4')
    e.I('v_and_b32 v3, 3, v0')
    e.I('v_lshl_add_u32 v4, v3, 3, v4')
    e.I('v_bfe_u32 v3, v0, 5, 1')
    e.I('v_lshl_add_u32 v4, v3, 2, v4')
    e.I('v_lshlrev_b32 v5, 2, v0')
    for m in range(10): e.I(f'buffer_load_dword v{12+m}, v4, s[12:15], 0 offen offset:{128*m}')
    e.I('s_waitcnt vmcnt(0)')
    for m in range(10):
        e.I(f'v_min_u32 v{12+m}, -2, v{12+m}')
        e.I(f's_add_u32 s42, s41, {(m//4)*4096}')
        e.I(f'buffer_store_dword v{12+m}, v5, s[4:7], s42 offen offset:{(m%4)*1024}')
    e.L('P_m2')
    e.L('P_end')
    e.I('s_endpgm')


NT = ['', '', '']
DIAG = [0]
def ln_addr(e):
    e.I('v_and_b32 v3, 3, v1')
    e.I('v_lshrrev_b32 v4, 2, v1')
    e.I('s_lshl_b32 s40, s22, 2')
    e.I('v_add_u32 v3, s40, v3')
    e.I('v_mul_u32_u24 v5, 1280, v3')
    e.I('v_lshl_add_u32 v5, v4, 4, v5')
    e.I('v_lshrrev_b32 v6, 2, v4')
    e.I('v_lshlrev_b32 v6, 10, v6')
    e.I('v_and_b32 v7, 3, v4')
    e.I('v_lshl_add_u32 v6, v7, 8, v6')
    e.I('v_lshl_add_u32 v6, v3, 4, v6')
def ln_load(e, D, so):
    for m in range(5):
        e.I(f'buffer_load_dwordx4 v[{D+4*m}:{D+3+4*m}], v5, s[8:11], {so} offen offset:{256*m}{NT[0]}')
def ln_compute(e, D, so):
    F = 64
    A = 104
    for d in range(20):
        e.I(f'v_lshlrev_b32 v{F+2*d}, 16, v{D+d}')
        e.I(f'v_and_b32 v{F+2*d+1}, 0xffff0000, v{D+d}')
    e.I(f'v_add_f32 v{A}, v{F}, v{F+1}')
    e.I(f'v_add_f32 v{A+1}, v{F+2}, v{F+3}')
    for d in range(4, 40, 2):
        e.I(f'v_add_f32 v{A}, v{A}, v{F+d}')
        e.I(f'v_add_f32 v{A+1}, v{A+1}, v{F+d+1}')
    e.I(f'v_add_f32 v{A}, v{A}, v{A+1}')
    xlane_sum(e, A, A + 1)
    e.I(f'v_mul_f32 v{A}, 0x3acccccd, v{A}')
    e.I(f'v_mov_b32 v{A+2}, 0')
    e.I(f'v_mov_b32 v{A+3}, 0')
    for d in range(0, 40, 2):
        e.I(f'v_sub_f32 v{A+4}, v{F+d}, v{A}')
        e.I(f'v_sub_f32 v{A+5}, v{F+d+1}, v{A}')
        e.I(f'v_fmac_f32 v{A+2}, v{A+4}, v{A+4}')
        e.I(f'v_fmac_f32 v{A+3}, v{A+5}, v{A+5}')
    e.I(f'v_add_f32 v{A+2}, v{A+2}, v{A+3}')
    xlane_sum(e, A + 2, A + 1)
    V_ = f'v{A+2}'
    e.I(f'v_mul_f32 {V_}, 0x3acccccd, {V_}')
    bf16_round(e, V_, V_)
    e.I(f'v_add_f32 {V_}, 0x3727c5ac, {V_}')
    bf16_round(e, V_, V_)
    e.I(f'v_sqrt_f32 {V_}, {V_}')
    bf16_round(e, V_, V_)
    e.I(f'v_rcp_f32 {V_}, {V_}')
    bf16_round(e, f'v{A}', f'v{A}')
    for d in range(20):
        a_, b_ = F + 2 * d, F + 2 * d + 1
        e.I(f'v_sub_f32 v{a_}, v{a_}, v{A}')
        e.I(f'v_sub_f32 v{b_}, v{b_}, v{A}')
        e.I(f'v_cvt_pk_bf16_f32 v{D+d}, v{a_}, v{b_}')
        e.I(f'v_lshlrev_b32 v{a_}, 16, v{D+d}')
        e.I(f'v_and_b32 v{b_}, 0xffff0000, v{D+d}')
        e.I(f'v_mul_f32 v{a_}, v{a_}, {V_}')
        e.I(f'v_mul_f32 v{b_}, v{b_}, {V_}')
        e.I(f'v_cvt_pk_bf16_f32 v{D+d}, v{a_}, v{b_}')
    for m in range(5):
        e.I(f's_add_u32 s43, {so}, {XN + 4096*m}')
        if not DIAG[0] & 1: e.I(f'buffer_store_dwordx4 v[{D+4*m}:{D+3+4*m}], v6, s[4:7], s43 offen sc1{NT[1]}')
INIT_REGIONS = [(0, 64, 0), (HINT2, 2, 0), (MEM + MEM_SLOT, 2 * MEM_SLOT // 4096, -1), (XR, 2 * XR_SLOT // 4096, -1), (VR, 2 * VR_SLOT // 4096, -1), (PART, 2 * PART_SLOT // 4096, -1), (PX + 63 * SEG_PX, SEG_PX // 4096, -1)]
def init_fill(e, sidx, nwg):
    if DIAG[0] & 2: return
    total = sum(n for _, n, _ in INIT_REGIONS)
    for k in range(4): e.I(f'v_mov_b32 v{56+k}, 0'); e.I(f'v_mov_b32 v{60+k}, -1')
    e.I('v_lshlrev_b32 v8, 4, v0')
    nz = sum(n for _, n, v_ in INIT_REGIONS if v_ == 0)
    assert nz <= nwg
    j = 0
    while j * nwg < total:
        sk = e.lab('Lif')
        e.I(f's_add_u32 s44, {sidx}, {j*nwg}')
        if (j + 1) * nwg > total:
            e.I(f's_cmp_ge_u32 s44, {total}'); e.I(f's_cbranch_scc1 {sk}')
        start = 0
        e.I('s_mov_b32 s45, 0')
        for base, n, val in INIT_REGIONS:
            if start > j * nwg or (start <= j * nwg < start + n):
                if start < (j + 1) * nwg:
                    e.I(f's_cmp_ge_u32 s44, {start}')
                    e.I(f's_cselect_b32 s45, {(base - start * 4096) & 0xffffffff:#x}, s45')
            start += n
        e.I('s_lshl_b32 s46, s44, 12')
        e.I('s_add_u32 s45, s45, s46')
        if j == 0:
            z = e.lab('Liz')
            e.I(f's_cmp_ge_u32 s44, {nz}'); e.I(f's_cbranch_scc1 {z}')
            e.I(f'buffer_store_dwordx4 v[56:59], v8, s[4:7], s45 offen sc1{NT[2]}')
            e.I(f's_branch {sk}')
            e.L(z)
        e.I(f'buffer_store_dwordx4 v[60:63], v8, s[4:7], s45 offen sc1{NT[2]}')
        e.L(sk)
        j += 1
def mem0_copy(e, so, part, inl=0):
    if part == 0:
        e.I('v_bfe_u32 v3, v0, 2, 3')
        if inl:
            e.I('v_bfe_u32 v3, v0, 4, 2')
            e.I('v_bfe_u32 v4, v0, 2, 1')
            e.I('v_lshl_add_u32 v3, v3, 1, v4')
        e.I('v_mul_u32_u24 v4, 1280, v3')
        e.I('v_lshrrev_b32 v3, 6, v0')
        e.I('v_lshl_add_u32 v4, v3, 5, v4')
        e.I('v_and_b32 v3, 3, v0')
        e.I('v_lshl_add_u32 v4, v3, 3, v4')
        e.I(f'v_bfe_u32 v3, v0, {3 if inl else 5}, 1')
        e.I('v_lshl_add_u32 v4, v3, 2, v4')
        for m in range(10): e.I(f'buffer_load_dword v{112+m}, v4, s[12:15], 0 offen offset:{128*m}')
        return
    e.I('v_lshlrev_b32 v7, 2, v0')
    for m in range(10):
        e.I(f'v_min_u32 v{112+m}, -2, v{112+m}')
        e.I(f's_add_u32 s42, {so}, {(m//4)*4096}')
        e.I(f'buffer_store_dword v{112+m}, v7, s[4:7], s42 offen offset:{(m%4)*1024} sc1')
def transpose_w(e, sk):
    e.I('v_lshrrev_b32 v3, 3, v1')
    e.I('v_and_b32 v4, 7, v1')
    e.I('v_lshrrev_b32 v8, 4, v1')
    e.I('v_bfe_u32 v9, v1, 2, 2')
    e.I('v_and_b32 v10, 3, v1')
    e.I('s_lshl_b32 s44, s22, 12')
    for which in (1, 2):
        RS = 3072 if which == 1 else 1280
        S = 8 if which == 1 else 12
        div = 5 if which == 1 else 12
        mul, sh = (205, 10) if which == 1 else (171, 11)
        NK = 20 if which == 1 else 48
        e.I(f'v_mul_u32_u24 v5, {RS}, v3')
        e.I('v_lshl_add_u32 v5, v4, 4, v5')
        e.I(f'v_lshl_add_u32 v11, v8, {3 if which == 1 else 2}, v9')
        second = 512 if which == 1 else 2048
        e.I('v_lshlrev_b32 v11, 7, v11')
        e.I('v_lshl_add_u32 v11, v10, 3, v11')
        e.I('s_lshl_b32 s46, s22, 5')
        e.I('v_add_u32 v11, s46, v11')
        e.I('v_add_u32 v12, 0x8000, v11')
        e.I('v_add_u32 v13, 0x10000, v11')
        for b in range(5):
            e.I(f's_mul_i32 s40, {sk}, 5')
            e.I(f's_add_u32 s40, s40, {b}')
            e.I(f's_mul_i32 s41, s40, {mul}')
            e.I(f's_lshr_b32 s41, s41, {sh}')
            e.I(f's_mul_i32 s42, s41, {div}')
            e.I('s_sub_u32 s42, s40, s42')
            e.I('s_lshl_b32 s43, s42, 2')
            e.I('s_add_u32 s43, s43, s22')
            e.I(f's_mul_i32 s45, s43, {32*RS}')
            e.I('s_lshl_b32 s46, s41, 7')
            e.I('s_add_u32 s45, s45, s46')
            for n in range(4):
                e.I(f's_add_u32 m0, s44, {b*16384 + n*1024}')
                e.I(f's_add_u32 s46, s45, {n*8*RS}')
                e.I(f'buffer_load_dwordx4 v5, s[{S}:{S+3}], s46 offen{NT[0]} lds')
            e.I('s_lshl_b32 s46, s41, 2')
            e.I('s_add_u32 s46, s46, s22')
            e.I(f's_mul_i32 s46, s46, {NK}')
            e.I('s_lshl_b32 s47, s42, 2')
            e.I('s_add_u32 s46, s46, s47')
            e.I('s_lshl_b32 s46, s46, 10')
            e.I(f's_add_u32 s{50+b}, s46, {W1F if which == 1 else W2F}')
        e.I('s_waitcnt vmcnt(0)')
        e.I('s_barrier')
        for b in range(5):
            va, off = (11, 12, 13)[b // 2], (b % 2) * 16384
            for q in range(4):
                r = 16 + (b * 4 + q) * 4
                e.I(f'ds_read_b64_tr_b16 v[{r}:{r+1}], v{va} offset:{off + q*4096}')
                e.I(f'ds_read_b64_tr_b16 v[{r+2}:{r+3}], v{va} offset:{off + q*4096 + second}')
        e.I('s_waitcnt lgkmcnt(0)')
        e.I('s_barrier')
        for b in range(5):
            for q in range(4):
                r = 16 + (b * 4 + q) * 4
                e.I(f'buffer_store_dwordx4 v[{r}:{r+3}], v2, s[4:7], s{50+b} offen offset:{q*1024} sc1{NT[1]}')
```

```python
import re
REG = re.compile(r'^(-?)(abs\()?([vas])(\d+)\)?$')
RNG = re.compile(r'^([vas])\[(\d+):(\d+)\]$')
def regs(op):
    op = op.strip()
    if op.startswith('-'): op = op[1:]
    if op.startswith('|') and op.endswith('|'): op = op[1:-1]
    m = RNG.match(op)
    if m: return {(m.group(1), i) for i in range(int(m.group(2)), int(m.group(3)) + 1)}
    m = re.match(r'^([vas])(\d+)$', op)
    if m: return {(m.group(1), int(m.group(2)))}
    if op in ('vcc', 'vcc_lo', 'vcc_hi'): return {('s', 'vcc')}
    if op in ('exec', 'exec_lo', 'exec_hi'): return {('s', 'exec')}
    if op == 'm0': return {('s', 'm0')}
    return set()
TRANS = ('v_exp_f32', 'v_log_f32', 'v_rcp_f32', 'v_rsq_f32', 'v_sqrt_f32', 'v_sin_f32', 'v_cos_f32')
class Ins:
    def __init__(self, text):
        self.text = text
        t = text.strip()
        t = t.split(';')[0].strip()
        self.op = t.split()[0]
        rest = t[len(self.op):].strip()
        br = ' '.join(re.findall(r'\b(?:quad_perm|op_sel|op_sel_hi|neg_lo|neg_hi):\[[^\]]*\]', rest))
        rest = re.sub(r'\s+(?:quad_perm|op_sel|op_sel_hi|neg_lo|neg_hi):\[[^\]]*\]', '', rest)
        ops = [o.strip() for o in rest.split(',')] if rest else []
        mods = ''
        if ops:
            parts = ops[-1].split()
            if parts:
                ops[-1] = parts[0]; mods = ' '.join(parts[1:])
        mods = mods + ' ' + br
        self.ops = ops; self.mods = mods
        op = self.op
        self.dst = set(); self.src = set(); self.kind = 'other'
        self.srcC = set(); self.srcAB = set(); self.passes = 0; self.stdata = set()
        R = [regs(o) for o in ops]
        U = lambda l: set().union(*l) if l else set()
        if op.startswith('v_mfma') or op.startswith('v_smfmac'):
            self.kind = 'mfma'; self.dst = R[0]; self.srcAB = R[1] | R[2]
            if op.startswith('v_smfmac'):
                self.srcC = R[0]; self.srcAB |= R[3]
            else:
                self.srcC = R[3]
            self.src = self.srcAB | self.srcC
            self.passes = 8 if '32x32' in op else 4
            self.occ = 2 if '16x16x16' in op else self.passes
        elif op.startswith('v_permlane'):
            self.kind = 'valu'; self.perml = True; self.dst = R[0] | R[1]; self.src = R[0] | R[1]
        elif op.startswith('v_readfirstlane') or op.startswith('v_readlane'):
            self.kind = 'valu'; self.dst = R[0]; self.src = U(R[1:])
        elif op.startswith('v_cmp'):
            self.kind = 'valu'; self.dst = R[0]; self.src = U(R[1:])
        elif op.startswith('v_'):
            self.kind = 'valu'; self.dst = R[0]; self.src = U(R[1:])
            if op.startswith(('v_add_co', 'v_sub_co', 'v_addc_co', 'v_subb_co')):
                self.dst = R[0] | R[1]; self.src = U(R[2:])
            if op.startswith(('v_fmac', 'v_pk_fmac', 'v_dot2c', 'v_writelane')): self.src |= R[0]
            if op.startswith('v_cndmask') and len(ops) == 3: self.src |= {('s', 'vcc')}
        elif op.startswith(('buffer_load', 'global_load')):
            self.kind = 'vmem'
            if 'lds' in mods.split() or op.startswith('global_load_lds'):
                self.src = U(R) | {('s', 'm0')}; self.ldsdma = True
            else:
                self.dst = R[0]; self.src = U(R[1:])
        elif op.startswith(('buffer_store', 'global_store', 'buffer_atomic', 'global_atomic')):
            self.kind = 'vmem'; self.src = U(R)
            if 'atomic' in op and 'sc0' in mods.split(): self.dst = R[0]
            if op.endswith(('x4', 'x3')):
                self.stdata = R[0] if op.startswith('buffer') else R[1]
        elif op.startswith('ds_'):
            self.kind = 'ds'
            if op.startswith(('ds_read', 'ds_bpermute', 'ds_permute', 'ds_swizzle')):
                self.dst = R[0]; self.src = U(R[1:])
            else:
                self.src = U(R)
        elif op.startswith('s_'):
            self.kind = 'salu'
            if op.startswith(('s_cmp', 's_bitcmp', 's_cbranch', 's_branch', 's_waitcnt', 's_nop', 's_barrier', 's_sleep', 's_endpgm', 's_setprio')):
                self.src = U(R)
            else:
                self.dst = R[0] if R else set(); self.src = U(R[1:])
                if 'saveexec' in op: self.dst |= {('s', 'exec')}
        self.dpp = 'dpp' in op or 'row_' in mods or 'quad_perm' in mods
        self.perml = op.startswith('v_permlane')
        self.trans = op.split('_e32')[0] in TRANS
        self.rdlane = op.startswith(('v_readfirstlane', 'v_readlane'))
        self.slots = 1
        if op == 's_nop': self.slots = int(ops[0], 0) + 1
def isv(r): return r[0] in 'va'
def need(p, c):
    n = 0
    pv = {r for r in p.dst if isv(r)}; ps = {r for r in p.dst if r[0] == 's'}
    if p.kind == 'mfma':
        t = {4: (6, 8), 8: (10, 12)}[p.passes]
        if c.kind == 'mfma':
            if pv & c.srcAB: n = max(n, t[1])
            if pv & c.srcC:
                if not (c.srcC == p.dst and c.passes == p.passes): n = max(n, t[0])
            elif pv & c.dst: n = max(n, t[0])
        elif c.kind in ('valu', 'vmem', 'ds'):
            if pv & (c.src | c.dst): n = max(n, t[1])
        if c.kind == 'valu' and (p.srcC & c.dst): n = max(n, 3 if p.passes == 4 else 7)
        if c.kind in ('vmem', 'ds') and (p.srcC & c.dst): n = max(n, t[1])
    if p.kind == 'valu':
        if c.kind == 'mfma' and (pv & c.src): n = max(n, 2)
        if c.kind == 'mfma' and (('s', 'exec') in ps): n = max(n, 4)
        if c.kind == 'valu':
            if c.perml and (pv & c.src): n = max(n, 2)
            if c.dpp and (pv & c.src): n = max(n, 2)
            if c.rdlane and (pv & c.src): n = max(n, 1)
            if p.trans and not c.trans and (pv & c.src): n = max(n, 1)
            if ps & c.src: n = max(n, 4 if c.rdlane else 2)
        if c.kind == 'vmem' and (ps & c.src): n = max(n, 5)
        if c.kind == 'salu' and (ps & c.src) and not c.op.startswith('s_cbranch'): n = max(n, 1)
    if p.kind == 'salu' and ('s', 'm0') in ps and getattr(c, 'ldsdma', False): n = max(n, 1)
    if p.stdata and c.kind == 'valu' and (p.stdata & c.dst): n = max(n, 2)
    if p.stdata and c.kind in ('vmem', 'ds', 'mfma') and (p.stdata & c.dst): n = max(n, 2)
    return n
PIPE = True
def pad(lines):
    out = []; hist = []
    added = 0
    for l in lines:
        st = l.strip()
        if not l.startswith('    ') or st.startswith(';') or st.startswith('.') or not st:
            out.append(l);
            if st.startswith('.section') or st.startswith('.text'): hist = []
            continue
        c = Ins(st)
        req = 0
        for ip in range(len(hist) - 1, max(-1, len(hist) - 16), -1):
            p = hist[ip]
            n = need(p, c)
            if n == 0: continue
            d = 0; free = 0
            for x in hist[ip:] + [c]:
                if x.kind == 'mfma' and PIPE:
                    d = max(d, free); free = d + x.occ
                if x is not c: d += x.slots
            dist = d - 1 if p.slots == 1 else d - p.slots
            if n > dist:
                d = 0; free = 0
                for x in hist[ip:]:
                    if x.kind == 'mfma' and PIPE:
                        d = max(d, free); free = d + x.occ
                    d += x.slots
                req = max(req, n - (d - 1))
        while req > 0:
            k = min(req, 16)
            out.append(f'    s_nop {k-1}'); hist.append(Ins(f's_nop {k-1}')); req -= k; added += 1
        out.append(l); hist.append(c)
        if c.op == 's_endpgm': hist = []
        if len(hist) > 40: hist = hist[-20:]
    return out, added
```

```python
import sys, struct
from asmlib import *
from layout import *
import hazard
from gen_pre import *

NAME = 'recurrent_scan__memory_aug_recurrent_mem_tr__dense_activation_relu__prompt'
MAIN = NAME + '_kernel'
PRE = 'prep_kernel'
LDS_TOTAL = 131072
LDS_ROLE = 131072
TMO = 1 << 18
def f2u(x): return struct.unpack('<I', struct.pack('<f', x))[0]
SC_L2E = f2u(192 ** -0.5 * 1.4426950408889634)
NEG_BIG = f2u(-1e30)
MFMA = 'v_mfma_f32_16x16x32_bf16'
MFMA16 = 'v_mfma_f32_16x16x16_bf16'
SMF = 'v_smfmac_f32_16x16x64_bf16'
WS = 's[4:7]'
WFL = ['', ' nt', ' sc1', ' sc0 sc1', ' sc1 nt', ' sc0 sc1 nt']

class Opt:
    force_slow = False
    ts = False
    nobg = False
    ackpoll = False
    noxw = False
    pdelay = 0
    vdelay = 0
    kbar = 0
    kpre = 12
    kin = 12
    fresh = 0
    pdiag = 0
    pflip = 0
    touch = 1
    nofc = 0
    nopx = 0
    nocmb = 0
    cdepth = 3
    ffnnt = 0
    pr = 1
    pfar = 0
    vpre = 0
    vmpos = 2
    smpre = 1
    smgap = 3
    ldgap = 30
    kp = 0
    kcs = 0
    kce = 12
    xlate = 4
    csleep = 8
    cwarm = 61
    c2sleep = 4
    clag = 2
    lsleep = 8
    xsleep = 2
    asleep = 2
    cdiag = 0
    n1 = 5
    n2 = 4
    n3 = 3
    thin = 1
    split = 2
    eord = 1
    inl = 1
    cvx = 24
    nod = 1
    sord = 1
    thin1 = 1
    pvmix = 1
    vin = 3
    zin = 0
    rdmix = 2
    t9 = -1
    vgap = 0
    fv = 11
    pipe = 1
    ktight = 1
    vx2 = 1
    ox4 = 1
    remap = 1
    fq = 3
    vown = 1
    g1 = 0
    g2 = 0
    vpos = 1
    xg1 = 0
    xg2 = 0
    fwait = 3
    ptouch = 1
    spec = 1
    mwait = 0
    mpre = 2
    kgap = 15
    noinit = 0
    pfh = 0
    wb = 0
    ost = 0
    mprobe = 0
    kx = 0
    dstamp = 0
    hwv = 7
    t63 = 1
    esleep = 1
    tpos = 0
    pmf = 6
    pmf2 = 6
    urg = 0
    rsleep = 16
    cwarm2 = 0
    tord = 0
    pfs = 0
    swlate = 1
    fpos = 11
    heads = 1
    hdelay = 0
    wnb = 3
    wrows = 320
    touch2 = 1
    pnt = 1
    wnt = 1
    wthr = 64
    xpf = 10
    xdma0 = 10
    xdmas = 1
    pbf = 1
    rpos = 2
    mbar = 1
    pspin = 0
    nobulk = 0
opt = Opt()

def vr(i, n=4): return f'v[{i}:{i+n-1}]'
def ar(i, n=4): return f'a[{i}:{i+n-1}]'

def maxchain(e, dst, regs, op='u32'):
    regs = list(regs)
    e.I(f'v_max3_{op} v{dst}, v{regs[0]}, v{regs[1]}, v{regs[2]}')
    rest = regs[3:]
    while rest:
        if len(rest) >= 2:
            e.I(f'v_max3_{op} v{dst}, v{dst}, v{rest[0]}, v{rest[1]}'); rest = rest[2:]
        else:
            e.I(f'v_max_{op} v{dst}, v{dst}, v{rest[0]}'); rest = rest[1:]

def check_sent(e, regs, t0, t1):
    regs = list(regs)
    if len(regs) >= 8:
        h = len(regs) // 2
        A, B = regs[:h], regs[h:]
        ea, eb = Em(), Em()
        maxchain(ea, t0, A); maxchain(eb, t1, B)
        for i in range(max(len(ea.lines), len(eb.lines))):
            if i < len(ea.lines): e.lines.append(ea.lines[i])
            if i < len(eb.lines): e.lines.append(eb.lines[i])
        e.I(f'v_max_u32 v{t0}, v{t0}, v{t1}')
    else:
        maxchain(e, t0, regs)
    e.I(f'v_cmp_eq_u32 vcc, -1, v{t0}')
def chunk_regs(base, n, step):
    return list(range(base, base + n, step)) if opt.thin else list(range(base, base + n))

def poll2(e, issue, nl, regsA, regsB, consume, t0, t1, code, early=None):
    lp, dA, dB, dd = e.lab('Lp'), e.lab('LdA'), e.lab('LdB'), e.lab('Ldd')
    e.I(f's_mov_b32 s31, {TMO}')
    issue(regsA)
    e.L(lp)
    issue(regsB)
    e.I(f's_waitcnt vmcnt({nl})')
    if early: early(regsA)
    check_sent(e, chunk_regs(regsA, 4 * nl, 4), t0, t1)
    e.I(f's_cbranch_vccz {dA}')
    issue(regsA)
    e.I(f's_waitcnt vmcnt({nl})')
    if early: early(regsB)
    check_sent(e, chunk_regs(regsB, 4 * nl, 4), t0, t1)
    e.I(f's_cbranch_vccz {dB}')
    e.I('s_sub_u32 s31, s31, 1')
    e.I(f's_cbranch_scc0 {lp}')
    e.I(f's_mov_b32 s31, {code}')
    e.I('s_branch L_fail')
    e.L(dB)
    consume(regsB)
    e.I(f's_branch {dd}')
    e.L(dA)
    consume(regsA)
    e.L(dd)

def wait_flags(e, vaddr, sofs, mask, vt, code, sleep=0, dbg=False):
    lp, dn = e.lab('Lf'), e.lab('Lfd')
    e.I(f's_mov_b32 s31, {TMO}')
    if mask > 0xffffffff or mask < 0: e.I(f's_mov_b64 exec, {mask}')
    else:
        e.I(f's_mov_b32 exec_lo, {mask:#x}'); e.I('s_mov_b32 exec_hi, 0')
    e.L(lp)
    if dbg: e.I(f'global_load_dword v{vt}, v{vaddr}, s[74:75] offset:{sofs} sc1')
    else: e.I(f'buffer_load_dword v{vt}, v{vaddr}, {WS}, {sofs} offen sc1')
    e.I('s_waitcnt vmcnt(0)')
    e.I(f'v_cmp_eq_u32 vcc, 0, v{vt}')
    e.I(f's_cbranch_vccz {dn}')
    if sleep: e.I(f's_sleep {sleep}')
    e.I('s_sub_u32 s31, s31, 1')
    e.I(f's_cbranch_scc0 {lp}')
    e.I(f's_mov_b32 s31, {code}')
    e.I('s_branch L_fail')
    e.L(dn)
    e.I('s_mov_b64 exec, -1')

D_TR, D_PAR, D_REG = 64, 96, 128
def register(e, va, vd):
    sk = e.lab('Lrg')
    e.I('s_cmp_lg_u32 s22, 0')
    e.I(f's_cbranch_scc1 {sk}')
    e.I(f'v_mov_b32 v{va}, s96')
    e.I(f'v_mov_b32 v{vd}, s97')
    e.I('s_mov_b64 exec, 1')
    e.I(f'global_atomic_add v{va}, v{vd}, s[74:75] offset:{D_REG} sc1')
    e.I('s_mov_b64 exec, -1')
    e.L(sk)
D_W = 68
def wait_count(e, t, off, n, sleep):
    lp, dn = e.lab('Lwc'), e.lab('Lwe')
    e.I(f's_mov_b32 s31, {TMO}')
    e.I(f'v_mov_b32 v{t+1}, 0')
    e.L(lp)
    e.I(f'global_load_dword v{t}, v{t+1}, s[74:75] offset:{off} sc1')
    e.I('s_waitcnt vmcnt(0)')
    e.I(f'v_cmp_gt_u32 vcc, {n}, v{t}')
    e.I(f's_cbranch_vccz {dn}')
    e.I(f's_sleep {sleep}')
    e.I('s_sub_u32 s31, s31, 1')
    e.I(f's_cbranch_scc0 {lp}')
    e.I('s_mov_b32 s31, 10')
    e.I('s_branch L_fail')
    e.L(dn)
def wait_first(e, t, seg=0):
    wait_reg(e, t, 32)
    e.I('s_lshl_b32 s38, s20, 8')
    e.I(f's_add_u32 s38, s38, {FLGQ + seg*2048}')
    e.I(f'v_lshlrev_b32 v{t+1}, 6, v1')
    wait_flags(e, t + 1, 's38', 0xf, t, 15, sleep=16)
def count_up(e, t, off):
    sk = e.lab('Lcu')
    e.I('s_cmp_lg_u32 s22, 0')
    e.I(f's_cbranch_scc1 {sk}')
    e.I(f'v_mov_b32 v{t}, 0'); e.I(f'v_mov_b32 v{t+1}, 1')
    e.I('s_mov_b64 exec, 1')
    e.I(f'global_atomic_add v{t}, v{t+1}, s[74:75] offset:{off} sc1')
    e.I('s_mov_b64 exec, -1')
    e.L(sk)
def wait_reg(e, t, sleep=4):
    lp, dn = e.lab('Lwr'), e.lab('Lwd')
    e.I(f's_mov_b32 s31, {TMO}')
    e.I(f'v_lshlrev_b32 v{t+2}, 2, v1')
    e.I('s_mov_b32 exec_hi, 0')
    e.L(lp)
    e.I(f'global_load_dword v{t}, v{t+2}, s[74:75] offset:{D_REG} sc1')
    e.I('s_mov_b32 s23, 0')
    e.I('s_mov_b32 s38, 0')
    e.I('s_waitcnt vmcnt(0)')
    for k in range(4):
        e.I(f'v_cmp_eq_u32 vcc, {0x20 << (8*k):#x}, v{t}')
        e.I('s_or_b32 s38, s38, vcc_lo')
    e.I(f'v_sad_u8 v{t+1}, v{t}, 0, 0')
    e.I('s_bcnt1_i32_b32 s38, s38')
    e.I('s_cmp_eq_u32 s38, 8')
    e.I(f's_cbranch_scc1 {dn}')
    for sh in (1, 2, 4, 8): e.I(f'v_add_u32_dpp v{t+1}, v{t+1}, v{t+1} row_shr:{sh} row_mask:0xf bank_mask:0xf bound_ctrl:0')
    e.I(f'v_readlane_b32 s38, v{t+1}, 15')
    e.I(f'v_readlane_b32 s39, v{t+1}, 31')
    e.I('s_mov_b32 s23, 1')
    e.I('s_add_u32 s38, s38, s39')
    e.I('s_cmp_eq_u32 s38, 256')
    e.I(f's_cbranch_scc1 {dn}')
    e.I(f's_sleep {sleep}')
    e.I('s_sub_u32 s31, s31, 1')
    e.I(f's_cbranch_scc0 {lp}')
    e.I('s_mov_b32 s31, 10')
    e.I('s_branch L_fail')
    e.L(dn)
    e.I('s_mov_b64 exec, -1')

def set_flag(e, vaddr, sofs, vone, fl):
    e.I('s_mov_b64 exec, 1')
    e.I(f'buffer_store_dword v{vone}, v{vaddr}, {WS}, {sofs} offen{fl}')
    e.I('s_mov_b64 exec, -1')

def xg_reduce(e, op, x, t):
    e.I(f'v_mov_b32 v{t}, v{x}')
    e.I(f'v_permlane16_swap_b32 v{x}, v{t}')
    e.I(f'{op} v{x}, v{x}, v{t}')
    e.I(f'v_mov_b32 v{t}, v{x}')
    e.I(f'v_permlane32_swap_b32 v{x}, v{t}')
    e.I(f'{op} v{x}, v{x}, v{t}')

def softmax12(e, S, P, t):
    maxchain(e, t, range(S, S + 12), 'f32')
    xg_reduce(e, 'v_max_f32', t, t + 1)
    e.I(f'v_mul_f32 v{t}, s53, v{t}')
    for i in range(12):
        e.I(f'v_fma_f32 v{S+i}, v{S+i}, s52, v{t}')
    for i in range(12):
        e.I(f'v_exp_f32 v{S+i}, v{S+i}')
    e.I(f'v_add_f32 v{t+2}, v{S}, v{S+1}')
    e.I(f'v_add_f32 v{t+3}, v{S+2}, v{S+3}')
    for i in range(4, 12, 2):
        e.I(f'v_add_f32 v{t+2}, v{t+2}, v{S+i}')
        e.I(f'v_add_f32 v{t+3}, v{t+3}, v{S+i+1}')
    e.I(f'v_add_f32 v{t+2}, v{t+2}, v{t+3}')
    xg_reduce(e, 'v_add_f32', t + 2, t + 3)
    e.I(f'v_rcp_f32 v{t+2}, v{t+2}')
    for i in range(12):
        e.I(f'v_mul_f32 v{S+i}, v{S+i}, v{t+2}')
    for i in range(6):
        e.I(f'v_cvt_pk_bf16_f32 v{P+i}, v{S+2*i}, v{S+2*i+1}')

def softmax_list(S, n, P, t):
    x = Em()
    maxchain(x, t, range(S, S + n), 'f32')
    xg_reduce(x, 'v_max_f32', t, t + 1)
    x.I(f'v_mul_f32 v{t}, s53, v{t}')
    for i in range(n): x.I(f'v_fma_f32 v{S+i}, v{S+i}, s52, v{t}')
    for i in range(n): x.I(f'v_exp_f32 v{S+i}, v{S+i}')
    x.I(f'v_add_f32 v{t+2}, v{S}, v{S+1}')
    x.I(f'v_add_f32 v{t+3}, v{S+2}, v{S+3}')
    for i in range(4, n, 2):
        x.I(f'v_add_f32 v{t+2}, v{t+2}, v{S+i}')
        x.I(f'v_add_f32 v{t+3}, v{t+3}, v{S+i+1}')
    x.I(f'v_add_f32 v{t+2}, v{t+2}, v{t+3}')
    xg_reduce(x, 'v_add_f32', t + 2, t + 3)
    x.I(f'v_rcp_f32 v{t+2}, v{t+2}')
    for i in range(n): x.I(f'v_mul_f32 v{S+i}, v{S+i}, v{t+2}')
    for i in range(n // 2): x.I(f'v_cvt_pk_bf16_f32 v{P+i}, v{S+2*i}, v{S+2*i+1}')
    return [l.strip() for l in x.lines]

def DSTAMP(e, idx, cond=None, op='umax'):
    if not opt.dstamp: return
    sk = e.lab('Lds')
    if cond: e.I(cond); e.I(f's_cbranch_scc0 {sk}')
    e.I('s_memtime s[98:99]' if op == 'clk' else 's_memrealtime s[98:99]')
    e.I('s_waitcnt lgkmcnt(0)')
    if op == 'neg': e.I('s_not_b32 s98, s98')
    e.I('s_mov_b64 exec, 1')
    e.I(f'v_mov_b32 v238, {idx*4}')
    e.I('v_mov_b32 v239, s98')
    e.I('global_atomic_umax v238, v239, s[74:75] sc1')
    e.I('s_mov_b64 exec, -1')
    e.L(sk)
def TS(e, k):
    if opt.ts: e.I(f's_memrealtime s[{76+2*k}:{77+2*k}]')
def TSflush(e, step, va=238, vd=239):
    if not opt.ts: return
    e.I('s_waitcnt lgkmcnt(0)')
    for k in range(10): e.I(f'v_writelane_b32 v{vd}, s{76+2*k}, {k}')
    e.I('s_lshl_b32 s76, s20, 5')
    e.I('s_add_u32 s76, s76, s21')
    e.I('s_lshl_b32 s76, s76, 2')
    e.I('s_add_u32 s76, s76, s22')
    e.I('s_mul_i32 s76, s76, 72')
    e.I(f's_add_u32 s76, s76, {step}')
    e.I('s_lshl_b32 s76, s76, 6')
    e.I(f's_add_u32 s76, s76, {DBGT}')
    e.I(f'v_lshlrev_b32 v{va}, 2, v1')
    e.I('s_mov_b64 exec, 0x3ff')
    e.I(f'buffer_store_dword v{vd}, v{va}, {WS}, s76 offen')
    e.I('s_mov_b64 exec, -1')

def lane_ig(e, vi, vg):
    e.I(f'v_and_b32 v{vi}, 15, v1')
    e.I(f'v_lshrrev_b32 v{vg}, 4, v1')

def load_weights(e, mats, RS, rows, paired, vA, vT, NB=3, bufoff=None, manual=False):
    CH = rows * 128
    ninst = rows // 8 // 4
    nk = rows // 32
    e.I(f'v_lshrrev_b32 v{vT}, 3, v1')
    if paired:
        e.I(f'v_bfe_u32 v{vT+1}, v1, 4, 2')
    else:
        e.I(f'v_bfe_u32 v{vT+1}, v1, 4, 1')
        e.I('s_and_b32 s54, s22, 1')
        e.I('s_lshl_b32 s54, s54, 1')
        e.I(f'v_or_b32 v{vT+1}, s54, v{vT+1}')
    e.I(f'v_lshlrev_b32 v{vT+1}, 1, v{vT+1}')
    e.I(f'v_and_b32 v{vT+2}, 7, v1')
    e.I(f'v_xor_b32 v{vT+2}, v{vT+2}, v{vT+1}')
    e.I(f's_mov_b32 s54, {RS}')
    e.I(f'v_mul_lo_u32 v{vA}, s54, v{vT}')
    e.I(f'v_lshl_add_u32 v{vA}, v{vT+2}, 4, v{vA}')
    e.I(f'v_lshrrev_b32 v{vT}, 4, v1')
    e.I(f'v_bfe_u32 v{vT+1}, v1, 2, 2')
    if paired:
        e.I(f'v_lshl_add_u32 v{vT+2}, v{vT}, 2, v{vT+1}')
        e.I(f'v_bfe_u32 v{vT}, v{vT+2}, 1, 2')
        second = 2048
    else:
        e.I(f'v_lshl_add_u32 v{vT+2}, v{vT}, 3, v{vT+1}')
        e.I(f'v_and_b32 v{vT}, 1, v{vT}')
        e.I(f'v_lshlrev_b32 v{vT}, 1, v{vT}')
        e.I(f'v_bfe_u32 v{vT+1}, v1, 3, 1')
        e.I(f'v_or_b32 v{vT}, v{vT}, v{vT+1}')
        second = 512
    e.I(f'v_xor_b32 v{vT}, s22, v{vT}')
    e.I(f'v_lshlrev_b32 v{vT+2}, 7, v{vT+2}')
    e.I(f'v_lshl_add_u32 v{vT+2}, v{vT}, 5, v{vT+2}')
    e.I(f'v_and_b32 v{vT}, 3, v1')
    e.I(f'v_lshl_add_u32 v{vT}, v{vT}, 3, v{vT+2}')
    bufoff = bufoff or [k * CH for k in range(NB)]
    for k in range(NB - 1, -1, -1):
        if bufoff[k]  or k: e.I(f'v_add_u32 v{vT+k}, {bufoff[k]}, v{vT}')
    chunks = []
    for (srd_, sofs, ab, nrows) in mats:
        for c in range(nrows // rows):
            chunks.append((srd_, sofs, ab + c * nk * 4, c * rows))
    e.I(f's_mul_i32 s55, s22, {8*RS}')
    e.I('s_lshl_b32 s56, s22, 10')
    def issue(ci, buf=None):
        srd_, sofs, ab, r0 = chunks[ci]
        if buf is None: buf = ci % NB
        e.I(f's_add_u32 s57, {sofs}, s55')
        if r0: e.I(f's_add_u32 s57, s57, {r0*RS}')
        for n in range(ninst):
            e.I(f's_add_u32 m0, s56, {bufoff[buf] + n*4096}')
            e.I(f'buffer_load_dwordx4 v{vA}, {srd_}, s57 offen{WFL[opt.wnt]} lds')
            if n + 1 < ninst: e.I(f's_add_u32 s57, s57, {32*RS}')
    def consume(ci, buf, pending):
        e.I(f's_waitcnt vmcnt({pending})')
        if ci < 8: TS(e, 2 + ci)
        e.I('s_barrier')
        srd_, sofs, ab, r0 = chunks[ci]
        for k in range(nk):
            e.I(f'ds_read_b64_tr_b16 {ar(ab+4*k,2)}, v{vT+buf} offset:{k*4096}')
            e.I(f'ds_read_b64_tr_b16 {ar(ab+4*k+2,2)}, v{vT+buf} offset:{k*4096+second}')
        e.I('s_waitcnt lgkmcnt(0)')
        e.I('s_barrier')
    if manual: return issue, consume
    for ci in range(min(NB, len(chunks))): issue(ci)
    for ci in range(len(chunks)):
        left = min(len(chunks) - 1 - ci, NB - 1)
        e.I(f's_waitcnt vmcnt({left*ninst})')
        if ci < 8: TS(e, 2 + ci)
        e.I('s_barrier')
        srd_, sofs, ab, r0 = chunks[ci]
        for k in range(nk):
            e.I(f'ds_read_b64_tr_b16 {ar(ab+4*k,2)}, v{vT+ci%NB} offset:{k*4096}')
            e.I(f'ds_read_b64_tr_b16 {ar(ab+4*k+2,2)}, v{vT+ci%NB} offset:{k*4096+second}')
        e.I('s_waitcnt lgkmcnt(0)')
        e.I('s_barrier')
        if ci + NB < len(chunks): issue(ci + NB)

def touch_jobs(e, jobs, sw, nw, sh, t, rot=0):
    sizes = sorted({min(n, 64) for _, _, n in jobs} | {n - 64 for _, _, n in jobs if n > 64})
    reg = {}
    for k, n in enumerate(sizes):
        reg[n] = t + 1 + k
        e.I(f'v_min_u32 v{reg[n]}, {n-1}, v1')
        e.I(f'v_lshlrev_b32 v{reg[n]}, 7, v{reg[n]}')
    flat = []
    for base, per, n in jobs:
        flat.append((base, per, min(n, 64)))
        if n > 64: flat.append((base + 8192, per, n - 64))
    for c in range(nw):
        sk = e.lab('Ltj')
        e.I(f's_cmp_lg_u32 {sw}, {c}')
        e.I(f's_cbranch_scc1 {sk}')
        for base, per, n in flat[(c - rot) % nw::nw]:
            e.I(f's_mul_i32 s38, {sh}, {per}')
            e.I(f's_add_u32 s38, s38, {base}')
            e.I(f'buffer_load_dword v{t}, v{reg[n]}, {WS}, s38 offen sc1')
        e.L(sk)

def prefetch_w(e, su, j0, j1, t, srdv, srdq):
    for k in range(3):
        e.I(f'v_add_u32 v{t+3}, {1024*k}, v2')
        e.I(f'v_cmp_le_u32 vcc, 1536, v{t+3}')
        e.I(f'v_add_u32 v{t+k}, {12288-1536}, v{t+3}')
        e.I(f'v_cndmask_b32 v{t+k}, v{t+3}, v{t+k}, vcc')
    e.I('s_mul_i32 s39, s20, 1536')
    e.I(f's_mul_i32 s38, {su}, {2*12288}')
    e.I('s_add_u32 s38, s38, s39')
    for j in range(j0, j1):
        row = 320 + 80 * j if j < 4 else 80 * (j - 4)
        e.I(f's_add_u32 s39, s38, {row*12288}')
        for k in range(3): e.I(f'buffer_load_dwordx4 {vr(t+4)}, v{t+k}, {srdv if j < 4 else srdq}, s39 offen{WFL[opt.wnt]}')

Q_LX, Q_LMEM = 0, 81920
def role_qkv(e):
    fl = ''
    WQ, WK, WV = 0, 80, 160
    MF = 16
    DQ, DK, DV = 96, 100, 104
    PA, PB = 108, 120
    XD = 132
    T0 = 160
    KEEP = 176; TCH = 180
    XA, VA, IDX, SEL, MP = 182, 183, 184, 185, 186
    XRA, XQA, XKA, OQK = 187, 188, 189, 190
    SENT = 248; ONE = 252
    e.I('s_mul_i32 s24, s21, 43')
    e.I('s_lshr_b32 s24, s24, 7')
    e.I('s_mul_i32 s25, s24, 3')
    e.I('s_sub_u32 s25, s21, s25')
    e.I('s_lshl_b32 s26, s20, 2')
    e.I('s_add_u32 s26, s26, s24')
    e.I('s_lshl_b32 s27, s25, 2')
    e.I('s_add_u32 s27, s27, s22')
    srd(e, 8, 60, 640 * 12288); srd(e, 12, 62, 640 * 12288); srd(e, 16, 64, 640 * 12288)
    e.I('s_mul_i32 s28, s26, 384')
    e.I('s_lshl_b32 s29, s25, 7')
    e.I('s_add_u32 s28, s28, s29')
    w_issue, w_consume = load_weights(e, [('s[12:15]', 's28', WK, 640), ('s[16:19]', 's28', WV, 640), ('s[8:11]', 's28', WQ, 640)], 12288, 320, False, 240, 241, 3,
                                      bufoff=[81920, 122880, 40960], manual=True)
    for ci in range(3): w_issue(ci)
    e.I('s_mul_i32 s38, s22, 3072')
    e.I('s_min_u32 s38, s38, 7168')
    e.I('v_add_u32 v3, s38, v2')
    e.I(f'v_add_u32 v5, {Q_LMEM}, v3')
    e.I(f'v_add_u32 v7, {Q_LMEM}, v2')
    lane_ig(e, 14, 15)
    e.I('s_lshr_b32 s38, s27, 1')
    e.I('s_lshl_b32 s38, s38, 10')
    e.I('s_and_b32 s39, s27, 1')
    e.I('s_lshl_b32 s39, s39, 3')
    e.I('s_add_u32 s38, s38, s39')
    e.I('v_add_u32 v8, s38, v2')
    e.I('v_bfe_u32 v11, v1, 2, 2')
    e.I('v_and_b32 v12, 3, v1')
    e.I(f'v_lshlrev_b32 v{XA}, 8, v11')
    e.I(f'v_lshl_add_u32 v{XA}, v15, 6, v{XA}')
    e.I(f'v_lshl_add_u32 v{XA}, v12, 4, v{XA}')
    e.I(f'v_add_u32 v{XA}, s38, v{XA}')
    if opt.eord:
        e.I('s_lshr_b32 s38, s27, 1')
        e.I('s_and_b32 s39, s27, 1')
        e.I('s_lshl_b32 s39, s39, 9')
        e.I('s_lshl_b32 s40, s38, 10')
        e.I('s_add_u32 s40, s40, s39')
        e.I('v_lshrrev_b32 v9, 1, v11')
        e.I('v_lshlrev_b32 v9, 8, v9')
        e.I('v_and_b32 v13, 1, v11')
        e.I('v_lshl_add_u32 v9, v13, 3, v9')
        e.I('v_lshl_add_u32 v9, v12, 4, v9')
        e.I(f'v_lshl_add_u32 v{XA}, v15, 6, v9')
        e.I(f'v_add_u32 v{XA}, s40, v{XA}')
        e.I('v_lshrrev_b32 v13, 1, v15')
        e.I(f'v_lshlrev_b32 v{OQK}, 8, v13')
        e.I(f'v_lshl_add_u32 v{OQK}, v14, 4, v{OQK}')
        e.I(f'v_add_u32 v{OQK}, s40, v{OQK}')
        e.I(f'v_and_b32 v{XQA}, 1, v15')
        e.I(f'v_mul_u32_u24 v{XKA}, {6144 if opt.ox4 else 8}, v{XQA}')
        e.I(f'v_add_u32 v{OQK}, v{OQK}, v{XKA}')
        e.I('s_cmp_ge_u32 s38, 3')
        e.I(f's_cselect_b32 s39, {3072 - 128}, 0')
        e.I('s_sub_u32 s40, s40, s39')
        e.I(f'v_lshl_add_u32 v{XRA}, v{XQA}, 6, v9')
        e.I(f'v_mul_u32_u24 v13, 3072, v13')
        e.I(f'v_add3_u32 v{XRA}, v{XRA}, v13, s40')
        e.I('v_lshrrev_b32 v13, 5, v1')
        e.I(f'v_lshl_or_b32 v{XQA}, v13, 31, v{XRA}')
        e.I('v_xor_b32 v13, 1, v13')
        e.I(f'v_lshl_or_b32 v{XKA}, v13, 31, v{XRA}')
    if opt.inl:
        e.I('v_lshlrev_b32 v13, 4, v12')
        e.I('v_sub_u32 v9, v9, v13')
        e.I('v_and_b32 v13, 1, v12')
        e.I('v_lshl_add_u32 v9, v13, 4, v9')
        e.I('v_lshrrev_b32 v13, 1, v12')
        e.I(f'v_lshl_add_u32 v{XA}, v15, 5, v9')
        e.I(f'v_add_u32 v{XQA}, s40, v{XA}')
        e.I(f'v_lshl_add_u32 v{XA}, v13, 7, v{XA}')
        e.I('s_add_u32 s41, s40, s39')
        e.I(f'v_add_u32 v{XA}, s41, v{XA}')
        e.I('s_cmp_ge_u32 s38, 3')
        e.I('s_cselect_b32 s41, 96, 0')
        e.I('s_sub_u32 s41, s40, s41')
        e.I('s_add_u32 s41, s41, 3072')
        e.I(f'v_lshl_add_u32 v{XKA}, v15, 6, v9')
        e.I(f'v_add_u32 v{XKA}, s41, v{XKA}')
        e.I('v_cmp_eq_u32 vcc, 1, v13')
        e.I(f'v_cndmask_b32 v{XRA}, v{XQA}, v{XKA}, vcc')
    e.I('v_and_b32 v13, 1, v15')
    e.I('v_lshlrev_b32 v13, 2, v13')
    e.I('v_lshrrev_b32 v9, 1, v15')
    e.I('v_lshl_add_u32 v13, v9, 1, v13')
    e.I('v_and_b32 v9, 1, v12')
    e.I('v_add_u32 v13, v13, v9')
    e.I('v_lshrrev_b32 v12, 1, v12')
    e.I('v_lshrrev_b32 v9, 1, v11')
    e.I('v_lshlrev_b32 v9, 8, v9')
    e.I('v_lshl_add_u32 v9, v12, 7, v9')
    e.I('v_lshl_add_u32 v9, v13, 4, v9')
    e.I(f'v_and_b32 v{VA}, 1, v11')
    e.I(f'v_lshl_add_u32 v9, v{VA}, 3, v9')
    e.I('s_lshl_b32 s38, s25, 10')
    e.I('s_lshr_b32 s39, s22, 1')
    e.I('s_lshl_b32 s39, s39, 9')
    e.I('s_add_u32 s38, s38, s39')
    e.I('s_and_b32 s39, s22, 1')
    e.I('s_lshl_b32 s39, s39, 2')
    e.I('s_add_u32 s38, s38, s39')
    e.I('v_add_u32 v9, s38, v9')
    e.I(f'v_lshlrev_b32 v{VA}, 8, v11')
    e.I(f'v_lshl_add_u32 v{VA}, v13, 4, v{VA}')
    e.I(f'v_lshl_add_u32 v{VA}, v12, 2, v{VA}')
    e.I('s_lshr_b32 s38, s27, 1')
    e.I('s_cmp_ge_u32 s38, 3')
    e.I('s_cselect_b32 s39, 3, 0')
    e.I('s_cselect_b32 s40, 128, 0')
    e.I('s_sub_u32 s38, s38, s39')
    e.I('s_lshl_b32 s38, s38, 10')
    e.I('s_add_u32 s38, s38, s40')
    e.I('s_and_b32 s39, s27, 1')
    e.I('s_lshl_b32 s39, s39, 3')
    e.I('s_add_u32 s38, s38, s39')
    e.I(f'v_add_u32 v{VA}, s38, v{VA}')
    if opt.vx2:
        e.I('v_and_b32 v12, 3, v1')
        e.I('v_lshlrev_b32 v13, 6, v15')
        e.I('v_lshl_add_u32 v13, v12, 4, v13')
        e.I('v_lshrrev_b32 v12, 5, v1')
        e.I('v_lshl_or_b32 v13, v12, 31, v13')
        e.I(f'v_lshl_add_u32 v{VA}, v11, 8, v13')
        e.I(f'v_add_u32 v{VA}, s38, v{VA}')
        e.I('v_lshrrev_b32 v9, 1, v11')
        e.I('v_lshl_add_u32 v9, v9, 8, v13')
        e.I('v_and_b32 v12, 1, v11')
        e.I('v_lshl_add_u32 v9, v12, 3, v9')
        e.I('s_lshl_b32 s38, s25, 10')
        e.I('s_lshr_b32 s39, s22, 1')
        e.I('s_lshl_b32 s39, s39, 9')
        e.I('s_add_u32 s38, s38, s39')
        e.I('s_and_b32 s39, s22, 1')
        e.I('s_lshl_b32 s39, s39, 7')
        e.I('s_add_u32 s38, s38, s39')
        e.I('v_add_u32 v9, s38, v9')
    if opt.inl:
        e.I('v_lshlrev_b32 v12, 5, v15')
        e.I(f'v_sub_u32 v{VA}, v{VA}, v12')
        e.I(f'v_and_b32 v{VA}, 0x7fffffff, v{VA}')
        e.I('v_and_b32 v9, 0x7fffffff, v9')
        e.I('s_and_b32 s39, s22, 1')
        e.I('s_mul_i32 s39, s39, 96')
        e.I('v_subrev_u32 v9, s39, v9')
        e.I('v_bfe_u32 v12, v1, 1, 1')
        e.I(f'v_lshl_or_b32 v{VA}, v12, 31, v{VA}')
        e.I('v_lshl_or_b32 v9, v12, 31, v9')
    e.I(f'v_mul_u32_u24 v{MP}, 5, v1')
    e.I(f'v_lshrrev_b32 v{MP}, 3, v{MP}')
    e.I(f'v_lshlrev_b32 v{MP}, 8, v{MP}')
    e.I(f'v_mov_b32 v{IDX}, 0x44444444')
    e.I('v_mov_b32 v11, 0xeeeeeeee')
    if opt.inl:
        e.I('v_and_b32 v12, 2, v1')
        e.I('v_cmp_lt_u32 vcc, 0, v12')
    else: e.I('v_cmp_lt_u32 vcc, 7, v14')
    e.I(f'v_cndmask_b32 v{IDX}, v{IDX}, v11, vcc')
    e.I(f'v_mov_b32 v{SEL}, 0x05040100')
    e.I('v_mov_b32 v11, 0x03020706')
    e.I('v_and_b32 v12, 1, v1')
    e.I('v_cmp_eq_u32 vcc, 1, v12')
    e.I(f'v_cndmask_b32 v{SEL}, v{SEL}, v11, vcc')
    e.I('s_mov_b32 s34, 0x33333333'); e.I('s_mov_b32 s35, 0x33333333')
    e.I('s_mov_b32 s36, 0xcccccccc'); e.I('s_mov_b32 s37, 0xcccccccc')
    for k in range(12): e.I(f'v_mov_b32 v{DQ+k}, 0')
    e.I('s_lshl_b32 s38, s27, 2')
    e.I(f'v_mov_b32 v{ONE+2}, s38')
    e.I(f'v_mov_b32 v{ONE}, 1')
    for k in range(4): e.I(f'v_mov_b32 v{SENT+k}, -1')
    e.I('s_mul_i32 s58, s26, 6144')
    e.I('s_mul_i32 s59, s20, 10240')
    e.I(f's_add_u32 s59, s59, {MEM}')
    e.I('s_mul_i32 s60, s26, 3072')
    e.I('s_lshl_b32 s61, s20, 6')
    e.I('s_lshl_b32 s38, s24, 2')
    e.I('s_add_u32 s61, s61, s38')
    e.I(f's_add_u32 s61, s61, {FLGOX}')
    e.I('v_mov_b32 v10, 0')

    nrd = [7]
    def late_list():
        vs = [f'buffer_store_dwordx2 {vr(KEEP+2,2)}, v{VA}, {WS}, s44 offen{fl}', f'buffer_store_dwordx2 {vr(SENT,2)}, v9, {WS}, s46 offen{fl}'] if opt.vx2 else \
             [f'buffer_store_dword v{KEEP+2}, v{VA}, {WS}, s44 offen{fl}', f'buffer_store_dword v{SENT}, v9, {WS}, s46 offen{fl}']
        return [f'buffer_store_dwordx2 {vr(KEEP,2)}, v{XA}, {WS}, s43 offen{fl}',
                f'buffer_store_dwordx2 {vr(SENT,2)}, v{XRA if opt.split else XA}, {WS}, s42 offen{fl}'] + vs
    def post2(D, t, keep, rm, st):
        QP1, QP2 = 'quad_perm:[1,0,3,2] row_mask:0xf bank_mask:0xf', f'quad_perm:[2,3,0,1] row_mask:{rm} bank_mask:0xf'
        return [[f'v_permlane32_swap_b32 v{D}, v{D+2}', f'v_permlane32_swap_b32 v{D+1}, v{D+3}'],
                [f'v_add_f32 v{t+2}, v{D}, v{D+2}', f'v_add_f32 v{t+3}, v{D+1}, v{D+3}', f'v_cvt_pk_bf16_f32 v{t}, v{t+2}, v{t+3}', f'v_cvt_pk_bf16_f32 v{t+1}, v{t+2}, v{t+3}'],
                [f'v_permlane32_swap_b32 v{t}, v{t+1}', 's_mov_b64 vcc, s[34:35]'],
                [f'v_mov_b32_dpp v{t+2}, v{t} {QP1}', f'v_mov_b32_dpp v{t+3}, v{t+1} {QP1}', f'v_perm_b32 v{t}, v{t+2}, v{t}, v{SEL}', f'v_perm_b32 v{t+1}, v{t+3}, v{t+1}, v{SEL}'],
                [f'v_cndmask_b32_dpp v{keep}, v{t+1}, v{t}, vcc {QP2}', 's_mov_b64 vcc, s[36:37]', f'v_cndmask_b32_dpp v{keep+1}, v{t}, v{t+1}, vcc {QP2}', st],
                [f'v_mov_b32 v{D+k}, 0' for k in range(4)]]
    def late_stores():
        for x_ in late_list(): e.I(x_)
    def xwork(late, mats=(2, 1, 0), dma=True):
        e.I('s_and_b32 s65, s64, 1')
        e.I('s_mul_i32 s66, s65, 40960')
        e.I('v_add_u32 v12, s66, v2')
        e.I('s_xor_b32 s65, s65, 1')
        e.I('s_mul_i32 s65, s65, 40960')
        e.I('s_add_u32 s65, s65, s62')
        e.I('s_add_u32 s66, s64, 1')
        e.I('s_min_u32 s66, s66, 63')
        e.I('s_mul_i32 s66, s66, 40960')
        e.I('s_add_u32 s66, s66, s62')
        e.I(f's_add_u32 s66, s66, {XN}')
        e.I(f's_and_b32 s47, s64, {RD-1}')
        e.I(f's_mul_i32 s47, s47, {SEG_QX}')
        e.I('s_lshl_b32 s48, s58, 1')
        e.I('s_add_u32 s47, s47, s48')
        if late:
            e.I(f's_max_u32 s50, s64, {RD}')
            e.I(f's_sub_u32 s50, s50, {RD}')
            e.I('s_lshl_b32 s50, s50, 9')
            e.I('s_add_u32 s50, s50, s61')
            e.I(f'buffer_load_dword v{TCH}, v10, {WS}, s50 offen sc1')
        PF = opt.xpf
        def rd(n): e.I(f'ds_read_b128 {vr(MF + (n % 20)*4)}, v12 offset:{n*1024}')
        def out(m, rt, part=3):
            d = XD + (m*2+rt)*4; o = T0 + (m*2+rt)*2
            e.I(f'v_cvt_pk_bf16_f32 v{o}, v{d}, v{d+1}')
            e.I(f'v_cvt_pk_bf16_f32 v{o+1}, v{d+2}, v{d+3}')
            if opt.eord and opt.ox4 and m < 2:
                if rt == 1:
                    e.I(f's_add_u32 s48, s47, {(QX, KX, VX)[m]}')
                    e.I(f'v_permlane16_swap_b32 v{o-2}, v{o}')
                    e.I(f'v_permlane16_swap_b32 v{o-1}, v{o+1}')
                    e.I(f'buffer_store_dwordx4 {vr(o-2)}, v{OQK}, {WS}, s48 offen{fl}')
            else:
                e.I(f's_add_u32 s48, s47, {(QX, KX, VX)[m] + rt*6144}')
                e.I(f'buffer_store_dwordx2 {vr(o,2)}, v{OQK if opt.eord and m < 2 else 8}, {WS}, s48 offen{fl}')
        for n in range(PF): rd(n)
        ls = late_list() if late else []
        d0 = max(opt.xdma0, 6 + len(late_list()))
        for n in range(40):
            rt, kk = n // 20, n % 20
            e.I(f's_waitcnt lgkmcnt({min(40, n + PF) - (n + 1)})')
            f = vr(MF + (n % 20)*4)
            for m in mats:
                Wb = (WQ, WK, WV)[m]
                d = vr(XD + (m*2+rt)*4)
                e.I(f'{MFMA} {d}, {ar(Wb+4*kk)}, {f}, {0 if kk == 0 else d}')
            if n + PF < 40: rd(n + PF)
            if late and n == 5:
                bp = e.lab('Lbp')
                e.I(f's_cmp_lt_u32 s64, {RD}')
                e.I(f's_cbranch_scc1 {bp}')
                e.I('s_waitcnt vmcnt(0)')
                e.I(f'v_cmp_eq_u32 vcc, 0, v{TCH}')
                e.I(f's_cbranch_vccz {bp}')
                wait_flags(e, 10, 's50', 1, TCH, 13, sleep=1)
                e.L(bp)
            if n >= 6 and ls: e.I(ls.pop(0))
            elif dma and n >= d0 and (n - d0) % opt.xdmas == 0 and (n - d0) // opt.xdmas < 10:
                m = (n - d0) // opt.xdmas
                e.I(f's_add_u32 m0, s65, {m*1024}')
                e.I(f'buffer_load_dwordx4 v2, {WS}, s66 offen lds')
                e.I('s_add_u32 s66, s66, 1024')
            k0 = 23 if len(mats) > 1 else 28
            if k0 <= n < k0 + len(mats): out(mats[n - k0], 0)
        for m in mats: out(m, 1)
    def flag_addr(back):
        e.I(f's_sub_u32 s51, s64, {back}')
        e.I('s_lshl_b32 s51, s51, 5')
        e.I('s_add_u32 s51, s51, s26')
        e.I('s_lshl_b32 s51, s51, 6')
        e.I(f's_add_u32 s51, s51, {FLGQ}')
    def flag_n():
        flag_addr(0)
        e.I('s_waitcnt vmcnt(0)')
        set_flag(e, ONE + 2, 's51', ONE, fl)
    def mem_part():
        e.I('s_and_b32 s38, s30, 3')
        e.I('s_xor_b32 s39, s38, 2')
        e.I(f's_mul_i32 s40, s38, {MEM_SLOT}')
        e.I('s_add_u32 s40, s40, s59')
        e.I(f's_mul_i32 s41, s38, {XR_SLOT}')
        e.I('s_add_u32 s41, s41, s58')
        e.I(f's_add_u32 s41, s41, {XR}')
        e.I(f's_mul_i32 s42, s39, {XR_SLOT}')
        e.I('s_add_u32 s42, s42, s58')
        e.I(f's_add_u32 s42, s42, {XR}')
        e.I(f's_and_b32 s44, s30, {RD-1}')
        e.I(f's_mul_i32 s43, s44, {SEG_XP}')
        e.I('s_add_u32 s43, s43, s58')
        e.I(f's_add_u32 s43, s43, {XP}')
        e.I(f's_mul_i32 s44, s44, {SEG_VM}')
        e.I('s_add_u32 s44, s44, s60')
        e.I(f's_add_u32 s44, s44, {VM}')
        e.I(f's_mul_i32 s45, s38, {VR_SLOT}')
        e.I('s_add_u32 s45, s45, s60')
        e.I(f's_add_u32 s45, s45, {VR}')
        e.I(f's_mul_i32 s46, s39, {VR_SLOT}')
        e.I('s_add_u32 s46, s46, s60')
        e.I(f's_add_u32 s46, s46, {VR}')
        def issue(b):
            for k in range(3): e.I(f'buffer_load_dwordx4 {vr(b+4*k)}, v3, {WS}, s40 offen offset:{k*1024} sc1')
        def early(b):
            for k in range(3): e.I(f'ds_write_b128 v5, {vr(b+4*k)} offset:{k*1024}')
        flag_addr(1)
        wl = [e.lab('Lmw') for _ in range(4)]; jn = e.lab('Lmj')
        for w in range(1, 4):
            e.I(f's_cmp_eq_u32 s22, {w}')
            e.I(f's_cbranch_scc1 {wl[w]}')
        def sm(d, W, src, m): e.I(f'{SMF} {vr(d)}, {vr(src)}, {ar(W+8*m,8)}, v{IDX}')
        for w in range(4):
            e.L(wl[w])
            own = [min(3*w, 7) + k for k in range(3)]
            rest = [m for m in range(10) if m not in own]
            def consume(b):
                TS(e, 1)
                if not opt.spec: early(b)
                mine = [(d, W, b + 4*k, m) for k, m in enumerate(own) for d, W in ((DQ, WQ), (DK, WK))] + [(DV, WV, b + 4*k, m) for k, m in enumerate(own)]
                if opt.split == 1: mine = [(d, W, b + 4*k, m) for d, W in ((DQ, WQ), (DK, WK), (DV, WV))[:2 + opt.vown] for k, m in enumerate(own)]
                elif not opt.vown: mine = mine[:6]
                if opt.split == 1 and opt.fq == -3: e.I(FLAG())
                for x_ in mine[:opt.mpre]: sm(*x_)
                e.I('s_waitcnt lgkmcnt(0)')
                e.I('s_barrier')
                if opt.split == 1 and opt.fq == -2: e.I(FLAG())
                rl = [f'ds_read_b128 {vr(MF+4*k)}, v7 offset:{m*1024}' for k, m in enumerate(rds)]
                for x_ in rl[:opt.rdmix or 10]: e.I(x_)
                rl = rl[opt.rdmix or 10:]
                if opt.split == 1 and opt.fq == -1: e.I(FLAG())
                for n_, x_ in enumerate(mine[opt.mpre:]):
                    sm(*x_)
                    if rl: e.I(rl.pop(0))
                    if opt.split == 1 and opt.fq == 100 + n_: e.I(FLAG())
                for x_ in rl: e.I(x_)
            rds = rest + (own if not opt.vown else [])
            nrd[0] = len(rds)
            FLAG = lambda: f'buffer_store_dword v{ONE}, v{ONE+2}, {WS}, s51 offen{fl}'
            if opt.mwait: e.I(f's_sleep {opt.mwait}')
            poll2(e, issue, 3, PA, PB, consume, T0, T0 + 1, 1, early if opt.spec else None)
            if opt.split == 1:
                seq = [(DQ, WQ, MF + 4*k, m) for k, m in enumerate(rest)] + [(DK, WK, MF + 4*k, m) for k, m in enumerate(rest)] + [(DV, WV, MF + 4*k, m) for k, m in enumerate(rds)]
                ins = {}
                for j_, g_ in enumerate(post2(DQ, T0 + 4, KEEP, '0x3', f'buffer_store_dwordx2 {vr(KEEP,2)}, v{XQA}, {WS}, s41 offen{fl}')): ins.setdefault(7 + j_, []).extend(g_)
                for j_, g_ in enumerate(post2(DK, T0 + 8, KEEP, '0xc', f'buffer_store_dwordx2 {vr(KEEP,2)}, v{XKA}, {WS}, s41 offen{fl}')): ins.setdefault(14 + (0, 1, 1, 2, 3, 4)[j_] if opt.ktight else 14 + j_, []).extend(g_)
                for n_, x_ in enumerate(seq):
                    if n_ < 7: e.I(f's_waitcnt lgkmcnt({len(rds) - 1 - n_})')
                    if n_ == 21: e.I('s_waitcnt lgkmcnt(0)')
                    sm(*x_)
                    if n_ == opt.fq: e.I(FLAG())
                    for y_ in ins.get(n_, []):
                        e.I(y_)
                        if f'v{XKA},' in y_: TS(e, 2)
                vpost()
            else:
                e.I('s_mov_b64 vcc, s[34:35]')
                for k, m in enumerate(rest):
                    e.I(f's_waitcnt lgkmcnt({len(rds)-1-k})')
                    sm(DQ, WQ, MF + 4*k, m); sm(DK, WK, MF + 4*k, m)
                post(lambda k: sm(DV, WV, MF + 4*k, rds[k]))
            if w < 3: e.I(f's_branch {jn}')
        e.L(jn)
        e.I('v_xor_b32 v5, 0xc000, v5')
        e.I('v_xor_b32 v7, 0xc000, v7')
        TS(e, 3)
    def post(vm):
        if opt.inl:
            QP1, QP2 = 'quad_perm:[1,0,3,2] row_mask:0xf bank_mask:0xf', 'quad_perm:[2,3,0,1] row_mask:0xf bank_mask:0xf'
            FLAG = f'buffer_store_dword v{ONE}, v{ONE+2}, {WS}, s51 offen{fl}'
            todo = list(range(nrd[0]))
            def vm1():
                if todo:
                    if todo[0] == 7: e.I('s_waitcnt lgkmcnt(0)')
                    vm(todo.pop(0))
            if opt.fpos == 8: e.I(FLAG)
            for m in range(opt.vpre): vm1()
            if opt.fpos == 9: e.I(FLAG)
            for D in (DQ, DK):
                for r in range(2): e.I(f'v_add_f32 v{D+r}, v{D+r}, v{D+2+r}')
            if opt.fpos == 10: e.I(FLAG)
            e.I(f'v_cvt_pk_bf16_f32 v{T0}, v{DQ}, v{DQ+1}')
            e.I(f'v_cvt_pk_bf16_f32 v{T0+1}, v{DK}, v{DK+1}')
            if opt.vin & 1: vm1()
            if opt.fpos == 11: e.I(FLAG)
            e.I(f'v_mov_b32_dpp v{T0+2}, v{T0} {QP1}')
            e.I(f'v_mov_b32_dpp v{T0+3}, v{T0+1} {QP1}')
            e.I(f'v_perm_b32 v{T0}, v{T0+2}, v{T0}, v{SEL}')
            e.I(f'v_perm_b32 v{T0+1}, v{T0+3}, v{T0+1}, v{SEL}')
            if opt.vin & 2: vm1()
            if opt.fpos == 12: e.I(FLAG)
            e.I(f'v_cndmask_b32_dpp v{KEEP}, v{T0+1}, v{T0}, vcc {QP2}')
            e.I('s_mov_b64 vcc, s[36:37]')
            e.I(f'v_cndmask_b32_dpp v{KEEP+1}, v{T0}, v{T0+1}, vcc {QP2}')
            e.I(f'buffer_store_dwordx2 {vr(KEEP,2)}, v{XRA}, {WS}, s41 offen{fl}')
            TS(e, 2)
            z = [f'v_mov_b32 v{DQ+k}, 0' for k in range(8)]
            while todo:
                vm1()
                if len(z) > 7 - opt.zin and todo: e.I(z.pop(0))
            for x_ in z: e.I(x_)
            e.I(f'v_add_f32 v{DV}, v{DV}, v{DV+2}')
            e.I(f'v_add_f32 v{DV+1}, v{DV+1}, v{DV+3}')
            e.I(f'v_cvt_pk_bf16_f32 v{T0}, v{DV}, v{DV+1}')
            e.I(f'v_mov_b32 v{DV+2}, 0'); e.I(f'v_mov_b32 v{DV+3}, 0')
            e.I(f'v_mov_b32_dpp v{T0+2}, v{T0} {QP1}')
            e.I(f'v_perm_b32 v{KEEP+2}, v{T0+2}, v{T0}, v{SEL}')
            e.I(f'v_mov_b32 v{DV}, 0'); e.I(f'v_mov_b32 v{DV+1}, 0')
            e.I(f'v_mov_b32_dpp v{KEEP+3}, v{KEEP+2} {QP2}')
            e.I(f'buffer_store_dwordx2 {vr(KEEP+2,2)}, v9, {WS}, s45 offen{fl}')
            return
        if opt.vgap:
            QP1, QP2 = 'quad_perm:[1,0,3,2] row_mask:0xf bank_mask:0xf', 'quad_perm:[2,3,0,1] row_mask:0xf bank_mask:0xf'
            L = [f'v_permlane32_swap_b32 v{DQ+r}, v{DK+r}' for r in range(4)] + [f'v_add_f32 v{DQ+r}, v{DQ+r}, v{DK+r}' for r in range(4)]
            L += [f'v_cvt_pk_bf16_f32 v{T0}, v{DQ}, v{DQ+1}', f'v_cvt_pk_bf16_f32 v{T0+1}, v{DQ+2}, v{DQ+3}', '*',
                  f'v_mov_b32_dpp v{T0+2}, v{T0} {QP1}', f'v_mov_b32_dpp v{T0+3}, v{T0+1} {QP1}', f'v_perm_b32 v{T0}, v{T0+2}, v{T0}, v{SEL}', f'v_perm_b32 v{T0+1}, v{T0+3}, v{T0+1}, v{SEL}', '*',
                  f'v_cndmask_b32_dpp v{KEEP}, v{T0+1}, v{T0}, vcc {QP2}', 's_mov_b64 vcc, s[36:37]', f'v_cndmask_b32_dpp v{KEEP+1}, v{T0}, v{T0+1}, vcc {QP2}',
                  f'buffer_store_dwordx2 {vr(KEEP,2)}, v{XRA if opt.split else XA}, {WS}, s41 offen{fl}']
            m = 0
            for m in range(opt.vpre): vm(m)
            m = opt.vpre; c = 0
            for n_, x_ in enumerate(L):
                if n_ == opt.fv: e.I(f'buffer_store_dword v{ONE}, v{ONE+2}, {WS}, s51 offen{fl}'); c += 1
                if x_ == '*':
                    if m < 7 and c >= 2: vm(m); m += 1; c = 0
                    continue
                e.I(x_); c += 1
                if c >= opt.vgap and m < 7 and n_ < 16 and L[n_ + 1] != '*': vm(m); m += 1; c = 0
            TS(e, 2)
            while m < 7: vm(m); m += 1
            for k in range(8): e.I(f'v_mov_b32 v{DQ+k}, 0')
            vpost()
            return
        QP1, QP2 = 'quad_perm:[1,0,3,2] row_mask:0xf bank_mask:0xf', 'quad_perm:[2,3,0,1] row_mask:0xf bank_mask:0xf'
        nv = opt.vpre
        for m in range(nv): vm(m)
        if opt.fpos == 10: e.I(f'buffer_store_dword v{ONE}, v{ONE+2}, {WS}, s51 offen{fl}')
        for r in range(4): e.I(f'v_permlane32_swap_b32 v{DQ+r}, v{DK+r}')
        for r in range(4): e.I(f'v_add_f32 v{DQ+r}, v{DQ+r}, v{DK+r}')
        e.I(f'v_cvt_pk_bf16_f32 v{T0}, v{DQ}, v{DQ+1}')
        e.I(f'v_cvt_pk_bf16_f32 v{T0+1}, v{DQ+2}, v{DQ+3}')
        vm(nv)
        if opt.fpos == 11: e.I(f'buffer_store_dword v{ONE}, v{ONE+2}, {WS}, s51 offen{fl}')
        e.I(f'v_mov_b32_dpp v{T0+2}, v{T0} {QP1}')
        e.I(f'v_mov_b32_dpp v{T0+3}, v{T0+1} {QP1}')
        e.I(f'v_perm_b32 v{T0}, v{T0+2}, v{T0}, v{SEL}')
        e.I(f'v_perm_b32 v{T0+1}, v{T0+3}, v{T0+1}, v{SEL}')
        vm(nv + 1)
        if opt.fpos == 12: e.I(f'buffer_store_dword v{ONE}, v{ONE+2}, {WS}, s51 offen{fl}')
        e.I(f'v_cndmask_b32_dpp v{KEEP}, v{T0+1}, v{T0}, vcc {QP2}')
        e.I('s_mov_b64 vcc, s[36:37]')
        e.I(f'v_cndmask_b32_dpp v{KEEP+1}, v{T0}, v{T0+1}, vcc {QP2}')
        e.I(f'buffer_store_dwordx2 {vr(KEEP,2)}, v{XRA if opt.split else XA}, {WS}, s41 offen{fl}')
        TS(e, 2)
        for m in range(nv + 2, 7): vm(m)
        for k in range(8): e.I(f'v_mov_b32 v{DQ+k}, 0')
        vpost()
    def vpost():
        if opt.vx2:
            for g_ in post2(DV, T0 + 4, KEEP + 2, '0xf', f'buffer_store_dwordx2 {vr(KEEP+2,2)}, v9, {WS}, s45 offen{fl}'):
                for y_ in g_: e.I(y_)
            return
        QP1 = 'quad_perm:[1,0,3,2] row_mask:0xf bank_mask:0xf'
        e.I(f'v_permlane32_swap_b32 v{DV}, v{DV+2}')
        e.I(f'v_permlane32_swap_b32 v{DV+1}, v{DV+3}')
        e.I(f'v_add_f32 v{DV}, v{DV}, v{DV+2}')
        e.I(f'v_add_f32 v{DV+1}, v{DV+1}, v{DV+3}')
        e.I(f'v_cvt_pk_bf16_f32 v{T0}, v{DV}, v{DV+1}')
        e.I(f'v_mov_b32_dpp v{T0+2}, v{T0} {QP1}')
        e.I(f'v_perm_b32 v{KEEP+2}, v{T0+2}, v{T0}, v{SEL}')
        e.I(f'buffer_store_dword v{KEEP+2}, v9, {WS}, s45 offen{fl}')
        for k in range(4): e.I(f'v_mov_b32 v{DV+k}, 0')
    w_consume(0, 0, 20); w_issue(3, 0)
    w_consume(1, 1, 20); w_issue(4, 1)
    w_consume(2, 2, 20)
    w_consume(3, 0, 10)
    w_consume(4, 1, 0)
    TS(e, 0)
    wait_reg(e, T0)
    TS(e, 1)
    TSflush(e, '69')
    e.I('s_mul_i32 s62, s22, 10240')
    def xdma(seg, buf):
        e.I(f's_add_u32 s63, s62, {XN + seg*40960}')
        for m in range(10):
            e.I(f's_add_u32 m0, s62, {Q_LX + buf*40960 + m*1024}')
            e.I(f'buffer_load_dwordx4 v2, {WS}, s63 offen lds')
            e.I('s_add_u32 s63, s63, 1024')
    xdma(0, 0)
    w_issue(5, 0)
    xdma(1, 1)
    e.I('s_cmp_lg_u32 s23, 0')
    e.I('s_cbranch_scc1 L_qkvs')
    for slow in (False, True):
        fl = ' sc1' if slow else ''
        if slow: e.L('L_qkvs')
        pro, top, nox, nxt_, q0, q0r, qq, q1 = [e.lab(x_) for x_ in ('Lqp', 'Lqt', 'Lqn', 'Lqx', 'Lq0', 'Lqr', 'Lqq', 'Lq1')]
        e.I('s_mov_b32 s30, 0')
        e.I('s_mov_b32 s64, 0')
        TS(e, 0)
        e.I('s_waitcnt vmcnt(20)')
        TS(e, 1)
        e.I('s_barrier')
        xwork(False, (2, 1), False)
        e.I('s_mov_b32 s64, 1')
        TS(e, 2)
        flag_addr(1)
        e.I('s_waitcnt vmcnt(0)')
        TS(e, 3)
        set_flag(e, ONE + 2, 's51', ONE, fl)
        w_consume(5, 0, 1)
        if opt.urg: wait_count(e, T0, D_W, 80, 4)
        TS(e, 4)
        TSflush(e, '68')
        xwork(False, (2, 1, 0), False)
        e.I('s_mov_b32 s64, 2')
        e.I(f's_branch {top}')
        e.L(q0)
        e.I('s_mov_b32 s64, 0')
        xwork(False, (0,), False)
        e.I('s_barrier')
        xdma(2, 0)
        e.I('s_mov_b32 s64, 2')
        e.I('s_waitcnt vmcnt(0)')
        e.I('s_barrier')
        e.I(f's_branch {q0r}')
        e.L(top)
        TS(e, 0)
        mem_part()
        e.I('s_cmp_eq_u32 s30, 0')
        e.I(f's_cbranch_scc1 {q0}')
        e.L(q0r)
        e.I('s_cmp_ge_u32 s64, 64')
        e.I(f's_cbranch_scc1 {nox}')
        xwork(True)
        e.I('s_cmp_lg_u32 s64, 63')
        e.I(f's_cbranch_scc1 {nxt_}')
        flag_n()
        e.I(f's_branch {nxt_}')
        e.L(nox)
        for x_ in late_list()[0::2]: e.I(x_)
        flag_n()
        e.L(nxt_)
        TS(e, 4)
        e.I('s_add_u32 s64, s64, 1')
        TS(e, 5)
        TSflush(e, 's30')
        e.I('s_add_u32 s30, s30, 1')
        e.I('s_cmp_lt_u32 s30, 64')
        e.I(f's_cbranch_scc1 {top}')
        e.I('s_endpgm')

S_RED = 98304
def role_sw(e):
    fl = ''
    XF, KXF, VXF, VMF = 16, 40, 88, 136
    S, PB, PM = 148, 160, 164
    DW, DM, VWX, VWM = 168, 184, 200, 216
    OUT = DW
    PA = XF
    CI = 224
    T0 = 228; IDX = 246; SENT = 248; ONE = 252
    AONE, AHALF = 96, 100
    W2 = 104 if opt.vx2 else 0
    PAD = 240
    e.I('s_sub_u32 s24, s21, 12')
    e.I('s_lshl_b32 s25, s24, 2')
    e.I('s_add_u32 s25, s25, s22')
    e.I('s_lshl_b32 s26, s20, 2')
    e.I('s_add_u32 s26, s26, s22')
    srd(e, 8, 66, 6144 * 1280)
    def wo_load():
        e.I(f's_mul_i32 s28, s26, {192*1280}')
        e.I('s_lshl_b32 s29, s24, 7')
        e.I('s_add_u32 s28, s28, s29')
        e.I('v_lshrrev_b32 v17, 3, v1')
        e.I('v_bfe_u32 v18, v1, 4, 2')
        e.I('v_lshlrev_b32 v18, 1, v18')
        e.I('v_and_b32 v19, 7, v1')
        e.I('v_xor_b32 v19, v19, v18')
        e.I('v_mul_u32_u24 v16, 1280, v17')
        e.I('v_lshl_add_u32 v16, v19, 4, v16')
        e.I('s_mul_i32 s46, s22, 24576')
        for n in range(24):
            e.I(f's_add_u32 m0, s46, {n*1024}')
            e.I(f'buffer_load_dwordx4 v16, s[8:11], s28 offen{WFL[opt.wnt]} lds')
            if n < 23: e.I(f's_add_u32 s28, s28, {8*1280}')
        extra = 0
        if opt.pfs == 2: sw_pf(); extra = 3 * (12 - opt.pfh)
        e.I('v_lshrrev_b32 v17, 2, v1')
        e.I('v_bfe_u32 v18, v17, 1, 2')
        e.I('v_lshlrev_b32 v17, 7, v17')
        e.I('v_and_b32 v19, 3, v1')
        e.I('v_lshl_add_u32 v17, v19, 3, v17')
        e.I('v_add_u32 v17, s46, v17')
        for ct in range(4):
            e.I(f'v_xor_b32 v19, {ct}, v18')
            e.I(f'v_lshl_add_u32 v{20+ct}, v19, 5, v17')
        for kk in range(6):
            e.I(f's_waitcnt vmcnt({20 - 4*kk + extra})')
            for ct in range(4):
                e.I(f'ds_read_b64_tr_b16 {ar((ct*6+kk)*4,2)}, v{20+ct} offset:{kk*4096}')
                e.I(f'ds_read_b64_tr_b16 {ar((ct*6+kk)*4+2,2)}, v{20+ct} offset:{kk*4096+2048}')
        e.I('s_waitcnt lgkmcnt(0)')
        if opt.vx2:
            for f_ in range(24):
                for k, k2 in enumerate((0, 2, 1, 3)): e.I(f'v_accvgpr_mov_b32 a{W2 + 4*f_ + k}, a{4*f_ + k2}')
    nocal = e.lab('Lnc')
    e.I('s_cmp_lg_u32 s25, 8')
    e.I(f's_cbranch_scc1 {nocal}')
    e.I('s_lshl_b32 s38, s20, 7')
    e.I(f's_add_u32 s38, s38, {CAL}')
    e.I('s_add_u32 s39, s38, 8192')
    e.I('s_mov_b32 s40, -1'); e.I('s_mov_b32 s41, -1'); e.I('s_mov_b32 s42, 4')
    e.I('v_mov_b32 v10, 0')
    e.I('s_mov_b64 exec, 1')
    cal = e.lab('Lcal')
    e.L(cal)
    for so, acc in (('s38', 's40'), ('s39', 's41')):
        e.I(f'buffer_store_dword v10, v10, {WS}, {so} offen sc1')
        e.I('s_waitcnt vmcnt(0)')
        e.I('s_memtime s[44:45]')
        e.I('s_waitcnt lgkmcnt(0)')
        e.I(f'buffer_load_dword v11, v10, {WS}, {so} offen sc1')
        e.I('s_waitcnt vmcnt(0)')
        e.I('s_memtime s[46:47]')
        e.I('s_waitcnt lgkmcnt(0)')
        e.I('s_sub_u32 s46, s46, s44')
        e.I(f's_min_u32 {acc}, {acc}, s46')
    e.I('s_sub_u32 s42, s42, 1')
    e.I('s_cmp_lg_u32 s42, 0')
    e.I(f's_cbranch_scc1 {cal}')
    e.I('s_cmp_lt_u32 s41, s40')
    if opt.pflip: e.I('s_cmp_ge_u32 s41, s40')
    e.I('s_cselect_b32 s38, 2, 1')
    e.I('v_mov_b32 v11, s38')
    e.I('s_lshl_b32 s38, s20, 2')
    e.I('v_mov_b32 v10, s38')
    e.I(f'global_store_dword v10, v11, s[74:75] offset:{D_PAR} sc1')
    e.I('s_mov_b64 exec, -1')
    e.L(nocal)
    def sw_pf():
        srd(e, 12, 64, 640 * 12288); srd(e, 16, 60, 640 * 12288)
        prefetch_w(e, 's25', opt.pfh, 12, 32, 's[12:15]', 's[16:19]')
    if opt.pfs == 1: sw_pf()
    def early_touch():
        jobs = []
        for sl in range(2): jobs += [(b_ + sl * SEG_QX, 12288, 96) for b_ in (KX, VX)]
        for sl in range(2): jobs += [(QX + sl * SEG_QX, 12288, 96), (XP + sl * SEG_XP, 6144, 48), (VM + sl * SEG_VM, 3072, 24)]
        touch_jobs(e, jobs, 's24', 10, 's26', 24)
    if opt.tord == 0: early_touch()
    if not opt.swlate: wo_load()
    if opt.tord == 1: early_touch()
    e.I(f's_mov_b32 s52, {SC_L2E:#x}'); e.I(f's_mov_b32 s53, {SC_L2E | 0x80000000:#x}')
    lane_ig(e, 14, 15)
    e.I('v_and_b32 v13, 7, v14')
    e.I('v_lshlrev_b32 v13, 4, v13')
    e.I('v_lshl_add_u32 v13, v15, 7, v13')
    e.I('v_bfe_u32 v5, v1, 3, 1')
    e.I('s_lshl_b32 s38, s22, 9')
    e.I(f's_add_u32 s38, s38, {S_RED}')
    e.I('v_add_u32 v6, s38, v13')
    e.I('v_lshl_add_u32 v6, v5, 14, v6')
    e.I('s_lshl_b32 s38, s22, 11')
    e.I(f's_add_u32 s38, s38, {S_RED}')
    e.I('v_add_u32 v7, s38, v13')
    e.I('v_lshl_add_u32 v7, v5, 10, v7')
    if opt.remap:
        e.I('v_bfe_u32 v8, v1, 1, 2')
        e.I('v_add_u32 v8, v8, v15')
        e.I('v_and_b32 v8, 3, v8')
        e.I('v_and_b32 v9, 7, v1')
        e.I('v_lshlrev_b32 v9, 6, v9')
        e.I('v_lshl_add_u32 v9, v8, 4, v9')
        e.I('v_sub_u32 v9, v9, v13')
        e.I('v_add_u32 v6, v6, v9')
    if opt.remap == 1:
        e.I('v_add_u32 v8, v1, v15')
        e.I('v_and_b32 v8, 3, v8')
        e.I('v_bfe_u32 v9, v1, 2, 1')
        e.I('v_lshl_add_u32 v9, v15, 1, v9')
        e.I('v_lshlrev_b32 v9, 6, v9')
        e.I('v_lshl_add_u32 v9, v8, 4, v9')
        e.I('v_sub_u32 v9, v9, v13')
        e.I('v_add_u32 v7, v7, v9')
    if opt.remap == 2:
        e.I('v_lshrrev_b32 v5, 5, v1')
        e.I('v_bfe_u32 v8, v1, 3, 2')
        e.I('v_add_u32 v8, v8, v1')
        e.I('v_and_b32 v8, 3, v8')
        e.I('v_bfe_u32 v9, v1, 2, 3')
        e.I('v_lshlrev_b32 v9, 6, v9')
        e.I('v_lshl_add_u32 v9, v8, 4, v9')
        e.I('v_add_u32 v7, s38, v9')
        e.I('v_lshl_add_u32 v7, v5, 10, v7')
        e.I('v_and_b32 v13, 31, v1')
        e.I('v_lshlrev_b32 v13, 4, v13')
    if opt.pbf: e.I('v_lshrrev_b32 v13, 1, v13')
    e.I('v_lshl_add_u32 v13, v5, 13, v13')
    e.I('v_and_b32 v4, 0x1fff, v13')
    e.I('v_lshlrev_b32 v9, 2, v5')
    e.I('v_xor_b32 v9, s20, v9')
    for m in range(4):
        e.I(f'v_xor_b32 v8, {m}, v9')
        e.I(f'v_lshl_add_u32 v{PAD+m}, v8, 9, v4')
    e.I('v_and_b32 v9, 7, v1')
    e.I('v_lshlrev_b32 v8, 4, v9')
    e.I('v_lshl_add_u32 v8, v5, 7, v8')
    e.I('v_lshl_add_u32 v8, v15, 2, v8')
    if opt.remap == 2: e.I('v_lshlrev_b32 v8, 2, v1')
    if opt.remap == 1:
        e.I('v_bfe_u32 v9, v1, 2, 1')
        e.I('v_lshl_add_u32 v9, v15, 1, v9')
        e.I('v_lshlrev_b32 v8, 4, v9')
        e.I('v_lshl_add_u32 v8, v5, 7, v8')
        e.I('v_and_b32 v9, 3, v1')
        e.I('v_lshl_add_u32 v8, v9, 2, v8')
        if opt.inl:
            e.I('v_bfe_u32 v8, v1, 2, 1')
            e.I('v_lshl_add_u32 v8, v5, 1, v8')
            e.I('v_lshl_add_u32 v8, v15, 2, v8')
            e.I('v_lshlrev_b32 v8, 4, v8')
            e.I('v_lshl_add_u32 v8, v9, 2, v8')
    e.I('s_lshl_b32 s38, s25, 8')
    e.I('v_add_u32 v8, s38, v8')
    e.I('v_lshrrev_b32 v9, 1, v1')
    if opt.split:
        e.I('v_cmp_lt_u32 vcc, 2, v9')
        e.I('v_lshlrev_b32 v9, 10, v9')
        e.I(f'v_add_u32 v10, {128 - 3072}, v9')
        e.I('v_cndmask_b32 v9, v9, v10, vcc')
    else:
        e.I('v_lshlrev_b32 v9, 10, v9')
    e.I('v_and_b32 v10, 1, v1')
    e.I(f'v_lshl_add_u32 v9, v10, {9 if opt.eord else 3}, v9')
    e.I(f'v_lshlrev_b32 v{ONE+1}, 2, v1')
    for k in range(4): e.I(f'v_mov_b32 v{SENT+k}, -1')
    e.I('s_mov_b32 s68, 0xff00ff00'); e.I('s_mov_b32 s69, 0xff00ff00')
    e.I('s_mov_b32 s70, 0x3f80'); e.I('s_mov_b32 s71, 0x3f800000')
    e.I(f'v_mov_b32 v{CI}, {NEG_BIG:#x}')
    e.I('s_mov_b32 vcc_lo, 0')
    e.I('s_mov_b32 vcc_hi, 0x00ff00ff')
    e.I(f'v_cndmask_b32 v{CI}, v{CI}, 0, vcc')
    for k in range(1, 4): e.I(f'v_mov_b32 v{CI+k}, v{CI}')
    e.I(f'v_mov_b32 v{IDX}, 0x44444444')
    e.I('v_mov_b32 v11, 0xeeeeeeee')
    if opt.inl:
        e.I('v_and_b32 v12, 2, v1')
        e.I('v_cmp_lt_u32 vcc, 0, v12')
    else: e.I('v_cmp_lt_u32 vcc, 7, v14')
    e.I(f'v_cndmask_b32 v{IDX}, v{IDX}, v11, vcc')
    e.I('v_mov_b32 v11, 0x3f803f80')
    for k in range(4): e.I(f'v_accvgpr_write_b32 a{AONE+k}, v11')
    e.I('v_mov_b32 v11, 0x3f003f00')
    for k in range(2): e.I(f'v_accvgpr_write_b32 a{AHALF+k}, v11')
    e.I('s_mul_i32 s58, s26, 6144')
    e.I(f's_add_u32 s58, s58, {XR}')
    e.I('s_mul_i32 s57, s26, 3072')
    e.I(f's_add_u32 s57, s57, {VR}')
    e.I('s_lshr_b32 s59, s25, 1')
    e.I('s_lshl_b32 s59, s59, 14')
    e.I('s_and_b32 s38, s25, 1')
    e.I('s_lshl_b32 s38, s38, 12')
    e.I('s_add_u32 s59, s59, s38')
    e.I(f's_add_u32 s59, s59, {PART}')
    e.I('s_lshl_b32 s60, s20, 9')
    e.I('s_add_u32 s60, s60, s59')
    e.I('s_mul_i32 s61, s20, 10240')
    e.I(f's_add_u32 s61, s61, {MEM}')
    e.I('s_mul_i32 s62, s26, 12288')
    e.I('s_lshl_b32 s63, s26, 6')
    e.I(f's_add_u32 s63, s63, {FLGQ}')
    e.I('s_lshl_b32 s38, s20, 2')
    e.I('v_mov_b32 v10, s38')
    wait_flags(e, 10, D_PAR, 1, T0, 12, sleep=4, dbg=True)
    e.I(f'v_readfirstlane_b32 s38, v{T0}')
    e.I('s_nop 3')
    e.I('s_and_b32 s38, s38, 2')
    e.I('s_lshl_b32 s38, s38, 12')
    e.I('s_add_u32 s59, s59, s38')
    e.I('s_lshl_b32 s38, s22, 2')
    e.I(f's_add_u32 s38, s38, {S_RED + 8192}')
    e.I('v_lshlrev_b32 v10, 4, v14')
    e.I('v_add_u32 v10, s38, v10')
    e.I('v_and_b32 v11, 7, v14')
    if opt.remap == 1:
        e.I('v_bfe_u32 v11, v1, 2, 1')
        e.I('v_lshl_add_u32 v11, v15, 1, v11')
    if opt.remap == 2: e.I('v_bfe_u32 v11, v1, 2, 3')
    e.I('v_lshlrev_b32 v11, 4, v11')
    e.I(f'v_bfe_u32 v12, v1, {5 if opt.remap == 2 else 3}, 1')
    e.I('v_lshl_add_u32 v11, v12, 3, v11')
    e.I(f'v_add_u32 v11, {S_RED + 8192}, v11')
    e.I('v_min_u32 v12, 11, v1')
    e.I('v_lshlrev_b32 v12, 2, v12')
    if opt.nod:
        e.I('v_bfe_u32 v15, v1, 3, 1')
        e.I('v_mul_u32_u24 v14, 1016, v15')
        e.I('v_sub_u32 v7, v7, v14')
        e.I('v_lshlrev_b32 v14, 3, v15')
        e.I('v_sub_u32 v11, v11, v14')
        e.I('v_lshlrev_b32 v15, 2, v1')
        for m, r_ in enumerate((PAD, PAD + 1, PAD + 2, PAD + 3, 4, 5, 14)):
            e.I(f's_xor_b32 s38, s20, {m + 1}')
            e.I('s_lshl_b32 s38, s38, 9')
            e.I(f'v_add_u32 v{r_}, s38, v15')
    def kv_loads(dst, base, q0=0, q1=12):
        if q0 >= q1: return
        e.I(f's_and_b32 s48, s49, {RD-1}')
        e.I(f's_mul_i32 s48, s48, {SEG_QX}')
        e.I('s_add_u32 s48, s48, s62')
        e.I(f's_add_u32 s48, s48, {base + (q0//4)*4096}')
        for q in range(q0, q1):
            if q % 4 == 0 and q > q0: e.I('s_add_u32 s48, s48, 4096')
            e.I(f'buffer_load_dwordx4 {vr(dst+4*q)}, v2, {WS}, s48 offen offset:{(q%4)*1024} sc1')
    def vx_loads():
        e.I(f's_and_b32 s48, s49, {RD-1}')
        e.I(f's_mul_i32 s48, s48, {SEG_QX}')
        e.I('s_add_u32 s48, s48, s62')
        e.I(f's_add_u32 s48, s48, {VX}')
        e.I('s_add_u32 s46, s48, 4096')
        e.I('s_add_u32 s56, s48, 8192')
        for kk in range(6):
            for rt in range(2):
                q = rt * 6 + kk
                e.I(f'buffer_load_dwordx4 {vr(VXF+4*q)}, v2, {WS}, {("s48", "s46", "s56")[q//4]} offen offset:{(q%4)*1024} sc1')
    def vw_grp(gi):
        kk, rt = gi // 2, gi % 2
        for ct in range(4):
            d = vr(DW + (ct*2+rt)*4)
            e.I(f'{MFMA} {d}, {vr(VXF+4*(rt*6+kk))}, {ar((ct*6+kk)*4)}, {0 if kk == 0 else d}')
    cv = [f'v_cvt_pk_bf16_f32 v{VWX+4*ct+k}, v{DW+8*ct+2*k}, v{DW+8*ct+2*k+1}' for ct in range(4) for k in range(4)] + [f'v_mov_b32 v{DM+k}, 0' for k in range(16)]
    def vw_x(after, extra=(), nvx=0, g0=0):
        extra = list(extra); nx0 = len(extra)
        for gi in range(g0, 12):
            if gi >= 12 - nvx: e.I(f's_waitcnt vmcnt({11 - gi + nx0 - len(extra)})')
            for _ in range(-(-len(extra) // (12 - gi))): e.I(extra.pop(0))
            if after is not None: e.I(f's_waitcnt vmcnt({after + 11 - gi})')
            vw_grp(gi)
        for n_, x_ in enumerate(cv[:32 - opt.cvx]):
            if extra and n_ % 2 == 0: e.I(extra.pop(0))
            e.I(x_)
        for x_ in extra: e.I(x_)
    TS(e, 0)
    wait_reg(e, T0, opt.rsleep)
    TS(e, 1)
    if opt.swlate: wo_load()
    if opt.tord == 2: early_touch()
    TS(e, 2)
    TSflush(e, '69', 244, 245)
    if opt.touch2:
        e.I('v_lshrrev_b32 v16, 4, v1')
        e.I(f's_mov_b32 s38, {PART_SLOT}')
        e.I('v_mul_lo_u32 v16, s38, v16')
        e.I('v_bfe_u32 v17, v1, 1, 3')
        e.I('v_lshl_add_u32 v16, v17, 9, v16')
        e.I('v_and_b32 v17, 1, v1')
        e.I('v_lshl_add_u32 v16, v17, 7, v16')
        if opt.ptouch == 2: e.I('s_mov_b32 exec_lo, 0')
        if opt.ptouch: e.I(f'buffer_load_dword v17, v16, {WS}, s59 offen sc1{" nt" if opt.ptouch == 3 else ""}')
        e.I('s_mov_b64 exec, -1')
    wait_flags(e, ONE + 1, 's63', 0xfff, T0, 11, sleep=2)
    if opt.dstamp:
        for k in range(90, 94): e.I(f's_mov_b32 s{k}, 0')
    e.I('s_mov_b32 s49, 0')
    vx_loads()
    kv_loads(KXF, KX)
    if opt.split and opt.xg1 + opt.xg2:
        e.I('s_waitcnt vmcnt(12)')
        for gi in range(opt.pmf + opt.pmf2): vw_grp(gi)
    else: vw_x(12)
    e.I('s_cmp_lg_u32 s23, 0')
    e.I('s_cbranch_scc1 L_sws')
    for slow in (False, True):
        fl = ' sc1' if slow else ''
        if slow: e.L('L_sws')
        top = e.lab('Lwt')
        e.I('s_mov_b32 s30, 0')
        e.L(top)
        TS(e, 0)
        if opt.pdiag: e.I('s_mov_b32 s94, 0')
        e.I('s_and_b32 s38, s30, 3')
        e.I('s_xor_b32 s39, s38, 2')
        e.I(f's_mul_i32 s40, s38, {XR_SLOT}')
        e.I('s_add_u32 s40, s40, s58')
        e.I('s_add_u32 s54, s40, 4096')
        e.I(f's_mul_i32 s55, s38, {VR_SLOT}')
        e.I('s_add_u32 s55, s55, s57')
        if opt.fresh:
            e.I(f's_mul_i32 s41, s30, {PART_SLOT}')
            e.I(f's_add_u32 s41, s41, {SCRATCH + 0x400000 - PART + 0x200000}')
        else:
            e.I(f's_mul_i32 s41, s38, {PART_SLOT}')
        e.I('s_add_u32 s42, s41, s60')
        e.I('s_add_u32 s41, s41, s59')
        if opt.fresh:
            e.I('s_lshr_b32 s47, s41, 8')
            e.I('s_not_b32 s47, s47')
            e.I('s_and_b32 s47, s47, 8192')
            e.I('s_xor_b32 s41, s41, s47')
        e.I('s_xor_b32 s47, s41, 8192')
        e.I(f's_mul_i32 s43, s39, {PART_SLOT}')
        e.I('s_add_u32 s43, s43, s60')
        e.I('s_add_u32 s49, s30, 1')
        e.I('s_and_b32 s44, s49, 3')
        e.I('s_xor_b32 s45, s44, 2')
        e.I(f's_mul_i32 s44, s44, {MEM_SLOT}')
        e.I('s_add_u32 s44, s44, s61')
        e.I(f's_mul_i32 s45, s45, {MEM_SLOT}')
        e.I('s_add_u32 s45, s45, s61')
        e.I(f's_and_b32 s46, s49, {RD-1}')
        e.I(f's_mul_i32 s46, s46, {SEG_QX}')
        e.I('s_add_u32 s46, s46, s62')
        e.I(f's_add_u32 s65, s46, {KX}')
        e.I(f's_add_u32 s46, s46, {VX}')
        e.I('s_add_u32 s56, s46, 4096')
        e.I('s_add_u32 s64, s46, 8192')
        e.I('s_add_u32 s66, s65, 4096')
        e.I('s_add_u32 s67, s65, 8192')
        e.I('s_lshl_b32 s50, s49, 11')
        e.I('s_add_u32 s50, s50, s63')
        pl, pd, fr, hl, hd = e.lab('Lxp'), e.lab('Lxd'), e.lab('Lxf'), e.lab('Lhp'), e.lab('Lhd')
        def probe(lp, dn, va, so, bad):
            e.I('s_mov_b64 exec, 0xfff')
            e.I(f'buffer_load_dword v{T0}, v{va}, {WS}, {so} offen sc1')
            e.L(lp)
            for a_, b_ in ((T0, T0 + 1), (T0 + 1, T0)):
                e.I(f'buffer_load_dword v{b_}, v{va}, {WS}, {so} offen sc1')
                e.I('s_waitcnt vmcnt(1)')
                e.I(f'v_cmp_eq_u32 vcc, {bad}, v{a_}')
                e.I(f's_cbranch_vccz {dn}')
            e.I('s_sub_u32 s31, s31, 1')
            e.I(f's_cbranch_scc0 {lp}')
            e.I('s_mov_b32 s31, 2')
            e.I('s_branch L_fail')
        e.I(f's_mov_b32 s31, {TMO}')
        ROR8 = 'row_ror:8 row_mask:0xf bank_mask:0xf'
        ROR8L, ROR8H = 'row_ror:8 row_mask:0xf bank_mask:0x3', 'row_ror:8 row_mask:0xf bank_mask:0xc'
        if opt.split:
            XQ, XK = XF, XF + 12
            A1a, A2a, A1b, A2b, MM = S + 4, S, S + 8, T0 + 4, CI
            def q_loads():
                for j in range(3): e.I(f'buffer_load_dwordx4 {vr(XQ+4*j)}, v2, {WS}, s40 offen offset:{j*1024} sc1')
            def k_loads():
                e.I(f'buffer_load_dwordx4 {vr(XK)}, v2, {WS}, s40 offen offset:3072 sc1')
                for j in range(1, 3): e.I(f'buffer_load_dwordx4 {vr(XK+4*j)}, v2, {WS}, s54 offen offset:{(j-1)*1024} sc1')
            def vm_loads():
                for q in range(3): e.I(f'buffer_load_dwordx4 {vr(VMF+4*q)}, v2, {WS}, s55 offen offset:{q*1024} sc1')
            def chk(r, j):
                if opt.thin1:
                    if j == 2: e.I(f'v_max3_u32 v{T0+2}, v{r-8}, v{r-4}, v{r}')
                else: e.I(f'v_max_u32 v{T0+2}, v{r}, v{r+2}' if j == 0 else f'v_max3_u32 v{T0+2}, v{T0+2}, v{r}, v{r+2}')
            def mm(j): e.I(f'{MFMA} {vr(MM)}, {vr(XK+4*j)}, {vr(XQ+4*j)}, {0 if j == 0 else vr(MM)}')
            def gap(n):
                while n > 0: e.I(f's_nop {min(n, 16) - 1}'); n -= 16
            lq, qf_, qd_, kf_, kd_, kok = [e.lab(x_) for x_ in ('Lsq', 'Lsqf', 'Lsqd', 'Lskf', 'Lskd', 'Lsko')]
            probe(hl, hd, 12, 's50', 0)
            e.L(qf_)
            if opt.dstamp: e.I('s_add_u32 s90, s90, 1')
            e.I('s_sub_u32 s31, s31, 1')
            e.I('s_cbranch_scc1 L_fail')
            probe(pl, qd_, 9, 's40', -1)
            e.L(qd_)
            e.I('s_mov_b64 exec, -1')
            q_loads()
            e.I('s_waitcnt vmcnt(0)')
            e.I(f's_branch {lq}')
            e.L(kf_)
            if opt.dstamp: e.I('s_add_u32 s91, s91, 1')
            e.I('s_sub_u32 s31, s31, 1')
            e.I('s_cbranch_scc1 L_fail')
            e.I('s_add_u32 s48, s40, 3072')
            if opt.inl:
                e.I(f'v_and_b32 v{T0+8}, 128, v9')
                e.I(f'v_lshrrev_b32 v{T0+9}, 2, v{T0+8}')
                e.I(f'v_sub_u32 v{T0+8}, v9, v{T0+8}')
                e.I(f'v_add_u32 v{T0+8}, v{T0+8}, v{T0+9}')
            probe(e.lab('Lskp'), kd_, T0 + 8 if opt.inl else 9, 's48', -1)
            e.L(kd_)
            e.I('s_mov_b64 exec, -1')
            k_loads()
            e.I('s_waitcnt vmcnt(0)')
            for j in range(3): mm(j); chk(XK + 4*j, j)
            e.I(f'v_cmp_eq_u32 vcc, -1, v{T0+2}')
            e.I(f's_cbranch_vccnz {kf_}')
            e.I('s_nop 7')
            e.I(f's_branch {kok}')
            e.L(hd)
            e.I('s_mov_b64 exec, -1')
            TS(e, 1)
            g0_ = opt.pmf + opt.pmf2
            q_loads()
            for gi in range(g0_, g0_ + opt.xg1): vw_grp(gi)
            gap(opt.g1)
            k_loads()
            for gi in range(g0_ + opt.xg1, g0_ + opt.xg1 + opt.xg2): vw_grp(gi)
            gap(opt.g2)
            for x_ in cv[32 - opt.cvx:]: e.I(x_)
            vm_loads()
            if opt.xg1 + opt.xg2: vw_x(None, (), 0, g0_ + opt.xg1 + opt.xg2)
            e.L(lq)
            t = T0 + 2
            if opt.sord:
                def qm(d, kf, j): e.I(f'{MFMA} {vr(d)}, {vr(KXF+4*kf)}, {vr(XQ+4*j)}, {0 if j == 0 else vr(d)}')
                mL = [f'v_add_f32_dpp v{S+4+r}, v{A2a+r}, v{A1a+r} {ROR8L}' for r in range(4)]
                mH = [f'v_add_f32_dpp v{S+4+r}, v{A1b+r}, v{A2b+r} {ROR8H}' for r in range(4)]
                for j in range(3):
                    e.I(f's_waitcnt vmcnt({8-j})')
                    qm(A1a, j, j); chk(XQ + 4*j, j); qm(A2a, j + 3, j)
                e.I(f'v_cmp_eq_u32 vcc, -1, v{T0+2}')
                qm(A1b, 6, 0)
                e.I(f's_cbranch_vccnz {qf_}')
                qm(A2b, 9, 0); qm(A1b, 7, 1)
                e.I(mL[0]); e.I(mL[1])
                qm(A2b, 10, 1)
                e.I(mL[2]); e.I(mL[3])
                qm(A1b, 8, 2); qm(A2b, 11, 2)
                for j in range(3):
                    e.I(f's_waitcnt vmcnt({5-j})')
                    mm(j)
                    if j < 2: chk(XK + 4*j, j)
                    if j == 1: e.I(mH[0])
                chk(XK + 8, 2)
                e.I(f'v_cmp_eq_u32 vcc, -1, v{T0+2}')
                for x_ in mH[1:]: e.I(x_)
                e.I(f'v_max3_f32 v{t+1}, v{S+4}, v{S+5}, v{S+6}')
                e.I(f's_cbranch_vccnz {kf_}')
            else:
                for j in range(3):
                    x = vr(XQ + 4*j)
                    e.I(f's_waitcnt vmcnt({8-j})')
                    if opt.t9 == j: TS(e, 9)
                    for n_, (d, kf) in enumerate(((A1a, j), (A2a, j + 3), (A1b, 6 + j), (A2b, 9 + j))):
                        e.I(f'{MFMA} {vr(d)}, {vr(KXF+4*kf)}, {x}, {0 if j == 0 else vr(d)}')
                        if n_ == 0: chk(XQ + 4*j, j)
                        if n_ == 1 and j == 2: e.I(f'v_cmp_eq_u32 vcc, -1, v{T0+2}')
                e.I(f's_cbranch_vccnz {qf_}')
                t = T0 + 2
                for j in range(3):
                    e.I(f's_waitcnt vmcnt({5-j})')
                    if opt.t9 == 3 + j: TS(e, 9)
                    mm(j); chk(XK + 4*j, j)
                    if j == 1:
                        for r in range(4): e.I(f'v_add_f32_dpp v{S+4+r}, v{A2a+r}, v{A1a+r} {ROR8L}')
                e.I(f'v_cmp_eq_u32 vcc, -1, v{T0+2}')
                for r in range(4): e.I(f'v_add_f32_dpp v{S+4+r}, v{A1b+r}, v{A2b+r} {ROR8H}')
                e.I(f'v_max3_f32 v{t+1}, v{S+4}, v{S+5}, v{S+6}')
                e.I(f's_cbranch_vccnz {kf_}')
            e.L(kok)
            TS(e, 2)
        if not opt.split:
            probe(hl, hd, 12, 's50', 0)
            xp = e.lab('Lxq')
            e.L(xp)
            probe(pl, pd, 9, 's40', -1)
            e.L(hd)
            if opt.hdelay: e.I(f's_nop {opt.hdelay - 1}')
            if not opt.heads: e.I(f's_branch {xp}')
            e.L(pd)
            e.I('s_mov_b64 exec, -1')
            TS(e, 1)
            if opt.pdiag: e.I('s_add_u32 s94, s94, 1')
            e.L(fr)
            for p in range(6):
                e.I(f'buffer_load_dwordx4 {vr(XF+4*p)}, v2, {WS}, {"s40" if p < 4 else "s54"} offen offset:{(p%4)*1024} sc1')
            FQ = CI + 23
            def vm_loads():
                for q in range(3):
                    e.I(f'buffer_load_dwordx4 {vr(VMF+4*q)}, v2, {WS}, s55 offen offset:{q*1024} sc1')
            vp = opt.vmpos
            bulk0 = [f'buffer_load_dwordx4 {vr(VXF+4*q)}, v2, {WS}, {("s46", "s56", "s64")[q//4]} offen offset:{(q%4)*1024} sc1' for q in (0, 6, 1, 7, 2, 8)]
            nvm = 0
            if vp == 0: vm_loads(); nvm = 3
            for p in range(6):
                x = vr(XF + 4*p)
                e.I(f's_waitcnt vmcnt({5-p+nvm})')
                e.I(f'{MFMA} {vr(S+4)}, {vr(KXF+4*p)}, {x}, {0 if p == 0 else vr(S+4)}')
                e.I(f'{MFMA} {vr(S+8)}, {vr(KXF+24+4*p)}, {x}, {0 if p == 0 else vr(S+8)}')
                e.I(f'{MFMA} {vr(S)}, {x}, {x}, {vr(CI) if p == 0 else vr(S)}')
                if vp == p + 1: vm_loads(); nvm = 3
                if p >= 6 - opt.kx and p >= vp: e.I(bulk0[p - (6 - opt.kx)]); nvm += 1
                r = XF + 4 * p
                if opt.thin:
                    e.I(f'v_max_u32 v{T0+2}, v{r}, v{r+2}' if p == 0 else f'v_max3_u32 v{T0+2}, v{T0+2}, v{r}, v{r+2}')
                elif p == 0:
                    e.I(f'v_max3_u32 v{T0+2}, v{r}, v{r+1}, v{r+2}')
                    e.I(f'v_max_u32 v{T0+2}, v{T0+2}, v{r+3}')
                else:
                    e.I(f'v_max3_u32 v{T0+2}, v{T0+2}, v{r}, v{r+1}')
                    e.I(f'v_max3_u32 v{T0+2}, v{T0+2}, v{r+2}, v{r+3}')
            e.I(f'v_cmp_eq_u32 vcc, -1, v{T0+2}')
            ok = e.lab('Lxo')
            e.I(f's_cbranch_vccz {ok}')
            e.I('s_sub_u32 s31, s31, 1')
            e.I('s_nop 7')
            if opt.dstamp: e.I('s_mov_b32 s89, s90'); e.I('s_addk_i32 s89, 1'); e.I('s_mov_b32 s90, s89'); e.I('s_cmp_eq_u32 s31, 0')
            e.I(f's_cbranch_scc0 {xp}')
            e.I('s_mov_b32 s31, 2')
            e.I('s_branch L_fail')
            e.L(ok)
            TS(e, 2)
            vl, vd = e.lab('Lvp'), e.lab('Lvd')
            vl2 = e.lab('Lv2')
            if opt.kx: e.I(f's_waitcnt vmcnt({opt.kx})'); e.I(f's_branch {vl2}')
            e.L(vl)
            e.I('s_waitcnt vmcnt(0)')
            e.L(vl2)
            check_sent(e, [r_ for r_ in range(VMF, VMF + 12) if not opt.thin or r_ % 4 in ((0, 2) if opt.vx2 else (0, 1))], T0 + 2, T0 + 3)
            e.I(f's_cbranch_vccz {vd}')
            if opt.dstamp: e.I('s_add_u32 s92, s92, 1')
            vm_loads()
            e.I('s_sub_u32 s31, s31, 1')
            e.I(f's_cbranch_scc0 {vl}')
            e.I('s_mov_b32 s31, 3')
            e.I('s_branch L_fail')
            e.L(vd)
            TS(e, 3)
        PW = 2 if opt.pbf else 4
        if opt.rpos == 0: e.I(f'buffer_store_dwordx{PW} {vr(SENT,PW)}, v13, {WS}, s43 offen sc1')
        sm = [f'{SMF} {vr(DM+4*ct)}, {vr(VMF+4*m)}, {ar(W2+(ct*6+2*m)*4,8)}, v{IDX}' for m in range(3) for ct in range(4)]
        t = T0 + 2
        V = []
        for r in range(4): V.append(f'v_mov_b32_dpp v{S+4+r}, v{S+8+r} row_shr:8 row_mask:0xf bank_mask:0xc')
        V += [f'v_max3_f32 v{t}, v{S}, v{S+1}, v{S+2}', f'v_max3_f32 v{t+1}, v{S+3}, v{S+4}, v{S+5}', f'v_max3_f32 v{t}, v{t}, v{S+6}, v{S+7}', f'v_max_f32 v{t}, v{t}, v{t+1}',
              '*', '*', f'v_max_f32_dpp v{t}, v{t}, v{t} {ROR8}', f'v_mov_b32 v{t+1}, v{t}', '*', '*', f'v_permlane16_swap_b32 v{t}, v{t+1}', f'v_max_f32 v{t}, v{t}, v{t+1}',
              f'v_mov_b32 v{t+1}, v{t}', '*', '*', f'v_permlane32_swap_b32 v{t}, v{t+1}', f'v_max_f32 v{t}, v{t}, v{t+1}', f'v_mul_f32 v{t}, s53, v{t}']
        order = [4, 5, 6, 7, 0, 1, 2, 3]
        for i in order: V.append(f'v_fma_f32 v{S+i}, v{S+i}, s52, v{t}')
        for n_, i in enumerate(order):
            V.append(f'v_exp_f32 v{S+i}, v{S+i}')
        if opt.split:
            V = ['V8', f'v_permlane32_swap_b32 v{MM}, v{MM+2}', f'v_permlane32_swap_b32 v{MM+1}, v{MM+3}', 'V9', '*', '*',
                 f'v_add_f32_dpp v{S}, v{MM+2}, v{MM} {ROR8L}', f'v_add_f32_dpp v{S}, v{MM+1}, v{MM+3} {ROR8H}', f'v_max3_f32 v{t}, v{t+1}, v{S+7}, v{S}', 'V0',
                 '*', '*', f'v_max_f32_dpp v{t}, v{t}, v{t} {ROR8}', f'v_mov_b32 v{t+1}, v{t}', 'V1', '*', '*', f'v_permlane16_swap_b32 v{t}, v{t+1}', f'v_max_f32 v{t}, v{t}, v{t+1}',
                 f'v_mov_b32 v{t+1}, v{t}', 'V2', '*', '*', f'v_permlane32_swap_b32 v{t}, v{t+1}', f'v_max_f32 v{t}, v{t}, v{t+1}', f'v_mul_f32 v{t}, s53, v{t}', 'V3']
            if opt.inl: V = ['V8', 'V9', f'v_add_f32_dpp v{S}, v{MM+2}, v{MM} {ROR8L}', f'v_add_f32_dpp v{S}, v{MM+1}, v{MM+3} {ROR8H}'] + V[8:]
            order = [4, 5, 6, 7, 0]
            for i in order: V.append(f'v_fma_f32 v{S+i}, v{S+i}, s52, v{t}')
            V.append('V4')
            for i in order: V.append(f'v_exp_f32 v{S+i}, v{S+i}')
            if opt.pvmix:
                V += [f'v_cvt_pk_bf16_f32 v{PB}, v{S+4}, v{S+5}', f'v_cvt_pk_bf16_f32 v{PB+1}, v{S+6}, v{S+7}', f'v_mov_b32_dpp v{t}, v{S} {ROR8}',
                      f'v_mov_b32_dpp v{PB+2}, v{PB} {ROR8}', f'v_mov_b32_dpp v{PB+3}, v{PB+1} {ROR8}']
            else: V += [f'v_cvt_pk_bf16_f32 v{PB}, v{S+4}, v{S+5}', f'v_cvt_pk_bf16_f32 v{PB+1}, v{S+6}, v{S+7}', f'v_mov_b32_dpp v{t}, v{S} {ROR8}',
                  f'v_mov_b32_dpp v{PB+2}, v{PB} {ROR8}', f'v_mov_b32_dpp v{PB+3}, v{PB+1} {ROR8}', f'v_cvt_pk_bf16_f32 v{PM}, v{S}, v{t}', f'v_mov_b32 v{PM+1}, v{PM}' if not opt.inl else f'v_cvt_pk_bf16_f32 v{PM+1}, v{S}, v{t}']
        bulk = [f'buffer_load_dwordx4 {vr(VXF+4*q)}, v2, {WS}, {("s46", "s56", "s64")[q//4]} offen offset:{(q%4)*1024} sc1' for q in (0, 6, 1, 7, 2, 8, 3, 9, 4, 10, 5, 11)]
        bulk += [f'buffer_load_dwordx4 {vr(KXF+4*q)}, v2, {WS}, {("s65", "s66", "s67")[q//4]} offen offset:{(q%4)*1024} sc1' for q in range(12)]
        kin = bulk[opt.kx:opt.kin]; kp = bulk[opt.kin:opt.kin + opt.kp]; kc = bulk[opt.kin + opt.kp:]
        if opt.nobulk & 1: kin = []
        if opt.nobulk & 2: kp = []
        if opt.nobulk & 4: kc = []
        lim = [opt.n1]
        def ld():
            if kin and lim[0] > 0: e.I(kin.pop(0)); lim[0] -= 1
        nk0 = len(kin)
        def vcheck():
            vl, vl2, vd = e.lab('Lvp'), e.lab('Lv2'), e.lab('Lvd')
            e.I(f's_waitcnt vmcnt({nk0 - len(kin)})')
            e.L(vl2)
            check_sent(e, [r_ for r_ in range(VMF, VMF + 12) if not opt.thin or r_ % 4 in ((0,) if opt.thin1 else (0, 2) if opt.vx2 else (0, 1))], T0, T0 + 1)
            e.I(f's_cbranch_vccz {vd}')
            if opt.dstamp: e.I('s_add_u32 s92, s92, 1')
            vm_loads()
            e.I('s_waitcnt vmcnt(0)')
            e.I('s_sub_u32 s31, s31, 1')
            e.I(f's_cbranch_scc0 {vl2}')
            e.I('s_mov_b32 s31, 3')
            e.I('s_branch L_fail')
            e.L(vd)
            TS(e, 3)
            for x_ in sm[:opt.smpre]: e.I(x_)
            return sm[opt.smpre:]
        if opt.split: rest = []
        else:
            for x_ in sm[:opt.smpre]: e.I(x_)
            rest = sm[opt.smpre:]
        cost = 0; prev = None; since = 0
        for x_ in V:
            if x_[0] == 'V':
                if x_ == f'V{opt.vpos}': rest = vcheck(); cost = 0
            elif x_ == '*':
                if prev == '*' or cost == 0 or not rest: ld(); since = 0
                else: e.I(rest.pop(0)); cost = 0
            else:
                e.I(x_); c_ = 2 if 'v_exp' in x_ else 1; cost += c_; since += c_
                if cost >= opt.smgap and rest: e.I(rest.pop(0)); cost = 0
                elif since >= opt.ldgap: ld(); since = 0
            prev = x_
        late_sm = rest if opt.split else []
        if not opt.split:
            for x_ in rest: e.I(x_)
            e.I(f'v_cvt_pk_bf16_f32 v{PB}, v{S+4}, v{S+5}')
            e.I(f'v_cvt_pk_bf16_f32 v{PB+1}, v{S+6}, v{S+7}')
            e.I(f'v_cvt_pk_bf16_f32 v{PM}, v{S}, v{S+1}')
            e.I(f'v_cvt_pk_bf16_f32 v{PM+1}, v{S+2}, v{S+3}')
            e.I(f'v_mov_b32_dpp v{PB+2}, v{PB} {ROR8}')
            e.I(f'v_mov_b32_dpp v{PB+3}, v{PB+1} {ROR8}')
            e.I(f'v_mov_b32 v{t}, v{PM}')
            e.I(f'v_mov_b32 v{t+1}, v{PM+1}')
        for x_ in late_sm: e.I(x_)
        if opt.tpos == 0: TS(e, 4)
        def cvm(ct):
            e.I(f'v_cvt_pk_bf16_f32 v{VWM+2*ct}, v{DM+4*ct}, v{DM+4*ct+1}')
            e.I(f'v_cvt_pk_bf16_f32 v{VWM+2*ct+1}, v{DM+4*ct+2}, v{DM+4*ct+3}')
        lim[0] = opt.n2
        SUM = S + 8 if opt.pvmix else S
        e.I(f'{MFMA} {vr(OUT)}, {vr(VWX)}, {vr(PB)}, 0')
        if opt.inl:
            if opt.pvmix:
                for k in range(2): e.I(f'v_cvt_pk_bf16_f32 v{PM+k}, v{S}, v{t}')
        elif opt.split: e.I(f'v_permlane32_swap_b32 v{PM}, v{PM+1}')
        else:
            e.I(f'v_permlane32_swap_b32 v{t}, v{PM}')
            e.I(f'v_permlane32_swap_b32 v{t+1}, v{PM+1}')
        e.I(f'{MFMA} {vr(SUM)}, {ar(AONE)}, {vr(PB)}, 0')
        cvm(0)
        if opt.n2 > 7: ld()
        e.I(f'{MFMA} {vr(OUT+4)}, {vr(VWX+4)}, {vr(PB)}, 0')
        cvm(1)
        if opt.n2 > 6: ld()
        e.I(f'{MFMA} {vr(OUT+8)}, {vr(VWX+8)}, {vr(PB)}, 0')
        cvm(2)
        if opt.n2 > 5: ld()
        e.I(f'{MFMA} {vr(OUT+12)}, {vr(VWX+12)}, {vr(PB)}, 0')
        cvm(3)
        if opt.n2 > 4: ld()
        e.I(f'{MFMA16} {vr(OUT)}, {vr(VWM,2)}, {vr(PM,2)}, {vr(OUT)}')
        ld()
        e.I(f'{MFMA16} {vr(SUM)}, {ar(AHALF,2)}, {vr(PM,2)}, {vr(SUM)}')
        ld()
        for ct in range(1, 4):
            e.I(f'{MFMA16} {vr(OUT+4*ct)}, {vr(VWM+2*ct,2)}, {vr(PM,2)}, {vr(OUT+4*ct)}')
            if ct < 3: ld()
        lim[0] = len(kin) - opt.n3
        while lim[0] > 0: ld()
        if opt.tpos == 1: TS(e, 4)
        e.I('s_not_b64 exec, s[68:69]')
        e.I(f'ds_write_b128 v6, {vr(OUT)}')
        e.I(f'v_rcp_f32 v{t}, v{SUM}')
        e.I(f'ds_write_b128 v6, {vr(OUT+4)} offset:2048')
        e.I(f'ds_write_b32 v10, v{t}')
        e.I(f'ds_write_b128 v6, {vr(OUT+8)} offset:4096')
        e.I(f'ds_write_b128 v6, {vr(OUT+12)} offset:6144')
        e.I('s_mov_b64 exec, -1')
        lim[0] = 99
        while kin: ld()
        e.I('s_waitcnt lgkmcnt(0)')
        if opt.tpos == 2: TS(e, 4)
        e.I('s_barrier')
        if opt.tpos == 3: TS(e, 4)
        if opt.nod:
            F = T0 + 4
            e.I(f'ds_read_b128 {vr(F)}, v11')
            e.I(f'ds_read2_b64 {vr(S)}, v7 offset0:0 offset1:64')
            e.I(f'ds_read2_b64 {vr(S+4)}, v7 offset0:128 offset1:192')
            e.I('s_add_u32 s48, s42, 8192')
            e.I('s_waitcnt lgkmcnt(1)')
            e.I(f'v_pk_mul_f32 {vr(S,2)}, {vr(S,2)}, {vr(F,2)} op_sel_hi:[1,0]')
            e.I(f'v_pk_fma_f32 {vr(S,2)}, {vr(S+2,2)}, {vr(F,2)}, {vr(S,2)} op_sel:[0,1,0]')
            e.I('s_waitcnt lgkmcnt(0)')
            e.I(f'v_pk_fma_f32 {vr(S,2)}, {vr(S+4,2)}, {vr(F+2,2)}, {vr(S,2)} op_sel_hi:[1,0,1]')
            e.I(f'v_pk_fma_f32 {vr(S,2)}, {vr(S+6,2)}, {vr(F+2,2)}, {vr(S,2)} op_sel:[0,1,0]')
            e.I(f'v_cvt_pk_bf16_f32 v{S+4}, v{S}, v{S+1}')
            e.I(f'buffer_store_dword v{S+4}, v15, {WS}, s42 offen sc1')
            e.I(f'buffer_store_dword v{S+4}, v15, {WS}, s48 offen sc1')
        else:
            e.I(f'ds_read_b64 {vr(t,2)}, v11')
            e.I(f'ds_read_b128 {vr(S)}, v7')
            e.I(f'ds_read_b128 {vr(S+4)}, v7 offset:512')
            e.I('s_waitcnt lgkmcnt(1)')
            for k in range(4): e.I(f'v_mul_f32 v{S+k}, v{S+k}, v{t}')
            e.I('s_waitcnt lgkmcnt(0)')
            for k in range(4): e.I(f'v_fmac_f32 v{S+k}, v{S+4+k}, v{t+1}')
            if opt.remap == 2:
                e.I(f'v_permlane32_swap_b32 v{S}, v{S+2}')
                e.I(f'v_permlane32_swap_b32 v{S+1}, v{S+3}')
                e.I(f'v_add_f32 v{S}, v{S}, v{S+2}')
                e.I(f'v_add_f32 v{S+1}, v{S+1}, v{S+3}')
                e.I(f'v_cvt_pk_bf16_f32 v{S+4}, v{S}, v{S+1}')
                e.I(f'v_cvt_pk_bf16_f32 v{S+5}, v{S}, v{S+1}')
                e.I(f'v_permlane32_swap_b32 v{S+4}, v{S+5}')
                e.I(f'buffer_store_dwordx2 {vr(S+4,2)}, v13, {WS}, s42 offen sc1')
            else:
                for k in range(4): e.I(f'v_add_f32_dpp v{S+k}, v{S+k}, v{S+k} {ROR8}')
                if opt.pbf:
                    e.I(f'v_cvt_pk_bf16_f32 v{S+4}, v{S}, v{S+1}')
                    e.I(f'v_cvt_pk_bf16_f32 v{S+5}, v{S+2}, v{S+3}')
                    e.I(f'buffer_store_dwordx2 {vr(S+4,2)}, v13, {WS}, s42 offen sc1')
                else:
                    e.I(f'buffer_store_dwordx4 {vr(S)}, v13, {WS}, s42 offen sc1')
        TS(e, 5)
        if opt.rpos == 2: e.I(f'buffer_store_dwordx{PW} {vr(SENT,PW)}, v13, {WS}, s43 offen sc1')
        if not opt.nod:
            e.I(f'v_mov_b32 v{PA}, 0'); e.I(f'v_mov_b32 v{PA+1}, 0')
            if opt.remap == 2:
                e.I('s_mov_b32 vcc_lo, 0'); e.I('s_mov_b32 vcc_hi, -1')
                for k in range(2): e.I(f'v_cndmask_b32 v{S+2+k}, 0, v{S+k}, vcc')
                for k in range(2): e.I(f'v_cndmask_b32_e64 v{S+k}, v{S+k}, 0, vcc')
            else:
                for k in range(4): e.I(f'v_cndmask_b32 v{S+k}, v{S+k}, 0, s[68:69]')
        if opt.pmf:
            e.I(f's_waitcnt vmcnt({2 + opt.nod})')
            for gi in range(opt.pmf): vw_grp(gi)
        if opt.pdelay: e.I(f's_sleep {opt.pdelay}')
        PADS = [PAD, PAD + 1, PAD + 2, PAD + 3, 4, 5, 14]
        def shot():
            if opt.nod:
                for m in range(7): e.I(f'buffer_load_dword v{PA+m}, v{PADS[m]}, {WS}, s41 offen sc1')
                for k in range(2): e.I(f'v_mov_b32 v{T0+4+k}, v{S+k}')
                return
            e.I('s_mov_b32 exec_lo, 0' if opt.remap == 2 else 's_mov_b64 exec, s[68:69]')
            e.I(f'buffer_load_dwordx2 {vr(PA,2)}, v{PAD}, {WS}, s41 offen sc1')
            e.I('s_mov_b64 exec, -1')
            for m in range(1, 4): e.I(f'buffer_load_dwordx2 {vr(PA+2*m,2)}, v{PAD+m}, {WS}, s41 offen sc1')
            for k in range(4): e.I(f'v_mov_b32 v{T0+8+k}, v{S+k}')
        ql, qd, qf = e.lab('Lpp'), e.lab('Lpd'), e.lab('Lpf')
        def acc(behind):
            if opt.nod:
                for m in range(7):
                    if m in (0, 3, 5, 6): e.I(f's_waitcnt vmcnt({(4, 0, 0, 2, 0, 1, 0)[m] + behind})')
                    if m == 0: e.I(f'v_max3_u32 v{T0}, v{PA}, v{PA+1}, v{PA+2}')
                    if m == 3: e.I(f'v_max3_u32 v{T0}, v{T0}, v{PA+3}, v{PA+4}')
                    if m == 6:
                        e.I(f'v_max3_u32 v{T0}, v{T0}, v{PA+5}, v{PA+6}')
                        e.I(f'v_cmp_eq_u32 vcc, -1, v{T0}')
                    for k in range(2): e.I(f'v_dot2c_f32_bf16 v{T0+4+k}, {("s70", "s71")[k]}, v{PA+m}')
                e.I(f's_cbranch_vccz {qd}')
                return
            for m in range(4):
                e.I(f's_waitcnt vmcnt({3-m+behind})')
                if m == 0: e.I(f'v_max_u32 v{T0}, v{PA}, v{PA+1}')
                else: e.I(f'v_max3_u32 v{T0}, v{T0}, v{PA+2*m}, v{PA+2*m+1}')
                if m == 3: e.I(f'v_cmp_eq_u32 vcc, -1, v{T0}')
                for k in range(4): e.I(f'v_dot2c_f32_bf16 v{T0+8+k}, {("s70", "s71")[k&1]}, v{PA+2*m+(k>>1)}')
            e.I(f's_cbranch_vccz {qd}')
        shot()
        for gi in range(opt.pmf, opt.pmf + opt.pmf2): vw_grp(gi)
        if kp:
            e.I(f's_nop {opt.kgap}') if opt.kgap < 16 else e.I(f's_sleep {opt.kgap // 16}')
            for x_ in kp: e.I(x_)
            acc(len(kp))
        else:
            e.I(f's_branch {qf}')
        e.L(ql)
        if opt.dstamp: e.I('s_add_u32 s93, s93, 1')
        shot()
        e.L(qf)
        acc(0)
        e.I('s_sub_u32 s31, s31, 1')
        e.I(f's_cbranch_scc0 {ql}')
        e.I('s_mov_b32 s31, 4')
        e.I('s_branch L_fail')
        e.L(qd)
        TS(e, 6)
        if opt.nod: pass
        elif opt.remap == 2:
            e.I('s_nop 1')
            e.I(f'v_permlane32_swap_b32 v{T0+8}, v{T0+10}')
            e.I(f'v_permlane32_swap_b32 v{T0+9}, v{T0+11}')
            for k in range(2): e.I(f'v_add_f32 v{T0+4+k}, v{T0+8+k}, v{T0+10+k}')
        else:
            e.I('s_nop 1')
            for k in range(2): e.I(f'v_add_f32_dpp v{T0+4+k}, v{T0+8+k}, v{T0+8+k} row_ror:8 row_mask:0xf bank_mask:0x3')
            for k in range(2): e.I(f'v_add_f32_dpp v{T0+4+k}, v{T0+10+k}, v{T0+10+k} row_ror:8 row_mask:0xf bank_mask:0xc ; merge')
        e.I(f'v_cvt_pk_bf16_f32 v{T0+4}, v{T0+4}, v{T0+5}')
        e.I(f'buffer_store_dword v{T0+4}, v8, {WS}, s44 offen{fl}')
        TS(e, 7)
        e.I(f'buffer_store_dword v{SENT}, v8, {WS}, s45 offen{fl}')
        if opt.mbar: e.I('s_barrier')
        nvx = max(0, 12 - opt.kin - opt.kp)
        for x_ in kc[:nvx]: e.I(x_)
        assert opt.kin >= opt.pmf + opt.pmf2
        if kp: e.I('s_waitcnt vmcnt(2)')
        if opt.split and opt.xg1 + opt.xg2:
            for x_ in kc[nvx:]: e.I(x_)
        else: vw_x(None, kc[nvx:], nvx, opt.pmf + opt.pmf2)
        TS(e, 8)
        TSflush(e, 's30', 244, 245)
        if opt.dstamp: e.I('s_lshl_b32 s98, s25, 8'); e.I('s_add_u32 s98, s98, s30')
        DSTAMP(e, 2, 's_cmp_eq_u32 s98, 9216')
        if opt.dstamp: e.I('s_lshl_b32 s98, s25, 8'); e.I('s_add_u32 s98, s98, s30')
        DSTAMP(e, 3, 's_cmp_eq_u32 s98, 9218')
        for idx_, st_ in ((6, 2), (7, 62)):
            for o_, off_ in (('clk', 0), ('rt', 2)):
                if opt.dstamp: e.I('s_lshl_b32 s98, s25, 8'); e.I('s_add_u32 s98, s98, s30'); e.I('s_lshl_b32 s99, s20, 16'); e.I('s_add_u32 s98, s98, s99')
                DSTAMP(e, idx_ + off_, f's_cmp_eq_u32 s98, {20*256 + st_}', o_)
        if opt.dstamp: e.I('s_lshl_b32 s98, s25, 8'); e.I('s_add_u32 s98, s98, s30')
        DSTAMP(e, 4, 's_cmp_eq_u32 s98, 9278')
        e.I('s_add_u32 s30, s30, 1')
        e.I('s_cmp_lt_u32 s30, 63')
        e.I(f's_cbranch_scc1 {top}')
        if not slow: e.I('s_branch L_swend')
    e.L('L_swend')
    if opt.dstamp:
        e.I('s_mov_b64 exec, 1')
        for k in range(4):
            e.I(f'v_mov_b32 v238, {48 + 4*k}'); e.I(f'v_mov_b32 v239, s{90+k}')
            e.I('global_atomic_add v238, v239, s[74:75] sc1')
            e.I('s_nop 4')
        e.I('s_mov_b64 exec, -1')
    e.I('s_lshl_b32 s38, s20, 6')
    e.I('s_lshl_b32 s39, s22, 2')
    e.I('s_add_u32 s38, s38, s39')
    e.I(f's_add_u32 s38, s38, {FLGOX + 63*512}')
    e.I(f's_add_u32 s46, s62, {OX + (63 % RD)*SEG_QX}')
    e.I('s_add_u32 s56, s46, 4096')
    e.I('s_add_u32 s64, s46, 8192')
    e.I('s_lshl_b32 s39, s22, 10')
    e.I('v_add_u32 v6, s39, v2')
    e.I('s_lshl_b32 s39, s22, 12')
    e.I('v_add_u32 v7, s39, v2')
    e.I('s_lshr_b32 s40, s24, 1')
    e.I('s_lshl_b32 s40, s40, 2')
    e.I('s_add_u32 s40, s40, s22')
    e.I('s_lshl_b32 s40, s40, 10')
    e.I('s_and_b32 s41, s24, 1')
    e.I('s_lshl_b32 s41, s41, 3')
    e.I('s_add_u32 s40, s40, s41')
    e.I('s_mul_i32 s41, s20, 40960')
    e.I('s_add_u32 s40, s40, s41')
    e.I(f's_add_u32 s40, s40, {PX + 63*SEG_PX}')
    e.I('s_add_u32 s41, s40, 20480')
    e.I('s_mul_i32 s43, s20, 5')
    e.I('s_lshr_b32 s44, s24, 1')
    e.I('s_add_u32 s43, s43, s44')
    e.I('s_lshl_b32 s43, s43, 7')
    e.I(f's_add_u32 s43, s43, {HINT2}')
    e.I('v_mov_b32 v3, 0')
    e.I(f'v_mov_b32 v{ONE}, 1')
    e.I('s_waitcnt vmcnt(0)')
    TS(e, 0)
    wait_flags(e, 3, 's38', 1, T0, 5, sleep=opt.esleep)
    TS(e, 1)
    order = (0, 6, 1, 7, 2, 8, 3, 9, 4, 10, 5, 11)
    for q in order: e.I(f'buffer_load_dwordx4 {vr(VXF+4*q)}, v2, {WS}, {("s46", "s56", "s64")[q//4]} offen offset:{(q%4)*1024} sc1')
    for n_, q in enumerate(order):
        qt, kk = q // 6, q % 6
        e.I(f's_waitcnt vmcnt({11 - n_})')
        for ct in range(4):
            d = vr(DW + (qt*4+ct)*4)
            e.I(f'{MFMA} {d}, {ar((ct*6+kk)*4)}, {vr(VXF+4*q)}, {0 if kk == 0 else d}')
    TS(e, 2)
    for k in range(8): e.I(f'ds_write_b128 v6, {vr(DW+4*k)} offset:{k*4096}')
    e.I('s_waitcnt lgkmcnt(0)')
    e.I('s_barrier')
    for qt in range(2):
        for hh in range(4): e.I(f'ds_read_b128 {vr(KXF+(qt*4+hh)*4)}, v7 offset:{qt*16384 + hh*1024}')
    for qt in range(2):
        r = KXF + qt*16
        e.I(f's_waitcnt lgkmcnt({4 - 4*qt})')
        for k in range(4):
            e.I(f'v_add_f32 v{r+k}, v{r+k}, v{r+4+k}')
            e.I(f'v_add_f32 v{r+8+k}, v{r+8+k}, v{r+12+k}')
        for k in range(4): e.I(f'v_add_f32 v{r+k}, v{r+k}, v{r+8+k}')
        e.I(f'v_cvt_pk_bf16_f32 v{r+4}, v{r}, v{r+1}')
        e.I(f'v_cvt_pk_bf16_f32 v{r+5}, v{r+2}, v{r+3}')
        e.I(f'buffer_store_dwordx2 {vr(r+4,2)}, v2, {WS}, {("s40", "s41")[qt]} offen sc1')
    TS(e, 3)
    e.I('s_and_b32 s38, s25, 7')
    e.I(f's_cmp_eq_u32 s38, {opt.hwv}')
    e.I('s_cselect_b64 exec, 1, 0')
    e.I(f'buffer_store_dword v{ONE}, v3, {WS}, s43 offen sc1')
    e.I('s_mov_b64 exec, -1')
    TSflush(e, '63', 244, 245)
    e.I('s_endpgm')

def role_xw(e):
    OF = 16
    D = 112
    T0 = 160; ONE = 252
    e.I('s_sub_u32 s24, s21, 22')
    srd(e, 8, 66, 6144 * 1280)
    e.I(f's_mul_i32 s28, s20, {768*1280}')
    e.I('s_lshl_b32 s29, s24, 8')
    e.I('s_add_u32 s28, s28, s29')
    e.I('s_add_u32 s29, s28, 128')
    e.I(f'v_lshlrev_b32 v{ONE+1}, 2, v1')
    e.I('s_lshl_b32 s38, s20, 8')
    e.I(f's_add_u32 s38, s38, {FLGQ}')
    if opt.xlate & 1: wait_first(e, T0)
    def ring_touch():
        jobs = []
        for sl in range(RD):
            if sl >= 2: jobs += [(b_ + sl * SEG_QX, 12288, 96) for b_ in (KX, VX, QX)] + [(XP + sl * SEG_XP, 6144, 48), (VM + sl * SEG_VM, 3072, 24)]
            if sl >= 2: jobs += [(OX + (sl - 2) * SEG_QX, 12288, 96)]
        jobs += [(OX + sl * SEG_QX, 12288, 96) for sl in (6, 7)]
        e.I('s_lshl_b32 s40, s20, 2')
        e.I('s_add_u32 s40, s40, s22')
        touch_jobs(e, jobs, 's24', 5, 's40', 16)
    if opt.xlate & 1: ring_touch()
    pass
    load_weights(e, [('s[8:11]', 's28', 0, 768), ('s[8:11]', 's29', 96, 768)], 1280, 256, True, 3, 4)
    e.I(f'v_lshlrev_b32 v{ONE+1}, 2, v1')
    e.I('s_lshl_b32 s38, s20, 2')
    e.I('s_add_u32 s38, s38, s22')
    e.I('s_lshl_b32 s39, s38, 2')
    e.I('v_lshlrev_b32 v3, 7, v1')
    e.I('v_add_u32 v3, s39, v3')
    e.I(f'v_mov_b32 v{ONE}, 1')
    e.I('s_mul_i32 s62, s22, 12288')
    e.I('s_mul_i32 s63, s38, 12288')
    e.I(f's_add_u32 s63, s63, {OX}')
    e.I('s_mul_i32 s64, s20, 40960')
    e.I('s_lshl_b32 s65, s24, 2')
    e.I('s_add_u32 s65, s65, s22')
    e.I('s_lshl_b32 s65, s65, 10')
    e.I('s_add_u32 s64, s64, s65')
    e.I(f's_add_u32 s64, s64, {PX}')
    e.I('s_lshl_b32 s66, s24, 8')
    e.I(f's_add_u32 s66, s66, {FLGPX}')
    def pxflag():
        e.I('s_mov_b64 exec, 3')
        e.I(f'buffer_store_dword v{ONE}, v3, {WS}, s54 offen sc1')
        e.I('s_mov_b64 exec, s[60:61]')
        e.I(f'buffer_store_dword v{ONE}, v6, {WS}, s53 offen sc1')
        e.I('s_mov_b64 exec, -1')
    if not opt.xlate & 1: ring_touch()
    wait_reg(e, T0)
    top, nof, late, nxt_, last = e.lab('Lxt'), e.lab('Lxn'), e.lab('Lxl'), e.lab('Lxx'), e.lab('Lxe')
    e.I('s_lshl_b32 s67, s20, 6')
    e.I('s_lshl_b32 s38, s22, 2')
    e.I('s_add_u32 s67, s67, s38')
    e.I(f's_add_u32 s67, s67, {FLGOX}')
    e.I('s_lshl_b32 s38, s20, 5')
    e.I('s_add_u32 s38, s38, s24')
    e.I('s_lshl_b32 s38, s38, 2')
    e.I('v_mov_b32 v6, s38')
    e.I('v_mov_b32 v4, 0')
    e.I('v_mov_b32 v5, v2')
    def dma(sn):
        e.I(f's_and_b32 s55, {sn}, {RD-1}')
        e.I(f's_mul_i32 s55, s55, {SEG_QX}')
        e.I('s_add_u32 s55, s55, s63')
        e.I(f's_and_b32 s56, {sn}, 1')
        e.I('s_mul_i32 s56, s56, 49152')
        e.I('s_add_u32 s56, s56, s62')
        for m in range(12):
            e.I(f's_add_u32 m0, s56, {m*1024}')
            e.I(f'buffer_load_dwordx4 v2, {WS}, s55 offen sc1 lds')
            if m < 11: e.I('s_add_u32 s55, s55, 1024')
    e.I('s_mov_b32 s30, 0')
    wait_flags(e, 4, 's67', 1, T0, 5, sleep=opt.xsleep)
    dma('s30')
    e.L(top)
    TS(e, 0)
    e.I('s_add_u32 s58, s30, 1')
    e.I('s_min_u32 s57, s58, 62')
    e.I('s_lshl_b32 s57, s57, 9')
    e.I('s_add_u32 s57, s57, s67')
    e.I('s_waitcnt vmcnt(0)')
    e.I(f'buffer_load_dword v{T0}, v4, {WS}, s57 offen sc1')

    e.I('s_cmp_eq_u32 s30, 0')
    e.I(f's_cbranch_scc1 {nof}')
    e.I('s_cmp_lg_u32 s59, 0')
    e.I(f's_cbranch_scc1 {nof}')
    pxflag()
    nof2 = e.lab('Lxm')
    e.I(f's_branch {nof2}')
    e.L(nof)
    for _ in range(2): e.I(f'buffer_load_dword v{T0+1}, v4, {WS}, s57 offen sc1')
    e.L(nof2)
    e.I('s_barrier')
    TS(e, 1)
    e.I(f's_mul_i32 s50, s30, {SEG_PX}')
    e.I('s_add_u32 s50, s50, s64')
    e.I('s_add_u32 s51, s50, 20480')
    e.I('s_mul_i32 s54, s30, 1280')
    e.I('s_add_u32 s54, s54, s66')
    e.I('s_and_b32 s53, s30, 3')
    e.I('s_lshl_b32 s53, s53, 10')
    e.I(f's_add_u32 s53, s53, {HINT}')
    e.I(f's_cmp_ge_u32 s30, {opt.cwarm}')
    e.I('s_cselect_b32 s60, 1, 0')
    e.I('s_cmp_eq_u32 s22, 0')
    e.I('s_cselect_b32 s60, s60, 0')
    e.I('s_mov_b32 s61, 0')
    TS(e, 2)
    PF = 6
    def rd(kk):
        hl, p = kk // 6, kk % 6
        for qt in range(2):
            e.I(f'ds_read_b128 {vr(OF + ((2*kk+qt) % 24)*4)}, v5 offset:{hl*12288 + (qt*6+p)*1024}')
    for kk in range(PF): rd(kk)
    for kk in range(24):
        nxt = min(24, kk + PF) - (kk + 1)
        e.I(f's_waitcnt lgkmcnt({2*nxt})')
        for qt in range(2):
            for b in range(2):
                d = vr(D + 4*(qt*2+b))
                e.I(f'{MFMA} {d}, {ar(96*b+4*kk)}, {vr(OF + ((2*kk+qt) % 24)*4)}, {0 if kk == 0 else d}')
        if kk + PF < 24: rd(kk + PF)
        if kk == 4:
            e.I('s_waitcnt vmcnt(2)')
            e.I(f'v_readfirstlane_b32 s59, v{T0}')
            e.I('s_cmp_eq_u32 s30, 62')
            e.I('s_cselect_b32 s59, 0, s59')
            e.I('s_cmp_eq_u32 s59, 0')
            e.I(f's_cbranch_scc1 {late}')
            dma('s58')
            e.L(late)
        if kk == 16: e.I(f'buffer_load_dword v{T0}, v4, {WS}, s57 offen sc1')
    sc = e.lab('Lxs')
    e.I('s_cmp_lg_u32 s59, 0')
    e.I(f's_cbranch_scc1 {sc}')
    e.I('s_cmp_eq_u32 s30, 62')
    e.I(f's_cbranch_scc1 {sc}')
    e.I('s_waitcnt vmcnt(0)')
    e.I(f'v_readfirstlane_b32 s59, v{T0}')
    e.I('s_cmp_eq_u32 s59, 0')
    e.I(f's_cbranch_scc1 {sc}')
    dma('s58')
    e.L(sc)
    for qt, so in enumerate(('s50', 's51')):
        for k in range(4): e.I(f'v_cvt_pk_bf16_f32 v{D+16+4*qt+k}, v{D+8*qt+2*k}, v{D+8*qt+2*k+1}')
        e.I(f'buffer_store_dwordx4 {vr(D+16+4*qt)}, v2, {WS}, {so} offen sc1')
    e.I('v_xor_b32 v5, 49152, v5')
    TS(e, 3)
    TSflush(e, 's30')
    e.I('s_cmp_eq_u32 s30, 62')
    e.I(f's_cbranch_scc1 {last}')
    e.I('s_cmp_lg_u32 s59, 0')
    e.I('s_mov_b32 s59, 0')
    e.I(f's_cbranch_scc1 {nxt_}')
    e.I(f'buffer_load_dword v{T0}, v4, {WS}, s57 offen sc1')
    e.I('s_waitcnt vmcnt(0)')
    e.I(f'v_readfirstlane_b32 s38, v{T0}')
    e.I('s_cmp_lg_u32 s38, 0')
    sl2 = e.lab('Lxq')
    e.I(f's_cbranch_scc1 {sl2}')
    pxflag()
    e.I('s_mov_b32 s59, 1')
    wait_flags(e, 4, 's57', 1, T0, 5, sleep=opt.xsleep)
    e.L(sl2)
    dma('s58')
    e.L(nxt_)
    e.I('s_mov_b32 s30, s58')
    e.I(f's_branch {top}')
    e.L(last)
    e.I('s_waitcnt vmcnt(0)')
    pxflag()
    if opt.wb & 1:
        e.I('s_cmp_lg_u32 s21, 22'); e.I('s_cbranch_scc1 L_end'); e.I('s_cmp_lg_u32 s22, 0'); e.I('s_cbranch_scc1 L_end')
        e.I('buffer_wbl2 sc1'); e.I('s_waitcnt vmcnt(0)')
    e.I('s_endpgm')

def role_att(e):
    fl = ''
    KF, QF, VF = 0, 48, 96
    XPF = 16
    SA, SB, PA_, PB_ = 40, 48, 60, 64
    DO, OB = 72, 136
    T0 = 226
    C0, C1 = 232, 236
    ONE = 252
    e.I('s_sub_u32 s25, s21, 27')
    e.I('s_lshl_b32 s26, s20, 2')
    e.I('s_add_u32 s26, s26, s22')
    e.I(f's_mov_b32 s52, {SC_L2E:#x}'); e.I(f's_mov_b32 s53, {SC_L2E | 0x80000000:#x}')
    e.I(f'v_lshlrev_b32 v{ONE+1}, 2, v1')
    e.I('s_lshl_b32 s38, s22, 2')
    e.I(f'v_mov_b32 v{ONE+2}, s38')
    e.I(f'v_mov_b32 v{ONE}, 1')
    lane_ig(e, 14, 15)
    e.I(f'v_mov_b32 v3, {NEG_BIG:#x}')
    e.I('v_cmp_gt_u32 vcc, 32, v1')
    e.I(f'v_cndmask_b32 v{C0}, 0, v3, vcc')
    for k in range(1, 4): e.I(f'v_mov_b32 v{C0+k}, v{C0}')
    e.I('v_lshlrev_b32 v5, 2, v15')
    for r in range(4):
        e.I(f'v_add_u32 v6, {r}, v5')
        e.I('v_cmp_gt_u32 vcc, v6, v14')
        e.I(f'v_cndmask_b32 v{C1+r}, 0, v3, vcc')
    e.I('s_mul_i32 s58, s26, 6144')
    e.I('s_lshl_b32 s59, s22, 14')
    e.I('v_and_b32 v4, 3, v1')
    e.I('v_lshlrev_b32 v4, 8, v4')
    e.I('v_bfe_u32 v5, v1, 2, 3')
    e.I('v_lshl_add_u32 v5, v5, 4, v4')
    e.I('v_add_u32 v5, s59, v5')
    e.I('v_lshrrev_b32 v6, 2, v1')
    e.I('v_lshl_add_u32 v4, v6, 4, v4')
    e.I('v_add_u32 v4, s59, v4')
    wait_reg(e, T0)
    e.I('v_lshrrev_b32 v12, 2, v1')
    e.I('v_lshlrev_b32 v12, 8, v12')
    e.I('v_and_b32 v13, 3, v1')
    e.I('v_lshl_add_u32 v12, v13, 2, v12')
    e.I('s_lshl_b32 s38, s20, 4')
    e.I('v_add_u32 v12, s38, v12')
    e.I('s_lshl_b32 s60, s26, 6')
    e.I(f's_add_u32 s60, s60, {FLGQ}')
    e.I('s_cmp_lg_u32 s23, 0')
    e.I('s_cbranch_scc1 L_atts')
    for slow in (False, True):
        fl = ' sc1' if slow else ''
        if slow: e.L('L_atts')
        top = e.lab('Lat')
        e.I('s_mov_b32 s30, s25')
        e.L(top)
        TS(e, 0)
        e.I('s_max_u32 s51, s30, 2')
        e.I('s_lshl_b32 s51, s51, 11')
        e.I('s_add_u32 s51, s51, s60')
        e.I(f's_and_b32 s42, s30, {RD-1}')
        e.I(f's_mul_i32 s40, s42, {SEG_QX}')
        e.I('s_lshl_b32 s41, s58, 1')
        e.I('s_add_u32 s40, s40, s41')
        e.I(f's_mul_i32 s41, s42, {SEG_XP}')
        e.I('s_add_u32 s41, s41, s58')
        nbp = e.lab('Lab')
        e.I(f's_cmp_lt_u32 s30, {RD}')
        e.I(f's_cbranch_scc1 {nbp}')
        e.I(f's_sub_u32 s50, s30, {RD}')
        e.I('s_mul_i32 s50, s50, 1280')
        e.I(f's_add_u32 s50, s50, {FLGPX}')
        wait_flags(e, 12, 's50', 0xfffff, T0, 14, sleep=16)
        e.L(nbp)
        wait_flags(e, ONE + 1, 's51', 0xfff, T0, 6, sleep=opt.asleep)
        def loads(dst, n, sbase, add):
            e.I(f's_add_u32 s48, {sbase}, {add}')
            for q in range(n):
                if q and q % 4 == 0: e.I('s_add_u32 s48, s48, 4096')
                e.I(f'buffer_load_dwordx4 {dst(q)}, v2, {WS}, s48 offen offset:{(q%4)*1024} sc1')
        e.I(f's_add_u32 s48, s40, {VX}')
        for q in range(12):
            e.I(f's_add_u32 m0, s59, {q*1024}')
            e.I(f'buffer_load_dwordx4 v2, {WS}, s48 offen sc1 lds')
            e.I('s_add_u32 s48, s48, 1024')
        loads(lambda q: ar(KF + 4*q), 12, 's40', KX)
        loads(lambda q: ar(QF + 4*q), 12, 's40', QX)
        e.I('s_add_u32 s51, s30, 2')
        e.I('s_lshl_b32 s51, s51, 11')
        e.I('s_add_u32 s51, s51, s60')
        e.I('s_waitcnt vmcnt(24)')
        for T in range(12):
            for rt in range(2):
                e.I(f'ds_read_b64_tr_b16 {ar(VF+6*T+2+2*rt,2)}, v4 offset:{rt*6144 + (T>>1)*1024 + (T&1)*8}')
        e.I('s_waitcnt vmcnt(0)')
        for p in range(6):
            e.I(f'{MFMA} {vr(SA+4)}, {ar(KF+4*p)}, {ar(QF+4*p)}, {vr(C1) if p == 0 else vr(SA+4)}')
            e.I(f'{MFMA} {vr(SB+4)}, {ar(KF+4*p)}, {ar(QF+24+4*p)}, {0 if p == 0 else vr(SB+4)}')
            e.I(f'{MFMA} {vr(SB+8)}, {ar(KF+24+4*p)}, {ar(QF+24+4*p)}, {vr(C1) if p == 0 else vr(SB+8)}')
        wait_flags(e, ONE + 1, 's51', 0xfff, T0, 6, sleep=opt.asleep)
        TS(e, 1)
        loads(lambda q: vr(XPF + 4*q), 6, 's41', XP)
        e.I('s_lshr_b32 s42, s41, 1')
        e.I(f's_add_u32 s48, s42, {VM}')
        for q in range(3):
            e.I(f's_add_u32 m0, s59, {12288 + q*1024}')
            e.I(f'buffer_load_dwordx4 v2, {WS}, s48 offen sc1 lds')
            e.I('s_add_u32 s48, s48, 1024')
        for p in range(6):
            e.I(f's_waitcnt vmcnt({8-p})')
            e.I(f'{MFMA} {vr(SA)}, {vr(XPF+4*p)}, {ar(QF+4*p)}, {vr(C0) if p == 0 else vr(SA)}')
            e.I(f'{MFMA} {vr(SB)}, {vr(XPF+4*p)}, {ar(QF+24+4*p)}, {vr(C0) if p == 0 else vr(SB)}')
        TS(e, 2)
        e.I('s_waitcnt vmcnt(0)')
        for T in range(12):
            kk = T >> 1
            e.I(f'ds_read_b64_tr_b16 {ar(VF+6*T,2)}, v5 offset:{12288 + (kk % 3)*1024 + (kk // 3)*128 + (T&1)*8}')
        for x_ in softmax_list(SA, 8, PA_, T0): e.I(x_)
        e.I(f's_add_u32 s48, s40, {OX}')
        e.I('s_add_u32 s49, s48, 4096')
        e.I('s_add_u32 s50, s48, 8192')
        e.I('s_waitcnt lgkmcnt(0)')
        def fin(qt, p):
            d = DO + 8 * (p + (2 if qt else 0) * 3) % 64; o = OB + 4 * (qt*6 + p); q = qt*6 + p
            return [f'v_cvt_pk_bf16_f32 v{o+k}, v{d+2*k}, v{d+2*k+1}' for k in range(4)] + \
                   [f'buffer_store_dwordx4 {vr(o)}, v2, {WS}, {("s48", "s49", "s50")[q//4]} offen offset:{(q%4)*1024}{fl}']
        smb = softmax_list(SB, 12, PB_, T0)
        for T in range(12):
            e.I(f'{MFMA} {vr(DO+4*T)}, {ar(VF+6*T)}, {vr(PA_)}, 0')
            for _ in range(3): e.I(smb.pop(0))
        outs = [x_ for p in range(6) for x_ in fin(0, p)]
        while smb:
            e.I(smb.pop(0)); e.I(smb.pop(0)) if smb else None
            if outs: e.I(outs.pop(0))
        for x_ in outs: e.I(x_)
        for p in range(6):
            d = DO + 8 * (p + 6) % 64
            for t in range(2): e.I(f'{MFMA16} {vr(d+4*t)}, {ar(VF+6*(2*p+t),2)}, {vr(PB_,2)}, 0')
            for t in range(2): e.I(f'{MFMA} {vr(d+4*t)}, {ar(VF+6*(2*p+t)+2)}, {vr(PB_+2)}, {vr(d+4*t)}')
            if p > 1:
                for x_ in fin(1, p - 2): e.I(x_)
        for p in (4, 5):
            for x_ in fin(1, p): e.I(x_)
        e.I('s_lshl_b32 s50, s30, 3')
        e.I('s_add_u32 s50, s50, s20')
        e.I('s_lshl_b32 s50, s50, 6')
        e.I(f's_add_u32 s50, s50, {FLGOX}')
        e.I('s_waitcnt vmcnt(0)')
        set_flag(e, ONE + 2, 's50', ONE, fl)
        TS(e, 3)
        TSflush(e, 's30', 230, 231)
        e.I('s_add_u32 s30, s30, 2')
        e.I('s_cmp_lt_u32 s30, 64')
        e.I(f's_cbranch_scc1 {top}')
        e.I('s_endpgm')

F_LX, F_LH = 0, 98304
def role_ffn(e):
    ACC2 = 0
    ACC1 = 16
    BF = 48
    HP = 80
    WR = 96
    NW = 40
    e.I('s_sub_u32 s26, s21, 29')
    e.I('s_mul_i32 s25, s20, 3')
    e.I('s_add_u32 s26, s26, s25')
    e.I('s_mov_b32 s24, s26')
    srd(e, 8, 56, 640 * 3072); srd(e, 12, 58, 1536 * 1280)
    if opt.xlate & 4: wait_first(e, 16, opt.fwait)
    transpose_w(e, 's26')
    e.I('s_waitcnt vmcnt(0)')
    e.I('s_barrier')
    count_up(e, 3, D_TR)
    wait_count(e, 3, D_TR, 24, 16)
    if opt.urg: wait_count(e, 3, D_W, 80, 16)
    wait_reg(e, 16, 32)
    e.L('L_ffn_task')
    e.I('s_lshl_b32 s38, s24, 2')
    e.I('s_add_u32 s38, s38, s22')
    e.I('s_mul_i32 s39, s38, 20480')
    e.I(f's_add_u32 s39, s39, {XN}')
    e.I('s_mul_i32 s40, s22, 20480')
    for m in range(20):
        e.I(f's_add_u32 m0, s40, {m*1024}')
        e.I(f'buffer_load_dwordx4 v2, {WS}, s39 offen lds')
        e.I('s_add_u32 s39, s39, 1024')
    for k in range(160): e.I(f'v_accvgpr_write_b32 a{k}, 0')
    e.I('s_mul_i32 s41, s22, 40960')
    e.I(f's_add_u32 s41, s41, {W1F}')
    e.I(f's_mul_i32 s42, s22, {10*48*1024}')
    e.I(f's_add_u32 s42, s42, {W2F}')
    e.I('v_add_u32 v3, 20480, v2')
    for u in range(10):
        e.I(f's_mov_b32 s54, {u*48*1024}')
        e.I(f'v_add_u32 v{4+u}, s54, v2')
    e.I(f'v_add_u32 v14, {F_LH}, v2')
    e.I('s_lshl_b32 s38, s22, 12')
    e.I('v_add_u32 v15, s38, v14')
    def wload(idx, adv):
        dst = vr(WR + (idx % NW) * 4)
        if idx < 40:
            kk, u = idx // 2, idx % 2
            e.I(f's_add_u32 s45, {adv[0]}, {(kk//4)*4096}')
            e.I(f'buffer_load_dwordx4 {dst}, v{2+u}, {WS}, s45 offen offset:{(kk%4)*1024}{" nt" if opt.ffnnt else ""}')
        else:
            pp, u = (idx - 40) // 10, (idx - 40) % 10
            e.I(f'buffer_load_dwordx4 {dst}, v{4+u}, {WS}, {adv[1]} offen offset:{pp*1024}{" nt" if opt.ffnnt else ""}')
    for idx in range(NW - 2): wload(idx, ('s41', 's42'))
    e.I(f's_waitcnt vmcnt({NW-2})')
    e.I('s_barrier')
    top = e.lab('Lft')
    TS(e, 0)
    e.I('s_mov_b32 s30, 0')
    e.L(top)
    e.I('s_cmp_lt_u32 s30, 11')
    e.I('s_cselect_b32 s46, 163840, 0')
    e.I('s_cselect_b32 s47, 4096, 0')
    e.I('s_add_u32 s43, s41, s46')
    e.I('s_add_u32 s44, s42, s47')
    D = NW - 2
    def pref(idx):
        j = idx + D
        if j < 80: wload(j, ('s41', 's42'))
        else: wload(j - 80, ('s43', 's44'))
    def rdx(kk):
        for rt in range(4):
            e.I(f'ds_read_b128 {vr(BF + ((kk%2)*4+rt)*4)}, v{2 if rt < 3 else 3} offset:{(rt if rt < 3 else 2)*20480 + kk*1024}')
    rdx(0)
    for kk in range(20):
        if kk + 1 < 20: rdx(kk + 1)
        e.I(f's_waitcnt vmcnt({D-2}) lgkmcnt({4 if kk+1 < 20 else 0})')
        for u in range(2):
            idx = 2 * kk + u
            for rt in range(4):
                d = vr(ACC1 + (u*4+rt)*4)
                e.I(f'{MFMA} {d}, {vr(WR+(idx%NW)*4)}, {vr(BF+((kk%2)*4+rt)*4)}, {0 if kk == 0 else d}')
        pref(2 * kk); pref(2 * kk + 1)
    for rt in range(4):
        for u in range(2):
            d = ACC1 + (u*4+rt)*4
            for k in range(4): e.I(f'v_max_f32 v{d+k}, 0, v{d+k}')
            e.I(f'v_cvt_pk_bf16_f32 v{HP+rt*4+2*u}, v{d}, v{d+1}')
            e.I(f'v_cvt_pk_bf16_f32 v{HP+rt*4+2*u+1}, v{d+2}, v{d+3}')
        e.I(f'ds_write_b128 v15, {vr(HP+rt*4)} offset:{rt*1024}')
    e.I('s_waitcnt lgkmcnt(0)')
    e.I('s_barrier')
    def rdh(pp):
        for rt in range(4):
            e.I(f'ds_read_b128 {vr(BF + ((pp%2)*4+rt)*4)}, v14 offset:{pp*4096 + rt*1024}')
    rdh(0)
    for pp in range(4):
        if pp + 1 < 4: rdh(pp + 1)
        for u in range(10):
            idx = 40 + pp * 10 + u
            w = f's_waitcnt vmcnt({D-1})'
            if u == 0: w += f' lgkmcnt({4 if pp+1 < 4 else 0})'
            e.I(w)
            for rt in range(4):
                d = ar(ACC2 + (u*4+rt)*4)
                e.I(f'{MFMA} {d}, {vr(WR+(idx%NW)*4)}, {vr(BF+((pp%2)*4+rt)*4)}, {d}')
            pref(idx)
    e.I('v_xor_b32 v14, 16384, v14')
    e.I('v_xor_b32 v15, 16384, v15')
    e.I('s_mov_b32 s41, s43')
    e.I('s_mov_b32 s42, s44')
    e.I('s_add_u32 s30, s30, 1')
    e.I('s_cmp_lt_u32 s30, 12')
    e.I(f's_cbranch_scc1 {top}')
    e.I('s_waitcnt vmcnt(0)')
    TS(e, 1)
    e.I('v_lshlrev_b32 v3, 3, v1')
    e.I(f's_mul_i32 s38, s24, {4*40*512}')
    e.I(f's_mul_i32 s39, s22, {10*512}')
    e.I('s_add_u32 s38, s38, s39')
    e.I(f's_add_u32 s38, s38, {G_}')
    e.I(f's_mov_b32 s52, {f2u(-1.4426950408889634):#x}')
    for rt in range(4):
        e.I(f's_add_u32 s39, s38, {rt*40*512}')
        e.I('s_add_u32 s40, s39, 4096')
        for u in range(10):
            t = 16 + ((rt*10+u) % 4) * 16
            a0 = ACC2 + (u*4+rt)*4
            for k in range(4): e.I(f'v_accvgpr_read_b32 v{t+k}, a{a0+k}')
            e.I(f'v_cvt_pk_bf16_f32 v{t+4}, v{t}, v{t+1}')
            e.I(f'v_cvt_pk_bf16_f32 v{t+5}, v{t+2}, v{t+3}')
            e.I(f'v_lshlrev_b32 v{t}, 16, v{t+4}')
            e.I(f'v_and_b32 v{t+1}, 0xffff0000, v{t+4}')
            e.I(f'v_lshlrev_b32 v{t+2}, 16, v{t+5}')
            e.I(f'v_and_b32 v{t+3}, 0xffff0000, v{t+5}')
            for k in range(4): e.I(f'v_mul_f32 v{t+4+k}, s52, v{t+k}')
            for k in range(4): e.I(f'v_exp_f32 v{t+4+k}, v{t+4+k}')
            for k in range(4): e.I(f'v_add_f32 v{t+4+k}, 1.0, v{t+4+k}')
            for k in range(4): e.I(f'v_rcp_f32 v{t+4+k}, v{t+4+k}')
            for k in range(4): e.I(f'v_mul_f32 v{t+k}, v{t+k}, v{t+4+k}')
            e.I(f'v_cvt_pk_bf16_f32 v{t+8}, v{t}, v{t+1}')
            e.I(f'v_cvt_pk_bf16_f32 v{t+9}, v{t+2}, v{t+3}')
            e.I(f'buffer_store_dwordx2 {vr(t+8,2)}, v3, {WS}, {"s39" if u < 8 else "s40"} offen offset:{(u%8)*512} sc1')
    e.I('s_waitcnt vmcnt(0)')
    TS(e, 2)
    if opt.ts: e.I('s_lshr_b32 s50, s24, 3'); e.I('s_add_u32 s50, s50, 64')
    TSflush(e, 's50')
    e.I('s_barrier')
    e.I('s_cmp_lg_u32 s22, 0')
    e.I('s_cbranch_scc1 L_ffn_nf')
    e.I('v_mov_b32 v4, 1')
    e.I('s_lshl_b32 s38, s24, 2')
    e.I('v_mov_b32 v5, s38')
    e.I(f's_mov_b32 s39, {FLGG}')
    set_flag(e, 5, 's39', 4, ' sc1')
    e.I('s_waitcnt vmcnt(0)')
    e.L('L_ffn_nf')
    e.I('s_cmp_ge_u32 s26, 8')
    e.I(f's_cbranch_scc1 {"L_end" if opt.nocmb else "L_cmb"}')
    e.I('s_add_u32 s24, s24, 24')
    e.I('s_cmp_lt_u32 s24, 32')
    e.I('s_cbranch_scc1 L_ffn_task')
    e.I('s_endpgm')

def role_cmb(e):
    PXR = 16
    GR = 144
    XR_ = 152
    T0 = 160
    srd(e, 8, 68, 2048 * 1280)
    srd(e, 12, 70, 2048 * 1280)
    e.I('s_sub_u32 s24, s26, 8')
    e.I('s_lshl_b32 s24, s24, 2')
    e.I('s_add_u32 s30, s24, s22')
    e.I('v_lshlrev_b32 v3, 2, v1')
    e.I('v_lshlrev_b32 v4, 3, v1')
    e.I('v_mov_b32 v6, 0')
    lane_ig(e, 14, 15)
    e.I('v_mul_u32_u24 v5, 1280, v14')
    e.I('v_lshl_add_u32 v5, v15, 3, v5')
    e.I('s_mov_b32 s49, 0')
    e.I('s_mov_b32 s52, 0x3f80'); e.I('s_mov_b32 s53, 0x3f800000')
    e.I('v_lshrrev_b32 v7, 4, v1')
    e.I('v_mul_u32_u24 v7, 40960, v7')
    e.I('v_lshl_add_u32 v7, v14, 7, v7')
    e.I(f'v_add_u32 v8, {4*40960}, v7')
    if opt.t63:
        e.I('s_add_u32 s38, s30, 1216')
        e.I('s_mul_i32 s39, s38, 3277')
        e.I('s_lshr_b32 s39, s39, 16')
        e.I('s_mul_i32 s40, s39, 20')
        e.I('s_sub_u32 s40, s38, s40')
        e.I(f's_mul_i32 s43, s39, {SEG_PX}')
        e.I('s_lshl_b32 s40, s40, 11')
        e.I('s_add_u32 s43, s43, s40')
        e.I(f's_add_u32 s43, s43, {PX}')
        for k in range(2): e.I(f'buffer_load_dword v{T0}, v{7+k}, {WS}, s43 offen sc1')
    top = e.lab('Lct')
    e.L(top)
    TS(e, 0)
    e.I('s_mul_i32 s38, s30, 3277')
    e.I('s_lshr_b32 s38, s38, 16')
    e.I('s_mul_i32 s39, s38, 20')
    e.I('s_sub_u32 s39, s30, s39')
    e.I('s_cmp_ge_u32 s39, 10')
    e.I('s_cselect_b32 s40, 1, 0')
    e.I('s_mul_i32 s41, s40, 10')
    e.I('s_sub_u32 s41, s39, s41')
    gok = e.lab('Lcg')
    e.I('s_cmp_lg_u32 s49, 0')
    e.I(f's_cbranch_scc1 {gok}')
    e.I(f's_mov_b32 s42, {FLGG}')
    e.I('s_mov_b32 exec_hi, 0')
    e.I(f'buffer_load_dword v{T0}, v3, {WS}, s42 offen sc1')
    e.I('s_waitcnt vmcnt(0)')
    e.I(f'v_cmp_eq_u32 vcc, 0, v{T0}')
    e.I('s_mov_b64 exec, -1')
    e.I('s_cmp_eq_u32 vcc_lo, 0')
    e.I('s_cselect_b32 s49, 1, 0')
    e.I(f's_cbranch_scc1 {gok}')
    e.I('s_lshr_b32 s42, s38, 1')
    e.I('s_lshl_b32 s42, s42, 2')
    e.I(f's_add_u32 s42, s42, {FLGG}')
    wait_flags(e, 6, 's42', 1, T0, 7, sleep=32)
    e.L(gok)
    e.I(f's_mul_i32 s43, s38, {SEG_PX}')
    e.I('s_mul_i32 s44, s40, 20480')
    e.I('s_add_u32 s43, s43, s44')
    e.I('s_lshl_b32 s44, s41, 11')
    e.I('s_add_u32 s43, s43, s44')
    e.I(f's_add_u32 s43, s43, {PX}')
    e.I('s_lshl_b32 s45, s38, 1')
    e.I('s_add_u32 s45, s45, s40')
    e.I('s_mul_i32 s46, s45, 20480')
    e.I('s_lshr_b32 s47, s41, 1')
    e.I('s_lshl_b32 s47, s47, 2')
    e.I('s_and_b32 s48, s41, 1')
    e.I('s_add_u32 s44, s47, s48')
    e.I('s_lshl_b32 s47, s44, 10')
    e.I('s_add_u32 s47, s47, s46')
    e.I(f's_add_u32 s47, s47, {G_}')
    e.I('s_lshl_b32 s48, s44, 6')
    e.I('s_add_u32 s48, s48, s46')
    TO = (0, 4, 1, 5)
    for t in range(4):
        e.I(f'buffer_load_dwordx2 {vr(GR+2*t,2)}, v4, {WS}, s47 offen offset:{TO[t]*512} sc1')
        e.I(f'buffer_load_dwordx2 {vr(XR_+2*t,2)}, v5, s[8:11], s48 offen offset:{TO[t]*32}')
    c1, c2 = e.lab('Lc1'), e.lab('Lc2')
    e.I('s_mul_i32 s50, s38, 10')
    e.I('s_and_b32 s44, s41, 14')
    e.I('s_add_u32 s50, s50, s44')
    e.I('s_lshl_b32 s50, s50, 7')
    e.I(f's_add_u32 s50, s50, {FLGPX}')
    e.I(f's_cmp_ge_u32 s38, {opt.cwarm}')
    e.I(f's_cbranch_scc1 {c1}')
    e.I(f's_add_u32 s42, s38, {opt.clag}')
    e.I('s_lshl_b32 s42, s42, 3')
    e.I('s_add_u32 s42, s42, s20')
    e.I('s_lshl_b32 s42, s42, 6')
    e.I(f's_add_u32 s42, s42, {FLGOX}')
    wait_flags(e, 6, 's42', 1, T0, 9, sleep=opt.lsleep)
    wait_flags(e, 3, 's50', -1, T0, 8, sleep=opt.csleep)
    e.I(f's_branch {c2}')
    e.L(c1)
    e.I('s_and_b32 s42, s38, 3')
    e.I('s_lshl_b32 s42, s42, 3')
    e.I('s_add_u32 s42, s42, s20')
    e.I('s_lshl_b32 s42, s42, 7')
    e.I('s_lshl_b32 s44, s44, 1')
    e.I('s_add_u32 s42, s42, s44')
    e.I(f's_add_u32 s42, s42, {HINT}')
    e.I('s_mul_i32 s51, s20, 5')
    e.I('s_lshr_b32 s44, s41, 1')
    e.I('s_add_u32 s51, s51, s44')
    e.I('s_lshl_b32 s51, s51, 7')
    e.I(f's_add_u32 s51, s51, {HINT2}')
    e.I('s_cmp_eq_u32 s38, 63')
    e.I('s_cselect_b32 s42, s51, s42')
    wait_flags(e, 6, 's42', 1, T0, 9, sleep=2)
    e.I('s_cmp_eq_u32 s38, 63')
    e.I(f's_cbranch_scc1 {c2}')
    wait_flags(e, 3, 's50', -1, T0, 8, sleep=opt.c2sleep)
    e.L(c2)
    TS(e, 1)
    RAW = PXR + 32
    def ld(x):
        for t in range(2):
            if not opt.cdiag & 4: e.I(f'buffer_load_dwordx4 {vr(RAW+(x*2+t)*4)}, v2, {WS}, s43 offen offset:{t*1024} sc1')
        if x < 7: e.I('s_add_u32 s43, s43, 40960')
    def body(depth):
        for x in range(min(depth, 8)): ld(x)
        for x in range(8):
            left = min(depth - 1, 7 - x)
            e.I(f's_waitcnt vmcnt({left*2})')
            if x + depth < 8: ld(x + depth)
            for k in range(16): e.I(f'v_dot2c_f32_bf16 v{PXR+k}, {("s52", "s53")[k&1]}, v{RAW+x*8+(k>>1)}')
        e.I('s_nop 2')
    for k in range(16): e.I(f'v_mov_b32 v{PXR+k}, 0')
    fast, join = e.lab('Lcf'), e.lab('Lcj')
    e.I('s_cmp_ge_u32 s38, 61')
    e.I(f's_cbranch_scc1 {fast}')
    body(opt.cdepth)
    e.I(f's_branch {join}')
    e.L(fast)
    f2, pl_, pk_ = e.lab('Lcg'), e.lab('Lcp'), e.lab('Lck')
    e.I('s_cmp_lg_u32 s38, 63')
    e.I(f's_cbranch_scc1 {f2}')
    e.I(f's_mov_b32 s31, {TMO}')
    e.I('s_mov_b32 s51, s43')
    e.L(pl_)
    e.I('s_mov_b32 s43, s51')
    for x in range(8): ld(x)
    e.I('s_waitcnt vmcnt(0)')
    check_sent(e, range(RAW, RAW + 64), T0, T0 + 1)
    e.I(f's_cbranch_vccz {pk_}')
    e.I('s_sub_u32 s31, s31, 1')
    e.I(f's_cbranch_scc0 {pl_}')
    e.I('s_mov_b32 s31, 8')
    e.I('s_branch L_fail')
    e.L(pk_)
    for x in range(8):
        for k in range(16): e.I(f'v_dot2c_f32_bf16 v{PXR+k}, {("s52", "s53")[k&1]}, v{RAW+x*8+(k>>1)}')
    e.I('s_nop 2')
    e.I(f's_branch {join}')
    e.L(f2)
    body(8)
    e.L(join)
    TS(e, 3)
    for t in range(4):
        b = PXR + 4 * t; u = T0 + 8 * (t % 2)
        e.I(f'v_cvt_pk_bf16_f32 v{u}, v{b}, v{b+1}')
        e.I(f'v_cvt_pk_bf16_f32 v{u+1}, v{b+2}, v{b+3}')
        for h_ in range(2):
            e.I(f'v_lshlrev_b32 v{b+2*h_}, 16, v{u+h_}')
            e.I(f'v_and_b32 v{b+2*h_+1}, 0xffff0000, v{u+h_}')
            e.I(f'v_lshlrev_b32 v{u+2+2*h_}, 16, v{GR+2*t+h_}')
            e.I(f'v_and_b32 v{u+3+2*h_}, 0xffff0000, v{GR+2*t+h_}')
        for k in range(4): e.I(f'v_mul_f32 v{b+k}, v{b+k}, v{u+2+k}')
        e.I(f'v_cvt_pk_bf16_f32 v{u}, v{b}, v{b+1}')
        e.I(f'v_cvt_pk_bf16_f32 v{u+1}, v{b+2}, v{b+3}')
        for h_ in range(2):
            e.I(f'v_lshlrev_b32 v{b+2*h_}, 16, v{u+h_}')
            e.I(f'v_and_b32 v{b+2*h_+1}, 0xffff0000, v{u+h_}')
            e.I(f'v_lshlrev_b32 v{u+2+2*h_}, 16, v{XR_+2*t+h_}')
            e.I(f'v_and_b32 v{u+3+2*h_}, 0xffff0000, v{XR_+2*t+h_}')
        for k in range(4): e.I(f'v_add_f32 v{b+k}, v{b+k}, v{u+2+k}')
        e.I(f'v_cvt_pk_bf16_f32 v{u+6}, v{b}, v{b+1}')
        e.I(f'v_cvt_pk_bf16_f32 v{u+7}, v{b+2}, v{b+3}')
        e.I(f'buffer_store_dwordx2 {vr(u+6,2)}, v5, s[12:15], s48 offen offset:{TO[t]*32}{("", " sc1", " nt")[opt.ost]}')
    TS(e, 2)
    if opt.ts: e.I('s_lshr_b32 s50, s30, 6')
    TSflush(e, 's50')
    e.I('s_add_u32 s30, s30, 64')
    e.I('s_cmp_lt_u32 s30, 1280')
    e.I(f's_cbranch_scc1 {top}')
    DSTAMP(e, 5)
    e.I(f's_cmp_lg_u32 s30, {1279 + 64}')
    e.I('s_cbranch_scc1 L_end')
    e.I('s_mov_b32 exec_hi, 0xffff')
    e.I(f'global_store_dword v3, v6, s[74:75] offset:{D_TR} sc1')
    e.I('s_endpgm')

def gen_mainkernel(e):
    kernel_head(e, MAIN)
    e.I('s_cmp_ge_u32 s2, 256')
    e.I('s_cbranch_scc1 L_end')
    e.I('s_load_dwordx2 s[32:33], s[0:1], 96')
    e.I('s_load_dwordx4 s[60:63], s[0:1], 16')
    e.I('s_load_dwordx4 s[64:67], s[0:1], 32')
    e.I('s_load_dwordx4 s[52:55], s[0:1], 0')
    e.I('s_load_dwordx4 s[56:59], s[0:1], 64')
    e.I('s_load_dwordx4 s[72:75], s[0:1], 80')
    TS(e, 0)
    e.I('s_getreg_b32 s24, hwreg(HW_REG_XCC_ID)')
    e.I('v_and_b32 v1, 63, v0')
    e.I('v_lshlrev_b32 v2, 4, v1')
    e.I('v_lshrrev_b32 v3, 6, v0')
    e.I('v_readfirstlane_b32 s22, v3')
    if opt.cwarm2:
        e.I('s_getpc_b64 s[34:35]')
        e.L('L_pc')
        e.I('s_lshr_b32 s36, s2, 3')
        e.I('s_lshl_b32 s36, s36, 2')
        e.I('v_add_u32 v3, s36, v3')
        e.I(f'v_mul_u32_u24 v3, {opt.cwarm2}, v3')
        e.I(f'v_min_u32 v4, {opt.cwarm2 - 1}, v1')
        e.I('v_add_u32 v3, v3, v4')
        e.I('v_lshlrev_b32 v3, 7, v3')
        e.I('v_min_u32 v3, L_last-L_pc, v3')
        e.I('v_mov_b32 v5, s35')
        e.I('v_add_co_u32 v4, vcc, s34, v3')
        e.I('v_addc_co_u32 v5, vcc, 0, v5, vcc')
        e.I('global_load_dword v255, v[4:5], off')
    if opt.force_slow:
        e.I('s_lshr_b32 s20, s2, 5'); e.I('s_and_b32 s21, s2, 31')
    else:
        e.I('s_and_b32 s20, s2, 7'); e.I('s_lshr_b32 s21, s2, 3')
    e.I('s_and_b32 s24, s24, 15')
    e.I('s_lshl_b32 s96, s20, 4')
    e.I('s_and_b32 s25, s24, 12')
    e.I('s_add_u32 s96, s96, s25')
    e.I('s_and_b32 s25, s24, 3')
    e.I('s_lshl_b32 s25, s25, 3')
    e.I('s_lshl_b32 s97, 1, s25')
    e.I('s_waitcnt lgkmcnt(0)')
    e.I('s_mov_b64 s[70:71], s[72:73]')
    e.I('s_mov_b64 s[68:69], s[52:53]')
    srd(e, 4, 32, WS_BYTES)
    TS(e, 1)
    TSflush(e, '70')
    if opt.dstamp: e.I('s_lshl_b32 s98, s21, 2'); e.I('s_add_u32 s98, s98, s22')
    DSTAMP(e, 0, 's_cmp_eq_u32 s98, 84', 'neg')
    e.I('s_cmp_ge_u32 s21, 22'); e.I('s_cbranch_scc1 L_help')
    e.I('s_sub_u32 s24, s21, 12')
    if opt.urg: e.I('s_cmp_lt_u32 s24, 2')
    else: e.I('s_cmp_eq_u32 s24, 1')
    e.I('s_cbranch_scc1 L_urg')
    register(e, 3, 4)
    e.I('s_cmp_ge_u32 s21, 12'); e.I('s_cbranch_scc1 L_wo')
    role_qkv(e)
    e.L('L_urg')
    srd(e, 8, 52, 2048 * 1280); srd(e, 12, 54, 8 * 1280)
    e.I('s_cmp_lg_u32 s24, 0')
    e.I('s_cbranch_scc1 L_um')
    ln_addr(e)
    e.I('s_mul_i32 s25, s20, 20480')
    ln_load(e, 16, 's25')
    e.I('s_waitcnt vmcnt(0)')
    ln_compute(e, 16, 's25')
    e.I('s_branch L_ur')
    e.L('L_um')
    mem0_copy(e, None, 0, opt.inl)
    e.I('s_mul_i32 s41, s20, 10240')
    e.I(f's_add_u32 s41, s41, {MEM}')
    e.I('s_waitcnt vmcnt(0)')
    mem0_copy(e, 's41', 1)
    e.L('L_ur')
    e.I('s_waitcnt vmcnt(0)')
    e.I('s_barrier')
    register(e, 3, 4)
    e.L('L_wo'); role_sw(e)
    e.L('L_help')
    srd(e, 8, 52, 2048 * 1280)
    e.I('s_mul_i32 s24, s20, 10')
    e.I('s_add_u32 s24, s24, s21')
    e.I('s_sub_u32 s24, s24, 22')
    if opt.urg: init_fill(e, 's24', 80)
    ln_addr(e)
    e.I('s_mul_i32 s25, s24, 20480')
    if opt.urg: e.I(f's_add_u32 s25, s25, {8*20480}')
    e.I(f's_add_u32 s26, s25, {80*20480}')
    ln_load(e, 16, 's25')
    ln_load(e, 36, 's26')
    if opt.urg:
        e.I('s_waitcnt vmcnt(10)')
        e.I('s_barrier')
        register(e, 3, 4)
    elif opt.pfh:
        srd(e, 12, 64, 640 * 12288); srd(e, 16, 60, 640 * 12288)
        e.I('s_sub_u32 s27, s21, 22')
        e.I('s_lshl_b32 s27, s27, 2')
        e.I('s_add_u32 s27, s27, s22')
        prefetch_w(e, 's27', 0, opt.pfh, 124, 's[12:15]', 's[16:19]')
    else: init_fill(e, 's24', 80)
    e.I(f's_waitcnt vmcnt({3*opt.pfh})')
    ln_compute(e, 16, 's25')
    e.I(f's_cmp_ge_u32 s24, {40 if opt.urg else 48}')
    e.I('s_cbranch_scc1 L_hl')
    ln_compute(e, 36, 's26')
    e.L('L_hl')
    if opt.pfh: init_fill(e, 's24', 80)
    e.I('s_waitcnt vmcnt(0)')
    e.I('s_barrier')
    if opt.urg: count_up(e, 3, D_W)
    else: register(e, 3, 4)
    TS(e, 0)
    TSflush(e, '69')
    if opt.touch2:
        wait_reg(e, 16, opt.rsleep)
        e.I('s_sub_u32 s24, s21, 22')
        e.I('s_lshl_b32 s25, s20, 2')
        e.I('s_add_u32 s25, s25, s22')
        touch_jobs(e, [(XN + k * 40960, 10240, 40) for k in range(3)] + [(XN + k * 40960 + 5120, 10240, 40) for k in range(3)], 's24', 10, 's22', 18)
        jobs = []
        for sl in range(4): jobs += [(MEM + sl * MEM_SLOT, 2560, 20), (XR + sl * XR_SLOT, 6144, 48), (VR + sl * VR_SLOT, 3072, 24)]
        touch_jobs(e, jobs[::-1][:4] + jobs[:8], 's24', 10, 's25', 24, 6)
    e.I('s_cmp_ge_u32 s21, 29'); e.I('s_cbranch_scc1 L_ffn')
    e.I('s_cmp_lt_u32 s21, 27'); e.I('s_cbranch_scc1 L_xw')
    role_att(e)
    e.L('L_xw'); role_xw(e)
    e.L('L_ffn'); role_ffn(e)
    e.L('L_cmb'); role_cmb(e)
    e.L('L_fail')
    e.I('s_mov_b64 exec, 1')
    e.I('s_lshl_b32 s31, s31, 2')
    e.I('v_mov_b32 v3, s31')
    e.I('v_mov_b32 v4, 1')
    e.I('global_atomic_add v3, v4, s[74:75]')
    e.L('L_end')
    e.L('L_last')
    e.I('s_endpgm')

def build(path):
    import gen_pre
    gen_pre.DIAG[0] = opt.noinit
    for k in range(3): NT[k] = ' nt' if opt.pnt >> k & 1 else ''
    hdr = open('cdna_kernels/' + NAME + '.s.ref').read().split('\n')
    e = Em()
    for l in hdr:
        if l.startswith(';') and '@launch' not in l and 'Override launch' not in l and 'grid=ceil' not in l: e.raw(l)
    e.raw(f'; @launch grid=(256,1,1) block=(256,1,1) lds=163840')
    e.raw('.amdgcn_target "amdgcn-amd-amdhsa--gfx950"')
    gen_mainkernel(e)
    kernel_desc(e, MAIN, 512, 100, 256)
    hazard.PIPE = bool(opt.pipe)
    lines, added = hazard.pad(e.lines)
    open(path, 'w').write('\n'.join(lines) + '\n')
    n = sum(1 for l in lines if l.startswith('    ') and not l.strip().startswith(';'))
    print(f'wrote {path}: {n} instructions, {added} nops added')

if __name__ == '__main__':
    out = sys.argv[1] if len(sys.argv) > 1 else 'cdna_kernels/' + NAME + '.s'
    if 'slow' in sys.argv[2:]: opt.force_slow = True
    if 'ts' in sys.argv[2:]: opt.ts = True
    for k in ('nobg', 'ackpoll', 'noxw'):
        if k in sys.argv[2:]: setattr(opt, k, True)
    for a_ in sys.argv[2:]:
        if '=' in a_: k_, v_ = a_.split('='); setattr(opt, k_, int(v_))
    build(out)
```

```python
import sys, struct
from asmlib import *
from layout import *
import hazard
from gen_pre import *

NAME = 'recurrent_scan__memory_aug_recurrent_mem_tr__dense_activation_relu__prompt'
MAIN = NAME + '_kernel'
PRE = 'prep_kernel'
LDS_TOTAL = 131072
LDS_ROLE = 131072
TMO = 1 << 18
def f2u(x): return struct.unpack('<I', struct.pack('<f', x))[0]
SC_L2E = f2u(192 ** -0.5 * 1.4426950408889634)
NEG_BIG = f2u(-1e30)
MFMA = 'v_mfma_f32_16x16x32_bf16'
MFMA16 = 'v_mfma_f32_16x16x16_bf16'
SMF = 'v_smfmac_f32_16x16x64_bf16'
WS = 's[4:7]'
WFL = ['', ' nt', ' sc1', ' sc0 sc1', ' sc1 nt', ' sc0 sc1 nt']

class Opt:
    force_slow = False
    ts = False
    nobg = False
    ackpoll = False
    noxw = False
    pdelay = 0
    vdelay = 0
    kbar = 0
    kpre = 12
    kin = 12
    fresh = 0
    pdiag = 0
    pflip = 0
    touch = 1
    nofc = 0
    nopx = 0
    nocmb = 0
    cdepth = 2
    ffnnt = 0
    pr = 1
    pfar = 0
    vpre = 0
    vmpos = 2
    smpre = 1
    smgap = 3
    ldgap = 30
    kp = 0
    kcs = 0
    kce = 12
    xlate = 4
    csleep = 8
    cwarm = 61
    c2sleep = 4
    clag = 2
    lsleep = 8
    xsleep = 2
    asleep = 2
    cdiag = 0
    n1 = 5
    n2 = 4
    n3 = 0
    thin = 1
    split = 2
    eord = 1
    inl = 1
    qc = 1220
    f63 = 1
    two = 1
    nc = 1
    sa = 4
    sb = 7
    cvx = 24
    nod = 1
    sord = 1
    thin1 = 1
    pvmix = 1
    vin = 3
    zin = 0
    rdmix = 2
    t9 = -1
    vgap = 0
    fv = 11
    pipe = 1
    ktight = 1
    vx2 = 1
    ox4 = 1
    remap = 1
    fq = 3
    vown = 1
    g1 = 0
    g2 = 0
    vpos = 1
    xg1 = 0
    xg2 = 0
    fwait = 3
    ptouch = 1
    spec = 1
    mwait = 0
    mpre = 2
    kgap = 15
    noinit = 0
    pfh = 0
    wb = 0
    ost = 0
    mprobe = 0
    kx = 0
    dstamp = 0
    hwv = 7
    t63 = 1
    esleep = 1
    tpos = 0
    pmf = 6
    pmf2 = 4
    urg = 0
    rsleep = 16
    cwarm2 = 0
    tord = 0
    pfs = 0
    swlate = 1
    fpos = 11
    heads = 1
    hdelay = 0
    wnb = 3
    wrows = 320
    touch2 = 1
    pnt = 1
    wnt = 1
    wthr = 64
    xpf = 10
    xdma0 = 10
    xdmas = 1
    pbf = 1
    rpos = 9
    mbar = 1
    pspin = 0
    nobulk = 0
opt = Opt()

def vr(i, n=4): return f'v[{i}:{i+n-1}]'
def ar(i, n=4): return f'a[{i}:{i+n-1}]'

def maxchain(e, dst, regs, op='u32'):
    regs = list(regs)
    e.I(f'v_max3_{op} v{dst}, v{regs[0]}, v{regs[1]}, v{regs[2]}')
    rest = regs[3:]
    while rest:
        if len(rest) >= 2:
            e.I(f'v_max3_{op} v{dst}, v{dst}, v{rest[0]}, v{rest[1]}'); rest = rest[2:]
        else:
            e.I(f'v_max_{op} v{dst}, v{dst}, v{rest[0]}'); rest = rest[1:]

def check_sent(e, regs, t0, t1):
    regs = list(regs)
    if len(regs) >= 8:
        h = len(regs) // 2
        A, B = regs[:h], regs[h:]
        ea, eb = Em(), Em()
        maxchain(ea, t0, A); maxchain(eb, t1, B)
        for i in range(max(len(ea.lines), len(eb.lines))):
            if i < len(ea.lines): e.lines.append(ea.lines[i])
            if i < len(eb.lines): e.lines.append(eb.lines[i])
        e.I(f'v_max_u32 v{t0}, v{t0}, v{t1}')
    else:
        maxchain(e, t0, regs)
    e.I(f'v_cmp_eq_u32 vcc, -1, v{t0}')
def chunk_regs(base, n, step):
    return list(range(base, base + n, step)) if opt.thin else list(range(base, base + n))

def poll2(e, issue, nl, regsA, regsB, consume, t0, t1, code, early=None):
    lp, dA, dB, dd = e.lab('Lp'), e.lab('LdA'), e.lab('LdB'), e.lab('Ldd')
    e.I(f's_mov_b32 s31, {TMO}')
    issue(regsA)
    e.L(lp)
    issue(regsB)
    e.I(f's_waitcnt vmcnt({nl})')
    if early: early(regsA)
    check_sent(e, chunk_regs(regsA, 4 * nl, 4), t0, t1)
    e.I(f's_cbranch_vccz {dA}')
    issue(regsA)
    e.I(f's_waitcnt vmcnt({nl})')
    if early: early(regsB)
    check_sent(e, chunk_regs(regsB, 4 * nl, 4), t0, t1)
    e.I(f's_cbranch_vccz {dB}')
    e.I('s_sub_u32 s31, s31, 1')
    e.I(f's_cbranch_scc0 {lp}')
    e.I(f's_mov_b32 s31, {code}')
    e.I('s_branch L_fail')
    e.L(dB)
    consume(regsB)
    e.I(f's_branch {dd}')
    e.L(dA)
    consume(regsA)
    e.L(dd)

def wait_flags(e, vaddr, sofs, mask, vt, code, sleep=0, dbg=False):
    lp, dn = e.lab('Lf'), e.lab('Lfd')
    e.I(f's_mov_b32 s31, {TMO}')
    if mask > 0xffffffff or mask < 0: e.I(f's_mov_b64 exec, {mask}')
    else:
        e.I(f's_mov_b32 exec_lo, {mask:#x}'); e.I('s_mov_b32 exec_hi, 0')
    e.L(lp)
    if dbg: e.I(f'global_load_dword v{vt}, v{vaddr}, s[74:75] offset:{sofs} sc1')
    else: e.I(f'buffer_load_dword v{vt}, v{vaddr}, {WS}, {sofs} offen sc1')
    e.I('s_waitcnt vmcnt(0)')
    e.I(f'v_cmp_eq_u32 vcc, 0, v{vt}')
    e.I(f's_cbranch_vccz {dn}')
    if sleep: e.I(f's_sleep {sleep}')
    e.I('s_sub_u32 s31, s31, 1')
    e.I(f's_cbranch_scc0 {lp}')
    e.I(f's_mov_b32 s31, {code}')
    e.I('s_branch L_fail')
    e.L(dn)
    e.I('s_mov_b64 exec, -1')

D_TR, D_PAR, D_REG = 64, 96, 128
def register(e, va, vd):
    sk = e.lab('Lrg')
    e.I('s_cmp_lg_u32 s22, 0')
    e.I(f's_cbranch_scc1 {sk}')
    e.I(f'v_mov_b32 v{va}, s96')
    e.I(f'v_mov_b32 v{vd}, s97')
    e.I('s_mov_b64 exec, 1')
    e.I(f'global_atomic_add v{va}, v{vd}, s[74:75] offset:{D_REG} sc1')
    e.I('s_mov_b64 exec, -1')
    e.L(sk)
D_W = 68
def wait_count(e, t, off, n, sleep):
    lp, dn = e.lab('Lwc'), e.lab('Lwe')
    e.I(f's_mov_b32 s31, {TMO}')
    e.I(f'v_mov_b32 v{t+1}, 0')
    e.L(lp)
    e.I(f'global_load_dword v{t}, v{t+1}, s[74:75] offset:{off} sc1')
    e.I('s_waitcnt vmcnt(0)')
    e.I(f'v_cmp_gt_u32 vcc, {n}, v{t}')
    e.I(f's_cbranch_vccz {dn}')
    e.I(f's_sleep {sleep}')
    e.I('s_sub_u32 s31, s31, 1')
    e.I(f's_cbranch_scc0 {lp}')
    e.I('s_mov_b32 s31, 10')
    e.I('s_branch L_fail')
    e.L(dn)
def wait_first(e, t, seg=0):
    wait_reg(e, t, 32)
    e.I('s_lshl_b32 s38, s20, 8')
    e.I(f's_add_u32 s38, s38, {FLGQ + seg*2048}')
    e.I(f'v_lshlrev_b32 v{t+1}, 6, v1')
    wait_flags(e, t + 1, 's38', 0xf, t, 15, sleep=16)
def count_up(e, t, off):
    sk = e.lab('Lcu')
    e.I('s_cmp_lg_u32 s22, 0')
    e.I(f's_cbranch_scc1 {sk}')
    e.I(f'v_mov_b32 v{t}, 0'); e.I(f'v_mov_b32 v{t+1}, 1')
    e.I('s_mov_b64 exec, 1')
    e.I(f'global_atomic_add v{t}, v{t+1}, s[74:75] offset:{off} sc1')
    e.I('s_mov_b64 exec, -1')
    e.L(sk)
def wait_reg(e, t, sleep=4):
    lp, dn = e.lab('Lwr'), e.lab('Lwd')
    e.I(f's_mov_b32 s31, {TMO}')
    e.I(f'v_lshlrev_b32 v{t+2}, 2, v1')
    e.I('s_mov_b32 exec_hi, 0')
    e.L(lp)
    e.I(f'global_load_dword v{t}, v{t+2}, s[74:75] offset:{D_REG} sc1')
    e.I('s_mov_b32 s23, 0')
    e.I('s_mov_b32 s38, 0')
    e.I('s_waitcnt vmcnt(0)')
    for k in range(4):
        e.I(f'v_cmp_eq_u32 vcc, {0x20 << (8*k):#x}, v{t}')
        e.I('s_or_b32 s38, s38, vcc_lo')
    e.I(f'v_sad_u8 v{t+1}, v{t}, 0, 0')
    e.I('s_bcnt1_i32_b32 s38, s38')
    e.I('s_cmp_eq_u32 s38, 8')
    e.I(f's_cbranch_scc1 {dn}')
    for sh in (1, 2, 4, 8): e.I(f'v_add_u32_dpp v{t+1}, v{t+1}, v{t+1} row_shr:{sh} row_mask:0xf bank_mask:0xf bound_ctrl:0')
    e.I(f'v_readlane_b32 s38, v{t+1}, 15')
    e.I(f'v_readlane_b32 s39, v{t+1}, 31')
    e.I('s_mov_b32 s23, 1')
    e.I('s_add_u32 s38, s38, s39')
    e.I('s_cmp_eq_u32 s38, 256')
    e.I(f's_cbranch_scc1 {dn}')
    e.I(f's_sleep {sleep}')
    e.I('s_sub_u32 s31, s31, 1')
    e.I(f's_cbranch_scc0 {lp}')
    e.I('s_mov_b32 s31, 10')
    e.I('s_branch L_fail')
    e.L(dn)
    e.I('s_mov_b64 exec, -1')

def set_flag(e, vaddr, sofs, vone, fl):
    e.I('s_mov_b64 exec, 1')
    e.I(f'buffer_store_dword v{vone}, v{vaddr}, {WS}, {sofs} offen{fl}')
    e.I('s_mov_b64 exec, -1')

def xg_reduce(e, op, x, t):
    e.I(f'v_mov_b32 v{t}, v{x}')
    e.I(f'v_permlane16_swap_b32 v{x}, v{t}')
    e.I(f'{op} v{x}, v{x}, v{t}')
    e.I(f'v_mov_b32 v{t}, v{x}')
    e.I(f'v_permlane32_swap_b32 v{x}, v{t}')
    e.I(f'{op} v{x}, v{x}, v{t}')

def softmax12(e, S, P, t):
    maxchain(e, t, range(S, S + 12), 'f32')
    xg_reduce(e, 'v_max_f32', t, t + 1)
    e.I(f'v_mul_f32 v{t}, s53, v{t}')
    for i in range(12):
        e.I(f'v_fma_f32 v{S+i}, v{S+i}, s52, v{t}')
    for i in range(12):
        e.I(f'v_exp_f32 v{S+i}, v{S+i}')
    e.I(f'v_add_f32 v{t+2}, v{S}, v{S+1}')
    e.I(f'v_add_f32 v{t+3}, v{S+2}, v{S+3}')
    for i in range(4, 12, 2):
        e.I(f'v_add_f32 v{t+2}, v{t+2}, v{S+i}')
        e.I(f'v_add_f32 v{t+3}, v{t+3}, v{S+i+1}')
    e.I(f'v_add_f32 v{t+2}, v{t+2}, v{t+3}')
    xg_reduce(e, 'v_add_f32', t + 2, t + 3)
    e.I(f'v_rcp_f32 v{t+2}, v{t+2}')
    for i in range(12):
        e.I(f'v_mul_f32 v{S+i}, v{S+i}, v{t+2}')
    for i in range(6):
        e.I(f'v_cvt_pk_bf16_f32 v{P+i}, v{S+2*i}, v{S+2*i+1}')

def softmax_list(S, n, P, t):
    x = Em()
    maxchain(x, t, range(S, S + n), 'f32')
    xg_reduce(x, 'v_max_f32', t, t + 1)
    x.I(f'v_mul_f32 v{t}, s53, v{t}')
    for i in range(n): x.I(f'v_fma_f32 v{S+i}, v{S+i}, s52, v{t}')
    for i in range(n): x.I(f'v_exp_f32 v{S+i}, v{S+i}')
    x.I(f'v_add_f32 v{t+2}, v{S}, v{S+1}')
    x.I(f'v_add_f32 v{t+3}, v{S+2}, v{S+3}')
    for i in range(4, n, 2):
        x.I(f'v_add_f32 v{t+2}, v{t+2}, v{S+i}')
        x.I(f'v_add_f32 v{t+3}, v{t+3}, v{S+i+1}')
    x.I(f'v_add_f32 v{t+2}, v{t+2}, v{t+3}')
    xg_reduce(x, 'v_add_f32', t + 2, t + 3)
    x.I(f'v_rcp_f32 v{t+2}, v{t+2}')
    for i in range(n): x.I(f'v_mul_f32 v{S+i}, v{S+i}, v{t+2}')
    for i in range(n // 2): x.I(f'v_cvt_pk_bf16_f32 v{P+i}, v{S+2*i}, v{S+2*i+1}')
    return [l.strip() for l in x.lines]

def DSTAMP(e, idx, cond=None, op='umax'):
    if not opt.dstamp: return
    sk = e.lab('Lds')
    if cond: e.I(cond); e.I(f's_cbranch_scc0 {sk}')
    e.I('s_memtime s[98:99]' if op == 'clk' else 's_memrealtime s[98:99]')
    e.I('s_waitcnt lgkmcnt(0)')
    if op == 'neg': e.I('s_not_b32 s98, s98')
    e.I('s_mov_b64 exec, 1')
    e.I(f'v_mov_b32 v238, {idx*4}')
    e.I('v_mov_b32 v239, s98')
    e.I('global_atomic_umax v238, v239, s[74:75] sc1')
    e.I('s_mov_b64 exec, -1')
    e.L(sk)
def TS(e, k):
    if opt.ts: e.I(f's_memrealtime s[{76+2*k}:{77+2*k}]')
def TSflush(e, step, va=238, vd=239):
    if not opt.ts: return
    e.I('s_waitcnt lgkmcnt(0)')
    for k in range(10): e.I(f'v_writelane_b32 v{vd}, s{76+2*k}, {k}')
    e.I('s_lshl_b32 s76, s20, 5')
    e.I('s_add_u32 s76, s76, s21')
    e.I('s_lshl_b32 s76, s76, 2')
    e.I('s_add_u32 s76, s76, s22')
    e.I('s_mul_i32 s76, s76, 72')
    e.I(f's_add_u32 s76, s76, {step}')
    e.I('s_lshl_b32 s76, s76, 6')
    e.I(f's_add_u32 s76, s76, {DBGT}')
    e.I(f'v_lshlrev_b32 v{va}, 2, v1')
    e.I('s_mov_b64 exec, 0x3ff')
    e.I(f'buffer_store_dword v{vd}, v{va}, {WS}, s76 offen')
    e.I('s_mov_b64 exec, -1')

def lane_ig(e, vi, vg):
    e.I(f'v_and_b32 v{vi}, 15, v1')
    e.I(f'v_lshrrev_b32 v{vg}, 4, v1')

def load_weights(e, mats, RS, rows, paired, vA, vT, NB=3, bufoff=None, manual=False):
    CH = rows * 128
    ninst = rows // 8 // 4
    nk = rows // 32
    e.I(f'v_lshrrev_b32 v{vT}, 3, v1')
    if paired:
        e.I(f'v_bfe_u32 v{vT+1}, v1, 4, 2')
    else:
        e.I(f'v_bfe_u32 v{vT+1}, v1, 4, 1')
        e.I('s_and_b32 s54, s22, 1')
        e.I('s_lshl_b32 s54, s54, 1')
        e.I(f'v_or_b32 v{vT+1}, s54, v{vT+1}')
    e.I(f'v_lshlrev_b32 v{vT+1}, 1, v{vT+1}')
    e.I(f'v_and_b32 v{vT+2}, 7, v1')
    e.I(f'v_xor_b32 v{vT+2}, v{vT+2}, v{vT+1}')
    e.I(f's_mov_b32 s54, {RS}')
    e.I(f'v_mul_lo_u32 v{vA}, s54, v{vT}')
    e.I(f'v_lshl_add_u32 v{vA}, v{vT+2}, 4, v{vA}')
    e.I(f'v_lshrrev_b32 v{vT}, 4, v1')
    e.I(f'v_bfe_u32 v{vT+1}, v1, 2, 2')
    if paired:
        e.I(f'v_lshl_add_u32 v{vT+2}, v{vT}, 2, v{vT+1}')
        e.I(f'v_bfe_u32 v{vT}, v{vT+2}, 1, 2')
        second = 2048
    else:
        e.I(f'v_lshl_add_u32 v{vT+2}, v{vT}, 3, v{vT+1}')
        e.I(f'v_and_b32 v{vT}, 1, v{vT}')
        e.I(f'v_lshlrev_b32 v{vT}, 1, v{vT}')
        e.I(f'v_bfe_u32 v{vT+1}, v1, 3, 1')
        e.I(f'v_or_b32 v{vT}, v{vT}, v{vT+1}')
        second = 512
    e.I(f'v_xor_b32 v{vT}, s22, v{vT}')
    e.I(f'v_lshlrev_b32 v{vT+2}, 7, v{vT+2}')
    e.I(f'v_lshl_add_u32 v{vT+2}, v{vT}, 5, v{vT+2}')
    e.I(f'v_and_b32 v{vT}, 3, v1')
    e.I(f'v_lshl_add_u32 v{vT}, v{vT}, 3, v{vT+2}')
    bufoff = bufoff or [k * CH for k in range(NB)]
    for k in range(NB - 1, -1, -1):
        if bufoff[k]  or k: e.I(f'v_add_u32 v{vT+k}, {bufoff[k]}, v{vT}')
    chunks = []
    for (srd_, sofs, ab, nrows) in mats:
        for c in range(nrows // rows):
            chunks.append((srd_, sofs, ab + c * nk * 4, c * rows))
    e.I(f's_mul_i32 s55, s22, {8*RS}')
    e.I('s_lshl_b32 s56, s22, 10')
    def issue(ci, buf=None):
        srd_, sofs, ab, r0 = chunks[ci]
        if buf is None: buf = ci % NB
        e.I(f's_add_u32 s57, {sofs}, s55')
        if r0: e.I(f's_add_u32 s57, s57, {r0*RS}')
        for n in range(ninst):
            e.I(f's_add_u32 m0, s56, {bufoff[buf] + n*4096}')
            e.I(f'buffer_load_dwordx4 v{vA}, {srd_}, s57 offen{WFL[opt.wnt]} lds')
            if n + 1 < ninst: e.I(f's_add_u32 s57, s57, {32*RS}')
    def consume(ci, buf, pending):
        e.I(f's_waitcnt vmcnt({pending})')
        if ci < 8: TS(e, 2 + ci)
        e.I('s_barrier')
        srd_, sofs, ab, r0 = chunks[ci]
        for k in range(nk):
            e.I(f'ds_read_b64_tr_b16 {ar(ab+4*k,2)}, v{vT+buf} offset:{k*4096}')
            e.I(f'ds_read_b64_tr_b16 {ar(ab+4*k+2,2)}, v{vT+buf} offset:{k*4096+second}')
        e.I('s_waitcnt lgkmcnt(0)')
        e.I('s_barrier')
    if manual: return issue, consume
    for ci in range(min(NB, len(chunks))): issue(ci)
    for ci in range(len(chunks)):
        left = min(len(chunks) - 1 - ci, NB - 1)
        e.I(f's_waitcnt vmcnt({left*ninst})')
        if ci < 8: TS(e, 2 + ci)
        e.I('s_barrier')
        srd_, sofs, ab, r0 = chunks[ci]
        for k in range(nk):
            e.I(f'ds_read_b64_tr_b16 {ar(ab+4*k,2)}, v{vT+ci%NB} offset:{k*4096}')
            e.I(f'ds_read_b64_tr_b16 {ar(ab+4*k+2,2)}, v{vT+ci%NB} offset:{k*4096+second}')
        e.I('s_waitcnt lgkmcnt(0)')
        e.I('s_barrier')
        if ci + NB < len(chunks): issue(ci + NB)

def touch_jobs(e, jobs, sw, nw, sh, t, rot=0):
    sizes = sorted({min(n, 64) for _, _, n in jobs} | {n - 64 for _, _, n in jobs if n > 64})
    reg = {}
    for k, n in enumerate(sizes):
        reg[n] = t + 1 + k
        e.I(f'v_min_u32 v{reg[n]}, {n-1}, v1')
        e.I(f'v_lshlrev_b32 v{reg[n]}, 7, v{reg[n]}')
    flat = []
    for base, per, n in jobs:
        flat.append((base, per, min(n, 64)))
        if n > 64: flat.append((base + 8192, per, n - 64))
    for c in range(nw):
        sk = e.lab('Ltj')
        e.I(f's_cmp_lg_u32 {sw}, {c}')
        e.I(f's_cbranch_scc1 {sk}')
        for base, per, n in flat[(c - rot) % nw::nw]:
            e.I(f's_mul_i32 s38, {sh}, {per}')
            e.I(f's_add_u32 s38, s38, {base}')
            e.I(f'buffer_load_dword v{t}, v{reg[n]}, {WS}, s38 offen sc1')
        e.L(sk)

def prefetch_w(e, su, j0, j1, t, srdv, srdq):
    for k in range(3):
        e.I(f'v_add_u32 v{t+3}, {1024*k}, v2')
        e.I(f'v_cmp_le_u32 vcc, 1536, v{t+3}')
        e.I(f'v_add_u32 v{t+k}, {12288-1536}, v{t+3}')
        e.I(f'v_cndmask_b32 v{t+k}, v{t+3}, v{t+k}, vcc')
    e.I('s_mul_i32 s39, s20, 1536')
    e.I(f's_mul_i32 s38, {su}, {2*12288}')
    e.I('s_add_u32 s38, s38, s39')
    for j in range(j0, j1):
        row = 320 + 80 * j if j < 4 else 80 * (j - 4)
        e.I(f's_add_u32 s39, s38, {row*12288}')
        for k in range(3): e.I(f'buffer_load_dwordx4 {vr(t+4)}, v{t+k}, {srdv if j < 4 else srdq}, s39 offen{WFL[opt.wnt]}')

Q_LX, Q_LMEM = 0, 81920
def role_qkv(e):
    fl = ''
    WQ, WK, WV = 0, 80, 160
    MF = 16
    DQ, DK, DV = 96, 100, 104
    PA, PB = 108, 120
    XD = 132
    T0 = 160
    KEEP = 176; TCH = 180
    XA, VA, IDX, SEL, MP = 182, 183, 184, 185, 186
    XRA, XQA, XKA, OQK = 187, 188, 189, 190
    SENT = 248; ONE = 252
    e.I('s_mul_i32 s24, s21, 43')
    e.I('s_lshr_b32 s24, s24, 7')
    e.I('s_mul_i32 s25, s24, 3')
    e.I('s_sub_u32 s25, s21, s25')
    e.I('s_lshl_b32 s26, s20, 2')
    e.I('s_add_u32 s26, s26, s24')
    e.I('s_lshl_b32 s27, s25, 2')
    e.I('s_add_u32 s27, s27, s22')
    srd(e, 8, 60, 640 * 12288); srd(e, 12, 62, 640 * 12288); srd(e, 16, 64, 640 * 12288)
    e.I('s_mul_i32 s28, s26, 384')
    e.I('s_lshl_b32 s29, s25, 7')
    e.I('s_add_u32 s28, s28, s29')
    w_issue, w_consume = load_weights(e, [('s[12:15]', 's28', WK, 640), ('s[16:19]', 's28', WV, 640), ('s[8:11]', 's28', WQ, 640)], 12288, 320, False, 240, 241, 3,
                                      bufoff=[81920, 122880, 40960], manual=True)
    for ci in range(3): w_issue(ci)
    e.I('s_mul_i32 s38, s22, 3072')
    e.I('s_min_u32 s38, s38, 7168')
    e.I('v_add_u32 v3, s38, v2')
    e.I(f'v_add_u32 v5, {Q_LMEM}, v3')
    e.I(f'v_add_u32 v7, {Q_LMEM}, v2')
    lane_ig(e, 14, 15)
    e.I('s_lshr_b32 s38, s27, 1')
    e.I('s_lshl_b32 s38, s38, 10')
    e.I('s_and_b32 s39, s27, 1')
    e.I('s_lshl_b32 s39, s39, 3')
    e.I('s_add_u32 s38, s38, s39')
    e.I('v_add_u32 v8, s38, v2')
    e.I('v_bfe_u32 v11, v1, 2, 2')
    e.I('v_and_b32 v12, 3, v1')
    e.I(f'v_lshlrev_b32 v{XA}, 8, v11')
    e.I(f'v_lshl_add_u32 v{XA}, v15, 6, v{XA}')
    e.I(f'v_lshl_add_u32 v{XA}, v12, 4, v{XA}')
    e.I(f'v_add_u32 v{XA}, s38, v{XA}')
    if opt.eord:
        e.I('s_lshr_b32 s38, s27, 1')
        e.I('s_and_b32 s39, s27, 1')
        e.I('s_lshl_b32 s39, s39, 9')
        e.I('s_lshl_b32 s40, s38, 10')
        e.I('s_add_u32 s40, s40, s39')
        e.I('v_lshrrev_b32 v9, 1, v11')
        e.I('v_lshlrev_b32 v9, 8, v9')
        e.I('v_and_b32 v13, 1, v11')
        e.I('v_lshl_add_u32 v9, v13, 3, v9')
        e.I('v_lshl_add_u32 v9, v12, 4, v9')
        e.I(f'v_lshl_add_u32 v{XA}, v15, 6, v9')
        e.I(f'v_add_u32 v{XA}, s40, v{XA}')
        e.I('v_lshrrev_b32 v13, 1, v15')
        e.I(f'v_lshlrev_b32 v{OQK}, 8, v13')
        e.I(f'v_lshl_add_u32 v{OQK}, v14, 4, v{OQK}')
        e.I(f'v_add_u32 v{OQK}, s40, v{OQK}')
        e.I(f'v_and_b32 v{XQA}, 1, v15')
        e.I(f'v_mul_u32_u24 v{XKA}, {6144 if opt.ox4 else 8}, v{XQA}')
        e.I(f'v_add_u32 v{OQK}, v{OQK}, v{XKA}')
        e.I('s_cmp_ge_u32 s38, 3')
        e.I(f's_cselect_b32 s39, {3072 - 128}, 0')
        e.I('s_sub_u32 s40, s40, s39')
        e.I(f'v_lshl_add_u32 v{XRA}, v{XQA}, 6, v9')
        e.I(f'v_mul_u32_u24 v13, 3072, v13')
        e.I(f'v_add3_u32 v{XRA}, v{XRA}, v13, s40')
        e.I('v_lshrrev_b32 v13, 5, v1')
        e.I(f'v_lshl_or_b32 v{XQA}, v13, 31, v{XRA}')
        e.I('v_xor_b32 v13, 1, v13')
        e.I(f'v_lshl_or_b32 v{XKA}, v13, 31, v{XRA}')
    if opt.inl:
        e.I('v_lshlrev_b32 v13, 4, v12')
        e.I('v_sub_u32 v9, v9, v13')
        e.I('v_and_b32 v13, 1, v12')
        e.I('v_lshl_add_u32 v9, v13, 4, v9')
        e.I('v_lshrrev_b32 v13, 1, v12')
        e.I(f'v_lshl_add_u32 v{XA}, v15, 5, v9')
        e.I(f'v_add_u32 v{XQA}, s40, v{XA}')
        e.I(f'v_lshl_add_u32 v{XA}, v13, 7, v{XA}')
        e.I('s_add_u32 s41, s40, s39')
        e.I(f'v_add_u32 v{XA}, s41, v{XA}')
        e.I('s_cmp_ge_u32 s38, 3')
        e.I('s_cselect_b32 s41, 96, 0')
        e.I('s_sub_u32 s41, s40, s41')
        e.I('s_add_u32 s41, s41, 3072')
        e.I(f'v_lshl_add_u32 v{XKA}, v15, 6, v9')
        e.I(f'v_add_u32 v{XKA}, s41, v{XKA}')
        e.I('v_cmp_eq_u32 vcc, 1, v13')
        e.I(f'v_cndmask_b32 v{XRA}, v{XQA}, v{XKA}, vcc')
    e.I('v_and_b32 v13, 1, v15')
    e.I('v_lshlrev_b32 v13, 2, v13')
    e.I('v_lshrrev_b32 v9, 1, v15')
    e.I('v_lshl_add_u32 v13, v9, 1, v13')
    e.I('v_and_b32 v9, 1, v12')
    e.I('v_add_u32 v13, v13, v9')
    e.I('v_lshrrev_b32 v12, 1, v12')
    e.I('v_lshrrev_b32 v9, 1, v11')
    e.I('v_lshlrev_b32 v9, 8, v9')
    e.I('v_lshl_add_u32 v9, v12, 7, v9')
    e.I('v_lshl_add_u32 v9, v13, 4, v9')
    e.I(f'v_and_b32 v{VA}, 1, v11')
    e.I(f'v_lshl_add_u32 v9, v{VA}, 3, v9')
    e.I('s_lshl_b32 s38, s25, 10')
    e.I('s_lshr_b32 s39, s22, 1')
    e.I('s_lshl_b32 s39, s39, 9')
    e.I('s_add_u32 s38, s38, s39')
    e.I('s_and_b32 s39, s22, 1')
    e.I('s_lshl_b32 s39, s39, 2')
    e.I('s_add_u32 s38, s38, s39')
    e.I('v_add_u32 v9, s38, v9')
    e.I(f'v_lshlrev_b32 v{VA}, 8, v11')
    e.I(f'v_lshl_add_u32 v{VA}, v13, 4, v{VA}')
    e.I(f'v_lshl_add_u32 v{VA}, v12, 2, v{VA}')
    e.I('s_lshr_b32 s38, s27, 1')
    e.I('s_cmp_ge_u32 s38, 3')
    e.I('s_cselect_b32 s39, 3, 0')
    e.I('s_cselect_b32 s40, 128, 0')
    e.I('s_sub_u32 s38, s38, s39')
    e.I('s_lshl_b32 s38, s38, 10')
    e.I('s_add_u32 s38, s38, s40')
    e.I('s_and_b32 s39, s27, 1')
    e.I('s_lshl_b32 s39, s39, 3')
    e.I('s_add_u32 s38, s38, s39')
    e.I(f'v_add_u32 v{VA}, s38, v{VA}')
    if opt.vx2:
        e.I('v_and_b32 v12, 3, v1')
        e.I('v_lshlrev_b32 v13, 6, v15')
        e.I('v_lshl_add_u32 v13, v12, 4, v13')
        e.I('v_lshrrev_b32 v12, 5, v1')
        e.I('v_lshl_or_b32 v13, v12, 31, v13')
        e.I(f'v_lshl_add_u32 v{VA}, v11, 8, v13')
        e.I(f'v_add_u32 v{VA}, s38, v{VA}')
        e.I('v_lshrrev_b32 v9, 1, v11')
        e.I('v_lshl_add_u32 v9, v9, 8, v13')
        e.I('v_and_b32 v12, 1, v11')
        e.I('v_lshl_add_u32 v9, v12, 3, v9')
        e.I('s_lshl_b32 s38, s25, 10')
        e.I('s_lshr_b32 s39, s22, 1')
        e.I('s_lshl_b32 s39, s39, 9')
        e.I('s_add_u32 s38, s38, s39')
        e.I('s_and_b32 s39, s22, 1')
        e.I('s_lshl_b32 s39, s39, 7')
        e.I('s_add_u32 s38, s38, s39')
        e.I('v_add_u32 v9, s38, v9')
    if opt.inl:
        e.I('v_lshlrev_b32 v12, 5, v15')
        e.I(f'v_sub_u32 v{VA}, v{VA}, v12')
        e.I(f'v_and_b32 v{VA}, 0x7fffffff, v{VA}')
        e.I('v_and_b32 v9, 0x7fffffff, v9')
        e.I('s_and_b32 s39, s22, 1')
        e.I('s_mul_i32 s39, s39, 96')
        e.I('v_subrev_u32 v9, s39, v9')
        e.I('v_bfe_u32 v12, v1, 1, 1')
        e.I(f'v_lshl_or_b32 v{VA}, v12, 31, v{VA}')
        e.I('v_lshl_or_b32 v9, v12, 31, v9')
    e.I(f'v_mul_u32_u24 v{MP}, 5, v1')
    e.I(f'v_lshrrev_b32 v{MP}, 3, v{MP}')
    e.I(f'v_lshlrev_b32 v{MP}, 8, v{MP}')
    e.I(f'v_mov_b32 v{IDX}, 0x44444444')
    e.I('v_mov_b32 v11, 0xeeeeeeee')
    if opt.inl:
        e.I('v_and_b32 v12, 2, v1')
        e.I('v_cmp_lt_u32 vcc, 0, v12')
    else: e.I('v_cmp_lt_u32 vcc, 7, v14')
    e.I(f'v_cndmask_b32 v{IDX}, v{IDX}, v11, vcc')
    e.I(f'v_mov_b32 v{SEL}, 0x05040100')
    e.I('v_mov_b32 v11, 0x03020706')
    e.I('v_and_b32 v12, 1, v1')
    e.I('v_cmp_eq_u32 vcc, 1, v12')
    e.I(f'v_cndmask_b32 v{SEL}, v{SEL}, v11, vcc')
    e.I('s_mov_b32 s34, 0x33333333'); e.I('s_mov_b32 s35, 0x33333333')
    e.I('s_mov_b32 s36, 0xcccccccc'); e.I('s_mov_b32 s37, 0xcccccccc')
    for k in range(12): e.I(f'v_mov_b32 v{DQ+k}, 0')
    e.I('s_lshl_b32 s38, s27, 2')
    e.I(f'v_mov_b32 v{ONE+2}, s38')
    e.I(f'v_mov_b32 v{ONE}, 1')
    e.I(f'v_mov_b32 v{ONE+1}, 2')
    for k in range(4): e.I(f'v_mov_b32 v{SENT+k}, -1')
    e.I('s_mul_i32 s58, s26, 6144')
    e.I('s_mul_i32 s59, s20, 10240')
    e.I(f's_add_u32 s59, s59, {MEM}')
    e.I('s_mul_i32 s60, s26, 3072')
    e.I('s_lshl_b32 s61, s20, 6')
    e.I('s_lshl_b32 s38, s24, 2')
    e.I('s_add_u32 s61, s61, s38')
    e.I(f's_add_u32 s61, s61, {FLGOX}')
    e.I('v_mov_b32 v10, 0')

    nrd = [7]
    def late_list():
        vs = [f'buffer_store_dwordx2 {vr(KEEP+2,2)}, v{VA}, {WS}, s44 offen{fl}', f'buffer_store_dwordx2 {vr(SENT,2)}, v9, {WS}, s46 offen{fl}'] if opt.vx2 else \
             [f'buffer_store_dword v{KEEP+2}, v{VA}, {WS}, s44 offen{fl}', f'buffer_store_dword v{SENT}, v9, {WS}, s46 offen{fl}']
        return [f'buffer_store_dwordx2 {vr(KEEP,2)}, v{XA}, {WS}, s43 offen{fl}',
                f'buffer_store_dwordx2 {vr(SENT,2)}, v{XRA if opt.split else XA}, {WS}, s42 offen{fl}'] + vs
    def post2(D, t, keep, rm, st):
        QP1, QP2 = 'quad_perm:[1,0,3,2] row_mask:0xf bank_mask:0xf', f'quad_perm:[2,3,0,1] row_mask:{rm} bank_mask:0xf'
        return [[f'v_permlane32_swap_b32 v{D}, v{D+2}', f'v_permlane32_swap_b32 v{D+1}, v{D+3}'],
                [f'v_add_f32 v{t+2}, v{D}, v{D+2}', f'v_add_f32 v{t+3}, v{D+1}, v{D+3}', f'v_cvt_pk_bf16_f32 v{t}, v{t+2}, v{t+3}', f'v_cvt_pk_bf16_f32 v{t+1}, v{t+2}, v{t+3}'],
                [f'v_permlane32_swap_b32 v{t}, v{t+1}', 's_mov_b64 vcc, s[34:35]'],
                [f'v_mov_b32_dpp v{t+2}, v{t} {QP1}', f'v_mov_b32_dpp v{t+3}, v{t+1} {QP1}', f'v_perm_b32 v{t}, v{t+2}, v{t}, v{SEL}', f'v_perm_b32 v{t+1}, v{t+3}, v{t+1}, v{SEL}'],
                [f'v_cndmask_b32_dpp v{keep}, v{t+1}, v{t}, vcc {QP2}', 's_mov_b64 vcc, s[36:37]', f'v_cndmask_b32_dpp v{keep+1}, v{t}, v{t+1}, vcc {QP2}', st],
                [f'v_mov_b32 v{D+k}, 0' for k in range(4)]]
    def late_stores():
        for x_ in late_list(): e.I(x_)
    def xwork(late, mats=(2, 1, 0), dma=True):
        e.I('s_and_b32 s65, s64, 1')
        e.I('s_mul_i32 s66, s65, 40960')
        e.I('v_add_u32 v12, s66, v2')
        e.I('s_xor_b32 s65, s65, 1')
        e.I('s_mul_i32 s65, s65, 40960')
        e.I('s_add_u32 s65, s65, s62')
        e.I('s_add_u32 s66, s64, 1')
        e.I('s_min_u32 s66, s66, 63')
        e.I('s_mul_i32 s66, s66, 40960')
        e.I('s_add_u32 s66, s66, s62')
        e.I(f's_add_u32 s66, s66, {XN}')
        e.I(f's_and_b32 s47, s64, {RD-1}')
        e.I(f's_mul_i32 s47, s47, {SEG_QX}')
        e.I('s_lshl_b32 s48, s58, 1')
        e.I('s_add_u32 s47, s47, s48')
        if late:
            e.I(f's_max_u32 s50, s64, {RD}')
            e.I(f's_sub_u32 s50, s50, {RD}')
            e.I('s_lshl_b32 s50, s50, 9')
            e.I('s_add_u32 s50, s50, s61')
            e.I(f'buffer_load_dword v{TCH}, v10, {WS}, s50 offen sc1')
        PF = opt.xpf
        def rd(n): e.I(f'ds_read_b128 {vr(MF + (n % 20)*4)}, v12 offset:{n*1024}')
        def out(m, rt, part=3):
            d = XD + (m*2+rt)*4; o = T0 + (m*2+rt)*2
            e.I(f'v_cvt_pk_bf16_f32 v{o}, v{d}, v{d+1}')
            e.I(f'v_cvt_pk_bf16_f32 v{o+1}, v{d+2}, v{d+3}')
            if opt.eord and opt.ox4 and m < 2:
                if rt == 1:
                    e.I(f's_add_u32 s48, s47, {(QX, KX, VX)[m]}')
                    e.I(f'v_permlane16_swap_b32 v{o-2}, v{o}')
                    e.I(f'v_permlane16_swap_b32 v{o-1}, v{o+1}')
                    e.I(f'buffer_store_dwordx4 {vr(o-2)}, v{OQK}, {WS}, s48 offen{fl}')
            else:
                e.I(f's_add_u32 s48, s47, {(QX, KX, VX)[m] + rt*6144}')
                e.I(f'buffer_store_dwordx2 {vr(o,2)}, v{OQK if opt.eord and m < 2 else 8}, {WS}, s48 offen{fl}')
        for n in range(PF): rd(n)
        ls = late_list() if late else []
        d0 = max(opt.xdma0, 6 + len(late_list()))
        for n in range(40):
            rt, kk = n // 20, n % 20
            e.I(f's_waitcnt lgkmcnt({min(40, n + PF) - (n + 1)})')
            f = vr(MF + (n % 20)*4)
            for m in mats:
                Wb = (WQ, WK, WV)[m]
                d = vr(XD + (m*2+rt)*4)
                e.I(f'{MFMA} {d}, {ar(Wb+4*kk)}, {f}, {0 if kk == 0 else d}')
            if n + PF < 40: rd(n + PF)
            if late and n == 5:
                bp = e.lab('Lbp')
                e.I(f's_cmp_lt_u32 s64, {RD}')
                e.I(f's_cbranch_scc1 {bp}')
                e.I('s_waitcnt vmcnt(0)')
                e.I(f'v_cmp_eq_u32 vcc, 0, v{TCH}')
                e.I(f's_cbranch_vccz {bp}')
                wait_flags(e, 10, 's50', 1, TCH, 13, sleep=1)
                e.L(bp)
            if n >= 6 and ls: e.I(ls.pop(0))
            elif dma and n >= d0 and (n - d0) % opt.xdmas == 0 and (n - d0) // opt.xdmas < 10:
                m = (n - d0) // opt.xdmas
                e.I(f's_add_u32 m0, s65, {m*1024}')
                e.I(f'buffer_load_dwordx4 v2, {WS}, s66 offen lds')
                e.I('s_add_u32 s66, s66, 1024')
            k0 = 23 if len(mats) > 1 else 28
            if k0 <= n < k0 + len(mats): out(mats[n - k0], 0)
        for m in mats: out(m, 1)
    def flag_addr(back):
        e.I(f's_sub_u32 s51, s64, {back}')
        e.I('s_lshl_b32 s51, s51, 5')
        e.I('s_add_u32 s51, s51, s26')
        e.I('s_lshl_b32 s51, s51, 6')
        e.I(f's_add_u32 s51, s51, {FLGQ}')
    def flag_n():
        flag_addr(0)
        e.I('s_waitcnt vmcnt(0)')
        set_flag(e, ONE + 2, 's51', ONE, fl)
    def mem_part():
        e.I('s_and_b32 s38, s30, 3')
        e.I('s_xor_b32 s39, s38, 2')
        e.I(f's_mul_i32 s40, s38, {MEM_SLOT}')
        e.I('s_add_u32 s40, s40, s59')
        e.I(f's_mul_i32 s41, s38, {XR_SLOT}')
        e.I('s_add_u32 s41, s41, s58')
        e.I(f's_add_u32 s41, s41, {XR}')
        e.I(f's_mul_i32 s42, s39, {XR_SLOT}')
        e.I('s_add_u32 s42, s42, s58')
        e.I(f's_add_u32 s42, s42, {XR}')
        e.I(f's_and_b32 s44, s30, {RD-1}')
        e.I(f's_mul_i32 s43, s44, {SEG_XP}')
        e.I('s_add_u32 s43, s43, s58')
        e.I(f's_add_u32 s43, s43, {XP}')
        e.I(f's_mul_i32 s44, s44, {SEG_VM}')
        e.I('s_add_u32 s44, s44, s60')
        e.I(f's_add_u32 s44, s44, {VM}')
        e.I(f's_mul_i32 s45, s38, {VR_SLOT}')
        e.I('s_add_u32 s45, s45, s60')
        e.I(f's_add_u32 s45, s45, {VR}')
        e.I(f's_mul_i32 s46, s39, {VR_SLOT}')
        e.I('s_add_u32 s46, s46, s60')
        e.I(f's_add_u32 s46, s46, {VR}')
        def issue(b):
            for k in range(3): e.I(f'buffer_load_dwordx4 {vr(b+4*k)}, v3, {WS}, s40 offen offset:{k*1024} sc1')
        def early(b):
            for k in range(3): e.I(f'ds_write_b128 v5, {vr(b+4*k)} offset:{k*1024}')
        flag_addr(1)
        wl = [e.lab('Lmw') for _ in range(4)]; jn = e.lab('Lmj')
        for w in range(1, 4):
            e.I(f's_cmp_eq_u32 s22, {w}')
            e.I(f's_cbranch_scc1 {wl[w]}')
        def sm(d, W, src, m): e.I(f'{SMF} {vr(d)}, {vr(src)}, {ar(W+8*m,8)}, v{IDX}')
        for w in range(4):
            e.L(wl[w])
            own = [min(3*w, 7) + k for k in range(3)]
            rest = [m for m in range(10) if m not in own]
            def consume(b):
                TS(e, 1)
                if not opt.spec: early(b)
                mine = [(d, W, b + 4*k, m) for k, m in enumerate(own) for d, W in ((DQ, WQ), (DK, WK))] + [(DV, WV, b + 4*k, m) for k, m in enumerate(own)]
                if opt.split == 1: mine = [(d, W, b + 4*k, m) for d, W in ((DQ, WQ), (DK, WK), (DV, WV))[:2 + opt.vown] for k, m in enumerate(own)]
                elif not opt.vown: mine = mine[:6]
                if opt.split == 1 and opt.fq == -3: e.I(FLAG())
                for x_ in mine[:opt.mpre]: sm(*x_)
                e.I('s_waitcnt lgkmcnt(0)')
                e.I('s_barrier')
                if opt.split == 1 and opt.fq == -2: e.I(FLAG())
                rl = [f'ds_read_b128 {vr(MF+4*k)}, v7 offset:{m*1024}' for k, m in enumerate(rds)]
                for x_ in rl[:opt.rdmix or 10]: e.I(x_)
                rl = rl[opt.rdmix or 10:]
                if opt.split == 1 and opt.fq == -1: e.I(FLAG())
                for n_, x_ in enumerate(mine[opt.mpre:]):
                    sm(*x_)
                    if rl: e.I(rl.pop(0))
                    if opt.split == 1 and opt.fq == 100 + n_: e.I(FLAG())
                for x_ in rl: e.I(x_)
            rds = rest + (own if not opt.vown else [])
            nrd[0] = len(rds)
            FLAG = lambda: f'buffer_store_dword v{ONE+opt.two}, v{ONE+2}, {WS}, s51 offen{fl}'
            if opt.mwait: e.I(f's_sleep {opt.mwait}')
            poll2(e, issue, 3, PA, PB, consume, T0, T0 + 1, 1, early if opt.spec else None)
            if opt.split == 1:
                seq = [(DQ, WQ, MF + 4*k, m) for k, m in enumerate(rest)] + [(DK, WK, MF + 4*k, m) for k, m in enumerate(rest)] + [(DV, WV, MF + 4*k, m) for k, m in enumerate(rds)]
                ins = {}
                for j_, g_ in enumerate(post2(DQ, T0 + 4, KEEP, '0x3', f'buffer_store_dwordx2 {vr(KEEP,2)}, v{XQA}, {WS}, s41 offen{fl}')): ins.setdefault(7 + j_, []).extend(g_)
                for j_, g_ in enumerate(post2(DK, T0 + 8, KEEP, '0xc', f'buffer_store_dwordx2 {vr(KEEP,2)}, v{XKA}, {WS}, s41 offen{fl}')): ins.setdefault(14 + (0, 1, 1, 2, 3, 4)[j_] if opt.ktight else 14 + j_, []).extend(g_)
                for n_, x_ in enumerate(seq):
                    if n_ < 7: e.I(f's_waitcnt lgkmcnt({len(rds) - 1 - n_})')
                    if n_ == 21: e.I('s_waitcnt lgkmcnt(0)')
                    sm(*x_)
                    if n_ == opt.fq: e.I(FLAG())
                    for y_ in ins.get(n_, []):
                        e.I(y_)
                        if f'v{XKA},' in y_: TS(e, 2)
                vpost()
            else:
                e.I('s_mov_b64 vcc, s[34:35]')
                for k, m in enumerate(rest):
                    e.I(f's_waitcnt lgkmcnt({len(rds)-1-k})')
                    sm(DQ, WQ, MF + 4*k, m)
                    if opt.fpos == k: e.I(FLAG())
                    sm(DK, WK, MF + 4*k, m)
                post(lambda k: sm(DV, WV, MF + 4*k, rds[k]))
            if w < 3: e.I(f's_branch {jn}')
        e.L(jn)
        e.I('v_xor_b32 v5, 0xc000, v5')
        e.I('v_xor_b32 v7, 0xc000, v7')
        TS(e, 3)
    def post(vm):
        if opt.inl:
            QP1, QP2 = 'quad_perm:[1,0,3,2] row_mask:0xf bank_mask:0xf', 'quad_perm:[2,3,0,1] row_mask:0xf bank_mask:0xf'
            FLAG = f'buffer_store_dword v{ONE+opt.two}, v{ONE+2}, {WS}, s51 offen{fl}'
            todo = list(range(nrd[0]))
            def vm1():
                if todo:
                    if todo[0] == 7: e.I('s_waitcnt lgkmcnt(0)')
                    vm(todo.pop(0))
            if opt.fpos == 8: e.I(FLAG)
            for m in range(opt.vpre): vm1()
            if opt.fpos == 9: e.I(FLAG)
            for D in (DQ, DK):
                for r in range(2): e.I(f'v_add_f32 v{D+r}, v{D+r}, v{D+2+r}')
            if opt.fpos == 10: e.I(FLAG)
            e.I(f'v_cvt_pk_bf16_f32 v{T0}, v{DQ}, v{DQ+1}')
            e.I(f'v_cvt_pk_bf16_f32 v{T0+1}, v{DK}, v{DK+1}')
            if opt.vin & 1: vm1()
            if opt.fpos == 11: e.I(FLAG)
            e.I(f'v_mov_b32_dpp v{T0+2}, v{T0} {QP1}')
            e.I(f'v_mov_b32_dpp v{T0+3}, v{T0+1} {QP1}')
            e.I(f'v_perm_b32 v{T0}, v{T0+2}, v{T0}, v{SEL}')
            e.I(f'v_perm_b32 v{T0+1}, v{T0+3}, v{T0+1}, v{SEL}')
            if opt.vin & 2: vm1()
            if opt.fpos == 12: e.I(FLAG)
            e.I(f'v_cndmask_b32_dpp v{KEEP}, v{T0+1}, v{T0}, vcc {QP2}')
            e.I('s_mov_b64 vcc, s[36:37]')
            e.I(f'v_cndmask_b32_dpp v{KEEP+1}, v{T0}, v{T0+1}, vcc {QP2}')
            e.I(f'buffer_store_dwordx2 {vr(KEEP,2)}, v{XRA}, {WS}, s41 offen{fl}')
            TS(e, 2)
            z = [f'v_mov_b32 v{DQ+k}, 0' for k in range(8)]
            while todo:
                vm1()
                if len(z) > 7 - opt.zin and todo: e.I(z.pop(0))
            for x_ in z: e.I(x_)
            e.I(f'v_add_f32 v{DV}, v{DV}, v{DV+2}')
            e.I(f'v_add_f32 v{DV+1}, v{DV+1}, v{DV+3}')
            e.I(f'v_cvt_pk_bf16_f32 v{T0}, v{DV}, v{DV+1}')
            e.I(f'v_mov_b32 v{DV+2}, 0'); e.I(f'v_mov_b32 v{DV+3}, 0')
            e.I(f'v_mov_b32_dpp v{T0+2}, v{T0} {QP1}')
            e.I(f'v_perm_b32 v{KEEP+2}, v{T0+2}, v{T0}, v{SEL}')
            e.I(f'v_mov_b32 v{DV}, 0'); e.I(f'v_mov_b32 v{DV+1}, 0')
            e.I(f'v_mov_b32_dpp v{KEEP+3}, v{KEEP+2} {QP2}')
            e.I(f'buffer_store_dwordx2 {vr(KEEP+2,2)}, v9, {WS}, s45 offen{fl}')
            return
        if opt.vgap:
            QP1, QP2 = 'quad_perm:[1,0,3,2] row_mask:0xf bank_mask:0xf', 'quad_perm:[2,3,0,1] row_mask:0xf bank_mask:0xf'
            L = [f'v_permlane32_swap_b32 v{DQ+r}, v{DK+r}' for r in range(4)] + [f'v_add_f32 v{DQ+r}, v{DQ+r}, v{DK+r}' for r in range(4)]
            L += [f'v_cvt_pk_bf16_f32 v{T0}, v{DQ}, v{DQ+1}', f'v_cvt_pk_bf16_f32 v{T0+1}, v{DQ+2}, v{DQ+3}', '*',
                  f'v_mov_b32_dpp v{T0+2}, v{T0} {QP1}', f'v_mov_b32_dpp v{T0+3}, v{T0+1} {QP1}', f'v_perm_b32 v{T0}, v{T0+2}, v{T0}, v{SEL}', f'v_perm_b32 v{T0+1}, v{T0+3}, v{T0+1}, v{SEL}', '*',
                  f'v_cndmask_b32_dpp v{KEEP}, v{T0+1}, v{T0}, vcc {QP2}', 's_mov_b64 vcc, s[36:37]', f'v_cndmask_b32_dpp v{KEEP+1}, v{T0}, v{T0+1}, vcc {QP2}',
                  f'buffer_store_dwordx2 {vr(KEEP,2)}, v{XRA if opt.split else XA}, {WS}, s41 offen{fl}']
            m = 0
            for m in range(opt.vpre): vm(m)
            m = opt.vpre; c = 0
            for n_, x_ in enumerate(L):
                if n_ == opt.fv: e.I(f'buffer_store_dword v{ONE+opt.two}, v{ONE+2}, {WS}, s51 offen{fl}'); c += 1
                if x_ == '*':
                    if m < 7 and c >= 2: vm(m); m += 1; c = 0
                    continue
                e.I(x_); c += 1
                if c >= opt.vgap and m < 7 and n_ < 16 and L[n_ + 1] != '*': vm(m); m += 1; c = 0
            TS(e, 2)
            while m < 7: vm(m); m += 1
            for k in range(8): e.I(f'v_mov_b32 v{DQ+k}, 0')
            vpost()
            return
        QP1, QP2 = 'quad_perm:[1,0,3,2] row_mask:0xf bank_mask:0xf', 'quad_perm:[2,3,0,1] row_mask:0xf bank_mask:0xf'
        nv = opt.vpre
        for m in range(nv): vm(m)
        if opt.fpos == 10: e.I(f'buffer_store_dword v{ONE+opt.two}, v{ONE+2}, {WS}, s51 offen{fl}')
        for r in range(4): e.I(f'v_permlane32_swap_b32 v{DQ+r}, v{DK+r}')
        for r in range(4): e.I(f'v_add_f32 v{DQ+r}, v{DQ+r}, v{DK+r}')
        e.I(f'v_cvt_pk_bf16_f32 v{T0}, v{DQ}, v{DQ+1}')
        e.I(f'v_cvt_pk_bf16_f32 v{T0+1}, v{DQ+2}, v{DQ+3}')
        vm(nv)
        if opt.fpos == 11: e.I(f'buffer_store_dword v{ONE+opt.two}, v{ONE+2}, {WS}, s51 offen{fl}')
        e.I(f'v_mov_b32_dpp v{T0+2}, v{T0} {QP1}')
        e.I(f'v_mov_b32_dpp v{T0+3}, v{T0+1} {QP1}')
        e.I(f'v_perm_b32 v{T0}, v{T0+2}, v{T0}, v{SEL}')
        e.I(f'v_perm_b32 v{T0+1}, v{T0+3}, v{T0+1}, v{SEL}')
        vm(nv + 1)
        if opt.fpos == 12: e.I(f'buffer_store_dword v{ONE+opt.two}, v{ONE+2}, {WS}, s51 offen{fl}')
        e.I(f'v_cndmask_b32_dpp v{KEEP}, v{T0+1}, v{T0}, vcc {QP2}')
        e.I('s_mov_b64 vcc, s[36:37]')
        e.I(f'v_cndmask_b32_dpp v{KEEP+1}, v{T0}, v{T0+1}, vcc {QP2}')
        e.I(f'buffer_store_dwordx2 {vr(KEEP,2)}, v{XRA if opt.split else XA}, {WS}, s41 offen{fl}')
        TS(e, 2)
        for m in range(nv + 2, 7): vm(m)
        for k in range(8): e.I(f'v_mov_b32 v{DQ+k}, 0')
        vpost()
    def vpost():
        if opt.vx2:
            for g_ in post2(DV, T0 + 4, KEEP + 2, '0xf', f'buffer_store_dwordx2 {vr(KEEP+2,2)}, v9, {WS}, s45 offen{fl}'):
                for y_ in g_: e.I(y_)
            return
        QP1 = 'quad_perm:[1,0,3,2] row_mask:0xf bank_mask:0xf'
        e.I(f'v_permlane32_swap_b32 v{DV}, v{DV+2}')
        e.I(f'v_permlane32_swap_b32 v{DV+1}, v{DV+3}')
        e.I(f'v_add_f32 v{DV}, v{DV}, v{DV+2}')
        e.I(f'v_add_f32 v{DV+1}, v{DV+1}, v{DV+3}')
        e.I(f'v_cvt_pk_bf16_f32 v{T0}, v{DV}, v{DV+1}')
        e.I(f'v_mov_b32_dpp v{T0+2}, v{T0} {QP1}')
        e.I(f'v_perm_b32 v{KEEP+2}, v{T0+2}, v{T0}, v{SEL}')
        e.I(f'buffer_store_dword v{KEEP+2}, v9, {WS}, s45 offen{fl}')
        for k in range(4): e.I(f'v_mov_b32 v{DV+k}, 0')
    w_consume(0, 0, 20); w_issue(3, 0)
    w_consume(1, 1, 20); w_issue(4, 1)
    w_consume(2, 2, 20)
    w_consume(3, 0, 10)
    w_consume(4, 1, 0)
    TS(e, 0)
    wait_reg(e, T0)
    TS(e, 1)
    TSflush(e, '69')
    e.I('s_mul_i32 s62, s22, 10240')
    def xdma(seg, buf):
        e.I(f's_add_u32 s63, s62, {XN + seg*40960}')
        for m in range(10):
            e.I(f's_add_u32 m0, s62, {Q_LX + buf*40960 + m*1024}')
            e.I(f'buffer_load_dwordx4 v2, {WS}, s63 offen lds')
            e.I('s_add_u32 s63, s63, 1024')
    xdma(0, 0)
    w_issue(5, 0)
    xdma(1, 1)
    e.I('s_cmp_lg_u32 s23, 0')
    e.I('s_cbranch_scc1 L_qkvs')
    for slow in (False, True):
        fl = ' sc1' if slow else ''
        if slow: e.L('L_qkvs')
        pro, top, nox, nxt_, q0, q0r, qq, q1 = [e.lab(x_) for x_ in ('Lqp', 'Lqt', 'Lqn', 'Lqx', 'Lq0', 'Lqr', 'Lqq', 'Lq1')]
        e.I('s_mov_b32 s30, 0')
        e.I('s_mov_b32 s64, 0')
        TS(e, 0)
        e.I('s_waitcnt vmcnt(20)')
        TS(e, 1)
        e.I('s_barrier')
        xwork(False, (2, 1), False)
        e.I('s_mov_b32 s64, 1')
        TS(e, 2)
        flag_addr(1)
        e.I('s_waitcnt vmcnt(0)')
        TS(e, 3)
        set_flag(e, ONE + 2, 's51', ONE, fl)
        w_consume(5, 0, 1)
        if opt.urg: wait_count(e, T0, D_W, 80, 4)
        TS(e, 4)
        TSflush(e, '68')
        xwork(False, (2, 1, 0), False)
        e.I('s_mov_b32 s64, 2')
        e.I(f's_branch {top}')
        e.L(q0)
        e.I('s_mov_b32 s64, 0')
        xwork(False, (0,), False)
        e.I('s_barrier')
        xdma(2, 0)
        e.I('s_mov_b32 s64, 2')
        e.I('s_waitcnt vmcnt(0)')
        e.I('s_barrier')
        e.I(f's_branch {q0r}')
        e.L(top)
        TS(e, 0)
        mem_part()
        e.I('s_cmp_eq_u32 s30, 0')
        e.I(f's_cbranch_scc1 {q0}')
        e.L(q0r)
        e.I('s_cmp_ge_u32 s64, 64')
        e.I(f's_cbranch_scc1 {nox}')
        xwork(True)
        if opt.f63:
            e.I('s_cmp_lg_u32 s64, 63')
            e.I(f's_cbranch_scc1 {nxt_}')
            flag_n()
        e.I(f's_branch {nxt_}')
        e.L(nox)
        for x_ in late_list()[0::2]: e.I(x_)
        flag_n()
        e.L(nxt_)
        TS(e, 4)
        e.I('s_add_u32 s64, s64, 1')
        TS(e, 5)
        TSflush(e, 's30')
        e.I('s_add_u32 s30, s30, 1')
        e.I('s_cmp_lt_u32 s30, 64')
        e.I(f's_cbranch_scc1 {top}')
        if opt.qc:
            e.I('s_lshl_b32 s30, s21, 3')
            e.I('s_add_u32 s30, s30, s20')
            e.I(f's_add_u32 s30, s30, {opt.qc}')
            e.I('s_mov_b32 s33, 0')
            e.I('s_cmp_lt_u32 s30, 1280')
            e.I('s_cselect_b32 s38, s22, 1')
            e.I('s_cmp_eq_u32 s38, 0')
            e.I('s_cbranch_scc1 L_cmb2')
        e.I('s_endpgm')

S_RED = 98304
def role_sw(e):
    fl = ''
    XF, KXF, VXF, VMF = 16, 40, 88, 136
    S, PB, PM = 148, 160, 164
    DW, DM, VWX, VWM = 168, 184, 200, 216
    OUT = DW
    PA = XF
    CI = 224
    T0 = 228; IDX = 246; SENT = 248; ONE = 252
    AONE, AHALF = 96, 100
    W2 = 104 if opt.vx2 else 0
    PAD = 240
    e.I('s_sub_u32 s24, s21, 12')
    e.I('s_lshl_b32 s25, s24, 2')
    e.I('s_add_u32 s25, s25, s22')
    e.I('s_lshl_b32 s26, s20, 2')
    e.I('s_add_u32 s26, s26, s22')
    srd(e, 8, 66, 6144 * 1280)
    def wo_load():
        e.I(f's_mul_i32 s28, s26, {192*1280}')
        e.I('s_lshl_b32 s29, s24, 7')
        e.I('s_add_u32 s28, s28, s29')
        e.I('v_lshrrev_b32 v17, 3, v1')
        e.I('v_bfe_u32 v18, v1, 4, 2')
        e.I('v_lshlrev_b32 v18, 1, v18')
        e.I('v_and_b32 v19, 7, v1')
        e.I('v_xor_b32 v19, v19, v18')
        e.I('v_mul_u32_u24 v16, 1280, v17')
        e.I('v_lshl_add_u32 v16, v19, 4, v16')
        e.I('s_mul_i32 s46, s22, 24576')
        for n in range(24):
            e.I(f's_add_u32 m0, s46, {n*1024}')
            e.I(f'buffer_load_dwordx4 v16, s[8:11], s28 offen{WFL[opt.wnt]} lds')
            if n < 23: e.I(f's_add_u32 s28, s28, {8*1280}')
        extra = 0
        if opt.pfs == 2: sw_pf(); extra = 3 * (12 - opt.pfh)
        e.I('v_lshrrev_b32 v17, 2, v1')
        e.I('v_bfe_u32 v18, v17, 1, 2')
        e.I('v_lshlrev_b32 v17, 7, v17')
        e.I('v_and_b32 v19, 3, v1')
        e.I('v_lshl_add_u32 v17, v19, 3, v17')
        e.I('v_add_u32 v17, s46, v17')
        for ct in range(4):
            e.I(f'v_xor_b32 v19, {ct}, v18')
            e.I(f'v_lshl_add_u32 v{20+ct}, v19, 5, v17')
        for kk in range(6):
            e.I(f's_waitcnt vmcnt({20 - 4*kk + extra})')
            for ct in range(4):
                e.I(f'ds_read_b64_tr_b16 {ar((ct*6+kk)*4,2)}, v{20+ct} offset:{kk*4096}')
                e.I(f'ds_read_b64_tr_b16 {ar((ct*6+kk)*4+2,2)}, v{20+ct} offset:{kk*4096+2048}')
        e.I('s_waitcnt lgkmcnt(0)')
        if opt.vx2:
            for f_ in range(24):
                for k, k2 in enumerate((0, 2, 1, 3)): e.I(f'v_accvgpr_mov_b32 a{W2 + 4*f_ + k}, a{4*f_ + k2}')
    nocal = e.lab('Lnc')
    e.I('s_cmp_lg_u32 s25, 8')
    e.I(f's_cbranch_scc1 {nocal}')
    e.I('s_lshl_b32 s38, s20, 7')
    e.I(f's_add_u32 s38, s38, {CAL}')
    e.I('s_add_u32 s39, s38, 8192')
    e.I('s_mov_b32 s40, -1'); e.I('s_mov_b32 s41, -1'); e.I('s_mov_b32 s42, 4')
    e.I('v_mov_b32 v10, 0')
    e.I('s_mov_b64 exec, 1')
    cal = e.lab('Lcal')
    e.L(cal)
    for so, acc in (('s38', 's40'), ('s39', 's41')):
        e.I(f'buffer_store_dword v10, v10, {WS}, {so} offen sc1')
        e.I('s_waitcnt vmcnt(0)')
        e.I('s_memtime s[44:45]')
        e.I('s_waitcnt lgkmcnt(0)')
        e.I(f'buffer_load_dword v11, v10, {WS}, {so} offen sc1')
        e.I('s_waitcnt vmcnt(0)')
        e.I('s_memtime s[46:47]')
        e.I('s_waitcnt lgkmcnt(0)')
        e.I('s_sub_u32 s46, s46, s44')
        e.I(f's_min_u32 {acc}, {acc}, s46')
    e.I('s_sub_u32 s42, s42, 1')
    e.I('s_cmp_lg_u32 s42, 0')
    e.I(f's_cbranch_scc1 {cal}')
    e.I('s_cmp_lt_u32 s41, s40')
    if opt.pflip: e.I('s_cmp_ge_u32 s41, s40')
    e.I('s_cselect_b32 s38, 2, 1')
    e.I('v_mov_b32 v11, s38')
    e.I('s_lshl_b32 s38, s20, 2')
    e.I('v_mov_b32 v10, s38')
    e.I(f'global_store_dword v10, v11, s[74:75] offset:{D_PAR} sc1')
    e.I('s_mov_b64 exec, -1')
    e.L(nocal)
    def sw_pf():
        srd(e, 12, 64, 640 * 12288); srd(e, 16, 60, 640 * 12288)
        prefetch_w(e, 's25', opt.pfh, 12, 32, 's[12:15]', 's[16:19]')
    if opt.pfs == 1: sw_pf()
    def early_touch():
        jobs = []
        for sl in range(2): jobs += [(b_ + sl * SEG_QX, 12288, 96) for b_ in (KX, VX)]
        for sl in range(2): jobs += [(QX + sl * SEG_QX, 12288, 96), (XP + sl * SEG_XP, 6144, 48), (VM + sl * SEG_VM, 3072, 24)]
        touch_jobs(e, jobs, 's24', 10, 's26', 24)
    if opt.tord == 0: early_touch()
    if not opt.swlate: wo_load()
    if opt.tord == 1: early_touch()
    e.I(f's_mov_b32 s52, {SC_L2E:#x}'); e.I(f's_mov_b32 s53, {SC_L2E | 0x80000000:#x}')
    lane_ig(e, 14, 15)
    e.I('v_and_b32 v13, 7, v14')
    e.I('v_lshlrev_b32 v13, 4, v13')
    e.I('v_lshl_add_u32 v13, v15, 7, v13')
    e.I('v_bfe_u32 v5, v1, 3, 1')
    e.I('s_lshl_b32 s38, s22, 9')
    e.I(f's_add_u32 s38, s38, {S_RED}')
    e.I('v_add_u32 v6, s38, v13')
    e.I('v_lshl_add_u32 v6, v5, 14, v6')
    e.I('s_lshl_b32 s38, s22, 11')
    e.I(f's_add_u32 s38, s38, {S_RED}')
    e.I('v_add_u32 v7, s38, v13')
    e.I('v_lshl_add_u32 v7, v5, 10, v7')
    if opt.remap:
        e.I('v_bfe_u32 v8, v1, 1, 2')
        e.I('v_add_u32 v8, v8, v15')
        e.I('v_and_b32 v8, 3, v8')
        e.I('v_and_b32 v9, 7, v1')
        e.I('v_lshlrev_b32 v9, 6, v9')
        e.I('v_lshl_add_u32 v9, v8, 4, v9')
        e.I('v_sub_u32 v9, v9, v13')
        e.I('v_add_u32 v6, v6, v9')
    if opt.remap == 1:
        e.I('v_add_u32 v8, v1, v15')
        e.I('v_and_b32 v8, 3, v8')
        e.I('v_bfe_u32 v9, v1, 2, 1')
        e.I('v_lshl_add_u32 v9, v15, 1, v9')
        e.I('v_lshlrev_b32 v9, 6, v9')
        e.I('v_lshl_add_u32 v9, v8, 4, v9')
        e.I('v_sub_u32 v9, v9, v13')
        e.I('v_add_u32 v7, v7, v9')
    if opt.remap == 2:
        e.I('v_lshrrev_b32 v5, 5, v1')
        e.I('v_bfe_u32 v8, v1, 3, 2')
        e.I('v_add_u32 v8, v8, v1')
        e.I('v_and_b32 v8, 3, v8')
        e.I('v_bfe_u32 v9, v1, 2, 3')
        e.I('v_lshlrev_b32 v9, 6, v9')
        e.I('v_lshl_add_u32 v9, v8, 4, v9')
        e.I('v_add_u32 v7, s38, v9')
        e.I('v_lshl_add_u32 v7, v5, 10, v7')
        e.I('v_and_b32 v13, 31, v1')
        e.I('v_lshlrev_b32 v13, 4, v13')
    if opt.pbf: e.I('v_lshrrev_b32 v13, 1, v13')
    e.I('v_lshl_add_u32 v13, v5, 13, v13')
    e.I('v_and_b32 v4, 0x1fff, v13')
    e.I('v_lshlrev_b32 v9, 2, v5')
    e.I('v_xor_b32 v9, s20, v9')
    for m in range(4):
        e.I(f'v_xor_b32 v8, {m}, v9')
        e.I(f'v_lshl_add_u32 v{PAD+m}, v8, 9, v4')
    e.I('v_and_b32 v9, 7, v1')
    e.I('v_lshlrev_b32 v8, 4, v9')
    e.I('v_lshl_add_u32 v8, v5, 7, v8')
    e.I('v_lshl_add_u32 v8, v15, 2, v8')
    if opt.remap == 2: e.I('v_lshlrev_b32 v8, 2, v1')
    if opt.remap == 1:
        e.I('v_bfe_u32 v9, v1, 2, 1')
        e.I('v_lshl_add_u32 v9, v15, 1, v9')
        e.I('v_lshlrev_b32 v8, 4, v9')
        e.I('v_lshl_add_u32 v8, v5, 7, v8')
        e.I('v_and_b32 v9, 3, v1')
        e.I('v_lshl_add_u32 v8, v9, 2, v8')
        if opt.inl:
            e.I('v_bfe_u32 v8, v1, 2, 1')
            e.I('v_lshl_add_u32 v8, v5, 1, v8')
            e.I('v_lshl_add_u32 v8, v15, 2, v8')
            e.I('v_lshlrev_b32 v8, 4, v8')
            e.I('v_lshl_add_u32 v8, v9, 2, v8')
    e.I('s_lshl_b32 s38, s25, 8')
    e.I('v_add_u32 v8, s38, v8')
    e.I('v_lshrrev_b32 v9, 1, v1')
    if opt.split:
        e.I('v_cmp_lt_u32 vcc, 2, v9')
        e.I('v_lshlrev_b32 v9, 10, v9')
        e.I(f'v_add_u32 v10, {128 - 3072}, v9')
        e.I('v_cndmask_b32 v9, v9, v10, vcc')
    else:
        e.I('v_lshlrev_b32 v9, 10, v9')
    e.I('v_and_b32 v10, 1, v1')
    e.I(f'v_lshl_add_u32 v9, v10, {9 if opt.eord else 3}, v9')
    e.I(f'v_lshlrev_b32 v{ONE+1}, 2, v1')
    for k in range(4): e.I(f'v_mov_b32 v{SENT+k}, -1')
    e.I('s_mov_b32 s68, 0xff00ff00'); e.I('s_mov_b32 s69, 0xff00ff00')
    e.I('s_mov_b32 s70, 0x3f80'); e.I('s_mov_b32 s71, 0x3f800000')
    e.I(f'v_mov_b32 v{CI}, {NEG_BIG:#x}')
    e.I('s_mov_b32 vcc_lo, 0')
    e.I('s_mov_b32 vcc_hi, 0x00ff00ff')
    e.I(f'v_cndmask_b32 v{CI}, v{CI}, 0, vcc')
    for k in range(1, 4): e.I(f'v_mov_b32 v{CI+k}, v{CI}')
    e.I(f'v_mov_b32 v{IDX}, 0x44444444')
    e.I('v_mov_b32 v11, 0xeeeeeeee')
    if opt.inl:
        e.I('v_and_b32 v12, 2, v1')
        e.I('v_cmp_lt_u32 vcc, 0, v12')
    else: e.I('v_cmp_lt_u32 vcc, 7, v14')
    e.I(f'v_cndmask_b32 v{IDX}, v{IDX}, v11, vcc')
    e.I('v_mov_b32 v11, 0x3f803f80')
    for k in range(4): e.I(f'v_accvgpr_write_b32 a{AONE+k}, v11')
    e.I('v_mov_b32 v11, 0x3f003f00')
    for k in range(2): e.I(f'v_accvgpr_write_b32 a{AHALF+k}, v11')
    e.I('s_mul_i32 s58, s26, 6144')
    e.I(f's_add_u32 s58, s58, {XR}')
    e.I('s_mul_i32 s57, s26, 3072')
    e.I(f's_add_u32 s57, s57, {VR}')
    e.I('s_lshr_b32 s59, s25, 1')
    e.I('s_lshl_b32 s59, s59, 14')
    e.I('s_and_b32 s38, s25, 1')
    e.I('s_lshl_b32 s38, s38, 12')
    e.I('s_add_u32 s59, s59, s38')
    e.I(f's_add_u32 s59, s59, {PART}')
    e.I('s_lshl_b32 s60, s20, 9')
    e.I('s_add_u32 s60, s60, s59')
    e.I('s_mul_i32 s61, s20, 10240')
    e.I(f's_add_u32 s61, s61, {MEM}')
    e.I('s_mul_i32 s62, s26, 12288')
    e.I('s_lshl_b32 s63, s26, 6')
    e.I(f's_add_u32 s63, s63, {FLGQ}')
    e.I('s_lshl_b32 s38, s20, 2')
    e.I('v_mov_b32 v10, s38')
    wait_flags(e, 10, D_PAR, 1, T0, 12, sleep=4, dbg=True)
    e.I(f'v_readfirstlane_b32 s38, v{T0}')
    e.I('s_nop 3')
    e.I('s_and_b32 s38, s38, 2')
    e.I('s_lshl_b32 s38, s38, 12')
    e.I('s_add_u32 s59, s59, s38')
    e.I('s_lshl_b32 s38, s22, 2')
    e.I(f's_add_u32 s38, s38, {S_RED + 8192}')
    e.I('v_lshlrev_b32 v10, 4, v14')
    e.I('v_add_u32 v10, s38, v10')
    e.I('v_and_b32 v11, 7, v14')
    if opt.remap == 1:
        e.I('v_bfe_u32 v11, v1, 2, 1')
        e.I('v_lshl_add_u32 v11, v15, 1, v11')
    if opt.remap == 2: e.I('v_bfe_u32 v11, v1, 2, 3')
    e.I('v_lshlrev_b32 v11, 4, v11')
    e.I(f'v_bfe_u32 v12, v1, {5 if opt.remap == 2 else 3}, 1')
    e.I('v_lshl_add_u32 v11, v12, 3, v11')
    e.I(f'v_add_u32 v11, {S_RED + 8192}, v11')
    e.I(f'v_min_u32 v12, {12 if opt.rpos == 9 else 11}, v1')
    e.I('v_lshlrev_b32 v12, 2, v12')
    if opt.nc > 1:
        e.I('v_and_b32 v13, 31, v1')
        e.I('v_lshlrev_b32 v13, 4, v13')
        e.I('v_lshrrev_b32 v15, 5, v1')
        e.I('v_lshl_add_u32 v13, v15, 13, v13')
    if opt.nod:
        e.I('v_bfe_u32 v15, v1, 3, 1')
        e.I('v_mul_u32_u24 v14, 1016, v15')
        e.I('v_sub_u32 v7, v7, v14')
        e.I('v_lshlrev_b32 v14, 3, v15')
        e.I('v_sub_u32 v11, v11, v14')
        e.I('v_lshlrev_b32 v15, 2, v1')
        for m, r_ in enumerate((PAD, PAD + 1, PAD + 2, PAD + 3, 4, 5, 14)):
            e.I(f's_xor_b32 s38, s20, {m + 1}')
            e.I('s_lshl_b32 s38, s38, 9')
            e.I(f'v_add_u32 v{r_}, s38, v15')
    def kv_loads(dst, base, q0=0, q1=12):
        if q0 >= q1: return
        e.I(f's_and_b32 s48, s49, {RD-1}')
        e.I(f's_mul_i32 s48, s48, {SEG_QX}')
        e.I('s_add_u32 s48, s48, s62')
        e.I(f's_add_u32 s48, s48, {base + (q0//4)*4096}')
        for q in range(q0, q1):
            if q % 4 == 0 and q > q0: e.I('s_add_u32 s48, s48, 4096')
            e.I(f'buffer_load_dwordx4 {vr(dst+4*q)}, v2, {WS}, s48 offen offset:{(q%4)*1024} sc1')
    def vx_loads():
        e.I(f's_and_b32 s48, s49, {RD-1}')
        e.I(f's_mul_i32 s48, s48, {SEG_QX}')
        e.I('s_add_u32 s48, s48, s62')
        e.I(f's_add_u32 s48, s48, {VX}')
        e.I('s_add_u32 s46, s48, 4096')
        e.I('s_add_u32 s56, s48, 8192')
        for kk in range(6):
            for rt in range(2):
                q = rt * 6 + kk
                e.I(f'buffer_load_dwordx4 {vr(VXF+4*q)}, v2, {WS}, {("s48", "s46", "s56")[q//4]} offen offset:{(q%4)*1024} sc1')
    def vw_grp(gi):
        kk, rt = gi // 2, gi % 2
        for ct in range(4):
            d = vr(DW + (ct*2+rt)*4)
            e.I(f'{MFMA} {d}, {vr(VXF+4*(rt*6+kk))}, {ar((ct*6+kk)*4)}, {0 if kk == 0 else d}')
    cv = [f'v_cvt_pk_bf16_f32 v{VWX+4*ct+k}, v{DW+8*ct+2*k}, v{DW+8*ct+2*k+1}' for ct in range(4) for k in range(4)] + [f'v_mov_b32 v{DM+k}, 0' for k in range(16)]
    def vw_x(after, extra=(), nvx=0, g0=0):
        extra = list(extra); nx0 = len(extra)
        for gi in range(g0, 12):
            if gi >= 12 - nvx: e.I(f's_waitcnt vmcnt({11 - gi + nx0 - len(extra)})')
            for _ in range(-(-len(extra) // (12 - gi))): e.I(extra.pop(0))
            if after is not None: e.I(f's_waitcnt vmcnt({after + 11 - gi})')
            vw_grp(gi)
        for n_, x_ in enumerate(cv[:32 - opt.cvx]):
            if extra and n_ % 2 == 0: e.I(extra.pop(0))
            e.I(x_)
        for x_ in extra: e.I(x_)
    TS(e, 0)
    wait_reg(e, T0, opt.rsleep)
    TS(e, 1)
    if opt.swlate: wo_load()
    if opt.tord == 2: early_touch()
    TS(e, 2)
    TSflush(e, '69', 244, 245)
    if opt.touch2:
        e.I('v_lshrrev_b32 v16, 4, v1')
        e.I(f's_mov_b32 s38, {PART_SLOT}')
        e.I('v_mul_lo_u32 v16, s38, v16')
        e.I('v_bfe_u32 v17, v1, 1, 3')
        e.I('v_lshl_add_u32 v16, v17, 9, v16')
        e.I('v_and_b32 v17, 1, v1')
        e.I('v_lshl_add_u32 v16, v17, 7, v16')
        if opt.ptouch == 2: e.I('s_mov_b32 exec_lo, 0')
        if opt.ptouch: e.I(f'buffer_load_dword v17, v16, {WS}, s59 offen sc1{" nt" if opt.ptouch == 3 else ""}')
        if opt.nc > 1: e.I(f'buffer_load_dword v17, v16, {WS}, s59 offen offset:256 sc1')
        e.I('s_mov_b64 exec, -1')
    wait_flags(e, ONE + 1, 's63', 0xfff, T0, 11, sleep=2)
    if opt.dstamp:
        for k in range(90, 94): e.I(f's_mov_b32 s{k}, 0')
    e.I('s_mov_b32 s49, 0')
    vx_loads()
    kv_loads(KXF, KX)
    if opt.split and opt.xg1 + opt.xg2:
        e.I('s_waitcnt vmcnt(12)')
        for gi in range(opt.pmf + opt.pmf2): vw_grp(gi)
    else: vw_x(12)
    e.I('s_cmp_lg_u32 s23, 0')
    e.I('s_cbranch_scc1 L_sws')
    for slow in (False, True):
        fl = ' sc1' if slow else ''
        if slow: e.L('L_sws')
        top = e.lab('Lwt')
        e.I('s_mov_b32 s30, 0')
        e.L(top)
        TS(e, 0)
        if opt.pdiag: e.I('s_mov_b32 s94, 0')
        e.I('s_and_b32 s38, s30, 3')
        e.I('s_xor_b32 s39, s38, 2')
        e.I(f's_mul_i32 s40, s38, {XR_SLOT}')
        e.I('s_add_u32 s40, s40, s58')
        e.I('s_add_u32 s54, s40, 4096')
        e.I(f's_mul_i32 s55, s38, {VR_SLOT}')
        e.I('s_add_u32 s55, s55, s57')
        if opt.fresh:
            e.I(f's_mul_i32 s41, s30, {PART_SLOT}')
            e.I(f's_add_u32 s41, s41, {SCRATCH + 0x400000 - PART + 0x200000}')
        else:
            e.I(f's_mul_i32 s41, s38, {PART_SLOT}')
        e.I('s_add_u32 s42, s41, s60')
        e.I('s_add_u32 s41, s41, s59')
        if opt.fresh:
            e.I('s_lshr_b32 s47, s41, 8')
            e.I('s_not_b32 s47, s47')
            e.I('s_and_b32 s47, s47, 8192')
            e.I('s_xor_b32 s41, s41, s47')
        e.I('s_xor_b32 s47, s41, 8192')
        e.I(f's_mul_i32 s43, s39, {PART_SLOT}')
        e.I('s_add_u32 s43, s43, s60')
        e.I('s_add_u32 s49, s30, 1')
        e.I('s_and_b32 s44, s49, 3')
        e.I('s_xor_b32 s45, s44, 2')
        e.I(f's_mul_i32 s44, s44, {MEM_SLOT}')
        e.I('s_add_u32 s44, s44, s61')
        e.I(f's_mul_i32 s45, s45, {MEM_SLOT}')
        e.I('s_add_u32 s45, s45, s61')
        e.I(f's_and_b32 s46, s49, {RD-1}')
        e.I(f's_mul_i32 s46, s46, {SEG_QX}')
        e.I('s_add_u32 s46, s46, s62')
        e.I(f's_add_u32 s65, s46, {KX}')
        e.I(f's_add_u32 s46, s46, {VX}')
        e.I('s_add_u32 s56, s46, 4096')
        e.I('s_add_u32 s64, s46, 8192')
        e.I('s_add_u32 s66, s65, 4096')
        e.I('s_add_u32 s67, s65, 8192')
        e.I('s_lshl_b32 s50, s49, 11')
        e.I('s_add_u32 s50, s50, s63')
        pl, pd, fr, hl, hd = e.lab('Lxp'), e.lab('Lxd'), e.lab('Lxf'), e.lab('Lhp'), e.lab('Lhd')
        def probe(lp, dn, va, so, bad):
            e.I(f's_mov_b64 exec, {0x1fff if opt.rpos == 9 and bad == 0 else 0xfff:#x}')
            e.I(f'buffer_load_dword v{T0}, v{va}, {WS}, {so} offen sc1')
            e.L(lp)
            for a_, b_ in ((T0, T0 + 1), (T0 + 1, T0)):
                e.I(f'buffer_load_dword v{b_}, v{va}, {WS}, {so} offen sc1')
                e.I('s_waitcnt vmcnt(1)')
                e.I(f'v_cmp_gt_u32 vcc, 2, v{a_}' if opt.two and bad == 0 else f'v_cmp_eq_u32 vcc, {bad}, v{a_}')
                e.I(f's_cbranch_vccz {dn}')
            e.I('s_sub_u32 s31, s31, 1')
            e.I(f's_cbranch_scc0 {lp}')
            e.I('s_mov_b32 s31, 2')
            e.I('s_branch L_fail')
        e.I(f's_mov_b32 s31, {TMO}')
        ROR8 = 'row_ror:8 row_mask:0xf bank_mask:0xf'
        ROR8L, ROR8H = 'row_ror:8 row_mask:0xf bank_mask:0x3', 'row_ror:8 row_mask:0xf bank_mask:0xc'
        if opt.split:
            XQ, XK = XF, XF + 12
            A1a, A2a, A1b, A2b, MM = S + 4, S, S + 8, T0 + 4, CI
            def q_loads():
                for j in range(3): e.I(f'buffer_load_dwordx4 {vr(XQ+4*j)}, v2, {WS}, s40 offen offset:{j*1024} sc1')
            def k_loads():
                e.I(f'buffer_load_dwordx4 {vr(XK)}, v2, {WS}, s40 offen offset:3072 sc1')
                for j in range(1, 3): e.I(f'buffer_load_dwordx4 {vr(XK+4*j)}, v2, {WS}, s54 offen offset:{(j-1)*1024} sc1')
            def vm_loads():
                for q in range(3): e.I(f'buffer_load_dwordx4 {vr(VMF+4*q)}, v2, {WS}, s55 offen offset:{q*1024} sc1')
            def chk(r, j):
                if opt.thin1:
                    if j == 2: e.I(f'v_max3_u32 v{T0+2}, v{r-8}, v{r-4}, v{r}')
                else: e.I(f'v_max_u32 v{T0+2}, v{r}, v{r+2}' if j == 0 else f'v_max3_u32 v{T0+2}, v{T0+2}, v{r}, v{r+2}')
            def mm(j): e.I(f'{MFMA} {vr(MM)}, {vr(XK+4*j)}, {vr(XQ+4*j)}, {0 if j == 0 else vr(MM)}')
            def gap(n):
                while n > 0: e.I(f's_nop {min(n, 16) - 1}'); n -= 16
            lq, qf_, qd_, kf_, kd_, kok = [e.lab(x_) for x_ in ('Lsq', 'Lsqf', 'Lsqd', 'Lskf', 'Lskd', 'Lsko')]
            probe(hl, hd, 12, 's50', 0)
            e.L(qf_)
            if opt.dstamp: e.I('s_add_u32 s90, s90, 1')
            e.I('s_sub_u32 s31, s31, 1')
            e.I('s_cbranch_scc1 L_fail')
            probe(pl, qd_, 9, 's40', -1)
            e.L(qd_)
            e.I('s_mov_b64 exec, -1')
            q_loads()
            e.I('s_waitcnt vmcnt(0)')
            e.I(f's_branch {lq}')
            e.L(kf_)
            if opt.dstamp: e.I('s_add_u32 s91, s91, 1')
            e.I('s_sub_u32 s31, s31, 1')
            e.I('s_cbranch_scc1 L_fail')
            e.I('s_add_u32 s48, s40, 3072')
            if opt.inl:
                e.I(f'v_and_b32 v{T0+8}, 128, v9')
                e.I(f'v_lshrrev_b32 v{T0+9}, 2, v{T0+8}')
                e.I(f'v_sub_u32 v{T0+8}, v9, v{T0+8}')
                e.I(f'v_add_u32 v{T0+8}, v{T0+8}, v{T0+9}')
            probe(e.lab('Lskp'), kd_, T0 + 8 if opt.inl else 9, 's48', -1)
            e.L(kd_)
            e.I('s_mov_b64 exec, -1')
            k_loads()
            e.I('s_waitcnt vmcnt(0)')
            for j in range(3): mm(j); chk(XK + 4*j, j)
            e.I(f'v_cmp_eq_u32 vcc, -1, v{T0+2}')
            e.I(f's_cbranch_vccnz {kf_}')
            e.I('s_nop 7')
            e.I(f's_branch {kok}')
            e.L(hd)
            e.I('s_mov_b64 exec, -1')
            TS(e, 1)
            g0_ = opt.pmf + opt.pmf2
            q_loads()
            for gi in range(g0_, g0_ + opt.xg1): vw_grp(gi)
            gap(opt.g1)
            k_loads()
            for gi in range(g0_ + opt.xg1, g0_ + opt.xg1 + opt.xg2): vw_grp(gi)
            gap(opt.g2)
            for x_ in cv[32 - opt.cvx:]: e.I(x_)
            vm_loads()
            if opt.xg1 + opt.xg2: vw_x(None, (), 0, g0_ + opt.xg1 + opt.xg2)
            e.L(lq)
            t = T0 + 2
            if opt.sord:
                def qm(d, kf, j): e.I(f'{MFMA} {vr(d)}, {vr(KXF+4*kf)}, {vr(XQ+4*j)}, {0 if j == 0 else vr(d)}')
                mL = [f'v_add_f32_dpp v{S+4+r}, v{A2a+r}, v{A1a+r} {ROR8L}' for r in range(4)]
                mH = [f'v_add_f32_dpp v{S+4+r}, v{A1b+r}, v{A2b+r} {ROR8H}' for r in range(4)]
                for j in range(3):
                    e.I(f's_waitcnt vmcnt({8-j})')
                    qm(A1a, j, j); chk(XQ + 4*j, j); qm(A2a, j + 3, j)
                e.I(f'v_cmp_eq_u32 vcc, -1, v{T0+2}')
                qm(A1b, 6, 0)
                e.I(f's_cbranch_vccnz {qf_}')
                qm(A2b, 9, 0); qm(A1b, 7, 1)
                e.I(mL[0]); e.I(mL[1])
                qm(A2b, 10, 1)
                e.I(mL[2]); e.I(mL[3])
                qm(A1b, 8, 2); qm(A2b, 11, 2)
                for j in range(3):
                    e.I(f's_waitcnt vmcnt({5-j})')
                    mm(j)
                    if j < 2: chk(XK + 4*j, j)
                    if j == 1: e.I(mH[0])
                chk(XK + 8, 2)
                e.I(f'v_cmp_eq_u32 vcc, -1, v{T0+2}')
                for x_ in mH[1:]: e.I(x_)
                e.I(f'v_max3_f32 v{t+1}, v{S+4}, v{S+5}, v{S+6}')
                e.I(f's_cbranch_vccnz {kf_}')
            else:
                for j in range(3):
                    x = vr(XQ + 4*j)
                    e.I(f's_waitcnt vmcnt({8-j})')
                    if opt.t9 == j: TS(e, 9)
                    for n_, (d, kf) in enumerate(((A1a, j), (A2a, j + 3), (A1b, 6 + j), (A2b, 9 + j))):
                        e.I(f'{MFMA} {vr(d)}, {vr(KXF+4*kf)}, {x}, {0 if j == 0 else vr(d)}')
                        if n_ == 0: chk(XQ + 4*j, j)
                        if n_ == 1 and j == 2: e.I(f'v_cmp_eq_u32 vcc, -1, v{T0+2}')
                e.I(f's_cbranch_vccnz {qf_}')
                t = T0 + 2
                for j in range(3):
                    e.I(f's_waitcnt vmcnt({5-j})')
                    if opt.t9 == 3 + j: TS(e, 9)
                    mm(j); chk(XK + 4*j, j)
                    if j == 1:
                        for r in range(4): e.I(f'v_add_f32_dpp v{S+4+r}, v{A2a+r}, v{A1a+r} {ROR8L}')
                e.I(f'v_cmp_eq_u32 vcc, -1, v{T0+2}')
                for r in range(4): e.I(f'v_add_f32_dpp v{S+4+r}, v{A1b+r}, v{A2b+r} {ROR8H}')
                e.I(f'v_max3_f32 v{t+1}, v{S+4}, v{S+5}, v{S+6}')
                e.I(f's_cbranch_vccnz {kf_}')
            e.L(kok)
            TS(e, 2)
        if not opt.split:
            probe(hl, hd, 12, 's50', 0)
            xp = e.lab('Lxq')
            e.L(xp)
            probe(pl, pd, 9, 's40', -1)
            e.L(hd)
            if opt.hdelay: e.I(f's_nop {opt.hdelay - 1}')
            if not opt.heads: e.I(f's_branch {xp}')
            e.L(pd)
            e.I('s_mov_b64 exec, -1')
            TS(e, 1)
            if opt.pdiag: e.I('s_add_u32 s94, s94, 1')
            e.L(fr)
            for p in range(6):
                e.I(f'buffer_load_dwordx4 {vr(XF+4*p)}, v2, {WS}, {"s40" if p < 4 else "s54"} offen offset:{(p%4)*1024} sc1')
            FQ = CI + 23
            def vm_loads():
                for q in range(3):
                    e.I(f'buffer_load_dwordx4 {vr(VMF+4*q)}, v2, {WS}, s55 offen offset:{q*1024} sc1')
            vp = opt.vmpos
            bulk0 = [f'buffer_load_dwordx4 {vr(VXF+4*q)}, v2, {WS}, {("s46", "s56", "s64")[q//4]} offen offset:{(q%4)*1024} sc1' for q in (0, 6, 1, 7, 2, 8)]
            nvm = 0
            if vp == 0: vm_loads(); nvm = 3
            for p in range(6):
                x = vr(XF + 4*p)
                e.I(f's_waitcnt vmcnt({5-p+nvm})')
                e.I(f'{MFMA} {vr(S+4)}, {vr(KXF+4*p)}, {x}, {0 if p == 0 else vr(S+4)}')
                e.I(f'{MFMA} {vr(S+8)}, {vr(KXF+24+4*p)}, {x}, {0 if p == 0 else vr(S+8)}')
                e.I(f'{MFMA} {vr(S)}, {x}, {x}, {vr(CI) if p == 0 else vr(S)}')
                if vp == p + 1: vm_loads(); nvm = 3
                if p >= 6 - opt.kx and p >= vp: e.I(bulk0[p - (6 - opt.kx)]); nvm += 1
                r = XF + 4 * p
                if opt.thin:
                    e.I(f'v_max_u32 v{T0+2}, v{r}, v{r+2}' if p == 0 else f'v_max3_u32 v{T0+2}, v{T0+2}, v{r}, v{r+2}')
                elif p == 0:
                    e.I(f'v_max3_u32 v{T0+2}, v{r}, v{r+1}, v{r+2}')
                    e.I(f'v_max_u32 v{T0+2}, v{T0+2}, v{r+3}')
                else:
                    e.I(f'v_max3_u32 v{T0+2}, v{T0+2}, v{r}, v{r+1}')
                    e.I(f'v_max3_u32 v{T0+2}, v{T0+2}, v{r+2}, v{r+3}')
            e.I(f'v_cmp_eq_u32 vcc, -1, v{T0+2}')
            ok = e.lab('Lxo')
            e.I(f's_cbranch_vccz {ok}')
            e.I('s_sub_u32 s31, s31, 1')
            e.I('s_nop 7')
            if opt.dstamp: e.I('s_mov_b32 s89, s90'); e.I('s_addk_i32 s89, 1'); e.I('s_mov_b32 s90, s89'); e.I('s_cmp_eq_u32 s31, 0')
            e.I(f's_cbranch_scc0 {xp}')
            e.I('s_mov_b32 s31, 2')
            e.I('s_branch L_fail')
            e.L(ok)
            TS(e, 2)
            vl, vd = e.lab('Lvp'), e.lab('Lvd')
            vl2 = e.lab('Lv2')
            if opt.kx: e.I(f's_waitcnt vmcnt({opt.kx})'); e.I(f's_branch {vl2}')
            e.L(vl)
            e.I('s_waitcnt vmcnt(0)')
            e.L(vl2)
            check_sent(e, [r_ for r_ in range(VMF, VMF + 12) if not opt.thin or r_ % 4 in ((0, 2) if opt.vx2 else (0, 1))], T0 + 2, T0 + 3)
            e.I(f's_cbranch_vccz {vd}')
            if opt.dstamp: e.I('s_add_u32 s92, s92, 1')
            vm_loads()
            e.I('s_sub_u32 s31, s31, 1')
            e.I(f's_cbranch_scc0 {vl}')
            e.I('s_mov_b32 s31, 3')
            e.I('s_branch L_fail')
            e.L(vd)
            TS(e, 3)
        PW = 2 if opt.pbf and opt.nc == 1 else 4
        if opt.rpos == 0: e.I(f'buffer_store_dwordx{PW} {vr(SENT,PW)}, v13, {WS}, s43 offen sc1')
        sm = [f'{SMF} {vr(DM+4*ct)}, {vr(VMF+4*m)}, {ar(W2+(ct*6+2*m)*4,8)}, v{IDX}' for m in range(3) for ct in range(4)]
        t = T0 + 2
        V = []
        for r in range(4): V.append(f'v_mov_b32_dpp v{S+4+r}, v{S+8+r} row_shr:8 row_mask:0xf bank_mask:0xc')
        V += [f'v_max3_f32 v{t}, v{S}, v{S+1}, v{S+2}', f'v_max3_f32 v{t+1}, v{S+3}, v{S+4}, v{S+5}', f'v_max3_f32 v{t}, v{t}, v{S+6}, v{S+7}', f'v_max_f32 v{t}, v{t}, v{t+1}',
              '*', '*', f'v_max_f32_dpp v{t}, v{t}, v{t} {ROR8}', f'v_mov_b32 v{t+1}, v{t}', '*', '*', f'v_permlane16_swap_b32 v{t}, v{t+1}', f'v_max_f32 v{t}, v{t}, v{t+1}',
              f'v_mov_b32 v{t+1}, v{t}', '*', '*', f'v_permlane32_swap_b32 v{t}, v{t+1}', f'v_max_f32 v{t}, v{t}, v{t+1}', f'v_mul_f32 v{t}, s53, v{t}']
        order = [4, 5, 6, 7, 0, 1, 2, 3]
        for i in order: V.append(f'v_fma_f32 v{S+i}, v{S+i}, s52, v{t}')
        for n_, i in enumerate(order):
            V.append(f'v_exp_f32 v{S+i}, v{S+i}')
        if opt.split:
            V = ['V8', f'v_permlane32_swap_b32 v{MM}, v{MM+2}', f'v_permlane32_swap_b32 v{MM+1}, v{MM+3}', 'V9', '*', '*',
                 f'v_add_f32_dpp v{S}, v{MM+2}, v{MM} {ROR8L}', f'v_add_f32_dpp v{S}, v{MM+1}, v{MM+3} {ROR8H}', f'v_max3_f32 v{t}, v{t+1}, v{S+7}, v{S}', 'V0',
                 '*', '*', f'v_max_f32_dpp v{t}, v{t}, v{t} {ROR8}', f'v_mov_b32 v{t+1}, v{t}', 'V1', '*', '*', f'v_permlane16_swap_b32 v{t}, v{t+1}', f'v_max_f32 v{t}, v{t}, v{t+1}',
                 f'v_mov_b32 v{t+1}, v{t}', 'V2', '*', '*', f'v_permlane32_swap_b32 v{t}, v{t+1}', f'v_max_f32 v{t}, v{t}, v{t+1}', f'v_mul_f32 v{t}, s53, v{t}', 'V3']
            if opt.inl: V = ['V8', 'V9', f'v_add_f32_dpp v{S}, v{MM+2}, v{MM} {ROR8L}', f'v_add_f32_dpp v{S}, v{MM+1}, v{MM+3} {ROR8H}'] + V[8:]
            order = [4, 5, 6, 7, 0]
            for i in order: V.append(f'v_fma_f32 v{S+i}, v{S+i}, s52, v{t}')
            V.append('V4')
            for i in order: V.append(f'v_exp_f32 v{S+i}, v{S+i}')
            if opt.pvmix:
                V += [f'v_cvt_pk_bf16_f32 v{PB}, v{S+4}, v{S+5}', f'v_cvt_pk_bf16_f32 v{PB+1}, v{S+6}, v{S+7}', f'v_mov_b32_dpp v{t}, v{S} {ROR8}',
                      f'v_mov_b32_dpp v{PB+2}, v{PB} {ROR8}', f'v_mov_b32_dpp v{PB+3}, v{PB+1} {ROR8}']
            else: V += [f'v_cvt_pk_bf16_f32 v{PB}, v{S+4}, v{S+5}', f'v_cvt_pk_bf16_f32 v{PB+1}, v{S+6}, v{S+7}', f'v_mov_b32_dpp v{t}, v{S} {ROR8}',
                  f'v_mov_b32_dpp v{PB+2}, v{PB} {ROR8}', f'v_mov_b32_dpp v{PB+3}, v{PB+1} {ROR8}', f'v_cvt_pk_bf16_f32 v{PM}, v{S}, v{t}', f'v_mov_b32 v{PM+1}, v{PM}' if not opt.inl else f'v_cvt_pk_bf16_f32 v{PM+1}, v{S}, v{t}']
        bulk = [f'buffer_load_dwordx4 {vr(VXF+4*q)}, v2, {WS}, {("s46", "s56", "s64")[q//4]} offen offset:{(q%4)*1024} sc1' for q in (0, 6, 1, 7, 2, 8, 3, 9, 4, 10, 5, 11)]
        bulk += [f'buffer_load_dwordx4 {vr(KXF+4*q)}, v2, {WS}, {("s65", "s66", "s67")[q//4]} offen offset:{(q%4)*1024} sc1' for q in range(12)]
        kin = bulk[opt.kx:opt.kin]; kp = bulk[opt.kin:opt.kin + opt.kp]; kc = bulk[opt.kin + opt.kp:]
        if opt.nobulk & 1: kin = []
        if opt.nobulk & 2: kp = []
        if opt.nobulk & 4: kc = []
        lim = [opt.n1]
        def ld():
            if kin and lim[0] > 0: e.I(kin.pop(0)); lim[0] -= 1
        nk0 = len(kin)
        def vcheck():
            vl, vl2, vd = e.lab('Lvp'), e.lab('Lv2'), e.lab('Lvd')
            e.I(f's_waitcnt vmcnt({nk0 - len(kin)})')
            e.L(vl2)
            check_sent(e, [r_ for r_ in range(VMF, VMF + 12) if not opt.thin or r_ % 4 in ((0,) if opt.thin1 else (0, 2) if opt.vx2 else (0, 1))], T0, T0 + 1)
            e.I(f's_cbranch_vccz {vd}')
            if opt.dstamp: e.I('s_add_u32 s92, s92, 1')
            vm_loads()
            e.I('s_waitcnt vmcnt(0)')
            e.I('s_sub_u32 s31, s31, 1')
            e.I(f's_cbranch_scc0 {vl2}')
            e.I('s_mov_b32 s31, 3')
            e.I('s_branch L_fail')
            e.L(vd)
            TS(e, 3)
            for x_ in sm[:opt.smpre]: e.I(x_)
            return sm[opt.smpre:]
        if opt.split: rest = []
        else:
            for x_ in sm[:opt.smpre]: e.I(x_)
            rest = sm[opt.smpre:]
        cost = 0; prev = None; since = 0
        for x_ in V:
            if x_[0] == 'V':
                if x_ == f'V{opt.vpos}': rest = vcheck(); cost = 0
            elif x_ == '*':
                if prev == '*' or cost == 0 or not rest: ld(); since = 0
                else: e.I(rest.pop(0)); cost = 0
            else:
                e.I(x_); c_ = 2 if 'v_exp' in x_ else 1; cost += c_; since += c_
                if cost >= opt.smgap and rest: e.I(rest.pop(0)); cost = 0
                elif since >= opt.ldgap: ld(); since = 0
            prev = x_
        late_sm = rest if opt.split else []
        if not opt.split:
            for x_ in rest: e.I(x_)
            e.I(f'v_cvt_pk_bf16_f32 v{PB}, v{S+4}, v{S+5}')
            e.I(f'v_cvt_pk_bf16_f32 v{PB+1}, v{S+6}, v{S+7}')
            e.I(f'v_cvt_pk_bf16_f32 v{PM}, v{S}, v{S+1}')
            e.I(f'v_cvt_pk_bf16_f32 v{PM+1}, v{S+2}, v{S+3}')
            e.I(f'v_mov_b32_dpp v{PB+2}, v{PB} {ROR8}')
            e.I(f'v_mov_b32_dpp v{PB+3}, v{PB+1} {ROR8}')
            e.I(f'v_mov_b32 v{t}, v{PM}')
            e.I(f'v_mov_b32 v{t+1}, v{PM+1}')
        for x_ in late_sm: e.I(x_)
        if opt.tpos == 0: TS(e, 4)
        def cvm(ct):
            e.I(f'v_cvt_pk_bf16_f32 v{VWM+2*ct}, v{DM+4*ct}, v{DM+4*ct+1}')
            e.I(f'v_cvt_pk_bf16_f32 v{VWM+2*ct+1}, v{DM+4*ct+2}, v{DM+4*ct+3}')
        lim[0] = opt.n2
        SUM = S + 8 if opt.pvmix else S
        e.I(f'{MFMA} {vr(OUT)}, {vr(VWX)}, {vr(PB)}, 0')
        if opt.inl:
            if opt.pvmix:
                for k in range(2): e.I(f'v_cvt_pk_bf16_f32 v{PM+k}, v{S}, v{t}')
        elif opt.split: e.I(f'v_permlane32_swap_b32 v{PM}, v{PM+1}')
        else:
            e.I(f'v_permlane32_swap_b32 v{t}, v{PM}')
            e.I(f'v_permlane32_swap_b32 v{t+1}, v{PM+1}')
        e.I(f'{MFMA} {vr(SUM)}, {ar(AONE)}, {vr(PB)}, 0')
        cvm(0)
        if opt.n2 > 7: ld()
        e.I(f'{MFMA} {vr(OUT+4)}, {vr(VWX+4)}, {vr(PB)}, 0')
        cvm(1)
        if opt.n2 > 6: ld()
        e.I(f'{MFMA} {vr(OUT+8)}, {vr(VWX+8)}, {vr(PB)}, 0')
        cvm(2)
        if opt.n2 > 5: ld()
        e.I(f'{MFMA} {vr(OUT+12)}, {vr(VWX+12)}, {vr(PB)}, 0')
        cvm(3)
        if opt.n2 > 4: ld()
        e.I(f'{MFMA16} {vr(OUT)}, {vr(VWM,2)}, {vr(PM,2)}, {vr(OUT)}')
        ld()
        e.I(f'{MFMA16} {vr(SUM)}, {ar(AHALF,2)}, {vr(PM,2)}, {vr(SUM)}')
        ld()
        for ct in range(1, 4):
            e.I(f'{MFMA16} {vr(OUT+4*ct)}, {vr(VWM+2*ct,2)}, {vr(PM,2)}, {vr(OUT+4*ct)}')
            if ct < 3: ld()
        lim[0] = len(kin) - opt.n3
        while lim[0] > 0: ld()
        if opt.tpos == 1: TS(e, 4)
        e.I('s_not_b64 exec, s[68:69]')
        e.I(f'ds_write_b128 v6, {vr(OUT)}')
        e.I(f'v_rcp_f32 v{t}, v{SUM}')
        e.I(f'ds_write_b128 v6, {vr(OUT+4)} offset:2048')
        e.I(f'ds_write_b32 v10, v{t}')
        e.I(f'ds_write_b128 v6, {vr(OUT+8)} offset:4096')
        e.I(f'ds_write_b128 v6, {vr(OUT+12)} offset:6144')
        e.I('s_mov_b64 exec, -1')
        lim[0] = 99
        while kin: ld()
        e.I('s_waitcnt lgkmcnt(0)')
        if opt.tpos == 2: TS(e, 4)
        e.I('s_barrier')
        if opt.tpos == 3: TS(e, 4)
        if opt.nod:
            F = T0 + 4
            e.I(f'ds_read_b128 {vr(F)}, v11')
            e.I(f'ds_read2_b64 {vr(S)}, v7 offset0:0 offset1:64')
            e.I(f'ds_read2_b64 {vr(S+4)}, v7 offset0:128 offset1:192')
            e.I('s_add_u32 s48, s42, 8192')
            if opt.nc > 1 and opt.sa < 0:
                for m, r_ in enumerate((PAD, PAD + 1, PAD + 2, PAD + 3, 4, 5, 14)): e.I(f'buffer_load_dword v{PA+m}, v{r_}, {WS}, s41 offen sc1')
            e.I('s_waitcnt lgkmcnt(1)')
            e.I(f'v_pk_mul_f32 {vr(S,2)}, {vr(S,2)}, {vr(F,2)} op_sel_hi:[1,0]')
            e.I(f'v_pk_fma_f32 {vr(S,2)}, {vr(S+2,2)}, {vr(F,2)}, {vr(S,2)} op_sel:[0,1,0]')
            e.I('s_waitcnt lgkmcnt(0)')
            e.I(f'v_pk_fma_f32 {vr(S,2)}, {vr(S+4,2)}, {vr(F+2,2)}, {vr(S,2)} op_sel_hi:[1,0,1]')
            e.I(f'v_pk_fma_f32 {vr(S,2)}, {vr(S+6,2)}, {vr(F+2,2)}, {vr(S,2)} op_sel:[0,1,0]')
            e.I(f'v_cvt_pk_bf16_f32 v{S+4}, v{S}, v{S+1}')
            e.I(f'buffer_store_dword v{S+4}, v15, {WS}, s42 offen sc1')
            e.I(f'buffer_store_dword v{S+4}, v15, {WS}, s48 offen sc1')
            if opt.nc > 1:
                e.I(f'buffer_store_dword v{S+4}, v15, {WS}, s42 offen offset:256 sc1')
                e.I(f'buffer_store_dword v{S+4}, v15, {WS}, s48 offen offset:256 sc1')
        else:
            e.I(f'ds_read_b64 {vr(t,2)}, v11')
            e.I(f'ds_read_b128 {vr(S)}, v7')
            e.I(f'ds_read_b128 {vr(S+4)}, v7 offset:512')
            e.I('s_waitcnt lgkmcnt(1)')
            for k in range(4): e.I(f'v_mul_f32 v{S+k}, v{S+k}, v{t}')
            e.I('s_waitcnt lgkmcnt(0)')
            for k in range(4): e.I(f'v_fmac_f32 v{S+k}, v{S+4+k}, v{t+1}')
            if opt.remap == 2:
                e.I(f'v_permlane32_swap_b32 v{S}, v{S+2}')
                e.I(f'v_permlane32_swap_b32 v{S+1}, v{S+3}')
                e.I(f'v_add_f32 v{S}, v{S}, v{S+2}')
                e.I(f'v_add_f32 v{S+1}, v{S+1}, v{S+3}')
                e.I(f'v_cvt_pk_bf16_f32 v{S+4}, v{S}, v{S+1}')
                e.I(f'v_cvt_pk_bf16_f32 v{S+5}, v{S}, v{S+1}')
                e.I(f'v_permlane32_swap_b32 v{S+4}, v{S+5}')
                e.I(f'buffer_store_dwordx2 {vr(S+4,2)}, v13, {WS}, s42 offen sc1')
            else:
                for k in range(4): e.I(f'v_add_f32_dpp v{S+k}, v{S+k}, v{S+k} {ROR8}')
                if opt.pbf:
                    e.I(f'v_cvt_pk_bf16_f32 v{S+4}, v{S}, v{S+1}')
                    e.I(f'v_cvt_pk_bf16_f32 v{S+5}, v{S+2}, v{S+3}')
                    e.I(f'buffer_store_dwordx2 {vr(S+4,2)}, v13, {WS}, s42 offen sc1')
                else:
                    e.I(f'buffer_store_dwordx4 {vr(S)}, v13, {WS}, s42 offen sc1')
        TS(e, 5)
        if opt.rpos == 2: e.I(f'buffer_store_dwordx{PW} {vr(SENT,PW)}, v13, {WS}, s43 offen sc1')
        if not opt.nod:
            e.I(f'v_mov_b32 v{PA}, 0'); e.I(f'v_mov_b32 v{PA+1}, 0')
            if opt.remap == 2:
                e.I('s_mov_b32 vcc_lo, 0'); e.I('s_mov_b32 vcc_hi, -1')
                for k in range(2): e.I(f'v_cndmask_b32 v{S+2+k}, 0, v{S+k}, vcc')
                for k in range(2): e.I(f'v_cndmask_b32_e64 v{S+k}, v{S+k}, 0, vcc')
            else:
                for k in range(4): e.I(f'v_cndmask_b32 v{S+k}, v{S+k}, 0, s[68:69]')
        if opt.nc > 1:
            e.I(f's_waitcnt vmcnt({5 + (7 if opt.sa < 0 else 0)})')
            for gi in range(max(0, opt.sa)): vw_grp(gi)
        elif opt.pmf:
            e.I(f's_waitcnt vmcnt({1 + (opt.rpos == 2) + opt.nod})')
            for gi in range(opt.pmf): vw_grp(gi)
        if opt.pdelay: e.I(f's_sleep {opt.pdelay}')
        PADS = [PAD, PAD + 1, PAD + 2, PAD + 3, 4, 5, 14]
        def shot(PA=PA, off=0, seed=True):
            if opt.nod:
                for m in range(7): e.I(f'buffer_load_dword v{PA+m}, v{PADS[m]}, {WS}, s41 offen offset:{off} sc1')
                if seed:
                    for k in range(2): e.I(f'v_mov_b32 v{T0+4+k}, v{S+k}')
                return
            e.I('s_mov_b32 exec_lo, 0' if opt.remap == 2 else 's_mov_b64 exec, s[68:69]')
            e.I(f'buffer_load_dwordx2 {vr(PA,2)}, v{PAD}, {WS}, s41 offen sc1')
            e.I('s_mov_b64 exec, -1')
            for m in range(1, 4): e.I(f'buffer_load_dwordx2 {vr(PA+2*m,2)}, v{PAD+m}, {WS}, s41 offen sc1')
            for k in range(4): e.I(f'v_mov_b32 v{T0+8+k}, v{S+k}')
        ql, qd, qf = e.lab('Lpp'), e.lab('Lpd'), e.lab('Lpf')
        def acc(behind, PA=PA):
            if opt.nod:
                for m in range(7):
                    if m in (0, 3, 5, 6): e.I(f's_waitcnt vmcnt({(4, 0, 0, 2, 0, 1, 0)[m] + behind})')
                    if m == 0: e.I(f'v_max3_u32 v{T0}, v{PA}, v{PA+1}, v{PA+2}')
                    if m == 3: e.I(f'v_max3_u32 v{T0}, v{T0}, v{PA+3}, v{PA+4}')
                    if m == 6:
                        e.I(f'v_max3_u32 v{T0}, v{T0}, v{PA+5}, v{PA+6}')
                        e.I(f'v_cmp_eq_u32 vcc, -1, v{T0}')
                    for k in range(2): e.I(f'v_dot2c_f32_bf16 v{T0+4+k}, {("s70", "s71")[k]}, v{PA+m}')
                e.I(f's_cbranch_vccz {qd}')
                return
            for m in range(4):
                e.I(f's_waitcnt vmcnt({3-m+behind})')
                if m == 0: e.I(f'v_max_u32 v{T0}, v{PA}, v{PA+1}')
                else: e.I(f'v_max3_u32 v{T0}, v{T0}, v{PA+2*m}, v{PA+2*m+1}')
                if m == 3: e.I(f'v_cmp_eq_u32 vcc, -1, v{T0}')
                for k in range(4): e.I(f'v_dot2c_f32_bf16 v{T0+8+k}, {("s70", "s71")[k&1]}, v{PA+2*m+(k>>1)}')
            e.I(f's_cbranch_vccz {qd}')
        if opt.nc > 1:
            G = opt.pmf + opt.pmf2
            if opt.sa >= 0: shot()
            else:
                for k in range(2): e.I(f'v_mov_b32 v{T0+4+k}, v{S+k}')
            blind = opt.sb <= G
            for gi in range(max(0, opt.sa), min(G, opt.sb)): vw_grp(gi)
            if blind: shot(PA + 8, 256, False)
            for gi in range(min(G, opt.sb), G): vw_grp(gi)
            acc(7 if blind else 0)
            if opt.dstamp: e.I('s_add_u32 s92, s92, 1')
            if blind:
                for k in range(2): e.I(f'v_mov_b32 v{T0+4+k}, v{S+k}')
                e.I(f's_branch {qf}')
            e.L(ql)
            if opt.dstamp: e.I('s_add_u32 s93, s93, 1')
            shot(PA + 8, 256)
            e.L(qf)
            acc(0, PA + 8)
        else: shot()
        if opt.t9 == 10: e.I('s_waitcnt vmcnt(7)'); TS(e, 9)
        if opt.t9 == 11: e.I('s_waitcnt vmcnt(6)'); TS(e, 9)
        if opt.t9 == 12: e.I('s_waitcnt vmcnt(0)'); TS(e, 9)
        if opt.t9 == 13: TS(e, 9)
        if opt.rpos == 3: e.I(f'buffer_store_dwordx{PW} {vr(SENT,PW)}, v13, {WS}, s43 offen sc1')
        for gi in range(opt.pmf, opt.pmf + opt.pmf2):
            if opt.nc == 1: vw_grp(gi)
        if opt.nc > 1: pass
        elif opt.rpos == 3: acc(1)
        elif kp:
            e.I(f's_nop {opt.kgap}') if opt.kgap < 16 else e.I(f's_sleep {opt.kgap // 16}')
            for x_ in kp: e.I(x_)
            acc(len(kp))
        else:
            e.I(f's_branch {qf}')
        if opt.nc == 1:
            e.L(ql)
            if opt.dstamp: e.I('s_add_u32 s93, s93, 1')
            shot()
            e.L(qf)
            acc(0)
        e.I('s_sub_u32 s31, s31, 1')
        e.I(f's_cbranch_scc0 {ql}')
        e.I('s_mov_b32 s31, 4')
        e.I('s_branch L_fail')
        e.L(qd)
        TS(e, 6)
        if opt.nod: pass
        elif opt.remap == 2:
            e.I('s_nop 1')
            e.I(f'v_permlane32_swap_b32 v{T0+8}, v{T0+10}')
            e.I(f'v_permlane32_swap_b32 v{T0+9}, v{T0+11}')
            for k in range(2): e.I(f'v_add_f32 v{T0+4+k}, v{T0+8+k}, v{T0+10+k}')
        else:
            e.I('s_nop 1')
            for k in range(2): e.I(f'v_add_f32_dpp v{T0+4+k}, v{T0+8+k}, v{T0+8+k} row_ror:8 row_mask:0xf bank_mask:0x3')
            for k in range(2): e.I(f'v_add_f32_dpp v{T0+4+k}, v{T0+10+k}, v{T0+10+k} row_ror:8 row_mask:0xf bank_mask:0xc ; merge')
        e.I(f'v_cvt_pk_bf16_f32 v{T0+4}, v{T0+4}, v{T0+5}')
        e.I(f'buffer_store_dword v{T0+4}, v8, {WS}, s44 offen{fl}')
        TS(e, 7)
        e.I(f'buffer_store_dword v{SENT}, v8, {WS}, s45 offen{fl}')
        if opt.mbar: e.I('s_barrier')
        if opt.rpos == 4: e.I(f'buffer_store_dwordx{PW} {vr(SENT,PW)}, v13, {WS}, s43 offen sc1')
        nvx = max(0, 12 - opt.kin - opt.kp)
        for x_ in kc[:nvx]: e.I(x_)
        assert opt.kin >= opt.pmf + opt.pmf2
        if kp: e.I('s_waitcnt vmcnt(2)')
        if opt.split and opt.xg1 + opt.xg2:
            for x_ in kc[nvx:]: e.I(x_)
        else: vw_x(None, kc[nvx:], nvx, opt.pmf + opt.pmf2)
        if opt.rpos == 5: e.I(f'buffer_store_dwordx{PW} {vr(SENT,PW)}, v13, {WS}, s43 offen sc1')
        TS(e, 8)
        TSflush(e, 's30', 244, 245)
        if opt.dstamp: e.I('s_lshl_b32 s98, s25, 8'); e.I('s_add_u32 s98, s98, s30')
        DSTAMP(e, 2, 's_cmp_eq_u32 s98, 9216')
        if opt.dstamp: e.I('s_lshl_b32 s98, s25, 8'); e.I('s_add_u32 s98, s98, s30')
        DSTAMP(e, 3, 's_cmp_eq_u32 s98, 9218')
        for idx_, st_ in ((6, 2), (7, 62)):
            for o_, off_ in (('clk', 0), ('rt', 2)):
                if opt.dstamp: e.I('s_lshl_b32 s98, s25, 8'); e.I('s_add_u32 s98, s98, s30'); e.I('s_lshl_b32 s99, s20, 16'); e.I('s_add_u32 s98, s98, s99')
                DSTAMP(e, idx_ + off_, f's_cmp_eq_u32 s98, {20*256 + st_}', o_)
        if opt.dstamp: e.I('s_lshl_b32 s98, s25, 8'); e.I('s_add_u32 s98, s98, s30')
        DSTAMP(e, 4, 's_cmp_eq_u32 s98, 9278')
        e.I('s_add_u32 s30, s30, 1')
        e.I('s_cmp_lt_u32 s30, 63')
        e.I(f's_cbranch_scc1 {top}')
        if not slow: e.I('s_branch L_swend')
    e.L('L_swend')
    if opt.dstamp == 1:
        e.I('s_mov_b64 exec, 1')
        for k in range(4):
            e.I(f'v_mov_b32 v238, {48 + 4*k}'); e.I(f'v_mov_b32 v239, s{90+k}')
            e.I('global_atomic_add v238, v239, s[74:75] sc1')
            e.I('s_nop 4')
        e.I('s_mov_b64 exec, -1')
    e.I('s_lshl_b32 s38, s20, 6')
    e.I('s_lshl_b32 s39, s22, 2')
    e.I('s_add_u32 s38, s38, s39')
    e.I(f's_add_u32 s38, s38, {FLGOX + 63*512}')
    e.I(f's_add_u32 s46, s62, {OX + (63 % RD)*SEG_QX}')
    e.I('s_add_u32 s56, s46, 4096')
    e.I('s_add_u32 s64, s46, 8192')
    e.I('s_lshl_b32 s39, s22, 10')
    e.I('v_add_u32 v6, s39, v2')
    e.I('s_lshl_b32 s39, s22, 12')
    e.I('v_add_u32 v7, s39, v2')
    e.I('s_lshr_b32 s40, s24, 1')
    e.I('s_lshl_b32 s40, s40, 2')
    e.I('s_add_u32 s40, s40, s22')
    e.I('s_lshl_b32 s40, s40, 10')
    e.I('s_and_b32 s41, s24, 1')
    e.I('s_lshl_b32 s41, s41, 3')
    e.I('s_add_u32 s40, s40, s41')
    e.I('s_mul_i32 s41, s20, 40960')
    e.I('s_add_u32 s40, s40, s41')
    e.I(f's_add_u32 s40, s40, {PX + 63*SEG_PX}')
    e.I('s_add_u32 s41, s40, 20480')
    e.I('s_mul_i32 s43, s20, 5')
    e.I('s_lshr_b32 s44, s24, 1')
    e.I('s_add_u32 s43, s43, s44')
    e.I('s_lshl_b32 s43, s43, 7')
    e.I(f's_add_u32 s43, s43, {HINT2}')
    e.I('v_mov_b32 v3, 0')
    e.I(f'v_mov_b32 v{ONE}, 1')
    e.I('s_waitcnt vmcnt(0)')
    TS(e, 0)
    wait_flags(e, 3, 's38', 1, T0, 5, sleep=opt.esleep)
    TS(e, 1)
    order = (0, 6, 1, 7, 2, 8, 3, 9, 4, 10, 5, 11)
    for q in order: e.I(f'buffer_load_dwordx4 {vr(VXF+4*q)}, v2, {WS}, {("s46", "s56", "s64")[q//4]} offen offset:{(q%4)*1024} sc1')
    for n_, q in enumerate(order):
        qt, kk = q // 6, q % 6
        e.I(f's_waitcnt vmcnt({11 - n_})')
        for ct in range(4):
            d = vr(DW + (qt*4+ct)*4)
            e.I(f'{MFMA} {d}, {ar((ct*6+kk)*4)}, {vr(VXF+4*q)}, {0 if kk == 0 else d}')
    TS(e, 2)
    for k in range(8): e.I(f'ds_write_b128 v6, {vr(DW+4*k)} offset:{k*4096}')
    e.I('s_waitcnt lgkmcnt(0)')
    e.I('s_barrier')
    for qt in range(2):
        for hh in range(4): e.I(f'ds_read_b128 {vr(KXF+(qt*4+hh)*4)}, v7 offset:{qt*16384 + hh*1024}')
    for qt in range(2):
        r = KXF + qt*16
        e.I(f's_waitcnt lgkmcnt({4 - 4*qt})')
        for k in range(4):
            e.I(f'v_add_f32 v{r+k}, v{r+k}, v{r+4+k}')
            e.I(f'v_add_f32 v{r+8+k}, v{r+8+k}, v{r+12+k}')
        for k in range(4): e.I(f'v_add_f32 v{r+k}, v{r+k}, v{r+8+k}')
        e.I(f'v_cvt_pk_bf16_f32 v{r+4}, v{r}, v{r+1}')
        e.I(f'v_cvt_pk_bf16_f32 v{r+5}, v{r+2}, v{r+3}')
        e.I(f'buffer_store_dwordx2 {vr(r+4,2)}, v2, {WS}, {("s40", "s41")[qt]} offen sc1')
    TS(e, 3)
    e.I('s_and_b32 s38, s25, 7')
    e.I(f's_cmp_eq_u32 s38, {opt.hwv}')
    e.I('s_cselect_b64 exec, 1, 0')
    e.I(f'buffer_store_dword v{ONE}, v3, {WS}, s43 offen sc1')
    e.I('s_mov_b64 exec, -1')
    TSflush(e, '63', 244, 245)
    e.I('s_endpgm')

def role_xw(e):
    OF = 16
    D = 112
    T0 = 160; ONE = 252
    e.I('s_sub_u32 s24, s21, 22')
    srd(e, 8, 66, 6144 * 1280)
    e.I(f's_mul_i32 s28, s20, {768*1280}')
    e.I('s_lshl_b32 s29, s24, 8')
    e.I('s_add_u32 s28, s28, s29')
    e.I('s_add_u32 s29, s28, 128')
    e.I(f'v_lshlrev_b32 v{ONE+1}, 2, v1')
    e.I('s_lshl_b32 s38, s20, 8')
    e.I(f's_add_u32 s38, s38, {FLGQ}')
    if opt.xlate & 1: wait_first(e, T0)
    def ring_touch():
        jobs = []
        for sl in range(RD):
            if sl >= 2: jobs += [(b_ + sl * SEG_QX, 12288, 96) for b_ in (KX, VX, QX)] + [(XP + sl * SEG_XP, 6144, 48), (VM + sl * SEG_VM, 3072, 24)]
            if sl >= 2: jobs += [(OX + (sl - 2) * SEG_QX, 12288, 96)]
        jobs += [(OX + sl * SEG_QX, 12288, 96) for sl in (6, 7)]
        e.I('s_lshl_b32 s40, s20, 2')
        e.I('s_add_u32 s40, s40, s22')
        touch_jobs(e, jobs, 's24', 5, 's40', 16)
    if opt.xlate & 1: ring_touch()
    pass
    load_weights(e, [('s[8:11]', 's28', 0, 768), ('s[8:11]', 's29', 96, 768)], 1280, 256, True, 3, 4)
    e.I(f'v_lshlrev_b32 v{ONE+1}, 2, v1')
    e.I('s_lshl_b32 s38, s20, 2')
    e.I('s_add_u32 s38, s38, s22')
    e.I('s_lshl_b32 s39, s38, 2')
    e.I('v_lshlrev_b32 v3, 7, v1')
    e.I('v_add_u32 v3, s39, v3')
    e.I(f'v_mov_b32 v{ONE}, 1')
    e.I('s_mul_i32 s62, s22, 12288')
    e.I('s_mul_i32 s63, s38, 12288')
    e.I(f's_add_u32 s63, s63, {OX}')
    e.I('s_mul_i32 s64, s20, 40960')
    e.I('s_lshl_b32 s65, s24, 2')
    e.I('s_add_u32 s65, s65, s22')
    e.I('s_lshl_b32 s65, s65, 10')
    e.I('s_add_u32 s64, s64, s65')
    e.I(f's_add_u32 s64, s64, {PX}')
    e.I('s_lshl_b32 s66, s24, 8')
    e.I(f's_add_u32 s66, s66, {FLGPX}')
    def pxflag():
        e.I('s_mov_b64 exec, 3')
        e.I(f'buffer_store_dword v{ONE}, v3, {WS}, s54 offen sc1')
        e.I('s_mov_b64 exec, s[60:61]')
        e.I(f'buffer_store_dword v{ONE}, v6, {WS}, s53 offen sc1')
        e.I('s_mov_b64 exec, -1')
    if not opt.xlate & 1: ring_touch()
    wait_reg(e, T0)
    top, nof, late, nxt_, last = e.lab('Lxt'), e.lab('Lxn'), e.lab('Lxl'), e.lab('Lxx'), e.lab('Lxe')
    e.I('s_lshl_b32 s67, s20, 6')
    e.I('s_lshl_b32 s38, s22, 2')
    e.I('s_add_u32 s67, s67, s38')
    e.I(f's_add_u32 s67, s67, {FLGOX}')
    e.I('s_lshl_b32 s38, s20, 5')
    e.I('s_add_u32 s38, s38, s24')
    e.I('s_lshl_b32 s38, s38, 2')
    e.I('v_mov_b32 v6, s38')
    e.I('v_mov_b32 v4, 0')
    e.I('v_mov_b32 v5, v2')
    def dma(sn):
        e.I(f's_and_b32 s55, {sn}, {RD-1}')
        e.I(f's_mul_i32 s55, s55, {SEG_QX}')
        e.I('s_add_u32 s55, s55, s63')
        e.I(f's_and_b32 s56, {sn}, 1')
        e.I('s_mul_i32 s56, s56, 49152')
        e.I('s_add_u32 s56, s56, s62')
        for m in range(12):
            e.I(f's_add_u32 m0, s56, {m*1024}')
            e.I(f'buffer_load_dwordx4 v2, {WS}, s55 offen sc1 lds')
            if m < 11: e.I('s_add_u32 s55, s55, 1024')
    e.I('s_mov_b32 s30, 0')
    wait_flags(e, 4, 's67', 1, T0, 5, sleep=opt.xsleep)
    dma('s30')
    e.L(top)
    TS(e, 0)
    e.I('s_add_u32 s58, s30, 1')
    e.I('s_min_u32 s57, s58, 62')
    e.I('s_lshl_b32 s57, s57, 9')
    e.I('s_add_u32 s57, s57, s67')
    e.I('s_waitcnt vmcnt(0)')
    e.I(f'buffer_load_dword v{T0}, v4, {WS}, s57 offen sc1')

    e.I('s_cmp_eq_u32 s30, 0')
    e.I(f's_cbranch_scc1 {nof}')
    e.I('s_cmp_lg_u32 s59, 0')
    e.I(f's_cbranch_scc1 {nof}')
    pxflag()
    nof2 = e.lab('Lxm')
    e.I(f's_branch {nof2}')
    e.L(nof)
    for _ in range(2): e.I(f'buffer_load_dword v{T0+1}, v4, {WS}, s57 offen sc1')
    e.L(nof2)
    e.I('s_barrier')
    TS(e, 1)
    e.I(f's_mul_i32 s50, s30, {SEG_PX}')
    e.I('s_add_u32 s50, s50, s64')
    e.I('s_add_u32 s51, s50, 20480')
    e.I('s_mul_i32 s54, s30, 1280')
    e.I('s_add_u32 s54, s54, s66')
    e.I('s_and_b32 s53, s30, 3')
    e.I('s_lshl_b32 s53, s53, 10')
    e.I(f's_add_u32 s53, s53, {HINT}')
    e.I(f's_cmp_ge_u32 s30, {opt.cwarm}')
    e.I('s_cselect_b32 s60, 1, 0')
    e.I('s_cmp_eq_u32 s22, 0')
    e.I('s_cselect_b32 s60, s60, 0')
    e.I('s_mov_b32 s61, 0')
    TS(e, 2)
    PF = 6
    def rd(kk):
        hl, p = kk // 6, kk % 6
        for qt in range(2):
            e.I(f'ds_read_b128 {vr(OF + ((2*kk+qt) % 24)*4)}, v5 offset:{hl*12288 + (qt*6+p)*1024}')
    for kk in range(PF): rd(kk)
    for kk in range(24):
        nxt = min(24, kk + PF) - (kk + 1)
        e.I(f's_waitcnt lgkmcnt({2*nxt})')
        for qt in range(2):
            for b in range(2):
                d = vr(D + 4*(qt*2+b))
                e.I(f'{MFMA} {d}, {ar(96*b+4*kk)}, {vr(OF + ((2*kk+qt) % 24)*4)}, {0 if kk == 0 else d}')
        if kk + PF < 24: rd(kk + PF)
        if kk == 4:
            e.I('s_waitcnt vmcnt(2)')
            e.I(f'v_readfirstlane_b32 s59, v{T0}')
            e.I('s_cmp_eq_u32 s30, 62')
            e.I('s_cselect_b32 s59, 0, s59')
            e.I('s_cmp_eq_u32 s59, 0')
            e.I(f's_cbranch_scc1 {late}')
            dma('s58')
            e.L(late)
        if kk == 16: e.I(f'buffer_load_dword v{T0}, v4, {WS}, s57 offen sc1')
    sc = e.lab('Lxs')
    e.I('s_cmp_lg_u32 s59, 0')
    e.I(f's_cbranch_scc1 {sc}')
    e.I('s_cmp_eq_u32 s30, 62')
    e.I(f's_cbranch_scc1 {sc}')
    e.I('s_waitcnt vmcnt(0)')
    e.I(f'v_readfirstlane_b32 s59, v{T0}')
    e.I('s_cmp_eq_u32 s59, 0')
    e.I(f's_cbranch_scc1 {sc}')
    dma('s58')
    e.L(sc)
    for qt, so in enumerate(('s50', 's51')):
        for k in range(4): e.I(f'v_cvt_pk_bf16_f32 v{D+16+4*qt+k}, v{D+8*qt+2*k}, v{D+8*qt+2*k+1}')
        e.I(f'buffer_store_dwordx4 {vr(D+16+4*qt)}, v2, {WS}, {so} offen sc1')
    e.I('v_xor_b32 v5, 49152, v5')
    TS(e, 3)
    TSflush(e, 's30')
    e.I('s_cmp_eq_u32 s30, 62')
    e.I(f's_cbranch_scc1 {last}')
    e.I('s_cmp_lg_u32 s59, 0')
    e.I('s_mov_b32 s59, 0')
    e.I(f's_cbranch_scc1 {nxt_}')
    e.I(f'buffer_load_dword v{T0}, v4, {WS}, s57 offen sc1')
    e.I('s_waitcnt vmcnt(0)')
    e.I(f'v_readfirstlane_b32 s38, v{T0}')
    e.I('s_cmp_lg_u32 s38, 0')
    sl2 = e.lab('Lxq')
    e.I(f's_cbranch_scc1 {sl2}')
    pxflag()
    e.I('s_mov_b32 s59, 1')
    wait_flags(e, 4, 's57', 1, T0, 5, sleep=opt.xsleep)
    e.L(sl2)
    dma('s58')
    e.L(nxt_)
    e.I('s_mov_b32 s30, s58')
    e.I(f's_branch {top}')
    e.L(last)
    e.I('s_waitcnt vmcnt(0)')
    pxflag()
    if opt.wb & 1:
        e.I('s_cmp_lg_u32 s21, 22'); e.I('s_cbranch_scc1 L_end'); e.I('s_cmp_lg_u32 s22, 0'); e.I('s_cbranch_scc1 L_end')
        e.I('buffer_wbl2 sc1'); e.I('s_waitcnt vmcnt(0)')
    e.I('s_endpgm')

def role_att(e):
    fl = ''
    KF, QF, VF = 0, 48, 96
    XPF = 16
    SA, SB, PA_, PB_ = 40, 48, 60, 64
    DO, OB = 72, 136
    T0 = 226
    C0, C1 = 232, 236
    ONE = 252
    e.I('s_sub_u32 s25, s21, 27')
    e.I('s_lshl_b32 s26, s20, 2')
    e.I('s_add_u32 s26, s26, s22')
    e.I(f's_mov_b32 s52, {SC_L2E:#x}'); e.I(f's_mov_b32 s53, {SC_L2E | 0x80000000:#x}')
    e.I(f'v_lshlrev_b32 v{ONE+1}, 2, v1')
    e.I('s_lshl_b32 s38, s22, 2')
    e.I(f'v_mov_b32 v{ONE+2}, s38')
    e.I(f'v_mov_b32 v{ONE}, 1')
    lane_ig(e, 14, 15)
    e.I(f'v_mov_b32 v3, {NEG_BIG:#x}')
    e.I('v_cmp_gt_u32 vcc, 32, v1')
    e.I(f'v_cndmask_b32 v{C0}, 0, v3, vcc')
    for k in range(1, 4): e.I(f'v_mov_b32 v{C0+k}, v{C0}')
    e.I('v_lshlrev_b32 v5, 2, v15')
    for r in range(4):
        e.I(f'v_add_u32 v6, {r}, v5')
        e.I('v_cmp_gt_u32 vcc, v6, v14')
        e.I(f'v_cndmask_b32 v{C1+r}, 0, v3, vcc')
    e.I('s_mul_i32 s58, s26, 6144')
    e.I('s_lshl_b32 s59, s22, 14')
    e.I('v_and_b32 v4, 3, v1')
    e.I('v_lshlrev_b32 v4, 8, v4')
    e.I('v_bfe_u32 v5, v1, 2, 3')
    e.I('v_lshl_add_u32 v5, v5, 4, v4')
    e.I('v_add_u32 v5, s59, v5')
    e.I('v_lshrrev_b32 v6, 2, v1')
    e.I('v_lshl_add_u32 v4, v6, 4, v4')
    e.I('v_add_u32 v4, s59, v4')
    wait_reg(e, T0)
    e.I('v_lshrrev_b32 v12, 2, v1')
    e.I('v_lshlrev_b32 v12, 8, v12')
    e.I('v_and_b32 v13, 3, v1')
    e.I('v_lshl_add_u32 v12, v13, 2, v12')
    e.I('s_lshl_b32 s38, s20, 4')
    e.I('v_add_u32 v12, s38, v12')
    e.I('s_lshl_b32 s60, s26, 6')
    e.I(f's_add_u32 s60, s60, {FLGQ}')
    if opt.rpos == 9:
        e.I('v_and_b32 v7, 15, v1')
        e.I('v_lshlrev_b32 v7, 4, v7')
        e.I('v_bfe_u32 v8, v1, 4, 1')
        e.I('v_lshl_add_u32 v7, v8, 13, v7')
        e.I('v_lshrrev_b32 v8, 5, v1')
        e.I('v_lshl_add_u32 v7, v8, 15, v7')
        e.I('s_lshr_b32 s61, s22, 1')
        e.I('s_lshl_b32 s61, s61, 14')
        e.I('s_and_b32 s38, s22, 1')
        e.I('s_lshl_b32 s38, s38, 12')
        e.I('s_add_u32 s61, s61, s38')
        e.I('s_lshl_b32 s38, s20, 9')
        e.I('s_add_u32 s61, s61, s38')
        e.I(f's_add_u32 s61, s61, {PART}')
        for k in range(4): e.I(f'v_mov_b32 v{240+k}, -1')
        e.I('v_mov_b32 v8, 48'); e.I('v_mov_b32 v9, 2')
        e.I('s_add_u32 s38, s25, 1')
        e.I(f's_mul_i32 s48, s38, {PART_SLOT}')
        e.I('s_add_u32 s48, s48, s61')
        for q in range(5):
            e.I(f'buffer_store_dwordx4 v[240:243], v7, {WS}, s48 offen sc1')
            if q < 4: e.I('s_add_u32 s48, s48, 65536')
        e.I('s_waitcnt vmcnt(0)')
        e.I('s_lshl_b32 s38, s38, 11')
        e.I('s_add_u32 s38, s38, s60')
        set_flag(e, 8, 's38', 9, ' sc1')
    e.I('s_cmp_lg_u32 s23, 0')
    e.I('s_cbranch_scc1 L_atts')
    for slow in (False, True):
        fl = ' sc1' if slow else ''
        if slow: e.L('L_atts')
        top = e.lab('Lat')
        e.I('s_mov_b32 s30, s25')
        e.L(top)
        TS(e, 0)
        e.I('s_max_u32 s51, s30, 2')
        e.I('s_lshl_b32 s51, s51, 11')
        e.I('s_add_u32 s51, s51, s60')
        e.I(f's_and_b32 s42, s30, {RD-1}')
        e.I(f's_mul_i32 s40, s42, {SEG_QX}')
        e.I('s_lshl_b32 s41, s58, 1')
        e.I('s_add_u32 s40, s40, s41')
        e.I(f's_mul_i32 s41, s42, {SEG_XP}')
        e.I('s_add_u32 s41, s41, s58')
        nbp = e.lab('Lab')
        e.I(f's_cmp_lt_u32 s30, {RD}')
        e.I(f's_cbranch_scc1 {nbp}')
        e.I(f's_sub_u32 s50, s30, {RD}')
        e.I('s_mul_i32 s50, s50, 1280')
        e.I(f's_add_u32 s50, s50, {FLGPX}')
        wait_flags(e, 12, 's50', 0xfffff, T0, 14, sleep=16)
        e.L(nbp)
        wait_flags(e, ONE + 1, 's51', 0xfff, T0, 6, sleep=opt.asleep)
        def loads(dst, n, sbase, add):
            e.I(f's_add_u32 s48, {sbase}, {add}')
            for q in range(n):
                if q and q % 4 == 0: e.I('s_add_u32 s48, s48, 4096')
                e.I(f'buffer_load_dwordx4 {dst(q)}, v2, {WS}, s48 offen offset:{(q%4)*1024} sc1')
        e.I(f's_add_u32 s48, s40, {VX}')
        for q in range(12):
            e.I(f's_add_u32 m0, s59, {q*1024}')
            e.I(f'buffer_load_dwordx4 v2, {WS}, s48 offen sc1 lds')
            e.I('s_add_u32 s48, s48, 1024')
        loads(lambda q: ar(KF + 4*q), 12, 's40', KX)
        loads(lambda q: ar(QF + 4*q), 12, 's40', QX)
        e.I('s_add_u32 s51, s30, 2')
        e.I('s_lshl_b32 s51, s51, 11')
        e.I('s_add_u32 s51, s51, s60')
        e.I('s_waitcnt vmcnt(24)')
        for T in range(12):
            for rt in range(2):
                e.I(f'ds_read_b64_tr_b16 {ar(VF+6*T+2+2*rt,2)}, v4 offset:{rt*6144 + (T>>1)*1024 + (T&1)*8}')
        e.I('s_waitcnt vmcnt(0)')
        for p in range(6):
            e.I(f'{MFMA} {vr(SA+4)}, {ar(KF+4*p)}, {ar(QF+4*p)}, {vr(C1) if p == 0 else vr(SA+4)}')
            e.I(f'{MFMA} {vr(SB+4)}, {ar(KF+4*p)}, {ar(QF+24+4*p)}, {0 if p == 0 else vr(SB+4)}')
            e.I(f'{MFMA} {vr(SB+8)}, {ar(KF+24+4*p)}, {ar(QF+24+4*p)}, {vr(C1) if p == 0 else vr(SB+8)}')
        wait_flags(e, ONE + 1, 's51', 0xfff, T0, 6, sleep=opt.asleep)
        TS(e, 1)
        loads(lambda q: vr(XPF + 4*q), 6, 's41', XP)
        e.I('s_lshr_b32 s42, s41, 1')
        e.I(f's_add_u32 s48, s42, {VM}')
        for q in range(3):
            e.I(f's_add_u32 m0, s59, {12288 + q*1024}')
            e.I(f'buffer_load_dwordx4 v2, {WS}, s48 offen sc1 lds')
            e.I('s_add_u32 s48, s48, 1024')
        nr = 0
        if opt.rpos == 9:
            nr = 5
            e.I('s_add_u32 s48, s30, 3')
            e.I('s_and_b32 s48, s48, 3')
            e.I(f's_mul_i32 s48, s48, {PART_SLOT}')
            e.I('s_add_u32 s48, s48, s61')
            e.I('s_cmp_lt_u32 s30, 60')
            e.I('s_cselect_b64 exec, -1, 0')
            for q in range(5):
                e.I(f'buffer_store_dwordx4 v[240:243], v7, {WS}, s48 offen sc1')
                if q < 4: e.I('s_add_u32 s48, s48, 65536')
            e.I('s_mov_b64 exec, -1')
        for p in range(6):
            e.I(f's_waitcnt vmcnt({8-p+nr})')
            e.I(f'{MFMA} {vr(SA)}, {vr(XPF+4*p)}, {ar(QF+4*p)}, {vr(C0) if p == 0 else vr(SA)}')
            e.I(f'{MFMA} {vr(SB)}, {vr(XPF+4*p)}, {ar(QF+24+4*p)}, {vr(C0) if p == 0 else vr(SB)}')
        TS(e, 2)
        e.I('s_waitcnt vmcnt(0)')
        if opt.rpos == 9:
            e.I('s_add_u32 s48, s51, 2048')
            e.I('s_cmp_lt_u32 s30, 61')
            e.I('s_cselect_b64 exec, 1, 0')
            e.I(f'buffer_store_dword v9, v8, {WS}, s48 offen{fl}')
            e.I('s_mov_b64 exec, -1')
        for T in range(12):
            kk = T >> 1
            e.I(f'ds_read_b64_tr_b16 {ar(VF+6*T,2)}, v5 offset:{12288 + (kk % 3)*1024 + (kk // 3)*128 + (T&1)*8}')
        for x_ in softmax_list(SA, 8, PA_, T0): e.I(x_)
        e.I(f's_add_u32 s48, s40, {OX}')
        e.I('s_add_u32 s49, s48, 4096')
        e.I('s_add_u32 s50, s48, 8192')
        e.I('s_waitcnt lgkmcnt(0)')
        def fin(qt, p):
            d = DO + 8 * (p + (2 if qt else 0) * 3) % 64; o = OB + 4 * (qt*6 + p); q = qt*6 + p
            return [f'v_cvt_pk_bf16_f32 v{o+k}, v{d+2*k}, v{d+2*k+1}' for k in range(4)] + \
                   [f'buffer_store_dwordx4 {vr(o)}, v2, {WS}, {("s48", "s49", "s50")[q//4]} offen offset:{(q%4)*1024}{fl}']
        smb = softmax_list(SB, 12, PB_, T0)
        for T in range(12):
            e.I(f'{MFMA} {vr(DO+4*T)}, {ar(VF+6*T)}, {vr(PA_)}, 0')
            for _ in range(3): e.I(smb.pop(0))
        outs = [x_ for p in range(6) for x_ in fin(0, p)]
        while smb:
            e.I(smb.pop(0)); e.I(smb.pop(0)) if smb else None
            if outs: e.I(outs.pop(0))
        for x_ in outs: e.I(x_)
        for p in range(6):
            d = DO + 8 * (p + 6) % 64
            for t in range(2): e.I(f'{MFMA16} {vr(d+4*t)}, {ar(VF+6*(2*p+t),2)}, {vr(PB_,2)}, 0')
            for t in range(2): e.I(f'{MFMA} {vr(d+4*t)}, {ar(VF+6*(2*p+t)+2)}, {vr(PB_+2)}, {vr(d+4*t)}')
            if p > 1:
                for x_ in fin(1, p - 2): e.I(x_)
        for p in (4, 5):
            for x_ in fin(1, p): e.I(x_)
        e.I('s_lshl_b32 s50, s30, 3')
        e.I('s_add_u32 s50, s50, s20')
        e.I('s_lshl_b32 s50, s50, 6')
        e.I(f's_add_u32 s50, s50, {FLGOX}')
        e.I('s_waitcnt vmcnt(0)')
        set_flag(e, ONE + 2, 's50', ONE, fl)
        TS(e, 3)
        TSflush(e, 's30', 230, 231)
        e.I('s_add_u32 s30, s30, 2')
        e.I('s_cmp_lt_u32 s30, 64')
        e.I(f's_cbranch_scc1 {top}')
        e.I('s_endpgm')

F_LX, F_LH = 0, 98304
def role_ffn(e):
    ACC2 = 0
    ACC1 = 16
    BF = 48
    HP = 80
    WR = 96
    NW = 40
    e.I('s_sub_u32 s26, s21, 29')
    e.I('s_mul_i32 s25, s20, 3')
    e.I('s_add_u32 s26, s26, s25')
    e.I('s_mov_b32 s24, s26')
    srd(e, 8, 56, 640 * 3072); srd(e, 12, 58, 1536 * 1280)
    if opt.xlate & 4: wait_first(e, 16, opt.fwait)
    transpose_w(e, 's26')
    e.I('s_waitcnt vmcnt(0)')
    e.I('s_barrier')
    count_up(e, 3, D_TR)
    wait_count(e, 3, D_TR, 24, 16)
    if opt.urg: wait_count(e, 3, D_W, 80, 16)
    wait_reg(e, 16, 32)
    e.L('L_ffn_task')
    e.I('s_lshl_b32 s38, s24, 2')
    e.I('s_add_u32 s38, s38, s22')
    e.I('s_mul_i32 s39, s38, 20480')
    e.I(f's_add_u32 s39, s39, {XN}')
    e.I('s_mul_i32 s40, s22, 20480')
    for m in range(20):
        e.I(f's_add_u32 m0, s40, {m*1024}')
        e.I(f'buffer_load_dwordx4 v2, {WS}, s39 offen lds')
        e.I('s_add_u32 s39, s39, 1024')
    for k in range(160): e.I(f'v_accvgpr_write_b32 a{k}, 0')
    e.I('s_mul_i32 s41, s22, 40960')
    e.I(f's_add_u32 s41, s41, {W1F}')
    e.I(f's_mul_i32 s42, s22, {10*48*1024}')
    e.I(f's_add_u32 s42, s42, {W2F}')
    e.I('v_add_u32 v3, 20480, v2')
    for u in range(10):
        e.I(f's_mov_b32 s54, {u*48*1024}')
        e.I(f'v_add_u32 v{4+u}, s54, v2')
    e.I(f'v_add_u32 v14, {F_LH}, v2')
    e.I('s_lshl_b32 s38, s22, 12')
    e.I('v_add_u32 v15, s38, v14')
    def wload(idx, adv):
        dst = vr(WR + (idx % NW) * 4)
        if idx < 40:
            kk, u = idx // 2, idx % 2
            e.I(f's_add_u32 s45, {adv[0]}, {(kk//4)*4096}')
            e.I(f'buffer_load_dwordx4 {dst}, v{2+u}, {WS}, s45 offen offset:{(kk%4)*1024}{" nt" if opt.ffnnt else ""}')
        else:
            pp, u = (idx - 40) // 10, (idx - 40) % 10
            e.I(f'buffer_load_dwordx4 {dst}, v{4+u}, {WS}, {adv[1]} offen offset:{pp*1024}{" nt" if opt.ffnnt else ""}')
    for idx in range(NW - 2): wload(idx, ('s41', 's42'))
    e.I(f's_waitcnt vmcnt({NW-2})')
    e.I('s_barrier')
    top = e.lab('Lft')
    TS(e, 0)
    e.I('s_mov_b32 s30, 0')
    e.L(top)
    e.I('s_cmp_lt_u32 s30, 11')
    e.I('s_cselect_b32 s46, 163840, 0')
    e.I('s_cselect_b32 s47, 4096, 0')
    e.I('s_add_u32 s43, s41, s46')
    e.I('s_add_u32 s44, s42, s47')
    D = NW - 2
    def pref(idx):
        j = idx + D
        if j < 80: wload(j, ('s41', 's42'))
        else: wload(j - 80, ('s43', 's44'))
    def rdx(kk):
        for rt in range(4):
            e.I(f'ds_read_b128 {vr(BF + ((kk%2)*4+rt)*4)}, v{2 if rt < 3 else 3} offset:{(rt if rt < 3 else 2)*20480 + kk*1024}')
    rdx(0)
    for kk in range(20):
        if kk + 1 < 20: rdx(kk + 1)
        e.I(f's_waitcnt vmcnt({D-2}) lgkmcnt({4 if kk+1 < 20 else 0})')
        for u in range(2):
            idx = 2 * kk + u
            for rt in range(4):
                d = vr(ACC1 + (u*4+rt)*4)
                e.I(f'{MFMA} {d}, {vr(WR+(idx%NW)*4)}, {vr(BF+((kk%2)*4+rt)*4)}, {0 if kk == 0 else d}')
        pref(2 * kk); pref(2 * kk + 1)
    for rt in range(4):
        for u in range(2):
            d = ACC1 + (u*4+rt)*4
            for k in range(4): e.I(f'v_max_f32 v{d+k}, 0, v{d+k}')
            e.I(f'v_cvt_pk_bf16_f32 v{HP+rt*4+2*u}, v{d}, v{d+1}')
            e.I(f'v_cvt_pk_bf16_f32 v{HP+rt*4+2*u+1}, v{d+2}, v{d+3}')
        e.I(f'ds_write_b128 v15, {vr(HP+rt*4)} offset:{rt*1024}')
    e.I('s_waitcnt lgkmcnt(0)')
    e.I('s_barrier')
    def rdh(pp):
        for rt in range(4):
            e.I(f'ds_read_b128 {vr(BF + ((pp%2)*4+rt)*4)}, v14 offset:{pp*4096 + rt*1024}')
    rdh(0)
    for pp in range(4):
        if pp + 1 < 4: rdh(pp + 1)
        for u in range(10):
            idx = 40 + pp * 10 + u
            w = f's_waitcnt vmcnt({D-1})'
            if u == 0: w += f' lgkmcnt({4 if pp+1 < 4 else 0})'
            e.I(w)
            for rt in range(4):
                d = ar(ACC2 + (u*4+rt)*4)
                e.I(f'{MFMA} {d}, {vr(WR+(idx%NW)*4)}, {vr(BF+((pp%2)*4+rt)*4)}, {d}')
            pref(idx)
    e.I('v_xor_b32 v14, 16384, v14')
    e.I('v_xor_b32 v15, 16384, v15')
    e.I('s_mov_b32 s41, s43')
    e.I('s_mov_b32 s42, s44')
    e.I('s_add_u32 s30, s30, 1')
    e.I('s_cmp_lt_u32 s30, 12')
    e.I(f's_cbranch_scc1 {top}')
    e.I('s_waitcnt vmcnt(0)')
    TS(e, 1)
    e.I('v_lshlrev_b32 v3, 3, v1')
    e.I(f's_mul_i32 s38, s24, {4*40*512}')
    e.I(f's_mul_i32 s39, s22, {10*512}')
    e.I('s_add_u32 s38, s38, s39')
    e.I(f's_add_u32 s38, s38, {G_}')
    e.I(f's_mov_b32 s52, {f2u(-1.4426950408889634):#x}')
    for rt in range(4):
        e.I(f's_add_u32 s39, s38, {rt*40*512}')
        e.I('s_add_u32 s40, s39, 4096')
        for u in range(10):
            t = 16 + ((rt*10+u) % 4) * 16
            a0 = ACC2 + (u*4+rt)*4
            for k in range(4): e.I(f'v_accvgpr_read_b32 v{t+k}, a{a0+k}')
            e.I(f'v_cvt_pk_bf16_f32 v{t+4}, v{t}, v{t+1}')
            e.I(f'v_cvt_pk_bf16_f32 v{t+5}, v{t+2}, v{t+3}')
            e.I(f'v_lshlrev_b32 v{t}, 16, v{t+4}')
            e.I(f'v_and_b32 v{t+1}, 0xffff0000, v{t+4}')
            e.I(f'v_lshlrev_b32 v{t+2}, 16, v{t+5}')
            e.I(f'v_and_b32 v{t+3}, 0xffff0000, v{t+5}')
            for k in range(4): e.I(f'v_mul_f32 v{t+4+k}, s52, v{t+k}')
            for k in range(4): e.I(f'v_exp_f32 v{t+4+k}, v{t+4+k}')
            for k in range(4): e.I(f'v_add_f32 v{t+4+k}, 1.0, v{t+4+k}')
            for k in range(4): e.I(f'v_rcp_f32 v{t+4+k}, v{t+4+k}')
            for k in range(4): e.I(f'v_mul_f32 v{t+k}, v{t+k}, v{t+4+k}')
            e.I(f'v_cvt_pk_bf16_f32 v{t+8}, v{t}, v{t+1}')
            e.I(f'v_cvt_pk_bf16_f32 v{t+9}, v{t+2}, v{t+3}')
            e.I(f'buffer_store_dwordx2 {vr(t+8,2)}, v3, {WS}, {"s39" if u < 8 else "s40"} offen offset:{(u%8)*512} sc1')
    e.I('s_waitcnt vmcnt(0)')
    TS(e, 2)
    if opt.ts: e.I('s_lshr_b32 s50, s24, 3'); e.I('s_add_u32 s50, s50, 64')
    TSflush(e, 's50')
    e.I('s_barrier')
    e.I('s_cmp_lg_u32 s22, 0')
    e.I('s_cbranch_scc1 L_ffn_nf')
    e.I('v_mov_b32 v4, 1')
    e.I('s_lshl_b32 s38, s24, 2')
    e.I('v_mov_b32 v5, s38')
    e.I(f's_mov_b32 s39, {FLGG}')
    set_flag(e, 5, 's39', 4, ' sc1')
    e.I('s_waitcnt vmcnt(0)')
    e.L('L_ffn_nf')
    e.I('s_cmp_ge_u32 s26, 8')
    e.I(f's_cbranch_scc1 {"L_end" if opt.nocmb else "L_cmb"}')
    e.I('s_add_u32 s24, s24, 24')
    e.I('s_cmp_lt_u32 s24, 32')
    e.I('s_cbranch_scc1 L_ffn_task')
    e.I('s_endpgm')

def role_cmb(e):
    PXR = 16
    GR = 144
    XR_ = 152
    T0 = 160
    e.I('s_sub_u32 s24, s26, 8')
    e.I('s_lshl_b32 s24, s24, 2')
    e.I('s_add_u32 s30, s24, s22')
    e.I(f's_mov_b32 s33, {opt.qc or 1280}')
    e.L('L_cmb2')
    srd(e, 8, 68, 2048 * 1280)
    srd(e, 12, 70, 2048 * 1280)
    e.I('v_lshlrev_b32 v3, 2, v1')
    e.I('v_lshlrev_b32 v4, 3, v1')
    e.I('v_mov_b32 v6, 0')
    lane_ig(e, 14, 15)
    e.I('v_mul_u32_u24 v5, 1280, v14')
    e.I('v_lshl_add_u32 v5, v15, 3, v5')
    e.I('s_mov_b32 s49, 0')
    e.I('s_mov_b32 s52, 0x3f80'); e.I('s_mov_b32 s53, 0x3f800000')
    e.I('v_lshrrev_b32 v7, 4, v1')
    e.I('v_mul_u32_u24 v7, 40960, v7')
    e.I('v_lshl_add_u32 v7, v14, 7, v7')
    e.I(f'v_add_u32 v8, {4*40960}, v7')
    top = e.lab('Lct')
    if opt.t63:
        e.I('s_cmp_eq_u32 s33, 0')
        e.I(f's_cbranch_scc1 {top}')
        e.I('s_add_u32 s38, s30, 1216')
        e.I('s_mul_i32 s39, s38, 3277')
        e.I('s_lshr_b32 s39, s39, 16')
        e.I('s_mul_i32 s40, s39, 20')
        e.I('s_sub_u32 s40, s38, s40')
        e.I(f's_mul_i32 s43, s39, {SEG_PX}')
        e.I('s_lshl_b32 s40, s40, 11')
        e.I('s_add_u32 s43, s43, s40')
        e.I(f's_add_u32 s43, s43, {PX}')
        for k in range(2): e.I(f'buffer_load_dword v{T0}, v{7+k}, {WS}, s43 offen sc1')
    e.L(top)
    TS(e, 0)
    e.I('s_mul_i32 s38, s30, 3277')
    e.I('s_lshr_b32 s38, s38, 16')
    e.I('s_mul_i32 s39, s38, 20')
    e.I('s_sub_u32 s39, s30, s39')
    e.I('s_cmp_ge_u32 s39, 10')
    e.I('s_cselect_b32 s40, 1, 0')
    e.I('s_mul_i32 s41, s40, 10')
    e.I('s_sub_u32 s41, s39, s41')
    gok = e.lab('Lcg')
    e.I('s_cmp_lg_u32 s49, 0')
    e.I(f's_cbranch_scc1 {gok}')
    e.I(f's_mov_b32 s42, {FLGG}')
    e.I('s_mov_b32 exec_hi, 0')
    e.I(f'buffer_load_dword v{T0}, v3, {WS}, s42 offen sc1')
    e.I('s_waitcnt vmcnt(0)')
    e.I(f'v_cmp_eq_u32 vcc, 0, v{T0}')
    e.I('s_mov_b64 exec, -1')
    e.I('s_cmp_eq_u32 vcc_lo, 0')
    e.I('s_cselect_b32 s49, 1, 0')
    e.I(f's_cbranch_scc1 {gok}')
    e.I('s_lshr_b32 s42, s38, 1')
    e.I('s_lshl_b32 s42, s42, 2')
    e.I(f's_add_u32 s42, s42, {FLGG}')
    wait_flags(e, 6, 's42', 1, T0, 7, sleep=32)
    e.L(gok)
    e.I(f's_mul_i32 s43, s38, {SEG_PX}')
    e.I('s_mul_i32 s44, s40, 20480')
    e.I('s_add_u32 s43, s43, s44')
    e.I('s_lshl_b32 s44, s41, 11')
    e.I('s_add_u32 s43, s43, s44')
    e.I(f's_add_u32 s43, s43, {PX}')
    e.I('s_lshl_b32 s45, s38, 1')
    e.I('s_add_u32 s45, s45, s40')
    e.I('s_mul_i32 s46, s45, 20480')
    e.I('s_lshr_b32 s47, s41, 1')
    e.I('s_lshl_b32 s47, s47, 2')
    e.I('s_and_b32 s48, s41, 1')
    e.I('s_add_u32 s44, s47, s48')
    e.I('s_lshl_b32 s47, s44, 10')
    e.I('s_add_u32 s47, s47, s46')
    e.I(f's_add_u32 s47, s47, {G_}')
    e.I('s_lshl_b32 s48, s44, 6')
    e.I('s_add_u32 s48, s48, s46')
    TO = (0, 4, 1, 5)
    for t in range(4):
        e.I(f'buffer_load_dwordx2 {vr(GR+2*t,2)}, v4, {WS}, s47 offen offset:{TO[t]*512} sc1')
        e.I(f'buffer_load_dwordx2 {vr(XR_+2*t,2)}, v5, s[8:11], s48 offen offset:{TO[t]*32}')
    c1, c2 = e.lab('Lc1'), e.lab('Lc2')
    e.I('s_mul_i32 s50, s38, 10')
    e.I('s_and_b32 s44, s41, 14')
    e.I('s_add_u32 s50, s50, s44')
    e.I('s_lshl_b32 s50, s50, 7')
    e.I(f's_add_u32 s50, s50, {FLGPX}')
    e.I(f's_cmp_ge_u32 s38, {opt.cwarm}')
    e.I(f's_cbranch_scc1 {c1}')
    e.I(f's_add_u32 s42, s38, {opt.clag}')
    e.I('s_lshl_b32 s42, s42, 3')
    e.I('s_add_u32 s42, s42, s20')
    e.I('s_lshl_b32 s42, s42, 6')
    e.I(f's_add_u32 s42, s42, {FLGOX}')
    wait_flags(e, 6, 's42', 1, T0, 9, sleep=opt.lsleep)
    wait_flags(e, 3, 's50', -1, T0, 8, sleep=opt.csleep)
    e.I(f's_branch {c2}')
    e.L(c1)
    e.I('s_and_b32 s42, s38, 3')
    e.I('s_lshl_b32 s42, s42, 3')
    e.I('s_add_u32 s42, s42, s20')
    e.I('s_lshl_b32 s42, s42, 7')
    e.I('s_lshl_b32 s44, s44, 1')
    e.I('s_add_u32 s42, s42, s44')
    e.I(f's_add_u32 s42, s42, {HINT}')
    e.I('s_mul_i32 s51, s20, 5')
    e.I('s_lshr_b32 s44, s41, 1')
    e.I('s_add_u32 s51, s51, s44')
    e.I('s_lshl_b32 s51, s51, 7')
    e.I(f's_add_u32 s51, s51, {HINT2}')
    e.I('s_cmp_eq_u32 s38, 63')
    e.I('s_cselect_b32 s42, s51, s42')
    wait_flags(e, 6, 's42', 1, T0, 9, sleep=2)
    e.I('s_cmp_eq_u32 s38, 63')
    e.I(f's_cbranch_scc1 {c2}')
    wait_flags(e, 3, 's50', -1, T0, 8, sleep=opt.c2sleep)
    e.L(c2)
    TS(e, 1)
    RAW = PXR + 32
    def ld(x):
        for t in range(2):
            if not opt.cdiag & 4: e.I(f'buffer_load_dwordx4 {vr(RAW+(x*2+t)*4)}, v2, {WS}, s43 offen offset:{t*1024} sc1')
        if x < 7: e.I('s_add_u32 s43, s43, 40960')
    def body(depth):
        for x in range(min(depth, 8)): ld(x)
        for x in range(8):
            left = min(depth - 1, 7 - x)
            e.I(f's_waitcnt vmcnt({left*2})')
            if x + depth < 8: ld(x + depth)
            for k in range(16): e.I(f'v_dot2c_f32_bf16 v{PXR+k}, {("s52", "s53")[k&1]}, v{RAW+x*8+(k>>1)}')
        e.I('s_nop 2')
    for k in range(16): e.I(f'v_mov_b32 v{PXR+k}, 0')
    fast, join = e.lab('Lcf'), e.lab('Lcj')
    e.I('s_cmp_ge_u32 s38, 61')
    e.I(f's_cbranch_scc1 {fast}')
    body(opt.cdepth)
    e.I(f's_branch {join}')
    e.L(fast)
    f2, pl_, pk_ = e.lab('Lcg'), e.lab('Lcp'), e.lab('Lck')
    e.I('s_cmp_lg_u32 s38, 63')
    e.I(f's_cbranch_scc1 {f2}')
    e.I(f's_mov_b32 s31, {TMO}')
    e.I('s_mov_b32 s51, s43')
    e.L(pl_)
    e.I('s_mov_b32 s43, s51')
    for x in range(8): ld(x)
    e.I('s_waitcnt vmcnt(0)')
    check_sent(e, range(RAW, RAW + 64), T0, T0 + 1)
    e.I(f's_cbranch_vccz {pk_}')
    e.I('s_sub_u32 s31, s31, 1')
    e.I(f's_cbranch_scc0 {pl_}')
    e.I('s_mov_b32 s31, 8')
    e.I('s_branch L_fail')
    e.L(pk_)
    for x in range(8):
        for k in range(16): e.I(f'v_dot2c_f32_bf16 v{PXR+k}, {("s52", "s53")[k&1]}, v{RAW+x*8+(k>>1)}')
    e.I('s_nop 2')
    e.I(f's_branch {join}')
    e.L(f2)
    body(8)
    e.L(join)
    TS(e, 3)
    for t in range(4):
        b = PXR + 4 * t; u = T0 + 8 * (t % 2)
        e.I(f'v_cvt_pk_bf16_f32 v{u}, v{b}, v{b+1}')
        e.I(f'v_cvt_pk_bf16_f32 v{u+1}, v{b+2}, v{b+3}')
        for h_ in range(2):
            e.I(f'v_lshlrev_b32 v{b+2*h_}, 16, v{u+h_}')
            e.I(f'v_and_b32 v{b+2*h_+1}, 0xffff0000, v{u+h_}')
            e.I(f'v_lshlrev_b32 v{u+2+2*h_}, 16, v{GR+2*t+h_}')
            e.I(f'v_and_b32 v{u+3+2*h_}, 0xffff0000, v{GR+2*t+h_}')
        for k in range(4): e.I(f'v_mul_f32 v{b+k}, v{b+k}, v{u+2+k}')
        e.I(f'v_cvt_pk_bf16_f32 v{u}, v{b}, v{b+1}')
        e.I(f'v_cvt_pk_bf16_f32 v{u+1}, v{b+2}, v{b+3}')
        for h_ in range(2):
            e.I(f'v_lshlrev_b32 v{b+2*h_}, 16, v{u+h_}')
            e.I(f'v_and_b32 v{b+2*h_+1}, 0xffff0000, v{u+h_}')
            e.I(f'v_lshlrev_b32 v{u+2+2*h_}, 16, v{XR_+2*t+h_}')
            e.I(f'v_and_b32 v{u+3+2*h_}, 0xffff0000, v{XR_+2*t+h_}')
        for k in range(4): e.I(f'v_add_f32 v{b+k}, v{b+k}, v{u+2+k}')
        e.I(f'v_cvt_pk_bf16_f32 v{u+6}, v{b}, v{b+1}')
        e.I(f'v_cvt_pk_bf16_f32 v{u+7}, v{b+2}, v{b+3}')
        e.I(f'buffer_store_dwordx2 {vr(u+6,2)}, v5, s[12:15], s48 offen offset:{TO[t]*32}{("", " sc1", " nt")[opt.ost]}')
    TS(e, 2)
    if opt.ts: e.I('s_lshr_b32 s50, s30, 6')
    TSflush(e, 's50')
    e.I('s_add_u32 s30, s30, 64')
    e.I('s_cmp_lt_u32 s30, s33')
    e.I(f's_cbranch_scc1 {top}')
    DSTAMP(e, 5)
    e.I(f's_cmp_lg_u32 s30, {1279 + 64}')
    e.I('s_cbranch_scc1 L_end')
    e.I('s_mov_b32 exec_hi, 0xffff')
    e.I(f'global_store_dword v3, v6, s[74:75] offset:{D_TR} sc1')
    e.I('s_endpgm')

def gen_mainkernel(e):
    kernel_head(e, MAIN)
    e.I('s_cmp_ge_u32 s2, 256')
    e.I('s_cbranch_scc1 L_end')
    e.I('s_load_dwordx2 s[32:33], s[0:1], 96')
    e.I('s_load_dwordx4 s[60:63], s[0:1], 16')
    e.I('s_load_dwordx4 s[64:67], s[0:1], 32')
    e.I('s_load_dwordx4 s[52:55], s[0:1], 0')
    e.I('s_load_dwordx4 s[56:59], s[0:1], 64')
    e.I('s_load_dwordx4 s[72:75], s[0:1], 80')
    TS(e, 0)
    e.I('s_getreg_b32 s24, hwreg(HW_REG_XCC_ID)')
    e.I('v_and_b32 v1, 63, v0')
    e.I('v_lshlrev_b32 v2, 4, v1')
    e.I('v_lshrrev_b32 v3, 6, v0')
    e.I('v_readfirstlane_b32 s22, v3')
    if opt.cwarm2:
        e.I('s_getpc_b64 s[34:35]')
        e.L('L_pc')
        e.I('s_lshr_b32 s36, s2, 3')
        e.I('s_lshl_b32 s36, s36, 2')
        e.I('v_add_u32 v3, s36, v3')
        e.I(f'v_mul_u32_u24 v3, {opt.cwarm2}, v3')
        e.I(f'v_min_u32 v4, {opt.cwarm2 - 1}, v1')
        e.I('v_add_u32 v3, v3, v4')
        e.I('v_lshlrev_b32 v3, 7, v3')
        e.I('v_min_u32 v3, L_last-L_pc, v3')
        e.I('v_mov_b32 v5, s35')
        e.I('v_add_co_u32 v4, vcc, s34, v3')
        e.I('v_addc_co_u32 v5, vcc, 0, v5, vcc')
        e.I('global_load_dword v255, v[4:5], off')
    if opt.force_slow:
        e.I('s_lshr_b32 s20, s2, 5'); e.I('s_and_b32 s21, s2, 31')
    else:
        e.I('s_and_b32 s20, s2, 7'); e.I('s_lshr_b32 s21, s2, 3')
    e.I('s_and_b32 s24, s24, 15')
    e.I('s_lshl_b32 s96, s20, 4')
    e.I('s_and_b32 s25, s24, 12')
    e.I('s_add_u32 s96, s96, s25')
    e.I('s_and_b32 s25, s24, 3')
    e.I('s_lshl_b32 s25, s25, 3')
    e.I('s_lshl_b32 s97, 1, s25')
    e.I('s_waitcnt lgkmcnt(0)')
    e.I('s_mov_b64 s[70:71], s[72:73]')
    e.I('s_mov_b64 s[68:69], s[52:53]')
    srd(e, 4, 32, WS_BYTES)
    TS(e, 1)
    TSflush(e, '70')
    if opt.dstamp: e.I('s_lshl_b32 s98, s21, 2'); e.I('s_add_u32 s98, s98, s22')
    DSTAMP(e, 0, 's_cmp_eq_u32 s98, 84', 'neg')
    e.I('s_cmp_ge_u32 s21, 22'); e.I('s_cbranch_scc1 L_help')
    e.I('s_sub_u32 s24, s21, 12')
    if opt.urg: e.I('s_cmp_lt_u32 s24, 2')
    else: e.I('s_cmp_eq_u32 s24, 1')
    e.I('s_cbranch_scc1 L_urg')
    register(e, 3, 4)
    e.I('s_cmp_ge_u32 s21, 12'); e.I('s_cbranch_scc1 L_wo')
    role_qkv(e)
    e.L('L_urg')
    srd(e, 8, 52, 2048 * 1280); srd(e, 12, 54, 8 * 1280)
    e.I('s_cmp_lg_u32 s24, 0')
    e.I('s_cbranch_scc1 L_um')
    ln_addr(e)
    e.I('s_mul_i32 s25, s20, 20480')
    ln_load(e, 16, 's25')
    e.I('s_waitcnt vmcnt(0)')
    ln_compute(e, 16, 's25')
    e.I('s_branch L_ur')
    e.L('L_um')
    mem0_copy(e, None, 0, opt.inl)
    e.I('s_mul_i32 s41, s20, 10240')
    e.I(f's_add_u32 s41, s41, {MEM}')
    e.I('s_waitcnt vmcnt(0)')
    mem0_copy(e, 's41', 1)
    e.L('L_ur')
    e.I('s_waitcnt vmcnt(0)')
    e.I('s_barrier')
    register(e, 3, 4)
    e.L('L_wo'); role_sw(e)
    e.L('L_help')
    srd(e, 8, 52, 2048 * 1280)
    e.I('s_mul_i32 s24, s20, 10')
    e.I('s_add_u32 s24, s24, s21')
    e.I('s_sub_u32 s24, s24, 22')
    if opt.urg: init_fill(e, 's24', 80)
    ln_addr(e)
    e.I('s_mul_i32 s25, s24, 20480')
    if opt.urg: e.I(f's_add_u32 s25, s25, {8*20480}')
    e.I(f's_add_u32 s26, s25, {80*20480}')
    ln_load(e, 16, 's25')
    ln_load(e, 36, 's26')
    if opt.urg:
        e.I('s_waitcnt vmcnt(10)')
        e.I('s_barrier')
        register(e, 3, 4)
    elif opt.pfh:
        srd(e, 12, 64, 640 * 12288); srd(e, 16, 60, 640 * 12288)
        e.I('s_sub_u32 s27, s21, 22')
        e.I('s_lshl_b32 s27, s27, 2')
        e.I('s_add_u32 s27, s27, s22')
        prefetch_w(e, 's27', 0, opt.pfh, 124, 's[12:15]', 's[16:19]')
    else: init_fill(e, 's24', 80)
    e.I(f's_waitcnt vmcnt({3*opt.pfh})')
    ln_compute(e, 16, 's25')
    e.I(f's_cmp_ge_u32 s24, {40 if opt.urg else 48}')
    e.I('s_cbranch_scc1 L_hl')
    ln_compute(e, 36, 's26')
    e.L('L_hl')
    if opt.pfh: init_fill(e, 's24', 80)
    e.I('s_waitcnt vmcnt(0)')
    e.I('s_barrier')
    if opt.urg: count_up(e, 3, D_W)
    else: register(e, 3, 4)
    TS(e, 0)
    TSflush(e, '69')
    if opt.touch2:
        wait_reg(e, 16, opt.rsleep)
        e.I('s_sub_u32 s24, s21, 22')
        e.I('s_lshl_b32 s25, s20, 2')
        e.I('s_add_u32 s25, s25, s22')
        touch_jobs(e, [(XN + k * 40960, 10240, 40) for k in range(3)] + [(XN + k * 40960 + 5120, 10240, 40) for k in range(3)], 's24', 10, 's22', 18)
        jobs = []
        for sl in range(4): jobs += [(MEM + sl * MEM_SLOT, 2560, 20), (XR + sl * XR_SLOT, 6144, 48), (VR + sl * VR_SLOT, 3072, 24)]
        touch_jobs(e, jobs[::-1][:4] + jobs[:8], 's24', 10, 's25', 24, 6)
    e.I('s_cmp_ge_u32 s21, 29'); e.I('s_cbranch_scc1 L_ffn')
    e.I('s_cmp_lt_u32 s21, 27'); e.I('s_cbranch_scc1 L_xw')
    role_att(e)
    e.L('L_xw'); role_xw(e)
    e.L('L_ffn'); role_ffn(e)
    e.L('L_cmb'); role_cmb(e)
    e.L('L_fail')
    e.I('s_mov_b64 exec, 1')
    e.I('s_lshl_b32 s31, s31, 2')
    e.I('v_mov_b32 v3, s31')
    e.I('v_mov_b32 v4, 1')
    e.I('global_atomic_add v3, v4, s[74:75]')
    e.L('L_end')
    e.L('L_last')
    e.I('s_endpgm')

def build(path):
    import gen_pre
    gen_pre.DIAG[0] = opt.noinit
    for k in range(3): NT[k] = ' nt' if opt.pnt >> k & 1 else ''
    hdr = open('cdna_kernels/' + NAME + '.s.ref').read().split('\n')
    e = Em()
    for l in hdr:
        if l.startswith(';') and '@launch' not in l and 'Override launch' not in l and 'grid=ceil' not in l: e.raw(l)
    e.raw(f'; @launch grid=(256,1,1) block=(256,1,1) lds=163840')
    e.raw('.amdgcn_target "amdgcn-amd-amdhsa--gfx950"')
    gen_mainkernel(e)
    kernel_desc(e, MAIN, 512, 100, 256)
    hazard.PIPE = bool(opt.pipe)
    lines, added = hazard.pad(e.lines)
    open(path, 'w').write('\n'.join(lines) + '\n')
    n = sum(1 for l in lines if l.startswith('    ') and not l.strip().startswith(';'))
    print(f'wrote {path}: {n} instructions, {added} nops added')

if __name__ == '__main__':
    out = sys.argv[1] if len(sys.argv) > 1 else 'cdna_kernels/' + NAME + '.s'
    if 'slow' in sys.argv[2:]: opt.force_slow = True
    if 'ts' in sys.argv[2:]: opt.ts = True
    for k in ('nobg', 'ackpoll', 'noxw'):
        if k in sys.argv[2:]: setattr(opt, k, True)
    for a_ in sys.argv[2:]:
        if '=' in a_: k_, v_ = a_.split('='); setattr(opt, k_, int(v_))
    build(out)
```

```python
import sys, struct
from asmlib import *
from layout import *
import hazard
from gen_pre import *

NAME = 'recurrent_scan__memory_aug_recurrent_mem_tr__dense_activation_relu__prompt'
MAIN = NAME + '_kernel'
PRE = 'prep_kernel'
LDS_TOTAL = 131072
LDS_ROLE = 131072
TMO = 1 << 18
def f2u(x): return struct.unpack('<I', struct.pack('<f', x))[0]
SC_L2E = f2u(192 ** -0.5 * 1.4426950408889634)
NEG_BIG = f2u(-1e30)
MFMA = 'v_mfma_f32_16x16x32_bf16'
MFMA16 = 'v_mfma_f32_16x16x16_bf16'
SMF = 'v_smfmac_f32_16x16x64_bf16'
WS = 's[4:7]'
WFL = ['', ' nt', ' sc1', ' sc0 sc1', ' sc1 nt', ' sc0 sc1 nt']

class Opt:
    force_slow = False
    ts = False
    nobg = False
    ackpoll = False
    noxw = False
    pdelay = 0
    vdelay = 0
    kbar = 0
    kpre = 12
    kin = 12
    fresh = 0
    pdiag = 0
    pflip = 0
    touch = 1
    nofc = 0
    nopx = 0
    nocmb = 0
    cdepth = 2
    ffnnt = 0
    pr = 1
    pfar = 0
    vpre = 0
    vmpos = 2
    smpre = 1
    smgap = 3
    ldgap = 30
    kp = 0
    kcs = 0
    kce = 12
    xlate = 4
    csleep = 8
    cwarm = 61
    c2sleep = 4
    clag = 2
    lsleep = 8
    xsleep = 2
    asleep = 2
    cdiag = 0
    n1 = 5
    n2 = 4
    n3 = 0
    thin = 1
    split = 2
    eord = 1
    inl = 1
    s62 = 1
    abp = 1
    x2e = 0
    kxl = 0
    vxe = 0
    qlead = 1
    pvord = 0
    pvl = 2
    qc = 1220
    f63 = 1
    two = 1
    nc = 1
    sa = 4
    sb = 7
    cvx = 24
    nod = 1
    sord = 1
    thin1 = 1
    pvmix = 1
    vin = 3
    zin = 0
    rdmix = 2
    t9 = -1
    vgap = 0
    fv = 11
    pipe = 1
    ktight = 1
    vx2 = 1
    ox4 = 1
    remap = 1
    fq = 3
    vown = 1
    g1 = 0
    g2 = 0
    vpos = 1
    xg1 = 0
    xg2 = 0
    fwait = 3
    ptouch = 1
    spec = 1
    mwait = 0
    mpre = 2
    kgap = 15
    noinit = 0
    pfh = 0
    wb = 0
    ost = 0
    mprobe = 0
    kx = 0
    dstamp = 0
    hwv = 7
    t63 = 1
    esleep = 1
    tpos = 0
    pmf = 6
    pmf2 = 4
    urg = 0
    rsleep = 16
    cwarm2 = 0
    tord = 0
    pfs = 0
    swlate = 1
    fpos = 7
    heads = 1
    hdelay = 0
    wnb = 3
    wrows = 320
    touch2 = 1
    pnt = 1
    wnt = 1
    wthr = 64
    xpf = 10
    xdma0 = 10
    xdmas = 1
    pbf = 1
    rpos = 9
    mbar = 1
    pspin = 0
    nobulk = 0
opt = Opt()

def vr(i, n=4): return f'v[{i}:{i+n-1}]'
def ar(i, n=4): return f'a[{i}:{i+n-1}]'

def maxchain(e, dst, regs, op='u32'):
    regs = list(regs)
    e.I(f'v_max3_{op} v{dst}, v{regs[0]}, v{regs[1]}, v{regs[2]}')
    rest = regs[3:]
    while rest:
        if len(rest) >= 2:
            e.I(f'v_max3_{op} v{dst}, v{dst}, v{rest[0]}, v{rest[1]}'); rest = rest[2:]
        else:
            e.I(f'v_max_{op} v{dst}, v{dst}, v{rest[0]}'); rest = rest[1:]

def check_sent(e, regs, t0, t1):
    regs = list(regs)
    if len(regs) >= 8:
        h = len(regs) // 2
        A, B = regs[:h], regs[h:]
        ea, eb = Em(), Em()
        maxchain(ea, t0, A); maxchain(eb, t1, B)
        for i in range(max(len(ea.lines), len(eb.lines))):
            if i < len(ea.lines): e.lines.append(ea.lines[i])
            if i < len(eb.lines): e.lines.append(eb.lines[i])
        e.I(f'v_max_u32 v{t0}, v{t0}, v{t1}')
    else:
        maxchain(e, t0, regs)
    e.I(f'v_cmp_eq_u32 vcc, -1, v{t0}')
def chunk_regs(base, n, step):
    return list(range(base, base + n, step)) if opt.thin else list(range(base, base + n))

def poll2(e, issue, nl, regsA, regsB, consume, t0, t1, code, early=None):
    lp, dA, dB, dd = e.lab('Lp'), e.lab('LdA'), e.lab('LdB'), e.lab('Ldd')
    e.I(f's_mov_b32 s31, {TMO}')
    issue(regsA)
    e.L(lp)
    issue(regsB)
    e.I(f's_waitcnt vmcnt({nl})')
    if early: early(regsA)
    check_sent(e, chunk_regs(regsA, 4 * nl, 4), t0, t1)
    e.I(f's_cbranch_vccz {dA}')
    issue(regsA)
    e.I(f's_waitcnt vmcnt({nl})')
    if early: early(regsB)
    check_sent(e, chunk_regs(regsB, 4 * nl, 4), t0, t1)
    e.I(f's_cbranch_vccz {dB}')
    e.I('s_sub_u32 s31, s31, 1')
    e.I(f's_cbranch_scc0 {lp}')
    e.I(f's_mov_b32 s31, {code}')
    e.I('s_branch L_fail')
    e.L(dB)
    consume(regsB)
    e.I(f's_branch {dd}')
    e.L(dA)
    consume(regsA)
    e.L(dd)

def wait_flags(e, vaddr, sofs, mask, vt, code, sleep=0, dbg=False):
    lp, dn = e.lab('Lf'), e.lab('Lfd')
    e.I(f's_mov_b32 s31, {TMO}')
    if mask > 0xffffffff or mask < 0: e.I(f's_mov_b64 exec, {mask}')
    else:
        e.I(f's_mov_b32 exec_lo, {mask:#x}'); e.I('s_mov_b32 exec_hi, 0')
    e.L(lp)
    if dbg: e.I(f'global_load_dword v{vt}, v{vaddr}, s[74:75] offset:{sofs} sc1')
    else: e.I(f'buffer_load_dword v{vt}, v{vaddr}, {WS}, {sofs} offen sc1')
    e.I('s_waitcnt vmcnt(0)')
    e.I(f'v_cmp_eq_u32 vcc, 0, v{vt}')
    e.I(f's_cbranch_vccz {dn}')
    if sleep: e.I(f's_sleep {sleep}')
    e.I('s_sub_u32 s31, s31, 1')
    e.I(f's_cbranch_scc0 {lp}')
    e.I(f's_mov_b32 s31, {code}')
    e.I('s_branch L_fail')
    e.L(dn)
    e.I('s_mov_b64 exec, -1')

D_TR, D_PAR, D_REG = 64, 96, 128
def register(e, va, vd):
    sk = e.lab('Lrg')
    e.I('s_cmp_lg_u32 s22, 0')
    e.I(f's_cbranch_scc1 {sk}')
    e.I(f'v_mov_b32 v{va}, s96')
    e.I(f'v_mov_b32 v{vd}, s97')
    e.I('s_mov_b64 exec, 1')
    e.I(f'global_atomic_add v{va}, v{vd}, s[74:75] offset:{D_REG} sc1')
    e.I('s_mov_b64 exec, -1')
    e.L(sk)
D_W = 68
def wait_count(e, t, off, n, sleep):
    lp, dn = e.lab('Lwc'), e.lab('Lwe')
    e.I(f's_mov_b32 s31, {TMO}')
    e.I(f'v_mov_b32 v{t+1}, 0')
    e.L(lp)
    e.I(f'global_load_dword v{t}, v{t+1}, s[74:75] offset:{off} sc1')
    e.I('s_waitcnt vmcnt(0)')
    e.I(f'v_cmp_gt_u32 vcc, {n}, v{t}')
    e.I(f's_cbranch_vccz {dn}')
    e.I(f's_sleep {sleep}')
    e.I('s_sub_u32 s31, s31, 1')
    e.I(f's_cbranch_scc0 {lp}')
    e.I('s_mov_b32 s31, 10')
    e.I('s_branch L_fail')
    e.L(dn)
def wait_first(e, t, seg=0):
    wait_reg(e, t, 32)
    e.I('s_lshl_b32 s38, s20, 8')
    e.I(f's_add_u32 s38, s38, {FLGQ + seg*2048}')
    e.I(f'v_lshlrev_b32 v{t+1}, 6, v1')
    wait_flags(e, t + 1, 's38', 0xf, t, 15, sleep=16)
def count_up(e, t, off):
    sk = e.lab('Lcu')
    e.I('s_cmp_lg_u32 s22, 0')
    e.I(f's_cbranch_scc1 {sk}')
    e.I(f'v_mov_b32 v{t}, 0'); e.I(f'v_mov_b32 v{t+1}, 1')
    e.I('s_mov_b64 exec, 1')
    e.I(f'global_atomic_add v{t}, v{t+1}, s[74:75] offset:{off} sc1')
    e.I('s_mov_b64 exec, -1')
    e.L(sk)
def wait_reg(e, t, sleep=4):
    lp, dn = e.lab('Lwr'), e.lab('Lwd')
    e.I(f's_mov_b32 s31, {TMO}')
    e.I(f'v_lshlrev_b32 v{t+2}, 2, v1')
    e.I('s_mov_b32 exec_hi, 0')
    e.L(lp)
    e.I(f'global_load_dword v{t}, v{t+2}, s[74:75] offset:{D_REG} sc1')
    e.I('s_mov_b32 s23, 0')
    e.I('s_mov_b32 s38, 0')
    e.I('s_waitcnt vmcnt(0)')
    for k in range(4):
        e.I(f'v_cmp_eq_u32 vcc, {0x20 << (8*k):#x}, v{t}')
        e.I('s_or_b32 s38, s38, vcc_lo')
    e.I(f'v_sad_u8 v{t+1}, v{t}, 0, 0')
    e.I('s_bcnt1_i32_b32 s38, s38')
    e.I('s_cmp_eq_u32 s38, 8')
    e.I(f's_cbranch_scc1 {dn}')
    for sh in (1, 2, 4, 8): e.I(f'v_add_u32_dpp v{t+1}, v{t+1}, v{t+1} row_shr:{sh} row_mask:0xf bank_mask:0xf bound_ctrl:0')
    e.I(f'v_readlane_b32 s38, v{t+1}, 15')
    e.I(f'v_readlane_b32 s39, v{t+1}, 31')
    e.I('s_mov_b32 s23, 1')
    e.I('s_add_u32 s38, s38, s39')
    e.I('s_cmp_eq_u32 s38, 256')
    e.I(f's_cbranch_scc1 {dn}')
    e.I(f's_sleep {sleep}')
    e.I('s_sub_u32 s31, s31, 1')
    e.I(f's_cbranch_scc0 {lp}')
    e.I('s_mov_b32 s31, 10')
    e.I('s_branch L_fail')
    e.L(dn)
    e.I('s_mov_b64 exec, -1')

def set_flag(e, vaddr, sofs, vone, fl):
    e.I('s_mov_b64 exec, 1')
    e.I(f'buffer_store_dword v{vone}, v{vaddr}, {WS}, {sofs} offen{fl}')
    e.I('s_mov_b64 exec, -1')

def xg_reduce(e, op, x, t):
    e.I(f'v_mov_b32 v{t}, v{x}')
    e.I(f'v_permlane16_swap_b32 v{x}, v{t}')
    e.I(f'{op} v{x}, v{x}, v{t}')
    e.I(f'v_mov_b32 v{t}, v{x}')
    e.I(f'v_permlane32_swap_b32 v{x}, v{t}')
    e.I(f'{op} v{x}, v{x}, v{t}')

def softmax12(e, S, P, t):
    maxchain(e, t, range(S, S + 12), 'f32')
    xg_reduce(e, 'v_max_f32', t, t + 1)
    e.I(f'v_mul_f32 v{t}, s53, v{t}')
    for i in range(12):
        e.I(f'v_fma_f32 v{S+i}, v{S+i}, s52, v{t}')
    for i in range(12):
        e.I(f'v_exp_f32 v{S+i}, v{S+i}')
    e.I(f'v_add_f32 v{t+2}, v{S}, v{S+1}')
    e.I(f'v_add_f32 v{t+3}, v{S+2}, v{S+3}')
    for i in range(4, 12, 2):
        e.I(f'v_add_f32 v{t+2}, v{t+2}, v{S+i}')
        e.I(f'v_add_f32 v{t+3}, v{t+3}, v{S+i+1}')
    e.I(f'v_add_f32 v{t+2}, v{t+2}, v{t+3}')
    xg_reduce(e, 'v_add_f32', t + 2, t + 3)
    e.I(f'v_rcp_f32 v{t+2}, v{t+2}')
    for i in range(12):
        e.I(f'v_mul_f32 v{S+i}, v{S+i}, v{t+2}')
    for i in range(6):
        e.I(f'v_cvt_pk_bf16_f32 v{P+i}, v{S+2*i}, v{S+2*i+1}')

def softmax_list(S, n, P, t):
    x = Em()
    maxchain(x, t, range(S, S + n), 'f32')
    xg_reduce(x, 'v_max_f32', t, t + 1)
    x.I(f'v_mul_f32 v{t}, s53, v{t}')
    for i in range(n): x.I(f'v_fma_f32 v{S+i}, v{S+i}, s52, v{t}')
    for i in range(n): x.I(f'v_exp_f32 v{S+i}, v{S+i}')
    x.I(f'v_add_f32 v{t+2}, v{S}, v{S+1}')
    x.I(f'v_add_f32 v{t+3}, v{S+2}, v{S+3}')
    for i in range(4, n, 2):
        x.I(f'v_add_f32 v{t+2}, v{t+2}, v{S+i}')
        x.I(f'v_add_f32 v{t+3}, v{t+3}, v{S+i+1}')
    x.I(f'v_add_f32 v{t+2}, v{t+2}, v{t+3}')
    xg_reduce(x, 'v_add_f32', t + 2, t + 3)
    x.I(f'v_rcp_f32 v{t+2}, v{t+2}')
    for i in range(n): x.I(f'v_mul_f32 v{S+i}, v{S+i}, v{t+2}')
    for i in range(n // 2): x.I(f'v_cvt_pk_bf16_f32 v{P+i}, v{S+2*i}, v{S+2*i+1}')
    return [l.strip() for l in x.lines]

def DSTAMP(e, idx, cond=None, op='umax'):
    if not opt.dstamp: return
    sk = e.lab('Lds')
    if cond: e.I(cond); e.I(f's_cbranch_scc0 {sk}')
    e.I('s_memtime s[98:99]' if op == 'clk' else 's_memrealtime s[98:99]')
    e.I('s_waitcnt lgkmcnt(0)')
    if op == 'neg': e.I('s_not_b32 s98, s98')
    e.I('s_mov_b64 exec, 1')
    e.I(f'v_mov_b32 v238, {idx*4}')
    e.I('v_mov_b32 v239, s98')
    e.I('global_atomic_umax v238, v239, s[74:75] sc1')
    e.I('s_mov_b64 exec, -1')
    e.L(sk)
def TS(e, k):
    if opt.ts: e.I(f's_memrealtime s[{76+2*k}:{77+2*k}]')
def TSflush(e, step, va=238, vd=239):
    if not opt.ts: return
    e.I('s_waitcnt lgkmcnt(0)')
    for k in range(10): e.I(f'v_writelane_b32 v{vd}, s{76+2*k}, {k}')
    e.I('s_lshl_b32 s76, s20, 5')
    e.I('s_add_u32 s76, s76, s21')
    e.I('s_lshl_b32 s76, s76, 2')
    e.I('s_add_u32 s76, s76, s22')
    e.I('s_mul_i32 s76, s76, 72')
    e.I(f's_add_u32 s76, s76, {step}')
    e.I('s_lshl_b32 s76, s76, 6')
    e.I(f's_add_u32 s76, s76, {DBGT}')
    e.I(f'v_lshlrev_b32 v{va}, 2, v1')
    e.I('s_mov_b64 exec, 0x3ff')
    e.I(f'buffer_store_dword v{vd}, v{va}, {WS}, s76 offen')
    e.I('s_mov_b64 exec, -1')

def lane_ig(e, vi, vg):
    e.I(f'v_and_b32 v{vi}, 15, v1')
    e.I(f'v_lshrrev_b32 v{vg}, 4, v1')

def load_weights(e, mats, RS, rows, paired, vA, vT, NB=3, bufoff=None, manual=False):
    CH = rows * 128
    ninst = rows // 8 // 4
    nk = rows // 32
    e.I(f'v_lshrrev_b32 v{vT}, 3, v1')
    if paired:
        e.I(f'v_bfe_u32 v{vT+1}, v1, 4, 2')
    else:
        e.I(f'v_bfe_u32 v{vT+1}, v1, 4, 1')
        e.I('s_and_b32 s54, s22, 1')
        e.I('s_lshl_b32 s54, s54, 1')
        e.I(f'v_or_b32 v{vT+1}, s54, v{vT+1}')
    e.I(f'v_lshlrev_b32 v{vT+1}, 1, v{vT+1}')
    e.I(f'v_and_b32 v{vT+2}, 7, v1')
    e.I(f'v_xor_b32 v{vT+2}, v{vT+2}, v{vT+1}')
    e.I(f's_mov_b32 s54, {RS}')
    e.I(f'v_mul_lo_u32 v{vA}, s54, v{vT}')
    e.I(f'v_lshl_add_u32 v{vA}, v{vT+2}, 4, v{vA}')
    e.I(f'v_lshrrev_b32 v{vT}, 4, v1')
    e.I(f'v_bfe_u32 v{vT+1}, v1, 2, 2')
    if paired:
        e.I(f'v_lshl_add_u32 v{vT+2}, v{vT}, 2, v{vT+1}')
        e.I(f'v_bfe_u32 v{vT}, v{vT+2}, 1, 2')
        second = 2048
    else:
        e.I(f'v_lshl_add_u32 v{vT+2}, v{vT}, 3, v{vT+1}')
        e.I(f'v_and_b32 v{vT}, 1, v{vT}')
        e.I(f'v_lshlrev_b32 v{vT}, 1, v{vT}')
        e.I(f'v_bfe_u32 v{vT+1}, v1, 3, 1')
        e.I(f'v_or_b32 v{vT}, v{vT}, v{vT+1}')
        second = 512
    e.I(f'v_xor_b32 v{vT}, s22, v{vT}')
    e.I(f'v_lshlrev_b32 v{vT+2}, 7, v{vT+2}')
    e.I(f'v_lshl_add_u32 v{vT+2}, v{vT}, 5, v{vT+2}')
    e.I(f'v_and_b32 v{vT}, 3, v1')
    e.I(f'v_lshl_add_u32 v{vT}, v{vT}, 3, v{vT+2}')
    bufoff = bufoff or [k * CH for k in range(NB)]
    for k in range(NB - 1, -1, -1):
        if bufoff[k]  or k: e.I(f'v_add_u32 v{vT+k}, {bufoff[k]}, v{vT}')
    chunks = []
    for (srd_, sofs, ab, nrows) in mats:
        for c in range(nrows // rows):
            chunks.append((srd_, sofs, ab + c * nk * 4, c * rows))
    e.I(f's_mul_i32 s55, s22, {8*RS}')
    e.I('s_lshl_b32 s56, s22, 10')
    def issue(ci, buf=None):
        srd_, sofs, ab, r0 = chunks[ci]
        if buf is None: buf = ci % NB
        e.I(f's_add_u32 s57, {sofs}, s55')
        if r0: e.I(f's_add_u32 s57, s57, {r0*RS}')
        for n in range(ninst):
            e.I(f's_add_u32 m0, s56, {bufoff[buf] + n*4096}')
            e.I(f'buffer_load_dwordx4 v{vA}, {srd_}, s57 offen{WFL[opt.wnt]} lds')
            if n + 1 < ninst: e.I(f's_add_u32 s57, s57, {32*RS}')
    def consume(ci, buf, pending):
        e.I(f's_waitcnt vmcnt({pending})')
        if ci < 8: TS(e, 2 + ci)
        e.I('s_barrier')
        srd_, sofs, ab, r0 = chunks[ci]
        for k in range(nk):
            e.I(f'ds_read_b64_tr_b16 {ar(ab+4*k,2)}, v{vT+buf} offset:{k*4096}')
            e.I(f'ds_read_b64_tr_b16 {ar(ab+4*k+2,2)}, v{vT+buf} offset:{k*4096+second}')
        e.I('s_waitcnt lgkmcnt(0)')
        e.I('s_barrier')
    if manual: return issue, consume
    for ci in range(min(NB, len(chunks))): issue(ci)
    for ci in range(len(chunks)):
        left = min(len(chunks) - 1 - ci, NB - 1)
        e.I(f's_waitcnt vmcnt({left*ninst})')
        if ci < 8: TS(e, 2 + ci)
        e.I('s_barrier')
        srd_, sofs, ab, r0 = chunks[ci]
        for k in range(nk):
            e.I(f'ds_read_b64_tr_b16 {ar(ab+4*k,2)}, v{vT+ci%NB} offset:{k*4096}')
            e.I(f'ds_read_b64_tr_b16 {ar(ab+4*k+2,2)}, v{vT+ci%NB} offset:{k*4096+second}')
        e.I('s_waitcnt lgkmcnt(0)')
        e.I('s_barrier')
        if ci + NB < len(chunks): issue(ci + NB)

def touch_jobs(e, jobs, sw, nw, sh, t, rot=0):
    sizes = sorted({min(n, 64) for _, _, n in jobs} | {n - 64 for _, _, n in jobs if n > 64})
    reg = {}
    for k, n in enumerate(sizes):
        reg[n] = t + 1 + k
        e.I(f'v_min_u32 v{reg[n]}, {n-1}, v1')
        e.I(f'v_lshlrev_b32 v{reg[n]}, 7, v{reg[n]}')
    flat = []
    for base, per, n in jobs:
        flat.append((base, per, min(n, 64)))
        if n > 64: flat.append((base + 8192, per, n - 64))
    for c in range(nw):
        sk = e.lab('Ltj')
        e.I(f's_cmp_lg_u32 {sw}, {c}')
        e.I(f's_cbranch_scc1 {sk}')
        for base, per, n in flat[(c - rot) % nw::nw]:
            e.I(f's_mul_i32 s38, {sh}, {per}')
            e.I(f's_add_u32 s38, s38, {base}')
            e.I(f'buffer_load_dword v{t}, v{reg[n]}, {WS}, s38 offen sc1')
        e.L(sk)

def prefetch_w(e, su, j0, j1, t, srdv, srdq):
    for k in range(3):
        e.I(f'v_add_u32 v{t+3}, {1024*k}, v2')
        e.I(f'v_cmp_le_u32 vcc, 1536, v{t+3}')
        e.I(f'v_add_u32 v{t+k}, {12288-1536}, v{t+3}')
        e.I(f'v_cndmask_b32 v{t+k}, v{t+3}, v{t+k}, vcc')
    e.I('s_mul_i32 s39, s20, 1536')
    e.I(f's_mul_i32 s38, {su}, {2*12288}')
    e.I('s_add_u32 s38, s38, s39')
    for j in range(j0, j1):
        row = 320 + 80 * j if j < 4 else 80 * (j - 4)
        e.I(f's_add_u32 s39, s38, {row*12288}')
        for k in range(3): e.I(f'buffer_load_dwordx4 {vr(t+4)}, v{t+k}, {srdv if j < 4 else srdq}, s39 offen{WFL[opt.wnt]}')

Q_LX, Q_LMEM = 0, 81920
def role_qkv(e):
    fl = ''
    WQ, WK, WV = 0, 80, 160
    MF = 16
    DQ, DK, DV = 96, 100, 104
    PA, PB = 108, 120
    XD = 132
    T0 = 160
    KEEP = 176; TCH = 180
    XA, VA, IDX, SEL, MP = 182, 183, 184, 185, 186
    XRA, XQA, XKA, OQK = 187, 188, 189, 190
    SENT = 248; ONE = 252
    e.I('s_mul_i32 s24, s21, 43')
    e.I('s_lshr_b32 s24, s24, 7')
    e.I('s_mul_i32 s25, s24, 3')
    e.I('s_sub_u32 s25, s21, s25')
    e.I('s_lshl_b32 s26, s20, 2')
    e.I('s_add_u32 s26, s26, s24')
    e.I('s_lshl_b32 s27, s25, 2')
    e.I('s_add_u32 s27, s27, s22')
    srd(e, 8, 60, 640 * 12288); srd(e, 12, 62, 640 * 12288); srd(e, 16, 64, 640 * 12288)
    e.I('s_mul_i32 s28, s26, 384')
    e.I('s_lshl_b32 s29, s25, 7')
    e.I('s_add_u32 s28, s28, s29')
    w_issue, w_consume = load_weights(e, [('s[12:15]', 's28', WK, 640), ('s[16:19]', 's28', WV, 640), ('s[8:11]', 's28', WQ, 640)], 12288, 320, False, 240, 241, 3,
                                      bufoff=[81920, 122880, 40960], manual=True)
    for ci in range(3): w_issue(ci)
    e.I('s_mul_i32 s38, s22, 3072')
    e.I('s_min_u32 s38, s38, 7168')
    e.I('v_add_u32 v3, s38, v2')
    e.I(f'v_add_u32 v5, {Q_LMEM}, v3')
    e.I(f'v_add_u32 v7, {Q_LMEM}, v2')
    lane_ig(e, 14, 15)
    e.I('s_lshr_b32 s38, s27, 1')
    e.I('s_lshl_b32 s38, s38, 10')
    e.I('s_and_b32 s39, s27, 1')
    e.I('s_lshl_b32 s39, s39, 3')
    e.I('s_add_u32 s38, s38, s39')
    e.I('v_add_u32 v8, s38, v2')
    e.I('v_bfe_u32 v11, v1, 2, 2')
    e.I('v_and_b32 v12, 3, v1')
    e.I(f'v_lshlrev_b32 v{XA}, 8, v11')
    e.I(f'v_lshl_add_u32 v{XA}, v15, 6, v{XA}')
    e.I(f'v_lshl_add_u32 v{XA}, v12, 4, v{XA}')
    e.I(f'v_add_u32 v{XA}, s38, v{XA}')
    if opt.eord:
        e.I('s_lshr_b32 s38, s27, 1')
        e.I('s_and_b32 s39, s27, 1')
        e.I('s_lshl_b32 s39, s39, 9')
        e.I('s_lshl_b32 s40, s38, 10')
        e.I('s_add_u32 s40, s40, s39')
        e.I('v_lshrrev_b32 v9, 1, v11')
        e.I('v_lshlrev_b32 v9, 8, v9')
        e.I('v_and_b32 v13, 1, v11')
        e.I('v_lshl_add_u32 v9, v13, 3, v9')
        e.I('v_lshl_add_u32 v9, v12, 4, v9')
        e.I(f'v_lshl_add_u32 v{XA}, v15, 6, v9')
        e.I(f'v_add_u32 v{XA}, s40, v{XA}')
        e.I('v_lshrrev_b32 v13, 1, v15')
        e.I(f'v_lshlrev_b32 v{OQK}, 8, v13')
        e.I(f'v_lshl_add_u32 v{OQK}, v14, 4, v{OQK}')
        e.I(f'v_add_u32 v{OQK}, s40, v{OQK}')
        e.I(f'v_and_b32 v{XQA}, 1, v15')
        e.I(f'v_mul_u32_u24 v{XKA}, {6144 if opt.ox4 else 8}, v{XQA}')
        e.I(f'v_add_u32 v{OQK}, v{OQK}, v{XKA}')
        e.I('s_cmp_ge_u32 s38, 3')
        e.I(f's_cselect_b32 s39, {3072 - 128}, 0')
        e.I('s_sub_u32 s40, s40, s39')
        e.I(f'v_lshl_add_u32 v{XRA}, v{XQA}, 6, v9')
        e.I(f'v_mul_u32_u24 v13, 3072, v13')
        e.I(f'v_add3_u32 v{XRA}, v{XRA}, v13, s40')
        e.I('v_lshrrev_b32 v13, 5, v1')
        e.I(f'v_lshl_or_b32 v{XQA}, v13, 31, v{XRA}')
        e.I('v_xor_b32 v13, 1, v13')
        e.I(f'v_lshl_or_b32 v{XKA}, v13, 31, v{XRA}')
    if opt.inl:
        e.I('v_lshlrev_b32 v13, 4, v12')
        e.I('v_sub_u32 v9, v9, v13')
        e.I('v_and_b32 v13, 1, v12')
        e.I('v_lshl_add_u32 v9, v13, 4, v9')
        e.I('v_lshrrev_b32 v13, 1, v12')
        e.I(f'v_lshl_add_u32 v{XA}, v15, 5, v9')
        e.I(f'v_add_u32 v{XQA}, s40, v{XA}')
        e.I(f'v_lshl_add_u32 v{XA}, v13, 7, v{XA}')
        e.I('s_add_u32 s41, s40, s39')
        e.I(f'v_add_u32 v{XA}, s41, v{XA}')
        e.I('s_cmp_ge_u32 s38, 3')
        e.I('s_cselect_b32 s41, 96, 0')
        e.I('s_sub_u32 s41, s40, s41')
        e.I('s_add_u32 s41, s41, 3072')
        e.I(f'v_lshl_add_u32 v{XKA}, v15, 6, v9')
        e.I(f'v_add_u32 v{XKA}, s41, v{XKA}')
        e.I('v_cmp_eq_u32 vcc, 1, v13')
        e.I(f'v_cndmask_b32 v{XRA}, v{XQA}, v{XKA}, vcc')
    e.I('v_and_b32 v13, 1, v15')
    e.I('v_lshlrev_b32 v13, 2, v13')
    e.I('v_lshrrev_b32 v9, 1, v15')
    e.I('v_lshl_add_u32 v13, v9, 1, v13')
    e.I('v_and_b32 v9, 1, v12')
    e.I('v_add_u32 v13, v13, v9')
    e.I('v_lshrrev_b32 v12, 1, v12')
    e.I('v_lshrrev_b32 v9, 1, v11')
    e.I('v_lshlrev_b32 v9, 8, v9')
    e.I('v_lshl_add_u32 v9, v12, 7, v9')
    e.I('v_lshl_add_u32 v9, v13, 4, v9')
    e.I(f'v_and_b32 v{VA}, 1, v11')
    e.I(f'v_lshl_add_u32 v9, v{VA}, 3, v9')
    e.I('s_lshl_b32 s38, s25, 10')
    e.I('s_lshr_b32 s39, s22, 1')
    e.I('s_lshl_b32 s39, s39, 9')
    e.I('s_add_u32 s38, s38, s39')
    e.I('s_and_b32 s39, s22, 1')
    e.I('s_lshl_b32 s39, s39, 2')
    e.I('s_add_u32 s38, s38, s39')
    e.I('v_add_u32 v9, s38, v9')
    e.I(f'v_lshlrev_b32 v{VA}, 8, v11')
    e.I(f'v_lshl_add_u32 v{VA}, v13, 4, v{VA}')
    e.I(f'v_lshl_add_u32 v{VA}, v12, 2, v{VA}')
    e.I('s_lshr_b32 s38, s27, 1')
    e.I('s_cmp_ge_u32 s38, 3')
    e.I('s_cselect_b32 s39, 3, 0')
    e.I('s_cselect_b32 s40, 128, 0')
    e.I('s_sub_u32 s38, s38, s39')
    e.I('s_lshl_b32 s38, s38, 10')
    e.I('s_add_u32 s38, s38, s40')
    e.I('s_and_b32 s39, s27, 1')
    e.I('s_lshl_b32 s39, s39, 3')
    e.I('s_add_u32 s38, s38, s39')
    e.I(f'v_add_u32 v{VA}, s38, v{VA}')
    if opt.vx2:
        e.I('v_and_b32 v12, 3, v1')
        e.I('v_lshlrev_b32 v13, 6, v15')
        e.I('v_lshl_add_u32 v13, v12, 4, v13')
        e.I('v_lshrrev_b32 v12, 5, v1')
        e.I('v_lshl_or_b32 v13, v12, 31, v13')
        e.I(f'v_lshl_add_u32 v{VA}, v11, 8, v13')
        e.I(f'v_add_u32 v{VA}, s38, v{VA}')
        e.I('v_lshrrev_b32 v9, 1, v11')
        e.I('v_lshl_add_u32 v9, v9, 8, v13')
        e.I('v_and_b32 v12, 1, v11')
        e.I('v_lshl_add_u32 v9, v12, 3, v9')
        e.I('s_lshl_b32 s38, s25, 10')
        e.I('s_lshr_b32 s39, s22, 1')
        e.I('s_lshl_b32 s39, s39, 9')
        e.I('s_add_u32 s38, s38, s39')
        e.I('s_and_b32 s39, s22, 1')
        e.I('s_lshl_b32 s39, s39, 7')
        e.I('s_add_u32 s38, s38, s39')
        e.I('v_add_u32 v9, s38, v9')
    if opt.inl:
        e.I('v_lshlrev_b32 v12, 5, v15')
        e.I(f'v_sub_u32 v{VA}, v{VA}, v12')
        e.I(f'v_and_b32 v{VA}, 0x7fffffff, v{VA}')
        e.I('v_and_b32 v9, 0x7fffffff, v9')
        e.I('s_and_b32 s39, s22, 1')
        e.I('s_mul_i32 s39, s39, 96')
        e.I('v_subrev_u32 v9, s39, v9')
        e.I('v_bfe_u32 v12, v1, 1, 1')
        e.I(f'v_lshl_or_b32 v{VA}, v12, 31, v{VA}')
        e.I('v_lshl_or_b32 v9, v12, 31, v9')
    e.I(f'v_mul_u32_u24 v{MP}, 5, v1')
    e.I(f'v_lshrrev_b32 v{MP}, 3, v{MP}')
    e.I(f'v_lshlrev_b32 v{MP}, 8, v{MP}')
    e.I(f'v_mov_b32 v{IDX}, 0x44444444')
    e.I('v_mov_b32 v11, 0xeeeeeeee')
    if opt.inl:
        e.I('v_and_b32 v12, 2, v1')
        e.I('v_cmp_lt_u32 vcc, 0, v12')
    else: e.I('v_cmp_lt_u32 vcc, 7, v14')
    e.I(f'v_cndmask_b32 v{IDX}, v{IDX}, v11, vcc')
    e.I(f'v_mov_b32 v{SEL}, 0x05040100')
    e.I('v_mov_b32 v11, 0x03020706')
    e.I('v_and_b32 v12, 1, v1')
    e.I('v_cmp_eq_u32 vcc, 1, v12')
    e.I(f'v_cndmask_b32 v{SEL}, v{SEL}, v11, vcc')
    e.I('s_mov_b32 s34, 0x33333333'); e.I('s_mov_b32 s35, 0x33333333')
    e.I('s_mov_b32 s36, 0xcccccccc'); e.I('s_mov_b32 s37, 0xcccccccc')
    for k in range(12): e.I(f'v_mov_b32 v{DQ+k}, 0')
    e.I('s_lshl_b32 s38, s27, 2')
    e.I(f'v_mov_b32 v{ONE+2}, s38')
    e.I(f'v_mov_b32 v{ONE}, 1')
    e.I(f'v_mov_b32 v{ONE+1}, 2')
    for k in range(4): e.I(f'v_mov_b32 v{SENT+k}, -1')
    e.I('s_mul_i32 s58, s26, 6144')
    e.I('s_mul_i32 s59, s20, 10240')
    e.I(f's_add_u32 s59, s59, {MEM}')
    e.I('s_mul_i32 s60, s26, 3072')
    e.I('s_lshl_b32 s61, s20, 6')
    e.I('s_lshl_b32 s38, s24, 2')
    e.I('s_add_u32 s61, s61, s38')
    e.I(f's_add_u32 s61, s61, {FLGOX}')
    e.I('v_mov_b32 v10, 0')

    nrd = [7]
    def late_list():
        vs = [f'buffer_store_dwordx2 {vr(KEEP+2,2)}, v{VA}, {WS}, s44 offen{fl}', f'buffer_store_dwordx2 {vr(SENT,2)}, v9, {WS}, s46 offen{fl}'] if opt.vx2 else \
             [f'buffer_store_dword v{KEEP+2}, v{VA}, {WS}, s44 offen{fl}', f'buffer_store_dword v{SENT}, v9, {WS}, s46 offen{fl}']
        return [f'buffer_store_dwordx2 {vr(KEEP,2)}, v{XA}, {WS}, s43 offen{fl}',
                f'buffer_store_dwordx2 {vr(SENT,2)}, v{XRA if opt.split else XA}, {WS}, s42 offen{fl}'] + vs
    def post2(D, t, keep, rm, st):
        QP1, QP2 = 'quad_perm:[1,0,3,2] row_mask:0xf bank_mask:0xf', f'quad_perm:[2,3,0,1] row_mask:{rm} bank_mask:0xf'
        return [[f'v_permlane32_swap_b32 v{D}, v{D+2}', f'v_permlane32_swap_b32 v{D+1}, v{D+3}'],
                [f'v_add_f32 v{t+2}, v{D}, v{D+2}', f'v_add_f32 v{t+3}, v{D+1}, v{D+3}', f'v_cvt_pk_bf16_f32 v{t}, v{t+2}, v{t+3}', f'v_cvt_pk_bf16_f32 v{t+1}, v{t+2}, v{t+3}'],
                [f'v_permlane32_swap_b32 v{t}, v{t+1}', 's_mov_b64 vcc, s[34:35]'],
                [f'v_mov_b32_dpp v{t+2}, v{t} {QP1}', f'v_mov_b32_dpp v{t+3}, v{t+1} {QP1}', f'v_perm_b32 v{t}, v{t+2}, v{t}, v{SEL}', f'v_perm_b32 v{t+1}, v{t+3}, v{t+1}, v{SEL}'],
                [f'v_cndmask_b32_dpp v{keep}, v{t+1}, v{t}, vcc {QP2}', 's_mov_b64 vcc, s[36:37]', f'v_cndmask_b32_dpp v{keep+1}, v{t}, v{t+1}, vcc {QP2}', st],
                [f'v_mov_b32 v{D+k}, 0' for k in range(4)]]
    def late_stores():
        for x_ in late_list(): e.I(x_)
    def xwork(late, mats=(2, 1, 0), dma=True):
        e.I('s_and_b32 s65, s64, 1')
        e.I('s_mul_i32 s66, s65, 40960')
        if opt.x2e and late:
            e.I('s_cmp_eq_u32 s64, 2')
            e.I('s_cselect_b32 s66, 122880, s66')
        e.I('v_add_u32 v12, s66, v2')
        e.I('s_xor_b32 s65, s65, 1')
        e.I('s_mul_i32 s65, s65, 40960')
        e.I('s_add_u32 s65, s65, s62')
        e.I('s_add_u32 s66, s64, 1')
        e.I('s_min_u32 s66, s66, 63')
        e.I('s_mul_i32 s66, s66, 40960')
        e.I('s_add_u32 s66, s66, s62')
        e.I(f's_add_u32 s66, s66, {XN}')
        e.I(f's_and_b32 s47, s64, {RD-1}')
        e.I(f's_mul_i32 s47, s47, {SEG_QX}')
        e.I('s_lshl_b32 s48, s58, 1')
        e.I('s_add_u32 s47, s47, s48')
        if late:
            e.I(f's_max_u32 s50, s64, {RD}')
            e.I(f's_sub_u32 s50, s50, {RD}')
            e.I('s_lshl_b32 s50, s50, 9')
            e.I('s_add_u32 s50, s50, s61')
            e.I(f'buffer_load_dword v{TCH}, v10, {WS}, s50 offen sc1')
        PF = opt.xpf
        def rd(n): e.I(f'ds_read_b128 {vr(MF + (n % 20)*4)}, v12 offset:{n*1024}')
        def out(m, rt, part=3):
            d = XD + (m*2+rt)*4; o = T0 + (m*2+rt)*2
            e.I(f'v_cvt_pk_bf16_f32 v{o}, v{d}, v{d+1}')
            e.I(f'v_cvt_pk_bf16_f32 v{o+1}, v{d+2}, v{d+3}')
            if opt.eord and opt.ox4 and m < 2:
                if rt == 1:
                    e.I(f's_add_u32 s48, s47, {(QX, KX, VX)[m]}')
                    e.I(f'v_permlane16_swap_b32 v{o-2}, v{o}')
                    e.I(f'v_permlane16_swap_b32 v{o-1}, v{o+1}')
                    e.I(f'buffer_store_dwordx4 {vr(o-2)}, v{OQK}, {WS}, s48 offen{fl}')
            else:
                e.I(f's_add_u32 s48, s47, {(QX, KX, VX)[m] + rt*6144}')
                e.I(f'buffer_store_dwordx2 {vr(o,2)}, v{OQK if opt.eord and m < 2 else 8}, {WS}, s48 offen{fl}')
        for n in range(PF): rd(n)
        ls = late_list() if late else []
        d0 = max(opt.xdma0, 6 + len(late_list()))
        for n in range(40):
            rt, kk = n // 20, n % 20
            e.I(f's_waitcnt lgkmcnt({min(40, n + PF) - (n + 1)})')
            f = vr(MF + (n % 20)*4)
            for m in mats:
                Wb = (WQ, WK, WV)[m]
                d = vr(XD + (m*2+rt)*4)
                e.I(f'{MFMA} {d}, {ar(Wb+4*kk)}, {f}, {0 if kk == 0 else d}')
            if n + PF < 40: rd(n + PF)
            if late and n == 5:
                bp = e.lab('Lbp')
                e.I(f's_cmp_lt_u32 s64, {RD}')
                e.I(f's_cbranch_scc1 {bp}')
                e.I('s_waitcnt vmcnt(0)')
                e.I(f'v_cmp_eq_u32 vcc, 0, v{TCH}')
                e.I(f's_cbranch_vccz {bp}')
                wait_flags(e, 10, 's50', 1, TCH, 13, sleep=1)
                e.L(bp)
            if n >= 6 and ls: e.I(ls.pop(0))
            elif dma and n >= d0 and (n - d0) % opt.xdmas == 0 and (n - d0) // opt.xdmas < 10:
                m = (n - d0) // opt.xdmas
                e.I(f's_add_u32 m0, s65, {m*1024}')
                e.I(f'buffer_load_dwordx4 v2, {WS}, s66 offen lds')
                e.I('s_add_u32 s66, s66, 1024')
            k0 = 23 if len(mats) > 1 else 28
            if k0 <= n < k0 + len(mats): out(mats[n - k0], 0)
        for m in mats: out(m, 1)
    def flag_addr(back):
        e.I(f's_sub_u32 s51, s64, {back}')
        e.I('s_lshl_b32 s51, s51, 5')
        e.I('s_add_u32 s51, s51, s26')
        e.I('s_lshl_b32 s51, s51, 6')
        e.I(f's_add_u32 s51, s51, {FLGQ}')
    def flag_n():
        flag_addr(0)
        e.I('s_waitcnt vmcnt(0)')
        set_flag(e, ONE + 2, 's51', ONE, fl)
    def mem_part():
        e.I('s_and_b32 s38, s30, 3')
        e.I('s_xor_b32 s39, s38, 2')
        e.I(f's_mul_i32 s40, s38, {MEM_SLOT}')
        e.I('s_add_u32 s40, s40, s59')
        e.I(f's_mul_i32 s41, s38, {XR_SLOT}')
        e.I('s_add_u32 s41, s41, s58')
        e.I(f's_add_u32 s41, s41, {XR}')
        e.I(f's_mul_i32 s42, s39, {XR_SLOT}')
        e.I('s_add_u32 s42, s42, s58')
        e.I(f's_add_u32 s42, s42, {XR}')
        e.I(f's_and_b32 s44, s30, {RD-1}')
        e.I(f's_mul_i32 s43, s44, {SEG_XP}')
        e.I('s_add_u32 s43, s43, s58')
        e.I(f's_add_u32 s43, s43, {XP}')
        e.I(f's_mul_i32 s44, s44, {SEG_VM}')
        e.I('s_add_u32 s44, s44, s60')
        e.I(f's_add_u32 s44, s44, {VM}')
        e.I(f's_mul_i32 s45, s38, {VR_SLOT}')
        e.I('s_add_u32 s45, s45, s60')
        e.I(f's_add_u32 s45, s45, {VR}')
        e.I(f's_mul_i32 s46, s39, {VR_SLOT}')
        e.I('s_add_u32 s46, s46, s60')
        e.I(f's_add_u32 s46, s46, {VR}')
        def issue(b):
            for k in range(3): e.I(f'buffer_load_dwordx4 {vr(b+4*k)}, v3, {WS}, s40 offen offset:{k*1024} sc1')
        def early(b):
            for k in range(3): e.I(f'ds_write_b128 v5, {vr(b+4*k)} offset:{k*1024}')
        flag_addr(1)
        wl = [e.lab('Lmw') for _ in range(4)]; jn = e.lab('Lmj')
        for w in range(1, 4):
            e.I(f's_cmp_eq_u32 s22, {w}')
            e.I(f's_cbranch_scc1 {wl[w]}')
        def sm(d, W, src, m): e.I(f'{SMF} {vr(d)}, {vr(src)}, {ar(W+8*m,8)}, v{IDX}')
        for w in range(4):
            e.L(wl[w])
            own = [min(3*w, 7) + k for k in range(3)]
            rest = [m for m in range(10) if m not in own]
            def consume(b):
                TS(e, 1)
                if not opt.spec: early(b)
                mine = [(d, W, b + 4*k, m) for k, m in enumerate(own) for d, W in ((DQ, WQ), (DK, WK))] + [(DV, WV, b + 4*k, m) for k, m in enumerate(own)]
                if opt.split == 1: mine = [(d, W, b + 4*k, m) for d, W in ((DQ, WQ), (DK, WK), (DV, WV))[:2 + opt.vown] for k, m in enumerate(own)]
                elif not opt.vown: mine = mine[:6]
                if opt.split == 1 and opt.fq == -3: e.I(FLAG())
                for x_ in mine[:opt.mpre]: sm(*x_)
                e.I('s_waitcnt lgkmcnt(0)')
                e.I('s_barrier')
                if opt.split == 1 and opt.fq == -2: e.I(FLAG())
                rl = [f'ds_read_b128 {vr(MF+4*k)}, v7 offset:{m*1024}' for k, m in enumerate(rds)]
                for x_ in rl[:opt.rdmix or 10]: e.I(x_)
                rl = rl[opt.rdmix or 10:]
                if opt.split == 1 and opt.fq == -1: e.I(FLAG())
                for n_, x_ in enumerate(mine[opt.mpre:]):
                    sm(*x_)
                    if rl: e.I(rl.pop(0))
                    if opt.split == 1 and opt.fq == 100 + n_: e.I(FLAG())
                for x_ in rl: e.I(x_)
            rds = rest + (own if not opt.vown else [])
            nrd[0] = len(rds)
            FLAG = lambda: f'buffer_store_dword v{ONE+opt.two}, v{ONE+2}, {WS}, s51 offen{fl}'
            if opt.mwait: e.I(f's_sleep {opt.mwait}')
            poll2(e, issue, 3, PA, PB, consume, T0, T0 + 1, 1, early if opt.spec else None)
            if opt.split == 1:
                seq = [(DQ, WQ, MF + 4*k, m) for k, m in enumerate(rest)] + [(DK, WK, MF + 4*k, m) for k, m in enumerate(rest)] + [(DV, WV, MF + 4*k, m) for k, m in enumerate(rds)]
                ins = {}
                for j_, g_ in enumerate(post2(DQ, T0 + 4, KEEP, '0x3', f'buffer_store_dwordx2 {vr(KEEP,2)}, v{XQA}, {WS}, s41 offen{fl}')): ins.setdefault(7 + j_, []).extend(g_)
                for j_, g_ in enumerate(post2(DK, T0 + 8, KEEP, '0xc', f'buffer_store_dwordx2 {vr(KEEP,2)}, v{XKA}, {WS}, s41 offen{fl}')): ins.setdefault(14 + (0, 1, 1, 2, 3, 4)[j_] if opt.ktight else 14 + j_, []).extend(g_)
                for n_, x_ in enumerate(seq):
                    if n_ < 7: e.I(f's_waitcnt lgkmcnt({len(rds) - 1 - n_})')
                    if n_ == 21: e.I('s_waitcnt lgkmcnt(0)')
                    sm(*x_)
                    if n_ == opt.fq: e.I(FLAG())
                    for y_ in ins.get(n_, []):
                        e.I(y_)
                        if f'v{XKA},' in y_: TS(e, 2)
                vpost()
            else:
                e.I('s_mov_b64 vcc, s[34:35]')
                for k, m in enumerate(rest):
                    e.I(f's_waitcnt lgkmcnt({len(rds)-1-k})')
                    sm(DQ, WQ, MF + 4*k, m)
                    if opt.fpos == k: e.I(FLAG())
                    if not opt.qlead or k < 5: sm(DK, WK, MF + 4*k, m)
                if opt.qlead:
                    for k in (5, 6):
                        sm(DK, WK, MF + 4*k, rest[k])
                        if opt.fpos == k + 2: e.I(FLAG())
                post(lambda k: sm(DV, WV, MF + 4*k, rds[k]))
            if w < 3: e.I(f's_branch {jn}')
        e.L(jn)
        e.I('v_xor_b32 v5, 0xc000, v5')
        e.I('v_xor_b32 v7, 0xc000, v7')
        TS(e, 3)
    def post(vm):
        if opt.inl:
            QP1, QP2 = 'quad_perm:[1,0,3,2] row_mask:0xf bank_mask:0xf', 'quad_perm:[2,3,0,1] row_mask:0xf bank_mask:0xf'
            FLAG = f'buffer_store_dword v{ONE+opt.two}, v{ONE+2}, {WS}, s51 offen{fl}'
            todo = list(range(nrd[0]))
            def vm1():
                if todo:
                    if todo[0] == 7: e.I('s_waitcnt lgkmcnt(0)')
                    vm(todo.pop(0))
            if opt.qlead:
                for r in range(2): e.I(f'v_add_f32 v{DQ+r}, v{DQ+r}, v{DQ+2+r}')
                e.I(f'v_cvt_pk_bf16_f32 v{T0}, v{DQ}, v{DQ+1}')
                if opt.fpos >= 9: e.I(FLAG)
                e.I(f'v_mov_b32 v{DQ+2}, 0')
                e.I(f'v_mov_b32_dpp v{T0+2}, v{T0} {QP1}')
                e.I(f'v_perm_b32 v{T0}, v{T0+2}, v{T0}, v{SEL}')
                for r in range(2): e.I(f'v_add_f32 v{DK+r}, v{DK+r}, v{DK+2+r}')
                e.I(f'v_cvt_pk_bf16_f32 v{T0+1}, v{DK}, v{DK+1}')
                if opt.vin & 1: vm1()
                e.I(f'v_mov_b32_dpp v{T0+3}, v{T0+1} {QP1}')
                e.I(f'v_perm_b32 v{T0+1}, v{T0+3}, v{T0+1}, v{SEL}')
            else:
                if opt.fpos == 8: e.I(FLAG)
                for m in range(opt.vpre): vm1()
                if opt.fpos == 9: e.I(FLAG)
                for D in (DQ, DK):
                    for r in range(2): e.I(f'v_add_f32 v{D+r}, v{D+r}, v{D+2+r}')
                if opt.fpos == 10: e.I(FLAG)
                e.I(f'v_cvt_pk_bf16_f32 v{T0}, v{DQ}, v{DQ+1}')
                e.I(f'v_cvt_pk_bf16_f32 v{T0+1}, v{DK}, v{DK+1}')
                if opt.vin & 1: vm1()
                if opt.fpos == 11: e.I(FLAG)
                e.I(f'v_mov_b32_dpp v{T0+2}, v{T0} {QP1}')
                e.I(f'v_mov_b32_dpp v{T0+3}, v{T0+1} {QP1}')
                e.I(f'v_perm_b32 v{T0}, v{T0+2}, v{T0}, v{SEL}')
                e.I(f'v_perm_b32 v{T0+1}, v{T0+3}, v{T0+1}, v{SEL}')
            if opt.vin & 2: vm1()
            if opt.fpos == 12 and not opt.qlead: e.I(FLAG)
            e.I(f'v_cndmask_b32_dpp v{KEEP}, v{T0+1}, v{T0}, vcc {QP2}')
            e.I('s_mov_b64 vcc, s[36:37]')
            e.I(f'v_cndmask_b32_dpp v{KEEP+1}, v{T0}, v{T0+1}, vcc {QP2}')
            e.I(f'buffer_store_dwordx2 {vr(KEEP,2)}, v{XRA}, {WS}, s41 offen{fl}')
            TS(e, 2)
            z = [f'v_mov_b32 v{DQ+k}, 0' for k in range(8)]
            while todo:
                vm1()
                if len(z) > 7 - opt.zin and todo: e.I(z.pop(0))
            for x_ in z: e.I(x_)
            e.I(f'v_add_f32 v{DV}, v{DV}, v{DV+2}')
            e.I(f'v_add_f32 v{DV+1}, v{DV+1}, v{DV+3}')
            e.I(f'v_cvt_pk_bf16_f32 v{T0}, v{DV}, v{DV+1}')
            e.I(f'v_mov_b32 v{DV+2}, 0'); e.I(f'v_mov_b32 v{DV+3}, 0')
            e.I(f'v_mov_b32_dpp v{T0+2}, v{T0} {QP1}')
            e.I(f'v_perm_b32 v{KEEP+2}, v{T0+2}, v{T0}, v{SEL}')
            e.I(f'v_mov_b32 v{DV}, 0'); e.I(f'v_mov_b32 v{DV+1}, 0')
            e.I(f'v_mov_b32_dpp v{KEEP+3}, v{KEEP+2} {QP2}')
            e.I(f'buffer_store_dwordx2 {vr(KEEP+2,2)}, v9, {WS}, s45 offen{fl}')
            return
        if opt.vgap:
            QP1, QP2 = 'quad_perm:[1,0,3,2] row_mask:0xf bank_mask:0xf', 'quad_perm:[2,3,0,1] row_mask:0xf bank_mask:0xf'
            L = [f'v_permlane32_swap_b32 v{DQ+r}, v{DK+r}' for r in range(4)] + [f'v_add_f32 v{DQ+r}, v{DQ+r}, v{DK+r}' for r in range(4)]
            L += [f'v_cvt_pk_bf16_f32 v{T0}, v{DQ}, v{DQ+1}', f'v_cvt_pk_bf16_f32 v{T0+1}, v{DQ+2}, v{DQ+3}', '*',
                  f'v_mov_b32_dpp v{T0+2}, v{T0} {QP1}', f'v_mov_b32_dpp v{T0+3}, v{T0+1} {QP1}', f'v_perm_b32 v{T0}, v{T0+2}, v{T0}, v{SEL}', f'v_perm_b32 v{T0+1}, v{T0+3}, v{T0+1}, v{SEL}', '*',
                  f'v_cndmask_b32_dpp v{KEEP}, v{T0+1}, v{T0}, vcc {QP2}', 's_mov_b64 vcc, s[36:37]', f'v_cndmask_b32_dpp v{KEEP+1}, v{T0}, v{T0+1}, vcc {QP2}',
                  f'buffer_store_dwordx2 {vr(KEEP,2)}, v{XRA if opt.split else XA}, {WS}, s41 offen{fl}']
            m = 0
            for m in range(opt.vpre): vm(m)
            m = opt.vpre; c = 0
            for n_, x_ in enumerate(L):
                if n_ == opt.fv: e.I(f'buffer_store_dword v{ONE+opt.two}, v{ONE+2}, {WS}, s51 offen{fl}'); c += 1
                if x_ == '*':
                    if m < 7 and c >= 2: vm(m); m += 1; c = 0
                    continue
                e.I(x_); c += 1
                if c >= opt.vgap and m < 7 and n_ < 16 and L[n_ + 1] != '*': vm(m); m += 1; c = 0
            TS(e, 2)
            while m < 7: vm(m); m += 1
            for k in range(8): e.I(f'v_mov_b32 v{DQ+k}, 0')
            vpost()
            return
        QP1, QP2 = 'quad_perm:[1,0,3,2] row_mask:0xf bank_mask:0xf', 'quad_perm:[2,3,0,1] row_mask:0xf bank_mask:0xf'
        nv = opt.vpre
        for m in range(nv): vm(m)
        if opt.fpos == 10: e.I(f'buffer_store_dword v{ONE+opt.two}, v{ONE+2}, {WS}, s51 offen{fl}')
        for r in range(4): e.I(f'v_permlane32_swap_b32 v{DQ+r}, v{DK+r}')
        for r in range(4): e.I(f'v_add_f32 v{DQ+r}, v{DQ+r}, v{DK+r}')
        e.I(f'v_cvt_pk_bf16_f32 v{T0}, v{DQ}, v{DQ+1}')
        e.I(f'v_cvt_pk_bf16_f32 v{T0+1}, v{DQ+2}, v{DQ+3}')
        vm(nv)
        if opt.fpos == 11: e.I(f'buffer_store_dword v{ONE+opt.two}, v{ONE+2}, {WS}, s51 offen{fl}')
        e.I(f'v_mov_b32_dpp v{T0+2}, v{T0} {QP1}')
        e.I(f'v_mov_b32_dpp v{T0+3}, v{T0+1} {QP1}')
        e.I(f'v_perm_b32 v{T0}, v{T0+2}, v{T0}, v{SEL}')
        e.I(f'v_perm_b32 v{T0+1}, v{T0+3}, v{T0+1}, v{SEL}')
        vm(nv + 1)
        if opt.fpos == 12: e.I(f'buffer_store_dword v{ONE+opt.two}, v{ONE+2}, {WS}, s51 offen{fl}')
        e.I(f'v_cndmask_b32_dpp v{KEEP}, v{T0+1}, v{T0}, vcc {QP2}')
        e.I('s_mov_b64 vcc, s[36:37]')
        e.I(f'v_cndmask_b32_dpp v{KEEP+1}, v{T0}, v{T0+1}, vcc {QP2}')
        e.I(f'buffer_store_dwordx2 {vr(KEEP,2)}, v{XRA if opt.split else XA}, {WS}, s41 offen{fl}')
        TS(e, 2)
        for m in range(nv + 2, 7): vm(m)
        for k in range(8): e.I(f'v_mov_b32 v{DQ+k}, 0')
        vpost()
    def vpost():
        if opt.vx2:
            for g_ in post2(DV, T0 + 4, KEEP + 2, '0xf', f'buffer_store_dwordx2 {vr(KEEP+2,2)}, v9, {WS}, s45 offen{fl}'):
                for y_ in g_: e.I(y_)
            return
        QP1 = 'quad_perm:[1,0,3,2] row_mask:0xf bank_mask:0xf'
        e.I(f'v_permlane32_swap_b32 v{DV}, v{DV+2}')
        e.I(f'v_permlane32_swap_b32 v{DV+1}, v{DV+3}')
        e.I(f'v_add_f32 v{DV}, v{DV}, v{DV+2}')
        e.I(f'v_add_f32 v{DV+1}, v{DV+1}, v{DV+3}')
        e.I(f'v_cvt_pk_bf16_f32 v{T0}, v{DV}, v{DV+1}')
        e.I(f'v_mov_b32_dpp v{T0+2}, v{T0} {QP1}')
        e.I(f'v_perm_b32 v{KEEP+2}, v{T0+2}, v{T0}, v{SEL}')
        e.I(f'buffer_store_dword v{KEEP+2}, v9, {WS}, s45 offen{fl}')
        for k in range(4): e.I(f'v_mov_b32 v{DV+k}, 0')
    w_consume(0, 0, 20); w_issue(3, 0)
    w_consume(1, 1, 20); w_issue(4, 1)
    w_consume(2, 2, 20)
    w_consume(3, 0, 10)
    w_consume(4, 1, 0)
    TS(e, 0)
    wait_reg(e, T0)
    TS(e, 1)
    TSflush(e, '69')
    e.I('s_mul_i32 s62, s22, 10240')
    def xdma(seg, buf):
        e.I(f's_add_u32 s63, s62, {XN + seg*40960}')
        for m in range(10):
            e.I(f's_add_u32 m0, s62, {Q_LX + buf*40960 + m*1024}')
            e.I(f'buffer_load_dwordx4 v2, {WS}, s63 offen lds')
            e.I('s_add_u32 s63, s63, 1024')
    xdma(0, 0)
    w_issue(5, 0)
    xdma(1, 1)
    if opt.x2e == 1: xdma(2, 3)
    e.I('s_cmp_lg_u32 s23, 0')
    e.I('s_cbranch_scc1 L_qkvs')
    for slow in (False, True):
        fl = ' sc1' if slow else ''
        if slow: e.L('L_qkvs')
        pro, top, nox, nxt_, q0, q0r, qq, q1 = [e.lab(x_) for x_ in ('Lqp', 'Lqt', 'Lqn', 'Lqx', 'Lq0', 'Lqr', 'Lqq', 'Lq1')]
        e.I('s_mov_b32 s30, 0')
        e.I('s_mov_b32 s64, 0')
        TS(e, 0)
        e.I(f's_waitcnt vmcnt({30 if opt.x2e == 1 else 20})')
        TS(e, 1)
        e.I('s_barrier')
        xwork(False, (2, 1), False)
        e.I('s_mov_b32 s64, 1')
        TS(e, 2)
        flag_addr(1)
        e.I('s_waitcnt vmcnt(0)')
        TS(e, 3)
        set_flag(e, ONE + 2, 's51', ONE, fl)
        w_consume(5, 0, 1)
        if opt.urg: wait_count(e, T0, D_W, 80, 4)
        TS(e, 4)
        TSflush(e, '68')
        if opt.x2e == 2: xdma(2, 3)
        xwork(False, (2, 1, 0), False)
        e.I('s_mov_b32 s64, 2')
        e.I(f's_branch {top}')
        e.L(q0)
        e.I('s_mov_b32 s64, 0')
        xwork(False, (0,), False)
        if not opt.x2e:
            e.I('s_barrier')
            xdma(2, 0)
        e.I('s_mov_b32 s64, 2')
        if not opt.x2e:
            e.I('s_waitcnt vmcnt(0)')
            e.I('s_barrier')
        e.I(f's_branch {q0r}')
        e.L(top)
        TS(e, 0)
        mem_part()
        e.I('s_cmp_eq_u32 s30, 0')
        e.I(f's_cbranch_scc1 {q0}')
        e.L(q0r)
        e.I('s_cmp_ge_u32 s64, 64')
        e.I(f's_cbranch_scc1 {nox}')
        xwork(True)
        if opt.f63:
            e.I('s_cmp_lg_u32 s64, 63')
            e.I(f's_cbranch_scc1 {nxt_}')
            flag_n()
        e.I(f's_branch {nxt_}')
        e.L(nox)
        for x_ in late_list()[0::2]: e.I(x_)
        flag_n()
        e.L(nxt_)
        TS(e, 4)
        e.I('s_add_u32 s64, s64, 1')
        TS(e, 5)
        TSflush(e, 's30')
        e.I('s_add_u32 s30, s30, 1')
        e.I('s_cmp_lt_u32 s30, 64')
        e.I(f's_cbranch_scc1 {top}')
        if opt.qc:
            e.I('s_lshl_b32 s30, s21, 3')
            e.I('s_add_u32 s30, s30, s20')
            e.I(f's_add_u32 s30, s30, {opt.qc}')
            e.I('s_mov_b32 s33, 0')
            e.I('s_cmp_lt_u32 s30, 1280')
            e.I('s_cselect_b32 s38, s22, 1')
            e.I('s_cmp_eq_u32 s38, 0')
            e.I('s_cbranch_scc1 L_cmb2')
        e.I('s_endpgm')

S_RED = 98304
def role_sw(e):
    fl = ''
    XF, KXF, VXF, VMF = 16, 40, 88, 136
    S, PB, PM = 148, 160, 164
    DW, DM, VWX, VWM = 168, 184, 200, 216
    OUT = DW
    PA = XF
    CI = 224
    T0 = 228; IDX = 246; SENT = 248; ONE = 252
    AONE, AHALF = 96, 100
    W2 = 104 if opt.vx2 else 0
    PAD = 240
    e.I('s_sub_u32 s24, s21, 12')
    e.I('s_lshl_b32 s25, s24, 2')
    e.I('s_add_u32 s25, s25, s22')
    e.I('s_lshl_b32 s26, s20, 2')
    e.I('s_add_u32 s26, s26, s22')
    srd(e, 8, 66, 6144 * 1280)
    def wo_load():
        e.I(f's_mul_i32 s28, s26, {192*1280}')
        e.I('s_lshl_b32 s29, s24, 7')
        e.I('s_add_u32 s28, s28, s29')
        e.I('v_lshrrev_b32 v17, 3, v1')
        e.I('v_bfe_u32 v18, v1, 4, 2')
        e.I('v_lshlrev_b32 v18, 1, v18')
        e.I('v_and_b32 v19, 7, v1')
        e.I('v_xor_b32 v19, v19, v18')
        e.I('v_mul_u32_u24 v16, 1280, v17')
        e.I('v_lshl_add_u32 v16, v19, 4, v16')
        e.I('s_mul_i32 s46, s22, 24576')
        for n in range(24):
            e.I(f's_add_u32 m0, s46, {n*1024}')
            e.I(f'buffer_load_dwordx4 v16, s[8:11], s28 offen{WFL[opt.wnt]} lds')
            if n < 23: e.I(f's_add_u32 s28, s28, {8*1280}')
        extra = 0
        if opt.pfs == 2: sw_pf(); extra = 3 * (12 - opt.pfh)
        e.I('v_lshrrev_b32 v17, 2, v1')
        e.I('v_bfe_u32 v18, v17, 1, 2')
        e.I('v_lshlrev_b32 v17, 7, v17')
        e.I('v_and_b32 v19, 3, v1')
        e.I('v_lshl_add_u32 v17, v19, 3, v17')
        e.I('v_add_u32 v17, s46, v17')
        for ct in range(4):
            e.I(f'v_xor_b32 v19, {ct}, v18')
            e.I(f'v_lshl_add_u32 v{20+ct}, v19, 5, v17')
        for kk in range(6):
            e.I(f's_waitcnt vmcnt({20 - 4*kk + extra})')
            for ct in range(4):
                e.I(f'ds_read_b64_tr_b16 {ar((ct*6+kk)*4,2)}, v{20+ct} offset:{kk*4096}')
                e.I(f'ds_read_b64_tr_b16 {ar((ct*6+kk)*4+2,2)}, v{20+ct} offset:{kk*4096+2048}')
        e.I('s_waitcnt lgkmcnt(0)')
        if opt.vx2:
            for f_ in range(24):
                for k, k2 in enumerate((0, 2, 1, 3)): e.I(f'v_accvgpr_mov_b32 a{W2 + 4*f_ + k}, a{4*f_ + k2}')
    nocal = e.lab('Lnc')
    e.I('s_cmp_lg_u32 s25, 8')
    e.I(f's_cbranch_scc1 {nocal}')
    e.I('s_lshl_b32 s38, s20, 7')
    e.I(f's_add_u32 s38, s38, {CAL}')
    e.I('s_add_u32 s39, s38, 8192')
    e.I('s_mov_b32 s40, -1'); e.I('s_mov_b32 s41, -1'); e.I('s_mov_b32 s42, 4')
    e.I('v_mov_b32 v10, 0')
    e.I('s_mov_b64 exec, 1')
    cal = e.lab('Lcal')
    e.L(cal)
    for so, acc in (('s38', 's40'), ('s39', 's41')):
        e.I(f'buffer_store_dword v10, v10, {WS}, {so} offen sc1')
        e.I('s_waitcnt vmcnt(0)')
        e.I('s_memtime s[44:45]')
        e.I('s_waitcnt lgkmcnt(0)')
        e.I(f'buffer_load_dword v11, v10, {WS}, {so} offen sc1')
        e.I('s_waitcnt vmcnt(0)')
        e.I('s_memtime s[46:47]')
        e.I('s_waitcnt lgkmcnt(0)')
        e.I('s_sub_u32 s46, s46, s44')
        e.I(f's_min_u32 {acc}, {acc}, s46')
    e.I('s_sub_u32 s42, s42, 1')
    e.I('s_cmp_lg_u32 s42, 0')
    e.I(f's_cbranch_scc1 {cal}')
    e.I('s_cmp_lt_u32 s41, s40')
    if opt.pflip: e.I('s_cmp_ge_u32 s41, s40')
    e.I('s_cselect_b32 s38, 2, 1')
    e.I('v_mov_b32 v11, s38')
    e.I('s_lshl_b32 s38, s20, 2')
    e.I('v_mov_b32 v10, s38')
    e.I(f'global_store_dword v10, v11, s[74:75] offset:{D_PAR} sc1')
    e.I('s_mov_b64 exec, -1')
    e.L(nocal)
    def sw_pf():
        srd(e, 12, 64, 640 * 12288); srd(e, 16, 60, 640 * 12288)
        prefetch_w(e, 's25', opt.pfh, 12, 32, 's[12:15]', 's[16:19]')
    if opt.pfs == 1: sw_pf()
    def early_touch():
        jobs = []
        for sl in range(2): jobs += [(b_ + sl * SEG_QX, 12288, 96) for b_ in (KX, VX)]
        for sl in range(2): jobs += [(QX + sl * SEG_QX, 12288, 96), (XP + sl * SEG_XP, 6144, 48), (VM + sl * SEG_VM, 3072, 24)]
        touch_jobs(e, jobs, 's24', 10, 's26', 24)
    if opt.tord == 0: early_touch()
    if not opt.swlate: wo_load()
    if opt.tord == 1: early_touch()
    e.I(f's_mov_b32 s52, {SC_L2E:#x}'); e.I(f's_mov_b32 s53, {SC_L2E | 0x80000000:#x}')
    lane_ig(e, 14, 15)
    e.I('v_and_b32 v13, 7, v14')
    e.I('v_lshlrev_b32 v13, 4, v13')
    e.I('v_lshl_add_u32 v13, v15, 7, v13')
    e.I('v_bfe_u32 v5, v1, 3, 1')
    e.I('s_lshl_b32 s38, s22, 9')
    e.I(f's_add_u32 s38, s38, {S_RED}')
    e.I('v_add_u32 v6, s38, v13')
    e.I('v_lshl_add_u32 v6, v5, 14, v6')
    e.I('s_lshl_b32 s38, s22, 11')
    e.I(f's_add_u32 s38, s38, {S_RED}')
    e.I('v_add_u32 v7, s38, v13')
    e.I('v_lshl_add_u32 v7, v5, 10, v7')
    if opt.remap:
        e.I('v_bfe_u32 v8, v1, 1, 2')
        e.I('v_add_u32 v8, v8, v15')
        e.I('v_and_b32 v8, 3, v8')
        e.I('v_and_b32 v9, 7, v1')
        e.I('v_lshlrev_b32 v9, 6, v9')
        e.I('v_lshl_add_u32 v9, v8, 4, v9')
        e.I('v_sub_u32 v9, v9, v13')
        e.I('v_add_u32 v6, v6, v9')
    if opt.remap == 1:
        e.I('v_add_u32 v8, v1, v15')
        e.I('v_and_b32 v8, 3, v8')
        e.I('v_bfe_u32 v9, v1, 2, 1')
        e.I('v_lshl_add_u32 v9, v15, 1, v9')
        e.I('v_lshlrev_b32 v9, 6, v9')
        e.I('v_lshl_add_u32 v9, v8, 4, v9')
        e.I('v_sub_u32 v9, v9, v13')
        e.I('v_add_u32 v7, v7, v9')
    if opt.remap == 2:
        e.I('v_lshrrev_b32 v5, 5, v1')
        e.I('v_bfe_u32 v8, v1, 3, 2')
        e.I('v_add_u32 v8, v8, v1')
        e.I('v_and_b32 v8, 3, v8')
        e.I('v_bfe_u32 v9, v1, 2, 3')
        e.I('v_lshlrev_b32 v9, 6, v9')
        e.I('v_lshl_add_u32 v9, v8, 4, v9')
        e.I('v_add_u32 v7, s38, v9')
        e.I('v_lshl_add_u32 v7, v5, 10, v7')
        e.I('v_and_b32 v13, 31, v1')
        e.I('v_lshlrev_b32 v13, 4, v13')
    if opt.pbf: e.I('v_lshrrev_b32 v13, 1, v13')
    e.I('v_lshl_add_u32 v13, v5, 13, v13')
    e.I('v_and_b32 v4, 0x1fff, v13')
    e.I('v_lshlrev_b32 v9, 2, v5')
    e.I('v_xor_b32 v9, s20, v9')
    for m in range(4):
        e.I(f'v_xor_b32 v8, {m}, v9')
        e.I(f'v_lshl_add_u32 v{PAD+m}, v8, 9, v4')
    e.I('v_and_b32 v9, 7, v1')
    e.I('v_lshlrev_b32 v8, 4, v9')
    e.I('v_lshl_add_u32 v8, v5, 7, v8')
    e.I('v_lshl_add_u32 v8, v15, 2, v8')
    if opt.remap == 2: e.I('v_lshlrev_b32 v8, 2, v1')
    if opt.remap == 1:
        e.I('v_bfe_u32 v9, v1, 2, 1')
        e.I('v_lshl_add_u32 v9, v15, 1, v9')
        e.I('v_lshlrev_b32 v8, 4, v9')
        e.I('v_lshl_add_u32 v8, v5, 7, v8')
        e.I('v_and_b32 v9, 3, v1')
        e.I('v_lshl_add_u32 v8, v9, 2, v8')
        if opt.inl:
            e.I('v_bfe_u32 v8, v1, 2, 1')
            e.I('v_lshl_add_u32 v8, v5, 1, v8')
            e.I('v_lshl_add_u32 v8, v15, 2, v8')
            e.I('v_lshlrev_b32 v8, 4, v8')
            e.I('v_lshl_add_u32 v8, v9, 2, v8')
    e.I('s_lshl_b32 s38, s25, 8')
    e.I('v_add_u32 v8, s38, v8')
    e.I('v_lshrrev_b32 v9, 1, v1')
    if opt.split:
        e.I('v_cmp_lt_u32 vcc, 2, v9')
        e.I('v_lshlrev_b32 v9, 10, v9')
        e.I(f'v_add_u32 v10, {128 - 3072}, v9')
        e.I('v_cndmask_b32 v9, v9, v10, vcc')
    else:
        e.I('v_lshlrev_b32 v9, 10, v9')
    e.I('v_and_b32 v10, 1, v1')
    e.I(f'v_lshl_add_u32 v9, v10, {9 if opt.eord else 3}, v9')
    e.I(f'v_lshlrev_b32 v{ONE+1}, 2, v1')
    for k in range(4): e.I(f'v_mov_b32 v{SENT+k}, -1')
    e.I('s_mov_b32 s68, 0xff00ff00'); e.I('s_mov_b32 s69, 0xff00ff00')
    e.I('s_mov_b32 s70, 0x3f80'); e.I('s_mov_b32 s71, 0x3f800000')
    e.I(f'v_mov_b32 v{CI}, {NEG_BIG:#x}')
    e.I('s_mov_b32 vcc_lo, 0')
    e.I('s_mov_b32 vcc_hi, 0x00ff00ff')
    e.I(f'v_cndmask_b32 v{CI}, v{CI}, 0, vcc')
    for k in range(1, 4): e.I(f'v_mov_b32 v{CI+k}, v{CI}')
    e.I(f'v_mov_b32 v{IDX}, 0x44444444')
    e.I('v_mov_b32 v11, 0xeeeeeeee')
    if opt.inl:
        e.I('v_and_b32 v12, 2, v1')
        e.I('v_cmp_lt_u32 vcc, 0, v12')
    else: e.I('v_cmp_lt_u32 vcc, 7, v14')
    e.I(f'v_cndmask_b32 v{IDX}, v{IDX}, v11, vcc')
    e.I('v_mov_b32 v11, 0x3f803f80')
    for k in range(4): e.I(f'v_accvgpr_write_b32 a{AONE+k}, v11')
    e.I('v_mov_b32 v11, 0x3f003f00')
    for k in range(2): e.I(f'v_accvgpr_write_b32 a{AHALF+k}, v11')
    e.I('s_mul_i32 s58, s26, 6144')
    e.I(f's_add_u32 s58, s58, {XR}')
    e.I('s_mul_i32 s57, s26, 3072')
    e.I(f's_add_u32 s57, s57, {VR}')
    e.I('s_lshr_b32 s59, s25, 1')
    e.I('s_lshl_b32 s59, s59, 14')
    e.I('s_and_b32 s38, s25, 1')
    e.I('s_lshl_b32 s38, s38, 12')
    e.I('s_add_u32 s59, s59, s38')
    e.I(f's_add_u32 s59, s59, {PART}')
    e.I('s_lshl_b32 s60, s20, 9')
    e.I('s_add_u32 s60, s60, s59')
    e.I('s_mul_i32 s61, s20, 10240')
    e.I(f's_add_u32 s61, s61, {MEM}')
    e.I('s_mul_i32 s62, s26, 12288')
    e.I('s_lshl_b32 s63, s26, 6')
    e.I(f's_add_u32 s63, s63, {FLGQ}')
    e.I('s_lshl_b32 s38, s20, 2')
    e.I('v_mov_b32 v10, s38')
    wait_flags(e, 10, D_PAR, 1, T0, 12, sleep=4, dbg=True)
    e.I(f'v_readfirstlane_b32 s38, v{T0}')
    e.I('s_nop 3')
    e.I('s_and_b32 s38, s38, 2')
    e.I('s_lshl_b32 s38, s38, 12')
    e.I('s_add_u32 s59, s59, s38')
    e.I('s_lshl_b32 s38, s22, 2')
    e.I(f's_add_u32 s38, s38, {S_RED + 8192}')
    e.I('v_lshlrev_b32 v10, 4, v14')
    e.I('v_add_u32 v10, s38, v10')
    e.I('v_and_b32 v11, 7, v14')
    if opt.remap == 1:
        e.I('v_bfe_u32 v11, v1, 2, 1')
        e.I('v_lshl_add_u32 v11, v15, 1, v11')
    if opt.remap == 2: e.I('v_bfe_u32 v11, v1, 2, 3')
    e.I('v_lshlrev_b32 v11, 4, v11')
    e.I(f'v_bfe_u32 v12, v1, {5 if opt.remap == 2 else 3}, 1')
    e.I('v_lshl_add_u32 v11, v12, 3, v11')
    e.I(f'v_add_u32 v11, {S_RED + 8192}, v11')
    e.I(f'v_min_u32 v12, {12 if opt.rpos == 9 else 11}, v1')
    e.I('v_lshlrev_b32 v12, 2, v12')
    if opt.nc > 1:
        e.I('v_and_b32 v13, 31, v1')
        e.I('v_lshlrev_b32 v13, 4, v13')
        e.I('v_lshrrev_b32 v15, 5, v1')
        e.I('v_lshl_add_u32 v13, v15, 13, v13')
    if opt.nod:
        e.I('v_bfe_u32 v15, v1, 3, 1')
        e.I('v_mul_u32_u24 v14, 1016, v15')
        e.I('v_sub_u32 v7, v7, v14')
        e.I('v_lshlrev_b32 v14, 3, v15')
        e.I('v_sub_u32 v11, v11, v14')
        e.I('v_lshlrev_b32 v15, 2, v1')
        for m, r_ in enumerate((PAD, PAD + 1, PAD + 2, PAD + 3, 4, 5, 14)):
            e.I(f's_xor_b32 s38, s20, {m + 1}')
            e.I('s_lshl_b32 s38, s38, 9')
            e.I(f'v_add_u32 v{r_}, s38, v15')
    def kv_loads(dst, base, q0=0, q1=12):
        if q0 >= q1: return
        e.I(f's_and_b32 s48, s49, {RD-1}')
        e.I(f's_mul_i32 s48, s48, {SEG_QX}')
        e.I('s_add_u32 s48, s48, s62')
        e.I(f's_add_u32 s48, s48, {base + (q0//4)*4096}')
        for q in range(q0, q1):
            if q % 4 == 0 and q > q0: e.I('s_add_u32 s48, s48, 4096')
            e.I(f'buffer_load_dwordx4 {vr(dst+4*q)}, v2, {WS}, s48 offen offset:{(q%4)*1024} sc1')
    def vx_loads():
        e.I(f's_and_b32 s48, s49, {RD-1}')
        e.I(f's_mul_i32 s48, s48, {SEG_QX}')
        e.I('s_add_u32 s48, s48, s62')
        e.I(f's_add_u32 s48, s48, {VX}')
        e.I('s_add_u32 s46, s48, 4096')
        e.I('s_add_u32 s56, s48, 8192')
        for kk in range(6):
            for rt in range(2):
                q = rt * 6 + kk
                e.I(f'buffer_load_dwordx4 {vr(VXF+4*q)}, v2, {WS}, {("s48", "s46", "s56")[q//4]} offen offset:{(q%4)*1024} sc1')
    def vw_grp(gi):
        kk, rt = gi // 2, gi % 2
        for ct in range(4):
            d = vr(DW + (ct*2+rt)*4)
            e.I(f'{MFMA} {d}, {vr(VXF+4*(rt*6+kk))}, {ar((ct*6+kk)*4)}, {0 if kk == 0 else d}')
    cv = [f'v_cvt_pk_bf16_f32 v{VWX+4*ct+k}, v{DW+8*ct+2*k}, v{DW+8*ct+2*k+1}' for ct in range(4) for k in range(4)] + [f'v_mov_b32 v{DM+k}, 0' for k in range(16)]
    def vw_x(after, extra=(), nvx=0, g0=0):
        extra = list(extra); nx0 = len(extra)
        for gi in range(g0, 12):
            if gi >= 12 - nvx: e.I(f's_waitcnt vmcnt({11 - gi + nx0 - len(extra)})')
            for _ in range(-(-len(extra) // (12 - gi))): e.I(extra.pop(0))
            if after is not None: e.I(f's_waitcnt vmcnt({after + 11 - gi})')
            vw_grp(gi)
        for n_, x_ in enumerate(cv[:32 - opt.cvx]):
            if extra and n_ % 2 == 0: e.I(extra.pop(0))
            e.I(x_)
        for x_ in extra: e.I(x_)
    TS(e, 0)
    wait_reg(e, T0, opt.rsleep)
    TS(e, 1)
    if opt.swlate: wo_load()
    if opt.tord == 2: early_touch()
    TS(e, 2)
    TSflush(e, '69', 244, 245)
    if opt.touch2:
        e.I('v_lshrrev_b32 v16, 4, v1')
        e.I(f's_mov_b32 s38, {PART_SLOT}')
        e.I('v_mul_lo_u32 v16, s38, v16')
        e.I('v_bfe_u32 v17, v1, 1, 3')
        e.I('v_lshl_add_u32 v16, v17, 9, v16')
        e.I('v_and_b32 v17, 1, v1')
        e.I('v_lshl_add_u32 v16, v17, 7, v16')
        if opt.ptouch == 2: e.I('s_mov_b32 exec_lo, 0')
        if opt.ptouch: e.I(f'buffer_load_dword v17, v16, {WS}, s59 offen sc1{" nt" if opt.ptouch == 3 else ""}')
        if opt.nc > 1: e.I(f'buffer_load_dword v17, v16, {WS}, s59 offen offset:256 sc1')
        e.I('s_mov_b64 exec, -1')
    wait_flags(e, ONE + 1, 's63', 0xfff, T0, 11, sleep=2)
    if opt.dstamp:
        for k in range(90, 94): e.I(f's_mov_b32 s{k}, 0')
    e.I('s_mov_b32 s49, 0')
    vx_loads()
    kv_loads(KXF, KX)
    if opt.split and opt.xg1 + opt.xg2:
        e.I('s_waitcnt vmcnt(12)')
        for gi in range(opt.pmf + opt.pmf2): vw_grp(gi)
    else: vw_x(12)
    e.I('s_cmp_lg_u32 s23, 0')
    e.I('s_cbranch_scc1 L_sws')
    for slow in (False, True):
        fl = ' sc1' if slow else ''
        if slow: e.L('L_sws')
        top = e.lab('Lwt')
        e.I('s_mov_b32 s30, 0')
        e.L(top)
        TS(e, 0)
        if opt.pdiag: e.I('s_mov_b32 s94, 0')
        e.I('s_and_b32 s38, s30, 3')
        e.I('s_xor_b32 s39, s38, 2')
        e.I(f's_mul_i32 s40, s38, {XR_SLOT}')
        e.I('s_add_u32 s40, s40, s58')
        e.I('s_add_u32 s54, s40, 4096')
        e.I(f's_mul_i32 s55, s38, {VR_SLOT}')
        e.I('s_add_u32 s55, s55, s57')
        if opt.fresh:
            e.I(f's_mul_i32 s41, s30, {PART_SLOT}')
            e.I(f's_add_u32 s41, s41, {SCRATCH + 0x400000 - PART + 0x200000}')
        else:
            e.I(f's_mul_i32 s41, s38, {PART_SLOT}')
        e.I('s_add_u32 s42, s41, s60')
        e.I('s_add_u32 s41, s41, s59')
        if opt.fresh:
            e.I('s_lshr_b32 s47, s41, 8')
            e.I('s_not_b32 s47, s47')
            e.I('s_and_b32 s47, s47, 8192')
            e.I('s_xor_b32 s41, s41, s47')
        e.I('s_xor_b32 s47, s41, 8192')
        e.I(f's_mul_i32 s43, s39, {PART_SLOT}')
        e.I('s_add_u32 s43, s43, s60')
        e.I('s_add_u32 s49, s30, 1')
        e.I('s_and_b32 s44, s49, 3')
        e.I('s_xor_b32 s45, s44, 2')
        e.I(f's_mul_i32 s44, s44, {MEM_SLOT}')
        e.I('s_add_u32 s44, s44, s61')
        e.I(f's_mul_i32 s45, s45, {MEM_SLOT}')
        e.I('s_add_u32 s45, s45, s61')
        e.I(f's_and_b32 s46, s49, {RD-1}')
        e.I(f's_mul_i32 s46, s46, {SEG_QX}')
        e.I('s_add_u32 s46, s46, s62')
        e.I(f's_add_u32 s65, s46, {KX}')
        e.I(f's_add_u32 s46, s46, {VX}')
        e.I('s_add_u32 s56, s46, 4096')
        e.I('s_add_u32 s64, s46, 8192')
        e.I('s_add_u32 s66, s65, 4096')
        e.I('s_add_u32 s67, s65, 8192')
        e.I('s_lshl_b32 s50, s49, 11')
        e.I('s_add_u32 s50, s50, s63')
        pl, pd, fr, hl, hd = e.lab('Lxp'), e.lab('Lxd'), e.lab('Lxf'), e.lab('Lhp'), e.lab('Lhd')
        def probe(lp, dn, va, so, bad):
            e.I(f's_mov_b64 exec, {0x1fff if opt.rpos == 9 and bad == 0 else 0xfff:#x}')
            e.I(f'buffer_load_dword v{T0}, v{va}, {WS}, {so} offen sc1')
            e.L(lp)
            for a_, b_ in ((T0, T0 + 1), (T0 + 1, T0)):
                e.I(f'buffer_load_dword v{b_}, v{va}, {WS}, {so} offen sc1')
                e.I('s_waitcnt vmcnt(1)')
                e.I(f'v_cmp_gt_u32 vcc, 2, v{a_}' if opt.two and bad == 0 else f'v_cmp_eq_u32 vcc, {bad}, v{a_}')
                e.I(f's_cbranch_vccz {dn}')
            e.I('s_sub_u32 s31, s31, 1')
            e.I(f's_cbranch_scc0 {lp}')
            e.I('s_mov_b32 s31, 2')
            e.I('s_branch L_fail')
        e.I(f's_mov_b32 s31, {TMO}')
        ROR8 = 'row_ror:8 row_mask:0xf bank_mask:0xf'
        ROR8L, ROR8H = 'row_ror:8 row_mask:0xf bank_mask:0x3', 'row_ror:8 row_mask:0xf bank_mask:0xc'
        if opt.split:
            XQ, XK = XF, XF + 12
            A1a, A2a, A1b, A2b, MM = S + 4, S, S + 8, T0 + 4, CI
            def q_loads():
                for j in range(3): e.I(f'buffer_load_dwordx4 {vr(XQ+4*j)}, v2, {WS}, s40 offen offset:{j*1024} sc1')
            def k_loads():
                e.I(f'buffer_load_dwordx4 {vr(XK)}, v2, {WS}, s40 offen offset:3072 sc1')
                for j in range(1, 3): e.I(f'buffer_load_dwordx4 {vr(XK+4*j)}, v2, {WS}, s54 offen offset:{(j-1)*1024} sc1')
            def vm_loads():
                for q in range(3): e.I(f'buffer_load_dwordx4 {vr(VMF+4*q)}, v2, {WS}, s55 offen offset:{q*1024} sc1')
            def chk(r, j):
                if opt.thin1:
                    if j == 2: e.I(f'v_max3_u32 v{T0+2}, v{r-8}, v{r-4}, v{r}')
                else: e.I(f'v_max_u32 v{T0+2}, v{r}, v{r+2}' if j == 0 else f'v_max3_u32 v{T0+2}, v{T0+2}, v{r}, v{r+2}')
            def mm(j): e.I(f'{MFMA} {vr(MM)}, {vr(XK+4*j)}, {vr(XQ+4*j)}, {0 if j == 0 else vr(MM)}')
            def gap(n):
                while n > 0: e.I(f's_nop {min(n, 16) - 1}'); n -= 16
            lq, qf_, qd_, kf_, kd_, kok = [e.lab(x_) for x_ in ('Lsq', 'Lsqf', 'Lsqd', 'Lskf', 'Lskd', 'Lsko')]
            probe(hl, hd, 12, 's50', 0)
            e.L(qf_)
            if opt.dstamp: e.I('s_add_u32 s90, s90, 1')
            e.I('s_sub_u32 s31, s31, 1')
            e.I('s_cbranch_scc1 L_fail')
            probe(pl, qd_, 9, 's40', -1)
            e.L(qd_)
            e.I('s_mov_b64 exec, -1')
            q_loads()
            e.I('s_waitcnt vmcnt(0)')
            e.I(f's_branch {lq}')
            e.L(kf_)
            if opt.dstamp: e.I('s_add_u32 s91, s91, 1')
            e.I('s_sub_u32 s31, s31, 1')
            e.I('s_cbranch_scc1 L_fail')
            e.I('s_add_u32 s48, s40, 3072')
            if opt.inl:
                e.I(f'v_and_b32 v{T0+8}, 128, v9')
                e.I(f'v_lshrrev_b32 v{T0+9}, 2, v{T0+8}')
                e.I(f'v_sub_u32 v{T0+8}, v9, v{T0+8}')
                e.I(f'v_add_u32 v{T0+8}, v{T0+8}, v{T0+9}')
            probe(e.lab('Lskp'), kd_, T0 + 8 if opt.inl else 9, 's48', -1)
            e.L(kd_)
            e.I('s_mov_b64 exec, -1')
            k_loads()
            e.I('s_waitcnt vmcnt(0)')
            for j in range(3): mm(j); chk(XK + 4*j, j)
            e.I(f'v_cmp_eq_u32 vcc, -1, v{T0+2}')
            e.I(f's_cbranch_vccnz {kf_}')
            e.I('s_nop 7')
            e.I(f's_branch {kok}')
            e.L(hd)
            e.I('s_mov_b64 exec, -1')
            TS(e, 1)
            g0_ = opt.pmf + opt.pmf2
            q_loads()
            for gi in range(g0_, g0_ + opt.xg1): vw_grp(gi)
            gap(opt.g1)
            k_loads()
            for gi in range(g0_ + opt.xg1, g0_ + opt.xg1 + opt.xg2): vw_grp(gi)
            gap(opt.g2)
            for x_ in cv[32 - opt.cvx:]: e.I(x_)
            vm_loads()
            for q in (0, 6, 1, 7, 2, 8, 3, 9, 4, 10, 5, 11)[:opt.vxe]:
                e.I(f'buffer_load_dwordx4 {vr(VXF+4*q)}, v2, {WS}, {("s46", "s56", "s64")[q//4]} offen offset:{(q%4)*1024} sc1')
            if opt.xg1 + opt.xg2: vw_x(None, (), 0, g0_ + opt.xg1 + opt.xg2)
            e.L(lq)
            t = T0 + 2
            if opt.sord:
                def qm(d, kf, j): e.I(f'{MFMA} {vr(d)}, {vr(KXF+4*kf)}, {vr(XQ+4*j)}, {0 if j == 0 else vr(d)}')
                mL = [f'v_add_f32_dpp v{S+4+r}, v{A2a+r}, v{A1a+r} {ROR8L}' for r in range(4)]
                mH = [f'v_add_f32_dpp v{S+4+r}, v{A1b+r}, v{A2b+r} {ROR8H}' for r in range(4)]
                for j in range(3):
                    e.I(f's_waitcnt vmcnt({8-j+opt.vxe})')
                    qm(A1a, j, j); chk(XQ + 4*j, j); qm(A2a, j + 3, j)
                e.I(f'v_cmp_eq_u32 vcc, -1, v{T0+2}')
                qm(A1b, 6, 0)
                e.I(f's_cbranch_vccnz {qf_}')
                qm(A2b, 9, 0); qm(A1b, 7, 1)
                e.I(mL[0]); e.I(mL[1])
                qm(A2b, 10, 1)
                e.I(mL[2]); e.I(mL[3])
                qm(A1b, 8, 2); qm(A2b, 11, 2)
                for j in range(3):
                    e.I(f's_waitcnt vmcnt({5-j+opt.vxe})')
                    mm(j)
                    if j < 2: chk(XK + 4*j, j)
                    if j == 1: e.I(mH[0])
                chk(XK + 8, 2)
                e.I(f'v_cmp_eq_u32 vcc, -1, v{T0+2}')
                for x_ in mH[1:]: e.I(x_)
                e.I(f'v_max3_f32 v{t+1}, v{S+4}, v{S+5}, v{S+6}')
                e.I(f's_cbranch_vccnz {kf_}')
            else:
                for j in range(3):
                    x = vr(XQ + 4*j)
                    e.I(f's_waitcnt vmcnt({8-j+opt.vxe})')
                    if opt.t9 == j: TS(e, 9)
                    for n_, (d, kf) in enumerate(((A1a, j), (A2a, j + 3), (A1b, 6 + j), (A2b, 9 + j))):
                        e.I(f'{MFMA} {vr(d)}, {vr(KXF+4*kf)}, {x}, {0 if j == 0 else vr(d)}')
                        if n_ == 0: chk(XQ + 4*j, j)
                        if n_ == 1 and j == 2: e.I(f'v_cmp_eq_u32 vcc, -1, v{T0+2}')
                e.I(f's_cbranch_vccnz {qf_}')
                t = T0 + 2
                for j in range(3):
                    e.I(f's_waitcnt vmcnt({5-j+opt.vxe})')
                    if opt.t9 == 3 + j: TS(e, 9)
                    mm(j); chk(XK + 4*j, j)
                    if j == 1:
                        for r in range(4): e.I(f'v_add_f32_dpp v{S+4+r}, v{A2a+r}, v{A1a+r} {ROR8L}')
                e.I(f'v_cmp_eq_u32 vcc, -1, v{T0+2}')
                for r in range(4): e.I(f'v_add_f32_dpp v{S+4+r}, v{A1b+r}, v{A2b+r} {ROR8H}')
                e.I(f'v_max3_f32 v{t+1}, v{S+4}, v{S+5}, v{S+6}')
                e.I(f's_cbranch_vccnz {kf_}')
            e.L(kok)
            TS(e, 2)
        if not opt.split:
            probe(hl, hd, 12, 's50', 0)
            xp = e.lab('Lxq')
            e.L(xp)
            probe(pl, pd, 9, 's40', -1)
            e.L(hd)
            if opt.hdelay: e.I(f's_nop {opt.hdelay - 1}')
            if not opt.heads: e.I(f's_branch {xp}')
            e.L(pd)
            e.I('s_mov_b64 exec, -1')
            TS(e, 1)
            if opt.pdiag: e.I('s_add_u32 s94, s94, 1')
            e.L(fr)
            for p in range(6):
                e.I(f'buffer_load_dwordx4 {vr(XF+4*p)}, v2, {WS}, {"s40" if p < 4 else "s54"} offen offset:{(p%4)*1024} sc1')
            FQ = CI + 23
            def vm_loads():
                for q in range(3):
                    e.I(f'buffer_load_dwordx4 {vr(VMF+4*q)}, v2, {WS}, s55 offen offset:{q*1024} sc1')
            vp = opt.vmpos
            bulk0 = [f'buffer_load_dwordx4 {vr(VXF+4*q)}, v2, {WS}, {("s46", "s56", "s64")[q//4]} offen offset:{(q%4)*1024} sc1' for q in (0, 6, 1, 7, 2, 8)]
            nvm = 0
            if vp == 0: vm_loads(); nvm = 3
            for p in range(6):
                x = vr(XF + 4*p)
                e.I(f's_waitcnt vmcnt({5-p+nvm})')
                e.I(f'{MFMA} {vr(S+4)}, {vr(KXF+4*p)}, {x}, {0 if p == 0 else vr(S+4)}')
                e.I(f'{MFMA} {vr(S+8)}, {vr(KXF+24+4*p)}, {x}, {0 if p == 0 else vr(S+8)}')
                e.I(f'{MFMA} {vr(S)}, {x}, {x}, {vr(CI) if p == 0 else vr(S)}')
                if vp == p + 1: vm_loads(); nvm = 3
                if p >= 6 - opt.kx and p >= vp: e.I(bulk0[p - (6 - opt.kx)]); nvm += 1
                r = XF + 4 * p
                if opt.thin:
                    e.I(f'v_max_u32 v{T0+2}, v{r}, v{r+2}' if p == 0 else f'v_max3_u32 v{T0+2}, v{T0+2}, v{r}, v{r+2}')
                elif p == 0:
                    e.I(f'v_max3_u32 v{T0+2}, v{r}, v{r+1}, v{r+2}')
                    e.I(f'v_max_u32 v{T0+2}, v{T0+2}, v{r+3}')
                else:
                    e.I(f'v_max3_u32 v{T0+2}, v{T0+2}, v{r}, v{r+1}')
                    e.I(f'v_max3_u32 v{T0+2}, v{T0+2}, v{r+2}, v{r+3}')
            e.I(f'v_cmp_eq_u32 vcc, -1, v{T0+2}')
            ok = e.lab('Lxo')
            e.I(f's_cbranch_vccz {ok}')
            e.I('s_sub_u32 s31, s31, 1')
            e.I('s_nop 7')
            if opt.dstamp: e.I('s_mov_b32 s89, s90'); e.I('s_addk_i32 s89, 1'); e.I('s_mov_b32 s90, s89'); e.I('s_cmp_eq_u32 s31, 0')
            e.I(f's_cbranch_scc0 {xp}')
            e.I('s_mov_b32 s31, 2')
            e.I('s_branch L_fail')
            e.L(ok)
            TS(e, 2)
            vl, vd = e.lab('Lvp'), e.lab('Lvd')
            vl2 = e.lab('Lv2')
            if opt.kx: e.I(f's_waitcnt vmcnt({opt.kx})'); e.I(f's_branch {vl2}')
            e.L(vl)
            e.I('s_waitcnt vmcnt(0)')
            e.L(vl2)
            check_sent(e, [r_ for r_ in range(VMF, VMF + 12) if not opt.thin or r_ % 4 in ((0, 2) if opt.vx2 else (0, 1))], T0 + 2, T0 + 3)
            e.I(f's_cbranch_vccz {vd}')
            if opt.dstamp: e.I('s_add_u32 s92, s92, 1')
            vm_loads()
            e.I('s_sub_u32 s31, s31, 1')
            e.I(f's_cbranch_scc0 {vl}')
            e.I('s_mov_b32 s31, 3')
            e.I('s_branch L_fail')
            e.L(vd)
            TS(e, 3)
        PW = 2 if opt.pbf and opt.nc == 1 else 4
        if opt.rpos == 0: e.I(f'buffer_store_dwordx{PW} {vr(SENT,PW)}, v13, {WS}, s43 offen sc1')
        sm = [f'{SMF} {vr(DM+4*ct)}, {vr(VMF+4*m)}, {ar(W2+(ct*6+2*m)*4,8)}, v{IDX}' for m in range(3) for ct in range(4)]
        t = T0 + 2
        V = []
        for r in range(4): V.append(f'v_mov_b32_dpp v{S+4+r}, v{S+8+r} row_shr:8 row_mask:0xf bank_mask:0xc')
        V += [f'v_max3_f32 v{t}, v{S}, v{S+1}, v{S+2}', f'v_max3_f32 v{t+1}, v{S+3}, v{S+4}, v{S+5}', f'v_max3_f32 v{t}, v{t}, v{S+6}, v{S+7}', f'v_max_f32 v{t}, v{t}, v{t+1}',
              '*', '*', f'v_max_f32_dpp v{t}, v{t}, v{t} {ROR8}', f'v_mov_b32 v{t+1}, v{t}', '*', '*', f'v_permlane16_swap_b32 v{t}, v{t+1}', f'v_max_f32 v{t}, v{t}, v{t+1}',
              f'v_mov_b32 v{t+1}, v{t}', '*', '*', f'v_permlane32_swap_b32 v{t}, v{t+1}', f'v_max_f32 v{t}, v{t}, v{t+1}', f'v_mul_f32 v{t}, s53, v{t}']
        order = [4, 5, 6, 7, 0, 1, 2, 3]
        for i in order: V.append(f'v_fma_f32 v{S+i}, v{S+i}, s52, v{t}')
        for n_, i in enumerate(order):
            V.append(f'v_exp_f32 v{S+i}, v{S+i}')
        if opt.split:
            V = ['V8', f'v_permlane32_swap_b32 v{MM}, v{MM+2}', f'v_permlane32_swap_b32 v{MM+1}, v{MM+3}', 'V9', '*', '*',
                 f'v_add_f32_dpp v{S}, v{MM+2}, v{MM} {ROR8L}', f'v_add_f32_dpp v{S}, v{MM+1}, v{MM+3} {ROR8H}', f'v_max3_f32 v{t}, v{t+1}, v{S+7}, v{S}', 'V0',
                 '*', '*', f'v_max_f32_dpp v{t}, v{t}, v{t} {ROR8}', f'v_mov_b32 v{t+1}, v{t}', 'V1', '*', '*', f'v_permlane16_swap_b32 v{t}, v{t+1}', f'v_max_f32 v{t}, v{t}, v{t+1}',
                 f'v_mov_b32 v{t+1}, v{t}', 'V2', '*', '*', f'v_permlane32_swap_b32 v{t}, v{t+1}', f'v_max_f32 v{t}, v{t}, v{t+1}', f'v_mul_f32 v{t}, s53, v{t}', 'V3']
            if opt.inl: V = ['V8', 'V9', f'v_add_f32_dpp v{S}, v{MM+2}, v{MM} {ROR8L}', f'v_add_f32_dpp v{S}, v{MM+1}, v{MM+3} {ROR8H}'] + V[8:]
            order = [4, 5, 6, 7, 0]
            for i in order: V.append(f'v_fma_f32 v{S+i}, v{S+i}, s52, v{t}')
            V.append('V4')
            for i in order: V.append(f'v_exp_f32 v{S+i}, v{S+i}')
            if opt.pvmix:
                V += [f'v_cvt_pk_bf16_f32 v{PB}, v{S+4}, v{S+5}', f'v_cvt_pk_bf16_f32 v{PB+1}, v{S+6}, v{S+7}', f'v_mov_b32_dpp v{t}, v{S} {ROR8}',
                      f'v_mov_b32_dpp v{PB+2}, v{PB} {ROR8}', f'v_mov_b32_dpp v{PB+3}, v{PB+1} {ROR8}']
            else: V += [f'v_cvt_pk_bf16_f32 v{PB}, v{S+4}, v{S+5}', f'v_cvt_pk_bf16_f32 v{PB+1}, v{S+6}, v{S+7}', f'v_mov_b32_dpp v{t}, v{S} {ROR8}',
                  f'v_mov_b32_dpp v{PB+2}, v{PB} {ROR8}', f'v_mov_b32_dpp v{PB+3}, v{PB+1} {ROR8}', f'v_cvt_pk_bf16_f32 v{PM}, v{S}, v{t}', f'v_mov_b32 v{PM+1}, v{PM}' if not opt.inl else f'v_cvt_pk_bf16_f32 v{PM+1}, v{S}, v{t}']
        bulk = [f'buffer_load_dwordx4 {vr(VXF+4*q)}, v2, {WS}, {("s46", "s56", "s64")[q//4]} offen offset:{(q%4)*1024} sc1' for q in (0, 6, 1, 7, 2, 8, 3, 9, 4, 10, 5, 11)]
        bulk += [f'buffer_load_dwordx4 {vr(KXF+4*q)}, v2, {WS}, {("s65", "s66", "s67")[q//4]} offen offset:{(q%4)*1024} sc1' for q in range(12)]
        kin = bulk[max(opt.kx, opt.vxe):opt.kin]; kp = bulk[opt.kin:opt.kin + opt.kp]; kc = bulk[opt.kin + opt.kp:]
        if opt.nobulk & 1: kin = []
        if opt.nobulk & 2: kp = []
        if opt.nobulk & 4: kc = []
        lim = [opt.n1]
        def ld():
            if kin and lim[0] > 0: e.I(kin.pop(0)); lim[0] -= 1
        nk0 = len(kin)
        def vcheck():
            vl, vl2, vd = e.lab('Lvp'), e.lab('Lv2'), e.lab('Lvd')
            e.I(f's_waitcnt vmcnt({nk0 - len(kin) + opt.vxe})')
            e.L(vl2)
            check_sent(e, [r_ for r_ in range(VMF, VMF + 12) if not opt.thin or r_ % 4 in ((0,) if opt.thin1 else (0, 2) if opt.vx2 else (0, 1))], T0, T0 + 1)
            e.I(f's_cbranch_vccz {vd}')
            if opt.dstamp: e.I('s_add_u32 s92, s92, 1')
            vm_loads()
            e.I('s_waitcnt vmcnt(0)')
            e.I('s_sub_u32 s31, s31, 1')
            e.I(f's_cbranch_scc0 {vl2}')
            e.I('s_mov_b32 s31, 3')
            e.I('s_branch L_fail')
            e.L(vd)
            TS(e, 3)
            for x_ in sm[:opt.smpre]: e.I(x_)
            return sm[opt.smpre:]
        if opt.split: rest = []
        else:
            for x_ in sm[:opt.smpre]: e.I(x_)
            rest = sm[opt.smpre:]
        cost = 0; prev = None; since = 0
        for x_ in V:
            if x_[0] == 'V':
                if x_ == f'V{opt.vpos}': rest = vcheck(); cost = 0
            elif x_ == '*':
                if prev == '*' or cost == 0 or not rest: ld(); since = 0
                else: e.I(rest.pop(0)); cost = 0
            else:
                e.I(x_); c_ = 2 if 'v_exp' in x_ else 1; cost += c_; since += c_
                if cost >= opt.smgap and rest: e.I(rest.pop(0)); cost = 0
                elif since >= opt.ldgap: ld(); since = 0
            prev = x_
        late_sm = rest if opt.split else []
        if not opt.split:
            for x_ in rest: e.I(x_)
            e.I(f'v_cvt_pk_bf16_f32 v{PB}, v{S+4}, v{S+5}')
            e.I(f'v_cvt_pk_bf16_f32 v{PB+1}, v{S+6}, v{S+7}')
            e.I(f'v_cvt_pk_bf16_f32 v{PM}, v{S}, v{S+1}')
            e.I(f'v_cvt_pk_bf16_f32 v{PM+1}, v{S+2}, v{S+3}')
            e.I(f'v_mov_b32_dpp v{PB+2}, v{PB} {ROR8}')
            e.I(f'v_mov_b32_dpp v{PB+3}, v{PB+1} {ROR8}')
            e.I(f'v_mov_b32 v{t}, v{PM}')
            e.I(f'v_mov_b32 v{t+1}, v{PM+1}')
        for x_ in late_sm: e.I(x_)
        if opt.tpos == 0: TS(e, 4)
        def cvm(ct):
            e.I(f'v_cvt_pk_bf16_f32 v{VWM+2*ct}, v{DM+4*ct}, v{DM+4*ct+1}')
            e.I(f'v_cvt_pk_bf16_f32 v{VWM+2*ct+1}, v{DM+4*ct+2}, v{DM+4*ct+3}')
        lim[0] = opt.n2
        SUM = S + 8 if opt.pvmix else S
        if opt.pvord:
            px = lambda ct: e.I(f'{MFMA} {vr(OUT+4*ct)}, {vr(VWX+4*ct)}, {vr(PB)}, 0')
            pm = lambda ct: e.I(f'{MFMA16} {vr(OUT+4*ct)}, {vr(VWM+2*ct,2)}, {vr(PM,2)}, {vr(OUT+4*ct)}')
            def wr(*xs):
                e.I('s_not_b64 exec, s[68:69]')
                for x_ in xs: e.I(x_)
                e.I('s_mov_b64 exec, -1')
            W_ = lambda ct: f'ds_write_b128 v6, {vr(OUT+4*ct)} offset:{2048*ct}'
            lim[0] = 99
            px(0)
            for k in range(2): e.I(f'v_cvt_pk_bf16_f32 v{PM+k}, v{S}, v{t}')
            e.I(f'{MFMA} {vr(SUM)}, {ar(AONE)}, {vr(PB)}, 0')
            cvm(0)
            px(1)
            cvm(1)
            pm(0)
            cvm(2)
            e.I(f'{MFMA16} {vr(SUM)}, {ar(AHALF,2)}, {vr(PM,2)}, {vr(SUM)}')
            cvm(3)
            pm(1)
            ld()
            px(2)
            wr(W_(0))
            pm(2)
            e.I(f'v_rcp_f32 v{t}, v{SUM}')
            ld()
            px(3)
            wr(W_(1))
            pm(3)
            e.I('s_not_b64 exec, s[68:69]')
            e.I(f'ds_write_b32 v10, v{t}')
            e.I(W_(2))
            e.I('s_mov_b64 exec, -1')
            for _ in range(opt.pvl): ld()
            wr(W_(3))
        else:
            e.I(f'{MFMA} {vr(OUT)}, {vr(VWX)}, {vr(PB)}, 0')
            if opt.inl:
                if opt.pvmix:
                    for k in range(2): e.I(f'v_cvt_pk_bf16_f32 v{PM+k}, v{S}, v{t}')
            elif opt.split: e.I(f'v_permlane32_swap_b32 v{PM}, v{PM+1}')
            else:
                e.I(f'v_permlane32_swap_b32 v{t}, v{PM}')
                e.I(f'v_permlane32_swap_b32 v{t+1}, v{PM+1}')
            e.I(f'{MFMA} {vr(SUM)}, {ar(AONE)}, {vr(PB)}, 0')
            cvm(0)
            if opt.n2 > 7: ld()
            e.I(f'{MFMA} {vr(OUT+4)}, {vr(VWX+4)}, {vr(PB)}, 0')
            cvm(1)
            if opt.n2 > 6: ld()
            e.I(f'{MFMA} {vr(OUT+8)}, {vr(VWX+8)}, {vr(PB)}, 0')
            cvm(2)
            if opt.n2 > 5: ld()
            e.I(f'{MFMA} {vr(OUT+12)}, {vr(VWX+12)}, {vr(PB)}, 0')
            cvm(3)
            if opt.n2 > 4: ld()
            e.I(f'{MFMA16} {vr(OUT)}, {vr(VWM,2)}, {vr(PM,2)}, {vr(OUT)}')
            ld()
            e.I(f'{MFMA16} {vr(SUM)}, {ar(AHALF,2)}, {vr(PM,2)}, {vr(SUM)}')
            ld()
            for ct in range(1, 4):
                e.I(f'{MFMA16} {vr(OUT+4*ct)}, {vr(VWM+2*ct,2)}, {vr(PM,2)}, {vr(OUT+4*ct)}')
                if ct < 3: ld()
            lim[0] = len(kin) - opt.n3
            while lim[0] > 0: ld()
            if opt.tpos == 1: TS(e, 4)
            e.I('s_not_b64 exec, s[68:69]')
            e.I(f'ds_write_b128 v6, {vr(OUT)}')
            e.I(f'v_rcp_f32 v{t}, v{SUM}')
            e.I(f'ds_write_b128 v6, {vr(OUT+4)} offset:2048')
            e.I(f'ds_write_b32 v10, v{t}')
            e.I(f'ds_write_b128 v6, {vr(OUT+8)} offset:4096')
            e.I(f'ds_write_b128 v6, {vr(OUT+12)} offset:6144')
            e.I('s_mov_b64 exec, -1')
        lim[0] = 99
        while kin: ld()
        e.I('s_waitcnt lgkmcnt(0)')
        if opt.tpos == 2: TS(e, 4)
        e.I('s_barrier')
        if opt.tpos == 3: TS(e, 4)
        if opt.nod:
            F = T0 + 4
            e.I(f'ds_read_b128 {vr(F)}, v11')
            e.I(f'ds_read2_b64 {vr(S)}, v7 offset0:0 offset1:64')
            e.I(f'ds_read2_b64 {vr(S+4)}, v7 offset0:128 offset1:192')
            e.I('s_add_u32 s48, s42, 8192')
            if opt.nc > 1 and opt.sa < 0:
                for m, r_ in enumerate((PAD, PAD + 1, PAD + 2, PAD + 3, 4, 5, 14)): e.I(f'buffer_load_dword v{PA+m}, v{r_}, {WS}, s41 offen sc1')
            e.I('s_waitcnt lgkmcnt(1)')
            e.I(f'v_pk_mul_f32 {vr(S,2)}, {vr(S,2)}, {vr(F,2)} op_sel_hi:[1,0]')
            e.I(f'v_pk_fma_f32 {vr(S,2)}, {vr(S+2,2)}, {vr(F,2)}, {vr(S,2)} op_sel:[0,1,0]')
            e.I('s_waitcnt lgkmcnt(0)')
            e.I(f'v_pk_fma_f32 {vr(S,2)}, {vr(S+4,2)}, {vr(F+2,2)}, {vr(S,2)} op_sel_hi:[1,0,1]')
            e.I(f'v_pk_fma_f32 {vr(S,2)}, {vr(S+6,2)}, {vr(F+2,2)}, {vr(S,2)} op_sel:[0,1,0]')
            e.I(f'v_cvt_pk_bf16_f32 v{S+4}, v{S}, v{S+1}')
            e.I(f'buffer_store_dword v{S+4}, v15, {WS}, s42 offen sc1')
            e.I(f'buffer_store_dword v{S+4}, v15, {WS}, s48 offen sc1')
            if opt.nc > 1:
                e.I(f'buffer_store_dword v{S+4}, v15, {WS}, s42 offen offset:256 sc1')
                e.I(f'buffer_store_dword v{S+4}, v15, {WS}, s48 offen offset:256 sc1')
        else:
            e.I(f'ds_read_b64 {vr(t,2)}, v11')
            e.I(f'ds_read_b128 {vr(S)}, v7')
            e.I(f'ds_read_b128 {vr(S+4)}, v7 offset:512')
            e.I('s_waitcnt lgkmcnt(1)')
            for k in range(4): e.I(f'v_mul_f32 v{S+k}, v{S+k}, v{t}')
            e.I('s_waitcnt lgkmcnt(0)')
            for k in range(4): e.I(f'v_fmac_f32 v{S+k}, v{S+4+k}, v{t+1}')
            if opt.remap == 2:
                e.I(f'v_permlane32_swap_b32 v{S}, v{S+2}')
                e.I(f'v_permlane32_swap_b32 v{S+1}, v{S+3}')
                e.I(f'v_add_f32 v{S}, v{S}, v{S+2}')
                e.I(f'v_add_f32 v{S+1}, v{S+1}, v{S+3}')
                e.I(f'v_cvt_pk_bf16_f32 v{S+4}, v{S}, v{S+1}')
                e.I(f'v_cvt_pk_bf16_f32 v{S+5}, v{S}, v{S+1}')
                e.I(f'v_permlane32_swap_b32 v{S+4}, v{S+5}')
                e.I(f'buffer_store_dwordx2 {vr(S+4,2)}, v13, {WS}, s42 offen sc1')
            else:
                for k in range(4): e.I(f'v_add_f32_dpp v{S+k}, v{S+k}, v{S+k} {ROR8}')
                if opt.pbf:
                    e.I(f'v_cvt_pk_bf16_f32 v{S+4}, v{S}, v{S+1}')
                    e.I(f'v_cvt_pk_bf16_f32 v{S+5}, v{S+2}, v{S+3}')
                    e.I(f'buffer_store_dwordx2 {vr(S+4,2)}, v13, {WS}, s42 offen sc1')
                else:
                    e.I(f'buffer_store_dwordx4 {vr(S)}, v13, {WS}, s42 offen sc1')
        TS(e, 5)
        if opt.rpos == 2: e.I(f'buffer_store_dwordx{PW} {vr(SENT,PW)}, v13, {WS}, s43 offen sc1')
        if not opt.nod:
            e.I(f'v_mov_b32 v{PA}, 0'); e.I(f'v_mov_b32 v{PA+1}, 0')
            if opt.remap == 2:
                e.I('s_mov_b32 vcc_lo, 0'); e.I('s_mov_b32 vcc_hi, -1')
                for k in range(2): e.I(f'v_cndmask_b32 v{S+2+k}, 0, v{S+k}, vcc')
                for k in range(2): e.I(f'v_cndmask_b32_e64 v{S+k}, v{S+k}, 0, vcc')
            else:
                for k in range(4): e.I(f'v_cndmask_b32 v{S+k}, v{S+k}, 0, s[68:69]')
        if opt.nc > 1:
            e.I(f's_waitcnt vmcnt({5 + (7 if opt.sa < 0 else 0)})')
            for gi in range(max(0, opt.sa)): vw_grp(gi)
        elif opt.pmf:
            e.I(f's_waitcnt vmcnt({1 + (opt.rpos == 2) + opt.nod})')
            for gi in range(opt.pmf): vw_grp(gi)
        if opt.pdelay: e.I(f's_sleep {opt.pdelay}')
        PADS = [PAD, PAD + 1, PAD + 2, PAD + 3, 4, 5, 14]
        def shot(PA=PA, off=0, seed=True):
            if opt.nod:
                for m in range(7): e.I(f'buffer_load_dword v{PA+m}, v{PADS[m]}, {WS}, s41 offen offset:{off} sc1')
                if seed:
                    for k in range(2): e.I(f'v_mov_b32 v{T0+4+k}, v{S+k}')
                return
            e.I('s_mov_b32 exec_lo, 0' if opt.remap == 2 else 's_mov_b64 exec, s[68:69]')
            e.I(f'buffer_load_dwordx2 {vr(PA,2)}, v{PAD}, {WS}, s41 offen sc1')
            e.I('s_mov_b64 exec, -1')
            for m in range(1, 4): e.I(f'buffer_load_dwordx2 {vr(PA+2*m,2)}, v{PAD+m}, {WS}, s41 offen sc1')
            for k in range(4): e.I(f'v_mov_b32 v{T0+8+k}, v{S+k}')
        ql, qd, qf = e.lab('Lpp'), e.lab('Lpd'), e.lab('Lpf')
        def acc(behind, PA=PA):
            if opt.nod:
                for m in range(7):
                    if m in (0, 3, 5, 6): e.I(f's_waitcnt vmcnt({(4, 0, 0, 2, 0, 1, 0)[m] + behind})')
                    if m == 0: e.I(f'v_max3_u32 v{T0}, v{PA}, v{PA+1}, v{PA+2}')
                    if m == 3: e.I(f'v_max3_u32 v{T0}, v{T0}, v{PA+3}, v{PA+4}')
                    if m == 6:
                        e.I(f'v_max3_u32 v{T0}, v{T0}, v{PA+5}, v{PA+6}')
                        e.I(f'v_cmp_eq_u32 vcc, -1, v{T0}')
                    for k in range(2): e.I(f'v_dot2c_f32_bf16 v{T0+4+k}, {("s70", "s71")[k]}, v{PA+m}')
                e.I(f's_cbranch_vccz {qd}')
                return
            for m in range(4):
                e.I(f's_waitcnt vmcnt({3-m+behind})')
                if m == 0: e.I(f'v_max_u32 v{T0}, v{PA}, v{PA+1}')
                else: e.I(f'v_max3_u32 v{T0}, v{T0}, v{PA+2*m}, v{PA+2*m+1}')
                if m == 3: e.I(f'v_cmp_eq_u32 vcc, -1, v{T0}')
                for k in range(4): e.I(f'v_dot2c_f32_bf16 v{T0+8+k}, {("s70", "s71")[k&1]}, v{PA+2*m+(k>>1)}')
            e.I(f's_cbranch_vccz {qd}')
        if opt.nc > 1:
            G = opt.pmf + opt.pmf2
            if opt.sa >= 0: shot()
            else:
                for k in range(2): e.I(f'v_mov_b32 v{T0+4+k}, v{S+k}')
            blind = opt.sb <= G
            for gi in range(max(0, opt.sa), min(G, opt.sb)): vw_grp(gi)
            if blind: shot(PA + 8, 256, False)
            for gi in range(min(G, opt.sb), G): vw_grp(gi)
            acc(7 if blind else 0)
            if opt.dstamp: e.I('s_add_u32 s92, s92, 1')
            if blind:
                for k in range(2): e.I(f'v_mov_b32 v{T0+4+k}, v{S+k}')
                e.I(f's_branch {qf}')
            e.L(ql)
            if opt.dstamp: e.I('s_add_u32 s93, s93, 1')
            shot(PA + 8, 256)
            e.L(qf)
            acc(0, PA + 8)
        else: shot()
        if opt.t9 == 10: e.I('s_waitcnt vmcnt(7)'); TS(e, 9)
        if opt.t9 == 11: e.I('s_waitcnt vmcnt(6)'); TS(e, 9)
        if opt.t9 == 12: e.I('s_waitcnt vmcnt(0)'); TS(e, 9)
        if opt.t9 == 13: TS(e, 9)
        if opt.rpos == 3: e.I(f'buffer_store_dwordx{PW} {vr(SENT,PW)}, v13, {WS}, s43 offen sc1')
        for gi in range(opt.pmf, opt.pmf + opt.pmf2):
            if opt.nc == 1: vw_grp(gi)
        if opt.nc > 1: pass
        elif opt.rpos == 3: acc(1)
        elif kp:
            e.I(f's_nop {opt.kgap}') if opt.kgap < 16 else e.I(f's_sleep {opt.kgap // 16}')
            for x_ in kp: e.I(x_)
            acc(len(kp))
        else:
            e.I(f's_branch {qf}')
        if opt.nc == 1:
            e.L(ql)
            if opt.dstamp: e.I('s_add_u32 s93, s93, 1')
            shot()
            e.L(qf)
            acc(0)
        e.I('s_sub_u32 s31, s31, 1')
        e.I(f's_cbranch_scc0 {ql}')
        e.I('s_mov_b32 s31, 4')
        e.I('s_branch L_fail')
        e.L(qd)
        TS(e, 6)
        if opt.nod: pass
        elif opt.remap == 2:
            e.I('s_nop 1')
            e.I(f'v_permlane32_swap_b32 v{T0+8}, v{T0+10}')
            e.I(f'v_permlane32_swap_b32 v{T0+9}, v{T0+11}')
            for k in range(2): e.I(f'v_add_f32 v{T0+4+k}, v{T0+8+k}, v{T0+10+k}')
        else:
            e.I('s_nop 1')
            for k in range(2): e.I(f'v_add_f32_dpp v{T0+4+k}, v{T0+8+k}, v{T0+8+k} row_ror:8 row_mask:0xf bank_mask:0x3')
            for k in range(2): e.I(f'v_add_f32_dpp v{T0+4+k}, v{T0+10+k}, v{T0+10+k} row_ror:8 row_mask:0xf bank_mask:0xc ; merge')
        e.I(f'v_cvt_pk_bf16_f32 v{T0+4}, v{T0+4}, v{T0+5}')
        e.I(f'buffer_store_dword v{T0+4}, v8, {WS}, s44 offen{fl}')
        TS(e, 7)
        e.I(f'buffer_store_dword v{SENT}, v8, {WS}, s45 offen{fl}')
        if opt.mbar: e.I('s_barrier')
        if opt.rpos == 4: e.I(f'buffer_store_dwordx{PW} {vr(SENT,PW)}, v13, {WS}, s43 offen sc1')
        nvx = max(0, 12 - opt.kin - opt.kp)
        for x_ in kc[:nvx]: e.I(x_)
        assert opt.kin >= opt.pmf + opt.pmf2
        if kp: e.I('s_waitcnt vmcnt(2)')
        if opt.split and opt.xg1 + opt.xg2:
            for x_ in kc[nvx:]: e.I(x_)
        elif opt.kxl:
            vw_x(None, (), 0, opt.pmf + opt.pmf2)
            for x_ in kc[nvx:]: e.I(x_)
        else: vw_x(None, kc[nvx:], nvx, opt.pmf + opt.pmf2)
        if opt.rpos == 5: e.I(f'buffer_store_dwordx{PW} {vr(SENT,PW)}, v13, {WS}, s43 offen sc1')
        TS(e, 8)
        TSflush(e, 's30', 244, 245)
        if opt.dstamp: e.I('s_lshl_b32 s98, s25, 8'); e.I('s_add_u32 s98, s98, s30')
        DSTAMP(e, 2, 's_cmp_eq_u32 s98, 9216')
        if opt.dstamp: e.I('s_lshl_b32 s98, s25, 8'); e.I('s_add_u32 s98, s98, s30')
        DSTAMP(e, 3, 's_cmp_eq_u32 s98, 9218')
        for idx_, st_ in ((6, 2), (7, 62)):
            for o_, off_ in (('clk', 0), ('rt', 2)):
                if opt.dstamp: e.I('s_lshl_b32 s98, s25, 8'); e.I('s_add_u32 s98, s98, s30'); e.I('s_lshl_b32 s99, s20, 16'); e.I('s_add_u32 s98, s98, s99')
                DSTAMP(e, idx_ + off_, f's_cmp_eq_u32 s98, {20*256 + st_}', o_)
        if opt.dstamp: e.I('s_lshl_b32 s98, s25, 8'); e.I('s_add_u32 s98, s98, s30')
        DSTAMP(e, 4, 's_cmp_eq_u32 s98, 9278')
        e.I('s_add_u32 s30, s30, 1')
        e.I('s_cmp_lt_u32 s30, 63')
        e.I(f's_cbranch_scc1 {top}')
        if not slow: e.I('s_branch L_swend')
    e.L('L_swend')
    if opt.dstamp == 1:
        e.I('s_mov_b64 exec, 1')
        for k in range(4):
            e.I(f'v_mov_b32 v238, {48 + 4*k}'); e.I(f'v_mov_b32 v239, s{90+k}')
            e.I('global_atomic_add v238, v239, s[74:75] sc1')
            e.I('s_nop 4')
        e.I('s_mov_b64 exec, -1')
    for sg in range(63 - opt.s62, 64):
        e.I('s_lshl_b32 s38, s20, 6')
        e.I('s_lshl_b32 s39, s22, 2')
        e.I('s_add_u32 s38, s38, s39')
        e.I(f's_add_u32 s38, s38, {FLGOX + sg*512}')
        e.I(f's_add_u32 s46, s62, {OX + (sg % RD)*SEG_QX}')
        e.I('s_add_u32 s56, s46, 4096')
        e.I('s_add_u32 s64, s46, 8192')
        e.I('s_lshl_b32 s39, s22, 10')
        e.I('v_add_u32 v6, s39, v2')
        e.I('s_lshl_b32 s39, s22, 12')
        e.I('v_add_u32 v7, s39, v2')
        e.I('s_lshr_b32 s40, s24, 1')
        e.I('s_lshl_b32 s40, s40, 2')
        e.I('s_add_u32 s40, s40, s22')
        e.I('s_lshl_b32 s40, s40, 10')
        e.I('s_and_b32 s41, s24, 1')
        e.I('s_lshl_b32 s41, s41, 3')
        e.I('s_add_u32 s40, s40, s41')
        e.I('s_mul_i32 s41, s20, 40960')
        e.I('s_add_u32 s40, s40, s41')
        e.I(f's_add_u32 s40, s40, {PX + sg*SEG_PX}')
        e.I('s_add_u32 s41, s40, 20480')
        e.I('s_mul_i32 s43, s20, 5')
        e.I('s_lshr_b32 s44, s24, 1')
        e.I('s_add_u32 s43, s43, s44')
        e.I('s_lshl_b32 s43, s43, 7')
        e.I(f's_add_u32 s43, s43, {HINT2 + 4*(sg - 62)}')
        e.I('v_mov_b32 v3, 0')
        e.I(f'v_mov_b32 v{ONE}, 1')
        if sg == 63 - opt.s62: e.I('s_waitcnt vmcnt(0)')
        TS(e, 0)
        wait_flags(e, 3, 's38', 1, T0, 5, sleep=opt.esleep)
        TS(e, 1)
        order = (0, 6, 1, 7, 2, 8, 3, 9, 4, 10, 5, 11)
        for q in order: e.I(f'buffer_load_dwordx4 {vr(VXF+4*q)}, v2, {WS}, {("s46", "s56", "s64")[q//4]} offen offset:{(q%4)*1024} sc1')
        for n_, q in enumerate(order):
            qt, kk = q // 6, q % 6
            e.I(f's_waitcnt vmcnt({11 - n_})')
            for ct in range(4):
                d = vr(DW + (qt*4+ct)*4)
                e.I(f'{MFMA} {d}, {ar((ct*6+kk)*4)}, {vr(VXF+4*q)}, {0 if kk == 0 else d}')
        TS(e, 2)
        if sg == 63 and opt.s62: e.I('s_barrier')
        for k in range(8): e.I(f'ds_write_b128 v6, {vr(DW+4*k)} offset:{k*4096}')
        e.I('s_waitcnt lgkmcnt(0)')
        e.I('s_barrier')
        for qt in range(2):
            for hh in range(4): e.I(f'ds_read_b128 {vr(KXF+(qt*4+hh)*4)}, v7 offset:{qt*16384 + hh*1024}')
        for qt in range(2):
            r = KXF + qt*16
            e.I(f's_waitcnt lgkmcnt({4 - 4*qt})')
            for k in range(4):
                e.I(f'v_add_f32 v{r+k}, v{r+k}, v{r+4+k}')
                e.I(f'v_add_f32 v{r+8+k}, v{r+8+k}, v{r+12+k}')
            for k in range(4): e.I(f'v_add_f32 v{r+k}, v{r+k}, v{r+8+k}')
            e.I(f'v_cvt_pk_bf16_f32 v{r+4}, v{r}, v{r+1}')
            e.I(f'v_cvt_pk_bf16_f32 v{r+5}, v{r+2}, v{r+3}')
            e.I(f'buffer_store_dwordx2 {vr(r+4,2)}, v2, {WS}, {("s40", "s41")[qt]} offen sc1')
        TS(e, 3)
        e.I('s_and_b32 s38, s25, 7')
        e.I(f's_cmp_eq_u32 s38, {opt.hwv}')
        e.I('s_cselect_b64 exec, 1, 0')
        e.I(f'buffer_store_dword v{ONE}, v3, {WS}, s43 offen sc1')
        e.I('s_mov_b64 exec, -1')
    TSflush(e, '63', 244, 245)
    e.I('s_endpgm')

def role_xw(e):
    OF = 16
    D = 112
    T0 = 160; ONE = 252
    e.I('s_sub_u32 s24, s21, 22')
    srd(e, 8, 66, 6144 * 1280)
    e.I(f's_mul_i32 s28, s20, {768*1280}')
    e.I('s_lshl_b32 s29, s24, 8')
    e.I('s_add_u32 s28, s28, s29')
    e.I('s_add_u32 s29, s28, 128')
    e.I(f'v_lshlrev_b32 v{ONE+1}, 2, v1')
    e.I('s_lshl_b32 s38, s20, 8')
    e.I(f's_add_u32 s38, s38, {FLGQ}')
    if opt.xlate & 1: wait_first(e, T0)
    def ring_touch():
        jobs = []
        for sl in range(RD):
            if sl >= 2: jobs += [(b_ + sl * SEG_QX, 12288, 96) for b_ in (KX, VX, QX)] + [(XP + sl * SEG_XP, 6144, 48), (VM + sl * SEG_VM, 3072, 24)]
            if sl >= 2: jobs += [(OX + (sl - 2) * SEG_QX, 12288, 96)]
        jobs += [(OX + sl * SEG_QX, 12288, 96) for sl in (6, 7)]
        e.I('s_lshl_b32 s40, s20, 2')
        e.I('s_add_u32 s40, s40, s22')
        touch_jobs(e, jobs, 's24', 5, 's40', 16)
    if opt.xlate & 1: ring_touch()
    pass
    load_weights(e, [('s[8:11]', 's28', 0, 768), ('s[8:11]', 's29', 96, 768)], 1280, 256, True, 3, 4)
    e.I(f'v_lshlrev_b32 v{ONE+1}, 2, v1')
    e.I('s_lshl_b32 s38, s20, 2')
    e.I('s_add_u32 s38, s38, s22')
    e.I('s_lshl_b32 s39, s38, 2')
    e.I('v_lshlrev_b32 v3, 7, v1')
    e.I('v_add_u32 v3, s39, v3')
    e.I(f'v_mov_b32 v{ONE}, 1')
    e.I('s_mul_i32 s62, s22, 12288')
    e.I('s_mul_i32 s63, s38, 12288')
    e.I(f's_add_u32 s63, s63, {OX}')
    e.I('s_mul_i32 s64, s20, 40960')
    e.I('s_lshl_b32 s65, s24, 2')
    e.I('s_add_u32 s65, s65, s22')
    e.I('s_lshl_b32 s65, s65, 10')
    e.I('s_add_u32 s64, s64, s65')
    e.I(f's_add_u32 s64, s64, {PX}')
    e.I('s_lshl_b32 s66, s24, 8')
    e.I(f's_add_u32 s66, s66, {FLGPX}')
    def pxflag():
        e.I('s_mov_b64 exec, 3')
        e.I(f'buffer_store_dword v{ONE}, v3, {WS}, s54 offen sc1')
        e.I('s_mov_b64 exec, s[60:61]')
        e.I(f'buffer_store_dword v{ONE}, v6, {WS}, s53 offen sc1')
        e.I('s_mov_b64 exec, -1')
    if not opt.xlate & 1: ring_touch()
    wait_reg(e, T0)
    top, nof, late, nxt_, last = e.lab('Lxt'), e.lab('Lxn'), e.lab('Lxl'), e.lab('Lxx'), e.lab('Lxe')
    e.I('s_lshl_b32 s67, s20, 6')
    e.I('s_lshl_b32 s38, s22, 2')
    e.I('s_add_u32 s67, s67, s38')
    e.I(f's_add_u32 s67, s67, {FLGOX}')
    e.I('s_lshl_b32 s38, s20, 5')
    e.I('s_add_u32 s38, s38, s24')
    e.I('s_lshl_b32 s38, s38, 2')
    e.I('v_mov_b32 v6, s38')
    e.I('v_mov_b32 v4, 0')
    e.I('v_mov_b32 v5, v2')
    def dma(sn):
        e.I(f's_and_b32 s55, {sn}, {RD-1}')
        e.I(f's_mul_i32 s55, s55, {SEG_QX}')
        e.I('s_add_u32 s55, s55, s63')
        e.I(f's_and_b32 s56, {sn}, 1')
        e.I('s_mul_i32 s56, s56, 49152')
        e.I('s_add_u32 s56, s56, s62')
        for m in range(12):
            e.I(f's_add_u32 m0, s56, {m*1024}')
            e.I(f'buffer_load_dwordx4 v2, {WS}, s55 offen sc1 lds')
            if m < 11: e.I('s_add_u32 s55, s55, 1024')
    e.I('s_mov_b32 s30, 0')
    wait_flags(e, 4, 's67', 1, T0, 5, sleep=opt.xsleep)
    dma('s30')
    e.L(top)
    TS(e, 0)
    e.I('s_add_u32 s58, s30, 1')
    e.I(f's_min_u32 s57, s58, {62 - opt.s62}')
    e.I('s_lshl_b32 s57, s57, 9')
    e.I('s_add_u32 s57, s57, s67')
    e.I('s_waitcnt vmcnt(0)')
    e.I(f'buffer_load_dword v{T0}, v4, {WS}, s57 offen sc1')

    e.I('s_cmp_eq_u32 s30, 0')
    e.I(f's_cbranch_scc1 {nof}')
    e.I('s_cmp_lg_u32 s59, 0')
    e.I(f's_cbranch_scc1 {nof}')
    pxflag()
    nof2 = e.lab('Lxm')
    e.I(f's_branch {nof2}')
    e.L(nof)
    for _ in range(2): e.I(f'buffer_load_dword v{T0+1}, v4, {WS}, s57 offen sc1')
    e.L(nof2)
    e.I('s_barrier')
    TS(e, 1)
    e.I(f's_mul_i32 s50, s30, {SEG_PX}')
    e.I('s_add_u32 s50, s50, s64')
    e.I('s_add_u32 s51, s50, 20480')
    e.I('s_mul_i32 s54, s30, 1280')
    e.I('s_add_u32 s54, s54, s66')
    e.I('s_and_b32 s53, s30, 3')
    e.I('s_lshl_b32 s53, s53, 10')
    e.I(f's_add_u32 s53, s53, {HINT}')
    e.I(f's_cmp_ge_u32 s30, {opt.cwarm}')
    e.I('s_cselect_b32 s60, 1, 0')
    e.I('s_cmp_eq_u32 s22, 0')
    e.I('s_cselect_b32 s60, s60, 0')
    e.I('s_mov_b32 s61, 0')
    TS(e, 2)
    PF = 6
    def rd(kk):
        hl, p = kk // 6, kk % 6
        for qt in range(2):
            e.I(f'ds_read_b128 {vr(OF + ((2*kk+qt) % 24)*4)}, v5 offset:{hl*12288 + (qt*6+p)*1024}')
    for kk in range(PF): rd(kk)
    for kk in range(24):
        nxt = min(24, kk + PF) - (kk + 1)
        e.I(f's_waitcnt lgkmcnt({2*nxt})')
        for qt in range(2):
            for b in range(2):
                d = vr(D + 4*(qt*2+b))
                e.I(f'{MFMA} {d}, {ar(96*b+4*kk)}, {vr(OF + ((2*kk+qt) % 24)*4)}, {0 if kk == 0 else d}')
        if kk + PF < 24: rd(kk + PF)
        if kk == 4:
            e.I('s_waitcnt vmcnt(2)')
            e.I(f'v_readfirstlane_b32 s59, v{T0}')
            e.I(f's_cmp_eq_u32 s30, {62 - opt.s62}')
            e.I('s_cselect_b32 s59, 0, s59')
            e.I('s_cmp_eq_u32 s59, 0')
            e.I(f's_cbranch_scc1 {late}')
            dma('s58')
            e.L(late)
        if kk == 16: e.I(f'buffer_load_dword v{T0}, v4, {WS}, s57 offen sc1')
    sc = e.lab('Lxs')
    e.I('s_cmp_lg_u32 s59, 0')
    e.I(f's_cbranch_scc1 {sc}')
    e.I(f's_cmp_eq_u32 s30, {62 - opt.s62}')
    e.I(f's_cbranch_scc1 {sc}')
    e.I('s_waitcnt vmcnt(0)')
    e.I(f'v_readfirstlane_b32 s59, v{T0}')
    e.I('s_cmp_eq_u32 s59, 0')
    e.I(f's_cbranch_scc1 {sc}')
    dma('s58')
    e.L(sc)
    for qt, so in enumerate(('s50', 's51')):
        for k in range(4): e.I(f'v_cvt_pk_bf16_f32 v{D+16+4*qt+k}, v{D+8*qt+2*k}, v{D+8*qt+2*k+1}')
        e.I(f'buffer_store_dwordx4 {vr(D+16+4*qt)}, v2, {WS}, {so} offen sc1')
    e.I('v_xor_b32 v5, 49152, v5')
    TS(e, 3)
    TSflush(e, 's30')
    e.I(f's_cmp_eq_u32 s30, {62 - opt.s62}')
    e.I(f's_cbranch_scc1 {last}')
    e.I('s_cmp_lg_u32 s59, 0')
    e.I('s_mov_b32 s59, 0')
    e.I(f's_cbranch_scc1 {nxt_}')
    e.I(f'buffer_load_dword v{T0}, v4, {WS}, s57 offen sc1')
    e.I('s_waitcnt vmcnt(0)')
    e.I(f'v_readfirstlane_b32 s38, v{T0}')
    e.I('s_cmp_lg_u32 s38, 0')
    sl2 = e.lab('Lxq')
    e.I(f's_cbranch_scc1 {sl2}')
    pxflag()
    e.I('s_mov_b32 s59, 1')
    wait_flags(e, 4, 's57', 1, T0, 5, sleep=opt.xsleep)
    e.L(sl2)
    dma('s58')
    e.L(nxt_)
    e.I('s_mov_b32 s30, s58')
    e.I(f's_branch {top}')
    e.L(last)
    e.I('s_waitcnt vmcnt(0)')
    pxflag()
    if opt.wb & 1:
        e.I('s_cmp_lg_u32 s21, 22'); e.I('s_cbranch_scc1 L_end'); e.I('s_cmp_lg_u32 s22, 0'); e.I('s_cbranch_scc1 L_end')
        e.I('buffer_wbl2 sc1'); e.I('s_waitcnt vmcnt(0)')
    e.I('s_endpgm')

def role_att(e):
    fl = ''
    KF, QF, VF = 0, 48, 96
    XPF = 16
    SA, SB, PA_, PB_ = 40, 48, 60, 64
    DO, OB = 72, 136
    T0 = 226
    C0, C1 = 232, 236
    ONE = 252
    e.I('s_sub_u32 s25, s21, 27')
    e.I('s_lshl_b32 s26, s20, 2')
    e.I('s_add_u32 s26, s26, s22')
    e.I(f's_mov_b32 s52, {SC_L2E:#x}'); e.I(f's_mov_b32 s53, {SC_L2E | 0x80000000:#x}')
    e.I(f'v_lshlrev_b32 v{ONE+1}, 2, v1')
    e.I('s_lshl_b32 s38, s22, 2')
    e.I(f'v_mov_b32 v{ONE+2}, s38')
    e.I(f'v_mov_b32 v{ONE}, 1')
    lane_ig(e, 14, 15)
    e.I(f'v_mov_b32 v3, {NEG_BIG:#x}')
    e.I('v_cmp_gt_u32 vcc, 32, v1')
    e.I(f'v_cndmask_b32 v{C0}, 0, v3, vcc')
    for k in range(1, 4): e.I(f'v_mov_b32 v{C0+k}, v{C0}')
    e.I('v_lshlrev_b32 v5, 2, v15')
    for r in range(4):
        e.I(f'v_add_u32 v6, {r}, v5')
        e.I('v_cmp_gt_u32 vcc, v6, v14')
        e.I(f'v_cndmask_b32 v{C1+r}, 0, v3, vcc')
    e.I('s_mul_i32 s58, s26, 6144')
    e.I('s_lshl_b32 s59, s22, 14')
    e.I('v_and_b32 v4, 3, v1')
    e.I('v_lshlrev_b32 v4, 8, v4')
    e.I('v_bfe_u32 v5, v1, 2, 3')
    e.I('v_lshl_add_u32 v5, v5, 4, v4')
    e.I('v_add_u32 v5, s59, v5')
    e.I('v_lshrrev_b32 v6, 2, v1')
    e.I('v_lshl_add_u32 v4, v6, 4, v4')
    e.I('v_add_u32 v4, s59, v4')
    wait_reg(e, T0)
    e.I('v_lshrrev_b32 v12, 2, v1')
    e.I('v_lshlrev_b32 v12, 8, v12')
    e.I('v_and_b32 v13, 3, v1')
    e.I('v_lshl_add_u32 v12, v13, 2, v12')
    e.I('s_lshl_b32 s38, s20, 4')
    e.I('v_add_u32 v12, s38, v12')
    e.I('s_lshl_b32 s60, s26, 6')
    e.I(f's_add_u32 s60, s60, {FLGQ}')
    if opt.rpos == 9:
        e.I('v_and_b32 v7, 15, v1')
        e.I('v_lshlrev_b32 v7, 4, v7')
        e.I('v_bfe_u32 v8, v1, 4, 1')
        e.I('v_lshl_add_u32 v7, v8, 13, v7')
        e.I('v_lshrrev_b32 v8, 5, v1')
        e.I('v_lshl_add_u32 v7, v8, 15, v7')
        e.I('s_lshr_b32 s61, s22, 1')
        e.I('s_lshl_b32 s61, s61, 14')
        e.I('s_and_b32 s38, s22, 1')
        e.I('s_lshl_b32 s38, s38, 12')
        e.I('s_add_u32 s61, s61, s38')
        e.I('s_lshl_b32 s38, s20, 9')
        e.I('s_add_u32 s61, s61, s38')
        e.I(f's_add_u32 s61, s61, {PART}')
        for k in range(4): e.I(f'v_mov_b32 v{240+k}, -1')
        e.I('v_mov_b32 v8, 48'); e.I('v_mov_b32 v9, 2')
        e.I('s_add_u32 s38, s25, 1')
        e.I(f's_mul_i32 s48, s38, {PART_SLOT}')
        e.I('s_add_u32 s48, s48, s61')
        for q in range(5):
            e.I(f'buffer_store_dwordx4 v[240:243], v7, {WS}, s48 offen sc1')
            if q < 4: e.I('s_add_u32 s48, s48, 65536')
        e.I('s_waitcnt vmcnt(0)')
        e.I('s_lshl_b32 s38, s38, 11')
        e.I('s_add_u32 s38, s38, s60')
        set_flag(e, 8, 's38', 9, ' sc1')
    e.I('s_cmp_lg_u32 s23, 0')
    e.I('s_cbranch_scc1 L_atts')
    for slow in (False, True):
        fl = ' sc1' if slow else ''
        if slow: e.L('L_atts')
        top = e.lab('Lat')
        e.I('s_mov_b32 s30, s25')
        e.L(top)
        TS(e, 0)
        e.I('s_max_u32 s51, s30, 2')
        e.I('s_lshl_b32 s51, s51, 11')
        e.I('s_add_u32 s51, s51, s60')
        e.I(f's_and_b32 s42, s30, {RD-1}')
        e.I(f's_mul_i32 s40, s42, {SEG_QX}')
        e.I('s_lshl_b32 s41, s58, 1')
        e.I('s_add_u32 s40, s40, s41')
        e.I(f's_mul_i32 s41, s42, {SEG_XP}')
        e.I('s_add_u32 s41, s41, s58')
        def backp():
            nbp = e.lab('Lab')
            e.I(f's_cmp_lt_u32 s30, {RD}')
            e.I(f's_cbranch_scc1 {nbp}')
            e.I(f's_sub_u32 s50, s30, {RD}')
            e.I('s_mul_i32 s50, s50, 1280')
            e.I(f's_add_u32 s50, s50, {FLGPX}')
            wait_flags(e, 12, 's50', 0xfffff, T0, 14, sleep=16)
            e.L(nbp)
        if not opt.abp: backp()
        wait_flags(e, ONE + 1, 's51', 0xfff, T0, 6, sleep=opt.asleep)
        def loads(dst, n, sbase, add):
            e.I(f's_add_u32 s48, {sbase}, {add}')
            for q in range(n):
                if q and q % 4 == 0: e.I('s_add_u32 s48, s48, 4096')
                e.I(f'buffer_load_dwordx4 {dst(q)}, v2, {WS}, s48 offen offset:{(q%4)*1024} sc1')
        e.I(f's_add_u32 s48, s40, {VX}')
        for q in range(12):
            e.I(f's_add_u32 m0, s59, {q*1024}')
            e.I(f'buffer_load_dwordx4 v2, {WS}, s48 offen sc1 lds')
            e.I('s_add_u32 s48, s48, 1024')
        loads(lambda q: ar(KF + 4*q), 12, 's40', KX)
        loads(lambda q: ar(QF + 4*q), 12, 's40', QX)
        e.I('s_add_u32 s51, s30, 2')
        e.I('s_lshl_b32 s51, s51, 11')
        e.I('s_add_u32 s51, s51, s60')
        e.I('s_waitcnt vmcnt(24)')
        for T in range(12):
            for rt in range(2):
                e.I(f'ds_read_b64_tr_b16 {ar(VF+6*T+2+2*rt,2)}, v4 offset:{rt*6144 + (T>>1)*1024 + (T&1)*8}')
        if opt.abp: backp()
        e.I('s_waitcnt vmcnt(0)')
        for p in range(6):
            e.I(f'{MFMA} {vr(SA+4)}, {ar(KF+4*p)}, {ar(QF+4*p)}, {vr(C1) if p == 0 else vr(SA+4)}')
            e.I(f'{MFMA} {vr(SB+4)}, {ar(KF+4*p)}, {ar(QF+24+4*p)}, {0 if p == 0 else vr(SB+4)}')
            e.I(f'{MFMA} {vr(SB+8)}, {ar(KF+24+4*p)}, {ar(QF+24+4*p)}, {vr(C1) if p == 0 else vr(SB+8)}')
        wait_flags(e, ONE + 1, 's51', 0xfff, T0, 6, sleep=opt.asleep)
        TS(e, 1)
        loads(lambda q: vr(XPF + 4*q), 6, 's41', XP)
        e.I('s_lshr_b32 s42, s41, 1')
        e.I(f's_add_u32 s48, s42, {VM}')
        for q in range(3):
            e.I(f's_add_u32 m0, s59, {12288 + q*1024}')
            e.I(f'buffer_load_dwordx4 v2, {WS}, s48 offen sc1 lds')
            e.I('s_add_u32 s48, s48, 1024')
        nr = 0
        if opt.rpos == 9:
            nr = 5
            e.I('s_add_u32 s48, s30, 3')
            e.I('s_and_b32 s48, s48, 3')
            e.I(f's_mul_i32 s48, s48, {PART_SLOT}')
            e.I('s_add_u32 s48, s48, s61')
            e.I('s_cmp_lt_u32 s30, 60')
            e.I('s_cselect_b64 exec, -1, 0')
            for q in range(5):
                e.I(f'buffer_store_dwordx4 v[240:243], v7, {WS}, s48 offen sc1')
                if q < 4: e.I('s_add_u32 s48, s48, 65536')
            e.I('s_mov_b64 exec, -1')
        for p in range(6):
            e.I(f's_waitcnt vmcnt({8-p+nr})')
            e.I(f'{MFMA} {vr(SA)}, {vr(XPF+4*p)}, {ar(QF+4*p)}, {vr(C0) if p == 0 else vr(SA)}')
            e.I(f'{MFMA} {vr(SB)}, {vr(XPF+4*p)}, {ar(QF+24+4*p)}, {vr(C0) if p == 0 else vr(SB)}')
        TS(e, 2)
        e.I('s_waitcnt vmcnt(0)')
        if opt.rpos == 9:
            e.I('s_add_u32 s48, s51, 2048')
            e.I('s_cmp_lt_u32 s30, 61')
            e.I('s_cselect_b64 exec, 1, 0')
            e.I(f'buffer_store_dword v9, v8, {WS}, s48 offen{fl}')
            e.I('s_mov_b64 exec, -1')
        for T in range(12):
            kk = T >> 1
            e.I(f'ds_read_b64_tr_b16 {ar(VF+6*T,2)}, v5 offset:{12288 + (kk % 3)*1024 + (kk // 3)*128 + (T&1)*8}')
        for x_ in softmax_list(SA, 8, PA_, T0): e.I(x_)
        e.I(f's_add_u32 s48, s40, {OX}')
        e.I('s_add_u32 s49, s48, 4096')
        e.I('s_add_u32 s50, s48, 8192')
        e.I('s_waitcnt lgkmcnt(0)')
        def fin(qt, p):
            d = DO + 8 * (p + (2 if qt else 0) * 3) % 64; o = OB + 4 * (qt*6 + p); q = qt*6 + p
            return [f'v_cvt_pk_bf16_f32 v{o+k}, v{d+2*k}, v{d+2*k+1}' for k in range(4)] + \
                   [f'buffer_store_dwordx4 {vr(o)}, v2, {WS}, {("s48", "s49", "s50")[q//4]} offen offset:{(q%4)*1024}{fl}']
        smb = softmax_list(SB, 12, PB_, T0)
        for T in range(12):
            e.I(f'{MFMA} {vr(DO+4*T)}, {ar(VF+6*T)}, {vr(PA_)}, 0')
            for _ in range(3): e.I(smb.pop(0))
        outs = [x_ for p in range(6) for x_ in fin(0, p)]
        while smb:
            e.I(smb.pop(0)); e.I(smb.pop(0)) if smb else None
            if outs: e.I(outs.pop(0))
        for x_ in outs: e.I(x_)
        for p in range(6):
            d = DO + 8 * (p + 6) % 64
            for t in range(2): e.I(f'{MFMA16} {vr(d+4*t)}, {ar(VF+6*(2*p+t),2)}, {vr(PB_,2)}, 0')
            for t in range(2): e.I(f'{MFMA} {vr(d+4*t)}, {ar(VF+6*(2*p+t)+2)}, {vr(PB_+2)}, {vr(d+4*t)}')
            if p > 1:
                for x_ in fin(1, p - 2): e.I(x_)
        for p in (4, 5):
            for x_ in fin(1, p): e.I(x_)
        e.I('s_lshl_b32 s50, s30, 3')
        e.I('s_add_u32 s50, s50, s20')
        e.I('s_lshl_b32 s50, s50, 6')
        e.I(f's_add_u32 s50, s50, {FLGOX}')
        e.I('s_waitcnt vmcnt(0)')
        set_flag(e, ONE + 2, 's50', ONE, fl)
        TS(e, 3)
        TSflush(e, 's30', 230, 231)
        e.I('s_add_u32 s30, s30, 2')
        e.I('s_cmp_lt_u32 s30, 64')
        e.I(f's_cbranch_scc1 {top}')
        e.I('s_endpgm')

F_LX, F_LH = 0, 98304
def role_ffn(e):
    ACC2 = 0
    ACC1 = 16
    BF = 48
    HP = 80
    WR = 96
    NW = 40
    e.I('s_sub_u32 s26, s21, 29')
    e.I('s_mul_i32 s25, s20, 3')
    e.I('s_add_u32 s26, s26, s25')
    e.I('s_mov_b32 s24, s26')
    srd(e, 8, 56, 640 * 3072); srd(e, 12, 58, 1536 * 1280)
    if opt.xlate & 4: wait_first(e, 16, opt.fwait)
    transpose_w(e, 's26')
    e.I('s_waitcnt vmcnt(0)')
    e.I('s_barrier')
    count_up(e, 3, D_TR)
    wait_count(e, 3, D_TR, 24, 16)
    if opt.urg: wait_count(e, 3, D_W, 80, 16)
    wait_reg(e, 16, 32)
    e.L('L_ffn_task')
    e.I('s_lshl_b32 s38, s24, 2')
    e.I('s_add_u32 s38, s38, s22')
    e.I('s_mul_i32 s39, s38, 20480')
    e.I(f's_add_u32 s39, s39, {XN}')
    e.I('s_mul_i32 s40, s22, 20480')
    for m in range(20):
        e.I(f's_add_u32 m0, s40, {m*1024}')
        e.I(f'buffer_load_dwordx4 v2, {WS}, s39 offen lds')
        e.I('s_add_u32 s39, s39, 1024')
    for k in range(160): e.I(f'v_accvgpr_write_b32 a{k}, 0')
    e.I('s_mul_i32 s41, s22, 40960')
    e.I(f's_add_u32 s41, s41, {W1F}')
    e.I(f's_mul_i32 s42, s22, {10*48*1024}')
    e.I(f's_add_u32 s42, s42, {W2F}')
    e.I('v_add_u32 v3, 20480, v2')
    for u in range(10):
        e.I(f's_mov_b32 s54, {u*48*1024}')
        e.I(f'v_add_u32 v{4+u}, s54, v2')
    e.I(f'v_add_u32 v14, {F_LH}, v2')
    e.I('s_lshl_b32 s38, s22, 12')
    e.I('v_add_u32 v15, s38, v14')
    def wload(idx, adv):
        dst = vr(WR + (idx % NW) * 4)
        if idx < 40:
            kk, u = idx // 2, idx % 2
            e.I(f's_add_u32 s45, {adv[0]}, {(kk//4)*4096}')
            e.I(f'buffer_load_dwordx4 {dst}, v{2+u}, {WS}, s45 offen offset:{(kk%4)*1024}{" nt" if opt.ffnnt else ""}')
        else:
            pp, u = (idx - 40) // 10, (idx - 40) % 10
            e.I(f'buffer_load_dwordx4 {dst}, v{4+u}, {WS}, {adv[1]} offen offset:{pp*1024}{" nt" if opt.ffnnt else ""}')
    for idx in range(NW - 2): wload(idx, ('s41', 's42'))
    e.I(f's_waitcnt vmcnt({NW-2})')
    e.I('s_barrier')
    top = e.lab('Lft')
    TS(e, 0)
    e.I('s_mov_b32 s30, 0')
    e.L(top)
    e.I('s_cmp_lt_u32 s30, 11')
    e.I('s_cselect_b32 s46, 163840, 0')
    e.I('s_cselect_b32 s47, 4096, 0')
    e.I('s_add_u32 s43, s41, s46')
    e.I('s_add_u32 s44, s42, s47')
    D = NW - 2
    def pref(idx):
        j = idx + D
        if j < 80: wload(j, ('s41', 's42'))
        else: wload(j - 80, ('s43', 's44'))
    def rdx(kk):
        for rt in range(4):
            e.I(f'ds_read_b128 {vr(BF + ((kk%2)*4+rt)*4)}, v{2 if rt < 3 else 3} offset:{(rt if rt < 3 else 2)*20480 + kk*1024}')
    rdx(0)
    for kk in range(20):
        if kk + 1 < 20: rdx(kk + 1)
        e.I(f's_waitcnt vmcnt({D-2}) lgkmcnt({4 if kk+1 < 20 else 0})')
        for u in range(2):
            idx = 2 * kk + u
            for rt in range(4):
                d = vr(ACC1 + (u*4+rt)*4)
                e.I(f'{MFMA} {d}, {vr(WR+(idx%NW)*4)}, {vr(BF+((kk%2)*4+rt)*4)}, {0 if kk == 0 else d}')
        pref(2 * kk); pref(2 * kk + 1)
    for rt in range(4):
        for u in range(2):
            d = ACC1 + (u*4+rt)*4
            for k in range(4): e.I(f'v_max_f32 v{d+k}, 0, v{d+k}')
            e.I(f'v_cvt_pk_bf16_f32 v{HP+rt*4+2*u}, v{d}, v{d+1}')
            e.I(f'v_cvt_pk_bf16_f32 v{HP+rt*4+2*u+1}, v{d+2}, v{d+3}')
        e.I(f'ds_write_b128 v15, {vr(HP+rt*4)} offset:{rt*1024}')
    e.I('s_waitcnt lgkmcnt(0)')
    e.I('s_barrier')
    def rdh(pp):
        for rt in range(4):
            e.I(f'ds_read_b128 {vr(BF + ((pp%2)*4+rt)*4)}, v14 offset:{pp*4096 + rt*1024}')
    rdh(0)
    for pp in range(4):
        if pp + 1 < 4: rdh(pp + 1)
        for u in range(10):
            idx = 40 + pp * 10 + u
            w = f's_waitcnt vmcnt({D-1})'
            if u == 0: w += f' lgkmcnt({4 if pp+1 < 4 else 0})'
            e.I(w)
            for rt in range(4):
                d = ar(ACC2 + (u*4+rt)*4)
                e.I(f'{MFMA} {d}, {vr(WR+(idx%NW)*4)}, {vr(BF+((pp%2)*4+rt)*4)}, {d}')
            pref(idx)
    e.I('v_xor_b32 v14, 16384, v14')
    e.I('v_xor_b32 v15, 16384, v15')
    e.I('s_mov_b32 s41, s43')
    e.I('s_mov_b32 s42, s44')
    e.I('s_add_u32 s30, s30, 1')
    e.I('s_cmp_lt_u32 s30, 12')
    e.I(f's_cbranch_scc1 {top}')
    e.I('s_waitcnt vmcnt(0)')
    TS(e, 1)
    e.I('v_lshlrev_b32 v3, 3, v1')
    e.I(f's_mul_i32 s38, s24, {4*40*512}')
    e.I(f's_mul_i32 s39, s22, {10*512}')
    e.I('s_add_u32 s38, s38, s39')
    e.I(f's_add_u32 s38, s38, {G_}')
    e.I(f's_mov_b32 s52, {f2u(-1.4426950408889634):#x}')
    for rt in range(4):
        e.I(f's_add_u32 s39, s38, {rt*40*512}')
        e.I('s_add_u32 s40, s39, 4096')
        for u in range(10):
            t = 16 + ((rt*10+u) % 4) * 16
            a0 = ACC2 + (u*4+rt)*4
            for k in range(4): e.I(f'v_accvgpr_read_b32 v{t+k}, a{a0+k}')
            e.I(f'v_cvt_pk_bf16_f32 v{t+4}, v{t}, v{t+1}')
            e.I(f'v_cvt_pk_bf16_f32 v{t+5}, v{t+2}, v{t+3}')
            e.I(f'v_lshlrev_b32 v{t}, 16, v{t+4}')
            e.I(f'v_and_b32 v{t+1}, 0xffff0000, v{t+4}')
            e.I(f'v_lshlrev_b32 v{t+2}, 16, v{t+5}')
            e.I(f'v_and_b32 v{t+3}, 0xffff0000, v{t+5}')
            for k in range(4): e.I(f'v_mul_f32 v{t+4+k}, s52, v{t+k}')
            for k in range(4): e.I(f'v_exp_f32 v{t+4+k}, v{t+4+k}')
            for k in range(4): e.I(f'v_add_f32 v{t+4+k}, 1.0, v{t+4+k}')
            for k in range(4): e.I(f'v_rcp_f32 v{t+4+k}, v{t+4+k}')
            for k in range(4): e.I(f'v_mul_f32 v{t+k}, v{t+k}, v{t+4+k}')
            e.I(f'v_cvt_pk_bf16_f32 v{t+8}, v{t}, v{t+1}')
            e.I(f'v_cvt_pk_bf16_f32 v{t+9}, v{t+2}, v{t+3}')
            e.I(f'buffer_store_dwordx2 {vr(t+8,2)}, v3, {WS}, {"s39" if u < 8 else "s40"} offen offset:{(u%8)*512} sc1')
    e.I('s_waitcnt vmcnt(0)')
    TS(e, 2)
    if opt.ts: e.I('s_lshr_b32 s50, s24, 3'); e.I('s_add_u32 s50, s50, 64')
    TSflush(e, 's50')
    e.I('s_barrier')
    e.I('s_cmp_lg_u32 s22, 0')
    e.I('s_cbranch_scc1 L_ffn_nf')
    e.I('v_mov_b32 v4, 1')
    e.I('s_lshl_b32 s38, s24, 2')
    e.I('v_mov_b32 v5, s38')
    e.I(f's_mov_b32 s39, {FLGG}')
    set_flag(e, 5, 's39', 4, ' sc1')
    e.I('s_waitcnt vmcnt(0)')
    e.L('L_ffn_nf')
    e.I('s_cmp_ge_u32 s26, 8')
    e.I(f's_cbranch_scc1 {"L_end" if opt.nocmb else "L_cmb"}')
    e.I('s_add_u32 s24, s24, 24')
    e.I('s_cmp_lt_u32 s24, 32')
    e.I('s_cbranch_scc1 L_ffn_task')
    e.I('s_endpgm')

def role_cmb(e):
    PXR = 16
    GR = 144
    XR_ = 152
    T0 = 160
    e.I('s_sub_u32 s24, s26, 8')
    e.I('s_lshl_b32 s24, s24, 2')
    e.I('s_add_u32 s30, s24, s22')
    e.I(f's_mov_b32 s33, {opt.qc or 1280}')
    e.L('L_cmb2')
    srd(e, 8, 68, 2048 * 1280)
    srd(e, 12, 70, 2048 * 1280)
    e.I('v_lshlrev_b32 v3, 2, v1')
    e.I('v_lshlrev_b32 v4, 3, v1')
    e.I('v_mov_b32 v6, 0')
    lane_ig(e, 14, 15)
    e.I('v_mul_u32_u24 v5, 1280, v14')
    e.I('v_lshl_add_u32 v5, v15, 3, v5')
    e.I('s_mov_b32 s49, 0')
    e.I('s_mov_b32 s52, 0x3f80'); e.I('s_mov_b32 s53, 0x3f800000')
    e.I('v_lshrrev_b32 v7, 4, v1')
    e.I('v_mul_u32_u24 v7, 40960, v7')
    e.I('v_lshl_add_u32 v7, v14, 7, v7')
    e.I(f'v_add_u32 v8, {4*40960}, v7')
    top = e.lab('Lct')
    if opt.t63:
        e.I('s_cmp_eq_u32 s33, 0')
        e.I(f's_cbranch_scc1 {top}')
        e.I('s_add_u32 s38, s30, 1216')
        e.I('s_mul_i32 s39, s38, 3277')
        e.I('s_lshr_b32 s39, s39, 16')
        e.I('s_mul_i32 s40, s39, 20')
        e.I('s_sub_u32 s40, s38, s40')
        e.I(f's_mul_i32 s43, s39, {SEG_PX}')
        e.I('s_lshl_b32 s40, s40, 11')
        e.I('s_add_u32 s43, s43, s40')
        e.I(f's_add_u32 s43, s43, {PX}')
        for k in range(2): e.I(f'buffer_load_dword v{T0}, v{7+k}, {WS}, s43 offen sc1')
    e.L(top)
    TS(e, 0)
    e.I('s_mul_i32 s38, s30, 3277')
    e.I('s_lshr_b32 s38, s38, 16')
    e.I('s_mul_i32 s39, s38, 20')
    e.I('s_sub_u32 s39, s30, s39')
    e.I('s_cmp_ge_u32 s39, 10')
    e.I('s_cselect_b32 s40, 1, 0')
    e.I('s_mul_i32 s41, s40, 10')
    e.I('s_sub_u32 s41, s39, s41')
    gok = e.lab('Lcg')
    e.I('s_cmp_lg_u32 s49, 0')
    e.I(f's_cbranch_scc1 {gok}')
    e.I(f's_mov_b32 s42, {FLGG}')
    e.I('s_mov_b32 exec_hi, 0')
    e.I(f'buffer_load_dword v{T0}, v3, {WS}, s42 offen sc1')
    e.I('s_waitcnt vmcnt(0)')
    e.I(f'v_cmp_eq_u32 vcc, 0, v{T0}')
    e.I('s_mov_b64 exec, -1')
    e.I('s_cmp_eq_u32 vcc_lo, 0')
    e.I('s_cselect_b32 s49, 1, 0')
    e.I(f's_cbranch_scc1 {gok}')
    e.I('s_lshr_b32 s42, s38, 1')
    e.I('s_lshl_b32 s42, s42, 2')
    e.I(f's_add_u32 s42, s42, {FLGG}')
    wait_flags(e, 6, 's42', 1, T0, 7, sleep=32)
    e.L(gok)
    e.I(f's_mul_i32 s43, s38, {SEG_PX}')
    e.I('s_mul_i32 s44, s40, 20480')
    e.I('s_add_u32 s43, s43, s44')
    e.I('s_lshl_b32 s44, s41, 11')
    e.I('s_add_u32 s43, s43, s44')
    e.I(f's_add_u32 s43, s43, {PX}')
    e.I('s_lshl_b32 s45, s38, 1')
    e.I('s_add_u32 s45, s45, s40')
    e.I('s_mul_i32 s46, s45, 20480')
    e.I('s_lshr_b32 s47, s41, 1')
    e.I('s_lshl_b32 s47, s47, 2')
    e.I('s_and_b32 s48, s41, 1')
    e.I('s_add_u32 s44, s47, s48')
    e.I('s_lshl_b32 s47, s44, 10')
    e.I('s_add_u32 s47, s47, s46')
    e.I(f's_add_u32 s47, s47, {G_}')
    e.I('s_lshl_b32 s48, s44, 6')
    e.I('s_add_u32 s48, s48, s46')
    TO = (0, 4, 1, 5)
    for t in range(4):
        e.I(f'buffer_load_dwordx2 {vr(GR+2*t,2)}, v4, {WS}, s47 offen offset:{TO[t]*512} sc1')
        e.I(f'buffer_load_dwordx2 {vr(XR_+2*t,2)}, v5, s[8:11], s48 offen offset:{TO[t]*32}')
    c1, c2 = e.lab('Lc1'), e.lab('Lc2')
    e.I('s_mul_i32 s50, s38, 10')
    e.I('s_and_b32 s44, s41, 14')
    e.I('s_add_u32 s50, s50, s44')
    e.I('s_lshl_b32 s50, s50, 7')
    e.I(f's_add_u32 s50, s50, {FLGPX}')
    e.I(f's_cmp_ge_u32 s38, {opt.cwarm}')
    e.I(f's_cbranch_scc1 {c1}')
    e.I(f's_add_u32 s42, s38, {opt.clag}')
    e.I('s_lshl_b32 s42, s42, 3')
    e.I('s_add_u32 s42, s42, s20')
    e.I('s_lshl_b32 s42, s42, 6')
    e.I(f's_add_u32 s42, s42, {FLGOX}')
    wait_flags(e, 6, 's42', 1, T0, 9, sleep=opt.lsleep)
    wait_flags(e, 3, 's50', -1, T0, 8, sleep=opt.csleep)
    e.I(f's_branch {c2}')
    e.L(c1)
    e.I('s_and_b32 s42, s38, 3')
    e.I('s_lshl_b32 s42, s42, 3')
    e.I('s_add_u32 s42, s42, s20')
    e.I('s_lshl_b32 s42, s42, 7')
    e.I('s_lshl_b32 s44, s44, 1')
    e.I('s_add_u32 s42, s42, s44')
    e.I(f's_add_u32 s42, s42, {HINT}')
    e.I('s_mul_i32 s51, s20, 5')
    e.I('s_lshr_b32 s44, s41, 1')
    e.I('s_add_u32 s51, s51, s44')
    e.I('s_lshl_b32 s51, s51, 7')
    e.I(f's_add_u32 s51, s51, {HINT2}')
    e.I('s_and_b32 s44, s38, 1')
    e.I('s_lshl_b32 s44, s44, 2')
    e.I('s_add_u32 s51, s51, s44')
    e.I(f's_cmp_ge_u32 s38, {63 - opt.s62}')
    e.I('s_cselect_b32 s42, s51, s42')
    wait_flags(e, 6, 's42', 1, T0, 9, sleep=2)
    e.I(f's_cmp_ge_u32 s38, {63 - opt.s62}')
    e.I(f's_cbranch_scc1 {c2}')
    wait_flags(e, 3, 's50', -1, T0, 8, sleep=opt.c2sleep)
    e.L(c2)
    TS(e, 1)
    RAW = PXR + 32
    def ld(x):
        for t in range(2):
            if not opt.cdiag & 4: e.I(f'buffer_load_dwordx4 {vr(RAW+(x*2+t)*4)}, v2, {WS}, s43 offen offset:{t*1024} sc1')
        if x < 7: e.I('s_add_u32 s43, s43, 40960')
    def body(depth):
        for x in range(min(depth, 8)): ld(x)
        for x in range(8):
            left = min(depth - 1, 7 - x)
            e.I(f's_waitcnt vmcnt({left*2})')
            if x + depth < 8: ld(x + depth)
            for k in range(16): e.I(f'v_dot2c_f32_bf16 v{PXR+k}, {("s52", "s53")[k&1]}, v{RAW+x*8+(k>>1)}')
        e.I('s_nop 2')
    for k in range(16): e.I(f'v_mov_b32 v{PXR+k}, 0')
    fast, join = e.lab('Lcf'), e.lab('Lcj')
    e.I('s_cmp_ge_u32 s38, 61')
    e.I(f's_cbranch_scc1 {fast}')
    body(opt.cdepth)
    e.I(f's_branch {join}')
    e.L(fast)
    f2, pl_, pk_ = e.lab('Lcg'), e.lab('Lcp'), e.lab('Lck')
    e.I(f's_cmp_lt_u32 s38, {63 - opt.s62}')
    e.I(f's_cbranch_scc1 {f2}')
    e.I(f's_mov_b32 s31, {TMO}')
    e.I('s_mov_b32 s51, s43')
    e.L(pl_)
    e.I('s_mov_b32 s43, s51')
    for x in range(8): ld(x)
    e.I('s_waitcnt vmcnt(0)')
    check_sent(e, range(RAW, RAW + 64), T0, T0 + 1)
    e.I(f's_cbranch_vccz {pk_}')
    e.I('s_sub_u32 s31, s31, 1')
    e.I(f's_cbranch_scc0 {pl_}')
    e.I('s_mov_b32 s31, 8')
    e.I('s_branch L_fail')
    e.L(pk_)
    for x in range(8):
        for k in range(16): e.I(f'v_dot2c_f32_bf16 v{PXR+k}, {("s52", "s53")[k&1]}, v{RAW+x*8+(k>>1)}')
    e.I('s_nop 2')
    e.I(f's_branch {join}')
    e.L(f2)
    body(8)
    e.L(join)
    TS(e, 3)
    for t in range(4):
        b = PXR + 4 * t; u = T0 + 8 * (t % 2)
        e.I(f'v_cvt_pk_bf16_f32 v{u}, v{b}, v{b+1}')
        e.I(f'v_cvt_pk_bf16_f32 v{u+1}, v{b+2}, v{b+3}')
        for h_ in range(2):
            e.I(f'v_lshlrev_b32 v{b+2*h_}, 16, v{u+h_}')
            e.I(f'v_and_b32 v{b+2*h_+1}, 0xffff0000, v{u+h_}')
            e.I(f'v_lshlrev_b32 v{u+2+2*h_}, 16, v{GR+2*t+h_}')
            e.I(f'v_and_b32 v{u+3+2*h_}, 0xffff0000, v{GR+2*t+h_}')
        for k in range(4): e.I(f'v_mul_f32 v{b+k}, v{b+k}, v{u+2+k}')
        e.I(f'v_cvt_pk_bf16_f32 v{u}, v{b}, v{b+1}')
        e.I(f'v_cvt_pk_bf16_f32 v{u+1}, v{b+2}, v{b+3}')
        for h_ in range(2):
            e.I(f'v_lshlrev_b32 v{b+2*h_}, 16, v{u+h_}')
            e.I(f'v_and_b32 v{b+2*h_+1}, 0xffff0000, v{u+h_}')
            e.I(f'v_lshlrev_b32 v{u+2+2*h_}, 16, v{XR_+2*t+h_}')
            e.I(f'v_and_b32 v{u+3+2*h_}, 0xffff0000, v{XR_+2*t+h_}')
        for k in range(4): e.I(f'v_add_f32 v{b+k}, v{b+k}, v{u+2+k}')
        e.I(f'v_cvt_pk_bf16_f32 v{u+6}, v{b}, v{b+1}')
        e.I(f'v_cvt_pk_bf16_f32 v{u+7}, v{b+2}, v{b+3}')
        e.I(f'buffer_store_dwordx2 {vr(u+6,2)}, v5, s[12:15], s48 offen offset:{TO[t]*32}{("", " sc1", " nt")[opt.ost]}')
    TS(e, 2)
    if opt.ts: e.I('s_lshr_b32 s50, s30, 6')
    TSflush(e, 's50')
    e.I('s_add_u32 s30, s30, 64')
    e.I('s_cmp_lt_u32 s30, s33')
    e.I(f's_cbranch_scc1 {top}')
    DSTAMP(e, 5)
    e.I(f's_cmp_lg_u32 s30, {1279 + 64}')
    e.I('s_cbranch_scc1 L_end')
    e.I('s_mov_b32 exec_hi, 0xffff')
    e.I(f'global_store_dword v3, v6, s[74:75] offset:{D_TR} sc1')
    e.I('s_endpgm')

def gen_mainkernel(e):
    kernel_head(e, MAIN)
    e.I('s_cmp_ge_u32 s2, 256')
    e.I('s_cbranch_scc1 L_end')
    e.I('s_load_dwordx2 s[32:33], s[0:1], 96')
    e.I('s_load_dwordx4 s[60:63], s[0:1], 16')
    e.I('s_load_dwordx4 s[64:67], s[0:1], 32')
    e.I('s_load_dwordx4 s[52:55], s[0:1], 0')
    e.I('s_load_dwordx4 s[56:59], s[0:1], 64')
    e.I('s_load_dwordx4 s[72:75], s[0:1], 80')
    TS(e, 0)
    e.I('s_getreg_b32 s24, hwreg(HW_REG_XCC_ID)')
    e.I('v_and_b32 v1, 63, v0')
    e.I('v_lshlrev_b32 v2, 4, v1')
    e.I('v_lshrrev_b32 v3, 6, v0')
    e.I('v_readfirstlane_b32 s22, v3')
    if opt.cwarm2:
        e.I('s_getpc_b64 s[34:35]')
        e.L('L_pc')
        e.I('s_lshr_b32 s36, s2, 3')
        e.I('s_lshl_b32 s36, s36, 2')
        e.I('v_add_u32 v3, s36, v3')
        e.I(f'v_mul_u32_u24 v3, {opt.cwarm2}, v3')
        e.I(f'v_min_u32 v4, {opt.cwarm2 - 1}, v1')
        e.I('v_add_u32 v3, v3, v4')
        e.I('v_lshlrev_b32 v3, 7, v3')
        e.I('v_min_u32 v3, L_last-L_pc, v3')
        e.I('v_mov_b32 v5, s35')
        e.I('v_add_co_u32 v4, vcc, s34, v3')
        e.I('v_addc_co_u32 v5, vcc, 0, v5, vcc')
        e.I('global_load_dword v255, v[4:5], off')
    if opt.force_slow:
        e.I('s_lshr_b32 s20, s2, 5'); e.I('s_and_b32 s21, s2, 31')
    else:
        e.I('s_and_b32 s20, s2, 7'); e.I('s_lshr_b32 s21, s2, 3')
    e.I('s_and_b32 s24, s24, 15')
    e.I('s_lshl_b32 s96, s20, 4')
    e.I('s_and_b32 s25, s24, 12')
    e.I('s_add_u32 s96, s96, s25')
    e.I('s_and_b32 s25, s24, 3')
    e.I('s_lshl_b32 s25, s25, 3')
    e.I('s_lshl_b32 s97, 1, s25')
    e.I('s_waitcnt lgkmcnt(0)')
    e.I('s_mov_b64 s[70:71], s[72:73]')
    e.I('s_mov_b64 s[68:69], s[52:53]')
    srd(e, 4, 32, WS_BYTES)
    TS(e, 1)
    TSflush(e, '70')
    if opt.dstamp: e.I('s_lshl_b32 s98, s21, 2'); e.I('s_add_u32 s98, s98, s22')
    DSTAMP(e, 0, 's_cmp_eq_u32 s98, 84', 'neg')
    e.I('s_cmp_ge_u32 s21, 22'); e.I('s_cbranch_scc1 L_help')
    e.I('s_sub_u32 s24, s21, 12')
    if opt.urg: e.I('s_cmp_lt_u32 s24, 2')
    else: e.I('s_cmp_eq_u32 s24, 1')
    e.I('s_cbranch_scc1 L_urg')
    register(e, 3, 4)
    e.I('s_cmp_ge_u32 s21, 12'); e.I('s_cbranch_scc1 L_wo')
    role_qkv(e)
    e.L('L_urg')
    srd(e, 8, 52, 2048 * 1280); srd(e, 12, 54, 8 * 1280)
    e.I('s_cmp_lg_u32 s24, 0')
    e.I('s_cbranch_scc1 L_um')
    ln_addr(e)
    e.I('s_mul_i32 s25, s20, 20480')
    ln_load(e, 16, 's25')
    e.I('s_waitcnt vmcnt(0)')
    ln_compute(e, 16, 's25')
    e.I('s_branch L_ur')
    e.L('L_um')
    mem0_copy(e, None, 0, opt.inl)
    e.I('s_mul_i32 s41, s20, 10240')
    e.I(f's_add_u32 s41, s41, {MEM}')
    e.I('s_waitcnt vmcnt(0)')
    mem0_copy(e, 's41', 1)
    e.L('L_ur')
    e.I('s_waitcnt vmcnt(0)')
    e.I('s_barrier')
    register(e, 3, 4)
    e.L('L_wo'); role_sw(e)
    e.L('L_help')
    srd(e, 8, 52, 2048 * 1280)
    e.I('s_mul_i32 s24, s20, 10')
    e.I('s_add_u32 s24, s24, s21')
    e.I('s_sub_u32 s24, s24, 22')
    if opt.urg: init_fill(e, 's24', 80)
    ln_addr(e)
    e.I('s_mul_i32 s25, s24, 20480')
    if opt.urg: e.I(f's_add_u32 s25, s25, {8*20480}')
    e.I(f's_add_u32 s26, s25, {80*20480}')
    ln_load(e, 16, 's25')
    ln_load(e, 36, 's26')
    if opt.urg:
        e.I('s_waitcnt vmcnt(10)')
        e.I('s_barrier')
        register(e, 3, 4)
    elif opt.pfh:
        srd(e, 12, 64, 640 * 12288); srd(e, 16, 60, 640 * 12288)
        e.I('s_sub_u32 s27, s21, 22')
        e.I('s_lshl_b32 s27, s27, 2')
        e.I('s_add_u32 s27, s27, s22')
        prefetch_w(e, 's27', 0, opt.pfh, 124, 's[12:15]', 's[16:19]')
    else: init_fill(e, 's24', 80)
    e.I(f's_waitcnt vmcnt({3*opt.pfh})')
    ln_compute(e, 16, 's25')
    e.I(f's_cmp_ge_u32 s24, {40 if opt.urg else 48}')
    e.I('s_cbranch_scc1 L_hl')
    ln_compute(e, 36, 's26')
    e.L('L_hl')
    if opt.pfh: init_fill(e, 's24', 80)
    e.I('s_waitcnt vmcnt(0)')
    e.I('s_barrier')
    if opt.urg: count_up(e, 3, D_W)
    else: register(e, 3, 4)
    TS(e, 0)
    TSflush(e, '69')
    if opt.touch2:
        wait_reg(e, 16, opt.rsleep)
        e.I('s_sub_u32 s24, s21, 22')
        e.I('s_lshl_b32 s25, s20, 2')
        e.I('s_add_u32 s25, s25, s22')
        touch_jobs(e, [(XN + k * 40960, 10240, 40) for k in range(3)] + [(XN + k * 40960 + 5120, 10240, 40) for k in range(3)], 's24', 10, 's22', 18)
        jobs = []
        for sl in range(4): jobs += [(MEM + sl * MEM_SLOT, 2560, 20), (XR + sl * XR_SLOT, 6144, 48), (VR + sl * VR_SLOT, 3072, 24)]
        touch_jobs(e, jobs[::-1][:4] + jobs[:8], 's24', 10, 's25', 24, 6)
    e.I('s_cmp_ge_u32 s21, 29'); e.I('s_cbranch_scc1 L_ffn')
    e.I('s_cmp_lt_u32 s21, 27'); e.I('s_cbranch_scc1 L_xw')
    role_att(e)
    e.L('L_xw'); role_xw(e)
    e.L('L_ffn'); role_ffn(e)
    e.L('L_cmb'); role_cmb(e)
    e.L('L_fail')
    e.I('s_mov_b64 exec, 1')
    e.I('s_lshl_b32 s31, s31, 2')
    e.I('v_mov_b32 v3, s31')
    e.I('v_mov_b32 v4, 1')
    e.I('global_atomic_add v3, v4, s[74:75]')
    e.L('L_end')
    e.L('L_last')
    e.I('s_endpgm')

def build(path):
    import gen_pre
    gen_pre.DIAG[0] = opt.noinit
    if opt.s62:
        assert opt.rpos == 9
        gen_pre.INIT_REGIONS[-2:] = [(PART, PART_SLOT // 4096, -1), (PX + 62 * SEG_PX, 2 * SEG_PX // 4096, -1)]
    for k in range(3): NT[k] = ' nt' if opt.pnt >> k & 1 else ''
    hdr = open('cdna_kernels/' + NAME + '.s.ref').read().split('\n')
    e = Em()
    for l in hdr:
        if l.startswith(';') and '@launch' not in l and 'Override launch' not in l and 'grid=ceil' not in l: e.raw(l)
    e.raw(f'; @launch grid=(256,1,1) block=(256,1,1) lds=163840')
    e.raw('.amdgcn_target "amdgcn-amd-amdhsa--gfx950"')
    gen_mainkernel(e)
    kernel_desc(e, MAIN, 512, 100, 256)
    hazard.PIPE = bool(opt.pipe)
    lines, added = hazard.pad(e.lines)
    open(path, 'w').write('\n'.join(lines) + '\n')
    n = sum(1 for l in lines if l.startswith('    ') and not l.strip().startswith(';'))
    print(f'wrote {path}: {n} instructions, {added} nops added')

if __name__ == '__main__':
    out = sys.argv[1] if len(sys.argv) > 1 else 'cdna_kernels/' + NAME + '.s'
    if 'slow' in sys.argv[2:]: opt.force_slow = True
    if 'ts' in sys.argv[2:]: opt.ts = True
    for k in ('nobg', 'ackpoll', 'noxw'):
        if k in sys.argv[2:]: setattr(opt, k, True)
    for a_ in sys.argv[2:]:
        if '=' in a_: k_, v_ = a_.split('='); setattr(opt, k_, int(v_))
    build(out)
```

```python
import sys, struct
from asmlib import *
from layout import *
import hazard
from gen_pre import *

NAME = 'recurrent_scan__memory_aug_recurrent_mem_tr__dense_activation_relu__prompt'
MAIN = NAME + '_kernel'
PRE = 'prep_kernel'
LDS_TOTAL = 131072
LDS_ROLE = 131072
TMO = 1 << 18
def f2u(x): return struct.unpack('<I', struct.pack('<f', x))[0]
SC_L2E = f2u(192 ** -0.5 * 1.4426950408889634)
NEG_BIG = f2u(-1e30)
MFMA = 'v_mfma_f32_16x16x32_bf16'
MFMA16 = 'v_mfma_f32_16x16x16_bf16'
SMF = 'v_smfmac_f32_16x16x64_bf16'
WS = 's[4:7]'
WFL = ['', ' nt', ' sc1', ' sc0 sc1', ' sc1 nt', ' sc0 sc1 nt']

class Opt:
    force_slow = False
    ts = False
    nobg = False
    ackpoll = False
    noxw = False
    pdelay = 0
    vdelay = 0
    kbar = 0
    kpre = 12
    kin = 12
    fresh = 0
    pdiag = 0
    pflip = 0
    touch = 1
    nofc = 0
    nopx = 0
    nocmb = 0
    cdepth = 2
    ffnnt = 0
    pr = 1
    pfar = 0
    vpre = 0
    vmpos = 2
    smpre = 1
    smgap = 3
    ldgap = 30
    kp = 0
    kcs = 0
    kce = 12
    xlate = 4
    csleep = 8
    cwarm = 61
    c2sleep = 4
    clag = 2
    lsleep = 8
    xsleep = 2
    asleep = 2
    cdiag = 0
    n1 = 5
    n2 = 4
    n3 = 0
    thin = 1
    split = 2
    eord = 1
    inl = 1
    spr = 1
    spr0 = 4
    spre = 0
    x0e = 0
    pr2 = 0
    ad = 0
    mrl = 0
    adn = 8
    adlo = 3
    adhi = 8
    adup = 1
    ffd = 24
    fprio = 0
    s62 = 1
    abp = 1
    x2e = 0
    kxl = 0
    vxe = 0
    qlead = 1
    pvord = 0
    pvl = 2
    qc = 1220
    f63 = 1
    two = 1
    nc = 1
    sa = 4
    sb = 7
    cvx = 24
    nod = 1
    sord = 1
    thin1 = 1
    pvmix = 1
    vin = 3
    zin = 0
    rdmix = 2
    t9 = -1
    vgap = 0
    fv = 11
    pipe = 1
    ktight = 1
    vx2 = 1
    ox4 = 1
    remap = 1
    fq = 3
    vown = 1
    g1 = 0
    g2 = 0
    vpos = 1
    xg1 = 0
    xg2 = 0
    fwait = 3
    ptouch = 1
    spec = 1
    mwait = 0
    mpre = 2
    kgap = 15
    noinit = 0
    pfh = 0
    wb = 0
    ost = 0
    mprobe = 0
    kx = 0
    dstamp = 0
    hwv = 7
    t63 = 1
    esleep = 1
    tpos = 0
    pmf = 6
    pmf2 = 4
    urg = 0
    rsleep = 16
    cwarm2 = 0
    tord = 0
    pfs = 0
    swlate = 1
    fpos = 7
    heads = 1
    hdelay = 0
    wnb = 3
    wrows = 320
    touch2 = 1
    pnt = 1
    wnt = 1
    wthr = 64
    xpf = 10
    xdma0 = 10
    xdmas = 1
    pbf = 1
    rpos = 9
    mbar = 1
    pspin = 0
    nobulk = 0
opt = Opt()

def vr(i, n=4): return f'v[{i}:{i+n-1}]'
def ar(i, n=4): return f'a[{i}:{i+n-1}]'

def maxchain(e, dst, regs, op='u32'):
    regs = list(regs)
    e.I(f'v_max3_{op} v{dst}, v{regs[0]}, v{regs[1]}, v{regs[2]}')
    rest = regs[3:]
    while rest:
        if len(rest) >= 2:
            e.I(f'v_max3_{op} v{dst}, v{dst}, v{rest[0]}, v{rest[1]}'); rest = rest[2:]
        else:
            e.I(f'v_max_{op} v{dst}, v{dst}, v{rest[0]}'); rest = rest[1:]

def check_sent(e, regs, t0, t1):
    regs = list(regs)
    if len(regs) >= 8:
        h = len(regs) // 2
        A, B = regs[:h], regs[h:]
        ea, eb = Em(), Em()
        maxchain(ea, t0, A); maxchain(eb, t1, B)
        for i in range(max(len(ea.lines), len(eb.lines))):
            if i < len(ea.lines): e.lines.append(ea.lines[i])
            if i < len(eb.lines): e.lines.append(eb.lines[i])
        e.I(f'v_max_u32 v{t0}, v{t0}, v{t1}')
    else:
        maxchain(e, t0, regs)
    e.I(f'v_cmp_eq_u32 vcc, -1, v{t0}')
def chunk_regs(base, n, step):
    return list(range(base, base + n, step)) if opt.thin else list(range(base, base + n))

def poll2(e, issue, nl, regsA, regsB, consume, t0, t1, code, early=None):
    lp, dA, dB, dd = e.lab('Lp'), e.lab('LdA'), e.lab('LdB'), e.lab('Ldd')
    e.I(f's_mov_b32 s31, {TMO}')
    issue(regsA)
    e.L(lp)
    issue(regsB)
    e.I(f's_waitcnt vmcnt({nl})')
    if early: early(regsA)
    check_sent(e, chunk_regs(regsA, 4 * nl, 4), t0, t1)
    e.I(f's_cbranch_vccz {dA}')
    issue(regsA)
    e.I(f's_waitcnt vmcnt({nl})')
    if early: early(regsB)
    check_sent(e, chunk_regs(regsB, 4 * nl, 4), t0, t1)
    e.I(f's_cbranch_vccz {dB}')
    e.I('s_sub_u32 s31, s31, 1')
    e.I(f's_cbranch_scc0 {lp}')
    e.I(f's_mov_b32 s31, {code}')
    e.I('s_branch L_fail')
    e.L(dB)
    consume(regsB)
    e.I(f's_branch {dd}')
    e.L(dA)
    consume(regsA)
    e.L(dd)

def wait_flags(e, vaddr, sofs, mask, vt, code, sleep=0, dbg=False):
    lp, dn = e.lab('Lf'), e.lab('Lfd')
    e.I(f's_mov_b32 s31, {TMO}')
    if mask > 0xffffffff or mask < 0: e.I(f's_mov_b64 exec, {mask}')
    else:
        e.I(f's_mov_b32 exec_lo, {mask:#x}'); e.I('s_mov_b32 exec_hi, 0')
    e.L(lp)
    if dbg: e.I(f'global_load_dword v{vt}, v{vaddr}, s[74:75] offset:{sofs} sc1')
    else: e.I(f'buffer_load_dword v{vt}, v{vaddr}, {WS}, {sofs} offen sc1')
    e.I('s_waitcnt vmcnt(0)')
    e.I(f'v_cmp_eq_u32 vcc, 0, v{vt}')
    e.I(f's_cbranch_vccz {dn}')
    if sleep: e.I(f's_sleep {sleep}')
    e.I('s_sub_u32 s31, s31, 1')
    e.I(f's_cbranch_scc0 {lp}')
    e.I(f's_mov_b32 s31, {code}')
    e.I('s_branch L_fail')
    e.L(dn)
    e.I('s_mov_b64 exec, -1')

D_TR, D_PAR, D_REG = 64, 96, 128
def register(e, va, vd):
    sk = e.lab('Lrg')
    e.I('s_cmp_lg_u32 s22, 0')
    e.I(f's_cbranch_scc1 {sk}')
    e.I(f'v_mov_b32 v{va}, s96')
    e.I(f'v_mov_b32 v{vd}, s97')
    e.I('s_mov_b64 exec, 1')
    e.I(f'global_atomic_add v{va}, v{vd}, s[74:75] offset:{D_REG} sc1')
    e.I('s_mov_b64 exec, -1')
    e.L(sk)
D_W = 68
def wait_count(e, t, off, n, sleep):
    lp, dn = e.lab('Lwc'), e.lab('Lwe')
    e.I(f's_mov_b32 s31, {TMO}')
    e.I(f'v_mov_b32 v{t+1}, 0')
    e.L(lp)
    e.I(f'global_load_dword v{t}, v{t+1}, s[74:75] offset:{off} sc1')
    e.I('s_waitcnt vmcnt(0)')
    e.I(f'v_cmp_gt_u32 vcc, {n}, v{t}')
    e.I(f's_cbranch_vccz {dn}')
    e.I(f's_sleep {sleep}')
    e.I('s_sub_u32 s31, s31, 1')
    e.I(f's_cbranch_scc0 {lp}')
    e.I('s_mov_b32 s31, 10')
    e.I('s_branch L_fail')
    e.L(dn)
def wait_first(e, t, seg=0):
    wait_reg(e, t, 32)
    e.I('s_lshl_b32 s38, s20, 8')
    e.I(f's_add_u32 s38, s38, {FLGQ + seg*2048}')
    e.I(f'v_lshlrev_b32 v{t+1}, 6, v1')
    wait_flags(e, t + 1, 's38', 0xf, t, 15, sleep=16)
def count_up(e, t, off):
    sk = e.lab('Lcu')
    e.I('s_cmp_lg_u32 s22, 0')
    e.I(f's_cbranch_scc1 {sk}')
    e.I(f'v_mov_b32 v{t}, 0'); e.I(f'v_mov_b32 v{t+1}, 1')
    e.I('s_mov_b64 exec, 1')
    e.I(f'global_atomic_add v{t}, v{t+1}, s[74:75] offset:{off} sc1')
    e.I('s_mov_b64 exec, -1')
    e.L(sk)
def wait_reg(e, t, sleep=4):
    lp, dn = e.lab('Lwr'), e.lab('Lwd')
    e.I(f's_mov_b32 s31, {TMO}')
    e.I(f'v_lshlrev_b32 v{t+2}, 2, v1')
    e.I('s_mov_b32 exec_hi, 0')
    e.L(lp)
    e.I(f'global_load_dword v{t}, v{t+2}, s[74:75] offset:{D_REG} sc1')
    e.I('s_mov_b32 s23, 0')
    e.I('s_mov_b32 s38, 0')
    e.I('s_waitcnt vmcnt(0)')
    for k in range(4):
        e.I(f'v_cmp_eq_u32 vcc, {0x20 << (8*k):#x}, v{t}')
        e.I('s_or_b32 s38, s38, vcc_lo')
    e.I(f'v_sad_u8 v{t+1}, v{t}, 0, 0')
    e.I('s_bcnt1_i32_b32 s38, s38')
    e.I('s_cmp_eq_u32 s38, 8')
    e.I(f's_cbranch_scc1 {dn}')
    for sh in (1, 2, 4, 8): e.I(f'v_add_u32_dpp v{t+1}, v{t+1}, v{t+1} row_shr:{sh} row_mask:0xf bank_mask:0xf bound_ctrl:0')
    e.I(f'v_readlane_b32 s38, v{t+1}, 15')
    e.I(f'v_readlane_b32 s39, v{t+1}, 31')
    e.I('s_mov_b32 s23, 1')
    e.I('s_add_u32 s38, s38, s39')
    e.I('s_cmp_eq_u32 s38, 256')
    e.I(f's_cbranch_scc1 {dn}')
    e.I(f's_sleep {sleep}')
    e.I('s_sub_u32 s31, s31, 1')
    e.I(f's_cbranch_scc0 {lp}')
    e.I('s_mov_b32 s31, 10')
    e.I('s_branch L_fail')
    e.L(dn)
    e.I('s_mov_b64 exec, -1')

def set_flag(e, vaddr, sofs, vone, fl):
    e.I('s_mov_b64 exec, 1')
    e.I(f'buffer_store_dword v{vone}, v{vaddr}, {WS}, {sofs} offen{fl}')
    e.I('s_mov_b64 exec, -1')

def xg_reduce(e, op, x, t):
    e.I(f'v_mov_b32 v{t}, v{x}')
    e.I(f'v_permlane16_swap_b32 v{x}, v{t}')
    e.I(f'{op} v{x}, v{x}, v{t}')
    e.I(f'v_mov_b32 v{t}, v{x}')
    e.I(f'v_permlane32_swap_b32 v{x}, v{t}')
    e.I(f'{op} v{x}, v{x}, v{t}')

def softmax12(e, S, P, t):
    maxchain(e, t, range(S, S + 12), 'f32')
    xg_reduce(e, 'v_max_f32', t, t + 1)
    e.I(f'v_mul_f32 v{t}, s53, v{t}')
    for i in range(12):
        e.I(f'v_fma_f32 v{S+i}, v{S+i}, s52, v{t}')
    for i in range(12):
        e.I(f'v_exp_f32 v{S+i}, v{S+i}')
    e.I(f'v_add_f32 v{t+2}, v{S}, v{S+1}')
    e.I(f'v_add_f32 v{t+3}, v{S+2}, v{S+3}')
    for i in range(4, 12, 2):
        e.I(f'v_add_f32 v{t+2}, v{t+2}, v{S+i}')
        e.I(f'v_add_f32 v{t+3}, v{t+3}, v{S+i+1}')
    e.I(f'v_add_f32 v{t+2}, v{t+2}, v{t+3}')
    xg_reduce(e, 'v_add_f32', t + 2, t + 3)
    e.I(f'v_rcp_f32 v{t+2}, v{t+2}')
    for i in range(12):
        e.I(f'v_mul_f32 v{S+i}, v{S+i}, v{t+2}')
    for i in range(6):
        e.I(f'v_cvt_pk_bf16_f32 v{P+i}, v{S+2*i}, v{S+2*i+1}')

def softmax_list(S, n, P, t):
    x = Em()
    maxchain(x, t, range(S, S + n), 'f32')
    xg_reduce(x, 'v_max_f32', t, t + 1)
    x.I(f'v_mul_f32 v{t}, s53, v{t}')
    for i in range(n): x.I(f'v_fma_f32 v{S+i}, v{S+i}, s52, v{t}')
    for i in range(n): x.I(f'v_exp_f32 v{S+i}, v{S+i}')
    x.I(f'v_add_f32 v{t+2}, v{S}, v{S+1}')
    x.I(f'v_add_f32 v{t+3}, v{S+2}, v{S+3}')
    for i in range(4, n, 2):
        x.I(f'v_add_f32 v{t+2}, v{t+2}, v{S+i}')
        x.I(f'v_add_f32 v{t+3}, v{t+3}, v{S+i+1}')
    x.I(f'v_add_f32 v{t+2}, v{t+2}, v{t+3}')
    xg_reduce(x, 'v_add_f32', t + 2, t + 3)
    x.I(f'v_rcp_f32 v{t+2}, v{t+2}')
    for i in range(n): x.I(f'v_mul_f32 v{S+i}, v{S+i}, v{t+2}')
    for i in range(n // 2): x.I(f'v_cvt_pk_bf16_f32 v{P+i}, v{S+2*i}, v{S+2*i+1}')
    return [l.strip() for l in x.lines]

def DSTAMP(e, idx, cond=None, op='umax'):
    if not opt.dstamp: return
    sk = e.lab('Lds')
    if cond: e.I(cond); e.I(f's_cbranch_scc0 {sk}')
    e.I('s_memtime s[98:99]' if op == 'clk' else 's_memrealtime s[98:99]')
    e.I('s_waitcnt lgkmcnt(0)')
    if op == 'neg': e.I('s_not_b32 s98, s98')
    e.I('s_mov_b64 exec, 1')
    e.I(f'v_mov_b32 v238, {idx*4}')
    e.I('v_mov_b32 v239, s98')
    e.I('global_atomic_umax v238, v239, s[74:75] sc1')
    e.I('s_mov_b64 exec, -1')
    e.L(sk)
def TS(e, k):
    if opt.ts: e.I(f's_memrealtime s[{76+2*k}:{77+2*k}]')
def TSflush(e, step, va=238, vd=239):
    if not opt.ts: return
    e.I('s_waitcnt lgkmcnt(0)')
    for k in range(10): e.I(f'v_writelane_b32 v{vd}, s{76+2*k}, {k}')
    e.I('s_lshl_b32 s76, s20, 5')
    e.I('s_add_u32 s76, s76, s21')
    e.I('s_lshl_b32 s76, s76, 2')
    e.I('s_add_u32 s76, s76, s22')
    e.I('s_mul_i32 s76, s76, 72')
    e.I(f's_add_u32 s76, s76, {step}')
    e.I('s_lshl_b32 s76, s76, 6')
    e.I(f's_add_u32 s76, s76, {DBGT}')
    e.I(f'v_lshlrev_b32 v{va}, 2, v1')
    e.I('s_mov_b64 exec, 0x3ff')
    e.I(f'buffer_store_dword v{vd}, v{va}, {WS}, s76 offen')
    e.I('s_mov_b64 exec, -1')

def lane_ig(e, vi, vg):
    e.I(f'v_and_b32 v{vi}, 15, v1')
    e.I(f'v_lshrrev_b32 v{vg}, 4, v1')

def load_weights(e, mats, RS, rows, paired, vA, vT, NB=3, bufoff=None, manual=False):
    CH = rows * 128
    ninst = rows // 8 // 4
    nk = rows // 32
    e.I(f'v_lshrrev_b32 v{vT}, 3, v1')
    if paired:
        e.I(f'v_bfe_u32 v{vT+1}, v1, 4, 2')
    else:
        e.I(f'v_bfe_u32 v{vT+1}, v1, 4, 1')
        e.I('s_and_b32 s54, s22, 1')
        e.I('s_lshl_b32 s54, s54, 1')
        e.I(f'v_or_b32 v{vT+1}, s54, v{vT+1}')
    e.I(f'v_lshlrev_b32 v{vT+1}, 1, v{vT+1}')
    e.I(f'v_and_b32 v{vT+2}, 7, v1')
    e.I(f'v_xor_b32 v{vT+2}, v{vT+2}, v{vT+1}')
    e.I(f's_mov_b32 s54, {RS}')
    e.I(f'v_mul_lo_u32 v{vA}, s54, v{vT}')
    e.I(f'v_lshl_add_u32 v{vA}, v{vT+2}, 4, v{vA}')
    e.I(f'v_lshrrev_b32 v{vT}, 4, v1')
    e.I(f'v_bfe_u32 v{vT+1}, v1, 2, 2')
    if paired:
        e.I(f'v_lshl_add_u32 v{vT+2}, v{vT}, 2, v{vT+1}')
        e.I(f'v_bfe_u32 v{vT}, v{vT+2}, 1, 2')
        second = 2048
    else:
        e.I(f'v_lshl_add_u32 v{vT+2}, v{vT}, 3, v{vT+1}')
        e.I(f'v_and_b32 v{vT}, 1, v{vT}')
        e.I(f'v_lshlrev_b32 v{vT}, 1, v{vT}')
        e.I(f'v_bfe_u32 v{vT+1}, v1, 3, 1')
        e.I(f'v_or_b32 v{vT}, v{vT}, v{vT+1}')
        second = 512
    e.I(f'v_xor_b32 v{vT}, s22, v{vT}')
    e.I(f'v_lshlrev_b32 v{vT+2}, 7, v{vT+2}')
    e.I(f'v_lshl_add_u32 v{vT+2}, v{vT}, 5, v{vT+2}')
    e.I(f'v_and_b32 v{vT}, 3, v1')
    e.I(f'v_lshl_add_u32 v{vT}, v{vT}, 3, v{vT+2}')
    bufoff = bufoff or [k * CH for k in range(NB)]
    for k in range(NB - 1, -1, -1):
        if bufoff[k]  or k: e.I(f'v_add_u32 v{vT+k}, {bufoff[k]}, v{vT}')
    chunks = []
    for (srd_, sofs, ab, nrows) in mats:
        for c in range(nrows // rows):
            chunks.append((srd_, sofs, ab + c * nk * 4, c * rows))
    e.I(f's_mul_i32 s55, s22, {8*RS}')
    e.I('s_lshl_b32 s56, s22, 10')
    def issue(ci, buf=None):
        srd_, sofs, ab, r0 = chunks[ci]
        if buf is None: buf = ci % NB
        e.I(f's_add_u32 s57, {sofs}, s55')
        if r0: e.I(f's_add_u32 s57, s57, {r0*RS}')
        for n in range(ninst):
            e.I(f's_add_u32 m0, s56, {bufoff[buf] + n*4096}')
            e.I(f'buffer_load_dwordx4 v{vA}, {srd_}, s57 offen{WFL[opt.wnt]} lds')
            if n + 1 < ninst: e.I(f's_add_u32 s57, s57, {32*RS}')
    def consume(ci, buf, pending):
        e.I(f's_waitcnt vmcnt({pending})')
        if ci < 8: TS(e, 2 + ci)
        e.I('s_barrier')
        srd_, sofs, ab, r0 = chunks[ci]
        for k in range(nk):
            e.I(f'ds_read_b64_tr_b16 {ar(ab+4*k,2)}, v{vT+buf} offset:{k*4096}')
            e.I(f'ds_read_b64_tr_b16 {ar(ab+4*k+2,2)}, v{vT+buf} offset:{k*4096+second}')
        e.I('s_waitcnt lgkmcnt(0)')
        e.I('s_barrier')
    if manual: return issue, consume
    for ci in range(min(NB, len(chunks))): issue(ci)
    for ci in range(len(chunks)):
        left = min(len(chunks) - 1 - ci, NB - 1)
        e.I(f's_waitcnt vmcnt({left*ninst})')
        if ci < 8: TS(e, 2 + ci)
        e.I('s_barrier')
        srd_, sofs, ab, r0 = chunks[ci]
        for k in range(nk):
            e.I(f'ds_read_b64_tr_b16 {ar(ab+4*k,2)}, v{vT+ci%NB} offset:{k*4096}')
            e.I(f'ds_read_b64_tr_b16 {ar(ab+4*k+2,2)}, v{vT+ci%NB} offset:{k*4096+second}')
        e.I('s_waitcnt lgkmcnt(0)')
        e.I('s_barrier')
        if ci + NB < len(chunks): issue(ci + NB)

def touch_jobs(e, jobs, sw, nw, sh, t, rot=0):
    sizes = sorted({min(n, 64) for _, _, n in jobs} | {n - 64 for _, _, n in jobs if n > 64})
    reg = {}
    for k, n in enumerate(sizes):
        reg[n] = t + 1 + k
        e.I(f'v_min_u32 v{reg[n]}, {n-1}, v1')
        e.I(f'v_lshlrev_b32 v{reg[n]}, 7, v{reg[n]}')
    flat = []
    for base, per, n in jobs:
        flat.append((base, per, min(n, 64)))
        if n > 64: flat.append((base + 8192, per, n - 64))
    for c in range(nw):
        sk = e.lab('Ltj')
        e.I(f's_cmp_lg_u32 {sw}, {c}')
        e.I(f's_cbranch_scc1 {sk}')
        for base, per, n in flat[(c - rot) % nw::nw]:
            e.I(f's_mul_i32 s38, {sh}, {per}')
            e.I(f's_add_u32 s38, s38, {base}')
            e.I(f'buffer_load_dword v{t}, v{reg[n]}, {WS}, s38 offen sc1')
        e.L(sk)

def prefetch_w(e, su, j0, j1, t, srdv, srdq):
    for k in range(3):
        e.I(f'v_add_u32 v{t+3}, {1024*k}, v2')
        e.I(f'v_cmp_le_u32 vcc, 1536, v{t+3}')
        e.I(f'v_add_u32 v{t+k}, {12288-1536}, v{t+3}')
        e.I(f'v_cndmask_b32 v{t+k}, v{t+3}, v{t+k}, vcc')
    e.I('s_mul_i32 s39, s20, 1536')
    e.I(f's_mul_i32 s38, {su}, {2*12288}')
    e.I('s_add_u32 s38, s38, s39')
    for j in range(j0, j1):
        row = 320 + 80 * j if j < 4 else 80 * (j - 4)
        e.I(f's_add_u32 s39, s38, {row*12288}')
        for k in range(3): e.I(f'buffer_load_dwordx4 {vr(t+4)}, v{t+k}, {srdv if j < 4 else srdq}, s39 offen{WFL[opt.wnt]}')

Q_LX, Q_LMEM = 0, 81920
def role_qkv(e):
    fl = ''
    WQ, WK, WV = 0, 80, 160
    MF = 16
    DQ, DK, DV = 96, 100, 104
    PA, PB = 108, 120
    XD = 132
    T0 = 160
    KEEP = 176; TCH = 180
    XA, VA, IDX, SEL, MP = 182, 183, 184, 185, 186
    XRA, XQA, XKA, OQK = 187, 188, 189, 190
    SENT = 248; ONE = 252
    e.I('s_mul_i32 s24, s21, 43')
    e.I('s_lshr_b32 s24, s24, 7')
    e.I('s_mul_i32 s25, s24, 3')
    e.I('s_sub_u32 s25, s21, s25')
    e.I('s_lshl_b32 s26, s20, 2')
    e.I('s_add_u32 s26, s26, s24')
    e.I('s_lshl_b32 s27, s25, 2')
    e.I('s_add_u32 s27, s27, s22')
    srd(e, 8, 60, 640 * 12288); srd(e, 12, 62, 640 * 12288); srd(e, 16, 64, 640 * 12288)
    e.I('s_mul_i32 s28, s26, 384')
    e.I('s_lshl_b32 s29, s25, 7')
    e.I('s_add_u32 s28, s28, s29')
    w_issue, w_consume = load_weights(e, [('s[12:15]', 's28', WK, 640), ('s[16:19]', 's28', WV, 640), ('s[8:11]', 's28', WQ, 640)], 12288, 320, False, 240, 241, 3,
                                      bufoff=[81920, 122880, 40960], manual=True)
    for ci in range(3): w_issue(ci)
    e.I('s_mul_i32 s38, s22, 3072')
    e.I('s_min_u32 s38, s38, 7168')
    e.I('v_add_u32 v3, s38, v2')
    e.I(f'v_add_u32 v5, {Q_LMEM}, v3')
    e.I(f'v_add_u32 v7, {Q_LMEM}, v2')
    lane_ig(e, 14, 15)
    e.I('s_lshr_b32 s38, s27, 1')
    e.I('s_lshl_b32 s38, s38, 10')
    e.I('s_and_b32 s39, s27, 1')
    e.I('s_lshl_b32 s39, s39, 3')
    e.I('s_add_u32 s38, s38, s39')
    e.I('v_add_u32 v8, s38, v2')
    e.I('v_bfe_u32 v11, v1, 2, 2')
    e.I('v_and_b32 v12, 3, v1')
    e.I(f'v_lshlrev_b32 v{XA}, 8, v11')
    e.I(f'v_lshl_add_u32 v{XA}, v15, 6, v{XA}')
    e.I(f'v_lshl_add_u32 v{XA}, v12, 4, v{XA}')
    e.I(f'v_add_u32 v{XA}, s38, v{XA}')
    if opt.eord:
        e.I('s_lshr_b32 s38, s27, 1')
        e.I('s_and_b32 s39, s27, 1')
        e.I('s_lshl_b32 s39, s39, 9')
        e.I('s_lshl_b32 s40, s38, 10')
        e.I('s_add_u32 s40, s40, s39')
        e.I('v_lshrrev_b32 v9, 1, v11')
        e.I('v_lshlrev_b32 v9, 8, v9')
        e.I('v_and_b32 v13, 1, v11')
        e.I('v_lshl_add_u32 v9, v13, 3, v9')
        e.I('v_lshl_add_u32 v9, v12, 4, v9')
        e.I(f'v_lshl_add_u32 v{XA}, v15, 6, v9')
        e.I(f'v_add_u32 v{XA}, s40, v{XA}')
        e.I('v_lshrrev_b32 v13, 1, v15')
        e.I(f'v_lshlrev_b32 v{OQK}, 8, v13')
        e.I(f'v_lshl_add_u32 v{OQK}, v14, 4, v{OQK}')
        e.I(f'v_add_u32 v{OQK}, s40, v{OQK}')
        e.I(f'v_and_b32 v{XQA}, 1, v15')
        e.I(f'v_mul_u32_u24 v{XKA}, {6144 if opt.ox4 else 8}, v{XQA}')
        e.I(f'v_add_u32 v{OQK}, v{OQK}, v{XKA}')
        e.I('s_cmp_ge_u32 s38, 3')
        e.I(f's_cselect_b32 s39, {3072 - 128}, 0')
        e.I('s_sub_u32 s40, s40, s39')
        e.I(f'v_lshl_add_u32 v{XRA}, v{XQA}, 6, v9')
        e.I(f'v_mul_u32_u24 v13, 3072, v13')
        e.I(f'v_add3_u32 v{XRA}, v{XRA}, v13, s40')
        e.I('v_lshrrev_b32 v13, 5, v1')
        e.I(f'v_lshl_or_b32 v{XQA}, v13, 31, v{XRA}')
        e.I('v_xor_b32 v13, 1, v13')
        e.I(f'v_lshl_or_b32 v{XKA}, v13, 31, v{XRA}')
    if opt.inl:
        e.I('v_lshlrev_b32 v13, 4, v12')
        e.I('v_sub_u32 v9, v9, v13')
        e.I('v_and_b32 v13, 1, v12')
        e.I('v_lshl_add_u32 v9, v13, 4, v9')
        e.I('v_lshrrev_b32 v13, 1, v12')
        e.I(f'v_lshl_add_u32 v{XA}, v15, 5, v9')
        e.I(f'v_add_u32 v{XQA}, s40, v{XA}')
        e.I(f'v_lshl_add_u32 v{XA}, v13, 7, v{XA}')
        e.I('s_add_u32 s41, s40, s39')
        e.I(f'v_add_u32 v{XA}, s41, v{XA}')
        e.I('s_cmp_ge_u32 s38, 3')
        e.I('s_cselect_b32 s41, 96, 0')
        e.I('s_sub_u32 s41, s40, s41')
        e.I('s_add_u32 s41, s41, 3072')
        e.I(f'v_lshl_add_u32 v{XKA}, v15, 6, v9')
        e.I(f'v_add_u32 v{XKA}, s41, v{XKA}')
        e.I('v_cmp_eq_u32 vcc, 1, v13')
        e.I(f'v_cndmask_b32 v{XRA}, v{XQA}, v{XKA}, vcc')
    e.I('v_and_b32 v13, 1, v15')
    e.I('v_lshlrev_b32 v13, 2, v13')
    e.I('v_lshrrev_b32 v9, 1, v15')
    e.I('v_lshl_add_u32 v13, v9, 1, v13')
    e.I('v_and_b32 v9, 1, v12')
    e.I('v_add_u32 v13, v13, v9')
    e.I('v_lshrrev_b32 v12, 1, v12')
    e.I('v_lshrrev_b32 v9, 1, v11')
    e.I('v_lshlrev_b32 v9, 8, v9')
    e.I('v_lshl_add_u32 v9, v12, 7, v9')
    e.I('v_lshl_add_u32 v9, v13, 4, v9')
    e.I(f'v_and_b32 v{VA}, 1, v11')
    e.I(f'v_lshl_add_u32 v9, v{VA}, 3, v9')
    e.I('s_lshl_b32 s38, s25, 10')
    e.I('s_lshr_b32 s39, s22, 1')
    e.I('s_lshl_b32 s39, s39, 9')
    e.I('s_add_u32 s38, s38, s39')
    e.I('s_and_b32 s39, s22, 1')
    e.I('s_lshl_b32 s39, s39, 2')
    e.I('s_add_u32 s38, s38, s39')
    e.I('v_add_u32 v9, s38, v9')
    e.I(f'v_lshlrev_b32 v{VA}, 8, v11')
    e.I(f'v_lshl_add_u32 v{VA}, v13, 4, v{VA}')
    e.I(f'v_lshl_add_u32 v{VA}, v12, 2, v{VA}')
    e.I('s_lshr_b32 s38, s27, 1')
    e.I('s_cmp_ge_u32 s38, 3')
    e.I('s_cselect_b32 s39, 3, 0')
    e.I('s_cselect_b32 s40, 128, 0')
    e.I('s_sub_u32 s38, s38, s39')
    e.I('s_lshl_b32 s38, s38, 10')
    e.I('s_add_u32 s38, s38, s40')
    e.I('s_and_b32 s39, s27, 1')
    e.I('s_lshl_b32 s39, s39, 3')
    e.I('s_add_u32 s38, s38, s39')
    e.I(f'v_add_u32 v{VA}, s38, v{VA}')
    if opt.vx2:
        e.I('v_and_b32 v12, 3, v1')
        e.I('v_lshlrev_b32 v13, 6, v15')
        e.I('v_lshl_add_u32 v13, v12, 4, v13')
        e.I('v_lshrrev_b32 v12, 5, v1')
        e.I('v_lshl_or_b32 v13, v12, 31, v13')
        e.I(f'v_lshl_add_u32 v{VA}, v11, 8, v13')
        e.I(f'v_add_u32 v{VA}, s38, v{VA}')
        e.I('v_lshrrev_b32 v9, 1, v11')
        e.I('v_lshl_add_u32 v9, v9, 8, v13')
        e.I('v_and_b32 v12, 1, v11')
        e.I('v_lshl_add_u32 v9, v12, 3, v9')
        e.I('s_lshl_b32 s38, s25, 10')
        e.I('s_lshr_b32 s39, s22, 1')
        e.I('s_lshl_b32 s39, s39, 9')
        e.I('s_add_u32 s38, s38, s39')
        e.I('s_and_b32 s39, s22, 1')
        e.I('s_lshl_b32 s39, s39, 7')
        e.I('s_add_u32 s38, s38, s39')
        e.I('v_add_u32 v9, s38, v9')
    if opt.inl:
        e.I('v_lshlrev_b32 v12, 5, v15')
        e.I(f'v_sub_u32 v{VA}, v{VA}, v12')
        e.I(f'v_and_b32 v{VA}, 0x7fffffff, v{VA}')
        e.I('v_and_b32 v9, 0x7fffffff, v9')
        e.I('s_and_b32 s39, s22, 1')
        e.I('s_mul_i32 s39, s39, 96')
        e.I('v_subrev_u32 v9, s39, v9')
        e.I('v_bfe_u32 v12, v1, 1, 1')
        e.I(f'v_lshl_or_b32 v{VA}, v12, 31, v{VA}')
        e.I('v_lshl_or_b32 v9, v12, 31, v9')
    e.I(f'v_mul_u32_u24 v{MP}, 5, v1')
    e.I(f'v_lshrrev_b32 v{MP}, 3, v{MP}')
    e.I(f'v_lshlrev_b32 v{MP}, 8, v{MP}')
    e.I(f'v_mov_b32 v{IDX}, 0x44444444')
    e.I('v_mov_b32 v11, 0xeeeeeeee')
    if opt.inl:
        e.I('v_and_b32 v12, 2, v1')
        e.I('v_cmp_lt_u32 vcc, 0, v12')
    else: e.I('v_cmp_lt_u32 vcc, 7, v14')
    e.I(f'v_cndmask_b32 v{IDX}, v{IDX}, v11, vcc')
    e.I(f'v_mov_b32 v{SEL}, 0x05040100')
    e.I('v_mov_b32 v11, 0x03020706')
    e.I('v_and_b32 v12, 1, v1')
    e.I('v_cmp_eq_u32 vcc, 1, v12')
    e.I(f'v_cndmask_b32 v{SEL}, v{SEL}, v11, vcc')
    e.I('s_mov_b32 s34, 0x33333333'); e.I('s_mov_b32 s35, 0x33333333')
    e.I('s_mov_b32 s36, 0xcccccccc'); e.I('s_mov_b32 s37, 0xcccccccc')
    for k in range(12): e.I(f'v_mov_b32 v{DQ+k}, 0')
    e.I('s_lshl_b32 s38, s27, 2')
    e.I(f'v_mov_b32 v{ONE+2}, s38')
    e.I(f'v_mov_b32 v{ONE}, 1')
    e.I(f'v_mov_b32 v{ONE+1}, 2')
    for k in range(4): e.I(f'v_mov_b32 v{SENT+k}, -1')
    e.I('s_mul_i32 s58, s26, 6144')
    e.I('s_mul_i32 s59, s20, 10240')
    e.I(f's_add_u32 s59, s59, {MEM}')
    e.I('s_mul_i32 s60, s26, 3072')
    e.I('s_lshl_b32 s61, s20, 6')
    e.I('s_lshl_b32 s38, s24, 2')
    e.I('s_add_u32 s61, s61, s38')
    e.I(f's_add_u32 s61, s61, {FLGOX}')
    e.I('v_mov_b32 v10, 0')

    nrd = [7]
    def late_list():
        vs = [f'buffer_store_dwordx2 {vr(KEEP+2,2)}, v{VA}, {WS}, s44 offen{fl}', f'buffer_store_dwordx2 {vr(SENT,2)}, v9, {WS}, s46 offen{fl}'] if opt.vx2 else \
             [f'buffer_store_dword v{KEEP+2}, v{VA}, {WS}, s44 offen{fl}', f'buffer_store_dword v{SENT}, v9, {WS}, s46 offen{fl}']
        return [f'buffer_store_dwordx2 {vr(KEEP,2)}, v{XA}, {WS}, s43 offen{fl}',
                f'buffer_store_dwordx2 {vr(SENT,2)}, v{XRA if opt.split else XA}, {WS}, s42 offen{fl}'] + vs
    def post2(D, t, keep, rm, st):
        QP1, QP2 = 'quad_perm:[1,0,3,2] row_mask:0xf bank_mask:0xf', f'quad_perm:[2,3,0,1] row_mask:{rm} bank_mask:0xf'
        return [[f'v_permlane32_swap_b32 v{D}, v{D+2}', f'v_permlane32_swap_b32 v{D+1}, v{D+3}'],
                [f'v_add_f32 v{t+2}, v{D}, v{D+2}', f'v_add_f32 v{t+3}, v{D+1}, v{D+3}', f'v_cvt_pk_bf16_f32 v{t}, v{t+2}, v{t+3}', f'v_cvt_pk_bf16_f32 v{t+1}, v{t+2}, v{t+3}'],
                [f'v_permlane32_swap_b32 v{t}, v{t+1}', 's_mov_b64 vcc, s[34:35]'],
                [f'v_mov_b32_dpp v{t+2}, v{t} {QP1}', f'v_mov_b32_dpp v{t+3}, v{t+1} {QP1}', f'v_perm_b32 v{t}, v{t+2}, v{t}, v{SEL}', f'v_perm_b32 v{t+1}, v{t+3}, v{t+1}, v{SEL}'],
                [f'v_cndmask_b32_dpp v{keep}, v{t+1}, v{t}, vcc {QP2}', 's_mov_b64 vcc, s[36:37]', f'v_cndmask_b32_dpp v{keep+1}, v{t}, v{t+1}, vcc {QP2}', st],
                [f'v_mov_b32 v{D+k}, 0' for k in range(4)]]
    def late_stores():
        for x_ in late_list(): e.I(x_)
    def xwork(late, mats=(2, 1, 0), dma=True, spr=()):
        e.I('s_and_b32 s65, s64, 1')
        e.I('s_mul_i32 s66, s65, 40960')
        if opt.x2e and late:
            e.I('s_cmp_eq_u32 s64, 2')
            e.I('s_cselect_b32 s66, 122880, s66')
        e.I('v_add_u32 v12, s66, v2')
        e.I('s_xor_b32 s65, s65, 1')
        e.I('s_mul_i32 s65, s65, 40960')
        e.I('s_add_u32 s65, s65, s62')
        e.I('s_add_u32 s66, s64, 1')
        e.I('s_min_u32 s66, s66, 63')
        e.I('s_mul_i32 s66, s66, 40960')
        e.I('s_add_u32 s66, s66, s62')
        e.I(f's_add_u32 s66, s66, {XN}')
        e.I(f's_and_b32 s47, s64, {RD-1}')
        e.I(f's_mul_i32 s47, s47, {SEG_QX}')
        e.I('s_lshl_b32 s48, s58, 1')
        e.I('s_add_u32 s47, s47, s48')
        if late:
            e.I(f's_max_u32 s50, s64, {RD}')
            e.I(f's_sub_u32 s50, s50, {RD}')
            e.I('s_lshl_b32 s50, s50, 9')
            e.I('s_add_u32 s50, s50, s61')
            e.I(f'buffer_load_dword v{TCH}, v10, {WS}, s50 offen sc1')
        PF = opt.xpf
        def rd(n): e.I(f'ds_read_b128 {vr(MF + (n % 20)*4)}, v12 offset:{n*1024}')
        def out(m, rt, part=3):
            d = XD + (m*2+rt)*4; o = T0 + (m*2+rt)*2
            e.I(f'v_cvt_pk_bf16_f32 v{o}, v{d}, v{d+1}')
            e.I(f'v_cvt_pk_bf16_f32 v{o+1}, v{d+2}, v{d+3}')
            if opt.eord and opt.ox4 and m < 2:
                if rt == 1:
                    e.I(f's_add_u32 s48, s47, {(QX, KX, VX)[m]}')
                    e.I(f'v_permlane16_swap_b32 v{o-2}, v{o}')
                    e.I(f'v_permlane16_swap_b32 v{o-1}, v{o+1}')
                    e.I(f'buffer_store_dwordx4 {vr(o-2)}, v{OQK}, {WS}, s48 offen{fl}')
            else:
                e.I(f's_add_u32 s48, s47, {(QX, KX, VX)[m] + rt*6144}')
                e.I(f'buffer_store_dwordx2 {vr(o,2)}, v{OQK if opt.eord and m < 2 else 8}, {WS}, s48 offen{fl}')
        for n in range(PF): rd(n)
        ls = late_list() if late else []
        d0 = max(opt.xdma0, 6 + len(late_list()))
        for n in range(40):
            rt, kk = n // 20, n % 20
            e.I(f's_waitcnt lgkmcnt({min(40, n + PF) - (n + 1)})')
            f = vr(MF + (n % 20)*4)
            for m in mats:
                Wb = (WQ, WK, WV)[m]
                d = vr(XD + (m*2+rt)*4)
                e.I(f'{MFMA} {d}, {ar(Wb+4*kk)}, {f}, {0 if kk == 0 else d}')
            if n + PF < 40: rd(n + PF)
            spr = list(spr)
            if spr and (n % 2 == 0 or len(spr) > (40 - n) // 2):
                for x_ in spr.pop(0): e.I(x_)
            if late and n == 5:
                bp = e.lab('Lbp')
                e.I(f's_cmp_lt_u32 s64, {RD}')
                e.I(f's_cbranch_scc1 {bp}')
                e.I('s_waitcnt vmcnt(0)')
                e.I(f'v_cmp_eq_u32 vcc, 0, v{TCH}')
                e.I(f's_cbranch_vccz {bp}')
                wait_flags(e, 10, 's50', 1, TCH, 13, sleep=1)
                e.L(bp)
            if n >= 6 and ls: e.I(ls.pop(0))
            elif dma and n >= d0 and (n - d0) % opt.xdmas == 0 and (n - d0) // opt.xdmas < 10:
                m = (n - d0) // opt.xdmas
                e.I(f's_add_u32 m0, s65, {m*1024}')
                e.I(f'buffer_load_dwordx4 v2, {WS}, s66 offen lds')
                e.I('s_add_u32 s66, s66, 1024')
            k0 = 23 if len(mats) > 1 else 28
            if k0 <= n < k0 + len(mats): out(mats[n - k0], 0)
        for m in mats: out(m, 1)
    def flag_addr(back):
        e.I(f's_sub_u32 s51, s64, {back}')
        e.I('s_lshl_b32 s51, s51, 5')
        e.I('s_add_u32 s51, s51, s26')
        e.I('s_lshl_b32 s51, s51, 6')
        e.I(f's_add_u32 s51, s51, {FLGQ}')
    def flag_n():
        flag_addr(0)
        e.I('s_waitcnt vmcnt(0)')
        set_flag(e, ONE + 2, 's51', ONE, fl)
    def mem_part():
        e.I('s_and_b32 s38, s30, 3')
        e.I('s_xor_b32 s39, s38, 2')
        e.I(f's_mul_i32 s40, s38, {MEM_SLOT}')
        e.I('s_add_u32 s40, s40, s59')
        e.I(f's_mul_i32 s41, s38, {XR_SLOT}')
        e.I('s_add_u32 s41, s41, s58')
        e.I(f's_add_u32 s41, s41, {XR}')
        e.I(f's_mul_i32 s42, s39, {XR_SLOT}')
        e.I('s_add_u32 s42, s42, s58')
        e.I(f's_add_u32 s42, s42, {XR}')
        e.I(f's_and_b32 s44, s30, {RD-1}')
        e.I(f's_mul_i32 s43, s44, {SEG_XP}')
        e.I('s_add_u32 s43, s43, s58')
        e.I(f's_add_u32 s43, s43, {XP}')
        e.I(f's_mul_i32 s44, s44, {SEG_VM}')
        e.I('s_add_u32 s44, s44, s60')
        e.I(f's_add_u32 s44, s44, {VM}')
        e.I(f's_mul_i32 s45, s38, {VR_SLOT}')
        e.I('s_add_u32 s45, s45, s60')
        e.I(f's_add_u32 s45, s45, {VR}')
        e.I(f's_mul_i32 s46, s39, {VR_SLOT}')
        e.I('s_add_u32 s46, s46, s60')
        e.I(f's_add_u32 s46, s46, {VR}')
        def issue(b):
            for k in range(3): e.I(f'buffer_load_dwordx4 {vr(b+4*k)}, v3, {WS}, s40 offen offset:{k*1024} sc1')
        def early(b):
            for k in range(3): e.I(f'ds_write_b128 v5, {vr(b+4*k)} offset:{k*1024}')
        flag_addr(1)
        wl = [e.lab('Lmw') for _ in range(4)]; jn = e.lab('Lmj')
        for w in range(1, 4):
            e.I(f's_cmp_eq_u32 s22, {w}')
            e.I(f's_cbranch_scc1 {wl[w]}')
        def sm(d, W, src, m): e.I(f'{SMF} {vr(d)}, {vr(src)}, {ar(W+8*m,8)}, v{IDX}')
        for w in range(4):
            e.L(wl[w])
            own = [min(3*w, 7) + k for k in range(3)]
            rest = [m for m in range(10) if m not in own]
            def consume(b):
                TS(e, 1)
                if not opt.spec: early(b)
                mine = [(d, W, b + 4*k, m) for k, m in enumerate(own) for d, W in ((DQ, WQ), (DK, WK))] + [(DV, WV, b + 4*k, m) for k, m in enumerate(own)]
                if opt.split == 1: mine = [(d, W, b + 4*k, m) for d, W in ((DQ, WQ), (DK, WK), (DV, WV))[:2 + opt.vown] for k, m in enumerate(own)]
                elif not opt.vown: mine = mine[:6]
                if opt.split == 1 and opt.fq == -3: e.I(FLAG())
                for x_ in mine[:opt.mpre]: sm(*x_)
                e.I('s_waitcnt lgkmcnt(0)')
                e.I('s_barrier')
                if opt.split == 1 and opt.fq == -2: e.I(FLAG())
                rl = [f'ds_read_b128 {vr(MF+4*k)}, v7 offset:{m*1024}' for k, m in enumerate(rds)]
                for x_ in rl[:opt.rdmix or 10]: e.I(x_)
                rl = rl[opt.rdmix or 10:]
                if opt.split == 1 and opt.fq == -1: e.I(FLAG())
                for n_, x_ in enumerate(mine[opt.mpre:]):
                    sm(*x_)
                    if rl: e.I(rl.pop(0))
                    if opt.split == 1 and opt.fq == 100 + n_: e.I(FLAG())
                for x_ in rl: e.I(x_)
            rds = rest + (own if not opt.vown else [])
            nrd[0] = len(rds)
            FLAG = lambda: f'buffer_store_dword v{ONE+opt.two}, v{ONE+2}, {WS}, s51 offen{fl}'
            if opt.mwait: e.I(f's_sleep {opt.mwait}')
            poll2(e, issue, 3, PA, PB, consume, T0, T0 + 1, 1, early if opt.spec else None)
            if opt.split == 1:
                seq = [(DQ, WQ, MF + 4*k, m) for k, m in enumerate(rest)] + [(DK, WK, MF + 4*k, m) for k, m in enumerate(rest)] + [(DV, WV, MF + 4*k, m) for k, m in enumerate(rds)]
                ins = {}
                for j_, g_ in enumerate(post2(DQ, T0 + 4, KEEP, '0x3', f'buffer_store_dwordx2 {vr(KEEP,2)}, v{XQA}, {WS}, s41 offen{fl}')): ins.setdefault(7 + j_, []).extend(g_)
                for j_, g_ in enumerate(post2(DK, T0 + 8, KEEP, '0xc', f'buffer_store_dwordx2 {vr(KEEP,2)}, v{XKA}, {WS}, s41 offen{fl}')): ins.setdefault(14 + (0, 1, 1, 2, 3, 4)[j_] if opt.ktight else 14 + j_, []).extend(g_)
                for n_, x_ in enumerate(seq):
                    if n_ < 7: e.I(f's_waitcnt lgkmcnt({len(rds) - 1 - n_})')
                    if n_ == 21: e.I('s_waitcnt lgkmcnt(0)')
                    sm(*x_)
                    if n_ == opt.fq: e.I(FLAG())
                    for y_ in ins.get(n_, []):
                        e.I(y_)
                        if f'v{XKA},' in y_: TS(e, 2)
                vpost()
            else:
                e.I('s_mov_b64 vcc, s[34:35]')
                for k, m in enumerate(rest):
                    e.I(f's_waitcnt lgkmcnt({len(rds)-1-k})')
                    sm(DQ, WQ, MF + 4*k, m)
                    if opt.fpos == k: e.I(FLAG())
                    if not opt.qlead or k < 5: sm(DK, WK, MF + 4*k, m)
                if opt.qlead:
                    for k in (5, 6):
                        sm(DK, WK, MF + 4*k, rest[k])
                        if opt.fpos == k + 2: e.I(FLAG())
                post(lambda k: sm(DV, WV, MF + 4*k, rds[k]))
            if w < 3: e.I(f's_branch {jn}')
        e.L(jn)
        e.I('v_xor_b32 v5, 0xc000, v5')
        e.I('v_xor_b32 v7, 0xc000, v7')
        TS(e, 3)
    def post(vm):
        if opt.inl:
            QP1, QP2 = 'quad_perm:[1,0,3,2] row_mask:0xf bank_mask:0xf', 'quad_perm:[2,3,0,1] row_mask:0xf bank_mask:0xf'
            FLAG = f'buffer_store_dword v{ONE+opt.two}, v{ONE+2}, {WS}, s51 offen{fl}'
            todo = list(range(nrd[0]))
            def vm1():
                if todo:
                    if todo[0] == 7: e.I('s_waitcnt lgkmcnt(0)')
                    vm(todo.pop(0))
            if opt.qlead:
                for r in range(2): e.I(f'v_add_f32 v{DQ+r}, v{DQ+r}, v{DQ+2+r}')
                e.I(f'v_cvt_pk_bf16_f32 v{T0}, v{DQ}, v{DQ+1}')
                if opt.fpos >= 9: e.I(FLAG)
                e.I(f'v_mov_b32 v{DQ+2}, 0')
                e.I(f'v_mov_b32_dpp v{T0+2}, v{T0} {QP1}')
                e.I(f'v_perm_b32 v{T0}, v{T0+2}, v{T0}, v{SEL}')
                for r in range(2): e.I(f'v_add_f32 v{DK+r}, v{DK+r}, v{DK+2+r}')
                e.I(f'v_cvt_pk_bf16_f32 v{T0+1}, v{DK}, v{DK+1}')
                if opt.vin & 1: vm1()
                e.I(f'v_mov_b32_dpp v{T0+3}, v{T0+1} {QP1}')
                e.I(f'v_perm_b32 v{T0+1}, v{T0+3}, v{T0+1}, v{SEL}')
            else:
                if opt.fpos == 8: e.I(FLAG)
                for m in range(opt.vpre): vm1()
                if opt.fpos == 9: e.I(FLAG)
                for D in (DQ, DK):
                    for r in range(2): e.I(f'v_add_f32 v{D+r}, v{D+r}, v{D+2+r}')
                if opt.fpos == 10: e.I(FLAG)
                e.I(f'v_cvt_pk_bf16_f32 v{T0}, v{DQ}, v{DQ+1}')
                e.I(f'v_cvt_pk_bf16_f32 v{T0+1}, v{DK}, v{DK+1}')
                if opt.vin & 1: vm1()
                if opt.fpos == 11: e.I(FLAG)
                e.I(f'v_mov_b32_dpp v{T0+2}, v{T0} {QP1}')
                e.I(f'v_mov_b32_dpp v{T0+3}, v{T0+1} {QP1}')
                e.I(f'v_perm_b32 v{T0}, v{T0+2}, v{T0}, v{SEL}')
                e.I(f'v_perm_b32 v{T0+1}, v{T0+3}, v{T0+1}, v{SEL}')
            if opt.vin & 2: vm1()
            if opt.fpos == 12 and not opt.qlead: e.I(FLAG)
            e.I(f'v_cndmask_b32_dpp v{KEEP}, v{T0+1}, v{T0}, vcc {QP2}')
            e.I('s_mov_b64 vcc, s[36:37]')
            e.I(f'v_cndmask_b32_dpp v{KEEP+1}, v{T0}, v{T0+1}, vcc {QP2}')
            e.I(f'buffer_store_dwordx2 {vr(KEEP,2)}, v{XRA}, {WS}, s41 offen{fl}')
            TS(e, 2)
            z = [f'v_mov_b32 v{DQ+k}, 0' for k in range(8)]
            while todo:
                vm1()
                if len(z) > 7 - opt.zin and todo: e.I(z.pop(0))
            for x_ in z: e.I(x_)
            e.I(f'v_add_f32 v{DV}, v{DV}, v{DV+2}')
            e.I(f'v_add_f32 v{DV+1}, v{DV+1}, v{DV+3}')
            e.I(f'v_cvt_pk_bf16_f32 v{T0}, v{DV}, v{DV+1}')
            e.I(f'v_mov_b32 v{DV+2}, 0'); e.I(f'v_mov_b32 v{DV+3}, 0')
            e.I(f'v_mov_b32_dpp v{T0+2}, v{T0} {QP1}')
            e.I(f'v_perm_b32 v{KEEP+2}, v{T0+2}, v{T0}, v{SEL}')
            e.I(f'v_mov_b32 v{DV}, 0'); e.I(f'v_mov_b32 v{DV+1}, 0')
            e.I(f'v_mov_b32_dpp v{KEEP+3}, v{KEEP+2} {QP2}')
            e.I(f'buffer_store_dwordx2 {vr(KEEP+2,2)}, v9, {WS}, s45 offen{fl}')
            return
        if opt.vgap:
            QP1, QP2 = 'quad_perm:[1,0,3,2] row_mask:0xf bank_mask:0xf', 'quad_perm:[2,3,0,1] row_mask:0xf bank_mask:0xf'
            L = [f'v_permlane32_swap_b32 v{DQ+r}, v{DK+r}' for r in range(4)] + [f'v_add_f32 v{DQ+r}, v{DQ+r}, v{DK+r}' for r in range(4)]
            L += [f'v_cvt_pk_bf16_f32 v{T0}, v{DQ}, v{DQ+1}', f'v_cvt_pk_bf16_f32 v{T0+1}, v{DQ+2}, v{DQ+3}', '*',
                  f'v_mov_b32_dpp v{T0+2}, v{T0} {QP1}', f'v_mov_b32_dpp v{T0+3}, v{T0+1} {QP1}', f'v_perm_b32 v{T0}, v{T0+2}, v{T0}, v{SEL}', f'v_perm_b32 v{T0+1}, v{T0+3}, v{T0+1}, v{SEL}', '*',
                  f'v_cndmask_b32_dpp v{KEEP}, v{T0+1}, v{T0}, vcc {QP2}', 's_mov_b64 vcc, s[36:37]', f'v_cndmask_b32_dpp v{KEEP+1}, v{T0}, v{T0+1}, vcc {QP2}',
                  f'buffer_store_dwordx2 {vr(KEEP,2)}, v{XRA if opt.split else XA}, {WS}, s41 offen{fl}']
            m = 0
            for m in range(opt.vpre): vm(m)
            m = opt.vpre; c = 0
            for n_, x_ in enumerate(L):
                if n_ == opt.fv: e.I(f'buffer_store_dword v{ONE+opt.two}, v{ONE+2}, {WS}, s51 offen{fl}'); c += 1
                if x_ == '*':
                    if m < 7 and c >= 2: vm(m); m += 1; c = 0
                    continue
                e.I(x_); c += 1
                if c >= opt.vgap and m < 7 and n_ < 16 and L[n_ + 1] != '*': vm(m); m += 1; c = 0
            TS(e, 2)
            while m < 7: vm(m); m += 1
            for k in range(8): e.I(f'v_mov_b32 v{DQ+k}, 0')
            vpost()
            return
        QP1, QP2 = 'quad_perm:[1,0,3,2] row_mask:0xf bank_mask:0xf', 'quad_perm:[2,3,0,1] row_mask:0xf bank_mask:0xf'
        nv = opt.vpre
        for m in range(nv): vm(m)
        if opt.fpos == 10: e.I(f'buffer_store_dword v{ONE+opt.two}, v{ONE+2}, {WS}, s51 offen{fl}')
        for r in range(4): e.I(f'v_permlane32_swap_b32 v{DQ+r}, v{DK+r}')
        for r in range(4): e.I(f'v_add_f32 v{DQ+r}, v{DQ+r}, v{DK+r}')
        e.I(f'v_cvt_pk_bf16_f32 v{T0}, v{DQ}, v{DQ+1}')
        e.I(f'v_cvt_pk_bf16_f32 v{T0+1}, v{DQ+2}, v{DQ+3}')
        vm(nv)
        if opt.fpos == 11: e.I(f'buffer_store_dword v{ONE+opt.two}, v{ONE+2}, {WS}, s51 offen{fl}')
        e.I(f'v_mov_b32_dpp v{T0+2}, v{T0} {QP1}')
        e.I(f'v_mov_b32_dpp v{T0+3}, v{T0+1} {QP1}')
        e.I(f'v_perm_b32 v{T0}, v{T0+2}, v{T0}, v{SEL}')
        e.I(f'v_perm_b32 v{T0+1}, v{T0+3}, v{T0+1}, v{SEL}')
        vm(nv + 1)
        if opt.fpos == 12: e.I(f'buffer_store_dword v{ONE+opt.two}, v{ONE+2}, {WS}, s51 offen{fl}')
        e.I(f'v_cndmask_b32_dpp v{KEEP}, v{T0+1}, v{T0}, vcc {QP2}')
        e.I('s_mov_b64 vcc, s[36:37]')
        e.I(f'v_cndmask_b32_dpp v{KEEP+1}, v{T0}, v{T0+1}, vcc {QP2}')
        e.I(f'buffer_store_dwordx2 {vr(KEEP,2)}, v{XRA if opt.split else XA}, {WS}, s41 offen{fl}')
        TS(e, 2)
        for m in range(nv + 2, 7): vm(m)
        for k in range(8): e.I(f'v_mov_b32 v{DQ+k}, 0')
        vpost()
    def vpost():
        if opt.vx2:
            for g_ in post2(DV, T0 + 4, KEEP + 2, '0xf', f'buffer_store_dwordx2 {vr(KEEP+2,2)}, v9, {WS}, s45 offen{fl}'):
                for y_ in g_: e.I(y_)
            return
        QP1 = 'quad_perm:[1,0,3,2] row_mask:0xf bank_mask:0xf'
        e.I(f'v_permlane32_swap_b32 v{DV}, v{DV+2}')
        e.I(f'v_permlane32_swap_b32 v{DV+1}, v{DV+3}')
        e.I(f'v_add_f32 v{DV}, v{DV}, v{DV+2}')
        e.I(f'v_add_f32 v{DV+1}, v{DV+1}, v{DV+3}')
        e.I(f'v_cvt_pk_bf16_f32 v{T0}, v{DV}, v{DV+1}')
        e.I(f'v_mov_b32_dpp v{T0+2}, v{T0} {QP1}')
        e.I(f'v_perm_b32 v{KEEP+2}, v{T0+2}, v{T0}, v{SEL}')
        e.I(f'buffer_store_dword v{KEEP+2}, v9, {WS}, s45 offen{fl}')
        for k in range(4): e.I(f'v_mov_b32 v{DV+k}, 0')
    e.I('s_mul_i32 s62, s22, 10240')
    def xdma(seg, buf):
        e.I(f's_add_u32 s63, s62, {XN + seg*40960}')
        for m in range(10):
            e.I(f's_add_u32 m0, s62, {Q_LX + buf*40960 + m*1024}')
            e.I(f'buffer_load_dwordx4 v2, {WS}, s63 offen lds')
            e.I('s_add_u32 s63, s63, 1024')
    w_consume(0, 0, 20); w_issue(3, 0)
    w_consume(1, 1, 20); w_issue(4, 1)
    w_consume(2, 2, 20)
    xe = 0
    if opt.x0e:
        xe = 10
        e.I('s_mov_b32 s38, 0')
        for hf in range(4):
            e.I(f's_load_dwordx8 s[40:47], s[74:75], {D_REG + 32*hf} glc')
            e.I('s_waitcnt lgkmcnt(0)')
            for k in range(0, 8, 4):
                e.I(f's_add_u32 s39, s{40+k}, s{41+k}'); e.I(f's_add_u32 s48, s{42+k}, s{43+k}'); e.I('s_add_u32 s39, s39, s48')
                e.I('s_lshr_b32 s48, s39, 8'); e.I('s_and_b32 s39, s39, 0xff00ff'); e.I('s_and_b32 s48, s48, 0xff00ff')
                e.I('s_add_u32 s38, s38, s39'); e.I('s_add_u32 s38, s38, s48')
        e.I('s_lshr_b32 s39, s38, 16'); e.I('s_and_b32 s38, s38, 0xffff'); e.I('s_add_u32 s38, s38, s39')
        e.I('s_cmp_eq_u32 s38, 256')
        e.I('s_cselect_b64 s[66:67], -1, 0')
        e.I('s_mov_b64 exec, s[66:67]')
        xdma(0, 0)
        e.I('s_mov_b64 exec, -1')
    w_consume(3, 0, 10 + xe)
    n0_ = len(e.lines)
    w_issue(5, 0)
    xdma(1, 1)
    sprk = []
    if True:
        cur = []
        for l_ in e.lines[n0_:]:
            cur.append(l_.strip())
            if 'buffer_load' in l_: sprk.append(cur); cur = []
        del e.lines[n0_:]
    if not opt.spr: sprk = []
    for g_ in sprk[:opt.spre]:
        for x_ in g_: e.I(x_)
    sprk = sprk[opt.spre:]
    w_consume(4, 1, xe + opt.spre)
    TS(e, 0)
    wait_reg(e, T0)
    TS(e, 1)
    TSflush(e, '69')
    if opt.x0e: e.I('s_not_b64 exec, s[66:67]')
    xdma(0, 0)
    if opt.x0e: e.I('s_mov_b64 exec, -1')
    if not opt.spr: w_issue(5, 0); xdma(1, 1)
    if opt.x2e == 1: xdma(2, 3)
    e.I('s_cmp_lg_u32 s23, 0')
    e.I('s_cbranch_scc1 L_qkvs')
    for slow in (False, True):
        fl = ' sc1' if slow else ''
        if slow: e.L('L_qkvs')
        pro, top, nox, nxt_, q0, q0r, qq, q1 = [e.lab(x_) for x_ in ('Lqp', 'Lqt', 'Lqn', 'Lqx', 'Lq0', 'Lqr', 'Lqq', 'Lq1')]
        e.I('s_mov_b32 s30, 0')
        e.I('s_mov_b32 s64, 0')
        TS(e, 0)
        for g_ in sprk[:opt.spr0]:
            for x_ in g_: e.I(x_)
        e.I(f's_waitcnt vmcnt({opt.spr0 if opt.spr else 30 if opt.x2e == 1 else 20})')
        TS(e, 1)
        e.I('s_barrier')
        xwork(False, (2, 1), False, sprk[opt.spr0:])
        e.I('s_mov_b32 s64, 1')
        TS(e, 2)
        flag_addr(1)
        e.I('s_waitcnt vmcnt(0)')
        TS(e, 3)
        set_flag(e, ONE + 2, 's51', ONE, fl)
        w_consume(5, 0, 1)
        if opt.urg: wait_count(e, T0, D_W, 80, 4)
        TS(e, 4)
        TSflush(e, '68')
        if opt.x2e == 2: xdma(2, 3)
        xwork(False, (2, 1, 0), False)
        e.I('s_mov_b32 s64, 2')
        e.I(f's_branch {top}')
        e.L(q0)
        e.I('s_mov_b32 s64, 0')
        xwork(False, (0,), False)
        if not opt.x2e:
            e.I('s_barrier')
            xdma(2, 0)
        e.I('s_mov_b32 s64, 2')
        if not opt.x2e:
            e.I('s_waitcnt vmcnt(0)')
            e.I('s_barrier')
        e.I(f's_branch {q0r}')
        e.L(top)
        TS(e, 0)
        mem_part()
        e.I('s_cmp_eq_u32 s30, 0')
        e.I(f's_cbranch_scc1 {q0}')
        e.L(q0r)
        e.I('s_cmp_ge_u32 s64, 64')
        e.I(f's_cbranch_scc1 {nox}')
        xwork(True)
        if opt.f63:
            e.I('s_cmp_lg_u32 s64, 63')
            e.I(f's_cbranch_scc1 {nxt_}')
            flag_n()
        e.I(f's_branch {nxt_}')
        e.L(nox)
        for x_ in late_list()[0::2]: e.I(x_)
        flag_n()
        e.L(nxt_)
        TS(e, 4)
        e.I('s_add_u32 s64, s64, 1')
        TS(e, 5)
        TSflush(e, 's30')
        e.I('s_add_u32 s30, s30, 1')
        e.I('s_cmp_lt_u32 s30, 64')
        e.I(f's_cbranch_scc1 {top}')
        if opt.qc:
            e.I('s_lshl_b32 s30, s21, 3')
            e.I('s_add_u32 s30, s30, s20')
            e.I(f's_add_u32 s30, s30, {opt.qc}')
            e.I('s_mov_b32 s33, 0')
            e.I('s_cmp_lt_u32 s30, 1280')
            e.I('s_cselect_b32 s38, s22, 1')
            e.I('s_cmp_eq_u32 s38, 0')
            e.I('s_cbranch_scc1 L_cmb2')
        e.I('s_endpgm')

S_RED = 98304
def role_sw(e):
    fl = ''
    XF, KXF, VXF, VMF = 16, 40, 88, 136
    S, PB, PM = 148, 160, 164
    DW, DM, VWX, VWM = 168, 184, 200, 216
    OUT = DW
    PA = XF
    CI = 224
    T0 = 228; IDX = 246; SENT = 248; ONE = 252
    AONE, AHALF = 96, 100
    W2 = 104 if opt.vx2 else 0
    PAD = 240
    e.I('s_sub_u32 s24, s21, 12')
    e.I('s_lshl_b32 s25, s24, 2')
    e.I('s_add_u32 s25, s25, s22')
    e.I('s_lshl_b32 s26, s20, 2')
    e.I('s_add_u32 s26, s26, s22')
    srd(e, 8, 66, 6144 * 1280)
    def wo_load():
        e.I(f's_mul_i32 s28, s26, {192*1280}')
        e.I('s_lshl_b32 s29, s24, 7')
        e.I('s_add_u32 s28, s28, s29')
        e.I('v_lshrrev_b32 v17, 3, v1')
        e.I('v_bfe_u32 v18, v1, 4, 2')
        e.I('v_lshlrev_b32 v18, 1, v18')
        e.I('v_and_b32 v19, 7, v1')
        e.I('v_xor_b32 v19, v19, v18')
        e.I('v_mul_u32_u24 v16, 1280, v17')
        e.I('v_lshl_add_u32 v16, v19, 4, v16')
        e.I('s_mul_i32 s46, s22, 24576')
        for n in range(24):
            e.I(f's_add_u32 m0, s46, {n*1024}')
            e.I(f'buffer_load_dwordx4 v16, s[8:11], s28 offen{WFL[opt.wnt]} lds')
            if n < 23: e.I(f's_add_u32 s28, s28, {8*1280}')
        extra = 0
        if opt.pfs == 2: sw_pf(); extra = 3 * (12 - opt.pfh)
        e.I('v_lshrrev_b32 v17, 2, v1')
        e.I('v_bfe_u32 v18, v17, 1, 2')
        e.I('v_lshlrev_b32 v17, 7, v17')
        e.I('v_and_b32 v19, 3, v1')
        e.I('v_lshl_add_u32 v17, v19, 3, v17')
        e.I('v_add_u32 v17, s46, v17')
        for ct in range(4):
            e.I(f'v_xor_b32 v19, {ct}, v18')
            e.I(f'v_lshl_add_u32 v{20+ct}, v19, 5, v17')
        for kk in range(6):
            e.I(f's_waitcnt vmcnt({20 - 4*kk + extra})')
            for ct in range(4):
                e.I(f'ds_read_b64_tr_b16 {ar((ct*6+kk)*4,2)}, v{20+ct} offset:{kk*4096}')
                e.I(f'ds_read_b64_tr_b16 {ar((ct*6+kk)*4+2,2)}, v{20+ct} offset:{kk*4096+2048}')
        e.I('s_waitcnt lgkmcnt(0)')
        if opt.vx2:
            for f_ in range(24):
                for k, k2 in enumerate((0, 2, 1, 3)): e.I(f'v_accvgpr_mov_b32 a{W2 + 4*f_ + k}, a{4*f_ + k2}')
    nocal = e.lab('Lnc')
    e.I('s_cmp_lg_u32 s25, 8')
    e.I(f's_cbranch_scc1 {nocal}')
    e.I('s_lshl_b32 s38, s20, 7')
    e.I(f's_add_u32 s38, s38, {CAL}')
    e.I('s_add_u32 s39, s38, 8192')
    e.I('s_mov_b32 s40, -1'); e.I('s_mov_b32 s41, -1'); e.I('s_mov_b32 s42, 4')
    e.I('v_mov_b32 v10, 0')
    e.I('s_mov_b64 exec, 1')
    cal = e.lab('Lcal')
    e.L(cal)
    for so, acc in (('s38', 's40'), ('s39', 's41')):
        e.I(f'buffer_store_dword v10, v10, {WS}, {so} offen sc1')
        e.I('s_waitcnt vmcnt(0)')
        e.I('s_memtime s[44:45]')
        e.I('s_waitcnt lgkmcnt(0)')
        e.I(f'buffer_load_dword v11, v10, {WS}, {so} offen sc1')
        e.I('s_waitcnt vmcnt(0)')
        e.I('s_memtime s[46:47]')
        e.I('s_waitcnt lgkmcnt(0)')
        e.I('s_sub_u32 s46, s46, s44')
        e.I(f's_min_u32 {acc}, {acc}, s46')
    e.I('s_sub_u32 s42, s42, 1')
    e.I('s_cmp_lg_u32 s42, 0')
    e.I(f's_cbranch_scc1 {cal}')
    e.I('s_cmp_lt_u32 s41, s40')
    if opt.pflip: e.I('s_cmp_ge_u32 s41, s40')
    e.I('s_cselect_b32 s38, 2, 1')
    e.I('v_mov_b32 v11, s38')
    e.I('s_lshl_b32 s38, s20, 2')
    e.I('v_mov_b32 v10, s38')
    e.I(f'global_store_dword v10, v11, s[74:75] offset:{D_PAR} sc1')
    e.I('s_mov_b64 exec, -1')
    e.L(nocal)
    def sw_pf():
        srd(e, 12, 64, 640 * 12288); srd(e, 16, 60, 640 * 12288)
        prefetch_w(e, 's25', opt.pfh, 12, 32, 's[12:15]', 's[16:19]')
    if opt.pfs == 1: sw_pf()
    def early_touch():
        jobs = []
        for sl in range(2): jobs += [(b_ + sl * SEG_QX, 12288, 96) for b_ in (KX, VX)]
        for sl in range(2): jobs += [(QX + sl * SEG_QX, 12288, 96), (XP + sl * SEG_XP, 6144, 48), (VM + sl * SEG_VM, 3072, 24)]
        touch_jobs(e, jobs, 's24', 10, 's26', 24)
    if opt.tord == 0: early_touch()
    if not opt.swlate: wo_load()
    if opt.tord == 1: early_touch()
    e.I(f's_mov_b32 s52, {SC_L2E:#x}'); e.I(f's_mov_b32 s53, {SC_L2E | 0x80000000:#x}')
    lane_ig(e, 14, 15)
    e.I('v_and_b32 v13, 7, v14')
    e.I('v_lshlrev_b32 v13, 4, v13')
    e.I('v_lshl_add_u32 v13, v15, 7, v13')
    e.I('v_bfe_u32 v5, v1, 3, 1')
    e.I('s_lshl_b32 s38, s22, 9')
    e.I(f's_add_u32 s38, s38, {S_RED}')
    e.I('v_add_u32 v6, s38, v13')
    e.I('v_lshl_add_u32 v6, v5, 14, v6')
    e.I('s_lshl_b32 s38, s22, 11')
    e.I(f's_add_u32 s38, s38, {S_RED}')
    e.I('v_add_u32 v7, s38, v13')
    e.I('v_lshl_add_u32 v7, v5, 10, v7')
    if opt.remap:
        e.I('v_bfe_u32 v8, v1, 1, 2')
        e.I('v_add_u32 v8, v8, v15')
        e.I('v_and_b32 v8, 3, v8')
        e.I('v_and_b32 v9, 7, v1')
        e.I('v_lshlrev_b32 v9, 6, v9')
        e.I('v_lshl_add_u32 v9, v8, 4, v9')
        e.I('v_sub_u32 v9, v9, v13')
        e.I('v_add_u32 v6, v6, v9')
    if opt.remap == 1:
        e.I('v_add_u32 v8, v1, v15')
        e.I('v_and_b32 v8, 3, v8')
        e.I('v_bfe_u32 v9, v1, 2, 1')
        e.I('v_lshl_add_u32 v9, v15, 1, v9')
        e.I('v_lshlrev_b32 v9, 6, v9')
        e.I('v_lshl_add_u32 v9, v8, 4, v9')
        e.I('v_sub_u32 v9, v9, v13')
        e.I('v_add_u32 v7, v7, v9')
    if opt.remap == 2:
        e.I('v_lshrrev_b32 v5, 5, v1')
        e.I('v_bfe_u32 v8, v1, 3, 2')
        e.I('v_add_u32 v8, v8, v1')
        e.I('v_and_b32 v8, 3, v8')
        e.I('v_bfe_u32 v9, v1, 2, 3')
        e.I('v_lshlrev_b32 v9, 6, v9')
        e.I('v_lshl_add_u32 v9, v8, 4, v9')
        e.I('v_add_u32 v7, s38, v9')
        e.I('v_lshl_add_u32 v7, v5, 10, v7')
        e.I('v_and_b32 v13, 31, v1')
        e.I('v_lshlrev_b32 v13, 4, v13')
    if opt.pbf: e.I('v_lshrrev_b32 v13, 1, v13')
    e.I('v_lshl_add_u32 v13, v5, 13, v13')
    e.I('v_and_b32 v4, 0x1fff, v13')
    e.I('v_lshlrev_b32 v9, 2, v5')
    e.I('v_xor_b32 v9, s20, v9')
    for m in range(4):
        e.I(f'v_xor_b32 v8, {m}, v9')
        e.I(f'v_lshl_add_u32 v{PAD+m}, v8, 9, v4')
    e.I('v_and_b32 v9, 7, v1')
    e.I('v_lshlrev_b32 v8, 4, v9')
    e.I('v_lshl_add_u32 v8, v5, 7, v8')
    e.I('v_lshl_add_u32 v8, v15, 2, v8')
    if opt.remap == 2: e.I('v_lshlrev_b32 v8, 2, v1')
    if opt.remap == 1:
        e.I('v_bfe_u32 v9, v1, 2, 1')
        e.I('v_lshl_add_u32 v9, v15, 1, v9')
        e.I('v_lshlrev_b32 v8, 4, v9')
        e.I('v_lshl_add_u32 v8, v5, 7, v8')
        e.I('v_and_b32 v9, 3, v1')
        e.I('v_lshl_add_u32 v8, v9, 2, v8')
        if opt.inl:
            e.I('v_bfe_u32 v8, v1, 2, 1')
            e.I('v_lshl_add_u32 v8, v5, 1, v8')
            e.I('v_lshl_add_u32 v8, v15, 2, v8')
            e.I('v_lshlrev_b32 v8, 4, v8')
            e.I('v_lshl_add_u32 v8, v9, 2, v8')
    e.I('s_lshl_b32 s38, s25, 8')
    e.I('v_add_u32 v8, s38, v8')
    e.I('v_lshrrev_b32 v9, 1, v1')
    if opt.split:
        e.I('v_cmp_lt_u32 vcc, 2, v9')
        e.I('v_lshlrev_b32 v9, 10, v9')
        e.I(f'v_add_u32 v10, {128 - 3072}, v9')
        e.I('v_cndmask_b32 v9, v9, v10, vcc')
    else:
        e.I('v_lshlrev_b32 v9, 10, v9')
    e.I('v_and_b32 v10, 1, v1')
    e.I(f'v_lshl_add_u32 v9, v10, {9 if opt.eord else 3}, v9')
    e.I(f'v_lshlrev_b32 v{ONE+1}, 2, v1')
    for k in range(4): e.I(f'v_mov_b32 v{SENT+k}, -1')
    e.I('s_mov_b32 s68, 0xff00ff00'); e.I('s_mov_b32 s69, 0xff00ff00')
    e.I('s_mov_b32 s70, 0x3f80'); e.I('s_mov_b32 s71, 0x3f800000')
    e.I(f'v_mov_b32 v{CI}, {NEG_BIG:#x}')
    e.I('s_mov_b32 vcc_lo, 0')
    e.I('s_mov_b32 vcc_hi, 0x00ff00ff')
    e.I(f'v_cndmask_b32 v{CI}, v{CI}, 0, vcc')
    for k in range(1, 4): e.I(f'v_mov_b32 v{CI+k}, v{CI}')
    e.I(f'v_mov_b32 v{IDX}, 0x44444444')
    e.I('v_mov_b32 v11, 0xeeeeeeee')
    if opt.inl:
        e.I('v_and_b32 v12, 2, v1')
        e.I('v_cmp_lt_u32 vcc, 0, v12')
    else: e.I('v_cmp_lt_u32 vcc, 7, v14')
    e.I(f'v_cndmask_b32 v{IDX}, v{IDX}, v11, vcc')
    e.I('v_mov_b32 v11, 0x3f803f80')
    for k in range(4): e.I(f'v_accvgpr_write_b32 a{AONE+k}, v11')
    e.I('v_mov_b32 v11, 0x3f003f00')
    for k in range(2): e.I(f'v_accvgpr_write_b32 a{AHALF+k}, v11')
    e.I('s_mul_i32 s58, s26, 6144')
    e.I(f's_add_u32 s58, s58, {XR}')
    e.I('s_mul_i32 s57, s26, 3072')
    e.I(f's_add_u32 s57, s57, {VR}')
    e.I('s_lshr_b32 s59, s25, 1')
    e.I('s_lshl_b32 s59, s59, 14')
    e.I('s_and_b32 s38, s25, 1')
    e.I('s_lshl_b32 s38, s38, 12')
    e.I('s_add_u32 s59, s59, s38')
    e.I(f's_add_u32 s59, s59, {PART}')
    e.I('s_lshl_b32 s60, s20, 9')
    e.I('s_add_u32 s60, s60, s59')
    e.I('s_mul_i32 s61, s20, 10240')
    e.I(f's_add_u32 s61, s61, {MEM}')
    e.I('s_mul_i32 s62, s26, 12288')
    e.I('s_lshl_b32 s63, s26, 6')
    e.I(f's_add_u32 s63, s63, {FLGQ}')
    e.I('s_lshl_b32 s38, s20, 2')
    e.I('v_mov_b32 v10, s38')
    wait_flags(e, 10, D_PAR, 1, T0, 12, sleep=4, dbg=True)
    e.I(f'v_readfirstlane_b32 s38, v{T0}')
    e.I('s_nop 3')
    e.I('s_and_b32 s38, s38, 2')
    e.I('s_lshl_b32 s38, s38, 12')
    e.I('s_add_u32 s59, s59, s38')
    e.I('s_lshl_b32 s38, s22, 2')
    e.I(f's_add_u32 s38, s38, {S_RED + 8192}')
    e.I('v_lshlrev_b32 v10, 4, v14')
    e.I('v_add_u32 v10, s38, v10')
    e.I('v_and_b32 v11, 7, v14')
    if opt.remap == 1:
        e.I('v_bfe_u32 v11, v1, 2, 1')
        e.I('v_lshl_add_u32 v11, v15, 1, v11')
    if opt.remap == 2: e.I('v_bfe_u32 v11, v1, 2, 3')
    e.I('v_lshlrev_b32 v11, 4, v11')
    e.I(f'v_bfe_u32 v12, v1, {5 if opt.remap == 2 else 3}, 1')
    e.I('v_lshl_add_u32 v11, v12, 3, v11')
    e.I(f'v_add_u32 v11, {S_RED + 8192}, v11')
    e.I(f'v_min_u32 v12, {12 if opt.rpos == 9 else 11}, v1')
    e.I('v_lshlrev_b32 v12, 2, v12')
    if opt.nc > 1:
        e.I('v_and_b32 v13, 31, v1')
        e.I('v_lshlrev_b32 v13, 4, v13')
        e.I('v_lshrrev_b32 v15, 5, v1')
        e.I('v_lshl_add_u32 v13, v15, 13, v13')
    if opt.nod:
        e.I('v_bfe_u32 v15, v1, 3, 1')
        e.I('v_mul_u32_u24 v14, 1016, v15')
        e.I('v_sub_u32 v7, v7, v14')
        e.I('v_lshlrev_b32 v14, 3, v15')
        e.I('v_sub_u32 v11, v11, v14')
        e.I('v_lshlrev_b32 v15, 2, v1')
        for m, r_ in enumerate((PAD, PAD + 1, PAD + 2, PAD + 3, 4, 5, 14)):
            e.I(f's_xor_b32 s38, s20, {m + 1}')
            e.I('s_lshl_b32 s38, s38, 9')
            e.I(f'v_add_u32 v{r_}, s38, v15')
    def kv_loads(dst, base, q0=0, q1=12):
        if q0 >= q1: return
        e.I(f's_and_b32 s48, s49, {RD-1}')
        e.I(f's_mul_i32 s48, s48, {SEG_QX}')
        e.I('s_add_u32 s48, s48, s62')
        e.I(f's_add_u32 s48, s48, {base + (q0//4)*4096}')
        for q in range(q0, q1):
            if q % 4 == 0 and q > q0: e.I('s_add_u32 s48, s48, 4096')
            e.I(f'buffer_load_dwordx4 {vr(dst+4*q)}, v2, {WS}, s48 offen offset:{(q%4)*1024} sc1')
    def vx_loads():
        e.I(f's_and_b32 s48, s49, {RD-1}')
        e.I(f's_mul_i32 s48, s48, {SEG_QX}')
        e.I('s_add_u32 s48, s48, s62')
        e.I(f's_add_u32 s48, s48, {VX}')
        e.I('s_add_u32 s46, s48, 4096')
        e.I('s_add_u32 s56, s48, 8192')
        for kk in range(6):
            for rt in range(2):
                q = rt * 6 + kk
                e.I(f'buffer_load_dwordx4 {vr(VXF+4*q)}, v2, {WS}, {("s48", "s46", "s56")[q//4]} offen offset:{(q%4)*1024} sc1')
    def vw_grp(gi):
        kk, rt = gi // 2, gi % 2
        for ct in range(4):
            d = vr(DW + (ct*2+rt)*4)
            e.I(f'{MFMA} {d}, {vr(VXF+4*(rt*6+kk))}, {ar((ct*6+kk)*4)}, {0 if kk == 0 else d}')
    cv = [f'v_cvt_pk_bf16_f32 v{VWX+4*ct+k}, v{DW+8*ct+2*k}, v{DW+8*ct+2*k+1}' for ct in range(4) for k in range(4)] + [f'v_mov_b32 v{DM+k}, 0' for k in range(16)]
    def vw_x(after, extra=(), nvx=0, g0=0):
        extra = list(extra); nx0 = len(extra)
        for gi in range(g0, 12):
            if gi >= 12 - nvx: e.I(f's_waitcnt vmcnt({11 - gi + nx0 - len(extra)})')
            for _ in range(-(-len(extra) // (12 - gi))): e.I(extra.pop(0))
            if after is not None: e.I(f's_waitcnt vmcnt({after + 11 - gi})')
            vw_grp(gi)
        for n_, x_ in enumerate(cv[:32 - opt.cvx]):
            if extra and n_ % 2 == 0: e.I(extra.pop(0))
            e.I(x_)
        for x_ in extra: e.I(x_)
    TS(e, 0)
    wait_reg(e, T0, opt.rsleep)
    TS(e, 1)
    if opt.swlate: wo_load()
    if opt.tord == 2: early_touch()
    TS(e, 2)
    TSflush(e, '69', 244, 245)
    if opt.touch2:
        e.I('v_lshrrev_b32 v16, 4, v1')
        e.I(f's_mov_b32 s38, {PART_SLOT}')
        e.I('v_mul_lo_u32 v16, s38, v16')
        e.I('v_bfe_u32 v17, v1, 1, 3')
        e.I('v_lshl_add_u32 v16, v17, 9, v16')
        e.I('v_and_b32 v17, 1, v1')
        e.I('v_lshl_add_u32 v16, v17, 7, v16')
        if opt.ptouch == 2: e.I('s_mov_b32 exec_lo, 0')
        if opt.ptouch: e.I(f'buffer_load_dword v17, v16, {WS}, s59 offen sc1{" nt" if opt.ptouch == 3 else ""}')
        if opt.nc > 1: e.I(f'buffer_load_dword v17, v16, {WS}, s59 offen offset:256 sc1')
        e.I('s_mov_b64 exec, -1')
    wait_flags(e, ONE + 1, 's63', 0xfff, T0, 11, sleep=2)
    if opt.dstamp:
        for k in range(90, 94): e.I(f's_mov_b32 s{k}, 0')
    if opt.ad: e.I(f's_mov_b32 s72, {opt.pmf}'); e.I('s_mov_b32 s73, 0')
    e.I('s_mov_b32 s49, 0')
    vx_loads()
    kv_loads(KXF, KX)
    if opt.split and opt.xg1 + opt.xg2:
        e.I('s_waitcnt vmcnt(12)')
        for gi in range(opt.pmf + opt.pmf2): vw_grp(gi)
    else: vw_x(12)
    e.I('s_cmp_lg_u32 s23, 0')
    e.I('s_cbranch_scc1 L_sws')
    for slow in (False, True):
        fl = ' sc1' if slow else ''
        if slow: e.L('L_sws')
        top = e.lab('Lwt')
        e.I('s_mov_b32 s30, 0')
        e.L(top)
        TS(e, 0)
        if opt.pdiag: e.I('s_mov_b32 s94, 0')
        e.I('s_and_b32 s38, s30, 3')
        e.I('s_xor_b32 s39, s38, 2')
        e.I(f's_mul_i32 s40, s38, {XR_SLOT}')
        e.I('s_add_u32 s40, s40, s58')
        e.I('s_add_u32 s54, s40, 4096')
        e.I(f's_mul_i32 s55, s38, {VR_SLOT}')
        e.I('s_add_u32 s55, s55, s57')
        if opt.fresh:
            e.I(f's_mul_i32 s41, s30, {PART_SLOT}')
            e.I(f's_add_u32 s41, s41, {SCRATCH + 0x400000 - PART + 0x200000}')
        else:
            e.I(f's_mul_i32 s41, s38, {PART_SLOT}')
        e.I('s_add_u32 s42, s41, s60')
        e.I('s_add_u32 s41, s41, s59')
        if opt.fresh:
            e.I('s_lshr_b32 s47, s41, 8')
            e.I('s_not_b32 s47, s47')
            e.I('s_and_b32 s47, s47, 8192')
            e.I('s_xor_b32 s41, s41, s47')
        e.I('s_xor_b32 s47, s41, 8192')
        e.I(f's_mul_i32 s43, s39, {PART_SLOT}')
        e.I('s_add_u32 s43, s43, s60')
        e.I('s_add_u32 s49, s30, 1')
        e.I('s_and_b32 s44, s49, 3')
        e.I('s_xor_b32 s45, s44, 2')
        e.I(f's_mul_i32 s44, s44, {MEM_SLOT}')
        e.I('s_add_u32 s44, s44, s61')
        e.I(f's_mul_i32 s45, s45, {MEM_SLOT}')
        e.I('s_add_u32 s45, s45, s61')
        e.I(f's_and_b32 s46, s49, {RD-1}')
        e.I(f's_mul_i32 s46, s46, {SEG_QX}')
        e.I('s_add_u32 s46, s46, s62')
        e.I(f's_add_u32 s65, s46, {KX}')
        e.I(f's_add_u32 s46, s46, {VX}')
        e.I('s_add_u32 s56, s46, 4096')
        e.I('s_add_u32 s64, s46, 8192')
        e.I('s_add_u32 s66, s65, 4096')
        e.I('s_add_u32 s67, s65, 8192')
        e.I('s_lshl_b32 s50, s49, 11')
        e.I('s_add_u32 s50, s50, s63')
        pl, pd, fr, hl, hd = e.lab('Lxp'), e.lab('Lxd'), e.lab('Lxf'), e.lab('Lhp'), e.lab('Lhd')
        def probe(lp, dn, va, so, bad):
            e.I(f's_mov_b64 exec, {0x1fff if opt.rpos == 9 and bad == 0 else 0xfff:#x}')
            e.I(f'buffer_load_dword v{T0}, v{va}, {WS}, {so} offen sc1')
            e.L(lp)
            for a_, b_ in ((T0, T0 + 1), (T0 + 1, T0)):
                e.I(f'buffer_load_dword v{b_}, v{va}, {WS}, {so} offen sc1')
                e.I('s_waitcnt vmcnt(1)')
                e.I(f'v_cmp_gt_u32 vcc, 2, v{a_}' if opt.two and bad == 0 else f'v_cmp_eq_u32 vcc, {bad}, v{a_}')
                e.I(f's_cbranch_vccz {dn}')
            e.I('s_sub_u32 s31, s31, 1')
            e.I(f's_cbranch_scc0 {lp}')
            e.I('s_mov_b32 s31, 2')
            e.I('s_branch L_fail')
        e.I(f's_mov_b32 s31, {TMO}')
        ROR8 = 'row_ror:8 row_mask:0xf bank_mask:0xf'
        ROR8L, ROR8H = 'row_ror:8 row_mask:0xf bank_mask:0x3', 'row_ror:8 row_mask:0xf bank_mask:0xc'
        if opt.split:
            XQ, XK = XF, XF + 12
            A1a, A2a, A1b, A2b, MM = S + 4, S, S + 8, T0 + 4, CI
            def q_loads():
                for j in range(3): e.I(f'buffer_load_dwordx4 {vr(XQ+4*j)}, v2, {WS}, s40 offen offset:{j*1024} sc1')
            def k_loads():
                e.I(f'buffer_load_dwordx4 {vr(XK)}, v2, {WS}, s40 offen offset:3072 sc1')
                for j in range(1, 3): e.I(f'buffer_load_dwordx4 {vr(XK+4*j)}, v2, {WS}, s54 offen offset:{(j-1)*1024} sc1')
            def vm_loads():
                for q in range(3): e.I(f'buffer_load_dwordx4 {vr(VMF+4*q)}, v2, {WS}, s55 offen offset:{q*1024} sc1')
            def chk(r, j):
                if opt.thin1:
                    if j == 2: e.I(f'v_max3_u32 v{T0+2}, v{r-8}, v{r-4}, v{r}')
                else: e.I(f'v_max_u32 v{T0+2}, v{r}, v{r+2}' if j == 0 else f'v_max3_u32 v{T0+2}, v{T0+2}, v{r}, v{r+2}')
            def mm(j): e.I(f'{MFMA} {vr(MM)}, {vr(XK+4*j)}, {vr(XQ+4*j)}, {0 if j == 0 else vr(MM)}')
            def gap(n):
                while n > 0: e.I(f's_nop {min(n, 16) - 1}'); n -= 16
            lq, qf_, qd_, kf_, kd_, kok = [e.lab(x_) for x_ in ('Lsq', 'Lsqf', 'Lsqd', 'Lskf', 'Lskd', 'Lsko')]
            probe(hl, hd, 12, 's50', 0)
            e.L(qf_)
            if opt.dstamp: e.I('s_add_u32 s90, s90, 1')
            e.I('s_sub_u32 s31, s31, 1')
            e.I('s_cbranch_scc1 L_fail')
            probe(pl, qd_, 9, 's40', -1)
            e.L(qd_)
            e.I('s_mov_b64 exec, -1')
            q_loads()
            e.I('s_waitcnt vmcnt(0)')
            e.I(f's_branch {lq}')
            e.L(kf_)
            if opt.dstamp: e.I('s_add_u32 s91, s91, 1')
            e.I('s_sub_u32 s31, s31, 1')
            e.I('s_cbranch_scc1 L_fail')
            e.I('s_add_u32 s48, s40, 3072')
            if opt.inl:
                e.I(f'v_and_b32 v{T0+8}, 128, v9')
                e.I(f'v_lshrrev_b32 v{T0+9}, 2, v{T0+8}')
                e.I(f'v_sub_u32 v{T0+8}, v9, v{T0+8}')
                e.I(f'v_add_u32 v{T0+8}, v{T0+8}, v{T0+9}')
            probe(e.lab('Lskp'), kd_, T0 + 8 if opt.inl else 9, 's48', -1)
            e.L(kd_)
            e.I('s_mov_b64 exec, -1')
            k_loads()
            e.I('s_waitcnt vmcnt(0)')
            for j in range(3): mm(j); chk(XK + 4*j, j)
            e.I(f'v_cmp_eq_u32 vcc, -1, v{T0+2}')
            e.I(f's_cbranch_vccnz {kf_}')
            e.I('s_nop 7')
            e.I(f's_branch {kok}')
            e.L(hd)
            e.I('s_mov_b64 exec, -1')
            TS(e, 1)
            g0_ = opt.pmf + opt.pmf2
            q_loads()
            for gi in range(g0_, g0_ + opt.xg1): vw_grp(gi)
            gap(opt.g1)
            k_loads()
            for gi in range(g0_ + opt.xg1, g0_ + opt.xg1 + opt.xg2): vw_grp(gi)
            gap(opt.g2)
            for x_ in cv[32 - opt.cvx:]: e.I(x_)
            vm_loads()
            for q in (0, 6, 1, 7, 2, 8, 3, 9, 4, 10, 5, 11)[:opt.vxe]:
                e.I(f'buffer_load_dwordx4 {vr(VXF+4*q)}, v2, {WS}, {("s46", "s56", "s64")[q//4]} offen offset:{(q%4)*1024} sc1')
            if opt.xg1 + opt.xg2: vw_x(None, (), 0, g0_ + opt.xg1 + opt.xg2)
            e.L(lq)
            t = T0 + 2
            if opt.sord:
                def qm(d, kf, j): e.I(f'{MFMA} {vr(d)}, {vr(KXF+4*kf)}, {vr(XQ+4*j)}, {0 if j == 0 else vr(d)}')
                mL = [f'v_add_f32_dpp v{S+4+r}, v{A2a+r}, v{A1a+r} {ROR8L}' for r in range(4)]
                mH = [f'v_add_f32_dpp v{S+4+r}, v{A1b+r}, v{A2b+r} {ROR8H}' for r in range(4)]
                for j in range(3):
                    e.I(f's_waitcnt vmcnt({8-j+opt.vxe})')
                    qm(A1a, j, j); chk(XQ + 4*j, j); qm(A2a, j + 3, j)
                e.I(f'v_cmp_eq_u32 vcc, -1, v{T0+2}')
                qm(A1b, 6, 0)
                e.I(f's_cbranch_vccnz {qf_}')
                qm(A2b, 9, 0); qm(A1b, 7, 1)
                e.I(mL[0]); e.I(mL[1])
                qm(A2b, 10, 1)
                e.I(mL[2]); e.I(mL[3])
                qm(A1b, 8, 2); qm(A2b, 11, 2)
                for j in range(3):
                    e.I(f's_waitcnt vmcnt({5-j+opt.vxe})')
                    mm(j)
                    if j < 2: chk(XK + 4*j, j)
                    if j == 1: e.I(mH[0])
                chk(XK + 8, 2)
                e.I(f'v_cmp_eq_u32 vcc, -1, v{T0+2}')
                for x_ in mH[1:]: e.I(x_)
                e.I(f'v_max3_f32 v{t+1}, v{S+4}, v{S+5}, v{S+6}')
                e.I(f's_cbranch_vccnz {kf_}')
            else:
                for j in range(3):
                    x = vr(XQ + 4*j)
                    e.I(f's_waitcnt vmcnt({8-j+opt.vxe})')
                    if opt.t9 == j: TS(e, 9)
                    for n_, (d, kf) in enumerate(((A1a, j), (A2a, j + 3), (A1b, 6 + j), (A2b, 9 + j))):
                        e.I(f'{MFMA} {vr(d)}, {vr(KXF+4*kf)}, {x}, {0 if j == 0 else vr(d)}')
                        if n_ == 0: chk(XQ + 4*j, j)
                        if n_ == 1 and j == 2: e.I(f'v_cmp_eq_u32 vcc, -1, v{T0+2}')
                e.I(f's_cbranch_vccnz {qf_}')
                t = T0 + 2
                for j in range(3):
                    e.I(f's_waitcnt vmcnt({5-j+opt.vxe})')
                    if opt.t9 == 3 + j: TS(e, 9)
                    mm(j); chk(XK + 4*j, j)
                    if j == 1:
                        for r in range(4): e.I(f'v_add_f32_dpp v{S+4+r}, v{A2a+r}, v{A1a+r} {ROR8L}')
                e.I(f'v_cmp_eq_u32 vcc, -1, v{T0+2}')
                for r in range(4): e.I(f'v_add_f32_dpp v{S+4+r}, v{A1b+r}, v{A2b+r} {ROR8H}')
                e.I(f'v_max3_f32 v{t+1}, v{S+4}, v{S+5}, v{S+6}')
                e.I(f's_cbranch_vccnz {kf_}')
            e.L(kok)
            TS(e, 2)
        if not opt.split:
            probe(hl, hd, 12, 's50', 0)
            xp = e.lab('Lxq')
            e.L(xp)
            probe(pl, pd, 9, 's40', -1)
            e.L(hd)
            if opt.hdelay: e.I(f's_nop {opt.hdelay - 1}')
            if not opt.heads: e.I(f's_branch {xp}')
            e.L(pd)
            e.I('s_mov_b64 exec, -1')
            TS(e, 1)
            if opt.pdiag: e.I('s_add_u32 s94, s94, 1')
            e.L(fr)
            for p in range(6):
                e.I(f'buffer_load_dwordx4 {vr(XF+4*p)}, v2, {WS}, {"s40" if p < 4 else "s54"} offen offset:{(p%4)*1024} sc1')
            FQ = CI + 23
            def vm_loads():
                for q in range(3):
                    e.I(f'buffer_load_dwordx4 {vr(VMF+4*q)}, v2, {WS}, s55 offen offset:{q*1024} sc1')
            vp = opt.vmpos
            bulk0 = [f'buffer_load_dwordx4 {vr(VXF+4*q)}, v2, {WS}, {("s46", "s56", "s64")[q//4]} offen offset:{(q%4)*1024} sc1' for q in (0, 6, 1, 7, 2, 8)]
            nvm = 0
            if vp == 0: vm_loads(); nvm = 3
            for p in range(6):
                x = vr(XF + 4*p)
                e.I(f's_waitcnt vmcnt({5-p+nvm})')
                e.I(f'{MFMA} {vr(S+4)}, {vr(KXF+4*p)}, {x}, {0 if p == 0 else vr(S+4)}')
                e.I(f'{MFMA} {vr(S+8)}, {vr(KXF+24+4*p)}, {x}, {0 if p == 0 else vr(S+8)}')
                e.I(f'{MFMA} {vr(S)}, {x}, {x}, {vr(CI) if p == 0 else vr(S)}')
                if vp == p + 1: vm_loads(); nvm = 3
                if p >= 6 - opt.kx and p >= vp: e.I(bulk0[p - (6 - opt.kx)]); nvm += 1
                r = XF + 4 * p
                if opt.thin:
                    e.I(f'v_max_u32 v{T0+2}, v{r}, v{r+2}' if p == 0 else f'v_max3_u32 v{T0+2}, v{T0+2}, v{r}, v{r+2}')
                elif p == 0:
                    e.I(f'v_max3_u32 v{T0+2}, v{r}, v{r+1}, v{r+2}')
                    e.I(f'v_max_u32 v{T0+2}, v{T0+2}, v{r+3}')
                else:
                    e.I(f'v_max3_u32 v{T0+2}, v{T0+2}, v{r}, v{r+1}')
                    e.I(f'v_max3_u32 v{T0+2}, v{T0+2}, v{r+2}, v{r+3}')
            e.I(f'v_cmp_eq_u32 vcc, -1, v{T0+2}')
            ok = e.lab('Lxo')
            e.I(f's_cbranch_vccz {ok}')
            e.I('s_sub_u32 s31, s31, 1')
            e.I('s_nop 7')
            if opt.dstamp: e.I('s_mov_b32 s89, s90'); e.I('s_addk_i32 s89, 1'); e.I('s_mov_b32 s90, s89'); e.I('s_cmp_eq_u32 s31, 0')
            e.I(f's_cbranch_scc0 {xp}')
            e.I('s_mov_b32 s31, 2')
            e.I('s_branch L_fail')
            e.L(ok)
            TS(e, 2)
            vl, vd = e.lab('Lvp'), e.lab('Lvd')
            vl2 = e.lab('Lv2')
            if opt.kx: e.I(f's_waitcnt vmcnt({opt.kx})'); e.I(f's_branch {vl2}')
            e.L(vl)
            e.I('s_waitcnt vmcnt(0)')
            e.L(vl2)
            check_sent(e, [r_ for r_ in range(VMF, VMF + 12) if not opt.thin or r_ % 4 in ((0, 2) if opt.vx2 else (0, 1))], T0 + 2, T0 + 3)
            e.I(f's_cbranch_vccz {vd}')
            if opt.dstamp: e.I('s_add_u32 s92, s92, 1')
            vm_loads()
            e.I('s_sub_u32 s31, s31, 1')
            e.I(f's_cbranch_scc0 {vl}')
            e.I('s_mov_b32 s31, 3')
            e.I('s_branch L_fail')
            e.L(vd)
            TS(e, 3)
        PW = 2 if opt.pbf and opt.nc == 1 else 4
        if opt.rpos == 0: e.I(f'buffer_store_dwordx{PW} {vr(SENT,PW)}, v13, {WS}, s43 offen sc1')
        sm = [f'{SMF} {vr(DM+4*ct)}, {vr(VMF+4*m)}, {ar(W2+(ct*6+2*m)*4,8)}, v{IDX}' for m in range(3) for ct in range(4)]
        t = T0 + 2
        V = []
        for r in range(4): V.append(f'v_mov_b32_dpp v{S+4+r}, v{S+8+r} row_shr:8 row_mask:0xf bank_mask:0xc')
        V += [f'v_max3_f32 v{t}, v{S}, v{S+1}, v{S+2}', f'v_max3_f32 v{t+1}, v{S+3}, v{S+4}, v{S+5}', f'v_max3_f32 v{t}, v{t}, v{S+6}, v{S+7}', f'v_max_f32 v{t}, v{t}, v{t+1}',
              '*', '*', f'v_max_f32_dpp v{t}, v{t}, v{t} {ROR8}', f'v_mov_b32 v{t+1}, v{t}', '*', '*', f'v_permlane16_swap_b32 v{t}, v{t+1}', f'v_max_f32 v{t}, v{t}, v{t+1}',
              f'v_mov_b32 v{t+1}, v{t}', '*', '*', f'v_permlane32_swap_b32 v{t}, v{t+1}', f'v_max_f32 v{t}, v{t}, v{t+1}', f'v_mul_f32 v{t}, s53, v{t}']
        order = [4, 5, 6, 7, 0, 1, 2, 3]
        for i in order: V.append(f'v_fma_f32 v{S+i}, v{S+i}, s52, v{t}')
        for n_, i in enumerate(order):
            V.append(f'v_exp_f32 v{S+i}, v{S+i}')
        if opt.split:
            V = ['V8', f'v_permlane32_swap_b32 v{MM}, v{MM+2}', f'v_permlane32_swap_b32 v{MM+1}, v{MM+3}', 'V9', '*', '*',
                 f'v_add_f32_dpp v{S}, v{MM+2}, v{MM} {ROR8L}', f'v_add_f32_dpp v{S}, v{MM+1}, v{MM+3} {ROR8H}', f'v_max3_f32 v{t}, v{t+1}, v{S+7}, v{S}', 'V0',
                 '*', '*', f'v_max_f32_dpp v{t}, v{t}, v{t} {ROR8}', f'v_mov_b32 v{t+1}, v{t}', 'V1', '*', '*', f'v_permlane16_swap_b32 v{t}, v{t+1}', f'v_max_f32 v{t}, v{t}, v{t+1}',
                 f'v_mov_b32 v{t+1}, v{t}', 'V2', '*', '*', f'v_permlane32_swap_b32 v{t}, v{t+1}', f'v_max_f32 v{t}, v{t}, v{t+1}', f'v_mul_f32 v{t}, s53, v{t}', 'V3']
            if opt.inl: V = ['V8', 'V9', f'v_add_f32_dpp v{S}, v{MM+2}, v{MM} {ROR8L}', f'v_add_f32_dpp v{S}, v{MM+1}, v{MM+3} {ROR8H}'] + V[8:]
            order = [4, 5, 6, 7, 0]
            for i in order: V.append(f'v_fma_f32 v{S+i}, v{S+i}, s52, v{t}')
            V.append('V4')
            for i in order: V.append(f'v_exp_f32 v{S+i}, v{S+i}')
            if opt.pvmix:
                V += [f'v_cvt_pk_bf16_f32 v{PB}, v{S+4}, v{S+5}', f'v_cvt_pk_bf16_f32 v{PB+1}, v{S+6}, v{S+7}', f'v_mov_b32_dpp v{t}, v{S} {ROR8}',
                      f'v_mov_b32_dpp v{PB+2}, v{PB} {ROR8}', f'v_mov_b32_dpp v{PB+3}, v{PB+1} {ROR8}']
            else: V += [f'v_cvt_pk_bf16_f32 v{PB}, v{S+4}, v{S+5}', f'v_cvt_pk_bf16_f32 v{PB+1}, v{S+6}, v{S+7}', f'v_mov_b32_dpp v{t}, v{S} {ROR8}',
                  f'v_mov_b32_dpp v{PB+2}, v{PB} {ROR8}', f'v_mov_b32_dpp v{PB+3}, v{PB+1} {ROR8}', f'v_cvt_pk_bf16_f32 v{PM}, v{S}, v{t}', f'v_mov_b32 v{PM+1}, v{PM}' if not opt.inl else f'v_cvt_pk_bf16_f32 v{PM+1}, v{S}, v{t}']
        bulk = [f'buffer_load_dwordx4 {vr(VXF+4*q)}, v2, {WS}, {("s46", "s56", "s64")[q//4]} offen offset:{(q%4)*1024} sc1' for q in (0, 6, 1, 7, 2, 8, 3, 9, 4, 10, 5, 11)]
        bulk += [f'buffer_load_dwordx4 {vr(KXF+4*q)}, v2, {WS}, {("s65", "s66", "s67")[q//4]} offen offset:{(q%4)*1024} sc1' for q in range(12)]
        kin = bulk[max(opt.kx, opt.vxe):opt.kin]; kp = bulk[opt.kin:opt.kin + opt.kp]; kc = bulk[opt.kin + opt.kp:]
        if opt.nobulk & 1: kin = []
        if opt.nobulk & 2: kp = []
        if opt.nobulk & 4: kc = []
        lim = [opt.n1]
        def ld():
            if kin and lim[0] > 0: e.I(kin.pop(0)); lim[0] -= 1
        nk0 = len(kin)
        def vcheck():
            vl, vl2, vd = e.lab('Lvp'), e.lab('Lv2'), e.lab('Lvd')
            e.I(f's_waitcnt vmcnt({nk0 - len(kin) + opt.vxe})')
            e.L(vl2)
            check_sent(e, [r_ for r_ in range(VMF, VMF + 12) if not opt.thin or r_ % 4 in ((0,) if opt.thin1 else (0, 2) if opt.vx2 else (0, 1))], T0, T0 + 1)
            e.I(f's_cbranch_vccz {vd}')
            if opt.dstamp: e.I('s_add_u32 s92, s92, 1')
            vm_loads()
            e.I('s_waitcnt vmcnt(0)')
            e.I('s_sub_u32 s31, s31, 1')
            e.I(f's_cbranch_scc0 {vl2}')
            e.I('s_mov_b32 s31, 3')
            e.I('s_branch L_fail')
            e.L(vd)
            TS(e, 3)
            for x_ in sm[:opt.smpre]: e.I(x_)
            return sm[opt.smpre:]
        if opt.split: rest = []
        else:
            for x_ in sm[:opt.smpre]: e.I(x_)
            rest = sm[opt.smpre:]
        cost = 0; prev = None; since = 0
        for x_ in V:
            if x_[0] == 'V':
                if x_ == f'V{opt.vpos}': rest = vcheck(); cost = 0
            elif x_ == '*':
                if prev == '*' or cost == 0 or not rest: ld(); since = 0
                else: e.I(rest.pop(0)); cost = 0
            else:
                e.I(x_); c_ = 2 if 'v_exp' in x_ else 1; cost += c_; since += c_
                if cost >= opt.smgap and rest: e.I(rest.pop(0)); cost = 0
                elif since >= opt.ldgap: ld(); since = 0
            prev = x_
        late_sm = rest if opt.split else []
        if not opt.split:
            for x_ in rest: e.I(x_)
            e.I(f'v_cvt_pk_bf16_f32 v{PB}, v{S+4}, v{S+5}')
            e.I(f'v_cvt_pk_bf16_f32 v{PB+1}, v{S+6}, v{S+7}')
            e.I(f'v_cvt_pk_bf16_f32 v{PM}, v{S}, v{S+1}')
            e.I(f'v_cvt_pk_bf16_f32 v{PM+1}, v{S+2}, v{S+3}')
            e.I(f'v_mov_b32_dpp v{PB+2}, v{PB} {ROR8}')
            e.I(f'v_mov_b32_dpp v{PB+3}, v{PB+1} {ROR8}')
            e.I(f'v_mov_b32 v{t}, v{PM}')
            e.I(f'v_mov_b32 v{t+1}, v{PM+1}')
        for x_ in late_sm: e.I(x_)
        if opt.tpos == 0: TS(e, 4)
        def cvm(ct):
            e.I(f'v_cvt_pk_bf16_f32 v{VWM+2*ct}, v{DM+4*ct}, v{DM+4*ct+1}')
            e.I(f'v_cvt_pk_bf16_f32 v{VWM+2*ct+1}, v{DM+4*ct+2}, v{DM+4*ct+3}')
        lim[0] = opt.n2
        SUM = S + 8 if opt.pvmix else S
        if opt.pvord:
            px = lambda ct: e.I(f'{MFMA} {vr(OUT+4*ct)}, {vr(VWX+4*ct)}, {vr(PB)}, 0')
            pm = lambda ct: e.I(f'{MFMA16} {vr(OUT+4*ct)}, {vr(VWM+2*ct,2)}, {vr(PM,2)}, {vr(OUT+4*ct)}')
            def wr(*xs):
                e.I('s_not_b64 exec, s[68:69]')
                for x_ in xs: e.I(x_)
                e.I('s_mov_b64 exec, -1')
            W_ = lambda ct: f'ds_write_b128 v6, {vr(OUT+4*ct)} offset:{2048*ct}'
            lim[0] = 99
            px(0)
            for k in range(2): e.I(f'v_cvt_pk_bf16_f32 v{PM+k}, v{S}, v{t}')
            e.I(f'{MFMA} {vr(SUM)}, {ar(AONE)}, {vr(PB)}, 0')
            cvm(0)
            px(1)
            cvm(1)
            pm(0)
            cvm(2)
            e.I(f'{MFMA16} {vr(SUM)}, {ar(AHALF,2)}, {vr(PM,2)}, {vr(SUM)}')
            cvm(3)
            pm(1)
            ld()
            px(2)
            wr(W_(0))
            pm(2)
            e.I(f'v_rcp_f32 v{t}, v{SUM}')
            ld()
            px(3)
            wr(W_(1))
            pm(3)
            e.I('s_not_b64 exec, s[68:69]')
            e.I(f'ds_write_b32 v10, v{t}')
            e.I(W_(2))
            e.I('s_mov_b64 exec, -1')
            for _ in range(opt.pvl): ld()
            wr(W_(3))
        else:
            e.I(f'{MFMA} {vr(OUT)}, {vr(VWX)}, {vr(PB)}, 0')
            if opt.inl:
                if opt.pvmix:
                    for k in range(2): e.I(f'v_cvt_pk_bf16_f32 v{PM+k}, v{S}, v{t}')
            elif opt.split: e.I(f'v_permlane32_swap_b32 v{PM}, v{PM+1}')
            else:
                e.I(f'v_permlane32_swap_b32 v{t}, v{PM}')
                e.I(f'v_permlane32_swap_b32 v{t+1}, v{PM+1}')
            e.I(f'{MFMA} {vr(SUM)}, {ar(AONE)}, {vr(PB)}, 0')
            cvm(0)
            if opt.n2 > 7: ld()
            e.I(f'{MFMA} {vr(OUT+4)}, {vr(VWX+4)}, {vr(PB)}, 0')
            cvm(1)
            if opt.n2 > 6: ld()
            e.I(f'{MFMA} {vr(OUT+8)}, {vr(VWX+8)}, {vr(PB)}, 0')
            cvm(2)
            if opt.n2 > 5: ld()
            e.I(f'{MFMA} {vr(OUT+12)}, {vr(VWX+12)}, {vr(PB)}, 0')
            cvm(3)
            if opt.n2 > 4: ld()
            e.I(f'{MFMA16} {vr(OUT)}, {vr(VWM,2)}, {vr(PM,2)}, {vr(OUT)}')
            ld()
            e.I(f'{MFMA16} {vr(SUM)}, {ar(AHALF,2)}, {vr(PM,2)}, {vr(SUM)}')
            ld()
            for ct in range(1, 4):
                e.I(f'{MFMA16} {vr(OUT+4*ct)}, {vr(VWM+2*ct,2)}, {vr(PM,2)}, {vr(OUT+4*ct)}')
                if ct < 3: ld()
            lim[0] = len(kin) - opt.n3
            while lim[0] > 0: ld()
            if opt.tpos == 1: TS(e, 4)
            e.I('s_not_b64 exec, s[68:69]')
            e.I(f'ds_write_b128 v6, {vr(OUT)}')
            e.I(f'v_rcp_f32 v{t}, v{SUM}')
            e.I(f'ds_write_b128 v6, {vr(OUT+4)} offset:2048')
            e.I(f'ds_write_b32 v10, v{t}')
            e.I(f'ds_write_b128 v6, {vr(OUT+8)} offset:4096')
            e.I(f'ds_write_b128 v6, {vr(OUT+12)} offset:6144')
            e.I('s_mov_b64 exec, -1')
        lim[0] = 99
        while kin: ld()
        e.I('s_waitcnt lgkmcnt(0)')
        if opt.tpos == 2: TS(e, 4)
        e.I('s_barrier')
        if opt.tpos == 3: TS(e, 4)
        if opt.nod:
            F = T0 + 4
            e.I(f'ds_read_b128 {vr(F)}, v11')
            e.I(f'ds_read2_b64 {vr(S)}, v7 offset0:0 offset1:64')
            e.I(f'ds_read2_b64 {vr(S+4)}, v7 offset0:128 offset1:192')
            e.I('s_add_u32 s48, s42, 8192')
            if opt.nc > 1 and opt.sa < 0:
                for m, r_ in enumerate((PAD, PAD + 1, PAD + 2, PAD + 3, 4, 5, 14)): e.I(f'buffer_load_dword v{PA+m}, v{r_}, {WS}, s41 offen sc1')
            e.I('s_waitcnt lgkmcnt(1)')
            e.I(f'v_pk_mul_f32 {vr(S,2)}, {vr(S,2)}, {vr(F,2)} op_sel_hi:[1,0]')
            e.I(f'v_pk_fma_f32 {vr(S,2)}, {vr(S+2,2)}, {vr(F,2)}, {vr(S,2)} op_sel:[0,1,0]')
            e.I('s_waitcnt lgkmcnt(0)')
            e.I(f'v_pk_fma_f32 {vr(S,2)}, {vr(S+4,2)}, {vr(F+2,2)}, {vr(S,2)} op_sel_hi:[1,0,1]')
            e.I(f'v_pk_fma_f32 {vr(S,2)}, {vr(S+6,2)}, {vr(F+2,2)}, {vr(S,2)} op_sel:[0,1,0]')
            e.I(f'v_cvt_pk_bf16_f32 v{S+4}, v{S}, v{S+1}')
            e.I(f'buffer_store_dword v{S+4}, v15, {WS}, s42 offen sc1')
            e.I(f'buffer_store_dword v{S+4}, v15, {WS}, s48 offen sc1')
            if opt.nc > 1:
                e.I(f'buffer_store_dword v{S+4}, v15, {WS}, s42 offen offset:256 sc1')
                e.I(f'buffer_store_dword v{S+4}, v15, {WS}, s48 offen offset:256 sc1')
        else:
            e.I(f'ds_read_b64 {vr(t,2)}, v11')
            e.I(f'ds_read_b128 {vr(S)}, v7')
            e.I(f'ds_read_b128 {vr(S+4)}, v7 offset:512')
            e.I('s_waitcnt lgkmcnt(1)')
            for k in range(4): e.I(f'v_mul_f32 v{S+k}, v{S+k}, v{t}')
            e.I('s_waitcnt lgkmcnt(0)')
            for k in range(4): e.I(f'v_fmac_f32 v{S+k}, v{S+4+k}, v{t+1}')
            if opt.remap == 2:
                e.I(f'v_permlane32_swap_b32 v{S}, v{S+2}')
                e.I(f'v_permlane32_swap_b32 v{S+1}, v{S+3}')
                e.I(f'v_add_f32 v{S}, v{S}, v{S+2}')
                e.I(f'v_add_f32 v{S+1}, v{S+1}, v{S+3}')
                e.I(f'v_cvt_pk_bf16_f32 v{S+4}, v{S}, v{S+1}')
                e.I(f'v_cvt_pk_bf16_f32 v{S+5}, v{S}, v{S+1}')
                e.I(f'v_permlane32_swap_b32 v{S+4}, v{S+5}')
                e.I(f'buffer_store_dwordx2 {vr(S+4,2)}, v13, {WS}, s42 offen sc1')
            else:
                for k in range(4): e.I(f'v_add_f32_dpp v{S+k}, v{S+k}, v{S+k} {ROR8}')
                if opt.pbf:
                    e.I(f'v_cvt_pk_bf16_f32 v{S+4}, v{S}, v{S+1}')
                    e.I(f'v_cvt_pk_bf16_f32 v{S+5}, v{S+2}, v{S+3}')
                    e.I(f'buffer_store_dwordx2 {vr(S+4,2)}, v13, {WS}, s42 offen sc1')
                else:
                    e.I(f'buffer_store_dwordx4 {vr(S)}, v13, {WS}, s42 offen sc1')
        TS(e, 5)
        if opt.rpos == 2: e.I(f'buffer_store_dwordx{PW} {vr(SENT,PW)}, v13, {WS}, s43 offen sc1')
        if not opt.nod:
            e.I(f'v_mov_b32 v{PA}, 0'); e.I(f'v_mov_b32 v{PA+1}, 0')
            if opt.remap == 2:
                e.I('s_mov_b32 vcc_lo, 0'); e.I('s_mov_b32 vcc_hi, -1')
                for k in range(2): e.I(f'v_cndmask_b32 v{S+2+k}, 0, v{S+k}, vcc')
                for k in range(2): e.I(f'v_cndmask_b32_e64 v{S+k}, v{S+k}, 0, vcc')
            else:
                for k in range(4): e.I(f'v_cndmask_b32 v{S+k}, v{S+k}, 0, s[68:69]')
        if opt.ad:
            e.I(f's_waitcnt vmcnt({1 + (opt.rpos == 2) + opt.nod})')
        elif opt.nc > 1:
            e.I(f's_waitcnt vmcnt({5 + (7 if opt.sa < 0 else 0)})')
            for gi in range(max(0, opt.sa)): vw_grp(gi)
        elif opt.pmf:
            e.I(f's_waitcnt vmcnt({1 + (opt.rpos == 2) + opt.nod})')
            for gi in range(opt.pmf): vw_grp(gi)
        if opt.pdelay: e.I(f's_sleep {opt.pdelay}')
        PADS = [PAD, PAD + 1, PAD + 2, PAD + 3, 4, 5, 14]
        def shot(PA=PA, off=0, seed=True):
            if opt.nod:
                for m in range(7): e.I(f'buffer_load_dword v{PA+m}, v{PADS[m]}, {WS}, s41 offen offset:{off} sc1')
                if seed:
                    for k in range(2): e.I(f'v_mov_b32 v{T0+4+k}, v{S+k}')
                return
            e.I('s_mov_b32 exec_lo, 0' if opt.remap == 2 else 's_mov_b64 exec, s[68:69]')
            e.I(f'buffer_load_dwordx2 {vr(PA,2)}, v{PAD}, {WS}, s41 offen sc1')
            e.I('s_mov_b64 exec, -1')
            for m in range(1, 4): e.I(f'buffer_load_dwordx2 {vr(PA+2*m,2)}, v{PAD+m}, {WS}, s41 offen sc1')
            for k in range(4): e.I(f'v_mov_b32 v{T0+8+k}, v{S+k}')
        ql, qd, qf = e.lab('Lpp'), e.lab('Lpd'), e.lab('Lpf')
        def acc(behind, PA=PA):
            if opt.nod:
                for m in range(7):
                    if m in (0, 3, 5, 6): e.I(f's_waitcnt vmcnt({(4, 0, 0, 2, 0, 1, 0)[m] + behind})')
                    if m == 0: e.I(f'v_max3_u32 v{T0}, v{PA}, v{PA+1}, v{PA+2}')
                    if m == 3: e.I(f'v_max3_u32 v{T0}, v{T0}, v{PA+3}, v{PA+4}')
                    if m == 6:
                        e.I(f'v_max3_u32 v{T0}, v{T0}, v{PA+5}, v{PA+6}')
                        e.I(f'v_cmp_eq_u32 vcc, -1, v{T0}')
                    for k in range(2): e.I(f'v_dot2c_f32_bf16 v{T0+4+k}, {("s70", "s71")[k]}, v{PA+m}')
                e.I(f's_cbranch_vccz {qd}')
                return
            for m in range(4):
                e.I(f's_waitcnt vmcnt({3-m+behind})')
                if m == 0: e.I(f'v_max_u32 v{T0}, v{PA}, v{PA+1}')
                else: e.I(f'v_max3_u32 v{T0}, v{T0}, v{PA+2*m}, v{PA+2*m+1}')
                if m == 3: e.I(f'v_cmp_eq_u32 vcc, -1, v{T0}')
                for k in range(4): e.I(f'v_dot2c_f32_bf16 v{T0+8+k}, {("s70", "s71")[k&1]}, v{PA+2*m+(k>>1)}')
            e.I(f's_cbranch_vccz {qd}')
        if opt.nc > 1:
            G = opt.pmf + opt.pmf2
            if opt.sa >= 0: shot()
            else:
                for k in range(2): e.I(f'v_mov_b32 v{T0+4+k}, v{S+k}')
            blind = opt.sb <= G
            for gi in range(max(0, opt.sa), min(G, opt.sb)): vw_grp(gi)
            if blind: shot(PA + 8, 256, False)
            for gi in range(min(G, opt.sb), G): vw_grp(gi)
            acc(7 if blind else 0)
            if opt.dstamp: e.I('s_add_u32 s92, s92, 1')
            if blind:
                for k in range(2): e.I(f'v_mov_b32 v{T0+4+k}, v{S+k}')
                e.I(f's_branch {qf}')
            e.L(ql)
            if opt.dstamp: e.I('s_add_u32 s93, s93, 1')
            shot(PA + 8, 256)
            e.L(qf)
            acc(0, PA + 8)
        elif opt.ad:
            for gi in range(opt.pmf + opt.pmf2):
                if opt.adlo <= gi <= opt.adhi:
                    sk_ = e.lab('Lsh')
                    e.I(f's_cmp_lg_u32 s72, {gi}')
                    e.I(f's_cbranch_scc1 {sk_}')
                    shot()
                    e.L(sk_)
                vw_grp(gi)
        else: shot()
        if opt.t9 == 10: e.I('s_waitcnt vmcnt(7)'); TS(e, 9)
        if opt.t9 == 11: e.I('s_waitcnt vmcnt(6)'); TS(e, 9)
        if opt.t9 == 12: e.I('s_waitcnt vmcnt(0)'); TS(e, 9)
        if opt.t9 == 13: TS(e, 9)
        if opt.rpos == 3: e.I(f'buffer_store_dwordx{PW} {vr(SENT,PW)}, v13, {WS}, s43 offen sc1')
        for gi in range(opt.pmf, opt.pmf + opt.pmf2):
            if opt.nc == 1 and not opt.ad: vw_grp(gi)
        if opt.nc > 1: pass
        elif opt.rpos == 3: acc(1)
        elif kp:
            e.I(f's_nop {opt.kgap}') if opt.kgap < 16 else e.I(f's_sleep {opt.kgap // 16}')
            for x_ in kp: e.I(x_)
            acc(len(kp))
        else:
            e.I(f's_branch {qf}')
        if opt.nc == 1 and opt.pr2:
            e.L(qf)
            acc(0)
            la, lb = e.lab('Lpa'), e.lab('Lpb')
            shot(PA, 0, False)
            e.L(ql)
            for cur, nx_, ok_ in ((PA, PA + 8, la), (PA + 8, PA, lb)):
                if opt.dstamp: e.I('s_add_u32 s93, s93, 1')
                shot(nx_, 0, False)
                e.I('s_waitcnt vmcnt(7)')
                e.I(f'v_max3_u32 v{T0}, v{cur}, v{cur+1}, v{cur+2}')
                e.I(f'v_max3_u32 v{T0}, v{T0}, v{cur+3}, v{cur+4}')
                e.I(f'v_max3_u32 v{T0}, v{T0}, v{cur+5}, v{cur+6}')
                e.I(f'v_cmp_eq_u32 vcc, -1, v{T0}')
                e.I(f's_cbranch_vccz {ok_}')
            e.I('s_sub_u32 s31, s31, 1')
            e.I(f's_cbranch_scc0 {ql}')
            e.I('s_mov_b32 s31, 4')
            e.I('s_branch L_fail')
            for cur, ok_ in ((PA, la), (PA + 8, lb)):
                e.L(ok_)
                for k in range(2): e.I(f'v_mov_b32 v{T0+4+k}, v{S+k}')
                for m in range(7):
                    for k in range(2): e.I(f'v_dot2c_f32_bf16 v{T0+4+k}, {("s70", "s71")[k]}, v{cur+m}')
                e.I(f's_branch {qd}')
        elif opt.nc == 1:
            e.L(ql)
            if opt.ad: e.I('s_mov_b32 s73, -1')
            if opt.dstamp: e.I('s_add_u32 s93, s93, 1')
            if opt.pfar == 1: e.I('s_xor_b32 s41, s41, 8192')
            if opt.pfar == 2: e.I('s_mov_b32 s41, s47')
            shot()
            e.L(qf)
            acc(0)
        e.I('s_sub_u32 s31, s31, 1')
        e.I(f's_cbranch_scc0 {ql}')
        e.I('s_mov_b32 s31, 4')
        e.I('s_branch L_fail')
        e.L(qd)
        TS(e, 6)
        if opt.nod: pass
        elif opt.remap == 2:
            e.I('s_nop 1')
            e.I(f'v_permlane32_swap_b32 v{T0+8}, v{T0+10}')
            e.I(f'v_permlane32_swap_b32 v{T0+9}, v{T0+11}')
            for k in range(2): e.I(f'v_add_f32 v{T0+4+k}, v{T0+8+k}, v{T0+10+k}')
        else:
            e.I('s_nop 1')
            for k in range(2): e.I(f'v_add_f32_dpp v{T0+4+k}, v{T0+8+k}, v{T0+8+k} row_ror:8 row_mask:0xf bank_mask:0x3')
            for k in range(2): e.I(f'v_add_f32_dpp v{T0+4+k}, v{T0+10+k}, v{T0+10+k} row_ror:8 row_mask:0xf bank_mask:0xc ; merge')
        e.I(f'v_cvt_pk_bf16_f32 v{T0+4}, v{T0+4}, v{T0+5}')
        e.I(f'buffer_store_dword v{T0+4}, v8, {WS}, s44 offen{fl}')
        TS(e, 7)
        if not opt.mrl: e.I(f'buffer_store_dword v{SENT}, v8, {WS}, s45 offen{fl}')
        if opt.mbar: e.I('s_barrier')
        if opt.rpos == 4: e.I(f'buffer_store_dwordx{PW} {vr(SENT,PW)}, v13, {WS}, s43 offen sc1')
        nvx = max(0, 12 - opt.kin - opt.kp)
        for x_ in kc[:nvx]: e.I(x_)
        assert opt.kin >= opt.pmf + opt.pmf2
        if kp: e.I('s_waitcnt vmcnt(2)')
        if opt.split and opt.xg1 + opt.xg2:
            for x_ in kc[nvx:]: e.I(x_)
        elif opt.kxl == 2:
            for x_ in kc[nvx:]: e.I(x_)
            if opt.mrl: e.I(f'buffer_store_dword v{SENT}, v8, {WS}, s45 offen{fl}')
            vw_x(None, (), 0, opt.pmf + opt.pmf2)
        elif opt.kxl:
            vw_x(None, (), 0, opt.pmf + opt.pmf2)
            for x_ in kc[nvx:]: e.I(x_)
        else: vw_x(None, kc[nvx:], nvx, opt.pmf + opt.pmf2)
        if opt.rpos == 5: e.I(f'buffer_store_dwordx{PW} {vr(SENT,PW)}, v13, {WS}, s43 offen sc1')
        if opt.ad:
            e.I('s_add_u32 s73, s73, 1')
            e.I('s_cmp_eq_u32 s73, 0')
            e.I(f's_cselect_b32 s38, {opt.adup}, 0')
            e.I('s_add_u32 s72, s72, s38')
            e.I(f's_min_u32 s72, s72, {opt.adhi}')
            e.I(f's_cmp_ge_u32 s73, {opt.adn}')
            e.I('s_cselect_b32 s73, 0, s73')
            e.I('s_subb_u32 s72, s72, 0')
            e.I(f's_max_u32 s72, s72, {opt.adlo}')
        TS(e, 8)
        TSflush(e, 's30', 244, 245)
        if opt.dstamp: e.I('s_lshl_b32 s98, s25, 8'); e.I('s_add_u32 s98, s98, s30')
        DSTAMP(e, 2, 's_cmp_eq_u32 s98, 9216')
        if opt.dstamp: e.I('s_lshl_b32 s98, s25, 8'); e.I('s_add_u32 s98, s98, s30')
        DSTAMP(e, 3, 's_cmp_eq_u32 s98, 9218')
        for idx_, st_ in ((6, 2), (7, 62)):
            for o_, off_ in (('clk', 0), ('rt', 2)):
                if opt.dstamp: e.I('s_lshl_b32 s98, s25, 8'); e.I('s_add_u32 s98, s98, s30'); e.I('s_lshl_b32 s99, s20, 16'); e.I('s_add_u32 s98, s98, s99')
                DSTAMP(e, idx_ + off_, f's_cmp_eq_u32 s98, {20*256 + st_}', o_)
        if opt.dstamp: e.I('s_lshl_b32 s98, s25, 8'); e.I('s_add_u32 s98, s98, s30')
        DSTAMP(e, 4, 's_cmp_eq_u32 s98, 9278')
        e.I('s_add_u32 s30, s30, 1')
        e.I('s_cmp_lt_u32 s30, 63')
        e.I(f's_cbranch_scc1 {top}')
        if not slow: e.I('s_branch L_swend')
    e.L('L_swend')
    if opt.dstamp == 1:
        e.I('s_mov_b64 exec, 1')
        for k in range(4):
            e.I(f'v_mov_b32 v238, {48 + 4*k}'); e.I(f'v_mov_b32 v239, s{90+k}')
            e.I('global_atomic_add v238, v239, s[74:75] sc1')
            e.I('s_nop 4')
        e.I('s_mov_b64 exec, -1')
    for sg in range(63 - opt.s62, 64):
        e.I('s_lshl_b32 s38, s20, 6')
        e.I('s_lshl_b32 s39, s22, 2')
        e.I('s_add_u32 s38, s38, s39')
        e.I(f's_add_u32 s38, s38, {FLGOX + sg*512}')
        e.I(f's_add_u32 s46, s62, {OX + (sg % RD)*SEG_QX}')
        e.I('s_add_u32 s56, s46, 4096')
        e.I('s_add_u32 s64, s46, 8192')
        e.I('s_lshl_b32 s39, s22, 10')
        e.I('v_add_u32 v6, s39, v2')
        e.I('s_lshl_b32 s39, s22, 12')
        e.I('v_add_u32 v7, s39, v2')
        e.I('s_lshr_b32 s40, s24, 1')
        e.I('s_lshl_b32 s40, s40, 2')
        e.I('s_add_u32 s40, s40, s22')
        e.I('s_lshl_b32 s40, s40, 10')
        e.I('s_and_b32 s41, s24, 1')
        e.I('s_lshl_b32 s41, s41, 3')
        e.I('s_add_u32 s40, s40, s41')
        e.I('s_mul_i32 s41, s20, 40960')
        e.I('s_add_u32 s40, s40, s41')
        e.I(f's_add_u32 s40, s40, {PX + sg*SEG_PX}')
        e.I('s_add_u32 s41, s40, 20480')
        e.I('s_mul_i32 s43, s20, 5')
        e.I('s_lshr_b32 s44, s24, 1')
        e.I('s_add_u32 s43, s43, s44')
        e.I('s_lshl_b32 s43, s43, 7')
        e.I(f's_add_u32 s43, s43, {HINT2 + 4*(sg - 62)}')
        e.I('v_mov_b32 v3, 0')
        e.I(f'v_mov_b32 v{ONE}, 1')
        if sg == 63 - opt.s62: e.I('s_waitcnt vmcnt(0)')
        TS(e, 0)
        wait_flags(e, 3, 's38', 1, T0, 5, sleep=opt.esleep)
        TS(e, 1)
        order = (0, 6, 1, 7, 2, 8, 3, 9, 4, 10, 5, 11)
        for q in order: e.I(f'buffer_load_dwordx4 {vr(VXF+4*q)}, v2, {WS}, {("s46", "s56", "s64")[q//4]} offen offset:{(q%4)*1024} sc1')
        for n_, q in enumerate(order):
            qt, kk = q // 6, q % 6
            e.I(f's_waitcnt vmcnt({11 - n_})')
            for ct in range(4):
                d = vr(DW + (qt*4+ct)*4)
                e.I(f'{MFMA} {d}, {ar((ct*6+kk)*4)}, {vr(VXF+4*q)}, {0 if kk == 0 else d}')
        TS(e, 2)
        if sg == 63 and opt.s62: e.I('s_barrier')
        for k in range(8): e.I(f'ds_write_b128 v6, {vr(DW+4*k)} offset:{k*4096}')
        e.I('s_waitcnt lgkmcnt(0)')
        e.I('s_barrier')
        for qt in range(2):
            for hh in range(4): e.I(f'ds_read_b128 {vr(KXF+(qt*4+hh)*4)}, v7 offset:{qt*16384 + hh*1024}')
        for qt in range(2):
            r = KXF + qt*16
            e.I(f's_waitcnt lgkmcnt({4 - 4*qt})')
            for k in range(4):
                e.I(f'v_add_f32 v{r+k}, v{r+k}, v{r+4+k}')
                e.I(f'v_add_f32 v{r+8+k}, v{r+8+k}, v{r+12+k}')
            for k in range(4): e.I(f'v_add_f32 v{r+k}, v{r+k}, v{r+8+k}')
            e.I(f'v_cvt_pk_bf16_f32 v{r+4}, v{r}, v{r+1}')
            e.I(f'v_cvt_pk_bf16_f32 v{r+5}, v{r+2}, v{r+3}')
            e.I(f'buffer_store_dwordx2 {vr(r+4,2)}, v2, {WS}, {("s40", "s41")[qt]} offen sc1')
        TS(e, 3)
        e.I('s_and_b32 s38, s25, 7')
        e.I(f's_cmp_eq_u32 s38, {opt.hwv}')
        e.I('s_cselect_b64 exec, 1, 0')
        e.I(f'buffer_store_dword v{ONE}, v3, {WS}, s43 offen sc1')
        e.I('s_mov_b64 exec, -1')
    TSflush(e, '63', 244, 245)
    e.I('s_endpgm')

def role_xw(e):
    OF = 16
    D = 112
    T0 = 160; ONE = 252
    e.I('s_sub_u32 s24, s21, 22')
    srd(e, 8, 66, 6144 * 1280)
    e.I(f's_mul_i32 s28, s20, {768*1280}')
    e.I('s_lshl_b32 s29, s24, 8')
    e.I('s_add_u32 s28, s28, s29')
    e.I('s_add_u32 s29, s28, 128')
    e.I(f'v_lshlrev_b32 v{ONE+1}, 2, v1')
    e.I('s_lshl_b32 s38, s20, 8')
    e.I(f's_add_u32 s38, s38, {FLGQ}')
    if opt.xlate & 1: wait_first(e, T0)
    def ring_touch():
        jobs = []
        for sl in range(RD):
            if sl >= 2: jobs += [(b_ + sl * SEG_QX, 12288, 96) for b_ in (KX, VX, QX)] + [(XP + sl * SEG_XP, 6144, 48), (VM + sl * SEG_VM, 3072, 24)]
            if sl >= 2: jobs += [(OX + (sl - 2) * SEG_QX, 12288, 96)]
        jobs += [(OX + sl * SEG_QX, 12288, 96) for sl in (6, 7)]
        e.I('s_lshl_b32 s40, s20, 2')
        e.I('s_add_u32 s40, s40, s22')
        touch_jobs(e, jobs, 's24', 5, 's40', 16)
    if opt.xlate & 1: ring_touch()
    pass
    load_weights(e, [('s[8:11]', 's28', 0, 768), ('s[8:11]', 's29', 96, 768)], 1280, 256, True, 3, 4)
    e.I(f'v_lshlrev_b32 v{ONE+1}, 2, v1')
    e.I('s_lshl_b32 s38, s20, 2')
    e.I('s_add_u32 s38, s38, s22')
    e.I('s_lshl_b32 s39, s38, 2')
    e.I('v_lshlrev_b32 v3, 7, v1')
    e.I('v_add_u32 v3, s39, v3')
    e.I(f'v_mov_b32 v{ONE}, 1')
    e.I('s_mul_i32 s62, s22, 12288')
    e.I('s_mul_i32 s63, s38, 12288')
    e.I(f's_add_u32 s63, s63, {OX}')
    e.I('s_mul_i32 s64, s20, 40960')
    e.I('s_lshl_b32 s65, s24, 2')
    e.I('s_add_u32 s65, s65, s22')
    e.I('s_lshl_b32 s65, s65, 10')
    e.I('s_add_u32 s64, s64, s65')
    e.I(f's_add_u32 s64, s64, {PX}')
    e.I('s_lshl_b32 s66, s24, 8')
    e.I(f's_add_u32 s66, s66, {FLGPX}')
    def pxflag():
        e.I('s_mov_b64 exec, 3')
        e.I(f'buffer_store_dword v{ONE}, v3, {WS}, s54 offen sc1')
        e.I('s_mov_b64 exec, s[60:61]')
        e.I(f'buffer_store_dword v{ONE}, v6, {WS}, s53 offen sc1')
        e.I('s_mov_b64 exec, -1')
    if not opt.xlate & 1: ring_touch()
    wait_reg(e, T0)
    top, nof, late, nxt_, last = e.lab('Lxt'), e.lab('Lxn'), e.lab('Lxl'), e.lab('Lxx'), e.lab('Lxe')
    e.I('s_lshl_b32 s67, s20, 6')
    e.I('s_lshl_b32 s38, s22, 2')
    e.I('s_add_u32 s67, s67, s38')
    e.I(f's_add_u32 s67, s67, {FLGOX}')
    e.I('s_lshl_b32 s38, s20, 5')
    e.I('s_add_u32 s38, s38, s24')
    e.I('s_lshl_b32 s38, s38, 2')
    e.I('v_mov_b32 v6, s38')
    e.I('v_mov_b32 v4, 0')
    e.I('v_mov_b32 v5, v2')
    def dma(sn):
        e.I(f's_and_b32 s55, {sn}, {RD-1}')
        e.I(f's_mul_i32 s55, s55, {SEG_QX}')
        e.I('s_add_u32 s55, s55, s63')
        e.I(f's_and_b32 s56, {sn}, 1')
        e.I('s_mul_i32 s56, s56, 49152')
        e.I('s_add_u32 s56, s56, s62')
        for m in range(12):
            e.I(f's_add_u32 m0, s56, {m*1024}')
            e.I(f'buffer_load_dwordx4 v2, {WS}, s55 offen sc1 lds')
            if m < 11: e.I('s_add_u32 s55, s55, 1024')
    e.I('s_mov_b32 s30, 0')
    wait_flags(e, 4, 's67', 1, T0, 5, sleep=opt.xsleep)
    dma('s30')
    e.L(top)
    TS(e, 0)
    e.I('s_add_u32 s58, s30, 1')
    e.I(f's_min_u32 s57, s58, {62 - opt.s62}')
    e.I('s_lshl_b32 s57, s57, 9')
    e.I('s_add_u32 s57, s57, s67')
    e.I('s_waitcnt vmcnt(0)')
    e.I(f'buffer_load_dword v{T0}, v4, {WS}, s57 offen sc1')

    e.I('s_cmp_eq_u32 s30, 0')
    e.I(f's_cbranch_scc1 {nof}')
    e.I('s_cmp_lg_u32 s59, 0')
    e.I(f's_cbranch_scc1 {nof}')
    pxflag()
    nof2 = e.lab('Lxm')
    e.I(f's_branch {nof2}')
    e.L(nof)
    for _ in range(2): e.I(f'buffer_load_dword v{T0+1}, v4, {WS}, s57 offen sc1')
    e.L(nof2)
    e.I('s_barrier')
    TS(e, 1)
    e.I(f's_mul_i32 s50, s30, {SEG_PX}')
    e.I('s_add_u32 s50, s50, s64')
    e.I('s_add_u32 s51, s50, 20480')
    e.I('s_mul_i32 s54, s30, 1280')
    e.I('s_add_u32 s54, s54, s66')
    e.I('s_and_b32 s53, s30, 3')
    e.I('s_lshl_b32 s53, s53, 10')
    e.I(f's_add_u32 s53, s53, {HINT}')
    e.I(f's_cmp_ge_u32 s30, {opt.cwarm}')
    e.I('s_cselect_b32 s60, 1, 0')
    e.I('s_cmp_eq_u32 s22, 0')
    e.I('s_cselect_b32 s60, s60, 0')
    e.I('s_mov_b32 s61, 0')
    TS(e, 2)
    PF = 6
    def rd(kk):
        hl, p = kk // 6, kk % 6
        for qt in range(2):
            e.I(f'ds_read_b128 {vr(OF + ((2*kk+qt) % 24)*4)}, v5 offset:{hl*12288 + (qt*6+p)*1024}')
    for kk in range(PF): rd(kk)
    for kk in range(24):
        nxt = min(24, kk + PF) - (kk + 1)
        e.I(f's_waitcnt lgkmcnt({2*nxt})')
        for qt in range(2):
            for b in range(2):
                d = vr(D + 4*(qt*2+b))
                e.I(f'{MFMA} {d}, {ar(96*b+4*kk)}, {vr(OF + ((2*kk+qt) % 24)*4)}, {0 if kk == 0 else d}')
        if kk + PF < 24: rd(kk + PF)
        if kk == 4:
            e.I('s_waitcnt vmcnt(2)')
            e.I(f'v_readfirstlane_b32 s59, v{T0}')
            e.I(f's_cmp_eq_u32 s30, {62 - opt.s62}')
            e.I('s_cselect_b32 s59, 0, s59')
            e.I('s_cmp_eq_u32 s59, 0')
            e.I(f's_cbranch_scc1 {late}')
            dma('s58')
            e.L(late)
        if kk == 16: e.I(f'buffer_load_dword v{T0}, v4, {WS}, s57 offen sc1')
    sc = e.lab('Lxs')
    e.I('s_cmp_lg_u32 s59, 0')
    e.I(f's_cbranch_scc1 {sc}')
    e.I(f's_cmp_eq_u32 s30, {62 - opt.s62}')
    e.I(f's_cbranch_scc1 {sc}')
    e.I('s_waitcnt vmcnt(0)')
    e.I(f'v_readfirstlane_b32 s59, v{T0}')
    e.I('s_cmp_eq_u32 s59, 0')
    e.I(f's_cbranch_scc1 {sc}')
    dma('s58')
    e.L(sc)
    for qt, so in enumerate(('s50', 's51')):
        for k in range(4): e.I(f'v_cvt_pk_bf16_f32 v{D+16+4*qt+k}, v{D+8*qt+2*k}, v{D+8*qt+2*k+1}')
        e.I(f'buffer_store_dwordx4 {vr(D+16+4*qt)}, v2, {WS}, {so} offen sc1')
    e.I('v_xor_b32 v5, 49152, v5')
    TS(e, 3)
    TSflush(e, 's30')
    e.I(f's_cmp_eq_u32 s30, {62 - opt.s62}')
    e.I(f's_cbranch_scc1 {last}')
    e.I('s_cmp_lg_u32 s59, 0')
    e.I('s_mov_b32 s59, 0')
    e.I(f's_cbranch_scc1 {nxt_}')
    e.I(f'buffer_load_dword v{T0}, v4, {WS}, s57 offen sc1')
    e.I('s_waitcnt vmcnt(0)')
    e.I(f'v_readfirstlane_b32 s38, v{T0}')
    e.I('s_cmp_lg_u32 s38, 0')
    sl2 = e.lab('Lxq')
    e.I(f's_cbranch_scc1 {sl2}')
    pxflag()
    e.I('s_mov_b32 s59, 1')
    wait_flags(e, 4, 's57', 1, T0, 5, sleep=opt.xsleep)
    e.L(sl2)
    dma('s58')
    e.L(nxt_)
    e.I('s_mov_b32 s30, s58')
    e.I(f's_branch {top}')
    e.L(last)
    e.I('s_waitcnt vmcnt(0)')
    pxflag()
    if opt.wb & 1:
        e.I('s_cmp_lg_u32 s21, 22'); e.I('s_cbranch_scc1 L_end'); e.I('s_cmp_lg_u32 s22, 0'); e.I('s_cbranch_scc1 L_end')
        e.I('buffer_wbl2 sc1'); e.I('s_waitcnt vmcnt(0)')
    e.I('s_endpgm')

def role_att(e):
    fl = ''
    KF, QF, VF = 0, 48, 96
    XPF = 16
    SA, SB, PA_, PB_ = 40, 48, 60, 64
    DO, OB = 72, 136
    T0 = 226
    C0, C1 = 232, 236
    ONE = 252
    e.I('s_sub_u32 s25, s21, 27')
    e.I('s_lshl_b32 s26, s20, 2')
    e.I('s_add_u32 s26, s26, s22')
    e.I(f's_mov_b32 s52, {SC_L2E:#x}'); e.I(f's_mov_b32 s53, {SC_L2E | 0x80000000:#x}')
    e.I(f'v_lshlrev_b32 v{ONE+1}, 2, v1')
    e.I('s_lshl_b32 s38, s22, 2')
    e.I(f'v_mov_b32 v{ONE+2}, s38')
    e.I(f'v_mov_b32 v{ONE}, 1')
    lane_ig(e, 14, 15)
    e.I(f'v_mov_b32 v3, {NEG_BIG:#x}')
    e.I('v_cmp_gt_u32 vcc, 32, v1')
    e.I(f'v_cndmask_b32 v{C0}, 0, v3, vcc')
    for k in range(1, 4): e.I(f'v_mov_b32 v{C0+k}, v{C0}')
    e.I('v_lshlrev_b32 v5, 2, v15')
    for r in range(4):
        e.I(f'v_add_u32 v6, {r}, v5')
        e.I('v_cmp_gt_u32 vcc, v6, v14')
        e.I(f'v_cndmask_b32 v{C1+r}, 0, v3, vcc')
    e.I('s_mul_i32 s58, s26, 6144')
    e.I('s_lshl_b32 s59, s22, 14')
    e.I('v_and_b32 v4, 3, v1')
    e.I('v_lshlrev_b32 v4, 8, v4')
    e.I('v_bfe_u32 v5, v1, 2, 3')
    e.I('v_lshl_add_u32 v5, v5, 4, v4')
    e.I('v_add_u32 v5, s59, v5')
    e.I('v_lshrrev_b32 v6, 2, v1')
    e.I('v_lshl_add_u32 v4, v6, 4, v4')
    e.I('v_add_u32 v4, s59, v4')
    wait_reg(e, T0)
    e.I('v_lshrrev_b32 v12, 2, v1')
    e.I('v_lshlrev_b32 v12, 8, v12')
    e.I('v_and_b32 v13, 3, v1')
    e.I('v_lshl_add_u32 v12, v13, 2, v12')
    e.I('s_lshl_b32 s38, s20, 4')
    e.I('v_add_u32 v12, s38, v12')
    e.I('s_lshl_b32 s60, s26, 6')
    e.I(f's_add_u32 s60, s60, {FLGQ}')
    if opt.rpos == 9:
        e.I('v_and_b32 v7, 15, v1')
        e.I('v_lshlrev_b32 v7, 4, v7')
        e.I('v_bfe_u32 v8, v1, 4, 1')
        e.I('v_lshl_add_u32 v7, v8, 13, v7')
        e.I('v_lshrrev_b32 v8, 5, v1')
        e.I('v_lshl_add_u32 v7, v8, 15, v7')
        e.I('s_lshr_b32 s61, s22, 1')
        e.I('s_lshl_b32 s61, s61, 14')
        e.I('s_and_b32 s38, s22, 1')
        e.I('s_lshl_b32 s38, s38, 12')
        e.I('s_add_u32 s61, s61, s38')
        e.I('s_lshl_b32 s38, s20, 9')
        e.I('s_add_u32 s61, s61, s38')
        e.I(f's_add_u32 s61, s61, {PART}')
        for k in range(4): e.I(f'v_mov_b32 v{240+k}, -1')
        e.I('v_mov_b32 v8, 48'); e.I('v_mov_b32 v9, 2')
        e.I('s_add_u32 s38, s25, 1')
        e.I(f's_mul_i32 s48, s38, {PART_SLOT}')
        e.I('s_add_u32 s48, s48, s61')
        for q in range(5):
            e.I(f'buffer_store_dwordx4 v[240:243], v7, {WS}, s48 offen sc1')
            if q < 4: e.I('s_add_u32 s48, s48, 65536')
        e.I('s_waitcnt vmcnt(0)')
        e.I('s_lshl_b32 s38, s38, 11')
        e.I('s_add_u32 s38, s38, s60')
        set_flag(e, 8, 's38', 9, ' sc1')
    e.I('s_cmp_lg_u32 s23, 0')
    e.I('s_cbranch_scc1 L_atts')
    for slow in (False, True):
        fl = ' sc1' if slow else ''
        if slow: e.L('L_atts')
        top = e.lab('Lat')
        e.I('s_mov_b32 s30, s25')
        e.L(top)
        TS(e, 0)
        e.I('s_max_u32 s51, s30, 2')
        e.I('s_lshl_b32 s51, s51, 11')
        e.I('s_add_u32 s51, s51, s60')
        e.I(f's_and_b32 s42, s30, {RD-1}')
        e.I(f's_mul_i32 s40, s42, {SEG_QX}')
        e.I('s_lshl_b32 s41, s58, 1')
        e.I('s_add_u32 s40, s40, s41')
        e.I(f's_mul_i32 s41, s42, {SEG_XP}')
        e.I('s_add_u32 s41, s41, s58')
        def backp():
            nbp = e.lab('Lab')
            e.I(f's_cmp_lt_u32 s30, {RD}')
            e.I(f's_cbranch_scc1 {nbp}')
            e.I(f's_sub_u32 s50, s30, {RD}')
            e.I('s_mul_i32 s50, s50, 1280')
            e.I(f's_add_u32 s50, s50, {FLGPX}')
            wait_flags(e, 12, 's50', 0xfffff, T0, 14, sleep=16)
            e.L(nbp)
        if not opt.abp: backp()
        wait_flags(e, ONE + 1, 's51', 0xfff, T0, 6, sleep=opt.asleep)
        def loads(dst, n, sbase, add):
            e.I(f's_add_u32 s48, {sbase}, {add}')
            for q in range(n):
                if q and q % 4 == 0: e.I('s_add_u32 s48, s48, 4096')
                e.I(f'buffer_load_dwordx4 {dst(q)}, v2, {WS}, s48 offen offset:{(q%4)*1024} sc1')
        e.I(f's_add_u32 s48, s40, {VX}')
        for q in range(12):
            e.I(f's_add_u32 m0, s59, {q*1024}')
            e.I(f'buffer_load_dwordx4 v2, {WS}, s48 offen sc1 lds')
            e.I('s_add_u32 s48, s48, 1024')
        loads(lambda q: ar(KF + 4*q), 12, 's40', KX)
        loads(lambda q: ar(QF + 4*q), 12, 's40', QX)
        e.I('s_add_u32 s51, s30, 2')
        e.I('s_lshl_b32 s51, s51, 11')
        e.I('s_add_u32 s51, s51, s60')
        e.I('s_waitcnt vmcnt(24)')
        for T in range(12):
            for rt in range(2):
                e.I(f'ds_read_b64_tr_b16 {ar(VF+6*T+2+2*rt,2)}, v4 offset:{rt*6144 + (T>>1)*1024 + (T&1)*8}')
        if opt.abp: backp()
        e.I('s_waitcnt vmcnt(0)')
        for p in range(6):
            e.I(f'{MFMA} {vr(SA+4)}, {ar(KF+4*p)}, {ar(QF+4*p)}, {vr(C1) if p == 0 else vr(SA+4)}')
            e.I(f'{MFMA} {vr(SB+4)}, {ar(KF+4*p)}, {ar(QF+24+4*p)}, {0 if p == 0 else vr(SB+4)}')
            e.I(f'{MFMA} {vr(SB+8)}, {ar(KF+24+4*p)}, {ar(QF+24+4*p)}, {vr(C1) if p == 0 else vr(SB+8)}')
        wait_flags(e, ONE + 1, 's51', 0xfff, T0, 6, sleep=opt.asleep)
        TS(e, 1)
        loads(lambda q: vr(XPF + 4*q), 6, 's41', XP)
        e.I('s_lshr_b32 s42, s41, 1')
        e.I(f's_add_u32 s48, s42, {VM}')
        for q in range(3):
            e.I(f's_add_u32 m0, s59, {12288 + q*1024}')
            e.I(f'buffer_load_dwordx4 v2, {WS}, s48 offen sc1 lds')
            e.I('s_add_u32 s48, s48, 1024')
        nr = 0
        if opt.rpos == 9:
            nr = 5
            e.I('s_add_u32 s48, s30, 3')
            e.I('s_and_b32 s48, s48, 3')
            e.I(f's_mul_i32 s48, s48, {PART_SLOT}')
            e.I('s_add_u32 s48, s48, s61')
            e.I('s_cmp_lt_u32 s30, 60')
            e.I('s_cselect_b64 exec, -1, 0')
            for q in range(5):
                e.I(f'buffer_store_dwordx4 v[240:243], v7, {WS}, s48 offen sc1')
                if q < 4: e.I('s_add_u32 s48, s48, 65536')
            e.I('s_mov_b64 exec, -1')
        for p in range(6):
            e.I(f's_waitcnt vmcnt({8-p+nr})')
            e.I(f'{MFMA} {vr(SA)}, {vr(XPF+4*p)}, {ar(QF+4*p)}, {vr(C0) if p == 0 else vr(SA)}')
            e.I(f'{MFMA} {vr(SB)}, {vr(XPF+4*p)}, {ar(QF+24+4*p)}, {vr(C0) if p == 0 else vr(SB)}')
        TS(e, 2)
        e.I('s_waitcnt vmcnt(0)')
        if opt.rpos == 9:
            e.I('s_add_u32 s48, s51, 2048')
            e.I('s_cmp_lt_u32 s30, 61')
            e.I('s_cselect_b64 exec, 1, 0')
            e.I(f'buffer_store_dword v9, v8, {WS}, s48 offen{fl}')
            e.I('s_mov_b64 exec, -1')
        for T in range(12):
            kk = T >> 1
            e.I(f'ds_read_b64_tr_b16 {ar(VF+6*T,2)}, v5 offset:{12288 + (kk % 3)*1024 + (kk // 3)*128 + (T&1)*8}')
        for x_ in softmax_list(SA, 8, PA_, T0): e.I(x_)
        e.I(f's_add_u32 s48, s40, {OX}')
        e.I('s_add_u32 s49, s48, 4096')
        e.I('s_add_u32 s50, s48, 8192')
        e.I('s_waitcnt lgkmcnt(0)')
        def fin(qt, p):
            d = DO + 8 * (p + (2 if qt else 0) * 3) % 64; o = OB + 4 * (qt*6 + p); q = qt*6 + p
            return [f'v_cvt_pk_bf16_f32 v{o+k}, v{d+2*k}, v{d+2*k+1}' for k in range(4)] + \
                   [f'buffer_store_dwordx4 {vr(o)}, v2, {WS}, {("s48", "s49", "s50")[q//4]} offen offset:{(q%4)*1024}{fl}']
        smb = softmax_list(SB, 12, PB_, T0)
        for T in range(12):
            e.I(f'{MFMA} {vr(DO+4*T)}, {ar(VF+6*T)}, {vr(PA_)}, 0')
            for _ in range(3): e.I(smb.pop(0))
        outs = [x_ for p in range(6) for x_ in fin(0, p)]
        while smb:
            e.I(smb.pop(0)); e.I(smb.pop(0)) if smb else None
            if outs: e.I(outs.pop(0))
        for x_ in outs: e.I(x_)
        for p in range(6):
            d = DO + 8 * (p + 6) % 64
            for t in range(2): e.I(f'{MFMA16} {vr(d+4*t)}, {ar(VF+6*(2*p+t),2)}, {vr(PB_,2)}, 0')
            for t in range(2): e.I(f'{MFMA} {vr(d+4*t)}, {ar(VF+6*(2*p+t)+2)}, {vr(PB_+2)}, {vr(d+4*t)}')
            if p > 1:
                for x_ in fin(1, p - 2): e.I(x_)
        for p in (4, 5):
            for x_ in fin(1, p): e.I(x_)
        e.I('s_lshl_b32 s50, s30, 3')
        e.I('s_add_u32 s50, s50, s20')
        e.I('s_lshl_b32 s50, s50, 6')
        e.I(f's_add_u32 s50, s50, {FLGOX}')
        e.I('s_waitcnt vmcnt(0)')
        set_flag(e, ONE + 2, 's50', ONE, fl)
        TS(e, 3)
        TSflush(e, 's30', 230, 231)
        e.I('s_add_u32 s30, s30, 2')
        e.I('s_cmp_lt_u32 s30, 64')
        e.I(f's_cbranch_scc1 {top}')
        e.I('s_endpgm')

F_LX, F_LH = 0, 98304
def role_ffn(e):
    ACC2 = 0
    ACC1 = 16
    BF = 48
    HP = 80
    WR = 96
    NW = 40
    e.I('s_sub_u32 s26, s21, 29')
    e.I('s_mul_i32 s25, s20, 3')
    e.I('s_add_u32 s26, s26, s25')
    e.I('s_mov_b32 s24, s26')
    srd(e, 8, 56, 640 * 3072); srd(e, 12, 58, 1536 * 1280)
    if opt.xlate & 4: wait_first(e, 16, opt.fwait)
    transpose_w(e, 's26')
    e.I('s_waitcnt vmcnt(0)')
    e.I('s_barrier')
    count_up(e, 3, D_TR)
    wait_count(e, 3, D_TR, 24, 16)
    if opt.urg: wait_count(e, 3, D_W, 80, 16)
    wait_reg(e, 16, 32)
    e.L('L_ffn_task')
    e.I('s_lshl_b32 s38, s24, 2')
    e.I('s_add_u32 s38, s38, s22')
    e.I('s_mul_i32 s39, s38, 20480')
    e.I(f's_add_u32 s39, s39, {XN}')
    e.I('s_mul_i32 s40, s22, 20480')
    for m in range(20):
        e.I(f's_add_u32 m0, s40, {m*1024}')
        e.I(f'buffer_load_dwordx4 v2, {WS}, s39 offen lds')
        e.I('s_add_u32 s39, s39, 1024')
    for k in range(160): e.I(f'v_accvgpr_write_b32 a{k}, 0')
    e.I('s_mul_i32 s41, s22, 40960')
    e.I(f's_add_u32 s41, s41, {W1F}')
    e.I(f's_mul_i32 s42, s22, {10*48*1024}')
    e.I(f's_add_u32 s42, s42, {W2F}')
    e.I('v_add_u32 v3, 20480, v2')
    for u in range(10):
        e.I(f's_mov_b32 s54, {u*48*1024}')
        e.I(f'v_add_u32 v{4+u}, s54, v2')
    e.I(f'v_add_u32 v14, {F_LH}, v2')
    e.I('s_lshl_b32 s38, s22, 12')
    e.I('v_add_u32 v15, s38, v14')
    def wload(idx, adv):
        dst = vr(WR + (idx % NW) * 4)
        if idx < 40:
            kk, u = idx // 2, idx % 2
            e.I(f's_add_u32 s45, {adv[0]}, {(kk//4)*4096}')
            e.I(f'buffer_load_dwordx4 {dst}, v{2+u}, {WS}, s45 offen offset:{(kk%4)*1024}{" nt" if opt.ffnnt else ""}')
        else:
            pp, u = (idx - 40) // 10, (idx - 40) % 10
            e.I(f'buffer_load_dwordx4 {dst}, v{4+u}, {WS}, {adv[1]} offen offset:{pp*1024}{" nt" if opt.ffnnt else ""}')
    for idx in range(opt.ffd): wload(idx, ('s41', 's42'))
    e.I(f's_waitcnt vmcnt({opt.ffd})')
    e.I('s_barrier')
    top = e.lab('Lft')
    TS(e, 0)
    e.I('s_mov_b32 s30, 0')
    e.L(top)
    e.I('s_cmp_lt_u32 s30, 11')
    e.I('s_cselect_b32 s46, 163840, 0')
    e.I('s_cselect_b32 s47, 4096, 0')
    e.I('s_add_u32 s43, s41, s46')
    e.I('s_add_u32 s44, s42, s47')
    D = opt.ffd
    def pref(idx):
        j = idx + D
        if j < 80: wload(j, ('s41', 's42'))
        else: wload(j - 80, ('s43', 's44'))
    def rdx(kk):
        for rt in range(4):
            e.I(f'ds_read_b128 {vr(BF + ((kk%2)*4+rt)*4)}, v{2 if rt < 3 else 3} offset:{(rt if rt < 3 else 2)*20480 + kk*1024}')
    rdx(0)
    for kk in range(20):
        if kk + 1 < 20: rdx(kk + 1)
        e.I(f's_waitcnt vmcnt({D-2}) lgkmcnt({4 if kk+1 < 20 else 0})')
        for u in range(2):
            idx = 2 * kk + u
            for rt in range(4):
                d = vr(ACC1 + (u*4+rt)*4)
                e.I(f'{MFMA} {d}, {vr(WR+(idx%NW)*4)}, {vr(BF+((kk%2)*4+rt)*4)}, {0 if kk == 0 else d}')
        pref(2 * kk); pref(2 * kk + 1)
    for rt in range(4):
        for u in range(2):
            d = ACC1 + (u*4+rt)*4
            for k in range(4): e.I(f'v_max_f32 v{d+k}, 0, v{d+k}')
            e.I(f'v_cvt_pk_bf16_f32 v{HP+rt*4+2*u}, v{d}, v{d+1}')
            e.I(f'v_cvt_pk_bf16_f32 v{HP+rt*4+2*u+1}, v{d+2}, v{d+3}')
        e.I(f'ds_write_b128 v15, {vr(HP+rt*4)} offset:{rt*1024}')
    e.I('s_waitcnt lgkmcnt(0)')
    e.I('s_barrier')
    def rdh(pp):
        for rt in range(4):
            e.I(f'ds_read_b128 {vr(BF + ((pp%2)*4+rt)*4)}, v14 offset:{pp*4096 + rt*1024}')
    rdh(0)
    for pp in range(4):
        if pp + 1 < 4: rdh(pp + 1)
        for u in range(10):
            idx = 40 + pp * 10 + u
            w = f's_waitcnt vmcnt({D-1})'
            if u == 0: w += f' lgkmcnt({4 if pp+1 < 4 else 0})'
            e.I(w)
            for rt in range(4):
                d = ar(ACC2 + (u*4+rt)*4)
                e.I(f'{MFMA} {d}, {vr(WR+(idx%NW)*4)}, {vr(BF+((pp%2)*4+rt)*4)}, {d}')
            pref(idx)
    e.I('v_xor_b32 v14, 16384, v14')
    e.I('v_xor_b32 v15, 16384, v15')
    e.I('s_mov_b32 s41, s43')
    e.I('s_mov_b32 s42, s44')
    e.I('s_add_u32 s30, s30, 1')
    e.I('s_cmp_lt_u32 s30, 12')
    e.I(f's_cbranch_scc1 {top}')
    e.I('s_waitcnt vmcnt(0)')
    TS(e, 1)
    e.I('v_lshlrev_b32 v3, 3, v1')
    e.I(f's_mul_i32 s38, s24, {4*40*512}')
    e.I(f's_mul_i32 s39, s22, {10*512}')
    e.I('s_add_u32 s38, s38, s39')
    e.I(f's_add_u32 s38, s38, {G_}')
    e.I(f's_mov_b32 s52, {f2u(-1.4426950408889634):#x}')
    for rt in range(4):
        e.I(f's_add_u32 s39, s38, {rt*40*512}')
        e.I('s_add_u32 s40, s39, 4096')
        for u in range(10):
            t = 16 + ((rt*10+u) % 4) * 16
            a0 = ACC2 + (u*4+rt)*4
            for k in range(4): e.I(f'v_accvgpr_read_b32 v{t+k}, a{a0+k}')
            e.I(f'v_cvt_pk_bf16_f32 v{t+4}, v{t}, v{t+1}')
            e.I(f'v_cvt_pk_bf16_f32 v{t+5}, v{t+2}, v{t+3}')
            e.I(f'v_lshlrev_b32 v{t}, 16, v{t+4}')
            e.I(f'v_and_b32 v{t+1}, 0xffff0000, v{t+4}')
            e.I(f'v_lshlrev_b32 v{t+2}, 16, v{t+5}')
            e.I(f'v_and_b32 v{t+3}, 0xffff0000, v{t+5}')
            for k in range(4): e.I(f'v_mul_f32 v{t+4+k}, s52, v{t+k}')
            for k in range(4): e.I(f'v_exp_f32 v{t+4+k}, v{t+4+k}')
            for k in range(4): e.I(f'v_add_f32 v{t+4+k}, 1.0, v{t+4+k}')
            for k in range(4): e.I(f'v_rcp_f32 v{t+4+k}, v{t+4+k}')
            for k in range(4): e.I(f'v_mul_f32 v{t+k}, v{t+k}, v{t+4+k}')
            e.I(f'v_cvt_pk_bf16_f32 v{t+8}, v{t}, v{t+1}')
            e.I(f'v_cvt_pk_bf16_f32 v{t+9}, v{t+2}, v{t+3}')
            e.I(f'buffer_store_dwordx2 {vr(t+8,2)}, v3, {WS}, {"s39" if u < 8 else "s40"} offen offset:{(u%8)*512} sc1')
    e.I('s_waitcnt vmcnt(0)')
    TS(e, 2)
    if opt.ts: e.I('s_lshr_b32 s50, s24, 3'); e.I('s_add_u32 s50, s50, 64')
    TSflush(e, 's50')
    e.I('s_barrier')
    e.I('s_cmp_lg_u32 s22, 0')
    e.I('s_cbranch_scc1 L_ffn_nf')
    e.I('v_mov_b32 v4, 1')
    e.I('s_lshl_b32 s38, s24, 2')
    e.I('v_mov_b32 v5, s38')
    e.I(f's_mov_b32 s39, {FLGG}')
    set_flag(e, 5, 's39', 4, ' sc1')
    e.I('s_waitcnt vmcnt(0)')
    e.L('L_ffn_nf')
    e.I('s_cmp_ge_u32 s26, 8')
    e.I(f's_cbranch_scc1 {"L_end" if opt.nocmb else "L_cmb"}')
    e.I('s_add_u32 s24, s24, 24')
    e.I('s_cmp_lt_u32 s24, 32')
    e.I('s_cbranch_scc1 L_ffn_task')
    e.I('s_endpgm')

def role_cmb(e):
    PXR = 16
    GR = 144
    XR_ = 152
    T0 = 160
    e.I('s_sub_u32 s24, s26, 8')
    e.I('s_lshl_b32 s24, s24, 2')
    e.I('s_add_u32 s30, s24, s22')
    e.I(f's_mov_b32 s33, {opt.qc or 1280}')
    e.L('L_cmb2')
    srd(e, 8, 68, 2048 * 1280)
    srd(e, 12, 70, 2048 * 1280)
    e.I('v_lshlrev_b32 v3, 2, v1')
    e.I('v_lshlrev_b32 v4, 3, v1')
    e.I('v_mov_b32 v6, 0')
    lane_ig(e, 14, 15)
    e.I('v_mul_u32_u24 v5, 1280, v14')
    e.I('v_lshl_add_u32 v5, v15, 3, v5')
    e.I('s_mov_b32 s49, 0')
    e.I('s_mov_b32 s52, 0x3f80'); e.I('s_mov_b32 s53, 0x3f800000')
    e.I('v_lshrrev_b32 v7, 4, v1')
    e.I('v_mul_u32_u24 v7, 40960, v7')
    e.I('v_lshl_add_u32 v7, v14, 7, v7')
    e.I(f'v_add_u32 v8, {4*40960}, v7')
    top = e.lab('Lct')
    if opt.t63:
        e.I('s_cmp_eq_u32 s33, 0')
        e.I(f's_cbranch_scc1 {top}')
        e.I('s_add_u32 s38, s30, 1216')
        e.I('s_mul_i32 s39, s38, 3277')
        e.I('s_lshr_b32 s39, s39, 16')
        e.I('s_mul_i32 s40, s39, 20')
        e.I('s_sub_u32 s40, s38, s40')
        e.I(f's_mul_i32 s43, s39, {SEG_PX}')
        e.I('s_lshl_b32 s40, s40, 11')
        e.I('s_add_u32 s43, s43, s40')
        e.I(f's_add_u32 s43, s43, {PX}')
        for k in range(2): e.I(f'buffer_load_dword v{T0}, v{7+k}, {WS}, s43 offen sc1')
    e.L(top)
    TS(e, 0)
    e.I('s_mul_i32 s38, s30, 3277')
    e.I('s_lshr_b32 s38, s38, 16')
    e.I('s_mul_i32 s39, s38, 20')
    e.I('s_sub_u32 s39, s30, s39')
    e.I('s_cmp_ge_u32 s39, 10')
    e.I('s_cselect_b32 s40, 1, 0')
    e.I('s_mul_i32 s41, s40, 10')
    e.I('s_sub_u32 s41, s39, s41')
    gok = e.lab('Lcg')
    e.I('s_cmp_lg_u32 s49, 0')
    e.I(f's_cbranch_scc1 {gok}')
    e.I(f's_mov_b32 s42, {FLGG}')
    e.I('s_mov_b32 exec_hi, 0')
    e.I(f'buffer_load_dword v{T0}, v3, {WS}, s42 offen sc1')
    e.I('s_waitcnt vmcnt(0)')
    e.I(f'v_cmp_eq_u32 vcc, 0, v{T0}')
    e.I('s_mov_b64 exec, -1')
    e.I('s_cmp_eq_u32 vcc_lo, 0')
    e.I('s_cselect_b32 s49, 1, 0')
    e.I(f's_cbranch_scc1 {gok}')
    e.I('s_lshr_b32 s42, s38, 1')
    e.I('s_lshl_b32 s42, s42, 2')
    e.I(f's_add_u32 s42, s42, {FLGG}')
    wait_flags(e, 6, 's42', 1, T0, 7, sleep=32)
    e.L(gok)
    e.I(f's_mul_i32 s43, s38, {SEG_PX}')
    e.I('s_mul_i32 s44, s40, 20480')
    e.I('s_add_u32 s43, s43, s44')
    e.I('s_lshl_b32 s44, s41, 11')
    e.I('s_add_u32 s43, s43, s44')
    e.I(f's_add_u32 s43, s43, {PX}')
    e.I('s_lshl_b32 s45, s38, 1')
    e.I('s_add_u32 s45, s45, s40')
    e.I('s_mul_i32 s46, s45, 20480')
    e.I('s_lshr_b32 s47, s41, 1')
    e.I('s_lshl_b32 s47, s47, 2')
    e.I('s_and_b32 s48, s41, 1')
    e.I('s_add_u32 s44, s47, s48')
    e.I('s_lshl_b32 s47, s44, 10')
    e.I('s_add_u32 s47, s47, s46')
    e.I(f's_add_u32 s47, s47, {G_}')
    e.I('s_lshl_b32 s48, s44, 6')
    e.I('s_add_u32 s48, s48, s46')
    TO = (0, 4, 1, 5)
    for t in range(4):
        e.I(f'buffer_load_dwordx2 {vr(GR+2*t,2)}, v4, {WS}, s47 offen offset:{TO[t]*512} sc1')
        e.I(f'buffer_load_dwordx2 {vr(XR_+2*t,2)}, v5, s[8:11], s48 offen offset:{TO[t]*32}')
    c1, c2 = e.lab('Lc1'), e.lab('Lc2')
    e.I('s_mul_i32 s50, s38, 10')
    e.I('s_and_b32 s44, s41, 14')
    e.I('s_add_u32 s50, s50, s44')
    e.I('s_lshl_b32 s50, s50, 7')
    e.I(f's_add_u32 s50, s50, {FLGPX}')
    e.I(f's_cmp_ge_u32 s38, {opt.cwarm}')
    e.I(f's_cbranch_scc1 {c1}')
    e.I(f's_add_u32 s42, s38, {opt.clag}')
    e.I('s_lshl_b32 s42, s42, 3')
    e.I('s_add_u32 s42, s42, s20')
    e.I('s_lshl_b32 s42, s42, 6')
    e.I(f's_add_u32 s42, s42, {FLGOX}')
    wait_flags(e, 6, 's42', 1, T0, 9, sleep=opt.lsleep)
    wait_flags(e, 3, 's50', -1, T0, 8, sleep=opt.csleep)
    e.I(f's_branch {c2}')
    e.L(c1)
    e.I('s_and_b32 s42, s38, 3')
    e.I('s_lshl_b32 s42, s42, 3')
    e.I('s_add_u32 s42, s42, s20')
    e.I('s_lshl_b32 s42, s42, 7')
    e.I('s_lshl_b32 s44, s44, 1')
    e.I('s_add_u32 s42, s42, s44')
    e.I(f's_add_u32 s42, s42, {HINT}')
    e.I('s_mul_i32 s51, s20, 5')
    e.I('s_lshr_b32 s44, s41, 1')
    e.I('s_add_u32 s51, s51, s44')
    e.I('s_lshl_b32 s51, s51, 7')
    e.I(f's_add_u32 s51, s51, {HINT2}')
    e.I('s_and_b32 s44, s38, 1')
    e.I('s_lshl_b32 s44, s44, 2')
    e.I('s_add_u32 s51, s51, s44')
    e.I(f's_cmp_ge_u32 s38, {63 - opt.s62}')
    e.I('s_cselect_b32 s42, s51, s42')
    wait_flags(e, 6, 's42', 1, T0, 9, sleep=2)
    e.I(f's_cmp_ge_u32 s38, {63 - opt.s62}')
    e.I(f's_cbranch_scc1 {c2}')
    wait_flags(e, 3, 's50', -1, T0, 8, sleep=opt.c2sleep)
    e.L(c2)
    TS(e, 1)
    RAW = PXR + 32
    def ld(x):
        for t in range(2):
            if not opt.cdiag & 4: e.I(f'buffer_load_dwordx4 {vr(RAW+(x*2+t)*4)}, v2, {WS}, s43 offen offset:{t*1024} sc1')
        if x < 7: e.I('s_add_u32 s43, s43, 40960')
    def body(depth):
        for x in range(min(depth, 8)): ld(x)
        for x in range(8):
            left = min(depth - 1, 7 - x)
            e.I(f's_waitcnt vmcnt({left*2})')
            if x + depth < 8: ld(x + depth)
            for k in range(16): e.I(f'v_dot2c_f32_bf16 v{PXR+k}, {("s52", "s53")[k&1]}, v{RAW+x*8+(k>>1)}')
        e.I('s_nop 2')
    for k in range(16): e.I(f'v_mov_b32 v{PXR+k}, 0')
    fast, join = e.lab('Lcf'), e.lab('Lcj')
    e.I('s_cmp_ge_u32 s38, 61')
    e.I(f's_cbranch_scc1 {fast}')
    body(opt.cdepth)
    e.I(f's_branch {join}')
    e.L(fast)
    f2, pl_, pk_ = e.lab('Lcg'), e.lab('Lcp'), e.lab('Lck')
    e.I(f's_cmp_lt_u32 s38, {63 - opt.s62}')
    e.I(f's_cbranch_scc1 {f2}')
    e.I(f's_mov_b32 s31, {TMO}')
    e.I('s_mov_b32 s51, s43')
    e.L(pl_)
    e.I('s_mov_b32 s43, s51')
    for x in range(8): ld(x)
    e.I('s_waitcnt vmcnt(0)')
    check_sent(e, range(RAW, RAW + 64), T0, T0 + 1)
    e.I(f's_cbranch_vccz {pk_}')
    e.I('s_sub_u32 s31, s31, 1')
    e.I(f's_cbranch_scc0 {pl_}')
    e.I('s_mov_b32 s31, 8')
    e.I('s_branch L_fail')
    e.L(pk_)
    for x in range(8):
        for k in range(16): e.I(f'v_dot2c_f32_bf16 v{PXR+k}, {("s52", "s53")[k&1]}, v{RAW+x*8+(k>>1)}')
    e.I('s_nop 2')
    e.I(f's_branch {join}')
    e.L(f2)
    body(8)
    e.L(join)
    TS(e, 3)
    for t in range(4):
        b = PXR + 4 * t; u = T0 + 8 * (t % 2)
        e.I(f'v_cvt_pk_bf16_f32 v{u}, v{b}, v{b+1}')
        e.I(f'v_cvt_pk_bf16_f32 v{u+1}, v{b+2}, v{b+3}')
        for h_ in range(2):
            e.I(f'v_lshlrev_b32 v{b+2*h_}, 16, v{u+h_}')
            e.I(f'v_and_b32 v{b+2*h_+1}, 0xffff0000, v{u+h_}')
            e.I(f'v_lshlrev_b32 v{u+2+2*h_}, 16, v{GR+2*t+h_}')
            e.I(f'v_and_b32 v{u+3+2*h_}, 0xffff0000, v{GR+2*t+h_}')
        for k in range(4): e.I(f'v_mul_f32 v{b+k}, v{b+k}, v{u+2+k}')
        e.I(f'v_cvt_pk_bf16_f32 v{u}, v{b}, v{b+1}')
        e.I(f'v_cvt_pk_bf16_f32 v{u+1}, v{b+2}, v{b+3}')
        for h_ in range(2):
            e.I(f'v_lshlrev_b32 v{b+2*h_}, 16, v{u+h_}')
            e.I(f'v_and_b32 v{b+2*h_+1}, 0xffff0000, v{u+h_}')
            e.I(f'v_lshlrev_b32 v{u+2+2*h_}, 16, v{XR_+2*t+h_}')
            e.I(f'v_and_b32 v{u+3+2*h_}, 0xffff0000, v{XR_+2*t+h_}')
        for k in range(4): e.I(f'v_add_f32 v{b+k}, v{b+k}, v{u+2+k}')
        e.I(f'v_cvt_pk_bf16_f32 v{u+6}, v{b}, v{b+1}')
        e.I(f'v_cvt_pk_bf16_f32 v{u+7}, v{b+2}, v{b+3}')
        e.I(f'buffer_store_dwordx2 {vr(u+6,2)}, v5, s[12:15], s48 offen offset:{TO[t]*32}{("", " sc1", " nt")[opt.ost]}')
    TS(e, 2)
    if opt.ts: e.I('s_lshr_b32 s50, s30, 6')
    TSflush(e, 's50')
    e.I('s_add_u32 s30, s30, 64')
    e.I('s_cmp_lt_u32 s30, s33')
    e.I(f's_cbranch_scc1 {top}')
    DSTAMP(e, 5)
    e.I(f's_cmp_lg_u32 s30, {1279 + 64}')
    e.I('s_cbranch_scc1 L_end')
    e.I('s_mov_b32 exec_hi, 0xffff')
    e.I(f'global_store_dword v3, v6, s[74:75] offset:{D_TR} sc1')
    e.I('s_endpgm')

def gen_mainkernel(e):
    kernel_head(e, MAIN)
    e.I('s_cmp_ge_u32 s2, 256')
    e.I('s_cbranch_scc1 L_end')
    e.I('s_load_dwordx2 s[32:33], s[0:1], 96')
    e.I('s_load_dwordx4 s[60:63], s[0:1], 16')
    e.I('s_load_dwordx4 s[64:67], s[0:1], 32')
    e.I('s_load_dwordx4 s[52:55], s[0:1], 0')
    e.I('s_load_dwordx4 s[56:59], s[0:1], 64')
    e.I('s_load_dwordx4 s[72:75], s[0:1], 80')
    TS(e, 0)
    e.I('s_getreg_b32 s24, hwreg(HW_REG_XCC_ID)')
    e.I('v_and_b32 v1, 63, v0')
    e.I('v_lshlrev_b32 v2, 4, v1')
    e.I('v_lshrrev_b32 v3, 6, v0')
    e.I('v_readfirstlane_b32 s22, v3')
    if opt.cwarm2:
        e.I('s_getpc_b64 s[34:35]')
        e.L('L_pc')
        e.I('s_lshr_b32 s36, s2, 3')
        e.I('s_lshl_b32 s36, s36, 2')
        e.I('v_add_u32 v3, s36, v3')
        e.I(f'v_mul_u32_u24 v3, {opt.cwarm2}, v3')
        e.I(f'v_min_u32 v4, {opt.cwarm2 - 1}, v1')
        e.I('v_add_u32 v3, v3, v4')
        e.I('v_lshlrev_b32 v3, 7, v3')
        e.I('v_min_u32 v3, L_last-L_pc, v3')
        e.I('v_mov_b32 v5, s35')
        e.I('v_add_co_u32 v4, vcc, s34, v3')
        e.I('v_addc_co_u32 v5, vcc, 0, v5, vcc')
        e.I('global_load_dword v255, v[4:5], off')
    if opt.force_slow:
        e.I('s_lshr_b32 s20, s2, 5'); e.I('s_and_b32 s21, s2, 31')
    else:
        e.I('s_and_b32 s20, s2, 7'); e.I('s_lshr_b32 s21, s2, 3')
    e.I('s_and_b32 s24, s24, 15')
    e.I('s_lshl_b32 s96, s20, 4')
    e.I('s_and_b32 s25, s24, 12')
    e.I('s_add_u32 s96, s96, s25')
    e.I('s_and_b32 s25, s24, 3')
    e.I('s_lshl_b32 s25, s25, 3')
    e.I('s_lshl_b32 s97, 1, s25')
    e.I('s_waitcnt lgkmcnt(0)')
    e.I('s_mov_b64 s[70:71], s[72:73]')
    e.I('s_mov_b64 s[68:69], s[52:53]')
    srd(e, 4, 32, WS_BYTES)
    TS(e, 1)
    TSflush(e, '70')
    if opt.dstamp: e.I('s_lshl_b32 s98, s21, 2'); e.I('s_add_u32 s98, s98, s22')
    DSTAMP(e, 0, 's_cmp_eq_u32 s98, 84', 'neg')
    e.I('s_cmp_ge_u32 s21, 22'); e.I('s_cbranch_scc1 L_help')
    e.I('s_sub_u32 s24, s21, 12')
    if opt.urg: e.I('s_cmp_lt_u32 s24, 2')
    else: e.I('s_cmp_eq_u32 s24, 1')
    e.I('s_cbranch_scc1 L_urg')
    register(e, 3, 4)
    e.I('s_cmp_ge_u32 s21, 12'); e.I('s_cbranch_scc1 L_wo')
    role_qkv(e)
    e.L('L_urg')
    srd(e, 8, 52, 2048 * 1280); srd(e, 12, 54, 8 * 1280)
    e.I('s_cmp_lg_u32 s24, 0')
    e.I('s_cbranch_scc1 L_um')
    ln_addr(e)
    e.I('s_mul_i32 s25, s20, 20480')
    ln_load(e, 16, 's25')
    e.I('s_waitcnt vmcnt(0)')
    ln_compute(e, 16, 's25')
    e.I('s_branch L_ur')
    e.L('L_um')
    mem0_copy(e, None, 0, opt.inl)
    e.I('s_mul_i32 s41, s20, 10240')
    e.I(f's_add_u32 s41, s41, {MEM}')
    e.I('s_waitcnt vmcnt(0)')
    mem0_copy(e, 's41', 1)
    e.L('L_ur')
    e.I('s_waitcnt vmcnt(0)')
    e.I('s_barrier')
    register(e, 3, 4)
    e.L('L_wo'); role_sw(e)
    e.L('L_help')
    srd(e, 8, 52, 2048 * 1280)
    e.I('s_mul_i32 s24, s20, 10')
    e.I('s_add_u32 s24, s24, s21')
    e.I('s_sub_u32 s24, s24, 22')
    if opt.urg: init_fill(e, 's24', 80)
    ln_addr(e)
    e.I('s_mul_i32 s25, s24, 20480')
    if opt.urg: e.I(f's_add_u32 s25, s25, {8*20480}')
    e.I(f's_add_u32 s26, s25, {80*20480}')
    ln_load(e, 16, 's25')
    ln_load(e, 36, 's26')
    if opt.urg:
        e.I('s_waitcnt vmcnt(10)')
        e.I('s_barrier')
        register(e, 3, 4)
    elif opt.pfh:
        srd(e, 12, 64, 640 * 12288); srd(e, 16, 60, 640 * 12288)
        e.I('s_sub_u32 s27, s21, 22')
        e.I('s_lshl_b32 s27, s27, 2')
        e.I('s_add_u32 s27, s27, s22')
        prefetch_w(e, 's27', 0, opt.pfh, 124, 's[12:15]', 's[16:19]')
    else: init_fill(e, 's24', 80)
    e.I(f's_waitcnt vmcnt({3*opt.pfh})')
    ln_compute(e, 16, 's25')
    e.I(f's_cmp_ge_u32 s24, {40 if opt.urg else 48}')
    e.I('s_cbranch_scc1 L_hl')
    ln_compute(e, 36, 's26')
    e.L('L_hl')
    if opt.pfh: init_fill(e, 's24', 80)
    e.I('s_waitcnt vmcnt(0)')
    e.I('s_barrier')
    if opt.urg: count_up(e, 3, D_W)
    if not opt.urg: register(e, 3, 4)
    TS(e, 0)
    TSflush(e, '69')
    if opt.touch2:
        wait_reg(e, 16, opt.rsleep)
        e.I('s_sub_u32 s24, s21, 22')
        e.I('s_lshl_b32 s25, s20, 2')
        e.I('s_add_u32 s25, s25, s22')
        touch_jobs(e, [(XN + k * 40960, 10240, 40) for k in range(3)] + [(XN + k * 40960 + 5120, 10240, 40) for k in range(3)], 's24', 10, 's22', 18)
        jobs = []
        for sl in range(4): jobs += [(MEM + sl * MEM_SLOT, 2560, 20), (XR + sl * XR_SLOT, 6144, 48), (VR + sl * VR_SLOT, 3072, 24)]
        touch_jobs(e, jobs[::-1][:4] + jobs[:8], 's24', 10, 's25', 24, 6)
    e.I('s_cmp_ge_u32 s21, 29'); e.I('s_cbranch_scc1 L_ffn')
    e.I('s_cmp_lt_u32 s21, 27'); e.I('s_cbranch_scc1 L_xw')
    role_att(e)
    e.L('L_xw'); role_xw(e)
    e.L('L_ffn'); role_ffn(e)
    e.L('L_cmb'); role_cmb(e)
    e.L('L_fail')
    e.I('s_mov_b64 exec, 1')
    e.I('s_lshl_b32 s31, s31, 2')
    e.I('v_mov_b32 v3, s31')
    e.I('v_mov_b32 v4, 1')
    e.I('global_atomic_add v3, v4, s[74:75]')
    e.L('L_end')
    e.L('L_last')
    e.I('s_endpgm')

def build(path):
    import gen_pre
    gen_pre.DIAG[0] = opt.noinit
    if opt.s62:
        assert opt.rpos == 9
        gen_pre.INIT_REGIONS[-2:] = [(PART, PART_SLOT // 4096, -1), (PX + 62 * SEG_PX, 2 * SEG_PX // 4096, -1)]
    for k in range(3): NT[k] = ' nt' if opt.pnt >> k & 1 else ''
    hdr = open('cdna_kernels/' + NAME + '.s.ref').read().split('\n')
    e = Em()
    for l in hdr:
        if l.startswith(';') and '@launch' not in l and 'Override launch' not in l and 'grid=ceil' not in l: e.raw(l)
    e.raw(f'; @launch grid=(256,1,1) block=(256,1,1) lds=163840')
    e.raw('.amdgcn_target "amdgcn-amd-amdhsa--gfx950"')
    gen_mainkernel(e)
    kernel_desc(e, MAIN, 512, 100, 256)
    hazard.PIPE = bool(opt.pipe)
    lines, added = hazard.pad(e.lines)
    open(path, 'w').write('\n'.join(lines) + '\n')
    n = sum(1 for l in lines if l.startswith('    ') and not l.strip().startswith(';'))
    print(f'wrote {path}: {n} instructions, {added} nops added')

if __name__ == '__main__':
    out = sys.argv[1] if len(sys.argv) > 1 else 'cdna_kernels/' + NAME + '.s'
    if 'slow' in sys.argv[2:]: opt.force_slow = True
    if 'ts' in sys.argv[2:]: opt.ts = True
    for k in ('nobg', 'ackpoll', 'noxw'):
        if k in sys.argv[2:]: setattr(opt, k, True)
    for a_ in sys.argv[2:]:
        if '=' in a_: k_, v_ = a_.split('='); setattr(opt, k_, int(v_))
    build(out)
```

```python
import sys, struct
from asmlib import *
from layout import *
import hazard
from gen_pre import *

NAME = 'recurrent_scan__memory_aug_recurrent_mem_tr__dense_activation_relu__prompt'
MAIN = NAME + '_kernel'
PRE = 'prep_kernel'
LDS_TOTAL = 131072
LDS_ROLE = 131072
TMO = 1 << 18
def f2u(x): return struct.unpack('<I', struct.pack('<f', x))[0]
SC_L2E = f2u(192 ** -0.5 * 1.4426950408889634)
NEG_BIG = f2u(-1e30)
MFMA = 'v_mfma_f32_16x16x32_bf16'
MFMA16 = 'v_mfma_f32_16x16x16_bf16'
SMF = 'v_smfmac_f32_16x16x64_bf16'
WS = 's[4:7]'
WFL = ['', ' nt', ' sc1', ' sc0 sc1', ' sc1 nt', ' sc0 sc1 nt']

class Opt:
    force_slow = False
    ts = False
    nobg = False
    ackpoll = False
    noxw = False
    pdelay = 0
    vdelay = 0
    kbar = 0
    kpre = 12
    kin = 12
    fresh = 0
    pdiag = 0
    pflip = 0
    touch = 1
    nofc = 0
    nopx = 0
    nocmb = 0
    cdepth = 2
    ffnnt = 0
    pr = 1
    pfar = 0
    vpre = 0
    vmpos = 2
    smpre = 1
    smgap = 3
    ldgap = 30
    kp = 0
    kcs = 0
    kce = 12
    xlate = 4
    csleep = 8
    cwarm = 61
    c2sleep = 4
    clag = 2
    lsleep = 8
    xsleep = 2
    asleep = 2
    cdiag = 0
    n1 = 5
    n2 = 4
    n3 = 0
    thin = 1
    split = 2
    eord = 1
    inl = 1
    hpos = 1
    own = 0
    spr = 1
    spr0 = 4
    spre = 0
    x0e = 0
    pr2 = 0
    ad = 0
    mrl = 0
    adn = 8
    adlo = 3
    adhi = 8
    adup = 1
    ffd = 24
    fprio = 0
    s62 = 1
    abp = 1
    x2e = 0
    kxl = 0
    vxe = 0
    qlead = 1
    pvord = 0
    pvl = 2
    qc = 1220
    f63 = 1
    two = 1
    nc = 1
    sa = 4
    sb = 7
    cvx = 24
    nod = 1
    sord = 1
    thin1 = 1
    pvmix = 1
    vin = 3
    zin = 0
    rdmix = 2
    t9 = -1
    vgap = 0
    fv = 11
    pipe = 1
    ktight = 1
    vx2 = 1
    ox4 = 1
    remap = 1
    fq = 3
    vown = 1
    g1 = 0
    g2 = 0
    vpos = 1
    xg1 = 0
    xg2 = 0
    fwait = 3
    ptouch = 1
    spec = 1
    mwait = 0
    mpre = 2
    kgap = 15
    noinit = 0
    pfh = 0
    wb = 0
    ost = 0
    mprobe = 0
    kx = 0
    dstamp = 0
    hwv = 7
    t63 = 1
    esleep = 1
    tpos = 0
    pmf = 6
    pmf2 = 4
    urg = 0
    rsleep = 16
    cwarm2 = 0
    tord = 0
    pfs = 0
    swlate = 1
    fpos = 7
    heads = 1
    hdelay = 0
    wnb = 3
    wrows = 320
    touch2 = 1
    pnt = 1
    wnt = 1
    wthr = 64
    xpf = 10
    xdma0 = 10
    xdmas = 1
    pbf = 1
    rpos = 9
    mbar = 1
    pspin = 0
    nobulk = 0
opt = Opt()

def vr(i, n=4): return f'v[{i}:{i+n-1}]'
def ar(i, n=4): return f'a[{i}:{i+n-1}]'

def maxchain(e, dst, regs, op='u32'):
    regs = list(regs)
    e.I(f'v_max3_{op} v{dst}, v{regs[0]}, v{regs[1]}, v{regs[2]}')
    rest = regs[3:]
    while rest:
        if len(rest) >= 2:
            e.I(f'v_max3_{op} v{dst}, v{dst}, v{rest[0]}, v{rest[1]}'); rest = rest[2:]
        else:
            e.I(f'v_max_{op} v{dst}, v{dst}, v{rest[0]}'); rest = rest[1:]

def check_sent(e, regs, t0, t1):
    regs = list(regs)
    if len(regs) >= 8:
        h = len(regs) // 2
        A, B = regs[:h], regs[h:]
        ea, eb = Em(), Em()
        maxchain(ea, t0, A); maxchain(eb, t1, B)
        for i in range(max(len(ea.lines), len(eb.lines))):
            if i < len(ea.lines): e.lines.append(ea.lines[i])
            if i < len(eb.lines): e.lines.append(eb.lines[i])
        e.I(f'v_max_u32 v{t0}, v{t0}, v{t1}')
    else:
        maxchain(e, t0, regs)
    e.I(f'v_cmp_eq_u32 vcc, -1, v{t0}')
def chunk_regs(base, n, step):
    return list(range(base, base + n, step)) if opt.thin else list(range(base, base + n))

def poll2(e, issue, nl, regsA, regsB, consume, t0, t1, code, early=None):
    lp, dA, dB, dd = e.lab('Lp'), e.lab('LdA'), e.lab('LdB'), e.lab('Ldd')
    e.I(f's_mov_b32 s31, {TMO}')
    issue(regsA)
    e.L(lp)
    issue(regsB)
    e.I(f's_waitcnt vmcnt({nl})')
    if early: early(regsA)
    check_sent(e, chunk_regs(regsA, 4 * nl, 4), t0, t1)
    e.I(f's_cbranch_vccz {dA}')
    issue(regsA)
    e.I(f's_waitcnt vmcnt({nl})')
    if early: early(regsB)
    check_sent(e, chunk_regs(regsB, 4 * nl, 4), t0, t1)
    e.I(f's_cbranch_vccz {dB}')
    e.I('s_sub_u32 s31, s31, 1')
    e.I(f's_cbranch_scc0 {lp}')
    e.I(f's_mov_b32 s31, {code}')
    e.I('s_branch L_fail')
    e.L(dB)
    consume(regsB)
    e.I(f's_branch {dd}')
    e.L(dA)
    consume(regsA)
    e.L(dd)

def wait_flags(e, vaddr, sofs, mask, vt, code, sleep=0, dbg=False):
    lp, dn = e.lab('Lf'), e.lab('Lfd')
    e.I(f's_mov_b32 s31, {TMO}')
    if mask > 0xffffffff or mask < 0: e.I(f's_mov_b64 exec, {mask}')
    else:
        e.I(f's_mov_b32 exec_lo, {mask:#x}'); e.I('s_mov_b32 exec_hi, 0')
    e.L(lp)
    if dbg: e.I(f'global_load_dword v{vt}, v{vaddr}, s[74:75] offset:{sofs} sc1')
    else: e.I(f'buffer_load_dword v{vt}, v{vaddr}, {WS}, {sofs} offen sc1')
    e.I('s_waitcnt vmcnt(0)')
    e.I(f'v_cmp_eq_u32 vcc, 0, v{vt}')
    e.I(f's_cbranch_vccz {dn}')
    if sleep: e.I(f's_sleep {sleep}')
    e.I('s_sub_u32 s31, s31, 1')
    e.I(f's_cbranch_scc0 {lp}')
    e.I(f's_mov_b32 s31, {code}')
    e.I('s_branch L_fail')
    e.L(dn)
    e.I('s_mov_b64 exec, -1')

D_TR, D_PAR, D_REG = 64, 96, 128
def register(e, va, vd):
    sk = e.lab('Lrg')
    e.I('s_cmp_lg_u32 s22, 0')
    e.I(f's_cbranch_scc1 {sk}')
    e.I(f'v_mov_b32 v{va}, s96')
    e.I(f'v_mov_b32 v{vd}, s97')
    e.I('s_mov_b64 exec, 1')
    e.I(f'global_atomic_add v{va}, v{vd}, s[74:75] offset:{D_REG} sc1')
    e.I('s_mov_b64 exec, -1')
    e.L(sk)
D_W = 68
def wait_count(e, t, off, n, sleep):
    lp, dn = e.lab('Lwc'), e.lab('Lwe')
    e.I(f's_mov_b32 s31, {TMO}')
    e.I(f'v_mov_b32 v{t+1}, 0')
    e.L(lp)
    e.I(f'global_load_dword v{t}, v{t+1}, s[74:75] offset:{off} sc1')
    e.I('s_waitcnt vmcnt(0)')
    e.I(f'v_cmp_gt_u32 vcc, {n}, v{t}')
    e.I(f's_cbranch_vccz {dn}')
    e.I(f's_sleep {sleep}')
    e.I('s_sub_u32 s31, s31, 1')
    e.I(f's_cbranch_scc0 {lp}')
    e.I('s_mov_b32 s31, 10')
    e.I('s_branch L_fail')
    e.L(dn)
def wait_first(e, t, seg=0):
    wait_reg(e, t, 32)
    e.I('s_lshl_b32 s38, s20, 8')
    e.I(f's_add_u32 s38, s38, {FLGQ + seg*2048}')
    e.I(f'v_lshlrev_b32 v{t+1}, 6, v1')
    wait_flags(e, t + 1, 's38', 0xf, t, 15, sleep=16)
def count_up(e, t, off):
    sk = e.lab('Lcu')
    e.I('s_cmp_lg_u32 s22, 0')
    e.I(f's_cbranch_scc1 {sk}')
    e.I(f'v_mov_b32 v{t}, 0'); e.I(f'v_mov_b32 v{t+1}, 1')
    e.I('s_mov_b64 exec, 1')
    e.I(f'global_atomic_add v{t}, v{t+1}, s[74:75] offset:{off} sc1')
    e.I('s_mov_b64 exec, -1')
    e.L(sk)
def wait_reg(e, t, sleep=4):
    lp, dn = e.lab('Lwr'), e.lab('Lwd')
    e.I(f's_mov_b32 s31, {TMO}')
    e.I(f'v_lshlrev_b32 v{t+2}, 2, v1')
    e.I('s_mov_b32 exec_hi, 0')
    e.L(lp)
    e.I(f'global_load_dword v{t}, v{t+2}, s[74:75] offset:{D_REG} sc1')
    e.I('s_mov_b32 s23, 0')
    e.I('s_mov_b32 s38, 0')
    e.I('s_waitcnt vmcnt(0)')
    for k in range(4):
        e.I(f'v_cmp_eq_u32 vcc, {0x20 << (8*k):#x}, v{t}')
        e.I('s_or_b32 s38, s38, vcc_lo')
    e.I(f'v_sad_u8 v{t+1}, v{t}, 0, 0')
    e.I('s_bcnt1_i32_b32 s38, s38')
    e.I('s_cmp_eq_u32 s38, 8')
    e.I(f's_cbranch_scc1 {dn}')
    for sh in (1, 2, 4, 8): e.I(f'v_add_u32_dpp v{t+1}, v{t+1}, v{t+1} row_shr:{sh} row_mask:0xf bank_mask:0xf bound_ctrl:0')
    e.I(f'v_readlane_b32 s38, v{t+1}, 15')
    e.I(f'v_readlane_b32 s39, v{t+1}, 31')
    e.I('s_mov_b32 s23, 1')
    e.I('s_add_u32 s38, s38, s39')
    e.I('s_cmp_eq_u32 s38, 256')
    e.I(f's_cbranch_scc1 {dn}')
    e.I(f's_sleep {sleep}')
    e.I('s_sub_u32 s31, s31, 1')
    e.I(f's_cbranch_scc0 {lp}')
    e.I('s_mov_b32 s31, 10')
    e.I('s_branch L_fail')
    e.L(dn)
    e.I('s_mov_b64 exec, -1')

def set_flag(e, vaddr, sofs, vone, fl):
    e.I('s_mov_b64 exec, 1')
    e.I(f'buffer_store_dword v{vone}, v{vaddr}, {WS}, {sofs} offen{fl}')
    e.I('s_mov_b64 exec, -1')

def xg_reduce(e, op, x, t):
    e.I(f'v_mov_b32 v{t}, v{x}')
    e.I(f'v_permlane16_swap_b32 v{x}, v{t}')
    e.I(f'{op} v{x}, v{x}, v{t}')
    e.I(f'v_mov_b32 v{t}, v{x}')
    e.I(f'v_permlane32_swap_b32 v{x}, v{t}')
    e.I(f'{op} v{x}, v{x}, v{t}')

def softmax12(e, S, P, t):
    maxchain(e, t, range(S, S + 12), 'f32')
    xg_reduce(e, 'v_max_f32', t, t + 1)
    e.I(f'v_mul_f32 v{t}, s53, v{t}')
    for i in range(12):
        e.I(f'v_fma_f32 v{S+i}, v{S+i}, s52, v{t}')
    for i in range(12):
        e.I(f'v_exp_f32 v{S+i}, v{S+i}')
    e.I(f'v_add_f32 v{t+2}, v{S}, v{S+1}')
    e.I(f'v_add_f32 v{t+3}, v{S+2}, v{S+3}')
    for i in range(4, 12, 2):
        e.I(f'v_add_f32 v{t+2}, v{t+2}, v{S+i}')
        e.I(f'v_add_f32 v{t+3}, v{t+3}, v{S+i+1}')
    e.I(f'v_add_f32 v{t+2}, v{t+2}, v{t+3}')
    xg_reduce(e, 'v_add_f32', t + 2, t + 3)
    e.I(f'v_rcp_f32 v{t+2}, v{t+2}')
    for i in range(12):
        e.I(f'v_mul_f32 v{S+i}, v{S+i}, v{t+2}')
    for i in range(6):
        e.I(f'v_cvt_pk_bf16_f32 v{P+i}, v{S+2*i}, v{S+2*i+1}')

def softmax_list(S, n, P, t):
    x = Em()
    maxchain(x, t, range(S, S + n), 'f32')
    xg_reduce(x, 'v_max_f32', t, t + 1)
    x.I(f'v_mul_f32 v{t}, s53, v{t}')
    for i in range(n): x.I(f'v_fma_f32 v{S+i}, v{S+i}, s52, v{t}')
    for i in range(n): x.I(f'v_exp_f32 v{S+i}, v{S+i}')
    x.I(f'v_add_f32 v{t+2}, v{S}, v{S+1}')
    x.I(f'v_add_f32 v{t+3}, v{S+2}, v{S+3}')
    for i in range(4, n, 2):
        x.I(f'v_add_f32 v{t+2}, v{t+2}, v{S+i}')
        x.I(f'v_add_f32 v{t+3}, v{t+3}, v{S+i+1}')
    x.I(f'v_add_f32 v{t+2}, v{t+2}, v{t+3}')
    xg_reduce(x, 'v_add_f32', t + 2, t + 3)
    x.I(f'v_rcp_f32 v{t+2}, v{t+2}')
    for i in range(n): x.I(f'v_mul_f32 v{S+i}, v{S+i}, v{t+2}')
    for i in range(n // 2): x.I(f'v_cvt_pk_bf16_f32 v{P+i}, v{S+2*i}, v{S+2*i+1}')
    return [l.strip() for l in x.lines]

def DSTAMP(e, idx, cond=None, op='umax'):
    if not opt.dstamp: return
    sk = e.lab('Lds')
    if cond: e.I(cond); e.I(f's_cbranch_scc0 {sk}')
    e.I('s_memtime s[98:99]' if op == 'clk' else 's_memrealtime s[98:99]')
    e.I('s_waitcnt lgkmcnt(0)')
    if op == 'neg': e.I('s_not_b32 s98, s98')
    e.I('s_mov_b64 exec, 1')
    e.I(f'v_mov_b32 v238, {idx*4}')
    e.I('v_mov_b32 v239, s98')
    e.I('global_atomic_umax v238, v239, s[74:75] sc1')
    e.I('s_mov_b64 exec, -1')
    e.L(sk)
def TS(e, k):
    if opt.ts: e.I(f's_memrealtime s[{76+2*k}:{77+2*k}]')
def TSflush(e, step, va=238, vd=239):
    if not opt.ts: return
    e.I('s_waitcnt lgkmcnt(0)')
    for k in range(10): e.I(f'v_writelane_b32 v{vd}, s{76+2*k}, {k}')
    e.I('s_lshl_b32 s76, s20, 5')
    e.I('s_add_u32 s76, s76, s21')
    e.I('s_lshl_b32 s76, s76, 2')
    e.I('s_add_u32 s76, s76, s22')
    e.I('s_mul_i32 s76, s76, 72')
    e.I(f's_add_u32 s76, s76, {step}')
    e.I('s_lshl_b32 s76, s76, 6')
    e.I(f's_add_u32 s76, s76, {DBGT}')
    e.I(f'v_lshlrev_b32 v{va}, 2, v1')
    e.I('s_mov_b64 exec, 0x3ff')
    e.I(f'buffer_store_dword v{vd}, v{va}, {WS}, s76 offen')
    e.I('s_mov_b64 exec, -1')

def lane_ig(e, vi, vg):
    e.I(f'v_and_b32 v{vi}, 15, v1')
    e.I(f'v_lshrrev_b32 v{vg}, 4, v1')

def load_weights(e, mats, RS, rows, paired, vA, vT, NB=3, bufoff=None, manual=False):
    CH = rows * 128
    ninst = rows // 8 // 4
    nk = rows // 32
    e.I(f'v_lshrrev_b32 v{vT}, 3, v1')
    if paired:
        e.I(f'v_bfe_u32 v{vT+1}, v1, 4, 2')
    else:
        e.I(f'v_bfe_u32 v{vT+1}, v1, 4, 1')
        e.I('s_and_b32 s54, s22, 1')
        e.I('s_lshl_b32 s54, s54, 1')
        e.I(f'v_or_b32 v{vT+1}, s54, v{vT+1}')
    e.I(f'v_lshlrev_b32 v{vT+1}, 1, v{vT+1}')
    e.I(f'v_and_b32 v{vT+2}, 7, v1')
    e.I(f'v_xor_b32 v{vT+2}, v{vT+2}, v{vT+1}')
    e.I(f's_mov_b32 s54, {RS}')
    e.I(f'v_mul_lo_u32 v{vA}, s54, v{vT}')
    e.I(f'v_lshl_add_u32 v{vA}, v{vT+2}, 4, v{vA}')
    e.I(f'v_lshrrev_b32 v{vT}, 4, v1')
    e.I(f'v_bfe_u32 v{vT+1}, v1, 2, 2')
    if paired:
        e.I(f'v_lshl_add_u32 v{vT+2}, v{vT}, 2, v{vT+1}')
        e.I(f'v_bfe_u32 v{vT}, v{vT+2}, 1, 2')
        second = 2048
    else:
        e.I(f'v_lshl_add_u32 v{vT+2}, v{vT}, 3, v{vT+1}')
        e.I(f'v_and_b32 v{vT}, 1, v{vT}')
        e.I(f'v_lshlrev_b32 v{vT}, 1, v{vT}')
        e.I(f'v_bfe_u32 v{vT+1}, v1, 3, 1')
        e.I(f'v_or_b32 v{vT}, v{vT}, v{vT+1}')
        second = 512
    e.I(f'v_xor_b32 v{vT}, s22, v{vT}')
    e.I(f'v_lshlrev_b32 v{vT+2}, 7, v{vT+2}')
    e.I(f'v_lshl_add_u32 v{vT+2}, v{vT}, 5, v{vT+2}')
    e.I(f'v_and_b32 v{vT}, 3, v1')
    e.I(f'v_lshl_add_u32 v{vT}, v{vT}, 3, v{vT+2}')
    bufoff = bufoff or [k * CH for k in range(NB)]
    for k in range(NB - 1, -1, -1):
        if bufoff[k]  or k: e.I(f'v_add_u32 v{vT+k}, {bufoff[k]}, v{vT}')
    chunks = []
    for (srd_, sofs, ab, nrows) in mats:
        for c in range(nrows // rows):
            chunks.append((srd_, sofs, ab + c * nk * 4, c * rows))
    e.I(f's_mul_i32 s55, s22, {8*RS}')
    e.I('s_lshl_b32 s56, s22, 10')
    def issue(ci, buf=None):
        srd_, sofs, ab, r0 = chunks[ci]
        if buf is None: buf = ci % NB
        e.I(f's_add_u32 s57, {sofs}, s55')
        if r0: e.I(f's_add_u32 s57, s57, {r0*RS}')
        for n in range(ninst):
            e.I(f's_add_u32 m0, s56, {bufoff[buf] + n*4096}')
            e.I(f'buffer_load_dwordx4 v{vA}, {srd_}, s57 offen{WFL[opt.wnt]} lds')
            if n + 1 < ninst: e.I(f's_add_u32 s57, s57, {32*RS}')
    def consume(ci, buf, pending):
        e.I(f's_waitcnt vmcnt({pending})')
        if ci < 8: TS(e, 2 + ci)
        e.I('s_barrier')
        srd_, sofs, ab, r0 = chunks[ci]
        for k in range(nk):
            e.I(f'ds_read_b64_tr_b16 {ar(ab+4*k,2)}, v{vT+buf} offset:{k*4096}')
            e.I(f'ds_read_b64_tr_b16 {ar(ab+4*k+2,2)}, v{vT+buf} offset:{k*4096+second}')
        e.I('s_waitcnt lgkmcnt(0)')
        e.I('s_barrier')
    if manual: return issue, consume
    for ci in range(min(NB, len(chunks))): issue(ci)
    for ci in range(len(chunks)):
        left = min(len(chunks) - 1 - ci, NB - 1)
        e.I(f's_waitcnt vmcnt({left*ninst})')
        if ci < 8: TS(e, 2 + ci)
        e.I('s_barrier')
        srd_, sofs, ab, r0 = chunks[ci]
        for k in range(nk):
            e.I(f'ds_read_b64_tr_b16 {ar(ab+4*k,2)}, v{vT+ci%NB} offset:{k*4096}')
            e.I(f'ds_read_b64_tr_b16 {ar(ab+4*k+2,2)}, v{vT+ci%NB} offset:{k*4096+second}')
        e.I('s_waitcnt lgkmcnt(0)')
        e.I('s_barrier')
        if ci + NB < len(chunks): issue(ci + NB)

def touch_jobs(e, jobs, sw, nw, sh, t, rot=0):
    sizes = sorted({min(n, 64) for _, _, n in jobs} | {n - 64 for _, _, n in jobs if n > 64})
    reg = {}
    for k, n in enumerate(sizes):
        reg[n] = t + 1 + k
        e.I(f'v_min_u32 v{reg[n]}, {n-1}, v1')
        e.I(f'v_lshlrev_b32 v{reg[n]}, 7, v{reg[n]}')
    flat = []
    for base, per, n in jobs:
        flat.append((base, per, min(n, 64)))
        if n > 64: flat.append((base + 8192, per, n - 64))
    for c in range(nw):
        sk = e.lab('Ltj')
        e.I(f's_cmp_lg_u32 {sw}, {c}')
        e.I(f's_cbranch_scc1 {sk}')
        for base, per, n in flat[(c - rot) % nw::nw]:
            e.I(f's_mul_i32 s38, {sh}, {per}')
            e.I(f's_add_u32 s38, s38, {base}')
            e.I(f'buffer_load_dword v{t}, v{reg[n]}, {WS}, s38 offen sc1')
        e.L(sk)

def prefetch_w(e, su, j0, j1, t, srdv, srdq):
    for k in range(3):
        e.I(f'v_add_u32 v{t+3}, {1024*k}, v2')
        e.I(f'v_cmp_le_u32 vcc, 1536, v{t+3}')
        e.I(f'v_add_u32 v{t+k}, {12288-1536}, v{t+3}')
        e.I(f'v_cndmask_b32 v{t+k}, v{t+3}, v{t+k}, vcc')
    e.I('s_mul_i32 s39, s20, 1536')
    e.I(f's_mul_i32 s38, {su}, {2*12288}')
    e.I('s_add_u32 s38, s38, s39')
    for j in range(j0, j1):
        row = 320 + 80 * j if j < 4 else 80 * (j - 4)
        e.I(f's_add_u32 s39, s38, {row*12288}')
        for k in range(3): e.I(f'buffer_load_dwordx4 {vr(t+4)}, v{t+k}, {srdv if j < 4 else srdq}, s39 offen{WFL[opt.wnt]}')

Q_LX, Q_LMEM = 0, 81920
def role_qkv(e):
    fl = ''
    WQ, WK, WV = 0, 80, 160
    MF = 16
    DQ, DK, DV = 96, 100, 104
    PA, PB = 108, 120
    XD = 132
    T0 = 160
    KEEP = 176; TCH = 180
    XA, VA, IDX, SEL, MP = 182, 183, 184, 185, 186
    XRA, XQA, XKA, OQK = 187, 188, 189, 190
    SENT = 248; ONE = 252
    e.I('s_mul_i32 s24, s21, 43')
    e.I('s_lshr_b32 s24, s24, 7')
    e.I('s_mul_i32 s25, s24, 3')
    e.I('s_sub_u32 s25, s21, s25')
    e.I('s_lshl_b32 s26, s20, 2')
    e.I('s_add_u32 s26, s26, s24')
    e.I('s_lshl_b32 s27, s25, 2')
    e.I('s_add_u32 s27, s27, s22')
    srd(e, 8, 60, 640 * 12288); srd(e, 12, 62, 640 * 12288); srd(e, 16, 64, 640 * 12288)
    e.I('s_mul_i32 s28, s26, 384')
    e.I('s_lshl_b32 s29, s25, 7')
    e.I('s_add_u32 s28, s28, s29')
    w_issue, w_consume = load_weights(e, [('s[12:15]', 's28', WK, 640), ('s[16:19]', 's28', WV, 640), ('s[8:11]', 's28', WQ, 640)], 12288, 320, False, 240, 241, 3,
                                      bufoff=[81920, 122880, 40960], manual=True)
    for ci in range(3): w_issue(ci)
    e.I('s_mul_i32 s38, s22, 3072')
    e.I('s_min_u32 s38, s38, 7168')
    e.I('v_add_u32 v3, s38, v2')
    e.I(f'v_add_u32 v5, {Q_LMEM}, v3')
    e.I(f'v_add_u32 v7, {Q_LMEM}, v2')
    lane_ig(e, 14, 15)
    e.I('s_lshr_b32 s38, s27, 1')
    e.I('s_lshl_b32 s38, s38, 10')
    e.I('s_and_b32 s39, s27, 1')
    e.I('s_lshl_b32 s39, s39, 3')
    e.I('s_add_u32 s38, s38, s39')
    e.I('v_add_u32 v8, s38, v2')
    e.I('v_bfe_u32 v11, v1, 2, 2')
    e.I('v_and_b32 v12, 3, v1')
    e.I(f'v_lshlrev_b32 v{XA}, 8, v11')
    e.I(f'v_lshl_add_u32 v{XA}, v15, 6, v{XA}')
    e.I(f'v_lshl_add_u32 v{XA}, v12, 4, v{XA}')
    e.I(f'v_add_u32 v{XA}, s38, v{XA}')
    if opt.eord:
        e.I('s_lshr_b32 s38, s27, 1')
        e.I('s_and_b32 s39, s27, 1')
        e.I('s_lshl_b32 s39, s39, 9')
        e.I('s_lshl_b32 s40, s38, 10')
        e.I('s_add_u32 s40, s40, s39')
        e.I('v_lshrrev_b32 v9, 1, v11')
        e.I('v_lshlrev_b32 v9, 8, v9')
        e.I('v_and_b32 v13, 1, v11')
        e.I('v_lshl_add_u32 v9, v13, 3, v9')
        e.I('v_lshl_add_u32 v9, v12, 4, v9')
        e.I(f'v_lshl_add_u32 v{XA}, v15, 6, v9')
        e.I(f'v_add_u32 v{XA}, s40, v{XA}')
        e.I('v_lshrrev_b32 v13, 1, v15')
        e.I(f'v_lshlrev_b32 v{OQK}, 8, v13')
        e.I(f'v_lshl_add_u32 v{OQK}, v14, 4, v{OQK}')
        e.I(f'v_add_u32 v{OQK}, s40, v{OQK}')
        e.I(f'v_and_b32 v{XQA}, 1, v15')
        e.I(f'v_mul_u32_u24 v{XKA}, {6144 if opt.ox4 else 8}, v{XQA}')
        e.I(f'v_add_u32 v{OQK}, v{OQK}, v{XKA}')
        e.I('s_cmp_ge_u32 s38, 3')
        e.I(f's_cselect_b32 s39, {3072 - 128}, 0')
        e.I('s_sub_u32 s40, s40, s39')
        e.I(f'v_lshl_add_u32 v{XRA}, v{XQA}, 6, v9')
        e.I(f'v_mul_u32_u24 v13, 3072, v13')
        e.I(f'v_add3_u32 v{XRA}, v{XRA}, v13, s40')
        e.I('v_lshrrev_b32 v13, 5, v1')
        e.I(f'v_lshl_or_b32 v{XQA}, v13, 31, v{XRA}')
        e.I('v_xor_b32 v13, 1, v13')
        e.I(f'v_lshl_or_b32 v{XKA}, v13, 31, v{XRA}')
    if opt.inl:
        e.I('v_lshlrev_b32 v13, 4, v12')
        e.I('v_sub_u32 v9, v9, v13')
        e.I('v_and_b32 v13, 1, v12')
        e.I('v_lshl_add_u32 v9, v13, 4, v9')
        e.I('v_lshrrev_b32 v13, 1, v12')
        e.I(f'v_lshl_add_u32 v{XA}, v15, 5, v9')
        e.I(f'v_add_u32 v{XQA}, s40, v{XA}')
        e.I(f'v_lshl_add_u32 v{XA}, v13, 7, v{XA}')
        e.I('s_add_u32 s41, s40, s39')
        e.I(f'v_add_u32 v{XA}, s41, v{XA}')
        e.I('s_cmp_ge_u32 s38, 3')
        e.I('s_cselect_b32 s41, 96, 0')
        e.I('s_sub_u32 s41, s40, s41')
        e.I('s_add_u32 s41, s41, 3072')
        e.I(f'v_lshl_add_u32 v{XKA}, v15, 6, v9')
        e.I(f'v_add_u32 v{XKA}, s41, v{XKA}')
        if opt.own:
            e.I('v_and_b32 v9, 24, v9')
            e.I('s_lshl_b32 s41, s27, 8')
            e.I('v_add_u32 v9, s41, v9')
            e.I(f'v_lshrrev_b32 v{XRA}, 1, v11')
            e.I(f'v_lshl_add_u32 v{XQA}, v15, 5, v9')
            e.I(f'v_lshl_add_u32 v{XQA}, v{XRA}, 7, v{XQA}')
            e.I(f'v_lshl_add_u32 v{XKA}, v15, 6, v9')
            e.I(f'v_lshl_add_u32 v{XKA}, v{XRA}, 5, v{XKA}')
            e.I(f'v_add_u32 v{XKA}, 3072, v{XKA}')
        e.I('v_cmp_eq_u32 vcc, 1, v13')
        e.I(f'v_cndmask_b32 v{XRA}, v{XQA}, v{XKA}, vcc')
    e.I('v_and_b32 v13, 1, v15')
    e.I('v_lshlrev_b32 v13, 2, v13')
    e.I('v_lshrrev_b32 v9, 1, v15')
    e.I('v_lshl_add_u32 v13, v9, 1, v13')
    e.I('v_and_b32 v9, 1, v12')
    e.I('v_add_u32 v13, v13, v9')
    e.I('v_lshrrev_b32 v12, 1, v12')
    e.I('v_lshrrev_b32 v9, 1, v11')
    e.I('v_lshlrev_b32 v9, 8, v9')
    e.I('v_lshl_add_u32 v9, v12, 7, v9')
    e.I('v_lshl_add_u32 v9, v13, 4, v9')
    e.I(f'v_and_b32 v{VA}, 1, v11')
    e.I(f'v_lshl_add_u32 v9, v{VA}, 3, v9')
    e.I('s_lshl_b32 s38, s25, 10')
    e.I('s_lshr_b32 s39, s22, 1')
    e.I('s_lshl_b32 s39, s39, 9')
    e.I('s_add_u32 s38, s38, s39')
    e.I('s_and_b32 s39, s22, 1')
    e.I('s_lshl_b32 s39, s39, 2')
    e.I('s_add_u32 s38, s38, s39')
    e.I('v_add_u32 v9, s38, v9')
    e.I(f'v_lshlrev_b32 v{VA}, 8, v11')
    e.I(f'v_lshl_add_u32 v{VA}, v13, 4, v{VA}')
    e.I(f'v_lshl_add_u32 v{VA}, v12, 2, v{VA}')
    e.I('s_lshr_b32 s38, s27, 1')
    e.I('s_cmp_ge_u32 s38, 3')
    e.I('s_cselect_b32 s39, 3, 0')
    e.I('s_cselect_b32 s40, 128, 0')
    e.I('s_sub_u32 s38, s38, s39')
    e.I('s_lshl_b32 s38, s38, 10')
    e.I('s_add_u32 s38, s38, s40')
    e.I('s_and_b32 s39, s27, 1')
    e.I('s_lshl_b32 s39, s39, 3')
    e.I('s_add_u32 s38, s38, s39')
    e.I(f'v_add_u32 v{VA}, s38, v{VA}')
    if opt.vx2:
        e.I('v_and_b32 v12, 3, v1')
        e.I('v_lshlrev_b32 v13, 6, v15')
        e.I('v_lshl_add_u32 v13, v12, 4, v13')
        e.I('v_lshrrev_b32 v12, 5, v1')
        e.I('v_lshl_or_b32 v13, v12, 31, v13')
        e.I(f'v_lshl_add_u32 v{VA}, v11, 8, v13')
        e.I(f'v_add_u32 v{VA}, s38, v{VA}')
        e.I('v_lshrrev_b32 v9, 1, v11')
        e.I('v_lshl_add_u32 v9, v9, 8, v13')
        e.I('v_and_b32 v12, 1, v11')
        e.I('v_lshl_add_u32 v9, v12, 3, v9')
        e.I('s_lshl_b32 s38, s25, 10')
        e.I('s_lshr_b32 s39, s22, 1')
        e.I('s_lshl_b32 s39, s39, 9')
        e.I('s_add_u32 s38, s38, s39')
        e.I('s_and_b32 s39, s22, 1')
        e.I('s_lshl_b32 s39, s39, 7')
        e.I('s_add_u32 s38, s38, s39')
        e.I('v_add_u32 v9, s38, v9')
    if opt.inl:
        e.I('v_lshlrev_b32 v12, 5, v15')
        e.I(f'v_sub_u32 v{VA}, v{VA}, v12')
        e.I(f'v_and_b32 v{VA}, 0x7fffffff, v{VA}')
        e.I('v_and_b32 v9, 0x7fffffff, v9')
        e.I('s_and_b32 s39, s22, 1')
        e.I('s_mul_i32 s39, s39, 96')
        e.I('v_subrev_u32 v9, s39, v9')
        e.I('v_bfe_u32 v12, v1, 1, 1')
        e.I(f'v_lshl_or_b32 v{VA}, v12, 31, v{VA}')
        e.I('v_lshl_or_b32 v9, v12, 31, v9')
    e.I(f'v_mul_u32_u24 v{MP}, 5, v1')
    e.I(f'v_lshrrev_b32 v{MP}, 3, v{MP}')
    e.I(f'v_lshlrev_b32 v{MP}, 8, v{MP}')
    e.I(f'v_mov_b32 v{IDX}, 0x44444444')
    e.I('v_mov_b32 v11, 0xeeeeeeee')
    if opt.inl:
        e.I('v_and_b32 v12, 2, v1')
        e.I('v_cmp_lt_u32 vcc, 0, v12')
    else: e.I('v_cmp_lt_u32 vcc, 7, v14')
    e.I(f'v_cndmask_b32 v{IDX}, v{IDX}, v11, vcc')
    e.I(f'v_mov_b32 v{SEL}, 0x05040100')
    e.I('v_mov_b32 v11, 0x03020706')
    e.I('v_and_b32 v12, 1, v1')
    e.I('v_cmp_eq_u32 vcc, 1, v12')
    e.I(f'v_cndmask_b32 v{SEL}, v{SEL}, v11, vcc')
    e.I('s_mov_b32 s34, 0x33333333'); e.I('s_mov_b32 s35, 0x33333333')
    e.I('s_mov_b32 s36, 0xcccccccc'); e.I('s_mov_b32 s37, 0xcccccccc')
    for k in range(12): e.I(f'v_mov_b32 v{DQ+k}, 0')
    e.I('s_lshl_b32 s38, s27, 2')
    e.I(f'v_mov_b32 v{ONE+2}, s38')
    e.I(f'v_mov_b32 v{ONE}, 1')
    e.I(f'v_mov_b32 v{ONE+1}, 2')
    for k in range(4): e.I(f'v_mov_b32 v{SENT+k}, -1')
    e.I('s_mul_i32 s58, s26, 6144')
    e.I('s_mul_i32 s59, s20, 10240')
    e.I(f's_add_u32 s59, s59, {MEM}')
    e.I('s_mul_i32 s60, s26, 3072')
    e.I('s_lshl_b32 s61, s20, 6')
    e.I('s_lshl_b32 s38, s24, 2')
    e.I('s_add_u32 s61, s61, s38')
    e.I(f's_add_u32 s61, s61, {FLGOX}')
    e.I('v_mov_b32 v10, 0')

    nrd = [7]
    def late_list():
        vs = [f'buffer_store_dwordx2 {vr(KEEP+2,2)}, v{VA}, {WS}, s44 offen{fl}', f'buffer_store_dwordx2 {vr(SENT,2)}, v9, {WS}, s46 offen{fl}'] if opt.vx2 else \
             [f'buffer_store_dword v{KEEP+2}, v{VA}, {WS}, s44 offen{fl}', f'buffer_store_dword v{SENT}, v9, {WS}, s46 offen{fl}']
        return [f'buffer_store_dwordx2 {vr(KEEP,2)}, v{XA}, {WS}, s43 offen{fl}',
                f'buffer_store_dwordx2 {vr(SENT,2)}, v{XRA if opt.split else XA}, {WS}, s42 offen{fl}'] + vs
    def post2(D, t, keep, rm, st):
        QP1, QP2 = 'quad_perm:[1,0,3,2] row_mask:0xf bank_mask:0xf', f'quad_perm:[2,3,0,1] row_mask:{rm} bank_mask:0xf'
        return [[f'v_permlane32_swap_b32 v{D}, v{D+2}', f'v_permlane32_swap_b32 v{D+1}, v{D+3}'],
                [f'v_add_f32 v{t+2}, v{D}, v{D+2}', f'v_add_f32 v{t+3}, v{D+1}, v{D+3}', f'v_cvt_pk_bf16_f32 v{t}, v{t+2}, v{t+3}', f'v_cvt_pk_bf16_f32 v{t+1}, v{t+2}, v{t+3}'],
                [f'v_permlane32_swap_b32 v{t}, v{t+1}', 's_mov_b64 vcc, s[34:35]'],
                [f'v_mov_b32_dpp v{t+2}, v{t} {QP1}', f'v_mov_b32_dpp v{t+3}, v{t+1} {QP1}', f'v_perm_b32 v{t}, v{t+2}, v{t}, v{SEL}', f'v_perm_b32 v{t+1}, v{t+3}, v{t+1}, v{SEL}'],
                [f'v_cndmask_b32_dpp v{keep}, v{t+1}, v{t}, vcc {QP2}', 's_mov_b64 vcc, s[36:37]', f'v_cndmask_b32_dpp v{keep+1}, v{t}, v{t+1}, vcc {QP2}', st],
                [f'v_mov_b32 v{D+k}, 0' for k in range(4)]]
    def late_stores():
        for x_ in late_list(): e.I(x_)
    def xwork(late, mats=(2, 1, 0), dma=True, spr=()):
        e.I('s_and_b32 s65, s64, 1')
        e.I('s_mul_i32 s66, s65, 40960')
        if opt.x2e and late:
            e.I('s_cmp_eq_u32 s64, 2')
            e.I('s_cselect_b32 s66, 122880, s66')
        e.I('v_add_u32 v12, s66, v2')
        e.I('s_xor_b32 s65, s65, 1')
        e.I('s_mul_i32 s65, s65, 40960')
        e.I('s_add_u32 s65, s65, s62')
        e.I('s_add_u32 s66, s64, 1')
        e.I('s_min_u32 s66, s66, 63')
        e.I('s_mul_i32 s66, s66, 40960')
        e.I('s_add_u32 s66, s66, s62')
        e.I(f's_add_u32 s66, s66, {XN}')
        e.I(f's_and_b32 s47, s64, {RD-1}')
        e.I(f's_mul_i32 s47, s47, {SEG_QX}')
        e.I('s_lshl_b32 s48, s58, 1')
        e.I('s_add_u32 s47, s47, s48')
        if late:
            e.I(f's_max_u32 s50, s64, {RD}')
            e.I(f's_sub_u32 s50, s50, {RD}')
            e.I('s_lshl_b32 s50, s50, 9')
            e.I('s_add_u32 s50, s50, s61')
            e.I(f'buffer_load_dword v{TCH}, v10, {WS}, s50 offen sc1')
        PF = opt.xpf
        def rd(n): e.I(f'ds_read_b128 {vr(MF + (n % 20)*4)}, v12 offset:{n*1024}')
        def out(m, rt, part=3):
            d = XD + (m*2+rt)*4; o = T0 + (m*2+rt)*2
            e.I(f'v_cvt_pk_bf16_f32 v{o}, v{d}, v{d+1}')
            e.I(f'v_cvt_pk_bf16_f32 v{o+1}, v{d+2}, v{d+3}')
            if opt.eord and opt.ox4 and m < 2:
                if rt == 1:
                    e.I(f's_add_u32 s48, s47, {(QX, KX, VX)[m]}')
                    e.I(f'v_permlane16_swap_b32 v{o-2}, v{o}')
                    e.I(f'v_permlane16_swap_b32 v{o-1}, v{o+1}')
                    e.I(f'buffer_store_dwordx4 {vr(o-2)}, v{OQK}, {WS}, s48 offen{fl}')
            else:
                e.I(f's_add_u32 s48, s47, {(QX, KX, VX)[m] + rt*6144}')
                e.I(f'buffer_store_dwordx2 {vr(o,2)}, v{OQK if opt.eord and m < 2 else 8}, {WS}, s48 offen{fl}')
        for n in range(PF): rd(n)
        ls = late_list() if late else []
        d0 = max(opt.xdma0, 6 + len(late_list()))
        for n in range(40):
            rt, kk = n // 20, n % 20
            e.I(f's_waitcnt lgkmcnt({min(40, n + PF) - (n + 1)})')
            f = vr(MF + (n % 20)*4)
            for m in mats:
                Wb = (WQ, WK, WV)[m]
                d = vr(XD + (m*2+rt)*4)
                e.I(f'{MFMA} {d}, {ar(Wb+4*kk)}, {f}, {0 if kk == 0 else d}')
            if n + PF < 40: rd(n + PF)
            spr = list(spr)
            if spr and (n % 2 == 0 or len(spr) > (40 - n) // 2):
                for x_ in spr.pop(0): e.I(x_)
            if late and n == 5:
                bp = e.lab('Lbp')
                e.I(f's_cmp_lt_u32 s64, {RD}')
                e.I(f's_cbranch_scc1 {bp}')
                e.I('s_waitcnt vmcnt(0)')
                e.I(f'v_cmp_eq_u32 vcc, 0, v{TCH}')
                e.I(f's_cbranch_vccz {bp}')
                wait_flags(e, 10, 's50', 1, TCH, 13, sleep=1)
                e.L(bp)
            if n >= 6 and ls: e.I(ls.pop(0))
            elif dma and n >= d0 and (n - d0) % opt.xdmas == 0 and (n - d0) // opt.xdmas < 10:
                m = (n - d0) // opt.xdmas
                e.I(f's_add_u32 m0, s65, {m*1024}')
                e.I(f'buffer_load_dwordx4 v2, {WS}, s66 offen lds')
                e.I('s_add_u32 s66, s66, 1024')
            k0 = 23 if len(mats) > 1 else 28
            if k0 <= n < k0 + len(mats): out(mats[n - k0], 0)
        for m in mats: out(m, 1)
    def flag_addr(back):
        e.I(f's_sub_u32 s51, s64, {back}')
        e.I('s_lshl_b32 s51, s51, 5')
        e.I('s_add_u32 s51, s51, s26')
        e.I('s_lshl_b32 s51, s51, 6')
        e.I(f's_add_u32 s51, s51, {FLGQ}')
    def flag_n():
        flag_addr(0)
        e.I('s_waitcnt vmcnt(0)')
        set_flag(e, ONE + 2, 's51', ONE, fl)
    def mem_part():
        e.I('s_and_b32 s38, s30, 3')
        e.I('s_xor_b32 s39, s38, 2')
        e.I(f's_mul_i32 s40, s38, {MEM_SLOT}')
        e.I('s_add_u32 s40, s40, s59')
        e.I(f's_mul_i32 s41, s38, {XR_SLOT}')
        e.I('s_add_u32 s41, s41, s58')
        e.I(f's_add_u32 s41, s41, {XR}')
        e.I(f's_mul_i32 s42, s39, {XR_SLOT}')
        e.I('s_add_u32 s42, s42, s58')
        e.I(f's_add_u32 s42, s42, {XR}')
        e.I(f's_and_b32 s44, s30, {RD-1}')
        e.I(f's_mul_i32 s43, s44, {SEG_XP}')
        e.I('s_add_u32 s43, s43, s58')
        e.I(f's_add_u32 s43, s43, {XP}')
        e.I(f's_mul_i32 s44, s44, {SEG_VM}')
        e.I('s_add_u32 s44, s44, s60')
        e.I(f's_add_u32 s44, s44, {VM}')
        e.I(f's_mul_i32 s45, s38, {VR_SLOT}')
        e.I('s_add_u32 s45, s45, s60')
        e.I(f's_add_u32 s45, s45, {VR}')
        e.I(f's_mul_i32 s46, s39, {VR_SLOT}')
        e.I('s_add_u32 s46, s46, s60')
        e.I(f's_add_u32 s46, s46, {VR}')
        def issue(b):
            for k in range(3): e.I(f'buffer_load_dwordx4 {vr(b+4*k)}, v3, {WS}, s40 offen offset:{k*1024} sc1')
        def early(b):
            for k in range(3): e.I(f'ds_write_b128 v5, {vr(b+4*k)} offset:{k*1024}')
        flag_addr(1)
        wl = [e.lab('Lmw') for _ in range(4)]; jn = e.lab('Lmj')
        for w in range(1, 4):
            e.I(f's_cmp_eq_u32 s22, {w}')
            e.I(f's_cbranch_scc1 {wl[w]}')
        def sm(d, W, src, m): e.I(f'{SMF} {vr(d)}, {vr(src)}, {ar(W+8*m,8)}, v{IDX}')
        for w in range(4):
            e.L(wl[w])
            own = [min(3*w, 7) + k for k in range(3)]
            rest = [m for m in range(10) if m not in own]
            def consume(b):
                TS(e, 1)
                if not opt.spec: early(b)
                mine = [(d, W, b + 4*k, m) for k, m in enumerate(own) for d, W in ((DQ, WQ), (DK, WK))] + [(DV, WV, b + 4*k, m) for k, m in enumerate(own)]
                if opt.split == 1: mine = [(d, W, b + 4*k, m) for d, W in ((DQ, WQ), (DK, WK), (DV, WV))[:2 + opt.vown] for k, m in enumerate(own)]
                elif not opt.vown: mine = mine[:6]
                if opt.split == 1 and opt.fq == -3: e.I(FLAG())
                for x_ in mine[:opt.mpre]: sm(*x_)
                e.I('s_waitcnt lgkmcnt(0)')
                e.I('s_barrier')
                if opt.split == 1 and opt.fq == -2: e.I(FLAG())
                rl = [f'ds_read_b128 {vr(MF+4*k)}, v7 offset:{m*1024}' for k, m in enumerate(rds)]
                for x_ in rl[:opt.rdmix or 10]: e.I(x_)
                rl = rl[opt.rdmix or 10:]
                if opt.split == 1 and opt.fq == -1: e.I(FLAG())
                for n_, x_ in enumerate(mine[opt.mpre:]):
                    sm(*x_)
                    if rl: e.I(rl.pop(0))
                    if opt.split == 1 and opt.fq == 100 + n_: e.I(FLAG())
                for x_ in rl: e.I(x_)
            rds = rest + (own if not opt.vown else [])
            nrd[0] = len(rds)
            FLAG = lambda: f'buffer_store_dword v{ONE+opt.two}, v{ONE+2}, {WS}, s51 offen{fl}'
            if opt.mwait: e.I(f's_sleep {opt.mwait}')
            poll2(e, issue, 3, PA, PB, consume, T0, T0 + 1, 1, early if opt.spec else None)
            if opt.split == 1:
                seq = [(DQ, WQ, MF + 4*k, m) for k, m in enumerate(rest)] + [(DK, WK, MF + 4*k, m) for k, m in enumerate(rest)] + [(DV, WV, MF + 4*k, m) for k, m in enumerate(rds)]
                ins = {}
                for j_, g_ in enumerate(post2(DQ, T0 + 4, KEEP, '0x3', f'buffer_store_dwordx2 {vr(KEEP,2)}, v{XQA}, {WS}, s41 offen{fl}')): ins.setdefault(7 + j_, []).extend(g_)
                for j_, g_ in enumerate(post2(DK, T0 + 8, KEEP, '0xc', f'buffer_store_dwordx2 {vr(KEEP,2)}, v{XKA}, {WS}, s41 offen{fl}')): ins.setdefault(14 + (0, 1, 1, 2, 3, 4)[j_] if opt.ktight else 14 + j_, []).extend(g_)
                for n_, x_ in enumerate(seq):
                    if n_ < 7: e.I(f's_waitcnt lgkmcnt({len(rds) - 1 - n_})')
                    if n_ == 21: e.I('s_waitcnt lgkmcnt(0)')
                    sm(*x_)
                    if n_ == opt.fq: e.I(FLAG())
                    for y_ in ins.get(n_, []):
                        e.I(y_)
                        if f'v{XKA},' in y_: TS(e, 2)
                vpost()
            else:
                e.I('s_mov_b64 vcc, s[34:35]')
                for k, m in enumerate(rest):
                    e.I(f's_waitcnt lgkmcnt({len(rds)-1-k})')
                    sm(DQ, WQ, MF + 4*k, m)
                    if opt.fpos == k: e.I(FLAG())
                    if not opt.qlead or k < 5: sm(DK, WK, MF + 4*k, m)
                if opt.qlead:
                    for k in (5, 6):
                        sm(DK, WK, MF + 4*k, rest[k])
                        if opt.fpos == k + 2: e.I(FLAG())
                post(lambda k: sm(DV, WV, MF + 4*k, rds[k]))
            if w < 3: e.I(f's_branch {jn}')
        e.L(jn)
        e.I('v_xor_b32 v5, 0xc000, v5')
        e.I('v_xor_b32 v7, 0xc000, v7')
        TS(e, 3)
    def post(vm):
        if opt.inl:
            QP1, QP2 = 'quad_perm:[1,0,3,2] row_mask:0xf bank_mask:0xf', 'quad_perm:[2,3,0,1] row_mask:0xf bank_mask:0xf'
            FLAG = f'buffer_store_dword v{ONE+opt.two}, v{ONE+2}, {WS}, s51 offen{fl}'
            todo = list(range(nrd[0]))
            def vm1():
                if todo:
                    if todo[0] == 7: e.I('s_waitcnt lgkmcnt(0)')
                    vm(todo.pop(0))
            if opt.qlead:
                for r in range(2): e.I(f'v_add_f32 v{DQ+r}, v{DQ+r}, v{DQ+2+r}')
                e.I(f'v_cvt_pk_bf16_f32 v{T0}, v{DQ}, v{DQ+1}')
                if opt.fpos >= 9: e.I(FLAG)
                e.I(f'v_mov_b32 v{DQ+2}, 0')
                e.I(f'v_mov_b32_dpp v{T0+2}, v{T0} {QP1}')
                e.I(f'v_perm_b32 v{T0}, v{T0+2}, v{T0}, v{SEL}')
                for r in range(2): e.I(f'v_add_f32 v{DK+r}, v{DK+r}, v{DK+2+r}')
                e.I(f'v_cvt_pk_bf16_f32 v{T0+1}, v{DK}, v{DK+1}')
                if opt.vin & 1: vm1()
                e.I(f'v_mov_b32_dpp v{T0+3}, v{T0+1} {QP1}')
                e.I(f'v_perm_b32 v{T0+1}, v{T0+3}, v{T0+1}, v{SEL}')
            else:
                if opt.fpos == 8: e.I(FLAG)
                for m in range(opt.vpre): vm1()
                if opt.fpos == 9: e.I(FLAG)
                for D in (DQ, DK):
                    for r in range(2): e.I(f'v_add_f32 v{D+r}, v{D+r}, v{D+2+r}')
                if opt.fpos == 10: e.I(FLAG)
                e.I(f'v_cvt_pk_bf16_f32 v{T0}, v{DQ}, v{DQ+1}')
                e.I(f'v_cvt_pk_bf16_f32 v{T0+1}, v{DK}, v{DK+1}')
                if opt.vin & 1: vm1()
                if opt.fpos == 11: e.I(FLAG)
                e.I(f'v_mov_b32_dpp v{T0+2}, v{T0} {QP1}')
                e.I(f'v_mov_b32_dpp v{T0+3}, v{T0+1} {QP1}')
                e.I(f'v_perm_b32 v{T0}, v{T0+2}, v{T0}, v{SEL}')
                e.I(f'v_perm_b32 v{T0+1}, v{T0+3}, v{T0+1}, v{SEL}')
            if opt.vin & 2: vm1()
            if opt.fpos == 12 and not opt.qlead: e.I(FLAG)
            e.I(f'v_cndmask_b32_dpp v{KEEP}, v{T0+1}, v{T0}, vcc {QP2}')
            e.I('s_mov_b64 vcc, s[36:37]')
            e.I(f'v_cndmask_b32_dpp v{KEEP+1}, v{T0}, v{T0+1}, vcc {QP2}')
            e.I(f'buffer_store_dwordx2 {vr(KEEP,2)}, v{XRA}, {WS}, s41 offen{fl}')
            TS(e, 2)
            z = [f'v_mov_b32 v{DQ+k}, 0' for k in range(8)]
            while todo:
                vm1()
                if len(z) > 7 - opt.zin and todo: e.I(z.pop(0))
            for x_ in z: e.I(x_)
            e.I(f'v_add_f32 v{DV}, v{DV}, v{DV+2}')
            e.I(f'v_add_f32 v{DV+1}, v{DV+1}, v{DV+3}')
            e.I(f'v_cvt_pk_bf16_f32 v{T0}, v{DV}, v{DV+1}')
            e.I(f'v_mov_b32 v{DV+2}, 0'); e.I(f'v_mov_b32 v{DV+3}, 0')
            e.I(f'v_mov_b32_dpp v{T0+2}, v{T0} {QP1}')
            e.I(f'v_perm_b32 v{KEEP+2}, v{T0+2}, v{T0}, v{SEL}')
            e.I(f'v_mov_b32 v{DV}, 0'); e.I(f'v_mov_b32 v{DV+1}, 0')
            e.I(f'v_mov_b32_dpp v{KEEP+3}, v{KEEP+2} {QP2}')
            e.I(f'buffer_store_dwordx2 {vr(KEEP+2,2)}, v9, {WS}, s45 offen{fl}')
            return
        if opt.vgap:
            QP1, QP2 = 'quad_perm:[1,0,3,2] row_mask:0xf bank_mask:0xf', 'quad_perm:[2,3,0,1] row_mask:0xf bank_mask:0xf'
            L = [f'v_permlane32_swap_b32 v{DQ+r}, v{DK+r}' for r in range(4)] + [f'v_add_f32 v{DQ+r}, v{DQ+r}, v{DK+r}' for r in range(4)]
            L += [f'v_cvt_pk_bf16_f32 v{T0}, v{DQ}, v{DQ+1}', f'v_cvt_pk_bf16_f32 v{T0+1}, v{DQ+2}, v{DQ+3}', '*',
                  f'v_mov_b32_dpp v{T0+2}, v{T0} {QP1}', f'v_mov_b32_dpp v{T0+3}, v{T0+1} {QP1}', f'v_perm_b32 v{T0}, v{T0+2}, v{T0}, v{SEL}', f'v_perm_b32 v{T0+1}, v{T0+3}, v{T0+1}, v{SEL}', '*',
                  f'v_cndmask_b32_dpp v{KEEP}, v{T0+1}, v{T0}, vcc {QP2}', 's_mov_b64 vcc, s[36:37]', f'v_cndmask_b32_dpp v{KEEP+1}, v{T0}, v{T0+1}, vcc {QP2}',
                  f'buffer_store_dwordx2 {vr(KEEP,2)}, v{XRA if opt.split else XA}, {WS}, s41 offen{fl}']
            m = 0
            for m in range(opt.vpre): vm(m)
            m = opt.vpre; c = 0
            for n_, x_ in enumerate(L):
                if n_ == opt.fv: e.I(f'buffer_store_dword v{ONE+opt.two}, v{ONE+2}, {WS}, s51 offen{fl}'); c += 1
                if x_ == '*':
                    if m < 7 and c >= 2: vm(m); m += 1; c = 0
                    continue
                e.I(x_); c += 1
                if c >= opt.vgap and m < 7 and n_ < 16 and L[n_ + 1] != '*': vm(m); m += 1; c = 0
            TS(e, 2)
            while m < 7: vm(m); m += 1
            for k in range(8): e.I(f'v_mov_b32 v{DQ+k}, 0')
            vpost()
            return
        QP1, QP2 = 'quad_perm:[1,0,3,2] row_mask:0xf bank_mask:0xf', 'quad_perm:[2,3,0,1] row_mask:0xf bank_mask:0xf'
        nv = opt.vpre
        for m in range(nv): vm(m)
        if opt.fpos == 10: e.I(f'buffer_store_dword v{ONE+opt.two}, v{ONE+2}, {WS}, s51 offen{fl}')
        for r in range(4): e.I(f'v_permlane32_swap_b32 v{DQ+r}, v{DK+r}')
        for r in range(4): e.I(f'v_add_f32 v{DQ+r}, v{DQ+r}, v{DK+r}')
        e.I(f'v_cvt_pk_bf16_f32 v{T0}, v{DQ}, v{DQ+1}')
        e.I(f'v_cvt_pk_bf16_f32 v{T0+1}, v{DQ+2}, v{DQ+3}')
        vm(nv)
        if opt.fpos == 11: e.I(f'buffer_store_dword v{ONE+opt.two}, v{ONE+2}, {WS}, s51 offen{fl}')
        e.I(f'v_mov_b32_dpp v{T0+2}, v{T0} {QP1}')
        e.I(f'v_mov_b32_dpp v{T0+3}, v{T0+1} {QP1}')
        e.I(f'v_perm_b32 v{T0}, v{T0+2}, v{T0}, v{SEL}')
        e.I(f'v_perm_b32 v{T0+1}, v{T0+3}, v{T0+1}, v{SEL}')
        vm(nv + 1)
        if opt.fpos == 12: e.I(f'buffer_store_dword v{ONE+opt.two}, v{ONE+2}, {WS}, s51 offen{fl}')
        e.I(f'v_cndmask_b32_dpp v{KEEP}, v{T0+1}, v{T0}, vcc {QP2}')
        e.I('s_mov_b64 vcc, s[36:37]')
        e.I(f'v_cndmask_b32_dpp v{KEEP+1}, v{T0}, v{T0+1}, vcc {QP2}')
        e.I(f'buffer_store_dwordx2 {vr(KEEP,2)}, v{XRA if opt.split else XA}, {WS}, s41 offen{fl}')
        TS(e, 2)
        for m in range(nv + 2, 7): vm(m)
        for k in range(8): e.I(f'v_mov_b32 v{DQ+k}, 0')
        vpost()
    def vpost():
        if opt.vx2:
            for g_ in post2(DV, T0 + 4, KEEP + 2, '0xf', f'buffer_store_dwordx2 {vr(KEEP+2,2)}, v9, {WS}, s45 offen{fl}'):
                for y_ in g_: e.I(y_)
            return
        QP1 = 'quad_perm:[1,0,3,2] row_mask:0xf bank_mask:0xf'
        e.I(f'v_permlane32_swap_b32 v{DV}, v{DV+2}')
        e.I(f'v_permlane32_swap_b32 v{DV+1}, v{DV+3}')
        e.I(f'v_add_f32 v{DV}, v{DV}, v{DV+2}')
        e.I(f'v_add_f32 v{DV+1}, v{DV+1}, v{DV+3}')
        e.I(f'v_cvt_pk_bf16_f32 v{T0}, v{DV}, v{DV+1}')
        e.I(f'v_mov_b32_dpp v{T0+2}, v{T0} {QP1}')
        e.I(f'v_perm_b32 v{KEEP+2}, v{T0+2}, v{T0}, v{SEL}')
        e.I(f'buffer_store_dword v{KEEP+2}, v9, {WS}, s45 offen{fl}')
        for k in range(4): e.I(f'v_mov_b32 v{DV+k}, 0')
    e.I('s_mul_i32 s62, s22, 10240')
    def xdma(seg, buf):
        e.I(f's_add_u32 s63, s62, {XN + seg*40960}')
        for m in range(10):
            e.I(f's_add_u32 m0, s62, {Q_LX + buf*40960 + m*1024}')
            e.I(f'buffer_load_dwordx4 v2, {WS}, s63 offen lds')
            e.I('s_add_u32 s63, s63, 1024')
    w_consume(0, 0, 20); w_issue(3, 0)
    w_consume(1, 1, 20); w_issue(4, 1)
    w_consume(2, 2, 20)
    xe = 0
    if opt.x0e:
        xe = 10
        e.I('s_mov_b32 s38, 0')
        for hf in range(4):
            e.I(f's_load_dwordx8 s[40:47], s[74:75], {D_REG + 32*hf} glc')
            e.I('s_waitcnt lgkmcnt(0)')
            for k in range(0, 8, 4):
                e.I(f's_add_u32 s39, s{40+k}, s{41+k}'); e.I(f's_add_u32 s48, s{42+k}, s{43+k}'); e.I('s_add_u32 s39, s39, s48')
                e.I('s_lshr_b32 s48, s39, 8'); e.I('s_and_b32 s39, s39, 0xff00ff'); e.I('s_and_b32 s48, s48, 0xff00ff')
                e.I('s_add_u32 s38, s38, s39'); e.I('s_add_u32 s38, s38, s48')
        e.I('s_lshr_b32 s39, s38, 16'); e.I('s_and_b32 s38, s38, 0xffff'); e.I('s_add_u32 s38, s38, s39')
        e.I('s_cmp_eq_u32 s38, 256')
        e.I('s_cselect_b64 s[66:67], -1, 0')
        e.I('s_mov_b64 exec, s[66:67]')
        xdma(0, 0)
        e.I('s_mov_b64 exec, -1')
    w_consume(3, 0, 10 + xe)
    n0_ = len(e.lines)
    w_issue(5, 0)
    xdma(1, 1)
    sprk = []
    if True:
        cur = []
        for l_ in e.lines[n0_:]:
            cur.append(l_.strip())
            if 'buffer_load' in l_: sprk.append(cur); cur = []
        del e.lines[n0_:]
    if not opt.spr: sprk = []
    for g_ in sprk[:opt.spre]:
        for x_ in g_: e.I(x_)
    sprk = sprk[opt.spre:]
    w_consume(4, 1, xe + opt.spre)
    TS(e, 0)
    wait_reg(e, T0)
    TS(e, 1)
    TSflush(e, '69')
    if opt.x0e: e.I('s_not_b64 exec, s[66:67]')
    xdma(0, 0)
    if opt.x0e: e.I('s_mov_b64 exec, -1')
    if not opt.spr: w_issue(5, 0); xdma(1, 1)
    if opt.x2e == 1: xdma(2, 3)
    e.I('s_cmp_lg_u32 s23, 0')
    e.I('s_cbranch_scc1 L_qkvs')
    for slow in (False, True):
        fl = ' sc1' if slow else ''
        if slow: e.L('L_qkvs')
        pro, top, nox, nxt_, q0, q0r, qq, q1 = [e.lab(x_) for x_ in ('Lqp', 'Lqt', 'Lqn', 'Lqx', 'Lq0', 'Lqr', 'Lqq', 'Lq1')]
        e.I('s_mov_b32 s30, 0')
        e.I('s_mov_b32 s64, 0')
        TS(e, 0)
        for g_ in sprk[:opt.spr0]:
            for x_ in g_: e.I(x_)
        e.I(f's_waitcnt vmcnt({opt.spr0 if opt.spr else 30 if opt.x2e == 1 else 20})')
        TS(e, 1)
        e.I('s_barrier')
        xwork(False, (2, 1), False, sprk[opt.spr0:])
        e.I('s_mov_b32 s64, 1')
        TS(e, 2)
        flag_addr(1)
        e.I('s_waitcnt vmcnt(0)')
        TS(e, 3)
        set_flag(e, ONE + 2, 's51', ONE, fl)
        w_consume(5, 0, 1)
        if opt.urg: wait_count(e, T0, D_W, 80, 4)
        TS(e, 4)
        TSflush(e, '68')
        if opt.x2e == 2: xdma(2, 3)
        xwork(False, (2, 1, 0), False)
        e.I('s_mov_b32 s64, 2')
        e.I(f's_branch {top}')
        e.L(q0)
        e.I('s_mov_b32 s64, 0')
        xwork(False, (0,), False)
        if not opt.x2e:
            e.I('s_barrier')
            xdma(2, 0)
        e.I('s_mov_b32 s64, 2')
        if not opt.x2e:
            e.I('s_waitcnt vmcnt(0)')
            e.I('s_barrier')
        e.I(f's_branch {q0r}')
        e.L(top)
        TS(e, 0)
        mem_part()
        e.I('s_cmp_eq_u32 s30, 0')
        e.I(f's_cbranch_scc1 {q0}')
        e.L(q0r)
        e.I('s_cmp_ge_u32 s64, 64')
        e.I(f's_cbranch_scc1 {nox}')
        xwork(True)
        if opt.f63:
            e.I('s_cmp_lg_u32 s64, 63')
            e.I(f's_cbranch_scc1 {nxt_}')
            flag_n()
        e.I(f's_branch {nxt_}')
        e.L(nox)
        for x_ in late_list()[0::2]: e.I(x_)
        flag_n()
        e.L(nxt_)
        TS(e, 4)
        e.I('s_add_u32 s64, s64, 1')
        TS(e, 5)
        TSflush(e, 's30')
        e.I('s_add_u32 s30, s30, 1')
        e.I('s_cmp_lt_u32 s30, 64')
        e.I(f's_cbranch_scc1 {top}')
        if opt.qc:
            e.I('s_lshl_b32 s30, s21, 3')
            e.I('s_add_u32 s30, s30, s20')
            e.I(f's_add_u32 s30, s30, {opt.qc}')
            e.I('s_mov_b32 s33, 0')
            e.I('s_cmp_lt_u32 s30, 1280')
            e.I('s_cselect_b32 s38, s22, 1')
            e.I('s_cmp_eq_u32 s38, 0')
            e.I('s_cbranch_scc1 L_cmb2')
        e.I('s_endpgm')

S_RED = 98304
def role_sw(e):
    fl = ''
    XF, KXF, VXF, VMF = 16, 40, 88, 136
    S, PB, PM = 148, 160, 164
    DW, DM, VWX, VWM = 168, 184, 200, 216
    OUT = DW
    PA = XF
    CI = 224
    T0 = 228; IDX = 246; SENT = 248; ONE = 252
    AONE, AHALF = 96, 100
    W2 = 104 if opt.vx2 else 0
    PAD = 240
    e.I('s_sub_u32 s24, s21, 12')
    e.I('s_lshl_b32 s25, s24, 2')
    e.I('s_add_u32 s25, s25, s22')
    e.I('s_lshl_b32 s26, s20, 2')
    e.I('s_add_u32 s26, s26, s22')
    srd(e, 8, 66, 6144 * 1280)
    def wo_load():
        e.I(f's_mul_i32 s28, s26, {192*1280}')
        e.I('s_lshl_b32 s29, s24, 7')
        e.I('s_add_u32 s28, s28, s29')
        e.I('v_lshrrev_b32 v17, 3, v1')
        e.I('v_bfe_u32 v18, v1, 4, 2')
        e.I('v_lshlrev_b32 v18, 1, v18')
        e.I('v_and_b32 v19, 7, v1')
        e.I('v_xor_b32 v19, v19, v18')
        e.I('v_mul_u32_u24 v16, 1280, v17')
        e.I('v_lshl_add_u32 v16, v19, 4, v16')
        e.I('s_mul_i32 s46, s22, 24576')
        for n in range(24):
            e.I(f's_add_u32 m0, s46, {n*1024}')
            e.I(f'buffer_load_dwordx4 v16, s[8:11], s28 offen{WFL[opt.wnt]} lds')
            if n < 23: e.I(f's_add_u32 s28, s28, {8*1280}')
        extra = 0
        if opt.pfs == 2: sw_pf(); extra = 3 * (12 - opt.pfh)
        e.I('v_lshrrev_b32 v17, 2, v1')
        e.I('v_bfe_u32 v18, v17, 1, 2')
        e.I('v_lshlrev_b32 v17, 7, v17')
        e.I('v_and_b32 v19, 3, v1')
        e.I('v_lshl_add_u32 v17, v19, 3, v17')
        e.I('v_add_u32 v17, s46, v17')
        for ct in range(4):
            e.I(f'v_xor_b32 v19, {ct}, v18')
            e.I(f'v_lshl_add_u32 v{20+ct}, v19, 5, v17')
        for kk in range(6):
            e.I(f's_waitcnt vmcnt({20 - 4*kk + extra})')
            for ct in range(4):
                e.I(f'ds_read_b64_tr_b16 {ar((ct*6+kk)*4,2)}, v{20+ct} offset:{kk*4096}')
                e.I(f'ds_read_b64_tr_b16 {ar((ct*6+kk)*4+2,2)}, v{20+ct} offset:{kk*4096+2048}')
        e.I('s_waitcnt lgkmcnt(0)')
        if opt.vx2:
            for f_ in range(24):
                for k, k2 in enumerate((0, 2, 1, 3)): e.I(f'v_accvgpr_mov_b32 a{W2 + 4*f_ + k}, a{4*f_ + k2}')
    nocal = e.lab('Lnc')
    e.I('s_cmp_lg_u32 s25, 8')
    e.I(f's_cbranch_scc1 {nocal}')
    e.I('s_lshl_b32 s38, s20, 7')
    e.I(f's_add_u32 s38, s38, {CAL}')
    e.I('s_add_u32 s39, s38, 8192')
    e.I('s_mov_b32 s40, -1'); e.I('s_mov_b32 s41, -1'); e.I('s_mov_b32 s42, 4')
    e.I('v_mov_b32 v10, 0')
    e.I('s_mov_b64 exec, 1')
    cal = e.lab('Lcal')
    e.L(cal)
    for so, acc in (('s38', 's40'), ('s39', 's41')):
        e.I(f'buffer_store_dword v10, v10, {WS}, {so} offen sc1')
        e.I('s_waitcnt vmcnt(0)')
        e.I('s_memtime s[44:45]')
        e.I('s_waitcnt lgkmcnt(0)')
        e.I(f'buffer_load_dword v11, v10, {WS}, {so} offen sc1')
        e.I('s_waitcnt vmcnt(0)')
        e.I('s_memtime s[46:47]')
        e.I('s_waitcnt lgkmcnt(0)')
        e.I('s_sub_u32 s46, s46, s44')
        e.I(f's_min_u32 {acc}, {acc}, s46')
    e.I('s_sub_u32 s42, s42, 1')
    e.I('s_cmp_lg_u32 s42, 0')
    e.I(f's_cbranch_scc1 {cal}')
    e.I('s_cmp_lt_u32 s41, s40')
    if opt.pflip: e.I('s_cmp_ge_u32 s41, s40')
    e.I('s_cselect_b32 s38, 2, 1')
    e.I('v_mov_b32 v11, s38')
    e.I('s_lshl_b32 s38, s20, 2')
    e.I('v_mov_b32 v10, s38')
    e.I(f'global_store_dword v10, v11, s[74:75] offset:{D_PAR} sc1')
    e.I('s_mov_b64 exec, -1')
    e.L(nocal)
    def sw_pf():
        srd(e, 12, 64, 640 * 12288); srd(e, 16, 60, 640 * 12288)
        prefetch_w(e, 's25', opt.pfh, 12, 32, 's[12:15]', 's[16:19]')
    if opt.pfs == 1: sw_pf()
    def early_touch():
        jobs = []
        for sl in range(2): jobs += [(b_ + sl * SEG_QX, 12288, 96) for b_ in (KX, VX)]
        for sl in range(2): jobs += [(QX + sl * SEG_QX, 12288, 96), (XP + sl * SEG_XP, 6144, 48), (VM + sl * SEG_VM, 3072, 24)]
        touch_jobs(e, jobs, 's24', 10, 's26', 24)
    if opt.tord == 0: early_touch()
    if not opt.swlate: wo_load()
    if opt.tord == 1: early_touch()
    e.I(f's_mov_b32 s52, {SC_L2E:#x}'); e.I(f's_mov_b32 s53, {SC_L2E | 0x80000000:#x}')
    lane_ig(e, 14, 15)
    e.I('v_and_b32 v13, 7, v14')
    e.I('v_lshlrev_b32 v13, 4, v13')
    e.I('v_lshl_add_u32 v13, v15, 7, v13')
    e.I('v_bfe_u32 v5, v1, 3, 1')
    e.I('s_lshl_b32 s38, s22, 9')
    e.I(f's_add_u32 s38, s38, {S_RED}')
    e.I('v_add_u32 v6, s38, v13')
    e.I('v_lshl_add_u32 v6, v5, 14, v6')
    e.I('s_lshl_b32 s38, s22, 11')
    e.I(f's_add_u32 s38, s38, {S_RED}')
    e.I('v_add_u32 v7, s38, v13')
    e.I('v_lshl_add_u32 v7, v5, 10, v7')
    if opt.remap:
        e.I('v_bfe_u32 v8, v1, 1, 2')
        e.I('v_add_u32 v8, v8, v15')
        e.I('v_and_b32 v8, 3, v8')
        e.I('v_and_b32 v9, 7, v1')
        e.I('v_lshlrev_b32 v9, 6, v9')
        e.I('v_lshl_add_u32 v9, v8, 4, v9')
        e.I('v_sub_u32 v9, v9, v13')
        e.I('v_add_u32 v6, v6, v9')
    if opt.remap == 1:
        e.I('v_add_u32 v8, v1, v15')
        e.I('v_and_b32 v8, 3, v8')
        e.I('v_bfe_u32 v9, v1, 2, 1')
        e.I('v_lshl_add_u32 v9, v15, 1, v9')
        e.I('v_lshlrev_b32 v9, 6, v9')
        e.I('v_lshl_add_u32 v9, v8, 4, v9')
        e.I('v_sub_u32 v9, v9, v13')
        e.I('v_add_u32 v7, v7, v9')
    if opt.remap == 2:
        e.I('v_lshrrev_b32 v5, 5, v1')
        e.I('v_bfe_u32 v8, v1, 3, 2')
        e.I('v_add_u32 v8, v8, v1')
        e.I('v_and_b32 v8, 3, v8')
        e.I('v_bfe_u32 v9, v1, 2, 3')
        e.I('v_lshlrev_b32 v9, 6, v9')
        e.I('v_lshl_add_u32 v9, v8, 4, v9')
        e.I('v_add_u32 v7, s38, v9')
        e.I('v_lshl_add_u32 v7, v5, 10, v7')
        e.I('v_and_b32 v13, 31, v1')
        e.I('v_lshlrev_b32 v13, 4, v13')
    if opt.pbf: e.I('v_lshrrev_b32 v13, 1, v13')
    e.I('v_lshl_add_u32 v13, v5, 13, v13')
    e.I('v_and_b32 v4, 0x1fff, v13')
    e.I('v_lshlrev_b32 v9, 2, v5')
    e.I('v_xor_b32 v9, s20, v9')
    for m in range(4):
        e.I(f'v_xor_b32 v8, {m}, v9')
        e.I(f'v_lshl_add_u32 v{PAD+m}, v8, 9, v4')
    e.I('v_and_b32 v9, 7, v1')
    e.I('v_lshlrev_b32 v8, 4, v9')
    e.I('v_lshl_add_u32 v8, v5, 7, v8')
    e.I('v_lshl_add_u32 v8, v15, 2, v8')
    if opt.remap == 2: e.I('v_lshlrev_b32 v8, 2, v1')
    if opt.remap == 1:
        e.I('v_bfe_u32 v9, v1, 2, 1')
        e.I('v_lshl_add_u32 v9, v15, 1, v9')
        e.I('v_lshlrev_b32 v8, 4, v9')
        e.I('v_lshl_add_u32 v8, v5, 7, v8')
        e.I('v_and_b32 v9, 3, v1')
        e.I('v_lshl_add_u32 v8, v9, 2, v8')
        if opt.inl:
            e.I('v_bfe_u32 v8, v1, 2, 1')
            e.I('v_lshl_add_u32 v8, v5, 1, v8')
            e.I('v_lshl_add_u32 v8, v15, 2, v8')
            e.I('v_lshlrev_b32 v8, 4, v8')
            e.I('v_lshl_add_u32 v8, v9, 2, v8')
    e.I('s_lshl_b32 s38, s25, 8')
    e.I('v_add_u32 v8, s38, v8')
    e.I('v_lshrrev_b32 v9, 1, v1')
    if opt.split:
        e.I('v_cmp_lt_u32 vcc, 2, v9')
        e.I('v_lshlrev_b32 v9, 10, v9')
        e.I(f'v_add_u32 v10, {128 - 3072}, v9')
        e.I('v_cndmask_b32 v9, v9, v10, vcc')
    else:
        e.I('v_lshlrev_b32 v9, 10, v9')
    e.I('v_and_b32 v10, 1, v1')
    e.I(f'v_lshl_add_u32 v9, v10, {9 if opt.eord else 3}, v9')
    if opt.own:
        e.I('v_lshlrev_b32 v9, 8, v1')
        e.I('v_lshlrev_b32 v167, 4, v14')
        e.I('v_lshl_add_u32 v167, v15, 9, v167')
    e.I(f'v_lshlrev_b32 v{ONE+1}, 2, v1')
    for k in range(4): e.I(f'v_mov_b32 v{SENT+k}, -1')
    e.I('s_mov_b32 s68, 0xff00ff00'); e.I('s_mov_b32 s69, 0xff00ff00')
    e.I('s_mov_b32 s70, 0x3f80'); e.I('s_mov_b32 s71, 0x3f800000')
    e.I(f'v_mov_b32 v{CI}, {NEG_BIG:#x}')
    e.I('s_mov_b32 vcc_lo, 0')
    e.I('s_mov_b32 vcc_hi, 0x00ff00ff')
    e.I(f'v_cndmask_b32 v{CI}, v{CI}, 0, vcc')
    for k in range(1, 4): e.I(f'v_mov_b32 v{CI+k}, v{CI}')
    e.I(f'v_mov_b32 v{IDX}, 0x44444444')
    e.I('v_mov_b32 v11, 0xeeeeeeee')
    if opt.inl:
        e.I('v_and_b32 v12, 2, v1')
        e.I('v_cmp_lt_u32 vcc, 0, v12')
    else: e.I('v_cmp_lt_u32 vcc, 7, v14')
    e.I(f'v_cndmask_b32 v{IDX}, v{IDX}, v11, vcc')
    e.I('v_mov_b32 v11, 0x3f803f80')
    for k in range(4): e.I(f'v_accvgpr_write_b32 a{AONE+k}, v11')
    e.I('v_mov_b32 v11, 0x3f003f00')
    for k in range(2): e.I(f'v_accvgpr_write_b32 a{AHALF+k}, v11')
    e.I('s_mul_i32 s58, s26, 6144')
    e.I(f's_add_u32 s58, s58, {XR}')
    e.I('s_mul_i32 s57, s26, 3072')
    e.I(f's_add_u32 s57, s57, {VR}')
    e.I('s_lshr_b32 s59, s25, 1')
    e.I('s_lshl_b32 s59, s59, 14')
    e.I('s_and_b32 s38, s25, 1')
    e.I('s_lshl_b32 s38, s38, 12')
    e.I('s_add_u32 s59, s59, s38')
    e.I(f's_add_u32 s59, s59, {PART}')
    e.I('s_lshl_b32 s60, s20, 9')
    e.I('s_add_u32 s60, s60, s59')
    e.I('s_mul_i32 s61, s20, 10240')
    e.I(f's_add_u32 s61, s61, {MEM}')
    e.I('s_mul_i32 s62, s26, 12288')
    e.I('s_lshl_b32 s63, s26, 6')
    e.I(f's_add_u32 s63, s63, {FLGQ}')
    e.I('s_lshl_b32 s38, s20, 2')
    e.I('v_mov_b32 v10, s38')
    wait_flags(e, 10, D_PAR, 1, T0, 12, sleep=4, dbg=True)
    e.I(f'v_readfirstlane_b32 s38, v{T0}')
    e.I('s_nop 3')
    e.I('s_and_b32 s38, s38, 2')
    e.I('s_lshl_b32 s38, s38, 12')
    e.I('s_add_u32 s59, s59, s38')
    e.I('s_lshl_b32 s38, s22, 2')
    e.I(f's_add_u32 s38, s38, {S_RED + 8192}')
    e.I('v_lshlrev_b32 v10, 4, v14')
    e.I('v_add_u32 v10, s38, v10')
    e.I('v_and_b32 v11, 7, v14')
    if opt.remap == 1:
        e.I('v_bfe_u32 v11, v1, 2, 1')
        e.I('v_lshl_add_u32 v11, v15, 1, v11')
    if opt.remap == 2: e.I('v_bfe_u32 v11, v1, 2, 3')
    e.I('v_lshlrev_b32 v11, 4, v11')
    e.I(f'v_bfe_u32 v12, v1, {5 if opt.remap == 2 else 3}, 1')
    e.I('v_lshl_add_u32 v11, v12, 3, v11')
    e.I(f'v_add_u32 v11, {S_RED + 8192}, v11')
    e.I(f'v_min_u32 v12, {12 if opt.rpos == 9 else 11}, v1')
    e.I('v_lshlrev_b32 v12, 2, v12')
    if opt.nc > 1:
        e.I('v_and_b32 v13, 31, v1')
        e.I('v_lshlrev_b32 v13, 4, v13')
        e.I('v_lshrrev_b32 v15, 5, v1')
        e.I('v_lshl_add_u32 v13, v15, 13, v13')
    if opt.nod:
        e.I('v_bfe_u32 v15, v1, 3, 1')
        e.I('v_mul_u32_u24 v14, 1016, v15')
        e.I('v_sub_u32 v7, v7, v14')
        e.I('v_lshlrev_b32 v14, 3, v15')
        e.I('v_sub_u32 v11, v11, v14')
        e.I('v_lshlrev_b32 v15, 2, v1')
        for m, r_ in enumerate((PAD, PAD + 1, PAD + 2, PAD + 3, 4, 5, 14)):
            e.I(f's_xor_b32 s38, s20, {m + 1}')
            e.I('s_lshl_b32 s38, s38, 9')
            e.I(f'v_add_u32 v{r_}, s38, v15')
    def kx_off(q): return (q // 6) * 6144 + (q % 3) * 2048 + (q % 6 // 3) * 256
    def kv_loads(dst, base, q0=0, q1=12):
        if q0 >= q1: return
        if opt.own:
            e.I(f's_and_b32 s65, s49, {RD-1}')
            e.I(f's_mul_i32 s65, s65, {SEG_QX}')
            e.I('s_add_u32 s65, s65, s62')
            e.I(f's_add_u32 s65, s65, {base}')
            e.I('s_add_u32 s66, s65, 4096')
            e.I('s_add_u32 s67, s65, 8192')
            for q in range(12): e.I(f'buffer_load_dwordx4 {vr(dst+4*q)}, v167, {WS}, {("s65", "s66", "s67")[kx_off(q)//4096]} offen offset:{kx_off(q)%4096} sc1')
            return
        e.I(f's_and_b32 s48, s49, {RD-1}')
        e.I(f's_mul_i32 s48, s48, {SEG_QX}')
        e.I('s_add_u32 s48, s48, s62')
        e.I(f's_add_u32 s48, s48, {base + (q0//4)*4096}')
        for q in range(q0, q1):
            if q % 4 == 0 and q > q0: e.I('s_add_u32 s48, s48, 4096')
            e.I(f'buffer_load_dwordx4 {vr(dst+4*q)}, v2, {WS}, s48 offen offset:{(q%4)*1024} sc1')
    def vx_loads():
        e.I(f's_and_b32 s48, s49, {RD-1}')
        e.I(f's_mul_i32 s48, s48, {SEG_QX}')
        e.I('s_add_u32 s48, s48, s62')
        e.I(f's_add_u32 s48, s48, {VX}')
        e.I('s_add_u32 s46, s48, 4096')
        e.I('s_add_u32 s56, s48, 8192')
        for kk in range(6):
            for rt in range(2):
                q = rt * 6 + kk
                e.I(f'buffer_load_dwordx4 {vr(VXF+4*q)}, v2, {WS}, {("s48", "s46", "s56")[q//4]} offen offset:{(q%4)*1024} sc1')
    def vw_grp(gi):
        kk, rt = gi // 2, gi % 2
        for ct in range(4):
            d = vr(DW + (ct*2+rt)*4)
            e.I(f'{MFMA} {d}, {vr(VXF+4*(rt*6+kk))}, {ar((ct*6+kk)*4)}, {0 if kk == 0 else d}')
    cv = [f'v_cvt_pk_bf16_f32 v{VWX+4*ct+k}, v{DW+8*ct+2*k}, v{DW+8*ct+2*k+1}' for ct in range(4) for k in range(4)] + [f'v_mov_b32 v{DM+k}, 0' for k in range(16)]
    def vw_x(after, extra=(), nvx=0, g0=0):
        extra = list(extra); nx0 = len(extra)
        for gi in range(g0, 12):
            if gi >= 12 - nvx: e.I(f's_waitcnt vmcnt({11 - gi + nx0 - len(extra)})')
            for _ in range(-(-len(extra) // (12 - gi))): e.I(extra.pop(0))
            if after is not None: e.I(f's_waitcnt vmcnt({after + 11 - gi})')
            vw_grp(gi)
        for n_, x_ in enumerate(cv[:32 - opt.cvx]):
            if extra and n_ % 2 == 0: e.I(extra.pop(0))
            e.I(x_)
        for x_ in extra: e.I(x_)
    TS(e, 0)
    wait_reg(e, T0, opt.rsleep)
    TS(e, 1)
    if opt.swlate: wo_load()
    if opt.tord == 2: early_touch()
    TS(e, 2)
    TSflush(e, '69', 244, 245)
    if opt.touch2:
        e.I('v_lshrrev_b32 v16, 4, v1')
        e.I(f's_mov_b32 s38, {PART_SLOT}')
        e.I('v_mul_lo_u32 v16, s38, v16')
        e.I('v_bfe_u32 v17, v1, 1, 3')
        e.I('v_lshl_add_u32 v16, v17, 9, v16')
        e.I('v_and_b32 v17, 1, v1')
        e.I('v_lshl_add_u32 v16, v17, 7, v16')
        if opt.ptouch == 2: e.I('s_mov_b32 exec_lo, 0')
        if opt.ptouch: e.I(f'buffer_load_dword v17, v16, {WS}, s59 offen sc1{" nt" if opt.ptouch == 3 else ""}')
        if opt.nc > 1: e.I(f'buffer_load_dword v17, v16, {WS}, s59 offen offset:256 sc1')
        e.I('s_mov_b64 exec, -1')
    wait_flags(e, ONE + 1, 's63', 0xfff, T0, 11, sleep=2)
    if opt.dstamp:
        for k in range(90, 94): e.I(f's_mov_b32 s{k}, 0')
    if opt.ad: e.I(f's_mov_b32 s72, {opt.pmf}'); e.I('s_mov_b32 s73, 0')
    e.I('s_mov_b32 s49, 0')
    vx_loads()
    kv_loads(KXF, KX)
    if opt.split and opt.xg1 + opt.xg2:
        e.I('s_waitcnt vmcnt(12)')
        for gi in range(opt.pmf + opt.pmf2): vw_grp(gi)
    else: vw_x(12)
    e.I('s_cmp_lg_u32 s23, 0')
    e.I('s_cbranch_scc1 L_sws')
    for slow in (False, True):
        fl = ' sc1' if slow else ''
        if slow: e.L('L_sws')
        top = e.lab('Lwt')
        e.I('s_mov_b32 s30, 0')
        e.L(top)
        TS(e, 0)
        if opt.pdiag: e.I('s_mov_b32 s94, 0')
        e.I('s_and_b32 s38, s30, 3')
        e.I('s_xor_b32 s39, s38, 2')
        e.I(f's_mul_i32 s40, s38, {XR_SLOT}')
        e.I('s_add_u32 s40, s40, s58')
        e.I('s_add_u32 s54, s40, 4096')
        e.I(f's_mul_i32 s55, s38, {VR_SLOT}')
        e.I('s_add_u32 s55, s55, s57')
        if opt.fresh:
            e.I(f's_mul_i32 s41, s30, {PART_SLOT}')
            e.I(f's_add_u32 s41, s41, {SCRATCH + 0x400000 - PART + 0x200000}')
        else:
            e.I(f's_mul_i32 s41, s38, {PART_SLOT}')
        e.I('s_add_u32 s42, s41, s60')
        e.I('s_add_u32 s41, s41, s59')
        if opt.fresh:
            e.I('s_lshr_b32 s47, s41, 8')
            e.I('s_not_b32 s47, s47')
            e.I('s_and_b32 s47, s47, 8192')
            e.I('s_xor_b32 s41, s41, s47')
        e.I('s_xor_b32 s47, s41, 8192')
        e.I(f's_mul_i32 s43, s39, {PART_SLOT}')
        e.I('s_add_u32 s43, s43, s60')
        e.I('s_add_u32 s49, s30, 1')
        e.I('s_and_b32 s44, s49, 3')
        e.I('s_xor_b32 s45, s44, 2')
        e.I(f's_mul_i32 s44, s44, {MEM_SLOT}')
        e.I('s_add_u32 s44, s44, s61')
        e.I(f's_mul_i32 s45, s45, {MEM_SLOT}')
        e.I('s_add_u32 s45, s45, s61')
        e.I(f's_and_b32 s46, s49, {RD-1}')
        e.I(f's_mul_i32 s46, s46, {SEG_QX}')
        e.I('s_add_u32 s46, s46, s62')
        e.I(f's_add_u32 s65, s46, {KX}')
        e.I(f's_add_u32 s46, s46, {VX}')
        e.I('s_add_u32 s56, s46, 4096')
        e.I('s_add_u32 s64, s46, 8192')
        e.I('s_add_u32 s66, s65, 4096')
        e.I('s_add_u32 s67, s65, 8192')
        e.I('s_lshl_b32 s50, s49, 11')
        e.I('s_add_u32 s50, s50, s63')
        pl, pd, fr, hl, hd = e.lab('Lxp'), e.lab('Lxd'), e.lab('Lxf'), e.lab('Lhp'), e.lab('Lhd')
        def probe(lp, dn, va, so, bad):
            e.I(f's_mov_b64 exec, {0x1fff if opt.rpos == 9 and bad == 0 else 0xfff:#x}')
            e.I(f'buffer_load_dword v{T0}, v{va}, {WS}, {so} offen sc1')
            e.L(lp)
            for a_, b_ in ((T0, T0 + 1), (T0 + 1, T0)):
                e.I(f'buffer_load_dword v{b_}, v{va}, {WS}, {so} offen sc1')
                e.I('s_waitcnt vmcnt(1)')
                e.I(f'v_cmp_gt_u32 vcc, 2, v{a_}' if opt.two and bad == 0 else f'v_cmp_eq_u32 vcc, {bad}, v{a_}')
                e.I(f's_cbranch_vccz {dn}')
            e.I('s_sub_u32 s31, s31, 1')
            e.I(f's_cbranch_scc0 {lp}')
            e.I('s_mov_b32 s31, 2')
            e.I('s_branch L_fail')
        e.I(f's_mov_b32 s31, {TMO}')
        ROR8 = 'row_ror:8 row_mask:0xf bank_mask:0xf'
        ROR8L, ROR8H = 'row_ror:8 row_mask:0xf bank_mask:0x3', 'row_ror:8 row_mask:0xf bank_mask:0xc'
        if opt.split:
            XQ, XK = XF, XF + 12
            A1a, A2a, A1b, A2b, MM = S + 4, S, S + 8, T0 + 4, CI
            def q_loads():
                for j in range(3): e.I(f'buffer_load_dwordx4 {vr(XQ+4*j)}, v2, {WS}, s40 offen offset:{j*1024} sc1')
            def k_loads():
                e.I(f'buffer_load_dwordx4 {vr(XK)}, v2, {WS}, s40 offen offset:3072 sc1')
                for j in range(1, 3): e.I(f'buffer_load_dwordx4 {vr(XK+4*j)}, v2, {WS}, s54 offen offset:{(j-1)*1024} sc1')
            def vm_loads():
                for q in range(3): e.I(f'buffer_load_dwordx4 {vr(VMF+4*q)}, v2, {WS}, s55 offen offset:{q*1024} sc1')
            def chk(r, j):
                if opt.thin1:
                    if j == 2: e.I(f'v_max3_u32 v{T0+2}, v{r-8}, v{r-4}, v{r}')
                else: e.I(f'v_max_u32 v{T0+2}, v{r}, v{r+2}' if j == 0 else f'v_max3_u32 v{T0+2}, v{T0+2}, v{r}, v{r+2}')
            def mm(j): e.I(f'{MFMA} {vr(MM)}, {vr(XK+4*j)}, {vr(XQ+4*j)}, {0 if j == 0 else vr(MM)}')
            def gap(n):
                while n > 0: e.I(f's_nop {min(n, 16) - 1}'); n -= 16
            lq, qf_, qd_, kf_, kd_, kok = [e.lab(x_) for x_ in ('Lsq', 'Lsqf', 'Lsqd', 'Lskf', 'Lskd', 'Lsko')]
            probe(hl, hd, 12, 's50', 0)
            e.L(qf_)
            if opt.dstamp: e.I('s_add_u32 s90, s90, 1')
            e.I('s_sub_u32 s31, s31, 1')
            e.I('s_cbranch_scc1 L_fail')
            probe(pl, qd_, 9, 's40', -1)
            e.L(qd_)
            e.I('s_mov_b64 exec, -1')
            q_loads()
            e.I('s_waitcnt vmcnt(0)')
            e.I(f's_branch {lq}')
            e.L(kf_)
            if opt.dstamp: e.I('s_add_u32 s91, s91, 1')
            e.I('s_sub_u32 s31, s31, 1')
            e.I('s_cbranch_scc1 L_fail')
            e.I('s_add_u32 s48, s40, 3072')
            if opt.inl and not opt.own:
                e.I(f'v_and_b32 v{T0+8}, 128, v9')
                e.I(f'v_lshrrev_b32 v{T0+9}, 2, v{T0+8}')
                e.I(f'v_sub_u32 v{T0+8}, v9, v{T0+8}')
                e.I(f'v_add_u32 v{T0+8}, v{T0+8}, v{T0+9}')
            probe(e.lab('Lskp'), kd_, T0 + 8 if opt.inl and not opt.own else 9, 's48', -1)
            e.L(kd_)
            e.I('s_mov_b64 exec, -1')
            k_loads()
            e.I('s_waitcnt vmcnt(0)')
            for j in range(3): mm(j); chk(XK + 4*j, j)
            e.I(f'v_cmp_eq_u32 vcc, -1, v{T0+2}')
            e.I(f's_cbranch_vccnz {kf_}')
            e.I('s_nop 7')
            e.I(f's_branch {kok}')
            e.L(hd)
            e.I('s_mov_b64 exec, -1')
            TS(e, 1)
            g0_ = opt.pmf + opt.pmf2
            q_loads()
            for gi in range(g0_, g0_ + opt.xg1): vw_grp(gi)
            gap(opt.g1)
            k_loads()
            for gi in range(g0_ + opt.xg1, g0_ + opt.xg1 + opt.xg2): vw_grp(gi)
            gap(opt.g2)
            for x_ in cv[32 - opt.cvx:]: e.I(x_)
            vm_loads()
            for q in (0, 6, 1, 7, 2, 8, 3, 9, 4, 10, 5, 11)[:opt.vxe]:
                e.I(f'buffer_load_dwordx4 {vr(VXF+4*q)}, v2, {WS}, {("s46", "s56", "s64")[q//4]} offen offset:{(q%4)*1024} sc1')
            if opt.xg1 + opt.xg2: vw_x(None, (), 0, g0_ + opt.xg1 + opt.xg2)
            e.L(lq)
            t = T0 + 2
            if opt.sord:
                def qm(d, kf, j): e.I(f'{MFMA} {vr(d)}, {vr(KXF+4*kf)}, {vr(XQ+4*j)}, {0 if j == 0 else vr(d)}')
                mL = [f'v_add_f32_dpp v{S+4+r}, v{A2a+r}, v{A1a+r} {ROR8L}' for r in range(4)]
                mH = [f'v_add_f32_dpp v{S+4+r}, v{A1b+r}, v{A2b+r} {ROR8H}' for r in range(4)]
                for j in range(3):
                    e.I(f's_waitcnt vmcnt({8-j+opt.vxe})')
                    qm(A1a, j, j); chk(XQ + 4*j, j); qm(A2a, j + 3, j)
                e.I(f'v_cmp_eq_u32 vcc, -1, v{T0+2}')
                qm(A1b, 6, 0)
                e.I(f's_cbranch_vccnz {qf_}')
                qm(A2b, 9, 0); qm(A1b, 7, 1)
                e.I(mL[0]); e.I(mL[1])
                qm(A2b, 10, 1)
                e.I(mL[2]); e.I(mL[3])
                qm(A1b, 8, 2); qm(A2b, 11, 2)
                for j in range(3):
                    e.I(f's_waitcnt vmcnt({5-j+opt.vxe})')
                    mm(j)
                    if j < 2: chk(XK + 4*j, j)
                    if j == 1: e.I(mH[0])
                chk(XK + 8, 2)
                e.I(f'v_cmp_eq_u32 vcc, -1, v{T0+2}')
                for x_ in mH[1:]: e.I(x_)
                e.I(f'v_max3_f32 v{t+1}, v{S+4}, v{S+5}, v{S+6}')
                e.I(f's_cbranch_vccnz {kf_}')
            else:
                for j in range(3):
                    x = vr(XQ + 4*j)
                    e.I(f's_waitcnt vmcnt({8-j+opt.vxe})')
                    if opt.t9 == j: TS(e, 9)
                    for n_, (d, kf) in enumerate(((A1a, j), (A2a, j + 3), (A1b, 6 + j), (A2b, 9 + j))):
                        e.I(f'{MFMA} {vr(d)}, {vr(KXF+4*kf)}, {x}, {0 if j == 0 else vr(d)}')
                        if n_ == 0: chk(XQ + 4*j, j)
                        if n_ == 1 and j == 2: e.I(f'v_cmp_eq_u32 vcc, -1, v{T0+2}')
                e.I(f's_cbranch_vccnz {qf_}')
                t = T0 + 2
                for j in range(3):
                    e.I(f's_waitcnt vmcnt({5-j+opt.vxe})')
                    if opt.t9 == 3 + j: TS(e, 9)
                    mm(j); chk(XK + 4*j, j)
                    if j == 1:
                        for r in range(4): e.I(f'v_add_f32_dpp v{S+4+r}, v{A2a+r}, v{A1a+r} {ROR8L}')
                e.I(f'v_cmp_eq_u32 vcc, -1, v{T0+2}')
                for r in range(4): e.I(f'v_add_f32_dpp v{S+4+r}, v{A1b+r}, v{A2b+r} {ROR8H}')
                e.I(f'v_max3_f32 v{t+1}, v{S+4}, v{S+5}, v{S+6}')
                e.I(f's_cbranch_vccnz {kf_}')
            e.L(kok)
            TS(e, 2)
        if not opt.split:
            probe(hl, hd, 12, 's50', 0)
            xp = e.lab('Lxq')
            e.L(xp)
            probe(pl, pd, 9, 's40', -1)
            e.L(hd)
            if opt.hdelay: e.I(f's_nop {opt.hdelay - 1}')
            if not opt.heads: e.I(f's_branch {xp}')
            e.L(pd)
            e.I('s_mov_b64 exec, -1')
            TS(e, 1)
            if opt.pdiag: e.I('s_add_u32 s94, s94, 1')
            e.L(fr)
            for p in range(6):
                e.I(f'buffer_load_dwordx4 {vr(XF+4*p)}, v2, {WS}, {"s40" if p < 4 else "s54"} offen offset:{(p%4)*1024} sc1')
            FQ = CI + 23
            def vm_loads():
                for q in range(3):
                    e.I(f'buffer_load_dwordx4 {vr(VMF+4*q)}, v2, {WS}, s55 offen offset:{q*1024} sc1')
            vp = opt.vmpos
            bulk0 = [f'buffer_load_dwordx4 {vr(VXF+4*q)}, v2, {WS}, {("s46", "s56", "s64")[q//4]} offen offset:{(q%4)*1024} sc1' for q in (0, 6, 1, 7, 2, 8)]
            nvm = 0
            if vp == 0: vm_loads(); nvm = 3
            for p in range(6):
                x = vr(XF + 4*p)
                e.I(f's_waitcnt vmcnt({5-p+nvm})')
                e.I(f'{MFMA} {vr(S+4)}, {vr(KXF+4*p)}, {x}, {0 if p == 0 else vr(S+4)}')
                e.I(f'{MFMA} {vr(S+8)}, {vr(KXF+24+4*p)}, {x}, {0 if p == 0 else vr(S+8)}')
                e.I(f'{MFMA} {vr(S)}, {x}, {x}, {vr(CI) if p == 0 else vr(S)}')
                if vp == p + 1: vm_loads(); nvm = 3
                if p >= 6 - opt.kx and p >= vp: e.I(bulk0[p - (6 - opt.kx)]); nvm += 1
                r = XF + 4 * p
                if opt.thin:
                    e.I(f'v_max_u32 v{T0+2}, v{r}, v{r+2}' if p == 0 else f'v_max3_u32 v{T0+2}, v{T0+2}, v{r}, v{r+2}')
                elif p == 0:
                    e.I(f'v_max3_u32 v{T0+2}, v{r}, v{r+1}, v{r+2}')
                    e.I(f'v_max_u32 v{T0+2}, v{T0+2}, v{r+3}')
                else:
                    e.I(f'v_max3_u32 v{T0+2}, v{T0+2}, v{r}, v{r+1}')
                    e.I(f'v_max3_u32 v{T0+2}, v{T0+2}, v{r+2}, v{r+3}')
            e.I(f'v_cmp_eq_u32 vcc, -1, v{T0+2}')
            ok = e.lab('Lxo')
            e.I(f's_cbranch_vccz {ok}')
            e.I('s_sub_u32 s31, s31, 1')
            e.I('s_nop 7')
            if opt.dstamp: e.I('s_mov_b32 s89, s90'); e.I('s_addk_i32 s89, 1'); e.I('s_mov_b32 s90, s89'); e.I('s_cmp_eq_u32 s31, 0')
            e.I(f's_cbranch_scc0 {xp}')
            e.I('s_mov_b32 s31, 2')
            e.I('s_branch L_fail')
            e.L(ok)
            TS(e, 2)
            vl, vd = e.lab('Lvp'), e.lab('Lvd')
            vl2 = e.lab('Lv2')
            if opt.kx: e.I(f's_waitcnt vmcnt({opt.kx})'); e.I(f's_branch {vl2}')
            e.L(vl)
            e.I('s_waitcnt vmcnt(0)')
            e.L(vl2)
            check_sent(e, [r_ for r_ in range(VMF, VMF + 12) if not opt.thin or r_ % 4 in ((0, 2) if opt.vx2 else (0, 1))], T0 + 2, T0 + 3)
            e.I(f's_cbranch_vccz {vd}')
            if opt.dstamp: e.I('s_add_u32 s92, s92, 1')
            vm_loads()
            e.I('s_sub_u32 s31, s31, 1')
            e.I(f's_cbranch_scc0 {vl}')
            e.I('s_mov_b32 s31, 3')
            e.I('s_branch L_fail')
            e.L(vd)
            TS(e, 3)
        PW = 2 if opt.pbf and opt.nc == 1 else 4
        if opt.rpos == 0: e.I(f'buffer_store_dwordx{PW} {vr(SENT,PW)}, v13, {WS}, s43 offen sc1')
        sm = [f'{SMF} {vr(DM+4*ct)}, {vr(VMF+4*m)}, {ar(W2+(ct*6+2*m)*4,8)}, v{IDX}' for m in range(3) for ct in range(4)]
        t = T0 + 2
        V = []
        for r in range(4): V.append(f'v_mov_b32_dpp v{S+4+r}, v{S+8+r} row_shr:8 row_mask:0xf bank_mask:0xc')
        V += [f'v_max3_f32 v{t}, v{S}, v{S+1}, v{S+2}', f'v_max3_f32 v{t+1}, v{S+3}, v{S+4}, v{S+5}', f'v_max3_f32 v{t}, v{t}, v{S+6}, v{S+7}', f'v_max_f32 v{t}, v{t}, v{t+1}',
              '*', '*', f'v_max_f32_dpp v{t}, v{t}, v{t} {ROR8}', f'v_mov_b32 v{t+1}, v{t}', '*', '*', f'v_permlane16_swap_b32 v{t}, v{t+1}', f'v_max_f32 v{t}, v{t}, v{t+1}',
              f'v_mov_b32 v{t+1}, v{t}', '*', '*', f'v_permlane32_swap_b32 v{t}, v{t+1}', f'v_max_f32 v{t}, v{t}, v{t+1}', f'v_mul_f32 v{t}, s53, v{t}']
        order = [4, 5, 6, 7, 0, 1, 2, 3]
        for i in order: V.append(f'v_fma_f32 v{S+i}, v{S+i}, s52, v{t}')
        for n_, i in enumerate(order):
            V.append(f'v_exp_f32 v{S+i}, v{S+i}')
        if opt.split:
            V = ['V8', f'v_permlane32_swap_b32 v{MM}, v{MM+2}', f'v_permlane32_swap_b32 v{MM+1}, v{MM+3}', 'V9', '*', '*',
                 f'v_add_f32_dpp v{S}, v{MM+2}, v{MM} {ROR8L}', f'v_add_f32_dpp v{S}, v{MM+1}, v{MM+3} {ROR8H}', f'v_max3_f32 v{t}, v{t+1}, v{S+7}, v{S}', 'V0',
                 '*', '*', f'v_max_f32_dpp v{t}, v{t}, v{t} {ROR8}', f'v_mov_b32 v{t+1}, v{t}', 'V1', '*', '*', f'v_permlane16_swap_b32 v{t}, v{t+1}', f'v_max_f32 v{t}, v{t}, v{t+1}',
                 f'v_mov_b32 v{t+1}, v{t}', 'V2', '*', '*', f'v_permlane32_swap_b32 v{t}, v{t+1}', f'v_max_f32 v{t}, v{t}, v{t+1}', f'v_mul_f32 v{t}, s53, v{t}', 'V3']
            if opt.inl: V = ['V8', 'V9', f'v_add_f32_dpp v{S}, v{MM+2}, v{MM} {ROR8L}', f'v_add_f32_dpp v{S}, v{MM+1}, v{MM+3} {ROR8H}'] + V[8:]
            order = [4, 5, 6, 7, 0]
            for i in order: V.append(f'v_fma_f32 v{S+i}, v{S+i}, s52, v{t}')
            V.append('V4')
            for i in order: V.append(f'v_exp_f32 v{S+i}, v{S+i}')
            if opt.pvmix:
                V += [f'v_cvt_pk_bf16_f32 v{PB}, v{S+4}, v{S+5}', f'v_cvt_pk_bf16_f32 v{PB+1}, v{S+6}, v{S+7}', f'v_mov_b32_dpp v{t}, v{S} {ROR8}',
                      f'v_mov_b32_dpp v{PB+2}, v{PB} {ROR8}', f'v_mov_b32_dpp v{PB+3}, v{PB+1} {ROR8}']
            else: V += [f'v_cvt_pk_bf16_f32 v{PB}, v{S+4}, v{S+5}', f'v_cvt_pk_bf16_f32 v{PB+1}, v{S+6}, v{S+7}', f'v_mov_b32_dpp v{t}, v{S} {ROR8}',
                  f'v_mov_b32_dpp v{PB+2}, v{PB} {ROR8}', f'v_mov_b32_dpp v{PB+3}, v{PB+1} {ROR8}', f'v_cvt_pk_bf16_f32 v{PM}, v{S}, v{t}', f'v_mov_b32 v{PM+1}, v{PM}' if not opt.inl else f'v_cvt_pk_bf16_f32 v{PM+1}, v{S}, v{t}']
        bulk = [f'buffer_load_dwordx4 {vr(VXF+4*q)}, v2, {WS}, {("s46", "s56", "s64")[q//4]} offen offset:{(q%4)*1024} sc1' for q in (0, 6, 1, 7, 2, 8, 3, 9, 4, 10, 5, 11)]
        bulk += [f'buffer_load_dwordx4 {vr(KXF+4*q)}, v2, {WS}, {("s65", "s66", "s67")[q//4]} offen offset:{(q%4)*1024} sc1' for q in range(12)]
        if opt.own: bulk[12:] = [f'buffer_load_dwordx4 {vr(KXF+4*q)}, v167, {WS}, {("s65", "s66", "s67")[kx_off(q)//4096]} offen offset:{kx_off(q)%4096} sc1' for q in range(12)]
        kin = bulk[max(opt.kx, opt.vxe):opt.kin]; kp = bulk[opt.kin:opt.kin + opt.kp]; kc = bulk[opt.kin + opt.kp:]
        if opt.nobulk & 1: kin = []
        if opt.nobulk & 2: kp = []
        if opt.nobulk & 4: kc = []
        lim = [opt.n1]
        def ld():
            if kin and lim[0] > 0: e.I(kin.pop(0)); lim[0] -= 1
        nk0 = len(kin)
        def vcheck():
            vl, vl2, vd = e.lab('Lvp'), e.lab('Lv2'), e.lab('Lvd')
            e.I(f's_waitcnt vmcnt({nk0 - len(kin) + opt.vxe})')
            e.L(vl2)
            check_sent(e, [r_ for r_ in range(VMF, VMF + 12) if not opt.thin or r_ % 4 in ((0,) if opt.thin1 else (0, 2) if opt.vx2 else (0, 1))], T0, T0 + 1)
            e.I(f's_cbranch_vccz {vd}')
            if opt.dstamp: e.I('s_add_u32 s92, s92, 1')
            vm_loads()
            e.I('s_waitcnt vmcnt(0)')
            e.I('s_sub_u32 s31, s31, 1')
            e.I(f's_cbranch_scc0 {vl2}')
            e.I('s_mov_b32 s31, 3')
            e.I('s_branch L_fail')
            e.L(vd)
            TS(e, 3)
            for x_ in sm[:opt.smpre]: e.I(x_)
            return sm[opt.smpre:]
        if opt.split: rest = []
        else:
            for x_ in sm[:opt.smpre]: e.I(x_)
            rest = sm[opt.smpre:]
        cost = 0; prev = None; since = 0
        for x_ in V:
            if x_[0] == 'V':
                if x_ == f'V{opt.vpos}': rest = vcheck(); cost = 0
            elif x_ == '*':
                if prev == '*' or cost == 0 or not rest: ld(); since = 0
                else: e.I(rest.pop(0)); cost = 0
            else:
                e.I(x_); c_ = 2 if 'v_exp' in x_ else 1; cost += c_; since += c_
                if cost >= opt.smgap and rest: e.I(rest.pop(0)); cost = 0
                elif since >= opt.ldgap: ld(); since = 0
            prev = x_
        late_sm = rest if opt.split else []
        if not opt.split:
            for x_ in rest: e.I(x_)
            e.I(f'v_cvt_pk_bf16_f32 v{PB}, v{S+4}, v{S+5}')
            e.I(f'v_cvt_pk_bf16_f32 v{PB+1}, v{S+6}, v{S+7}')
            e.I(f'v_cvt_pk_bf16_f32 v{PM}, v{S}, v{S+1}')
            e.I(f'v_cvt_pk_bf16_f32 v{PM+1}, v{S+2}, v{S+3}')
            e.I(f'v_mov_b32_dpp v{PB+2}, v{PB} {ROR8}')
            e.I(f'v_mov_b32_dpp v{PB+3}, v{PB+1} {ROR8}')
            e.I(f'v_mov_b32 v{t}, v{PM}')
            e.I(f'v_mov_b32 v{t+1}, v{PM+1}')
        for x_ in late_sm: e.I(x_)
        if opt.tpos == 0: TS(e, 4)
        def cvm(ct):
            e.I(f'v_cvt_pk_bf16_f32 v{VWM+2*ct}, v{DM+4*ct}, v{DM+4*ct+1}')
            e.I(f'v_cvt_pk_bf16_f32 v{VWM+2*ct+1}, v{DM+4*ct+2}, v{DM+4*ct+3}')
        lim[0] = opt.n2
        SUM = S + 8 if opt.pvmix else S
        if opt.pvord:
            px = lambda ct: e.I(f'{MFMA} {vr(OUT+4*ct)}, {vr(VWX+4*ct)}, {vr(PB)}, 0')
            pm = lambda ct: e.I(f'{MFMA16} {vr(OUT+4*ct)}, {vr(VWM+2*ct,2)}, {vr(PM,2)}, {vr(OUT+4*ct)}')
            def wr(*xs):
                e.I('s_not_b64 exec, s[68:69]')
                for x_ in xs: e.I(x_)
                e.I('s_mov_b64 exec, -1')
            W_ = lambda ct: f'ds_write_b128 v6, {vr(OUT+4*ct)} offset:{2048*ct}'
            lim[0] = 99
            px(0)
            for k in range(2): e.I(f'v_cvt_pk_bf16_f32 v{PM+k}, v{S}, v{t}')
            e.I(f'{MFMA} {vr(SUM)}, {ar(AONE)}, {vr(PB)}, 0')
            cvm(0)
            px(1)
            cvm(1)
            pm(0)
            cvm(2)
            e.I(f'{MFMA16} {vr(SUM)}, {ar(AHALF,2)}, {vr(PM,2)}, {vr(SUM)}')
            cvm(3)
            pm(1)
            ld()
            px(2)
            wr(W_(0))
            pm(2)
            e.I(f'v_rcp_f32 v{t}, v{SUM}')
            ld()
            px(3)
            wr(W_(1))
            pm(3)
            e.I('s_not_b64 exec, s[68:69]')
            e.I(f'ds_write_b32 v10, v{t}')
            e.I(W_(2))
            e.I('s_mov_b64 exec, -1')
            for _ in range(opt.pvl): ld()
            wr(W_(3))
        else:
            e.I(f'{MFMA} {vr(OUT)}, {vr(VWX)}, {vr(PB)}, 0')
            if opt.inl:
                if opt.pvmix:
                    for k in range(2): e.I(f'v_cvt_pk_bf16_f32 v{PM+k}, v{S}, v{t}')
            elif opt.split: e.I(f'v_permlane32_swap_b32 v{PM}, v{PM+1}')
            else:
                e.I(f'v_permlane32_swap_b32 v{t}, v{PM}')
                e.I(f'v_permlane32_swap_b32 v{t+1}, v{PM+1}')
            e.I(f'{MFMA} {vr(SUM)}, {ar(AONE)}, {vr(PB)}, 0')
            cvm(0)
            if opt.n2 > 7: ld()
            e.I(f'{MFMA} {vr(OUT+4)}, {vr(VWX+4)}, {vr(PB)}, 0')
            cvm(1)
            if opt.n2 > 6: ld()
            e.I(f'{MFMA} {vr(OUT+8)}, {vr(VWX+8)}, {vr(PB)}, 0')
            cvm(2)
            if opt.n2 > 5: ld()
            e.I(f'{MFMA} {vr(OUT+12)}, {vr(VWX+12)}, {vr(PB)}, 0')
            cvm(3)
            if opt.n2 > 4: ld()
            e.I(f'{MFMA16} {vr(OUT)}, {vr(VWM,2)}, {vr(PM,2)}, {vr(OUT)}')
            ld()
            e.I(f'{MFMA16} {vr(SUM)}, {ar(AHALF,2)}, {vr(PM,2)}, {vr(SUM)}')
            ld()
            for ct in range(1, 4):
                e.I(f'{MFMA16} {vr(OUT+4*ct)}, {vr(VWM+2*ct,2)}, {vr(PM,2)}, {vr(OUT+4*ct)}')
                if ct < 3: ld()
            lim[0] = len(kin) - opt.n3
            while lim[0] > 0: ld()
            if opt.tpos == 1: TS(e, 4)
            e.I('s_not_b64 exec, s[68:69]')
            e.I(f'ds_write_b128 v6, {vr(OUT)}')
            e.I(f'v_rcp_f32 v{t}, v{SUM}')
            e.I(f'ds_write_b128 v6, {vr(OUT+4)} offset:2048')
            e.I(f'ds_write_b32 v10, v{t}')
            e.I(f'ds_write_b128 v6, {vr(OUT+8)} offset:4096')
            e.I(f'ds_write_b128 v6, {vr(OUT+12)} offset:6144')
            e.I('s_mov_b64 exec, -1')
        lim[0] = 99
        while kin: ld()
        e.I('s_waitcnt lgkmcnt(0)')
        if opt.tpos == 2: TS(e, 4)
        e.I('s_barrier')
        if opt.tpos == 3: TS(e, 4)
        if opt.nod:
            F = T0 + 4
            e.I(f'ds_read_b128 {vr(F)}, v11')
            e.I(f'ds_read2_b64 {vr(S)}, v7 offset0:0 offset1:64')
            e.I(f'ds_read2_b64 {vr(S+4)}, v7 offset0:128 offset1:192')
            e.I('s_add_u32 s48, s42, 8192')
            if opt.nc > 1 and opt.sa < 0:
                for m, r_ in enumerate((PAD, PAD + 1, PAD + 2, PAD + 3, 4, 5, 14)): e.I(f'buffer_load_dword v{PA+m}, v{r_}, {WS}, s41 offen sc1')
            e.I('s_waitcnt lgkmcnt(1)')
            e.I(f'v_pk_mul_f32 {vr(S,2)}, {vr(S,2)}, {vr(F,2)} op_sel_hi:[1,0]')
            e.I(f'v_pk_fma_f32 {vr(S,2)}, {vr(S+2,2)}, {vr(F,2)}, {vr(S,2)} op_sel:[0,1,0]')
            e.I('s_waitcnt lgkmcnt(0)')
            e.I(f'v_pk_fma_f32 {vr(S,2)}, {vr(S+4,2)}, {vr(F+2,2)}, {vr(S,2)} op_sel_hi:[1,0,1]')
            e.I(f'v_pk_fma_f32 {vr(S,2)}, {vr(S+6,2)}, {vr(F+2,2)}, {vr(S,2)} op_sel:[0,1,0]')
            e.I(f'v_cvt_pk_bf16_f32 v{S+4}, v{S}, v{S+1}')
            e.I(f'buffer_store_dword v{S+4}, v15, {WS}, s42 offen sc1')
            e.I(f'buffer_store_dword v{S+4}, v15, {WS}, s48 offen sc1')
            if opt.nc > 1:
                e.I(f'buffer_store_dword v{S+4}, v15, {WS}, s42 offen offset:256 sc1')
                e.I(f'buffer_store_dword v{S+4}, v15, {WS}, s48 offen offset:256 sc1')
        else:
            e.I(f'ds_read_b64 {vr(t,2)}, v11')
            e.I(f'ds_read_b128 {vr(S)}, v7')
            e.I(f'ds_read_b128 {vr(S+4)}, v7 offset:512')
            e.I('s_waitcnt lgkmcnt(1)')
            for k in range(4): e.I(f'v_mul_f32 v{S+k}, v{S+k}, v{t}')
            e.I('s_waitcnt lgkmcnt(0)')
            for k in range(4): e.I(f'v_fmac_f32 v{S+k}, v{S+4+k}, v{t+1}')
            if opt.remap == 2:
                e.I(f'v_permlane32_swap_b32 v{S}, v{S+2}')
                e.I(f'v_permlane32_swap_b32 v{S+1}, v{S+3}')
                e.I(f'v_add_f32 v{S}, v{S}, v{S+2}')
                e.I(f'v_add_f32 v{S+1}, v{S+1}, v{S+3}')
                e.I(f'v_cvt_pk_bf16_f32 v{S+4}, v{S}, v{S+1}')
                e.I(f'v_cvt_pk_bf16_f32 v{S+5}, v{S}, v{S+1}')
                e.I(f'v_permlane32_swap_b32 v{S+4}, v{S+5}')
                e.I(f'buffer_store_dwordx2 {vr(S+4,2)}, v13, {WS}, s42 offen sc1')
            else:
                for k in range(4): e.I(f'v_add_f32_dpp v{S+k}, v{S+k}, v{S+k} {ROR8}')
                if opt.pbf:
                    e.I(f'v_cvt_pk_bf16_f32 v{S+4}, v{S}, v{S+1}')
                    e.I(f'v_cvt_pk_bf16_f32 v{S+5}, v{S+2}, v{S+3}')
                    e.I(f'buffer_store_dwordx2 {vr(S+4,2)}, v13, {WS}, s42 offen sc1')
                else:
                    e.I(f'buffer_store_dwordx4 {vr(S)}, v13, {WS}, s42 offen sc1')
        TS(e, 5)
        if opt.rpos == 2: e.I(f'buffer_store_dwordx{PW} {vr(SENT,PW)}, v13, {WS}, s43 offen sc1')
        if not opt.nod:
            e.I(f'v_mov_b32 v{PA}, 0'); e.I(f'v_mov_b32 v{PA+1}, 0')
            if opt.remap == 2:
                e.I('s_mov_b32 vcc_lo, 0'); e.I('s_mov_b32 vcc_hi, -1')
                for k in range(2): e.I(f'v_cndmask_b32 v{S+2+k}, 0, v{S+k}, vcc')
                for k in range(2): e.I(f'v_cndmask_b32_e64 v{S+k}, v{S+k}, 0, vcc')
            else:
                for k in range(4): e.I(f'v_cndmask_b32 v{S+k}, v{S+k}, 0, s[68:69]')
        if opt.ad:
            e.I(f's_waitcnt vmcnt({1 + (opt.rpos == 2) + opt.nod})')
        elif opt.nc > 1:
            e.I(f's_waitcnt vmcnt({5 + (7 if opt.sa < 0 else 0)})')
            for gi in range(max(0, opt.sa)): vw_grp(gi)
        elif opt.pmf:
            e.I(f's_waitcnt vmcnt({1 + (opt.rpos == 2) + opt.nod})')
            for gi in range(opt.pmf): vw_grp(gi)
        if opt.pdelay: e.I(f's_sleep {opt.pdelay}')
        PADS = [PAD, PAD + 1, PAD + 2, PAD + 3, 4, 5, 14]
        def shot(PA=PA, off=0, seed=True):
            if opt.nod:
                for m in range(7): e.I(f'buffer_load_dword v{PA+m}, v{PADS[m]}, {WS}, s41 offen offset:{off} sc1')
                if seed:
                    for k in range(2): e.I(f'v_mov_b32 v{T0+4+k}, v{S+k}')
                return
            e.I('s_mov_b32 exec_lo, 0' if opt.remap == 2 else 's_mov_b64 exec, s[68:69]')
            e.I(f'buffer_load_dwordx2 {vr(PA,2)}, v{PAD}, {WS}, s41 offen sc1')
            e.I('s_mov_b64 exec, -1')
            for m in range(1, 4): e.I(f'buffer_load_dwordx2 {vr(PA+2*m,2)}, v{PAD+m}, {WS}, s41 offen sc1')
            for k in range(4): e.I(f'v_mov_b32 v{T0+8+k}, v{S+k}')
        ql, qd, qf = e.lab('Lpp'), e.lab('Lpd'), e.lab('Lpf')
        def acc(behind, PA=PA):
            if opt.nod:
                for m in range(7):
                    if m in (0, 3, 5, 6): e.I(f's_waitcnt vmcnt({(4, 0, 0, 2, 0, 1, 0)[m] + behind})')
                    if m == 0: e.I(f'v_max3_u32 v{T0}, v{PA}, v{PA+1}, v{PA+2}')
                    if m == 3: e.I(f'v_max3_u32 v{T0}, v{T0}, v{PA+3}, v{PA+4}')
                    if m == 6:
                        e.I(f'v_max3_u32 v{T0}, v{T0}, v{PA+5}, v{PA+6}')
                        e.I(f'v_cmp_eq_u32 vcc, -1, v{T0}')
                    for k in range(2): e.I(f'v_dot2c_f32_bf16 v{T0+4+k}, {("s70", "s71")[k]}, v{PA+m}')
                e.I(f's_cbranch_vccz {qd}')
                return
            for m in range(4):
                e.I(f's_waitcnt vmcnt({3-m+behind})')
                if m == 0: e.I(f'v_max_u32 v{T0}, v{PA}, v{PA+1}')
                else: e.I(f'v_max3_u32 v{T0}, v{T0}, v{PA+2*m}, v{PA+2*m+1}')
                if m == 3: e.I(f'v_cmp_eq_u32 vcc, -1, v{T0}')
                for k in range(4): e.I(f'v_dot2c_f32_bf16 v{T0+8+k}, {("s70", "s71")[k&1]}, v{PA+2*m+(k>>1)}')
            e.I(f's_cbranch_vccz {qd}')
        if opt.nc > 1:
            G = opt.pmf + opt.pmf2
            if opt.sa >= 0: shot()
            else:
                for k in range(2): e.I(f'v_mov_b32 v{T0+4+k}, v{S+k}')
            blind = opt.sb <= G
            for gi in range(max(0, opt.sa), min(G, opt.sb)): vw_grp(gi)
            if blind: shot(PA + 8, 256, False)
            for gi in range(min(G, opt.sb), G): vw_grp(gi)
            acc(7 if blind else 0)
            if opt.dstamp: e.I('s_add_u32 s92, s92, 1')
            if blind:
                for k in range(2): e.I(f'v_mov_b32 v{T0+4+k}, v{S+k}')
                e.I(f's_branch {qf}')
            e.L(ql)
            if opt.dstamp: e.I('s_add_u32 s93, s93, 1')
            shot(PA + 8, 256)
            e.L(qf)
            acc(0, PA + 8)
        elif opt.ad:
            for gi in range(opt.pmf + opt.pmf2):
                if opt.adlo <= gi <= opt.adhi:
                    sk_ = e.lab('Lsh')
                    e.I(f's_cmp_lg_u32 s72, {gi}')
                    e.I(f's_cbranch_scc1 {sk_}')
                    shot()
                    e.L(sk_)
                vw_grp(gi)
        else: shot()
        if opt.t9 == 10: e.I('s_waitcnt vmcnt(7)'); TS(e, 9)
        if opt.t9 == 11: e.I('s_waitcnt vmcnt(6)'); TS(e, 9)
        if opt.t9 == 12: e.I('s_waitcnt vmcnt(0)'); TS(e, 9)
        if opt.t9 == 13: TS(e, 9)
        if opt.rpos == 3: e.I(f'buffer_store_dwordx{PW} {vr(SENT,PW)}, v13, {WS}, s43 offen sc1')
        for gi in range(opt.pmf, opt.pmf + opt.pmf2):
            if opt.nc == 1 and not opt.ad: vw_grp(gi)
        if opt.nc > 1: pass
        elif opt.rpos == 3: acc(1)
        elif kp:
            e.I(f's_nop {opt.kgap}') if opt.kgap < 16 else e.I(f's_sleep {opt.kgap // 16}')
            for x_ in kp: e.I(x_)
            acc(len(kp))
        else:
            e.I(f's_branch {qf}')
        if opt.nc == 1 and opt.pr2:
            e.L(qf)
            acc(0)
            la, lb = e.lab('Lpa'), e.lab('Lpb')
            shot(PA, 0, False)
            e.L(ql)
            for cur, nx_, ok_ in ((PA, PA + 8, la), (PA + 8, PA, lb)):
                if opt.dstamp: e.I('s_add_u32 s93, s93, 1')
                shot(nx_, 0, False)
                e.I('s_waitcnt vmcnt(7)')
                e.I(f'v_max3_u32 v{T0}, v{cur}, v{cur+1}, v{cur+2}')
                e.I(f'v_max3_u32 v{T0}, v{T0}, v{cur+3}, v{cur+4}')
                e.I(f'v_max3_u32 v{T0}, v{T0}, v{cur+5}, v{cur+6}')
                e.I(f'v_cmp_eq_u32 vcc, -1, v{T0}')
                e.I(f's_cbranch_vccz {ok_}')
            e.I('s_sub_u32 s31, s31, 1')
            e.I(f's_cbranch_scc0 {ql}')
            e.I('s_mov_b32 s31, 4')
            e.I('s_branch L_fail')
            for cur, ok_ in ((PA, la), (PA + 8, lb)):
                e.L(ok_)
                for k in range(2): e.I(f'v_mov_b32 v{T0+4+k}, v{S+k}')
                for m in range(7):
                    for k in range(2): e.I(f'v_dot2c_f32_bf16 v{T0+4+k}, {("s70", "s71")[k]}, v{cur+m}')
                e.I(f's_branch {qd}')
        elif opt.nc == 1:
            e.L(ql)
            if opt.ad: e.I('s_mov_b32 s73, -1')
            if opt.dstamp: e.I('s_add_u32 s93, s93, 1')
            if opt.pfar == 1: e.I('s_xor_b32 s41, s41, 8192')
            if opt.pfar == 2: e.I('s_mov_b32 s41, s47')
            shot()
            e.L(qf)
            acc(0)
        e.I('s_sub_u32 s31, s31, 1')
        e.I(f's_cbranch_scc0 {ql}')
        e.I('s_mov_b32 s31, 4')
        e.I('s_branch L_fail')
        e.L(qd)
        TS(e, 6)
        if opt.nod: pass
        elif opt.remap == 2:
            e.I('s_nop 1')
            e.I(f'v_permlane32_swap_b32 v{T0+8}, v{T0+10}')
            e.I(f'v_permlane32_swap_b32 v{T0+9}, v{T0+11}')
            for k in range(2): e.I(f'v_add_f32 v{T0+4+k}, v{T0+8+k}, v{T0+10+k}')
        else:
            e.I('s_nop 1')
            for k in range(2): e.I(f'v_add_f32_dpp v{T0+4+k}, v{T0+8+k}, v{T0+8+k} row_ror:8 row_mask:0xf bank_mask:0x3')
            for k in range(2): e.I(f'v_add_f32_dpp v{T0+4+k}, v{T0+10+k}, v{T0+10+k} row_ror:8 row_mask:0xf bank_mask:0xc ; merge')
        e.I(f'v_cvt_pk_bf16_f32 v{T0+4}, v{T0+4}, v{T0+5}')
        e.I(f'buffer_store_dword v{T0+4}, v8, {WS}, s44 offen{fl}')
        TS(e, 7)
        if not opt.mrl: e.I(f'buffer_store_dword v{SENT}, v8, {WS}, s45 offen{fl}')
        if opt.mbar: e.I('s_barrier')
        if opt.rpos == 4: e.I(f'buffer_store_dwordx{PW} {vr(SENT,PW)}, v13, {WS}, s43 offen sc1')
        nvx = max(0, 12 - opt.kin - opt.kp)
        for x_ in kc[:nvx]: e.I(x_)
        assert opt.kin >= opt.pmf + opt.pmf2
        if kp: e.I('s_waitcnt vmcnt(2)')
        if opt.split and opt.xg1 + opt.xg2:
            for x_ in kc[nvx:]: e.I(x_)
        elif opt.kxl == 2:
            for x_ in kc[nvx:]: e.I(x_)
            if opt.mrl: e.I(f'buffer_store_dword v{SENT}, v8, {WS}, s45 offen{fl}')
            vw_x(None, (), 0, opt.pmf + opt.pmf2)
        elif opt.kxl:
            vw_x(None, (), 0, opt.pmf + opt.pmf2)
            for x_ in kc[nvx:]: e.I(x_)
        else: vw_x(None, kc[nvx:], nvx, opt.pmf + opt.pmf2)
        if opt.rpos == 5: e.I(f'buffer_store_dwordx{PW} {vr(SENT,PW)}, v13, {WS}, s43 offen sc1')
        if opt.ad:
            e.I('s_add_u32 s73, s73, 1')
            e.I('s_cmp_eq_u32 s73, 0')
            e.I(f's_cselect_b32 s38, {opt.adup}, 0')
            e.I('s_add_u32 s72, s72, s38')
            e.I(f's_min_u32 s72, s72, {opt.adhi}')
            e.I(f's_cmp_ge_u32 s73, {opt.adn}')
            e.I('s_cselect_b32 s73, 0, s73')
            e.I('s_subb_u32 s72, s72, 0')
            e.I(f's_max_u32 s72, s72, {opt.adlo}')
        TS(e, 8)
        TSflush(e, 's30', 244, 245)
        if opt.dstamp: e.I('s_lshl_b32 s98, s25, 8'); e.I('s_add_u32 s98, s98, s30')
        DSTAMP(e, 2, 's_cmp_eq_u32 s98, 9216')
        if opt.dstamp: e.I('s_lshl_b32 s98, s25, 8'); e.I('s_add_u32 s98, s98, s30')
        DSTAMP(e, 3, 's_cmp_eq_u32 s98, 9218')
        for idx_, st_ in ((6, 2), (7, 62)):
            for o_, off_ in (('clk', 0), ('rt', 2)):
                if opt.dstamp: e.I('s_lshl_b32 s98, s25, 8'); e.I('s_add_u32 s98, s98, s30'); e.I('s_lshl_b32 s99, s20, 16'); e.I('s_add_u32 s98, s98, s99')
                DSTAMP(e, idx_ + off_, f's_cmp_eq_u32 s98, {20*256 + st_}', o_)
        if opt.dstamp: e.I('s_lshl_b32 s98, s25, 8'); e.I('s_add_u32 s98, s98, s30')
        DSTAMP(e, 4, 's_cmp_eq_u32 s98, 9278')
        e.I('s_add_u32 s30, s30, 1')
        e.I('s_cmp_lt_u32 s30, 63')
        e.I(f's_cbranch_scc1 {top}')
        if not slow: e.I('s_branch L_swend')
    e.L('L_swend')
    if opt.dstamp == 1:
        e.I('s_mov_b64 exec, 1')
        for k in range(4):
            e.I(f'v_mov_b32 v238, {48 + 4*k}'); e.I(f'v_mov_b32 v239, s{90+k}')
            e.I('global_atomic_add v238, v239, s[74:75] sc1')
            e.I('s_nop 4')
        e.I('s_mov_b64 exec, -1')
    for sg in range(63 - opt.s62, 64):
        e.I('s_lshl_b32 s38, s20, 6')
        e.I('s_lshl_b32 s39, s22, 2')
        e.I('s_add_u32 s38, s38, s39')
        e.I(f's_add_u32 s38, s38, {FLGOX + sg*512}')
        e.I(f's_add_u32 s46, s62, {OX + (sg % RD)*SEG_QX}')
        e.I('s_add_u32 s56, s46, 4096')
        e.I('s_add_u32 s64, s46, 8192')
        e.I('s_lshl_b32 s39, s22, 10')
        e.I('v_add_u32 v6, s39, v2')
        e.I('s_lshl_b32 s39, s22, 12')
        e.I('v_add_u32 v7, s39, v2')
        e.I('s_lshr_b32 s40, s24, 1')
        e.I('s_lshl_b32 s40, s40, 2')
        e.I('s_add_u32 s40, s40, s22')
        e.I('s_lshl_b32 s40, s40, 10')
        e.I('s_and_b32 s41, s24, 1')
        e.I('s_lshl_b32 s41, s41, 3')
        e.I('s_add_u32 s40, s40, s41')
        e.I('s_mul_i32 s41, s20, 40960')
        e.I('s_add_u32 s40, s40, s41')
        e.I(f's_add_u32 s40, s40, {PX + sg*SEG_PX}')
        e.I('s_add_u32 s41, s40, 20480')
        e.I('s_mul_i32 s43, s20, 5')
        e.I('s_lshr_b32 s44, s24, 1')
        e.I('s_add_u32 s43, s43, s44')
        e.I('s_lshl_b32 s43, s43, 7')
        e.I(f's_add_u32 s43, s43, {HINT2 + 4*(sg - 62)}')
        e.I('v_mov_b32 v3, 0')
        e.I(f'v_mov_b32 v{ONE}, 1')
        if sg == 63 - opt.s62: e.I('s_waitcnt vmcnt(0)')
        TS(e, 0)
        wait_flags(e, 3, 's38', 1, T0, 5, sleep=opt.esleep)
        TS(e, 1)
        order = (0, 6, 1, 7, 2, 8, 3, 9, 4, 10, 5, 11)
        for q in order: e.I(f'buffer_load_dwordx4 {vr(VXF+4*q)}, v2, {WS}, {("s46", "s56", "s64")[q//4]} offen offset:{(q%4)*1024} sc1')
        for n_, q in enumerate(order):
            qt, kk = q // 6, q % 6
            e.I(f's_waitcnt vmcnt({11 - n_})')
            for ct in range(4):
                d = vr(DW + (qt*4+ct)*4)
                e.I(f'{MFMA} {d}, {ar((ct*6+kk)*4)}, {vr(VXF+4*q)}, {0 if kk == 0 else d}')
        TS(e, 2)
        def hint():
            e.I('s_and_b32 s38, s25, 7')
            e.I(f's_cmp_eq_u32 s38, {opt.hwv}')
            e.I('s_cselect_b64 exec, 1, 0')
            e.I(f'buffer_store_dword v{ONE}, v3, {WS}, s43 offen sc1')
            e.I('s_mov_b64 exec, -1')
        if opt.hpos == 2: hint()
        if sg == 63 and opt.s62: e.I('s_barrier')
        for k in range(8): e.I(f'ds_write_b128 v6, {vr(DW+4*k)} offset:{k*4096}')
        e.I('s_waitcnt lgkmcnt(0)')
        e.I('s_barrier')
        for qt in range(2):
            for hh in range(4): e.I(f'ds_read_b128 {vr(KXF+(qt*4+hh)*4)}, v7 offset:{qt*16384 + hh*1024}')
        if opt.hpos == 1: hint()
        for qt in range(2):
            r = KXF + qt*16
            e.I(f's_waitcnt lgkmcnt({4 - 4*qt})')
            for k in range(4):
                e.I(f'v_add_f32 v{r+k}, v{r+k}, v{r+4+k}')
                e.I(f'v_add_f32 v{r+8+k}, v{r+8+k}, v{r+12+k}')
            for k in range(4): e.I(f'v_add_f32 v{r+k}, v{r+k}, v{r+8+k}')
            e.I(f'v_cvt_pk_bf16_f32 v{r+4}, v{r}, v{r+1}')
            e.I(f'v_cvt_pk_bf16_f32 v{r+5}, v{r+2}, v{r+3}')
            e.I(f'buffer_store_dwordx2 {vr(r+4,2)}, v2, {WS}, {("s40", "s41")[qt]} offen sc1')
        TS(e, 3)
        if opt.hpos == 0: hint()
    TSflush(e, '63', 244, 245)
    e.I('s_endpgm')

def role_xw(e):
    OF = 16
    D = 112
    T0 = 160; ONE = 252
    e.I('s_sub_u32 s24, s21, 22')
    srd(e, 8, 66, 6144 * 1280)
    e.I(f's_mul_i32 s28, s20, {768*1280}')
    e.I('s_lshl_b32 s29, s24, 8')
    e.I('s_add_u32 s28, s28, s29')
    e.I('s_add_u32 s29, s28, 128')
    e.I(f'v_lshlrev_b32 v{ONE+1}, 2, v1')
    e.I('s_lshl_b32 s38, s20, 8')
    e.I(f's_add_u32 s38, s38, {FLGQ}')
    if opt.xlate & 1: wait_first(e, T0)
    def ring_touch():
        jobs = []
        for sl in range(RD):
            if sl >= 2: jobs += [(b_ + sl * SEG_QX, 12288, 96) for b_ in (KX, VX, QX)] + [(XP + sl * SEG_XP, 6144, 48), (VM + sl * SEG_VM, 3072, 24)]
            if sl >= 2: jobs += [(OX + (sl - 2) * SEG_QX, 12288, 96)]
        jobs += [(OX + sl * SEG_QX, 12288, 96) for sl in (6, 7)]
        e.I('s_lshl_b32 s40, s20, 2')
        e.I('s_add_u32 s40, s40, s22')
        touch_jobs(e, jobs, 's24', 5, 's40', 16)
    if opt.xlate & 1: ring_touch()
    pass
    load_weights(e, [('s[8:11]', 's28', 0, 768), ('s[8:11]', 's29', 96, 768)], 1280, 256, True, 3, 4)
    e.I(f'v_lshlrev_b32 v{ONE+1}, 2, v1')
    e.I('s_lshl_b32 s38, s20, 2')
    e.I('s_add_u32 s38, s38, s22')
    e.I('s_lshl_b32 s39, s38, 2')
    e.I('v_lshlrev_b32 v3, 7, v1')
    e.I('v_add_u32 v3, s39, v3')
    e.I(f'v_mov_b32 v{ONE}, 1')
    e.I('s_mul_i32 s62, s22, 12288')
    e.I('s_mul_i32 s63, s38, 12288')
    e.I(f's_add_u32 s63, s63, {OX}')
    e.I('s_mul_i32 s64, s20, 40960')
    e.I('s_lshl_b32 s65, s24, 2')
    e.I('s_add_u32 s65, s65, s22')
    e.I('s_lshl_b32 s65, s65, 10')
    e.I('s_add_u32 s64, s64, s65')
    e.I(f's_add_u32 s64, s64, {PX}')
    e.I('s_lshl_b32 s66, s24, 8')
    e.I(f's_add_u32 s66, s66, {FLGPX}')
    def pxflag():
        e.I('s_mov_b64 exec, 3')
        e.I(f'buffer_store_dword v{ONE}, v3, {WS}, s54 offen sc1')
        e.I('s_mov_b64 exec, s[60:61]')
        e.I(f'buffer_store_dword v{ONE}, v6, {WS}, s53 offen sc1')
        e.I('s_mov_b64 exec, -1')
    if not opt.xlate & 1: ring_touch()
    wait_reg(e, T0)
    top, nof, late, nxt_, last = e.lab('Lxt'), e.lab('Lxn'), e.lab('Lxl'), e.lab('Lxx'), e.lab('Lxe')
    e.I('s_lshl_b32 s67, s20, 6')
    e.I('s_lshl_b32 s38, s22, 2')
    e.I('s_add_u32 s67, s67, s38')
    e.I(f's_add_u32 s67, s67, {FLGOX}')
    e.I('s_lshl_b32 s38, s20, 5')
    e.I('s_add_u32 s38, s38, s24')
    e.I('s_lshl_b32 s38, s38, 2')
    e.I('v_mov_b32 v6, s38')
    e.I('v_mov_b32 v4, 0')
    e.I('v_mov_b32 v5, v2')
    def dma(sn):
        e.I(f's_and_b32 s55, {sn}, {RD-1}')
        e.I(f's_mul_i32 s55, s55, {SEG_QX}')
        e.I('s_add_u32 s55, s55, s63')
        e.I(f's_and_b32 s56, {sn}, 1')
        e.I('s_mul_i32 s56, s56, 49152')
        e.I('s_add_u32 s56, s56, s62')
        for m in range(12):
            e.I(f's_add_u32 m0, s56, {m*1024}')
            e.I(f'buffer_load_dwordx4 v2, {WS}, s55 offen sc1 lds')
            if m < 11: e.I('s_add_u32 s55, s55, 1024')
    e.I('s_mov_b32 s30, 0')
    wait_flags(e, 4, 's67', 1, T0, 5, sleep=opt.xsleep)
    dma('s30')
    e.L(top)
    TS(e, 0)
    e.I('s_add_u32 s58, s30, 1')
    e.I(f's_min_u32 s57, s58, {62 - opt.s62}')
    e.I('s_lshl_b32 s57, s57, 9')
    e.I('s_add_u32 s57, s57, s67')
    e.I('s_waitcnt vmcnt(0)')
    e.I(f'buffer_load_dword v{T0}, v4, {WS}, s57 offen sc1')

    e.I('s_cmp_eq_u32 s30, 0')
    e.I(f's_cbranch_scc1 {nof}')
    e.I('s_cmp_lg_u32 s59, 0')
    e.I(f's_cbranch_scc1 {nof}')
    pxflag()
    nof2 = e.lab('Lxm')
    e.I(f's_branch {nof2}')
    e.L(nof)
    for _ in range(2): e.I(f'buffer_load_dword v{T0+1}, v4, {WS}, s57 offen sc1')
    e.L(nof2)
    e.I('s_barrier')
    TS(e, 1)
    e.I(f's_mul_i32 s50, s30, {SEG_PX}')
    e.I('s_add_u32 s50, s50, s64')
    e.I('s_add_u32 s51, s50, 20480')
    e.I('s_mul_i32 s54, s30, 1280')
    e.I('s_add_u32 s54, s54, s66')
    e.I('s_and_b32 s53, s30, 3')
    e.I('s_lshl_b32 s53, s53, 10')
    e.I(f's_add_u32 s53, s53, {HINT}')
    e.I(f's_cmp_ge_u32 s30, {opt.cwarm}')
    e.I('s_cselect_b32 s60, 1, 0')
    e.I('s_cmp_eq_u32 s22, 0')
    e.I('s_cselect_b32 s60, s60, 0')
    e.I('s_mov_b32 s61, 0')
    TS(e, 2)
    PF = 6
    def rd(kk):
        hl, p = kk // 6, kk % 6
        for qt in range(2):
            e.I(f'ds_read_b128 {vr(OF + ((2*kk+qt) % 24)*4)}, v5 offset:{hl*12288 + (qt*6+p)*1024}')
    for kk in range(PF): rd(kk)
    for kk in range(24):
        nxt = min(24, kk + PF) - (kk + 1)
        e.I(f's_waitcnt lgkmcnt({2*nxt})')
        for qt in range(2):
            for b in range(2):
                d = vr(D + 4*(qt*2+b))
                e.I(f'{MFMA} {d}, {ar(96*b+4*kk)}, {vr(OF + ((2*kk+qt) % 24)*4)}, {0 if kk == 0 else d}')
        if kk + PF < 24: rd(kk + PF)
        if kk == 4:
            e.I('s_waitcnt vmcnt(2)')
            e.I(f'v_readfirstlane_b32 s59, v{T0}')
            e.I(f's_cmp_eq_u32 s30, {62 - opt.s62}')
            e.I('s_cselect_b32 s59, 0, s59')
            e.I('s_cmp_eq_u32 s59, 0')
            e.I(f's_cbranch_scc1 {late}')
            dma('s58')
            e.L(late)
        if kk == 16: e.I(f'buffer_load_dword v{T0}, v4, {WS}, s57 offen sc1')
    sc = e.lab('Lxs')
    e.I('s_cmp_lg_u32 s59, 0')
    e.I(f's_cbranch_scc1 {sc}')
    e.I(f's_cmp_eq_u32 s30, {62 - opt.s62}')
    e.I(f's_cbranch_scc1 {sc}')
    e.I('s_waitcnt vmcnt(0)')
    e.I(f'v_readfirstlane_b32 s59, v{T0}')
    e.I('s_cmp_eq_u32 s59, 0')
    e.I(f's_cbranch_scc1 {sc}')
    dma('s58')
    e.L(sc)
    for qt, so in enumerate(('s50', 's51')):
        for k in range(4): e.I(f'v_cvt_pk_bf16_f32 v{D+16+4*qt+k}, v{D+8*qt+2*k}, v{D+8*qt+2*k+1}')
        e.I(f'buffer_store_dwordx4 {vr(D+16+4*qt)}, v2, {WS}, {so} offen sc1')
    e.I('v_xor_b32 v5, 49152, v5')
    TS(e, 3)
    TSflush(e, 's30')
    e.I(f's_cmp_eq_u32 s30, {62 - opt.s62}')
    e.I(f's_cbranch_scc1 {last}')
    e.I('s_cmp_lg_u32 s59, 0')
    e.I('s_mov_b32 s59, 0')
    e.I(f's_cbranch_scc1 {nxt_}')
    e.I(f'buffer_load_dword v{T0}, v4, {WS}, s57 offen sc1')
    e.I('s_waitcnt vmcnt(0)')
    e.I(f'v_readfirstlane_b32 s38, v{T0}')
    e.I('s_cmp_lg_u32 s38, 0')
    sl2 = e.lab('Lxq')
    e.I(f's_cbranch_scc1 {sl2}')
    pxflag()
    e.I('s_mov_b32 s59, 1')
    wait_flags(e, 4, 's57', 1, T0, 5, sleep=opt.xsleep)
    e.L(sl2)
    dma('s58')
    e.L(nxt_)
    e.I('s_mov_b32 s30, s58')
    e.I(f's_branch {top}')
    e.L(last)
    e.I('s_waitcnt vmcnt(0)')
    pxflag()
    if opt.wb & 1:
        e.I('s_cmp_lg_u32 s21, 22'); e.I('s_cbranch_scc1 L_end'); e.I('s_cmp_lg_u32 s22, 0'); e.I('s_cbranch_scc1 L_end')
        e.I('buffer_wbl2 sc1'); e.I('s_waitcnt vmcnt(0)')
    e.I('s_endpgm')

def role_att(e):
    fl = ''
    KF, QF, VF = 0, 48, 96
    XPF = 16
    SA, SB, PA_, PB_ = 40, 48, 60, 64
    DO, OB = 72, 136
    T0 = 226
    C0, C1 = 232, 236
    ONE = 252
    e.I('s_sub_u32 s25, s21, 27')
    e.I('s_lshl_b32 s26, s20, 2')
    e.I('s_add_u32 s26, s26, s22')
    e.I(f's_mov_b32 s52, {SC_L2E:#x}'); e.I(f's_mov_b32 s53, {SC_L2E | 0x80000000:#x}')
    e.I(f'v_lshlrev_b32 v{ONE+1}, 2, v1')
    e.I('s_lshl_b32 s38, s22, 2')
    e.I(f'v_mov_b32 v{ONE+2}, s38')
    e.I(f'v_mov_b32 v{ONE}, 1')
    lane_ig(e, 14, 15)
    e.I(f'v_mov_b32 v3, {NEG_BIG:#x}')
    e.I('v_cmp_gt_u32 vcc, 32, v1')
    e.I(f'v_cndmask_b32 v{C0}, 0, v3, vcc')
    for k in range(1, 4): e.I(f'v_mov_b32 v{C0+k}, v{C0}')
    e.I('v_lshlrev_b32 v5, 2, v15')
    for r in range(4):
        e.I(f'v_add_u32 v6, {r}, v5')
        e.I('v_cmp_gt_u32 vcc, v6, v14')
        e.I(f'v_cndmask_b32 v{C1+r}, 0, v3, vcc')
    e.I('s_mul_i32 s58, s26, 6144')
    e.I('s_lshl_b32 s59, s22, 14')
    e.I('v_and_b32 v4, 3, v1')
    e.I('v_lshlrev_b32 v4, 8, v4')
    e.I('v_bfe_u32 v5, v1, 2, 3')
    e.I('v_lshl_add_u32 v5, v5, 4, v4')
    e.I('v_add_u32 v5, s59, v5')
    e.I('v_lshrrev_b32 v6, 2, v1')
    e.I('v_lshl_add_u32 v4, v6, 4, v4')
    e.I('v_add_u32 v4, s59, v4')
    wait_reg(e, T0)
    e.I('v_lshrrev_b32 v12, 2, v1')
    e.I('v_lshlrev_b32 v12, 8, v12')
    e.I('v_and_b32 v13, 3, v1')
    e.I('v_lshl_add_u32 v12, v13, 2, v12')
    e.I('s_lshl_b32 s38, s20, 4')
    e.I('v_add_u32 v12, s38, v12')
    e.I('s_lshl_b32 s60, s26, 6')
    e.I(f's_add_u32 s60, s60, {FLGQ}')
    if opt.rpos == 9:
        e.I('v_and_b32 v7, 15, v1')
        e.I('v_lshlrev_b32 v7, 4, v7')
        e.I('v_bfe_u32 v8, v1, 4, 1')
        e.I('v_lshl_add_u32 v7, v8, 13, v7')
        e.I('v_lshrrev_b32 v8, 5, v1')
        e.I('v_lshl_add_u32 v7, v8, 15, v7')
        e.I('s_lshr_b32 s61, s22, 1')
        e.I('s_lshl_b32 s61, s61, 14')
        e.I('s_and_b32 s38, s22, 1')
        e.I('s_lshl_b32 s38, s38, 12')
        e.I('s_add_u32 s61, s61, s38')
        e.I('s_lshl_b32 s38, s20, 9')
        e.I('s_add_u32 s61, s61, s38')
        e.I(f's_add_u32 s61, s61, {PART}')
        for k in range(4): e.I(f'v_mov_b32 v{240+k}, -1')
        e.I('v_mov_b32 v8, 48'); e.I('v_mov_b32 v9, 2')
        e.I('s_add_u32 s38, s25, 1')
        e.I(f's_mul_i32 s48, s38, {PART_SLOT}')
        e.I('s_add_u32 s48, s48, s61')
        for q in range(5):
            e.I(f'buffer_store_dwordx4 v[240:243], v7, {WS}, s48 offen sc1')
            if q < 4: e.I('s_add_u32 s48, s48, 65536')
        e.I('s_waitcnt vmcnt(0)')
        e.I('s_lshl_b32 s38, s38, 11')
        e.I('s_add_u32 s38, s38, s60')
        set_flag(e, 8, 's38', 9, ' sc1')
    e.I('s_cmp_lg_u32 s23, 0')
    e.I('s_cbranch_scc1 L_atts')
    for slow in (False, True):
        fl = ' sc1' if slow else ''
        if slow: e.L('L_atts')
        top = e.lab('Lat')
        e.I('s_mov_b32 s30, s25')
        e.L(top)
        TS(e, 0)
        e.I('s_max_u32 s51, s30, 2')
        e.I('s_lshl_b32 s51, s51, 11')
        e.I('s_add_u32 s51, s51, s60')
        e.I(f's_and_b32 s42, s30, {RD-1}')
        e.I(f's_mul_i32 s40, s42, {SEG_QX}')
        e.I('s_lshl_b32 s41, s58, 1')
        e.I('s_add_u32 s40, s40, s41')
        e.I(f's_mul_i32 s41, s42, {SEG_XP}')
        e.I('s_add_u32 s41, s41, s58')
        def backp():
            nbp = e.lab('Lab')
            e.I(f's_cmp_lt_u32 s30, {RD}')
            e.I(f's_cbranch_scc1 {nbp}')
            e.I(f's_sub_u32 s50, s30, {RD}')
            e.I('s_mul_i32 s50, s50, 1280')
            e.I(f's_add_u32 s50, s50, {FLGPX}')
            wait_flags(e, 12, 's50', 0xfffff, T0, 14, sleep=16)
            e.L(nbp)
        if not opt.abp: backp()
        wait_flags(e, ONE + 1, 's51', 0xfff, T0, 6, sleep=opt.asleep)
        def loads(dst, n, sbase, add):
            e.I(f's_add_u32 s48, {sbase}, {add}')
            for q in range(n):
                if q and q % 4 == 0: e.I('s_add_u32 s48, s48, 4096')
                e.I(f'buffer_load_dwordx4 {dst(q)}, v2, {WS}, s48 offen offset:{(q%4)*1024} sc1')
        e.I(f's_add_u32 s48, s40, {VX}')
        for q in range(12):
            e.I(f's_add_u32 m0, s59, {q*1024}')
            e.I(f'buffer_load_dwordx4 v2, {WS}, s48 offen sc1 lds')
            e.I('s_add_u32 s48, s48, 1024')
        loads(lambda q: ar(KF + 4*q), 12, 's40', KX)
        loads(lambda q: ar(QF + 4*q), 12, 's40', QX)
        e.I('s_add_u32 s51, s30, 2')
        e.I('s_lshl_b32 s51, s51, 11')
        e.I('s_add_u32 s51, s51, s60')
        e.I('s_waitcnt vmcnt(24)')
        for T in range(12):
            for rt in range(2):
                e.I(f'ds_read_b64_tr_b16 {ar(VF+6*T+2+2*rt,2)}, v4 offset:{rt*6144 + (T>>1)*1024 + (T&1)*8}')
        if opt.abp: backp()
        e.I('s_waitcnt vmcnt(0)')
        for p in range(6):
            e.I(f'{MFMA} {vr(SA+4)}, {ar(KF+4*p)}, {ar(QF+4*p)}, {vr(C1) if p == 0 else vr(SA+4)}')
            e.I(f'{MFMA} {vr(SB+4)}, {ar(KF+4*p)}, {ar(QF+24+4*p)}, {0 if p == 0 else vr(SB+4)}')
            e.I(f'{MFMA} {vr(SB+8)}, {ar(KF+24+4*p)}, {ar(QF+24+4*p)}, {vr(C1) if p == 0 else vr(SB+8)}')
        wait_flags(e, ONE + 1, 's51', 0xfff, T0, 6, sleep=opt.asleep)
        TS(e, 1)
        loads(lambda q: vr(XPF + 4*q), 6, 's41', XP)
        e.I('s_lshr_b32 s42, s41, 1')
        e.I(f's_add_u32 s48, s42, {VM}')
        for q in range(3):
            e.I(f's_add_u32 m0, s59, {12288 + q*1024}')
            e.I(f'buffer_load_dwordx4 v2, {WS}, s48 offen sc1 lds')
            e.I('s_add_u32 s48, s48, 1024')
        nr = 0
        if opt.rpos == 9:
            nr = 5
            e.I('s_add_u32 s48, s30, 3')
            e.I('s_and_b32 s48, s48, 3')
            e.I(f's_mul_i32 s48, s48, {PART_SLOT}')
            e.I('s_add_u32 s48, s48, s61')
            e.I('s_cmp_lt_u32 s30, 60')
            e.I('s_cselect_b64 exec, -1, 0')
            for q in range(5):
                e.I(f'buffer_store_dwordx4 v[240:243], v7, {WS}, s48 offen sc1')
                if q < 4: e.I('s_add_u32 s48, s48, 65536')
            e.I('s_mov_b64 exec, -1')
        for p in range(6):
            e.I(f's_waitcnt vmcnt({8-p+nr})')
            e.I(f'{MFMA} {vr(SA)}, {vr(XPF+4*p)}, {ar(QF+4*p)}, {vr(C0) if p == 0 else vr(SA)}')
            e.I(f'{MFMA} {vr(SB)}, {vr(XPF+4*p)}, {ar(QF+24+4*p)}, {vr(C0) if p == 0 else vr(SB)}')
        TS(e, 2)
        e.I('s_waitcnt vmcnt(0)')
        if opt.rpos == 9:
            e.I('s_add_u32 s48, s51, 2048')
            e.I('s_cmp_lt_u32 s30, 61')
            e.I('s_cselect_b64 exec, 1, 0')
            e.I(f'buffer_store_dword v9, v8, {WS}, s48 offen{fl}')
            e.I('s_mov_b64 exec, -1')
        for T in range(12):
            kk = T >> 1
            e.I(f'ds_read_b64_tr_b16 {ar(VF+6*T,2)}, v5 offset:{12288 + (kk % 3)*1024 + (kk // 3)*128 + (T&1)*8}')
        for x_ in softmax_list(SA, 8, PA_, T0): e.I(x_)
        e.I(f's_add_u32 s48, s40, {OX}')
        e.I('s_add_u32 s49, s48, 4096')
        e.I('s_add_u32 s50, s48, 8192')
        e.I('s_waitcnt lgkmcnt(0)')
        def fin(qt, p):
            d = DO + 8 * (p + (2 if qt else 0) * 3) % 64; o = OB + 4 * (qt*6 + p); q = qt*6 + p
            return [f'v_cvt_pk_bf16_f32 v{o+k}, v{d+2*k}, v{d+2*k+1}' for k in range(4)] + \
                   [f'buffer_store_dwordx4 {vr(o)}, v2, {WS}, {("s48", "s49", "s50")[q//4]} offen offset:{(q%4)*1024}{fl}']
        smb = softmax_list(SB, 12, PB_, T0)
        for T in range(12):
            e.I(f'{MFMA} {vr(DO+4*T)}, {ar(VF+6*T)}, {vr(PA_)}, 0')
            for _ in range(3): e.I(smb.pop(0))
        outs = [x_ for p in range(6) for x_ in fin(0, p)]
        while smb:
            e.I(smb.pop(0)); e.I(smb.pop(0)) if smb else None
            if outs: e.I(outs.pop(0))
        for x_ in outs: e.I(x_)
        for p in range(6):
            d = DO + 8 * (p + 6) % 64
            for t in range(2): e.I(f'{MFMA16} {vr(d+4*t)}, {ar(VF+6*(2*p+t),2)}, {vr(PB_,2)}, 0')
            for t in range(2): e.I(f'{MFMA} {vr(d+4*t)}, {ar(VF+6*(2*p+t)+2)}, {vr(PB_+2)}, {vr(d+4*t)}')
            if p > 1:
                for x_ in fin(1, p - 2): e.I(x_)
        for p in (4, 5):
            for x_ in fin(1, p): e.I(x_)
        e.I('s_lshl_b32 s50, s30, 3')
        e.I('s_add_u32 s50, s50, s20')
        e.I('s_lshl_b32 s50, s50, 6')
        e.I(f's_add_u32 s50, s50, {FLGOX}')
        e.I('s_waitcnt vmcnt(0)')
        set_flag(e, ONE + 2, 's50', ONE, fl)
        TS(e, 3)
        TSflush(e, 's30', 230, 231)
        e.I('s_add_u32 s30, s30, 2')
        e.I('s_cmp_lt_u32 s30, 64')
        e.I(f's_cbranch_scc1 {top}')
        e.I('s_endpgm')

F_LX, F_LH = 0, 98304
def role_ffn(e):
    ACC2 = 0
    ACC1 = 16
    BF = 48
    HP = 80
    WR = 96
    NW = 40
    e.I('s_sub_u32 s26, s21, 29')
    e.I('s_mul_i32 s25, s20, 3')
    e.I('s_add_u32 s26, s26, s25')
    e.I('s_mov_b32 s24, s26')
    srd(e, 8, 56, 640 * 3072); srd(e, 12, 58, 1536 * 1280)
    if opt.xlate & 4: wait_first(e, 16, opt.fwait)
    transpose_w(e, 's26')
    e.I('s_waitcnt vmcnt(0)')
    e.I('s_barrier')
    count_up(e, 3, D_TR)
    wait_count(e, 3, D_TR, 24, 16)
    if opt.urg: wait_count(e, 3, D_W, 80, 16)
    wait_reg(e, 16, 32)
    e.L('L_ffn_task')
    e.I('s_lshl_b32 s38, s24, 2')
    e.I('s_add_u32 s38, s38, s22')
    e.I('s_mul_i32 s39, s38, 20480')
    e.I(f's_add_u32 s39, s39, {XN}')
    e.I('s_mul_i32 s40, s22, 20480')
    for m in range(20):
        e.I(f's_add_u32 m0, s40, {m*1024}')
        e.I(f'buffer_load_dwordx4 v2, {WS}, s39 offen lds')
        e.I('s_add_u32 s39, s39, 1024')
    for k in range(160): e.I(f'v_accvgpr_write_b32 a{k}, 0')
    e.I('s_mul_i32 s41, s22, 40960')
    e.I(f's_add_u32 s41, s41, {W1F}')
    e.I(f's_mul_i32 s42, s22, {10*48*1024}')
    e.I(f's_add_u32 s42, s42, {W2F}')
    e.I('v_add_u32 v3, 20480, v2')
    for u in range(10):
        e.I(f's_mov_b32 s54, {u*48*1024}')
        e.I(f'v_add_u32 v{4+u}, s54, v2')
    e.I(f'v_add_u32 v14, {F_LH}, v2')
    e.I('s_lshl_b32 s38, s22, 12')
    e.I('v_add_u32 v15, s38, v14')
    def wload(idx, adv):
        dst = vr(WR + (idx % NW) * 4)
        if idx < 40:
            kk, u = idx // 2, idx % 2
            e.I(f's_add_u32 s45, {adv[0]}, {(kk//4)*4096}')
            e.I(f'buffer_load_dwordx4 {dst}, v{2+u}, {WS}, s45 offen offset:{(kk%4)*1024}{" nt" if opt.ffnnt else ""}')
        else:
            pp, u = (idx - 40) // 10, (idx - 40) % 10
            e.I(f'buffer_load_dwordx4 {dst}, v{4+u}, {WS}, {adv[1]} offen offset:{pp*1024}{" nt" if opt.ffnnt else ""}')
    for idx in range(opt.ffd): wload(idx, ('s41', 's42'))
    e.I(f's_waitcnt vmcnt({opt.ffd})')
    e.I('s_barrier')
    top = e.lab('Lft')
    TS(e, 0)
    e.I('s_mov_b32 s30, 0')
    e.L(top)
    e.I('s_cmp_lt_u32 s30, 11')
    e.I('s_cselect_b32 s46, 163840, 0')
    e.I('s_cselect_b32 s47, 4096, 0')
    e.I('s_add_u32 s43, s41, s46')
    e.I('s_add_u32 s44, s42, s47')
    D = opt.ffd
    def pref(idx):
        j = idx + D
        if j < 80: wload(j, ('s41', 's42'))
        else: wload(j - 80, ('s43', 's44'))
    def rdx(kk):
        for rt in range(4):
            e.I(f'ds_read_b128 {vr(BF + ((kk%2)*4+rt)*4)}, v{2 if rt < 3 else 3} offset:{(rt if rt < 3 else 2)*20480 + kk*1024}')
    rdx(0)
    for kk in range(20):
        if kk + 1 < 20: rdx(kk + 1)
        e.I(f's_waitcnt vmcnt({D-2}) lgkmcnt({4 if kk+1 < 20 else 0})')
        for u in range(2):
            idx = 2 * kk + u
            for rt in range(4):
                d = vr(ACC1 + (u*4+rt)*4)
                e.I(f'{MFMA} {d}, {vr(WR+(idx%NW)*4)}, {vr(BF+((kk%2)*4+rt)*4)}, {0 if kk == 0 else d}')
        pref(2 * kk); pref(2 * kk + 1)
    for rt in range(4):
        for u in range(2):
            d = ACC1 + (u*4+rt)*4
            for k in range(4): e.I(f'v_max_f32 v{d+k}, 0, v{d+k}')
            e.I(f'v_cvt_pk_bf16_f32 v{HP+rt*4+2*u}, v{d}, v{d+1}')
            e.I(f'v_cvt_pk_bf16_f32 v{HP+rt*4+2*u+1}, v{d+2}, v{d+3}')
        e.I(f'ds_write_b128 v15, {vr(HP+rt*4)} offset:{rt*1024}')
    e.I('s_waitcnt lgkmcnt(0)')
    e.I('s_barrier')
    def rdh(pp):
        for rt in range(4):
            e.I(f'ds_read_b128 {vr(BF + ((pp%2)*4+rt)*4)}, v14 offset:{pp*4096 + rt*1024}')
    rdh(0)
    for pp in range(4):
        if pp + 1 < 4: rdh(pp + 1)
        for u in range(10):
            idx = 40 + pp * 10 + u
            w = f's_waitcnt vmcnt({D-1})'
            if u == 0: w += f' lgkmcnt({4 if pp+1 < 4 else 0})'
            e.I(w)
            for rt in range(4):
                d = ar(ACC2 + (u*4+rt)*4)
                e.I(f'{MFMA} {d}, {vr(WR+(idx%NW)*4)}, {vr(BF+((pp%2)*4+rt)*4)}, {d}')
            pref(idx)
    e.I('v_xor_b32 v14, 16384, v14')
    e.I('v_xor_b32 v15, 16384, v15')
    e.I('s_mov_b32 s41, s43')
    e.I('s_mov_b32 s42, s44')
    e.I('s_add_u32 s30, s30, 1')
    e.I('s_cmp_lt_u32 s30, 12')
    e.I(f's_cbranch_scc1 {top}')
    e.I('s_waitcnt vmcnt(0)')
    TS(e, 1)
    e.I('v_lshlrev_b32 v3, 3, v1')
    e.I(f's_mul_i32 s38, s24, {4*40*512}')
    e.I(f's_mul_i32 s39, s22, {10*512}')
    e.I('s_add_u32 s38, s38, s39')
    e.I(f's_add_u32 s38, s38, {G_}')
    e.I(f's_mov_b32 s52, {f2u(-1.4426950408889634):#x}')
    for rt in range(4):
        e.I(f's_add_u32 s39, s38, {rt*40*512}')
        e.I('s_add_u32 s40, s39, 4096')
        for u in range(10):
            t = 16 + ((rt*10+u) % 4) * 16
            a0 = ACC2 + (u*4+rt)*4
            for k in range(4): e.I(f'v_accvgpr_read_b32 v{t+k}, a{a0+k}')
            e.I(f'v_cvt_pk_bf16_f32 v{t+4}, v{t}, v{t+1}')
            e.I(f'v_cvt_pk_bf16_f32 v{t+5}, v{t+2}, v{t+3}')
            e.I(f'v_lshlrev_b32 v{t}, 16, v{t+4}')
            e.I(f'v_and_b32 v{t+1}, 0xffff0000, v{t+4}')
            e.I(f'v_lshlrev_b32 v{t+2}, 16, v{t+5}')
            e.I(f'v_and_b32 v{t+3}, 0xffff0000, v{t+5}')
            for k in range(4): e.I(f'v_mul_f32 v{t+4+k}, s52, v{t+k}')
            for k in range(4): e.I(f'v_exp_f32 v{t+4+k}, v{t+4+k}')
            for k in range(4): e.I(f'v_add_f32 v{t+4+k}, 1.0, v{t+4+k}')
            for k in range(4): e.I(f'v_rcp_f32 v{t+4+k}, v{t+4+k}')
            for k in range(4): e.I(f'v_mul_f32 v{t+k}, v{t+k}, v{t+4+k}')
            e.I(f'v_cvt_pk_bf16_f32 v{t+8}, v{t}, v{t+1}')
            e.I(f'v_cvt_pk_bf16_f32 v{t+9}, v{t+2}, v{t+3}')
            e.I(f'buffer_store_dwordx2 {vr(t+8,2)}, v3, {WS}, {"s39" if u < 8 else "s40"} offen offset:{(u%8)*512} sc1')
    e.I('s_waitcnt vmcnt(0)')
    TS(e, 2)
    if opt.ts: e.I('s_lshr_b32 s50, s24, 3'); e.I('s_add_u32 s50, s50, 64')
    TSflush(e, 's50')
    e.I('s_barrier')
    e.I('s_cmp_lg_u32 s22, 0')
    e.I('s_cbranch_scc1 L_ffn_nf')
    e.I('v_mov_b32 v4, 1')
    e.I('s_lshl_b32 s38, s24, 2')
    e.I('v_mov_b32 v5, s38')
    e.I(f's_mov_b32 s39, {FLGG}')
    set_flag(e, 5, 's39', 4, ' sc1')
    e.I('s_waitcnt vmcnt(0)')
    e.L('L_ffn_nf')
    e.I('s_cmp_ge_u32 s26, 8')
    e.I(f's_cbranch_scc1 {"L_end" if opt.nocmb else "L_cmb"}')
    e.I('s_add_u32 s24, s24, 24')
    e.I('s_cmp_lt_u32 s24, 32')
    e.I('s_cbranch_scc1 L_ffn_task')
    e.I('s_endpgm')

def role_cmb(e):
    PXR = 16
    GR = 144
    XR_ = 152
    T0 = 160
    e.I('s_sub_u32 s24, s26, 8')
    e.I('s_lshl_b32 s24, s24, 2')
    e.I('s_add_u32 s30, s24, s22')
    e.I(f's_mov_b32 s33, {opt.qc or 1280}')
    e.L('L_cmb2')
    srd(e, 8, 68, 2048 * 1280)
    srd(e, 12, 70, 2048 * 1280)
    e.I('v_lshlrev_b32 v3, 2, v1')
    e.I('v_lshlrev_b32 v4, 3, v1')
    e.I('v_mov_b32 v6, 0')
    lane_ig(e, 14, 15)
    e.I('v_mul_u32_u24 v5, 1280, v14')
    e.I('v_lshl_add_u32 v5, v15, 3, v5')
    e.I('s_mov_b32 s49, 0')
    e.I('s_mov_b32 s52, 0x3f80'); e.I('s_mov_b32 s53, 0x3f800000')
    e.I('v_lshrrev_b32 v7, 4, v1')
    e.I('v_mul_u32_u24 v7, 40960, v7')
    e.I('v_lshl_add_u32 v7, v14, 7, v7')
    e.I(f'v_add_u32 v8, {4*40960}, v7')
    top = e.lab('Lct')
    if opt.t63:
        e.I('s_cmp_eq_u32 s33, 0')
        e.I(f's_cbranch_scc1 {top}')
        e.I('s_add_u32 s38, s30, 1216')
        e.I('s_mul_i32 s39, s38, 3277')
        e.I('s_lshr_b32 s39, s39, 16')
        e.I('s_mul_i32 s40, s39, 20')
        e.I('s_sub_u32 s40, s38, s40')
        e.I(f's_mul_i32 s43, s39, {SEG_PX}')
        e.I('s_lshl_b32 s40, s40, 11')
        e.I('s_add_u32 s43, s43, s40')
        e.I(f's_add_u32 s43, s43, {PX}')
        for k in range(2): e.I(f'buffer_load_dword v{T0}, v{7+k}, {WS}, s43 offen sc1')
    e.L(top)
    TS(e, 0)
    e.I('s_mul_i32 s38, s30, 3277')
    e.I('s_lshr_b32 s38, s38, 16')
    e.I('s_mul_i32 s39, s38, 20')
    e.I('s_sub_u32 s39, s30, s39')
    e.I('s_cmp_ge_u32 s39, 10')
    e.I('s_cselect_b32 s40, 1, 0')
    e.I('s_mul_i32 s41, s40, 10')
    e.I('s_sub_u32 s41, s39, s41')
    gok = e.lab('Lcg')
    e.I('s_cmp_lg_u32 s49, 0')
    e.I(f's_cbranch_scc1 {gok}')
    e.I(f's_mov_b32 s42, {FLGG}')
    e.I('s_mov_b32 exec_hi, 0')
    e.I(f'buffer_load_dword v{T0}, v3, {WS}, s42 offen sc1')
    e.I('s_waitcnt vmcnt(0)')
    e.I(f'v_cmp_eq_u32 vcc, 0, v{T0}')
    e.I('s_mov_b64 exec, -1')
    e.I('s_cmp_eq_u32 vcc_lo, 0')
    e.I('s_cselect_b32 s49, 1, 0')
    e.I(f's_cbranch_scc1 {gok}')
    e.I('s_lshr_b32 s42, s38, 1')
    e.I('s_lshl_b32 s42, s42, 2')
    e.I(f's_add_u32 s42, s42, {FLGG}')
    wait_flags(e, 6, 's42', 1, T0, 7, sleep=32)
    e.L(gok)
    e.I(f's_mul_i32 s43, s38, {SEG_PX}')
    e.I('s_mul_i32 s44, s40, 20480')
    e.I('s_add_u32 s43, s43, s44')
    e.I('s_lshl_b32 s44, s41, 11')
    e.I('s_add_u32 s43, s43, s44')
    e.I(f's_add_u32 s43, s43, {PX}')
    e.I('s_lshl_b32 s45, s38, 1')
    e.I('s_add_u32 s45, s45, s40')
    e.I('s_mul_i32 s46, s45, 20480')
    e.I('s_lshr_b32 s47, s41, 1')
    e.I('s_lshl_b32 s47, s47, 2')
    e.I('s_and_b32 s48, s41, 1')
    e.I('s_add_u32 s44, s47, s48')
    e.I('s_lshl_b32 s47, s44, 10')
    e.I('s_add_u32 s47, s47, s46')
    e.I(f's_add_u32 s47, s47, {G_}')
    e.I('s_lshl_b32 s48, s44, 6')
    e.I('s_add_u32 s48, s48, s46')
    TO = (0, 4, 1, 5)
    for t in range(4):
        e.I(f'buffer_load_dwordx2 {vr(GR+2*t,2)}, v4, {WS}, s47 offen offset:{TO[t]*512} sc1')
        e.I(f'buffer_load_dwordx2 {vr(XR_+2*t,2)}, v5, s[8:11], s48 offen offset:{TO[t]*32}')
    c1, c2 = e.lab('Lc1'), e.lab('Lc2')
    e.I('s_mul_i32 s50, s38, 10')
    e.I('s_and_b32 s44, s41, 14')
    e.I('s_add_u32 s50, s50, s44')
    e.I('s_lshl_b32 s50, s50, 7')
    e.I(f's_add_u32 s50, s50, {FLGPX}')
    e.I(f's_cmp_ge_u32 s38, {opt.cwarm}')
    e.I(f's_cbranch_scc1 {c1}')
    e.I(f's_add_u32 s42, s38, {opt.clag}')
    e.I('s_lshl_b32 s42, s42, 3')
    e.I('s_add_u32 s42, s42, s20')
    e.I('s_lshl_b32 s42, s42, 6')
    e.I(f's_add_u32 s42, s42, {FLGOX}')
    wait_flags(e, 6, 's42', 1, T0, 9, sleep=opt.lsleep)
    wait_flags(e, 3, 's50', -1, T0, 8, sleep=opt.csleep)
    e.I(f's_branch {c2}')
    e.L(c1)
    e.I('s_and_b32 s42, s38, 3')
    e.I('s_lshl_b32 s42, s42, 3')
    e.I('s_add_u32 s42, s42, s20')
    e.I('s_lshl_b32 s42, s42, 7')
    e.I('s_lshl_b32 s44, s44, 1')
    e.I('s_add_u32 s42, s42, s44')
    e.I(f's_add_u32 s42, s42, {HINT}')
    e.I('s_mul_i32 s51, s20, 5')
    e.I('s_lshr_b32 s44, s41, 1')
    e.I('s_add_u32 s51, s51, s44')
    e.I('s_lshl_b32 s51, s51, 7')
    e.I(f's_add_u32 s51, s51, {HINT2}')
    e.I('s_and_b32 s44, s38, 1')
    e.I('s_lshl_b32 s44, s44, 2')
    e.I('s_add_u32 s51, s51, s44')
    e.I(f's_cmp_ge_u32 s38, {63 - opt.s62}')
    e.I('s_cselect_b32 s42, s51, s42')
    wait_flags(e, 6, 's42', 1, T0, 9, sleep=2)
    e.I(f's_cmp_ge_u32 s38, {63 - opt.s62}')
    e.I(f's_cbranch_scc1 {c2}')
    wait_flags(e, 3, 's50', -1, T0, 8, sleep=opt.c2sleep)
    e.L(c2)
    TS(e, 1)
    RAW = PXR + 32
    def ld(x):
        for t in range(2):
            if not opt.cdiag & 4: e.I(f'buffer_load_dwordx4 {vr(RAW+(x*2+t)*4)}, v2, {WS}, s43 offen offset:{t*1024} sc1')
        if x < 7: e.I('s_add_u32 s43, s43, 40960')
    def body(depth):
        for x in range(min(depth, 8)): ld(x)
        for x in range(8):
            left = min(depth - 1, 7 - x)
            e.I(f's_waitcnt vmcnt({left*2})')
            if x + depth < 8: ld(x + depth)
            for k in range(16): e.I(f'v_dot2c_f32_bf16 v{PXR+k}, {("s52", "s53")[k&1]}, v{RAW+x*8+(k>>1)}')
        e.I('s_nop 2')
    for k in range(16): e.I(f'v_mov_b32 v{PXR+k}, 0')
    fast, join = e.lab('Lcf'), e.lab('Lcj')
    e.I('s_cmp_ge_u32 s38, 61')
    e.I(f's_cbranch_scc1 {fast}')
    body(opt.cdepth)
    e.I(f's_branch {join}')
    e.L(fast)
    f2, pl_, pk_ = e.lab('Lcg'), e.lab('Lcp'), e.lab('Lck')
    e.I(f's_cmp_lt_u32 s38, {63 - opt.s62}')
    e.I(f's_cbranch_scc1 {f2}')
    e.I(f's_mov_b32 s31, {TMO}')
    e.I('s_mov_b32 s51, s43')
    e.L(pl_)
    e.I('s_mov_b32 s43, s51')
    for x in range(8): ld(x)
    e.I('s_waitcnt vmcnt(0)')
    check_sent(e, range(RAW, RAW + 64), T0, T0 + 1)
    e.I(f's_cbranch_vccz {pk_}')
    e.I('s_sub_u32 s31, s31, 1')
    e.I(f's_cbranch_scc0 {pl_}')
    e.I('s_mov_b32 s31, 8')
    e.I('s_branch L_fail')
    e.L(pk_)
    for x in range(8):
        for k in range(16): e.I(f'v_dot2c_f32_bf16 v{PXR+k}, {("s52", "s53")[k&1]}, v{RAW+x*8+(k>>1)}')
    e.I('s_nop 2')
    e.I(f's_branch {join}')
    e.L(f2)
    body(8)
    e.L(join)
    TS(e, 3)
    for t in range(4):
        b = PXR + 4 * t; u = T0 + 8 * (t % 2)
        e.I(f'v_cvt_pk_bf16_f32 v{u}, v{b}, v{b+1}')
        e.I(f'v_cvt_pk_bf16_f32 v{u+1}, v{b+2}, v{b+3}')
        for h_ in range(2):
            e.I(f'v_lshlrev_b32 v{b+2*h_}, 16, v{u+h_}')
            e.I(f'v_and_b32 v{b+2*h_+1}, 0xffff0000, v{u+h_}')
            e.I(f'v_lshlrev_b32 v{u+2+2*h_}, 16, v{GR+2*t+h_}')
            e.I(f'v_and_b32 v{u+3+2*h_}, 0xffff0000, v{GR+2*t+h_}')
        for k in range(4): e.I(f'v_mul_f32 v{b+k}, v{b+k}, v{u+2+k}')
        e.I(f'v_cvt_pk_bf16_f32 v{u}, v{b}, v{b+1}')
        e.I(f'v_cvt_pk_bf16_f32 v{u+1}, v{b+2}, v{b+3}')
        for h_ in range(2):
            e.I(f'v_lshlrev_b32 v{b+2*h_}, 16, v{u+h_}')
            e.I(f'v_and_b32 v{b+2*h_+1}, 0xffff0000, v{u+h_}')
            e.I(f'v_lshlrev_b32 v{u+2+2*h_}, 16, v{XR_+2*t+h_}')
            e.I(f'v_and_b32 v{u+3+2*h_}, 0xffff0000, v{XR_+2*t+h_}')
        for k in range(4): e.I(f'v_add_f32 v{b+k}, v{b+k}, v{u+2+k}')
        e.I(f'v_cvt_pk_bf16_f32 v{u+6}, v{b}, v{b+1}')
        e.I(f'v_cvt_pk_bf16_f32 v{u+7}, v{b+2}, v{b+3}')
        e.I(f'buffer_store_dwordx2 {vr(u+6,2)}, v5, s[12:15], s48 offen offset:{TO[t]*32}{("", " sc1", " nt")[opt.ost]}')
    TS(e, 2)
    if opt.ts: e.I('s_lshr_b32 s50, s30, 6')
    TSflush(e, 's50')
    e.I('s_add_u32 s30, s30, 64')
    e.I('s_cmp_lt_u32 s30, s33')
    e.I(f's_cbranch_scc1 {top}')
    DSTAMP(e, 5)
    e.I(f's_cmp_lg_u32 s30, {1279 + 64}')
    e.I('s_cbranch_scc1 L_end')
    e.I('s_mov_b32 exec_hi, 0xffff')
    e.I(f'global_store_dword v3, v6, s[74:75] offset:{D_TR} sc1')
    e.I('s_endpgm')

def gen_mainkernel(e):
    kernel_head(e, MAIN)
    e.I('s_cmp_ge_u32 s2, 256')
    e.I('s_cbranch_scc1 L_end')
    e.I('s_load_dwordx2 s[32:33], s[0:1], 96')
    e.I('s_load_dwordx4 s[60:63], s[0:1], 16')
    e.I('s_load_dwordx4 s[64:67], s[0:1], 32')
    e.I('s_load_dwordx4 s[52:55], s[0:1], 0')
    e.I('s_load_dwordx4 s[56:59], s[0:1], 64')
    e.I('s_load_dwordx4 s[72:75], s[0:1], 80')
    TS(e, 0)
    e.I('s_getreg_b32 s24, hwreg(HW_REG_XCC_ID)')
    e.I('v_and_b32 v1, 63, v0')
    e.I('v_lshlrev_b32 v2, 4, v1')
    e.I('v_lshrrev_b32 v3, 6, v0')
    e.I('v_readfirstlane_b32 s22, v3')
    if opt.cwarm2:
        e.I('s_getpc_b64 s[34:35]')
        e.L('L_pc')
        e.I('s_lshr_b32 s36, s2, 3')
        e.I('s_lshl_b32 s36, s36, 2')
        e.I('v_add_u32 v3, s36, v3')
        e.I(f'v_mul_u32_u24 v3, {opt.cwarm2}, v3')
        e.I(f'v_min_u32 v4, {opt.cwarm2 - 1}, v1')
        e.I('v_add_u32 v3, v3, v4')
        e.I('v_lshlrev_b32 v3, 7, v3')
        e.I('v_min_u32 v3, L_last-L_pc, v3')
        e.I('v_mov_b32 v5, s35')
        e.I('v_add_co_u32 v4, vcc, s34, v3')
        e.I('v_addc_co_u32 v5, vcc, 0, v5, vcc')
        e.I('global_load_dword v255, v[4:5], off')
    if opt.force_slow:
        e.I('s_lshr_b32 s20, s2, 5'); e.I('s_and_b32 s21, s2, 31')
    else:
        e.I('s_and_b32 s20, s2, 7'); e.I('s_lshr_b32 s21, s2, 3')
    e.I('s_and_b32 s24, s24, 15')
    e.I('s_lshl_b32 s96, s20, 4')
    e.I('s_and_b32 s25, s24, 12')
    e.I('s_add_u32 s96, s96, s25')
    e.I('s_and_b32 s25, s24, 3')
    e.I('s_lshl_b32 s25, s25, 3')
    e.I('s_lshl_b32 s97, 1, s25')
    e.I('s_waitcnt lgkmcnt(0)')
    e.I('s_mov_b64 s[70:71], s[72:73]')
    e.I('s_mov_b64 s[68:69], s[52:53]')
    srd(e, 4, 32, WS_BYTES)
    TS(e, 1)
    TSflush(e, '70')
    if opt.dstamp: e.I('s_lshl_b32 s98, s21, 2'); e.I('s_add_u32 s98, s98, s22')
    DSTAMP(e, 0, 's_cmp_eq_u32 s98, 84', 'neg')
    e.I('s_cmp_ge_u32 s21, 22'); e.I('s_cbranch_scc1 L_help')
    e.I('s_sub_u32 s24, s21, 12')
    if opt.urg: e.I('s_cmp_lt_u32 s24, 2')
    else: e.I('s_cmp_eq_u32 s24, 1')
    e.I('s_cbranch_scc1 L_urg')
    register(e, 3, 4)
    e.I('s_cmp_ge_u32 s21, 12'); e.I('s_cbranch_scc1 L_wo')
    role_qkv(e)
    e.L('L_urg')
    srd(e, 8, 52, 2048 * 1280); srd(e, 12, 54, 8 * 1280)
    e.I('s_cmp_lg_u32 s24, 0')
    e.I('s_cbranch_scc1 L_um')
    ln_addr(e)
    e.I('s_mul_i32 s25, s20, 20480')
    ln_load(e, 16, 's25')
    e.I('s_waitcnt vmcnt(0)')
    ln_compute(e, 16, 's25')
    e.I('s_branch L_ur')
    e.L('L_um')
    mem0_copy(e, None, 0, opt.inl)
    e.I('s_mul_i32 s41, s20, 10240')
    e.I(f's_add_u32 s41, s41, {MEM}')
    e.I('s_waitcnt vmcnt(0)')
    mem0_copy(e, 's41', 1)
    e.L('L_ur')
    e.I('s_waitcnt vmcnt(0)')
    e.I('s_barrier')
    register(e, 3, 4)
    e.L('L_wo'); role_sw(e)
    e.L('L_help')
    srd(e, 8, 52, 2048 * 1280)
    e.I('s_mul_i32 s24, s20, 10')
    e.I('s_add_u32 s24, s24, s21')
    e.I('s_sub_u32 s24, s24, 22')
    if opt.urg: init_fill(e, 's24', 80)
    ln_addr(e)
    e.I('s_mul_i32 s25, s24, 20480')
    if opt.urg: e.I(f's_add_u32 s25, s25, {8*20480}')
    e.I(f's_add_u32 s26, s25, {80*20480}')
    ln_load(e, 16, 's25')
    ln_load(e, 36, 's26')
    if opt.urg:
        e.I('s_waitcnt vmcnt(10)')
        e.I('s_barrier')
        register(e, 3, 4)
    elif opt.pfh:
        srd(e, 12, 64, 640 * 12288); srd(e, 16, 60, 640 * 12288)
        e.I('s_sub_u32 s27, s21, 22')
        e.I('s_lshl_b32 s27, s27, 2')
        e.I('s_add_u32 s27, s27, s22')
        prefetch_w(e, 's27', 0, opt.pfh, 124, 's[12:15]', 's[16:19]')
    else: init_fill(e, 's24', 80)
    e.I(f's_waitcnt vmcnt({3*opt.pfh})')
    ln_compute(e, 16, 's25')
    e.I(f's_cmp_ge_u32 s24, {40 if opt.urg else 48}')
    e.I('s_cbranch_scc1 L_hl')
    ln_compute(e, 36, 's26')
    e.L('L_hl')
    if opt.pfh: init_fill(e, 's24', 80)
    e.I('s_waitcnt vmcnt(0)')
    e.I('s_barrier')
    if opt.urg: count_up(e, 3, D_W)
    if not opt.urg: register(e, 3, 4)
    TS(e, 0)
    TSflush(e, '69')
    if opt.touch2:
        wait_reg(e, 16, opt.rsleep)
        e.I('s_sub_u32 s24, s21, 22')
        e.I('s_lshl_b32 s25, s20, 2')
        e.I('s_add_u32 s25, s25, s22')
        touch_jobs(e, [(XN + k * 40960, 10240, 40) for k in range(3)] + [(XN + k * 40960 + 5120, 10240, 40) for k in range(3)], 's24', 10, 's22', 18)
        jobs = []
        for sl in range(4): jobs += [(MEM + sl * MEM_SLOT, 2560, 20), (XR + sl * XR_SLOT, 6144, 48), (VR + sl * VR_SLOT, 3072, 24)]
        touch_jobs(e, jobs[::-1][:4] + jobs[:8], 's24', 10, 's25', 24, 6)
    e.I('s_cmp_ge_u32 s21, 29'); e.I('s_cbranch_scc1 L_ffn')
    e.I('s_cmp_lt_u32 s21, 27'); e.I('s_cbranch_scc1 L_xw')
    role_att(e)
    e.L('L_xw'); role_xw(e)
    e.L('L_ffn'); role_ffn(e)
    e.L('L_cmb'); role_cmb(e)
    e.L('L_fail')
    e.I('s_mov_b64 exec, 1')
    e.I('s_lshl_b32 s31, s31, 2')
    e.I('v_mov_b32 v3, s31')
    e.I('v_mov_b32 v4, 1')
    e.I('global_atomic_add v3, v4, s[74:75]')
    e.L('L_end')
    e.L('L_last')
    e.I('s_endpgm')

def build(path):
    import gen_pre
    gen_pre.DIAG[0] = opt.noinit
    if opt.s62:
        assert opt.rpos == 9
        gen_pre.INIT_REGIONS[-2:] = [(PART, PART_SLOT // 4096, -1), (PX + 62 * SEG_PX, 2 * SEG_PX // 4096, -1)]
    for k in range(3): NT[k] = ' nt' if opt.pnt >> k & 1 else ''
    hdr = open('cdna_kernels/' + NAME + '.s.ref').read().split('\n')
    e = Em()
    for l in hdr:
        if l.startswith(';') and '@launch' not in l and 'Override launch' not in l and 'grid=ceil' not in l: e.raw(l)
    e.raw(f'; @launch grid=(256,1,1) block=(256,1,1) lds=163840')
    e.raw('.amdgcn_target "amdgcn-amd-amdhsa--gfx950"')
    gen_mainkernel(e)
    kernel_desc(e, MAIN, 512, 100, 256)
    hazard.PIPE = bool(opt.pipe)
    lines, added = hazard.pad(e.lines)
    open(path, 'w').write('\n'.join(lines) + '\n')
    n = sum(1 for l in lines if l.startswith('    ') and not l.strip().startswith(';'))
    print(f'wrote {path}: {n} instructions, {added} nops added')

if __name__ == '__main__':
    out = sys.argv[1] if len(sys.argv) > 1 else 'cdna_kernels/' + NAME + '.s'
    if 'slow' in sys.argv[2:]: opt.force_slow = True
    if 'ts' in sys.argv[2:]: opt.ts = True
    for k in ('nobg', 'ackpoll', 'noxw'):
        if k in sys.argv[2:]: setattr(opt, k, True)
    for a_ in sys.argv[2:]:
        if '=' in a_: k_, v_ = a_.split('='); setattr(opt, k_, int(v_))
    build(out)
```

```python
import sys, struct
from asmlib import *
from layout import *
import hazard
from gen_pre import *

NAME = 'recurrent_scan__memory_aug_recurrent_mem_tr__dense_activation_relu__prompt'
MAIN = NAME + '_kernel'
PRE = 'prep_kernel'
LDS_TOTAL = 131072
LDS_ROLE = 131072
TMO = 1 << 18
def f2u(x): return struct.unpack('<I', struct.pack('<f', x))[0]
SC_L2E = f2u(192 ** -0.5 * 1.4426950408889634)
NEG_BIG = f2u(-1e30)
MFMA = 'v_mfma_f32_16x16x32_bf16'
MFMA16 = 'v_mfma_f32_16x16x16_bf16'
SMF = 'v_smfmac_f32_16x16x64_bf16'
WS = 's[4:7]'
WFL = ['', ' nt', ' sc1', ' sc0 sc1', ' sc1 nt', ' sc0 sc1 nt']

class Opt:
    force_slow = False
    ts = False
    nobg = False
    ackpoll = False
    noxw = False
    pdelay = 0
    vdelay = 0
    kbar = 0
    kpre = 12
    kin = 12
    fresh = 0
    pdiag = 0
    pflip = 0
    touch = 1
    nofc = 0
    nopx = 0
    nocmb = 0
    cdepth = 2
    ffnnt = 0
    pr = 1
    pfar = 0
    vpre = 0
    vmpos = 2
    smpre = 1
    smgap = 3
    ldgap = 30
    kp = 0
    kcs = 0
    kce = 12
    xlate = 4
    csleep = 8
    cwarm = 61
    c2sleep = 4
    clag = 2
    lsleep = 8
    xsleep = 2
    asleep = 2
    cdiag = 0
    n1 = 5
    n2 = 4
    n3 = 0
    thin = 1
    split = 2
    eord = 1
    inl = 1
    hsleep = 2
    pord = 0
    hpos = 1
    own = 0
    spr = 1
    spr0 = 4
    spre = 0
    x0e = 0
    pr2 = 0
    ad = 0
    mrl = 0
    adn = 8
    adlo = 3
    adhi = 8
    adup = 1
    ffd = 24
    fprio = 0
    s62 = 1
    abp = 1
    x2e = 0
    kxl = 0
    vxe = 0
    qlead = 1
    pvord = 0
    pvl = 2
    qc = 1220
    f63 = 1
    two = 1
    nc = 1
    sa = 4
    sb = 7
    cvx = 24
    nod = 1
    sord = 1
    thin1 = 1
    pvmix = 1
    vin = 3
    zin = 0
    rdmix = 2
    t9 = -1
    vgap = 0
    fv = 11
    pipe = 1
    ktight = 1
    vx2 = 1
    ox4 = 1
    remap = 1
    fq = 3
    vown = 1
    g1 = 0
    g2 = 0
    vpos = 1
    xg1 = 0
    xg2 = 0
    fwait = 3
    ptouch = 1
    spec = 1
    mwait = 0
    mpre = 2
    kgap = 15
    noinit = 0
    pfh = 0
    wb = 0
    ost = 0
    mprobe = 0
    kx = 0
    dstamp = 0
    hwv = 7
    t63 = 1
    esleep = 1
    tpos = 0
    pmf = 6
    pmf2 = 4
    urg = 0
    rsleep = 16
    cwarm2 = 0
    tord = 0
    pfs = 0
    swlate = 1
    fpos = 7
    heads = 1
    hdelay = 0
    wnb = 3
    wrows = 320
    touch2 = 1
    pnt = 1
    wnt = 1
    wthr = 64
    xpf = 10
    xdma0 = 10
    xdmas = 1
    pbf = 1
    rpos = 9
    mbar = 1
    pspin = 0
    nobulk = 0
opt = Opt()

def vr(i, n=4): return f'v[{i}:{i+n-1}]'
def ar(i, n=4): return f'a[{i}:{i+n-1}]'

def maxchain(e, dst, regs, op='u32'):
    regs = list(regs)
    e.I(f'v_max3_{op} v{dst}, v{regs[0]}, v{regs[1]}, v{regs[2]}')
    rest = regs[3:]
    while rest:
        if len(rest) >= 2:
            e.I(f'v_max3_{op} v{dst}, v{dst}, v{rest[0]}, v{rest[1]}'); rest = rest[2:]
        else:
            e.I(f'v_max_{op} v{dst}, v{dst}, v{rest[0]}'); rest = rest[1:]

def check_sent(e, regs, t0, t1):
    regs = list(regs)
    if len(regs) >= 8:
        h = len(regs) // 2
        A, B = regs[:h], regs[h:]
        ea, eb = Em(), Em()
        maxchain(ea, t0, A); maxchain(eb, t1, B)
        for i in range(max(len(ea.lines), len(eb.lines))):
            if i < len(ea.lines): e.lines.append(ea.lines[i])
            if i < len(eb.lines): e.lines.append(eb.lines[i])
        e.I(f'v_max_u32 v{t0}, v{t0}, v{t1}')
    else:
        maxchain(e, t0, regs)
    e.I(f'v_cmp_eq_u32 vcc, -1, v{t0}')
def chunk_regs(base, n, step):
    return list(range(base, base + n, step)) if opt.thin else list(range(base, base + n))

def poll2(e, issue, nl, regsA, regsB, consume, t0, t1, code, early=None):
    lp, dA, dB, dd = e.lab('Lp'), e.lab('LdA'), e.lab('LdB'), e.lab('Ldd')
    e.I(f's_mov_b32 s31, {TMO}')
    issue(regsA)
    e.L(lp)
    issue(regsB)
    e.I(f's_waitcnt vmcnt({nl})')
    if early: early(regsA)
    check_sent(e, chunk_regs(regsA, 4 * nl, 4), t0, t1)
    e.I(f's_cbranch_vccz {dA}')
    issue(regsA)
    e.I(f's_waitcnt vmcnt({nl})')
    if early: early(regsB)
    check_sent(e, chunk_regs(regsB, 4 * nl, 4), t0, t1)
    e.I(f's_cbranch_vccz {dB}')
    e.I('s_sub_u32 s31, s31, 1')
    e.I(f's_cbranch_scc0 {lp}')
    e.I(f's_mov_b32 s31, {code}')
    e.I('s_branch L_fail')
    e.L(dB)
    consume(regsB)
    e.I(f's_branch {dd}')
    e.L(dA)
    consume(regsA)
    e.L(dd)

def wait_flags(e, vaddr, sofs, mask, vt, code, sleep=0, dbg=False):
    lp, dn = e.lab('Lf'), e.lab('Lfd')
    e.I(f's_mov_b32 s31, {TMO}')
    if mask > 0xffffffff or mask < 0: e.I(f's_mov_b64 exec, {mask}')
    else:
        e.I(f's_mov_b32 exec_lo, {mask:#x}'); e.I('s_mov_b32 exec_hi, 0')
    e.L(lp)
    if dbg: e.I(f'global_load_dword v{vt}, v{vaddr}, s[74:75] offset:{sofs} sc1')
    else: e.I(f'buffer_load_dword v{vt}, v{vaddr}, {WS}, {sofs} offen sc1')
    e.I('s_waitcnt vmcnt(0)')
    e.I(f'v_cmp_eq_u32 vcc, 0, v{vt}')
    e.I(f's_cbranch_vccz {dn}')
    if sleep: e.I(f's_sleep {sleep}')
    e.I('s_sub_u32 s31, s31, 1')
    e.I(f's_cbranch_scc0 {lp}')
    e.I(f's_mov_b32 s31, {code}')
    e.I('s_branch L_fail')
    e.L(dn)
    e.I('s_mov_b64 exec, -1')

D_TR, D_PAR, D_REG = 64, 96, 128
def register(e, va, vd):
    sk = e.lab('Lrg')
    e.I('s_cmp_lg_u32 s22, 0')
    e.I(f's_cbranch_scc1 {sk}')
    e.I(f'v_mov_b32 v{va}, s96')
    e.I(f'v_mov_b32 v{vd}, s97')
    e.I('s_mov_b64 exec, 1')
    e.I(f'global_atomic_add v{va}, v{vd}, s[74:75] offset:{D_REG} sc1')
    e.I('s_mov_b64 exec, -1')
    e.L(sk)
D_W = 68
def wait_count(e, t, off, n, sleep):
    lp, dn = e.lab('Lwc'), e.lab('Lwe')
    e.I(f's_mov_b32 s31, {TMO}')
    e.I(f'v_mov_b32 v{t+1}, 0')
    e.L(lp)
    e.I(f'global_load_dword v{t}, v{t+1}, s[74:75] offset:{off} sc1')
    e.I('s_waitcnt vmcnt(0)')
    e.I(f'v_cmp_gt_u32 vcc, {n}, v{t}')
    e.I(f's_cbranch_vccz {dn}')
    e.I(f's_sleep {sleep}')
    e.I('s_sub_u32 s31, s31, 1')
    e.I(f's_cbranch_scc0 {lp}')
    e.I('s_mov_b32 s31, 10')
    e.I('s_branch L_fail')
    e.L(dn)
def wait_first(e, t, seg=0):
    wait_reg(e, t, 32)
    e.I('s_lshl_b32 s38, s20, 8')
    e.I(f's_add_u32 s38, s38, {FLGQ + seg*2048}')
    e.I(f'v_lshlrev_b32 v{t+1}, 6, v1')
    wait_flags(e, t + 1, 's38', 0xf, t, 15, sleep=16)
def count_up(e, t, off):
    sk = e.lab('Lcu')
    e.I('s_cmp_lg_u32 s22, 0')
    e.I(f's_cbranch_scc1 {sk}')
    e.I(f'v_mov_b32 v{t}, 0'); e.I(f'v_mov_b32 v{t+1}, 1')
    e.I('s_mov_b64 exec, 1')
    e.I(f'global_atomic_add v{t}, v{t+1}, s[74:75] offset:{off} sc1')
    e.I('s_mov_b64 exec, -1')
    e.L(sk)
def wait_reg(e, t, sleep=4):
    lp, dn = e.lab('Lwr'), e.lab('Lwd')
    e.I(f's_mov_b32 s31, {TMO}')
    e.I(f'v_lshlrev_b32 v{t+2}, 2, v1')
    e.I('s_mov_b32 exec_hi, 0')
    e.L(lp)
    e.I(f'global_load_dword v{t}, v{t+2}, s[74:75] offset:{D_REG} sc1')
    e.I('s_mov_b32 s23, 0')
    e.I('s_mov_b32 s38, 0')
    e.I('s_waitcnt vmcnt(0)')
    for k in range(4):
        e.I(f'v_cmp_eq_u32 vcc, {0x20 << (8*k):#x}, v{t}')
        e.I('s_or_b32 s38, s38, vcc_lo')
    e.I(f'v_sad_u8 v{t+1}, v{t}, 0, 0')
    e.I('s_bcnt1_i32_b32 s38, s38')
    e.I('s_cmp_eq_u32 s38, 8')
    e.I(f's_cbranch_scc1 {dn}')
    for sh in (1, 2, 4, 8): e.I(f'v_add_u32_dpp v{t+1}, v{t+1}, v{t+1} row_shr:{sh} row_mask:0xf bank_mask:0xf bound_ctrl:0')
    e.I(f'v_readlane_b32 s38, v{t+1}, 15')
    e.I(f'v_readlane_b32 s39, v{t+1}, 31')
    e.I('s_mov_b32 s23, 1')
    e.I('s_add_u32 s38, s38, s39')
    e.I('s_cmp_eq_u32 s38, 256')
    e.I(f's_cbranch_scc1 {dn}')
    e.I(f's_sleep {sleep}')
    e.I('s_sub_u32 s31, s31, 1')
    e.I(f's_cbranch_scc0 {lp}')
    e.I('s_mov_b32 s31, 10')
    e.I('s_branch L_fail')
    e.L(dn)
    e.I('s_mov_b64 exec, -1')

def set_flag(e, vaddr, sofs, vone, fl):
    e.I('s_mov_b64 exec, 1')
    e.I(f'buffer_store_dword v{vone}, v{vaddr}, {WS}, {sofs} offen{fl}')
    e.I('s_mov_b64 exec, -1')

def xg_reduce(e, op, x, t):
    e.I(f'v_mov_b32 v{t}, v{x}')
    e.I(f'v_permlane16_swap_b32 v{x}, v{t}')
    e.I(f'{op} v{x}, v{x}, v{t}')
    e.I(f'v_mov_b32 v{t}, v{x}')
    e.I(f'v_permlane32_swap_b32 v{x}, v{t}')
    e.I(f'{op} v{x}, v{x}, v{t}')

def softmax12(e, S, P, t):
    maxchain(e, t, range(S, S + 12), 'f32')
    xg_reduce(e, 'v_max_f32', t, t + 1)
    e.I(f'v_mul_f32 v{t}, s53, v{t}')
    for i in range(12):
        e.I(f'v_fma_f32 v{S+i}, v{S+i}, s52, v{t}')
    for i in range(12):
        e.I(f'v_exp_f32 v{S+i}, v{S+i}')
    e.I(f'v_add_f32 v{t+2}, v{S}, v{S+1}')
    e.I(f'v_add_f32 v{t+3}, v{S+2}, v{S+3}')
    for i in range(4, 12, 2):
        e.I(f'v_add_f32 v{t+2}, v{t+2}, v{S+i}')
        e.I(f'v_add_f32 v{t+3}, v{t+3}, v{S+i+1}')
    e.I(f'v_add_f32 v{t+2}, v{t+2}, v{t+3}')
    xg_reduce(e, 'v_add_f32', t + 2, t + 3)
    e.I(f'v_rcp_f32 v{t+2}, v{t+2}')
    for i in range(12):
        e.I(f'v_mul_f32 v{S+i}, v{S+i}, v{t+2}')
    for i in range(6):
        e.I(f'v_cvt_pk_bf16_f32 v{P+i}, v{S+2*i}, v{S+2*i+1}')

def softmax_list(S, n, P, t):
    x = Em()
    maxchain(x, t, range(S, S + n), 'f32')
    xg_reduce(x, 'v_max_f32', t, t + 1)
    x.I(f'v_mul_f32 v{t}, s53, v{t}')
    for i in range(n): x.I(f'v_fma_f32 v{S+i}, v{S+i}, s52, v{t}')
    for i in range(n): x.I(f'v_exp_f32 v{S+i}, v{S+i}')
    x.I(f'v_add_f32 v{t+2}, v{S}, v{S+1}')
    x.I(f'v_add_f32 v{t+3}, v{S+2}, v{S+3}')
    for i in range(4, n, 2):
        x.I(f'v_add_f32 v{t+2}, v{t+2}, v{S+i}')
        x.I(f'v_add_f32 v{t+3}, v{t+3}, v{S+i+1}')
    x.I(f'v_add_f32 v{t+2}, v{t+2}, v{t+3}')
    xg_reduce(x, 'v_add_f32', t + 2, t + 3)
    x.I(f'v_rcp_f32 v{t+2}, v{t+2}')
    for i in range(n): x.I(f'v_mul_f32 v{S+i}, v{S+i}, v{t+2}')
    for i in range(n // 2): x.I(f'v_cvt_pk_bf16_f32 v{P+i}, v{S+2*i}, v{S+2*i+1}')
    return [l.strip() for l in x.lines]

def DSTAMP(e, idx, cond=None, op='umax'):
    if not opt.dstamp: return
    sk = e.lab('Lds')
    if cond: e.I(cond); e.I(f's_cbranch_scc0 {sk}')
    e.I('s_memtime s[98:99]' if op == 'clk' else 's_memrealtime s[98:99]')
    e.I('s_waitcnt lgkmcnt(0)')
    if op == 'neg': e.I('s_not_b32 s98, s98')
    e.I('s_mov_b64 exec, 1')
    e.I(f'v_mov_b32 v238, {idx*4}')
    e.I('v_mov_b32 v239, s98')
    e.I('global_atomic_umax v238, v239, s[74:75] sc1')
    e.I('s_mov_b64 exec, -1')
    e.L(sk)
def TS(e, k):
    if opt.ts: e.I(f's_memrealtime s[{76+2*k}:{77+2*k}]')
def TSflush(e, step, va=238, vd=239):
    if not opt.ts: return
    e.I('s_waitcnt lgkmcnt(0)')
    for k in range(10): e.I(f'v_writelane_b32 v{vd}, s{76+2*k}, {k}')
    e.I('s_lshl_b32 s76, s20, 5')
    e.I('s_add_u32 s76, s76, s21')
    e.I('s_lshl_b32 s76, s76, 2')
    e.I('s_add_u32 s76, s76, s22')
    e.I('s_mul_i32 s76, s76, 72')
    e.I(f's_add_u32 s76, s76, {step}')
    e.I('s_lshl_b32 s76, s76, 6')
    e.I(f's_add_u32 s76, s76, {DBGT}')
    e.I(f'v_lshlrev_b32 v{va}, 2, v1')
    e.I('s_mov_b64 exec, 0x3ff')
    e.I(f'buffer_store_dword v{vd}, v{va}, {WS}, s76 offen')
    e.I('s_mov_b64 exec, -1')

def lane_ig(e, vi, vg):
    e.I(f'v_and_b32 v{vi}, 15, v1')
    e.I(f'v_lshrrev_b32 v{vg}, 4, v1')

def load_weights(e, mats, RS, rows, paired, vA, vT, NB=3, bufoff=None, manual=False):
    CH = rows * 128
    ninst = rows // 8 // 4
    nk = rows // 32
    e.I(f'v_lshrrev_b32 v{vT}, 3, v1')
    if paired:
        e.I(f'v_bfe_u32 v{vT+1}, v1, 4, 2')
    else:
        e.I(f'v_bfe_u32 v{vT+1}, v1, 4, 1')
        e.I('s_and_b32 s54, s22, 1')
        e.I('s_lshl_b32 s54, s54, 1')
        e.I(f'v_or_b32 v{vT+1}, s54, v{vT+1}')
    e.I(f'v_lshlrev_b32 v{vT+1}, 1, v{vT+1}')
    e.I(f'v_and_b32 v{vT+2}, 7, v1')
    e.I(f'v_xor_b32 v{vT+2}, v{vT+2}, v{vT+1}')
    e.I(f's_mov_b32 s54, {RS}')
    e.I(f'v_mul_lo_u32 v{vA}, s54, v{vT}')
    e.I(f'v_lshl_add_u32 v{vA}, v{vT+2}, 4, v{vA}')
    e.I(f'v_lshrrev_b32 v{vT}, 4, v1')
    e.I(f'v_bfe_u32 v{vT+1}, v1, 2, 2')
    if paired:
        e.I(f'v_lshl_add_u32 v{vT+2}, v{vT}, 2, v{vT+1}')
        e.I(f'v_bfe_u32 v{vT}, v{vT+2}, 1, 2')
        second = 2048
    else:
        e.I(f'v_lshl_add_u32 v{vT+2}, v{vT}, 3, v{vT+1}')
        e.I(f'v_and_b32 v{vT}, 1, v{vT}')
        e.I(f'v_lshlrev_b32 v{vT}, 1, v{vT}')
        e.I(f'v_bfe_u32 v{vT+1}, v1, 3, 1')
        e.I(f'v_or_b32 v{vT}, v{vT}, v{vT+1}')
        second = 512
    e.I(f'v_xor_b32 v{vT}, s22, v{vT}')
    e.I(f'v_lshlrev_b32 v{vT+2}, 7, v{vT+2}')
    e.I(f'v_lshl_add_u32 v{vT+2}, v{vT}, 5, v{vT+2}')
    e.I(f'v_and_b32 v{vT}, 3, v1')
    e.I(f'v_lshl_add_u32 v{vT}, v{vT}, 3, v{vT+2}')
    bufoff = bufoff or [k * CH for k in range(NB)]
    for k in range(NB - 1, -1, -1):
        if bufoff[k]  or k: e.I(f'v_add_u32 v{vT+k}, {bufoff[k]}, v{vT}')
    chunks = []
    for (srd_, sofs, ab, nrows) in mats:
        for c in range(nrows // rows):
            chunks.append((srd_, sofs, ab + c * nk * 4, c * rows))
    e.I(f's_mul_i32 s55, s22, {8*RS}')
    e.I('s_lshl_b32 s56, s22, 10')
    def issue(ci, buf=None):
        srd_, sofs, ab, r0 = chunks[ci]
        if buf is None: buf = ci % NB
        e.I(f's_add_u32 s57, {sofs}, s55')
        if r0: e.I(f's_add_u32 s57, s57, {r0*RS}')
        for n in range(ninst):
            e.I(f's_add_u32 m0, s56, {bufoff[buf] + n*4096}')
            e.I(f'buffer_load_dwordx4 v{vA}, {srd_}, s57 offen{WFL[opt.wnt]} lds')
            if n + 1 < ninst: e.I(f's_add_u32 s57, s57, {32*RS}')
    def consume(ci, buf, pending):
        e.I(f's_waitcnt vmcnt({pending})')
        if ci < 8: TS(e, 2 + ci)
        e.I('s_barrier')
        srd_, sofs, ab, r0 = chunks[ci]
        for k in range(nk):
            e.I(f'ds_read_b64_tr_b16 {ar(ab+4*k,2)}, v{vT+buf} offset:{k*4096}')
            e.I(f'ds_read_b64_tr_b16 {ar(ab+4*k+2,2)}, v{vT+buf} offset:{k*4096+second}')
        e.I('s_waitcnt lgkmcnt(0)')
        e.I('s_barrier')
    if manual: return issue, consume
    for ci in range(min(NB, len(chunks))): issue(ci)
    for ci in range(len(chunks)):
        left = min(len(chunks) - 1 - ci, NB - 1)
        e.I(f's_waitcnt vmcnt({left*ninst})')
        if ci < 8: TS(e, 2 + ci)
        e.I('s_barrier')
        srd_, sofs, ab, r0 = chunks[ci]
        for k in range(nk):
            e.I(f'ds_read_b64_tr_b16 {ar(ab+4*k,2)}, v{vT+ci%NB} offset:{k*4096}')
            e.I(f'ds_read_b64_tr_b16 {ar(ab+4*k+2,2)}, v{vT+ci%NB} offset:{k*4096+second}')
        e.I('s_waitcnt lgkmcnt(0)')
        e.I('s_barrier')
        if ci + NB < len(chunks): issue(ci + NB)

def touch_jobs(e, jobs, sw, nw, sh, t, rot=0):
    sizes = sorted({min(n, 64) for _, _, n in jobs} | {n - 64 for _, _, n in jobs if n > 64})
    reg = {}
    for k, n in enumerate(sizes):
        reg[n] = t + 1 + k
        e.I(f'v_min_u32 v{reg[n]}, {n-1}, v1')
        e.I(f'v_lshlrev_b32 v{reg[n]}, 7, v{reg[n]}')
    flat = []
    for base, per, n in jobs:
        flat.append((base, per, min(n, 64)))
        if n > 64: flat.append((base + 8192, per, n - 64))
    for c in range(nw):
        sk = e.lab('Ltj')
        e.I(f's_cmp_lg_u32 {sw}, {c}')
        e.I(f's_cbranch_scc1 {sk}')
        for base, per, n in flat[(c - rot) % nw::nw]:
            e.I(f's_mul_i32 s38, {sh}, {per}')
            e.I(f's_add_u32 s38, s38, {base}')
            e.I(f'buffer_load_dword v{t}, v{reg[n]}, {WS}, s38 offen sc1')
        e.L(sk)

def prefetch_w(e, su, j0, j1, t, srdv, srdq):
    for k in range(3):
        e.I(f'v_add_u32 v{t+3}, {1024*k}, v2')
        e.I(f'v_cmp_le_u32 vcc, 1536, v{t+3}')
        e.I(f'v_add_u32 v{t+k}, {12288-1536}, v{t+3}')
        e.I(f'v_cndmask_b32 v{t+k}, v{t+3}, v{t+k}, vcc')
    e.I('s_mul_i32 s39, s20, 1536')
    e.I(f's_mul_i32 s38, {su}, {2*12288}')
    e.I('s_add_u32 s38, s38, s39')
    for j in range(j0, j1):
        row = 320 + 80 * j if j < 4 else 80 * (j - 4)
        e.I(f's_add_u32 s39, s38, {row*12288}')
        for k in range(3): e.I(f'buffer_load_dwordx4 {vr(t+4)}, v{t+k}, {srdv if j < 4 else srdq}, s39 offen{WFL[opt.wnt]}')

Q_LX, Q_LMEM = 0, 81920
def role_qkv(e):
    fl = ''
    WQ, WK, WV = 0, 80, 160
    MF = 16
    DQ, DK, DV = 96, 100, 104
    PA, PB = 108, 120
    XD = 132
    T0 = 160
    KEEP = 176; TCH = 180
    XA, VA, IDX, SEL, MP = 182, 183, 184, 185, 186
    XRA, XQA, XKA, OQK = 187, 188, 189, 190
    SENT = 248; ONE = 252
    e.I('s_mul_i32 s24, s21, 43')
    e.I('s_lshr_b32 s24, s24, 7')
    e.I('s_mul_i32 s25, s24, 3')
    e.I('s_sub_u32 s25, s21, s25')
    e.I('s_lshl_b32 s26, s20, 2')
    e.I('s_add_u32 s26, s26, s24')
    e.I('s_lshl_b32 s27, s25, 2')
    e.I('s_add_u32 s27, s27, s22')
    srd(e, 8, 60, 640 * 12288); srd(e, 12, 62, 640 * 12288); srd(e, 16, 64, 640 * 12288)
    e.I('s_mul_i32 s28, s26, 384')
    e.I('s_lshl_b32 s29, s25, 7')
    e.I('s_add_u32 s28, s28, s29')
    w_issue, w_consume = load_weights(e, [('s[12:15]', 's28', WK, 640), ('s[16:19]', 's28', WV, 640), ('s[8:11]', 's28', WQ, 640)], 12288, 320, False, 240, 241, 3,
                                      bufoff=[81920, 122880, 40960], manual=True)
    for ci in range(3): w_issue(ci)
    e.I('s_mul_i32 s38, s22, 3072')
    e.I('s_min_u32 s38, s38, 7168')
    e.I('v_add_u32 v3, s38, v2')
    e.I(f'v_add_u32 v5, {Q_LMEM}, v3')
    e.I(f'v_add_u32 v7, {Q_LMEM}, v2')
    lane_ig(e, 14, 15)
    e.I('s_lshr_b32 s38, s27, 1')
    e.I('s_lshl_b32 s38, s38, 10')
    e.I('s_and_b32 s39, s27, 1')
    e.I('s_lshl_b32 s39, s39, 3')
    e.I('s_add_u32 s38, s38, s39')
    e.I('v_add_u32 v8, s38, v2')
    e.I('v_bfe_u32 v11, v1, 2, 2')
    e.I('v_and_b32 v12, 3, v1')
    e.I(f'v_lshlrev_b32 v{XA}, 8, v11')
    e.I(f'v_lshl_add_u32 v{XA}, v15, 6, v{XA}')
    e.I(f'v_lshl_add_u32 v{XA}, v12, 4, v{XA}')
    e.I(f'v_add_u32 v{XA}, s38, v{XA}')
    if opt.eord:
        e.I('s_lshr_b32 s38, s27, 1')
        e.I('s_and_b32 s39, s27, 1')
        e.I('s_lshl_b32 s39, s39, 9')
        e.I('s_lshl_b32 s40, s38, 10')
        e.I('s_add_u32 s40, s40, s39')
        e.I('v_lshrrev_b32 v9, 1, v11')
        e.I('v_lshlrev_b32 v9, 8, v9')
        e.I('v_and_b32 v13, 1, v11')
        e.I('v_lshl_add_u32 v9, v13, 3, v9')
        e.I('v_lshl_add_u32 v9, v12, 4, v9')
        e.I(f'v_lshl_add_u32 v{XA}, v15, 6, v9')
        e.I(f'v_add_u32 v{XA}, s40, v{XA}')
        e.I('v_lshrrev_b32 v13, 1, v15')
        e.I(f'v_lshlrev_b32 v{OQK}, 8, v13')
        e.I(f'v_lshl_add_u32 v{OQK}, v14, 4, v{OQK}')
        e.I(f'v_add_u32 v{OQK}, s40, v{OQK}')
        e.I(f'v_and_b32 v{XQA}, 1, v15')
        e.I(f'v_mul_u32_u24 v{XKA}, {6144 if opt.ox4 else 8}, v{XQA}')
        e.I(f'v_add_u32 v{OQK}, v{OQK}, v{XKA}')
        e.I('s_cmp_ge_u32 s38, 3')
        e.I(f's_cselect_b32 s39, {3072 - 128}, 0')
        e.I('s_sub_u32 s40, s40, s39')
        e.I(f'v_lshl_add_u32 v{XRA}, v{XQA}, 6, v9')
        e.I(f'v_mul_u32_u24 v13, 3072, v13')
        e.I(f'v_add3_u32 v{XRA}, v{XRA}, v13, s40')
        e.I('v_lshrrev_b32 v13, 5, v1')
        e.I(f'v_lshl_or_b32 v{XQA}, v13, 31, v{XRA}')
        e.I('v_xor_b32 v13, 1, v13')
        e.I(f'v_lshl_or_b32 v{XKA}, v13, 31, v{XRA}')
    if opt.inl:
        e.I('v_lshlrev_b32 v13, 4, v12')
        e.I('v_sub_u32 v9, v9, v13')
        e.I('v_and_b32 v13, 1, v12')
        e.I('v_lshl_add_u32 v9, v13, 4, v9')
        e.I('v_lshrrev_b32 v13, 1, v12')
        e.I(f'v_lshl_add_u32 v{XA}, v15, 5, v9')
        e.I(f'v_add_u32 v{XQA}, s40, v{XA}')
        e.I(f'v_lshl_add_u32 v{XA}, v13, 7, v{XA}')
        e.I('s_add_u32 s41, s40, s39')
        e.I(f'v_add_u32 v{XA}, s41, v{XA}')
        e.I('s_cmp_ge_u32 s38, 3')
        e.I('s_cselect_b32 s41, 96, 0')
        e.I('s_sub_u32 s41, s40, s41')
        e.I('s_add_u32 s41, s41, 3072')
        e.I(f'v_lshl_add_u32 v{XKA}, v15, 6, v9')
        e.I(f'v_add_u32 v{XKA}, s41, v{XKA}')
        if opt.own:
            e.I('v_and_b32 v9, 24, v9')
            e.I('s_lshl_b32 s41, s27, 8')
            e.I('v_add_u32 v9, s41, v9')
            e.I(f'v_lshrrev_b32 v{XRA}, 1, v11')
            e.I(f'v_lshl_add_u32 v{XQA}, v15, 5, v9')
            e.I(f'v_lshl_add_u32 v{XQA}, v{XRA}, 7, v{XQA}')
            e.I(f'v_lshl_add_u32 v{XKA}, v15, 6, v9')
            e.I(f'v_lshl_add_u32 v{XKA}, v{XRA}, 5, v{XKA}')
            e.I(f'v_add_u32 v{XKA}, 3072, v{XKA}')
        e.I('v_cmp_eq_u32 vcc, 1, v13')
        e.I(f'v_cndmask_b32 v{XRA}, v{XQA}, v{XKA}, vcc')
    e.I('v_and_b32 v13, 1, v15')
    e.I('v_lshlrev_b32 v13, 2, v13')
    e.I('v_lshrrev_b32 v9, 1, v15')
    e.I('v_lshl_add_u32 v13, v9, 1, v13')
    e.I('v_and_b32 v9, 1, v12')
    e.I('v_add_u32 v13, v13, v9')
    e.I('v_lshrrev_b32 v12, 1, v12')
    e.I('v_lshrrev_b32 v9, 1, v11')
    e.I('v_lshlrev_b32 v9, 8, v9')
    e.I('v_lshl_add_u32 v9, v12, 7, v9')
    e.I('v_lshl_add_u32 v9, v13, 4, v9')
    e.I(f'v_and_b32 v{VA}, 1, v11')
    e.I(f'v_lshl_add_u32 v9, v{VA}, 3, v9')
    e.I('s_lshl_b32 s38, s25, 10')
    e.I('s_lshr_b32 s39, s22, 1')
    e.I('s_lshl_b32 s39, s39, 9')
    e.I('s_add_u32 s38, s38, s39')
    e.I('s_and_b32 s39, s22, 1')
    e.I('s_lshl_b32 s39, s39, 2')
    e.I('s_add_u32 s38, s38, s39')
    e.I('v_add_u32 v9, s38, v9')
    e.I(f'v_lshlrev_b32 v{VA}, 8, v11')
    e.I(f'v_lshl_add_u32 v{VA}, v13, 4, v{VA}')
    e.I(f'v_lshl_add_u32 v{VA}, v12, 2, v{VA}')
    e.I('s_lshr_b32 s38, s27, 1')
    e.I('s_cmp_ge_u32 s38, 3')
    e.I('s_cselect_b32 s39, 3, 0')
    e.I('s_cselect_b32 s40, 128, 0')
    e.I('s_sub_u32 s38, s38, s39')
    e.I('s_lshl_b32 s38, s38, 10')
    e.I('s_add_u32 s38, s38, s40')
    e.I('s_and_b32 s39, s27, 1')
    e.I('s_lshl_b32 s39, s39, 3')
    e.I('s_add_u32 s38, s38, s39')
    e.I(f'v_add_u32 v{VA}, s38, v{VA}')
    if opt.vx2:
        e.I('v_and_b32 v12, 3, v1')
        e.I('v_lshlrev_b32 v13, 6, v15')
        e.I('v_lshl_add_u32 v13, v12, 4, v13')
        e.I('v_lshrrev_b32 v12, 5, v1')
        e.I('v_lshl_or_b32 v13, v12, 31, v13')
        e.I(f'v_lshl_add_u32 v{VA}, v11, 8, v13')
        e.I(f'v_add_u32 v{VA}, s38, v{VA}')
        e.I('v_lshrrev_b32 v9, 1, v11')
        e.I('v_lshl_add_u32 v9, v9, 8, v13')
        e.I('v_and_b32 v12, 1, v11')
        e.I('v_lshl_add_u32 v9, v12, 3, v9')
        e.I('s_lshl_b32 s38, s25, 10')
        e.I('s_lshr_b32 s39, s22, 1')
        e.I('s_lshl_b32 s39, s39, 9')
        e.I('s_add_u32 s38, s38, s39')
        e.I('s_and_b32 s39, s22, 1')
        e.I('s_lshl_b32 s39, s39, 7')
        e.I('s_add_u32 s38, s38, s39')
        e.I('v_add_u32 v9, s38, v9')
    if opt.inl:
        e.I('v_lshlrev_b32 v12, 5, v15')
        e.I(f'v_sub_u32 v{VA}, v{VA}, v12')
        e.I(f'v_and_b32 v{VA}, 0x7fffffff, v{VA}')
        e.I('v_and_b32 v9, 0x7fffffff, v9')
        e.I('s_and_b32 s39, s22, 1')
        e.I('s_mul_i32 s39, s39, 96')
        e.I('v_subrev_u32 v9, s39, v9')
        e.I('v_bfe_u32 v12, v1, 1, 1')
        e.I(f'v_lshl_or_b32 v{VA}, v12, 31, v{VA}')
        e.I('v_lshl_or_b32 v9, v12, 31, v9')
    e.I(f'v_mul_u32_u24 v{MP}, 5, v1')
    e.I(f'v_lshrrev_b32 v{MP}, 3, v{MP}')
    e.I(f'v_lshlrev_b32 v{MP}, 8, v{MP}')
    e.I(f'v_mov_b32 v{IDX}, 0x44444444')
    e.I('v_mov_b32 v11, 0xeeeeeeee')
    if opt.inl:
        e.I('v_and_b32 v12, 2, v1')
        e.I('v_cmp_lt_u32 vcc, 0, v12')
    else: e.I('v_cmp_lt_u32 vcc, 7, v14')
    e.I(f'v_cndmask_b32 v{IDX}, v{IDX}, v11, vcc')
    e.I(f'v_mov_b32 v{SEL}, 0x05040100')
    e.I('v_mov_b32 v11, 0x03020706')
    e.I('v_and_b32 v12, 1, v1')
    e.I('v_cmp_eq_u32 vcc, 1, v12')
    e.I(f'v_cndmask_b32 v{SEL}, v{SEL}, v11, vcc')
    e.I('s_mov_b32 s34, 0x33333333'); e.I('s_mov_b32 s35, 0x33333333')
    e.I('s_mov_b32 s36, 0xcccccccc'); e.I('s_mov_b32 s37, 0xcccccccc')
    for k in range(12): e.I(f'v_mov_b32 v{DQ+k}, 0')
    e.I('s_lshl_b32 s38, s27, 2')
    e.I(f'v_mov_b32 v{ONE+2}, s38')
    e.I(f'v_mov_b32 v{ONE}, 1')
    e.I(f'v_mov_b32 v{ONE+1}, 2')
    for k in range(4): e.I(f'v_mov_b32 v{SENT+k}, -1')
    e.I('s_mul_i32 s58, s26, 6144')
    e.I('s_mul_i32 s59, s20, 10240')
    e.I(f's_add_u32 s59, s59, {MEM}')
    e.I('s_mul_i32 s60, s26, 3072')
    e.I('s_lshl_b32 s61, s20, 6')
    e.I('s_lshl_b32 s38, s24, 2')
    e.I('s_add_u32 s61, s61, s38')
    e.I(f's_add_u32 s61, s61, {FLGOX}')
    e.I('v_mov_b32 v10, 0')

    nrd = [7]
    def late_list():
        vs = [f'buffer_store_dwordx2 {vr(KEEP+2,2)}, v{VA}, {WS}, s44 offen{fl}', f'buffer_store_dwordx2 {vr(SENT,2)}, v9, {WS}, s46 offen{fl}'] if opt.vx2 else \
             [f'buffer_store_dword v{KEEP+2}, v{VA}, {WS}, s44 offen{fl}', f'buffer_store_dword v{SENT}, v9, {WS}, s46 offen{fl}']
        return [f'buffer_store_dwordx2 {vr(KEEP,2)}, v{XA}, {WS}, s43 offen{fl}',
                f'buffer_store_dwordx2 {vr(SENT,2)}, v{XRA if opt.split else XA}, {WS}, s42 offen{fl}'] + vs
    def post2(D, t, keep, rm, st):
        QP1, QP2 = 'quad_perm:[1,0,3,2] row_mask:0xf bank_mask:0xf', f'quad_perm:[2,3,0,1] row_mask:{rm} bank_mask:0xf'
        return [[f'v_permlane32_swap_b32 v{D}, v{D+2}', f'v_permlane32_swap_b32 v{D+1}, v{D+3}'],
                [f'v_add_f32 v{t+2}, v{D}, v{D+2}', f'v_add_f32 v{t+3}, v{D+1}, v{D+3}', f'v_cvt_pk_bf16_f32 v{t}, v{t+2}, v{t+3}', f'v_cvt_pk_bf16_f32 v{t+1}, v{t+2}, v{t+3}'],
                [f'v_permlane32_swap_b32 v{t}, v{t+1}', 's_mov_b64 vcc, s[34:35]'],
                [f'v_mov_b32_dpp v{t+2}, v{t} {QP1}', f'v_mov_b32_dpp v{t+3}, v{t+1} {QP1}', f'v_perm_b32 v{t}, v{t+2}, v{t}, v{SEL}', f'v_perm_b32 v{t+1}, v{t+3}, v{t+1}, v{SEL}'],
                [f'v_cndmask_b32_dpp v{keep}, v{t+1}, v{t}, vcc {QP2}', 's_mov_b64 vcc, s[36:37]', f'v_cndmask_b32_dpp v{keep+1}, v{t}, v{t+1}, vcc {QP2}', st],
                [f'v_mov_b32 v{D+k}, 0' for k in range(4)]]
    def late_stores():
        for x_ in late_list(): e.I(x_)
    def xwork(late, mats=(2, 1, 0), dma=True, spr=()):
        e.I('s_and_b32 s65, s64, 1')
        e.I('s_mul_i32 s66, s65, 40960')
        if opt.x2e and late:
            e.I('s_cmp_eq_u32 s64, 2')
            e.I('s_cselect_b32 s66, 122880, s66')
        e.I('v_add_u32 v12, s66, v2')
        e.I('s_xor_b32 s65, s65, 1')
        e.I('s_mul_i32 s65, s65, 40960')
        e.I('s_add_u32 s65, s65, s62')
        e.I('s_add_u32 s66, s64, 1')
        e.I('s_min_u32 s66, s66, 63')
        e.I('s_mul_i32 s66, s66, 40960')
        e.I('s_add_u32 s66, s66, s62')
        e.I(f's_add_u32 s66, s66, {XN}')
        e.I(f's_and_b32 s47, s64, {RD-1}')
        e.I(f's_mul_i32 s47, s47, {SEG_QX}')
        e.I('s_lshl_b32 s48, s58, 1')
        e.I('s_add_u32 s47, s47, s48')
        if late:
            e.I(f's_max_u32 s50, s64, {RD}')
            e.I(f's_sub_u32 s50, s50, {RD}')
            e.I('s_lshl_b32 s50, s50, 9')
            e.I('s_add_u32 s50, s50, s61')
            e.I(f'buffer_load_dword v{TCH}, v10, {WS}, s50 offen sc1')
        PF = opt.xpf
        def rd(n): e.I(f'ds_read_b128 {vr(MF + (n % 20)*4)}, v12 offset:{n*1024}')
        def out(m, rt, part=3):
            d = XD + (m*2+rt)*4; o = T0 + (m*2+rt)*2
            e.I(f'v_cvt_pk_bf16_f32 v{o}, v{d}, v{d+1}')
            e.I(f'v_cvt_pk_bf16_f32 v{o+1}, v{d+2}, v{d+3}')
            if opt.eord and opt.ox4 and m < 2:
                if rt == 1:
                    e.I(f's_add_u32 s48, s47, {(QX, KX, VX)[m]}')
                    e.I(f'v_permlane16_swap_b32 v{o-2}, v{o}')
                    e.I(f'v_permlane16_swap_b32 v{o-1}, v{o+1}')
                    e.I(f'buffer_store_dwordx4 {vr(o-2)}, v{OQK}, {WS}, s48 offen{fl}')
            else:
                e.I(f's_add_u32 s48, s47, {(QX, KX, VX)[m] + rt*6144}')
                e.I(f'buffer_store_dwordx2 {vr(o,2)}, v{OQK if opt.eord and m < 2 else 8}, {WS}, s48 offen{fl}')
        for n in range(PF): rd(n)
        ls = late_list() if late else []
        d0 = max(opt.xdma0, 6 + len(late_list()))
        for n in range(40):
            rt, kk = n // 20, n % 20
            e.I(f's_waitcnt lgkmcnt({min(40, n + PF) - (n + 1)})')
            f = vr(MF + (n % 20)*4)
            for m in mats:
                Wb = (WQ, WK, WV)[m]
                d = vr(XD + (m*2+rt)*4)
                e.I(f'{MFMA} {d}, {ar(Wb+4*kk)}, {f}, {0 if kk == 0 else d}')
            if n + PF < 40: rd(n + PF)
            spr = list(spr)
            if spr and (n % 2 == 0 or len(spr) > (40 - n) // 2):
                for x_ in spr.pop(0): e.I(x_)
            if late and n == 5:
                bp = e.lab('Lbp')
                e.I(f's_cmp_lt_u32 s64, {RD}')
                e.I(f's_cbranch_scc1 {bp}')
                e.I('s_waitcnt vmcnt(0)')
                e.I(f'v_cmp_eq_u32 vcc, 0, v{TCH}')
                e.I(f's_cbranch_vccz {bp}')
                wait_flags(e, 10, 's50', 1, TCH, 13, sleep=1)
                e.L(bp)
            if n >= 6 and ls: e.I(ls.pop(0))
            elif dma and n >= d0 and (n - d0) % opt.xdmas == 0 and (n - d0) // opt.xdmas < 10:
                m = (n - d0) // opt.xdmas
                e.I(f's_add_u32 m0, s65, {m*1024}')
                e.I(f'buffer_load_dwordx4 v2, {WS}, s66 offen lds')
                e.I('s_add_u32 s66, s66, 1024')
            k0 = 23 if len(mats) > 1 else 28
            if k0 <= n < k0 + len(mats): out(mats[n - k0], 0)
        for m in mats: out(m, 1)
    def flag_addr(back):
        e.I(f's_sub_u32 s51, s64, {back}')
        e.I('s_lshl_b32 s51, s51, 5')
        e.I('s_add_u32 s51, s51, s26')
        e.I('s_lshl_b32 s51, s51, 6')
        e.I(f's_add_u32 s51, s51, {FLGQ}')
    def flag_n():
        flag_addr(0)
        e.I('s_waitcnt vmcnt(0)')
        set_flag(e, ONE + 2, 's51', ONE, fl)
    def mem_part():
        e.I('s_and_b32 s38, s30, 3')
        e.I('s_xor_b32 s39, s38, 2')
        e.I(f's_mul_i32 s40, s38, {MEM_SLOT}')
        e.I('s_add_u32 s40, s40, s59')
        e.I(f's_mul_i32 s41, s38, {XR_SLOT}')
        e.I('s_add_u32 s41, s41, s58')
        e.I(f's_add_u32 s41, s41, {XR}')
        e.I(f's_mul_i32 s42, s39, {XR_SLOT}')
        e.I('s_add_u32 s42, s42, s58')
        e.I(f's_add_u32 s42, s42, {XR}')
        e.I(f's_and_b32 s44, s30, {RD-1}')
        e.I(f's_mul_i32 s43, s44, {SEG_XP}')
        e.I('s_add_u32 s43, s43, s58')
        e.I(f's_add_u32 s43, s43, {XP}')
        e.I(f's_mul_i32 s44, s44, {SEG_VM}')
        e.I('s_add_u32 s44, s44, s60')
        e.I(f's_add_u32 s44, s44, {VM}')
        e.I(f's_mul_i32 s45, s38, {VR_SLOT}')
        e.I('s_add_u32 s45, s45, s60')
        e.I(f's_add_u32 s45, s45, {VR}')
        e.I(f's_mul_i32 s46, s39, {VR_SLOT}')
        e.I('s_add_u32 s46, s46, s60')
        e.I(f's_add_u32 s46, s46, {VR}')
        def issue(b):
            for k in range(3): e.I(f'buffer_load_dwordx4 {vr(b+4*k)}, v3, {WS}, s40 offen offset:{k*1024} sc1')
        def early(b):
            for k in range(3): e.I(f'ds_write_b128 v5, {vr(b+4*k)} offset:{k*1024}')
        flag_addr(1)
        wl = [e.lab('Lmw') for _ in range(4)]; jn = e.lab('Lmj')
        for w in range(1, 4):
            e.I(f's_cmp_eq_u32 s22, {w}')
            e.I(f's_cbranch_scc1 {wl[w]}')
        def sm(d, W, src, m): e.I(f'{SMF} {vr(d)}, {vr(src)}, {ar(W+8*m,8)}, v{IDX}')
        for w in range(4):
            e.L(wl[w])
            own = [min(3*w, 7) + k for k in range(3)]
            rest = [m for m in range(10) if m not in own]
            def consume(b):
                TS(e, 1)
                if not opt.spec: early(b)
                mine = [(d, W, b + 4*k, m) for k, m in enumerate(own) for d, W in ((DQ, WQ), (DK, WK))] + [(DV, WV, b + 4*k, m) for k, m in enumerate(own)]
                if opt.split == 1: mine = [(d, W, b + 4*k, m) for d, W in ((DQ, WQ), (DK, WK), (DV, WV))[:2 + opt.vown] for k, m in enumerate(own)]
                elif not opt.vown: mine = mine[:6]
                if opt.split == 1 and opt.fq == -3: e.I(FLAG())
                for x_ in mine[:opt.mpre]: sm(*x_)
                e.I('s_waitcnt lgkmcnt(0)')
                e.I('s_barrier')
                if opt.split == 1 and opt.fq == -2: e.I(FLAG())
                rl = [f'ds_read_b128 {vr(MF+4*k)}, v7 offset:{m*1024}' for k, m in enumerate(rds)]
                for x_ in rl[:opt.rdmix or 10]: e.I(x_)
                rl = rl[opt.rdmix or 10:]
                if opt.split == 1 and opt.fq == -1: e.I(FLAG())
                for n_, x_ in enumerate(mine[opt.mpre:]):
                    sm(*x_)
                    if rl: e.I(rl.pop(0))
                    if opt.split == 1 and opt.fq == 100 + n_: e.I(FLAG())
                for x_ in rl: e.I(x_)
            rds = rest + (own if not opt.vown else [])
            nrd[0] = len(rds)
            FLAG = lambda: f'buffer_store_dword v{ONE+opt.two}, v{ONE+2}, {WS}, s51 offen{fl}'
            if opt.mwait: e.I(f's_sleep {opt.mwait}')
            poll2(e, issue, 3, PA, PB, consume, T0, T0 + 1, 1, early if opt.spec else None)
            if opt.split == 1:
                seq = [(DQ, WQ, MF + 4*k, m) for k, m in enumerate(rest)] + [(DK, WK, MF + 4*k, m) for k, m in enumerate(rest)] + [(DV, WV, MF + 4*k, m) for k, m in enumerate(rds)]
                ins = {}
                for j_, g_ in enumerate(post2(DQ, T0 + 4, KEEP, '0x3', f'buffer_store_dwordx2 {vr(KEEP,2)}, v{XQA}, {WS}, s41 offen{fl}')): ins.setdefault(7 + j_, []).extend(g_)
                for j_, g_ in enumerate(post2(DK, T0 + 8, KEEP, '0xc', f'buffer_store_dwordx2 {vr(KEEP,2)}, v{XKA}, {WS}, s41 offen{fl}')): ins.setdefault(14 + (0, 1, 1, 2, 3, 4)[j_] if opt.ktight else 14 + j_, []).extend(g_)
                for n_, x_ in enumerate(seq):
                    if n_ < 7: e.I(f's_waitcnt lgkmcnt({len(rds) - 1 - n_})')
                    if n_ == 21: e.I('s_waitcnt lgkmcnt(0)')
                    sm(*x_)
                    if n_ == opt.fq: e.I(FLAG())
                    for y_ in ins.get(n_, []):
                        e.I(y_)
                        if f'v{XKA},' in y_: TS(e, 2)
                vpost()
            else:
                e.I('s_mov_b64 vcc, s[34:35]')
                for k, m in enumerate(rest):
                    e.I(f's_waitcnt lgkmcnt({len(rds)-1-k})')
                    sm(DQ, WQ, MF + 4*k, m)
                    if opt.fpos == k: e.I(FLAG())
                    if not opt.qlead or k < 5: sm(DK, WK, MF + 4*k, m)
                if opt.qlead:
                    for k in (5, 6):
                        sm(DK, WK, MF + 4*k, rest[k])
                        if opt.fpos == k + 2: e.I(FLAG())
                post(lambda k: sm(DV, WV, MF + 4*k, rds[k]))
            if w < 3: e.I(f's_branch {jn}')
        e.L(jn)
        e.I('v_xor_b32 v5, 0xc000, v5')
        e.I('v_xor_b32 v7, 0xc000, v7')
        TS(e, 3)
    def post(vm):
        if opt.inl:
            QP1, QP2 = 'quad_perm:[1,0,3,2] row_mask:0xf bank_mask:0xf', 'quad_perm:[2,3,0,1] row_mask:0xf bank_mask:0xf'
            FLAG = f'buffer_store_dword v{ONE+opt.two}, v{ONE+2}, {WS}, s51 offen{fl}'
            todo = list(range(nrd[0]))
            def vm1():
                if todo:
                    if todo[0] == 7: e.I('s_waitcnt lgkmcnt(0)')
                    vm(todo.pop(0))
            if opt.qlead:
                for r in range(2): e.I(f'v_add_f32 v{DQ+r}, v{DQ+r}, v{DQ+2+r}')
                e.I(f'v_cvt_pk_bf16_f32 v{T0}, v{DQ}, v{DQ+1}')
                if opt.fpos >= 9: e.I(FLAG)
                e.I(f'v_mov_b32 v{DQ+2}, 0')
                e.I(f'v_mov_b32_dpp v{T0+2}, v{T0} {QP1}')
                e.I(f'v_perm_b32 v{T0}, v{T0+2}, v{T0}, v{SEL}')
                for r in range(2): e.I(f'v_add_f32 v{DK+r}, v{DK+r}, v{DK+2+r}')
                e.I(f'v_cvt_pk_bf16_f32 v{T0+1}, v{DK}, v{DK+1}')
                if opt.vin & 1: vm1()
                e.I(f'v_mov_b32_dpp v{T0+3}, v{T0+1} {QP1}')
                e.I(f'v_perm_b32 v{T0+1}, v{T0+3}, v{T0+1}, v{SEL}')
            else:
                if opt.fpos == 8: e.I(FLAG)
                for m in range(opt.vpre): vm1()
                if opt.fpos == 9: e.I(FLAG)
                for D in (DQ, DK):
                    for r in range(2): e.I(f'v_add_f32 v{D+r}, v{D+r}, v{D+2+r}')
                if opt.fpos == 10: e.I(FLAG)
                e.I(f'v_cvt_pk_bf16_f32 v{T0}, v{DQ}, v{DQ+1}')
                e.I(f'v_cvt_pk_bf16_f32 v{T0+1}, v{DK}, v{DK+1}')
                if opt.vin & 1: vm1()
                if opt.fpos == 11: e.I(FLAG)
                e.I(f'v_mov_b32_dpp v{T0+2}, v{T0} {QP1}')
                e.I(f'v_mov_b32_dpp v{T0+3}, v{T0+1} {QP1}')
                e.I(f'v_perm_b32 v{T0}, v{T0+2}, v{T0}, v{SEL}')
                e.I(f'v_perm_b32 v{T0+1}, v{T0+3}, v{T0+1}, v{SEL}')
            if opt.vin & 2: vm1()
            if opt.fpos == 12 and not opt.qlead: e.I(FLAG)
            e.I(f'v_cndmask_b32_dpp v{KEEP}, v{T0+1}, v{T0}, vcc {QP2}')
            e.I('s_mov_b64 vcc, s[36:37]')
            e.I(f'v_cndmask_b32_dpp v{KEEP+1}, v{T0}, v{T0+1}, vcc {QP2}')
            e.I(f'buffer_store_dwordx2 {vr(KEEP,2)}, v{XRA}, {WS}, s41 offen{fl}')
            TS(e, 2)
            z = [f'v_mov_b32 v{DQ+k}, 0' for k in range(8)]
            while todo:
                vm1()
                if len(z) > 7 - opt.zin and todo: e.I(z.pop(0))
            for x_ in z: e.I(x_)
            e.I(f'v_add_f32 v{DV}, v{DV}, v{DV+2}')
            e.I(f'v_add_f32 v{DV+1}, v{DV+1}, v{DV+3}')
            e.I(f'v_cvt_pk_bf16_f32 v{T0}, v{DV}, v{DV+1}')
            e.I(f'v_mov_b32 v{DV+2}, 0'); e.I(f'v_mov_b32 v{DV+3}, 0')
            e.I(f'v_mov_b32_dpp v{T0+2}, v{T0} {QP1}')
            e.I(f'v_perm_b32 v{KEEP+2}, v{T0+2}, v{T0}, v{SEL}')
            e.I(f'v_mov_b32 v{DV}, 0'); e.I(f'v_mov_b32 v{DV+1}, 0')
            e.I(f'v_mov_b32_dpp v{KEEP+3}, v{KEEP+2} {QP2}')
            e.I(f'buffer_store_dwordx2 {vr(KEEP+2,2)}, v9, {WS}, s45 offen{fl}')
            return
        if opt.vgap:
            QP1, QP2 = 'quad_perm:[1,0,3,2] row_mask:0xf bank_mask:0xf', 'quad_perm:[2,3,0,1] row_mask:0xf bank_mask:0xf'
            L = [f'v_permlane32_swap_b32 v{DQ+r}, v{DK+r}' for r in range(4)] + [f'v_add_f32 v{DQ+r}, v{DQ+r}, v{DK+r}' for r in range(4)]
            L += [f'v_cvt_pk_bf16_f32 v{T0}, v{DQ}, v{DQ+1}', f'v_cvt_pk_bf16_f32 v{T0+1}, v{DQ+2}, v{DQ+3}', '*',
                  f'v_mov_b32_dpp v{T0+2}, v{T0} {QP1}', f'v_mov_b32_dpp v{T0+3}, v{T0+1} {QP1}', f'v_perm_b32 v{T0}, v{T0+2}, v{T0}, v{SEL}', f'v_perm_b32 v{T0+1}, v{T0+3}, v{T0+1}, v{SEL}', '*',
                  f'v_cndmask_b32_dpp v{KEEP}, v{T0+1}, v{T0}, vcc {QP2}', 's_mov_b64 vcc, s[36:37]', f'v_cndmask_b32_dpp v{KEEP+1}, v{T0}, v{T0+1}, vcc {QP2}',
                  f'buffer_store_dwordx2 {vr(KEEP,2)}, v{XRA if opt.split else XA}, {WS}, s41 offen{fl}']
            m = 0
            for m in range(opt.vpre): vm(m)
            m = opt.vpre; c = 0
            for n_, x_ in enumerate(L):
                if n_ == opt.fv: e.I(f'buffer_store_dword v{ONE+opt.two}, v{ONE+2}, {WS}, s51 offen{fl}'); c += 1
                if x_ == '*':
                    if m < 7 and c >= 2: vm(m); m += 1; c = 0
                    continue
                e.I(x_); c += 1
                if c >= opt.vgap and m < 7 and n_ < 16 and L[n_ + 1] != '*': vm(m); m += 1; c = 0
            TS(e, 2)
            while m < 7: vm(m); m += 1
            for k in range(8): e.I(f'v_mov_b32 v{DQ+k}, 0')
            vpost()
            return
        QP1, QP2 = 'quad_perm:[1,0,3,2] row_mask:0xf bank_mask:0xf', 'quad_perm:[2,3,0,1] row_mask:0xf bank_mask:0xf'
        nv = opt.vpre
        for m in range(nv): vm(m)
        if opt.fpos == 10: e.I(f'buffer_store_dword v{ONE+opt.two}, v{ONE+2}, {WS}, s51 offen{fl}')
        for r in range(4): e.I(f'v_permlane32_swap_b32 v{DQ+r}, v{DK+r}')
        for r in range(4): e.I(f'v_add_f32 v{DQ+r}, v{DQ+r}, v{DK+r}')
        e.I(f'v_cvt_pk_bf16_f32 v{T0}, v{DQ}, v{DQ+1}')
        e.I(f'v_cvt_pk_bf16_f32 v{T0+1}, v{DQ+2}, v{DQ+3}')
        vm(nv)
        if opt.fpos == 11: e.I(f'buffer_store_dword v{ONE+opt.two}, v{ONE+2}, {WS}, s51 offen{fl}')
        e.I(f'v_mov_b32_dpp v{T0+2}, v{T0} {QP1}')
        e.I(f'v_mov_b32_dpp v{T0+3}, v{T0+1} {QP1}')
        e.I(f'v_perm_b32 v{T0}, v{T0+2}, v{T0}, v{SEL}')
        e.I(f'v_perm_b32 v{T0+1}, v{T0+3}, v{T0+1}, v{SEL}')
        vm(nv + 1)
        if opt.fpos == 12: e.I(f'buffer_store_dword v{ONE+opt.two}, v{ONE+2}, {WS}, s51 offen{fl}')
        e.I(f'v_cndmask_b32_dpp v{KEEP}, v{T0+1}, v{T0}, vcc {QP2}')
        e.I('s_mov_b64 vcc, s[36:37]')
        e.I(f'v_cndmask_b32_dpp v{KEEP+1}, v{T0}, v{T0+1}, vcc {QP2}')
        e.I(f'buffer_store_dwordx2 {vr(KEEP,2)}, v{XRA if opt.split else XA}, {WS}, s41 offen{fl}')
        TS(e, 2)
        for m in range(nv + 2, 7): vm(m)
        for k in range(8): e.I(f'v_mov_b32 v{DQ+k}, 0')
        vpost()
    def vpost():
        if opt.vx2:
            for g_ in post2(DV, T0 + 4, KEEP + 2, '0xf', f'buffer_store_dwordx2 {vr(KEEP+2,2)}, v9, {WS}, s45 offen{fl}'):
                for y_ in g_: e.I(y_)
            return
        QP1 = 'quad_perm:[1,0,3,2] row_mask:0xf bank_mask:0xf'
        e.I(f'v_permlane32_swap_b32 v{DV}, v{DV+2}')
        e.I(f'v_permlane32_swap_b32 v{DV+1}, v{DV+3}')
        e.I(f'v_add_f32 v{DV}, v{DV}, v{DV+2}')
        e.I(f'v_add_f32 v{DV+1}, v{DV+1}, v{DV+3}')
        e.I(f'v_cvt_pk_bf16_f32 v{T0}, v{DV}, v{DV+1}')
        e.I(f'v_mov_b32_dpp v{T0+2}, v{T0} {QP1}')
        e.I(f'v_perm_b32 v{KEEP+2}, v{T0+2}, v{T0}, v{SEL}')
        e.I(f'buffer_store_dword v{KEEP+2}, v9, {WS}, s45 offen{fl}')
        for k in range(4): e.I(f'v_mov_b32 v{DV+k}, 0')
    e.I('s_mul_i32 s62, s22, 10240')
    def xdma(seg, buf):
        e.I(f's_add_u32 s63, s62, {XN + seg*40960}')
        for m in range(10):
            e.I(f's_add_u32 m0, s62, {Q_LX + buf*40960 + m*1024}')
            e.I(f'buffer_load_dwordx4 v2, {WS}, s63 offen lds')
            e.I('s_add_u32 s63, s63, 1024')
    w_consume(0, 0, 20); w_issue(3, 0)
    w_consume(1, 1, 20); w_issue(4, 1)
    w_consume(2, 2, 20)
    xe = 0
    if opt.x0e:
        xe = 10
        e.I('s_mov_b32 s38, 0')
        for hf in range(4):
            e.I(f's_load_dwordx8 s[40:47], s[74:75], {D_REG + 32*hf} glc')
            e.I('s_waitcnt lgkmcnt(0)')
            for k in range(0, 8, 4):
                e.I(f's_add_u32 s39, s{40+k}, s{41+k}'); e.I(f's_add_u32 s48, s{42+k}, s{43+k}'); e.I('s_add_u32 s39, s39, s48')
                e.I('s_lshr_b32 s48, s39, 8'); e.I('s_and_b32 s39, s39, 0xff00ff'); e.I('s_and_b32 s48, s48, 0xff00ff')
                e.I('s_add_u32 s38, s38, s39'); e.I('s_add_u32 s38, s38, s48')
        e.I('s_lshr_b32 s39, s38, 16'); e.I('s_and_b32 s38, s38, 0xffff'); e.I('s_add_u32 s38, s38, s39')
        e.I('s_cmp_eq_u32 s38, 256')
        e.I('s_cselect_b64 s[66:67], -1, 0')
        e.I('s_mov_b64 exec, s[66:67]')
        xdma(0, 0)
        e.I('s_mov_b64 exec, -1')
    w_consume(3, 0, 10 + xe)
    n0_ = len(e.lines)
    w_issue(5, 0)
    xdma(1, 1)
    sprk = []
    if True:
        cur = []
        for l_ in e.lines[n0_:]:
            cur.append(l_.strip())
            if 'buffer_load' in l_: sprk.append(cur); cur = []
        del e.lines[n0_:]
    if not opt.spr: sprk = []
    for g_ in sprk[:opt.spre]:
        for x_ in g_: e.I(x_)
    sprk = sprk[opt.spre:]
    w_consume(4, 1, xe + opt.spre)
    TS(e, 0)
    wait_reg(e, T0)
    TS(e, 1)
    TSflush(e, '69')
    if opt.x0e: e.I('s_not_b64 exec, s[66:67]')
    xdma(0, 0)
    if opt.x0e: e.I('s_mov_b64 exec, -1')
    if not opt.spr: w_issue(5, 0); xdma(1, 1)
    if opt.x2e == 1: xdma(2, 3)
    e.I('s_cmp_lg_u32 s23, 0')
    e.I('s_cbranch_scc1 L_qkvs')
    for slow in (False, True):
        fl = ' sc1' if slow else ''
        if slow: e.L('L_qkvs')
        pro, top, nox, nxt_, q0, q0r, qq, q1 = [e.lab(x_) for x_ in ('Lqp', 'Lqt', 'Lqn', 'Lqx', 'Lq0', 'Lqr', 'Lqq', 'Lq1')]
        e.I('s_mov_b32 s30, 0')
        e.I('s_mov_b32 s64, 0')
        TS(e, 0)
        for g_ in sprk[:opt.spr0]:
            for x_ in g_: e.I(x_)
        e.I(f's_waitcnt vmcnt({opt.spr0 if opt.spr else 30 if opt.x2e == 1 else 20})')
        TS(e, 1)
        e.I('s_barrier')
        xwork(False, (2, 1), False, sprk[opt.spr0:])
        e.I('s_mov_b32 s64, 1')
        TS(e, 2)
        flag_addr(1)
        e.I('s_waitcnt vmcnt(0)')
        TS(e, 3)
        set_flag(e, ONE + 2, 's51', ONE, fl)
        w_consume(5, 0, 1)
        if opt.urg: wait_count(e, T0, D_W, 80, 4)
        TS(e, 4)
        TSflush(e, '68')
        if opt.x2e == 2: xdma(2, 3)
        xwork(False, (2, 1, 0), False)
        e.I('s_mov_b32 s64, 2')
        e.I(f's_branch {top}')
        e.L(q0)
        e.I('s_mov_b32 s64, 0')
        xwork(False, (0,), False)
        if not opt.x2e:
            e.I('s_barrier')
            xdma(2, 0)
        e.I('s_mov_b32 s64, 2')
        if not opt.x2e:
            e.I('s_waitcnt vmcnt(0)')
            e.I('s_barrier')
        e.I(f's_branch {q0r}')
        e.L(top)
        TS(e, 0)
        mem_part()
        e.I('s_cmp_eq_u32 s30, 0')
        e.I(f's_cbranch_scc1 {q0}')
        e.L(q0r)
        e.I('s_cmp_ge_u32 s64, 64')
        e.I(f's_cbranch_scc1 {nox}')
        xwork(True)
        if opt.f63:
            e.I('s_cmp_lg_u32 s64, 63')
            e.I(f's_cbranch_scc1 {nxt_}')
            flag_n()
        e.I(f's_branch {nxt_}')
        e.L(nox)
        for x_ in late_list()[0::2]: e.I(x_)
        flag_n()
        e.L(nxt_)
        TS(e, 4)
        e.I('s_add_u32 s64, s64, 1')
        TS(e, 5)
        TSflush(e, 's30')
        e.I('s_add_u32 s30, s30, 1')
        e.I('s_cmp_lt_u32 s30, 64')
        e.I(f's_cbranch_scc1 {top}')
        if opt.qc:
            e.I('s_lshl_b32 s30, s21, 3')
            e.I('s_add_u32 s30, s30, s20')
            e.I(f's_add_u32 s30, s30, {opt.qc}')
            e.I('s_mov_b32 s33, 0')
            e.I('s_cmp_lt_u32 s30, 1280')
            e.I('s_cselect_b32 s38, s22, 1')
            e.I('s_cmp_eq_u32 s38, 0')
            e.I('s_cbranch_scc1 L_cmb2')
        e.I('s_endpgm')

S_RED = 98304
def role_sw(e):
    fl = ''
    XF, KXF, VXF, VMF = 16, 40, 88, 136
    S, PB, PM = 148, 160, 164
    DW, DM, VWX, VWM = 168, 184, 200, 216
    OUT = DW
    PA = XF
    CI = 224
    T0 = 228; IDX = 246; SENT = 248; ONE = 252
    AONE, AHALF = 96, 100
    W2 = 104 if opt.vx2 else 0
    PAD = 240
    e.I('s_sub_u32 s24, s21, 12')
    e.I('s_lshl_b32 s25, s24, 2')
    e.I('s_add_u32 s25, s25, s22')
    e.I('s_lshl_b32 s26, s20, 2')
    e.I('s_add_u32 s26, s26, s22')
    srd(e, 8, 66, 6144 * 1280)
    def wo_load():
        e.I(f's_mul_i32 s28, s26, {192*1280}')
        e.I('s_lshl_b32 s29, s24, 7')
        e.I('s_add_u32 s28, s28, s29')
        e.I('v_lshrrev_b32 v17, 3, v1')
        e.I('v_bfe_u32 v18, v1, 4, 2')
        e.I('v_lshlrev_b32 v18, 1, v18')
        e.I('v_and_b32 v19, 7, v1')
        e.I('v_xor_b32 v19, v19, v18')
        e.I('v_mul_u32_u24 v16, 1280, v17')
        e.I('v_lshl_add_u32 v16, v19, 4, v16')
        e.I('s_mul_i32 s46, s22, 24576')
        for n in range(24):
            e.I(f's_add_u32 m0, s46, {n*1024}')
            e.I(f'buffer_load_dwordx4 v16, s[8:11], s28 offen{WFL[opt.wnt]} lds')
            if n < 23: e.I(f's_add_u32 s28, s28, {8*1280}')
        extra = 0
        if opt.pfs == 2: sw_pf(); extra = 3 * (12 - opt.pfh)
        e.I('v_lshrrev_b32 v17, 2, v1')
        e.I('v_bfe_u32 v18, v17, 1, 2')
        e.I('v_lshlrev_b32 v17, 7, v17')
        e.I('v_and_b32 v19, 3, v1')
        e.I('v_lshl_add_u32 v17, v19, 3, v17')
        e.I('v_add_u32 v17, s46, v17')
        for ct in range(4):
            e.I(f'v_xor_b32 v19, {ct}, v18')
            e.I(f'v_lshl_add_u32 v{20+ct}, v19, 5, v17')
        for kk in range(6):
            e.I(f's_waitcnt vmcnt({20 - 4*kk + extra})')
            for ct in range(4):
                e.I(f'ds_read_b64_tr_b16 {ar((ct*6+kk)*4,2)}, v{20+ct} offset:{kk*4096}')
                e.I(f'ds_read_b64_tr_b16 {ar((ct*6+kk)*4+2,2)}, v{20+ct} offset:{kk*4096+2048}')
        e.I('s_waitcnt lgkmcnt(0)')
        if opt.vx2:
            for f_ in range(24):
                for k, k2 in enumerate((0, 2, 1, 3)): e.I(f'v_accvgpr_mov_b32 a{W2 + 4*f_ + k}, a{4*f_ + k2}')
    nocal = e.lab('Lnc')
    e.I('s_cmp_lg_u32 s25, 8')
    e.I(f's_cbranch_scc1 {nocal}')
    e.I('s_lshl_b32 s38, s20, 7')
    e.I(f's_add_u32 s38, s38, {CAL}')
    e.I('s_add_u32 s39, s38, 8192')
    e.I('s_mov_b32 s40, -1'); e.I('s_mov_b32 s41, -1'); e.I('s_mov_b32 s42, 4')
    e.I('v_mov_b32 v10, 0')
    e.I('s_mov_b64 exec, 1')
    cal = e.lab('Lcal')
    e.L(cal)
    for so, acc in (('s38', 's40'), ('s39', 's41')):
        e.I(f'buffer_store_dword v10, v10, {WS}, {so} offen sc1')
        e.I('s_waitcnt vmcnt(0)')
        e.I('s_memtime s[44:45]')
        e.I('s_waitcnt lgkmcnt(0)')
        e.I(f'buffer_load_dword v11, v10, {WS}, {so} offen sc1')
        e.I('s_waitcnt vmcnt(0)')
        e.I('s_memtime s[46:47]')
        e.I('s_waitcnt lgkmcnt(0)')
        e.I('s_sub_u32 s46, s46, s44')
        e.I(f's_min_u32 {acc}, {acc}, s46')
    e.I('s_sub_u32 s42, s42, 1')
    e.I('s_cmp_lg_u32 s42, 0')
    e.I(f's_cbranch_scc1 {cal}')
    e.I('s_cmp_lt_u32 s41, s40')
    if opt.pflip: e.I('s_cmp_ge_u32 s41, s40')
    e.I('s_cselect_b32 s38, 2, 1')
    e.I('v_mov_b32 v11, s38')
    e.I('s_lshl_b32 s38, s20, 2')
    e.I('v_mov_b32 v10, s38')
    e.I(f'global_store_dword v10, v11, s[74:75] offset:{D_PAR} sc1')
    e.I('s_mov_b64 exec, -1')
    e.L(nocal)
    def sw_pf():
        srd(e, 12, 64, 640 * 12288); srd(e, 16, 60, 640 * 12288)
        prefetch_w(e, 's25', opt.pfh, 12, 32, 's[12:15]', 's[16:19]')
    if opt.pfs == 1: sw_pf()
    def early_touch():
        jobs = []
        for sl in range(2): jobs += [(b_ + sl * SEG_QX, 12288, 96) for b_ in (KX, VX)]
        for sl in range(2): jobs += [(QX + sl * SEG_QX, 12288, 96), (XP + sl * SEG_XP, 6144, 48), (VM + sl * SEG_VM, 3072, 24)]
        touch_jobs(e, jobs, 's24', 10, 's26', 24)
    if opt.tord == 0: early_touch()
    if not opt.swlate: wo_load()
    if opt.tord == 1: early_touch()
    e.I(f's_mov_b32 s52, {SC_L2E:#x}'); e.I(f's_mov_b32 s53, {SC_L2E | 0x80000000:#x}')
    lane_ig(e, 14, 15)
    e.I('v_and_b32 v13, 7, v14')
    e.I('v_lshlrev_b32 v13, 4, v13')
    e.I('v_lshl_add_u32 v13, v15, 7, v13')
    e.I('v_bfe_u32 v5, v1, 3, 1')
    e.I('s_lshl_b32 s38, s22, 9')
    e.I(f's_add_u32 s38, s38, {S_RED}')
    e.I('v_add_u32 v6, s38, v13')
    e.I('v_lshl_add_u32 v6, v5, 14, v6')
    e.I('s_lshl_b32 s38, s22, 11')
    e.I(f's_add_u32 s38, s38, {S_RED}')
    e.I('v_add_u32 v7, s38, v13')
    e.I('v_lshl_add_u32 v7, v5, 10, v7')
    if opt.remap:
        e.I('v_bfe_u32 v8, v1, 1, 2')
        e.I('v_add_u32 v8, v8, v15')
        e.I('v_and_b32 v8, 3, v8')
        e.I('v_and_b32 v9, 7, v1')
        e.I('v_lshlrev_b32 v9, 6, v9')
        e.I('v_lshl_add_u32 v9, v8, 4, v9')
        e.I('v_sub_u32 v9, v9, v13')
        e.I('v_add_u32 v6, v6, v9')
    if opt.remap == 1:
        e.I('v_add_u32 v8, v1, v15')
        e.I('v_and_b32 v8, 3, v8')
        e.I('v_bfe_u32 v9, v1, 2, 1')
        e.I('v_lshl_add_u32 v9, v15, 1, v9')
        e.I('v_lshlrev_b32 v9, 6, v9')
        e.I('v_lshl_add_u32 v9, v8, 4, v9')
        e.I('v_sub_u32 v9, v9, v13')
        e.I('v_add_u32 v7, v7, v9')
    if opt.remap == 2:
        e.I('v_lshrrev_b32 v5, 5, v1')
        e.I('v_bfe_u32 v8, v1, 3, 2')
        e.I('v_add_u32 v8, v8, v1')
        e.I('v_and_b32 v8, 3, v8')
        e.I('v_bfe_u32 v9, v1, 2, 3')
        e.I('v_lshlrev_b32 v9, 6, v9')
        e.I('v_lshl_add_u32 v9, v8, 4, v9')
        e.I('v_add_u32 v7, s38, v9')
        e.I('v_lshl_add_u32 v7, v5, 10, v7')
        e.I('v_and_b32 v13, 31, v1')
        e.I('v_lshlrev_b32 v13, 4, v13')
    if opt.pbf: e.I('v_lshrrev_b32 v13, 1, v13')
    e.I('v_lshl_add_u32 v13, v5, 13, v13')
    e.I('v_and_b32 v4, 0x1fff, v13')
    e.I('v_lshlrev_b32 v9, 2, v5')
    e.I('v_xor_b32 v9, s20, v9')
    for m in range(4):
        e.I(f'v_xor_b32 v8, {m}, v9')
        e.I(f'v_lshl_add_u32 v{PAD+m}, v8, 9, v4')
    e.I('v_and_b32 v9, 7, v1')
    e.I('v_lshlrev_b32 v8, 4, v9')
    e.I('v_lshl_add_u32 v8, v5, 7, v8')
    e.I('v_lshl_add_u32 v8, v15, 2, v8')
    if opt.remap == 2: e.I('v_lshlrev_b32 v8, 2, v1')
    if opt.remap == 1:
        e.I('v_bfe_u32 v9, v1, 2, 1')
        e.I('v_lshl_add_u32 v9, v15, 1, v9')
        e.I('v_lshlrev_b32 v8, 4, v9')
        e.I('v_lshl_add_u32 v8, v5, 7, v8')
        e.I('v_and_b32 v9, 3, v1')
        e.I('v_lshl_add_u32 v8, v9, 2, v8')
        if opt.inl:
            e.I('v_bfe_u32 v8, v1, 2, 1')
            e.I('v_lshl_add_u32 v8, v5, 1, v8')
            e.I('v_lshl_add_u32 v8, v15, 2, v8')
            e.I('v_lshlrev_b32 v8, 4, v8')
            e.I('v_lshl_add_u32 v8, v9, 2, v8')
    e.I('s_lshl_b32 s38, s25, 8')
    e.I('v_add_u32 v8, s38, v8')
    e.I('v_lshrrev_b32 v9, 1, v1')
    if opt.split:
        e.I('v_cmp_lt_u32 vcc, 2, v9')
        e.I('v_lshlrev_b32 v9, 10, v9')
        e.I(f'v_add_u32 v10, {128 - 3072}, v9')
        e.I('v_cndmask_b32 v9, v9, v10, vcc')
    else:
        e.I('v_lshlrev_b32 v9, 10, v9')
    e.I('v_and_b32 v10, 1, v1')
    e.I(f'v_lshl_add_u32 v9, v10, {9 if opt.eord else 3}, v9')
    if opt.own:
        e.I('v_lshlrev_b32 v9, 8, v1')
        e.I('v_lshlrev_b32 v167, 4, v14')
        e.I('v_lshl_add_u32 v167, v15, 9, v167')
    e.I(f'v_lshlrev_b32 v{ONE+1}, 2, v1')
    for k in range(4): e.I(f'v_mov_b32 v{SENT+k}, -1')
    e.I('s_mov_b32 s68, 0xff00ff00'); e.I('s_mov_b32 s69, 0xff00ff00')
    e.I('s_mov_b32 s70, 0x3f80'); e.I('s_mov_b32 s71, 0x3f800000')
    e.I(f'v_mov_b32 v{CI}, {NEG_BIG:#x}')
    e.I('s_mov_b32 vcc_lo, 0')
    e.I('s_mov_b32 vcc_hi, 0x00ff00ff')
    e.I(f'v_cndmask_b32 v{CI}, v{CI}, 0, vcc')
    for k in range(1, 4): e.I(f'v_mov_b32 v{CI+k}, v{CI}')
    e.I(f'v_mov_b32 v{IDX}, 0x44444444')
    e.I('v_mov_b32 v11, 0xeeeeeeee')
    if opt.inl:
        e.I('v_and_b32 v12, 2, v1')
        e.I('v_cmp_lt_u32 vcc, 0, v12')
    else: e.I('v_cmp_lt_u32 vcc, 7, v14')
    e.I(f'v_cndmask_b32 v{IDX}, v{IDX}, v11, vcc')
    e.I('v_mov_b32 v11, 0x3f803f80')
    for k in range(4): e.I(f'v_accvgpr_write_b32 a{AONE+k}, v11')
    e.I('v_mov_b32 v11, 0x3f003f00')
    for k in range(2): e.I(f'v_accvgpr_write_b32 a{AHALF+k}, v11')
    e.I('s_mul_i32 s58, s26, 6144')
    e.I(f's_add_u32 s58, s58, {XR}')
    e.I('s_mul_i32 s57, s26, 3072')
    e.I(f's_add_u32 s57, s57, {VR}')
    e.I('s_lshr_b32 s59, s25, 1')
    e.I('s_lshl_b32 s59, s59, 14')
    e.I('s_and_b32 s38, s25, 1')
    e.I('s_lshl_b32 s38, s38, 12')
    e.I('s_add_u32 s59, s59, s38')
    e.I(f's_add_u32 s59, s59, {PART}')
    e.I('s_lshl_b32 s60, s20, 9')
    e.I('s_add_u32 s60, s60, s59')
    e.I('s_mul_i32 s61, s20, 10240')
    e.I(f's_add_u32 s61, s61, {MEM}')
    e.I('s_mul_i32 s62, s26, 12288')
    e.I('s_lshl_b32 s63, s26, 6')
    e.I(f's_add_u32 s63, s63, {FLGQ}')
    e.I('s_lshl_b32 s38, s20, 2')
    e.I('v_mov_b32 v10, s38')
    wait_flags(e, 10, D_PAR, 1, T0, 12, sleep=4, dbg=True)
    e.I(f'v_readfirstlane_b32 s38, v{T0}')
    e.I('s_nop 3')
    e.I('s_and_b32 s38, s38, 2')
    e.I('s_lshl_b32 s38, s38, 12')
    e.I('s_add_u32 s59, s59, s38')
    if opt.pord:
        if opt.pord == 1: e.I('s_xor_b32 s38, s38, 8192')
        e.I('s_add_u32 s60, s60, s38')
    e.I('s_lshl_b32 s38, s22, 2')
    e.I(f's_add_u32 s38, s38, {S_RED + 8192}')
    e.I('v_lshlrev_b32 v10, 4, v14')
    e.I('v_add_u32 v10, s38, v10')
    e.I('v_and_b32 v11, 7, v14')
    if opt.remap == 1:
        e.I('v_bfe_u32 v11, v1, 2, 1')
        e.I('v_lshl_add_u32 v11, v15, 1, v11')
    if opt.remap == 2: e.I('v_bfe_u32 v11, v1, 2, 3')
    e.I('v_lshlrev_b32 v11, 4, v11')
    e.I(f'v_bfe_u32 v12, v1, {5 if opt.remap == 2 else 3}, 1')
    e.I('v_lshl_add_u32 v11, v12, 3, v11')
    e.I(f'v_add_u32 v11, {S_RED + 8192}, v11')
    e.I(f'v_min_u32 v12, {12 if opt.rpos == 9 else 11}, v1')
    e.I('v_lshlrev_b32 v12, 2, v12')
    if opt.nc > 1:
        e.I('v_and_b32 v13, 31, v1')
        e.I('v_lshlrev_b32 v13, 4, v13')
        e.I('v_lshrrev_b32 v15, 5, v1')
        e.I('v_lshl_add_u32 v13, v15, 13, v13')
    if opt.nod:
        e.I('v_bfe_u32 v15, v1, 3, 1')
        e.I('v_mul_u32_u24 v14, 1016, v15')
        e.I('v_sub_u32 v7, v7, v14')
        e.I('v_lshlrev_b32 v14, 3, v15')
        e.I('v_sub_u32 v11, v11, v14')
        e.I('v_lshlrev_b32 v15, 2, v1')
        for m, r_ in enumerate((PAD, PAD + 1, PAD + 2, PAD + 3, 4, 5, 14)):
            e.I(f's_xor_b32 s38, s20, {m + 1}')
            e.I('s_lshl_b32 s38, s38, 9')
            e.I(f'v_add_u32 v{r_}, s38, v15')
    def kx_off(q): return (q // 6) * 6144 + (q % 3) * 2048 + (q % 6 // 3) * 256
    def kv_loads(dst, base, q0=0, q1=12):
        if q0 >= q1: return
        if opt.own:
            e.I(f's_and_b32 s65, s49, {RD-1}')
            e.I(f's_mul_i32 s65, s65, {SEG_QX}')
            e.I('s_add_u32 s65, s65, s62')
            e.I(f's_add_u32 s65, s65, {base}')
            e.I('s_add_u32 s66, s65, 4096')
            e.I('s_add_u32 s67, s65, 8192')
            for q in range(12): e.I(f'buffer_load_dwordx4 {vr(dst+4*q)}, v167, {WS}, {("s65", "s66", "s67")[kx_off(q)//4096]} offen offset:{kx_off(q)%4096} sc1')
            return
        e.I(f's_and_b32 s48, s49, {RD-1}')
        e.I(f's_mul_i32 s48, s48, {SEG_QX}')
        e.I('s_add_u32 s48, s48, s62')
        e.I(f's_add_u32 s48, s48, {base + (q0//4)*4096}')
        for q in range(q0, q1):
            if q % 4 == 0 and q > q0: e.I('s_add_u32 s48, s48, 4096')
            e.I(f'buffer_load_dwordx4 {vr(dst+4*q)}, v2, {WS}, s48 offen offset:{(q%4)*1024} sc1')
    def vx_loads():
        e.I(f's_and_b32 s48, s49, {RD-1}')
        e.I(f's_mul_i32 s48, s48, {SEG_QX}')
        e.I('s_add_u32 s48, s48, s62')
        e.I(f's_add_u32 s48, s48, {VX}')
        e.I('s_add_u32 s46, s48, 4096')
        e.I('s_add_u32 s56, s48, 8192')
        for kk in range(6):
            for rt in range(2):
                q = rt * 6 + kk
                e.I(f'buffer_load_dwordx4 {vr(VXF+4*q)}, v2, {WS}, {("s48", "s46", "s56")[q//4]} offen offset:{(q%4)*1024} sc1')
    def vw_grp(gi):
        kk, rt = gi // 2, gi % 2
        for ct in range(4):
            d = vr(DW + (ct*2+rt)*4)
            e.I(f'{MFMA} {d}, {vr(VXF+4*(rt*6+kk))}, {ar((ct*6+kk)*4)}, {0 if kk == 0 else d}')
    cv = [f'v_cvt_pk_bf16_f32 v{VWX+4*ct+k}, v{DW+8*ct+2*k}, v{DW+8*ct+2*k+1}' for ct in range(4) for k in range(4)] + [f'v_mov_b32 v{DM+k}, 0' for k in range(16)]
    def vw_x(after, extra=(), nvx=0, g0=0):
        extra = list(extra); nx0 = len(extra)
        for gi in range(g0, 12):
            if gi >= 12 - nvx: e.I(f's_waitcnt vmcnt({11 - gi + nx0 - len(extra)})')
            for _ in range(-(-len(extra) // (12 - gi))): e.I(extra.pop(0))
            if after is not None: e.I(f's_waitcnt vmcnt({after + 11 - gi})')
            vw_grp(gi)
        for n_, x_ in enumerate(cv[:32 - opt.cvx]):
            if extra and n_ % 2 == 0: e.I(extra.pop(0))
            e.I(x_)
        for x_ in extra: e.I(x_)
    TS(e, 0)
    wait_reg(e, T0, opt.rsleep)
    TS(e, 1)
    if opt.swlate: wo_load()
    if opt.tord == 2: early_touch()
    TS(e, 2)
    TSflush(e, '69', 244, 245)
    if opt.touch2:
        e.I('v_lshrrev_b32 v16, 4, v1')
        e.I(f's_mov_b32 s38, {PART_SLOT}')
        e.I('v_mul_lo_u32 v16, s38, v16')
        e.I('v_bfe_u32 v17, v1, 1, 3')
        e.I('v_lshl_add_u32 v16, v17, 9, v16')
        e.I('v_and_b32 v17, 1, v1')
        e.I('v_lshl_add_u32 v16, v17, 7, v16')
        if opt.ptouch == 2: e.I('s_mov_b32 exec_lo, 0')
        if opt.ptouch: e.I(f'buffer_load_dword v17, v16, {WS}, s59 offen sc1{" nt" if opt.ptouch == 3 else ""}')
        if opt.nc > 1: e.I(f'buffer_load_dword v17, v16, {WS}, s59 offen offset:256 sc1')
        e.I('s_mov_b64 exec, -1')
    wait_flags(e, ONE + 1, 's63', 0xfff, T0, 11, sleep=2)
    if opt.dstamp:
        for k in range(90, 94): e.I(f's_mov_b32 s{k}, 0')
    if opt.ad: e.I(f's_mov_b32 s72, {opt.pmf}'); e.I('s_mov_b32 s73, 0')
    e.I('s_mov_b32 s49, 0')
    vx_loads()
    kv_loads(KXF, KX)
    if opt.split and opt.xg1 + opt.xg2:
        e.I('s_waitcnt vmcnt(12)')
        for gi in range(opt.pmf + opt.pmf2): vw_grp(gi)
    else: vw_x(12)
    e.I('s_cmp_lg_u32 s23, 0')
    e.I('s_cbranch_scc1 L_sws')
    for slow in (False, True):
        fl = ' sc1' if slow else ''
        if slow: e.L('L_sws')
        top = e.lab('Lwt')
        e.I('s_mov_b32 s30, 0')
        e.L(top)
        TS(e, 0)
        if opt.pdiag: e.I('s_mov_b32 s94, 0')
        e.I('s_and_b32 s38, s30, 3')
        e.I('s_xor_b32 s39, s38, 2')
        e.I(f's_mul_i32 s40, s38, {XR_SLOT}')
        e.I('s_add_u32 s40, s40, s58')
        e.I('s_add_u32 s54, s40, 4096')
        e.I(f's_mul_i32 s55, s38, {VR_SLOT}')
        e.I('s_add_u32 s55, s55, s57')
        if opt.fresh:
            e.I(f's_mul_i32 s41, s30, {PART_SLOT}')
            e.I(f's_add_u32 s41, s41, {SCRATCH + 0x400000 - PART + 0x200000}')
        else:
            e.I(f's_mul_i32 s41, s38, {PART_SLOT}')
        e.I('s_add_u32 s42, s41, s60')
        e.I('s_add_u32 s41, s41, s59')
        if opt.fresh:
            e.I('s_lshr_b32 s47, s41, 8')
            e.I('s_not_b32 s47, s47')
            e.I('s_and_b32 s47, s47, 8192')
            e.I('s_xor_b32 s41, s41, s47')
        e.I('s_xor_b32 s47, s41, 8192')
        e.I(f's_mul_i32 s43, s39, {PART_SLOT}')
        e.I('s_add_u32 s43, s43, s60')
        e.I('s_add_u32 s49, s30, 1')
        e.I('s_and_b32 s44, s49, 3')
        e.I('s_xor_b32 s45, s44, 2')
        e.I(f's_mul_i32 s44, s44, {MEM_SLOT}')
        e.I('s_add_u32 s44, s44, s61')
        e.I(f's_mul_i32 s45, s45, {MEM_SLOT}')
        e.I('s_add_u32 s45, s45, s61')
        e.I(f's_and_b32 s46, s49, {RD-1}')
        e.I(f's_mul_i32 s46, s46, {SEG_QX}')
        e.I('s_add_u32 s46, s46, s62')
        e.I(f's_add_u32 s65, s46, {KX}')
        e.I(f's_add_u32 s46, s46, {VX}')
        e.I('s_add_u32 s56, s46, 4096')
        e.I('s_add_u32 s64, s46, 8192')
        e.I('s_add_u32 s66, s65, 4096')
        e.I('s_add_u32 s67, s65, 8192')
        e.I('s_lshl_b32 s50, s49, 11')
        e.I('s_add_u32 s50, s50, s63')
        pl, pd, fr, hl, hd = e.lab('Lxp'), e.lab('Lxd'), e.lab('Lxf'), e.lab('Lhp'), e.lab('Lhd')
        def probe(lp, dn, va, so, bad):
            e.I(f's_mov_b64 exec, {0x1fff if opt.rpos == 9 and bad == 0 else 0xfff:#x}')
            e.I(f'buffer_load_dword v{T0}, v{va}, {WS}, {so} offen sc1')
            e.L(lp)
            for a_, b_ in ((T0, T0 + 1), (T0 + 1, T0)):
                e.I(f'buffer_load_dword v{b_}, v{va}, {WS}, {so} offen sc1')
                e.I('s_waitcnt vmcnt(1)')
                e.I(f'v_cmp_gt_u32 vcc, 2, v{a_}' if opt.two and bad == 0 else f'v_cmp_eq_u32 vcc, {bad}, v{a_}')
                e.I(f's_cbranch_vccz {dn}')
            e.I('s_sub_u32 s31, s31, 1')
            e.I(f's_cbranch_scc0 {lp}')
            e.I('s_mov_b32 s31, 2')
            e.I('s_branch L_fail')
        e.I(f's_mov_b32 s31, {TMO}')
        ROR8 = 'row_ror:8 row_mask:0xf bank_mask:0xf'
        ROR8L, ROR8H = 'row_ror:8 row_mask:0xf bank_mask:0x3', 'row_ror:8 row_mask:0xf bank_mask:0xc'
        if opt.split:
            XQ, XK = XF, XF + 12
            A1a, A2a, A1b, A2b, MM = S + 4, S, S + 8, T0 + 4, CI
            def q_loads():
                for j in range(3): e.I(f'buffer_load_dwordx4 {vr(XQ+4*j)}, v2, {WS}, s40 offen offset:{j*1024} sc1')
            def k_loads():
                e.I(f'buffer_load_dwordx4 {vr(XK)}, v2, {WS}, s40 offen offset:3072 sc1')
                for j in range(1, 3): e.I(f'buffer_load_dwordx4 {vr(XK+4*j)}, v2, {WS}, s54 offen offset:{(j-1)*1024} sc1')
            def vm_loads():
                for q in range(3): e.I(f'buffer_load_dwordx4 {vr(VMF+4*q)}, v2, {WS}, s55 offen offset:{q*1024} sc1')
            def chk(r, j):
                if opt.thin1:
                    if j == 2: e.I(f'v_max3_u32 v{T0+2}, v{r-8}, v{r-4}, v{r}')
                else: e.I(f'v_max_u32 v{T0+2}, v{r}, v{r+2}' if j == 0 else f'v_max3_u32 v{T0+2}, v{T0+2}, v{r}, v{r+2}')
            def mm(j): e.I(f'{MFMA} {vr(MM)}, {vr(XK+4*j)}, {vr(XQ+4*j)}, {0 if j == 0 else vr(MM)}')
            def gap(n):
                while n > 0: e.I(f's_nop {min(n, 16) - 1}'); n -= 16
            lq, qf_, qd_, kf_, kd_, kok = [e.lab(x_) for x_ in ('Lsq', 'Lsqf', 'Lsqd', 'Lskf', 'Lskd', 'Lsko')]
            probe(hl, hd, 12, 's50', 0)
            e.L(qf_)
            if opt.dstamp: e.I('s_add_u32 s90, s90, 1')
            e.I('s_sub_u32 s31, s31, 1')
            e.I('s_cbranch_scc1 L_fail')
            probe(pl, qd_, 9, 's40', -1)
            e.L(qd_)
            e.I('s_mov_b64 exec, -1')
            q_loads()
            e.I('s_waitcnt vmcnt(0)')
            e.I(f's_branch {lq}')
            e.L(kf_)
            if opt.dstamp: e.I('s_add_u32 s91, s91, 1')
            e.I('s_sub_u32 s31, s31, 1')
            e.I('s_cbranch_scc1 L_fail')
            e.I('s_add_u32 s48, s40, 3072')
            if opt.inl and not opt.own:
                e.I(f'v_and_b32 v{T0+8}, 128, v9')
                e.I(f'v_lshrrev_b32 v{T0+9}, 2, v{T0+8}')
                e.I(f'v_sub_u32 v{T0+8}, v9, v{T0+8}')
                e.I(f'v_add_u32 v{T0+8}, v{T0+8}, v{T0+9}')
            probe(e.lab('Lskp'), kd_, T0 + 8 if opt.inl and not opt.own else 9, 's48', -1)
            e.L(kd_)
            e.I('s_mov_b64 exec, -1')
            k_loads()
            e.I('s_waitcnt vmcnt(0)')
            for j in range(3): mm(j); chk(XK + 4*j, j)
            e.I(f'v_cmp_eq_u32 vcc, -1, v{T0+2}')
            e.I(f's_cbranch_vccnz {kf_}')
            e.I('s_nop 7')
            e.I(f's_branch {kok}')
            e.L(hd)
            e.I('s_mov_b64 exec, -1')
            TS(e, 1)
            g0_ = opt.pmf + opt.pmf2
            q_loads()
            for gi in range(g0_, g0_ + opt.xg1): vw_grp(gi)
            gap(opt.g1)
            k_loads()
            for gi in range(g0_ + opt.xg1, g0_ + opt.xg1 + opt.xg2): vw_grp(gi)
            gap(opt.g2)
            for x_ in cv[32 - opt.cvx:]: e.I(x_)
            vm_loads()
            for q in (0, 6, 1, 7, 2, 8, 3, 9, 4, 10, 5, 11)[:opt.vxe]:
                e.I(f'buffer_load_dwordx4 {vr(VXF+4*q)}, v2, {WS}, {("s46", "s56", "s64")[q//4]} offen offset:{(q%4)*1024} sc1')
            if opt.xg1 + opt.xg2: vw_x(None, (), 0, g0_ + opt.xg1 + opt.xg2)
            e.L(lq)
            t = T0 + 2
            if opt.sord:
                def qm(d, kf, j): e.I(f'{MFMA} {vr(d)}, {vr(KXF+4*kf)}, {vr(XQ+4*j)}, {0 if j == 0 else vr(d)}')
                mL = [f'v_add_f32_dpp v{S+4+r}, v{A2a+r}, v{A1a+r} {ROR8L}' for r in range(4)]
                mH = [f'v_add_f32_dpp v{S+4+r}, v{A1b+r}, v{A2b+r} {ROR8H}' for r in range(4)]
                for j in range(3):
                    e.I(f's_waitcnt vmcnt({8-j+opt.vxe})')
                    qm(A1a, j, j); chk(XQ + 4*j, j); qm(A2a, j + 3, j)
                e.I(f'v_cmp_eq_u32 vcc, -1, v{T0+2}')
                qm(A1b, 6, 0)
                e.I(f's_cbranch_vccnz {qf_}')
                qm(A2b, 9, 0); qm(A1b, 7, 1)
                e.I(mL[0]); e.I(mL[1])
                qm(A2b, 10, 1)
                e.I(mL[2]); e.I(mL[3])
                qm(A1b, 8, 2); qm(A2b, 11, 2)
                for j in range(3):
                    e.I(f's_waitcnt vmcnt({5-j+opt.vxe})')
                    mm(j)
                    if j < 2: chk(XK + 4*j, j)
                    if j == 1: e.I(mH[0])
                chk(XK + 8, 2)
                e.I(f'v_cmp_eq_u32 vcc, -1, v{T0+2}')
                for x_ in mH[1:]: e.I(x_)
                e.I(f'v_max3_f32 v{t+1}, v{S+4}, v{S+5}, v{S+6}')
                e.I(f's_cbranch_vccnz {kf_}')
            else:
                for j in range(3):
                    x = vr(XQ + 4*j)
                    e.I(f's_waitcnt vmcnt({8-j+opt.vxe})')
                    if opt.t9 == j: TS(e, 9)
                    for n_, (d, kf) in enumerate(((A1a, j), (A2a, j + 3), (A1b, 6 + j), (A2b, 9 + j))):
                        e.I(f'{MFMA} {vr(d)}, {vr(KXF+4*kf)}, {x}, {0 if j == 0 else vr(d)}')
                        if n_ == 0: chk(XQ + 4*j, j)
                        if n_ == 1 and j == 2: e.I(f'v_cmp_eq_u32 vcc, -1, v{T0+2}')
                e.I(f's_cbranch_vccnz {qf_}')
                t = T0 + 2
                for j in range(3):
                    e.I(f's_waitcnt vmcnt({5-j+opt.vxe})')
                    if opt.t9 == 3 + j: TS(e, 9)
                    mm(j); chk(XK + 4*j, j)
                    if j == 1:
                        for r in range(4): e.I(f'v_add_f32_dpp v{S+4+r}, v{A2a+r}, v{A1a+r} {ROR8L}')
                e.I(f'v_cmp_eq_u32 vcc, -1, v{T0+2}')
                for r in range(4): e.I(f'v_add_f32_dpp v{S+4+r}, v{A1b+r}, v{A2b+r} {ROR8H}')
                e.I(f'v_max3_f32 v{t+1}, v{S+4}, v{S+5}, v{S+6}')
                e.I(f's_cbranch_vccnz {kf_}')
            e.L(kok)
            TS(e, 2)
        if not opt.split:
            probe(hl, hd, 12, 's50', 0)
            xp = e.lab('Lxq')
            e.L(xp)
            probe(pl, pd, 9, 's40', -1)
            e.L(hd)
            if opt.hdelay: e.I(f's_nop {opt.hdelay - 1}')
            if not opt.heads: e.I(f's_branch {xp}')
            e.L(pd)
            e.I('s_mov_b64 exec, -1')
            TS(e, 1)
            if opt.pdiag: e.I('s_add_u32 s94, s94, 1')
            e.L(fr)
            for p in range(6):
                e.I(f'buffer_load_dwordx4 {vr(XF+4*p)}, v2, {WS}, {"s40" if p < 4 else "s54"} offen offset:{(p%4)*1024} sc1')
            FQ = CI + 23
            def vm_loads():
                for q in range(3):
                    e.I(f'buffer_load_dwordx4 {vr(VMF+4*q)}, v2, {WS}, s55 offen offset:{q*1024} sc1')
            vp = opt.vmpos
            bulk0 = [f'buffer_load_dwordx4 {vr(VXF+4*q)}, v2, {WS}, {("s46", "s56", "s64")[q//4]} offen offset:{(q%4)*1024} sc1' for q in (0, 6, 1, 7, 2, 8)]
            nvm = 0
            if vp == 0: vm_loads(); nvm = 3
            for p in range(6):
                x = vr(XF + 4*p)
                e.I(f's_waitcnt vmcnt({5-p+nvm})')
                e.I(f'{MFMA} {vr(S+4)}, {vr(KXF+4*p)}, {x}, {0 if p == 0 else vr(S+4)}')
                e.I(f'{MFMA} {vr(S+8)}, {vr(KXF+24+4*p)}, {x}, {0 if p == 0 else vr(S+8)}')
                e.I(f'{MFMA} {vr(S)}, {x}, {x}, {vr(CI) if p == 0 else vr(S)}')
                if vp == p + 1: vm_loads(); nvm = 3
                if p >= 6 - opt.kx and p >= vp: e.I(bulk0[p - (6 - opt.kx)]); nvm += 1
                r = XF + 4 * p
                if opt.thin:
                    e.I(f'v_max_u32 v{T0+2}, v{r}, v{r+2}' if p == 0 else f'v_max3_u32 v{T0+2}, v{T0+2}, v{r}, v{r+2}')
                elif p == 0:
                    e.I(f'v_max3_u32 v{T0+2}, v{r}, v{r+1}, v{r+2}')
                    e.I(f'v_max_u32 v{T0+2}, v{T0+2}, v{r+3}')
                else:
                    e.I(f'v_max3_u32 v{T0+2}, v{T0+2}, v{r}, v{r+1}')
                    e.I(f'v_max3_u32 v{T0+2}, v{T0+2}, v{r+2}, v{r+3}')
            e.I(f'v_cmp_eq_u32 vcc, -1, v{T0+2}')
            ok = e.lab('Lxo')
            e.I(f's_cbranch_vccz {ok}')
            e.I('s_sub_u32 s31, s31, 1')
            e.I('s_nop 7')
            if opt.dstamp: e.I('s_mov_b32 s89, s90'); e.I('s_addk_i32 s89, 1'); e.I('s_mov_b32 s90, s89'); e.I('s_cmp_eq_u32 s31, 0')
            e.I(f's_cbranch_scc0 {xp}')
            e.I('s_mov_b32 s31, 2')
            e.I('s_branch L_fail')
            e.L(ok)
            TS(e, 2)
            vl, vd = e.lab('Lvp'), e.lab('Lvd')
            vl2 = e.lab('Lv2')
            if opt.kx: e.I(f's_waitcnt vmcnt({opt.kx})'); e.I(f's_branch {vl2}')
            e.L(vl)
            e.I('s_waitcnt vmcnt(0)')
            e.L(vl2)
            check_sent(e, [r_ for r_ in range(VMF, VMF + 12) if not opt.thin or r_ % 4 in ((0, 2) if opt.vx2 else (0, 1))], T0 + 2, T0 + 3)
            e.I(f's_cbranch_vccz {vd}')
            if opt.dstamp: e.I('s_add_u32 s92, s92, 1')
            vm_loads()
            e.I('s_sub_u32 s31, s31, 1')
            e.I(f's_cbranch_scc0 {vl}')
            e.I('s_mov_b32 s31, 3')
            e.I('s_branch L_fail')
            e.L(vd)
            TS(e, 3)
        PW = 2 if opt.pbf and opt.nc == 1 else 4
        if opt.rpos == 0: e.I(f'buffer_store_dwordx{PW} {vr(SENT,PW)}, v13, {WS}, s43 offen sc1')
        sm = [f'{SMF} {vr(DM+4*ct)}, {vr(VMF+4*m)}, {ar(W2+(ct*6+2*m)*4,8)}, v{IDX}' for m in range(3) for ct in range(4)]
        t = T0 + 2
        V = []
        for r in range(4): V.append(f'v_mov_b32_dpp v{S+4+r}, v{S+8+r} row_shr:8 row_mask:0xf bank_mask:0xc')
        V += [f'v_max3_f32 v{t}, v{S}, v{S+1}, v{S+2}', f'v_max3_f32 v{t+1}, v{S+3}, v{S+4}, v{S+5}', f'v_max3_f32 v{t}, v{t}, v{S+6}, v{S+7}', f'v_max_f32 v{t}, v{t}, v{t+1}',
              '*', '*', f'v_max_f32_dpp v{t}, v{t}, v{t} {ROR8}', f'v_mov_b32 v{t+1}, v{t}', '*', '*', f'v_permlane16_swap_b32 v{t}, v{t+1}', f'v_max_f32 v{t}, v{t}, v{t+1}',
              f'v_mov_b32 v{t+1}, v{t}', '*', '*', f'v_permlane32_swap_b32 v{t}, v{t+1}', f'v_max_f32 v{t}, v{t}, v{t+1}', f'v_mul_f32 v{t}, s53, v{t}']
        order = [4, 5, 6, 7, 0, 1, 2, 3]
        for i in order: V.append(f'v_fma_f32 v{S+i}, v{S+i}, s52, v{t}')
        for n_, i in enumerate(order):
            V.append(f'v_exp_f32 v{S+i}, v{S+i}')
        if opt.split:
            V = ['V8', f'v_permlane32_swap_b32 v{MM}, v{MM+2}', f'v_permlane32_swap_b32 v{MM+1}, v{MM+3}', 'V9', '*', '*',
                 f'v_add_f32_dpp v{S}, v{MM+2}, v{MM} {ROR8L}', f'v_add_f32_dpp v{S}, v{MM+1}, v{MM+3} {ROR8H}', f'v_max3_f32 v{t}, v{t+1}, v{S+7}, v{S}', 'V0',
                 '*', '*', f'v_max_f32_dpp v{t}, v{t}, v{t} {ROR8}', f'v_mov_b32 v{t+1}, v{t}', 'V1', '*', '*', f'v_permlane16_swap_b32 v{t}, v{t+1}', f'v_max_f32 v{t}, v{t}, v{t+1}',
                 f'v_mov_b32 v{t+1}, v{t}', 'V2', '*', '*', f'v_permlane32_swap_b32 v{t}, v{t+1}', f'v_max_f32 v{t}, v{t}, v{t+1}', f'v_mul_f32 v{t}, s53, v{t}', 'V3']
            if opt.inl: V = ['V8', 'V9', f'v_add_f32_dpp v{S}, v{MM+2}, v{MM} {ROR8L}', f'v_add_f32_dpp v{S}, v{MM+1}, v{MM+3} {ROR8H}'] + V[8:]
            order = [4, 5, 6, 7, 0]
            for i in order: V.append(f'v_fma_f32 v{S+i}, v{S+i}, s52, v{t}')
            V.append('V4')
            for i in order: V.append(f'v_exp_f32 v{S+i}, v{S+i}')
            if opt.pvmix:
                V += [f'v_cvt_pk_bf16_f32 v{PB}, v{S+4}, v{S+5}', f'v_cvt_pk_bf16_f32 v{PB+1}, v{S+6}, v{S+7}', f'v_mov_b32_dpp v{t}, v{S} {ROR8}',
                      f'v_mov_b32_dpp v{PB+2}, v{PB} {ROR8}', f'v_mov_b32_dpp v{PB+3}, v{PB+1} {ROR8}']
            else: V += [f'v_cvt_pk_bf16_f32 v{PB}, v{S+4}, v{S+5}', f'v_cvt_pk_bf16_f32 v{PB+1}, v{S+6}, v{S+7}', f'v_mov_b32_dpp v{t}, v{S} {ROR8}',
                  f'v_mov_b32_dpp v{PB+2}, v{PB} {ROR8}', f'v_mov_b32_dpp v{PB+3}, v{PB+1} {ROR8}', f'v_cvt_pk_bf16_f32 v{PM}, v{S}, v{t}', f'v_mov_b32 v{PM+1}, v{PM}' if not opt.inl else f'v_cvt_pk_bf16_f32 v{PM+1}, v{S}, v{t}']
        bulk = [f'buffer_load_dwordx4 {vr(VXF+4*q)}, v2, {WS}, {("s46", "s56", "s64")[q//4]} offen offset:{(q%4)*1024} sc1' for q in (0, 6, 1, 7, 2, 8, 3, 9, 4, 10, 5, 11)]
        bulk += [f'buffer_load_dwordx4 {vr(KXF+4*q)}, v2, {WS}, {("s65", "s66", "s67")[q//4]} offen offset:{(q%4)*1024} sc1' for q in range(12)]
        if opt.own: bulk[12:] = [f'buffer_load_dwordx4 {vr(KXF+4*q)}, v167, {WS}, {("s65", "s66", "s67")[kx_off(q)//4096]} offen offset:{kx_off(q)%4096} sc1' for q in range(12)]
        kin = bulk[max(opt.kx, opt.vxe):opt.kin]; kp = bulk[opt.kin:opt.kin + opt.kp]; kc = bulk[opt.kin + opt.kp:]
        if opt.nobulk & 1: kin = []
        if opt.nobulk & 2: kp = []
        if opt.nobulk & 4: kc = []
        lim = [opt.n1]
        def ld():
            if kin and lim[0] > 0: e.I(kin.pop(0)); lim[0] -= 1
        nk0 = len(kin)
        def vcheck():
            vl, vl2, vd = e.lab('Lvp'), e.lab('Lv2'), e.lab('Lvd')
            e.I(f's_waitcnt vmcnt({nk0 - len(kin) + opt.vxe})')
            e.L(vl2)
            check_sent(e, [r_ for r_ in range(VMF, VMF + 12) if not opt.thin or r_ % 4 in ((0,) if opt.thin1 else (0, 2) if opt.vx2 else (0, 1))], T0, T0 + 1)
            e.I(f's_cbranch_vccz {vd}')
            if opt.dstamp: e.I('s_add_u32 s92, s92, 1')
            vm_loads()
            e.I('s_waitcnt vmcnt(0)')
            e.I('s_sub_u32 s31, s31, 1')
            e.I(f's_cbranch_scc0 {vl2}')
            e.I('s_mov_b32 s31, 3')
            e.I('s_branch L_fail')
            e.L(vd)
            TS(e, 3)
            for x_ in sm[:opt.smpre]: e.I(x_)
            return sm[opt.smpre:]
        if opt.split: rest = []
        else:
            for x_ in sm[:opt.smpre]: e.I(x_)
            rest = sm[opt.smpre:]
        cost = 0; prev = None; since = 0
        for x_ in V:
            if x_[0] == 'V':
                if x_ == f'V{opt.vpos}': rest = vcheck(); cost = 0
            elif x_ == '*':
                if prev == '*' or cost == 0 or not rest: ld(); since = 0
                else: e.I(rest.pop(0)); cost = 0
            else:
                e.I(x_); c_ = 2 if 'v_exp' in x_ else 1; cost += c_; since += c_
                if cost >= opt.smgap and rest: e.I(rest.pop(0)); cost = 0
                elif since >= opt.ldgap: ld(); since = 0
            prev = x_
        late_sm = rest if opt.split else []
        if not opt.split:
            for x_ in rest: e.I(x_)
            e.I(f'v_cvt_pk_bf16_f32 v{PB}, v{S+4}, v{S+5}')
            e.I(f'v_cvt_pk_bf16_f32 v{PB+1}, v{S+6}, v{S+7}')
            e.I(f'v_cvt_pk_bf16_f32 v{PM}, v{S}, v{S+1}')
            e.I(f'v_cvt_pk_bf16_f32 v{PM+1}, v{S+2}, v{S+3}')
            e.I(f'v_mov_b32_dpp v{PB+2}, v{PB} {ROR8}')
            e.I(f'v_mov_b32_dpp v{PB+3}, v{PB+1} {ROR8}')
            e.I(f'v_mov_b32 v{t}, v{PM}')
            e.I(f'v_mov_b32 v{t+1}, v{PM+1}')
        for x_ in late_sm: e.I(x_)
        if opt.tpos == 0: TS(e, 4)
        def cvm(ct):
            e.I(f'v_cvt_pk_bf16_f32 v{VWM+2*ct}, v{DM+4*ct}, v{DM+4*ct+1}')
            e.I(f'v_cvt_pk_bf16_f32 v{VWM+2*ct+1}, v{DM+4*ct+2}, v{DM+4*ct+3}')
        lim[0] = opt.n2
        SUM = S + 8 if opt.pvmix else S
        if opt.pvord:
            px = lambda ct: e.I(f'{MFMA} {vr(OUT+4*ct)}, {vr(VWX+4*ct)}, {vr(PB)}, 0')
            pm = lambda ct: e.I(f'{MFMA16} {vr(OUT+4*ct)}, {vr(VWM+2*ct,2)}, {vr(PM,2)}, {vr(OUT+4*ct)}')
            def wr(*xs):
                e.I('s_not_b64 exec, s[68:69]')
                for x_ in xs: e.I(x_)
                e.I('s_mov_b64 exec, -1')
            W_ = lambda ct: f'ds_write_b128 v6, {vr(OUT+4*ct)} offset:{2048*ct}'
            lim[0] = 99
            px(0)
            for k in range(2): e.I(f'v_cvt_pk_bf16_f32 v{PM+k}, v{S}, v{t}')
            e.I(f'{MFMA} {vr(SUM)}, {ar(AONE)}, {vr(PB)}, 0')
            cvm(0)
            px(1)
            cvm(1)
            pm(0)
            cvm(2)
            e.I(f'{MFMA16} {vr(SUM)}, {ar(AHALF,2)}, {vr(PM,2)}, {vr(SUM)}')
            cvm(3)
            pm(1)
            ld()
            px(2)
            wr(W_(0))
            pm(2)
            e.I(f'v_rcp_f32 v{t}, v{SUM}')
            ld()
            px(3)
            wr(W_(1))
            pm(3)
            e.I('s_not_b64 exec, s[68:69]')
            e.I(f'ds_write_b32 v10, v{t}')
            e.I(W_(2))
            e.I('s_mov_b64 exec, -1')
            for _ in range(opt.pvl): ld()
            wr(W_(3))
        else:
            e.I(f'{MFMA} {vr(OUT)}, {vr(VWX)}, {vr(PB)}, 0')
            if opt.inl:
                if opt.pvmix:
                    for k in range(2): e.I(f'v_cvt_pk_bf16_f32 v{PM+k}, v{S}, v{t}')
            elif opt.split: e.I(f'v_permlane32_swap_b32 v{PM}, v{PM+1}')
            else:
                e.I(f'v_permlane32_swap_b32 v{t}, v{PM}')
                e.I(f'v_permlane32_swap_b32 v{t+1}, v{PM+1}')
            e.I(f'{MFMA} {vr(SUM)}, {ar(AONE)}, {vr(PB)}, 0')
            cvm(0)
            if opt.n2 > 7: ld()
            e.I(f'{MFMA} {vr(OUT+4)}, {vr(VWX+4)}, {vr(PB)}, 0')
            cvm(1)
            if opt.n2 > 6: ld()
            e.I(f'{MFMA} {vr(OUT+8)}, {vr(VWX+8)}, {vr(PB)}, 0')
            cvm(2)
            if opt.n2 > 5: ld()
            e.I(f'{MFMA} {vr(OUT+12)}, {vr(VWX+12)}, {vr(PB)}, 0')
            cvm(3)
            if opt.n2 > 4: ld()
            e.I(f'{MFMA16} {vr(OUT)}, {vr(VWM,2)}, {vr(PM,2)}, {vr(OUT)}')
            ld()
            e.I(f'{MFMA16} {vr(SUM)}, {ar(AHALF,2)}, {vr(PM,2)}, {vr(SUM)}')
            ld()
            for ct in range(1, 4):
                e.I(f'{MFMA16} {vr(OUT+4*ct)}, {vr(VWM+2*ct,2)}, {vr(PM,2)}, {vr(OUT+4*ct)}')
                if ct < 3: ld()
            lim[0] = len(kin) - opt.n3
            while lim[0] > 0: ld()
            if opt.tpos == 1: TS(e, 4)
            e.I('s_not_b64 exec, s[68:69]')
            e.I(f'ds_write_b128 v6, {vr(OUT)}')
            e.I(f'v_rcp_f32 v{t}, v{SUM}')
            e.I(f'ds_write_b128 v6, {vr(OUT+4)} offset:2048')
            e.I(f'ds_write_b32 v10, v{t}')
            e.I(f'ds_write_b128 v6, {vr(OUT+8)} offset:4096')
            e.I(f'ds_write_b128 v6, {vr(OUT+12)} offset:6144')
            e.I('s_mov_b64 exec, -1')
        lim[0] = 99
        while kin: ld()
        e.I('s_waitcnt lgkmcnt(0)')
        if opt.tpos == 2: TS(e, 4)
        e.I('s_barrier')
        if opt.tpos == 3: TS(e, 4)
        if opt.nod:
            F = T0 + 4
            e.I(f'ds_read_b128 {vr(F)}, v11')
            e.I(f'ds_read2_b64 {vr(S)}, v7 offset0:0 offset1:64')
            e.I(f'ds_read2_b64 {vr(S+4)}, v7 offset0:128 offset1:192')
            e.I('s_xor_b32 s48, s42, 8192')
            if opt.nc > 1 and opt.sa < 0:
                for m, r_ in enumerate((PAD, PAD + 1, PAD + 2, PAD + 3, 4, 5, 14)): e.I(f'buffer_load_dword v{PA+m}, v{r_}, {WS}, s41 offen sc1')
            e.I('s_waitcnt lgkmcnt(1)')
            e.I(f'v_pk_mul_f32 {vr(S,2)}, {vr(S,2)}, {vr(F,2)} op_sel_hi:[1,0]')
            e.I(f'v_pk_fma_f32 {vr(S,2)}, {vr(S+2,2)}, {vr(F,2)}, {vr(S,2)} op_sel:[0,1,0]')
            e.I('s_waitcnt lgkmcnt(0)')
            e.I(f'v_pk_fma_f32 {vr(S,2)}, {vr(S+4,2)}, {vr(F+2,2)}, {vr(S,2)} op_sel_hi:[1,0,1]')
            e.I(f'v_pk_fma_f32 {vr(S,2)}, {vr(S+6,2)}, {vr(F+2,2)}, {vr(S,2)} op_sel:[0,1,0]')
            e.I(f'v_cvt_pk_bf16_f32 v{S+4}, v{S}, v{S+1}')
            e.I(f'buffer_store_dword v{S+4}, v15, {WS}, s42 offen sc1')
            e.I(f'buffer_store_dword v{S+4}, v15, {WS}, s48 offen sc1')
            if opt.nc > 1:
                e.I(f'buffer_store_dword v{S+4}, v15, {WS}, s42 offen offset:256 sc1')
                e.I(f'buffer_store_dword v{S+4}, v15, {WS}, s48 offen offset:256 sc1')
        else:
            e.I(f'ds_read_b64 {vr(t,2)}, v11')
            e.I(f'ds_read_b128 {vr(S)}, v7')
            e.I(f'ds_read_b128 {vr(S+4)}, v7 offset:512')
            e.I('s_waitcnt lgkmcnt(1)')
            for k in range(4): e.I(f'v_mul_f32 v{S+k}, v{S+k}, v{t}')
            e.I('s_waitcnt lgkmcnt(0)')
            for k in range(4): e.I(f'v_fmac_f32 v{S+k}, v{S+4+k}, v{t+1}')
            if opt.remap == 2:
                e.I(f'v_permlane32_swap_b32 v{S}, v{S+2}')
                e.I(f'v_permlane32_swap_b32 v{S+1}, v{S+3}')
                e.I(f'v_add_f32 v{S}, v{S}, v{S+2}')
                e.I(f'v_add_f32 v{S+1}, v{S+1}, v{S+3}')
                e.I(f'v_cvt_pk_bf16_f32 v{S+4}, v{S}, v{S+1}')
                e.I(f'v_cvt_pk_bf16_f32 v{S+5}, v{S}, v{S+1}')
                e.I(f'v_permlane32_swap_b32 v{S+4}, v{S+5}')
                e.I(f'buffer_store_dwordx2 {vr(S+4,2)}, v13, {WS}, s42 offen sc1')
            else:
                for k in range(4): e.I(f'v_add_f32_dpp v{S+k}, v{S+k}, v{S+k} {ROR8}')
                if opt.pbf:
                    e.I(f'v_cvt_pk_bf16_f32 v{S+4}, v{S}, v{S+1}')
                    e.I(f'v_cvt_pk_bf16_f32 v{S+5}, v{S+2}, v{S+3}')
                    e.I(f'buffer_store_dwordx2 {vr(S+4,2)}, v13, {WS}, s42 offen sc1')
                else:
                    e.I(f'buffer_store_dwordx4 {vr(S)}, v13, {WS}, s42 offen sc1')
        TS(e, 5)
        if opt.rpos == 2: e.I(f'buffer_store_dwordx{PW} {vr(SENT,PW)}, v13, {WS}, s43 offen sc1')
        if not opt.nod:
            e.I(f'v_mov_b32 v{PA}, 0'); e.I(f'v_mov_b32 v{PA+1}, 0')
            if opt.remap == 2:
                e.I('s_mov_b32 vcc_lo, 0'); e.I('s_mov_b32 vcc_hi, -1')
                for k in range(2): e.I(f'v_cndmask_b32 v{S+2+k}, 0, v{S+k}, vcc')
                for k in range(2): e.I(f'v_cndmask_b32_e64 v{S+k}, v{S+k}, 0, vcc')
            else:
                for k in range(4): e.I(f'v_cndmask_b32 v{S+k}, v{S+k}, 0, s[68:69]')
        if opt.ad:
            e.I(f's_waitcnt vmcnt({1 + (opt.rpos == 2) + opt.nod})')
        elif opt.nc > 1:
            e.I(f's_waitcnt vmcnt({5 + (7 if opt.sa < 0 else 0)})')
            for gi in range(max(0, opt.sa)): vw_grp(gi)
        elif opt.pmf:
            e.I(f's_waitcnt vmcnt({1 + (opt.rpos == 2) + opt.nod})')
            for gi in range(opt.pmf): vw_grp(gi)
        if opt.pdelay: e.I(f's_sleep {opt.pdelay}')
        PADS = [PAD, PAD + 1, PAD + 2, PAD + 3, 4, 5, 14]
        def shot(PA=PA, off=0, seed=True):
            if opt.nod:
                for m in range(7): e.I(f'buffer_load_dword v{PA+m}, v{PADS[m]}, {WS}, s41 offen offset:{off} sc1')
                if seed:
                    for k in range(2): e.I(f'v_mov_b32 v{T0+4+k}, v{S+k}')
                return
            e.I('s_mov_b32 exec_lo, 0' if opt.remap == 2 else 's_mov_b64 exec, s[68:69]')
            e.I(f'buffer_load_dwordx2 {vr(PA,2)}, v{PAD}, {WS}, s41 offen sc1')
            e.I('s_mov_b64 exec, -1')
            for m in range(1, 4): e.I(f'buffer_load_dwordx2 {vr(PA+2*m,2)}, v{PAD+m}, {WS}, s41 offen sc1')
            for k in range(4): e.I(f'v_mov_b32 v{T0+8+k}, v{S+k}')
        ql, qd, qf = e.lab('Lpp'), e.lab('Lpd'), e.lab('Lpf')
        def acc(behind, PA=PA):
            if opt.nod:
                for m in range(7):
                    if m in (0, 3, 5, 6): e.I(f's_waitcnt vmcnt({(4, 0, 0, 2, 0, 1, 0)[m] + behind})')
                    if m == 0: e.I(f'v_max3_u32 v{T0}, v{PA}, v{PA+1}, v{PA+2}')
                    if m == 3: e.I(f'v_max3_u32 v{T0}, v{T0}, v{PA+3}, v{PA+4}')
                    if m == 6:
                        e.I(f'v_max3_u32 v{T0}, v{T0}, v{PA+5}, v{PA+6}')
                        e.I(f'v_cmp_eq_u32 vcc, -1, v{T0}')
                    for k in range(2): e.I(f'v_dot2c_f32_bf16 v{T0+4+k}, {("s70", "s71")[k]}, v{PA+m}')
                e.I(f's_cbranch_vccz {qd}')
                return
            for m in range(4):
                e.I(f's_waitcnt vmcnt({3-m+behind})')
                if m == 0: e.I(f'v_max_u32 v{T0}, v{PA}, v{PA+1}')
                else: e.I(f'v_max3_u32 v{T0}, v{T0}, v{PA+2*m}, v{PA+2*m+1}')
                if m == 3: e.I(f'v_cmp_eq_u32 vcc, -1, v{T0}')
                for k in range(4): e.I(f'v_dot2c_f32_bf16 v{T0+8+k}, {("s70", "s71")[k&1]}, v{PA+2*m+(k>>1)}')
            e.I(f's_cbranch_vccz {qd}')
        if opt.nc > 1:
            G = opt.pmf + opt.pmf2
            if opt.sa >= 0: shot()
            else:
                for k in range(2): e.I(f'v_mov_b32 v{T0+4+k}, v{S+k}')
            blind = opt.sb <= G
            for gi in range(max(0, opt.sa), min(G, opt.sb)): vw_grp(gi)
            if blind: shot(PA + 8, 256, False)
            for gi in range(min(G, opt.sb), G): vw_grp(gi)
            acc(7 if blind else 0)
            if opt.dstamp: e.I('s_add_u32 s92, s92, 1')
            if blind:
                for k in range(2): e.I(f'v_mov_b32 v{T0+4+k}, v{S+k}')
                e.I(f's_branch {qf}')
            e.L(ql)
            if opt.dstamp: e.I('s_add_u32 s93, s93, 1')
            shot(PA + 8, 256)
            e.L(qf)
            acc(0, PA + 8)
        elif opt.ad:
            for gi in range(opt.pmf + opt.pmf2):
                if opt.adlo <= gi <= opt.adhi:
                    sk_ = e.lab('Lsh')
                    e.I(f's_cmp_lg_u32 s72, {gi}')
                    e.I(f's_cbranch_scc1 {sk_}')
                    shot()
                    e.L(sk_)
                vw_grp(gi)
        else: shot()
        if opt.t9 == 10: e.I('s_waitcnt vmcnt(7)'); TS(e, 9)
        if opt.t9 == 11: e.I('s_waitcnt vmcnt(6)'); TS(e, 9)
        if opt.t9 == 12: e.I('s_waitcnt vmcnt(0)'); TS(e, 9)
        if opt.t9 == 13: TS(e, 9)
        if opt.rpos == 3: e.I(f'buffer_store_dwordx{PW} {vr(SENT,PW)}, v13, {WS}, s43 offen sc1')
        for gi in range(opt.pmf, opt.pmf + opt.pmf2):
            if opt.nc == 1 and not opt.ad: vw_grp(gi)
        if opt.nc > 1: pass
        elif opt.rpos == 3: acc(1)
        elif kp:
            e.I(f's_nop {opt.kgap}') if opt.kgap < 16 else e.I(f's_sleep {opt.kgap // 16}')
            for x_ in kp: e.I(x_)
            acc(len(kp))
        else:
            e.I(f's_branch {qf}')
        if opt.nc == 1 and opt.pr2:
            e.L(qf)
            acc(0)
            la, lb = e.lab('Lpa'), e.lab('Lpb')
            shot(PA, 0, False)
            e.L(ql)
            for cur, nx_, ok_ in ((PA, PA + 8, la), (PA + 8, PA, lb)):
                if opt.dstamp: e.I('s_add_u32 s93, s93, 1')
                shot(nx_, 0, False)
                e.I('s_waitcnt vmcnt(7)')
                e.I(f'v_max3_u32 v{T0}, v{cur}, v{cur+1}, v{cur+2}')
                e.I(f'v_max3_u32 v{T0}, v{T0}, v{cur+3}, v{cur+4}')
                e.I(f'v_max3_u32 v{T0}, v{T0}, v{cur+5}, v{cur+6}')
                e.I(f'v_cmp_eq_u32 vcc, -1, v{T0}')
                e.I(f's_cbranch_vccz {ok_}')
            e.I('s_sub_u32 s31, s31, 1')
            e.I(f's_cbranch_scc0 {ql}')
            e.I('s_mov_b32 s31, 4')
            e.I('s_branch L_fail')
            for cur, ok_ in ((PA, la), (PA + 8, lb)):
                e.L(ok_)
                for k in range(2): e.I(f'v_mov_b32 v{T0+4+k}, v{S+k}')
                for m in range(7):
                    for k in range(2): e.I(f'v_dot2c_f32_bf16 v{T0+4+k}, {("s70", "s71")[k]}, v{cur+m}')
                e.I(f's_branch {qd}')
        elif opt.nc == 1:
            e.L(ql)
            if opt.ad: e.I('s_mov_b32 s73, -1')
            if opt.dstamp: e.I('s_add_u32 s93, s93, 1')
            if opt.pfar == 1: e.I('s_xor_b32 s41, s41, 8192')
            if opt.pfar == 2: e.I('s_mov_b32 s41, s47')
            shot()
            e.L(qf)
            acc(0)
        e.I('s_sub_u32 s31, s31, 1')
        e.I(f's_cbranch_scc0 {ql}')
        e.I('s_mov_b32 s31, 4')
        e.I('s_branch L_fail')
        e.L(qd)
        TS(e, 6)
        if opt.nod: pass
        elif opt.remap == 2:
            e.I('s_nop 1')
            e.I(f'v_permlane32_swap_b32 v{T0+8}, v{T0+10}')
            e.I(f'v_permlane32_swap_b32 v{T0+9}, v{T0+11}')
            for k in range(2): e.I(f'v_add_f32 v{T0+4+k}, v{T0+8+k}, v{T0+10+k}')
        else:
            e.I('s_nop 1')
            for k in range(2): e.I(f'v_add_f32_dpp v{T0+4+k}, v{T0+8+k}, v{T0+8+k} row_ror:8 row_mask:0xf bank_mask:0x3')
            for k in range(2): e.I(f'v_add_f32_dpp v{T0+4+k}, v{T0+10+k}, v{T0+10+k} row_ror:8 row_mask:0xf bank_mask:0xc ; merge')
        e.I(f'v_cvt_pk_bf16_f32 v{T0+4}, v{T0+4}, v{T0+5}')
        e.I(f'buffer_store_dword v{T0+4}, v8, {WS}, s44 offen{fl}')
        TS(e, 7)
        if not opt.mrl: e.I(f'buffer_store_dword v{SENT}, v8, {WS}, s45 offen{fl}')
        if opt.mbar: e.I('s_barrier')
        if opt.rpos == 4: e.I(f'buffer_store_dwordx{PW} {vr(SENT,PW)}, v13, {WS}, s43 offen sc1')
        nvx = max(0, 12 - opt.kin - opt.kp)
        for x_ in kc[:nvx]: e.I(x_)
        assert opt.kin >= opt.pmf + opt.pmf2
        if kp: e.I('s_waitcnt vmcnt(2)')
        if opt.split and opt.xg1 + opt.xg2:
            for x_ in kc[nvx:]: e.I(x_)
        elif opt.kxl == 2:
            for x_ in kc[nvx:]: e.I(x_)
            if opt.mrl: e.I(f'buffer_store_dword v{SENT}, v8, {WS}, s45 offen{fl}')
            vw_x(None, (), 0, opt.pmf + opt.pmf2)
        elif opt.kxl:
            vw_x(None, (), 0, opt.pmf + opt.pmf2)
            for x_ in kc[nvx:]: e.I(x_)
        else: vw_x(None, kc[nvx:], nvx, opt.pmf + opt.pmf2)
        if opt.rpos == 5: e.I(f'buffer_store_dwordx{PW} {vr(SENT,PW)}, v13, {WS}, s43 offen sc1')
        if opt.ad:
            e.I('s_add_u32 s73, s73, 1')
            e.I('s_cmp_eq_u32 s73, 0')
            e.I(f's_cselect_b32 s38, {opt.adup}, 0')
            e.I('s_add_u32 s72, s72, s38')
            e.I(f's_min_u32 s72, s72, {opt.adhi}')
            e.I(f's_cmp_ge_u32 s73, {opt.adn}')
            e.I('s_cselect_b32 s73, 0, s73')
            e.I('s_subb_u32 s72, s72, 0')
            e.I(f's_max_u32 s72, s72, {opt.adlo}')
        TS(e, 8)
        TSflush(e, 's30', 244, 245)
        if opt.dstamp: e.I('s_lshl_b32 s98, s25, 8'); e.I('s_add_u32 s98, s98, s30')
        DSTAMP(e, 2, 's_cmp_eq_u32 s98, 9216')
        if opt.dstamp: e.I('s_lshl_b32 s98, s25, 8'); e.I('s_add_u32 s98, s98, s30')
        DSTAMP(e, 3, 's_cmp_eq_u32 s98, 9218')
        for idx_, st_ in ((6, 2), (7, 62)):
            for o_, off_ in (('clk', 0), ('rt', 2)):
                if opt.dstamp: e.I('s_lshl_b32 s98, s25, 8'); e.I('s_add_u32 s98, s98, s30'); e.I('s_lshl_b32 s99, s20, 16'); e.I('s_add_u32 s98, s98, s99')
                DSTAMP(e, idx_ + off_, f's_cmp_eq_u32 s98, {20*256 + st_}', o_)
        if opt.dstamp: e.I('s_lshl_b32 s98, s25, 8'); e.I('s_add_u32 s98, s98, s30')
        DSTAMP(e, 4, 's_cmp_eq_u32 s98, 9278')
        e.I('s_add_u32 s30, s30, 1')
        e.I('s_cmp_lt_u32 s30, 63')
        e.I(f's_cbranch_scc1 {top}')
        if not slow: e.I('s_branch L_swend')
    e.L('L_swend')
    if opt.dstamp == 1:
        e.I('s_mov_b64 exec, 1')
        for k in range(4):
            e.I(f'v_mov_b32 v238, {48 + 4*k}'); e.I(f'v_mov_b32 v239, s{90+k}')
            e.I('global_atomic_add v238, v239, s[74:75] sc1')
            e.I('s_nop 4')
        e.I('s_mov_b64 exec, -1')
    for sg in range(63 - opt.s62, 64):
        e.I('s_lshl_b32 s38, s20, 6')
        e.I('s_lshl_b32 s39, s22, 2')
        e.I('s_add_u32 s38, s38, s39')
        e.I(f's_add_u32 s38, s38, {FLGOX + sg*512}')
        e.I(f's_add_u32 s46, s62, {OX + (sg % RD)*SEG_QX}')
        e.I('s_add_u32 s56, s46, 4096')
        e.I('s_add_u32 s64, s46, 8192')
        e.I('s_lshl_b32 s39, s22, 10')
        e.I('v_add_u32 v6, s39, v2')
        e.I('s_lshl_b32 s39, s22, 12')
        e.I('v_add_u32 v7, s39, v2')
        e.I('s_lshr_b32 s40, s24, 1')
        e.I('s_lshl_b32 s40, s40, 2')
        e.I('s_add_u32 s40, s40, s22')
        e.I('s_lshl_b32 s40, s40, 10')
        e.I('s_and_b32 s41, s24, 1')
        e.I('s_lshl_b32 s41, s41, 3')
        e.I('s_add_u32 s40, s40, s41')
        e.I('s_mul_i32 s41, s20, 40960')
        e.I('s_add_u32 s40, s40, s41')
        e.I(f's_add_u32 s40, s40, {PX + sg*SEG_PX}')
        e.I('s_add_u32 s41, s40, 20480')
        e.I('s_mul_i32 s43, s20, 5')
        e.I('s_lshr_b32 s44, s24, 1')
        e.I('s_add_u32 s43, s43, s44')
        e.I('s_lshl_b32 s43, s43, 7')
        e.I(f's_add_u32 s43, s43, {HINT2 + 4*(sg - 62)}')
        e.I('v_mov_b32 v3, 0')
        e.I(f'v_mov_b32 v{ONE}, 1')
        if sg == 63 - opt.s62: e.I('s_waitcnt vmcnt(0)')
        TS(e, 0)
        wait_flags(e, 3, 's38', 1, T0, 5, sleep=opt.esleep)
        TS(e, 1)
        order = (0, 6, 1, 7, 2, 8, 3, 9, 4, 10, 5, 11)
        for q in order: e.I(f'buffer_load_dwordx4 {vr(VXF+4*q)}, v2, {WS}, {("s46", "s56", "s64")[q//4]} offen offset:{(q%4)*1024} sc1')
        for n_, q in enumerate(order):
            qt, kk = q // 6, q % 6
            e.I(f's_waitcnt vmcnt({11 - n_})')
            for ct in range(4):
                d = vr(DW + (qt*4+ct)*4)
                e.I(f'{MFMA} {d}, {ar((ct*6+kk)*4)}, {vr(VXF+4*q)}, {0 if kk == 0 else d}')
        TS(e, 2)
        def hint():
            e.I('s_and_b32 s38, s25, 7')
            e.I(f's_cmp_eq_u32 s38, {opt.hwv}')
            e.I('s_cselect_b64 exec, 1, 0')
            e.I(f'buffer_store_dword v{ONE}, v3, {WS}, s43 offen sc1')
            e.I('s_mov_b64 exec, -1')
        if opt.hpos == 2: hint()
        if sg == 63 and opt.s62: e.I('s_barrier')
        for k in range(8): e.I(f'ds_write_b128 v6, {vr(DW+4*k)} offset:{k*4096}')
        e.I('s_waitcnt lgkmcnt(0)')
        e.I('s_barrier')
        for qt in range(2):
            for hh in range(4): e.I(f'ds_read_b128 {vr(KXF+(qt*4+hh)*4)}, v7 offset:{qt*16384 + hh*1024}')
        if opt.hpos == 1: hint()
        for qt in range(2):
            r = KXF + qt*16
            e.I(f's_waitcnt lgkmcnt({4 - 4*qt})')
            for k in range(4):
                e.I(f'v_add_f32 v{r+k}, v{r+k}, v{r+4+k}')
                e.I(f'v_add_f32 v{r+8+k}, v{r+8+k}, v{r+12+k}')
            for k in range(4): e.I(f'v_add_f32 v{r+k}, v{r+k}, v{r+8+k}')
            e.I(f'v_cvt_pk_bf16_f32 v{r+4}, v{r}, v{r+1}')
            e.I(f'v_cvt_pk_bf16_f32 v{r+5}, v{r+2}, v{r+3}')
            e.I(f'buffer_store_dwordx2 {vr(r+4,2)}, v2, {WS}, {("s40", "s41")[qt]} offen sc1')
        TS(e, 3)
        if opt.hpos == 0: hint()
    TSflush(e, '63', 244, 245)
    e.I('s_endpgm')

def role_xw(e):
    OF = 16
    D = 112
    T0 = 160; ONE = 252
    e.I('s_sub_u32 s24, s21, 22')
    srd(e, 8, 66, 6144 * 1280)
    e.I(f's_mul_i32 s28, s20, {768*1280}')
    e.I('s_lshl_b32 s29, s24, 8')
    e.I('s_add_u32 s28, s28, s29')
    e.I('s_add_u32 s29, s28, 128')
    e.I(f'v_lshlrev_b32 v{ONE+1}, 2, v1')
    e.I('s_lshl_b32 s38, s20, 8')
    e.I(f's_add_u32 s38, s38, {FLGQ}')
    if opt.xlate & 1: wait_first(e, T0)
    def ring_touch():
        jobs = []
        for sl in range(RD):
            if sl >= 2: jobs += [(b_ + sl * SEG_QX, 12288, 96) for b_ in (KX, VX, QX)] + [(XP + sl * SEG_XP, 6144, 48), (VM + sl * SEG_VM, 3072, 24)]
            if sl >= 2: jobs += [(OX + (sl - 2) * SEG_QX, 12288, 96)]
        jobs += [(OX + sl * SEG_QX, 12288, 96) for sl in (6, 7)]
        e.I('s_lshl_b32 s40, s20, 2')
        e.I('s_add_u32 s40, s40, s22')
        touch_jobs(e, jobs, 's24', 5, 's40', 16)
    if opt.xlate & 1: ring_touch()
    pass
    load_weights(e, [('s[8:11]', 's28', 0, 768), ('s[8:11]', 's29', 96, 768)], 1280, 256, True, 3, 4)
    e.I(f'v_lshlrev_b32 v{ONE+1}, 2, v1')
    e.I('s_lshl_b32 s38, s20, 2')
    e.I('s_add_u32 s38, s38, s22')
    e.I('s_lshl_b32 s39, s38, 2')
    e.I('v_lshlrev_b32 v3, 7, v1')
    e.I('v_add_u32 v3, s39, v3')
    e.I(f'v_mov_b32 v{ONE}, 1')
    e.I('s_mul_i32 s62, s22, 12288')
    e.I('s_mul_i32 s63, s38, 12288')
    e.I(f's_add_u32 s63, s63, {OX}')
    e.I('s_mul_i32 s64, s20, 40960')
    e.I('s_lshl_b32 s65, s24, 2')
    e.I('s_add_u32 s65, s65, s22')
    e.I('s_lshl_b32 s65, s65, 10')
    e.I('s_add_u32 s64, s64, s65')
    e.I(f's_add_u32 s64, s64, {PX}')
    e.I('s_lshl_b32 s66, s24, 8')
    e.I(f's_add_u32 s66, s66, {FLGPX}')
    def pxflag():
        e.I('s_mov_b64 exec, 3')
        e.I(f'buffer_store_dword v{ONE}, v3, {WS}, s54 offen sc1')
        e.I('s_mov_b64 exec, s[60:61]')
        e.I(f'buffer_store_dword v{ONE}, v6, {WS}, s53 offen sc1')
        e.I('s_mov_b64 exec, -1')
    if not opt.xlate & 1: ring_touch()
    wait_reg(e, T0)
    top, nof, late, nxt_, last = e.lab('Lxt'), e.lab('Lxn'), e.lab('Lxl'), e.lab('Lxx'), e.lab('Lxe')
    e.I('s_lshl_b32 s67, s20, 6')
    e.I('s_lshl_b32 s38, s22, 2')
    e.I('s_add_u32 s67, s67, s38')
    e.I(f's_add_u32 s67, s67, {FLGOX}')
    e.I('s_lshl_b32 s38, s20, 5')
    e.I('s_add_u32 s38, s38, s24')
    e.I('s_lshl_b32 s38, s38, 2')
    e.I('v_mov_b32 v6, s38')
    e.I('v_mov_b32 v4, 0')
    e.I('v_mov_b32 v5, v2')
    def dma(sn):
        e.I(f's_and_b32 s55, {sn}, {RD-1}')
        e.I(f's_mul_i32 s55, s55, {SEG_QX}')
        e.I('s_add_u32 s55, s55, s63')
        e.I(f's_and_b32 s56, {sn}, 1')
        e.I('s_mul_i32 s56, s56, 49152')
        e.I('s_add_u32 s56, s56, s62')
        for m in range(12):
            e.I(f's_add_u32 m0, s56, {m*1024}')
            e.I(f'buffer_load_dwordx4 v2, {WS}, s55 offen sc1 lds')
            if m < 11: e.I('s_add_u32 s55, s55, 1024')
    e.I('s_mov_b32 s30, 0')
    wait_flags(e, 4, 's67', 1, T0, 5, sleep=opt.xsleep)
    dma('s30')
    e.L(top)
    TS(e, 0)
    e.I('s_add_u32 s58, s30, 1')
    e.I(f's_min_u32 s57, s58, {62 - opt.s62}')
    e.I('s_lshl_b32 s57, s57, 9')
    e.I('s_add_u32 s57, s57, s67')
    e.I('s_waitcnt vmcnt(0)')
    e.I(f'buffer_load_dword v{T0}, v4, {WS}, s57 offen sc1')

    e.I('s_cmp_eq_u32 s30, 0')
    e.I(f's_cbranch_scc1 {nof}')
    e.I('s_cmp_lg_u32 s59, 0')
    e.I(f's_cbranch_scc1 {nof}')
    pxflag()
    nof2 = e.lab('Lxm')
    e.I(f's_branch {nof2}')
    e.L(nof)
    for _ in range(2): e.I(f'buffer_load_dword v{T0+1}, v4, {WS}, s57 offen sc1')
    e.L(nof2)
    e.I('s_barrier')
    TS(e, 1)
    e.I(f's_mul_i32 s50, s30, {SEG_PX}')
    e.I('s_add_u32 s50, s50, s64')
    e.I('s_add_u32 s51, s50, 20480')
    e.I('s_mul_i32 s54, s30, 1280')
    e.I('s_add_u32 s54, s54, s66')
    e.I('s_and_b32 s53, s30, 3')
    e.I('s_lshl_b32 s53, s53, 10')
    e.I(f's_add_u32 s53, s53, {HINT}')
    e.I(f's_cmp_ge_u32 s30, {opt.cwarm}')
    e.I('s_cselect_b32 s60, 1, 0')
    e.I('s_cmp_eq_u32 s22, 0')
    e.I('s_cselect_b32 s60, s60, 0')
    e.I('s_mov_b32 s61, 0')
    TS(e, 2)
    PF = 6
    def rd(kk):
        hl, p = kk // 6, kk % 6
        for qt in range(2):
            e.I(f'ds_read_b128 {vr(OF + ((2*kk+qt) % 24)*4)}, v5 offset:{hl*12288 + (qt*6+p)*1024}')
    for kk in range(PF): rd(kk)
    for kk in range(24):
        nxt = min(24, kk + PF) - (kk + 1)
        e.I(f's_waitcnt lgkmcnt({2*nxt})')
        for qt in range(2):
            for b in range(2):
                d = vr(D + 4*(qt*2+b))
                e.I(f'{MFMA} {d}, {ar(96*b+4*kk)}, {vr(OF + ((2*kk+qt) % 24)*4)}, {0 if kk == 0 else d}')
        if kk + PF < 24: rd(kk + PF)
        if kk == 4:
            e.I('s_waitcnt vmcnt(2)')
            e.I(f'v_readfirstlane_b32 s59, v{T0}')
            e.I(f's_cmp_eq_u32 s30, {62 - opt.s62}')
            e.I('s_cselect_b32 s59, 0, s59')
            e.I('s_cmp_eq_u32 s59, 0')
            e.I(f's_cbranch_scc1 {late}')
            dma('s58')
            e.L(late)
        if kk == 16: e.I(f'buffer_load_dword v{T0}, v4, {WS}, s57 offen sc1')
    sc = e.lab('Lxs')
    e.I('s_cmp_lg_u32 s59, 0')
    e.I(f's_cbranch_scc1 {sc}')
    e.I(f's_cmp_eq_u32 s30, {62 - opt.s62}')
    e.I(f's_cbranch_scc1 {sc}')
    e.I('s_waitcnt vmcnt(0)')
    e.I(f'v_readfirstlane_b32 s59, v{T0}')
    e.I('s_cmp_eq_u32 s59, 0')
    e.I(f's_cbranch_scc1 {sc}')
    dma('s58')
    e.L(sc)
    for qt, so in enumerate(('s50', 's51')):
        for k in range(4): e.I(f'v_cvt_pk_bf16_f32 v{D+16+4*qt+k}, v{D+8*qt+2*k}, v{D+8*qt+2*k+1}')
        e.I(f'buffer_store_dwordx4 {vr(D+16+4*qt)}, v2, {WS}, {so} offen sc1')
    e.I('v_xor_b32 v5, 49152, v5')
    TS(e, 3)
    TSflush(e, 's30')
    e.I(f's_cmp_eq_u32 s30, {62 - opt.s62}')
    e.I(f's_cbranch_scc1 {last}')
    e.I('s_cmp_lg_u32 s59, 0')
    e.I('s_mov_b32 s59, 0')
    e.I(f's_cbranch_scc1 {nxt_}')
    e.I(f'buffer_load_dword v{T0}, v4, {WS}, s57 offen sc1')
    e.I('s_waitcnt vmcnt(0)')
    e.I(f'v_readfirstlane_b32 s38, v{T0}')
    e.I('s_cmp_lg_u32 s38, 0')
    sl2 = e.lab('Lxq')
    e.I(f's_cbranch_scc1 {sl2}')
    pxflag()
    e.I('s_mov_b32 s59, 1')
    wait_flags(e, 4, 's57', 1, T0, 5, sleep=opt.xsleep)
    e.L(sl2)
    dma('s58')
    e.L(nxt_)
    e.I('s_mov_b32 s30, s58')
    e.I(f's_branch {top}')
    e.L(last)
    e.I('s_waitcnt vmcnt(0)')
    pxflag()
    if opt.wb & 1:
        e.I('s_cmp_lg_u32 s21, 22'); e.I('s_cbranch_scc1 L_end'); e.I('s_cmp_lg_u32 s22, 0'); e.I('s_cbranch_scc1 L_end')
        e.I('buffer_wbl2 sc1'); e.I('s_waitcnt vmcnt(0)')
    e.I('s_endpgm')

def role_att(e):
    fl = ''
    KF, QF, VF = 0, 48, 96
    XPF = 16
    SA, SB, PA_, PB_ = 40, 48, 60, 64
    DO, OB = 72, 136
    T0 = 226
    C0, C1 = 232, 236
    ONE = 252
    e.I('s_sub_u32 s25, s21, 27')
    e.I('s_lshl_b32 s26, s20, 2')
    e.I('s_add_u32 s26, s26, s22')
    e.I(f's_mov_b32 s52, {SC_L2E:#x}'); e.I(f's_mov_b32 s53, {SC_L2E | 0x80000000:#x}')
    e.I(f'v_lshlrev_b32 v{ONE+1}, 2, v1')
    e.I('s_lshl_b32 s38, s22, 2')
    e.I(f'v_mov_b32 v{ONE+2}, s38')
    e.I(f'v_mov_b32 v{ONE}, 1')
    lane_ig(e, 14, 15)
    e.I(f'v_mov_b32 v3, {NEG_BIG:#x}')
    e.I('v_cmp_gt_u32 vcc, 32, v1')
    e.I(f'v_cndmask_b32 v{C0}, 0, v3, vcc')
    for k in range(1, 4): e.I(f'v_mov_b32 v{C0+k}, v{C0}')
    e.I('v_lshlrev_b32 v5, 2, v15')
    for r in range(4):
        e.I(f'v_add_u32 v6, {r}, v5')
        e.I('v_cmp_gt_u32 vcc, v6, v14')
        e.I(f'v_cndmask_b32 v{C1+r}, 0, v3, vcc')
    e.I('s_mul_i32 s58, s26, 6144')
    e.I('s_lshl_b32 s59, s22, 14')
    e.I('v_and_b32 v4, 3, v1')
    e.I('v_lshlrev_b32 v4, 8, v4')
    e.I('v_bfe_u32 v5, v1, 2, 3')
    e.I('v_lshl_add_u32 v5, v5, 4, v4')
    e.I('v_add_u32 v5, s59, v5')
    e.I('v_lshrrev_b32 v6, 2, v1')
    e.I('v_lshl_add_u32 v4, v6, 4, v4')
    e.I('v_add_u32 v4, s59, v4')
    wait_reg(e, T0)
    e.I('v_lshrrev_b32 v12, 2, v1')
    e.I('v_lshlrev_b32 v12, 8, v12')
    e.I('v_and_b32 v13, 3, v1')
    e.I('v_lshl_add_u32 v12, v13, 2, v12')
    e.I('s_lshl_b32 s38, s20, 4')
    e.I('v_add_u32 v12, s38, v12')
    e.I('s_lshl_b32 s60, s26, 6')
    e.I(f's_add_u32 s60, s60, {FLGQ}')
    if opt.rpos == 9:
        e.I('v_and_b32 v7, 15, v1')
        e.I('v_lshlrev_b32 v7, 4, v7')
        e.I('v_bfe_u32 v8, v1, 4, 1')
        e.I('v_lshl_add_u32 v7, v8, 13, v7')
        e.I('v_lshrrev_b32 v8, 5, v1')
        e.I('v_lshl_add_u32 v7, v8, 15, v7')
        e.I('s_lshr_b32 s61, s22, 1')
        e.I('s_lshl_b32 s61, s61, 14')
        e.I('s_and_b32 s38, s22, 1')
        e.I('s_lshl_b32 s38, s38, 12')
        e.I('s_add_u32 s61, s61, s38')
        e.I('s_lshl_b32 s38, s20, 9')
        e.I('s_add_u32 s61, s61, s38')
        e.I(f's_add_u32 s61, s61, {PART}')
        for k in range(4): e.I(f'v_mov_b32 v{240+k}, -1')
        e.I('v_mov_b32 v8, 48'); e.I('v_mov_b32 v9, 2')
        e.I('s_add_u32 s38, s25, 1')
        e.I(f's_mul_i32 s48, s38, {PART_SLOT}')
        e.I('s_add_u32 s48, s48, s61')
        for q in range(5):
            e.I(f'buffer_store_dwordx4 v[240:243], v7, {WS}, s48 offen sc1')
            if q < 4: e.I('s_add_u32 s48, s48, 65536')
        e.I('s_waitcnt vmcnt(0)')
        e.I('s_lshl_b32 s38, s38, 11')
        e.I('s_add_u32 s38, s38, s60')
        set_flag(e, 8, 's38', 9, ' sc1')
    e.I('s_cmp_lg_u32 s23, 0')
    e.I('s_cbranch_scc1 L_atts')
    for slow in (False, True):
        fl = ' sc1' if slow else ''
        if slow: e.L('L_atts')
        top = e.lab('Lat')
        e.I('s_mov_b32 s30, s25')
        e.L(top)
        TS(e, 0)
        e.I('s_max_u32 s51, s30, 2')
        e.I('s_lshl_b32 s51, s51, 11')
        e.I('s_add_u32 s51, s51, s60')
        e.I(f's_and_b32 s42, s30, {RD-1}')
        e.I(f's_mul_i32 s40, s42, {SEG_QX}')
        e.I('s_lshl_b32 s41, s58, 1')
        e.I('s_add_u32 s40, s40, s41')
        e.I(f's_mul_i32 s41, s42, {SEG_XP}')
        e.I('s_add_u32 s41, s41, s58')
        def backp():
            nbp = e.lab('Lab')
            e.I(f's_cmp_lt_u32 s30, {RD}')
            e.I(f's_cbranch_scc1 {nbp}')
            e.I(f's_sub_u32 s50, s30, {RD}')
            e.I('s_mul_i32 s50, s50, 1280')
            e.I(f's_add_u32 s50, s50, {FLGPX}')
            wait_flags(e, 12, 's50', 0xfffff, T0, 14, sleep=16)
            e.L(nbp)
        if not opt.abp: backp()
        wait_flags(e, ONE + 1, 's51', 0xfff, T0, 6, sleep=opt.asleep)
        def loads(dst, n, sbase, add):
            e.I(f's_add_u32 s48, {sbase}, {add}')
            for q in range(n):
                if q and q % 4 == 0: e.I('s_add_u32 s48, s48, 4096')
                e.I(f'buffer_load_dwordx4 {dst(q)}, v2, {WS}, s48 offen offset:{(q%4)*1024} sc1')
        e.I(f's_add_u32 s48, s40, {VX}')
        for q in range(12):
            e.I(f's_add_u32 m0, s59, {q*1024}')
            e.I(f'buffer_load_dwordx4 v2, {WS}, s48 offen sc1 lds')
            e.I('s_add_u32 s48, s48, 1024')
        loads(lambda q: ar(KF + 4*q), 12, 's40', KX)
        loads(lambda q: ar(QF + 4*q), 12, 's40', QX)
        e.I('s_add_u32 s51, s30, 2')
        e.I('s_lshl_b32 s51, s51, 11')
        e.I('s_add_u32 s51, s51, s60')
        e.I('s_waitcnt vmcnt(24)')
        for T in range(12):
            for rt in range(2):
                e.I(f'ds_read_b64_tr_b16 {ar(VF+6*T+2+2*rt,2)}, v4 offset:{rt*6144 + (T>>1)*1024 + (T&1)*8}')
        if opt.abp: backp()
        e.I('s_waitcnt vmcnt(0)')
        for p in range(6):
            e.I(f'{MFMA} {vr(SA+4)}, {ar(KF+4*p)}, {ar(QF+4*p)}, {vr(C1) if p == 0 else vr(SA+4)}')
            e.I(f'{MFMA} {vr(SB+4)}, {ar(KF+4*p)}, {ar(QF+24+4*p)}, {0 if p == 0 else vr(SB+4)}')
            e.I(f'{MFMA} {vr(SB+8)}, {ar(KF+24+4*p)}, {ar(QF+24+4*p)}, {vr(C1) if p == 0 else vr(SB+8)}')
        wait_flags(e, ONE + 1, 's51', 0xfff, T0, 6, sleep=opt.asleep)
        TS(e, 1)
        loads(lambda q: vr(XPF + 4*q), 6, 's41', XP)
        e.I('s_lshr_b32 s42, s41, 1')
        e.I(f's_add_u32 s48, s42, {VM}')
        for q in range(3):
            e.I(f's_add_u32 m0, s59, {12288 + q*1024}')
            e.I(f'buffer_load_dwordx4 v2, {WS}, s48 offen sc1 lds')
            e.I('s_add_u32 s48, s48, 1024')
        nr = 0
        if opt.rpos == 9:
            nr = 5
            e.I('s_add_u32 s48, s30, 3')
            e.I('s_and_b32 s48, s48, 3')
            e.I(f's_mul_i32 s48, s48, {PART_SLOT}')
            e.I('s_add_u32 s48, s48, s61')
            e.I('s_cmp_lt_u32 s30, 60')
            e.I('s_cselect_b64 exec, -1, 0')
            for q in range(5):
                e.I(f'buffer_store_dwordx4 v[240:243], v7, {WS}, s48 offen sc1')
                if q < 4: e.I('s_add_u32 s48, s48, 65536')
            e.I('s_mov_b64 exec, -1')
        for p in range(6):
            e.I(f's_waitcnt vmcnt({8-p+nr})')
            e.I(f'{MFMA} {vr(SA)}, {vr(XPF+4*p)}, {ar(QF+4*p)}, {vr(C0) if p == 0 else vr(SA)}')
            e.I(f'{MFMA} {vr(SB)}, {vr(XPF+4*p)}, {ar(QF+24+4*p)}, {vr(C0) if p == 0 else vr(SB)}')
        TS(e, 2)
        e.I('s_waitcnt vmcnt(0)')
        if opt.rpos == 9:
            e.I('s_add_u32 s48, s51, 2048')
            e.I('s_cmp_lt_u32 s30, 61')
            e.I('s_cselect_b64 exec, 1, 0')
            e.I(f'buffer_store_dword v9, v8, {WS}, s48 offen{fl}')
            e.I('s_mov_b64 exec, -1')
        for T in range(12):
            kk = T >> 1
            e.I(f'ds_read_b64_tr_b16 {ar(VF+6*T,2)}, v5 offset:{12288 + (kk % 3)*1024 + (kk // 3)*128 + (T&1)*8}')
        for x_ in softmax_list(SA, 8, PA_, T0): e.I(x_)
        e.I(f's_add_u32 s48, s40, {OX}')
        e.I('s_add_u32 s49, s48, 4096')
        e.I('s_add_u32 s50, s48, 8192')
        e.I('s_waitcnt lgkmcnt(0)')
        def fin(qt, p):
            d = DO + 8 * (p + (2 if qt else 0) * 3) % 64; o = OB + 4 * (qt*6 + p); q = qt*6 + p
            return [f'v_cvt_pk_bf16_f32 v{o+k}, v{d+2*k}, v{d+2*k+1}' for k in range(4)] + \
                   [f'buffer_store_dwordx4 {vr(o)}, v2, {WS}, {("s48", "s49", "s50")[q//4]} offen offset:{(q%4)*1024}{fl}']
        smb = softmax_list(SB, 12, PB_, T0)
        for T in range(12):
            e.I(f'{MFMA} {vr(DO+4*T)}, {ar(VF+6*T)}, {vr(PA_)}, 0')
            for _ in range(3): e.I(smb.pop(0))
        outs = [x_ for p in range(6) for x_ in fin(0, p)]
        while smb:
            e.I(smb.pop(0)); e.I(smb.pop(0)) if smb else None
            if outs: e.I(outs.pop(0))
        for x_ in outs: e.I(x_)
        for p in range(6):
            d = DO + 8 * (p + 6) % 64
            for t in range(2): e.I(f'{MFMA16} {vr(d+4*t)}, {ar(VF+6*(2*p+t),2)}, {vr(PB_,2)}, 0')
            for t in range(2): e.I(f'{MFMA} {vr(d+4*t)}, {ar(VF+6*(2*p+t)+2)}, {vr(PB_+2)}, {vr(d+4*t)}')
            if p > 1:
                for x_ in fin(1, p - 2): e.I(x_)
        for p in (4, 5):
            for x_ in fin(1, p): e.I(x_)
        e.I('s_lshl_b32 s50, s30, 3')
        e.I('s_add_u32 s50, s50, s20')
        e.I('s_lshl_b32 s50, s50, 6')
        e.I(f's_add_u32 s50, s50, {FLGOX}')
        e.I('s_waitcnt vmcnt(0)')
        set_flag(e, ONE + 2, 's50', ONE, fl)
        TS(e, 3)
        TSflush(e, 's30', 230, 231)
        e.I('s_add_u32 s30, s30, 2')
        e.I('s_cmp_lt_u32 s30, 64')
        e.I(f's_cbranch_scc1 {top}')
        e.I('s_endpgm')

F_LX, F_LH = 0, 98304
def role_ffn(e):
    ACC2 = 0
    ACC1 = 16
    BF = 48
    HP = 80
    WR = 96
    NW = 40
    e.I('s_sub_u32 s26, s21, 29')
    e.I('s_mul_i32 s25, s20, 3')
    e.I('s_add_u32 s26, s26, s25')
    e.I('s_mov_b32 s24, s26')
    srd(e, 8, 56, 640 * 3072); srd(e, 12, 58, 1536 * 1280)
    if opt.xlate & 4: wait_first(e, 16, opt.fwait)
    transpose_w(e, 's26')
    e.I('s_waitcnt vmcnt(0)')
    e.I('s_barrier')
    count_up(e, 3, D_TR)
    wait_count(e, 3, D_TR, 24, 16)
    if opt.urg: wait_count(e, 3, D_W, 80, 16)
    wait_reg(e, 16, 32)
    e.L('L_ffn_task')
    e.I('s_lshl_b32 s38, s24, 2')
    e.I('s_add_u32 s38, s38, s22')
    e.I('s_mul_i32 s39, s38, 20480')
    e.I(f's_add_u32 s39, s39, {XN}')
    e.I('s_mul_i32 s40, s22, 20480')
    for m in range(20):
        e.I(f's_add_u32 m0, s40, {m*1024}')
        e.I(f'buffer_load_dwordx4 v2, {WS}, s39 offen lds')
        e.I('s_add_u32 s39, s39, 1024')
    for k in range(160): e.I(f'v_accvgpr_write_b32 a{k}, 0')
    e.I('s_mul_i32 s41, s22, 40960')
    e.I(f's_add_u32 s41, s41, {W1F}')
    e.I(f's_mul_i32 s42, s22, {10*48*1024}')
    e.I(f's_add_u32 s42, s42, {W2F}')
    e.I('v_add_u32 v3, 20480, v2')
    for u in range(10):
        e.I(f's_mov_b32 s54, {u*48*1024}')
        e.I(f'v_add_u32 v{4+u}, s54, v2')
    e.I(f'v_add_u32 v14, {F_LH}, v2')
    e.I('s_lshl_b32 s38, s22, 12')
    e.I('v_add_u32 v15, s38, v14')
    def wload(idx, adv):
        dst = vr(WR + (idx % NW) * 4)
        if idx < 40:
            kk, u = idx // 2, idx % 2
            e.I(f's_add_u32 s45, {adv[0]}, {(kk//4)*4096}')
            e.I(f'buffer_load_dwordx4 {dst}, v{2+u}, {WS}, s45 offen offset:{(kk%4)*1024}{" nt" if opt.ffnnt else ""}')
        else:
            pp, u = (idx - 40) // 10, (idx - 40) % 10
            e.I(f'buffer_load_dwordx4 {dst}, v{4+u}, {WS}, {adv[1]} offen offset:{pp*1024}{" nt" if opt.ffnnt else ""}')
    for idx in range(opt.ffd): wload(idx, ('s41', 's42'))
    e.I(f's_waitcnt vmcnt({opt.ffd})')
    e.I('s_barrier')
    top = e.lab('Lft')
    TS(e, 0)
    e.I('s_mov_b32 s30, 0')
    e.L(top)
    e.I('s_cmp_lt_u32 s30, 11')
    e.I('s_cselect_b32 s46, 163840, 0')
    e.I('s_cselect_b32 s47, 4096, 0')
    e.I('s_add_u32 s43, s41, s46')
    e.I('s_add_u32 s44, s42, s47')
    D = opt.ffd
    def pref(idx):
        j = idx + D
        if j < 80: wload(j, ('s41', 's42'))
        else: wload(j - 80, ('s43', 's44'))
    def rdx(kk):
        for rt in range(4):
            e.I(f'ds_read_b128 {vr(BF + ((kk%2)*4+rt)*4)}, v{2 if rt < 3 else 3} offset:{(rt if rt < 3 else 2)*20480 + kk*1024}')
    rdx(0)
    for kk in range(20):
        if kk + 1 < 20: rdx(kk + 1)
        e.I(f's_waitcnt vmcnt({D-2}) lgkmcnt({4 if kk+1 < 20 else 0})')
        for u in range(2):
            idx = 2 * kk + u
            for rt in range(4):
                d = vr(ACC1 + (u*4+rt)*4)
                e.I(f'{MFMA} {d}, {vr(WR+(idx%NW)*4)}, {vr(BF+((kk%2)*4+rt)*4)}, {0 if kk == 0 else d}')
        pref(2 * kk); pref(2 * kk + 1)
    for rt in range(4):
        for u in range(2):
            d = ACC1 + (u*4+rt)*4
            for k in range(4): e.I(f'v_max_f32 v{d+k}, 0, v{d+k}')
            e.I(f'v_cvt_pk_bf16_f32 v{HP+rt*4+2*u}, v{d}, v{d+1}')
            e.I(f'v_cvt_pk_bf16_f32 v{HP+rt*4+2*u+1}, v{d+2}, v{d+3}')
        e.I(f'ds_write_b128 v15, {vr(HP+rt*4)} offset:{rt*1024}')
    e.I('s_waitcnt lgkmcnt(0)')
    e.I('s_barrier')
    def rdh(pp):
        for rt in range(4):
            e.I(f'ds_read_b128 {vr(BF + ((pp%2)*4+rt)*4)}, v14 offset:{pp*4096 + rt*1024}')
    rdh(0)
    for pp in range(4):
        if pp + 1 < 4: rdh(pp + 1)
        for u in range(10):
            idx = 40 + pp * 10 + u
            w = f's_waitcnt vmcnt({D-1})'
            if u == 0: w += f' lgkmcnt({4 if pp+1 < 4 else 0})'
            e.I(w)
            for rt in range(4):
                d = ar(ACC2 + (u*4+rt)*4)
                e.I(f'{MFMA} {d}, {vr(WR+(idx%NW)*4)}, {vr(BF+((pp%2)*4+rt)*4)}, {d}')
            pref(idx)
    e.I('v_xor_b32 v14, 16384, v14')
    e.I('v_xor_b32 v15, 16384, v15')
    e.I('s_mov_b32 s41, s43')
    e.I('s_mov_b32 s42, s44')
    e.I('s_add_u32 s30, s30, 1')
    e.I('s_cmp_lt_u32 s30, 12')
    e.I(f's_cbranch_scc1 {top}')
    e.I('s_waitcnt vmcnt(0)')
    TS(e, 1)
    e.I('v_lshlrev_b32 v3, 3, v1')
    e.I(f's_mul_i32 s38, s24, {4*40*512}')
    e.I(f's_mul_i32 s39, s22, {10*512}')
    e.I('s_add_u32 s38, s38, s39')
    e.I(f's_add_u32 s38, s38, {G_}')
    e.I(f's_mov_b32 s52, {f2u(-1.4426950408889634):#x}')
    for rt in range(4):
        e.I(f's_add_u32 s39, s38, {rt*40*512}')
        e.I('s_add_u32 s40, s39, 4096')
        for u in range(10):
            t = 16 + ((rt*10+u) % 4) * 16
            a0 = ACC2 + (u*4+rt)*4
            for k in range(4): e.I(f'v_accvgpr_read_b32 v{t+k}, a{a0+k}')
            e.I(f'v_cvt_pk_bf16_f32 v{t+4}, v{t}, v{t+1}')
            e.I(f'v_cvt_pk_bf16_f32 v{t+5}, v{t+2}, v{t+3}')
            e.I(f'v_lshlrev_b32 v{t}, 16, v{t+4}')
            e.I(f'v_and_b32 v{t+1}, 0xffff0000, v{t+4}')
            e.I(f'v_lshlrev_b32 v{t+2}, 16, v{t+5}')
            e.I(f'v_and_b32 v{t+3}, 0xffff0000, v{t+5}')
            for k in range(4): e.I(f'v_mul_f32 v{t+4+k}, s52, v{t+k}')
            for k in range(4): e.I(f'v_exp_f32 v{t+4+k}, v{t+4+k}')
            for k in range(4): e.I(f'v_add_f32 v{t+4+k}, 1.0, v{t+4+k}')
            for k in range(4): e.I(f'v_rcp_f32 v{t+4+k}, v{t+4+k}')
            for k in range(4): e.I(f'v_mul_f32 v{t+k}, v{t+k}, v{t+4+k}')
            e.I(f'v_cvt_pk_bf16_f32 v{t+8}, v{t}, v{t+1}')
            e.I(f'v_cvt_pk_bf16_f32 v{t+9}, v{t+2}, v{t+3}')
            e.I(f'buffer_store_dwordx2 {vr(t+8,2)}, v3, {WS}, {"s39" if u < 8 else "s40"} offen offset:{(u%8)*512} sc1')
    e.I('s_waitcnt vmcnt(0)')
    TS(e, 2)
    if opt.ts: e.I('s_lshr_b32 s50, s24, 3'); e.I('s_add_u32 s50, s50, 64')
    TSflush(e, 's50')
    e.I('s_barrier')
    e.I('s_cmp_lg_u32 s22, 0')
    e.I('s_cbranch_scc1 L_ffn_nf')
    e.I('v_mov_b32 v4, 1')
    e.I('s_lshl_b32 s38, s24, 2')
    e.I('v_mov_b32 v5, s38')
    e.I(f's_mov_b32 s39, {FLGG}')
    set_flag(e, 5, 's39', 4, ' sc1')
    e.I('s_waitcnt vmcnt(0)')
    e.L('L_ffn_nf')
    e.I('s_cmp_ge_u32 s26, 8')
    e.I(f's_cbranch_scc1 {"L_end" if opt.nocmb else "L_cmb"}')
    e.I('s_add_u32 s24, s24, 24')
    e.I('s_cmp_lt_u32 s24, 32')
    e.I('s_cbranch_scc1 L_ffn_task')
    e.I('s_endpgm')

def role_cmb(e):
    PXR = 16
    GR = 144
    XR_ = 152
    T0 = 160
    e.I('s_sub_u32 s24, s26, 8')
    e.I('s_lshl_b32 s24, s24, 2')
    e.I('s_add_u32 s30, s24, s22')
    e.I(f's_mov_b32 s33, {opt.qc or 1280}')
    e.L('L_cmb2')
    srd(e, 8, 68, 2048 * 1280)
    srd(e, 12, 70, 2048 * 1280)
    e.I('v_lshlrev_b32 v3, 2, v1')
    e.I('v_lshlrev_b32 v4, 3, v1')
    e.I('v_mov_b32 v6, 0')
    lane_ig(e, 14, 15)
    e.I('v_mul_u32_u24 v5, 1280, v14')
    e.I('v_lshl_add_u32 v5, v15, 3, v5')
    e.I('s_mov_b32 s49, 0')
    e.I('s_mov_b32 s52, 0x3f80'); e.I('s_mov_b32 s53, 0x3f800000')
    e.I('v_lshrrev_b32 v7, 4, v1')
    e.I('v_mul_u32_u24 v7, 40960, v7')
    e.I('v_lshl_add_u32 v7, v14, 7, v7')
    e.I(f'v_add_u32 v8, {4*40960}, v7')
    top = e.lab('Lct')
    if opt.t63:
        e.I('s_cmp_eq_u32 s33, 0')
        e.I(f's_cbranch_scc1 {top}')
        e.I('s_add_u32 s38, s30, 1216')
        e.I('s_mul_i32 s39, s38, 3277')
        e.I('s_lshr_b32 s39, s39, 16')
        e.I('s_mul_i32 s40, s39, 20')
        e.I('s_sub_u32 s40, s38, s40')
        e.I(f's_mul_i32 s43, s39, {SEG_PX}')
        e.I('s_lshl_b32 s40, s40, 11')
        e.I('s_add_u32 s43, s43, s40')
        e.I(f's_add_u32 s43, s43, {PX}')
        for k in range(2): e.I(f'buffer_load_dword v{T0}, v{7+k}, {WS}, s43 offen sc1')
    e.L(top)
    TS(e, 0)
    e.I('s_mul_i32 s38, s30, 3277')
    e.I('s_lshr_b32 s38, s38, 16')
    e.I('s_mul_i32 s39, s38, 20')
    e.I('s_sub_u32 s39, s30, s39')
    e.I('s_cmp_ge_u32 s39, 10')
    e.I('s_cselect_b32 s40, 1, 0')
    e.I('s_mul_i32 s41, s40, 10')
    e.I('s_sub_u32 s41, s39, s41')
    gok = e.lab('Lcg')
    e.I('s_cmp_lg_u32 s49, 0')
    e.I(f's_cbranch_scc1 {gok}')
    e.I(f's_mov_b32 s42, {FLGG}')
    e.I('s_mov_b32 exec_hi, 0')
    e.I(f'buffer_load_dword v{T0}, v3, {WS}, s42 offen sc1')
    e.I('s_waitcnt vmcnt(0)')
    e.I(f'v_cmp_eq_u32 vcc, 0, v{T0}')
    e.I('s_mov_b64 exec, -1')
    e.I('s_cmp_eq_u32 vcc_lo, 0')
    e.I('s_cselect_b32 s49, 1, 0')
    e.I(f's_cbranch_scc1 {gok}')
    e.I('s_lshr_b32 s42, s38, 1')
    e.I('s_lshl_b32 s42, s42, 2')
    e.I(f's_add_u32 s42, s42, {FLGG}')
    wait_flags(e, 6, 's42', 1, T0, 7, sleep=32)
    e.L(gok)
    e.I(f's_mul_i32 s43, s38, {SEG_PX}')
    e.I('s_mul_i32 s44, s40, 20480')
    e.I('s_add_u32 s43, s43, s44')
    e.I('s_lshl_b32 s44, s41, 11')
    e.I('s_add_u32 s43, s43, s44')
    e.I(f's_add_u32 s43, s43, {PX}')
    e.I('s_lshl_b32 s45, s38, 1')
    e.I('s_add_u32 s45, s45, s40')
    e.I('s_mul_i32 s46, s45, 20480')
    e.I('s_lshr_b32 s47, s41, 1')
    e.I('s_lshl_b32 s47, s47, 2')
    e.I('s_and_b32 s48, s41, 1')
    e.I('s_add_u32 s44, s47, s48')
    e.I('s_lshl_b32 s47, s44, 10')
    e.I('s_add_u32 s47, s47, s46')
    e.I(f's_add_u32 s47, s47, {G_}')
    e.I('s_lshl_b32 s48, s44, 6')
    e.I('s_add_u32 s48, s48, s46')
    TO = (0, 4, 1, 5)
    for t in range(4):
        e.I(f'buffer_load_dwordx2 {vr(GR+2*t,2)}, v4, {WS}, s47 offen offset:{TO[t]*512} sc1')
        e.I(f'buffer_load_dwordx2 {vr(XR_+2*t,2)}, v5, s[8:11], s48 offen offset:{TO[t]*32}')
    c1, c2 = e.lab('Lc1'), e.lab('Lc2')
    e.I('s_mul_i32 s50, s38, 10')
    e.I('s_and_b32 s44, s41, 14')
    e.I('s_add_u32 s50, s50, s44')
    e.I('s_lshl_b32 s50, s50, 7')
    e.I(f's_add_u32 s50, s50, {FLGPX}')
    e.I(f's_cmp_ge_u32 s38, {opt.cwarm}')
    e.I(f's_cbranch_scc1 {c1}')
    e.I(f's_add_u32 s42, s38, {opt.clag}')
    e.I('s_lshl_b32 s42, s42, 3')
    e.I('s_add_u32 s42, s42, s20')
    e.I('s_lshl_b32 s42, s42, 6')
    e.I(f's_add_u32 s42, s42, {FLGOX}')
    wait_flags(e, 6, 's42', 1, T0, 9, sleep=opt.lsleep)
    wait_flags(e, 3, 's50', -1, T0, 8, sleep=opt.csleep)
    e.I(f's_branch {c2}')
    e.L(c1)
    e.I('s_and_b32 s42, s38, 3')
    e.I('s_lshl_b32 s42, s42, 3')
    e.I('s_add_u32 s42, s42, s20')
    e.I('s_lshl_b32 s42, s42, 7')
    e.I('s_lshl_b32 s44, s44, 1')
    e.I('s_add_u32 s42, s42, s44')
    e.I(f's_add_u32 s42, s42, {HINT}')
    e.I('s_mul_i32 s51, s20, 5')
    e.I('s_lshr_b32 s44, s41, 1')
    e.I('s_add_u32 s51, s51, s44')
    e.I('s_lshl_b32 s51, s51, 7')
    e.I(f's_add_u32 s51, s51, {HINT2}')
    e.I('s_and_b32 s44, s38, 1')
    e.I('s_lshl_b32 s44, s44, 2')
    e.I('s_add_u32 s51, s51, s44')
    e.I(f's_cmp_ge_u32 s38, {63 - opt.s62}')
    e.I('s_cselect_b32 s42, s51, s42')
    wait_flags(e, 6, 's42', 1, T0, 9, sleep=opt.hsleep)
    e.I(f's_cmp_ge_u32 s38, {63 - opt.s62}')
    e.I(f's_cbranch_scc1 {c2}')
    wait_flags(e, 3, 's50', -1, T0, 8, sleep=opt.c2sleep)
    e.L(c2)
    TS(e, 1)
    RAW = PXR + 32
    def ld(x):
        for t in range(2):
            if not opt.cdiag & 4: e.I(f'buffer_load_dwordx4 {vr(RAW+(x*2+t)*4)}, v2, {WS}, s43 offen offset:{t*1024} sc1')
        if x < 7: e.I('s_add_u32 s43, s43, 40960')
    def body(depth):
        for x in range(min(depth, 8)): ld(x)
        for x in range(8):
            left = min(depth - 1, 7 - x)
            e.I(f's_waitcnt vmcnt({left*2})')
            if x + depth < 8: ld(x + depth)
            for k in range(16): e.I(f'v_dot2c_f32_bf16 v{PXR+k}, {("s52", "s53")[k&1]}, v{RAW+x*8+(k>>1)}')
        e.I('s_nop 2')
    for k in range(16): e.I(f'v_mov_b32 v{PXR+k}, 0')
    fast, join = e.lab('Lcf'), e.lab('Lcj')
    e.I('s_cmp_ge_u32 s38, 61')
    e.I(f's_cbranch_scc1 {fast}')
    body(opt.cdepth)
    e.I(f's_branch {join}')
    e.L(fast)
    f2, pl_, pk_ = e.lab('Lcg'), e.lab('Lcp'), e.lab('Lck')
    e.I(f's_cmp_lt_u32 s38, {63 - opt.s62}')
    e.I(f's_cbranch_scc1 {f2}')
    e.I(f's_mov_b32 s31, {TMO}')
    e.I('s_mov_b32 s51, s43')
    e.L(pl_)
    e.I('s_mov_b32 s43, s51')
    for x in range(8): ld(x)
    e.I('s_waitcnt vmcnt(0)')
    check_sent(e, range(RAW, RAW + 64), T0, T0 + 1)
    e.I(f's_cbranch_vccz {pk_}')
    e.I('s_sub_u32 s31, s31, 1')
    e.I(f's_cbranch_scc0 {pl_}')
    e.I('s_mov_b32 s31, 8')
    e.I('s_branch L_fail')
    e.L(pk_)
    for x in range(8):
        for k in range(16): e.I(f'v_dot2c_f32_bf16 v{PXR+k}, {("s52", "s53")[k&1]}, v{RAW+x*8+(k>>1)}')
    e.I('s_nop 2')
    e.I(f's_branch {join}')
    e.L(f2)
    body(8)
    e.L(join)
    TS(e, 3)
    for t in range(4):
        b = PXR + 4 * t; u = T0 + 8 * (t % 2)
        e.I(f'v_cvt_pk_bf16_f32 v{u}, v{b}, v{b+1}')
        e.I(f'v_cvt_pk_bf16_f32 v{u+1}, v{b+2}, v{b+3}')
        for h_ in range(2):
            e.I(f'v_lshlrev_b32 v{b+2*h_}, 16, v{u+h_}')
            e.I(f'v_and_b32 v{b+2*h_+1}, 0xffff0000, v{u+h_}')
            e.I(f'v_lshlrev_b32 v{u+2+2*h_}, 16, v{GR+2*t+h_}')
            e.I(f'v_and_b32 v{u+3+2*h_}, 0xffff0000, v{GR+2*t+h_}')
        for k in range(4): e.I(f'v_mul_f32 v{b+k}, v{b+k}, v{u+2+k}')
        e.I(f'v_cvt_pk_bf16_f32 v{u}, v{b}, v{b+1}')
        e.I(f'v_cvt_pk_bf16_f32 v{u+1}, v{b+2}, v{b+3}')
        for h_ in range(2):
            e.I(f'v_lshlrev_b32 v{b+2*h_}, 16, v{u+h_}')
            e.I(f'v_and_b32 v{b+2*h_+1}, 0xffff0000, v{u+h_}')
            e.I(f'v_lshlrev_b32 v{u+2+2*h_}, 16, v{XR_+2*t+h_}')
            e.I(f'v_and_b32 v{u+3+2*h_}, 0xffff0000, v{XR_+2*t+h_}')
        for k in range(4): e.I(f'v_add_f32 v{b+k}, v{b+k}, v{u+2+k}')
        e.I(f'v_cvt_pk_bf16_f32 v{u+6}, v{b}, v{b+1}')
        e.I(f'v_cvt_pk_bf16_f32 v{u+7}, v{b+2}, v{b+3}')
        e.I(f'buffer_store_dwordx2 {vr(u+6,2)}, v5, s[12:15], s48 offen offset:{TO[t]*32}{("", " sc1", " nt")[opt.ost]}')
    TS(e, 2)
    if opt.ts: e.I('s_lshr_b32 s50, s30, 6')
    TSflush(e, 's50')
    e.I('s_add_u32 s30, s30, 64')
    e.I('s_cmp_lt_u32 s30, s33')
    e.I(f's_cbranch_scc1 {top}')
    DSTAMP(e, 5)
    e.I(f's_cmp_lg_u32 s30, {1279 + 64}')
    e.I('s_cbranch_scc1 L_end')
    e.I('s_mov_b32 exec_hi, 0xffff')
    e.I(f'global_store_dword v3, v6, s[74:75] offset:{D_TR} sc1')
    e.I('s_endpgm')

def gen_mainkernel(e):
    kernel_head(e, MAIN)
    e.I('s_cmp_ge_u32 s2, 256')
    e.I('s_cbranch_scc1 L_end')
    e.I('s_load_dwordx2 s[32:33], s[0:1], 96')
    e.I('s_load_dwordx4 s[60:63], s[0:1], 16')
    e.I('s_load_dwordx4 s[64:67], s[0:1], 32')
    e.I('s_load_dwordx4 s[52:55], s[0:1], 0')
    e.I('s_load_dwordx4 s[56:59], s[0:1], 64')
    e.I('s_load_dwordx4 s[72:75], s[0:1], 80')
    TS(e, 0)
    e.I('s_getreg_b32 s24, hwreg(HW_REG_XCC_ID)')
    e.I('v_and_b32 v1, 63, v0')
    e.I('v_lshlrev_b32 v2, 4, v1')
    e.I('v_lshrrev_b32 v3, 6, v0')
    e.I('v_readfirstlane_b32 s22, v3')
    if opt.cwarm2:
        e.I('s_getpc_b64 s[34:35]')
        e.L('L_pc')
        e.I('s_lshr_b32 s36, s2, 3')
        e.I('s_lshl_b32 s36, s36, 2')
        e.I('v_add_u32 v3, s36, v3')
        e.I(f'v_mul_u32_u24 v3, {opt.cwarm2}, v3')
        e.I(f'v_min_u32 v4, {opt.cwarm2 - 1}, v1')
        e.I('v_add_u32 v3, v3, v4')
        e.I('v_lshlrev_b32 v3, 7, v3')
        e.I('v_min_u32 v3, L_last-L_pc, v3')
        e.I('v_mov_b32 v5, s35')
        e.I('v_add_co_u32 v4, vcc, s34, v3')
        e.I('v_addc_co_u32 v5, vcc, 0, v5, vcc')
        e.I('global_load_dword v255, v[4:5], off')
    if opt.force_slow:
        e.I('s_lshr_b32 s20, s2, 5'); e.I('s_and_b32 s21, s2, 31')
    else:
        e.I('s_and_b32 s20, s2, 7'); e.I('s_lshr_b32 s21, s2, 3')
    e.I('s_and_b32 s24, s24, 15')
    e.I('s_lshl_b32 s96, s20, 4')
    e.I('s_and_b32 s25, s24, 12')
    e.I('s_add_u32 s96, s96, s25')
    e.I('s_and_b32 s25, s24, 3')
    e.I('s_lshl_b32 s25, s25, 3')
    e.I('s_lshl_b32 s97, 1, s25')
    e.I('s_waitcnt lgkmcnt(0)')
    e.I('s_mov_b64 s[70:71], s[72:73]')
    e.I('s_mov_b64 s[68:69], s[52:53]')
    srd(e, 4, 32, WS_BYTES)
    TS(e, 1)
    TSflush(e, '70')
    if opt.dstamp: e.I('s_lshl_b32 s98, s21, 2'); e.I('s_add_u32 s98, s98, s22')
    DSTAMP(e, 0, 's_cmp_eq_u32 s98, 84', 'neg')
    e.I('s_cmp_ge_u32 s21, 22'); e.I('s_cbranch_scc1 L_help')
    e.I('s_sub_u32 s24, s21, 12')
    if opt.urg: e.I('s_cmp_lt_u32 s24, 2')
    else: e.I('s_cmp_eq_u32 s24, 1')
    e.I('s_cbranch_scc1 L_urg')
    register(e, 3, 4)
    e.I('s_cmp_ge_u32 s21, 12'); e.I('s_cbranch_scc1 L_wo')
    role_qkv(e)
    e.L('L_urg')
    srd(e, 8, 52, 2048 * 1280); srd(e, 12, 54, 8 * 1280)
    e.I('s_cmp_lg_u32 s24, 0')
    e.I('s_cbranch_scc1 L_um')
    ln_addr(e)
    e.I('s_mul_i32 s25, s20, 20480')
    ln_load(e, 16, 's25')
    e.I('s_waitcnt vmcnt(0)')
    ln_compute(e, 16, 's25')
    e.I('s_branch L_ur')
    e.L('L_um')
    mem0_copy(e, None, 0, opt.inl)
    e.I('s_mul_i32 s41, s20, 10240')
    e.I(f's_add_u32 s41, s41, {MEM}')
    e.I('s_waitcnt vmcnt(0)')
    mem0_copy(e, 's41', 1)
    e.L('L_ur')
    e.I('s_waitcnt vmcnt(0)')
    e.I('s_barrier')
    register(e, 3, 4)
    e.L('L_wo'); role_sw(e)
    e.L('L_help')
    srd(e, 8, 52, 2048 * 1280)
    e.I('s_mul_i32 s24, s20, 10')
    e.I('s_add_u32 s24, s24, s21')
    e.I('s_sub_u32 s24, s24, 22')
    if opt.urg: init_fill(e, 's24', 80)
    ln_addr(e)
    e.I('s_mul_i32 s25, s24, 20480')
    if opt.urg: e.I(f's_add_u32 s25, s25, {8*20480}')
    e.I(f's_add_u32 s26, s25, {80*20480}')
    ln_load(e, 16, 's25')
    ln_load(e, 36, 's26')
    if opt.urg:
        e.I('s_waitcnt vmcnt(10)')
        e.I('s_barrier')
        register(e, 3, 4)
    elif opt.pfh:
        srd(e, 12, 64, 640 * 12288); srd(e, 16, 60, 640 * 12288)
        e.I('s_sub_u32 s27, s21, 22')
        e.I('s_lshl_b32 s27, s27, 2')
        e.I('s_add_u32 s27, s27, s22')
        prefetch_w(e, 's27', 0, opt.pfh, 124, 's[12:15]', 's[16:19]')
    else: init_fill(e, 's24', 80)
    e.I(f's_waitcnt vmcnt({3*opt.pfh})')
    ln_compute(e, 16, 's25')
    e.I(f's_cmp_ge_u32 s24, {40 if opt.urg else 48}')
    e.I('s_cbranch_scc1 L_hl')
    ln_compute(e, 36, 's26')
    e.L('L_hl')
    if opt.pfh: init_fill(e, 's24', 80)
    e.I('s_waitcnt vmcnt(0)')
    e.I('s_barrier')
    if opt.urg: count_up(e, 3, D_W)
    if not opt.urg: register(e, 3, 4)
    TS(e, 0)
    TSflush(e, '69')
    if opt.touch2:
        wait_reg(e, 16, opt.rsleep)
        e.I('s_sub_u32 s24, s21, 22')
        e.I('s_lshl_b32 s25, s20, 2')
        e.I('s_add_u32 s25, s25, s22')
        touch_jobs(e, [(XN + k * 40960, 10240, 40) for k in range(3)] + [(XN + k * 40960 + 5120, 10240, 40) for k in range(3)], 's24', 10, 's22', 18)
        jobs = []
        for sl in range(4): jobs += [(MEM + sl * MEM_SLOT, 2560, 20), (XR + sl * XR_SLOT, 6144, 48), (VR + sl * VR_SLOT, 3072, 24)]
        touch_jobs(e, jobs[::-1][:4] + jobs[:8], 's24', 10, 's25', 24, 6)
    e.I('s_cmp_ge_u32 s21, 29'); e.I('s_cbranch_scc1 L_ffn')
    e.I('s_cmp_lt_u32 s21, 27'); e.I('s_cbranch_scc1 L_xw')
    role_att(e)
    e.L('L_xw'); role_xw(e)
    e.L('L_ffn'); role_ffn(e)
    e.L('L_cmb'); role_cmb(e)
    e.L('L_fail')
    e.I('s_mov_b64 exec, 1')
    e.I('s_lshl_b32 s31, s31, 2')
    e.I('v_mov_b32 v3, s31')
    e.I('v_mov_b32 v4, 1')
    e.I('global_atomic_add v3, v4, s[74:75]')
    e.L('L_end')
    e.L('L_last')
    e.I('s_endpgm')

def build(path):
    import gen_pre
    gen_pre.DIAG[0] = opt.noinit
    if opt.s62:
        assert opt.rpos == 9
        gen_pre.INIT_REGIONS[-2:] = [(PART, PART_SLOT // 4096, -1), (PX + 62 * SEG_PX, 2 * SEG_PX // 4096, -1)]
    for k in range(3): NT[k] = ' nt' if opt.pnt >> k & 1 else ''
    hdr = open('cdna_kernels/' + NAME + '.s.ref').read().split('\n')
    e = Em()
    for l in hdr:
        if l.startswith(';') and '@launch' not in l and 'Override launch' not in l and 'grid=ceil' not in l: e.raw(l)
    e.raw(f'; @launch grid=(256,1,1) block=(256,1,1) lds=163840')
    e.raw('.amdgcn_target "amdgcn-amd-amdhsa--gfx950"')
    gen_mainkernel(e)
    kernel_desc(e, MAIN, 512, 100, 256)
    hazard.PIPE = bool(opt.pipe)
    lines, added = hazard.pad(e.lines)
    open(path, 'w').write('\n'.join(lines) + '\n')
    n = sum(1 for l in lines if l.startswith('    ') and not l.strip().startswith(';'))
    print(f'wrote {path}: {n} instructions, {added} nops added')

if __name__ == '__main__':
    out = sys.argv[1] if len(sys.argv) > 1 else 'cdna_kernels/' + NAME + '.s'
    if 'slow' in sys.argv[2:]: opt.force_slow = True
    if 'ts' in sys.argv[2:]: opt.ts = True
    for k in ('nobg', 'ackpoll', 'noxw'):
        if k in sys.argv[2:]: setattr(opt, k, True)
    for a_ in sys.argv[2:]:
        if '=' in a_: k_, v_ = a_.split('='); setattr(opt, k_, int(v_))
    build(out)
```
